```python
import torch

def _softmax(x, axis=-1):
    return torch.softmax(x, dim=axis)

def _gelu(x):
    return torch.nn.functional.gelu(x, approximate='tanh')

def _silu(x):
    return torch.nn.functional.silu(x)

def _sigmoid(x):
    return torch.sigmoid(x)

def _layernorm(x, axis=-1, eps=1e-05):
    m = x.mean(dim=axis, keepdim=True)
    v = x.var(dim=axis, keepdim=True, unbiased=False)
    return (x - m) / torch.sqrt(v + eps)

def _scatter_add(tgt, idx, src, axis=0):
    return tgt.clone().index_add_(axis, idx, src)

def _segment_sum(src, seg, n):
    out = torch.zeros((n,) + src.shape[1:], dtype=src.dtype)
    return out.index_add_(0, seg, src)

def _pad(x, pw):
    flat = tuple((v for pair in reversed(pw) for v in pair))
    return torch.nn.functional.pad(x, flat)
kernel_name = 'standalone__tensor_product_equiv_equiformer__graph'

def setup_inputs():

    _w = lambda a: (lambda t: t.to(torch.bfloat16) if t.is_floating_point() else t)(torch.as_tensor(a))
    N, deg, C, De = (10000, 32, 128, max(16, 1))
    E = N * deg
    src = (lambda lo, hi, *s: torch.randint(lo, hi, s))(0, N, E).to(torch.int64)
    dst = (lambda lo, hi, *s: torch.randint(lo, hi, s))(0, N, E).to(torch.int64)
    rvec = (lambda *s: torch.randn(*s, dtype=torch.bfloat16) * 0.05)(E, 3).to(float)
    rn = (torch.linalg.norm(rvec, dim=-1, keepdim=True) + 1e-06).to(float)
    rhat = (rvec / rn).to(float)
    eps = torch.zeros((3, 3, 3), dtype=float)
    eps[0, 1, 2] = eps[1, 2, 0] = eps[2, 0, 1] = 1.0
    eps[0, 2, 1] = eps[2, 1, 0] = eps[1, 0, 2] = -1.0
    return {'x': _w((lambda *s: torch.randn(*s, dtype=torch.bfloat16) * 0.2)(N, 4 * C).to(float)), 'rhat': _w(rhat), 'e_attr': _w((lambda *s: torch.randn(*s, dtype=torch.bfloat16) * 0.2)(E, De).to(float)), 'src': _w(src), 'dst': _w(dst), 'w_rad': _w((lambda *s: torch.randn(*s, dtype=torch.bfloat16) * 0.2)(De, 5 * C).to(float)), 'w_si0': _w((lambda *s: torch.randn(*s, dtype=torch.bfloat16) * 0.2)(2 * C, C).to(float)), 'w_si1': _w((lambda *s: torch.randn(*s, dtype=torch.bfloat16) * 0.05)(3 * C, C).to(float)), 'cg_eps': _w(eps)}

def reference(x, rhat, e_attr, src, dst, w_rad, w_si0, w_si1, cg_eps):
    N = x.shape[0]
    C = w_si0.shape[1]
    E = rhat.shape[0]
    x0 = x[:, :C].clone()
    x1 = x[:, C:].reshape(N, 3, C)
    R = (e_attr @ w_rad).reshape(E, 5, C)
    f0 = x0[src]
    f1 = x1[src]
    Y1 = rhat
    p00_0 = f0 * R[:, 0, :]
    p11_0 = torch.einsum('ejc,ej->ec', f1, Y1) * R[:, 1, :]
    p01_1 = torch.einsum('ec,ej->ejc', f0, Y1) * R[:, 2, :][:, None, :]
    p10_1 = f1 * R[:, 3, :][:, None, :]
    p11_1 = torch.einsum('ijk,ekc,ej->eic', cg_eps, f1, Y1) * R[:, 4, :][:, None, :]
    m0 = torch.concatenate([p00_0, p11_0], axis=-1) @ w_si0
    m1 = torch.einsum('ejp,pc->ejc', torch.concatenate([p01_1, p10_1, p11_1], axis=-1), w_si1)
    agg0 = _segment_sum(m0, dst, N)
    agg1 = _segment_sum(m1.reshape(E, 3 * C), dst, N).reshape(N, 3, C)
    gate = _sigmoid(agg0)
    out1 = agg1 * gate[:, None, :]
    return torch.concatenate([agg0, out1.reshape(N, 3 * C)], axis=-1)
```

```python
import re

class Asm:
    def __init__(self):
        self.lines = []
    def __call__(self, s):
        for l in s.split('\n'):
            l = l.strip()
            if l: self.lines.append(l)
    def label(self, name): self.lines.append(name + ':')
    def text(self): return '\n'.join(self.lines) + '\n'

_reg = re.compile(r'^(-|abs\(|\|)?([vsa])(\d+|\[(\d+):(\d+)\])\)?\|?$')
def regs_of(op):
    op = op.strip()
    if op in ('vcc',): return {('s','vcc')}
    if op in ('vcc_lo','vcc_hi'): return {('s','vcc')}
    if op in ('exec','exec_lo','exec_hi'): return {('s','exec')}
    if op == 'm0': return {('s','m0')}
    m = _reg.match(op)
    if not m: return set()
    k = m.group(2)
    if m.group(4) is not None: return {(k,i) for i in range(int(m.group(4)), int(m.group(5))+1)}
    return {(k,int(m.group(3)))}

def split_ops(rest):
    out=[]; depth=0; cur=''
    for ch in rest:
        if ch in '[(': depth+=1
        if ch in '])': depth-=1
        if ch==',' and depth==0: out.append(cur.strip()); cur=''
        else: cur+=ch
    if cur.strip(): out.append(cur.strip())
    return out

TRANS = ('v_exp_','v_log_','v_rcp_','v_rsq_','v_sqrt_','v_sin_','v_cos_')
class Ins:
    def __init__(self, line):
        self.line = line
        code = line.split(';')[0].strip()
        self.label = None
        self.mn = None
        self.w=set(); self.r=set()
        if not code or code.startswith('.'):
            self.kind='none'; return
        if code.endswith(':'):
            self.kind='label'; self.label=code[:-1]; return
        parts = code.split(None,1)
        mn = parts[0]; self.mn = mn
        rest = parts[1] if len(parts)>1 else ''
        ops = split_ops(rest)
        if ops:
            last = ops[-1].split()
            self.mods = ' '.join(last[1:]); ops[-1] = last[0]
        else: self.mods=''
        self.ops = ops
        R = [regs_of(o) for o in ops]
        self.states = 1
        self.dpp = ('row_' in self.mods or 'quad_perm' in self.mods or 'wave_' in self.mods)
        if mn.startswith('v_mfma') or mn.startswith('v_smfmac'):
            self.kind='mfma'; self.w=R[0]; self.A=R[1]; self.B=R[2]; self.C=R[3]; self.r=R[1]|R[2]|R[3]
            self.passes = 8 if '32x32' in mn else 4
        elif mn.startswith('v_'):
            self.kind='valu'
            if mn.startswith('v_cmp'):
                self.w=set(R[0]); self.r=set().union(*R[1:])
                if mn.startswith('v_cmpx'): self.w.add(('s','exec'))
            elif mn.startswith('v_permlane') and 'swap' in mn:
                self.w=R[0]|R[1]; self.r=R[0]|R[1]
            elif mn in ('v_add_co_u32','v_sub_co_u32','v_addc_co_u32','v_subb_co_u32','v_mad_u64_u32','v_div_scale_f32'):
                self.w=R[0]|R[1]; self.r=set().union(*R[2:])
            elif mn=='v_nop': pass
            else:
                self.w=set(R[0]); self.r=set().union(*R[1:]) if len(R)>1 else set()
                if mn.startswith(('v_fmac','v_dot2c','v_writelane','v_pk_fmac')) or self.dpp or 'sdwa' in mn or 'd16' in mn: self.r|=R[0]
                if mn.startswith('v_cndmask') and len(ops)==3: self.r.add(('s','vcc'))
        elif mn.startswith('ds_'):
            self.kind='ds'
            if mn.startswith(('ds_read','ds_bpermute','ds_permute','ds_swizzle')) or '_rtn' in mn:
                self.w=set(R[0]); self.r=set().union(*R[1:])
            else: self.r=set().union(*R)
        elif mn.startswith(('buffer_','global_')):
            self.kind='vmem'
            self.lds = ' lds' in (' '+self.mods) or 'load_lds' in mn
            if 'load' in mn and not self.lds:
                self.w=set(R[0]); self.r=set().union(*R[1:])
            elif mn in ('buffer_wbl2','buffer_inv'): pass
            else: self.r=set().union(*R) if R else set()
            self.wide_store = 'store' in mn and ('x3' in mn or 'x4' in mn)
            if self.wide_store: self.data = R[0] if mn.startswith('buffer_') else R[1]
        elif mn.startswith('s_'):
            self.kind='salu'
            if mn=='s_nop': self.states=int(ops[0],0)+1
            elif mn.startswith(('s_cmp','s_waitcnt','s_barrier','s_branch','s_cbranch','s_endpgm','s_setprio','s_sleep','s_bitcmp')):
                self.r=set().union(*R) if R else set()
            elif mn.startswith(('s_set_gpr_idx_on','s_set_gpr_idx_idx')):
                self.w={('s','m0')}; self.r=R[0]
            elif mn.startswith('s_set_gpr_idx_off'): pass
            else:
                self.w=set(R[0]); self.r=set().union(*R[1:]) if len(R)>1 else set()
                if 'saveexec' in mn: self.w.add(('s','exec'))
        else:
            raise ValueError('unknown instr: '+line)

def V(s): return {x for x in s if x[0] in 'va'}
def S(s): return {x for x in s if x[0]=='s'}

def required(p, c):
    need=0
    if p.kind=='valu':
        pv=V(p.w); ps=S(p.w)
        if c.kind=='mfma' and pv & c.r: need=max(need,2)
        if c.kind=='valu':
            if (c.dpp or c.mn.startswith('v_permlane')) and pv & V(c.r): need=max(need,2)
            if c.mn.startswith(('v_readlane','v_readfirstlane')) and pv & V(c.r): need=max(need,1)
            if ps & S(c.r):
                need=max(need, 4 if c.mn.startswith(('v_readlane','v_writelane')) else 2)
            if p.mn.startswith(TRANS) and pv & V(c.r): need=max(need,1)
            if ('sdwa' in p.mn or 'op_sel' in p.mods) and pv & (V(c.r)|V(c.w)): need=max(need,1)
            if ('s','exec') in ps:
                if c.dpp: need=max(need,5)
                if c.mn.startswith(('v_readlane','v_readfirstlane','v_writelane','v_permlane')): need=max(need,4)
        if c.kind=='mfma' and ('s','exec') in ps: need=max(need,4)
        if c.kind=='vmem' and (ps & S(c.r) or ('s','exec') in ps): need=max(need,5)
        if c.kind=='salu' and ps & S(c.r) and not c.mn.startswith('s_nop'): need=max(need,1)
        if c.kind=='salu' and c.mn in ('s_cbranch_vccz','s_cbranch_vccnz') and ('s','vcc') in ps: need=max(need,1)
    if p.kind=='mfma':
        n = {4:8, 8:12}[p.passes]
        if c.kind in ('valu',) and p.w & (c.r|c.w): need=max(need,n)
        if c.kind in ('ds','vmem') and p.w & (c.r|c.w): need=max(need,n)
        if c.kind=='mfma':
            if p.w & (c.A|c.B): need=max(need,n)
            if p.w & c.C and not (p.w==c.C and p.passes==c.passes): need=max(need,{4:6,8:10}[p.passes])
            if p.w & c.w and not (p.w & c.C): need=max(need,0)
        if c.kind=='valu' and p.C & c.w: need=max(need,{4:3,8:7}[p.passes])
    if p.kind=='salu':
        if ('s','m0') in p.w:
            if c.kind=='vmem' and c.lds: need=max(need,1)
            if p.mn.startswith(('s_set_gpr_idx_on','s_set_gpr_idx_idx')) and c.kind=='valu': need=max(need,1)
    if p.kind=='vmem' and p.wide_store:
        if c.kind=='valu' and p.data & c.w: need=max(need,2)
        elif c.kind in ('ds','vmem','mfma') and p.data & c.w: need=max(need,1)
    return need

MAXNEED=12
def fix_hazards(lines, verbose=True):
    inserted=[]
    while True:
        ins=[Ins(l) for l in lines]
        labels={i.label:k for k,i in enumerate(ins) if i.kind=='label'}
        def succ(k):
            i=ins[k]
            if i.kind=='salu':
                if i.mn=='s_endpgm': return []
                if i.mn=='s_branch': return [labels[i.ops[0]]]
                if i.mn.startswith('s_cbranch'): return [k+1, labels[i.ops[0]]]
            return [k+1] if k+1<len(ins) else []
        fix={}
        for k,p in enumerate(ins):
            if p.kind in ('none','label'): continue
            if p.kind=='salu' and ('s','m0') not in p.w: continue
            if p.kind=='ds': continue
            if p.kind=='vmem' and not p.wide_store: continue
            lim = 12 if p.kind=='mfma' else 5
            seen={}
            stack=[(j,0) for j in succ(k)]
            while stack:
                j,d=stack.pop()
                if d>=lim or seen.get(j,99)<=d: continue
                seen[j]=d
                c=ins[j]
                if c.kind in ('none','label'):
                    stack+= [(x,d) for x in succ(j)]; continue
                n=required(p,c)
                if n>d:
                    fix[j]=max(fix.get(j,0), n-d)
                    inserted.append((n-d, p.line, c.line))
                stack+= [(x,d+c.states) for x in succ(j)]
        if not fix: break
        out=[]; last=-100
        for k,l in enumerate(lines):
            if k in fix and k-last>14:
                out.append(f's_nop {fix[k]-1}   ; auto'); last=k
            out.append(l)
        lines=out
    if verbose:
        n=sum(1 for l in lines if l.endswith('; auto'))
        print(f'hazard fixer: {n} s_nop inserted')
    return lines
```

```python
import sys, os
sys.path.insert(0, os.path.dirname(os.path.abspath(__file__)))
from asmlib import Asm, fix_hazards

NAME = 'standalone__tensor_product_equiv_equiformer__graph'
N = 10000; E = 320000
NCH = 256; CH = E // NCH
RECB = 48
CHB = CH * RECB
WS_REC = 0
WS_TBL = 0x0F00000
WS_STAB = 0x0F40000
WS_WTAB = 0x0F68000
WS_RANK = 0x1000000
WS_ACC = 0x1200000
WS_SIZE = 0x3000000
BMUL = 429497
for d in range(N): assert ((d * BMUL) & 0xffffffff) >> 24 == (d * 16) // 625

OPT = dict(a.split('=') for a in sys.argv[2:]) if len(sys.argv) > 2 else {}
def opt(k, d): return type(d)(OPT.get(k, d)) if not isinstance(d, bool) else bool(int(OPT.get(k, d)))

def srd(a, s, ptr, nbytes):
    a(f's_mov_b32 s{s}, s{ptr}\ns_and_b32 s{s+1}, s{ptr+1}, 0xffff\ns_mov_b32 s{s+2}, {nbytes}\ns_mov_b32 s{s+3}, 0x20000')

def scan(a, v, op='v_add_u32'):
    for sh in (1, 2, 4, 8):
        a(f'{op}_dpp v{v}, v{v}, v{v} row_shr:{sh} row_mask:0xf bank_mask:0xf bound_ctrl:0')
    a(f'{op}_dpp v{v}, v{v}, v{v} row_bcast:15 row_mask:0xa bank_mask:0xf')
    a(f'{op}_dpp v{v}, v{v}, v{v} row_bcast:31 row_mask:0xc bank_mask:0xf')

K1_T = 640
K1_LDS = 2048 + CHB
def k1():
    a = Asm()
    a(f'''
    s_cmp_ge_u32 s2, {NCH}
    s_cbranch_scc1 K1_END
    s_load_dwordx4 s[36:39], s[0:1], 8
    s_load_dwordx4 s[40:43], s[0:1], 24
    s_load_dwordx4 s[44:47], s[0:1], 40
    s_load_dwordx2 s[48:49], s[0:1], 56     ; w_si1
    s_load_dwordx2 s[50:51], s[0:1], 88     ; ws
    v_lshrrev_b32 v1, 6, v0
    v_lshlrev_b32 v2, 2, v0                 ; t*4
    v_readfirstlane_b32 s3, v1              ; wave
    v_and_b32 v3, 1, v0
    v_mul_u32_u24 v4, 6, v0
    v_lshlrev_b32 v5, 1, v3
    v_sub_u32 v4, v4, v5
    v_lshlrev_b32 v5, 5, v0                 ; t*32
    v_lshlrev_b32 v3, 4, v3                 ; shift 0/16
    v_mov_b32 v6, 0
    s_mul_i32 s52, s2, {CH*4}
    s_mul_i32 s53, s2, {CH*6}
    s_mul_i32 s54, s2, {CH*32}
    s_add_u32 s55, s54, {K1_T*32}
    s_waitcnt lgkmcnt(0)
    ''')
    srd(a, 4, 42, E*4)
    srd(a, 8, 40, E*4)
    srd(a, 12, 36, E*6)
    srd(a, 16, 38, E*32)
    srd(a, 20, 50, WS_SIZE)
    a(f'''
    buffer_load_dword v10, v2, s[4:7], s52 offen
    buffer_load_dword v11, v2, s[4:7], s52 offen offset:{K1_T*4}
    buffer_load_dword v12, v2, s[8:11], s52 offen
    buffer_load_dword v13, v2, s[8:11], s52 offen offset:{K1_T*4}
    buffer_load_dwordx2 v[14:15], v4, s[12:15], s53 offen
    buffer_load_dwordx2 v[16:17], v4, s[12:15], s53 offen offset:{K1_T*6}
    buffer_load_dwordx4 v[20:23], v5, s[16:19], s54 offen
    buffer_load_dwordx4 v[24:27], v5, s[16:19], s54 offen offset:16
    buffer_load_dwordx4 v[32:35], v5, s[16:19], s55 offen
    buffer_load_dwordx4 v[36:39], v5, s[16:19], s55 offen offset:16
    v_cmp_gt_u32 vcc, 256, v0
    s_and_saveexec_b64 s[56:57], vcc
    s_cbranch_execz K1_NOCLR
    ds_write_b32 v2, v6
    K1_NOCLR:
    s_mov_b64 exec, s[56:57]
    s_mov_b32 s58, {BMUL}
    v_mov_b32 v7, 1
    s_waitcnt lgkmcnt(0)
    s_barrier
    s_waitcnt vmcnt(8)
    v_mul_u32_u24 v40, s58, v10
    v_mul_u32_u24 v41, s58, v11
    v_lshrrev_b32 v40, 24, v40              ; bucket 0
    v_lshrrev_b32 v41, 24, v41              ; bucket 1
    v_lshlrev_b32 v42, 2, v40
    v_lshlrev_b32 v43, 2, v41
    ds_add_rtn_u32 v44, v42, v7
    v_cmp_gt_u32 s[60:61], {CH-K1_T}, v0
    ''')
    a.lines[-1] = f'v_cmp_gt_u32 vcc, {CH-K1_T}, v0'
    a(f'''
    s_mov_b64 s[60:61], vcc
    s_and_saveexec_b64 s[56:57], vcc
    ds_add_rtn_u32 v45, v43, v7
    s_mov_b64 exec, s[56:57]
    s_movk_i32 s59, 625
    v_mad_u32_u24 v46, v40, s59, 15
    v_mad_u32_u24 v47, v41, s59, 15
    v_lshrrev_b32 v46, 4, v46
    v_lshrrev_b32 v47, 4, v47
    v_sub_u32 v46, v10, v46
    v_sub_u32 v47, v11, v47
    v_and_b32 v8, 63, v0
    v_lshlrev_b32 v9, 4, v8                 ; lane*16
    s_waitcnt lgkmcnt(0)
    s_barrier
    ds_read_b128 v[48:51], v9
    s_waitcnt lgkmcnt(0)
    v_add_u32 v53, v48, v49
    v_add_u32 v54, v53, v50
    v_add_u32 v55, v54, v51
    v_mov_b32 v56, v55
    ''')
    scan(a, 56)
    a(f'''
    v_sub_u32 v56, v56, v55                 ; exclusive
    v_add_u32 v57, v56, v48
    v_add_u32 v58, v56, v53
    v_add_u32 v59, v56, v54
    ds_write_b128 v9, v[56:59] offset:1024
    s_cmp_lg_u32 s3, 0
    s_cbranch_scc1 K1_NOTBL
    v_lshl_or_b32 v60, v48, 16, v56
    v_lshl_or_b32 v61, v49, 16, v57
    v_lshl_or_b32 v62, v50, 16, v58
    v_lshl_or_b32 v63, v51, 16, v59
    s_lshl_b32 s62, s2, 10
    s_add_u32 s62, s62, {WS_TBL}
    buffer_store_dwordx4 v[60:63], v9, s[20:23], s62 offen
    K1_NOTBL:
    s_waitcnt lgkmcnt(0)
    ds_read_b32 v52, v42 offset:1024
    ds_read_b32 v53, v43 offset:1024
    s_waitcnt vmcnt(4)
    ''')
    if True:
        pass
    a(f'''
    v_lshl_or_b32 v31, v46, 16, v12         ; meta 0
    v_lshl_or_b32 v43, v47, 16, v13         ; meta 1
    v_lshrrev_b64 v[14:15], v3, v[14:15]
    v_lshrrev_b64 v[16:17], v3, v[16:17]
    v_lshlrev_b32 v28, 16, v14
    v_and_b32 v29, 0xffff0000, v14
    v_lshlrev_b32 v30, 16, v15
    v_lshlrev_b32 v40, 16, v16
    v_and_b32 v41, 0xffff0000, v16
    v_lshlrev_b32 v42, 16, v17
    s_waitcnt lgkmcnt(0)
    v_add_u32 v52, v52, v44
    v_add_u32 v53, v53, v45
    v_mul_u32_u24 v52, {RECB}, v52
    v_mul_u32_u24 v53, {RECB}, v53
    ds_write_b128 v52, v[28:31] offset:{2048+32}
    s_mov_b64 exec, s[60:61]
    ds_write_b128 v53, v[40:43] offset:{2048+32}
    s_mov_b64 exec, -1
    s_waitcnt vmcnt(0)
    ds_write_b128 v52, v[20:23] offset:2048
    ds_write_b128 v52, v[24:27] offset:{2048+16}
    s_mov_b64 exec, s[60:61]
    ds_write_b128 v53, v[32:35] offset:2048
    ds_write_b128 v53, v[36:39] offset:{2048+16}
    s_mov_b64 exec, -1
    v_lshlrev_b32 v5, 4, v0                 ; t*16
    s_mul_i32 s52, s2, {CHB}
    s_waitcnt lgkmcnt(0)
    s_barrier
    ''')
    npiece = CH * 3
    nit = (npiece + K1_T - 1) // K1_T
    for i in range(nit):
        a(f'ds_read_b128 v[{12+4*i}:{15+4*i}], v5 offset:{2048 + i*K1_T*16}')
    st = opt('k1st', '')
    for i in range(nit):
        a(f's_waitcnt lgkmcnt({nit-1-i})')
        if i == nit - 1:
            a(f'v_cmp_gt_u32 vcc, {npiece - i*K1_T}, v0\ns_and_saveexec_b64 s[56:57], vcc\ns_cbranch_execz K1_STD')
        a(f'buffer_store_dwordx4 v[{12+4*i}:{15+4*i}], v5, s[20:23], s52 offen {st}')
        if i < nit - 1: a(f's_add_u32 s52, s52, {K1_T*16}')
    a(f'''
    K1_STD:
    s_mov_b64 exec, -1
    s_cmp_lg_u32 s3, 9
    s_cbranch_scc1 K1_END
    s_cmp_ge_u32 s2, 180
    s_cbranch_scc1 K1_END
    v_and_b32 v1, 15, v8
    v_lshrrev_b32 v2, 4, v8
    s_cmp_ge_u32 s2, 160
    s_cbranch_scc1 K1_WT
    s_cmp_ge_u32 s2, 64
    s_cbranch_scc1 K1_S1
    s_lshr_b32 s24, s2, 3
    s_and_b32 s25, s2, 7
    s_lshr_b32 s26, s25, 2
    s_bfe_u32 s27, s25, 0x10001
    s_and_b32 s28, s25, 1
    ''')
    srd(a, 4, 46, 256*128*2)
    a(f'''
    s_branch K1_SC
    K1_S1:
    ; S1: g2 = g-64; w = g2/12, f2 = g2%12 : ph = f2/6, path = (f2%6)>>1, hh = f2&1
    s_sub_u32 s29, s2, 64
    s_mul_i32 s24, s29, 43
    s_lshr_b32 s24, s24, 9
    s_mul_i32 s25, s24, 12
    s_sub_u32 s25, s29, s25
    s_cmp_ge_u32 s25, 6
    s_cselect_b32 s26, 1, 0
    s_mul_i32 s27, s26, 6
    s_sub_u32 s27, s25, s27
    s_lshr_b32 s27, s27, 1
    s_and_b32 s28, s25, 1
    s_add_u32 s25, s25, 8
    ''')
    for g2 in range(96): assert (g2*43) >> 9 == g2 // 12
    srd(a, 4, 48, 384*128*2)
    a(f'''
    K1_SC:
    s_lshl_b32 s27, s27, 7
    s_lshl_b32 s26, s26, 6
    s_lshl_b32 s28, s28, 5
    s_add_u32 s27, s27, s26
    s_add_u32 s27, s27, s28
    s_lshl_b32 s27, s27, 8
    s_lshl_b32 s26, s24, 5                  ; col0*2
    s_add_u32 s27, s27, s26
    v_lshlrev_b32 v2, 11, v2
    v_lshl_add_u32 v2, v1, 1, v2
    ''')
    for e in range(8):
        a(f'buffer_load_ushort v{12+e}, v2, s[4:7], s27 offen offset:{e*256}')
    a(f'''
    s_mul_i32 s24, s24, 20
    s_add_u32 s24, s24, s25
    s_lshl_b32 s24, s24, 10
    s_add_u32 s24, s24, {WS_STAB}
    s_branch K1_PACK
    K1_WT:
    ; W: g3 = g-160; ph = g3/10, i = g3%10 : p = i>>1, u = i&1
    s_sub_u32 s24, s2, 160
    s_cmp_ge_u32 s24, 10
    s_cselect_b32 s26, 1, 0
    s_mul_i32 s25, s26, 10
    s_sub_u32 s25, s24, s25
    s_lshr_b32 s27, s25, 1
    s_and_b32 s28, s25, 1
    s_lshl_b32 s27, s27, 8
    s_lshl_b32 s26, s26, 7
    s_lshl_b32 s28, s28, 6
    s_add_u32 s27, s27, s26
    s_add_u32 s27, s27, s28
    s_add_u32 s28, s27, {8*1280}
    ''')
    srd(a, 4, 44, 16*640*2)
    a(f'''
    v_and_b32 v1, 31, v8
    v_lshrrev_b32 v2, 5, v8
    v_mul_u32_u24 v2, {4*1280}, v2
    v_lshl_add_u32 v2, v1, 1, v2
    ''')
    for r in range(8):
        a(f'buffer_load_ushort v{12+r}, v2, s[4:7], s{27 + (r>>2)} offen offset:{(r&3)*1280}')
    a(f'''
    s_lshl_b32 s24, s24, 10
    s_add_u32 s24, s24, {WS_WTAB}
    K1_PACK:
    s_waitcnt vmcnt(0)
    v_lshl_or_b32 v20, v13, 16, v12
    v_lshl_or_b32 v21, v15, 16, v14
    v_lshl_or_b32 v22, v17, 16, v16
    v_lshl_or_b32 v23, v19, 16, v18
    buffer_store_dwordx4 v[20:23], v9, s[20:23], s24 offen
    K1_END:
    s_endpgm
    ''')
    return a.lines, 64

BLK = 800
CAP = 120; CAPU = CAP - 1
RING = 8192
RECBASE = 65536
NULLBASE = RECBASE + CAPU * BLK
MISC = RECBASE + CAP * BLK
HIST = MISC; TABL = MISC + 256; CNT = MISC + 512; FLAG = MISC + 516; DONE = MISC + 520
K2_LDS = MISC + 576
U = 10
ACC = 0; AR = 64; WR = 96; BR = 176; P0 = 192; G = 222; SR = 230; PW = 234
VB0 = 246; VB1 = 247; VLG = 248; VAO = 249; VYO = 250; VSO = 251; VL2 = 252; VTAB = 253; VT0 = 254; VT1 = 255
sX = 4; sWS = 8; sOUT = 12
sW = 16; sNB = 17; sNC = 18; sJ0 = 19; sRND = 20; sR = 21; sRW = 22; sMORE = 23; sFIRST = 24
sCB = 25; sCK = 26; sCPH = 27; sCP = 28; sNBs = 29; sNK = 30; sNPH = 31; sNP = 32; sNV = 33
sRING = 34; sJ = 35; sOWN = 36; sNX = 40; s1024 = 44
sT = 45
sEX = 60
sEX2 = 62
sB = 64

def tile(t, u): return ACC + 16 * (2*u + t)
def Wreg(p, u): return WR + p*16 + u*8

class K2:
    def __init__(self):
        self.a = Asm()
        self.uid = 0
    def lab(self, s):
        self.uid += 1
        return f'K2_{s}_{self.uid}'

    def dma(self, slot, greg, soff):
        a = self.a
        a(f's_add_u32 m0, s{sRING}, {slot*2048}')
        a(f'buffer_load_dwordx4 v{greg}, s[{sX}:{sX+3}], s{soff} offen lds')
        a(f's_add_u32 m0, s{sRING}, {slot*2048+1024}')
        a(f'buffer_load_dwordx4 v{greg+1}, s[{sX}:{sX+3}], s{soff} offen lds')
    def bread(self, slot, buf, u):
        a = self.a
        for r in range(2):
            d = BR + buf*8 + u*4 + r*2
            a(f'ds_read_b64_tr_b16 v[{d}:{d+1}], v{VB0+u} offset:{slot*2048 + r*512}')
    def gmads(self):
        for t in range(4):
            self.a(f'v_mad_u32_u16 v{G+2*t}, v{SR+t}, s{s1024}, v{VLG}')
            self.a(f'v_mad_u32_u16 v{G+2*t+1}, v{SR+t}, s{s1024}, v{VLG} op_sel:[1,0,0,0]')
    def claim_issue(self):
        a = self.a
        dyn = self.lab('dyn'); done = self.lab('cl')
        a(f'''
        s_add_u32 s{sJ}, s{sJ}, 1
        s_lshl_b32 s{sT}, s{sJ}, 3
        s_add_u32 s{sT}, s{sT}, s{sW}
        s_cmp_lt_u32 s{sT}, s{sNC}
        s_cbranch_scc1 {done}
        s_mov_b32 s{sJ}, 8
        s_mov_b32 s{sT}, -1
        v_mov_b32 v{SR+1}, {CNT}
        v_mov_b32 v{SR+2}, 1
        s_mov_b64 exec, 1
        ds_add_rtn_u32 v{SR}, v{SR+1}, v{SR+2}
        s_mov_b64 exec, -1
        {done}:
        ''')
    def claim_finish(self):
        a = self.a
        st = self.lab('st'); nd = self.lab('nd')
        a(f'''
        s_mov_b32 s{sNPH}, 0
        s_mul_i32 s{sNP}, s{sJ}, 6
        s_mov_b32 s{sNV}, 1
        s_cmp_lg_u32 s{sT}, -1
        s_cbranch_scc1 {st}
        s_cmp_lg_u32 s{sCPH}, 0
        s_cbranch_scc1 {nd}
        s_mov_b64 exec, 1
        ds_add_u32 v{SR+1}, v{SR+2} offset:{DONE-CNT}
        s_mov_b64 exec, -1
        {nd}:
        s_waitcnt lgkmcnt(0)
        v_readfirstlane_b32 s{sT}, v{SR}
        s_mov_b32 s{sNPH}, 1
        s_cmp_lt_u32 s{sT}, s{sNC}
        s_cselect_b32 s{sNV}, 1, 0
        s_cselect_b32 s{sT}, s{sT}, 63
        {st}:
        ''')
        self.next_info()
    def next_info(self):
        a = self.a
        qp = {1:[0,1,2,3], 2:[0,0,1,1], 3:[0,0,0,1], 4:[0,0,0,0]}
        sp = {1:[0,0,0,0], 2:[0,1,0,1], 3:[0,1,2,0], 4:[0,1,2,3]}
        qc = 0; sc = 0
        for k in range(1,5):
            for t in range(4):
                qc |= qp[k][t] << (8*(k-1) + 2*t)
                sc |= sp[k][t] << (8*(k-1) + 2*t)
        skip = self.lab('p1')
        a(f'''
        v_readlane_b32 s{sT+1}, v{VTAB}, s{sT}
        s_and_b32 s{sNBs}, s{sT+1}, 0x3ffff
        s_bfe_u32 s{sNK}, s{sT+1}, 0x30012
        s_cmp_eq_u32 s{sNPH}, 0
        s_cbranch_scc1 {skip}
        s_lshr_b32 s{sNP}, s{sT+1}, 21
        s_add_u32 s{sNP}, s{sNP}, s{sNBs}
        {skip}:
        s_lshl_b32 s{sT+2}, s{sNK}, 3
        s_sub_u32 s{sT+2}, s{sT+2}, 8
        s_lshr_b32 s{sT+3}, {qc:#x}, s{sT+2}
        s_lshr_b32 s{sT+4}, {sc:#x}, s{sT+2}
        s_lshl_b32 s{sT+5}, s{sNPH}, 7
        ''')
        for t in range(4):
            if t == 0:
                a(f's_mov_b32 s{sNX}, s{sT+5}')
                a(f'v_add_u32 v{SR}, s{sNBs}, v{VSO}')
            else:
                a(f's_bfe_u32 s{sT+6}, s{sT+3}, {0x20000 + 2*t:#x}')
                a(f's_lshl_b32 s{sT+6}, s{sT+6}, 8')
                a(f's_add_u32 s{sNX+t}, s{sT+6}, s{sT+5}')
                a(f's_bfe_u32 s{sT+6}, s{sT+4}, {0x20000 + 2*t:#x}')
                a(f's_mul_i32 s{sT+6}, s{sT+6}, {BLK}')
                a(f's_add_u32 s{sT+6}, s{sT+6}, s{sNBs}')
                a(f'v_add_u32 v{SR+t}, s{sT+6}, v{VSO}')
        for t in range(4):
            a(f'ds_read_b32 v{SR+t}, v{SR+t}')
    def abuild(self, nK):
        a = self.a
        va, vy = ACC + 62, ACC + 63
        a(f'v_add_u32 v{va}, s{sCB}, v{VAO}')
        a(f'v_add_u32 v{vy}, s{sCB}, v{VYO}')
        def base(s): return ACC + (s & 1) * 28
        def reads(s):
            b = base(s)
            a(f'ds_read_b64_tr_b16 v[{b}:{b+1}], v{va} offset:{s*BLK}')
            a(f'ds_read_b64_tr_b16 v[{b+2}:{b+3}], v{va} offset:{s*BLK+128}')
            for t in range(2):
                for hh in range(2):
                    d = b + 4 + t*8 + hh*4
                    a(f'ds_read_b128 v[{d}:{d+3}], v{vy} offset:{s*BLK + t*128 + hh*16}')
        reads(0)
        if nK > 1: reads(1)
        for s in range(nK):
            b = base(s)
            later = 6 if s + 1 < nK else 0
            a(f's_waitcnt lgkmcnt({later+4})')
            for i in range(4):
                a(f'v_lshlrev_b32 v{b+20+2*i}, 16, v{b+i}')
                a(f'v_and_b32 v{b+21+2*i}, 0xffff0000, v{b+i}')
            for t in range(2):
                a(f's_waitcnt lgkmcnt({later + 2*(1-t)})')
                for e in range(8):
                    a(f'v_mul_f32 v{b+4+t*8+e}, v{b+20+e}, v{b+4+t*8+e}')
                for i in range(4):
                    a(f'v_cvt_pk_bf16_f32 v{AR+s*8+t*4+i}, v{b+4+t*8+2*i}, v{b+5+t*8+2*i}')
            if s + 2 < nK: reads(s + 2)
    def contraction(self, q):
        a = self.a
        R = dict(A=PW, B=PW+2, C=PW+4, D=PW+6, E=PW+8, F=PW+10)
        if q == 0:   ch = [(0,0,'A','new'),(1,2,'B','new'),(2,2,'C','new'),(3,2,'D','new')]
        elif q == 1: ch = [(0,3,'A','new'),(1,1,'B','new'),(2,4,'C','new'),(3,4,'D','new')]
        elif q == 2: ch = [(0,3,'E','new'),(1,4,'C','neg'),(2,1,'B','acc'),(3,4,'F','new')]
        else:        ch = [(0,3,'E','new'),(1,4,'D','neg'),(2,4,'F','neg'),(3,1,'B','acc')]
        for u in range(2):
            for r in range(8):
                for (b, p, d, mode) in ch:
                    T = tile(b >> 1, u) + (b & 1)*8 + r
                    W = Wreg(p, u) + r
                    D = R[d] + u
                    if r == 0 and mode == 'new': a(f'v_mul_f32 v{D}, v{T}, v{W}')
                    elif r == 0 and mode == 'neg': a(f'v_fma_f32 v{D}, v{T}, v{W}, -v{D}')
                    else: a(f'v_fmac_f32 v{D}, v{T}, v{W}')
        def fold(names):
            for n, _ in names: a(f'v_permlane32_swap_b32 v{R[n]}, v{R[n]+1}')
            for n, neg in names:
                if neg: a(f'v_add_f32 v{R[n]}, -v{R[n]}, -v{R[n]+1}')
                else: a(f'v_add_f32 v{R[n]}, v{R[n]}, v{R[n]+1}')
        def flush(pairs):
            p1 = self.lab('fl1'); done = self.lab('fld')
            a(f's_cmp_lg_u32 s{sCPH}, 0\ns_cbranch_scc1 {p1}')
            a(f's_set_gpr_idx_on s{sCP}, gpr_idx(DST)')
            for (slot, lo, lr, hi, hr) in pairs: a(f'v_cvt_pk_bf16_f32 v{P0+slot}, v{lo}, v{hi}')
            a(f's_set_gpr_idx_off\ns_branch {done}\n{p1}:')
            a(f'v_add_u32 v{VT0}, s{sCP}, v{VL2}')
            for (slot, lo, lr, hi, hr) in pairs: a(f'v_cvt_pk_bf16_f32 v{lo}, v{lo}, v{hi}')
            for (slot, lo, lr, hi, hr) in pairs:
                a(f'ds_write_b16 v{VT0}, v{lo} offset:{lr*128}')
                if hr is not None: a(f'ds_write_b16_d16_hi v{VT0}, v{lo} offset:{hr*128}')
            a(f'{done}:')
        if q == 0:
            fold([('A',0),('B',0),('C',0),('D',0)])
            flush([(0, R['A'], 0, R['B'], 2), (1, R['C'], 5, R['D'], 8)])
        elif q == 1:
            fold([('A',0)])
        elif q == 2:
            fold([('E',0),('C',0)])
            flush([(2, R['A'], 3, R['E'], 6)])
        else:
            fold([('E',0),('B',0),('D',1),('F',0)])
            flush([(3, R['E'], 9, R['B'], 1), (4, R['F'], 4, R['D'], 7), (5, R['C'], 10, R['C'], None)])
    def unit(self, nK):
        a = self.a
        a(f'K2_UNIT{nK}:')
        if nK == 1: self.claim_issue()
        self.abuild(nK)
        pend = 0
        if nK == 1:
            self.claim_finish(); pend = 0
        n = 4 * nK
        for q in range(4):
            a(f's_setprio {opt("prio", 2)}')
            for s in range(nK):
                i = q*nK + s
                a(f's_waitcnt lgkmcnt({pend})'); pend = 0
                def mf(t, u):
                    c = f'v[{tile(t,u)}:{tile(t,u)+15}]' if s else '0'
                    bb = BR + (i & 1)*8 + u*4
                    a(f'v_mfma_f32_32x32x16_bf16 v[{tile(t,u)}:{tile(t,u)+15}], v[{AR+s*8+t*4}:{AR+s*8+t*4+3}], v[{bb}:{bb+3}], {c}')
                mf(0, 0)
                if i + 4 == n: self.gmads()
                if i + 4 < n: self.dma(i & 3, G + 2*((i+4) % nK), sOWN + (i+4)//nK)
                else: self.dma(i & 3, G + 2*(i+4-n), sNX + (i+4-n))
                mf(1, 0)
                a('s_waitcnt vmcnt(6)')
                self.bread((i+1) & 3, (i+1) & 1, 0)
                mf(0, 1)
                self.bread((i+1) & 3, (i+1) & 1, 1)
                mf(1, 1)
            a('s_setprio 0')
            if q == 0 and nK > 1: self.claim_issue()
            self.contraction(q)
            if q == 0 and nK > 1:
                self.claim_finish(); pend = 4
        a('s_branch K2_NEXT')

    def wunpack(self):
        a = self.a
        for i in range(40):
            a(f'v_lshlrev_b32 v{WR+2*i}, 16, v{WR+40+i}')
            a(f'v_and_b32 v{WR+2*i+1}, 0xffff0000, v{WR+40+i}')
    def wload(self, ph, vl16):
        a = self.a
        for i in range(10):
            if i % 4 == 0: a(f's_mov_b32 s{sT}, {WS_WTAB + ph*10240 + i*1024}')
            a(f'buffer_load_dwordx4 v[{WR+40+4*i}:{WR+43+4*i}], v{vl16}, s[{sWS}:{sWS+3}], s{sT} offen offset:{(i%4)*1024}')

    def gen(self):
        a = self.a
        vL, vT_, vC, vE, vREM, vOFF = 176, 177, 178, 179, 180, 181
        RK = 120
        NBs = 182
        a(f'''
        s_cmp_ge_u32 s2, 256
        s_cbranch_scc1 K2_END
        s_load_dwordx2 s[46:47], s[0:1], 0
        s_load_dwordx2 s[48:49], s[0:1], 72
        s_load_dwordx2 s[50:51], s[0:1], 88
        v_lshrrev_b32 v1, 6, v0
        s_mov_b32 s{sB}, s2
        v_readfirstlane_b32 s{sW}, v1
        s_mul_i32 s{sNB}, s2, 625
        s_add_u32 s{sNC}, s{sNB}, {625+15}
        s_add_u32 s{sNB}, s{sNB}, 15
        s_lshr_b32 s{sNB}, s{sNB}, 4
        s_lshr_b32 s{sNC}, s{sNC}, 4
        s_sub_u32 s{sNC}, s{sNC}, s{sNB}
        s_mov_b32 s{sJ0}, 0
        s_mov_b32 s{sFIRST}, 1
        s_movk_i32 s{s1024}, 1024
        s_lshl_b32 s{sRING}, s{sW}, 13
        s_waitcnt lgkmcnt(0)
        ''')
        srd(a, sX, 46, N*1024); srd(a, sWS, 50, WS_SIZE); srd(a, sOUT, 48, N*1024)
        a(f'''
        K2_WINDOW:
        s_mov_b32 s{sRND}, 0
        s_mov_b32 s{sR}, 1
        s_mov_b32 s{sRW}, 64
        K2_LOAD:
        v_mbcnt_lo_u32_b32 v{vL}, -1, 0
        v_mbcnt_hi_u32_b32 v{vL}, -1, v{vL}
        s_lshl_b32 s{sT}, s{sW}, 6
        v_add_u32 v{vT_}, s{sT}, v{vL}
        v_lshrrev_b32 v{vC}, 1, v{vT_}          ; cell
        v_lshlrev_b32 v1, 10, v{vC}
        s_lshl_b32 s{sT}, s{sB}, 2
        s_add_u32 s{sT}, s{sT}, {WS_TBL}
        buffer_load_dword v{vE}, v1, s[{sWS}:{sWS+3}], s{sT} offen
        v_lshlrev_b32 v2, 4, v{vL}
        ''')
        self.wload(0, 2)
        for t in range(512): assert (t*1311) >> 16 == t // 50
        a(f'''
        v_mul_u32_u24 v3, 1311, v{vT_}
        v_lshrrev_b32 v3, 16, v3
        v_mul_u32_u24 v3, 50, v3
        v_sub_u32 v3, v{vT_}, v3
        v_subrev_u32 v4, 32, v3
        v_mov_b32 v8, 0
        v_mov_b32 v5, 1.0
        v_cmp_gt_u32 vcc, 4, v4
        v_cndmask_b32 v8, v8, v5, vcc
        v_cmp_le_u32 vcc, 48, v3
        v_cndmask_b32 v8, v8, -1, vcc
        v_lshlrev_b32 v6, 4, v{vT_}
        v_add_u32 v6, {RECBASE}, v6
        v_add_u32 v7, 64000, v6
        v_mov_b32 v9, v8
        v_mov_b32 v10, v8
        v_mov_b32 v11, v8
        v_cmp_gt_u32 vcc, 500, v{vT_}
        s_and_saveexec_b64 s[{sEX}:{sEX+1}], vcc
        ''')
        for i in range(CAP // 10):
            a(f'ds_write_b128 v{6 + (i//8)}, v[8:11] offset:{(i%8)*8000}')
        a(f'''
        s_mov_b64 exec, s[{sEX}:{sEX+1}]
        s_cmp_lg_u32 s{sW}, 0
        s_cbranch_scc1 K2_NOH
        v_mov_b32 v3, 0
        v_mov_b32 v4, {CNT}
        ds_write_b32 v4, v3
        ds_write_b32 v4, v3 offset:{DONE-CNT}
        s_cmp_lg_u32 s{sRND}, 0
        s_cbranch_scc1 K2_NOH
        v_lshlrev_b32 v4, 2, v{vL}
        v_add_u32 v4, {HIST}, v4
        ds_write_b32 v4, v3
        v_mov_b32 v4, {FLAG}
        ds_write_b32 v4, v3
        K2_NOH:
        s_waitcnt vmcnt(10)
        v_and_b32 v1, 1, v{vT_}
        v_add_u32 v1, s{sJ0}, v1                ; j0 + sub
        v_lshrrev_b32 v{vREM}, 16, v{vE}
        v_sub_u32 v{vREM}, v{vREM}, v1
        v_and_b32 v{vE}, 0xffff, v{vE}
        v_add_u32 v{vE}, v{vE}, v1
        v_mul_u32_u24 v{vC}, {CH}, v{vC}
        v_add_u32 v{vE}, v{vE}, v{vC}
        v_mul_u32_u24 v{vOFF}, {RECB}, v{vE}
        ''')
        for i in range(U):
            a(f'''
            v_cmp_lt_i32 vcc, {2*i}, v{vREM}
            s_cbranch_vccz K2_LD_DONE
            s_mov_b64 exec, vcc
            buffer_load_dwordx4 v[{12*i+8}:{12*i+11}], v{vOFF}, s[{sWS}:{sWS+3}], 0 offen offset:{96*i+32}
            buffer_load_dwordx4 v[{12*i}:{12*i+3}], v{vOFF}, s[{sWS}:{sWS+3}], 0 offen offset:{96*i}
            buffer_load_dwordx4 v[{12*i+4}:{12*i+7}], v{vOFF}, s[{sWS}:{sWS+3}], 0 offen offset:{96*i+16}
            ''')
        a(f'''
        K2_LD_DONE:
        s_mov_b64 exec, -1
        v_lshlrev_b32 v{vE}, 2, v{vE}
        s_mov_b32 s{sT+8}, {WS_RANK}
        s_waitcnt lgkmcnt(0)
        s_barrier
        s_cmp_lg_u32 s{sRND}, 0
        s_cbranch_scc1 K2_RK_LOAD
        v_mov_b32 v{vC}, 1
        v_cmp_lt_i32 vcc, {2*U}, v{vREM}
        s_cbranch_vccz K2_NOMORE
        v_mov_b32 v{vT_}, {FLAG}
        ds_write_b32 v{vT_}, v{vC}
        K2_NOMORE:
        s_waitcnt vmcnt(0)
        ''')
        for i in range(U):
            a(f'''
            v_cmp_lt_i32 vcc, {2*i}, v{vREM}
            s_cbranch_vccz K2_RK_DONE
            s_mov_b64 exec, vcc
            v_lshrrev_b32 v{NBs+i}, 16, v{12*i+11}
            v_lshlrev_b32 v{NBs+i}, 2, v{NBs+i}
            v_add_u32 v{NBs+i}, {HIST}, v{NBs+i}
            ds_add_rtn_u32 v{RK+i}, v{NBs+i}, v{vC}
            ''')
        a('s_branch K2_RK_DONE\nK2_RK_LOAD:\ns_waitcnt vmcnt(0)')
        for i in range(U):
            a(f'''
            v_cmp_lt_i32 vcc, {2*i}, v{vREM}
            s_cbranch_vccz K2_RK_DONE
            s_mov_b64 exec, vcc
            v_lshrrev_b32 v{NBs+i}, 16, v{12*i+11}
            v_lshlrev_b32 v{NBs+i}, 2, v{NBs+i}
            v_add_u32 v{NBs+i}, {HIST}, v{NBs+i}
            buffer_load_dword v{RK+i}, v{vE}, s[{sWS}:{sWS+3}], s{sT+8} offen offset:{8*i}
            ''')
        t0 = 192
        a(f'''
        K2_RK_DONE:
        s_mov_b64 exec, -1
        v_lshlrev_b32 v{t0}, 2, v{vL}
        v_add_u32 v{t0}, {HIST}, v{t0}
        v_mov_b32 v{t0+8}, {FLAG}
        s_waitcnt vmcnt(0) lgkmcnt(0)
        s_barrier
        ds_read_b32 v{t0+1}, v{t0}
        ds_read_b32 v{t0+8}, v{t0+8}
        s_waitcnt lgkmcnt(0)
        v_readfirstlane_b32 s{sMORE}, v{t0+8}
        K2_TCALC:
        s_mul_i32 s{sT+9}, s{sRND}, s{sRW}
        v_subrev_u32 v{t0+2}, s{sT+9}, v{t0+1}
        v_max_i32 v{t0+2}, 0, v{t0+2}
        v_min_i32 v{t0+2}, s{sRW}, v{t0+2}
        v_add_u32 v{t0+2}, 15, v{t0+2}
        v_lshrrev_b32 v{t0+2}, 4, v{t0+2}
        v_max_u32 v{t0+2}, 1, v{t0+2}           ; nK
        v_max_u32 v{t0+3}, 2, v{t0+2}           ; blocks
        v_cmp_gt_u32 vcc, s{sNC}, v{vL}
        v_cndmask_b32 v{t0+3}, 0, v{t0+3}, vcc
        v_mov_b32 v{t0+4}, v{t0+3}
        ''')
        scan(a, t0+4)
        a(f'''
        s_cmp_lg_u32 s{sRW}, 64
        s_cbranch_scc1 K2_TOK
        v_readlane_b32 s{sT}, v{t0+4}, 63
        v_cmp_lt_u32 vcc, 64, v{t0+1}
        s_cmp_gt_u32 s{sT}, {CAPU}
        s_cbranch_scc1 K2_SLOW
        s_cbranch_vccz K2_TOK
        K2_SLOW:
        v_mov_b32 v{t0+5}, v{t0+1}
        ''')
        scan(a, t0+5, 'v_max_u32')
        a(f'''
        v_readlane_b32 s{sR}, v{t0+5}, 63
        s_add_u32 s{sR}, s{sR}, 31
        s_lshr_b32 s{sR}, s{sR}, 5
        s_mov_b32 s{sRW}, 32
        ''')
        for i in range(U):
            a(f'''
            v_cmp_lt_i32 vcc, {2*i}, v{vREM}
            s_cbranch_vccz K2_SV_DONE
            s_mov_b64 exec, vcc
            buffer_store_dword v{RK+i}, v{vE}, s[{sWS}:{sWS+3}], s{sT+8} offen offset:{8*i}
            ''')
        a(f'''
        K2_SV_DONE:
        s_mov_b64 exec, -1
        s_branch K2_TCALC
        K2_TOK:
        v_sub_u32 v{t0+4}, v{t0+4}, v{t0+3}     ; exclusive
        s_movk_i32 s{sT}, {BLK}
        v_mov_b32 v{t0+5}, {RECBASE}
        v_mad_u32_u24 v{t0+4}, v{t0+4}, s{sT}, v{t0+5}   ; base
        v_lshlrev_b32 v{t0+5}, 5, v{vL}
        v_sub_u32 v{t0+5}, v{t0+5}, v{t0+4}
        v_and_b32 v{t0+5}, 0xff, v{t0+5}
        v_cmp_lt_u32 vcc, 192, v{t0+5}
        v_cmp_gt_u32 s[{sEX}:{sEX+1}], 3, v{t0+2}
        s_and_b64 vcc, vcc, s[{sEX}:{sEX+1}]
        v_cndmask_b32 v{t0+5}, v{t0+5}, 0, vcc
        v_lshl_or_b32 v{VTAB}, v{t0+2}, 18, v{t0+4}
        v_lshl_or_b32 v{VTAB}, v{t0+5}, 21, v{VTAB}
        v_mov_b32 v{t0+5}, {NULLBASE | (1 << 18)}
        v_cmp_gt_u32 vcc, s{sNC}, v{vL}
        v_cndmask_b32 v{VTAB}, v{t0+5}, v{VTAB}, vcc
        ds_write_b32 v{t0}, v{t0+4} offset:{TABL-HIST}
        s_waitcnt lgkmcnt(0)
        ''')
        for i in range(U):
            a(f'''
            v_cmp_lt_i32 vcc, {2*i}, v{vREM}
            s_cbranch_vccz K2_TB_DONE
            s_mov_b64 exec, vcc
            ds_read_b32 v{NBs+i}, v{NBs+i} offset:{TABL-HIST}
            ''')
        a(f'''
        K2_TB_DONE:
        s_mov_b64 exec, -1
        s_movk_i32 s{sT}, {BLK}
        s_waitcnt lgkmcnt(0)
        ''')
        for i in range(U):
            nx = self.lab('sc')
            a(f'''
            v_cmp_lt_i32 vcc, {2*i}, v{vREM}
            s_cbranch_vccz K2_SC_DONE
            v_subrev_u32 v{RK+i}, s{sT+9}, v{RK+i}
            v_cmp_gt_u32 s[{sEX}:{sEX+1}], s{sRW}, v{RK+i}
            s_and_b64 exec, vcc, s[{sEX}:{sEX+1}]
            s_cbranch_execz {nx}
            v_lshrrev_b32 v{t0}, 4, v{RK+i}
            v_mad_u32_u24 v{t0}, v{t0}, s{sT}, v{NBs+i}
            v_and_b32 v{t0+1}, 15, v{RK+i}
            v_lshl_add_u32 v{t0+2}, v{t0+1}, 5, v{t0}
            v_lshl_add_u32 v{t0+3}, v{t0+1}, 2, v{t0}
            v_and_b32 v{t0+4}, 7, v{t0+1}
            v_lshrrev_b32 v{t0+1}, 3, v{t0+1}
            v_lshl_add_u32 v{t0+4}, v{t0+4}, 2, v{t0}
            v_lshl_add_u32 v{t0+4}, v{t0+1}, 1, v{t0+4}
            ds_write_b128 v{t0+2}, v[{12*i}:{12*i+3}]
            ds_write_b128 v{t0+2}, v[{12*i+4}:{12*i+7}] offset:16
            ds_write2_b32 v{t0+3}, v{12*i+8}, v{12*i+9} offset0:144 offset1:160
            ds_write_b32 v{t0+3}, v{12*i+10} offset:704
            ds_write_b16 v{t0+4}, v{12*i+11} offset:768
            {nx}:
            s_mov_b64 exec, -1
            ''')
        a(f'''
        K2_SC_DONE:
        s_mov_b64 exec, -1
        v_and_b32 v0, 15, v{vL}                 ; i
        v_lshrrev_b32 v1, 5, v{vL}              ; h
        v_bfe_u32 v2, v{vL}, 4, 1
        v_lshrrev_b32 v3, 2, v0
        v_and_b32 v4, 3, v0                     ; c
        v_lshl_add_u32 v5, v1, 3, v3            ; 8h + row
        v_lshlrev_b32 v{VAO}, 5, v5
        v_lshl_add_u32 v{VAO}, v4, 3, v{VAO}
        v_lshlrev_b32 v{VYO}, 6, v2
        v_lshl_add_u32 v{VYO}, v1, 5, v{VYO}
        v_add_u32 v{VYO}, 512, v{VYO}
        v_lshrrev_b32 v6, 1, v4
        v_lshl_add_u32 v6, v2, 1, v6            ; chunk (u = 0)
        v_bfe_u32 v7, v3, 1, 1
        v_lshlrev_b32 v7, 2, v7
        v_xor_b32 v6, v6, v7
        v_lshlrev_b32 v6, 4, v6
        v_lshl_add_u32 v6, v5, 7, v6
        v_and_b32 v7, 1, v4
        v_lshl_add_u32 v6, v7, 3, v6
        v_add_u32 v{VB0}, s{sRING}, v6
        v_xor_b32 v{VB1}, 64, v{VB0}
        v_lshrrev_b32 v6, 3, v{vL}
        v_lshlrev_b32 v{VSO}, 2, v6
        v_add_u32 v{VSO}, 768, v{VSO}
        v_bfe_u32 v6, v6, 1, 1
        v_lshlrev_b32 v6, 2, v6
        v_and_b32 v7, 7, v{vL}
        v_xor_b32 v6, v6, v7
        v_lshlrev_b32 v{VLG}, 4, v6
        v_lshlrev_b32 v{VL2}, 1, v{vL}
        ''')
        self.wunpack()
        for q in range(4): a(f's_movk_i32 s{sOWN+q}, {q*256}')
        a(f'''
        s_mov_b32 s{sJ}, 0
        s_mov_b32 s{sNPH}, 0
        s_mov_b32 s{sNP}, 0
        s_mov_b32 s{sNV}, 1
        s_mov_b32 s{sCPH}, 0
        s_mov_b32 s{sT}, s{sW}
        s_waitcnt lgkmcnt(0)
        s_barrier
        ''')
        self.next_info()
        a('s_waitcnt lgkmcnt(0)')
        self.gmads()
        for t in range(4): self.dma(t, G + 2*t, sNX + t)
        a('s_waitcnt vmcnt(6)')
        self.bread(0, 0, 0); self.bread(0, 0, 1)
        a(f'''
        K2_NEXT:
        s_cmp_eq_u32 s{sNV}, 0
        s_cbranch_scc1 K2_TAIL
        s_cmp_eq_u32 s{sNPH}, s{sCPH}
        s_cbranch_scc1 K2_SAMEPH
        v_lshlrev_b32 v0, 3, v{VL2}
        ''')
        self.wload(1, 0)
        for q in range(4): a(f's_movk_i32 s{sOWN+q}, {q*256+128}')
        a(f'''
        v_mov_b32 v1, {DONE}
        K2_SPIN:
        ds_read_b32 v2, v1
        s_waitcnt lgkmcnt(0)
        v_readfirstlane_b32 s{sT}, v2
        s_cmp_lt_u32 s{sT}, 8
        s_cbranch_scc1 K2_SPIN
        s_waitcnt vmcnt(0)
        ''')
        self.wunpack()
        a(f'''
        K2_SAMEPH:
        s_mov_b32 s{sCB}, s{sNBs}
        s_mov_b32 s{sCPH}, s{sNPH}
        s_mov_b32 s{sCP}, s{sNP}
        s_cmp_eq_u32 s{sNK}, 2
        s_cbranch_scc1 K2_UNIT2
        s_cmp_eq_u32 s{sNK}, 3
        s_cbranch_scc1 K2_UNIT3
        s_cmp_eq_u32 s{sNK}, 1
        s_cbranch_scc1 K2_UNIT1
        ''')
        for nK in (4, 2, 3, 1): self.unit(nK)
        self.tail()
        a('K2_END:\ns_endpgm')
        return a.lines, 256

    def tail(self):
        a = self.a
        vA = 222
        a(f'''
        K2_TAIL:
        v_lshlrev_b32 v0, 3, v{VL2}             ; lane*16
        s_mul_i32 s{sT}, s{sW}, {20*1024}
        s_add_u32 s{sT}, s{sT}, {WS_STAB}
        s_waitcnt vmcnt(0) lgkmcnt(0)
        ''')
        for f in range(20):
            a(f'buffer_load_dwordx4 v[{WR+4*f}:{WR+4*f+3}], v0, s[{sWS}:{sWS+3}], s{sT} offen offset:{(f%4)*1024}')
            if f % 4 == 3 and f < 19: a(f's_add_u32 s{sT}, s{sT}, 4096')
        rows = [(0,2),(5,8),(3,6),(9,1),(4,7),(10,None)]
        a(f'''
        s_lshl_b32 s{sT+1}, s{sW}, 5
        s_add_u32 s{sT+1}, s{sT+1}, s{sRING}
        v_add_u32 v1, s{sT+1}, v{VL2}
        ''')
        for j in range(5):
            for k, (lo, hi) in enumerate(rows):
                a(f'ds_write_b16 v1, v{P0+6*j+k} offset:{j*1536 + lo*128}')
                if hi is not None: a(f'ds_write_b16_d16_hi v1, v{P0+6*j+k} offset:{j*1536 + hi*128}')
            a('s_waitcnt lgkmcnt(4)')
        a(f'''
        v_lshrrev_b32 v2, 1, v{VL2}             ; lane
        v_and_b32 v3, 15, v2                    ; n & 15
        v_lshrrev_b32 v4, 4, v2                 ; slab
        v_lshlrev_b32 v5, 4, v4                 ; slab*16
        ''')
        for g in range(3):
            a(f'''
            v_add_u32 v6, {16*g}, v3
            v_cmp_gt_u32 vcc, s{sNC}, v6
            v_cndmask_b32 v6, 0, v6, vcc
            v_lshlrev_b32 v7, 2, v6
            ds_bpermute_b32 v{vA+3+g}, v7, v{VTAB}
            v_and_b32 v7, 7, v6
            v_mul_u32_u24 v7, {8192+32}, v7
            v_lshrrev_b32 v6, 3, v6
            v_mul_u32_u24 v6, 1536, v6
            v_add3_u32 v{vA+g}, v6, v7, v5
            ''')
        a('s_waitcnt lgkmcnt(0)')
        for g in range(3):
            a(f'''
            v_lshrrev_b32 v6, 21, v{vA+3+g}
            v_and_b32 v7, 0x3ffff, v{vA+3+g}
            v_add3_u32 v{vA+3+g}, v6, v7, v5
            ''')
        a(f'''
        s_lshl_b32 s{sT+2}, s{sB}, 9
        s_lshl_b32 s{sT+3}, s{sW}, 6
        s_add_u32 s{sT+2}, s{sT+2}, s{sT+3}
        s_mul_i32 s{sT+2}, s{sT+2}, 192
        s_add_u32 s{sT+2}, s{sT+2}, {WS_ACC}
        v_mul_u32_u24 v{vA+6}, 96, v{VL2}       ; lane*192
        s_cmp_eq_u32 s{sFIRST}, 0
        s_cbranch_scc1 K2_ACCLD
        ''')
        for i in range(48): a(f'v_mov_b32 v{i}, 0')
        a('s_branch K2_ACCOK\nK2_ACCLD:')
        for i in range(12): a(f'buffer_load_dwordx4 v[{4*i}:{4*i+3}], v{vA+6}, s[{sWS}:{sWS+3}], s{sT+2} offen offset:{16*i}')
        a('K2_ACCOK:\ns_waitcnt vmcnt(0)\ns_barrier')
        steps = []
        for g in range(3):
            for ph in range(2):
                for rs in range(2):
                    for hh in range(2):
                        steps.append((g, 0, ph*4 + rs*2 + hh, ph, rs, hh))
            for ph in range(2):
                for path in range(3):
                    for hh in range(2):
                        for j in range(3):
                            steps.append((g, 1+j, 8 + ph*6 + path*2 + hh, ph, 2 + 3*j + path, hh))
        NB = 12; D = 10
        def rd(k):
            g, rt, f, ph, row, hh = steps[k]
            b = 48 + 4*(k % NB)
            a(f'ds_read_b128 v[{b}:{b+3}], v{vA + 3*ph + g} offset:{row*128 + hh*64}')
        for k in range(D): rd(k)
        for k in range(len(steps)):
            g, rt, f, ph, row, hh = steps[k]
            if k + D < len(steps): rd(k + D); a(f's_waitcnt lgkmcnt({D})')
            else: a(f's_waitcnt lgkmcnt({len(steps)-1-k})')
            b = 48 + 4*(k % NB); c = 16*g + 4*rt
            a(f'v_mfma_f32_16x16x32_bf16 v[{c}:{c+3}], v[{WR+4*f}:{WR+4*f+3}], v[{b}:{b+3}], v[{c}:{c+3}]')
        a(f'''
        s_add_u32 s{sRND}, s{sRND}, 1
        s_cmp_lt_u32 s{sRND}, s{sR}
        s_cbranch_scc1 K2_SPILL
        s_cmp_lg_u32 s{sMORE}, 0
        s_cbranch_scc1 K2_SPILL
        s_mov_b32 s{sT}, 0xbfb8aa3b             ; -log2(e)
        ''')
        for g in range(3):
            c = 16*g
            for r in range(4): a(f'v_mul_f32 v{48+r}, s{sT}, v{c+r}')
            for r in range(4): a(f'v_exp_f32 v{48+r}, v{48+r}')
            for r in range(4): a(f'v_add_f32 v{48+r}, 1.0, v{48+r}')
            for r in range(4): a(f'v_rcp_f32 v{48+r}, v{48+r}')
            a(f'v_cvt_pk_bf16_f32 v{64+8*g}, v{c}, v{c+1}\nv_cvt_pk_bf16_f32 v{65+8*g}, v{c+2}, v{c+3}')
            for j in range(3):
                for r in range(4): a(f'v_mul_f32 v{c+4+4*j+r}, v{c+4+4*j+r}, v{48+r}')
                a(f'v_cvt_pk_bf16_f32 v{66+8*g+2*j}, v{c+4+4*j}, v{c+5+4*j}\nv_cvt_pk_bf16_f32 v{67+8*g+2*j}, v{c+6+4*j}, v{c+7+4*j}')
        a(f'''
        v_lshrrev_b32 v2, 1, v{VL2}
        v_and_b32 v3, 15, v2
        v_lshrrev_b32 v4, 4, v2
        v_mul_u32_u24 v3, 1040, v3
        v_lshl_add_u32 v3, v4, 3, v3
        s_lshl_b32 s{sT}, s{sW}, 5
        v_add_u32 v3, s{sT}, v3
        v_lshlrev_b32 v0, 3, v{VL2}
        s_mul_i32 s{sT}, s{sW}, 1040
        v_add_u32 v1, s{sT}, v0
        s_barrier
        ''')
        for g in range(3):
            for rt in range(4):
                a(f'ds_write_b64 v3, v[{64+8*g+2*rt}:{65+8*g+2*rt}] offset:{g*16*1040 + rt*256}')
        a(f'''
        s_add_u32 s{sT}, s{sNB}, s{sW}
        s_lshl_b32 s{sT}, s{sT}, 10
        s_waitcnt lgkmcnt(0)
        s_barrier
        ''')
        for i in range(5): a(f'ds_read_b128 v[{4+4*i}:{7+4*i}], v1 offset:{i*8*1040}')
        for i in range(5):
            if i == 4: a(f's_add_u32 s{sT+1}, s{sW}, 32\ns_cmp_ge_u32 s{sT+1}, s{sNC}\ns_cbranch_scc1 K2_END')
            a(f's_waitcnt lgkmcnt({4-i})')
            a(f'buffer_store_dwordx4 v[{4+4*i}:{7+4*i}], v0, s[{sOUT}:{sOUT+3}], s{sT} offen {opt("outst","")}')
            a(f's_add_u32 s{sT}, s{sT}, 8192')
        a('s_branch K2_END\nK2_SPILL:')
        for i in range(12): a(f'buffer_store_dwordx4 v[{4*i}:{4*i+3}], v{vA+6}, s[{sWS}:{sWS+3}], s{sT+2} offen offset:{16*i}')
        a(f'''
        s_mov_b32 s{sFIRST}, 0
        s_waitcnt vmcnt(0)
        s_barrier
        s_cmp_lt_u32 s{sRND}, s{sR}
        s_cbranch_scc1 K2_LOAD
        s_add_u32 s{sJ0}, s{sJ0}, {2*U}
        s_branch K2_WINDOW
        ''')

HEADER = '''; Kernarg layout for this problem (96 bytes, ptrs only, base s[0:1]):
'''
def kd(name, vgpr):
    return f'''.amdhsa_kernel {name}
  .amdhsa_next_free_vgpr {vgpr}
  .amdhsa_next_free_sgpr 96
  .amdhsa_accum_offset {(vgpr+3)//4*4}
  .amdhsa_group_segment_fixed_size 0
  .amdhsa_kernarg_size 96
  .amdhsa_user_sgpr_count 2
  .amdhsa_user_sgpr_kernarg_segment_ptr 1
  .amdhsa_system_sgpr_workgroup_id_x 1
  .amdhsa_float_denorm_mode_32 3
.end_amdhsa_kernel
'''
def main():
    l1, v1 = k1(); l2, v2 = K2().gen()
    l1 = fix_hazards(l1); l2 = fix_hazards(l2)
    s = HEADER
    s += f'; @launch kernel=tp_sort_kernel grid=({NCH},1,1) block=({K1_T},1,1) lds={K1_LDS}\n'
    s += f'; @launch kernel=tp_main_kernel grid=(256,1,1) block=(512,1,1) lds={K2_LDS}\n'
    s += '.amdgcn_target "amdgcn-amd-amdhsa--gfx950"\n.text\n'
    for name, l in (('tp_sort_kernel', l1), ('tp_main_kernel', l2)):
        s += f'.globl {name}\n.p2align 8\n.type {name},@function\n{name}:\n'
        s += '\n'.join((x if x.endswith(':') else '    ' + x) for x in l) + '\n'
    s += '.section .rodata,"a"\n.p2align 6\n' + kd('tp_sort_kernel', v1) + '.p2align 6\n' + kd('tp_main_kernel', v2)
    out = sys.argv[1] if len(sys.argv) > 1 else f'/code/{NAME}.s'
    open(out, 'w').write(s)
    print('wrote', out, len(s), 'bytes')
main()
```

```python
import sys, os
sys.path.insert(0, os.path.dirname(os.path.abspath(__file__)))
from asmlib import Asm, fix_hazards

NAME = 'standalone__tensor_product_equiv_equiformer__graph'
N = 10000; E = 320000
NCH = 250; CH = E // NCH
CSTR = CH * 16 + 128
TSTR = 1024 + 128
WS_REC = 0
WS_TBL = 0x0600000
WS_STAB = 0x0680000
WS_WTAB = 0x06A8000
WS_RANK = 0x0700000
WS_PROF = 0x0900000
WS_ACC = 0x0A00000
WS_SIZE = 0x2400000
assert NCH * CSTR <= WS_TBL and WS_TBL + NCH * TSTR <= WS_STAB and WS_ACC + 256*512*192 <= WS_SIZE
BMUL = 429497
for d in range(N): assert ((d * BMUL) & 0xffffffff) >> 24 == (d * 16) // 625

OPT = dict(a.split('=') for a in sys.argv[2:]) if len(sys.argv) > 2 else {}
def opt(k, d): return type(d)(OPT.get(k, d)) if not isinstance(d, bool) else bool(int(OPT.get(k, d)))
def mod(k, d): return opt(k, d).replace('_', ' ')

PROF = opt('prof', False)
SEG = opt('seg', False)
def seg(i): return [f's_memtime s[{76+2*i}:{77+2*i}]'] if SEG else []
def stamp(a, i):
    if PROF and not SEG: a(f'{"s_memtime" if opt("cyc", False) else "s_memrealtime"} s[{76+2*i}:{77+2*i}]')
def stamp_out(a, n, kern, swave, swg, srd_s):
    if not PROF: return
    if opt('dbgout', -1) >= 0:
        l = f'DBG_{kern}'
        a(f's_cmp_lg_u32 s{swg}, {opt("dbgout", -1)}\ns_cbranch_scc1 {l}\ns_cmp_lg_u32 s{swave}, 0\ns_cbranch_scc1 {l}')
        a(f's_load_dwordx2 s[58:59], s[0:1], 80\ns_waitcnt lgkmcnt(0)\ns_add_u32 s58, s58, {512*(1-kern)*opt("dbgk1", 0)}\ns_addc_u32 s59, s59, 0')
        srd(a, 60, 58, 256)
        a('s_mov_b64 exec, 1\nv_mov_b32 v1, 0')
        for i, o in ([(0, 0), (5, 14), (2, 15)] if kern == 0 else [(i, 1+i) for i in range(13)]):
            a(f'v_mov_b32 v2, s{76+2*i}\nbuffer_store_dword v2, v1, s[60:63], 0 offen offset:{4*o}')
        a(f's_mov_b64 exec, -1\n{l}:')
        return
    a('s_waitcnt lgkmcnt(0)')
    a(f's_lshl_b32 s67, s{swg}, 4\ns_add_u32 s67, s67, s{swave}\ns_lshl_b32 s67, s67, 6\ns_add_u32 s67, s67, {WS_PROF + kern*256*16*64}')
    a('s_mov_b64 exec, 1\nv_mov_b32 v1, 0')
    for i in range(n):
        a(f'v_mov_b32 v2, s{76+2*i if not SEG else 96+min(i,5)}\nbuffer_store_dword v2, v1, s[{srd_s}:{srd_s+3}], s67 offen offset:{4*i}')
    a('s_mov_b64 exec, -1')

def srd(a, s, ptr, nbytes):
    a(f's_mov_b32 s{s}, s{ptr}\ns_and_b32 s{s+1}, s{ptr+1}, 0xffff\ns_mov_b32 s{s+2}, {nbytes}\ns_mov_b32 s{s+3}, 0x20000')

def scan(a, v, op='v_add_u32'):
    for sh in (1, 2, 4, 8):
        a(f'{op}_dpp v{v}, v{v}, v{v} row_shr:{sh} row_mask:0xf bank_mask:0xf bound_ctrl:0')
    a(f'{op}_dpp v{v}, v{v}, v{v} row_bcast:15 row_mask:0xa bank_mask:0xf')
    a(f'{op}_dpp v{v}, v{v}, v{v} row_bcast:31 row_mask:0xc bank_mask:0xf')

K1_T = CH // 4
K1_LDS = 2048 + CH * 16
def k1():
    a = Asm()
    ld = mod('k1ld', ''); st = mod('k1st', 'sc1')
    a(f's_cmp_ge_u32 s2, {NCH}\ns_cbranch_scc1 K1_END')
    stamp(a, 0)
    a(f'''
    s_load_dwordx2 s[36:37], s[0:1], 8      ; rhat
    s_load_dwordx4 s[40:43], s[0:1], 24
    s_load_dwordx4 s[44:47], s[0:1], 40
    s_load_dwordx2 s[48:49], s[0:1], 56     ; w_si1
    s_load_dwordx2 s[50:51], s[0:1], 88     ; ws
    s_load_dwordx2 s[30:31], s[0:1], 0      ; x
    s_load_dwordx2 s[32:33], s[0:1], 16     ; e_attr
    v_lshrrev_b32 v1, 6, v0
    v_lshlrev_b32 v5, 4, v0                 ; t*16
    v_readfirstlane_b32 s3, v1              ; wave
    v_mul_u32_u24 v4, 24, v0
    v_lshlrev_b32 v2, 2, v0                 ; t*4
    v_and_b32 v8, 63, v0
    v_lshlrev_b32 v9, 4, v8                 ; lane*16
    v_mov_b32 v6, 0
    v_mov_b32 v7, 1
    s_mul_i32 s52, s2, {CH*4}
    s_mul_i32 s53, s2, {CH*6}
    s_waitcnt lgkmcnt(0)
    ''')
    srd(a, 4, 42, E*4)
    srd(a, 8, 40, E*4)
    srd(a, 12, 36, E*6)
    srd(a, 20, 50, WS_SIZE)
    a(f'''
    buffer_load_dwordx4 v[12:15], v5, s[4:7], s52 offen {ld}
    buffer_load_dwordx4 v[16:19], v5, s[8:11], s52 offen {ld}
    buffer_load_dwordx4 v[20:23], v4, s[12:15], s53 offen {ld}
    buffer_load_dwordx2 v[24:25], v4, s[12:15], s53 offen offset:16 {ld}
    s_cmp_eq_u32 s3, 4
    s_cbranch_scc1 K1_PREP
    ds_write_b32 v2, v6
    s_branch K1_GO
    K1_PREP:
    s_cmp_ge_u32 s2, 180
    s_cbranch_scc1 K1_GO
    v_and_b32 v1, 15, v8
    v_lshrrev_b32 v3, 4, v8
    s_cmp_ge_u32 s2, 160
    s_cbranch_scc1 K1_WT
    s_cmp_ge_u32 s2, 64
    s_cbranch_scc1 K1_S1
    s_lshr_b32 s24, s2, 3
    s_and_b32 s25, s2, 7
    s_lshr_b32 s26, s25, 2
    s_bfe_u32 s27, s25, 0x10001
    s_and_b32 s28, s25, 1
    ''')
    srd(a, 16, 46, 256*128*2)
    a(f'''
    s_branch K1_SC
    K1_S1:
    ; S1: g2 = g-64; w = g2/12, f2 = g2%12 : ph = f2/6, path = (f2%6)>>1, hh = f2&1
    s_sub_u32 s29, s2, 64
    s_mul_i32 s24, s29, 43
    s_lshr_b32 s24, s24, 9
    s_mul_i32 s25, s24, 12
    s_sub_u32 s25, s29, s25
    s_cmp_ge_u32 s25, 6
    s_cselect_b32 s26, 1, 0
    s_mul_i32 s27, s26, 6
    s_sub_u32 s27, s25, s27
    s_lshr_b32 s27, s27, 1
    s_and_b32 s28, s25, 1
    s_add_u32 s25, s25, 8
    ''')
    for g2 in range(96): assert (g2*43) >> 9 == g2 // 12
    srd(a, 16, 48, 384*128*2)
    a(f'''
    K1_SC:
    s_lshl_b32 s27, s27, 7
    s_lshl_b32 s26, s26, 6
    s_lshl_b32 s28, s28, 5
    s_add_u32 s27, s27, s26
    s_add_u32 s27, s27, s28
    s_lshl_b32 s27, s27, 8
    s_lshl_b32 s26, s24, 5
    s_add_u32 s27, s27, s26
    v_lshlrev_b32 v3, 11, v3
    v_lshl_add_u32 v3, v1, 1, v3
    ''')
    for e in range(8): a(f'buffer_load_ushort v{64+e}, v3, s[16:19], s27 offen offset:{e*256}')
    a(f'''
    s_mul_i32 s24, s24, 20
    s_add_u32 s24, s24, s25
    s_lshl_b32 s24, s24, 10
    s_add_u32 s24, s24, {WS_STAB}
    s_branch K1_GO
    K1_WT:
    ; W: g3 = g-160; ph = g3/10, i = g3%10 : p = i>>1, u = i&1
    s_sub_u32 s24, s2, 160
    s_cmp_ge_u32 s24, 10
    s_cselect_b32 s26, 1, 0
    s_mul_i32 s25, s26, 10
    s_sub_u32 s25, s24, s25
    s_lshr_b32 s27, s25, 1
    s_and_b32 s28, s25, 1
    s_lshl_b32 s27, s27, 8
    s_lshl_b32 s26, s26, 7
    s_lshl_b32 s28, s28, 6
    s_add_u32 s27, s27, s26
    s_add_u32 s27, s27, s28
    s_add_u32 s28, s27, {8*1280}
    ''')
    srd(a, 16, 44, 16*640*2)
    a(f'''
    v_and_b32 v1, 31, v8
    v_lshrrev_b32 v3, 5, v8
    v_mul_u32_u24 v3, {4*1280}, v3
    v_lshl_add_u32 v3, v1, 1, v3
    ''')
    for r in range(8): a(f'buffer_load_ushort v{64+r}, v3, s[16:19], s{27 + (r>>2)} offen offset:{(r&3)*1280}')
    a(f'''
    s_lshl_b32 s24, s24, 10
    s_add_u32 s24, s24, {WS_WTAB}
    K1_GO:
    s_mov_b32 s58, {BMUL}
    s_movk_i32 s59, 625
    s_waitcnt lgkmcnt(0)
    s_barrier
    s_cmp_eq_u32 s3, 4
    s_cbranch_scc1 K1_W4
    s_waitcnt vmcnt(3)
    s_branch K1_W4D
    K1_W4:
    s_waitcnt vmcnt(0)
    K1_W4D:
    ''')
    stamp(a, 1)
    PF = opt('pf', ''); npf = 0
    if PF:
        srd(a, 64, 32, E*32); srd(a, 68, 30, N*1024)
        a(f'v_lshlrev_b32 v60, 7, v0\ns_mul_i32 s60, s2, {CH*32}')
        pm = mod('pfm', '')
        if 'e' in PF: a(f'buffer_load_dword v61, v60, s[64:67], s60 offen {pm}'); npf += 1
        if 'x' in PF: a(f'buffer_load_dword v62, v60, s[68:71], s60 offen {pm}'); npf += 1
    for j in range(4):
        a(f'v_mul_u32_u24 v{28+j}, s58, v{12+j}\nv_lshrrev_b32 v{28+j}, 24, v{28+j}\nv_lshlrev_b32 v{32+j}, 2, v{28+j}\nds_add_rtn_u32 v{36+j}, v{32+j}, v7')
    for j in range(4):
        a(f'v_mad_u32_u24 v{28+j}, v{28+j}, s59, 15\nv_lshrrev_b32 v{28+j}, 4, v{28+j}\nv_sub_u32 v{28+j}, v{12+j}, v{28+j}')
        a(f'v_add_u32 v{12+j}, {j}, v2\nv_lshlrev_b32 v{12+j}, 14, v{12+j}\nv_lshl_or_b32 v{28+j}, v{28+j}, 25, v{12+j}')
    a(f'''
    s_waitcnt lgkmcnt(0)
    s_barrier
    ds_read_b128 v[40:43], v9
    s_waitcnt lgkmcnt(0)
    v_add_u32 v45, v40, v41
    v_add_u32 v46, v45, v42
    v_add_u32 v47, v46, v43
    v_mov_b32 v48, v47
    ''')
    scan(a, 48)
    a(f'''
    v_sub_u32 v48, v48, v47                 ; exclusive
    v_add_u32 v49, v48, v40
    v_add_u32 v50, v48, v45
    v_add_u32 v51, v48, v46
    ds_write_b128 v9, v[48:51] offset:1024
    s_cmp_lg_u32 s3, 0
    s_cbranch_scc1 K1_NOTBL
    v_lshl_or_b32 v52, v40, 16, v48
    v_lshl_or_b32 v53, v41, 16, v49
    v_lshl_or_b32 v54, v42, 16, v50
    v_lshl_or_b32 v55, v43, 16, v51
    s_mul_i32 s62, s2, {TSTR}
    s_add_u32 s62, s62, {WS_TBL}
    buffer_store_dwordx4 v[52:55], v9, s[20:23], s62 offen {st}
    K1_NOTBL:
    s_waitcnt lgkmcnt(0)
    ''')
    for j in range(4): a(f'ds_read_b32 v{32+j}, v{32+j} offset:1024')
    a(f's_cmp_lg_u32 s3, 0\ns_cbranch_scc1 K1_W0\ns_waitcnt vmcnt({1+npf})\ns_branch K1_W0D\nK1_W0:\ns_waitcnt vmcnt({npf})\nK1_W0D:')
    stamp(a, 2)
    H = lambda d, s: f'v_and_b32 v{d}, 0xffff0000, v{s}'
    L = lambda d, s: f'v_lshlrev_b32 v{d}, 16, v{s}'
    ys = [(L,20),(H,20),(L,21),(H,21),(L,22),(H,22),(L,23),(H,23),(L,24),(H,24),(L,25),(H,25)]
    for j in range(4):
        for c in range(3):
            f, s = ys[3*j+c]; a(f(40+4*j+c, s))
        a(f'v_or_b32 v{43+4*j}, v{28+j}, v{16+j}')
    a('s_waitcnt lgkmcnt(0)')
    for j in range(4):
        a(f'v_add_lshl_u32 v{32+j}, v{32+j}, v{36+j}, 4\nds_write_b128 v{32+j}, v[{40+4*j}:{43+4*j}] offset:2048')
    a(f's_mul_i32 s52, s2, {CSTR}\ns_waitcnt lgkmcnt(0)\ns_barrier')
    stamp(a, 3)
    for i in range(4): a(f'ds_read_b128 v[{12+4*i}:{15+4*i}], v5 offset:{2048 + i*K1_T*16}')
    for i in range(4):
        a(f's_waitcnt lgkmcnt({3-i})')
        a(f'buffer_store_dwordx4 v[{12+4*i}:{15+4*i}], v5, s[20:23], s52 offen {st}')
        if i < 3: a(f's_add_u32 s52, s52, {K1_T*16}')
    a(f'''
    s_cmp_lg_u32 s3, 4
    s_cbranch_scc1 K1_FIN
    s_cmp_ge_u32 s2, 180
    s_cbranch_scc1 K1_FIN
    v_lshl_or_b32 v40, v65, 16, v64
    v_lshl_or_b32 v41, v67, 16, v66
    v_lshl_or_b32 v42, v69, 16, v68
    v_lshl_or_b32 v43, v71, 16, v70
    buffer_store_dwordx4 v[40:43], v9, s[20:23], s24 offen {st}
    K1_FIN:
    ''')
    for i in range(opt('k1delay', 0)): a('s_sleep 16')
    if PROF:
        stamp(a, 4); a('s_waitcnt vmcnt(0)'); stamp(a, 5); stamp_out(a, 6, 0, 3, 2, 20)
    a('K1_END:\ns_endpgm')
    return a.lines, 72

BLK = 800
CAP = 120; CAPU = CAP - 1
RECBASE = 65536
NULLBASE = RECBASE + CAPU * BLK
MISC = RECBASE + CAP * BLK
HIST = MISC; TABL = MISC + 256; CNT = MISC + 512; FLAG = MISC + 516; PROG = MISC + 544
K2_LDS = MISC + 1024
U = 10
ACC = 0; AR = 64; WR = 96; BR = 176; P0 = 192; G = 222
VEO = 230; VH16 = 231; T2 = 232; T3 = 233; PW = 234
VB0 = 246; VB1 = 247; VLG = 248; VAO = 249; VYO = 250; VSO = 251; VL2 = 252; VTAB = 253; VT0 = 254; VT1 = 255; VPA = VEO
sX = 4; sWS = 8; sOUT = 12; sEA = 16
sW = 20; sNB = 21; sNC = 22; sJ0 = 23; sRND = 24; sR = 25; sRW = 26; sMORE = 27; sFIRST = 28
sCB = 29; sCPH = 30; sCP = 31; sNBs = 48; sNK = 33; sNPH = 34; sNP = 35; sNV = 36
sRING = 37; sJ = 38; s1024 = 39; sOWN = 40; sNX = 44; sSO = 48; sE2 = 50; sPROGW = 52; sPROG = 53; sB = 54; sLAST = 55
sEX = 56
sT = 58
sM0 = 68
sX2 = 72
sPP = 32
SCR = MISC + 896

def tile(t, u): return ACC + 16 * (2*u + t)
TILES = [(0,0), (1,0), (0,1), (1,1)]
def Wreg(p, u): return WR + p*16 + u*8

def weave(x, y):
    o = []
    for i in range(max(len(x), len(y))):
        o += x[i:i+1] + y[i:i+1]
    return o

class LG:
    def __init__(self, a, q=()): self.a = a; self.q = list(q)
    def issue(self, tag, optional=False): self.q.append((tag, optional))
    def waitline(self, tag):
        idx = [i for i, (t, o) in enumerate(self.q) if t == tag]
        if not idx: return None
        y = sum(1 for (t, o) in self.q[idx[-1]+1:] if not o)
        self.q = self.q[idx[-1]+1:]
        return f's_waitcnt lgkmcnt({min(y, 15)})'

class K2:
    def __init__(self):
        self.a = Asm()
        self.uid = 0
        self.outline = []
    def lab(self, s):
        self.uid += 1
        return f'K2_{s}_{self.uid}'

    def dma(self, slot, greg, soff):
        return [f's_mov_b32 m0, s{sM0+slot}',
                f'buffer_load_dwordx4 v{greg}, s[{sX}:{sX+3}], s{soff} offen lds',
                f'buffer_load_dwordx4 v{greg+1}, s[{sX2}:{sX2+3}], s{soff} offen offset:1024 lds']
    def bread(self, item):
        out = []
        for u in range(2):
            for r in range(2):
                d = BR + (item & 1)*8 + u*4 + r*2
                out.append((f'ds_read_b64_tr_b16 v[{d}:{d+1}], v{VB0+u} offset:{(item & 3)*2048 + r*512}', [('B' if u == 0 or not opt('split', 0) else 'B1', False)]))
        return out
    def sread(self, t):
        return [f'v_add_u32 v{G+2*t}, s{sSO+t}, v{VSO}', (f'ds_read_b32 v{G+2*t}, v{G+2*t}', [(f'S{t}', False)])]
    def gmad(self, t):
        return [('wait', f'S{t}'),
                f'v_mad_u32_u16 v{G+2*t+1}, v{G+2*t}, s{s1024}, v{VLG} op_sel:[1,0,0,0]',
                f'v_mad_u32_u16 v{G+2*t}, v{G+2*t}, s{s1024}, v{VLG}']
    def ool(self, text): self.outline.append(text)
    def atomic(self):
        return [f'v_mov_b32 v{VT0}, {CNT}', f'v_mov_b32 v{VT1}, 1', f'v_lshl_add_u32 v{T3}, v{VL2}, 1, s{sPROG}',
                (f's_mov_b64 exec, 1\nds_add_rtn_u32 v{T2}, v{VT0}, v{VT1}\ns_mov_b64 exec, -1', [('C', False)]),
                (f'ds_read_b32 v{T3}, v{T3}', [('C', False)])]
    def claimed(self):
        nul = self.lab('nul'); spin = self.lab('spin'); chk = self.lab('chk'); back = self.lab('back')
        self.ool(f'{nul}:\ns_mov_b32 s{sT}, 63\ns_mov_b32 s{sNV}, 0\ns_branch {back}')
        self.ool(f'{spin}:\nv_lshl_add_u32 v{T3}, v{VL2}, 1, s{sPROG}\nds_read_b32 v{T3}, v{T3}\ns_waitcnt lgkmcnt(0)\ns_branch {chk}')
        return [f'v_readfirstlane_b32 s{sT}, v{T2}',
                f"""s_cmp_lt_u32 s{sT}, s{sNC}
                s_cbranch_scc0 {nul}
                s_and_b32 s{sT+1}, s{sT}, 7
                s_lshr_b32 s{sT+2}, s{sT}, 3
                {chk}:
                v_readlane_b32 s{sT+3}, v{T3}, s{sT+1}
                s_nop 0
                s_cmp_gt_u32 s{sT+3}, s{sT+2}
                s_cbranch_scc0 {spin}
                {back}:"""]
    def claim0(self):
        dyn = self.lab('dyn'); back = self.lab('back')
        o = [x if isinstance(x, str) else x[0] for x in self.atomic()] + ['s_waitcnt lgkmcnt(0)'] + self.claimed()
        self.ool(f'{dyn}:\n' + '\n'.join(o) + f'\ns_mov_b32 s{sNPH}, 1\ns_branch {back}')
        return [f's_add_u32 s{sJ}, s{sJ}, 1', f'v_mov_b32 v{VT0}, s{sPROGW}', f'v_mov_b32 v{VT1}, s{sJ}',
                f's_lshl_b32 s{sT}, s{sJ}, 3', f's_add_u32 s{sT}, s{sT}, s{sW}',
                (f's_mov_b64 exec, 1\nds_write_b32 v{VT0}, v{VT1}\ns_mov_b64 exec, -1', [('W', False)]),
                f's_cmp_lt_u32 s{sT}, s{sNC}\ns_cbranch_scc0 {dyn}\n{back}:']
    def next_info(self, ph):
        rare = self.lab('rare'); back = self.lab('back'); four = self.lab('four')
        self.ool(f"""{rare}:
            s_cmp_eq_u32 s{sNK}, 4
            s_cbranch_scc1 {four}
            s_mov_b32 s{sSO+1}, s{sNBs}
            s_mov_b32 s{sSO+3}, s{sNBs}
            s_add_u32 s{sNX+1}, s{sNX}, 256
            s_add_u32 s{sNX+2}, s{sNX}, 512
            s_add_u32 s{sNX+3}, s{sNX}, 768
            s_branch {back}
            {four}:
            s_add_u32 s{sSO+2}, s{sNBs}, {2*BLK}
            s_add_u32 s{sSO+3}, s{sNBs}, {3*BLK}
            s_mov_b32 s{sNX+2}, s{sNX}
            s_mov_b32 s{sNX+3}, s{sNX}
            s_branch {back}""")
        o = [f'v_readlane_b32 s{sT+1}, v{VTAB}, s{sT}', f's_lshl_b32 s{sNX}, s{sNPH}, 7',
             f's_and_b32 s{sNBs}, s{sT+1}, 0x3ffff', f's_bfe_u32 s{sNK}, s{sT+1}, 0x30012', f's_lshr_b32 s{sT+2}, s{sT+1}, 21']
        if ph == 1: o += [f's_add_u32 s{sNP}, s{sT+2}, s{sNBs}']
        else: o += [f's_add_u32 s{sT+2}, s{sT+2}, s{sNBs}', f's_mul_i32 s{sNP}, s{sJ}, 6', f's_cmp_eq_u32 s{sNPH}, 0\ns_cselect_b32 s{sNP}, s{sNP}, s{sT+2}']
        o += [f's_mov_b32 s{sNX+1}, s{sNX}', f's_add_u32 s{sNX+3}, s{sNX}, 256', f's_add_u32 s{sSO+1}, s{sNBs}, {BLK}', f's_add_u32 s{sT+2}, s{sNBs}, {2*BLK}',
              f's_cmp_eq_u32 s{sNK}, 3\ns_cselect_b32 s{sNX+2}, s{sNX}, s{sNX+3}\ns_cselect_b32 s{sSO+2}, s{sT+2}, s{sNBs}\ns_cselect_b32 s{sSO+3}, s{sNBs}, s{sSO+1}',
              f's_sub_u32 s{sT+2}, s{sNK}, 2\ns_cmp_lt_u32 s{sT+2}, 2\ns_cbranch_scc0 {rare}\n{back}:']
        return o
    def eread(self):
        return [f'v_add_u32 v{T2}, s{sNBs}, v{VEO}', f'v_add_u32 v{T3}, s{sE2}, v{VEO}',
                (f'ds_read_b32 v{T2}, v{T2}', [('E', False)]), (f'ds_read_b32 v{T3}, v{T3}', [('E', False)])]
    def adma(self):
        dum = self.lab('dum'); four = self.lab('a4'); back = self.lab('back'); b4 = self.lab('b4')
        ea = f's[{sEA}:{sEA+3}]'; m = mod('eald', '')
        self.ool(f'{dum}:\nv_mov_b32 v{T2}, -1\ns_mov_b32 m0, {SCR}\ns_mov_b64 exec, 1\n' + f'buffer_load_dwordx4 v{T2}, {ea}, 0 offen lds\n'*3 + f's_mov_b64 exec, -1\ns_branch {back}')
        self.ool(f'{four}:\ns_add_u32 m0, s{sE2}, {BLK-512}\ns_nop 0\nbuffer_load_dwordx4 v{T3}, {ea}, 0 offen {m} lds\ns_branch {b4}')
        return [('wait', 'E'), f'v_or_b32 v{T2}, v{T2}, v{VH16}', f'v_or_b32 v{T3}, v{T3}, v{VH16}', f"""
        s_cmp_lg_u32 s{sNPH}, 0
        s_cbranch_scc1 {dum}
        s_mov_b32 m0, s{sNBs}
        s_mov_b32 exec_hi, 0
        buffer_load_dwordx4 v{T2}, {ea}, 0 offen {m} lds
        s_mov_b32 m0, s{sE2}
        s_add_u32 s{sT+7}, s{sNBs}, {BLK-512}
        buffer_load_dwordx4 v{T3}, {ea}, 0 offen {m} lds
        s_not_b64 exec, exec
        s_mov_b32 m0, s{sT+7}
        s_cmp_eq_u32 s{sNK}, 4
        buffer_load_dwordx4 v{T2}, {ea}, 0 offen {m} lds
        s_cbranch_scc1 {four}
        {b4}:
        s_mov_b32 exec_lo, -1
        {back}:"""]
    def areads(self, s):
        b = ACC + (s & 1) * 20
        o = [(f'ds_read_b64_tr_b16 v[{b}:{b+1}], v{VAO} offset:{s*BLK}', [(f'a{s}', False)]),
             (f'ds_read_b64_tr_b16 v[{b+2}:{b+3}], v{VAO} offset:{s*BLK+128}', [(f'a{s}', False)])]
        for t in range(2):
            for hh in range(2):
                d = b + 4 + t*8 + hh*4
                o.append((f'ds_read_b128 v[{d}:{d+3}], v{VYO} offset:{s*BLK + t*128 + hh*16}', [(f'y{s}{t}', False)]))
        return o
    def abuild(self, nK):
        o = []
        for s in range(nK):
            b = ACC + (s & 1) * 20; un = ACC + 40 + (s & 1) * 8
            o.append(('wait', f'a{s}'))
            for i in range(4):
                o += [f'v_lshlrev_b32 v{un+2*i}, 16, v{b+i}', f'v_and_b32 v{un+1+2*i}, 0xffff0000, v{b+i}']
            for t in range(2):
                o.append(('wait', f'y{s}{t}'))
                for e in range(8): o.append(f'v_mul_f32 v{b+4+t*8+e}, v{un+e}, v{b+4+t*8+e}')
                for i in range(4): o.append(f'v_cvt_pk_bf16_f32 v{AR+s*8+t*4+i}, v{b+4+t*8+2*i}, v{b+5+t*8+2*i}')
            if s + 2 < nK: o += self.areads(s + 2)
        return o
    R = dict(A=PW, B=PW+2, C=PW+4, D=PW+6, E=PW+8, F=PW+10)
    CH_ = {0: [(0,'A','new'),(2,'B','new'),(2,'C','new'),(2,'D','new')],
           1: [(3,'A','new'),(1,'B','new'),(4,'C','new'),(4,'D','new')],
           2: [(3,'E','new'),(4,'C','neg'),(1,'B','acc'),(4,'F','new')],
           3: [(3,'E','new'),(4,'D','neg'),(4,'F','neg'),(1,'B','acc')]}
    def F(self, q, k):
        t, u = TILES[k]; o = []
        for r in range(8):
            for b in (2*t, 2*t+1):
                p, d, mode = self.CH_[q][b]
                T = tile(t, u) + (b & 1)*8 + r; W = Wreg(p, u) + r; D = self.R[d] + u
                if r == 0 and mode == 'new': o.append(f'v_mul_f32 v{D}, v{T}, v{W}')
                elif r == 0 and mode == 'neg': o.append(f'v_fma_f32 v{D}, v{T}, v{W}, -v{D}')
                else: o.append(f'v_fmac_f32 v{D}, v{T}, v{W}')
        return o
    def fin(self, q, ph, sp=None):
        sp = sCP if sp is None else sp
        R = self.R
        names = {0: [('A',0),('B',0),('C',0),('D',0)], 1: [('A',0)], 2: [('C',0),('E',0)], 3: [('E',0),('D',1),('B',0),('F',0)]}[q]
        pairs = {0: [(0, R['A'], 0, R['B'], 2), (1, R['C'], 5, R['D'], 8)], 1: [], 2: [(2, R['A'], 3, R['E'], 6)],
                 3: [(3, R['E'], 9, R['B'], 1), (4, R['F'], 4, R['D'], 7), (5, R['C'], 10, R['C'], None)]}[q]
        o = [f'v_permlane32_swap_b32 v{R[n]}, v{R[n]+1}' for n, _ in names]
        if ph == 1 and q == 0: o.append(f'v_add_u32 v{VPA}, s{sCP}, v{VL2}')
        o += [(f'v_add_f32 v{R[n]}, -v{R[n]}, -v{R[n]+1}' if neg else f'v_add_f32 v{R[n]}, v{R[n]}, v{R[n]+1}') for n, neg in names]
        if pairs and ph == 0:
            o.append(f's_set_gpr_idx_on s{sp}, gpr_idx(DST)\n' + ''.join(f'v_cvt_pk_bf16_f32 v{P0+slot}, v{lo}, v{hi}\n' for (slot, lo, lr, hi, hr) in pairs) + 's_set_gpr_idx_off')
        elif pairs:
            for (slot, lo, lr, hi, hr) in pairs: o.append(f'v_cvt_pk_bf16_f32 v{lo}, v{lo}, v{hi}')
            for (slot, lo, lr, hi, hr) in pairs:
                o.append((f'ds_write_b16 v{VPA}, v{lo} offset:{lr*128}', [('P', False)]))
                if hr is not None: o.append((f'ds_write_b16_d16_hi v{VPA}, v{lo} offset:{hr*128}', [('P', False)]))
        return o
    def drop(self, line):
        x = opt('drop', '')
        if not x or not getattr(self, 'inunit', False) or '\n' in line.strip(): return False
        l = line.strip()
        if 'D' in x and l.startswith('buffer_load') and (f's[{sX}:' in l or f's[{sX2}:' in l): return True
        if 'P' in x and l.startswith('ds_write_b16'): return True
        if 'S' in x and l.startswith('v_permlane'): return True
        if 'C' in x and l.startswith('v_cvt_pk'): return True
        if 'B' in x and l.startswith('ds_read_b64_tr') and (f'v{VB0} ' in l or f'v{VB1} ' in l): return True
        if 'F' in x and l.startswith('v_fmac'): return True
        if 'A' in x and l.startswith(('v_lshlrev_b32','v_and_b32','v_cvt_pk')): return True
        if 'A' in x and l.startswith('v_mul_f32') and int(l.split()[1][1:-1]) < 64: return True
        if 'Y' in x and l.startswith(('ds_read_b128',)): return True
        return False
    def emit(self, items, lg):
        for it in items:
            if isinstance(it, str):
                if not self.drop(it): self.a(it)
            elif it[0] != 'wait' and self.drop(it[0]):
                for t, o in it[1]: lg.issue(t, o)
            elif it[0] == 'wait':
                w = lg.waitline(it[1])
                if len(it) > 2 and it[2] is not None: w = f's_waitcnt vmcnt({it[2]})' + (w[len('s_waitcnt'):] if w else '')
                if w: self.a(w)
            else:
                self.a(it[0])
                for t, o in it[1]: lg.issue(t, o)
    ENTRY = [('B', False)]*2 + [('B1' if opt('split', 0) else 'B', False)]*2 + [('a0', False)]*2 + [('y00', False)]*2 + [('y01', False)]*2 + [('a1', False)]*2 + [('y10', False)]*2 + [('y11', False)]*2
    @staticmethod
    def cost(it):
        if isinstance(it, tuple):
            if it[0] == 'wait': return 1
            it = it[0]
        return sum((2 if 'permlane' in l else 1) for l in it.strip().split('\n') if not l.strip().endswith(':'))
    def unit(self, nK, ph):
        a = self.a
        lg = LG(a, self.ENTRY)
        a(f'K2_U{nK}{ph}:')
        self.inunit = True
        n = 4 * nK
        BUD = opt('bud', 7)
        pre = seg(0)
        claim = (self.claim0() if ph == 0 else self.atomic())
        after = ([] if ph == 0 else [('wait', 'C')] + self.claimed()) + self.next_info(ph)
        if nK == 1: pre += claim
        pre += self.abuild(nK)
        if nK == 1:
            pre += after + (self.eread() if ph == 0 else [])
            for t in range(4): pre += self.sread(t)
            if ph == 0: pre += self.adma()
            for t in range(4): pre += self.gmad(t)
        x = -1 if nK == 1 else 2
        MW = opt('mergewait', True)
        gaps = [[] for _ in range(4*n)]; tailg = [[] for _ in range(4*n)]
        vmn = lambda i: 4 + (3 if (ph == 0 and x < i <= x + 3) else 0)
        for i in range(n):
            d = self.dma(i & 3, G + 2*((i+4) % nK), sOWN + (i+4)//nK) if i + 4 < n else self.dma(i & 3, G + 2*(i+4-n), sNX + (i+4-n))
            br = self.bread(i + 1); SP = opt('split', 0)
            w = [] if MW else [f's_waitcnt vmcnt({vmn(i)})']
            if SP == 0:
                gaps[4*i] += w + br; tailg[4*i] += [d[0]]; gaps[4*i+1] += [d[1], d[2]]
            elif SP == 1:
                gaps[4*i] += w + br[:2]; tailg[4*i+1] += [('wait', 'B1'), d[0]]; gaps[4*i+2] += [d[1]] + br[2:]; tailg[4*i+2] += [d[0]]; gaps[4*i+3] += [d[2]]
            elif SP == 2:
                gaps[4*i] += w + br[:2]; gaps[4*i+1] += br[2:]; tailg[4*i+1] += [d[0]]; gaps[4*i+2] += [d[1]]; tailg[4*i+2] += [d[0]]; gaps[4*i+3] += [d[2]]
            if i + 1 < n: tailg[4*i+3] += [('wait', 'B1' if SP == 2 else 'B', vmn(i+1) if MW else None)]
        used = lambda g: sum(map(self.cost, gaps[g] + tailg[g]))
        def place(items, g0, g1):
            g = g0
            for it in items:
                while g < g1 and used(g) + self.cost(it) > BUD and used(g) > 1: g += 1
                gaps[g].append(it)
            return g
        DEF = opt('defer', True) and nK > 1
        if nK > 1:
            for t in range(4):
                place(self.sread(t), 4*(n-6+t) + (3 if opt('split', 0) else 2), 4*(n-6+t) + 3)
                place(self.gmad(t), 4*(n-5+t) + 1, 4*(n-5+t) + 3)
        ndef = [0]*4
        for q in range(1, 4):
            g0 = 4*q*nK
            if DEF:
                f3 = self.F(q-1, 3)
                room = [max(0, BUD - used(g0 + k)) for k in range(3)]
                m = min(16, sum(room)); ndef[q-1] = m
                f3 = f3[16-m:]
                for k in range(3):
                    gaps[g0 + k] += f3[:room[k]]; f3 = f3[room[k]:]
            place(self.fin(q-1, ph), g0 + (3 if DEF else 1), 4*(q*nK + nK - 1) + (1 if nK > 1 else 3))
        place(self.fin(3, ph, sPP), 1, 4*(nK - 1) + (1 if nK > 1 else 3))
        if nK > 1:
            if ph == 0:
                g = place(claim + after, 1, 5)
                place(self.eread(), max(g, 5), 7)
                place(self.adma(), 4*x + 3, 4*x + 3)
            else:
                place(claim, 1, 3)
                g1 = 4*(n-6) + (3 if opt('split', 0) else 2)
                keep = gaps[g1]; k0 = [i for i, it in enumerate(keep) if isinstance(it, str) and f'v{VSO}' in it]
                moved = keep[k0[0]:] if k0 else []
                if k0: gaps[g1] = keep[:k0[0]]
                place(after, 5, g1)
                gaps[g1] += moved
        nf0 = [0]*4
        if nK > 1:
            for q in range(4):
                g = 4*(q*nK + nK - 1) + 2
                nf0[q] = max(0, BUD - used(g))
                gaps[g] += self.F(q, 0)[:nf0[q]]
        self.emit([f's_setprio {opt("prioa", 1)}'] + pre + seg(1) + [('wait', 'B', vmn(0) if MW else None)] + ([f's_setprio {opt("prio", 1)}'] if opt("prio", 1) != opt("prioa", 1) else []), lg)
        for i in range(n):
            q, s = divmod(i, nK)
            for k, (t, u) in enumerate(TILES):
                c = f'v[{tile(t,u)}:{tile(t,u)+15}]' if s else '0'
                bb = BR + (i & 1)*8 + u*4
                if 'M' not in opt('drop', ''): a(f'v_mfma_f32_32x32x16_bf16 v[{tile(t,u)}:{tile(t,u)+15}], v[{AR+s*8+t*4}:{AR+s*8+t*4+3}], v[{bb}:{bb+3}], {c}')
                g = 4*i + k
                if k == 3 and s == nK - 1:
                    self.emit([f's_setprio {opt("prio0", 0)}'] + gaps[g] + seg(2+2*q) + self.F(q, 0)[nf0[q]:], lg)
                    if q < 3: self.emit(self.F(q, 1) + self.F(q, 2) + self.F(q, 3)[:16-ndef[q]] + seg(3+2*q) + [f's_setprio {opt("prio", 1)}'], lg)
                else: self.emit(gaps[g], lg)
                self.emit(tailg[g], lg)
        end = [f's_sub_u32 s{sT}, s{sNBs}, s{sCB}', f'v_add_u32 v{VAO}, s{sT}, v{VAO}', f'v_add_u32 v{VYO}, s{sT}, v{VYO}']
        end += self.F(3, 1) + self.areads(0) + self.F(3, 2) + self.areads(1) + self.F(3, 3)
        self.emit(end, lg)
        if SEG:
            a('s_memtime s[94:95]\ns_waitcnt lgkmcnt(0)')
            def acc(d, i, j): a(f's_sub_u32 s67, s{76+2*j}, s{76+2*i}\ns_add_u32 s{d}, s{d}, s67')
            acc(96, 0, 1)
            for q in range(4): acc(97, 1+2*q, 2+2*q)
            for q in range(3): acc(98, 2+2*q, 3+2*q)
            acc(99, 8, 9)
            a(f's_add_u32 s100, s100, {nK}\ns_add_u32 s101, s101, 1')
        assert [x for x in lg.q if x[0] != 'P'] == self.ENTRY, lg.q
        self.inunit = False
        self.dispatch(ph)
    def dispatch(self, ph, check=True):
        if check:
            if ph == 0: self.a(f's_cmp_lg_u32 s{sNPH}, 0\ns_cbranch_scc1 K2_SWITCH')
            else: self.a(f's_cmp_eq_u32 s{sNV}, 0\ns_cbranch_scc1 K2_TAIL')
        self.a(f"""
        s_mov_b32 s{sCB}, s{sNBs}
        s_mov_b32 s{sPP}, s{sCP}
        s_mov_b32 s{sCP}, s{sNP}
        s_cmp_eq_u32 s{sNK}, 2
        s_cbranch_scc1 K2_U2{ph}
        s_cmp_eq_u32 s{sNK}, 3
        s_cbranch_scc1 K2_U3{ph}
        s_cmp_eq_u32 s{sNK}, 1
        s_cbranch_scc1 K2_U1{ph}
        s_branch K2_U4{ph}
        """)

    def wunpack(self):
        for i in range(40):
            self.a(f'v_lshlrev_b32 v{WR+2*i}, 16, v{WR+40+i}\nv_and_b32 v{WR+2*i+1}, 0xffff0000, v{WR+40+i}')
    def wload(self, ph, vl16):
        for i in range(10):
            if i % 4 == 0: self.a(f's_mov_b32 s{sT}, {WS_WTAB + ph*10240 + i*1024}')
            self.a(f'buffer_load_dwordx4 v[{WR+40+4*i}:{WR+43+4*i}], v{vl16}, s[{sWS}:{sWS+3}], s{sT} offen offset:{(i%4)*1024}')

    def gen(self):
        a = self.a
        vL, vT_, vC, vE, vREM, vOFF = 176, 177, 178, 179, 180, 181
        RK = 40
        NBs = 50
        t0 = 192
        ws = f's[{sWS}:{sWS+3}]'
        def loop(done, body):
            for i in range(U):
                a(f'v_cmp_lt_i32 vcc, {2*i}, v{vREM}\ns_cbranch_vccz {done}\ns_mov_b64 exec, vcc')
                a(body(i))
            a(f'{done}:\ns_mov_b64 exec, -1')
        a('s_cmp_ge_u32 s2, 256\ns_cbranch_scc1 K2_END')
        stamp(a, 0)
        a(f'''
        s_load_dwordx2 s[58:59], s[0:1], 0
        s_load_dwordx2 s[60:61], s[0:1], 72
        s_load_dwordx2 s[62:63], s[0:1], 88
        s_load_dwordx2 s[64:65], s[0:1], 16
        v_lshrrev_b32 v1, 6, v0
        s_mov_b32 s{sB}, s2
        v_readfirstlane_b32 s{sW}, v1
        s_mul_i32 s{sNB}, s2, 625
        s_add_u32 s{sNC}, s{sNB}, {625+15}
        s_add_u32 s{sNB}, s{sNB}, 15
        s_lshr_b32 s{sNB}, s{sNB}, 4
        s_lshr_b32 s{sNC}, s{sNC}, 4
        s_sub_u32 s{sNC}, s{sNC}, s{sNB}
        s_mov_b32 s{sJ0}, 0
        s_mov_b32 s{sFIRST}, 1
        {chr(10).join(f's_mov_b32 s{i}, 0' for i in range(96, 102)) if SEG else ''}
        s_movk_i32 s{s1024}, 1024
        s_lshl_b32 s{sRING}, s{sW}, 13
        s_mov_b32 s{sPROG}, {PROG}
        s_lshl_b32 s{sPROGW}, s{sW}, 2
        s_add_u32 s{sPROGW}, s{sPROGW}, s{sPROG}
        {chr(10).join(f's_add_u32 s{sM0+i}, s{sRING}, {i*2048}' for i in range(4))}
        s_waitcnt lgkmcnt(0)
        ''')
        srd(a, sWS, 62, WS_SIZE); srd(a, sX, 58, N*1024); srd(a, sOUT, 60, N*1024); srd(a, sEA, 64, E*32)
        a('s_sub_u32 s58, s58, 1024\ns_subb_u32 s59, s59, 0'); srd(a, sX2, 58, N*1024 + 1024)
        a(f'''
        K2_WINDOW:
        s_mov_b32 s{sRND}, 0
        s_mov_b32 s{sR}, 1
        s_mov_b32 s{sRW}, 64
        K2_LOAD:
        v_mbcnt_lo_u32_b32 v{vL}, -1, 0
        v_mbcnt_hi_u32_b32 v{vL}, -1, v{vL}
        s_lshl_b32 s{sT}, s{sW}, 6
        v_add_u32 v{vT_}, s{sT}, v{vL}
        v_lshrrev_b32 v{vC}, 1, v{vT_}          ; cell
        v_min_u32 v{vC}, {NCH-1}, v{vC}
        v_mul_u32_u24 v1, {TSTR}, v{vC}
        s_lshl_b32 s{sT}, s{sB}, 2
        s_add_u32 s{sT}, s{sT}, {WS_TBL}
        buffer_load_dword v{vE}, v1, {ws}, s{sT} offen
        v_lshlrev_b32 v2, 4, v{vL}
        ''')
        self.wload(0, 2)
        WEARLY = opt('wearly', True)
        for t in range(512): assert (t*1311) >> 16 == t // 50
        a(f'''
        v_mul_u32_u24 v3, 1311, v{vT_}
        v_lshrrev_b32 v3, 16, v3
        v_mul_u32_u24 v3, 50, v3
        v_sub_u32 v3, v{vT_}, v3
        v_subrev_u32 v4, 32, v3
        v_mov_b32 v8, -1
        v_mov_b32 v5, 1.0
        v_cmp_gt_u32 vcc, 16, v4
        v_cndmask_b32 v8, v8, 0, vcc
        v_cmp_gt_u32 vcc, 4, v4
        v_cndmask_b32 v8, v8, v5, vcc
        v_lshlrev_b32 v6, 4, v{vT_}
        v_add_u32 v6, {RECBASE}, v6
        v_add_u32 v7, 64000, v6
        v_mov_b32 v9, v8
        v_mov_b32 v10, v8
        v_mov_b32 v11, v8
        v_cmp_gt_u32 vcc, 500, v{vT_}
        s_mov_b64 s[{sEX}:{sEX+1}], vcc
        s_mov_b64 exec, vcc
        ''')
        for i in range(CAP // 10): a(f'ds_write_b128 v{6 + (i//8)}, v[8:11] offset:{(i%8)*8000}')
        a(f'''
        s_mov_b64 exec, -1
        s_cmp_lg_u32 s{sW}, 0
        s_cbranch_scc1 K2_NOH
        v_mov_b32 v3, 0
        v_lshlrev_b32 v4, 2, v{vL}
        v_add_u32 v4, {HIST}, v4
        ds_write_b32 v4, v3 offset:{PROG-HIST}
        v_mov_b32 v5, {CNT}
        ds_write_b32 v5, v3
        s_cmp_lg_u32 s{sRND}, 0
        s_cbranch_scc1 K2_NOH
        ds_write_b32 v4, v3
        ds_write_b32 v5, v3 offset:{FLAG-CNT}
        K2_NOH:
        s_waitcnt vmcnt({0 if WEARLY else 10})
        ''')
        stamp(a, 1)
        a(f'''
        v_cndmask_b32 v{vE}, 0, v{vE}, s[{sEX}:{sEX+1}]
        v_and_b32 v1, 1, v{vT_}
        v_add_u32 v1, s{sJ0}, v1                ; j0 + sub
        v_lshrrev_b32 v{vREM}, 16, v{vE}
        v_sub_u32 v{vREM}, v{vREM}, v1
        v_and_b32 v{vE}, 0xffff, v{vE}
        v_add_u32 v{vE}, v{vE}, v1
        v_mul_u32_u24 v{vOFF}, {CSTR}, v{vC}
        v_lshl_add_u32 v{vOFF}, v{vE}, 4, v{vOFF}
        v_mul_u32_u24 v{vC}, {CH}, v{vC}
        ''')
        loop('K2_LD_DONE', lambda i: f'buffer_load_dwordx4 v[{4*i}:{4*i+3}], v{vOFF}, {ws}, 0 offen offset:{32*i}')
        a(f'''
        v_add_lshl_u32 v{vE}, v{vE}, v{vC}, 2
        s_mov_b32 s{sT+8}, {WS_RANK}
        v_and_b32 v60, 15, v{vL}                ; i
        v_lshrrev_b32 v61, 5, v{vL}             ; h
        v_bfe_u32 v62, v{vL}, 4, 1
        v_lshrrev_b32 v63, 2, v60
        v_and_b32 v64, 3, v60                   ; c
        v_lshl_add_u32 v65, v61, 3, v63         ; 8h + row
        v_lshlrev_b32 v{VAO}, 5, v65
        v_lshl_add_u32 v{VAO}, v64, 3, v{VAO}
        v_lshlrev_b32 v{VYO}, 6, v62
        v_lshl_add_u32 v{VYO}, v61, 5, v{VYO}
        v_add_u32 v{VYO}, 512, v{VYO}
        v_lshrrev_b32 v66, 1, v64
        v_lshl_add_u32 v66, v62, 1, v66         ; chunk (u = 0)
        v_bfe_u32 v67, v63, 1, 1
        v_lshlrev_b32 v67, 2, v67
        v_xor_b32 v66, v66, v67
        v_lshlrev_b32 v66, 4, v66
        v_lshl_add_u32 v66, v65, 7, v66
        v_and_b32 v67, 1, v64
        v_lshl_add_u32 v66, v67, 3, v66
        v_add_u32 v{VB0}, s{sRING}, v66
        v_xor_b32 v{VB1}, 64, v{VB0}
        v_lshrrev_b32 v66, 3, v{vL}
        v_lshlrev_b32 v{VSO}, 2, v66
        v_add_u32 v{VSO}, 768, v{VSO}
        v_bfe_u32 v66, v66, 1, 1
        v_lshlrev_b32 v66, 2, v66
        v_and_b32 v67, 7, v{vL}
        v_xor_b32 v66, v66, v67
        v_lshlrev_b32 v{VLG}, 4, v66
        v_lshlrev_b32 v{VL2}, 1, v{vL}
        v_and_b32 v{VH16}, 1, v{vL}
        v_lshlrev_b32 v{VH16}, 4, v{VH16}
        v_bfe_u32 v66, v{vL}, 1, 4
        v_lshlrev_b32 v66, 5, v66
        v_mul_u32_u24 v{VEO}, {BLK}, v61
        v_add_u32 v{VEO}, v{VEO}, v66
        v_mov_b32 v60, 1
        ''')
        if WEARLY: self.wunpack()
        a(f'''
        s_waitcnt lgkmcnt(0)
        s_barrier
        s_cmp_lg_u32 s{sRND}, 0
        s_cbranch_scc1 K2_RK_LOAD
        v_cmp_lt_i32 vcc, {2*U}, v{vREM}
        s_cbranch_vccz K2_NOMORE
        v_mov_b32 v61, {FLAG}
        ds_write_b32 v61, v60
        K2_NOMORE:
        s_mov_b32 s{sT}, {HIST}
        s_waitcnt vmcnt(0)
        ''')
        stamp(a, 2)
        PF2 = opt('pf2', 0)
        if PF2:
            a(f'''
            s_cmp_ge_u32 s{sW}, 5
            s_cbranch_scc1 K2_PFX
            s_mul_i32 s{sT+1}, s{sB}, {320*128}
            v_lshlrev_b32 v70, 7, v{vT_}
            buffer_load_dword v71, v70, s[{sEA}:{sEA+3}], s{sT+1} offen
            s_branch K2_PFD
            K2_PFX:
            s_mul_i32 s{sT+1}, s{sB}, {192*256}
            v_subrev_u32 v70, 320, v{vT_}
            v_lshlrev_b32 v70, 8, v70
            buffer_load_dword v71, v70, s[{sX}:{sX+3}], s{sT+1} offen
            {'buffer_load_dword v72, v70, s[%d:%d], s%d offen offset:128' % (sX, sX+3, sT+1) if PF2 == 2 else ''}
            K2_PFD:
            ''')
        nodeaddr = lambda i: f'v_lshrrev_b32 v{NBs+i}, 25, v{4*i+3}\nv_lshl_add_u32 v{NBs+i}, v{NBs+i}, 2, s{sT}\n'
        loop('K2_RK_A', lambda i: nodeaddr(i) + f'ds_add_rtn_u32 v{RK+i}, v{NBs+i}, v60')
        a(f's_branch K2_RK_DONE2\nK2_RK_LOAD:\ns_mov_b32 s{sT}, {HIST}\ns_waitcnt vmcnt(0)')
        loop('K2_RK_B', lambda i: nodeaddr(i) + f'buffer_load_dword v{RK+i}, v{vE}, {ws}, s{sT+8} offen offset:{8*i}')
        a(f'''
        s_waitcnt vmcnt(0)
        K2_RK_DONE2:
        v_lshlrev_b32 v{t0}, 2, v{vL}
        v_add_u32 v{t0}, {HIST}, v{t0}
        v_mov_b32 v{t0+8}, {FLAG}
        s_waitcnt lgkmcnt(0)
        s_barrier
        ds_read_b32 v{t0+1}, v{t0}
        ds_read_b32 v{t0+8}, v{t0+8}
        ''')
        if not WEARLY: self.wunpack()
        a(f'''
        s_waitcnt lgkmcnt(0)
        v_readfirstlane_b32 s{sMORE}, v{t0+8}
        K2_TCALC:
        s_mul_i32 s{sT+9}, s{sRND}, s{sRW}
        v_subrev_u32 v{t0+2}, s{sT+9}, v{t0+1}
        v_max_i32 v{t0+2}, 0, v{t0+2}
        v_min_i32 v{t0+2}, s{sRW}, v{t0+2}
        v_add_u32 v{t0+2}, 15, v{t0+2}
        v_lshrrev_b32 v{t0+2}, 4, v{t0+2}
        v_max_u32 v{t0+2}, 1, v{t0+2}           ; nK
        v_max_u32 v{t0+3}, 2, v{t0+2}           ; blocks
        v_cmp_gt_u32 vcc, s{sNC}, v{vL}
        v_cndmask_b32 v{t0+3}, 0, v{t0+3}, vcc
        v_mov_b32 v{t0+4}, v{t0+3}
        ''')
        scan(a, t0+4)
        a(f'''
        s_cmp_lg_u32 s{sRW}, 64
        s_cbranch_scc1 K2_TOK
        v_readlane_b32 s{sT}, v{t0+4}, 63
        v_cmp_lt_u32 vcc, 64, v{t0+1}
        s_cmp_gt_u32 s{sT}, {CAPU}
        s_cbranch_scc1 K2_SLOW
        s_cbranch_vccz K2_TOK
        K2_SLOW:
        v_mov_b32 v{t0+5}, v{t0+1}
        ''')
        scan(a, t0+5, 'v_max_u32')
        a(f'''
        v_readlane_b32 s{sR}, v{t0+5}, 63
        s_add_u32 s{sR}, s{sR}, 31
        s_lshr_b32 s{sR}, s{sR}, 5
        s_mov_b32 s{sRW}, 32
        ''')
        loop('K2_SV_DONE', lambda i: f'buffer_store_dword v{RK+i}, v{vE}, {ws}, s{sT+8} offen offset:{8*i}')
        a(f'''
        s_branch K2_TCALC
        K2_TOK:
        v_sub_u32 v{t0+4}, v{t0+4}, v{t0+3}     ; exclusive
        s_movk_i32 s{sT}, {BLK}
        v_mov_b32 v{t0+5}, {RECBASE}
        v_mad_u32_u24 v{t0+4}, v{t0+4}, s{sT}, v{t0+5}   ; base
        ds_write_b32 v{t0}, v{t0+4} offset:{TABL-HIST}
        v_lshlrev_b32 v{t0+5}, 5, v{vL}
        v_sub_u32 v{t0+5}, v{t0+5}, v{t0+4}
        v_and_b32 v{t0+5}, 0xff, v{t0+5}
        v_cmp_lt_u32 vcc, 192, v{t0+5}
        v_cmp_gt_u32 s[{sEX}:{sEX+1}], 3, v{t0+2}
        s_and_b64 vcc, vcc, s[{sEX}:{sEX+1}]
        v_cndmask_b32 v{t0+5}, v{t0+5}, 0, vcc
        v_lshl_or_b32 v{VTAB}, v{t0+2}, 18, v{t0+4}
        v_lshl_or_b32 v{VTAB}, v{t0+5}, 21, v{VTAB}
        v_mov_b32 v{t0+5}, {NULLBASE | (1 << 18)}
        v_cmp_gt_u32 vcc, s{sNC}, v{vL}
        v_cndmask_b32 v{VTAB}, v{t0+5}, v{VTAB}, vcc
        s_waitcnt lgkmcnt(0)
        ''')
        loop('K2_TB_DONE', lambda i: f'ds_read_b32 v{NBs+i}, v{NBs+i} offset:{TABL-HIST}\n'
             f'v_bfe_u32 v{60+i}, v{4*i+3}, 14, 11\nv_add_lshl_u32 v{60+i}, v{60+i}, v{vC}, 5\nv_and_b32 v{4*i+3}, 0x3fff, v{4*i+3}\nv_subrev_u32 v{RK+i}, s{sT+9}, v{RK+i}')
        a('s_waitcnt lgkmcnt(0)')
        for i in range(U):
            nx = self.lab('sc')
            a(f'''
            v_cmp_lt_i32 vcc, {2*i}, v{vREM}
            s_cbranch_vccz K2_SC_DONE
            v_cmp_gt_u32 s[{sEX}:{sEX+1}], s{sRW}, v{RK+i}
            v_lshrrev_b32 v{t0}, 4, v{RK+i}
            v_mad_u32_u24 v{t0}, v{t0}, s{sT}, v{NBs+i}
            v_and_b32 v{t0+1}, 15, v{RK+i}
            s_and_b64 exec, vcc, s[{sEX}:{sEX+1}]
            s_cbranch_execz {nx}
            v_lshl_add_u32 v{t0+2}, v{t0+1}, 5, v{t0}
            v_lshl_add_u32 v{t0+3}, v{t0+1}, 2, v{t0}
            v_and_b32 v{t0+4}, 7, v{t0+1}
            v_lshrrev_b32 v{t0+1}, 3, v{t0+1}
            v_lshl_add_u32 v{t0+4}, v{t0+4}, 2, v{t0}
            v_lshl_add_u32 v{t0+4}, v{t0+1}, 1, v{t0+4}
            ds_write_b32 v{t0+2}, v{60+i}
            ds_write2_b32 v{t0+3}, v{4*i}, v{4*i+1} offset0:144 offset1:160
            ds_write_b32 v{t0+3}, v{4*i+2} offset:704
            ds_write_b16 v{t0+4}, v{4*i+3} offset:768
            {nx}:
            s_mov_b64 exec, -1
            ''')
        a('K2_SC_DONE:')
        for q in range(4): a(f's_movk_i32 s{sOWN+q}, {q*256}')
        a(f'''
        s_mov_b32 s{sJ}, 0
        s_mov_b32 s{sNPH}, 0
        s_mov_b32 s{sNP}, 0
        s_mov_b32 s{sNV}, 1
        s_mov_b32 s{sCP}, 0
        s_mov_b32 s{sT}, s{sW}
        ''')
        lg = LG(a)
        self.emit(self.next_info(0), lg)
        a('s_waitcnt lgkmcnt(0)\ns_barrier')
        stamp(a, 3)
        pre = self.eread()
        for t in range(4): pre += self.sread(t)
        pre += self.adma()
        for t in range(4): pre += self.gmad(t)
        for t in range(4): pre += self.dma(t, G + 2*t, sNX + t)
        pre += [f'v_add_u32 v{VAO}, s{sNBs}, v{VAO}', f'v_add_u32 v{VYO}, s{sNBs}, v{VYO}', 's_waitcnt vmcnt(6)']
        self.emit(pre, lg)
        stamp(a, 4)
        self.emit(self.bread(0) + self.areads(0) + self.areads(1), lg)
        self.dispatch(0, check=False)
        for ph in range(2):
            for nK in (2, 3): self.unit(nK, ph)
        for ph in range(2):
            for nK in (1, 4): self.unit(nK, ph)
        a('K2_SWITCH:')
        stamp(a, 5)
        self.emit(self.fin(3, 0), LG(a))
        a(f's_cmp_eq_u32 s{sNV}, 0\ns_cbranch_scc1 K2_TAIL2\nv_lshlrev_b32 v{VT0}, 3, v{VL2}\nv_add_u32 v{VPA}, s{sNP}, v{VL2}')
        self.wload(1, VT0)
        for q in range(4): a(f's_movk_i32 s{sOWN+q}, {q*256+128}')
        a('s_waitcnt vmcnt(0)')
        self.wunpack()
        stamp(a, 6)
        self.dispatch(1, check=False)
        for t in self.outline: a(t)
        self.tail()
        a('K2_END:\ns_endpgm')
        return a.lines, 256

    def tail(self):
        a = self.a
        ws = f's[{sWS}:{sWS+3}]'
        vP0 = 222; vP1 = 223; vS = 226; vSP = 227; vRow = 228; vL16 = 229
        OP = 176
        a('K2_TAIL:')
        self.emit(self.fin(3, 1), LG(a))
        a('K2_TAIL2:')
        stamp(a, 7)
        a(f"""
        v_lshlrev_b32 v{vL16}, 3, v{VL2}
        s_mul_i32 s{sT}, s{sW}, {20*1024}
        s_add_u32 s{sT}, s{sT}, {WS_STAB}
        s_mul_i32 s{sT+1}, s{sW}, {8192+32}
        v_add_u32 v{vRow}, s{sT+1}, v{VL2}
        s_waitcnt vmcnt(0)
        """)
        rows = [(0,2),(5,8),(3,6),(9,1),(4,7),(10,None)]
        dump = []
        for j in range(5):
            for k, (lo, hi) in enumerate(rows):
                dump.append(f'ds_write_b16 v{vRow}, v{P0+6*j+k} offset:{j*1536 + lo*128}')
                if hi is not None: dump.append(f'ds_write_b16_d16_hi v{vRow}, v{P0+6*j+k} offset:{j*1536 + hi*128}')
        for f in range(20):
            a(f'buffer_load_dwordx4 v[{WR+4*f}:{WR+4*f+3}], v{vL16}, {ws}, s{sT} offen offset:{(f%4)*1024}')
            if f % 4 == 3 and f < 19: a(f's_add_u32 s{sT}, s{sT}, 4096')
            for x in dump[3*f:3*f+3]: a(x)
        a(f"""
        v_bfe_u32 v48, v{VL2}, 1, 4             ; n & 15
        v_lshlrev_b32 v49, 2, v48
        v_add_u32 v50, 64, v49
        v_add_u32 v51, 128, v49
        ds_bpermute_b32 v{vP1}, v49, v{VTAB}
        ds_bpermute_b32 v{vP1+1}, v50, v{VTAB}
        ds_bpermute_b32 v{vP1+2}, v51, v{VTAB}
        v_lshrrev_b32 v49, 5, v{VL2}            ; slab
        v_and_b32 v50, 7, v48
        v_mul_u32_u24 v50, {8192+32}, v50
        v_lshrrev_b32 v51, 3, v48
        v_mul_u32_u24 v51, 1536, v51
        v_add_u32 v50, v50, v51
        v_lshlrev_b32 v52, 4, v49               ; slab*16
        v_add_u32 v{vP0}, v50, v52
        s_lshl_b32 s{sT+2}, s{sW}, 5
        v_lshl_add_u32 v51, v49, 3, s{sT+2}
        v_bfe_u32 v53, v48, 2, 1
        v_lshl_add_u32 v51, v53, 4, v51
        v_add_u32 v{vS}, v50, v51
        s_sub_u32 s{sT+2}, s{sNC}, 32
        v_cmp_gt_u32 s[{sEX}:{sEX+1}], s{sT+2}, v48
        s_bfe_u32 s{sT+2}, s{sW}, 0x10002
        s_lshl_b32 s{sT+2}, s{sT+2}, 4
        s_add_u32 s{sT+1}, s{sT+1}, s{sT+2}
        s_add_u32 s{sRND}, s{sRND}, 1
        s_cmp_ge_u32 s{sRND}, s{sR}
        s_cselect_b32 s{sLAST}, 1, 0
        s_cmp_eq_u32 s{sMORE}, 0
        s_cselect_b32 s{sLAST}, s{sLAST}, 0
        s_and_b32 s{sT+6}, s{sLAST}, s{sFIRST}
        s_add_u32 s{sT+4}, s{sNB}, s{sW}
        s_lshl_b32 s{sT+4}, s{sT+4}, 10
        s_mov_b32 s{sT+5}, 0xbfb8aa3b           ; -log2(e)
        s_waitcnt lgkmcnt(0)
        v_add_u32 v{vRow}, s{sT+1}, v{vL16}
        """)
        for g in range(3):
            a(f'v_lshrrev_b32 v50, 21, v{vP1+g}\nv_and_b32 v51, 0x3ffff, v{vP1+g}\nv_add3_u32 v{vP1+g}, v50, v51, v52')
        stamp(a, 8); a('s_barrier'); stamp(a, 9)
        a(f's_cmp_eq_u32 s{sT+6}, 0\ns_cbranch_scc1 K2_MULTI')
        steps = []
        for g in range(3):
            for ph in range(2):
                for rs in range(2):
                    for hh in range(2): steps.append((g, 0, ph*4 + rs*2 + hh, ph, rs, hh))
            for ph in range(2):
                for path in range(3):
                    for hh in range(2):
                        for j in range(3): steps.append((g, 1+j, 8 + ph*6 + path*2 + hh, ph, 2 + 3*j + path, hh))
        NB = 12; D = 10
        def epi(g):
            c = 16*g; o = OP + 8*(g & 1); s = []; tp = 200
            for r in range(4): s.append(f'v_mul_f32 v{tp+r}, s{sT+5}, v{c+r}')
            for r in range(4): s.append(f'v_exp_f32 v{tp+r}, v{tp+r}')
            for r in range(4): s.append(f'v_add_f32 v{tp+r}, 1.0, v{tp+r}')
            for r in range(4): s.append(f'v_rcp_f32 v{tp+r}, v{tp+r}')
            s += [f'v_cvt_pk_bf16_f32 v{o}, v{c}, v{c+1}', f'v_cvt_pk_bf16_f32 v{o+1}, v{c+2}, v{c+3}']
            for j in range(3):
                for r in range(4): s.append(f'v_mul_f32 v{c+4+4*j+r}, v{c+4+4*j+r}, v{tp+r}')
                s += [f'v_cvt_pk_bf16_f32 v{o+2+2*j}, v{c+4+4*j}, v{c+5+4*j}', f'v_cvt_pk_bf16_f32 v{o+3+2*j}, v{c+6+4*j}, v{c+7+4*j}']
            return s
        def stage(g):
            o = OP + 8*(g & 1)
            w = [(f'ds_write_b64 v{vS}, v[{o+2*rt}:{o+1+2*rt}] offset:{g*3072 + rt*256}', [(f'w{g}', False)]) for rt in range(4)]
            return w if g < 2 else [f's_mov_b64 exec, s[{sEX}:{sEX+1}]'] + w + ['s_mov_b64 exec, -1']
        def rowread(g):
            return [(f'ds_read_b128 v[{192+4*(j&1)}:{195+4*(j&1)}], v{vRow} offset:{j*1536}', [(f'r{g}', False)]) for j in ((2*g, 2*g+1) if g < 2 else (4,))]
        def rowstore(g):
            s = [('wait', f'r{g}')]
            for j in ((2*g, 2*g+1) if g < 2 else (4,)):
                s += [f'buffer_store_dwordx4 v[{192+4*(j&1)}:{195+4*(j&1)}], v{vL16}, s[{sOUT}:{sOUT+3}], s{sT+4} offen {mod("outst","sc1")}', f's_add_u32 s{sT+4}, s{sT+4}, 8192']
            return s
        def gemm(lg, extra):
            def rd(k):
                g, rt, f, ph, row, hh = steps[k]
                b = 48 + 4*(k % NB)
                ad = f'v{vP1+g} offset:{row*128 + hh*64}' if ph else f'v{vP0} offset:{g*3072 + row*128 + hh*64}'
                self.emit([(f'ds_read_b128 v[{b}:{b+3}], {ad}', [(f'k{k}', False)])], lg)
            for k in range(D): rd(k)
            seen = set(); started = set()
            for k in range(len(steps)):
                g, rt, f, ph, row, hh = steps[k]
                if k + D < len(steps): rd(k + D)
                vm = None
                if f not in seen: seen.add(f); vm = 19 - f
                self.emit([('wait', f'k{k}', vm)], lg)
                b = 48 + 4*(k % NB); c = 16*g + 4*rt
                cin = f'v[{c}:{c+3}]' if c in started else '0'; started.add(c)
                a(f'v_mfma_f32_16x16x32_bf16 v[{c}:{c+3}], v[{WR+4*f}:{WR+4*f+3}], v[{b}:{b+3}], {cin}')
                self.emit(extra.get(k, []), lg)
        lg = LG(a); extra = {}
        for g in range(2):
            e = epi(g); k0 = 44*(g+1) + 3
            for i, x in enumerate(e): extra.setdefault(k0 + min(i, 40), []).append(x)
        extra.setdefault(44 + 2, []).insert(0, 's_barrier')
        extra[83] = stage(0)
        extra[95] = [('wait', 'w0'), 's_barrier'] + rowread(0) + extra[95]
        extra[107] += rowstore(0)
        extra[127] = stage(1)
        gemm(lg, extra)
        stamp(a, 10)
        self.emit(epi(2) + [('wait', 'w1'), 's_barrier'] + rowread(1) + stage(2) + rowstore(1) + [('wait', 'w2'), 's_barrier'], lg)
        a(f'K2_LASTROW:\ns_add_u32 s{sT+1}, s{sW}, 32\ns_cmp_ge_u32 s{sT+1}, s{sNC}\ns_cbranch_scc1 K2_FIN')
        self.emit(rowread(2) + rowstore(2), lg)
        a('K2_FIN:')
        if PROF:
            stamp(a, 11); a('s_waitcnt vmcnt(0)'); stamp(a, 12); stamp_out(a, 13, 1, sW, sB, sWS)
        a('s_branch K2_END')
        a('K2_MULTI:')
        lg = LG(a)
        gemm(lg, {})
        a(f"""
        s_lshl_b32 s{sT+2}, s{sB}, 9
        s_lshl_b32 s{sT+3}, s{sW}, 6
        s_add_u32 s{sT+2}, s{sT+2}, s{sT+3}
        s_mul_i32 s{sT+2}, s{sT+2}, 192
        s_add_u32 s{sT+2}, s{sT+2}, {WS_ACC}
        v_mul_u32_u24 v{vSP}, 96, v{VL2}        ; lane*192
        s_cmp_lg_u32 s{sFIRST}, 0
        s_cbranch_scc1 K2_NOACC
        """)
        for i in range(12): a(f'buffer_load_dwordx4 v[{48+4*i}:{51+4*i}], v{vSP}, {ws}, s{sT+2} offen offset:{16*i}')
        a('s_waitcnt vmcnt(0)')
        for i in range(48): a(f'v_add_f32 v{i}, v{i}, v{48+i}')
        a(f'K2_NOACC:\ns_barrier\ns_cmp_eq_u32 s{sLAST}, 0\ns_cbranch_scc1 K2_SPILL')
        for g in range(2):
            self.emit(epi(g) + stage(g) + [('wait', f'w{g}'), 's_barrier'] + rowread(g) + rowstore(g), lg)
        self.emit(epi(2) + stage(2) + [('wait', 'w2'), 's_barrier'], lg)
        a('s_branch K2_LASTROW\nK2_SPILL:')
        for i in range(12): a(f'buffer_store_dwordx4 v[{4*i}:{4*i+3}], v{vSP}, {ws}, s{sT+2} offen offset:{16*i}')
        a(f"""
        s_mov_b32 s{sFIRST}, 0
        s_waitcnt vmcnt(0)
        s_cmp_lt_u32 s{sRND}, s{sR}
        s_cbranch_scc1 K2_LOAD
        s_add_u32 s{sJ0}, s{sJ0}, {2*U}
        s_branch K2_WINDOW
        """)

HEADER = '''; Kernarg layout for this problem (96 bytes, ptrs only, base s[0:1]):
'''
def kd(name, vgpr):
    return f'''.amdhsa_kernel {name}
  .amdhsa_next_free_vgpr {vgpr}
  .amdhsa_next_free_sgpr {102 if PROF else 76}
  .amdhsa_accum_offset {(vgpr+3)//4*4}
  .amdhsa_group_segment_fixed_size 0
  .amdhsa_kernarg_size 96
  .amdhsa_user_sgpr_count 2
  .amdhsa_user_sgpr_kernarg_segment_ptr 1
  .amdhsa_system_sgpr_workgroup_id_x 1
  .amdhsa_float_denorm_mode_32 3
.end_amdhsa_kernel
'''
def main():
    l1, v1 = k1(); l2, v2 = K2().gen()
    l1 = fix_hazards(l1); l2 = fix_hazards(l2)
    s = HEADER
    s += f'; @launch kernel=tp_sort_kernel grid=({NCH},1,1) block=({K1_T},1,1) lds={K1_LDS}\n'
    s += f'; @launch kernel=tp_main_kernel grid=(256,1,1) block=(512,1,1) lds={K2_LDS}\n'
    s += '.amdgcn_target "amdgcn-amd-amdhsa--gfx950"\n.text\n'
    for name, l in (('tp_sort_kernel', l1), ('tp_main_kernel', l2)):
        s += f'.globl {name}\n.p2align 8\n.type {name},@function\n{name}:\n'
        s += '\n'.join((x if x.endswith(':') else '    ' + x) for x in l) + '\n'
    s += '.section .rodata,"a"\n.p2align 6\n' + kd('tp_sort_kernel', v1) + '.p2align 6\n' + kd('tp_main_kernel', v2)
    out = sys.argv[1] if len(sys.argv) > 1 else f'/code/{NAME}.s'
    open(out, 'w').write(s)
    print('wrote', out, len(s), 'bytes')
main()
```

```python
import sys, os
sys.path.insert(0, os.path.dirname(os.path.abspath(__file__)))
from asmlib import Asm, fix_hazards

NAME = 'standalone__tensor_product_equiv_equiformer__graph'
N = 10000; E = 320000
NCH = 250; CH = E // NCH
CSTR = CH * 16 + 128
TSTR = 1024 + 128
WS_REC = 0
WS_TBL = 0x0600000
WS_STAB = 0x0680000
WS_WTAB = 0x06A8000
WS_RANK = 0x0700000
WS_PROF = 0x0900000
WS_ACC = 0x0A00000
WS_SIZE = 0x2400000
assert NCH * CSTR <= WS_TBL and WS_TBL + NCH * TSTR <= WS_STAB and WS_ACC + 256*512*192 <= WS_SIZE
BMUL = 429497
for d in range(N): assert ((d * BMUL) & 0xffffffff) >> 24 == (d * 16) // 625

OPT = dict(a.split('=') for a in sys.argv[2:]) if len(sys.argv) > 2 else {}
def opt(k, d): return type(d)(OPT.get(k, d)) if not isinstance(d, bool) else bool(int(OPT.get(k, d)))
def mod(k, d): return opt(k, d).replace('_', ' ')

PROF = opt('prof', False)
SEG = opt('seg', False)
def seg(i): return [f's_memtime s[{76+2*i}:{77+2*i}]'] if SEG else []
def stamp(a, i):
    if PROF and not SEG: a(f'{"s_memtime" if opt("cyc", False) else "s_memrealtime"} s[{76+2*i}:{77+2*i}]')
def stamp_out(a, n, kern, swave, swg, srd_s):
    if not PROF: return
    if opt('dbgout', -1) >= 0:
        l = f'DBG_{kern}'
        a(f's_cmp_lg_u32 s{swg}, {opt("dbgout", -1)}\ns_cbranch_scc1 {l}\ns_cmp_lg_u32 s{swave}, 0\ns_cbranch_scc1 {l}')
        a(f's_load_dwordx2 s[58:59], s[0:1], 80\ns_waitcnt lgkmcnt(0)\ns_add_u32 s58, s58, {512*(1-kern)*opt("dbgk1", 0)}\ns_addc_u32 s59, s59, 0')
        srd(a, 60, 58, 256)
        a('s_mov_b64 exec, 1\nv_mov_b32 v1, 0')
        for i, o in ([(0, 0), (5, 14), (2, 15)] if kern == 0 else [(i, 1+i) for i in range(13)]):
            a(f'v_mov_b32 v2, s{76+2*i}\nbuffer_store_dword v2, v1, s[60:63], 0 offen offset:{4*o}')
        a(f's_mov_b64 exec, -1\n{l}:')
        return
    a('s_waitcnt lgkmcnt(0)')
    a(f's_lshl_b32 s67, s{swg}, 4\ns_add_u32 s67, s67, s{swave}\ns_lshl_b32 s67, s67, 6\ns_add_u32 s67, s67, {WS_PROF + kern*256*16*64}')
    a('s_mov_b64 exec, 1\nv_mov_b32 v1, 0')
    for i in range(n):
        a(f'v_mov_b32 v2, s{76+2*i if not SEG else 96+min(i,5)}\nbuffer_store_dword v2, v1, s[{srd_s}:{srd_s+3}], s67 offen offset:{4*i}')
    a('s_mov_b64 exec, -1')

def srd(a, s, ptr, nbytes):
    a(f's_mov_b32 s{s}, s{ptr}\ns_and_b32 s{s+1}, s{ptr+1}, 0xffff\ns_mov_b32 s{s+2}, {nbytes}\ns_mov_b32 s{s+3}, 0x20000')

def scan(a, v, op='v_add_u32'):
    for sh in (1, 2, 4, 8):
        a(f'{op}_dpp v{v}, v{v}, v{v} row_shr:{sh} row_mask:0xf bank_mask:0xf bound_ctrl:0')
    a(f'{op}_dpp v{v}, v{v}, v{v} row_bcast:15 row_mask:0xa bank_mask:0xf')
    a(f'{op}_dpp v{v}, v{v}, v{v} row_bcast:31 row_mask:0xc bank_mask:0xf')

K1_T = CH // 4
K1_LDS = 2048 + CH * 16
def k1():
    a = Asm()
    ld = mod('k1ld', ''); st = mod('k1st', 'sc1')
    a(f's_cmp_ge_u32 s2, {NCH}\ns_cbranch_scc1 K1_END')
    stamp(a, 0)
    a(f'''
    s_load_dwordx2 s[36:37], s[0:1], 8      ; rhat
    s_load_dwordx4 s[40:43], s[0:1], 24
    s_load_dwordx4 s[44:47], s[0:1], 40
    s_load_dwordx2 s[48:49], s[0:1], 56     ; w_si1
    s_load_dwordx2 s[50:51], s[0:1], 88     ; ws
    s_load_dwordx2 s[30:31], s[0:1], 0      ; x
    s_load_dwordx2 s[32:33], s[0:1], 16     ; e_attr
    v_lshrrev_b32 v1, 6, v0
    v_lshlrev_b32 v5, 4, v0                 ; t*16
    v_readfirstlane_b32 s3, v1              ; wave
    v_mul_u32_u24 v4, 24, v0
    v_lshlrev_b32 v2, 2, v0                 ; t*4
    v_and_b32 v8, 63, v0
    v_lshlrev_b32 v9, 4, v8                 ; lane*16
    v_mov_b32 v6, 0
    v_mov_b32 v7, 1
    s_mul_i32 s52, s2, {CH*4}
    s_mul_i32 s53, s2, {CH*6}
    s_waitcnt lgkmcnt(0)
    ''')
    srd(a, 4, 42, E*4)
    srd(a, 8, 40, E*4)
    srd(a, 12, 36, E*6)
    srd(a, 20, 50, WS_SIZE)
    a(f'''
    buffer_load_dwordx4 v[12:15], v5, s[4:7], s52 offen {ld}
    buffer_load_dwordx4 v[16:19], v5, s[8:11], s52 offen {ld}
    buffer_load_dwordx4 v[20:23], v4, s[12:15], s53 offen {ld}
    buffer_load_dwordx2 v[24:25], v4, s[12:15], s53 offen offset:16 {ld}
    s_cmp_eq_u32 s3, 4
    s_cbranch_scc1 K1_PREP
    ds_write_b32 v2, v6
    s_branch K1_GO
    K1_PREP:
    s_cmp_ge_u32 s2, 200
    s_cbranch_scc1 K1_GO
    v_and_b32 v1, 15, v8
    v_lshrrev_b32 v3, 4, v8
    s_cmp_ge_u32 s2, 160
    s_cbranch_scc1 K1_WT
    s_cmp_ge_u32 s2, 64
    s_cbranch_scc1 K1_S1
    s_lshr_b32 s24, s2, 3
    s_and_b32 s25, s2, 7
    s_lshr_b32 s26, s25, 2
    s_bfe_u32 s27, s25, 0x10001
    s_and_b32 s28, s25, 1
    ''')
    srd(a, 16, 46, 256*128*2)
    a(f'''
    s_branch K1_SC
    K1_S1:
    ; S1: g2 = g-64; w = g2/12, f2 = g2%12 : ph = f2/6, path = (f2%6)>>1, hh = f2&1
    s_sub_u32 s29, s2, 64
    s_mul_i32 s24, s29, 43
    s_lshr_b32 s24, s24, 9
    s_mul_i32 s25, s24, 12
    s_sub_u32 s25, s29, s25
    s_cmp_ge_u32 s25, 6
    s_cselect_b32 s26, 1, 0
    s_mul_i32 s27, s26, 6
    s_sub_u32 s27, s25, s27
    s_lshr_b32 s27, s27, 1
    s_and_b32 s28, s25, 1
    s_add_u32 s25, s25, 8
    ''')
    for g2 in range(96): assert (g2*43) >> 9 == g2 // 12
    srd(a, 16, 48, 384*128*2)
    a(f'''
    K1_SC:
    s_lshl_b32 s27, s27, 7
    s_lshl_b32 s26, s26, 6
    s_lshl_b32 s28, s28, 5
    s_add_u32 s27, s27, s26
    s_add_u32 s27, s27, s28
    s_lshl_b32 s27, s27, 8
    s_lshl_b32 s26, s24, 5
    s_add_u32 s27, s27, s26
    v_lshlrev_b32 v3, 11, v3
    v_lshl_add_u32 v3, v1, 1, v3
    ''')
    for e in range(8): a(f'buffer_load_ushort v{64+e}, v3, s[16:19], s27 offen offset:{e*256}')
    a(f'''
    s_mul_i32 s24, s24, 20
    s_add_u32 s24, s24, s25
    s_lshl_b32 s24, s24, 10
    s_add_u32 s24, s24, {WS_STAB}
    s_branch K1_GO
    K1_WT:
    ; W (fp32): g3 = g-160; ph = g3/20, i = g3%20 : p = i>>2, u = (i>>1)&1, rq = i&1
    s_sub_u32 s24, s2, 160
    s_cmp_ge_u32 s24, 20
    s_cselect_b32 s26, 1, 0
    s_mul_i32 s25, s26, 20
    s_sub_u32 s25, s24, s25
    s_lshr_b32 s27, s25, 2
    s_bfe_u32 s28, s25, 0x10001
    s_and_b32 s25, s25, 1
    s_mul_i32 s25, s25, {8*1280}
    s_lshl_b32 s27, s27, 8
    s_lshl_b32 s26, s26, 7
    s_lshl_b32 s28, s28, 6
    s_add_u32 s27, s27, s26
    s_add_u32 s27, s27, s28
    s_add_u32 s27, s27, s25
    ''')
    srd(a, 16, 44, 16*640*2)
    a(f'''
    v_and_b32 v1, 31, v8
    v_lshrrev_b32 v3, 5, v8
    v_mul_u32_u24 v3, {4*1280}, v3
    v_lshl_add_u32 v3, v1, 1, v3
    v_mov_b32 v64, 0
    v_mov_b32 v66, 0
    v_mov_b32 v68, 0
    v_mov_b32 v70, 0
    ''')
    for r in range(4): a(f'buffer_load_ushort v{65+2*r}, v3, s[16:19], s27 offen offset:{r*1280}')
    a(f'''
    s_lshl_b32 s24, s24, 10
    s_add_u32 s24, s24, {WS_WTAB}
    K1_GO:
    s_mov_b32 s58, {BMUL}
    s_movk_i32 s59, 625
    s_waitcnt lgkmcnt(0)
    s_barrier
    s_cmp_eq_u32 s3, 4
    s_cbranch_scc1 K1_W4
    s_waitcnt vmcnt(3)
    s_branch K1_W4D
    K1_W4:
    s_waitcnt vmcnt(0)
    K1_W4D:
    ''')
    stamp(a, 1)
    PF = opt('pf', ''); npf = 0
    if PF:
        srd(a, 64, 32, E*32); srd(a, 68, 30, N*1024)
        a(f'v_lshlrev_b32 v60, 7, v0\ns_mul_i32 s60, s2, {CH*32}')
        pm = mod('pfm', '')
        if 'e' in PF: a(f'buffer_load_dword v61, v60, s[64:67], s60 offen {pm}'); npf += 1
        if 'x' in PF: a(f'buffer_load_dword v62, v60, s[68:71], s60 offen {pm}'); npf += 1
    for j in range(4):
        a(f'v_mul_u32_u24 v{28+j}, s58, v{12+j}\nv_lshrrev_b32 v{28+j}, 24, v{28+j}\nv_lshlrev_b32 v{32+j}, 2, v{28+j}\nds_add_rtn_u32 v{36+j}, v{32+j}, v7')
    for j in range(4):
        a(f'v_mad_u32_u24 v{28+j}, v{28+j}, s59, 15\nv_lshrrev_b32 v{28+j}, 4, v{28+j}\nv_sub_u32 v{28+j}, v{12+j}, v{28+j}')
        a(f'v_add_u32 v{12+j}, {j}, v2\nv_lshlrev_b32 v{12+j}, 14, v{12+j}\nv_lshl_or_b32 v{28+j}, v{28+j}, 25, v{12+j}')
    a(f'''
    s_waitcnt lgkmcnt(0)
    s_barrier
    ds_read_b128 v[40:43], v9
    s_waitcnt lgkmcnt(0)
    v_add_u32 v45, v40, v41
    v_add_u32 v46, v45, v42
    v_add_u32 v47, v46, v43
    v_mov_b32 v48, v47
    ''')
    scan(a, 48)
    a(f'''
    v_sub_u32 v48, v48, v47                 ; exclusive
    v_add_u32 v49, v48, v40
    v_add_u32 v50, v48, v45
    v_add_u32 v51, v48, v46
    ds_write_b128 v9, v[48:51] offset:1024
    s_cmp_lg_u32 s3, 0
    s_cbranch_scc1 K1_NOTBL
    v_lshl_or_b32 v52, v40, 16, v48
    v_lshl_or_b32 v53, v41, 16, v49
    v_lshl_or_b32 v54, v42, 16, v50
    v_lshl_or_b32 v55, v43, 16, v51
    s_mul_i32 s62, s2, {TSTR}
    s_add_u32 s62, s62, {WS_TBL}
    buffer_store_dwordx4 v[52:55], v9, s[20:23], s62 offen {st}
    K1_NOTBL:
    s_waitcnt lgkmcnt(0)
    ''')
    for j in range(4): a(f'ds_read_b32 v{32+j}, v{32+j} offset:1024')
    a(f's_cmp_lg_u32 s3, 0\ns_cbranch_scc1 K1_W0\ns_waitcnt vmcnt({1+npf})\ns_branch K1_W0D\nK1_W0:\ns_waitcnt vmcnt({npf})\nK1_W0D:')
    stamp(a, 2)
    H = lambda d, s: f'v_and_b32 v{d}, 0xffff0000, v{s}'
    L = lambda d, s: f'v_lshlrev_b32 v{d}, 16, v{s}'
    ys = [(L,20),(H,20),(L,21),(H,21),(L,22),(H,22),(L,23),(H,23),(L,24),(H,24),(L,25),(H,25)]
    for j in range(4):
        for c in range(3):
            f, s = ys[3*j+c]; a(f(40+4*j+c, s))
        a(f'v_or_b32 v{43+4*j}, v{28+j}, v{16+j}')
    a('s_waitcnt lgkmcnt(0)')
    for j in range(4):
        a(f'v_add_lshl_u32 v{32+j}, v{32+j}, v{36+j}, 4\nds_write_b128 v{32+j}, v[{40+4*j}:{43+4*j}] offset:2048')
    a(f's_mul_i32 s52, s2, {CSTR}\ns_waitcnt lgkmcnt(0)\ns_barrier')
    stamp(a, 3)
    for i in range(4): a(f'ds_read_b128 v[{12+4*i}:{15+4*i}], v5 offset:{2048 + i*K1_T*16}')
    for i in range(4):
        a(f's_waitcnt lgkmcnt({3-i})')
        a(f'buffer_store_dwordx4 v[{12+4*i}:{15+4*i}], v5, s[20:23], s52 offen {st}')
        if i < 3: a(f's_add_u32 s52, s52, {K1_T*16}')
    a(f'''
    s_cmp_lg_u32 s3, 4
    s_cbranch_scc1 K1_FIN
    s_cmp_ge_u32 s2, 200
    s_cbranch_scc1 K1_FIN
    v_lshl_or_b32 v40, v65, 16, v64
    v_lshl_or_b32 v41, v67, 16, v66
    v_lshl_or_b32 v42, v69, 16, v68
    v_lshl_or_b32 v43, v71, 16, v70
    buffer_store_dwordx4 v[40:43], v9, s[20:23], s24 offen {st}
    K1_FIN:
    ''')
    for i in range(opt('k1delay', 0)): a('s_sleep 16')
    if PROF:
        stamp(a, 4); a('s_waitcnt vmcnt(0)'); stamp(a, 5); stamp_out(a, 6, 0, 3, 2, 20)
    a('K1_END:\ns_endpgm')
    return a.lines, 72

NSTR = 2400
OY = 0; OS = 768; OA = 864
RECBASE = 65536
POOL = RECBASE + 40 * NSTR
MISC = POOL + OA + 1024
HIST = MISC; PROG = MISC + 192; CNT = MISC + 224; FLAG = MISC + 228; NULLSRC = MISC + 256; SCR = MISC + 288
NULLBASE = NULLSRC - OS
K2_LDS = 163840
U = 10
ACC = 0; AR = 64; WR = 96; BR = 176; P0 = 192; G = 222
VEO = 230; VH16 = 231; T2 = 232; T3 = 233; PW = 234
VB0 = 246; VB1 = 247; VLG = 248; VAO = 249; VYO = 250; VSO = 251; VL2 = 252; VTAB = 253; VT0 = 254; VT1 = 255; VPA = VEO
sX = 4; sWS = 8; sOUT = 12; sEA = 16
sW = 20; sNB = 21; sNC = 22; sJ0 = 23; sRND = 24; sR = 25; sLIM = 26; sMORE = 27; sFIRST = 28
sCB = 29; sC4 = 30; sCP = 31; sNBs = 48; sNK = 33; sNPH = 34; sNP = 35; sNV = 36
sRING = 37; sJ = 38; s1024 = 39; sOWN = 40; sNX = 44; sSO = 48; sPROGW = 52; sPROG = 53; sB = 54; sLAST = 55
sEX = 56
sT = 58
sM0 = 68
sX2 = 72
sPP = 32
sN4 = 3

def tile(t, u): return ACC + 16 * (2*u + t)
TILES = [(0,0), (1,0), (0,1), (1,1)]
def Wreg(p, u): return WR + p*16 + u*8

def weave(x, y):
    o = []
    for i in range(max(len(x), len(y))):
        o += x[i:i+1] + y[i:i+1]
    return o

class LG:
    def __init__(self, a, q=()): self.a = a; self.q = list(q)
    def issue(self, tag, optional=False): self.q.append((tag, optional))
    def waitline(self, tag):
        idx = [i for i, (t, o) in enumerate(self.q) if t == tag]
        if not idx: return None
        y = sum(1 for (t, o) in self.q[idx[-1]+1:] if not o)
        self.q = self.q[idx[-1]+1:]
        return f's_waitcnt lgkmcnt({min(y, 15)})'

class K2:
    def __init__(self):
        self.a = Asm()
        self.uid = 0
        self.outline = []
    def lab(self, s):
        self.uid += 1
        return f'K2_{s}_{self.uid}'

    def dma(self, slot, greg, soff):
        return [f's_mov_b32 m0, s{sM0+slot}',
                f'buffer_load_dwordx4 v{greg}, s[{sX}:{sX+3}], s{soff} offen lds',
                f'buffer_load_dwordx4 v{greg+1}, s[{sX2}:{sX2+3}], s{soff} offen offset:1024 lds']
    def bread(self, item):
        out = []
        for u in range(2):
            for r in range(2):
                d = BR + (item & 1)*8 + u*4 + r*2
                out.append((f'ds_read_b64_tr_b16 v[{d}:{d+1}], v{VB0+u} offset:{(item & 3)*2048 + r*512}', [('B' if u == 0 or not opt('split', 0) else 'B1', False)]))
        return out
    def sread(self, t):
        return [f'v_add_u32 v{G+2*t}, s{sSO+t}, v{VSO}', (f'ds_read_b32 v{G+2*t}, v{G+2*t}', [(f'S{t}', False)])]
    def gmad(self, t):
        return [('wait', f'S{t}'),
                f'v_mad_u32_u16 v{G+2*t+1}, v{G+2*t}, s{s1024}, v{VLG} op_sel:[1,0,0,0]',
                f'v_mad_u32_u16 v{G+2*t}, v{G+2*t}, s{s1024}, v{VLG}']
    def ool(self, text): self.outline.append(text)
    def atomic(self):
        return [f'v_mov_b32 v{VT0}, {CNT}', f'v_mov_b32 v{VT1}, 1', f'v_lshl_add_u32 v{T3}, v{VL2}, 1, s{sPROG}',
                (f's_mov_b64 exec, 1\nds_add_rtn_u32 v{T2}, v{VT0}, v{VT1}\ns_mov_b64 exec, -1', [('C', False)]),
                (f'ds_read_b32 v{T3}, v{T3}', [('C', False)])]
    def claimed(self):
        nul = self.lab('nul'); spin = self.lab('spin'); chk = self.lab('chk'); back = self.lab('back')
        self.ool(f'{nul}:\ns_mov_b32 s{sT}, 63\ns_mov_b32 s{sNV}, 0\ns_branch {back}')
        self.ool(f'{spin}:\nv_lshl_add_u32 v{T3}, v{VL2}, 1, s{sPROG}\nds_read_b32 v{T3}, v{T3}\ns_waitcnt lgkmcnt(0)\ns_branch {chk}')
        return [f'v_readfirstlane_b32 s{sT}, v{T2}',
                f"""s_cmp_lt_u32 s{sT}, s{sNC}
                s_cbranch_scc0 {nul}
                s_and_b32 s{sT+1}, s{sT}, 7
                s_lshr_b32 s{sT+2}, s{sT}, 3
                {chk}:
                v_readlane_b32 s{sT+3}, v{T3}, s{sT+1}
                s_nop 0
                s_cmp_gt_u32 s{sT+3}, s{sT+2}
                s_cbranch_scc0 {spin}
                {back}:"""]
    def claim0(self):
        dyn = self.lab('dyn'); back = self.lab('back')
        o = [x if isinstance(x, str) else x[0] for x in self.atomic()] + ['s_waitcnt lgkmcnt(0)'] + self.claimed()
        self.ool(f'{dyn}:\n' + '\n'.join(o) + f'\ns_mov_b32 s{sNPH}, 1\ns_branch {back}')
        return [f's_add_u32 s{sJ}, s{sJ}, 1', f'v_mov_b32 v{VT0}, s{sPROGW}', f'v_mov_b32 v{VT1}, s{sJ}',
                f's_lshl_b32 s{sT}, s{sJ}, 3', f's_add_u32 s{sT}, s{sT}, s{sW}',
                (f's_mov_b64 exec, 1\nds_write_b32 v{VT0}, v{VT1}\ns_mov_b64 exec, -1', [('W', False)]),
                f's_cmp_lt_u32 s{sT}, s{sNC}\ns_cbranch_scc0 {dyn}\n{back}:']
    def pooladdr(self, d, word, stride):
        return f"""s_lshr_b32 s{d}, s{word}, 27
            s_mov_b32 s{sT+8}, {POOL}
            s_cmp_ge_u32 s{d}, 2
            s_cselect_b32 s{sT+8}, {POOL - NSTR - 2*stride}, s{sT+8}
            s_mul_i32 s{d}, s{d}, {stride}
            s_add_u32 s{d}, s{d}, s{sT+8}"""
    def next_info(self, ph):
        rare = self.lab('rare'); back = self.lab('back'); four = self.lab('four')
        self.ool(f"""{rare}:
            s_cmp_eq_u32 s{sNK}, 4
            s_cbranch_scc1 {four}
            s_mov_b32 s{sSO+1}, s{sNBs}
            s_mov_b32 s{sSO+3}, s{sNBs}
            s_add_u32 s{sNX+1}, s{sNX}, 256
            s_add_u32 s{sNX+2}, s{sNX}, 512
            s_add_u32 s{sNX+3}, s{sNX}, 768
            s_branch {back}
            {four}:
            s_add_u32 s{sSO+2}, s{sNBs}, 64
            {self.pooladdr(sSO+3, sN4, 32)}
            s_mov_b32 s{sNX+2}, s{sNX}
            s_mov_b32 s{sNX+3}, s{sNX}
            s_branch {back}""")
        o = [f'v_readlane_b32 s{sN4}, v{VTAB}, s{sT}', f's_lshl_b32 s{sNX}, s{sNPH}, 7', f's_lshl_b32 s{sT+2}, s{sT}, 5',
             f's_and_b32 s{sNBs}, s{sN4}, 0x3ffff', f's_bfe_u32 s{sNK}, s{sN4}, 0x30012',
             f's_sub_u32 s{sT+2}, s{sT+2}, s{sNBs}', f's_and_b32 s{sT+2}, s{sT+2}, 0xff']
        if ph == 1: o += [f's_add_u32 s{sNP}, s{sT+2}, s{sNBs}']
        else: o += [f's_add_u32 s{sT+2}, s{sT+2}, s{sNBs}', f's_mul_i32 s{sNP}, s{sJ}, 6', f's_cmp_eq_u32 s{sNPH}, 0\ns_cselect_b32 s{sNP}, s{sNP}, s{sT+2}']
        o += [f's_mov_b32 s{sNX+1}, s{sNX}', f's_add_u32 s{sNX+3}, s{sNX}, 256', f's_add_u32 s{sSO+1}, s{sNBs}, 32', f's_add_u32 s{sT+2}, s{sNBs}, 64',
              f's_cmp_eq_u32 s{sNK}, 3\ns_cselect_b32 s{sNX+2}, s{sNX}, s{sNX+3}\ns_cselect_b32 s{sSO+2}, s{sT+2}, s{sNBs}\ns_cselect_b32 s{sSO+3}, s{sNBs}, s{sSO+1}',
              f's_sub_u32 s{sT+2}, s{sNK}, 2\ns_cmp_lt_u32 s{sT+2}, 2\ns_cbranch_scc0 {rare}\n{back}:']
        return o
    def eread(self):
        return [f'v_add_u32 v{T3}, s{sNBs}, v{VEO}',
                (f'ds_read_b32 v{T2}, v{T3}', [('E', False)]), (f'ds_read_b32 v{T3}, v{T3} offset:1024', [('E', False)])]
    NEXTRA = 2
    def adma(self):
        dum = self.lab('dum'); four = self.lab('a4'); back = self.lab('back'); b4 = self.lab('b4')
        ea = f's[{sEA}:{sEA+3}]'; m = mod('eald', '')
        self.ool(f'{dum}:\nv_mov_b32 v{T2}, -1\ns_mov_b32 m0, {SCR}\ns_mov_b64 exec, 1\n' + f'buffer_load_dwordx4 v{T2}, {ea}, 0 offen lds\n'*2 + f's_mov_b64 exec, -1\ns_branch {back}')
        self.ool(f"""{four}:
            {self.pooladdr(sT+7, sN4, 512)}
            v_add_u32 v{T2}, s{sT+7}, v{VEO}
            ds_read_b32 v{T2}, v{T2}
            s_add_u32 m0, s{sT+7}, {OA}
            s_waitcnt lgkmcnt(0)
            v_or_b32 v{T2}, v{T2}, v{VH16}
            buffer_load_dwordx4 v{T2}, {ea}, 0 offen {m} lds
            s_branch {b4}""")
        return [('wait', 'E'), f'v_or_b32 v{T2}, v{T2}, v{VH16}', f'v_or_b32 v{T3}, v{T3}, v{VH16}', f"""
        s_cmp_lg_u32 s{sNPH}, 0
        s_cbranch_scc1 {dum}
        s_add_u32 m0, s{sNBs}, {OA}
        s_add_u32 s{sT+7}, s{sNBs}, {OA+1024}
        buffer_load_dwordx4 v{T2}, {ea}, 0 offen {m} lds
        s_mov_b32 m0, s{sT+7}
        s_mov_b32 exec_hi, 0
        buffer_load_dwordx4 v{T3}, {ea}, 0 offen {m} lds
        s_cmp_eq_u32 s{sNK}, 4
        s_cbranch_scc1 {four}
        {b4}:
        s_mov_b32 exec_hi, -1
        {back}:"""]
    def areads(self, s):
        b = ACC + (s & 1) * 20
        va, vy, oa, oy, o = VAO, VYO, s*512, s*64, []
        if s == 3:
            va, vy, oa, oy = ACC + 56, ACC + 57, 0, 0
            o = [self.pooladdr(sT+7, sC4, 512) + f'\ns_sub_u32 s{sT+7}, s{sT+7}, s{sCB}\nv_add_u32 v{va}, s{sT+7}, v{VAO}',
                 self.pooladdr(sT+7, sC4, 64) + f'\ns_sub_u32 s{sT+7}, s{sT+7}, s{sCB}\nv_add_u32 v{vy}, s{sT+7}, v{VYO}']
        o += [(f'ds_read_b64_tr_b16 v[{b}:{b+1}], v{va} offset:{oa}', [(f'a{s}', False)]),
              (f'ds_read_b64_tr_b16 v[{b+2}:{b+3}], v{va} offset:{oa+128}', [(f'a{s}', False)])]
        for t in range(2):
            for hh in range(2):
                d = b + 4 + t*8 + hh*4
                o.append((f'ds_read_b128 v[{d}:{d+3}], v{vy} offset:{oy + t*384 + hh*16}', [(f'y{s}{t}', False)]))
        return o
    def abuild(self, nK):
        o = []
        for s in range(nK):
            b = ACC + (s & 1) * 20; un = ACC + 40 + (s & 1) * 8
            o.append(('wait', f'a{s}'))
            for i in range(4):
                o += [f'v_lshlrev_b32 v{un+2*i}, 16, v{b+i}', f'v_and_b32 v{un+1+2*i}, 0xffff0000, v{b+i}']
            for t in range(2):
                o.append(('wait', f'y{s}{t}'))
                for e in range(8): o.append(f'v_mul_f32 v{b+4+t*8+e}, v{un+e}, v{b+4+t*8+e}')
                for i in range(4): o.append(f'v_cvt_pk_bf16_f32 v{AR+s*8+t*4+i}, v{b+4+t*8+2*i}, v{b+5+t*8+2*i}')
            if s + 2 < nK: o += self.areads(s + 2)
        return o
    R = dict(A=PW, B=PW+2, C=PW+4, D=PW+6, E=PW+8, F=PW+10)
    CH_ = {0: [(0,'A','new'),(2,'B','new'),(2,'C','new'),(2,'D','new')],
           1: [(3,'A','new'),(1,'B','new'),(4,'C','new'),(4,'D','new')],
           2: [(3,'E','new'),(4,'C','neg'),(1,'B','acc'),(4,'F','new')],
           3: [(3,'E','new'),(4,'D','neg'),(4,'F','neg'),(1,'B','acc')]}
    def F(self, q, k):
        t, u = TILES[k]; o = []
        for r in range(8):
            for b in (2*t, 2*t+1):
                p, d, mode = self.CH_[q][b]
                T = tile(t, u) + (b & 1)*8 + r; W = Wreg(p, u) + r; D = self.R[d] + u
                if r == 0 and mode == 'new': o.append(f'v_mul_f32 v{D}, v{T}, v{W}')
                elif r == 0 and mode == 'neg': o.append(f'v_fma_f32 v{D}, v{T}, v{W}, -v{D}')
                else: o.append(f'v_fmac_f32 v{D}, v{T}, v{W}')
        return o
    def fin(self, q, ph, sp=None):
        sp = sCP if sp is None else sp
        R = self.R
        names = {0: [('A',0),('B',0),('C',0),('D',0)], 1: [('A',0)], 2: [('C',0),('E',0)], 3: [('E',0),('D',1),('B',0),('F',0)]}[q]
        pairs = {0: [(0, R['A'], 0, R['B'], 2), (1, R['C'], 5, R['D'], 8)], 1: [], 2: [(2, R['A'], 3, R['E'], 6)],
                 3: [(3, R['E'], 9, R['B'], 1), (4, R['F'], 4, R['D'], 7), (5, R['C'], 10, R['C'], None)]}[q]
        o = [f'v_permlane32_swap_b32 v{R[n]}, v{R[n]+1}' for n, _ in names]
        if ph == 1 and q == 0: o.append(f'v_add_u32 v{VPA}, s{sCP}, v{VL2}')
        o += [(f'v_add_f32 v{R[n]}, -v{R[n]}, -v{R[n]+1}' if neg else f'v_add_f32 v{R[n]}, v{R[n]}, v{R[n]+1}') for n, neg in names]
        if pairs and ph == 0:
            o.append(f's_set_gpr_idx_on s{sp}, gpr_idx(DST)\n' + ''.join(f'v_cvt_pk_bf16_f32 v{P0+slot}, v{lo}, v{hi}\n' for (slot, lo, lr, hi, hr) in pairs) + 's_set_gpr_idx_off')
        elif pairs:
            for (slot, lo, lr, hi, hr) in pairs: o.append(f'v_cvt_pk_bf16_f32 v{lo}, v{lo}, v{hi}')
            for (slot, lo, lr, hi, hr) in pairs:
                o.append((f'ds_write_b16 v{VPA}, v{lo} offset:{lr*128}', [('P', False)]))
                if hr is not None: o.append((f'ds_write_b16_d16_hi v{VPA}, v{lo} offset:{hr*128}', [('P', False)]))
        return o
    def drop(self, line):
        x = opt('drop', '')
        if not x or not getattr(self, 'inunit', False) or '\n' in line.strip(): return False
        l = line.strip()
        if 'D' in x and l.startswith('buffer_load') and (f's[{sX}:' in l or f's[{sX2}:' in l): return True
        if 'P' in x and l.startswith('ds_write_b16'): return True
        if 'S' in x and l.startswith('v_permlane'): return True
        if 'C' in x and l.startswith('v_cvt_pk'): return True
        if 'B' in x and l.startswith('ds_read_b64_tr') and (f'v{VB0} ' in l or f'v{VB1} ' in l): return True
        if 'F' in x and l.startswith('v_fmac'): return True
        if 'A' in x and l.startswith(('v_lshlrev_b32','v_and_b32','v_cvt_pk')): return True
        if 'A' in x and l.startswith('v_mul_f32') and int(l.split()[1][1:-1]) < 64: return True
        if 'Y' in x and l.startswith(('ds_read_b128',)): return True
        return False
    def emit(self, items, lg):
        for it in items:
            if isinstance(it, str):
                if not self.drop(it): self.a(it)
            elif it[0] != 'wait' and self.drop(it[0]):
                for t, o in it[1]: lg.issue(t, o)
            elif it[0] == 'wait':
                w = lg.waitline(it[1])
                if len(it) > 2 and it[2] is not None: w = f's_waitcnt vmcnt({it[2]})' + (w[len('s_waitcnt'):] if w else '')
                if w: self.a(w)
            else:
                self.a(it[0])
                for t, o in it[1]: lg.issue(t, o)
    ENTRY = [('B', False)]*2 + [('B1' if opt('split', 0) else 'B', False)]*2 + [('a0', False)]*2 + [('y00', False)]*2 + [('y01', False)]*2 + [('a1', False)]*2 + [('y10', False)]*2 + [('y11', False)]*2
    @staticmethod
    def cost(it):
        if isinstance(it, tuple):
            if it[0] == 'wait': return 1
            it = it[0]
        return sum((2 if 'permlane' in l else 1) for l in it.strip().split('\n') if not l.strip().endswith(':'))
    def unit(self, nK, ph):
        a = self.a
        lg = LG(a, self.ENTRY)
        a(f'K2_U{nK}{ph}:')
        self.inunit = True
        n = 4 * nK
        BUD = opt('bud', 7)
        pre = seg(0)
        claim = (self.claim0() if ph == 0 else self.atomic())
        after = ([] if ph == 0 else [('wait', 'C')] + self.claimed()) + self.next_info(ph)
        if nK == 1: pre += claim
        pre += self.abuild(nK)
        if nK == 1:
            pre += after + (self.eread() if ph == 0 else [])
            for t in range(4): pre += self.sread(t)
            if ph == 0: pre += self.adma()
            for t in range(4): pre += self.gmad(t)
        x = -1 if nK == 1 else 2
        MW = opt('mergewait', True)
        gaps = [[] for _ in range(4*n)]; tailg = [[] for _ in range(4*n)]
        vmn = lambda i: 4 + (self.NEXTRA if (ph == 0 and x < i <= x + 3) else 0)
        for i in range(n):
            d = self.dma(i & 3, G + 2*((i+4) % nK), sOWN + (i+4)//nK) if i + 4 < n else self.dma(i & 3, G + 2*(i+4-n), sNX + (i+4-n))
            br = self.bread(i + 1); SP = opt('split', 0)
            w = [] if MW else [f's_waitcnt vmcnt({vmn(i)})']
            if SP == 0:
                gaps[4*i] += w + br; tailg[4*i] += [d[0]]; gaps[4*i+1] += [d[1], d[2]]
            elif SP == 1:
                gaps[4*i] += w + br[:2]; tailg[4*i+1] += [('wait', 'B1'), d[0]]; gaps[4*i+2] += [d[1]] + br[2:]; tailg[4*i+2] += [d[0]]; gaps[4*i+3] += [d[2]]
            elif SP == 2:
                gaps[4*i] += w + br[:2]; gaps[4*i+1] += br[2:]; tailg[4*i+1] += [d[0]]; gaps[4*i+2] += [d[1]]; tailg[4*i+2] += [d[0]]; gaps[4*i+3] += [d[2]]
            if i + 1 < n: tailg[4*i+3] += [('wait', 'B1' if SP == 2 else 'B', vmn(i+1) if MW else None)]
        used = lambda g: sum(map(self.cost, gaps[g] + tailg[g]))
        def place(items, g0, g1):
            g = g0
            for it in items:
                while g < g1 and used(g) + self.cost(it) > BUD and used(g) > 1: g += 1
                gaps[g].append(it)
            return g
        DEF = opt('defer', True) and nK > 1
        if nK > 1:
            for t in range(4):
                place(self.sread(t), 4*(n-6+t) + (3 if opt('split', 0) else 2), 4*(n-6+t) + 3)
                place(self.gmad(t), 4*(n-5+t) + 1, 4*(n-5+t) + 3)
        ndef = [0]*4
        for q in range(1, 4):
            g0 = 4*q*nK
            if DEF:
                f3 = self.F(q-1, 3)
                room = [max(0, BUD - used(g0 + k)) for k in range(3)]
                m = min(16, sum(room)); ndef[q-1] = m
                f3 = f3[16-m:]
                for k in range(3):
                    gaps[g0 + k] += f3[:room[k]]; f3 = f3[room[k]:]
            place(self.fin(q-1, ph), g0 + (3 if DEF else 1), 4*(q*nK + nK - 1) + (1 if nK > 1 else 3))
        place(self.fin(3, ph, sPP), 1, 4*(nK - 1) + (1 if nK > 1 else 3))
        if nK > 1:
            if ph == 0:
                g = place(claim + after, 1, 5)
                place(self.eread(), max(g, 5), 7)
                place(self.adma(), 4*x + 3, 4*x + 3)
            else:
                place(claim, 1, 3)
                g1 = 4*(n-6) + (3 if opt('split', 0) else 2)
                keep = gaps[g1]; k0 = [i for i, it in enumerate(keep) if isinstance(it, str) and f'v{VSO}' in it]
                moved = keep[k0[0]:] if k0 else []
                if k0: gaps[g1] = keep[:k0[0]]
                place(after, 5, g1)
                gaps[g1] += moved
        nf0 = [0]*4
        if nK > 1:
            for q in range(4):
                g = 4*(q*nK + nK - 1) + 2
                nf0[q] = max(0, BUD - used(g))
                gaps[g] += self.F(q, 0)[:nf0[q]]
        self.emit([f's_setprio {opt("prioa", 1)}'] + pre + seg(1) + [('wait', 'B', vmn(0) if MW else None)] + ([f's_setprio {opt("prio", 1)}'] if opt("prio", 1) != opt("prioa", 1) else []), lg)
        for i in range(n):
            q, s = divmod(i, nK)
            for k, (t, u) in enumerate(TILES):
                c = f'v[{tile(t,u)}:{tile(t,u)+15}]' if s else '0'
                bb = BR + (i & 1)*8 + u*4
                if 'M' not in opt('drop', ''): a(f'v_mfma_f32_32x32x16_bf16 v[{tile(t,u)}:{tile(t,u)+15}], v[{AR+s*8+t*4}:{AR+s*8+t*4+3}], v[{bb}:{bb+3}], {c}')
                g = 4*i + k
                if k == 3 and s == nK - 1:
                    self.emit([f's_setprio {opt("prio0", 0)}'] + gaps[g] + seg(2+2*q) + self.F(q, 0)[nf0[q]:], lg)
                    if q < 3: self.emit(self.F(q, 1) + self.F(q, 2) + self.F(q, 3)[:16-ndef[q]] + seg(3+2*q) + [f's_setprio {opt("prio", 1)}'], lg)
                else: self.emit(gaps[g], lg)
                self.emit(tailg[g], lg)
        end = [f's_sub_u32 s{sT}, s{sNBs}, s{sCB}', f'v_add_u32 v{VAO}, s{sT}, v{VAO}', f'v_add_u32 v{VYO}, s{sT}, v{VYO}']
        end += self.F(3, 1) + self.areads(0) + self.F(3, 2) + self.areads(1) + self.F(3, 3)
        self.emit(end, lg)
        if SEG:
            a('s_memtime s[94:95]\ns_waitcnt lgkmcnt(0)')
            def acc(d, i, j): a(f's_sub_u32 s67, s{76+2*j}, s{76+2*i}\ns_add_u32 s{d}, s{d}, s67')
            acc(96, 0, 1)
            for q in range(4): acc(97, 1+2*q, 2+2*q)
            for q in range(3): acc(98, 2+2*q, 3+2*q)
            acc(99, 8, 9)
            a(f's_add_u32 s100, s100, {nK}\ns_add_u32 s101, s101, 1')
        assert [x for x in lg.q if x[0] != 'P'] == self.ENTRY, lg.q
        self.inunit = False
        self.dispatch(ph)
    def dispatch(self, ph, check=True):
        if check:
            if ph == 0: self.a(f's_cmp_lg_u32 s{sNPH}, 0\ns_cbranch_scc1 K2_SWITCH')
            else: self.a(f's_cmp_eq_u32 s{sNV}, 0\ns_cbranch_scc1 K2_TAIL')
        self.a(f"""
        s_mov_b32 s{sCB}, s{sNBs}
        s_mov_b32 s{sPP}, s{sCP}
        s_mov_b32 s{sC4}, s{sN4}
        s_mov_b32 s{sCP}, s{sNP}
        s_cmp_eq_u32 s{sNK}, 2
        s_cbranch_scc1 K2_U2{ph}
        s_cmp_eq_u32 s{sNK}, 3
        s_cbranch_scc1 K2_U3{ph}
        s_cmp_eq_u32 s{sNK}, 1
        s_cbranch_scc1 K2_U1{ph}
        s_branch K2_U4{ph}
        """)

    def wload(self, ph, vl16):
        for i in range(20):
            if i % 4 == 0: self.a(f's_mov_b32 s{sT}, {WS_WTAB + ph*20480 + i*1024}')
            self.a(f'buffer_load_dwordx4 v[{WR+4*i}:{WR+3+4*i}], v{vl16}, s[{sWS}:{sWS+3}], s{sT} offen offset:{(i%4)*1024}')

    def sortnodes(self, vL, k, p, x):
        a = self.a
        a(f'''
        s_cmp_eq_u32 s{sR}, 1
        s_cselect_b32 s{sLAST}, s{sFIRST}, 0
        s_cmp_eq_u32 s{sMORE}, 0
        s_cselect_b32 s{sLAST}, s{sLAST}, 0
        s_cmp_eq_u32 s{sLAST}, 0
        s_cbranch_scc1 K2_NOSORT
        v_cndmask_b32 v{k}, 0, v{k}, s[{sEX}:{sEX+1}]
        v_mov_b32 v{p}, v{vL}
        s_mov_b32 s{sT+2}, 0
        ''')
        if True:
            for kk in (4, 3, 2, 1):
                a(f'''
                v_cmp_eq_u32 vcc, {kk}, v{k}
                v_mbcnt_lo_u32_b32 v{x}, vcc_lo, 0
                v_mbcnt_hi_u32_b32 v{x}, vcc_hi, v{x}
                v_add_u32 v{x}, s{sT+2}, v{x}
                v_cndmask_b32 v{p}, v{p}, v{x}, vcc
                s_bcnt1_i32_b64 s{sT+3}, vcc
                s_add_u32 s{sT+2}, s{sT+2}, s{sT+3}
                ''')
        a(f'''
        v_lshlrev_b32 v{p}, 2, v{p}
        ds_permute_b32 v{VTAB}, v{p}, v{VTAB}
        s_waitcnt lgkmcnt(0)
        K2_NOSORT:
        ''')

    def gen(self):
        a = self.a
        vL, vT_, vC, vE, vREM, vOFF = 176, 177, 178, 179, 180, 181
        RK = 40
        NBs = 50
        t0 = 192
        ws = f's[{sWS}:{sWS+3}]'
        def loop(done, body):
            for i in range(U):
                a(f'v_cmp_lt_i32 vcc, {2*i}, v{vREM}\ns_cbranch_vccz {done}\ns_mov_b64 exec, vcc')
                a(body(i))
            a(f'{done}:\ns_mov_b64 exec, -1')
        a('s_cmp_ge_u32 s2, 256\ns_cbranch_scc1 K2_END')
        stamp(a, 0)
        a(f'''
        s_load_dwordx2 s[58:59], s[0:1], 0
        s_load_dwordx2 s[60:61], s[0:1], 72
        s_load_dwordx2 s[62:63], s[0:1], 88
        s_load_dwordx2 s[64:65], s[0:1], 16
        v_lshrrev_b32 v1, 6, v0
        s_mov_b32 s{sB}, s2
        v_readfirstlane_b32 s{sW}, v1
        s_mul_i32 s{sNB}, s2, 625
        s_add_u32 s{sNC}, s{sNB}, {625+15}
        s_add_u32 s{sNB}, s{sNB}, 15
        s_lshr_b32 s{sNB}, s{sNB}, 4
        s_lshr_b32 s{sNC}, s{sNC}, 4
        s_sub_u32 s{sNC}, s{sNC}, s{sNB}
        s_mov_b32 s{sJ0}, 0
        s_mov_b32 s{sFIRST}, 1
        {chr(10).join(f's_mov_b32 s{i}, 0' for i in range(96, 102)) if SEG else ''}
        s_movk_i32 s{s1024}, 1024
        s_lshl_b32 s{sRING}, s{sW}, 13
        s_mov_b32 s{sPROG}, {PROG}
        s_lshl_b32 s{sPROGW}, s{sW}, 2
        s_add_u32 s{sPROGW}, s{sPROGW}, s{sPROG}
        {chr(10).join(f's_add_u32 s{sM0+i}, s{sRING}, {i*2048}' for i in range(4))}
        s_waitcnt lgkmcnt(0)
        ''')
        srd(a, sWS, 62, WS_SIZE); srd(a, sX, 58, N*1024); srd(a, sOUT, 60, N*1024); srd(a, sEA, 64, E*32)
        a('s_sub_u32 s58, s58, 1024\ns_subb_u32 s59, s59, 0'); srd(a, sX2, 58, N*1024 + 1024)
        a(f'''
        K2_WINDOW:
        s_mov_b32 s{sRND}, 0
        s_mov_b32 s{sR}, 1
        K2_LOAD:
        v_mbcnt_lo_u32_b32 v{vL}, -1, 0
        v_mbcnt_hi_u32_b32 v{vL}, -1, v{vL}
        s_lshl_b32 s{sT}, s{sW}, 6
        v_add_u32 v{vT_}, s{sT}, v{vL}
        v_lshrrev_b32 v{vC}, 1, v{vT_}          ; cell
        v_min_u32 v{vC}, {NCH-1}, v{vC}
        v_mul_u32_u24 v1, {TSTR}, v{vC}
        s_lshl_b32 s{sT}, s{sB}, 2
        s_add_u32 s{sT}, s{sT}, {WS_TBL}
        buffer_load_dword v{vE}, v1, {ws}, s{sT} offen
        v_lshlrev_b32 v70, 4, v{vL}
        s_cmp_ge_u32 s{sW}, 5
        s_cbranch_scc1 K2_NOW
        s_lshl_b32 s{sT}, s{sW}, 12
        s_mov_b32 m0, s{sT}
        s_add_u32 s{sT}, s{sT}, {WS_WTAB}
        ''')
        for i in range(4): a(f'buffer_load_dwordx4 v70, {ws}, s{sT} offen offset:{i*1024} lds')
        a('K2_NOW:')
        for t in range(512): assert (t*437) >> 16 == t // 150
        a(f'''
        v_mul_u32_u24 v3, 437, v{vT_}
        v_lshrrev_b32 v3, 16, v3
        v_mul_u32_u24 v3, 150, v3
        v_sub_u32 v3, v{vT_}, v3
        v_mov_b32 v8, -1
        v_mov_b32 v5, 1.0
        v_cmp_gt_u32 vcc, 48, v3
        v_cndmask_b32 v8, v8, 0, vcc
        v_cmp_gt_u32 vcc, 12, v3
        v_cndmask_b32 v8, v8, v5, vcc
        v_lshlrev_b32 v6, 4, v{vT_}
        v_add_u32 v6, {RECBASE}, v6
        v_add_u32 v7, 64800, v6
        v_mov_b32 v9, v8
        v_mov_b32 v10, v8
        v_mov_b32 v11, v8
        v_cmp_gt_u32 vcc, {2*NCH}, v{vT_}
        s_mov_b64 s[{sEX}:{sEX+1}], vcc
        v_cmp_gt_u32 vcc, 450, v{vT_}
        s_mov_b64 exec, vcc
        ''')
        for i in range(13): a(f'ds_write_b128 v{6 + (i//9)}, v[8:11] offset:{(i%9)*7200}')
        a(f'''
        v_cmp_gt_u32 vcc, {150 + (OA+1024)//16}, v{vT_}
        s_cbranch_vccz K2_NOCL
        s_mov_b64 exec, vcc
        ds_write_b128 v7, v[8:11] offset:{4*7200}
        K2_NOCL:
        s_mov_b64 exec, -1
        s_cmp_lg_u32 s{sW}, 0
        s_cbranch_scc1 K2_NOH
        v_mov_b32 v3, 0
        v_mov_b32 v5, -1
        v_lshlrev_b32 v4, 2, v{vL}
        v_add_u32 v4, {HIST}, v4
        s_mov_b64 exec, 0x1ff
        ds_write_b32 v4, v3 offset:{PROG-HIST}
        s_mov_b64 exec, 0xff
        ds_write_b32 v4, v5 offset:{NULLSRC-HIST}
        s_mov_b64 exec, -1
        s_cmp_lg_u32 s{sRND}, 0
        s_cbranch_scc1 K2_NOH
        s_mov_b32 exec_hi, 0xffff
        ds_write_b32 v4, v3
        s_mov_b64 exec, 1
        ds_write_b32 v4, v3 offset:{FLAG-HIST}
        s_mov_b64 exec, -1
        K2_NOH:
        s_waitcnt vmcnt(0)
        ''')
        stamp(a, 1)
        a(f'''
        v_cndmask_b32 v{vE}, 0, v{vE}, s[{sEX}:{sEX+1}]
        v_and_b32 v1, 1, v{vT_}
        v_add_u32 v1, s{sJ0}, v1                ; j0 + sub
        v_lshrrev_b32 v{vREM}, 16, v{vE}
        v_sub_u32 v{vREM}, v{vREM}, v1
        v_and_b32 v{vE}, 0xffff, v{vE}
        v_add_u32 v{vE}, v{vE}, v1
        v_mul_u32_u24 v{vOFF}, {CSTR}, v{vC}
        v_lshl_add_u32 v{vOFF}, v{vE}, 4, v{vOFF}
        v_mul_u32_u24 v{vC}, {CH}, v{vC}
        ''')
        loop('K2_LD_DONE', lambda i: f'buffer_load_dwordx4 v[{4*i}:{4*i+3}], v{vOFF}, {ws}, 0 offen offset:{32*i}')

        a(f'''
        v_add_lshl_u32 v{vE}, v{vE}, v{vC}, 2
        s_mov_b32 s{sT+8}, {WS_RANK}
        v_and_b32 v60, 15, v{vL}                ; i
        v_lshrrev_b32 v61, 5, v{vL}             ; h
        v_bfe_u32 v62, v{vL}, 4, 1
        v_lshrrev_b32 v63, 2, v60
        v_and_b32 v64, 3, v60                   ; c
        v_lshl_add_u32 v65, v61, 3, v63         ; 8h + row
        v_lshlrev_b32 v{VAO}, 5, v65
        v_lshl_add_u32 v{VAO}, v64, 3, v{VAO}
        v_add_u32 v{VAO}, {OA}, v{VAO}
        v_mul_u32_u24 v{VYO}, 192, v62
        v_lshl_add_u32 v{VYO}, v61, 5, v{VYO}
        v_lshrrev_b32 v66, 1, v64
        v_lshl_add_u32 v66, v62, 1, v66         ; chunk (u = 0)
        v_bfe_u32 v67, v63, 1, 1
        v_lshlrev_b32 v67, 2, v67
        v_xor_b32 v66, v66, v67
        v_lshlrev_b32 v66, 4, v66
        v_lshl_add_u32 v66, v65, 7, v66
        v_and_b32 v67, 1, v64
        v_lshl_add_u32 v66, v67, 3, v66
        v_add_u32 v{VB0}, s{sRING}, v66
        v_xor_b32 v{VB1}, 64, v{VB0}
        v_lshrrev_b32 v66, 3, v{vL}
        v_lshlrev_b32 v{VSO}, 2, v66
        v_add_u32 v{VSO}, {OS}, v{VSO}
        v_bfe_u32 v66, v66, 1, 1
        v_lshlrev_b32 v66, 2, v66
        v_and_b32 v67, 7, v{vL}
        v_xor_b32 v66, v66, v67
        v_lshlrev_b32 v{VLG}, 4, v66
        v_lshlrev_b32 v{VL2}, 1, v{vL}
        v_and_b32 v{VH16}, 1, v{vL}
        v_lshlrev_b32 v{VH16}, 4, v{VH16}
        v_lshrrev_b32 v66, 1, v{vL}
        v_lshlrev_b32 v66, 5, v66
        v_add_u32 v{VEO}, {OA}, v66
        v_mov_b32 v{t0+9}, 1
        s_waitcnt lgkmcnt(0)
        s_barrier
        ''')
        for i in range(20): a(f'ds_read_b128 v[{WR+4*i}:{WR+4*i+3}], v70 offset:{i*1024}')
        a(f'''
        s_cmp_lg_u32 s{sRND}, 0
        s_cbranch_scc1 K2_RK_LOAD
        v_cmp_lt_i32 vcc, {2*U}, v{vREM}
        s_cbranch_vccz K2_NOMORE
        v_mov_b32 v61, {FLAG}
        ds_write_b32 v61, v{t0+9}
        K2_NOMORE:
        s_mov_b32 s{sT}, {HIST}
        s_movk_i32 s{sT+1}, {NSTR}
        v_mov_b32 v{t0+10}, {RECBASE}
        s_waitcnt vmcnt(0)
        ''')
        stamp(a, 2)
        def prep(i):
            return (f'v_mad_u32_u24 v{NBs+i}, v{NBs+i}, s{sT+1}, v{t0+10}\nv_bfe_u32 v{60+i}, v{4*i+3}, 14, 11\n'
                    f'v_add_lshl_u32 v{60+i}, v{60+i}, v{vC}, 5\nv_and_b32 v{4*i+3}, 0x3fff, v{4*i+3}')
        loop('K2_RK_A', lambda i: f'v_lshrrev_b32 v{NBs+i}, 25, v{4*i+3}\nv_lshl_add_u32 v{RK+i}, v{NBs+i}, 2, s{sT}\nds_add_rtn_u32 v{RK+i}, v{RK+i}, v{t0+9}\n' + prep(i))
        a(f's_branch K2_RK_DONE\nK2_RK_LOAD:\ns_movk_i32 s{sT+1}, {NSTR}\nv_mov_b32 v{t0+10}, {RECBASE}\ns_waitcnt vmcnt(0)')
        loop('K2_RK_B', lambda i: f'v_lshrrev_b32 v{NBs+i}, 25, v{4*i+3}\nbuffer_load_dword v{RK+i}, v{vE}, {ws}, s{sT+8} offen offset:{8*i}\n' + prep(i))
        a(f'''
        s_waitcnt vmcnt(0)
        K2_RK_DONE:
        s_mul_i32 s{sT+9}, s{sRND}, 48
        s_waitcnt lgkmcnt(0)
        ''')
        def scatter(i, rr, base):
            return f'''
            v_lshl_add_u32 v{t0+2}, v{rr}, 5, v{base}
            v_lshl_add_u32 v{t0+3}, v{rr}, 2, v{base}
            v_and_b32 v{t0+4}, 7, v{rr}
            v_add_lshl_u32 v{t0+4}, v{t0+4}, v{rr}, 1
            v_bfe_u32 v{t0+1}, v{rr}, 3, 1
            v_mad_i32_i24 v{t0+4}, v{t0+1}, -14, v{t0+4}
            v_add_u32 v{t0+4}, v{t0+4}, v{base}
            ds_write_b32 v{t0+2}, v{60+i} offset:{OA}
            ds_write2_b32 v{t0+3}, v{4*i}, v{4*i+1} offset0:48 offset1:96
            ds_write_b32 v{t0+3}, v{4*i+2} offset:576
            ds_write_b16 v{t0+4}, v{4*i+3} offset:{OS}
            '''
        for i in range(U):
            nx = self.lab('sc')
            a(f'''
            v_cmp_lt_i32 vcc, {2*i}, v{vREM}
            s_cbranch_vccz K2_SC_DONE
            v_subrev_u32 v{t0}, s{sT+9}, v{RK+i}
            v_cmp_gt_u32 s[{sEX}:{sEX+1}], 48, v{t0}
            s_and_b64 exec, vcc, s[{sEX}:{sEX+1}]
            s_cbranch_execz {nx}
            {scatter(i, t0, NBs+i)}
            {nx}:
            s_mov_b64 exec, -1
            ''')
        d = t0 + 1; k = t0 + 2; e = t0 + 3; p = t0 + 4; x = t0 + 5; pl = t0 + 6
        a(f'''
        K2_SC_DONE:
        v_lshlrev_b32 v{t0}, 2, v{vL}
        v_add_u32 v{t0}, {HIST}, v{t0}
        v_mov_b32 v{t0+8}, {FLAG}
        v_mov_b32 v{pl}, 0
        s_movk_i32 s{sLIM}, 48
        s_waitcnt lgkmcnt(0)
        s_barrier
        ds_read_b32 v{d}, v{t0}
        ds_read_b32 v{t0+8}, v{t0+8}
        v_cmp_gt_u32 s[{sEX}:{sEX+1}], s{sNC}, v{vL}
        v_mad_u32_u24 v{e}, v{vL}, s{sT+1}, v{t0+10}
        v_lshl_or_b32 v{e}, v{vL}, 21, v{e}
        s_waitcnt lgkmcnt(0)
        v_cndmask_b32 v{d}, 0, v{d}, s[{sEX}:{sEX+1}]
        v_readfirstlane_b32 s{sMORE}, v{t0+8}
        v_cmp_lt_u32 vcc, 48, v{d}
        s_cbranch_vccnz K2_BIG
        K2_TOK:
        v_subrev_u32 v{k}, s{sT+9}, v{d}
        v_max_i32 v{k}, 1, v{k}
        v_min_i32 v{k}, s{sLIM}, v{k}
        v_add_u32 v{k}, 15, v{k}
        v_lshrrev_b32 v{k}, 4, v{k}             ; K-steps
        v_lshl_or_b32 v{e}, v{k}, 18, v{e}
        v_or_b32 v{e}, v{e}, v{pl}
        v_mov_b32 v{x}, {NULLBASE | (1 << 18)}
        v_cndmask_b32 v{VTAB}, v{x}, v{e}, s[{sEX}:{sEX+1}]
''')
        if opt('sort', False): self.sortnodes(vL, k, p, x)
        o = Asm(); b = a; a = o
        a(f'''
        K2_BIG:
        s_cmp_lg_u32 s{sRND}, 0
        s_cbranch_scc1 K2_TOK
        s_mov_b64 s[{sT+4}:{sT+5}], vcc
        s_bcnt1_i32_b64 s{sT+2}, vcc
        s_cmp_eq_u32 s{sNC}, 39
        s_cselect_b32 s{sT+3}, 5, 2
        s_cmp_gt_u32 s{sT+2}, s{sT+3}
        s_cbranch_scc1 K2_SLOW
        v_cmp_lt_u32 vcc, 64, v{d}
        s_cbranch_vccnz K2_SLOW
        v_mbcnt_lo_u32_b32 v{x}, s{sT+4}, 0
        v_mbcnt_hi_u32_b32 v{x}, s{sT+5}, v{x}
        v_lshlrev_b32 v{pl}, 27, v{x}
        v_cndmask_b32 v{pl}, 0, v{pl}, s[{sT+4}:{sT+5}]
        s_movk_i32 s{sLIM}, 64
        v_cmp_le_u32 vcc, 2, v{x}
        v_mov_b32 v{k}, {POOL}
        v_mov_b32 v{p}, {POOL - NSTR - (2 << 22)}
        v_cndmask_b32 v{k}, v{k}, v{p}, vcc
        v_lshl_add_u32 v{x}, v{x}, 22, v{k}
        v_mov_b32 v{t0+11}, v{d}
        v_mov_b32 v{t0+12}, v{e}
        v_mov_b32 v{t0+13}, v{x}
        s_mov_b32 s{sT+2}, {(1 << 24) // NSTR + 1}
        ''')
        for nd in range(40): assert ((nd*NSTR) * ((1 << 24)//NSTR + 1)) >> 24 == nd
        for i in range(U):
            nx = self.lab('ov')
            a(f'''
            v_cmp_lt_i32 vcc, {2*i}, v{vREM}
            s_cbranch_vccz K2_OV_DONE
            v_subrev_u32 v{t0}, {RECBASE}, v{NBs+i}
            v_mul_hi_u32_u24 v{t0+1}, s{sT+2}, v{t0}
            v_mul_u32_u24 v{t0}, s{sT+2}, v{t0}
            v_alignbit_b32 v{t0}, v{t0+1}, v{t0}, 24
            v_lshlrev_b32 v{t0}, 2, v{t0}
            ds_bpermute_b32 v{t0+7}, v{t0}, v{t0+13}
            v_subrev_u32 v{t0}, 48, v{RK+i}
            v_cmp_gt_u32 s[{sT+4}:{sT+5}], 16, v{t0}
            s_waitcnt lgkmcnt(0)
            s_and_b64 exec, vcc, s[{sT+4}:{sT+5}]
            s_cbranch_execz {nx}
            v_lshrrev_b32 v{t0+1}, 18, v{t0+7}
            v_add_u32 v{t0}, v{t0}, v{t0+1}
            v_and_b32 v{t0+7}, 0x3ffff, v{t0+7}
            {scatter(i, t0, t0+7)}
            {nx}:
            s_mov_b64 exec, -1
            ''')
        a(f'''
        K2_OV_DONE:
        v_mov_b32 v{d}, v{t0+11}
        v_mov_b32 v{e}, v{t0+12}
        s_waitcnt lgkmcnt(0)
        s_barrier
        s_branch K2_TOK
        K2_SLOW:
        v_mov_b32 v{x}, v{d}
        ''')
        scan(a, x, 'v_max_u32')
        for dd in range(48, 512*U + 48): assert (dd * 43691) >> 21 == dd // 48
        a(f'''
        v_readlane_b32 s{sR}, v{x}, 63
        s_add_u32 s{sR}, s{sR}, 47
        s_mul_i32 s{sR}, s{sR}, 43691
        s_lshr_b32 s{sR}, s{sR}, 21
        ''')
        for i in range(U):
            a(f'v_cmp_lt_i32 vcc, {2*i}, v{vREM}\ns_cbranch_vccz K2_SV_DONE\ns_mov_b64 exec, vcc')
            a(f'buffer_store_dword v{RK+i}, v{vE}, {ws}, s{sT+8} offen offset:{8*i}')
        a('K2_SV_DONE:\ns_mov_b64 exec, -1\ns_branch K2_TOK')
        self.ool(o.text()); a = b
        for q in range(4): a(f's_movk_i32 s{sOWN+q}, {q*256}')
        a(f'''
        s_mov_b32 s{sJ}, 0
        s_mov_b32 s{sNPH}, 0
        s_mov_b32 s{sNP}, 0
        s_mov_b32 s{sNV}, 1
        s_mov_b32 s{sCP}, 0
        s_mov_b32 s{sT}, s{sW}
        ''')
        lg = LG(a)
        self.emit(self.next_info(0), lg)
        stamp(a, 3)
        pre = self.eread()
        for t in range(4): pre += self.sread(t)
        pre += self.adma()
        for t in range(4): pre += self.gmad(t)
        for t in range(4): pre += self.dma(t, G + 2*t, sNX + t)
        pre += [f'v_add_u32 v{VAO}, s{sNBs}, v{VAO}', f'v_add_u32 v{VYO}, s{sNBs}, v{VYO}', 's_waitcnt vmcnt(6)']
        self.emit(pre, lg)
        stamp(a, 4)
        self.emit(self.bread(0) + self.areads(0) + self.areads(1), lg)
        self.dispatch(0, check=False)
        for ph in range(2):
            for nK in (2, 3): self.unit(nK, ph)
        for ph in range(2):
            for nK in (1, 4): self.unit(nK, ph)
        a('K2_SWITCH:')
        stamp(a, 5)
        self.emit(self.fin(3, 0), LG(a))
        a(f's_cmp_eq_u32 s{sNV}, 0\ns_cbranch_scc1 K2_TAIL2\nv_lshlrev_b32 v{VT0}, 3, v{VL2}\nv_add_u32 v{VPA}, s{sNP}, v{VL2}')
        self.wload(1, VT0)
        for q in range(4): a(f's_movk_i32 s{sOWN+q}, {q*256+128}')
        a(f's_cmp_lg_u32 s{sNK}, 1\ns_cbranch_scc1 K2_SW2\ns_waitcnt vmcnt(0)\nK2_SW2:')
        stamp(a, 6)
        self.dispatch(1, check=False)
        for t in self.outline: a(t)
        self.tail()
        a('K2_END:\ns_endpgm')
        return a.lines, 256

    def tail(self):
        a = self.a
        ws = f's[{sWS}:{sWS+3}]'
        vP0 = 222; vP1 = 223; vS = 226; vSP = 227; vRow = 228; vL16 = 229
        OP = 176
        def sload():
            a(f'v_lshlrev_b32 v{vL16}, 3, v{VL2}\ns_mul_i32 s{sT}, s{sW}, {20*1024}\ns_add_u32 s{sT}, s{sT}, {WS_STAB}')
            for f in range(20):
                a(f'buffer_load_dwordx4 v[{WR+4*f}:{WR+4*f+3}], v{vL16}, {ws}, s{sT} offen offset:{(f%4)*1024}')
                if f % 4 == 3 and f < 19: a(f's_add_u32 s{sT}, s{sT}, 4096')
        a('K2_TAIL2:')
        sload()
        a('s_branch K2_TAIL3\nK2_TAIL:')
        stamp(a, 7)
        sload()
        self.emit(self.fin(3, 1), LG(a))
        a(f"""
        K2_TAIL3:
        s_mul_i32 s{sT+1}, s{sW}, {8192+32}
        v_add_u32 v{vRow}, s{sT+1}, v{VL2}
        s_waitcnt vmcnt(20)
        """)
        rows = [(0,2),(5,8),(3,6),(9,1),(4,7),(10,None)]
        dump = []
        for j in range(5):
            for k, (lo, hi) in enumerate(rows):
                dump.append(f'ds_write_b16 v{vRow}, v{P0+6*j+k} offset:{j*1536 + lo*128}')
                if hi is not None: dump.append(f'ds_write_b16_d16_hi v{vRow}, v{P0+6*j+k} offset:{j*1536 + hi*128}')
        for x in dump: a(x)
        a(f"""
        v_bfe_u32 v48, v{VL2}, 1, 4             ; n & 15
        v_lshlrev_b32 v49, 2, v48
        v_add_u32 v50, 64, v49
        v_add_u32 v51, 128, v49
        ds_bpermute_b32 v{vP1}, v49, v{VTAB}
        ds_bpermute_b32 v{vP1+1}, v50, v{VTAB}
        ds_bpermute_b32 v{vP1+2}, v51, v{VTAB}
        v_lshrrev_b32 v49, 5, v{VL2}            ; slab
        v_and_b32 v50, 7, v48
        v_mul_u32_u24 v50, {8192+32}, v50
        v_lshrrev_b32 v51, 3, v48
        v_mul_u32_u24 v51, 1536, v51
        v_add_u32 v50, v50, v51
        v_lshlrev_b32 v52, 4, v49               ; slab*16
        v_add_u32 v{vP0}, v50, v52
        s_lshl_b32 s{sT+2}, s{sW}, 5
        v_lshl_add_u32 v51, v49, 3, s{sT+2}
        v_bfe_u32 v53, v48, 2, 1
        v_lshl_add_u32 v51, v53, 4, v51
        v_add_u32 v{vS}, v50, v51
        s_sub_u32 s{sT+2}, s{sNC}, 32
        v_cmp_gt_u32 s[{sEX}:{sEX+1}], s{sT+2}, v48
        s_bfe_u32 s{sT+2}, s{sW}, 0x10002
        s_lshl_b32 s{sT+2}, s{sT+2}, 4
        s_add_u32 s{sT+1}, s{sT+1}, s{sT+2}
        s_add_u32 s{sRND}, s{sRND}, 1
        s_cmp_ge_u32 s{sRND}, s{sR}
        s_cselect_b32 s{sLAST}, 1, 0
        s_cmp_eq_u32 s{sMORE}, 0
        s_cselect_b32 s{sLAST}, s{sLAST}, 0
        s_and_b32 s{sT+6}, s{sLAST}, s{sFIRST}
        s_mov_b32 s{sT+5}, 0xbfb8aa3b           ; -log2(e)
        v_lshlrev_b32 v53, 5, v48
        s_waitcnt lgkmcnt(0)
        v_add_u32 v{vRow}, s{sT+1}, v{vL16}
        """)
        for g in range(3):
            a(f'v_and_b32 v51, 0x3ffff, v{vP1+g}\nv_sub_u32 v50, v53, v51\nv_and_b32 v50, 0xff, v50\nv_add3_u32 v{vP1+g}, v50, v51, v52')
        stamp(a, 8); a('s_barrier'); stamp(a, 9)
        a(f's_cmp_eq_u32 s{sT+6}, 0\ns_cbranch_scc1 K2_MULTI')
        steps = []
        for g in range(3):
            for ph in range(2):
                for rs in range(2):
                    for hh in range(2): steps.append((g, 0, ph*4 + rs*2 + hh, ph, rs, hh))
            for ph in range(2):
                for path in range(3):
                    for hh in range(2):
                        for j in range(3): steps.append((g, 1+j, 8 + ph*6 + path*2 + hh, ph, 2 + 3*j + path, hh))
        NB = 12; D = 10
        def epi(g):
            c = 16*g; o = OP + 8*(g & 1); s = []; tp = 200
            for r in range(4): s.append(f'v_mul_f32 v{tp+r}, s{sT+5}, v{c+r}')
            for r in range(4): s.append(f'v_exp_f32 v{tp+r}, v{tp+r}')
            for r in range(4): s.append(f'v_add_f32 v{tp+r}, 1.0, v{tp+r}')
            for r in range(4): s.append(f'v_rcp_f32 v{tp+r}, v{tp+r}')
            s += [f'v_cvt_pk_bf16_f32 v{o}, v{c}, v{c+1}', f'v_cvt_pk_bf16_f32 v{o+1}, v{c+2}, v{c+3}']
            for j in range(3):
                for r in range(4): s.append(f'v_mul_f32 v{c+4+4*j+r}, v{c+4+4*j+r}, v{tp+r}')
                s += [f'v_cvt_pk_bf16_f32 v{o+2+2*j}, v{c+4+4*j}, v{c+5+4*j}', f'v_cvt_pk_bf16_f32 v{o+3+2*j}, v{c+6+4*j}, v{c+7+4*j}']
            return s
        def stage(g):
            o = OP + 8*(g & 1)
            w = [(f'ds_write_b64 v{vS}, v[{o+2*rt}:{o+1+2*rt}] offset:{g*3072 + rt*256}', [(f'w{g}', False)]) for rt in range(4)]
            return w if g < 2 else [f's_mov_b64 exec, s[{sEX}:{sEX+1}]'] + w + ['s_mov_b64 exec, -1']
        def rowread(g):
            return [(f'ds_read_b128 v[{192+4*(j&1)}:{195+4*(j&1)}], v{vRow} offset:{j*1536}', [(f'r{g}', False)]) for j in ((2*g, 2*g+1) if g < 2 else (4,))]
        def rowstore(g):
            s = [('wait', f'r{g}')]
            for j in ((2*g, 2*g+1) if g < 2 else (4,)):
                s = [f's_add_u32 s{sT+3}, s{sW}, {8*j}\nv_readlane_b32 s{sOWN+j}, v{VTAB}, s{sT+3}\ns_nop 0\ns_bfe_u32 s{sOWN+j}, s{sOWN+j}, 0x60015\ns_add_u32 s{sOWN+j}, s{sOWN+j}, s{sNB}\ns_lshl_b32 s{sOWN+j}, s{sOWN+j}, 10'] + s
                s += [f'buffer_store_dwordx4 v[{192+4*(j&1)}:{195+4*(j&1)}], v{vL16}, s[{sOUT}:{sOUT+3}], s{sOWN+j} offen {mod("outst","sc1")}']
            return s
        def gemm(lg, extra):
            def rd(k):
                g, rt, f, ph, row, hh = steps[k]
                b = 48 + 4*(k % NB)
                ad = f'v{vP1+g} offset:{row*128 + hh*64}' if ph else f'v{vP0} offset:{g*3072 + row*128 + hh*64}'
                self.emit([(f'ds_read_b128 v[{b}:{b+3}], {ad}', [(f'k{k}', False)])], lg)
            for k in range(D): rd(k)
            seen = set(); started = set()
            for k in range(len(steps)):
                g, rt, f, ph, row, hh = steps[k]
                if k + D < len(steps): rd(k + D)
                vm = None
                if f not in seen: seen.add(f); vm = 19 - f
                self.emit([('wait', f'k{k}', vm)], lg)
                b = 48 + 4*(k % NB); c = 16*g + 4*rt
                cin = f'v[{c}:{c+3}]' if c in started else '0'; started.add(c)
                a(f'v_mfma_f32_16x16x32_bf16 v[{c}:{c+3}], v[{WR+4*f}:{WR+4*f+3}], v[{b}:{b+3}], {cin}')
                self.emit(extra.get(k, []), lg)
        lg = LG(a); extra = {}
        for g in range(2):
            e = epi(g); k0 = 44*(g+1) + 3
            for i, x in enumerate(e): extra.setdefault(k0 + min(i, 40), []).append(x)
        extra.setdefault(44 + 2, []).insert(0, 's_barrier')
        extra[83] = stage(0)
        extra[95] = [('wait', 'w0'), 's_barrier'] + rowread(0) + extra[95]
        extra[107] += rowstore(0)
        extra[127] = stage(1)
        gemm(lg, extra)
        stamp(a, 10)
        self.emit(epi(2) + [('wait', 'w1'), 's_barrier'] + rowread(1) + stage(2) + rowstore(1) + [('wait', 'w2'), 's_barrier'], lg)
        a(f'K2_LASTROW:\ns_add_u32 s{sT+1}, s{sW}, 32\ns_cmp_ge_u32 s{sT+1}, s{sNC}\ns_cbranch_scc1 K2_FIN')
        self.emit(rowread(2) + rowstore(2), lg)
        a('K2_FIN:')
        if PROF:
            stamp(a, 11); a('s_waitcnt vmcnt(0)'); stamp(a, 12); stamp_out(a, 13, 1, sW, sB, sWS)
        a('s_branch K2_END')
        a('K2_MULTI:')
        lg = LG(a)
        gemm(lg, {})
        a(f"""
        s_lshl_b32 s{sT+2}, s{sB}, 9
        s_lshl_b32 s{sT+3}, s{sW}, 6
        s_add_u32 s{sT+2}, s{sT+2}, s{sT+3}
        s_mul_i32 s{sT+2}, s{sT+2}, 192
        s_add_u32 s{sT+2}, s{sT+2}, {WS_ACC}
        v_mul_u32_u24 v{vSP}, 96, v{VL2}        ; lane*192
        s_cmp_lg_u32 s{sFIRST}, 0
        s_cbranch_scc1 K2_NOACC
        """)
        for i in range(12): a(f'buffer_load_dwordx4 v[{48+4*i}:{51+4*i}], v{vSP}, {ws}, s{sT+2} offen offset:{16*i}')
        a('s_waitcnt vmcnt(0)')
        for i in range(48): a(f'v_add_f32 v{i}, v{i}, v{48+i}')
        a(f'K2_NOACC:\ns_barrier\ns_cmp_eq_u32 s{sLAST}, 0\ns_cbranch_scc1 K2_SPILL')
        for g in range(2):
            self.emit(epi(g) + stage(g) + [('wait', f'w{g}'), 's_barrier'] + rowread(g) + rowstore(g), lg)
        self.emit(epi(2) + stage(2) + [('wait', 'w2'), 's_barrier'], lg)
        a('s_branch K2_LASTROW\nK2_SPILL:')
        for i in range(12): a(f'buffer_store_dwordx4 v[{4*i}:{4*i+3}], v{vSP}, {ws}, s{sT+2} offen offset:{16*i}')
        a(f"""
        s_mov_b32 s{sFIRST}, 0
        s_waitcnt vmcnt(0)
        s_cmp_lt_u32 s{sRND}, s{sR}
        s_cbranch_scc1 K2_LOAD
        s_add_u32 s{sJ0}, s{sJ0}, {2*U}
        s_branch K2_WINDOW
        """)

HEADER = '''; Kernarg layout for this problem (96 bytes, ptrs only, base s[0:1]):
'''
def kd(name, vgpr):
    return f'''.amdhsa_kernel {name}
  .amdhsa_next_free_vgpr {vgpr}
  .amdhsa_next_free_sgpr {102 if PROF else 76}
  .amdhsa_accum_offset {(vgpr+3)//4*4}
  .amdhsa_group_segment_fixed_size 0
  .amdhsa_kernarg_size 96
  .amdhsa_user_sgpr_count 2
  .amdhsa_user_sgpr_kernarg_segment_ptr 1
  .amdhsa_system_sgpr_workgroup_id_x 1
  .amdhsa_float_denorm_mode_32 3
.end_amdhsa_kernel
'''
def main():
    l1, v1 = k1(); l2, v2 = K2().gen()
    l1 = fix_hazards(l1); l2 = fix_hazards(l2)
    s = HEADER
    s += f'; @launch kernel=tp_sort_kernel grid=({NCH},1,1) block=({K1_T},1,1) lds={K1_LDS}\n'
    s += f'; @launch kernel=tp_main_kernel grid=(256,1,1) block=(512,1,1) lds={K2_LDS}\n'
    s += '.amdgcn_target "amdgcn-amd-amdhsa--gfx950"\n.text\n'
    for name, l in (('tp_sort_kernel', l1), ('tp_main_kernel', l2)):
        s += f'.globl {name}\n.p2align 8\n.type {name},@function\n{name}:\n'
        s += '\n'.join((x if x.endswith(':') else '    ' + x) for x in l) + '\n'
    s += '.section .rodata,"a"\n.p2align 6\n' + kd('tp_sort_kernel', v1) + '.p2align 6\n' + kd('tp_main_kernel', v2)
    out = sys.argv[1] if len(sys.argv) > 1 else f'/code/{NAME}.s'
    open(out, 'w').write(s)
    print('wrote', out, len(s), 'bytes')
main()
```

```python
import sys, os
sys.path.insert(0, os.path.dirname(os.path.abspath(__file__)))
from asmlib import Asm, fix_hazards

NAME = 'standalone__tensor_product_equiv_equiformer__graph'
N = 10000; E = 320000
NCH = 250; CH = E // NCH
CSTR = CH * 16 + 128
TSTR = 1024 + 128
WS_REC = 0
WS_TBL = 0x0600000
WS_STAB = 0x0680000
WS_WTAB = 0x06A8000
WS_RANK = 0x0700000
WS_PROF = 0x0900000
WS_ACC = 0x0A00000
WS_SIZE = 0x2400000
assert NCH * CSTR <= WS_TBL and WS_TBL + NCH * TSTR <= WS_STAB and WS_ACC + 256*512*192 <= WS_SIZE
BMUL = 429497
for d in range(N): assert ((d * BMUL) & 0xffffffff) >> 24 == (d * 16) // 625

OPT = dict(a.split('=') for a in sys.argv[2:]) if len(sys.argv) > 2 else {}
def opt(k, d): return type(d)(OPT.get(k, d)) if not isinstance(d, bool) else bool(int(OPT.get(k, d)))
def mod(k, d): return opt(k, d).replace('_', ' ')

PROF = opt('prof', False)
SEG = opt('seg', False)
def seg(i): return [f's_memtime s[{76+2*i}:{77+2*i}]'] if SEG else []
def stamp(a, i):
    if PROF and not SEG: a(f'{"s_memtime" if opt("cyc", False) else "s_memrealtime"} s[{76+2*i}:{77+2*i}]')
def stamp_out(a, n, kern, swave, swg, srd_s):
    if not PROF: return
    if opt('dbgout', -1) >= 0:
        l = f'DBG_{kern}'
        a(f's_cmp_lg_u32 s{swg}, {opt("dbgout", -1)}\ns_cbranch_scc1 {l}\ns_cmp_lg_u32 s{swave}, 0\ns_cbranch_scc1 {l}')
        a(f's_load_dwordx2 s[58:59], s[0:1], 80\ns_waitcnt lgkmcnt(0)\ns_add_u32 s58, s58, {512*(1-kern)*opt("dbgk1", 0)}\ns_addc_u32 s59, s59, 0')
        srd(a, 60, 58, 256)
        a('s_mov_b64 exec, 1\nv_mov_b32 v1, 0')
        for i, o in ([(0, 0), (5, 14), (2, 15)] if kern == 0 else [(i, 1+i) for i in range(13)]):
            a(f'v_mov_b32 v2, s{76+2*i}\nbuffer_store_dword v2, v1, s[60:63], 0 offen offset:{4*o}')
        a(f's_mov_b64 exec, -1\n{l}:')
        return
    a('s_waitcnt lgkmcnt(0)')
    a(f's_lshl_b32 s67, s{swg}, 4\ns_add_u32 s67, s67, s{swave}\ns_lshl_b32 s67, s67, 6\ns_add_u32 s67, s67, {WS_PROF + kern*256*16*64}')
    a('s_mov_b64 exec, 1\nv_mov_b32 v1, 0')
    for i in range(n):
        a(f'v_mov_b32 v2, s{76+2*i if not SEG else 96+min(i,5)}\nbuffer_store_dword v2, v1, s[{srd_s}:{srd_s+3}], s67 offen offset:{4*i}')
    a('s_mov_b64 exec, -1')

def srd(a, s, ptr, nbytes):
    a(f's_mov_b32 s{s}, s{ptr}\ns_and_b32 s{s+1}, s{ptr+1}, 0xffff\ns_mov_b32 s{s+2}, {nbytes}\ns_mov_b32 s{s+3}, 0x20000')

def scan(a, v, op='v_add_u32'):
    for sh in (1, 2, 4, 8):
        a(f'{op}_dpp v{v}, v{v}, v{v} row_shr:{sh} row_mask:0xf bank_mask:0xf bound_ctrl:0')
    a(f'{op}_dpp v{v}, v{v}, v{v} row_bcast:15 row_mask:0xa bank_mask:0xf')
    a(f'{op}_dpp v{v}, v{v}, v{v} row_bcast:31 row_mask:0xc bank_mask:0xf')

K1_T = CH // 4
K1_LDS = 2048 + CH * 16
def k1():
    a = Asm()
    ld = mod('k1ld', ''); st = mod('k1st', 'sc1')
    a(f's_cmp_ge_u32 s2, {NCH}\ns_cbranch_scc1 K1_END')
    stamp(a, 0)
    a(f'''
    s_load_dwordx2 s[36:37], s[0:1], 8      ; rhat
    s_load_dwordx4 s[40:43], s[0:1], 24
    s_load_dwordx4 s[44:47], s[0:1], 40
    s_load_dwordx2 s[48:49], s[0:1], 56     ; w_si1
    s_load_dwordx2 s[50:51], s[0:1], 88     ; ws
    s_load_dwordx2 s[30:31], s[0:1], 0      ; x
    s_load_dwordx2 s[32:33], s[0:1], 16     ; e_attr
    v_lshrrev_b32 v1, 6, v0
    v_lshlrev_b32 v5, 4, v0                 ; t*16
    v_readfirstlane_b32 s3, v1              ; wave
    v_mul_u32_u24 v4, 24, v0
    v_lshlrev_b32 v2, 2, v0                 ; t*4
    v_and_b32 v8, 63, v0
    v_lshlrev_b32 v9, 4, v8                 ; lane*16
    v_mov_b32 v6, 0
    v_mov_b32 v7, 1
    s_mul_i32 s52, s2, {CH*4}
    s_mul_i32 s53, s2, {CH*6}
    s_waitcnt lgkmcnt(0)
    ''')
    srd(a, 4, 42, E*4)
    srd(a, 8, 40, E*4)
    srd(a, 12, 36, E*6)
    srd(a, 20, 50, WS_SIZE)
    a(f'''
    buffer_load_dwordx4 v[12:15], v5, s[4:7], s52 offen {ld}
    buffer_load_dwordx4 v[16:19], v5, s[8:11], s52 offen {ld}
    buffer_load_dwordx4 v[20:23], v4, s[12:15], s53 offen {ld}
    buffer_load_dwordx2 v[24:25], v4, s[12:15], s53 offen offset:16 {ld}
    s_cmp_eq_u32 s3, 4
    s_cbranch_scc1 K1_PREP
    ds_write_b32 v2, v6
    s_branch K1_GO
    K1_PREP:
    s_cmp_ge_u32 s2, 200
    s_cbranch_scc1 K1_GO
    v_and_b32 v1, 15, v8
    v_lshrrev_b32 v3, 4, v8
    s_cmp_ge_u32 s2, 160
    s_cbranch_scc1 K1_WT
    s_cmp_ge_u32 s2, 64
    s_cbranch_scc1 K1_S1
    s_lshr_b32 s24, s2, 3
    s_and_b32 s25, s2, 7
    s_lshr_b32 s26, s25, 2
    s_bfe_u32 s27, s25, 0x10001
    s_and_b32 s28, s25, 1
    ''')
    srd(a, 16, 46, 256*128*2)
    a(f'''
    s_branch K1_SC
    K1_S1:
    ; S1: g2 = g-64; w = g2/12, f2 = g2%12 : ph = f2/6, path = (f2%6)>>1, hh = f2&1
    s_sub_u32 s29, s2, 64
    s_mul_i32 s24, s29, 43
    s_lshr_b32 s24, s24, 9
    s_mul_i32 s25, s24, 12
    s_sub_u32 s25, s29, s25
    s_cmp_ge_u32 s25, 6
    s_cselect_b32 s26, 1, 0
    s_mul_i32 s27, s26, 6
    s_sub_u32 s27, s25, s27
    s_lshr_b32 s27, s27, 1
    s_and_b32 s28, s25, 1
    s_add_u32 s25, s25, 8
    ''')
    for g2 in range(96): assert (g2*43) >> 9 == g2 // 12
    srd(a, 16, 48, 384*128*2)
    a(f'''
    K1_SC:
    s_lshl_b32 s27, s27, 7
    s_lshl_b32 s26, s26, 6
    s_lshl_b32 s28, s28, 5
    s_add_u32 s27, s27, s26
    s_add_u32 s27, s27, s28
    s_lshl_b32 s27, s27, 8
    s_lshl_b32 s26, s24, 5
    s_add_u32 s27, s27, s26
    v_lshlrev_b32 v3, 11, v3
    v_lshl_add_u32 v3, v1, 1, v3
    ''')
    for e in range(8): a(f'buffer_load_ushort v{64+e}, v3, s[16:19], s27 offen offset:{e*256}')
    a(f'''
    s_mul_i32 s24, s24, 20
    s_add_u32 s24, s24, s25
    s_lshl_b32 s24, s24, 10
    s_add_u32 s24, s24, {WS_STAB}
    s_branch K1_GO
    K1_WT:
    ; W (fp32): g3 = g-160; ph = g3/20, i = g3%20 : p = i>>2, u = (i>>1)&1, rq = i&1
    s_sub_u32 s24, s2, 160
    s_cmp_ge_u32 s24, 20
    s_cselect_b32 s26, 1, 0
    s_mul_i32 s25, s26, 20
    s_sub_u32 s25, s24, s25
    s_lshr_b32 s27, s25, 2
    s_bfe_u32 s28, s25, 0x10001
    s_and_b32 s25, s25, 1
    s_mul_i32 s25, s25, {8*1280}
    s_lshl_b32 s27, s27, 8
    s_lshl_b32 s26, s26, 7
    s_lshl_b32 s28, s28, 6
    s_add_u32 s27, s27, s26
    s_add_u32 s27, s27, s28
    s_add_u32 s27, s27, s25
    ''')
    srd(a, 16, 44, 16*640*2)
    a(f'''
    v_and_b32 v1, 31, v8
    v_lshrrev_b32 v3, 5, v8
    v_mul_u32_u24 v3, {4*1280}, v3
    v_lshl_add_u32 v3, v1, 1, v3
    v_mov_b32 v64, 0
    v_mov_b32 v66, 0
    v_mov_b32 v68, 0
    v_mov_b32 v70, 0
    ''')
    for r in range(4): a(f'buffer_load_ushort v{65+2*r}, v3, s[16:19], s27 offen offset:{r*1280}')
    a(f'''
    s_lshl_b32 s24, s24, 10
    s_add_u32 s24, s24, {WS_WTAB}
    K1_GO:
    s_mov_b32 s58, {BMUL}
    s_movk_i32 s59, 625
    s_waitcnt lgkmcnt(0)
    s_barrier
    s_cmp_eq_u32 s3, 4
    s_cbranch_scc1 K1_W4
    s_waitcnt vmcnt(3)
    s_branch K1_W4D
    K1_W4:
    s_waitcnt vmcnt(0)
    K1_W4D:
    ''')
    stamp(a, 1)
    PF = opt('pf', ''); npf = 0
    if PF:
        srd(a, 64, 32, E*32); srd(a, 68, 30, N*1024)
        a(f'v_lshlrev_b32 v60, 7, v0\ns_mul_i32 s60, s2, {CH*32}')
        pm = mod('pfm', '')
        if 'e' in PF: a(f'buffer_load_dword v61, v60, s[64:67], s60 offen {pm}'); npf += 1
        if 'x' in PF: a(f'buffer_load_dword v62, v60, s[68:71], s60 offen {pm}'); npf += 1
    for j in range(4):
        a(f'v_mul_u32_u24 v{28+j}, s58, v{12+j}\nv_lshrrev_b32 v{28+j}, 24, v{28+j}\nv_lshlrev_b32 v{32+j}, 2, v{28+j}\nds_add_rtn_u32 v{36+j}, v{32+j}, v7')
    for j in range(4):
        a(f'v_mad_u32_u24 v{28+j}, v{28+j}, s59, 15\nv_lshrrev_b32 v{28+j}, 4, v{28+j}\nv_sub_u32 v{28+j}, v{12+j}, v{28+j}')
        a(f'v_add_u32 v{12+j}, {j}, v2\nv_lshlrev_b32 v{12+j}, 14, v{12+j}\nv_lshl_or_b32 v{28+j}, v{28+j}, 25, v{12+j}')
    a(f'''
    s_waitcnt lgkmcnt(0)
    s_barrier
    ds_read_b128 v[40:43], v9
    s_waitcnt lgkmcnt(0)
    v_add_u32 v45, v40, v41
    v_add_u32 v46, v45, v42
    v_add_u32 v47, v46, v43
    v_mov_b32 v48, v47
    ''')
    scan(a, 48)
    a(f'''
    v_sub_u32 v48, v48, v47                 ; exclusive
    v_add_u32 v49, v48, v40
    v_add_u32 v50, v48, v45
    v_add_u32 v51, v48, v46
    ds_write_b128 v9, v[48:51] offset:1024
    s_cmp_lg_u32 s3, 0
    s_cbranch_scc1 K1_NOTBL
    v_lshl_or_b32 v52, v40, 16, v48
    v_lshl_or_b32 v53, v41, 16, v49
    v_lshl_or_b32 v54, v42, 16, v50
    v_lshl_or_b32 v55, v43, 16, v51
    s_mul_i32 s62, s2, {TSTR}
    s_add_u32 s62, s62, {WS_TBL}
    buffer_store_dwordx4 v[52:55], v9, s[20:23], s62 offen {st}
    K1_NOTBL:
    s_waitcnt lgkmcnt(0)
    ''')
    for j in range(4): a(f'ds_read_b32 v{32+j}, v{32+j} offset:1024')
    a(f's_cmp_lg_u32 s3, 0\ns_cbranch_scc1 K1_W0\ns_waitcnt vmcnt({1+npf})\ns_branch K1_W0D\nK1_W0:\ns_waitcnt vmcnt({npf})\nK1_W0D:')
    stamp(a, 2)
    H = lambda d, s: f'v_and_b32 v{d}, 0xffff0000, v{s}'
    L = lambda d, s: f'v_lshlrev_b32 v{d}, 16, v{s}'
    ys = [(L,20),(H,20),(L,21),(H,21),(L,22),(H,22),(L,23),(H,23),(L,24),(H,24),(L,25),(H,25)]
    for j in range(4):
        for c in range(3):
            f, s = ys[3*j+c]; a(f(40+4*j+c, s))
        a(f'v_or_b32 v{43+4*j}, v{28+j}, v{16+j}')
    a('s_waitcnt lgkmcnt(0)')
    for j in range(4):
        a(f'v_add_lshl_u32 v{32+j}, v{32+j}, v{36+j}, 4\nds_write_b128 v{32+j}, v[{40+4*j}:{43+4*j}] offset:2048')
    a(f's_mul_i32 s52, s2, {CSTR}\ns_waitcnt lgkmcnt(0)\ns_barrier')
    stamp(a, 3)
    for i in range(4): a(f'ds_read_b128 v[{12+4*i}:{15+4*i}], v5 offset:{2048 + i*K1_T*16}')
    for i in range(4):
        a(f's_waitcnt lgkmcnt({3-i})')
        a(f'buffer_store_dwordx4 v[{12+4*i}:{15+4*i}], v5, s[20:23], s52 offen {st}')
        if i < 3: a(f's_add_u32 s52, s52, {K1_T*16}')
    a(f'''
    s_cmp_lg_u32 s3, 4
    s_cbranch_scc1 K1_FIN
    s_cmp_ge_u32 s2, 200
    s_cbranch_scc1 K1_FIN
    v_lshl_or_b32 v40, v65, 16, v64
    v_lshl_or_b32 v41, v67, 16, v66
    v_lshl_or_b32 v42, v69, 16, v68
    v_lshl_or_b32 v43, v71, 16, v70
    buffer_store_dwordx4 v[40:43], v9, s[20:23], s24 offen {st}
    K1_FIN:
    ''')
    for i in range(opt('k1delay', 0)): a('s_sleep 16')
    if PROF:
        stamp(a, 4); a('s_waitcnt vmcnt(0)'); stamp(a, 5); stamp_out(a, 6, 0, 3, 2, 20)
    a('K1_END:\ns_endpgm')
    return a.lines, 72

NSTR = 2400
OY = 0; OS = 768; OA = 864
RECBASE = 65536
POOL = RECBASE + 40 * NSTR
MISC = POOL + OA + 1024
HIST = MISC; PROG = MISC + 192; CNT = MISC + 224; FLAG = MISC + 228; NULLSRC = MISC + 256; SCR = MISC + 288
NULLBASE = NULLSRC - OS
K2_LDS = 163840
U = 10
ACC = 0; AR = 64; WR = 96; BR = 176; P0 = 192; G = 222
VEO = 230; VH16 = 231; T2 = 232; T3 = 233; PW = 234
VB0 = 246; VB1 = 247; VLG = 248; VAO = 249; VYO = 250; VSO = 251; VL2 = 252; VTAB = 253; VT0 = 254; VT1 = 255; VPA = VEO
sX = 4; sWS = 8; sOUT = 12; sEA = 16
sW = 20; sNB = 21; sNC = 22; sJ0 = 23; sRND = 24; sR = 25; sLIM = 26; sMORE = 27; sFIRST = 28
sCB = 29; sC4 = 30; sCP = 31; sNBs = 48; sNK = 33; sNPH = 34; sNP = 35; sNV = 36
sRING = 37; sJ = 38; s1024 = 39; sOWN = 40; sNX = 44; sSO = 48; sPROGW = 52; sPROG = 53; sB = 54; sLAST = 55
sEX = 56
sT = 58
sM0 = 68
sX2 = 72
sPP = 32
sN4 = 3

def tile(t, u): return ACC + 16 * (2*u + t)
TILES = [(0,0), (1,0), (0,1), (1,1)]
def Wreg(p, u): return WR + p*16 + u*8

def weave(x, y):
    o = []
    for i in range(max(len(x), len(y))):
        o += x[i:i+1] + y[i:i+1]
    return o

class LG:
    def __init__(self, a, q=()): self.a = a; self.q = list(q)
    def issue(self, tag, optional=False): self.q.append((tag, optional))
    def waitline(self, tag):
        idx = [i for i, (t, o) in enumerate(self.q) if t == tag]
        if not idx: return None
        y = sum(1 for (t, o) in self.q[idx[-1]+1:] if not o)
        self.q = self.q[idx[-1]+1:]
        return f's_waitcnt lgkmcnt({min(y, 15)})'

class K2:
    def __init__(self):
        self.a = Asm()
        self.uid = 0
        self.outline = []
    def lab(self, s):
        self.uid += 1
        return f'K2_{s}_{self.uid}'

    def dma(self, slot, greg, soff):
        return [f's_mov_b32 m0, s{sM0+slot}',
                f'buffer_load_dwordx4 v{greg}, s[{sX}:{sX+3}], s{soff} offen lds',
                f'buffer_load_dwordx4 v{greg+1}, s[{sX2}:{sX2+3}], s{soff} offen offset:1024 lds']
    def bread(self, item):
        out = []
        for u in range(2):
            for r in range(2):
                d = BR + (item & 1)*8 + u*4 + r*2
                out.append((f'ds_read_b64_tr_b16 v[{d}:{d+1}], v{VB0+u} offset:{(item & 3)*2048 + r*512}', [('B' if u == 0 or not opt('split', 0) else 'B1', False)]))
        return out
    def sread(self, t):
        return [f'v_add_u32 v{G+2*t}, s{sSO+t}, v{VSO}', (f'ds_read_b32 v{G+2*t}, v{G+2*t}', [(f'S{t}', False)])]
    def gmad(self, t):
        return [('wait', f'S{t}'),
                f'v_mad_u32_u16 v{G+2*t+1}, v{G+2*t}, s{s1024}, v{VLG} op_sel:[1,0,0,0]',
                f'v_mad_u32_u16 v{G+2*t}, v{G+2*t}, s{s1024}, v{VLG}']
    def ool(self, text): self.outline.append(text)
    def atomic(self):
        return [f'v_mov_b32 v{VT0}, {CNT}', f'v_mov_b32 v{VT1}, 1', f'v_lshl_add_u32 v{T3}, v{VL2}, 1, s{sPROG}',
                (f's_mov_b64 exec, 1\nds_add_rtn_u32 v{T2}, v{VT0}, v{VT1}\ns_mov_b64 exec, -1', [('C', False)]),
                (f'ds_read_b32 v{T3}, v{T3}', [('C', False)])]
    def claimed(self):
        nul = self.lab('nul'); spin = self.lab('spin'); chk = self.lab('chk'); back = self.lab('back')
        self.ool(f'{nul}:\ns_mov_b32 s{sT}, 63\ns_mov_b32 s{sNV}, 0\ns_branch {back}')
        self.ool(f'{spin}:\nv_lshl_add_u32 v{T3}, v{VL2}, 1, s{sPROG}\nds_read_b32 v{T3}, v{T3}\ns_waitcnt lgkmcnt(0)\ns_branch {chk}')
        return [f'v_readfirstlane_b32 s{sT}, v{T2}',
                f"""s_cmp_lt_u32 s{sT}, s{sNC}
                s_cbranch_scc0 {nul}
                s_and_b32 s{sT+1}, s{sT}, 7
                s_lshr_b32 s{sT+2}, s{sT}, 3
                {chk}:
                v_readlane_b32 s{sT+3}, v{T3}, s{sT+1}
                s_nop 0
                s_cmp_gt_u32 s{sT+3}, s{sT+2}
                s_cbranch_scc0 {spin}
                {back}:"""]
    def claim0(self):
        dyn = self.lab('dyn'); back = self.lab('back')
        o = [x if isinstance(x, str) else x[0] for x in self.atomic()] + ['s_waitcnt lgkmcnt(0)'] + self.claimed()
        self.ool(f'{dyn}:\n' + '\n'.join(o) + f'\ns_mov_b32 s{sNPH}, 1\ns_branch {back}')
        return [f's_add_u32 s{sJ}, s{sJ}, 1', f'v_mov_b32 v{VT0}, s{sPROGW}', f'v_mov_b32 v{VT1}, s{sJ}',
                f's_lshl_b32 s{sT}, s{sJ}, 3', f's_add_u32 s{sT}, s{sT}, s{sW}',
                (f's_mov_b64 exec, 1\nds_write_b32 v{VT0}, v{VT1}\ns_mov_b64 exec, -1', [('W', False)]),
                f's_cmp_lt_u32 s{sT}, s{sNC}\ns_cbranch_scc0 {dyn}\n{back}:']
    def pooladdr(self, d, word, stride):
        return f"""s_lshr_b32 s{d}, s{word}, 27
            s_mov_b32 s{sT+8}, {POOL}
            s_cmp_ge_u32 s{d}, 2
            s_cselect_b32 s{sT+8}, {POOL - NSTR - 2*stride}, s{sT+8}
            s_mul_i32 s{d}, s{d}, {stride}
            s_add_u32 s{d}, s{d}, s{sT+8}"""
    def next_info(self, ph):
        rare = self.lab('rare'); back = self.lab('back'); four = self.lab('four')
        self.ool(f"""{rare}:
            s_cmp_eq_u32 s{sNK}, 4
            s_cbranch_scc1 {four}
            s_mov_b32 s{sSO+1}, s{sNBs}
            s_mov_b32 s{sSO+3}, s{sNBs}
            s_add_u32 s{sNX+1}, s{sNX}, 256
            s_add_u32 s{sNX+2}, s{sNX}, 512
            s_add_u32 s{sNX+3}, s{sNX}, 768
            s_branch {back}
            {four}:
            s_add_u32 s{sSO+2}, s{sNBs}, 64
            {self.pooladdr(sSO+3, sN4, 32)}
            s_mov_b32 s{sNX+2}, s{sNX}
            s_mov_b32 s{sNX+3}, s{sNX}
            s_branch {back}""")
        o = [f'v_readlane_b32 s{sN4}, v{VTAB}, s{sT}', f's_lshl_b32 s{sNX}, s{sNPH}, 7', f's_lshl_b32 s{sT+2}, s{sT}, 5',
             f's_and_b32 s{sNBs}, s{sN4}, 0x3ffff', f's_bfe_u32 s{sNK}, s{sN4}, 0x30012',
             f's_sub_u32 s{sT+2}, s{sT+2}, s{sNBs}', f's_and_b32 s{sT+2}, s{sT+2}, 0xff']
        if ph == 1: o += [f's_add_u32 s{sNP}, s{sT+2}, s{sNBs}']
        else: o += [f's_add_u32 s{sT+2}, s{sT+2}, s{sNBs}', f's_mul_i32 s{sNP}, s{sJ}, 6', f's_cmp_eq_u32 s{sNPH}, 0\ns_cselect_b32 s{sNP}, s{sNP}, s{sT+2}']
        o += [f's_mov_b32 s{sNX+1}, s{sNX}', f's_add_u32 s{sNX+3}, s{sNX}, 256', f's_add_u32 s{sSO+1}, s{sNBs}, 32', f's_add_u32 s{sT+2}, s{sNBs}, 64',
              f's_cmp_eq_u32 s{sNK}, 3\ns_cselect_b32 s{sNX+2}, s{sNX}, s{sNX+3}\ns_cselect_b32 s{sSO+2}, s{sT+2}, s{sNBs}\ns_cselect_b32 s{sSO+3}, s{sNBs}, s{sSO+1}',
              f's_sub_u32 s{sT+2}, s{sNK}, 2\ns_cmp_lt_u32 s{sT+2}, 2\ns_cbranch_scc0 {rare}\n{back}:']
        return o
    def eread(self):
        return [f'v_add_u32 v{T3}, s{sNBs}, v{VEO}',
                (f'ds_read_b32 v{T2}, v{T3}', [('E', False)]), (f'ds_read_b32 v{T3}, v{T3} offset:1024', [('E', False)])]
    NEXTRA = 2
    def adma(self):
        dum = self.lab('dum'); four = self.lab('a4'); back = self.lab('back'); b4 = self.lab('b4')
        ea = f's[{sEA}:{sEA+3}]'; m = mod('eald', '')
        self.ool(f'{dum}:\nv_mov_b32 v{T2}, -1\ns_mov_b32 m0, {SCR}\ns_mov_b64 exec, 1\n' + f'buffer_load_dwordx4 v{T2}, {ea}, 0 offen lds\n'*2 + f's_mov_b64 exec, -1\ns_branch {back}')
        self.ool(f"""{four}:
            {self.pooladdr(sT+7, sN4, 512)}
            v_add_u32 v{T2}, s{sT+7}, v{VEO}
            ds_read_b32 v{T2}, v{T2}
            s_add_u32 m0, s{sT+7}, {OA}
            s_waitcnt lgkmcnt(0)
            v_or_b32 v{T2}, v{T2}, v{VH16}
            buffer_load_dwordx4 v{T2}, {ea}, 0 offen {m} lds
            s_branch {b4}""")
        return [('wait', 'E'), f'v_or_b32 v{T2}, v{T2}, v{VH16}', f'v_or_b32 v{T3}, v{T3}, v{VH16}', f"""
        s_cmp_lg_u32 s{sNPH}, 0
        s_cbranch_scc1 {dum}
        s_add_u32 m0, s{sNBs}, {OA}
        s_add_u32 s{sT+7}, s{sNBs}, {OA+1024}
        buffer_load_dwordx4 v{T2}, {ea}, 0 offen {m} lds
        s_mov_b32 m0, s{sT+7}
        s_mov_b32 exec_hi, 0
        buffer_load_dwordx4 v{T3}, {ea}, 0 offen {m} lds
        s_cmp_eq_u32 s{sNK}, 4
        s_cbranch_scc1 {four}
        {b4}:
        s_mov_b32 exec_hi, -1
        {back}:"""]
    def areads(self, s):
        b = ACC + (s & 1) * 20
        va, vy, oa, oy, o = VAO, VYO, s*512, s*64, []
        if s == 3:
            va, vy, oa, oy = ACC + 56, ACC + 57, 0, 0
            o = [self.pooladdr(sT+7, sC4, 512) + f'\ns_sub_u32 s{sT+7}, s{sT+7}, s{sCB}\nv_add_u32 v{va}, s{sT+7}, v{VAO}',
                 self.pooladdr(sT+7, sC4, 64) + f'\ns_sub_u32 s{sT+7}, s{sT+7}, s{sCB}\nv_add_u32 v{vy}, s{sT+7}, v{VYO}']
        o += [(f'ds_read_b64_tr_b16 v[{b}:{b+1}], v{va} offset:{oa}', [(f'a{s}', False)]),
              (f'ds_read_b64_tr_b16 v[{b+2}:{b+3}], v{va} offset:{oa+128}', [(f'a{s}', False)])]
        for t in range(2):
            for hh in range(2):
                d = b + 4 + t*8 + hh*4
                o.append((f'ds_read_b128 v[{d}:{d+3}], v{vy} offset:{oy + t*384 + hh*16}', [(f'y{s}{t}', False)]))
        return o
    def abuild(self, nK):
        o = []
        for s in range(nK):
            b = ACC + (s & 1) * 20; un = ACC + 40 + (s & 1) * 8
            o.append(('wait', f'a{s}'))
            for i in range(4):
                o += [f'v_lshlrev_b32 v{un+2*i}, 16, v{b+i}', f'v_and_b32 v{un+1+2*i}, 0xffff0000, v{b+i}']
            for t in range(2):
                o.append(('wait', f'y{s}{t}'))
                for e in range(8): o.append(f'v_mul_f32 v{b+4+t*8+e}, v{un+e}, v{b+4+t*8+e}')
                for i in range(4): o.append(f'v_cvt_pk_bf16_f32 v{AR+s*8+t*4+i}, v{b+4+t*8+2*i}, v{b+5+t*8+2*i}')
            if s + 2 < nK: o += self.areads(s + 2)
        return o
    R = dict(A=PW, B=PW+2, C=PW+4, D=PW+6, E=PW+8, F=PW+10)
    CH_ = {0: [(0,'A','new'),(2,'B','new'),(2,'C','new'),(2,'D','new')],
           1: [(3,'A','new'),(1,'B','new'),(4,'C','new'),(4,'D','new')],
           2: [(3,'E','new'),(4,'C','neg'),(1,'B','acc'),(4,'F','new')],
           3: [(3,'E','new'),(4,'D','neg'),(4,'F','neg'),(1,'B','acc')]}
    def F(self, q, k):
        t, u = TILES[k]; o = []
        for r in range(8):
            for b in (2*t, 2*t+1):
                p, d, mode = self.CH_[q][b]
                T = tile(t, u) + (b & 1)*8 + r; W = Wreg(p, u) + r; D = self.R[d] + u
                if r == 0 and mode == 'new': o.append(f'v_mul_f32 v{D}, v{T}, v{W}')
                elif r == 0 and mode == 'neg': o.append(f'v_fma_f32 v{D}, v{T}, v{W}, -v{D}')
                else: o.append(f'v_fmac_f32 v{D}, v{T}, v{W}')
        return o
    def fin(self, q, ph, sp=None):
        sp = sCP if sp is None else sp
        R = self.R
        names = {0: [('A',0),('B',0),('C',0),('D',0)], 1: [('A',0)], 2: [('C',0),('E',0)], 3: [('E',0),('D',1),('B',0),('F',0)]}[q]
        pairs = {0: [(0, R['A'], 0, R['B'], 2), (1, R['C'], 5, R['D'], 8)], 1: [], 2: [(2, R['A'], 3, R['E'], 6)],
                 3: [(3, R['E'], 9, R['B'], 1), (4, R['F'], 4, R['D'], 7), (5, R['C'], 10, R['C'], None)]}[q]
        o = [f'v_permlane32_swap_b32 v{R[n]}, v{R[n]+1}' for n, _ in names]
        if ph == 1 and q == 0: o.append(f'v_add_u32 v{VPA}, s{sCP}, v{VL2}')
        o += [(f'v_add_f32 v{R[n]}, -v{R[n]}, -v{R[n]+1}' if neg else f'v_add_f32 v{R[n]}, v{R[n]}, v{R[n]+1}') for n, neg in names]
        if pairs and ph == 0:
            o.append(f's_set_gpr_idx_on s{sp}, gpr_idx(DST)\n' + ''.join(f'v_cvt_pk_bf16_f32 v{P0+slot}, v{lo}, v{hi}\n' for (slot, lo, lr, hi, hr) in pairs) + 's_set_gpr_idx_off')
        elif pairs:
            for (slot, lo, lr, hi, hr) in pairs: o.append(f'v_cvt_pk_bf16_f32 v{lo}, v{lo}, v{hi}')
            for (slot, lo, lr, hi, hr) in pairs:
                o.append((f'ds_write_b16 v{VPA}, v{lo} offset:{lr*128}', [('P', False)]))
                if hr is not None: o.append((f'ds_write_b16_d16_hi v{VPA}, v{lo} offset:{hr*128}', [('P', False)]))
        return o
    def drop(self, line):
        x = opt('drop', '')
        if not x or not getattr(self, 'inunit', False) or '\n' in line.strip(): return False
        l = line.strip()
        if 'D' in x and l.startswith('buffer_load') and (f's[{sX}:' in l or f's[{sX2}:' in l): return True
        if 'P' in x and l.startswith('ds_write_b16'): return True
        if 'S' in x and l.startswith('v_permlane'): return True
        if 'C' in x and l.startswith('v_cvt_pk'): return True
        if 'B' in x and l.startswith('ds_read_b64_tr') and (f'v{VB0} ' in l or f'v{VB1} ' in l): return True
        if 'F' in x and l.startswith('v_fmac'): return True
        if 'A' in x and l.startswith(('v_lshlrev_b32','v_and_b32','v_cvt_pk')): return True
        if 'A' in x and l.startswith('v_mul_f32') and int(l.split()[1][1:-1]) < 64: return True
        if 'Y' in x and l.startswith(('ds_read_b128',)): return True
        return False
    def emit(self, items, lg):
        for it in items:
            if isinstance(it, str):
                if not self.drop(it): self.a(it)
            elif it[0] != 'wait' and self.drop(it[0]):
                for t, o in it[1]: lg.issue(t, o)
            elif it[0] == 'wait':
                w = lg.waitline(it[1])
                if len(it) > 2 and it[2] is not None: w = f's_waitcnt vmcnt({it[2]})' + (w[len('s_waitcnt'):] if w else '')
                if w: self.a(w)
            else:
                self.a(it[0])
                for t, o in it[1]: lg.issue(t, o)
    ENTRY = [('B', False)]*2 + [('B1' if opt('split', 0) else 'B', False)]*2 + [('a0', False)]*2 + [('y00', False)]*2 + [('y01', False)]*2 + [('a1', False)]*2 + [('y10', False)]*2 + [('y11', False)]*2
    @staticmethod
    def cost(it):
        if isinstance(it, tuple):
            if it[0] == 'wait': return 1
            it = it[0]
        return sum((2 if 'permlane' in l else 1) for l in it.strip().split('\n') if not l.strip().endswith(':'))
    def unit(self, nK, ph):
        a = self.a
        lg = LG(a, self.ENTRY)
        a(f'K2_U{nK}{ph}:')
        self.inunit = True
        n = 4 * nK
        BUD = opt('bud', 7)
        pre = seg(0)
        claim = (self.claim0() if ph == 0 else self.atomic())
        after = ([] if ph == 0 else [('wait', 'C')] + self.claimed()) + self.next_info(ph)
        if nK == 1: pre += claim
        pre += self.abuild(nK)
        if nK == 1:
            pre += after + (self.eread() if ph == 0 else [])
            for t in range(4): pre += self.sread(t)
            if ph == 0: pre += self.adma()
            for t in range(4): pre += self.gmad(t)
        x = -1 if nK == 1 else 2
        MW = opt('mergewait', True)
        gaps = [[] for _ in range(4*n)]; tailg = [[] for _ in range(4*n)]
        vmn = lambda i: 4 + (self.NEXTRA if (ph == 0 and x < i <= x + 3) else 0)
        for i in range(n):
            d = self.dma(i & 3, G + 2*((i+4) % nK), sOWN + (i+4)//nK) if i + 4 < n else self.dma(i & 3, G + 2*(i+4-n), sNX + (i+4-n))
            br = self.bread(i + 1); SP = opt('split', 0)
            w = [] if MW else [f's_waitcnt vmcnt({vmn(i)})']
            if SP == 0:
                gaps[4*i] += w + br; tailg[4*i] += [d[0]]; gaps[4*i+1] += [d[1], d[2]]
            elif SP == 1:
                gaps[4*i] += w + br[:2]; tailg[4*i+1] += [('wait', 'B1'), d[0]]; gaps[4*i+2] += [d[1]] + br[2:]; tailg[4*i+2] += [d[0]]; gaps[4*i+3] += [d[2]]
            elif SP == 2:
                gaps[4*i] += w + br[:2]; gaps[4*i+1] += br[2:]; tailg[4*i+1] += [d[0]]; gaps[4*i+2] += [d[1]]; tailg[4*i+2] += [d[0]]; gaps[4*i+3] += [d[2]]
            if i + 1 < n: tailg[4*i+3] += [('wait', 'B1' if SP == 2 else 'B', vmn(i+1) if MW else None)]
        used = lambda g: sum(map(self.cost, gaps[g] + tailg[g]))
        def place(items, g0, g1):
            g = g0
            for it in items:
                while g < g1 and used(g) + self.cost(it) > BUD and used(g) > 1: g += 1
                gaps[g].append(it)
            return g
        DEF = opt('defer', True) and nK > 1
        if nK > 1:
            for t in range(4):
                place(self.sread(t), 4*(n-6+t) + (3 if opt('split', 0) else 2), 4*(n-6+t) + 3)
                place(self.gmad(t), 4*(n-5+t) + 1, 4*(n-5+t) + 3)
        ndef = [0]*4
        for q in range(1, 4):
            g0 = 4*q*nK
            if DEF:
                f3 = self.F(q-1, 3)
                room = [max(0, BUD - used(g0 + k)) for k in range(3)]
                m = min(16, sum(room)); ndef[q-1] = m
                f3 = f3[16-m:]
                for k in range(3):
                    gaps[g0 + k] += f3[:room[k]]; f3 = f3[room[k]:]
            place(self.fin(q-1, ph), g0 + (3 if DEF else 1), 4*(q*nK + nK - 1) + (1 if nK > 1 else 3))
        place(self.fin(3, ph, sPP), 1, 4*(nK - 1) + (1 if nK > 1 else 3))
        if nK > 1:
            if ph == 0:
                g = place(claim + after, 1, 5)
                place(self.eread(), max(g, 5), 7)
                place(self.adma(), 4*x + 3, 4*x + 3)
            else:
                place(claim, 1, 3)
                g1 = 4*(n-6) + (3 if opt('split', 0) else 2)
                keep = gaps[g1]; k0 = [i for i, it in enumerate(keep) if isinstance(it, str) and f'v{VSO}' in it]
                moved = keep[k0[0]:] if k0 else []
                if k0: gaps[g1] = keep[:k0[0]]
                place(after, 5, g1)
                gaps[g1] += moved
        nf0 = [0]*4
        if nK > 1:
            for q in range(4):
                g = 4*(q*nK + nK - 1) + 2
                nf0[q] = max(0, BUD - used(g))
                gaps[g] += self.F(q, 0)[:nf0[q]]
        self.emit([f's_setprio {opt("prioa", 1)}'] + pre + seg(1) + [('wait', 'B', vmn(0) if MW else None)] + ([f's_setprio {opt("prio", 1)}'] if opt("prio", 1) != opt("prioa", 1) else []), lg)
        for i in range(n):
            q, s = divmod(i, nK)
            for k, (t, u) in enumerate(TILES):
                c = f'v[{tile(t,u)}:{tile(t,u)+15}]' if s else '0'
                bb = BR + (i & 1)*8 + u*4
                if 'M' not in opt('drop', ''): a(f'v_mfma_f32_32x32x16_bf16 v[{tile(t,u)}:{tile(t,u)+15}], v[{AR+s*8+t*4}:{AR+s*8+t*4+3}], v[{bb}:{bb+3}], {c}')
                g = 4*i + k
                if k == 3 and s == nK - 1:
                    self.emit([f's_setprio {opt("prio0", 0)}'] + gaps[g] + seg(2+2*q) + self.F(q, 0)[nf0[q]:], lg)
                    if q < 3: self.emit(self.F(q, 1) + self.F(q, 2) + self.F(q, 3)[:16-ndef[q]] + seg(3+2*q) + [f's_setprio {opt("prio", 1)}'], lg)
                else: self.emit(gaps[g], lg)
                self.emit(tailg[g], lg)
        end = [f's_sub_u32 s{sT}, s{sNBs}, s{sCB}', f'v_add_u32 v{VAO}, s{sT}, v{VAO}', f'v_add_u32 v{VYO}, s{sT}, v{VYO}']
        end += self.F(3, 1) + self.areads(0) + self.F(3, 2) + self.areads(1) + self.F(3, 3)
        self.emit(end, lg)
        if SEG:
            a('s_memtime s[94:95]\ns_waitcnt lgkmcnt(0)')
            def acc(d, i, j): a(f's_sub_u32 s67, s{76+2*j}, s{76+2*i}\ns_add_u32 s{d}, s{d}, s67')
            acc(96, 0, 1)
            for q in range(4): acc(97, 1+2*q, 2+2*q)
            for q in range(3): acc(98, 2+2*q, 3+2*q)
            acc(99, 8, 9)
            a(f's_add_u32 s100, s100, {nK}\ns_add_u32 s101, s101, 1')
        assert [x for x in lg.q if x[0] != 'P'] == self.ENTRY, lg.q
        self.inunit = False
        self.dispatch(ph)
    def dispatch(self, ph, check=True):
        if check:
            if ph == 0: self.a(f's_cmp_lg_u32 s{sNPH}, 0\ns_cbranch_scc1 K2_SWITCH')
            else: self.a(f's_cmp_eq_u32 s{sNV}, 0\ns_cbranch_scc1 K2_TAIL')
        self.a(f"""
        s_mov_b32 s{sCB}, s{sNBs}
        s_mov_b32 s{sPP}, s{sCP}
        s_mov_b32 s{sC4}, s{sN4}
        s_mov_b32 s{sCP}, s{sNP}
        s_cmp_eq_u32 s{sNK}, 2
        s_cbranch_scc1 K2_U2{ph}
        s_cmp_eq_u32 s{sNK}, 3
        s_cbranch_scc1 K2_U3{ph}
        s_cmp_eq_u32 s{sNK}, 1
        s_cbranch_scc1 K2_U1{ph}
        s_branch K2_U4{ph}
        """)

    def wload(self, ph, vl16):
        for i in range(20):
            if i % 4 == 0: self.a(f's_mov_b32 s{sT}, {WS_WTAB + ph*20480 + i*1024}')
            self.a(f'buffer_load_dwordx4 v[{WR+4*i}:{WR+3+4*i}], v{vl16}, s[{sWS}:{sWS+3}], s{sT} offen offset:{(i%4)*1024}')

    def sortnodes(self, vL, k, p, x):
        a = self.a
        a(f'''
        s_cmp_eq_u32 s{sR}, 1
        s_cselect_b32 s{sLAST}, s{sFIRST}, 0
        s_cmp_eq_u32 s{sMORE}, 0
        s_cselect_b32 s{sLAST}, s{sLAST}, 0
        s_cmp_eq_u32 s{sLAST}, 0
        s_cbranch_scc1 K2_NOSORT
        v_cndmask_b32 v{k}, 0, v{k}, s[{sEX}:{sEX+1}]
        v_mov_b32 v{p}, v{vL}
        s_mov_b32 s{sT+2}, 0
        ''')
        if True:
            for kk in (4, 3, 2, 1):
                a(f'''
                v_cmp_eq_u32 vcc, {kk}, v{k}
                v_mbcnt_lo_u32_b32 v{x}, vcc_lo, 0
                v_mbcnt_hi_u32_b32 v{x}, vcc_hi, v{x}
                v_add_u32 v{x}, s{sT+2}, v{x}
                v_cndmask_b32 v{p}, v{p}, v{x}, vcc
                s_bcnt1_i32_b64 s{sT+3}, vcc
                s_add_u32 s{sT+2}, s{sT+2}, s{sT+3}
                ''')
        a(f'''
        v_lshlrev_b32 v{p}, 2, v{p}
        ds_permute_b32 v{VTAB}, v{p}, v{VTAB}
        s_waitcnt lgkmcnt(0)
        K2_NOSORT:
        ''')

    def gen(self):
        a = self.a
        vL, vT_, vC, vE, vREM, vOFF = 176, 177, 178, 179, 180, 181
        RK = 40
        NBs = 50
        t0 = 192
        ws = f's[{sWS}:{sWS+3}]'
        def loop(done, body):
            for i in range(U):
                a(f'v_cmp_lt_i32 vcc, {2*i}, v{vREM}\ns_cbranch_vccz {done}\ns_mov_b64 exec, vcc')
                a(body(i))
            a(f'{done}:\ns_mov_b64 exec, -1')
        a('s_cmp_ge_u32 s2, 256\ns_cbranch_scc1 K2_END')
        stamp(a, 0)
        a(f'''
        s_load_dwordx2 s[58:59], s[0:1], 0
        s_load_dwordx2 s[60:61], s[0:1], 72
        s_load_dwordx2 s[62:63], s[0:1], 88
        s_load_dwordx2 s[64:65], s[0:1], 16
        v_lshrrev_b32 v1, 6, v0
        s_mov_b32 s{sB}, s2
        v_readfirstlane_b32 s{sW}, v1
        s_mul_i32 s{sNB}, s2, 625
        s_add_u32 s{sNC}, s{sNB}, {625+15}
        s_add_u32 s{sNB}, s{sNB}, 15
        s_lshr_b32 s{sNB}, s{sNB}, 4
        s_lshr_b32 s{sNC}, s{sNC}, 4
        s_sub_u32 s{sNC}, s{sNC}, s{sNB}
        s_mov_b32 s{sJ0}, 0
        s_mov_b32 s{sFIRST}, 1
        {chr(10).join(f's_mov_b32 s{i}, 0' for i in range(96, 102)) if SEG else ''}
        s_movk_i32 s{s1024}, 1024
        s_lshl_b32 s{sRING}, s{sW}, 13
        s_mov_b32 s{sPROG}, {PROG}
        s_lshl_b32 s{sPROGW}, s{sW}, 2
        s_add_u32 s{sPROGW}, s{sPROGW}, s{sPROG}
        {chr(10).join(f's_add_u32 s{sM0+i}, s{sRING}, {i*2048}' for i in range(4))}
        s_waitcnt lgkmcnt(0)
        ''')
        srd(a, sWS, 62, WS_SIZE); srd(a, sX, 58, N*1024); srd(a, sOUT, 60, N*1024); srd(a, sEA, 64, E*32)
        a('s_sub_u32 s58, s58, 1024\ns_subb_u32 s59, s59, 0'); srd(a, sX2, 58, N*1024 + 1024)
        a(f'''
        K2_WINDOW:
        s_mov_b32 s{sRND}, 0
        s_mov_b32 s{sR}, 1
        K2_LOAD:
        v_mbcnt_lo_u32_b32 v{vL}, -1, 0
        v_mbcnt_hi_u32_b32 v{vL}, -1, v{vL}
        s_lshl_b32 s{sT}, s{sW}, 6
        v_add_u32 v{vT_}, s{sT}, v{vL}
        v_lshrrev_b32 v{vC}, 1, v{vT_}          ; cell
        v_min_u32 v{vC}, {NCH-1}, v{vC}
        v_mul_u32_u24 v1, {TSTR}, v{vC}
        s_lshl_b32 s{sT}, s{sB}, 2
        s_add_u32 s{sT}, s{sT}, {WS_TBL}
        buffer_load_dword v{vE}, v1, {ws}, s{sT} offen
        v_lshlrev_b32 v70, 4, v{vL}
        s_cmp_ge_u32 s{sW}, 5
        s_cbranch_scc1 K2_NOW
        s_lshl_b32 s{sT}, s{sW}, 12
        s_mov_b32 m0, s{sT}
        s_add_u32 s{sT}, s{sT}, {WS_WTAB}
        ''')
        for i in range(4): a(f'buffer_load_dwordx4 v70, {ws}, s{sT} offen offset:{i*1024} lds')
        a('K2_NOW:')
        for t in range(512): assert (t*437) >> 16 == t // 150
        a(f'''
        v_mul_u32_u24 v3, 437, v{vT_}
        v_lshrrev_b32 v3, 16, v3
        v_mul_u32_u24 v3, 150, v3
        v_sub_u32 v3, v{vT_}, v3
        v_mov_b32 v8, -1
        v_mov_b32 v5, 1.0
        v_cmp_gt_u32 vcc, 48, v3
        v_cndmask_b32 v8, v8, 0, vcc
        v_cmp_gt_u32 vcc, 12, v3
        v_cndmask_b32 v8, v8, v5, vcc
        v_lshlrev_b32 v6, 4, v{vT_}
        v_add_u32 v6, {RECBASE}, v6
        v_add_u32 v7, 64800, v6
        v_mov_b32 v9, v8
        v_mov_b32 v10, v8
        v_mov_b32 v11, v8
        v_cmp_gt_u32 vcc, {2*NCH}, v{vT_}
        s_mov_b64 s[{sEX}:{sEX+1}], vcc
        v_cmp_gt_u32 vcc, 450, v{vT_}
        s_mov_b64 exec, vcc
        ''')
        for i in range(13): a(f'ds_write_b128 v{6 + (i//9)}, v[8:11] offset:{(i%9)*7200}')
        a(f'''
        v_cmp_gt_u32 vcc, {150 + (OA+1024)//16}, v{vT_}
        s_cbranch_vccz K2_NOCL
        s_mov_b64 exec, vcc
        ds_write_b128 v7, v[8:11] offset:{4*7200}
        K2_NOCL:
        s_mov_b64 exec, -1
        s_cmp_lg_u32 s{sW}, 0
        s_cbranch_scc1 K2_NOH
        v_mov_b32 v3, 0
        v_mov_b32 v5, -1
        v_lshlrev_b32 v4, 2, v{vL}
        v_add_u32 v4, {HIST}, v4
        s_mov_b64 exec, 0x1ff
        ds_write_b32 v4, v3 offset:{PROG-HIST}
        s_mov_b64 exec, 0xff
        ds_write_b32 v4, v5 offset:{NULLSRC-HIST}
        s_mov_b64 exec, -1
        s_cmp_lg_u32 s{sRND}, 0
        s_cbranch_scc1 K2_NOH
        s_mov_b32 exec_hi, 0xffff
        ds_write_b32 v4, v3
        s_mov_b64 exec, 1
        ds_write_b32 v4, v3 offset:{FLAG-HIST}
        s_mov_b64 exec, -1
        K2_NOH:
        s_waitcnt vmcnt(0)
        ''')
        stamp(a, 1)
        a(f'''
        v_cndmask_b32 v{vE}, 0, v{vE}, s[{sEX}:{sEX+1}]
        v_and_b32 v1, 1, v{vT_}
        v_add_u32 v1, s{sJ0}, v1                ; j0 + sub
        v_lshrrev_b32 v{vREM}, 16, v{vE}
        v_sub_u32 v{vREM}, v{vREM}, v1
        v_and_b32 v{vE}, 0xffff, v{vE}
        v_add_u32 v{vE}, v{vE}, v1
        v_mul_u32_u24 v{vOFF}, {CSTR}, v{vC}
        v_lshl_add_u32 v{vOFF}, v{vE}, 4, v{vOFF}
        v_mul_u32_u24 v{vC}, {CH}, v{vC}
        ''')
        loop('K2_LD_DONE', lambda i: f'buffer_load_dwordx4 v[{4*i}:{4*i+3}], v{vOFF}, {ws}, 0 offen offset:{32*i}')

        a(f'''
        v_add_lshl_u32 v{vE}, v{vE}, v{vC}, 2
        s_mov_b32 s{sT+8}, {WS_RANK}
        v_and_b32 v60, 15, v{vL}                ; i
        v_lshrrev_b32 v61, 5, v{vL}             ; h
        v_bfe_u32 v62, v{vL}, 4, 1
        v_lshrrev_b32 v63, 2, v60
        v_and_b32 v64, 3, v60                   ; c
        v_lshl_add_u32 v65, v61, 3, v63         ; 8h + row
        v_lshlrev_b32 v{VAO}, 5, v65
        v_lshl_add_u32 v{VAO}, v64, 3, v{VAO}
        v_add_u32 v{VAO}, {OA}, v{VAO}
        v_mul_u32_u24 v{VYO}, 192, v62
        v_lshl_add_u32 v{VYO}, v61, 5, v{VYO}
        v_lshrrev_b32 v66, 1, v64
        v_lshl_add_u32 v66, v62, 1, v66         ; chunk (u = 0)
        v_bfe_u32 v67, v63, 1, 1
        v_lshlrev_b32 v67, 2, v67
        v_xor_b32 v66, v66, v67
        v_lshlrev_b32 v66, 4, v66
        v_lshl_add_u32 v66, v65, 7, v66
        v_and_b32 v67, 1, v64
        v_lshl_add_u32 v66, v67, 3, v66
        v_add_u32 v{VB0}, s{sRING}, v66
        v_xor_b32 v{VB1}, 64, v{VB0}
        v_lshrrev_b32 v66, 3, v{vL}
        v_lshlrev_b32 v{VSO}, 2, v66
        v_add_u32 v{VSO}, {OS}, v{VSO}
        v_bfe_u32 v66, v66, 1, 1
        v_lshlrev_b32 v66, 2, v66
        v_and_b32 v67, 7, v{vL}
        v_xor_b32 v66, v66, v67
        v_lshlrev_b32 v{VLG}, 4, v66
        v_lshlrev_b32 v{VL2}, 1, v{vL}
        v_and_b32 v{VH16}, 1, v{vL}
        v_lshlrev_b32 v{VH16}, 4, v{VH16}
        v_lshrrev_b32 v66, 1, v{vL}
        v_lshlrev_b32 v66, 5, v66
        v_add_u32 v{VEO}, {OA}, v66
        v_mov_b32 v{t0+9}, 1
        s_waitcnt lgkmcnt(0)
        s_barrier
        ''')
        for i in range(20): a(f'ds_read_b128 v[{WR+4*i}:{WR+4*i+3}], v70 offset:{i*1024}')
        a(f'''
        s_cmp_lg_u32 s{sRND}, 0
        s_cbranch_scc1 K2_RK_LOAD
        v_cmp_lt_i32 vcc, {2*U}, v{vREM}
        s_cbranch_vccz K2_NOMORE
        v_mov_b32 v61, {FLAG}
        ds_write_b32 v61, v{t0+9}
        K2_NOMORE:
        s_mov_b32 s{sT}, {HIST}
        s_movk_i32 s{sT+1}, {NSTR}
        v_mov_b32 v{t0+10}, {RECBASE}
        s_waitcnt vmcnt(0)
        ''')
        stamp(a, 2)
        def prep(i):
            return (f'v_mad_u32_u24 v{NBs+i}, v{NBs+i}, s{sT+1}, v{t0+10}\nv_bfe_u32 v{60+i}, v{4*i+3}, 14, 11\n'
                    f'v_add_lshl_u32 v{60+i}, v{60+i}, v{vC}, 5\nv_and_b32 v{4*i+3}, 0x3fff, v{4*i+3}')
        loop('K2_RK_A', lambda i: f'v_lshrrev_b32 v{NBs+i}, 25, v{4*i+3}\nv_lshl_add_u32 v{RK+i}, v{NBs+i}, 2, s{sT}\nds_add_rtn_u32 v{RK+i}, v{RK+i}, v{t0+9}\n' + prep(i))
        a(f's_branch K2_RK_DONE\nK2_RK_LOAD:\ns_movk_i32 s{sT+1}, {NSTR}\nv_mov_b32 v{t0+10}, {RECBASE}\ns_waitcnt vmcnt(0)')
        loop('K2_RK_B', lambda i: f'v_lshrrev_b32 v{NBs+i}, 25, v{4*i+3}\nbuffer_load_dword v{RK+i}, v{vE}, {ws}, s{sT+8} offen offset:{8*i}\n' + prep(i))
        a(f'''
        s_waitcnt vmcnt(0)
        K2_RK_DONE:
        s_mul_i32 s{sT+9}, s{sRND}, 48
        s_waitcnt lgkmcnt(0)
        ''')
        def scatter(i, rr, base):
            return f'''
            v_lshl_add_u32 v{t0+2}, v{rr}, 5, v{base}
            v_lshl_add_u32 v{t0+3}, v{rr}, 2, v{base}
            v_and_b32 v{t0+4}, 7, v{rr}
            v_add_lshl_u32 v{t0+4}, v{t0+4}, v{rr}, 1
            v_bfe_u32 v{t0+1}, v{rr}, 3, 1
            v_mad_i32_i24 v{t0+4}, v{t0+1}, -14, v{t0+4}
            v_add_u32 v{t0+4}, v{t0+4}, v{base}
            ds_write_b32 v{t0+2}, v{60+i} offset:{OA}
            ds_write2_b32 v{t0+3}, v{4*i}, v{4*i+1} offset0:48 offset1:96
            ds_write_b32 v{t0+3}, v{4*i+2} offset:576
            ds_write_b16 v{t0+4}, v{4*i+3} offset:{OS}
            '''
        for i in range(U):
            nx = self.lab('sc')
            a(f'''
            v_cmp_lt_i32 vcc, {2*i}, v{vREM}
            s_cbranch_vccz K2_SC_DONE
            v_subrev_u32 v{t0}, s{sT+9}, v{RK+i}
            v_cmp_gt_u32 s[{sEX}:{sEX+1}], 48, v{t0}
            s_and_b64 exec, vcc, s[{sEX}:{sEX+1}]
            s_cbranch_execz {nx}
            {scatter(i, t0, NBs+i)}
            {nx}:
            s_mov_b64 exec, -1
            ''')
        d = t0 + 1; k = t0 + 2; e = t0 + 3; p = t0 + 4; x = t0 + 5; pl = t0 + 6
        a(f'''
        K2_SC_DONE:
        v_lshlrev_b32 v{t0}, 2, v{vL}
        v_add_u32 v{t0}, {HIST}, v{t0}
        v_mov_b32 v{t0+8}, {FLAG}
        v_mov_b32 v{pl}, 0
        s_movk_i32 s{sLIM}, 48
        s_waitcnt lgkmcnt(0)
        s_barrier
        ds_read_b32 v{d}, v{t0}
        ds_read_b32 v{t0+8}, v{t0+8}
        v_cmp_gt_u32 s[{sEX}:{sEX+1}], s{sNC}, v{vL}
        v_mad_u32_u24 v{e}, v{vL}, s{sT+1}, v{t0+10}
        v_lshl_or_b32 v{e}, v{vL}, 21, v{e}
        s_waitcnt lgkmcnt(0)
        v_cndmask_b32 v{d}, 0, v{d}, s[{sEX}:{sEX+1}]
        v_readfirstlane_b32 s{sMORE}, v{t0+8}
        v_cmp_lt_u32 vcc, 48, v{d}
        s_cbranch_vccnz K2_BIG
        K2_TOK:
        v_subrev_u32 v{k}, s{sT+9}, v{d}
        v_max_i32 v{k}, 1, v{k}
        v_min_i32 v{k}, s{sLIM}, v{k}
        v_add_u32 v{k}, 15, v{k}
        v_lshrrev_b32 v{k}, 4, v{k}             ; K-steps
        v_lshl_or_b32 v{e}, v{k}, 18, v{e}
        v_or_b32 v{e}, v{e}, v{pl}
        v_mov_b32 v{x}, {NULLBASE | (1 << 18)}
        v_cndmask_b32 v{VTAB}, v{x}, v{e}, s[{sEX}:{sEX+1}]
''')
        if opt('sort', False): self.sortnodes(vL, k, p, x)
        o = Asm(); b = a; a = o
        a(f'''
        K2_BIG:
        s_cmp_lg_u32 s{sRND}, 0
        s_cbranch_scc1 K2_TOK
        s_mov_b64 s[{sT+4}:{sT+5}], vcc
        s_bcnt1_i32_b64 s{sT+2}, vcc
        s_cmp_eq_u32 s{sNC}, 39
        s_cselect_b32 s{sT+3}, 5, 2
        s_cmp_gt_u32 s{sT+2}, s{sT+3}
        s_cbranch_scc1 K2_SLOW
        v_cmp_lt_u32 vcc, 64, v{d}
        s_cbranch_vccnz K2_SLOW
        v_mbcnt_lo_u32_b32 v{x}, s{sT+4}, 0
        v_mbcnt_hi_u32_b32 v{x}, s{sT+5}, v{x}
        v_lshlrev_b32 v{pl}, 27, v{x}
        v_cndmask_b32 v{pl}, 0, v{pl}, s[{sT+4}:{sT+5}]
        s_movk_i32 s{sLIM}, 64
        v_cmp_le_u32 vcc, 2, v{x}
        v_mov_b32 v{k}, {POOL}
        v_mov_b32 v{p}, {POOL - NSTR - (2 << 22)}
        v_cndmask_b32 v{k}, v{k}, v{p}, vcc
        v_lshl_add_u32 v{x}, v{x}, 22, v{k}
        v_mov_b32 v{t0+11}, v{d}
        v_mov_b32 v{t0+12}, v{e}
        v_mov_b32 v{t0+13}, v{x}
        s_mov_b32 s{sT+2}, {(1 << 24) // NSTR + 1}
        ''')
        for nd in range(40): assert ((nd*NSTR) * ((1 << 24)//NSTR + 1)) >> 24 == nd
        for i in range(U):
            nx = self.lab('ov')
            a(f'''
            v_cmp_lt_i32 vcc, {2*i}, v{vREM}
            s_cbranch_vccz K2_OV_DONE
            v_subrev_u32 v{t0}, {RECBASE}, v{NBs+i}
            v_mul_hi_u32_u24 v{t0+1}, s{sT+2}, v{t0}
            v_mul_u32_u24 v{t0}, s{sT+2}, v{t0}
            v_alignbit_b32 v{t0}, v{t0+1}, v{t0}, 24
            v_lshlrev_b32 v{t0}, 2, v{t0}
            ds_bpermute_b32 v{t0+7}, v{t0}, v{t0+13}
            v_subrev_u32 v{t0}, 48, v{RK+i}
            v_cmp_gt_u32 s[{sT+4}:{sT+5}], 16, v{t0}
            s_waitcnt lgkmcnt(0)
            s_and_b64 exec, vcc, s[{sT+4}:{sT+5}]
            s_cbranch_execz {nx}
            v_lshrrev_b32 v{t0+1}, 18, v{t0+7}
            v_add_u32 v{t0}, v{t0}, v{t0+1}
            v_and_b32 v{t0+7}, 0x3ffff, v{t0+7}
            {scatter(i, t0, t0+7)}
            {nx}:
            s_mov_b64 exec, -1
            ''')
        a(f'''
        K2_OV_DONE:
        v_mov_b32 v{d}, v{t0+11}
        v_mov_b32 v{e}, v{t0+12}
        s_waitcnt lgkmcnt(0)
        s_barrier
        s_branch K2_TOK
        K2_SLOW:
        v_mov_b32 v{x}, v{d}
        ''')
        scan(a, x, 'v_max_u32')
        for dd in range(48, 512*U + 48): assert (dd * 43691) >> 21 == dd // 48
        a(f'''
        v_readlane_b32 s{sR}, v{x}, 63
        s_add_u32 s{sR}, s{sR}, 47
        s_mul_i32 s{sR}, s{sR}, 43691
        s_lshr_b32 s{sR}, s{sR}, 21
        ''')
        for i in range(U):
            a(f'v_cmp_lt_i32 vcc, {2*i}, v{vREM}\ns_cbranch_vccz K2_SV_DONE\ns_mov_b64 exec, vcc')
            a(f'buffer_store_dword v{RK+i}, v{vE}, {ws}, s{sT+8} offen offset:{8*i}')
        a('K2_SV_DONE:\ns_mov_b64 exec, -1\ns_branch K2_TOK')
        self.ool(o.text()); a = b
        for q in range(4): a(f's_movk_i32 s{sOWN+q}, {q*256}')
        a(f'''
        s_mov_b32 s{sJ}, 0
        s_mov_b32 s{sNPH}, 0
        s_mov_b32 s{sNP}, 0
        s_mov_b32 s{sNV}, 1
        s_mov_b32 s{sCP}, 0
        s_mov_b32 s{sT}, s{sW}
        ''')
        lg = LG(a)
        self.emit(self.next_info(0), lg)
        stamp(a, 3)
        pre = self.eread()
        for t in range(4): pre += self.sread(t)
        pre += self.adma()
        for t in range(4): pre += self.gmad(t)
        for t in range(4): pre += self.dma(t, G + 2*t, sNX + t)
        pre += [f'v_add_u32 v{VAO}, s{sNBs}, v{VAO}', f'v_add_u32 v{VYO}, s{sNBs}, v{VYO}', 's_waitcnt vmcnt(6)']
        self.emit(pre, lg)
        stamp(a, 4)
        self.emit(self.bread(0) + self.areads(0) + self.areads(1), lg)
        self.dispatch(0, check=False)
        for ph in range(2):
            for nK in (2, 3): self.unit(nK, ph)
        for ph in range(2):
            for nK in (1, 4): self.unit(nK, ph)
        a('K2_SWITCH:')
        stamp(a, 5)
        self.emit(self.fin(3, 0), LG(a))
        a(f's_cmp_eq_u32 s{sNV}, 0\ns_cbranch_scc1 K2_TAIL2\nv_lshlrev_b32 v{VT0}, 3, v{VL2}\nv_add_u32 v{VPA}, s{sNP}, v{VL2}')
        self.wload(1, VT0)
        for q in range(4): a(f's_movk_i32 s{sOWN+q}, {q*256+128}')
        a(f's_cmp_lg_u32 s{sNK}, 1\ns_cbranch_scc1 K2_SW2\ns_waitcnt vmcnt(0)\nK2_SW2:')
        stamp(a, 6)
        self.dispatch(1, check=False)
        for t in self.outline: a(t)
        self.tail()
        a('K2_END:\ns_endpgm')
        return a.lines, 256

    def tail(self):
        a = self.a
        ws = f's[{sWS}:{sWS+3}]'
        vP0 = 222; vP1 = 223; vS = 226; vSP = 227; vRow = 228; vL16 = 229
        OP = 176
        def sload():
            a(f'v_lshlrev_b32 v{vL16}, 3, v{VL2}\ns_mul_i32 s{sT}, s{sW}, {20*1024}\ns_add_u32 s{sT}, s{sT}, {WS_STAB}')
            for f in range(20):
                a(f'buffer_load_dwordx4 v[{WR+4*f}:{WR+4*f+3}], v{vL16}, {ws}, s{sT} offen offset:{(f%4)*1024}')
                if f % 4 == 3 and f < 19: a(f's_add_u32 s{sT}, s{sT}, 4096')
        a('K2_TAIL2:')
        sload()
        a('s_branch K2_TAIL3\nK2_TAIL:')
        stamp(a, 7)
        sload()
        self.emit(self.fin(3, 1), LG(a))
        a(f"""
        K2_TAIL3:
        s_mul_i32 s{sT+1}, s{sW}, {8192+32}
        v_add_u32 v{vRow}, s{sT+1}, v{VL2}
        s_waitcnt vmcnt(20)
        """)
        rows = [(0,2),(5,8),(3,6),(9,1),(4,7),(10,None)]
        dump = []
        for j in range(5):
            for k, (lo, hi) in enumerate(rows):
                dump.append(f'ds_write_b16 v{vRow}, v{P0+6*j+k} offset:{j*1536 + lo*128}')
                if hi is not None: dump.append(f'ds_write_b16_d16_hi v{vRow}, v{P0+6*j+k} offset:{j*1536 + hi*128}')
        for x in dump: a(x)
        a(f"""
        v_bfe_u32 v48, v{VL2}, 1, 4             ; n & 15
        v_lshlrev_b32 v49, 2, v48
        v_add_u32 v50, 64, v49
        v_add_u32 v51, 128, v49
        ds_bpermute_b32 v{vP1}, v49, v{VTAB}
        ds_bpermute_b32 v{vP1+1}, v50, v{VTAB}
        ds_bpermute_b32 v{vP1+2}, v51, v{VTAB}
        v_lshrrev_b32 v49, 5, v{VL2}            ; slab
        v_and_b32 v50, 7, v48
        v_mul_u32_u24 v50, {8192+32}, v50
        v_lshrrev_b32 v51, 3, v48
        v_mul_u32_u24 v51, 1536, v51
        v_add_u32 v50, v50, v51
        v_lshlrev_b32 v52, 4, v49               ; slab*16
        v_add_u32 v{vP0}, v50, v52
        s_lshl_b32 s{sT+2}, s{sW}, 5
        v_lshl_add_u32 v51, v49, 3, s{sT+2}
        v_bfe_u32 v53, v48, 2, 1
        v_lshl_add_u32 v51, v53, 4, v51
        v_add_u32 v{vS}, v50, v51
        s_sub_u32 s{sT+2}, s{sNC}, 32
        v_cmp_gt_u32 s[{sEX}:{sEX+1}], s{sT+2}, v48
        s_bfe_u32 s{sT+2}, s{sW}, 0x10002
        s_lshl_b32 s{sT+2}, s{sT+2}, 4
        s_add_u32 s{sT+1}, s{sT+1}, s{sT+2}
        s_add_u32 s{sRND}, s{sRND}, 1
        s_cmp_ge_u32 s{sRND}, s{sR}
        s_cselect_b32 s{sLAST}, 1, 0
        s_cmp_eq_u32 s{sMORE}, 0
        s_cselect_b32 s{sLAST}, s{sLAST}, 0
        s_and_b32 s{sT+6}, s{sLAST}, s{sFIRST}
        s_mov_b32 s{sT+5}, 0xbfb8aa3b           ; -log2(e)
        v_lshlrev_b32 v53, 5, v48
        s_waitcnt lgkmcnt(0)
        v_add_u32 v{vRow}, s{sT+1}, v{vL16}
        """)
        for g in range(3):
            a(f'v_and_b32 v51, 0x3ffff, v{vP1+g}\nv_sub_u32 v50, v53, v51\nv_and_b32 v50, 0xff, v50\nv_add3_u32 v{vP1+g}, v50, v51, v52')
        stamp(a, 8); a('s_barrier'); stamp(a, 9)
        a(f's_cmp_eq_u32 s{sT+6}, 0\ns_cbranch_scc1 K2_MULTI')
        steps = []
        for g in range(3):
            for ph in range(2):
                for rs in range(2):
                    for hh in range(2): steps.append((g, 0, ph*4 + rs*2 + hh, ph, rs, hh))
            for ph in range(2):
                for path in range(3):
                    for hh in range(2):
                        for j in range(3): steps.append((g, 1+j, 8 + ph*6 + path*2 + hh, ph, 2 + 3*j + path, hh))
        NB = 12; D = 10
        def epi(g):
            c = 16*g; o = OP + 8*(g & 1); s = []; tp = 200
            for r in range(4): s.append(f'v_mul_f32 v{tp+r}, s{sT+5}, v{c+r}')
            for r in range(4): s.append(f'v_exp_f32 v{tp+r}, v{tp+r}')
            for r in range(4): s.append(f'v_add_f32 v{tp+r}, 1.0, v{tp+r}')
            for r in range(4): s.append(f'v_rcp_f32 v{tp+r}, v{tp+r}')
            s += [f'v_cvt_pk_bf16_f32 v{o}, v{c}, v{c+1}', f'v_cvt_pk_bf16_f32 v{o+1}, v{c+2}, v{c+3}']
            for j in range(3):
                for r in range(4): s.append(f'v_mul_f32 v{c+4+4*j+r}, v{c+4+4*j+r}, v{tp+r}')
                s += [f'v_cvt_pk_bf16_f32 v{o+2+2*j}, v{c+4+4*j}, v{c+5+4*j}', f'v_cvt_pk_bf16_f32 v{o+3+2*j}, v{c+6+4*j}, v{c+7+4*j}']
            return s
        def stage(g):
            o = OP + 8*(g & 1)
            w = [(f'ds_write_b64 v{vS}, v[{o+2*rt}:{o+1+2*rt}] offset:{g*3072 + rt*256}', [(f'w{g}', False)]) for rt in range(4)]
            return w if g < 2 else [f's_mov_b64 exec, s[{sEX}:{sEX+1}]'] + w + ['s_mov_b64 exec, -1']
        def rowread(g):
            return [(f'ds_read_b128 v[{192+4*(j&1)}:{195+4*(j&1)}], v{vRow} offset:{j*1536}', [(f'r{g}', False)]) for j in ((2*g, 2*g+1) if g < 2 else (4,))]
        def rowstore(g):
            s = [('wait', f'r{g}')]
            for j in ((2*g, 2*g+1) if g < 2 else (4,)):
                s = [f's_add_u32 s{sT+3}, s{sW}, {8*j}\nv_readlane_b32 s{sOWN+j}, v{VTAB}, s{sT+3}\ns_nop 0\ns_bfe_u32 s{sOWN+j}, s{sOWN+j}, 0x60015\ns_add_u32 s{sOWN+j}, s{sOWN+j}, s{sNB}\ns_lshl_b32 s{sOWN+j}, s{sOWN+j}, 10'] + s
                s += [f'buffer_store_dwordx4 v[{192+4*(j&1)}:{195+4*(j&1)}], v{vL16}, s[{sOUT}:{sOUT+3}], s{sOWN+j} offen {mod("outst","sc1")}']
            return s
        def gemm(lg, extra):
            def rd(k):
                g, rt, f, ph, row, hh = steps[k]
                b = 48 + 4*(k % NB)
                ad = f'v{vP1+g} offset:{row*128 + hh*64}' if ph else f'v{vP0} offset:{g*3072 + row*128 + hh*64}'
                self.emit([(f'ds_read_b128 v[{b}:{b+3}], {ad}', [(f'k{k}', False)])], lg)
            for k in range(D): rd(k)
            seen = set(); started = set()
            for k in range(len(steps)):
                g, rt, f, ph, row, hh = steps[k]
                if k + D < len(steps): rd(k + D)
                vm = None
                if f not in seen: seen.add(f); vm = 19 - f
                self.emit([('wait', f'k{k}', vm)], lg)
                b = 48 + 4*(k % NB); c = 16*g + 4*rt
                cin = f'v[{c}:{c+3}]' if c in started else '0'; started.add(c)
                a(f'v_mfma_f32_16x16x32_bf16 v[{c}:{c+3}], v[{WR+4*f}:{WR+4*f+3}], v[{b}:{b+3}], {cin}')
                self.emit(extra.get(k, []), lg)
        lg = LG(a); extra = {}
        for g in range(2):
            e = epi(g); k0 = 44*(g+1) + 3
            for i, x in enumerate(e): extra.setdefault(k0 + min(i, 40), []).append(x)
        extra.setdefault(44 + 2, []).insert(0, 's_barrier')
        extra[83] = stage(0)
        extra[95] = [('wait', 'w0'), 's_barrier'] + rowread(0) + extra[95]
        extra[107] += rowstore(0)
        extra[127] = stage(1)
        gemm(lg, extra)
        stamp(a, 10)
        self.emit(epi(2) + [('wait', 'w1'), 's_barrier'] + rowread(1) + stage(2) + rowstore(1) + [('wait', 'w2'), 's_barrier'], lg)
        a(f'K2_LASTROW:\ns_add_u32 s{sT+1}, s{sW}, 32\ns_cmp_ge_u32 s{sT+1}, s{sNC}\ns_cbranch_scc1 K2_FIN')
        self.emit(rowread(2) + rowstore(2), lg)
        a('K2_FIN:')
        if PROF:
            stamp(a, 11); a('s_waitcnt vmcnt(0)'); stamp(a, 12); stamp_out(a, 13, 1, sW, sB, sWS)
        a('s_branch K2_END')
        a('K2_MULTI:')
        lg = LG(a)
        gemm(lg, {})
        a(f"""
        s_lshl_b32 s{sT+2}, s{sB}, 9
        s_lshl_b32 s{sT+3}, s{sW}, 6
        s_add_u32 s{sT+2}, s{sT+2}, s{sT+3}
        s_mul_i32 s{sT+2}, s{sT+2}, 192
        s_add_u32 s{sT+2}, s{sT+2}, {WS_ACC}
        v_mul_u32_u24 v{vSP}, 96, v{VL2}        ; lane*192
        s_cmp_lg_u32 s{sFIRST}, 0
        s_cbranch_scc1 K2_NOACC
        """)
        for i in range(12): a(f'buffer_load_dwordx4 v[{48+4*i}:{51+4*i}], v{vSP}, {ws}, s{sT+2} offen offset:{16*i}')
        a('s_waitcnt vmcnt(0)')
        for i in range(48): a(f'v_add_f32 v{i}, v{i}, v{48+i}')
        a(f'K2_NOACC:\ns_barrier\ns_cmp_eq_u32 s{sLAST}, 0\ns_cbranch_scc1 K2_SPILL')
        for g in range(2):
            self.emit(epi(g) + stage(g) + [('wait', f'w{g}'), 's_barrier'] + rowread(g) + rowstore(g), lg)
        self.emit(epi(2) + stage(2) + [('wait', 'w2'), 's_barrier'], lg)
        a('s_branch K2_LASTROW\nK2_SPILL:')
        for i in range(12): a(f'buffer_store_dwordx4 v[{4*i}:{4*i+3}], v{vSP}, {ws}, s{sT+2} offen offset:{16*i}')
        a(f"""
        s_mov_b32 s{sFIRST}, 0
        s_waitcnt vmcnt(0)
        s_cmp_lt_u32 s{sRND}, s{sR}
        s_cbranch_scc1 K2_LOAD
        s_add_u32 s{sJ0}, s{sJ0}, {2*U}
        s_branch K2_WINDOW
        """)

HEADER = '''; Kernarg layout for this problem (96 bytes, ptrs only, base s[0:1]):
'''
def kd(name, vgpr):
    return f'''.amdhsa_kernel {name}
  .amdhsa_next_free_vgpr {vgpr}
  .amdhsa_next_free_sgpr {102 if PROF else 76}
  .amdhsa_accum_offset {(vgpr+3)//4*4}
  .amdhsa_group_segment_fixed_size 0
  .amdhsa_kernarg_size 96
  .amdhsa_user_sgpr_count 2
  .amdhsa_user_sgpr_kernarg_segment_ptr 1
  .amdhsa_system_sgpr_workgroup_id_x 1
  .amdhsa_float_denorm_mode_32 3
.end_amdhsa_kernel
'''
def main():
    l1, v1 = k1(); l2, v2 = K2().gen()
    l1 = fix_hazards(l1); l2 = fix_hazards(l2)
    s = HEADER
    s += f'; @launch kernel=tp_sort_kernel grid=({NCH},1,1) block=({K1_T},1,1) lds={K1_LDS}\n'
    s += f'; @launch kernel=tp_main_kernel grid=(256,1,1) block=(512,1,1) lds={K2_LDS}\n'
    for i in range(opt('nempty', 0)): s += '; @launch kernel=tp_empty_kernel grid=(1,1,1) block=(64,1,1) lds=0\n'
    s += '.amdgcn_target "amdgcn-amd-amdhsa--gfx950"\n.text\n'
    if opt('nempty', 0): s += '.globl tp_empty_kernel\n.p2align 8\n.type tp_empty_kernel,@function\ntp_empty_kernel:\n    s_endpgm\n'
    for name, l in (('tp_sort_kernel', l1), ('tp_main_kernel', l2)):
        s += f'.globl {name}\n.p2align 8\n.type {name},@function\n{name}:\n'
        s += '\n'.join((x if x.endswith(':') else '    ' + x) for x in l) + '\n'
    s += '.section .rodata,"a"\n.p2align 6\n' + kd('tp_sort_kernel', v1) + '.p2align 6\n' + kd('tp_main_kernel', v2) + ('.p2align 6\n' + kd('tp_empty_kernel', 8) if opt('nempty', 0) else '')
    out = sys.argv[1] if len(sys.argv) > 1 else f'/code/{NAME}.s'
    open(out, 'w').write(s)
    print('wrote', out, len(s), 'bytes')
main()
```

```python
import sys, os
sys.path.insert(0, os.path.dirname(os.path.abspath(__file__)))
from asmlib import Asm, fix_hazards

NAME = 'standalone__tensor_product_equiv_equiformer__graph'
N = 10000; E = 320000
NCH = 250; CH = E // NCH
CSTR = CH * 16 + 128
TSTR = 1024 + 128
WS_REC = 0
WS_TBL = 0x0600000
WS_STAB = 0x06A0000
WS_WTAB = 0x06C8000
WS_RANK = 0x0700000
WS_PROF = 0x0900000
WS_ACC = 0x0A00000
WS_SIZE = 0x2400000
assert NCH * CSTR <= WS_TBL and WS_TBL + NCH * TSTR <= WS_STAB and WS_ACC + 256*512*192 <= WS_SIZE
BMUL = 429497
for d in range(N): assert ((d * BMUL) & 0xffffffff) >> 24 == (d * 16) // 625

OPT = dict(a.split('=') for a in sys.argv[2:]) if len(sys.argv) > 2 else {}
def opt(k, d): return type(d)(OPT.get(k, d)) if not isinstance(d, bool) else bool(int(OPT.get(k, d)))
def mod(k, d): return opt(k, d).replace('_', ' ')

PROF = opt('prof', False)
FUSE = opt('fuse', True)
TROW = 2048 + 128
assert WS_TBL + 256 * TROW <= WS_STAB2 if 'WS_STAB2' in globals() else True
SEG = opt('seg', False)
def seg(i): return [f's_memtime s[{76+2*i}:{77+2*i}]'] if SEG else []
def stamp(a, i):
    if PROF and not SEG: a(f'{"s_memtime" if opt("cyc", False) else "s_memrealtime"} s[{76+2*i}:{77+2*i}]')
def stamp_out(a, n, kern, swave, swg, srd_s):
    if not PROF: return
    if opt('dbgout', -1) >= 0:
        l = f'DBG_{kern}'
        a(f's_cmp_lg_u32 s{swg}, {opt("dbgout", -1)}\ns_cbranch_scc1 {l}\ns_cmp_lg_u32 s{swave}, 0\ns_cbranch_scc1 {l}')
        a(f's_load_dwordx2 s[58:59], s[0:1], 80\ns_waitcnt lgkmcnt(0)\ns_add_u32 s58, s58, {512*(1-kern)*opt("dbgk1", 0)}\ns_addc_u32 s59, s59, 0')
        srd(a, 60, 58, 256)
        a('s_mov_b64 exec, 1\nv_mov_b32 v1, 0')
        for i, o in ([(0, 0), (5, 14), (2, 15)] if kern == 0 else [(i, 1+i) for i in range(13)]):
            a(f'v_mov_b32 v2, s{76+2*i}\nbuffer_store_dword v2, v1, s[60:63], 0 offen offset:{4*o}')
        a(f's_mov_b64 exec, -1\n{l}:')
        return
    a('s_waitcnt lgkmcnt(0)')
    a(f's_lshl_b32 s67, s{swg}, 4\ns_add_u32 s67, s67, s{swave}\ns_lshl_b32 s67, s67, 6\ns_add_u32 s67, s67, {WS_PROF + kern*256*16*64}')
    a('s_mov_b64 exec, 1\nv_mov_b32 v1, 0')
    for i in range(n):
        a(f'v_mov_b32 v2, s{76+2*i if not SEG else 96+min(i,5)}\nbuffer_store_dword v2, v1, s[{srd_s}:{srd_s+3}], s67 offen offset:{4*i}')
    a('s_mov_b64 exec, -1')

def srd(a, s, ptr, nbytes):
    a(f's_mov_b32 s{s}, s{ptr}\ns_and_b32 s{s+1}, s{ptr+1}, 0xffff\ns_mov_b32 s{s+2}, {nbytes}\ns_mov_b32 s{s+3}, 0x20000')

def scan(a, v, op='v_add_u32'):
    for sh in (1, 2, 4, 8):
        a(f'{op}_dpp v{v}, v{v}, v{v} row_shr:{sh} row_mask:0xf bank_mask:0xf bound_ctrl:0')
    a(f'{op}_dpp v{v}, v{v}, v{v} row_bcast:15 row_mask:0xa bank_mask:0xf')
    a(f'{op}_dpp v{v}, v{v}, v{v} row_bcast:31 row_mask:0xc bank_mask:0xf')

K1_T = CH // 4
K1_LDS = 2048 + CH * 16
def weight_loads(a):
    a(f'''
    v_and_b32 v1, 15, v8
    v_lshrrev_b32 v3, 4, v8
    s_cmp_ge_u32 s2, 160
    s_cbranch_scc1 K1_WT
    s_cmp_ge_u32 s2, 64
    s_cbranch_scc1 K1_S1
    s_lshr_b32 s24, s2, 3
    s_and_b32 s25, s2, 7
    s_lshr_b32 s26, s25, 2
    s_bfe_u32 s27, s25, 0x10001
    s_and_b32 s28, s25, 1
    ''')
    srd(a, 16, 46, 256*128*2)
    a(f'''
    s_branch K1_SC
    K1_S1:
    ; S1: g2 = g-64; w = g2/12, f2 = g2%12 : ph = f2/6, path = (f2%6)>>1, hh = f2&1
    s_sub_u32 s29, s2, 64
    s_mul_i32 s24, s29, 43
    s_lshr_b32 s24, s24, 9
    s_mul_i32 s25, s24, 12
    s_sub_u32 s25, s29, s25
    s_cmp_ge_u32 s25, 6
    s_cselect_b32 s26, 1, 0
    s_mul_i32 s27, s26, 6
    s_sub_u32 s27, s25, s27
    s_lshr_b32 s27, s27, 1
    s_and_b32 s28, s25, 1
    s_add_u32 s25, s25, 8
    ''')
    for g2 in range(96): assert (g2*43) >> 9 == g2 // 12
    srd(a, 16, 48, 384*128*2)
    a(f'''
    K1_SC:
    s_lshl_b32 s27, s27, 7
    s_lshl_b32 s26, s26, 6
    s_lshl_b32 s28, s28, 5
    s_add_u32 s27, s27, s26
    s_add_u32 s27, s27, s28
    s_lshl_b32 s27, s27, 8
    s_lshl_b32 s26, s24, 5
    s_add_u32 s27, s27, s26
    v_lshlrev_b32 v3, 11, v3
    v_lshl_add_u32 v3, v1, 1, v3
    ''')
    for e in range(8): a(f'buffer_load_ushort v{64+e}, v3, s[16:19], s27 offen offset:{e*256}')
    a(f'''
    s_mul_i32 s24, s24, 20
    s_add_u32 s24, s24, s25
    s_lshl_b32 s24, s24, 10
    s_add_u32 s24, s24, {WS_STAB}
    s_branch K1_GO
    K1_WT:
    ; W (fp32): g3 = g-160; ph = g3/20, i = g3%20 : p = i>>2, u = (i>>1)&1, rq = i&1
    s_sub_u32 s24, s2, 160
    s_cmp_ge_u32 s24, 20
    s_cselect_b32 s26, 1, 0
    s_mul_i32 s25, s26, 20
    s_sub_u32 s25, s24, s25
    s_lshr_b32 s27, s25, 2
    s_bfe_u32 s28, s25, 0x10001
    s_and_b32 s25, s25, 1
    s_mul_i32 s25, s25, {8*1280}
    s_lshl_b32 s27, s27, 8
    s_lshl_b32 s26, s26, 7
    s_lshl_b32 s28, s28, 6
    s_add_u32 s27, s27, s26
    s_add_u32 s27, s27, s28
    s_add_u32 s27, s27, s25
    ''')
    srd(a, 16, 44, 16*640*2)
    a(f'''
    v_and_b32 v1, 31, v8
    v_lshrrev_b32 v3, 5, v8
    v_mul_u32_u24 v3, {4*1280}, v3
    v_lshl_add_u32 v3, v1, 1, v3
    v_mov_b32 v64, 0
    v_mov_b32 v66, 0
    v_mov_b32 v68, 0
    v_mov_b32 v70, 0
    ''')
    for r in range(4): a(f'buffer_load_ushort v{65+2*r}, v3, s[16:19], s27 offen offset:{r*1280}')
    a(f'''
    s_lshl_b32 s24, s24, 10
    s_add_u32 s24, s24, {WS_WTAB}
    ''')

def sort_rank(a):
    for j in range(4):
        a(f'v_mul_u32_u24 v{28+j}, s58, v{12+j}\nv_lshrrev_b32 v{28+j}, 24, v{28+j}\nv_lshlrev_b32 v{32+j}, 2, v{28+j}\nds_add_rtn_u32 v{36+j}, v{32+j}, v7')
    for j in range(4):
        a(f'v_mad_u32_u24 v{28+j}, v{28+j}, s59, 15\nv_lshrrev_b32 v{28+j}, 4, v{28+j}\nv_sub_u32 v{28+j}, v{12+j}, v{28+j}')
        a(f'v_add_u32 v{12+j}, {j}, v2\nv_lshlrev_b32 v{12+j}, 14, v{12+j}\nv_lshl_or_b32 v{28+j}, v{28+j}, 25, v{12+j}')
    a(f'''
    s_waitcnt lgkmcnt(0)
    s_barrier
    ds_read_b128 v[40:43], v9
    s_waitcnt lgkmcnt(0)
    v_add_u32 v45, v40, v41
    v_add_u32 v46, v45, v42
    v_add_u32 v47, v46, v43
    v_mov_b32 v48, v47
    ''')
    scan(a, 48)
    a(f'''
    v_sub_u32 v48, v48, v47                 ; exclusive
    v_add_u32 v49, v48, v40
    v_add_u32 v50, v48, v45
    v_add_u32 v51, v48, v46
    ds_write_b128 v9, v[48:51] offset:1024
''')

def sort_emit(a, st):
    H = lambda d, s: f'v_and_b32 v{d}, 0xffff0000, v{s}'
    L = lambda d, s: f'v_lshlrev_b32 v{d}, 16, v{s}'
    ys = [(L,20),(H,20),(L,21),(H,21),(L,22),(H,22),(L,23),(H,23),(L,24),(H,24),(L,25),(H,25)]
    for j in range(4):
        for c in range(3):
            f, s = ys[3*j+c]; a(f(40+4*j+c, s))
        a(f'v_or_b32 v{43+4*j}, v{28+j}, v{16+j}')
    a('s_waitcnt lgkmcnt(0)')
    for j in range(4):
        a(f'v_add_lshl_u32 v{32+j}, v{32+j}, v{36+j}, 4\nds_write_b128 v{32+j}, v[{40+4*j}:{43+4*j}] offset:2048')
    a(f's_mul_i32 s52, s2, {CSTR}\ns_waitcnt lgkmcnt(0)\ns_barrier')
    stamp(a, 3)
    for i in range(4): a(f'ds_read_b128 v[{12+4*i}:{15+4*i}], v5 offset:{2048 + i*K1_T*16}')
    for i in range(4):
        a(f's_waitcnt lgkmcnt({3-i})')
        a(f'buffer_store_dwordx4 v[{12+4*i}:{15+4*i}], v5, s[20:23], s52 offen {st}')
        if i < 3: a(f's_add_u32 s52, s52, {K1_T*16}')

def k1():
    a = Asm()
    ld = mod('k1ld', ''); st = mod('k1st', 'sc1')
    a(f's_cmp_ge_u32 s2, {NCH}\ns_cbranch_scc1 K1_END')
    stamp(a, 0)
    a(f'''
    s_load_dwordx2 s[36:37], s[0:1], 8      ; rhat
    s_load_dwordx4 s[40:43], s[0:1], 24
    s_load_dwordx4 s[44:47], s[0:1], 40
    s_load_dwordx2 s[48:49], s[0:1], 56     ; w_si1
    s_load_dwordx2 s[50:51], s[0:1], 88     ; ws
    s_load_dwordx2 s[30:31], s[0:1], 0      ; x
    s_load_dwordx2 s[32:33], s[0:1], 16     ; e_attr
    v_lshrrev_b32 v1, 6, v0
    v_lshlrev_b32 v5, 4, v0                 ; t*16
    v_readfirstlane_b32 s3, v1              ; wave
    v_mul_u32_u24 v4, 24, v0
    v_lshlrev_b32 v2, 2, v0                 ; t*4
    v_and_b32 v8, 63, v0
    v_lshlrev_b32 v9, 4, v8                 ; lane*16
    v_mov_b32 v6, 0
    v_mov_b32 v7, 1
    s_mul_i32 s52, s2, {CH*4}
    s_mul_i32 s53, s2, {CH*6}
    s_waitcnt lgkmcnt(0)
    ''')
    srd(a, 4, 42, E*4)
    srd(a, 8, 40, E*4)
    srd(a, 12, 36, E*6)
    srd(a, 20, 50, WS_SIZE)
    a(f'''
    buffer_load_dwordx4 v[12:15], v5, s[4:7], s52 offen {ld}
    buffer_load_dwordx4 v[16:19], v5, s[8:11], s52 offen {ld}
    buffer_load_dwordx4 v[20:23], v4, s[12:15], s53 offen {ld}
    buffer_load_dwordx2 v[24:25], v4, s[12:15], s53 offen offset:16 {ld}
    s_cmp_eq_u32 s3, 4
    s_cbranch_scc1 K1_PREP
    ds_write_b32 v2, v6
    s_branch K1_GO
    K1_PREP:
    s_cmp_ge_u32 s2, 200
    s_cbranch_scc1 K1_GO
''')
    weight_loads(a)
    a(f'''
    K1_GO:
    s_mov_b32 s58, {BMUL}
    s_movk_i32 s59, 625
    s_waitcnt lgkmcnt(0)
    s_barrier
    s_cmp_eq_u32 s3, 4
    s_cbranch_scc1 K1_W4
    s_waitcnt vmcnt(3)
    s_branch K1_W4D
    K1_W4:
    s_waitcnt vmcnt(0)
    K1_W4D:
    ''')
    stamp(a, 1)
    PF = opt('pf', ''); npf = 0
    if PF:
        srd(a, 64, 32, E*32); srd(a, 68, 30, N*1024)
        a(f'v_lshlrev_b32 v60, 7, v0\ns_mul_i32 s60, s2, {CH*32}')
        pm = mod('pfm', '')
        if 'e' in PF: a(f'buffer_load_dword v61, v60, s[64:67], s60 offen {pm}'); npf += 1
        if 'x' in PF: a(f'buffer_load_dword v62, v60, s[68:71], s60 offen {pm}'); npf += 1
    sort_rank(a)
    a(f'''
    s_cmp_lg_u32 s3, 0
    s_cbranch_scc1 K1_NOTBL
    v_lshl_or_b32 v52, v40, 16, v48
    v_lshl_or_b32 v53, v41, 16, v49
    v_lshl_or_b32 v54, v42, 16, v50
    v_lshl_or_b32 v55, v43, 16, v51
    s_mul_i32 s62, s2, {TSTR}
    s_add_u32 s62, s62, {WS_TBL}
    buffer_store_dwordx4 v[52:55], v9, s[20:23], s62 offen {st}
    K1_NOTBL:
    s_waitcnt lgkmcnt(0)
    ''')
    for j in range(4): a(f'ds_read_b32 v{32+j}, v{32+j} offset:1024')
    a(f's_cmp_lg_u32 s3, 0\ns_cbranch_scc1 K1_W0\ns_waitcnt vmcnt({1+npf})\ns_branch K1_W0D\nK1_W0:\ns_waitcnt vmcnt({npf})\nK1_W0D:')
    stamp(a, 2)
    sort_emit(a, st)
    a(f'''
    s_cmp_lg_u32 s3, 4
    s_cbranch_scc1 K1_FIN
    s_cmp_ge_u32 s2, 200
    s_cbranch_scc1 K1_FIN
    v_lshl_or_b32 v40, v65, 16, v64
    v_lshl_or_b32 v41, v67, 16, v66
    v_lshl_or_b32 v42, v69, 16, v68
    v_lshl_or_b32 v43, v71, 16, v70
    buffer_store_dwordx4 v[40:43], v9, s[20:23], s24 offen {st}
    K1_FIN:
    ''')
    for i in range(opt('k1delay', 0)): a('s_sleep 16')
    if PROF:
        stamp(a, 4); a('s_waitcnt vmcnt(0)'); stamp(a, 5); stamp_out(a, 6, 0, 3, 2, 20)
    a('K1_END:\ns_endpgm')
    return a.lines, 72

NSTR = 2400
OY = 0; OS = 768; OA = 864
RECBASE = 65536
POOL = RECBASE + 40 * NSTR
MISC = POOL + OA + 1024
HIST = MISC; PROG = MISC + 192; CNT = MISC + 224; FLAG = MISC + 228; NULLSRC = MISC + 256; SCR = MISC + 288; NONCE = MISC + 304
NULLBASE = NULLSRC - OS
K2_LDS = 163840
U = 10
ACC = 0; AR = 64; WR = 96; BR = 176; P0 = 192; G = 222
VEO = 230; VH16 = 231; T2 = 232; T3 = 233; PW = 234
VB0 = 246; VB1 = 247; VLG = 248; VAO = 249; VYO = 250; VSO = 251; VL2 = 252; VTAB = 253; VT0 = 254; VT1 = 255; VPA = VEO
sX = 4; sWS = 8; sOUT = 12; sEA = 16
sW = 20; sNB = 21; sNC = 22; sJ0 = 23; sRND = 24; sR = 25; sLIM = 26; sMORE = 27; sFIRST = 28
sCB = 29; sC4 = 30; sCP = 31; sNBs = 48; sNK = 33; sNPH = 34; sNP = 35; sNV = 36
sRING = 37; sJ = 38; s1024 = 39; sOWN = 40; sNX = 44; sSO = 48; sPROGW = 52; sPROG = 53; sB = 54; sLAST = 55
sEX = 56
sT = 58
sM0 = 68
sX2 = 72
sPP = 32
sN4 = 3
sTAG = 2

def tile(t, u): return ACC + 16 * (2*u + t)
TILES = [(0,0), (1,0), (0,1), (1,1)]
def Wreg(p, u): return WR + p*16 + u*8

def weave(x, y):
    o = []
    for i in range(max(len(x), len(y))):
        o += x[i:i+1] + y[i:i+1]
    return o

class LG:
    def __init__(self, a, q=()): self.a = a; self.q = list(q)
    def issue(self, tag, optional=False): self.q.append((tag, optional))
    def waitline(self, tag):
        idx = [i for i, (t, o) in enumerate(self.q) if t == tag]
        if not idx: return None
        y = sum(1 for (t, o) in self.q[idx[-1]+1:] if not o)
        self.q = self.q[idx[-1]+1:]
        return f's_waitcnt lgkmcnt({min(y, 15)})'

class K2:
    def __init__(self):
        self.a = Asm()
        self.uid = 0
        self.outline = []
    def lab(self, s):
        self.uid += 1
        return f'K2_{s}_{self.uid}'

    def dma(self, slot, greg, soff):
        return [f's_mov_b32 m0, s{sM0+slot}',
                f'buffer_load_dwordx4 v{greg}, s[{sX}:{sX+3}], s{soff} offen lds',
                f'buffer_load_dwordx4 v{greg+1}, s[{sX2}:{sX2+3}], s{soff} offen offset:1024 lds']
    def bread(self, item):
        out = []
        for u in range(2):
            for r in range(2):
                d = BR + (item & 1)*8 + u*4 + r*2
                out.append((f'ds_read_b64_tr_b16 v[{d}:{d+1}], v{VB0+u} offset:{(item & 3)*2048 + r*512}', [('B' if u == 0 or not opt('split', 0) else 'B1', False)]))
        return out
    def sread(self, t):
        return [f'v_add_u32 v{G+2*t}, s{sSO+t}, v{VSO}', (f'ds_read_b32 v{G+2*t}, v{G+2*t}', [(f'S{t}', False)])]
    def gmad(self, t):
        return [('wait', f'S{t}'),
                f'v_mad_u32_u16 v{G+2*t+1}, v{G+2*t}, s{s1024}, v{VLG} op_sel:[1,0,0,0]',
                f'v_mad_u32_u16 v{G+2*t}, v{G+2*t}, s{s1024}, v{VLG}']
    def ool(self, text): self.outline.append(text)
    def atomic(self):
        return [f'v_mov_b32 v{VT0}, {CNT}', f'v_mov_b32 v{VT1}, 1', f'v_lshl_add_u32 v{T3}, v{VL2}, 1, s{sPROG}',
                (f's_mov_b64 exec, 1\nds_add_rtn_u32 v{T2}, v{VT0}, v{VT1}\ns_mov_b64 exec, -1', [('C', False)]),
                (f'ds_read_b32 v{T3}, v{T3}', [('C', False)])]
    def claimed(self):
        nul = self.lab('nul'); spin = self.lab('spin'); chk = self.lab('chk'); back = self.lab('back')
        self.ool(f'{nul}:\ns_mov_b32 s{sT}, 63\ns_mov_b32 s{sNV}, 0\ns_branch {back}')
        self.ool(f'{spin}:\nv_lshl_add_u32 v{T3}, v{VL2}, 1, s{sPROG}\nds_read_b32 v{T3}, v{T3}\ns_waitcnt lgkmcnt(0)\ns_branch {chk}')
        return [f'v_readfirstlane_b32 s{sT}, v{T2}',
                f"""s_cmp_lt_u32 s{sT}, s{sNC}
                s_cbranch_scc0 {nul}
                s_and_b32 s{sT+1}, s{sT}, 7
                s_lshr_b32 s{sT+2}, s{sT}, 3
                {chk}:
                v_readlane_b32 s{sT+3}, v{T3}, s{sT+1}
                s_nop 0
                s_cmp_gt_u32 s{sT+3}, s{sT+2}
                s_cbranch_scc0 {spin}
                {back}:"""]
    def claim0(self):
        dyn = self.lab('dyn'); back = self.lab('back')
        o = [x if isinstance(x, str) else x[0] for x in self.atomic()] + ['s_waitcnt lgkmcnt(0)'] + self.claimed()
        self.ool(f'{dyn}:\n' + '\n'.join(o) + f'\ns_mov_b32 s{sNPH}, 1\ns_branch {back}')
        return [f's_add_u32 s{sJ}, s{sJ}, 1', f'v_mov_b32 v{VT0}, s{sPROGW}', f'v_mov_b32 v{VT1}, s{sJ}',
                f's_lshl_b32 s{sT}, s{sJ}, 3', f's_add_u32 s{sT}, s{sT}, s{sW}',
                (f's_mov_b64 exec, 1\nds_write_b32 v{VT0}, v{VT1}\ns_mov_b64 exec, -1', [('W', False)]),
                f's_cmp_lt_u32 s{sT}, s{sNC}\ns_cbranch_scc0 {dyn}\n{back}:']
    def pooladdr(self, d, word, stride):
        return f"""s_lshr_b32 s{d}, s{word}, 27
            s_mov_b32 s{sT+8}, {POOL}
            s_cmp_ge_u32 s{d}, 2
            s_cselect_b32 s{sT+8}, {POOL - NSTR - 2*stride}, s{sT+8}
            s_mul_i32 s{d}, s{d}, {stride}
            s_add_u32 s{d}, s{d}, s{sT+8}"""
    def next_info(self, ph):
        rare = self.lab('rare'); back = self.lab('back'); four = self.lab('four')
        self.ool(f"""{rare}:
            s_cmp_eq_u32 s{sNK}, 4
            s_cbranch_scc1 {four}
            s_mov_b32 s{sSO+1}, s{sNBs}
            s_mov_b32 s{sSO+3}, s{sNBs}
            s_add_u32 s{sNX+1}, s{sNX}, 256
            s_add_u32 s{sNX+2}, s{sNX}, 512
            s_add_u32 s{sNX+3}, s{sNX}, 768
            s_branch {back}
            {four}:
            s_add_u32 s{sSO+2}, s{sNBs}, 64
            {self.pooladdr(sSO+3, sN4, 32)}
            s_mov_b32 s{sNX+2}, s{sNX}
            s_mov_b32 s{sNX+3}, s{sNX}
            s_branch {back}""")
        o = [f'v_readlane_b32 s{sN4}, v{VTAB}, s{sT}', f's_lshl_b32 s{sNX}, s{sNPH}, 7', f's_lshl_b32 s{sT+2}, s{sT}, 5',
             f's_and_b32 s{sNBs}, s{sN4}, 0x3ffff', f's_bfe_u32 s{sNK}, s{sN4}, 0x30012',
             f's_sub_u32 s{sT+2}, s{sT+2}, s{sNBs}', f's_and_b32 s{sT+2}, s{sT+2}, 0xff']
        if ph == 1: o += [f's_add_u32 s{sNP}, s{sT+2}, s{sNBs}']
        else: o += [f's_add_u32 s{sT+2}, s{sT+2}, s{sNBs}', f's_mul_i32 s{sNP}, s{sJ}, 6', f's_cmp_eq_u32 s{sNPH}, 0\ns_cselect_b32 s{sNP}, s{sNP}, s{sT+2}']
        o += [f's_mov_b32 s{sNX+1}, s{sNX}', f's_add_u32 s{sNX+3}, s{sNX}, 256', f's_add_u32 s{sSO+1}, s{sNBs}, 32', f's_add_u32 s{sT+2}, s{sNBs}, 64',
              f's_cmp_eq_u32 s{sNK}, 3\ns_cselect_b32 s{sNX+2}, s{sNX}, s{sNX+3}\ns_cselect_b32 s{sSO+2}, s{sT+2}, s{sNBs}\ns_cselect_b32 s{sSO+3}, s{sNBs}, s{sSO+1}',
              f's_sub_u32 s{sT+2}, s{sNK}, 2\ns_cmp_lt_u32 s{sT+2}, 2\ns_cbranch_scc0 {rare}\n{back}:']
        return o
    def eread(self):
        return [f'v_add_u32 v{T3}, s{sNBs}, v{VEO}',
                (f'ds_read_b32 v{T2}, v{T3}', [('E', False)]), (f'ds_read_b32 v{T3}, v{T3} offset:1024', [('E', False)])]
    NEXTRA = 2
    def adma(self):
        dum = self.lab('dum'); four = self.lab('a4'); back = self.lab('back'); b4 = self.lab('b4')
        ea = f's[{sEA}:{sEA+3}]'; m = mod('eald', '')
        self.ool(f'{dum}:\nv_mov_b32 v{T2}, -1\ns_mov_b32 m0, {SCR}\ns_mov_b64 exec, 1\n' + f'buffer_load_dwordx4 v{T2}, {ea}, 0 offen lds\n'*2 + f's_mov_b64 exec, -1\ns_branch {back}')
        self.ool(f"""{four}:
            {self.pooladdr(sT+7, sN4, 512)}
            v_add_u32 v{T2}, s{sT+7}, v{VEO}
            ds_read_b32 v{T2}, v{T2}
            s_add_u32 m0, s{sT+7}, {OA}
            s_waitcnt lgkmcnt(0)
            v_or_b32 v{T2}, v{T2}, v{VH16}
            buffer_load_dwordx4 v{T2}, {ea}, 0 offen {m} lds
            s_branch {b4}""")
        return [('wait', 'E'), f'v_or_b32 v{T2}, v{T2}, v{VH16}', f'v_or_b32 v{T3}, v{T3}, v{VH16}', f"""
        s_cmp_lg_u32 s{sNPH}, 0
        s_cbranch_scc1 {dum}
        s_add_u32 m0, s{sNBs}, {OA}
        s_add_u32 s{sT+7}, s{sNBs}, {OA+1024}
        buffer_load_dwordx4 v{T2}, {ea}, 0 offen {m} lds
        s_mov_b32 m0, s{sT+7}
        s_mov_b32 exec_hi, 0
        buffer_load_dwordx4 v{T3}, {ea}, 0 offen {m} lds
        s_cmp_eq_u32 s{sNK}, 4
        s_cbranch_scc1 {four}
        {b4}:
        s_mov_b32 exec_hi, -1
        {back}:"""]
    def areads(self, s):
        b = ACC + (s & 1) * 20
        va, vy, oa, oy, o = VAO, VYO, s*512, s*64, []
        if s == 3:
            va, vy, oa, oy = ACC + 56, ACC + 57, 0, 0
            o = [self.pooladdr(sT+7, sC4, 512) + f'\ns_sub_u32 s{sT+7}, s{sT+7}, s{sCB}\nv_add_u32 v{va}, s{sT+7}, v{VAO}',
                 self.pooladdr(sT+7, sC4, 64) + f'\ns_sub_u32 s{sT+7}, s{sT+7}, s{sCB}\nv_add_u32 v{vy}, s{sT+7}, v{VYO}']
        o += [(f'ds_read_b64_tr_b16 v[{b}:{b+1}], v{va} offset:{oa}', [(f'a{s}', False)]),
              (f'ds_read_b64_tr_b16 v[{b+2}:{b+3}], v{va} offset:{oa+128}', [(f'a{s}', False)])]
        for t in range(2):
            for hh in range(2):
                d = b + 4 + t*8 + hh*4
                o.append((f'ds_read_b128 v[{d}:{d+3}], v{vy} offset:{oy + t*384 + hh*16}', [(f'y{s}{t}', False)]))
        return o
    def abuild(self, nK):
        o = []
        for s in range(nK):
            b = ACC + (s & 1) * 20; un = ACC + 40 + (s & 1) * 8
            o.append(('wait', f'a{s}'))
            for i in range(4):
                o += [f'v_lshlrev_b32 v{un+2*i}, 16, v{b+i}', f'v_and_b32 v{un+1+2*i}, 0xffff0000, v{b+i}']
            for t in range(2):
                o.append(('wait', f'y{s}{t}'))
                for e in range(8): o.append(f'v_mul_f32 v{b+4+t*8+e}, v{un+e}, v{b+4+t*8+e}')
                for i in range(4): o.append(f'v_cvt_pk_bf16_f32 v{AR+s*8+t*4+i}, v{b+4+t*8+2*i}, v{b+5+t*8+2*i}')
            if s + 2 < nK: o += self.areads(s + 2)
        return o
    R = dict(A=PW, B=PW+2, C=PW+4, D=PW+6, E=PW+8, F=PW+10)
    CH_ = {0: [(0,'A','new'),(2,'B','new'),(2,'C','new'),(2,'D','new')],
           1: [(3,'A','new'),(1,'B','new'),(4,'C','new'),(4,'D','new')],
           2: [(3,'E','new'),(4,'C','neg'),(1,'B','acc'),(4,'F','new')],
           3: [(3,'E','new'),(4,'D','neg'),(4,'F','neg'),(1,'B','acc')]}
    def F(self, q, k):
        t, u = TILES[k]; o = []
        for r in range(8):
            for b in (2*t, 2*t+1):
                p, d, mode = self.CH_[q][b]
                T = tile(t, u) + (b & 1)*8 + r; W = Wreg(p, u) + r; D = self.R[d] + u
                if r == 0 and mode == 'new': o.append(f'v_mul_f32 v{D}, v{T}, v{W}')
                elif r == 0 and mode == 'neg': o.append(f'v_fma_f32 v{D}, v{T}, v{W}, -v{D}')
                else: o.append(f'v_fmac_f32 v{D}, v{T}, v{W}')
        return o
    def fin(self, q, ph, sp=None):
        sp = sCP if sp is None else sp
        R = self.R
        names = {0: [('A',0),('B',0),('C',0),('D',0)], 1: [('A',0)], 2: [('C',0),('E',0)], 3: [('E',0),('D',1),('B',0),('F',0)]}[q]
        pairs = {0: [(0, R['A'], 0, R['B'], 2), (1, R['C'], 5, R['D'], 8)], 1: [], 2: [(2, R['A'], 3, R['E'], 6)],
                 3: [(3, R['E'], 9, R['B'], 1), (4, R['F'], 4, R['D'], 7), (5, R['C'], 10, R['C'], None)]}[q]
        o = [f'v_permlane32_swap_b32 v{R[n]}, v{R[n]+1}' for n, _ in names]
        if ph == 1 and q == 0: o.append(f'v_add_u32 v{VPA}, s{sCP}, v{VL2}')
        o += [(f'v_add_f32 v{R[n]}, -v{R[n]}, -v{R[n]+1}' if neg else f'v_add_f32 v{R[n]}, v{R[n]}, v{R[n]+1}') for n, neg in names]
        if pairs and ph == 0:
            o.append(f's_set_gpr_idx_on s{sp}, gpr_idx(DST)\n' + ''.join(f'v_cvt_pk_bf16_f32 v{P0+slot}, v{lo}, v{hi}\n' for (slot, lo, lr, hi, hr) in pairs) + 's_set_gpr_idx_off')
        elif pairs:
            for (slot, lo, lr, hi, hr) in pairs: o.append(f'v_cvt_pk_bf16_f32 v{lo}, v{lo}, v{hi}')
            for (slot, lo, lr, hi, hr) in pairs:
                o.append((f'ds_write_b16 v{VPA}, v{lo} offset:{lr*128}', [('P', False)]))
                if hr is not None: o.append((f'ds_write_b16_d16_hi v{VPA}, v{lo} offset:{hr*128}', [('P', False)]))
        return o
    def drop(self, line):
        x = opt('drop', '')
        if not x or not getattr(self, 'inunit', False) or '\n' in line.strip(): return False
        l = line.strip()
        if 'D' in x and l.startswith('buffer_load') and (f's[{sX}:' in l or f's[{sX2}:' in l): return True
        if 'P' in x and l.startswith('ds_write_b16'): return True
        if 'S' in x and l.startswith('v_permlane'): return True
        if 'C' in x and l.startswith('v_cvt_pk'): return True
        if 'B' in x and l.startswith('ds_read_b64_tr') and (f'v{VB0} ' in l or f'v{VB1} ' in l): return True
        if 'F' in x and l.startswith('v_fmac'): return True
        if 'A' in x and l.startswith(('v_lshlrev_b32','v_and_b32','v_cvt_pk')): return True
        if 'A' in x and l.startswith('v_mul_f32') and int(l.split()[1][1:-1]) < 64: return True
        if 'Y' in x and l.startswith(('ds_read_b128',)): return True
        return False
    def emit(self, items, lg):
        for it in items:
            if isinstance(it, str):
                if not self.drop(it): self.a(it)
            elif it[0] != 'wait' and self.drop(it[0]):
                for t, o in it[1]: lg.issue(t, o)
            elif it[0] == 'wait':
                w = lg.waitline(it[1])
                if len(it) > 2 and it[2] is not None: w = f's_waitcnt vmcnt({it[2]})' + (w[len('s_waitcnt'):] if w else '')
                if w: self.a(w)
            else:
                self.a(it[0])
                for t, o in it[1]: lg.issue(t, o)
    ENTRY = [('B', False)]*2 + [('B1' if opt('split', 0) else 'B', False)]*2 + [('a0', False)]*2 + [('y00', False)]*2 + [('y01', False)]*2 + [('a1', False)]*2 + [('y10', False)]*2 + [('y11', False)]*2
    @staticmethod
    def cost(it):
        if isinstance(it, tuple):
            if it[0] == 'wait': return 1
            it = it[0]
        return sum((2 if 'permlane' in l else 1) for l in it.strip().split('\n') if not l.strip().endswith(':'))
    def unit(self, nK, ph):
        a = self.a
        lg = LG(a, self.ENTRY)
        a(f'K2_U{nK}{ph}:')
        self.inunit = True
        n = 4 * nK
        BUD = opt('bud', 7)
        pre = seg(0)
        claim = (self.claim0() if ph == 0 else self.atomic())
        after = ([] if ph == 0 else [('wait', 'C')] + self.claimed()) + self.next_info(ph)
        if nK == 1: pre += claim
        pre += self.abuild(nK)
        if nK == 1:
            pre += after + (self.eread() if ph == 0 else [])
            for t in range(4): pre += self.sread(t)
            if ph == 0: pre += self.adma()
            for t in range(4): pre += self.gmad(t)
        x = -1 if nK == 1 else 2
        MW = opt('mergewait', True)
        gaps = [[] for _ in range(4*n)]; tailg = [[] for _ in range(4*n)]
        vmn = lambda i: 4 + (self.NEXTRA if (ph == 0 and x < i <= x + 3) else 0)
        for i in range(n):
            d = self.dma(i & 3, G + 2*((i+4) % nK), sOWN + (i+4)//nK) if i + 4 < n else self.dma(i & 3, G + 2*(i+4-n), sNX + (i+4-n))
            br = self.bread(i + 1); SP = opt('split', 0)
            w = [] if MW else [f's_waitcnt vmcnt({vmn(i)})']
            if SP == 0:
                gaps[4*i] += w + br; tailg[4*i] += [d[0]]; gaps[4*i+1] += [d[1], d[2]]
            elif SP == 1:
                gaps[4*i] += w + br[:2]; tailg[4*i+1] += [('wait', 'B1'), d[0]]; gaps[4*i+2] += [d[1]] + br[2:]; tailg[4*i+2] += [d[0]]; gaps[4*i+3] += [d[2]]
            elif SP == 2:
                gaps[4*i] += w + br[:2]; gaps[4*i+1] += br[2:]; tailg[4*i+1] += [d[0]]; gaps[4*i+2] += [d[1]]; tailg[4*i+2] += [d[0]]; gaps[4*i+3] += [d[2]]
            if i + 1 < n: tailg[4*i+3] += [('wait', 'B1' if SP == 2 else 'B', vmn(i+1) if MW else None)]
        used = lambda g: sum(map(self.cost, gaps[g] + tailg[g]))
        def place(items, g0, g1):
            g = g0
            for it in items:
                while g < g1 and used(g) + self.cost(it) > BUD and used(g) > 1: g += 1
                gaps[g].append(it)
            return g
        DEF = opt('defer', True) and nK > 1
        if nK > 1:
            for t in range(4):
                place(self.sread(t), 4*(n-6+t) + (3 if opt('split', 0) else 2), 4*(n-6+t) + 3)
                place(self.gmad(t), 4*(n-5+t) + 1, 4*(n-5+t) + 3)
        ndef = [0]*4
        for q in range(1, 4):
            g0 = 4*q*nK
            if DEF:
                f3 = self.F(q-1, 3)
                room = [max(0, BUD - used(g0 + k)) for k in range(3)]
                m = min(16, sum(room)); ndef[q-1] = m
                f3 = f3[16-m:]
                for k in range(3):
                    gaps[g0 + k] += f3[:room[k]]; f3 = f3[room[k]:]
            place(self.fin(q-1, ph), g0 + (3 if DEF else 1), 4*(q*nK + nK - 1) + (1 if nK > 1 else 3))
        place(self.fin(3, ph, sPP), 1, 4*(nK - 1) + (1 if nK > 1 else 3))
        if nK > 1:
            if ph == 0:
                g = place(claim + after, 1, 5)
                place(self.eread(), max(g, 5), 7)
                place(self.adma(), 4*x + 3, 4*x + 3)
            else:
                place(claim, 1, 3)
                g1 = 4*(n-6) + (3 if opt('split', 0) else 2)
                keep = gaps[g1]; k0 = [i for i, it in enumerate(keep) if isinstance(it, str) and f'v{VSO}' in it]
                moved = keep[k0[0]:] if k0 else []
                if k0: gaps[g1] = keep[:k0[0]]
                place(after, 5, g1)
                gaps[g1] += moved
        nf0 = [0]*4
        if nK > 1:
            for q in range(4):
                g = 4*(q*nK + nK - 1) + 2
                nf0[q] = max(0, BUD - used(g))
                gaps[g] += self.F(q, 0)[:nf0[q]]
        self.emit([f's_setprio {opt("prioa", 1)}'] + pre + seg(1) + [('wait', 'B', vmn(0) if MW else None)] + ([f's_setprio {opt("prio", 1)}'] if opt("prio", 1) != opt("prioa", 1) else []), lg)
        for i in range(n):
            q, s = divmod(i, nK)
            for k, (t, u) in enumerate(TILES):
                c = f'v[{tile(t,u)}:{tile(t,u)+15}]' if s else '0'
                bb = BR + (i & 1)*8 + u*4
                if 'M' not in opt('drop', ''): a(f'v_mfma_f32_32x32x16_bf16 v[{tile(t,u)}:{tile(t,u)+15}], v[{AR+s*8+t*4}:{AR+s*8+t*4+3}], v[{bb}:{bb+3}], {c}')
                g = 4*i + k
                if k == 3 and s == nK - 1:
                    self.emit([f's_setprio {opt("prio0", 0)}'] + gaps[g] + seg(2+2*q) + self.F(q, 0)[nf0[q]:], lg)
                    if q < 3: self.emit(self.F(q, 1) + self.F(q, 2) + self.F(q, 3)[:16-ndef[q]] + seg(3+2*q) + [f's_setprio {opt("prio", 1)}'], lg)
                else: self.emit(gaps[g], lg)
                self.emit(tailg[g], lg)
        end = [f's_sub_u32 s{sT}, s{sNBs}, s{sCB}', f'v_add_u32 v{VAO}, s{sT}, v{VAO}', f'v_add_u32 v{VYO}, s{sT}, v{VYO}']
        end += self.F(3, 1) + self.areads(0) + self.F(3, 2) + self.areads(1) + self.F(3, 3)
        self.emit(end, lg)
        if SEG:
            a('s_memtime s[94:95]\ns_waitcnt lgkmcnt(0)')
            def acc(d, i, j): a(f's_sub_u32 s67, s{76+2*j}, s{76+2*i}\ns_add_u32 s{d}, s{d}, s67')
            acc(96, 0, 1)
            for q in range(4): acc(97, 1+2*q, 2+2*q)
            for q in range(3): acc(98, 2+2*q, 3+2*q)
            acc(99, 8, 9)
            a(f's_add_u32 s100, s100, {nK}\ns_add_u32 s101, s101, 1')
        assert [x for x in lg.q if x[0] != 'P'] == self.ENTRY, lg.q
        self.inunit = False
        self.dispatch(ph)
    def dispatch(self, ph, check=True):
        if check:
            if ph == 0: self.a(f's_cmp_lg_u32 s{sNPH}, 0\ns_cbranch_scc1 K2_SWITCH')
            else: self.a(f's_cmp_eq_u32 s{sNV}, 0\ns_cbranch_scc1 K2_TAIL')
        self.a(f"""
        s_mov_b32 s{sCB}, s{sNBs}
        s_mov_b32 s{sPP}, s{sCP}
        s_mov_b32 s{sC4}, s{sN4}
        s_mov_b32 s{sCP}, s{sNP}
        s_cmp_eq_u32 s{sNK}, 2
        s_cbranch_scc1 K2_U2{ph}
        s_cmp_eq_u32 s{sNK}, 3
        s_cbranch_scc1 K2_U3{ph}
        s_cmp_eq_u32 s{sNK}, 1
        s_cbranch_scc1 K2_U1{ph}
        s_branch K2_U4{ph}
        """)

    def wload(self, ph, vl16):
        for i in range(20):
            if i % 4 == 0: self.a(f's_mov_b32 s{sT}, {WS_WTAB + ph*20480 + i*1024}')
            self.a(f'buffer_load_dwordx4 v[{WR+4*i}:{WR+3+4*i}], v{vl16}, s[{sWS}:{sWS+3}], s{sT} offen offset:{(i%4)*1024} {"sc1" if FUSE else ""}')

    def sortnodes(self, vL, k, p, x):
        a = self.a
        a(f'''
        s_cmp_eq_u32 s{sR}, 1
        s_cselect_b32 s{sLAST}, s{sFIRST}, 0
        s_cmp_eq_u32 s{sMORE}, 0
        s_cselect_b32 s{sLAST}, s{sLAST}, 0
        s_cmp_eq_u32 s{sLAST}, 0
        s_cbranch_scc1 K2_NOSORT
        v_cndmask_b32 v{k}, 0, v{k}, s[{sEX}:{sEX+1}]
        v_mov_b32 v{p}, v{vL}
        s_mov_b32 s{sT+2}, 0
        ''')
        if True:
            for kk in (4, 3, 2, 1):
                a(f'''
                v_cmp_eq_u32 vcc, {kk}, v{k}
                v_mbcnt_lo_u32_b32 v{x}, vcc_lo, 0
                v_mbcnt_hi_u32_b32 v{x}, vcc_hi, v{x}
                v_add_u32 v{x}, s{sT+2}, v{x}
                v_cndmask_b32 v{p}, v{p}, v{x}, vcc
                s_bcnt1_i32_b64 s{sT+3}, vcc
                s_add_u32 s{sT+2}, s{sT+2}, s{sT+3}
                ''')
        a(f'''
        v_lshlrev_b32 v{p}, 2, v{p}
        ds_permute_b32 v{VTAB}, v{p}, v{VTAB}
        s_waitcnt lgkmcnt(0)
        K2_NOSORT:
        ''')

    def stage_sort(self):
        a = self.a; st = 'sc1'
        RAW = 24576
        a(f'''
        s_load_dwordx2 s[36:37], s[0:1], 8      ; rhat
        s_load_dwordx4 s[40:43], s[0:1], 24
        s_load_dwordx4 s[44:47], s[0:1], 40
        s_load_dwordx2 s[48:49], s[0:1], 56     ; w_si1
        s_load_dwordx4 s[60:63], s[0:1], 80
        v_lshrrev_b32 v1, 6, v0
        v_lshlrev_b32 v5, 4, v0                 ; t*16
        v_readfirstlane_b32 s3, v1              ; wave
        v_mul_u32_u24 v4, 24, v0
        v_lshlrev_b32 v2, 2, v0                 ; t*4
        v_and_b32 v8, 63, v0
        v_lshlrev_b32 v9, 4, v8                 ; lane*16
        v_mov_b32 v6, 0
        v_mov_b32 v7, 1
        s_mul_i32 s52, s2, {CH*4}
        s_mul_i32 s53, s2, {CH*6}
        s_waitcnt lgkmcnt(0)
        ''')
        srd(a, 20, 62, WS_SIZE)
        a(f'''
        s_cmp_ge_u32 s3, 5
        s_cbranch_scc1 KS_HELP
        s_cmp_ge_u32 s2, {NCH}
        s_cbranch_scc1 KS_IDLE
        ''')
        srd(a, 4, 42, E*4); srd(a, 8, 40, E*4); srd(a, 12, 36, E*6)
        a(f'''
        buffer_load_dwordx4 v[12:15], v5, s[4:7], s52 offen
        buffer_load_dwordx4 v[16:19], v5, s[8:11], s52 offen
        buffer_load_dwordx4 v[20:23], v4, s[12:15], s53 offen
        buffer_load_dwordx2 v[24:25], v4, s[12:15], s53 offen offset:16
        s_cmp_eq_u32 s3, 4
        s_cbranch_scc1 KS_NOCLR
        ds_write_b32 v2, v6
        KS_NOCLR:
        s_mov_b32 s58, {BMUL}
        s_movk_i32 s59, 625
        s_waitcnt lgkmcnt(0)
        s_barrier
        s_waitcnt vmcnt(3)
        ''')
        sort_rank(a)
        a('s_waitcnt lgkmcnt(0)')
        for j in range(4): a(f'ds_read_b32 v{32+j}, v{32+j} offset:1024')
        a('ds_read_b32 v56, v2\nds_read_b32 v57, v2 offset:1024\ns_waitcnt vmcnt(0)')
        sort_emit(a, st)
        a(f'''
        v_mov_b32 v58, {NONCE}
        ds_read_b32 v59, v58
        v_lshl_or_b32 v58, v56, 11, v57
        v_mul_u32_u24 v60, {TROW}, v0
        s_lshl_b32 s52, s2, 3
        s_add_u32 s52, s52, {WS_TBL}
        s_waitcnt lgkmcnt(0)
        v_lshl_or_b32 v58, v59, 22, v58
        s_waitcnt vmcnt(0)
        s_barrier
        s_cmp_eq_u32 s3, 4
        s_cbranch_scc1 KS_DONE
        buffer_store_dwordx2 v[58:59], v60, s[20:23], s52 offen sc1
        s_branch KS_DONE
        KS_HELP:
        s_cmp_eq_u32 s3, 7
        s_cbranch_scc1 KS_TAG
        s_cmp_eq_u32 s3, 6
        s_cbranch_scc1 KS_RAW
        s_cmp_ge_u32 s2, 200
        s_cbranch_scc1 KS_IDLE
        ''')
        weight_loads(a)
        a(f'''
        K1_GO:
        s_barrier
        s_barrier
        s_waitcnt vmcnt(0)
        v_lshl_or_b32 v40, v65, 16, v64
        v_lshl_or_b32 v41, v67, 16, v66
        v_lshl_or_b32 v42, v69, 16, v68
        v_lshl_or_b32 v43, v71, 16, v70
        buffer_store_dwordx4 v[40:43], v9, s[20:23], s24 offen sc1
        s_barrier
        s_waitcnt vmcnt(0)
        s_barrier
        s_branch KS_DONE
        KS_RAW:
        ''')
        srd(a, 16, 44, 16*640*2)
        for i in range(20):
            if i % 4 == 0: a(f's_mov_b32 m0, {RAW + i*1024}\ns_movk_i32 s24, {i*1024}')
            a(f'buffer_load_dwordx4 v9, s[16:19], s24 offen offset:{(i%4)*1024} lds')
        a(f'''
        s_barrier
        s_barrier
        s_barrier
        s_waitcnt vmcnt(0)
        s_barrier
        s_branch KS_DONE
        KS_TAG:
        ''')
        srd(a, 16, 60, 256)
        a(f'''
        s_mov_b64 exec, 1
        s_cmp_lg_u32 s2, 0
        s_cbranch_scc1 KS_TAGLD
        s_memrealtime s[24:25]
        s_waitcnt lgkmcnt(0)
        s_or_b32 s24, s24, 1
        v_mov_b32 v10, s24
        buffer_store_dword v10, v6, s[16:19], 0 offen sc1
        KS_TAGLD:
        buffer_load_dword v10, v6, s[16:19], 0 offen sc1
        s_barrier
        s_barrier
        s_mov_b32 s24, 0x100000
        KS_TAGW:
        s_waitcnt vmcnt(0)
        v_cmp_ne_u32 vcc, 0, v10
        s_cbranch_vccnz KS_TAGOK
        s_sub_u32 s24, s24, 1
        s_cbranch_scc1 K2_END
        buffer_load_dword v10, v6, s[16:19], 0 offen sc1
        s_branch KS_TAGW
        KS_TAGOK:
        v_mov_b32 v11, {NONCE}
        ds_write_b32 v11, v10
        s_mov_b64 exec, -1
        s_waitcnt lgkmcnt(0)
        s_barrier
        s_barrier
        s_branch KS_DONE
        KS_IDLE:
        s_barrier
        s_barrier
        s_barrier
        s_barrier
        KS_DONE:
        ''')
        stamp(a, 6)
        a(f'''
        v_mov_b32 v1, {NONCE}
        ds_read_b32 v1, v1
        s_waitcnt lgkmcnt(0)
        v_readfirstlane_b32 s{sTAG}, v1
        ''')
    def wraw(self, vL):
        a = self.a; RAW = 24576
        a(f'''
        v_lshrrev_b32 v60, 5, v{vL}             ; h
        v_bfe_u32 v61, v{vL}, 2, 2              ; row
        v_lshl_add_u32 v60, v60, 2, v61
        v_mul_u32_u24 v60, 1280, v60
        v_bfe_u32 v61, v{vL}, 4, 1
        v_lshl_add_u32 v60, v61, 5, v60
        v_and_b32 v61, 3, v{vL}
        v_lshl_add_u32 v60, v61, 3, v60
        ''')
        for i in range(20):
            p, u, rq = i >> 2, (i >> 1) & 1, i & 1
            a(f'ds_read_b64_tr_b16 v[{WR+40+2*i}:{WR+41+2*i}], v60 offset:{RAW + rq*8*1280 + p*256 + u*64}')
        a('s_waitcnt lgkmcnt(0)')
        for i in range(40):
            a(f'v_lshlrev_b32 v{WR+2*i}, 16, v{WR+40+i}\nv_and_b32 v{WR+2*i+1}, 0xffff0000, v{WR+40+i}')

    def gen(self):
        a = self.a
        vL, vT_, vC, vE, vREM, vOFF = 176, 177, 178, 179, 180, 181
        RK = 40
        NBs = 50
        t0 = 192
        ws = f's[{sWS}:{sWS+3}]'
        def loop(done, body):
            for i in range(U):
                a(f'v_cmp_lt_i32 vcc, {2*i}, v{vREM}\ns_cbranch_vccz {done}\ns_mov_b64 exec, vcc')
                a(body(i))
            a(f'{done}:\ns_mov_b64 exec, -1')
        a('s_cmp_ge_u32 s2, 256\ns_cbranch_scc1 K2_END')
        stamp(a, 0)
        a(f's_mov_b32 s{sB}, s2')
        if FUSE:
            self.stage_sort()
        a(f'''
        s_load_dwordx2 s[58:59], s[0:1], 0
        s_load_dwordx2 s[60:61], s[0:1], 72
        s_load_dwordx2 s[62:63], s[0:1], 88
        s_load_dwordx2 s[64:65], s[0:1], 16
        v_lshrrev_b32 v1, 6, v0
        s_mul_i32 s{sNB}, s{sB}, 625
        v_readfirstlane_b32 s{sW}, v1
        s_add_u32 s{sNC}, s{sNB}, {625+15}
        s_add_u32 s{sNB}, s{sNB}, 15
        s_lshr_b32 s{sNB}, s{sNB}, 4
        s_lshr_b32 s{sNC}, s{sNC}, 4
        s_sub_u32 s{sNC}, s{sNC}, s{sNB}
        s_mov_b32 s{sJ0}, 0
        s_mov_b32 s{sFIRST}, 1
        {chr(10).join(f's_mov_b32 s{i}, 0' for i in range(96, 102)) if SEG else ''}
        s_movk_i32 s{s1024}, 1024
        s_lshl_b32 s{sRING}, s{sW}, 13
        s_mov_b32 s{sPROG}, {PROG}
        s_lshl_b32 s{sPROGW}, s{sW}, 2
        s_add_u32 s{sPROGW}, s{sPROGW}, s{sPROG}
        {chr(10).join(f's_add_u32 s{sM0+i}, s{sRING}, {i*2048}' for i in range(4))}
        s_waitcnt lgkmcnt(0)
        ''')
        srd(a, sWS, 62, WS_SIZE); srd(a, sX, 58, N*1024); srd(a, sOUT, 60, N*1024); srd(a, sEA, 64, E*32)
        a('s_sub_u32 s58, s58, 1024\ns_subb_u32 s59, s59, 0'); srd(a, sX2, 58, N*1024 + 1024)
        a(f'''
        K2_WINDOW:
        s_mov_b32 s{sRND}, 0
        s_mov_b32 s{sR}, 1
        K2_LOAD:
        v_mbcnt_lo_u32_b32 v{vL}, -1, 0
        v_mbcnt_hi_u32_b32 v{vL}, -1, v{vL}
        s_lshl_b32 s{sT}, s{sW}, 6
        v_add_u32 v{vT_}, s{sT}, v{vL}
        v_lshrrev_b32 v{vC}, 1, v{vT_}          ; cell
        v_min_u32 v{vC}, {NCH-1}, v{vC}
''')
        if FUSE:
            a(f'''
            v_lshlrev_b32 v72, 3, v{vC}
            s_mul_i32 s{sT+9}, s{sB}, {TROW}
            s_add_u32 s{sT+9}, s{sT+9}, {WS_TBL}
            buffer_load_dwordx2 v[74:75], v72, {ws}, s{sT+9} offen sc1
            ''')
        else:
            a(f'''
        v_mul_u32_u24 v1, {TSTR}, v{vC}
        s_lshl_b32 s{sT}, s{sB}, 2
        s_add_u32 s{sT}, s{sT}, {WS_TBL}
        buffer_load_dword v{vE}, v1, {ws}, s{sT} offen
        v_lshlrev_b32 v70, 4, v{vL}
        s_cmp_ge_u32 s{sW}, 5
        s_cbranch_scc1 K2_NOW
        s_lshl_b32 s{sT}, s{sW}, 12
        s_mov_b32 m0, s{sT}
        s_add_u32 s{sT}, s{sT}, {WS_WTAB}
        ''')
            for i in range(4): a(f'buffer_load_dwordx4 v70, {ws}, s{sT} offen offset:{i*1024} lds')
            a('K2_NOW:')
        for t in range(512): assert (t*437) >> 16 == t // 150
        a(f'''
        v_mul_u32_u24 v3, 437, v{vT_}
        v_lshrrev_b32 v3, 16, v3
        v_mul_u32_u24 v3, 150, v3
        v_sub_u32 v3, v{vT_}, v3
        v_mov_b32 v8, -1
        v_mov_b32 v5, 1.0
        v_cmp_gt_u32 vcc, 48, v3
        v_cndmask_b32 v8, v8, 0, vcc
        v_cmp_gt_u32 vcc, 12, v3
        v_cndmask_b32 v8, v8, v5, vcc
        v_lshlrev_b32 v6, 4, v{vT_}
        v_add_u32 v6, {RECBASE}, v6
        v_add_u32 v7, 64800, v6
        v_mov_b32 v9, v8
        v_mov_b32 v10, v8
        v_mov_b32 v11, v8
        v_cmp_gt_u32 vcc, {2*NCH}, v{vT_}
        s_mov_b64 s[{sEX}:{sEX+1}], vcc
        v_cmp_gt_u32 vcc, 450, v{vT_}
        s_mov_b64 exec, vcc
        ''')
        for i in range(13): a(f'ds_write_b128 v{6 + (i//9)}, v[8:11] offset:{(i%9)*7200}')
        a(f'''
        v_cmp_gt_u32 vcc, {150 + (OA+1024)//16}, v{vT_}
        s_cbranch_vccz K2_NOCL
        s_mov_b64 exec, vcc
        ds_write_b128 v7, v[8:11] offset:{4*7200}
        K2_NOCL:
        s_mov_b64 exec, -1
        s_cmp_lg_u32 s{sW}, 0
        s_cbranch_scc1 K2_NOH
        v_mov_b32 v3, 0
        v_mov_b32 v5, -1
        v_lshlrev_b32 v4, 2, v{vL}
        v_add_u32 v4, {HIST}, v4
        s_mov_b64 exec, 0x1ff
        ds_write_b32 v4, v3 offset:{PROG-HIST}
        s_mov_b64 exec, 0xff
        ds_write_b32 v4, v5 offset:{NULLSRC-HIST}
        s_mov_b64 exec, -1
        s_cmp_lg_u32 s{sRND}, 0
        s_cbranch_scc1 K2_NOH
        s_mov_b32 exec_hi, 0xffff
        ds_write_b32 v4, v3
        s_mov_b64 exec, 1
        ds_write_b32 v4, v3 offset:{FLAG-HIST}
        s_mov_b64 exec, -1
        K2_NOH:
        v_and_b32 v60, 15, v{vL}                ; i
        v_lshrrev_b32 v61, 5, v{vL}             ; h
        v_bfe_u32 v62, v{vL}, 4, 1
        v_lshrrev_b32 v63, 2, v60
        v_and_b32 v64, 3, v60                   ; c
        v_lshl_add_u32 v65, v61, 3, v63         ; 8h + row
        v_lshlrev_b32 v{VAO}, 5, v65
        v_lshl_add_u32 v{VAO}, v64, 3, v{VAO}
        v_add_u32 v{VAO}, {OA}, v{VAO}
        v_mul_u32_u24 v{VYO}, 192, v62
        v_lshl_add_u32 v{VYO}, v61, 5, v{VYO}
        v_lshrrev_b32 v66, 1, v64
        v_lshl_add_u32 v66, v62, 1, v66         ; chunk (u = 0)
        v_bfe_u32 v67, v63, 1, 1
        v_lshlrev_b32 v67, 2, v67
        v_xor_b32 v66, v66, v67
        v_lshlrev_b32 v66, 4, v66
        v_lshl_add_u32 v66, v65, 7, v66
        v_and_b32 v67, 1, v64
        v_lshl_add_u32 v66, v67, 3, v66
        v_add_u32 v{VB0}, s{sRING}, v66
        v_xor_b32 v{VB1}, 64, v{VB0}
        v_lshrrev_b32 v66, 3, v{vL}
        v_lshlrev_b32 v{VSO}, 2, v66
        v_add_u32 v{VSO}, {OS}, v{VSO}
        v_bfe_u32 v66, v66, 1, 1
        v_lshlrev_b32 v66, 2, v66
        v_and_b32 v67, 7, v{vL}
        v_xor_b32 v66, v66, v67
        v_lshlrev_b32 v{VLG}, 4, v66
        v_lshlrev_b32 v{VL2}, 1, v{vL}
        v_and_b32 v{VH16}, 1, v{vL}
        v_lshlrev_b32 v{VH16}, 4, v{VH16}
        v_lshrrev_b32 v66, 1, v{vL}
        v_lshlrev_b32 v66, 5, v66
        v_add_u32 v{VEO}, {OA}, v66
        ''')
        if FUSE:
            a(f's_cmp_eq_u32 s{sFIRST}, 0\ns_cbranch_scc1 K2_WG')
            self.wraw(vL)
            a(f'''
            K2_WOK:
            s_and_b32 s{sT+1}, s{sTAG}, 0x3ff
            s_mov_b32 s{sT+2}, 0x100000
            K2_POLL:
            s_waitcnt vmcnt(0)
            v_lshrrev_b32 v73, 22, v74
            v_cmp_ne_u32 vcc, s{sTAG}, v75
            v_cmp_ne_u32 s[{sT+4}:{sT+5}], s{sT+1}, v73
            s_or_b64 vcc, vcc, s[{sT+4}:{sT+5}]
            s_cbranch_scc0 K2_POLLED
            s_sub_u32 s{sT+2}, s{sT+2}, 1
            s_cbranch_scc1 K2_END
            s_mov_b64 exec, vcc
            buffer_load_dwordx2 v[74:75], v72, {ws}, s{sT+9} offen sc1
            s_mov_b64 exec, -1
            s_branch K2_POLL
            K2_POLLED:
            v_bfe_u32 v73, v74, 11, 11
            v_and_b32 v74, 0x7ff, v74
            v_lshl_or_b32 v{vE}, v73, 16, v74
            ''')
            o = Asm(); sv = self.a; self.a = o
            o(f'K2_WG:\nv_lshlrev_b32 v70, 4, v{vL}'); self.wload(0, 70); o('s_branch K2_WOK')
            self.a = sv; self.ool(o.text())
        else: a('s_waitcnt vmcnt(0)')
        stamp(a, 1)
        a(f'''
        v_cndmask_b32 v{vE}, 0, v{vE}, s[{sEX}:{sEX+1}]
        v_and_b32 v1, 1, v{vT_}
        v_add_u32 v1, s{sJ0}, v1                ; j0 + sub
        v_lshrrev_b32 v{vREM}, 16, v{vE}
        v_sub_u32 v{vREM}, v{vREM}, v1
        v_and_b32 v{vE}, 0xffff, v{vE}
        v_add_u32 v{vE}, v{vE}, v1
        v_mul_u32_u24 v{vOFF}, {CSTR}, v{vC}
        v_lshl_add_u32 v{vOFF}, v{vE}, 4, v{vOFF}
        v_mul_u32_u24 v{vC}, {CH}, v{vC}
        ''')
        loop('K2_LD_DONE', lambda i: f'buffer_load_dwordx4 v[{4*i}:{4*i+3}], v{vOFF}, {ws}, 0 offen offset:{32*i} {"sc1" if FUSE else ""}')

        a(f'''
        v_add_lshl_u32 v{vE}, v{vE}, v{vC}, 2
        s_mov_b32 s{sT+8}, {WS_RANK}
        v_mov_b32 v{t0+9}, 1
        s_waitcnt lgkmcnt(0)
        s_barrier
        ''')
        if not FUSE:
            for i in range(20): a(f'ds_read_b128 v[{WR+4*i}:{WR+4*i+3}], v70 offset:{i*1024}')
        a(f'''
        s_cmp_lg_u32 s{sRND}, 0
        s_cbranch_scc1 K2_RK_LOAD
        v_cmp_lt_i32 vcc, {2*U}, v{vREM}
        s_cbranch_vccz K2_NOMORE
        v_mov_b32 v61, {FLAG}
        ds_write_b32 v61, v{t0+9}
        K2_NOMORE:
        s_mov_b32 s{sT}, {HIST}
        s_movk_i32 s{sT+1}, {NSTR}
        v_mov_b32 v{t0+10}, {RECBASE}
        s_waitcnt vmcnt(0)
        ''')
        stamp(a, 2)
        def prep(i):
            return (f'v_mad_u32_u24 v{NBs+i}, v{NBs+i}, s{sT+1}, v{t0+10}\nv_bfe_u32 v{60+i}, v{4*i+3}, 14, 11\n'
                    f'v_add_lshl_u32 v{60+i}, v{60+i}, v{vC}, 5\nv_and_b32 v{4*i+3}, 0x3fff, v{4*i+3}')
        loop('K2_RK_A', lambda i: f'v_lshrrev_b32 v{NBs+i}, 25, v{4*i+3}\nv_lshl_add_u32 v{RK+i}, v{NBs+i}, 2, s{sT}\nds_add_rtn_u32 v{RK+i}, v{RK+i}, v{t0+9}\n' + prep(i))
        a(f's_branch K2_RK_DONE\nK2_RK_LOAD:\ns_movk_i32 s{sT+1}, {NSTR}\nv_mov_b32 v{t0+10}, {RECBASE}\ns_waitcnt vmcnt(0)')
        loop('K2_RK_B', lambda i: f'v_lshrrev_b32 v{NBs+i}, 25, v{4*i+3}\nbuffer_load_dword v{RK+i}, v{vE}, {ws}, s{sT+8} offen offset:{8*i}\n' + prep(i))
        a(f'''
        s_waitcnt vmcnt(0)
        K2_RK_DONE:
        s_mul_i32 s{sT+9}, s{sRND}, 48
        s_waitcnt lgkmcnt(0)
        ''')
        def scatter(i, rr, base):
            return f'''
            v_lshl_add_u32 v{t0+2}, v{rr}, 5, v{base}
            v_lshl_add_u32 v{t0+3}, v{rr}, 2, v{base}
            v_and_b32 v{t0+4}, 7, v{rr}
            v_add_lshl_u32 v{t0+4}, v{t0+4}, v{rr}, 1
            v_bfe_u32 v{t0+1}, v{rr}, 3, 1
            v_mad_i32_i24 v{t0+4}, v{t0+1}, -14, v{t0+4}
            v_add_u32 v{t0+4}, v{t0+4}, v{base}
            ds_write_b32 v{t0+2}, v{60+i} offset:{OA}
            ds_write2_b32 v{t0+3}, v{4*i}, v{4*i+1} offset0:48 offset1:96
            ds_write_b32 v{t0+3}, v{4*i+2} offset:576
            ds_write_b16 v{t0+4}, v{4*i+3} offset:{OS}
            '''
        for i in range(U):
            nx = self.lab('sc')
            a(f'''
            v_cmp_lt_i32 vcc, {2*i}, v{vREM}
            s_cbranch_vccz K2_SC_DONE
            v_subrev_u32 v{t0}, s{sT+9}, v{RK+i}
            v_cmp_gt_u32 s[{sEX}:{sEX+1}], 48, v{t0}
            s_and_b64 exec, vcc, s[{sEX}:{sEX+1}]
            s_cbranch_execz {nx}
            {scatter(i, t0, NBs+i)}
            {nx}:
            s_mov_b64 exec, -1
            ''')
        d = t0 + 1; k = t0 + 2; e = t0 + 3; p = t0 + 4; x = t0 + 5; pl = t0 + 6
        a(f'''
        K2_SC_DONE:
        v_lshlrev_b32 v{t0}, 2, v{vL}
        v_add_u32 v{t0}, {HIST}, v{t0}
        v_mov_b32 v{t0+8}, {FLAG}
        v_mov_b32 v{pl}, 0
        s_movk_i32 s{sLIM}, 48
        s_waitcnt lgkmcnt(0)
        s_barrier
        ds_read_b32 v{d}, v{t0}
        ds_read_b32 v{t0+8}, v{t0+8}
        v_cmp_gt_u32 s[{sEX}:{sEX+1}], s{sNC}, v{vL}
        v_mad_u32_u24 v{e}, v{vL}, s{sT+1}, v{t0+10}
        v_lshl_or_b32 v{e}, v{vL}, 21, v{e}
        s_waitcnt lgkmcnt(0)
        v_cndmask_b32 v{d}, 0, v{d}, s[{sEX}:{sEX+1}]
        v_readfirstlane_b32 s{sMORE}, v{t0+8}
        v_cmp_lt_u32 vcc, 48, v{d}
        s_cbranch_vccnz K2_BIG
        K2_TOK:
        v_subrev_u32 v{k}, s{sT+9}, v{d}
        v_max_i32 v{k}, 1, v{k}
        v_min_i32 v{k}, s{sLIM}, v{k}
        v_add_u32 v{k}, 15, v{k}
        v_lshrrev_b32 v{k}, 4, v{k}             ; K-steps
        v_lshl_or_b32 v{e}, v{k}, 18, v{e}
        v_or_b32 v{e}, v{e}, v{pl}
        v_mov_b32 v{x}, {NULLBASE | (1 << 18)}
        v_cndmask_b32 v{VTAB}, v{x}, v{e}, s[{sEX}:{sEX+1}]
''')
        if opt('sort', False): self.sortnodes(vL, k, p, x)
        o = Asm(); b = a; a = o
        a(f'''
        K2_BIG:
        s_cmp_lg_u32 s{sRND}, 0
        s_cbranch_scc1 K2_TOK
        s_mov_b64 s[{sT+4}:{sT+5}], vcc
        s_bcnt1_i32_b64 s{sT+2}, vcc
        s_cmp_eq_u32 s{sNC}, 39
        s_cselect_b32 s{sT+3}, 5, 2
        s_cmp_gt_u32 s{sT+2}, s{sT+3}
        s_cbranch_scc1 K2_SLOW
        v_cmp_lt_u32 vcc, 64, v{d}
        s_cbranch_vccnz K2_SLOW
        v_mbcnt_lo_u32_b32 v{x}, s{sT+4}, 0
        v_mbcnt_hi_u32_b32 v{x}, s{sT+5}, v{x}
        v_lshlrev_b32 v{pl}, 27, v{x}
        v_cndmask_b32 v{pl}, 0, v{pl}, s[{sT+4}:{sT+5}]
        s_movk_i32 s{sLIM}, 64
        v_cmp_le_u32 vcc, 2, v{x}
        v_mov_b32 v{k}, {POOL}
        v_mov_b32 v{p}, {POOL - NSTR - (2 << 22)}
        v_cndmask_b32 v{k}, v{k}, v{p}, vcc
        v_lshl_add_u32 v{x}, v{x}, 22, v{k}
        v_mov_b32 v{t0+11}, v{d}
        v_mov_b32 v{t0+12}, v{e}
        v_mov_b32 v{t0+13}, v{x}
        s_mov_b32 s{sT+2}, {(1 << 24) // NSTR + 1}
        ''')
        for nd in range(40): assert ((nd*NSTR) * ((1 << 24)//NSTR + 1)) >> 24 == nd
        for i in range(U):
            nx = self.lab('ov')
            a(f'''
            v_cmp_lt_i32 vcc, {2*i}, v{vREM}
            s_cbranch_vccz K2_OV_DONE
            v_subrev_u32 v{t0}, {RECBASE}, v{NBs+i}
            v_mul_hi_u32_u24 v{t0+1}, s{sT+2}, v{t0}
            v_mul_u32_u24 v{t0}, s{sT+2}, v{t0}
            v_alignbit_b32 v{t0}, v{t0+1}, v{t0}, 24
            v_lshlrev_b32 v{t0}, 2, v{t0}
            ds_bpermute_b32 v{t0+7}, v{t0}, v{t0+13}
            v_subrev_u32 v{t0}, 48, v{RK+i}
            v_cmp_gt_u32 s[{sT+4}:{sT+5}], 16, v{t0}
            s_waitcnt lgkmcnt(0)
            s_and_b64 exec, vcc, s[{sT+4}:{sT+5}]
            s_cbranch_execz {nx}
            v_lshrrev_b32 v{t0+1}, 18, v{t0+7}
            v_add_u32 v{t0}, v{t0}, v{t0+1}
            v_and_b32 v{t0+7}, 0x3ffff, v{t0+7}
            {scatter(i, t0, t0+7)}
            {nx}:
            s_mov_b64 exec, -1
            ''')
        a(f'''
        K2_OV_DONE:
        v_mov_b32 v{d}, v{t0+11}
        v_mov_b32 v{e}, v{t0+12}
        s_waitcnt lgkmcnt(0)
        s_barrier
        s_branch K2_TOK
        K2_SLOW:
        v_mov_b32 v{x}, v{d}
        ''')
        scan(a, x, 'v_max_u32')
        for dd in range(48, 512*U + 48): assert (dd * 43691) >> 21 == dd // 48
        a(f'''
        v_readlane_b32 s{sR}, v{x}, 63
        s_add_u32 s{sR}, s{sR}, 47
        s_mul_i32 s{sR}, s{sR}, 43691
        s_lshr_b32 s{sR}, s{sR}, 21
        ''')
        for i in range(U):
            a(f'v_cmp_lt_i32 vcc, {2*i}, v{vREM}\ns_cbranch_vccz K2_SV_DONE\ns_mov_b64 exec, vcc')
            a(f'buffer_store_dword v{RK+i}, v{vE}, {ws}, s{sT+8} offen offset:{8*i}')
        a('K2_SV_DONE:\ns_mov_b64 exec, -1\ns_branch K2_TOK')
        self.ool(o.text()); a = b
        for q in range(4): a(f's_movk_i32 s{sOWN+q}, {q*256}')
        a(f'''
        s_mov_b32 s{sJ}, 0
        s_mov_b32 s{sNPH}, 0
        s_mov_b32 s{sNP}, 0
        s_mov_b32 s{sNV}, 1
        s_mov_b32 s{sCP}, 0
        s_mov_b32 s{sT}, s{sW}
        ''')
        lg = LG(a)
        self.emit(self.next_info(0), lg)
        stamp(a, 3)
        pre = self.eread()
        for t in range(4): pre += self.sread(t)
        pre += self.adma()
        for t in range(4): pre += self.gmad(t)
        for t in range(4): pre += self.dma(t, G + 2*t, sNX + t)
        pre += [f'v_add_u32 v{VAO}, s{sNBs}, v{VAO}', f'v_add_u32 v{VYO}, s{sNBs}, v{VYO}', 's_waitcnt vmcnt(6)']
        self.emit(pre, lg)
        stamp(a, 4)
        self.emit(self.bread(0) + self.areads(0) + self.areads(1), lg)
        self.dispatch(0, check=False)
        for ph in range(2):
            for nK in (2, 3): self.unit(nK, ph)
        for ph in range(2):
            for nK in (1, 4): self.unit(nK, ph)
        a('K2_SWITCH:')
        stamp(a, 5)
        self.emit(self.fin(3, 0), LG(a))
        a(f's_cmp_eq_u32 s{sNV}, 0\ns_cbranch_scc1 K2_TAIL2\nv_lshlrev_b32 v{VT0}, 3, v{VL2}\nv_add_u32 v{VPA}, s{sNP}, v{VL2}')
        self.wload(1, VT0)
        for q in range(4): a(f's_movk_i32 s{sOWN+q}, {q*256+128}')
        a(f's_cmp_lg_u32 s{sNK}, 1\ns_cbranch_scc1 K2_SW2\ns_waitcnt vmcnt(0)\nK2_SW2:')
        if not FUSE: stamp(a, 6)
        self.dispatch(1, check=False)
        for t in self.outline: a(t)
        self.tail()
        a('K2_END:\ns_endpgm')
        return a.lines, 256

    def tail(self):
        a = self.a
        ws = f's[{sWS}:{sWS+3}]'
        vP0 = 222; vP1 = 223; vS = 226; vSP = 227; vRow = 228; vL16 = 229
        OP = 176
        def sload():
            a(f'v_lshlrev_b32 v{vL16}, 3, v{VL2}\ns_mul_i32 s{sT}, s{sW}, {20*1024}\ns_add_u32 s{sT}, s{sT}, {WS_STAB}')
            for f in range(20):
                a(f'buffer_load_dwordx4 v[{WR+4*f}:{WR+4*f+3}], v{vL16}, {ws}, s{sT} offen offset:{(f%4)*1024} {"sc1" if FUSE else ""}')
                if f % 4 == 3 and f < 19: a(f's_add_u32 s{sT}, s{sT}, 4096')
        a('K2_TAIL2:')
        sload()
        a('s_branch K2_TAIL3\nK2_TAIL:')
        stamp(a, 7)
        sload()
        self.emit(self.fin(3, 1), LG(a))
        a(f"""
        K2_TAIL3:
        s_mul_i32 s{sT+1}, s{sW}, {8192+32}
        v_add_u32 v{vRow}, s{sT+1}, v{VL2}
        s_waitcnt vmcnt(20)
        """)
        rows = [(0,2),(5,8),(3,6),(9,1),(4,7),(10,None)]
        dump = []
        for j in range(5):
            for k, (lo, hi) in enumerate(rows):
                dump.append(f'ds_write_b16 v{vRow}, v{P0+6*j+k} offset:{j*1536 + lo*128}')
                if hi is not None: dump.append(f'ds_write_b16_d16_hi v{vRow}, v{P0+6*j+k} offset:{j*1536 + hi*128}')
        for x in dump: a(x)
        a(f"""
        v_bfe_u32 v48, v{VL2}, 1, 4             ; n & 15
        v_lshlrev_b32 v49, 2, v48
        v_add_u32 v50, 64, v49
        v_add_u32 v51, 128, v49
        ds_bpermute_b32 v{vP1}, v49, v{VTAB}
        ds_bpermute_b32 v{vP1+1}, v50, v{VTAB}
        ds_bpermute_b32 v{vP1+2}, v51, v{VTAB}
        v_lshrrev_b32 v49, 5, v{VL2}            ; slab
        v_and_b32 v50, 7, v48
        v_mul_u32_u24 v50, {8192+32}, v50
        v_lshrrev_b32 v51, 3, v48
        v_mul_u32_u24 v51, 1536, v51
        v_add_u32 v50, v50, v51
        v_lshlrev_b32 v52, 4, v49               ; slab*16
        v_add_u32 v{vP0}, v50, v52
        s_lshl_b32 s{sT+2}, s{sW}, 5
        v_lshl_add_u32 v51, v49, 3, s{sT+2}
        v_bfe_u32 v53, v48, 2, 1
        v_lshl_add_u32 v51, v53, 4, v51
        v_add_u32 v{vS}, v50, v51
        s_sub_u32 s{sT+2}, s{sNC}, 32
        v_cmp_gt_u32 s[{sEX}:{sEX+1}], s{sT+2}, v48
        s_bfe_u32 s{sT+2}, s{sW}, 0x10002
        s_lshl_b32 s{sT+2}, s{sT+2}, 4
        s_add_u32 s{sT+1}, s{sT+1}, s{sT+2}
        s_add_u32 s{sRND}, s{sRND}, 1
        s_cmp_ge_u32 s{sRND}, s{sR}
        s_cselect_b32 s{sLAST}, 1, 0
        s_cmp_eq_u32 s{sMORE}, 0
        s_cselect_b32 s{sLAST}, s{sLAST}, 0
        s_and_b32 s{sT+6}, s{sLAST}, s{sFIRST}
        s_mov_b32 s{sT+5}, 0xbfb8aa3b           ; -log2(e)
        v_lshlrev_b32 v53, 5, v48
        s_waitcnt lgkmcnt(0)
        v_add_u32 v{vRow}, s{sT+1}, v{vL16}
        """)
        for g in range(3):
            a(f'v_and_b32 v51, 0x3ffff, v{vP1+g}\nv_sub_u32 v50, v53, v51\nv_and_b32 v50, 0xff, v50\nv_add3_u32 v{vP1+g}, v50, v51, v52')
        stamp(a, 8); a('s_barrier'); stamp(a, 9)
        a(f's_cmp_eq_u32 s{sT+6}, 0\ns_cbranch_scc1 K2_MULTI')
        steps = []
        for g in range(3):
            for ph in range(2):
                for rs in range(2):
                    for hh in range(2): steps.append((g, 0, ph*4 + rs*2 + hh, ph, rs, hh))
            for ph in range(2):
                for path in range(3):
                    for hh in range(2):
                        for j in range(3): steps.append((g, 1+j, 8 + ph*6 + path*2 + hh, ph, 2 + 3*j + path, hh))
        NB = 12; D = 10
        def epi(g):
            c = 16*g; o = OP + 8*(g & 1); s = []; tp = 200
            for r in range(4): s.append(f'v_mul_f32 v{tp+r}, s{sT+5}, v{c+r}')
            for r in range(4): s.append(f'v_exp_f32 v{tp+r}, v{tp+r}')
            for r in range(4): s.append(f'v_add_f32 v{tp+r}, 1.0, v{tp+r}')
            for r in range(4): s.append(f'v_rcp_f32 v{tp+r}, v{tp+r}')
            s += [f'v_cvt_pk_bf16_f32 v{o}, v{c}, v{c+1}', f'v_cvt_pk_bf16_f32 v{o+1}, v{c+2}, v{c+3}']
            for j in range(3):
                for r in range(4): s.append(f'v_mul_f32 v{c+4+4*j+r}, v{c+4+4*j+r}, v{tp+r}')
                s += [f'v_cvt_pk_bf16_f32 v{o+2+2*j}, v{c+4+4*j}, v{c+5+4*j}', f'v_cvt_pk_bf16_f32 v{o+3+2*j}, v{c+6+4*j}, v{c+7+4*j}']
            return s
        def stage(g):
            o = OP + 8*(g & 1)
            w = [(f'ds_write_b64 v{vS}, v[{o+2*rt}:{o+1+2*rt}] offset:{g*3072 + rt*256}', [(f'w{g}', False)]) for rt in range(4)]
            return w if g < 2 else [f's_mov_b64 exec, s[{sEX}:{sEX+1}]'] + w + ['s_mov_b64 exec, -1']
        def rowread(g):
            return [(f'ds_read_b128 v[{192+4*(j&1)}:{195+4*(j&1)}], v{vRow} offset:{j*1536}', [(f'r{g}', False)]) for j in ((2*g, 2*g+1) if g < 2 else (4,))]
        def rowstore(g):
            s = [('wait', f'r{g}')]
            for j in ((2*g, 2*g+1) if g < 2 else (4,)):
                s = [f's_add_u32 s{sT+3}, s{sW}, {8*j}\nv_readlane_b32 s{sOWN+j}, v{VTAB}, s{sT+3}\ns_nop 0\ns_bfe_u32 s{sOWN+j}, s{sOWN+j}, 0x60015\ns_add_u32 s{sOWN+j}, s{sOWN+j}, s{sNB}\ns_lshl_b32 s{sOWN+j}, s{sOWN+j}, 10'] + s
                s += [f'buffer_store_dwordx4 v[{192+4*(j&1)}:{195+4*(j&1)}], v{vL16}, s[{sOUT}:{sOUT+3}], s{sOWN+j} offen {mod("outst","sc1")}']
            return s
        def gemm(lg, extra):
            def rd(k):
                g, rt, f, ph, row, hh = steps[k]
                b = 48 + 4*(k % NB)
                ad = f'v{vP1+g} offset:{row*128 + hh*64}' if ph else f'v{vP0} offset:{g*3072 + row*128 + hh*64}'
                self.emit([(f'ds_read_b128 v[{b}:{b+3}], {ad}', [(f'k{k}', False)])], lg)
            for k in range(D): rd(k)
            seen = set(); started = set()
            for k in range(len(steps)):
                g, rt, f, ph, row, hh = steps[k]
                if k + D < len(steps): rd(k + D)
                vm = None
                if f not in seen: seen.add(f); vm = 19 - f
                self.emit([('wait', f'k{k}', vm)], lg)
                b = 48 + 4*(k % NB); c = 16*g + 4*rt
                cin = f'v[{c}:{c+3}]' if c in started else '0'; started.add(c)
                a(f'v_mfma_f32_16x16x32_bf16 v[{c}:{c+3}], v[{WR+4*f}:{WR+4*f+3}], v[{b}:{b+3}], {cin}')
                self.emit(extra.get(k, []), lg)
        lg = LG(a); extra = {}
        for g in range(2):
            e = epi(g); k0 = 44*(g+1) + 3
            for i, x in enumerate(e): extra.setdefault(k0 + min(i, 40), []).append(x)
        extra.setdefault(44 + 2, []).insert(0, 's_barrier')
        extra[83] = stage(0)
        extra[95] = [('wait', 'w0'), 's_barrier'] + rowread(0) + extra[95]
        extra[107] += rowstore(0)
        extra[127] = stage(1)
        gemm(lg, extra)
        stamp(a, 10)
        self.emit(epi(2) + [('wait', 'w1'), 's_barrier'] + rowread(1) + stage(2) + rowstore(1) + [('wait', 'w2'), 's_barrier'], lg)
        a(f'K2_LASTROW:\ns_add_u32 s{sT+1}, s{sW}, 32\ns_cmp_ge_u32 s{sT+1}, s{sNC}\ns_cbranch_scc1 K2_FIN')
        self.emit(rowread(2) + rowstore(2), lg)
        a('K2_FIN:')
        if PROF:
            stamp(a, 11); a('s_waitcnt vmcnt(0)'); stamp(a, 12); stamp_out(a, 13, 1, sW, sB, sWS)
        a('s_branch K2_END')
        a('K2_MULTI:')
        lg = LG(a)
        gemm(lg, {})
        a(f"""
        s_lshl_b32 s{sT+2}, s{sB}, 9
        s_lshl_b32 s{sT+3}, s{sW}, 6
        s_add_u32 s{sT+2}, s{sT+2}, s{sT+3}
        s_mul_i32 s{sT+2}, s{sT+2}, 192
        s_add_u32 s{sT+2}, s{sT+2}, {WS_ACC}
        v_mul_u32_u24 v{vSP}, 96, v{VL2}        ; lane*192
        s_cmp_lg_u32 s{sFIRST}, 0
        s_cbranch_scc1 K2_NOACC
        """)
        for i in range(12): a(f'buffer_load_dwordx4 v[{48+4*i}:{51+4*i}], v{vSP}, {ws}, s{sT+2} offen offset:{16*i}')
        a('s_waitcnt vmcnt(0)')
        for i in range(48): a(f'v_add_f32 v{i}, v{i}, v{48+i}')
        a(f'K2_NOACC:\ns_barrier\ns_cmp_eq_u32 s{sLAST}, 0\ns_cbranch_scc1 K2_SPILL')
        for g in range(2):
            self.emit(epi(g) + stage(g) + [('wait', f'w{g}'), 's_barrier'] + rowread(g) + rowstore(g), lg)
        self.emit(epi(2) + stage(2) + [('wait', 'w2'), 's_barrier'], lg)
        a('s_branch K2_LASTROW\nK2_SPILL:')
        for i in range(12): a(f'buffer_store_dwordx4 v[{4*i}:{4*i+3}], v{vSP}, {ws}, s{sT+2} offen offset:{16*i}')
        a(f"""
        s_mov_b32 s{sFIRST}, 0
        s_waitcnt vmcnt(0)
        s_cmp_lt_u32 s{sRND}, s{sR}
        s_cbranch_scc1 K2_LOAD
        s_add_u32 s{sJ0}, s{sJ0}, {2*U}
        s_branch K2_WINDOW
        """)

HEADER = '''; Kernarg layout for this problem (96 bytes, ptrs only, base s[0:1]):
'''
def kd(name, vgpr):
    return f'''.amdhsa_kernel {name}
  .amdhsa_next_free_vgpr {vgpr}
  .amdhsa_next_free_sgpr {102 if PROF else 76}
  .amdhsa_accum_offset {(vgpr+3)//4*4}
  .amdhsa_group_segment_fixed_size 0
  .amdhsa_kernarg_size 96
  .amdhsa_user_sgpr_count 2
  .amdhsa_user_sgpr_kernarg_segment_ptr 1
  .amdhsa_system_sgpr_workgroup_id_x 1
  .amdhsa_float_denorm_mode_32 3
.end_amdhsa_kernel
'''
def main():
    ks = []
    if not FUSE: l1, v1 = k1(); ks.append(('tp_sort_kernel', fix_hazards(l1), v1))
    l2, v2 = K2().gen(); ks.append((NAME + '_kernel' if FUSE else 'tp_main_kernel', fix_hazards(l2), v2))
    s = HEADER
    if FUSE:
        s += f'; @launch grid=(256,1,1) block=(512,1,1) lds={K2_LDS}\n'
    else:
        s += f'; @launch kernel=tp_sort_kernel grid=({NCH},1,1) block=({K1_T},1,1) lds={K1_LDS}\n'
        s += f'; @launch kernel=tp_main_kernel grid=(256,1,1) block=(512,1,1) lds={K2_LDS}\n'
    s += '.amdgcn_target "amdgcn-amd-amdhsa--gfx950"\n.text\n'
    for name, l, v in ks:
        s += f'.globl {name}\n.p2align 8\n.type {name},@function\n{name}:\n'
        s += '\n'.join((x if x.endswith(':') else '    ' + x) for x in l) + '\n'
    s += '.section .rodata,"a"\n' + ''.join('.p2align 6\n' + kd(name, v) for name, l, v in ks)
    out = sys.argv[1] if len(sys.argv) > 1 else f'/code/{NAME}.s'
    open(out, 'w').write(s)
    print('wrote', out, len(s), 'bytes')
main()
```

```python
import sys, os
sys.path.insert(0, os.path.dirname(os.path.abspath(__file__)))
from asmlib import Asm, fix_hazards

NAME = 'standalone__tensor_product_equiv_equiformer__graph'
N = 10000; E = 320000
NCH = 250; CH = E // NCH
CSTR = CH * 16 + 128
TSTR = 1024 + 128
WS_REC = 0
WS_TBL = 0x0600000
WS_STAB = 0x06A0000
WS_WTAB = 0x06C8000
WS_FLG = 0x06D8000
WS_RANK = 0x0700000
WS_PROF = 0x0900000
WS_ACC = 0x0A00000
WS_SIZE = 0x2400000
assert NCH * CSTR <= WS_TBL and WS_TBL + NCH * TSTR <= WS_STAB and WS_ACC + 256*512*192 <= WS_SIZE
BMUL = 429497
for d in range(N): assert ((d * BMUL) & 0xffffffff) >> 24 == (d * 16) // 625

OPT = dict(a.split('=') for a in sys.argv[2:]) if len(sys.argv) > 2 else {}
def opt(k, d): return type(d)(OPT.get(k, d)) if not isinstance(d, bool) else bool(int(OPT.get(k, d)))
def mod(k, d): return opt(k, d).replace('_', ' ')

PROF = opt('prof', False)
FUSE = True
SEG = opt('seg', False)
def seg(i): return [f's_memtime s[{76+2*i}:{77+2*i}]'] if SEG else []
PROFS = opt('profs', False)
def sstamp(a, i):
    if PROFS: a(f's_memrealtime s[{76+2*i}:{77+2*i}]')
def stamp(a, i):
    if PROFS and (i >= 7 or (i == 1 and opt('diag', 0))): return
    if PROF and not SEG: a(f'{"s_memtime" if opt("cyc", False) else "s_memrealtime"} s[{76+2*i}:{77+2*i}]')
def stamp_out(a, n, kern, swave, swg, srd_s):
    if not PROF: return
    if opt('dbgout', -1) >= 0:
        l = f'DBG_{kern}'
        a(f's_cmp_lg_u32 s{swg}, {opt("dbgout", -1)}\ns_cbranch_scc1 {l}\ns_cmp_lg_u32 s{swave}, 0\ns_cbranch_scc1 {l}')
        a(f's_load_dwordx2 s[58:59], s[0:1], 80\ns_waitcnt lgkmcnt(0)\ns_add_u32 s58, s58, {512*(1-kern)*opt("dbgk1", 0)}\ns_addc_u32 s59, s59, 0')
        srd(a, 60, 58, 256)
        a('s_mov_b64 exec, 1\nv_mov_b32 v1, 0')
        for i, o in ([(0, 0), (5, 14), (2, 15)] if kern == 0 else [(i, 1+i) for i in range(13)]):
            a(f'v_mov_b32 v2, s{76+2*i}\nbuffer_store_dword v2, v1, s[60:63], 0 offen offset:{4*o}')
        a(f's_mov_b64 exec, -1\n{l}:')
        return
    a('s_waitcnt lgkmcnt(0)')
    a(f's_lshl_b32 s67, s{swg}, 4\ns_add_u32 s67, s67, s{swave}\ns_lshl_b32 s67, s67, 6\ns_add_u32 s67, s67, {WS_PROF + kern*256*16*64}')
    a('s_mov_b64 exec, 1\nv_mov_b32 v1, 0')
    for i in range(n):
        a(f'v_mov_b32 v2, s{76+2*i if not SEG else 96+min(i,5)}\nbuffer_store_dword v2, v1, s[{srd_s}:{srd_s+3}], s67 offen offset:{4*i}')
    a('s_mov_b64 exec, -1')

def srd(a, s, ptr, nbytes):
    a(f's_mov_b32 s{s}, s{ptr}\ns_and_b32 s{s+1}, s{ptr+1}, 0xffff\ns_mov_b32 s{s+2}, {nbytes}\ns_mov_b32 s{s+3}, 0x20000')

def scan(a, v, op='v_add_u32'):
    for sh in (1, 2, 4, 8):
        a(f'{op}_dpp v{v}, v{v}, v{v} row_shr:{sh} row_mask:0xf bank_mask:0xf bound_ctrl:0')
    a(f'{op}_dpp v{v}, v{v}, v{v} row_bcast:15 row_mask:0xa bank_mask:0xf')
    a(f'{op}_dpp v{v}, v{v}, v{v} row_bcast:31 row_mask:0xc bank_mask:0xf')

K1_T = CH // 4
K1_LDS = 2048 + CH * 16
def weight_loads(a):
    a(f'''
    v_and_b32 v1, 15, v8
    v_lshrrev_b32 v3, 4, v8
    s_cmp_ge_u32 s2, 160
    s_cbranch_scc1 K1_WT
    s_cmp_ge_u32 s2, 64
    s_cbranch_scc1 K1_S1
    s_lshr_b32 s24, s2, 3
    s_and_b32 s25, s2, 7
    s_lshr_b32 s26, s25, 2
    s_bfe_u32 s27, s25, 0x10001
    s_and_b32 s28, s25, 1
    ''')
    srd(a, 60, 92, 256*128*2)
    a(f'''
    s_branch K1_SC
    K1_S1:
    ; S1: g2 = g-64; w = g2/12, f2 = g2%12 : ph = f2/6, path = (f2%6)>>1, hh = f2&1
    s_sub_u32 s29, s2, 64
    s_mul_i32 s24, s29, 43
    s_lshr_b32 s24, s24, 9
    s_mul_i32 s25, s24, 12
    s_sub_u32 s25, s29, s25
    s_cmp_ge_u32 s25, 6
    s_cselect_b32 s26, 1, 0
    s_mul_i32 s27, s26, 6
    s_sub_u32 s27, s25, s27
    s_lshr_b32 s27, s27, 1
    s_and_b32 s28, s25, 1
    s_add_u32 s25, s25, 8
    ''')
    for g2 in range(96): assert (g2*43) >> 9 == g2 // 12
    srd(a, 60, 94, 384*128*2)
    a(f'''
    K1_SC:
    s_lshl_b32 s27, s27, 7
    s_lshl_b32 s26, s26, 6
    s_lshl_b32 s28, s28, 5
    s_add_u32 s27, s27, s26
    s_add_u32 s27, s27, s28
    s_lshl_b32 s27, s27, 8
    s_lshl_b32 s26, s24, 5
    s_add_u32 s27, s27, s26
    v_lshlrev_b32 v3, 11, v3
    v_lshl_add_u32 v3, v1, 1, v3
    ''')
    for e in range(8): a(f'buffer_load_ushort v{64+e}, v3, s[60:63], s27 offen offset:{e*256}')
    a(f'''
    s_mul_i32 s24, s24, 20
    s_add_u32 s24, s24, s25
    s_lshl_b32 s24, s24, 10
    s_add_u32 s24, s24, {WS_STAB}
    s_branch K1_GO
    K1_WT:
    ; W (fp32): g3 = g-160; ph = g3/20, i = g3%20 : p = i>>2, u = (i>>1)&1, rq = i&1
    s_sub_u32 s24, s2, 160
    s_cmp_ge_u32 s24, 20
    s_cselect_b32 s26, 1, 0
    s_mul_i32 s25, s26, 20
    s_sub_u32 s25, s24, s25
    s_lshr_b32 s27, s25, 2
    s_bfe_u32 s28, s25, 0x10001
    s_and_b32 s25, s25, 1
    s_mul_i32 s25, s25, {8*1280}
    s_lshl_b32 s27, s27, 8
    s_lshl_b32 s26, s26, 7
    s_lshl_b32 s28, s28, 6
    s_add_u32 s27, s27, s26
    s_add_u32 s27, s27, s28
    s_add_u32 s27, s27, s25
    ''')
    srd(a, 60, 90, 16*640*2)
    a(f'''
    v_and_b32 v1, 31, v8
    v_lshrrev_b32 v3, 5, v8
    v_mul_u32_u24 v3, {4*1280}, v3
    v_lshl_add_u32 v3, v1, 1, v3
    v_mov_b32 v64, 0
    v_mov_b32 v66, 0
    v_mov_b32 v68, 0
    v_mov_b32 v70, 0
    ''')
    for r in range(4): a(f'buffer_load_ushort v{65+2*r}, v3, s[60:63], s27 offen offset:{r*1280}')
    a(f'''
    s_lshl_b32 s24, s24, 10
    s_add_u32 s24, s24, {WS_WTAB}
    ''')

def sort_rank(a):
    for j in range(4):
        a(f'v_mul_u32_u24 v{28+j}, s58, v{12+j}\nv_lshrrev_b32 v{32+j}, 27, v{28+j}\nv_bfe_u32 v{36+j}, v{28+j}, 24, 3\nv_lshlrev_b32 v{32+j}, 2, v{32+j}')
        a(f'v_lshl_or_b32 v{32+j}, v{36+j}, 7, v{32+j}\nds_add_rtn_u32 v{36+j}, v{32+j}, v7')
    for j in range(4):
        a(f'v_lshrrev_b32 v{28+j}, 24, v{28+j}\nv_mad_u32_u24 v{28+j}, v{28+j}, s59, 15\nv_lshrrev_b32 v{28+j}, 4, v{28+j}\nv_sub_u32 v{28+j}, v{12+j}, v{28+j}')
        a(f'v_add_u32 v{12+j}, {j}, v2\nv_lshlrev_b32 v{12+j}, 14, v{12+j}\nv_lshl_or_b32 v{28+j}, v{28+j}, 25, v{12+j}')
    a(f'''
    v_mov_b32 v59, {NONCE}
    s_mul_i32 s65, s2, {TSTR}
    s_add_u32 s65, s65, {WS_TBL}
    s_mul_i32 s64, s2, {CSTR}
    s_waitcnt lgkmcnt(0)
    s_barrier
    ''')
    sstamp(a, 9)
    a(f'''
    ds_read_b128 v[40:43], v9
    ds_read_b32 v59, v59
    s_waitcnt lgkmcnt(1)
    v_add_u32 v45, v40, v41
    v_add_u32 v46, v45, v42
    v_add_u32 v47, v46, v43
    v_mov_b32 v58, v47
    ''')
    scan(a, 58)
    a(f'''
    v_sub_u32 v48, v58, v47                 ; exclusive
    v_add_u32 v49, v48, v40
    v_add_u32 v50, v48, v45
    v_add_u32 v51, v48, v46
    ds_write_b128 v9, v[48:51] offset:1024
    s_waitcnt vmcnt(0) lgkmcnt(1)
    s_cmp_lg_u32 s{sW}, 4
    s_cbranch_scc1 KS_NOPUB
    v_lshl_or_b32 v56, v49, 11, v48
    v_lshl_or_b32 v57, v51, 11, v50
    v_lshl_or_b32 v56, v59, 22, v56
    v_lshl_or_b32 v57, v59, 22, v57
    buffer_store_dwordx4 v[56:59], v9, s[{sWS}:{sWS+3}], s65 offen sc1
    KS_NOPUB:
''')
    sstamp(a, 10)

def sort_emit(a, st):
    a('v_and_b32 v60, 0xffff, v59\ns_mov_b32 s58, 0xffff0000')
    for j in range(4):
        b = 20 + 3*(j >> 1)
        if j & 1: a(f'v_alignbit_b32 v{40+4*j}, v{b+2}, v{b+1}, 16\nv_and_or_b32 v{41+4*j}, v{b+2}, s58, v60')
        else: a(f'v_mov_b32 v{40+4*j}, v{b}\nv_lshl_or_b32 v{41+4*j}, v{b+1}, 16, v60')
        a(f'v_mov_b32 v{42+4*j}, v59\nv_or_b32 v{43+4*j}, v{28+j}, v{16+j}')
    a('s_waitcnt lgkmcnt(0)')
    for j in range(4):
        a(f'v_add_lshl_u32 v{32+j}, v{32+j}, v{36+j}, 4\nds_write_b128 v{32+j}, v[{40+4*j}:{43+4*j}] offset:2048')
    a(f's_waitcnt lgkmcnt(0)\ns_barrier')
    sstamp(a, 11)
    for i in range(4): a(f'ds_read_b128 v[{12+4*i}:{15+4*i}], v5 offset:{2048 + i*K1_T*16}')
    for i in range(4):
        a(f's_waitcnt lgkmcnt({3-i})')
        a(f'buffer_store_dwordx4 v[{12+4*i}:{15+4*i}], v5, s[8:11], s64 offen {st}')
        if i < 3: a(f's_add_u32 s64, s64, {K1_T*16}')

NSTR = 2400
OY = 0; OS = 768; OA = 864
RECBASE = 65536
POOL = RECBASE + 40 * NSTR
MISC = POOL + OA + 1024
HIST = MISC; PROG = MISC + 192; CNT = MISC + 224; FLAG = MISC + 228; NULLSRC = MISC + 256; SCR = MISC + 288; NONCE = MISC + 304
NULLBASE = NULLSRC - OS
K2_LDS = 163840
U = 10
ACC = 0; AR = 64; WR = 96; BR = 176; P0 = 192; G = 222
VEO = 230; VH16 = 231; T2 = 232; T3 = 233; PW = 234
VB0 = 246; VB1 = 247; VLG = 248; VAO = 249; VYO = 250; VSO = 251; VL2 = 252; VTAB = 253; VT0 = 254; VT1 = 255; VPA = VEO
sX = 4; sWS = 8; sOUT = 12; sEA = 16
sW = 20; sNB = 21; sNC = 22; sJ0 = 23; sRND = 24; sR = 25; sLIM = 26; sMORE = 27; sFIRST = 28
sCB = 29; sC4 = 30; sCP = 31; sNBs = 48; sNK = 33; sNPH = 34; sNP = 35; sNV = 36
sRING = 37; sJ = 38; s1024 = 39; sOWN = 40; sNX = 44; sSO = 48; sPROGW = 52; sPROG = 53; sB = 54; sLAST = 55
sEX = 56
sT = 58
sM0 = 68
sX2 = 72
sPP = 32
sN4 = 3
sTAG = 2

def tile(t, u): return ACC + 16 * (2*u + t)
TILES = [(0,0), (1,0), (0,1), (1,1)]
def Wreg(p, u): return WR + p*16 + u*8

def weave(x, y):
    o = []
    for i in range(max(len(x), len(y))):
        o += x[i:i+1] + y[i:i+1]
    return o

class LG:
    def __init__(self, a, q=()): self.a = a; self.q = list(q)
    def issue(self, tag, optional=False): self.q.append((tag, optional))
    def waitline(self, tag):
        idx = [i for i, (t, o) in enumerate(self.q) if t == tag]
        if not idx: return None
        y = sum(1 for (t, o) in self.q[idx[-1]+1:] if not o)
        self.q = self.q[idx[-1]+1:]
        return f's_waitcnt lgkmcnt({min(y, 15)})'

class K2:
    def __init__(self):
        self.a = Asm()
        self.uid = 0
        self.outline = []
    def lab(self, s):
        self.uid += 1
        return f'K2_{s}_{self.uid}'

    def dma(self, slot, greg, soff):
        return [f's_mov_b32 m0, s{sM0+slot}',
                f'buffer_load_dwordx4 v{greg}, s[{sX}:{sX+3}], s{soff} offen lds',
                f'buffer_load_dwordx4 v{greg+1}, s[{sX2}:{sX2+3}], s{soff} offen offset:1024 lds']
    def bread(self, item):
        out = []
        for u in range(2):
            for r in range(2):
                d = BR + (item & 1)*8 + u*4 + r*2
                out.append((f'ds_read_b64_tr_b16 v[{d}:{d+1}], v{VB0+u} offset:{(item & 3)*2048 + r*512}', [('B' if u == 0 or not opt('split', 0) else 'B1', False)]))
        return out
    def sread(self, t):
        return [f'v_add_u32 v{G+2*t}, s{sSO+t}, v{VSO}', (f'ds_read_b32 v{G+2*t}, v{G+2*t}', [(f'S{t}', False)])]
    def gmad(self, t):
        return [('wait', f'S{t}'),
                f'v_mad_u32_u16 v{G+2*t+1}, v{G+2*t}, s{s1024}, v{VLG} op_sel:[1,0,0,0]',
                f'v_mad_u32_u16 v{G+2*t}, v{G+2*t}, s{s1024}, v{VLG}']
    def ool(self, text): self.outline.append(text)
    def atomic(self):
        return [f'v_mov_b32 v{VT0}, {CNT}', f'v_mov_b32 v{VT1}, 1', f'v_lshl_add_u32 v{T3}, v{VL2}, 1, s{sPROG}',
                (f's_mov_b64 exec, 1\nds_add_rtn_u32 v{T2}, v{VT0}, v{VT1}\ns_mov_b64 exec, -1', [('C', False)]),
                (f'ds_read_b32 v{T3}, v{T3}', [('C', False)])]
    def claimed(self):
        nul = self.lab('nul'); spin = self.lab('spin'); chk = self.lab('chk'); back = self.lab('back')
        self.ool(f'{nul}:\ns_mov_b32 s{sT}, 63\ns_mov_b32 s{sNV}, 0\ns_branch {back}')
        self.ool(f'{spin}:\nv_lshl_add_u32 v{T3}, v{VL2}, 1, s{sPROG}\nds_read_b32 v{T3}, v{T3}\ns_waitcnt lgkmcnt(0)\ns_branch {chk}')
        return [f'v_readfirstlane_b32 s{sT}, v{T2}',
                f"""s_cmp_lt_u32 s{sT}, s{sNC}
                s_cbranch_scc0 {nul}
                s_and_b32 s{sT+1}, s{sT}, 7
                s_lshr_b32 s{sT+2}, s{sT}, 3
                {chk}:
                v_readlane_b32 s{sT+3}, v{T3}, s{sT+1}
                s_nop 0
                s_cmp_gt_u32 s{sT+3}, s{sT+2}
                s_cbranch_scc0 {spin}
                {back}:"""]
    def claim0(self):
        dyn = self.lab('dyn'); back = self.lab('back')
        o = [x if isinstance(x, str) else x[0] for x in self.atomic()] + ['s_waitcnt lgkmcnt(0)'] + self.claimed()
        self.ool(f'{dyn}:\n' + '\n'.join(o) + f'\ns_mov_b32 s{sNPH}, 1\ns_branch {back}')
        return [f's_add_u32 s{sJ}, s{sJ}, 1', f'v_mov_b32 v{VT0}, s{sPROGW}', f'v_mov_b32 v{VT1}, s{sJ}',
                f's_lshl_b32 s{sT}, s{sJ}, 3', f's_add_u32 s{sT}, s{sT}, s{sW}',
                (f's_mov_b64 exec, 1\nds_write_b32 v{VT0}, v{VT1}\ns_mov_b64 exec, -1', [('W', False)]),
                f's_cmp_lt_u32 s{sT}, s{sNC}\ns_cbranch_scc0 {dyn}\n{back}:']
    def pooladdr(self, d, word, stride):
        return f"""s_lshr_b32 s{d}, s{word}, 27
            s_mov_b32 s{sT+8}, {POOL}
            s_cmp_ge_u32 s{d}, 2
            s_cselect_b32 s{sT+8}, {POOL - NSTR - 2*stride}, s{sT+8}
            s_mul_i32 s{d}, s{d}, {stride}
            s_add_u32 s{d}, s{d}, s{sT+8}"""
    def next_info(self, ph):
        rare = self.lab('rare'); back = self.lab('back'); four = self.lab('four')
        self.ool(f"""{rare}:
            s_cmp_eq_u32 s{sNK}, 4
            s_cbranch_scc1 {four}
            s_mov_b32 s{sSO+1}, s{sNBs}
            s_mov_b32 s{sSO+3}, s{sNBs}
            s_add_u32 s{sNX+1}, s{sNX}, 256
            s_add_u32 s{sNX+2}, s{sNX}, 512
            s_add_u32 s{sNX+3}, s{sNX}, 768
            s_branch {back}
            {four}:
            s_add_u32 s{sSO+2}, s{sNBs}, 64
            {self.pooladdr(sSO+3, sN4, 32)}
            s_mov_b32 s{sNX+2}, s{sNX}
            s_mov_b32 s{sNX+3}, s{sNX}
            s_branch {back}""")
        o = [f'v_readlane_b32 s{sN4}, v{VTAB}, s{sT}', f's_lshl_b32 s{sNX}, s{sNPH}, 7', f's_lshl_b32 s{sT+2}, s{sT}, 5',
             f's_and_b32 s{sNBs}, s{sN4}, 0x3ffff', f's_bfe_u32 s{sNK}, s{sN4}, 0x30012',
             f's_sub_u32 s{sT+2}, s{sT+2}, s{sNBs}', f's_and_b32 s{sT+2}, s{sT+2}, 0xff']
        if ph == 1: o += [f's_add_u32 s{sNP}, s{sT+2}, s{sNBs}']
        else: o += [f's_add_u32 s{sT+2}, s{sT+2}, s{sNBs}', f's_mul_i32 s{sNP}, s{sJ}, 6', f's_cmp_eq_u32 s{sNPH}, 0\ns_cselect_b32 s{sNP}, s{sNP}, s{sT+2}']
        o += [f's_mov_b32 s{sNX+1}, s{sNX}', f's_add_u32 s{sNX+3}, s{sNX}, 256', f's_add_u32 s{sSO+1}, s{sNBs}, 32', f's_add_u32 s{sT+2}, s{sNBs}, 64',
              f's_cmp_eq_u32 s{sNK}, 3\ns_cselect_b32 s{sNX+2}, s{sNX}, s{sNX+3}\ns_cselect_b32 s{sSO+2}, s{sT+2}, s{sNBs}\ns_cselect_b32 s{sSO+3}, s{sNBs}, s{sSO+1}',
              f's_sub_u32 s{sT+2}, s{sNK}, 2\ns_cmp_lt_u32 s{sT+2}, 2\ns_cbranch_scc0 {rare}\n{back}:']
        return o
    def eread(self):
        return [f'v_add_u32 v{T3}, s{sNBs}, v{VEO}',
                (f'ds_read_b32 v{T2}, v{T3}', [('E', False)]), (f'ds_read_b32 v{T3}, v{T3} offset:1024', [('E', False)])]
    NEXTRA = 2
    def adma(self):
        dum = self.lab('dum'); four = self.lab('a4'); back = self.lab('back'); b4 = self.lab('b4')
        ea = f's[{sEA}:{sEA+3}]'; m = mod('eald', '')
        self.ool(f'{dum}:\nv_mov_b32 v{T2}, -1\ns_mov_b32 m0, {SCR}\ns_mov_b64 exec, 1\n' + f'buffer_load_dwordx4 v{T2}, {ea}, 0 offen lds\n'*2 + f's_mov_b64 exec, -1\ns_branch {back}')
        self.ool(f"""{four}:
            {self.pooladdr(sT+7, sN4, 512)}
            v_add_u32 v{T2}, s{sT+7}, v{VEO}
            ds_read_b32 v{T2}, v{T2}
            s_add_u32 m0, s{sT+7}, {OA}
            s_waitcnt lgkmcnt(0)
            v_or_b32 v{T2}, v{T2}, v{VH16}
            buffer_load_dwordx4 v{T2}, {ea}, 0 offen {m} lds
            s_branch {b4}""")
        return [('wait', 'E'), f'v_or_b32 v{T2}, v{T2}, v{VH16}', f'v_or_b32 v{T3}, v{T3}, v{VH16}', f"""
        s_cmp_lg_u32 s{sNPH}, 0
        s_cbranch_scc1 {dum}
        s_add_u32 m0, s{sNBs}, {OA}
        s_add_u32 s{sT+7}, s{sNBs}, {OA+1024}
        buffer_load_dwordx4 v{T2}, {ea}, 0 offen {m} lds
        s_mov_b32 m0, s{sT+7}
        s_mov_b32 exec_hi, 0
        buffer_load_dwordx4 v{T3}, {ea}, 0 offen {m} lds
        s_cmp_eq_u32 s{sNK}, 4
        s_cbranch_scc1 {four}
        {b4}:
        s_mov_b32 exec_hi, -1
        {back}:"""]
    def areads(self, s):
        b = ACC + (s & 1) * 20
        va, vy, oa, oy, o = VAO, VYO, s*512, s*64, []
        if s == 3:
            va, vy, oa, oy = ACC + 56, ACC + 57, 0, 0
            o = [self.pooladdr(sT+7, sC4, 512) + f'\ns_sub_u32 s{sT+7}, s{sT+7}, s{sCB}\nv_add_u32 v{va}, s{sT+7}, v{VAO}',
                 self.pooladdr(sT+7, sC4, 64) + f'\ns_sub_u32 s{sT+7}, s{sT+7}, s{sCB}\nv_add_u32 v{vy}, s{sT+7}, v{VYO}']
        o += [(f'ds_read_b64_tr_b16 v[{b}:{b+1}], v{va} offset:{oa}', [(f'a{s}', False)]),
              (f'ds_read_b64_tr_b16 v[{b+2}:{b+3}], v{va} offset:{oa+128}', [(f'a{s}', False)])]
        for t in range(2):
            for hh in range(2):
                d = b + 4 + t*8 + hh*4
                o.append((f'ds_read_b128 v[{d}:{d+3}], v{vy} offset:{oy + t*384 + hh*16}', [(f'y{s}{t}', False)]))
        return o
    def abuild(self, nK):
        o = []
        for s in range(nK):
            b = ACC + (s & 1) * 20; un = ACC + 40 + (s & 1) * 8
            o.append(('wait', f'a{s}'))
            for i in range(4):
                o += [f'v_lshlrev_b32 v{un+2*i}, 16, v{b+i}', f'v_and_b32 v{un+1+2*i}, 0xffff0000, v{b+i}']
            for t in range(2):
                o.append(('wait', f'y{s}{t}'))
                for e in range(8): o.append(f'v_mul_f32 v{b+4+t*8+e}, v{un+e}, v{b+4+t*8+e}')
                for i in range(4): o.append(f'v_cvt_pk_bf16_f32 v{AR+s*8+t*4+i}, v{b+4+t*8+2*i}, v{b+5+t*8+2*i}')
            if s + 2 < nK: o += self.areads(s + 2)
        return o
    R = dict(A=PW, B=PW+2, C=PW+4, D=PW+6, E=PW+8, F=PW+10)
    CH_ = {0: [(0,'A','new'),(2,'B','new'),(2,'C','new'),(2,'D','new')],
           1: [(3,'A','new'),(1,'B','new'),(4,'C','new'),(4,'D','new')],
           2: [(3,'E','new'),(4,'C','neg'),(1,'B','acc'),(4,'F','new')],
           3: [(3,'E','new'),(4,'D','neg'),(4,'F','neg'),(1,'B','acc')]}
    def F(self, q, k):
        t, u = TILES[k]; o = []
        for r in range(8):
            for b in (2*t, 2*t+1):
                p, d, mode = self.CH_[q][b]
                T = tile(t, u) + (b & 1)*8 + r; W = Wreg(p, u) + r; D = self.R[d] + u
                if r == 0 and mode == 'new': o.append(f'v_mul_f32 v{D}, v{T}, v{W}')
                elif r == 0 and mode == 'neg': o.append(f'v_fma_f32 v{D}, v{T}, v{W}, -v{D}')
                else: o.append(f'v_fmac_f32 v{D}, v{T}, v{W}')
        return o
    def fin(self, q, ph, sp=None):
        sp = sCP if sp is None else sp
        R = self.R
        names = {0: [('A',0),('B',0),('C',0),('D',0)], 1: [('A',0)], 2: [('C',0),('E',0)], 3: [('E',0),('D',1),('B',0),('F',0)]}[q]
        pairs = {0: [(0, R['A'], 0, R['B'], 2), (1, R['C'], 5, R['D'], 8)], 1: [], 2: [(2, R['A'], 3, R['E'], 6)],
                 3: [(3, R['E'], 9, R['B'], 1), (4, R['F'], 4, R['D'], 7), (5, R['C'], 10, R['C'], None)]}[q]
        o = [f'v_permlane32_swap_b32 v{R[n]}, v{R[n]+1}' for n, _ in names]
        if ph == 1 and q == 0: o.append(f'v_add_u32 v{VPA}, s{sCP}, v{VL2}')
        o += [(f'v_add_f32 v{R[n]}, -v{R[n]}, -v{R[n]+1}' if neg else f'v_add_f32 v{R[n]}, v{R[n]}, v{R[n]+1}') for n, neg in names]
        if pairs and ph == 0:
            o.append(f's_set_gpr_idx_on s{sp}, gpr_idx(DST)\n' + ''.join(f'v_cvt_pk_bf16_f32 v{P0+slot}, v{lo}, v{hi}\n' for (slot, lo, lr, hi, hr) in pairs) + 's_set_gpr_idx_off')
        elif pairs:
            for (slot, lo, lr, hi, hr) in pairs: o.append(f'v_cvt_pk_bf16_f32 v{lo}, v{lo}, v{hi}')
            for (slot, lo, lr, hi, hr) in pairs:
                o.append((f'ds_write_b16 v{VPA}, v{lo} offset:{lr*128}', [('P', False)]))
                if hr is not None: o.append((f'ds_write_b16_d16_hi v{VPA}, v{lo} offset:{hr*128}', [('P', False)]))
        return o
    def drop(self, line):
        x = opt('drop', '')
        if not x or not getattr(self, 'inunit', False) or '\n' in line.strip(): return False
        l = line.strip()
        if 'D' in x and l.startswith('buffer_load') and (f's[{sX}:' in l or f's[{sX2}:' in l): return True
        if 'P' in x and l.startswith('ds_write_b16'): return True
        if 'S' in x and l.startswith('v_permlane'): return True
        if 'C' in x and l.startswith('v_cvt_pk'): return True
        if 'B' in x and l.startswith('ds_read_b64_tr') and (f'v{VB0} ' in l or f'v{VB1} ' in l): return True
        if 'F' in x and l.startswith('v_fmac'): return True
        if 'A' in x and l.startswith(('v_lshlrev_b32','v_and_b32','v_cvt_pk')): return True
        if 'A' in x and l.startswith('v_mul_f32') and int(l.split()[1][1:-1]) < 64: return True
        if 'Y' in x and l.startswith(('ds_read_b128',)): return True
        return False
    def emit(self, items, lg):
        for it in items:
            if isinstance(it, str):
                if not self.drop(it): self.a(it)
            elif it[0] != 'wait' and self.drop(it[0]):
                for t, o in it[1]: lg.issue(t, o)
            elif it[0] == 'wait':
                w = lg.waitline(it[1])
                if len(it) > 2 and it[2] is not None: w = f's_waitcnt vmcnt({it[2]})' + (w[len('s_waitcnt'):] if w else '')
                if w: self.a(w)
            else:
                self.a(it[0])
                for t, o in it[1]: lg.issue(t, o)
    ENTRY = [('B', False)]*2 + [('B1' if opt('split', 0) else 'B', False)]*2 + [('a0', False)]*2 + [('y00', False)]*2 + [('y01', False)]*2 + [('a1', False)]*2 + [('y10', False)]*2 + [('y11', False)]*2
    @staticmethod
    def cost(it):
        if isinstance(it, tuple):
            if it[0] == 'wait': return 1
            it = it[0]
        return sum((2 if 'permlane' in l else 1) for l in it.strip().split('\n') if not l.strip().endswith(':'))
    def unit(self, nK, ph):
        a = self.a
        lg = LG(a, self.ENTRY)
        a(f'K2_U{nK}{ph}:')
        self.inunit = True
        n = 4 * nK
        BUD = opt('bud', 7)
        pre = seg(0)
        claim = (self.claim0() if ph == 0 else self.atomic())
        after = ([] if ph == 0 else [('wait', 'C')] + self.claimed()) + self.next_info(ph)
        if nK == 1: pre += claim
        pre += self.abuild(nK)
        if nK == 1:
            pre += after + (self.eread() if ph == 0 else [])
            for t in range(4): pre += self.sread(t)
            if ph == 0: pre += self.adma()
            for t in range(4): pre += self.gmad(t)
        x = -1 if nK == 1 else 2
        MW = opt('mergewait', True)
        gaps = [[] for _ in range(4*n)]; tailg = [[] for _ in range(4*n)]
        vmn = lambda i: 4 + (self.NEXTRA if (ph == 0 and x < i <= x + 3) else 0)
        for i in range(n):
            d = self.dma(i & 3, G + 2*((i+4) % nK), sOWN + (i+4)//nK) if i + 4 < n else self.dma(i & 3, G + 2*(i+4-n), sNX + (i+4-n))
            br = self.bread(i + 1); SP = opt('split', 0)
            w = [] if MW else [f's_waitcnt vmcnt({vmn(i)})']
            if SP == 0:
                gaps[4*i] += w + br; tailg[4*i] += [d[0]]; gaps[4*i+1] += [d[1], d[2]]
            elif SP == 1:
                gaps[4*i] += w + br[:2]; tailg[4*i+1] += [('wait', 'B1'), d[0]]; gaps[4*i+2] += [d[1]] + br[2:]; tailg[4*i+2] += [d[0]]; gaps[4*i+3] += [d[2]]
            elif SP == 2:
                gaps[4*i] += w + br[:2]; gaps[4*i+1] += br[2:]; tailg[4*i+1] += [d[0]]; gaps[4*i+2] += [d[1]]; tailg[4*i+2] += [d[0]]; gaps[4*i+3] += [d[2]]
            if i + 1 < n: tailg[4*i+3] += [('wait', 'B1' if SP == 2 else 'B', vmn(i+1) if MW else None)]
        used = lambda g: sum(map(self.cost, gaps[g] + tailg[g]))
        def place(items, g0, g1):
            g = g0
            for it in items:
                while g < g1 and used(g) + self.cost(it) > BUD and used(g) > 1: g += 1
                gaps[g].append(it)
            return g
        DEF = opt('defer', True) and nK > 1
        if nK > 1:
            for t in range(4):
                place(self.sread(t), 4*(n-6+t) + (3 if opt('split', 0) else 2), 4*(n-6+t) + 3)
                place(self.gmad(t), 4*(n-5+t) + 1, 4*(n-5+t) + 3)
        ndef = [0]*4
        for q in range(1, 4):
            g0 = 4*q*nK
            if DEF:
                f3 = self.F(q-1, 3)
                room = [max(0, BUD - used(g0 + k)) for k in range(3)]
                m = min(16, sum(room)); ndef[q-1] = m
                f3 = f3[16-m:]
                for k in range(3):
                    gaps[g0 + k] += f3[:room[k]]; f3 = f3[room[k]:]
            place(self.fin(q-1, ph), g0 + (3 if DEF else 1), 4*(q*nK + nK - 1) + (1 if nK > 1 else 3))
        place(self.fin(3, ph, sPP), 1, 4*(nK - 1) + (1 if nK > 1 else 3))
        if nK > 1:
            if ph == 0:
                g = place(claim + after, 1, 5)
                place(self.eread(), max(g, 5), 7)
                place(self.adma(), 4*x + 3, 4*x + 3)
            else:
                place(claim, 1, 3)
                g1 = 4*(n-6) + (3 if opt('split', 0) else 2)
                keep = gaps[g1]; k0 = [i for i, it in enumerate(keep) if isinstance(it, str) and f'v{VSO}' in it]
                moved = keep[k0[0]:] if k0 else []
                if k0: gaps[g1] = keep[:k0[0]]
                place(after, 5, g1)
                gaps[g1] += moved
        nf0 = [0]*4
        if nK > 1:
            for q in range(4):
                g = 4*(q*nK + nK - 1) + 2
                nf0[q] = max(0, BUD - used(g))
                gaps[g] += self.F(q, 0)[:nf0[q]]
        self.emit([f's_setprio {opt("prioa", 1)}'] + pre + seg(1) + [('wait', 'B', vmn(0) if MW else None)] + ([f's_setprio {opt("prio", 1)}'] if opt("prio", 1) != opt("prioa", 1) else []), lg)
        for i in range(n):
            q, s = divmod(i, nK)
            for k, (t, u) in enumerate(TILES):
                c = f'v[{tile(t,u)}:{tile(t,u)+15}]' if s else '0'
                bb = BR + (i & 1)*8 + u*4
                if 'M' not in opt('drop', ''): a(f'v_mfma_f32_32x32x16_bf16 v[{tile(t,u)}:{tile(t,u)+15}], v[{AR+s*8+t*4}:{AR+s*8+t*4+3}], v[{bb}:{bb+3}], {c}')
                g = 4*i + k
                if k == 3 and s == nK - 1:
                    self.emit([f's_setprio {opt("prio0", 0)}'] + gaps[g] + seg(2+2*q) + self.F(q, 0)[nf0[q]:], lg)
                    if q < 3: self.emit(self.F(q, 1) + self.F(q, 2) + self.F(q, 3)[:16-ndef[q]] + seg(3+2*q) + [f's_setprio {opt("prio", 1)}'], lg)
                else: self.emit(gaps[g], lg)
                self.emit(tailg[g], lg)
        end = [f's_sub_u32 s{sT}, s{sNBs}, s{sCB}', f'v_add_u32 v{VAO}, s{sT}, v{VAO}', f'v_add_u32 v{VYO}, s{sT}, v{VYO}']
        end += self.F(3, 1) + self.areads(0) + self.F(3, 2) + self.areads(1) + self.F(3, 3)
        self.emit(end, lg)
        if SEG:
            a('s_memtime s[94:95]\ns_waitcnt lgkmcnt(0)')
            def acc(d, i, j): a(f's_sub_u32 s67, s{76+2*j}, s{76+2*i}\ns_add_u32 s{d}, s{d}, s67')
            acc(96, 0, 1)
            for q in range(4): acc(97, 1+2*q, 2+2*q)
            for q in range(3): acc(98, 2+2*q, 3+2*q)
            acc(99, 8, 9)
            a(f's_add_u32 s100, s100, {nK}\ns_add_u32 s101, s101, 1')
        assert [x for x in lg.q if x[0] != 'P'] == self.ENTRY, lg.q
        self.inunit = False
        self.dispatch(ph)
    def dispatch(self, ph, check=True):
        if check:
            if ph == 0: self.a(f's_cmp_lg_u32 s{sNPH}, 0\ns_cbranch_scc1 K2_SWITCH')
            else: self.a(f's_cmp_eq_u32 s{sNV}, 0\ns_cbranch_scc1 K2_TAIL')
        self.a(f"""
        s_mov_b32 s{sCB}, s{sNBs}
        s_mov_b32 s{sPP}, s{sCP}
        s_mov_b32 s{sC4}, s{sN4}
        s_mov_b32 s{sCP}, s{sNP}
        s_cmp_eq_u32 s{sNK}, 2
        s_cbranch_scc1 K2_U2{ph}
        s_cmp_eq_u32 s{sNK}, 3
        s_cbranch_scc1 K2_U3{ph}
        s_cmp_eq_u32 s{sNK}, 1
        s_cbranch_scc1 K2_U1{ph}
        s_branch K2_U4{ph}
        """)

    def wload(self, ph, vl16):
        for i in range(20):
            if i % 4 == 0: self.a(f's_mov_b32 s{sT}, {WS_WTAB + ph*20480 + i*1024}')
            self.a(f'buffer_load_dwordx4 v[{WR+4*i}:{WR+3+4*i}], v{vl16}, s[{sWS}:{sWS+3}], s{sT} offen offset:{(i%4)*1024} {"sc1" if FUSE else ""}')

    def sortnodes(self, vL, k, p, x):
        a = self.a
        a(f'''
        s_cmp_eq_u32 s{sR}, 1
        s_cselect_b32 s{sLAST}, s{sFIRST}, 0
        s_cmp_eq_u32 s{sMORE}, 0
        s_cselect_b32 s{sLAST}, s{sLAST}, 0
        s_cmp_eq_u32 s{sLAST}, 0
        s_cbranch_scc1 K2_NOSORT
        v_cndmask_b32 v{k}, 0, v{k}, s[{sEX}:{sEX+1}]
        v_mov_b32 v{p}, v{vL}
        s_mov_b32 s{sT+2}, 0
        ''')
        if True:
            for kk in (4, 3, 2, 1):
                a(f'''
                v_cmp_eq_u32 vcc, {kk}, v{k}
                v_mbcnt_lo_u32_b32 v{x}, vcc_lo, 0
                v_mbcnt_hi_u32_b32 v{x}, vcc_hi, v{x}
                v_add_u32 v{x}, s{sT+2}, v{x}
                v_cndmask_b32 v{p}, v{p}, v{x}, vcc
                s_bcnt1_i32_b64 s{sT+3}, vcc
                s_add_u32 s{sT+2}, s{sT+2}, s{sT+3}
                ''')
        a(f'''
        v_lshlrev_b32 v{p}, 2, v{p}
        ds_permute_b32 v{VTAB}, v{p}, v{VTAB}
        s_waitcnt lgkmcnt(0)
        K2_NOSORT:
        ''')

    def fill_all(self, vT_):
        a = self.a
        for t in range(512): assert (t*437) >> 16 == t // 150
        a(f'''
        v_mul_u32_u24 v76, 437, v{vT_}
        v_lshrrev_b32 v76, 16, v76
        v_mul_u32_u24 v76, 150, v76
        v_sub_u32 v76, v{vT_}, v76
        v_mov_b32 v80, -1
        v_mov_b32 v77, 1.0
        v_cmp_gt_u32 vcc, 48, v76
        v_lshlrev_b32 v78, 4, v{vT_}
        v_add_u32 v78, {RECBASE}, v78
        v_cndmask_b32 v80, v80, 0, vcc
        v_cmp_gt_u32 vcc, 12, v76
        v_add_u32 v79, 64800, v78
        s_nop 0
        v_cndmask_b32 v80, v80, v77, vcc
        v_cmp_gt_u32 vcc, 450, v{vT_}
        v_mov_b32 v81, v80
        v_mov_b32 v82, v80
        v_mov_b32 v83, v80
        s_mov_b64 exec, vcc
        ''')
        for i in range(13): a(f'ds_write_b128 v{78 + (i//9)}, v[80:83] offset:{(i%9)*7200}')
        a(f'''
        v_cmp_gt_u32 vcc, {150 + (OA+1024)//16}, v{vT_}
        s_cbranch_vccz K2_NOCL
        s_mov_b64 exec, vcc
        ds_write_b128 v79, v[80:83] offset:{4*7200}
        K2_NOCL:
        s_mov_b64 exec, -1
        ''')
    def fill_head(self, part):
        a = self.a; n1 = opt('n1', 40)
        if part == 0:
            a(f'''
            v_subrev_u32 v76, 320, v0
            v_mov_b32 v80, -1
            v_mov_b32 v77, 1.0
            v_cmp_gt_u32 vcc, 48, v76
            v_lshlrev_b32 v78, 4, v76
            v_add_u32 v78, {RECBASE}, v78
            v_cndmask_b32 v80, v80, 0, vcc
            v_cmp_gt_u32 vcc, 12, v76
            v_add_u32 v79, {27*NSTR}, v78
            s_nop 0
            v_cndmask_b32 v80, v80, v77, vcc
            v_cmp_gt_u32 s[{sEX}:{sEX+1}], {(OA+1024)//16 - 64}, v8
            v_mov_b32 v81, v80
            v_mov_b32 v82, v80
            v_mov_b32 v83, v80
            ''')
        for i in (range(n1) if part == 0 else range(n1, 40)): a(f'ds_write_b128 v{78 + (i//27)}, v[80:83] offset:{(i%27)*NSTR}')
        if part == 1:
            a(f'''
            s_cmp_eq_u32 s{sW}, 6
            s_cselect_b64 exec, s[{sEX}:{sEX+1}], -1
            ds_write_b128 v79, v[80:83] offset:{13*NSTR}
            s_mov_b64 exec, -1
            ''')
    def fill_tail(self):
        for t in range(320): assert (t*2979) >> 16 == t // 22
        self.a(f'''
        v_mul_u32_u24 v76, 2979, v0
        v_lshrrev_b32 v76, 16, v76
        v_mul_u32_u24 v77, {NSTR - 22*16}, v76
        v_lshl_add_u32 v78, v0, 4, v77
        v_add_u32 v78, {RECBASE + 128*16}, v78
        v_add_u32 v79, {28*NSTR}, v78
        v_mov_b32 v80, -1
        v_mov_b32 v81, -1
        v_cmp_gt_u32 vcc, 14, v76
        v_cmp_gt_u32 s[{sEX}:{sEX+1}], 12, v76
        v_mov_b32 v82, -1
        v_mov_b32 v83, -1
        s_mov_b64 exec, vcc
        ds_write_b128 v78, v[80:83]
        ds_write_b128 v78, v[80:83] offset:{14*NSTR}
        s_mov_b64 exec, s[{sEX}:{sEX+1}]
        ds_write_b128 v79, v[80:83]
        s_mov_b64 exec, -1
        ''')
    def counters(self, vL, first):
        self.a(f'''
        v_mov_b32 v76, 0
        v_mov_b32 v77, -1
        v_lshlrev_b32 v78, 2, v{vL}
        v_add_u32 v78, {HIST}, v78
        s_mov_b64 exec, 0x1ff
        ds_write_b32 v78, v76 offset:{PROG-HIST}
        s_mov_b64 exec, 0xff
        ds_write_b32 v78, v77 offset:{NULLSRC-HIST}
        s_mov_b64 exec, -1
        {'' if first else f's_cmp_lg_u32 s{sRND}, 0'}
        {'' if first else f's_cbranch_scc1 K2_NOH'}
        s_mov_b32 exec_hi, 0xffff
        ds_write_b32 v78, v76
        s_mov_b64 exec, 1
        ds_write_b32 v78, v76 offset:{FLAG-HIST}
        s_mov_b64 exec, -1
        ''')
    def srds(self):
        a = self.a
        srd(a, sX, 80, N*1024); srd(a, sOUT, 96, N*1024); srd(a, sEA, 84, E*32)
        a('s_sub_u32 s80, s80, 1024\ns_subb_u32 s81, s81, 0'); srd(a, sX2, 80, N*1024 + 1024)
    def consts(self, vL):
        self.a(f'''
        v_and_b32 v84, 15, v{vL}                ; i
        v_lshrrev_b32 v85, 5, v{vL}             ; h
        v_bfe_u32 v86, v{vL}, 4, 1
        v_lshrrev_b32 v87, 2, v84
        v_and_b32 v88, 3, v84                   ; c
        v_lshl_add_u32 v89, v85, 3, v87         ; 8h + row
        v_lshlrev_b32 v{VAO}, 5, v89
        v_lshl_add_u32 v{VAO}, v88, 3, v{VAO}
        v_add_u32 v{VAO}, {OA}, v{VAO}
        v_mul_u32_u24 v{VYO}, 192, v86
        v_lshl_add_u32 v{VYO}, v85, 5, v{VYO}
        v_lshrrev_b32 v90, 1, v88
        v_lshl_add_u32 v90, v86, 1, v90         ; chunk (u = 0)
        v_bfe_u32 v91, v87, 1, 1
        v_lshlrev_b32 v91, 2, v91
        v_xor_b32 v90, v90, v91
        v_lshlrev_b32 v90, 4, v90
        v_lshl_add_u32 v90, v89, 7, v90
        v_and_b32 v91, 1, v88
        v_lshl_add_u32 v90, v91, 3, v90
        v_add_u32 v{VB0}, s{sRING}, v90
        v_xor_b32 v{VB1}, 64, v{VB0}
        v_lshrrev_b32 v90, 3, v{vL}
        v_lshlrev_b32 v{VSO}, 2, v90
        v_add_u32 v{VSO}, {OS}, v{VSO}
        v_bfe_u32 v90, v90, 1, 1
        v_lshlrev_b32 v90, 2, v90
        v_and_b32 v91, 7, v{vL}
        v_xor_b32 v90, v90, v91
        v_lshlrev_b32 v{VLG}, 4, v90
        v_lshlrev_b32 v{VL2}, 1, v{vL}
        v_and_b32 v{VH16}, 1, v{vL}
        v_lshlrev_b32 v{VH16}, 4, v{VH16}
        v_lshrrev_b32 v90, 1, v{vL}
        v_lshlrev_b32 v90, 5, v90
        v_add_u32 v{VEO}, {OA}, v90
        ''')
    def stage_sort(self, vL, vT_):
        a = self.a; st = 'sc1'
        RAW = 24576
        a(f'''
        s_cmp_ge_u32 s{sW}, 5
        s_cbranch_scc1 KS_HELP
        s_cmp_ge_u32 s2, {NCH}
        s_cbranch_scc1 KS_IDLE
        ''')
        srd(a, 40, 88, E*4)
        a(f'buffer_load_dwordx4 v[12:15], v5, s[40:43], s64 offen')
        srd(a, 44, 86, E*4); srd(a, 48, 82, E*6)
        a(f'''
        buffer_load_dwordx4 v[16:19], v5, s[44:47], s64 offen
        buffer_load_dwordx4 v[20:23], v4, s[48:51], s65 offen
        buffer_load_dwordx2 v[24:25], v4, s[48:51], s65 offen offset:16
        v_lshlrev_b32 v2, 2, v0                 ; t*4
        v_mov_b32 v7, 1
        s_cmp_eq_u32 s{sW}, 4
        s_cbranch_scc1 KS_NOCLR
        ds_write_b32 v2, v6
        KS_NOCLR:
        s_waitcnt lgkmcnt(0)
        s_barrier
        ''')
        self.fill_tail()
        self.srds()
        sstamp(a, 7)
        a(f's_mov_b32 s58, {BMUL}\ns_movk_i32 s59, 625\ns_waitcnt vmcnt(3)')
        sstamp(a, 8)
        sort_rank(a)
        a('s_waitcnt lgkmcnt(0)')
        for j in range(4): a(f'ds_read_b32 v{32+j}, v{32+j} offset:1024')
        sort_emit(a, st)
        a(f'''
        s_branch KS_JOIN
        KS_IDLE:
        s_barrier
        ''')
        self.fill_tail()
        self.srds()
        a(f'''
        s_barrier
        s_branch KS_B3
        KS_HELP:
        s_cmp_eq_u32 s{sW}, 7
        s_cbranch_scc1 KS_TAG
        s_cmp_eq_u32 s{sW}, 6
        s_cbranch_scc1 KS_RAW
        s_cmp_ge_u32 s2, 200
        s_cbranch_scc1 KS_NOW
        ''')
        weight_loads(a)
        a('K1_GO:\ns_barrier')
        self.fill_head(0)
        a(f'v_mov_b32 v59, {NONCE}\ns_barrier\nds_read_b32 v59, v59')
        self.fill_head(1)
        self.srds()
        a(f'''
        s_waitcnt vmcnt(0)
        v_lshl_or_b32 v40, v65, 16, v64
        v_lshl_or_b32 v41, v67, 16, v66
        v_lshl_or_b32 v42, v69, 16, v68
        v_lshl_or_b32 v43, v71, 16, v70
        buffer_store_dwordx4 v[40:43], v9, s[{sWS}:{sWS+3}], s24 offen sc1
        s_waitcnt lgkmcnt(0)
        s_barrier
        s_lshl_b32 s24, s2, 2
        s_add_u32 s24, s24, {WS_FLG}
        s_mov_b64 exec, 1
        s_waitcnt vmcnt(0)
        buffer_store_dword v59, v6, s[{sWS}:{sWS+3}], s24 offen sc1
        s_mov_b64 exec, -1
        s_branch KS_JOIN
        KS_RAW:
        s_barrier
        ''')
        srd(a, 60, 90, 16*640*2)
        for i in range(20):
            if i % 4 == 0: a(f's_mov_b32 m0, {RAW + i*1024}\ns_movk_i32 s24, {i*1024}')
            a(f'buffer_load_dwordx4 v9, s[60:63], s24 offen offset:{(i%4)*1024} lds')
        a('s_branch KS_FILL\nKS_NOW:\ns_barrier\nKS_FILL:')
        self.fill_head(0)
        a('s_barrier')
        self.fill_head(1)
        self.srds()
        a(f'''
        s_waitcnt vmcnt(0)
        s_branch KS_B3
        KS_TAG:
        ''')
        srd(a, 60, 98, 256)
        a(f'''
        s_cmp_lg_u32 s2, 0
        s_cbranch_scc1 KS_TAGLD
        s_or_b32 s24, s74, 1
        v_mov_b32 v10, s24
        v_lshlrev_b32 v13, 2, v8
        {'' if opt('tagfull', 0) else 's_mov_b64 exec, 1'}
        buffer_store_dword v10, v13, s[60:63], 0 offen sc1
        KS_TAGLD:
        s_mov_b64 exec, 1
        s_and_b32 s25, s2, {3 if opt('tagfull', 0) == 2 else 0}
        s_lshl_b32 s25, s25, 6
        {'v_mov_b32 v10, 0' if opt('taglate', 1) else 'buffer_load_dword v10, v6, s[60:63], s25 offen sc1'}
        s_mov_b64 exec, -1
        s_barrier
        ''')
        self.counters(8, True)
        self.srds()
        tw = opt('tlb', 0)
        if tw:
            sh = opt('tlbsh', 21); step = opt('tlbstep', 102)
            a(f'''
            v_lshlrev_b32 v14, {sh}, v8
            v_mul_u32_u24 v15, {step*CSTR}, v8
            v_add_u32 v15, {CH*16}, v15
            v_mov_b32 v16, {WS_FLG + 4096}
            v_cmp_gt_u32 vcc, {(NCH + step - 1)//step}, v8
            v_cndmask_b32 v15, v16, v15, vcc
            buffer_load_dword v16, v15, s[{sWS}:{sWS+3}], 0 offen
            ''')
            if tw > 1: a(f'buffer_load_dword v17, v14, s[{sX}:{sX+3}], 0 offen\nbuffer_load_dword v18, v14, s[{sEA}:{sEA+3}], 0 offen')
        sstamp(a, 7)
        a(f'''
        s_mov_b64 exec, 1
        s_mov_b32 s24, 0x100000
        v_mov_b32 v12, {NONCE}
        KS_TAGW:
        {'s_sleep 8' if opt('taglate', 1) == 2 else ''}
        buffer_load_dword v11, v6, s[60:63], s25 offen sc1
        s_waitcnt vmcnt(1)
        v_cmp_ne_u32 vcc, 0, v10
        s_cbranch_vccnz KS_TAGOK
        s_sub_u32 s24, s24, 1
        s_cbranch_scc1 K2_END
        buffer_load_dword v10, v6, s[60:63], s25 offen sc1
        s_waitcnt vmcnt(1)
        v_cmp_ne_u32 vcc, 0, v11
        s_cbranch_vccz KS_TAGW
        ds_write_b32 v12, v11
        s_branch KS_TAGOK2
        KS_TAGOK:
        ds_write_b32 v12, v10
        KS_TAGOK2:
        s_mov_b64 exec, -1
        s_waitcnt lgkmcnt(0)
        ''')
        sstamp(a, 8)
        a(f'''
        s_barrier
        KS_B3:
        v_mov_b32 v59, {NONCE}
        ds_read_b32 v59, v59
        s_waitcnt lgkmcnt(0)
        s_barrier
        KS_JOIN:
        v_readfirstlane_b32 s{sTAG}, v59
        ''')
        stamp(a, 6)
    def wraw(self, vL):
        a = self.a; RAW = 24576
        a(f'''
        v_lshrrev_b32 v60, 5, v{vL}             ; h
        v_bfe_u32 v61, v{vL}, 2, 2              ; row
        v_lshl_add_u32 v60, v60, 2, v61
        v_mul_u32_u24 v60, 1280, v60
        v_bfe_u32 v61, v{vL}, 4, 1
        v_lshl_add_u32 v60, v61, 5, v60
        v_and_b32 v61, 3, v{vL}
        v_lshl_add_u32 v60, v61, 3, v60
        ''')
        for i in range(20):
            p, u, rq = i >> 2, (i >> 1) & 1, i & 1
            a(f'ds_read_b64_tr_b16 v[{WR+40+2*i}:{WR+41+2*i}], v60 offset:{RAW + rq*8*1280 + p*256 + u*64}')
        a('s_waitcnt lgkmcnt(0)')
        for i in range(40):
            a(f'v_lshlrev_b32 v{WR+2*i}, 16, v{WR+40+i}\nv_and_b32 v{WR+2*i+1}, 0xffff0000, v{WR+40+i}')

    def gen(self):
        a = self.a
        vL, vT_, vC, vE, vREM, vOFF = 176, 177, 178, 179, 180, 181
        RK = 40
        NBs = 50
        t0 = 192
        ws = f's[{sWS}:{sWS+3}]'
        def loop(done, body):
            for i in range(U):
                a(f'v_cmp_lt_i32 vcc, {2*i}, v{vREM}\ns_cbranch_vccz {done}\ns_mov_b64 exec, vcc')
                a(body(i))
            a(f'{done}:\ns_mov_b64 exec, -1')
        a('s_cmp_ge_u32 s2, 256\ns_cbranch_scc1 K2_END')
        stamp(a, 0)
        a(f'''
        s_load_dwordx16 s[80:95], s[0:1], 0
        s_load_dwordx4 s[96:99], s[0:1], 72
        s_load_dwordx2 s[100:101], s[0:1], 88   ; ws
        s_memrealtime s[74:75]
        v_lshrrev_b32 v1, 6, v0
        s_mov_b32 s{sB}, s2
        v_readfirstlane_b32 s{sW}, v1
        v_and_b32 v8, 63, v0
        v_lshlrev_b32 v9, 4, v8                 ; lane*16
        v_mov_b32 v6, 0
        v_lshlrev_b32 v5, 4, v0                 ; t*16
        v_mul_u32_u24 v4, 24, v0
        s_mul_i32 s64, s2, {CH*4}
        s_mul_i32 s65, s2, {CH*6}
        v_mov_b32 v{vL}, v8
        v_mov_b32 v{vT_}, v0
        s_mul_i32 s{sNB}, s2, 625
        s_add_u32 s{sNC}, s{sNB}, {625+15}
        s_add_u32 s{sNB}, s{sNB}, 15
        s_lshr_b32 s{sNB}, s{sNB}, 4
        s_lshr_b32 s{sNC}, s{sNC}, 4
        s_sub_u32 s{sNC}, s{sNC}, s{sNB}
        s_movk_i32 s{s1024}, 1024
        s_lshl_b32 s{sRING}, s{sW}, 13
        s_mov_b32 s{sPROG}, {PROG}
        s_lshl_b32 s{sPROGW}, s{sW}, 2
        s_add_u32 s{sPROGW}, s{sPROGW}, s{sPROG}
        {chr(10).join(f's_add_u32 s{sM0+i}, s{sRING}, {i*2048}' for i in range(4))}
        s_waitcnt lgkmcnt(0)
        ''')
        srd(a, sWS, 100, WS_SIZE)
        self.stage_sort(vL, vT_)
        a(f'''
        s_mov_b32 s{sJ0}, 0
        s_mov_b32 s{sFIRST}, 1
        {chr(10).join(f's_mov_b32 s{i}, 0' for i in range(96, 102)) if SEG else ''}
        s_mov_b32 s{sRND}, 0
        s_mov_b32 s{sR}, 1
        K2_CELLS:
        v_lshrrev_b32 v{vC}, 1, v{vT_}          ; cell
        v_min_u32 v{vC}, {NCH-1}, v{vC}
        v_mul_u32_u24 v72, {TSTR}, v{vC}
        s_and_b32 s{sT}, s{sB}, 7
        s_lshl_b32 s{sT}, s{sT}, 7
        s_lshr_b32 s{sT+1}, s{sB}, 5
        s_lshl_b32 s{sT+1}, s{sT+1}, 4
        s_add_u32 s{sT+9}, s{sT}, s{sT+1}
        s_add_u32 s{sT+9}, s{sT+9}, {WS_TBL}
        buffer_load_dwordx4 v[76:79], v72, {ws}, s{sT+9} offen sc1
        ''')
        self.consts(vL)
        def chk(r): return f"""
            v_xor_b32 v73, s{sT+1}, v{r}
            v_xor_b32 v74, s{sT+1}, v{r+1}
            v_or_b32 v73, v73, v74
            v_xor_b32 v74, s{sTAG}, v{r+3}
            v_lshrrev_b32 v73, 22, v73
            v_or_b32 v73, v73, v74
            v_cmp_ne_u32 vcc, 0, v73"""
        a(f'''
        s_lshl_b32 s{sT+1}, s{sTAG}, 22
        s_mov_b32 s{sT+2}, 0x100000
        s_bfe_u32 s{sT+3}, s{sB}, 0x10004
        s_bfe_u32 s{sT+4}, s{sB}, 0x10003
        s_add_u32 s{sT+5}, s{sT+3}, s{sT+4}
        s_mul_i32 s{sT+4}, s{sT+4}, 11
        s_sub_u32 s{sT+6}, 11, s{sT+4}
        v_cmp_gt_u32 vcc, {2*NCH}, v{vT_}
        s_mov_b64 s[{sEX}:{sEX+1}], vcc
        K2_POLL:
        ''')
        if opt('poll2', 0): a(f'''
        buffer_load_dwordx4 v[80:83], v72, {ws}, s{sT+9} offen sc1
        s_waitcnt vmcnt(1)
        {chk(76)}
        s_cbranch_vccz K2_POLLED
        s_sub_u32 s{sT+2}, s{sT+2}, 1
        s_cbranch_scc1 K2_END
        buffer_load_dwordx4 v[76:79], v72, {ws}, s{sT+9} offen sc1
        s_waitcnt vmcnt(1)
        {chk(80)}
        s_cbranch_vccnz K2_POLL
        s_add_u32 s{sT+3}, s{sT+3}, 4
        s_add_u32 s{sT+5}, s{sT+5}, 4
        ''')
        else: a(f'''
        s_waitcnt vmcnt(0)
        {chk(76)}
        s_cbranch_vccz K2_POLLED
        s_sub_u32 s{sT+2}, s{sT+2}, 1
        s_cbranch_scc1 K2_END
        s_mov_b64 exec, vcc
        buffer_load_dwordx4 v[76:79], v72, {ws}, s{sT+9} offen sc1
        s_mov_b64 exec, -1
        s_branch K2_POLL
        ''')
        a(f'''
        K2_POLLED:
        {f's_sub_u32 s101, 0x100000, s{sT+2}' if PROFS else ''}
        s_set_gpr_idx_on s{sT+3}, gpr_idx(SRC0)
        v_bfe_u32 v{vE}, v76, s{sT+4}, 11
        s_set_gpr_idx_idx s{sT+5}
        v_bfe_u32 v73, v76, s{sT+6}, 11
        s_set_gpr_idx_off
        v_sub_u32 v73, v73, v{vE}
        ''')
        o = Asm(); sv = self.a; self.a = o
        o(f'''
        K2_WINDOW:
        s_mov_b32 s{sRND}, 0
        s_mov_b32 s{sR}, 1
        K2_LOAD:
        v_mbcnt_lo_u32_b32 v{vL}, -1, 0
        v_mbcnt_hi_u32_b32 v{vL}, -1, v{vL}
        s_lshl_b32 s{sT}, s{sW}, 6
        v_add_u32 v{vT_}, s{sT}, v{vL}
        v_lshlrev_b32 v70, 4, v{vL}
        ''')
        self.wload(0, 70)
        self.fill_all(vT_)
        o(f's_cmp_lg_u32 s{sW}, 7\ns_cbranch_scc1 K2_NOH')
        self.counters(vL, False)
        o('K2_NOH:\ns_waitcnt lgkmcnt(0)\ns_barrier\ns_branch K2_CELLS')
        self.a = sv; self.ool(o.text())
        stamp(a, 1)
        a(f'''
        v_cndmask_b32 v73, 0, v73, s[{sEX}:{sEX+1}]
        v_and_b32 v1, 1, v{vT_}
        v_add_u32 v1, s{sJ0}, v1                ; j0 + sub
        v_sub_u32 v{vREM}, v73, v1
        v_add_u32 v{vE}, v{vE}, v1
        v_mul_u32_u24 v{vOFF}, {CSTR}, v{vC}
        v_lshl_add_u32 v{vOFF}, v{vE}, 4, v{vOFF}
        v_mul_u32_u24 v{vC}, {CH}, v{vC}
        ''')
        a(f's_mov_b32 s{sT+2}, 0x100000\nK2_RELOAD:')
        loop('K2_LD_DONE', lambda i: f'buffer_load_dwordx4 v[{4*i}:{4*i+3}], v{vOFF}, {ws}, 0 offen offset:{32*i} sc1')
        a(f'''
        s_cmp_eq_u32 s{sFIRST}, 0
        s_cbranch_scc1 K2_NOWRAW
        s_cmp_lg_u32 s{sT+2}, 0x100000
        s_cbranch_scc1 K2_NOWRAW
        s_cmp_lg_u32 s{sW}, 7
        s_cbranch_scc1 K2_NOFLG
        v_lshlrev_b32 v72, 4, v{vL}
        s_mov_b32 s{sT+9}, {WS_FLG}
        buffer_load_dwordx4 v[84:87], v72, {ws}, s{sT+9} offen sc1
        K2_NOFLG:
        ''')
        self.wraw(vL)
        a(f'''
        K2_NOWRAW:
        s_mov_b32 s{sT+3}, 0xffff
        s_mov_b64 s[{sT+4}:{sT+5}], 0
        s_waitcnt vmcnt(0)
        ''')
        loop('K2_CK_DONE', lambda i: f'v_bfi_b32 v{t0}, s{sT+3}, v{4*i+1}, v{4*i+2}\nv_cmp_ne_u32 vcc, s{sTAG}, v{t0}\ns_or_b64 s[{sT+4}:{sT+5}], s[{sT+4}:{sT+5}], vcc')
        self.ool(f'''
        K2_RETRY:
        s_sub_u32 s{sT+2}, s{sT+2}, 1
        s_cbranch_scc1 K2_END
        s_branch K2_RELOAD
        K2_FLGCK:
        s_cmp_eq_u32 s{sFIRST}, 0
        s_cbranch_scc1 K2_FLGOK
        s_mov_b32 s{sT+2}, 0x100000
        K2_FLGW:
        v_xor_b32 v84, s{sTAG}, v84
        v_xor_b32 v85, s{sTAG}, v85
        v_xor_b32 v86, s{sTAG}, v86
        v_xor_b32 v87, s{sTAG}, v87
        v_or3_b32 v84, v84, v85, v86
        v_or_b32 v84, v84, v87
        v_cmp_ne_u32 vcc, 0, v84
        s_and_b32 vcc_hi, vcc_hi, 0x3ffff       ; 200 flags
        s_cmp_eq_u64 vcc, 0
        s_cbranch_scc1 K2_FLGOK
        s_sub_u32 s{sT+2}, s{sT+2}, 1
        s_cbranch_scc1 K2_END
        buffer_load_dwordx4 v[84:87], v72, {ws}, s{sT+9} offen sc1
        s_waitcnt vmcnt(0)
        s_branch K2_FLGW
        ''')
        a(f'''
        s_cmp_lg_u64 s[{sT+4}:{sT+5}], 0
        s_cbranch_scc1 K2_RETRY
        {f's_sub_u32 s100, 0x100000, s{sT+2}' + chr(10) + 's_lshl_b32 s100, s100, 8' + chr(10) + 's_add_u32 s100, s100, s101' if PROFS else ''}
        s_cmp_eq_u32 s{sW}, 7
        s_cbranch_scc1 K2_FLGCK
        K2_FLGOK:
        v_add_lshl_u32 v{vE}, v{vE}, v{vC}, 2
        s_mov_b32 s{sT+8}, {WS_RANK}
        v_mov_b32 v{t0+9}, 1
        s_cmp_lg_u32 s{sRND}, 0
        s_cbranch_scc1 K2_RK_LOAD
        v_cmp_lt_i32 vcc, {2*U}, v{vREM}
        s_cbranch_vccz K2_NOMORE
        v_mov_b32 v61, {FLAG}
        ds_write_b32 v61, v{t0+9}
        K2_NOMORE:
        s_mov_b32 s{sT}, {HIST}
        s_movk_i32 s{sT+1}, {NSTR}
        v_mov_b32 v{t0+10}, {RECBASE}
        ''')
        stamp(a, 2)
        def prep(i):
            return (f'v_mad_u32_u24 v{NBs+i}, v{NBs+i}, s{sT+1}, v{t0+10}\nv_bfe_u32 v{60+i}, v{4*i+3}, 14, 11\n'
                    f'v_add_lshl_u32 v{60+i}, v{60+i}, v{vC}, 5\nv_and_b32 v{4*i+3}, 0x3fff, v{4*i+3}\n'
                    f'v_and_b32 v{4*i+2}, 0xffff0000, v{4*i+1}\nv_and_b32 v{4*i+1}, 0xffff0000, v{4*i}\nv_lshlrev_b32 v{4*i}, 16, v{4*i}')
        loop('K2_RK_A', lambda i: f'v_lshrrev_b32 v{NBs+i}, 25, v{4*i+3}\nv_lshl_add_u32 v{RK+i}, v{NBs+i}, 2, s{sT}\nds_add_rtn_u32 v{RK+i}, v{RK+i}, v{t0+9}\n' + prep(i))
        a(f's_branch K2_RK_DONE\nK2_RK_LOAD:\ns_movk_i32 s{sT+1}, {NSTR}\nv_mov_b32 v{t0+10}, {RECBASE}\ns_waitcnt vmcnt(0)')
        loop('K2_RK_B', lambda i: f'v_lshrrev_b32 v{NBs+i}, 25, v{4*i+3}\nbuffer_load_dword v{RK+i}, v{vE}, {ws}, s{sT+8} offen offset:{8*i}\n' + prep(i))
        a(f'''
        s_waitcnt vmcnt(0)
        K2_RK_DONE:
        s_mul_i32 s{sT+9}, s{sRND}, 48
        s_waitcnt lgkmcnt(0)
        ''')
        def scatter(i, rr, base):
            return f'''
            v_lshl_add_u32 v{t0+2}, v{rr}, 5, v{base}
            v_lshl_add_u32 v{t0+3}, v{rr}, 2, v{base}
            v_and_b32 v{t0+4}, 7, v{rr}
            v_add_lshl_u32 v{t0+4}, v{t0+4}, v{rr}, 1
            v_bfe_u32 v{t0+1}, v{rr}, 3, 1
            v_mad_i32_i24 v{t0+4}, v{t0+1}, -14, v{t0+4}
            v_add_u32 v{t0+4}, v{t0+4}, v{base}
            ds_write_b32 v{t0+2}, v{60+i} offset:{OA}
            ds_write2_b32 v{t0+3}, v{4*i}, v{4*i+1} offset0:48 offset1:96
            ds_write_b32 v{t0+3}, v{4*i+2} offset:576
            ds_write_b16 v{t0+4}, v{4*i+3} offset:{OS}
            '''
        for i in range(U):
            nx = self.lab('sc')
            a(f'''
            v_cmp_lt_i32 vcc, {2*i}, v{vREM}
            s_cbranch_vccz K2_SC_DONE
            v_subrev_u32 v{t0}, s{sT+9}, v{RK+i}
            v_cmp_gt_u32 s[{sEX}:{sEX+1}], 48, v{t0}
            s_and_b64 exec, vcc, s[{sEX}:{sEX+1}]
            s_cbranch_execz {nx}
            {scatter(i, t0, NBs+i)}
            {nx}:
            s_mov_b64 exec, -1
            ''')
        d = t0 + 1; k = t0 + 2; e = t0 + 3; p = t0 + 4; x = t0 + 5; pl = t0 + 6
        a(f'''
        K2_SC_DONE:
        v_lshlrev_b32 v{t0}, 2, v{vL}
        v_add_u32 v{t0}, {HIST}, v{t0}
        v_mov_b32 v{t0+8}, {FLAG}
        v_mov_b32 v{pl}, 0
        s_movk_i32 s{sLIM}, 48
        s_waitcnt lgkmcnt(0)
        s_barrier
        ds_read_b32 v{d}, v{t0}
        ds_read_b32 v{t0+8}, v{t0+8}
        v_cmp_gt_u32 s[{sEX}:{sEX+1}], s{sNC}, v{vL}
        v_mad_u32_u24 v{e}, v{vL}, s{sT+1}, v{t0+10}
        v_lshl_or_b32 v{e}, v{vL}, 21, v{e}
        s_waitcnt lgkmcnt(0)
        v_cndmask_b32 v{d}, 0, v{d}, s[{sEX}:{sEX+1}]
        v_readfirstlane_b32 s{sMORE}, v{t0+8}
        v_cmp_lt_u32 vcc, 48, v{d}
        s_cbranch_vccnz K2_BIG
        K2_TOK:
        v_subrev_u32 v{k}, s{sT+9}, v{d}
        v_max_i32 v{k}, 1, v{k}
        v_min_i32 v{k}, s{sLIM}, v{k}
        v_add_u32 v{k}, 15, v{k}
        v_lshrrev_b32 v{k}, 4, v{k}             ; K-steps
        v_lshl_or_b32 v{e}, v{k}, 18, v{e}
        v_or_b32 v{e}, v{e}, v{pl}
        v_mov_b32 v{x}, {NULLBASE | (1 << 18)}
        v_cndmask_b32 v{VTAB}, v{x}, v{e}, s[{sEX}:{sEX+1}]
''')
        if opt('sort', False): self.sortnodes(vL, k, p, x)
        o = Asm(); b = a; a = o
        a(f'''
        K2_BIG:
        s_cmp_lg_u32 s{sRND}, 0
        s_cbranch_scc1 K2_TOK
        s_mov_b64 s[{sT+4}:{sT+5}], vcc
        s_bcnt1_i32_b64 s{sT+2}, vcc
        s_cmp_eq_u32 s{sNC}, 39
        s_cselect_b32 s{sT+3}, 5, 2
        s_cmp_gt_u32 s{sT+2}, s{sT+3}
        s_cbranch_scc1 K2_SLOW
        v_cmp_lt_u32 vcc, 64, v{d}
        s_cbranch_vccnz K2_SLOW
        v_mbcnt_lo_u32_b32 v{x}, s{sT+4}, 0
        v_mbcnt_hi_u32_b32 v{x}, s{sT+5}, v{x}
        v_lshlrev_b32 v{pl}, 27, v{x}
        v_cndmask_b32 v{pl}, 0, v{pl}, s[{sT+4}:{sT+5}]
        s_movk_i32 s{sLIM}, 64
        v_cmp_le_u32 vcc, 2, v{x}
        v_mov_b32 v{k}, {POOL}
        v_mov_b32 v{p}, {POOL - NSTR - (2 << 22)}
        v_cndmask_b32 v{k}, v{k}, v{p}, vcc
        v_lshl_add_u32 v{x}, v{x}, 22, v{k}
        v_mov_b32 v{t0+11}, v{d}
        v_mov_b32 v{t0+12}, v{e}
        v_mov_b32 v{t0+13}, v{x}
        s_mov_b32 s{sT+2}, {(1 << 24) // NSTR + 1}
        ''')
        for nd in range(40): assert ((nd*NSTR) * ((1 << 24)//NSTR + 1)) >> 24 == nd
        for i in range(U):
            nx = self.lab('ov')
            a(f'''
            v_cmp_lt_i32 vcc, {2*i}, v{vREM}
            s_cbranch_vccz K2_OV_DONE
            v_subrev_u32 v{t0}, {RECBASE}, v{NBs+i}
            v_mul_hi_u32_u24 v{t0+1}, s{sT+2}, v{t0}
            v_mul_u32_u24 v{t0}, s{sT+2}, v{t0}
            v_alignbit_b32 v{t0}, v{t0+1}, v{t0}, 24
            v_lshlrev_b32 v{t0}, 2, v{t0}
            ds_bpermute_b32 v{t0+7}, v{t0}, v{t0+13}
            v_subrev_u32 v{t0}, 48, v{RK+i}
            v_cmp_gt_u32 s[{sT+4}:{sT+5}], 16, v{t0}
            s_waitcnt lgkmcnt(0)
            s_and_b64 exec, vcc, s[{sT+4}:{sT+5}]
            s_cbranch_execz {nx}
            v_lshrrev_b32 v{t0+1}, 18, v{t0+7}
            v_add_u32 v{t0}, v{t0}, v{t0+1}
            v_and_b32 v{t0+7}, 0x3ffff, v{t0+7}
            {scatter(i, t0, t0+7)}
            {nx}:
            s_mov_b64 exec, -1
            ''')
        a(f'''
        K2_OV_DONE:
        v_mov_b32 v{d}, v{t0+11}
        v_mov_b32 v{e}, v{t0+12}
        s_waitcnt lgkmcnt(0)
        s_barrier
        s_branch K2_TOK
        K2_SLOW:
        v_mov_b32 v{x}, v{d}
        ''')
        scan(a, x, 'v_max_u32')
        for dd in range(48, 512*U + 48): assert (dd * 43691) >> 21 == dd // 48
        a(f'''
        v_readlane_b32 s{sR}, v{x}, 63
        s_add_u32 s{sR}, s{sR}, 47
        s_mul_i32 s{sR}, s{sR}, 43691
        s_lshr_b32 s{sR}, s{sR}, 21
        ''')
        for i in range(U):
            a(f'v_cmp_lt_i32 vcc, {2*i}, v{vREM}\ns_cbranch_vccz K2_SV_DONE\ns_mov_b64 exec, vcc')
            a(f'buffer_store_dword v{RK+i}, v{vE}, {ws}, s{sT+8} offen offset:{8*i}')
        a('K2_SV_DONE:\ns_mov_b64 exec, -1\ns_branch K2_TOK')
        self.ool(o.text()); a = b
        for q in range(4): a(f's_movk_i32 s{sOWN+q}, {q*256}')
        a(f'''
        s_mov_b32 s{sJ}, 0
        s_mov_b32 s{sNPH}, 0
        s_mov_b32 s{sNP}, 0
        s_mov_b32 s{sNV}, 1
        s_mov_b32 s{sCP}, 0
        s_mov_b32 s{sT}, s{sW}
        ''')
        lg = LG(a)
        self.emit(self.next_info(0), lg)
        stamp(a, 3)
        pre = self.eread()
        for t in range(4): pre += self.sread(t)
        pre += self.adma()
        for t in range(4): pre += self.gmad(t)
        for t in range(4): pre += self.dma(t, G + 2*t, sNX + t) + (['s_barrier'] if t == opt('fbar', -1) else [])
        pre += [f'v_add_u32 v{VAO}, s{sNBs}, v{VAO}', f'v_add_u32 v{VYO}, s{sNBs}, v{VYO}', 's_waitcnt vmcnt(6)']
        self.emit(pre, lg)
        stamp(a, 4)
        self.emit(self.bread(0) + self.areads(0) + self.areads(1), lg)
        self.dispatch(0, check=False)
        for ph in range(2):
            for nK in (2, 3): self.unit(nK, ph)
        for ph in range(2):
            for nK in (1, 4): self.unit(nK, ph)
        a('K2_SWITCH:')
        stamp(a, 5)
        self.emit(self.fin(3, 0), LG(a))
        a(f's_cmp_eq_u32 s{sNV}, 0\ns_cbranch_scc1 K2_TAIL2\nv_lshlrev_b32 v{VT0}, 3, v{VL2}\nv_add_u32 v{VPA}, s{sNP}, v{VL2}')
        self.wload(1, VT0)
        for q in range(4): a(f's_movk_i32 s{sOWN+q}, {q*256+128}')
        a(f's_cmp_lg_u32 s{sNK}, 1\ns_cbranch_scc1 K2_SW2\ns_waitcnt vmcnt(0)\nK2_SW2:')
        if not FUSE: stamp(a, 6)
        self.dispatch(1, check=False)
        for t in self.outline: a(t)
        self.tail()
        a('K2_END:\ns_endpgm')
        return a.lines, 256

    def tail(self):
        a = self.a
        ws = f's[{sWS}:{sWS+3}]'
        vP0 = 222; vP1 = 223; vS = 226; vSP = 227; vRow = 228; vL16 = 229
        OP = 176
        def sload():
            a(f'v_lshlrev_b32 v{vL16}, 3, v{VL2}\ns_mul_i32 s{sT}, s{sW}, {20*1024}\ns_add_u32 s{sT}, s{sT}, {WS_STAB}')
            for f in range(20):
                a(f'buffer_load_dwordx4 v[{WR+4*f}:{WR+4*f+3}], v{vL16}, {ws}, s{sT} offen offset:{(f%4)*1024} {"sc1" if FUSE else ""}')
                if f % 4 == 3 and f < 19: a(f's_add_u32 s{sT}, s{sT}, 4096')
        a('K2_TAIL2:')
        sload()
        a('s_branch K2_TAIL3\nK2_TAIL:')
        stamp(a, 7)
        sload()
        self.emit(self.fin(3, 1), LG(a))
        a(f"""
        K2_TAIL3:
        s_mul_i32 s{sT+1}, s{sW}, {8192+32}
        v_add_u32 v{vRow}, s{sT+1}, v{VL2}
        s_waitcnt vmcnt(20)
        """)
        rows = [(0,2),(5,8),(3,6),(9,1),(4,7),(10,None)]
        dump = []
        for j in range(5):
            for k, (lo, hi) in enumerate(rows):
                dump.append(f'ds_write_b16 v{vRow}, v{P0+6*j+k} offset:{j*1536 + lo*128}')
                if hi is not None: dump.append(f'ds_write_b16_d16_hi v{vRow}, v{P0+6*j+k} offset:{j*1536 + hi*128}')
        for x in dump: a(x)
        a(f"""
        v_bfe_u32 v48, v{VL2}, 1, 4             ; n & 15
        v_lshlrev_b32 v49, 2, v48
        v_add_u32 v50, 64, v49
        v_add_u32 v51, 128, v49
        ds_bpermute_b32 v{vP1}, v49, v{VTAB}
        ds_bpermute_b32 v{vP1+1}, v50, v{VTAB}
        ds_bpermute_b32 v{vP1+2}, v51, v{VTAB}
        v_lshrrev_b32 v49, 5, v{VL2}            ; slab
        v_and_b32 v50, 7, v48
        v_mul_u32_u24 v50, {8192+32}, v50
        v_lshrrev_b32 v51, 3, v48
        v_mul_u32_u24 v51, 1536, v51
        v_add_u32 v50, v50, v51
        v_lshlrev_b32 v52, 4, v49               ; slab*16
        v_add_u32 v{vP0}, v50, v52
        s_lshl_b32 s{sT+2}, s{sW}, 5
        v_lshl_add_u32 v51, v49, 3, s{sT+2}
        v_bfe_u32 v53, v48, 2, 1
        v_lshl_add_u32 v51, v53, 4, v51
        v_add_u32 v{vS}, v50, v51
        s_sub_u32 s{sT+2}, s{sNC}, 32
        v_cmp_gt_u32 s[{sEX}:{sEX+1}], s{sT+2}, v48
        s_bfe_u32 s{sT+2}, s{sW}, 0x10002
        s_lshl_b32 s{sT+2}, s{sT+2}, 4
        s_add_u32 s{sT+1}, s{sT+1}, s{sT+2}
        s_add_u32 s{sRND}, s{sRND}, 1
        s_cmp_ge_u32 s{sRND}, s{sR}
        s_cselect_b32 s{sLAST}, 1, 0
        s_cmp_eq_u32 s{sMORE}, 0
        s_cselect_b32 s{sLAST}, s{sLAST}, 0
        s_and_b32 s{sT+6}, s{sLAST}, s{sFIRST}
        s_mov_b32 s{sT+5}, 0xbfb8aa3b           ; -log2(e)
        v_lshlrev_b32 v53, 5, v48
        s_waitcnt lgkmcnt(0)
        v_add_u32 v{vRow}, s{sT+1}, v{vL16}
        """)
        for g in range(3):
            a(f'v_and_b32 v51, 0x3ffff, v{vP1+g}\nv_sub_u32 v50, v53, v51\nv_and_b32 v50, 0xff, v50\nv_add3_u32 v{vP1+g}, v50, v51, v52')
        stamp(a, 8); a('s_barrier'); stamp(a, 9)
        a(f's_cmp_eq_u32 s{sT+6}, 0\ns_cbranch_scc1 K2_MULTI')
        steps = []
        for g in range(3):
            for ph in range(2):
                for rs in range(2):
                    for hh in range(2): steps.append((g, 0, ph*4 + rs*2 + hh, ph, rs, hh))
            for ph in range(2):
                for path in range(3):
                    for hh in range(2):
                        for j in range(3): steps.append((g, 1+j, 8 + ph*6 + path*2 + hh, ph, 2 + 3*j + path, hh))
        NB = 12; D = 10
        def epi(g):
            c = 16*g; o = OP + 8*(g & 1); s = []; tp = 200
            for r in range(4): s.append(f'v_mul_f32 v{tp+r}, s{sT+5}, v{c+r}')
            for r in range(4): s.append(f'v_exp_f32 v{tp+r}, v{tp+r}')
            for r in range(4): s.append(f'v_add_f32 v{tp+r}, 1.0, v{tp+r}')
            for r in range(4): s.append(f'v_rcp_f32 v{tp+r}, v{tp+r}')
            s += [f'v_cvt_pk_bf16_f32 v{o}, v{c}, v{c+1}', f'v_cvt_pk_bf16_f32 v{o+1}, v{c+2}, v{c+3}']
            for j in range(3):
                for r in range(4): s.append(f'v_mul_f32 v{c+4+4*j+r}, v{c+4+4*j+r}, v{tp+r}')
                s += [f'v_cvt_pk_bf16_f32 v{o+2+2*j}, v{c+4+4*j}, v{c+5+4*j}', f'v_cvt_pk_bf16_f32 v{o+3+2*j}, v{c+6+4*j}, v{c+7+4*j}']
            return s
        def stage(g):
            o = OP + 8*(g & 1)
            w = [(f'ds_write_b64 v{vS}, v[{o+2*rt}:{o+1+2*rt}] offset:{g*3072 + rt*256}', [(f'w{g}', False)]) for rt in range(4)]
            return w if g < 2 else [f's_mov_b64 exec, s[{sEX}:{sEX+1}]'] + w + ['s_mov_b64 exec, -1']
        def rowread(g):
            return [(f'ds_read_b128 v[{192+4*(j&1)}:{195+4*(j&1)}], v{vRow} offset:{j*1536}', [(f'r{g}', False)]) for j in ((2*g, 2*g+1) if g < 2 else (4,))]
        def rowstore(g):
            s = [('wait', f'r{g}')]
            for j in ((2*g, 2*g+1) if g < 2 else (4,)):
                s = [f's_add_u32 s{sT+3}, s{sW}, {8*j}\nv_readlane_b32 s{sOWN+j}, v{VTAB}, s{sT+3}\ns_nop 0\ns_bfe_u32 s{sOWN+j}, s{sOWN+j}, 0x60015\ns_add_u32 s{sOWN+j}, s{sOWN+j}, s{sNB}\ns_lshl_b32 s{sOWN+j}, s{sOWN+j}, 10'] + s
                s += [f'buffer_store_dwordx4 v[{192+4*(j&1)}:{195+4*(j&1)}], v{vL16}, s[{sOUT}:{sOUT+3}], s{sOWN+j} offen {mod("outst","sc1")}']
            return s
        def gemm(lg, extra):
            def rd(k):
                g, rt, f, ph, row, hh = steps[k]
                b = 48 + 4*(k % NB)
                ad = f'v{vP1+g} offset:{row*128 + hh*64}' if ph else f'v{vP0} offset:{g*3072 + row*128 + hh*64}'
                self.emit([(f'ds_read_b128 v[{b}:{b+3}], {ad}', [(f'k{k}', False)])], lg)
            for k in range(D): rd(k)
            seen = set(); started = set()
            for k in range(len(steps)):
                g, rt, f, ph, row, hh = steps[k]
                if k + D < len(steps): rd(k + D)
                vm = None
                if f not in seen: seen.add(f); vm = 19 - f
                self.emit([('wait', f'k{k}', vm)], lg)
                b = 48 + 4*(k % NB); c = 16*g + 4*rt
                cin = f'v[{c}:{c+3}]' if c in started else '0'; started.add(c)
                a(f'v_mfma_f32_16x16x32_bf16 v[{c}:{c+3}], v[{WR+4*f}:{WR+4*f+3}], v[{b}:{b+3}], {cin}')
                self.emit(extra.get(k, []), lg)
        lg = LG(a); extra = {}
        for g in range(2):
            e = epi(g); k0 = 44*(g+1) + 3
            for i, x in enumerate(e): extra.setdefault(k0 + min(i, 40), []).append(x)
        extra.setdefault(44 + 2, []).insert(0, 's_barrier')
        extra[83] = stage(0)
        extra[95] = [('wait', 'w0'), 's_barrier'] + rowread(0) + extra[95]
        extra[107] += rowstore(0)
        extra[127] = stage(1)
        gemm(lg, extra)
        stamp(a, 10)
        self.emit(epi(2) + [('wait', 'w1'), 's_barrier'] + rowread(1) + stage(2) + rowstore(1) + [('wait', 'w2'), 's_barrier'], lg)
        a(f'K2_LASTROW:\ns_add_u32 s{sT+1}, s{sW}, 32\ns_cmp_ge_u32 s{sT+1}, s{sNC}\ns_cbranch_scc1 K2_FIN')
        self.emit(rowread(2) + rowstore(2), lg)
        a('K2_FIN:')
        if PROF:
            stamp(a, 11); a('s_waitcnt vmcnt(0)'); stamp(a, 12); stamp_out(a, 13, 1, sW, sB, sWS)
        a('s_branch K2_END')
        a('K2_MULTI:')
        lg = LG(a)
        gemm(lg, {})
        a(f"""
        s_lshl_b32 s{sT+2}, s{sB}, 9
        s_lshl_b32 s{sT+3}, s{sW}, 6
        s_add_u32 s{sT+2}, s{sT+2}, s{sT+3}
        s_mul_i32 s{sT+2}, s{sT+2}, 192
        s_add_u32 s{sT+2}, s{sT+2}, {WS_ACC}
        v_mul_u32_u24 v{vSP}, 96, v{VL2}        ; lane*192
        s_cmp_lg_u32 s{sFIRST}, 0
        s_cbranch_scc1 K2_NOACC
        """)
        for i in range(12): a(f'buffer_load_dwordx4 v[{48+4*i}:{51+4*i}], v{vSP}, {ws}, s{sT+2} offen offset:{16*i}')
        a('s_waitcnt vmcnt(0)')
        for i in range(48): a(f'v_add_f32 v{i}, v{i}, v{48+i}')
        a(f'K2_NOACC:\ns_barrier\ns_cmp_eq_u32 s{sLAST}, 0\ns_cbranch_scc1 K2_SPILL')
        for g in range(2):
            self.emit(epi(g) + stage(g) + [('wait', f'w{g}'), 's_barrier'] + rowread(g) + rowstore(g), lg)
        self.emit(epi(2) + stage(2) + [('wait', 'w2'), 's_barrier'], lg)
        a('s_branch K2_LASTROW\nK2_SPILL:')
        for i in range(12): a(f'buffer_store_dwordx4 v[{4*i}:{4*i+3}], v{vSP}, {ws}, s{sT+2} offen offset:{16*i}')
        a(f"""
        s_mov_b32 s{sFIRST}, 0
        s_waitcnt vmcnt(0)
        s_cmp_lt_u32 s{sRND}, s{sR}
        s_cbranch_scc1 K2_LOAD
        s_add_u32 s{sJ0}, s{sJ0}, {2*U}
        s_branch K2_WINDOW
        """)

HEADER = '''; Kernarg layout for this problem (96 bytes, ptrs only, base s[0:1]):
'''
def kd(name, vgpr):
    return f'''.amdhsa_kernel {name}
  .amdhsa_next_free_vgpr {vgpr}
  .amdhsa_next_free_sgpr {102}
  .amdhsa_accum_offset {(vgpr+3)//4*4}
  .amdhsa_group_segment_fixed_size 0
  .amdhsa_kernarg_size 96
  .amdhsa_user_sgpr_count 2
  .amdhsa_user_sgpr_kernarg_segment_ptr 1
  .amdhsa_system_sgpr_workgroup_id_x 1
  .amdhsa_float_denorm_mode_32 3
.end_amdhsa_kernel
'''
def main():
    ks = []
    l2, v2 = K2().gen(); ks.append((NAME + '_kernel', fix_hazards(l2), v2))
    s = HEADER
    s += f'; @launch grid=(256,1,1) block=(512,1,1) lds={K2_LDS}\n'
    s += '.amdgcn_target "amdgcn-amd-amdhsa--gfx950"\n.text\n'
    for name, l, v in ks:
        s += f'.globl {name}\n.p2align 8\n.type {name},@function\n{name}:\n'
        s += '\n'.join((x if x.endswith(':') else '    ' + x) for x in l) + '\n'
    s += '.section .rodata,"a"\n' + ''.join('.p2align 6\n' + kd(name, v) for name, l, v in ks)
    out = sys.argv[1] if len(sys.argv) > 1 else f'/code/{NAME}.s'
    open(out, 'w').write(s)
    print('wrote', out, len(s), 'bytes')
main()
```

```python
import sys, os
sys.path.insert(0, os.path.dirname(os.path.abspath(__file__)))
from asmlib import Asm, fix_hazards

NAME = 'standalone__tensor_product_equiv_equiformer__graph'
N = 10000; E = 320000
NCH = 250; CH = E // NCH
CSTR = CH * 16 + 128
TSTR = 1024 + 128
WS_REC = 0
WS_TBL = 0x0600000
WS_STAB = 0x06A0000
WS_WTAB = 0x06C8000
WS_FLG = 0x06D8000
WS_RANK = 0x0700000
WS_PROF = 0x0900000
WS_ACC = 0x0A00000
WS_SIZE = 0x2400000
assert NCH * CSTR <= WS_TBL and WS_TBL + NCH * TSTR <= WS_STAB and WS_ACC + 256*512*192 <= WS_SIZE
BMUL = 429497
for d in range(N): assert ((d * BMUL) & 0xffffffff) >> 24 == (d * 16) // 625

OPT = dict(a.split('=') for a in sys.argv[2:]) if len(sys.argv) > 2 else {}
def opt(k, d): return type(d)(OPT.get(k, d)) if not isinstance(d, bool) else bool(int(OPT.get(k, d)))
def mod(k, d): return opt(k, d).replace('_', ' ')

PROF = opt('prof', False)
FUSE = True
SEG = opt('seg', False)
def seg(i): return [f's_memtime s[{76+2*i}:{77+2*i}]'] if SEG else []
PROFS = opt('profs', False)
def sstamp(a, i):
    if PROFS: a(f's_memrealtime s[{76+2*i}:{77+2*i}]')
def stamp(a, i):
    if PROFS and (i >= 7 or (i == 1 and opt('diag', 0))): return
    if PROF and not SEG: a(f'{"s_memtime" if opt("cyc", False) else "s_memrealtime"} s[{76+2*i}:{77+2*i}]')
def stamp_out(a, n, kern, swave, swg, srd_s):
    if not PROF: return
    if opt('dbgout', -1) >= 0:
        l = f'DBG_{kern}'
        a(f's_cmp_lg_u32 s{swg}, {opt("dbgout", -1)}\ns_cbranch_scc1 {l}\ns_cmp_lg_u32 s{swave}, 0\ns_cbranch_scc1 {l}')
        a(f's_load_dwordx2 s[58:59], s[0:1], 80\ns_waitcnt lgkmcnt(0)\ns_add_u32 s58, s58, {512*(1-kern)*opt("dbgk1", 0)}\ns_addc_u32 s59, s59, 0')
        srd(a, 60, 58, 256)
        a('s_mov_b64 exec, 1\nv_mov_b32 v1, 0')
        for i, o in ([(0, 0), (5, 14), (2, 15)] if kern == 0 else [(i, 1+i) for i in range(13)]):
            a(f'v_mov_b32 v2, s{76+2*i}\nbuffer_store_dword v2, v1, s[60:63], 0 offen offset:{4*o}')
        a(f's_mov_b64 exec, -1\n{l}:')
        return
    a('s_waitcnt lgkmcnt(0)')
    a(f's_lshl_b32 s67, s{swg}, 4\ns_add_u32 s67, s67, s{swave}\ns_lshl_b32 s67, s67, 6\ns_add_u32 s67, s67, {WS_PROF + kern*256*16*64}')
    a('s_mov_b64 exec, 1\nv_mov_b32 v1, 0')
    for i in range(n):
        a(f'v_mov_b32 v2, s{76+2*i if not SEG else 96+min(i,5)}\nbuffer_store_dword v2, v1, s[{srd_s}:{srd_s+3}], s67 offen offset:{4*i}')
    a('s_mov_b64 exec, -1')

def srd(a, s, ptr, nbytes):
    a(f's_mov_b32 s{s}, s{ptr}\ns_and_b32 s{s+1}, s{ptr+1}, 0xffff\ns_mov_b32 s{s+2}, {nbytes}\ns_mov_b32 s{s+3}, 0x20000')

def scan(a, v, op='v_add_u32'):
    for sh in (1, 2, 4, 8):
        a(f'{op}_dpp v{v}, v{v}, v{v} row_shr:{sh} row_mask:0xf bank_mask:0xf bound_ctrl:0')
    a(f'{op}_dpp v{v}, v{v}, v{v} row_bcast:15 row_mask:0xa bank_mask:0xf')
    a(f'{op}_dpp v{v}, v{v}, v{v} row_bcast:31 row_mask:0xc bank_mask:0xf')

K1_T = CH // 4
K1_LDS = 2048 + CH * 16
def weight_loads(a):
    a(f'''
    v_and_b32 v1, 15, v8
    v_lshrrev_b32 v3, 4, v8
    s_cmp_ge_u32 s2, 160
    s_cbranch_scc1 K1_WT
    s_cmp_ge_u32 s2, 64
    s_cbranch_scc1 K1_S1
    s_lshr_b32 s24, s2, 3
    s_and_b32 s25, s2, 7
    s_lshr_b32 s26, s25, 2
    s_bfe_u32 s27, s25, 0x10001
    s_and_b32 s28, s25, 1
    ''')
    srd(a, 60, 92, 256*128*2)
    a(f'''
    s_branch K1_SC
    K1_S1:
    ; S1: g2 = g-64; w = g2/12, f2 = g2%12 : ph = f2/6, path = (f2%6)>>1, hh = f2&1
    s_sub_u32 s29, s2, 64
    s_mul_i32 s24, s29, 43
    s_lshr_b32 s24, s24, 9
    s_mul_i32 s25, s24, 12
    s_sub_u32 s25, s29, s25
    s_cmp_ge_u32 s25, 6
    s_cselect_b32 s26, 1, 0
    s_mul_i32 s27, s26, 6
    s_sub_u32 s27, s25, s27
    s_lshr_b32 s27, s27, 1
    s_and_b32 s28, s25, 1
    s_add_u32 s25, s25, 8
    ''')
    for g2 in range(96): assert (g2*43) >> 9 == g2 // 12
    srd(a, 60, 94, 384*128*2)
    a(f'''
    K1_SC:
    s_lshl_b32 s27, s27, 7
    s_lshl_b32 s26, s26, 6
    s_lshl_b32 s28, s28, 5
    s_add_u32 s27, s27, s26
    s_add_u32 s27, s27, s28
    s_lshl_b32 s27, s27, 8
    s_lshl_b32 s26, s24, 5
    s_add_u32 s27, s27, s26
    v_lshlrev_b32 v3, 11, v3
    v_lshl_add_u32 v3, v1, 1, v3
    ''')
    for e in range(8): a(f'buffer_load_ushort v{64+e}, v3, s[60:63], s27 offen offset:{e*256}')
    a(f'''
    s_mul_i32 s24, s24, 20
    s_add_u32 s24, s24, s25
    s_lshl_b32 s24, s24, 10
    s_add_u32 s24, s24, {WS_STAB}
    s_branch K1_GO
    K1_WT:
    ; W (fp32): g3 = g-160; ph = g3/20, i = g3%20 : p = i>>2, u = (i>>1)&1, rq = i&1
    s_sub_u32 s24, s2, 160
    s_cmp_ge_u32 s24, 20
    s_cselect_b32 s26, 1, 0
    s_mul_i32 s25, s26, 20
    s_sub_u32 s25, s24, s25
    s_lshr_b32 s27, s25, 2
    s_bfe_u32 s28, s25, 0x10001
    s_and_b32 s25, s25, 1
    s_mul_i32 s25, s25, {8*1280}
    s_lshl_b32 s27, s27, 8
    s_lshl_b32 s26, s26, 7
    s_lshl_b32 s28, s28, 6
    s_add_u32 s27, s27, s26
    s_add_u32 s27, s27, s28
    s_add_u32 s27, s27, s25
    ''')
    srd(a, 60, 90, 16*640*2)
    a(f'''
    v_and_b32 v1, 31, v8
    v_lshrrev_b32 v3, 5, v8
    v_mul_u32_u24 v3, {4*1280}, v3
    v_lshl_add_u32 v3, v1, 1, v3
    v_mov_b32 v64, 0
    v_mov_b32 v66, 0
    v_mov_b32 v68, 0
    v_mov_b32 v70, 0
    ''')
    for r in range(4): a(f'buffer_load_ushort v{65+2*r}, v3, s[60:63], s27 offen offset:{r*1280}')
    a(f'''
    s_lshl_b32 s24, s24, 10
    s_add_u32 s24, s24, {WS_WTAB}
    ''')

def sort_rank(a):
    for j in range(4):
        a(f'v_mul_u32_u24 v{28+j}, s58, v{12+j}\nv_lshrrev_b32 v{32+j}, 27, v{28+j}\nv_bfe_u32 v{36+j}, v{28+j}, 24, 3\nv_lshlrev_b32 v{32+j}, 2, v{32+j}')
        a(f'v_lshl_or_b32 v{32+j}, v{36+j}, 7, v{32+j}\nds_add_rtn_u32 v{36+j}, v{32+j}, v7')
    for j in range(4):
        a(f'v_lshrrev_b32 v{28+j}, 24, v{28+j}\nv_mad_u32_u24 v{28+j}, v{28+j}, s59, 15\nv_lshrrev_b32 v{28+j}, 4, v{28+j}\nv_sub_u32 v{28+j}, v{12+j}, v{28+j}')
        a(f'v_add_u32 v{12+j}, {j}, v2\nv_lshlrev_b32 v{12+j}, 14, v{12+j}\nv_lshl_or_b32 v{28+j}, v{28+j}, 25, v{12+j}')
    a(f'''
    v_mov_b32 v59, {NONCE}
    s_mul_i32 s65, s2, {TSTR}
    s_add_u32 s65, s65, {WS_TBL}
    s_mul_i32 s64, s2, {CSTR}
    s_waitcnt lgkmcnt(0)
    s_barrier
    ''')
    sstamp(a, 9)
    a(f'''
    ds_read_b128 v[40:43], v9
    ds_read_b32 v59, v59
    s_waitcnt lgkmcnt(1)
    v_add_u32 v45, v40, v41
    v_add_u32 v46, v45, v42
    v_add_u32 v47, v46, v43
    v_mov_b32 v58, v47
    ''')
    scan(a, 58)
    a(f'''
    v_sub_u32 v48, v58, v47                 ; exclusive
    v_add_u32 v49, v48, v40
    v_add_u32 v50, v48, v45
    v_add_u32 v51, v48, v46
    ds_write_b128 v9, v[48:51] offset:1024
    s_waitcnt vmcnt(0) lgkmcnt(1)
    s_cmp_lg_u32 s{sW}, 4
    s_cbranch_scc1 KS_NOPUB
    v_lshl_or_b32 v56, v49, 11, v48
    v_lshl_or_b32 v57, v51, 11, v50
    v_lshl_or_b32 v56, v59, 22, v56
    v_lshl_or_b32 v57, v59, 22, v57
    buffer_store_dwordx4 v[56:59], v9, s[{sWS}:{sWS+3}], s65 offen sc1
    KS_NOPUB:
''')
    sstamp(a, 10)

def sort_emit(a, st):
    a('v_and_b32 v60, 0xffff, v59\ns_mov_b32 s58, 0xffff0000')
    for j in range(4):
        b = 20 + 3*(j >> 1)
        if j & 1: a(f'v_alignbit_b32 v{40+4*j}, v{b+2}, v{b+1}, 16\nv_and_or_b32 v{41+4*j}, v{b+2}, s58, v60')
        else: a(f'v_mov_b32 v{40+4*j}, v{b}\nv_lshl_or_b32 v{41+4*j}, v{b+1}, 16, v60')
        a(f'v_mov_b32 v{42+4*j}, v59\nv_or_b32 v{43+4*j}, v{28+j}, v{16+j}')
    a('s_waitcnt lgkmcnt(0)')
    for j in range(4):
        a(f'v_add_lshl_u32 v{32+j}, v{32+j}, v{36+j}, 4\nds_write_b128 v{32+j}, v[{40+4*j}:{43+4*j}] offset:2048')
    a(f's_waitcnt lgkmcnt(0)\ns_barrier')
    sstamp(a, 11)
    for i in range(4): a(f'ds_read_b128 v[{12+4*i}:{15+4*i}], v5 offset:{2048 + i*K1_T*16}')
    for i in range(4):
        a(f's_waitcnt lgkmcnt({3-i})')
        a(f'buffer_store_dwordx4 v[{12+4*i}:{15+4*i}], v5, s[8:11], s64 offen {st}')
        if i < 3: a(f's_add_u32 s64, s64, {K1_T*16}')

NSTR = 2400
OY = 0; OS = 768; OA = 864
RECBASE = 65536
POOL = RECBASE + 40 * NSTR
MISC = POOL + OA + 1024
HIST = MISC; PROG = MISC + 192; CNT = MISC + 224; FLAG = MISC + 228; NULLSRC = MISC + 256; SCR = MISC + 288; NONCE = MISC + 304
NULLBASE = NULLSRC - OS
K2_LDS = 163840
U = 10
ACC = 0; AR = 64; WR = 96; BR = 176; P0 = 192; G = 222
VEO = 230; VH16 = 231; T2 = 232; T3 = 233; PW = 234
VB0 = 246; VB1 = 247; VLG = 248; VAO = 249; VYO = 250; VSO = 251; VL2 = 252; VTAB = 253; VT0 = 254; VT1 = 255; VPA = VEO
sX = 4; sWS = 8; sOUT = 12; sEA = 16
sW = 20; sNB = 21; sNC = 22; sJ0 = 23; sRND = 24; sR = 25; sLIM = 26; sMORE = 27; sFIRST = 28
sCB = 29; sC4 = 30; sCP = 31; sNBs = 48; sNK = 33; sNPH = 34; sNP = 35; sNV = 36
sRING = 37; sJ = 38; s1024 = 39; sOWN = 40; sNX = 44; sSO = 48; sPROGW = 52; sPROG = 53; sB = 54; sLAST = 55
sEX = 56
sT = 58
sM0 = 68
sX2 = 72
sPP = 32
sN4 = 3
sTAG = 2

def tile(t, u): return ACC + 16 * (2*u + t)
TILES = [(0,0), (1,0), (0,1), (1,1)]
def Wreg(p, u): return WR + p*16 + u*8

def weave(x, y):
    o = []
    for i in range(max(len(x), len(y))):
        o += x[i:i+1] + y[i:i+1]
    return o

class LG:
    def __init__(self, a, q=()): self.a = a; self.q = list(q)
    def issue(self, tag, optional=False): self.q.append((tag, optional))
    def waitline(self, tag):
        idx = [i for i, (t, o) in enumerate(self.q) if t == tag]
        if not idx: return None
        y = sum(1 for (t, o) in self.q[idx[-1]+1:] if not o)
        self.q = self.q[idx[-1]+1:]
        return f's_waitcnt lgkmcnt({min(y, 15)})'

class K2:
    def __init__(self):
        self.a = Asm()
        self.uid = 0
        self.outline = []
    def lab(self, s):
        self.uid += 1
        return f'K2_{s}_{self.uid}'

    def dma(self, slot, greg, soff):
        return [f's_mov_b32 m0, s{sM0+slot}',
                f'buffer_load_dwordx4 v{greg}, s[{sX}:{sX+3}], s{soff} offen lds',
                f'buffer_load_dwordx4 v{greg+1}, s[{sX2}:{sX2+3}], s{soff} offen offset:1024 lds']
    def bread(self, item):
        out = []
        for u in range(2):
            for r in range(2):
                d = BR + (item & 1)*8 + u*4 + r*2
                out.append((f'ds_read_b64_tr_b16 v[{d}:{d+1}], v{VB0+u} offset:{(item & 3)*2048 + r*512}', [('B' if u == 0 or not opt('split', 0) else 'B1', False)]))
        return out
    def sread(self, t):
        return [f'v_add_u32 v{G+2*t}, s{sSO+t}, v{VSO}', (f'ds_read_b32 v{G+2*t}, v{G+2*t}', [(f'S{t}', False)])]
    def gmad(self, t):
        return [('wait', f'S{t}'),
                f'v_mad_u32_u16 v{G+2*t+1}, v{G+2*t}, s{s1024}, v{VLG} op_sel:[1,0,0,0]',
                f'v_mad_u32_u16 v{G+2*t}, v{G+2*t}, s{s1024}, v{VLG}']
    def ool(self, text): self.outline.append(text)
    def atomic(self):
        return [f'v_mov_b32 v{VT0}, {CNT}', f'v_mov_b32 v{VT1}, 1', f'v_lshl_add_u32 v{T3}, v{VL2}, 1, s{sPROG}',
                (f's_mov_b64 exec, 1\nds_add_rtn_u32 v{T2}, v{VT0}, v{VT1}\ns_mov_b64 exec, -1', [('C', False)]),
                (f'ds_read_b32 v{T3}, v{T3}', [('C', False)])]
    def claimed(self):
        nul = self.lab('nul'); spin = self.lab('spin'); chk = self.lab('chk'); back = self.lab('back')
        self.ool(f'{nul}:\ns_mov_b32 s{sT}, 63\ns_mov_b32 s{sNV}, 0\ns_branch {back}')
        self.ool(f'{spin}:\nv_lshl_add_u32 v{T3}, v{VL2}, 1, s{sPROG}\nds_read_b32 v{T3}, v{T3}\ns_waitcnt lgkmcnt(0)\ns_branch {chk}')
        return [f'v_readfirstlane_b32 s{sT}, v{T2}',
                f"""s_cmp_lt_u32 s{sT}, s{sNC}
                s_cbranch_scc0 {nul}
                s_and_b32 s{sT+1}, s{sT}, 7
                s_lshr_b32 s{sT+2}, s{sT}, 3
                {chk}:
                v_readlane_b32 s{sT+3}, v{T3}, s{sT+1}
                s_nop 0
                s_cmp_gt_u32 s{sT+3}, s{sT+2}
                s_cbranch_scc0 {spin}
                {back}:"""]
    def claim0(self):
        dyn = self.lab('dyn'); back = self.lab('back')
        o = [x if isinstance(x, str) else x[0] for x in self.atomic()] + ['s_waitcnt lgkmcnt(0)'] + self.claimed()
        self.ool(f'{dyn}:\n' + '\n'.join(o) + f'\ns_mov_b32 s{sNPH}, 1\ns_branch {back}')
        return [f's_add_u32 s{sJ}, s{sJ}, 1', f'v_mov_b32 v{VT0}, s{sPROGW}', f'v_mov_b32 v{VT1}, s{sJ}',
                f's_lshl_b32 s{sT}, s{sJ}, 3', f's_add_u32 s{sT}, s{sT}, s{sW}',
                (f's_mov_b64 exec, 1\nds_write_b32 v{VT0}, v{VT1}\ns_mov_b64 exec, -1', [('W', False)]),
                f's_cmp_lt_u32 s{sT}, s{sNC}\ns_cbranch_scc0 {dyn}\n{back}:']
    def pooladdr(self, d, word, stride):
        return f"""s_lshr_b32 s{d}, s{word}, 27
            s_mov_b32 s{sT+8}, {POOL}
            s_cmp_ge_u32 s{d}, 2
            s_cselect_b32 s{sT+8}, {POOL - NSTR - 2*stride}, s{sT+8}
            s_mul_i32 s{d}, s{d}, {stride}
            s_add_u32 s{d}, s{d}, s{sT+8}"""
    def next_info(self, ph):
        rare = self.lab('rare'); back = self.lab('back'); four = self.lab('four')
        self.ool(f"""{rare}:
            s_cmp_eq_u32 s{sNK}, 4
            s_cbranch_scc1 {four}
            s_mov_b32 s{sSO+1}, s{sNBs}
            s_mov_b32 s{sSO+3}, s{sNBs}
            s_add_u32 s{sNX+1}, s{sNX}, 256
            s_add_u32 s{sNX+2}, s{sNX}, 512
            s_add_u32 s{sNX+3}, s{sNX}, 768
            s_branch {back}
            {four}:
            s_add_u32 s{sSO+2}, s{sNBs}, 64
            {self.pooladdr(sSO+3, sN4, 32)}
            s_mov_b32 s{sNX+2}, s{sNX}
            s_mov_b32 s{sNX+3}, s{sNX}
            s_branch {back}""")
        o = [f'v_readlane_b32 s{sN4}, v{VTAB}, s{sT}', f's_lshl_b32 s{sNX}, s{sNPH}, 7', f's_lshl_b32 s{sT+2}, s{sT}, 5',
             f's_and_b32 s{sNBs}, s{sN4}, 0x3ffff', f's_bfe_u32 s{sNK}, s{sN4}, 0x30012',
             f's_sub_u32 s{sT+2}, s{sT+2}, s{sNBs}', f's_and_b32 s{sT+2}, s{sT+2}, 0xff']
        if ph == 1: o += [f's_add_u32 s{sNP}, s{sT+2}, s{sNBs}']
        else: o += [f's_add_u32 s{sT+2}, s{sT+2}, s{sNBs}', f's_mul_i32 s{sNP}, s{sJ}, 6', f's_cmp_eq_u32 s{sNPH}, 0\ns_cselect_b32 s{sNP}, s{sNP}, s{sT+2}']
        o += [f's_mov_b32 s{sNX+1}, s{sNX}', f's_add_u32 s{sNX+3}, s{sNX}, 256', f's_add_u32 s{sSO+1}, s{sNBs}, 32', f's_add_u32 s{sT+2}, s{sNBs}, 64',
              f's_cmp_eq_u32 s{sNK}, 3\ns_cselect_b32 s{sNX+2}, s{sNX}, s{sNX+3}\ns_cselect_b32 s{sSO+2}, s{sT+2}, s{sNBs}\ns_cselect_b32 s{sSO+3}, s{sNBs}, s{sSO+1}',
              f's_sub_u32 s{sT+2}, s{sNK}, 2\ns_cmp_lt_u32 s{sT+2}, 2\ns_cbranch_scc0 {rare}\n{back}:']
        return o
    def eread(self):
        return [f'v_add_u32 v{T3}, s{sNBs}, v{VEO}',
                (f'ds_read_b32 v{T2}, v{T3}', [('E', False)]), (f'ds_read_b32 v{T3}, v{T3} offset:1024', [('E', False)])]
    NEXTRA = 2
    def adma(self):
        dum = self.lab('dum'); four = self.lab('a4'); back = self.lab('back'); b4 = self.lab('b4')
        ea = f's[{sEA}:{sEA+3}]'; m = mod('eald', '')
        self.ool(f'{dum}:\nv_mov_b32 v{T2}, -1\ns_mov_b32 m0, {SCR}\ns_mov_b64 exec, 1\n' + f'buffer_load_dwordx4 v{T2}, {ea}, 0 offen lds\n'*2 + f's_mov_b64 exec, -1\ns_branch {back}')
        self.ool(f"""{four}:
            {self.pooladdr(sT+7, sN4, 512)}
            v_add_u32 v{T2}, s{sT+7}, v{VEO}
            ds_read_b32 v{T2}, v{T2}
            s_add_u32 m0, s{sT+7}, {OA}
            s_waitcnt lgkmcnt(0)
            v_or_b32 v{T2}, v{T2}, v{VH16}
            buffer_load_dwordx4 v{T2}, {ea}, 0 offen {m} lds
            s_branch {b4}""")
        return [('wait', 'E'), f'v_or_b32 v{T2}, v{T2}, v{VH16}', f'v_or_b32 v{T3}, v{T3}, v{VH16}', f"""
        s_cmp_lg_u32 s{sNPH}, 0
        s_cbranch_scc1 {dum}
        s_add_u32 m0, s{sNBs}, {OA}
        s_add_u32 s{sT+7}, s{sNBs}, {OA+1024}
        buffer_load_dwordx4 v{T2}, {ea}, 0 offen {m} lds
        s_mov_b32 m0, s{sT+7}
        s_mov_b32 exec_hi, 0
        buffer_load_dwordx4 v{T3}, {ea}, 0 offen {m} lds
        s_cmp_eq_u32 s{sNK}, 4
        s_cbranch_scc1 {four}
        {b4}:
        s_mov_b32 exec_hi, -1
        {back}:"""]
    def areads(self, s):
        b = ACC + (s & 1) * 20
        va, vy, oa, oy, o = VAO, VYO, s*512, s*64, []
        if s == 3:
            va, vy, oa, oy = ACC + 56, ACC + 57, 0, 0
            o = [self.pooladdr(sT+7, sC4, 512) + f'\ns_sub_u32 s{sT+7}, s{sT+7}, s{sCB}\nv_add_u32 v{va}, s{sT+7}, v{VAO}',
                 self.pooladdr(sT+7, sC4, 64) + f'\ns_sub_u32 s{sT+7}, s{sT+7}, s{sCB}\nv_add_u32 v{vy}, s{sT+7}, v{VYO}']
        o += [(f'ds_read_b64_tr_b16 v[{b}:{b+1}], v{va} offset:{oa}', [(f'a{s}', False)]),
              (f'ds_read_b64_tr_b16 v[{b+2}:{b+3}], v{va} offset:{oa+128}', [(f'a{s}', False)])]
        for t in range(2):
            for hh in range(2):
                d = b + 4 + t*8 + hh*4
                o.append((f'ds_read_b128 v[{d}:{d+3}], v{vy} offset:{oy + t*384 + hh*16}', [(f'y{s}{t}', False)]))
        return o
    def abuild(self, nK):
        o = []
        for s in range(nK):
            b = ACC + (s & 1) * 20; un = ACC + 40 + (s & 1) * 8
            o.append(('wait', f'a{s}'))
            for i in range(4):
                o += [f'v_lshlrev_b32 v{un+2*i}, 16, v{b+i}', f'v_and_b32 v{un+1+2*i}, 0xffff0000, v{b+i}']
            for t in range(2):
                o.append(('wait', f'y{s}{t}'))
                for e in range(8): o.append(f'v_mul_f32 v{b+4+t*8+e}, v{un+e}, v{b+4+t*8+e}')
                for i in range(4): o.append(f'v_cvt_pk_bf16_f32 v{AR+s*8+t*4+i}, v{b+4+t*8+2*i}, v{b+5+t*8+2*i}')
            if s + 2 < nK: o += self.areads(s + 2)
        return o
    R = dict(A=PW, B=PW+2, C=PW+4, D=PW+6, E=PW+8, F=PW+10)
    CH_ = {0: [(0,'A','new'),(2,'B','new'),(2,'C','new'),(2,'D','new')],
           1: [(3,'A','new'),(1,'B','new'),(4,'C','new'),(4,'D','new')],
           2: [(3,'E','new'),(4,'C','neg'),(1,'B','acc'),(4,'F','new')],
           3: [(3,'E','new'),(4,'D','neg'),(4,'F','neg'),(1,'B','acc')]}
    def F(self, q, k):
        t, u = TILES[k]; o = []
        for r in range(8):
            for b in (2*t, 2*t+1):
                p, d, mode = self.CH_[q][b]
                T = tile(t, u) + (b & 1)*8 + r; W = Wreg(p, u) + r; D = self.R[d] + u
                if r == 0 and mode == 'new': o.append(f'v_mul_f32 v{D}, v{T}, v{W}')
                elif r == 0 and mode == 'neg': o.append(f'v_fma_f32 v{D}, v{T}, v{W}, -v{D}')
                else: o.append(f'v_fmac_f32 v{D}, v{T}, v{W}')
        return o
    def fin(self, q, ph, sp=None):
        sp = sCP if sp is None else sp
        R = self.R
        names = {0: [('A',0),('B',0),('C',0),('D',0)], 1: [('A',0)], 2: [('C',0),('E',0)], 3: [('E',0),('D',1),('B',0),('F',0)]}[q]
        pairs = {0: [(0, R['A'], 0, R['B'], 2), (1, R['C'], 5, R['D'], 8)], 1: [], 2: [(2, R['A'], 3, R['E'], 6)],
                 3: [(3, R['E'], 9, R['B'], 1), (4, R['F'], 4, R['D'], 7), (5, R['C'], 10, R['C'], None)]}[q]
        o = [f'v_permlane32_swap_b32 v{R[n]}, v{R[n]+1}' for n, _ in names]
        if ph == 1 and q == 0: o.append(f'v_add_u32 v{VPA}, s{sCP}, v{VL2}')
        o += [(f'v_add_f32 v{R[n]}, -v{R[n]}, -v{R[n]+1}' if neg else f'v_add_f32 v{R[n]}, v{R[n]}, v{R[n]+1}') for n, neg in names]
        if pairs and ph == 0:
            o.append(f's_set_gpr_idx_on s{sp}, gpr_idx(DST)\n' + ''.join(f'v_cvt_pk_bf16_f32 v{P0+slot}, v{lo}, v{hi}\n' for (slot, lo, lr, hi, hr) in pairs) + 's_set_gpr_idx_off')
        elif pairs:
            for (slot, lo, lr, hi, hr) in pairs: o.append(f'v_cvt_pk_bf16_f32 v{lo}, v{lo}, v{hi}')
            for (slot, lo, lr, hi, hr) in pairs:
                o.append((f'ds_write_b16 v{VPA}, v{lo} offset:{lr*128}', [('P', False)]))
                if hr is not None: o.append((f'ds_write_b16_d16_hi v{VPA}, v{lo} offset:{hr*128}', [('P', False)]))
        return o
    def drop(self, line):
        x = opt('drop', '')
        if not x or not getattr(self, 'inunit', False) or '\n' in line.strip(): return False
        l = line.strip()
        if 'D' in x and l.startswith('buffer_load') and (f's[{sX}:' in l or f's[{sX2}:' in l): return True
        if 'P' in x and l.startswith('ds_write_b16'): return True
        if 'S' in x and l.startswith('v_permlane'): return True
        if 'C' in x and l.startswith('v_cvt_pk'): return True
        if 'B' in x and l.startswith('ds_read_b64_tr') and (f'v{VB0} ' in l or f'v{VB1} ' in l): return True
        if 'F' in x and l.startswith('v_fmac'): return True
        if 'A' in x and l.startswith(('v_lshlrev_b32','v_and_b32','v_cvt_pk')): return True
        if 'A' in x and l.startswith('v_mul_f32') and int(l.split()[1][1:-1]) < 64: return True
        if 'Y' in x and l.startswith(('ds_read_b128',)): return True
        return False
    def emit(self, items, lg):
        for it in items:
            if isinstance(it, str):
                if not self.drop(it): self.a(it)
            elif it[0] != 'wait' and self.drop(it[0]):
                for t, o in it[1]: lg.issue(t, o)
            elif it[0] == 'wait':
                w = lg.waitline(it[1])
                if len(it) > 2 and it[2] is not None: w = f's_waitcnt vmcnt({it[2]})' + (w[len('s_waitcnt'):] if w else '')
                if w: self.a(w)
            else:
                self.a(it[0])
                for t, o in it[1]: lg.issue(t, o)
    ENTRY = [('B', False)]*2 + [('B1' if opt('split', 0) else 'B', False)]*2 + [('a0', False)]*2 + [('y00', False)]*2 + [('y01', False)]*2 + [('a1', False)]*2 + [('y10', False)]*2 + [('y11', False)]*2
    @staticmethod
    def cost(it):
        if isinstance(it, tuple):
            if it[0] == 'wait': return 1
            it = it[0]
        return sum((2 if 'permlane' in l else 1) for l in it.strip().split('\n') if not l.strip().endswith(':'))
    def unit(self, nK, ph):
        a = self.a
        lg = LG(a, self.ENTRY)
        a(f'K2_U{nK}{ph}:')
        self.inunit = True
        n = 4 * nK
        BUD = opt('bud', 7)
        pre = seg(0)
        claim = (self.claim0() if ph == 0 else self.atomic())
        after = ([] if ph == 0 else [('wait', 'C')] + self.claimed()) + self.next_info(ph)
        if nK == 1: pre += claim
        pre += self.abuild(nK)
        if nK == 1:
            pre += after + (self.eread() if ph == 0 else [])
            for t in range(4): pre += self.sread(t)
            if ph == 0: pre += self.adma()
            for t in range(4): pre += self.gmad(t)
        x = -1 if nK == 1 else 2
        MW = opt('mergewait', True)
        gaps = [[] for _ in range(4*n)]; tailg = [[] for _ in range(4*n)]
        vmn = lambda i: 4 + (self.NEXTRA if (ph == 0 and x < i <= x + 3) else 0)
        for i in range(n):
            d = self.dma(i & 3, G + 2*((i+4) % nK), sOWN + (i+4)//nK) if i + 4 < n else self.dma(i & 3, G + 2*(i+4-n), sNX + (i+4-n))
            br = self.bread(i + 1); SP = opt('split', 0)
            w = [] if MW else [f's_waitcnt vmcnt({vmn(i)})']
            if SP == 0:
                gaps[4*i] += w + br; tailg[4*i] += [d[0]]; gaps[4*i+1] += [d[1], d[2]]
            elif SP == 1:
                gaps[4*i] += w + br[:2]; tailg[4*i+1] += [('wait', 'B1'), d[0]]; gaps[4*i+2] += [d[1]] + br[2:]; tailg[4*i+2] += [d[0]]; gaps[4*i+3] += [d[2]]
            elif SP == 2:
                gaps[4*i] += w + br[:2]; gaps[4*i+1] += br[2:]; tailg[4*i+1] += [d[0]]; gaps[4*i+2] += [d[1]]; tailg[4*i+2] += [d[0]]; gaps[4*i+3] += [d[2]]
            if i + 1 < n: tailg[4*i+3] += [('wait', 'B1' if SP == 2 else 'B', vmn(i+1) if MW else None)]
        used = lambda g: sum(map(self.cost, gaps[g] + tailg[g]))
        def place(items, g0, g1):
            g = g0
            for it in items:
                while g < g1 and used(g) + self.cost(it) > BUD and used(g) > 1: g += 1
                gaps[g].append(it)
            return g
        DEF = opt('defer', True) and nK > 1
        if nK > 1:
            for t in range(4):
                place(self.sread(t), 4*(n-6+t) + (3 if opt('split', 0) else 2), 4*(n-6+t) + 3)
                place(self.gmad(t), 4*(n-5+t) + 1, 4*(n-5+t) + 3)
        ndef = [0]*4
        for q in range(1, 4):
            g0 = 4*q*nK
            if DEF:
                f3 = self.F(q-1, 3)
                room = [max(0, BUD - used(g0 + k)) for k in range(3)]
                m = min(16, sum(room)); ndef[q-1] = m
                f3 = f3[16-m:]
                for k in range(3):
                    gaps[g0 + k] += f3[:room[k]]; f3 = f3[room[k]:]
            place(self.fin(q-1, ph), g0 + (3 if DEF else 1), 4*(q*nK + nK - 1) + (1 if nK > 1 else 3))
        place(self.fin(3, ph, sPP), 1, 4*(nK - 1) + (1 if nK > 1 else 3))
        if nK > 1:
            if ph == 0:
                g = place(claim + after, 1, 5)
                place(self.eread(), max(g, 5), 7)
                place(self.adma(), 4*x + 3, 4*x + 3)
            else:
                place(claim, 1, 3)
                g1 = 4*(n-6) + (3 if opt('split', 0) else 2)
                keep = gaps[g1]; k0 = [i for i, it in enumerate(keep) if isinstance(it, str) and f'v{VSO}' in it]
                moved = keep[k0[0]:] if k0 else []
                if k0: gaps[g1] = keep[:k0[0]]
                place(after, 5, g1)
                gaps[g1] += moved
        nf0 = [0]*4
        if nK > 1:
            for q in range(4):
                g = 4*(q*nK + nK - 1) + 2
                nf0[q] = max(0, BUD - used(g))
                gaps[g] += self.F(q, 0)[:nf0[q]]
        self.emit([f's_setprio {opt("prioa", 1)}'] + pre + seg(1) + [('wait', 'B', vmn(0) if MW else None)] + ([f's_setprio {opt("prio", 1)}'] if opt("prio", 1) != opt("prioa", 1) else []), lg)
        for i in range(n):
            q, s = divmod(i, nK)
            for k, (t, u) in enumerate(TILES):
                c = f'v[{tile(t,u)}:{tile(t,u)+15}]' if s else '0'
                bb = BR + (i & 1)*8 + u*4
                if 'M' not in opt('drop', ''): a(f'v_mfma_f32_32x32x16_bf16 v[{tile(t,u)}:{tile(t,u)+15}], v[{AR+s*8+t*4}:{AR+s*8+t*4+3}], v[{bb}:{bb+3}], {c}')
                g = 4*i + k
                if k == 3 and s == nK - 1:
                    self.emit([f's_setprio {opt("prio0", 0)}'] + gaps[g] + seg(2+2*q) + self.F(q, 0)[nf0[q]:], lg)
                    if q < 3: self.emit(self.F(q, 1) + self.F(q, 2) + self.F(q, 3)[:16-ndef[q]] + seg(3+2*q) + [f's_setprio {opt("prio", 1)}'], lg)
                else: self.emit(gaps[g], lg)
                self.emit(tailg[g], lg)
        end = [f's_sub_u32 s{sT}, s{sNBs}, s{sCB}', f'v_add_u32 v{VAO}, s{sT}, v{VAO}', f'v_add_u32 v{VYO}, s{sT}, v{VYO}']
        end += self.F(3, 1) + self.areads(0) + self.F(3, 2) + self.areads(1) + self.F(3, 3)
        self.emit(end, lg)
        if SEG:
            a('s_memtime s[94:95]\ns_waitcnt lgkmcnt(0)')
            def acc(d, i, j): a(f's_sub_u32 s67, s{76+2*j}, s{76+2*i}\ns_add_u32 s{d}, s{d}, s67')
            acc(96, 0, 1)
            for q in range(4): acc(97, 1+2*q, 2+2*q)
            for q in range(3): acc(98, 2+2*q, 3+2*q)
            acc(99, 8, 9)
            a(f's_add_u32 s100, s100, {nK}\ns_add_u32 s101, s101, 1')
        assert [x for x in lg.q if x[0] != 'P'] == self.ENTRY, lg.q
        self.inunit = False
        self.dispatch(ph)
    def dispatch(self, ph, check=True):
        if check:
            if ph == 0: self.a(f's_cmp_lg_u32 s{sNPH}, 0\ns_cbranch_scc1 K2_SWITCH')
            else: self.a(f's_cmp_eq_u32 s{sNV}, 0\ns_cbranch_scc1 K2_TAIL')
        self.a(f"""
        s_mov_b32 s{sCB}, s{sNBs}
        s_mov_b32 s{sPP}, s{sCP}
        s_mov_b32 s{sC4}, s{sN4}
        s_mov_b32 s{sCP}, s{sNP}
        s_cmp_eq_u32 s{sNK}, 2
        s_cbranch_scc1 K2_U2{ph}
        s_cmp_eq_u32 s{sNK}, 3
        s_cbranch_scc1 K2_U3{ph}
        s_cmp_eq_u32 s{sNK}, 1
        s_cbranch_scc1 K2_U1{ph}
        s_branch K2_U4{ph}
        """)

    def wload(self, ph, vl16):
        for i in range(20):
            if i % 4 == 0: self.a(f's_mov_b32 s{sT}, {WS_WTAB + ph*20480 + i*1024}')
            self.a(f'buffer_load_dwordx4 v[{WR+4*i}:{WR+3+4*i}], v{vl16}, s[{sWS}:{sWS+3}], s{sT} offen offset:{(i%4)*1024} {"sc1" if FUSE else ""}')

    def sortnodes(self, vL, k, p, x):
        a = self.a
        a(f'''
        s_cmp_eq_u32 s{sR}, 1
        s_cselect_b32 s{sLAST}, s{sFIRST}, 0
        s_cmp_eq_u32 s{sMORE}, 0
        s_cselect_b32 s{sLAST}, s{sLAST}, 0
        s_cmp_eq_u32 s{sLAST}, 0
        s_cbranch_scc1 K2_NOSORT
        v_cndmask_b32 v{k}, 0, v{k}, s[{sEX}:{sEX+1}]
        v_mov_b32 v{p}, v{vL}
        s_mov_b32 s{sT+2}, 0
        ''')
        if True:
            for kk in (4, 3, 2, 1):
                a(f'''
                v_cmp_eq_u32 vcc, {kk}, v{k}
                v_mbcnt_lo_u32_b32 v{x}, vcc_lo, 0
                v_mbcnt_hi_u32_b32 v{x}, vcc_hi, v{x}
                v_add_u32 v{x}, s{sT+2}, v{x}
                v_cndmask_b32 v{p}, v{p}, v{x}, vcc
                s_bcnt1_i32_b64 s{sT+3}, vcc
                s_add_u32 s{sT+2}, s{sT+2}, s{sT+3}
                ''')
        a(f'''
        v_lshlrev_b32 v{p}, 2, v{p}
        ds_permute_b32 v{VTAB}, v{p}, v{VTAB}
        s_waitcnt lgkmcnt(0)
        K2_NOSORT:
        ''')

    def fill_all(self, vT_):
        a = self.a
        for t in range(512): assert (t*437) >> 16 == t // 150
        a(f'''
        v_mul_u32_u24 v76, 437, v{vT_}
        v_lshrrev_b32 v76, 16, v76
        v_mul_u32_u24 v76, 150, v76
        v_sub_u32 v76, v{vT_}, v76
        v_mov_b32 v80, -1
        v_mov_b32 v77, 1.0
        v_cmp_gt_u32 vcc, 48, v76
        v_lshlrev_b32 v78, 4, v{vT_}
        v_add_u32 v78, {RECBASE}, v78
        v_cndmask_b32 v80, v80, 0, vcc
        v_cmp_gt_u32 vcc, 12, v76
        v_add_u32 v79, 64800, v78
        s_nop 0
        v_cndmask_b32 v80, v80, v77, vcc
        v_cmp_gt_u32 vcc, 450, v{vT_}
        v_mov_b32 v81, v80
        v_mov_b32 v82, v80
        v_mov_b32 v83, v80
        s_mov_b64 exec, vcc
        ''')
        for i in range(13): a(f'ds_write_b128 v{78 + (i//9)}, v[80:83] offset:{(i%9)*7200}')
        a(f'''
        v_cmp_gt_u32 vcc, {150 + (OA+1024)//16}, v{vT_}
        s_cbranch_vccz K2_NOCL
        s_mov_b64 exec, vcc
        ds_write_b128 v79, v[80:83] offset:{4*7200}
        K2_NOCL:
        s_mov_b64 exec, -1
        ''')
    def fill_head(self, part):
        a = self.a; n1 = opt('n1', 40)
        if part == 0:
            a(f'''
            v_subrev_u32 v76, 320, v0
            v_mov_b32 v80, -1
            v_mov_b32 v77, 1.0
            v_cmp_gt_u32 vcc, 48, v76
            v_lshlrev_b32 v78, 4, v76
            v_add_u32 v78, {RECBASE}, v78
            v_cndmask_b32 v80, v80, 0, vcc
            v_cmp_gt_u32 vcc, 12, v76
            v_add_u32 v79, {27*NSTR}, v78
            s_nop 0
            v_cndmask_b32 v80, v80, v77, vcc
            v_cmp_gt_u32 s[{sEX}:{sEX+1}], {(OA+1024)//16 - 64}, v8
            v_mov_b32 v81, v80
            v_mov_b32 v82, v80
            v_mov_b32 v83, v80
            ''')
        for i in (range(n1) if part == 0 else range(n1, 40)): a(f'ds_write_b128 v{78 + (i//27)}, v[80:83] offset:{(i%27)*NSTR}')
        if part == 1:
            a(f'''
            s_cmp_eq_u32 s{sW}, 6
            s_cselect_b64 exec, s[{sEX}:{sEX+1}], -1
            ds_write_b128 v79, v[80:83] offset:{13*NSTR}
            s_mov_b64 exec, -1
            ''')
    def fill_tail(self):
        for t in range(320): assert (t*2979) >> 16 == t // 22
        self.a(f'''
        v_mul_u32_u24 v76, 2979, v0
        v_lshrrev_b32 v76, 16, v76
        v_mul_u32_u24 v77, {NSTR - 22*16}, v76
        v_lshl_add_u32 v78, v0, 4, v77
        v_add_u32 v78, {RECBASE + 128*16}, v78
        v_add_u32 v79, {28*NSTR}, v78
        v_mov_b32 v80, -1
        v_mov_b32 v81, -1
        v_cmp_gt_u32 vcc, 14, v76
        v_cmp_gt_u32 s[{sEX}:{sEX+1}], 12, v76
        v_mov_b32 v82, -1
        v_mov_b32 v83, -1
        s_mov_b64 exec, vcc
        ds_write_b128 v78, v[80:83]
        ds_write_b128 v78, v[80:83] offset:{14*NSTR}
        s_mov_b64 exec, s[{sEX}:{sEX+1}]
        ds_write_b128 v79, v[80:83]
        s_mov_b64 exec, -1
        ''')
    def counters(self, vL, first):
        self.a(f'''
        v_mov_b32 v76, 0
        v_mov_b32 v77, -1
        v_lshlrev_b32 v78, 2, v{vL}
        v_add_u32 v78, {HIST}, v78
        s_mov_b64 exec, 0x1ff
        ds_write_b32 v78, v76 offset:{PROG-HIST}
        s_mov_b64 exec, 0xff
        ds_write_b32 v78, v77 offset:{NULLSRC-HIST}
        s_mov_b64 exec, -1
        {'' if first else f's_cmp_lg_u32 s{sRND}, 0'}
        {'' if first else f's_cbranch_scc1 K2_NOH'}
        s_mov_b32 exec_hi, 0xffff
        ds_write_b32 v78, v76
        s_mov_b64 exec, 1
        ds_write_b32 v78, v76 offset:{FLAG-HIST}
        s_mov_b64 exec, -1
        ''')
    def srds(self):
        a = self.a
        srd(a, sX, 80, N*1024); srd(a, sOUT, 96, N*1024); srd(a, sEA, 84, E*32)
        a('s_sub_u32 s80, s80, 1024\ns_subb_u32 s81, s81, 0'); srd(a, sX2, 80, N*1024 + 1024)
    def consts(self, vL):
        self.a(f'''
        v_and_b32 v84, 15, v{vL}                ; i
        v_lshrrev_b32 v85, 5, v{vL}             ; h
        v_bfe_u32 v86, v{vL}, 4, 1
        v_lshrrev_b32 v87, 2, v84
        v_and_b32 v88, 3, v84                   ; c
        v_lshl_add_u32 v89, v85, 3, v87         ; 8h + row
        v_lshlrev_b32 v{VAO}, 5, v89
        v_lshl_add_u32 v{VAO}, v88, 3, v{VAO}
        v_add_u32 v{VAO}, {OA}, v{VAO}
        v_mul_u32_u24 v{VYO}, 192, v86
        v_lshl_add_u32 v{VYO}, v85, 5, v{VYO}
        v_lshrrev_b32 v90, 1, v88
        v_lshl_add_u32 v90, v86, 1, v90         ; chunk (u = 0)
        v_bfe_u32 v91, v87, 1, 1
        v_lshlrev_b32 v91, 2, v91
        v_xor_b32 v90, v90, v91
        v_lshlrev_b32 v90, 4, v90
        v_lshl_add_u32 v90, v89, 7, v90
        v_and_b32 v91, 1, v88
        v_lshl_add_u32 v90, v91, 3, v90
        v_add_u32 v{VB0}, s{sRING}, v90
        v_xor_b32 v{VB1}, 64, v{VB0}
        v_lshrrev_b32 v90, 3, v{vL}
        v_lshlrev_b32 v{VSO}, 2, v90
        v_add_u32 v{VSO}, {OS}, v{VSO}
        v_bfe_u32 v90, v90, 1, 1
        v_lshlrev_b32 v90, 2, v90
        v_and_b32 v91, 7, v{vL}
        v_xor_b32 v90, v90, v91
        v_lshlrev_b32 v{VLG}, 4, v90
        v_lshlrev_b32 v{VL2}, 1, v{vL}
        v_and_b32 v{VH16}, 1, v{vL}
        v_lshlrev_b32 v{VH16}, 4, v{VH16}
        v_lshrrev_b32 v90, 1, v{vL}
        v_lshlrev_b32 v90, 5, v90
        v_add_u32 v{VEO}, {OA}, v90
        ''')
    def stage_sort(self, vL, vT_):
        a = self.a; st = 'sc1'
        RAW = 24576
        a(f'''
        s_cmp_ge_u32 s{sW}, 5
        s_cbranch_scc1 KS_HELP
        s_cmp_ge_u32 s2, {NCH}
        s_cbranch_scc1 KS_IDLE
        ''')
        srd(a, 40, 88, E*4)
        a(f'buffer_load_dwordx4 v[12:15], v5, s[40:43], s64 offen')
        srd(a, 44, 86, E*4); srd(a, 48, 82, E*6)
        a(f'''
        buffer_load_dwordx4 v[16:19], v5, s[44:47], s64 offen
        buffer_load_dwordx4 v[20:23], v4, s[48:51], s65 offen
        buffer_load_dwordx2 v[24:25], v4, s[48:51], s65 offen offset:16
        v_lshlrev_b32 v2, 2, v0                 ; t*4
        v_mov_b32 v7, 1
        s_cmp_eq_u32 s{sW}, 4
        s_cbranch_scc1 KS_NOCLR
        ds_write_b32 v2, v6
        KS_NOCLR:
        s_waitcnt lgkmcnt(0)
        s_barrier
        ''')
        self.fill_tail()
        self.srds()
        sstamp(a, 7)
        a(f's_mov_b32 s58, {BMUL}\ns_movk_i32 s59, 625\ns_waitcnt vmcnt(3)')
        sstamp(a, 8)
        sort_rank(a)
        a('s_waitcnt lgkmcnt(0)')
        for j in range(4): a(f'ds_read_b32 v{32+j}, v{32+j} offset:1024')
        sort_emit(a, st)
        a(f'''
        s_branch KS_JOIN
        KS_IDLE:
        s_barrier
        ''')
        self.fill_tail()
        self.srds()
        a(f'''
        s_barrier
        s_branch KS_B3
        KS_HELP:
        s_cmp_eq_u32 s{sW}, 7
        s_cbranch_scc1 KS_TAG
        s_cmp_eq_u32 s{sW}, 6
        s_cbranch_scc1 KS_RAW
        s_cmp_ge_u32 s2, 200
        s_cbranch_scc1 KS_NOW
        ''')
        weight_loads(a)
        a('K1_GO:\ns_barrier')
        self.fill_head(0)
        a(f'v_mov_b32 v59, {NONCE}\ns_barrier\nds_read_b32 v59, v59')
        self.fill_head(1)
        self.srds()
        a(f'''
        s_waitcnt vmcnt(0)
        v_lshl_or_b32 v40, v65, 16, v64
        v_lshl_or_b32 v41, v67, 16, v66
        v_lshl_or_b32 v42, v69, 16, v68
        v_lshl_or_b32 v43, v71, 16, v70
        buffer_store_dwordx4 v[40:43], v9, s[{sWS}:{sWS+3}], s24 offen sc1
        s_waitcnt lgkmcnt(0)
        s_barrier
        s_lshl_b32 s24, s2, 2
        s_add_u32 s24, s24, {WS_FLG}
        s_mov_b64 exec, 1
        s_waitcnt vmcnt(0)
        buffer_store_dword v59, v6, s[{sWS}:{sWS+3}], s24 offen sc1
        s_mov_b64 exec, -1
        s_branch KS_JOIN
        KS_RAW:
        s_barrier
        ''')
        srd(a, 60, 90, 16*640*2)
        for i in range(20):
            if i % 4 == 0: a(f's_mov_b32 m0, {RAW + i*1024}\ns_movk_i32 s24, {i*1024}')
            a(f'buffer_load_dwordx4 v9, s[60:63], s24 offen offset:{(i%4)*1024} lds')
        a('s_branch KS_FILL\nKS_NOW:\ns_barrier\nKS_FILL:')
        self.fill_head(0)
        a('s_barrier')
        self.fill_head(1)
        self.srds()
        a(f'''
        s_waitcnt vmcnt(0)
        s_branch KS_B3
        KS_TAG:
        ''')
        srd(a, 60, 98, 256)
        a(f'''
        s_cmp_lg_u32 s2, 0
        s_cbranch_scc1 KS_TAGLD
        s_or_b32 s24, s74, 1
        v_mov_b32 v10, s24
        v_mov_b32 v11, 0
        s_mov_b64 exec, 1
        buffer_atomic_cmpswap v[10:11], v6, s[60:63], 0 offen sc1
        KS_TAGLD:
        s_mov_b64 exec, 1
        v_mov_b32 v14, 0
        s_mov_b64 exec, -1
        s_barrier
        ''')
        self.counters(8, True)
        self.srds()
        sstamp(a, 7)
        a(f'''
        s_mov_b64 exec, 1
        s_mov_b32 s24, 0x100000
        v_mov_b32 v12, {NONCE}
        KS_TAGW:
        buffer_load_dword v15, v6, s[60:63], 0 offen sc1
        s_waitcnt vmcnt(1)
        v_cmp_ne_u32 vcc, 0, v14
        s_cbranch_vccnz KS_TAGOK
        s_sub_u32 s24, s24, 1
        s_cbranch_scc1 K2_END
        buffer_load_dword v14, v6, s[60:63], 0 offen sc1
        s_waitcnt vmcnt(1)
        v_cmp_ne_u32 vcc, 0, v15
        s_cbranch_vccz KS_TAGW
        ds_write_b32 v12, v15
        s_branch KS_TAGOK2
        KS_TAGOK:
        ds_write_b32 v12, v14
        KS_TAGOK2:
        s_mov_b64 exec, -1
        s_waitcnt lgkmcnt(0)
        ''')
        sstamp(a, 8)
        a(f'''
        s_barrier
        KS_B3:
        v_mov_b32 v59, {NONCE}
        ds_read_b32 v59, v59
        s_waitcnt lgkmcnt(0)
        s_barrier
        KS_JOIN:
        v_readfirstlane_b32 s{sTAG}, v59
        ''')
        stamp(a, 6)
    def wraw(self, vL):
        a = self.a; RAW = 24576
        a(f'''
        v_lshrrev_b32 v60, 5, v{vL}             ; h
        v_bfe_u32 v61, v{vL}, 2, 2              ; row
        v_lshl_add_u32 v60, v60, 2, v61
        v_mul_u32_u24 v60, 1280, v60
        v_bfe_u32 v61, v{vL}, 4, 1
        v_lshl_add_u32 v60, v61, 5, v60
        v_and_b32 v61, 3, v{vL}
        v_lshl_add_u32 v60, v61, 3, v60
        ''')
        for i in range(20):
            p, u, rq = i >> 2, (i >> 1) & 1, i & 1
            a(f'ds_read_b64_tr_b16 v[{WR+40+2*i}:{WR+41+2*i}], v60 offset:{RAW + rq*8*1280 + p*256 + u*64}')
        a('s_waitcnt lgkmcnt(0)')
        for i in range(40):
            a(f'v_lshlrev_b32 v{WR+2*i}, 16, v{WR+40+i}\nv_and_b32 v{WR+2*i+1}, 0xffff0000, v{WR+40+i}')

    def gen(self):
        a = self.a
        vL, vT_, vC, vE, vREM, vOFF = 176, 177, 178, 179, 180, 181
        RK = 40
        NBs = 50
        t0 = 192
        ws = f's[{sWS}:{sWS+3}]'
        def loop(done, body):
            for i in range(U):
                a(f'v_cmp_lt_i32 vcc, {2*i}, v{vREM}\ns_cbranch_vccz {done}\ns_mov_b64 exec, vcc')
                a(body(i))
            a(f'{done}:\ns_mov_b64 exec, -1')
        a('s_cmp_ge_u32 s2, 256\ns_cbranch_scc1 K2_END')
        stamp(a, 0)
        a(f'''
        s_load_dwordx16 s[80:95], s[0:1], 0
        s_load_dwordx4 s[96:99], s[0:1], 72
        s_load_dwordx2 s[100:101], s[0:1], 88   ; ws
        s_memrealtime s[74:75]
        v_lshrrev_b32 v1, 6, v0
        s_mov_b32 s{sB}, s2
        v_readfirstlane_b32 s{sW}, v1
        v_and_b32 v8, 63, v0
        v_lshlrev_b32 v9, 4, v8                 ; lane*16
        v_mov_b32 v6, 0
        v_lshlrev_b32 v5, 4, v0                 ; t*16
        v_mul_u32_u24 v4, 24, v0
        s_mul_i32 s64, s2, {CH*4}
        s_mul_i32 s65, s2, {CH*6}
        v_mov_b32 v{vL}, v8
        v_mov_b32 v{vT_}, v0
        s_mul_i32 s{sNB}, s2, 625
        s_add_u32 s{sNC}, s{sNB}, {625+15}
        s_add_u32 s{sNB}, s{sNB}, 15
        s_lshr_b32 s{sNB}, s{sNB}, 4
        s_lshr_b32 s{sNC}, s{sNC}, 4
        s_sub_u32 s{sNC}, s{sNC}, s{sNB}
        s_movk_i32 s{s1024}, 1024
        s_lshl_b32 s{sRING}, s{sW}, 13
        s_mov_b32 s{sPROG}, {PROG}
        s_lshl_b32 s{sPROGW}, s{sW}, 2
        s_add_u32 s{sPROGW}, s{sPROGW}, s{sPROG}
        {chr(10).join(f's_add_u32 s{sM0+i}, s{sRING}, {i*2048}' for i in range(4))}
        s_waitcnt lgkmcnt(0)
        ''')
        srd(a, sWS, 100, WS_SIZE)
        self.stage_sort(vL, vT_)
        a(f'''
        s_mov_b32 s{sJ0}, 0
        s_mov_b32 s{sFIRST}, 1
        {chr(10).join(f's_mov_b32 s{i}, 0' for i in range(96, 102)) if SEG else ''}
        s_mov_b32 s{sRND}, 0
        s_mov_b32 s{sR}, 1
        K2_CELLS:
        v_lshrrev_b32 v{vC}, 1, v{vT_}          ; cell
        v_min_u32 v{vC}, {NCH-1}, v{vC}
        v_mul_u32_u24 v72, {TSTR}, v{vC}
        s_and_b32 s{sT}, s{sB}, 7
        s_lshl_b32 s{sT}, s{sT}, 7
        s_lshr_b32 s{sT+1}, s{sB}, 5
        s_lshl_b32 s{sT+1}, s{sT+1}, 4
        s_add_u32 s{sT+9}, s{sT}, s{sT+1}
        s_add_u32 s{sT+9}, s{sT+9}, {WS_TBL}
        buffer_load_dwordx4 v[76:79], v72, {ws}, s{sT+9} offen sc1
        ''')
        self.consts(vL)
        def chk(r): return f"""
            v_xor_b32 v73, s{sT+1}, v{r}
            v_xor_b32 v74, s{sT+1}, v{r+1}
            v_or_b32 v73, v73, v74
            v_xor_b32 v74, s{sTAG}, v{r+3}
            v_lshrrev_b32 v73, 22, v73
            v_or_b32 v73, v73, v74
            v_cmp_ne_u32 vcc, 0, v73"""
        a(f'''
        s_lshl_b32 s{sT+1}, s{sTAG}, 22
        s_mov_b32 s{sT+2}, 0x100000
        s_bfe_u32 s{sT+3}, s{sB}, 0x10004
        s_bfe_u32 s{sT+4}, s{sB}, 0x10003
        s_add_u32 s{sT+5}, s{sT+3}, s{sT+4}
        s_mul_i32 s{sT+4}, s{sT+4}, 11
        s_sub_u32 s{sT+6}, 11, s{sT+4}
        v_cmp_gt_u32 vcc, {2*NCH}, v{vT_}
        s_mov_b64 s[{sEX}:{sEX+1}], vcc
        K2_POLL:
        ''')
        if opt('poll2', 0): a(f'''
        buffer_load_dwordx4 v[80:83], v72, {ws}, s{sT+9} offen sc1
        s_waitcnt vmcnt(1)
        {chk(76)}
        s_cbranch_vccz K2_POLLED
        s_sub_u32 s{sT+2}, s{sT+2}, 1
        s_cbranch_scc1 K2_END
        buffer_load_dwordx4 v[76:79], v72, {ws}, s{sT+9} offen sc1
        s_waitcnt vmcnt(1)
        {chk(80)}
        s_cbranch_vccnz K2_POLL
        s_add_u32 s{sT+3}, s{sT+3}, 4
        s_add_u32 s{sT+5}, s{sT+5}, 4
        ''')
        else: a(f'''
        s_waitcnt vmcnt(0)
        {chk(76)}
        s_cbranch_vccz K2_POLLED
        s_sub_u32 s{sT+2}, s{sT+2}, 1
        s_cbranch_scc1 K2_END
        s_mov_b64 exec, vcc
        buffer_load_dwordx4 v[76:79], v72, {ws}, s{sT+9} offen sc1
        s_mov_b64 exec, -1
        s_branch K2_POLL
        ''')
        a(f'''
        K2_POLLED:
        {f's_sub_u32 s101, 0x100000, s{sT+2}' if PROFS else ''}
        s_set_gpr_idx_on s{sT+3}, gpr_idx(SRC0)
        v_bfe_u32 v{vE}, v76, s{sT+4}, 11
        s_set_gpr_idx_idx s{sT+5}
        v_bfe_u32 v73, v76, s{sT+6}, 11
        s_set_gpr_idx_off
        v_sub_u32 v73, v73, v{vE}
        ''')
        o = Asm(); sv = self.a; self.a = o
        o(f'''
        K2_WINDOW:
        s_mov_b32 s{sRND}, 0
        s_mov_b32 s{sR}, 1
        K2_LOAD:
        v_mbcnt_lo_u32_b32 v{vL}, -1, 0
        v_mbcnt_hi_u32_b32 v{vL}, -1, v{vL}
        s_lshl_b32 s{sT}, s{sW}, 6
        v_add_u32 v{vT_}, s{sT}, v{vL}
        v_lshlrev_b32 v70, 4, v{vL}
        ''')
        self.wload(0, 70)
        self.fill_all(vT_)
        o(f's_cmp_lg_u32 s{sW}, 7\ns_cbranch_scc1 K2_NOH')
        self.counters(vL, False)
        o('K2_NOH:\ns_waitcnt lgkmcnt(0)\ns_barrier\ns_branch K2_CELLS')
        self.a = sv; self.ool(o.text())
        stamp(a, 1)
        a(f'''
        v_cndmask_b32 v73, 0, v73, s[{sEX}:{sEX+1}]
        v_and_b32 v1, 1, v{vT_}
        v_add_u32 v1, s{sJ0}, v1                ; j0 + sub
        v_sub_u32 v{vREM}, v73, v1
        v_add_u32 v{vE}, v{vE}, v1
        v_mul_u32_u24 v{vOFF}, {CSTR}, v{vC}
        v_lshl_add_u32 v{vOFF}, v{vE}, 4, v{vOFF}
        v_mul_u32_u24 v{vC}, {CH}, v{vC}
        ''')
        a(f's_mov_b32 s{sT+2}, 0x100000\nK2_RELOAD:')
        loop('K2_LD_DONE', lambda i: f'buffer_load_dwordx4 v[{4*i}:{4*i+3}], v{vOFF}, {ws}, 0 offen offset:{32*i} sc1')
        a(f'''
        s_cmp_eq_u32 s{sFIRST}, 0
        s_cbranch_scc1 K2_NOWRAW
        s_cmp_lg_u32 s{sT+2}, 0x100000
        s_cbranch_scc1 K2_NOWRAW
        s_cmp_lg_u32 s{sW}, 7
        s_cbranch_scc1 K2_NOFLG
        v_lshlrev_b32 v72, 4, v{vL}
        s_mov_b32 s{sT+9}, {WS_FLG}
        buffer_load_dwordx4 v[84:87], v72, {ws}, s{sT+9} offen sc1
        K2_NOFLG:
        ''')
        self.wraw(vL)
        a(f'''
        K2_NOWRAW:
        s_mov_b32 s{sT+3}, 0xffff
        s_mov_b64 s[{sT+4}:{sT+5}], 0
        s_waitcnt vmcnt(0)
        ''')
        loop('K2_CK_DONE', lambda i: f'v_bfi_b32 v{t0}, s{sT+3}, v{4*i+1}, v{4*i+2}\nv_cmp_ne_u32 vcc, s{sTAG}, v{t0}\ns_or_b64 s[{sT+4}:{sT+5}], s[{sT+4}:{sT+5}], vcc')
        self.ool(f'''
        K2_RETRY:
        s_sub_u32 s{sT+2}, s{sT+2}, 1
        s_cbranch_scc1 K2_END
        s_branch K2_RELOAD
        K2_FLGCK:
        s_cmp_eq_u32 s{sFIRST}, 0
        s_cbranch_scc1 K2_FLGOK
        s_mov_b32 s{sT+2}, 0x100000
        K2_FLGW:
        v_xor_b32 v84, s{sTAG}, v84
        v_xor_b32 v85, s{sTAG}, v85
        v_xor_b32 v86, s{sTAG}, v86
        v_xor_b32 v87, s{sTAG}, v87
        v_or3_b32 v84, v84, v85, v86
        v_or_b32 v84, v84, v87
        v_cmp_ne_u32 vcc, 0, v84
        s_and_b32 vcc_hi, vcc_hi, 0x3ffff       ; 200 flags
        s_cmp_eq_u64 vcc, 0
        s_cbranch_scc1 K2_FLGOK
        s_sub_u32 s{sT+2}, s{sT+2}, 1
        s_cbranch_scc1 K2_END
        buffer_load_dwordx4 v[84:87], v72, {ws}, s{sT+9} offen sc1
        s_waitcnt vmcnt(0)
        s_branch K2_FLGW
        ''')
        a(f'''
        s_cmp_lg_u64 s[{sT+4}:{sT+5}], 0
        s_cbranch_scc1 K2_RETRY
        {f's_sub_u32 s100, 0x100000, s{sT+2}' + chr(10) + 's_lshl_b32 s100, s100, 8' + chr(10) + 's_add_u32 s100, s100, s101' if PROFS else ''}
        s_cmp_eq_u32 s{sW}, 7
        s_cbranch_scc1 K2_FLGCK
        K2_FLGOK:
        v_add_lshl_u32 v{vE}, v{vE}, v{vC}, 2
        s_mov_b32 s{sT+8}, {WS_RANK}
        v_mov_b32 v{t0+9}, 1
        s_cmp_lg_u32 s{sRND}, 0
        s_cbranch_scc1 K2_RK_LOAD
        v_cmp_lt_i32 vcc, {2*U}, v{vREM}
        s_cbranch_vccz K2_NOMORE
        v_mov_b32 v61, {FLAG}
        ds_write_b32 v61, v{t0+9}
        K2_NOMORE:
        s_mov_b32 s{sT}, {HIST}
        s_movk_i32 s{sT+1}, {NSTR}
        v_mov_b32 v{t0+10}, {RECBASE}
        ''')
        stamp(a, 2)
        def prep(i):
            return (f'v_mad_u32_u24 v{NBs+i}, v{NBs+i}, s{sT+1}, v{t0+10}\nv_bfe_u32 v{60+i}, v{4*i+3}, 14, 11\n'
                    f'v_add_lshl_u32 v{60+i}, v{60+i}, v{vC}, 5\nv_and_b32 v{4*i+3}, 0x3fff, v{4*i+3}\n'
                    f'v_and_b32 v{4*i+2}, 0xffff0000, v{4*i+1}\nv_and_b32 v{4*i+1}, 0xffff0000, v{4*i}\nv_lshlrev_b32 v{4*i}, 16, v{4*i}')
        loop('K2_RK_A', lambda i: f'v_lshrrev_b32 v{NBs+i}, 25, v{4*i+3}\nv_lshl_add_u32 v{RK+i}, v{NBs+i}, 2, s{sT}\nds_add_rtn_u32 v{RK+i}, v{RK+i}, v{t0+9}\n' + prep(i))
        a(f's_branch K2_RK_DONE\nK2_RK_LOAD:\ns_movk_i32 s{sT+1}, {NSTR}\nv_mov_b32 v{t0+10}, {RECBASE}\ns_waitcnt vmcnt(0)')
        loop('K2_RK_B', lambda i: f'v_lshrrev_b32 v{NBs+i}, 25, v{4*i+3}\nbuffer_load_dword v{RK+i}, v{vE}, {ws}, s{sT+8} offen offset:{8*i}\n' + prep(i))
        a(f'''
        s_waitcnt vmcnt(0)
        K2_RK_DONE:
        s_mul_i32 s{sT+9}, s{sRND}, 48
        s_waitcnt lgkmcnt(0)
        ''')
        def scatter(i, rr, base):
            return f'''
            v_lshl_add_u32 v{t0+2}, v{rr}, 5, v{base}
            v_lshl_add_u32 v{t0+3}, v{rr}, 2, v{base}
            v_and_b32 v{t0+4}, 7, v{rr}
            v_add_lshl_u32 v{t0+4}, v{t0+4}, v{rr}, 1
            v_bfe_u32 v{t0+1}, v{rr}, 3, 1
            v_mad_i32_i24 v{t0+4}, v{t0+1}, -14, v{t0+4}
            v_add_u32 v{t0+4}, v{t0+4}, v{base}
            ds_write_b32 v{t0+2}, v{60+i} offset:{OA}
            ds_write2_b32 v{t0+3}, v{4*i}, v{4*i+1} offset0:48 offset1:96
            ds_write_b32 v{t0+3}, v{4*i+2} offset:576
            ds_write_b16 v{t0+4}, v{4*i+3} offset:{OS}
            '''
        for i in range(U):
            nx = self.lab('sc')
            a(f'''
            v_cmp_lt_i32 vcc, {2*i}, v{vREM}
            s_cbranch_vccz K2_SC_DONE
            v_subrev_u32 v{t0}, s{sT+9}, v{RK+i}
            v_cmp_gt_u32 s[{sEX}:{sEX+1}], 48, v{t0}
            s_and_b64 exec, vcc, s[{sEX}:{sEX+1}]
            s_cbranch_execz {nx}
            {scatter(i, t0, NBs+i)}
            {nx}:
            s_mov_b64 exec, -1
            ''')
        d = t0 + 1; k = t0 + 2; e = t0 + 3; p = t0 + 4; x = t0 + 5; pl = t0 + 6
        a(f'''
        K2_SC_DONE:
        v_lshlrev_b32 v{t0}, 2, v{vL}
        v_add_u32 v{t0}, {HIST}, v{t0}
        v_mov_b32 v{t0+8}, {FLAG}
        v_mov_b32 v{pl}, 0
        s_movk_i32 s{sLIM}, 48
        s_waitcnt lgkmcnt(0)
        s_barrier
        ds_read_b32 v{d}, v{t0}
        ds_read_b32 v{t0+8}, v{t0+8}
        v_cmp_gt_u32 s[{sEX}:{sEX+1}], s{sNC}, v{vL}
        v_mad_u32_u24 v{e}, v{vL}, s{sT+1}, v{t0+10}
        v_lshl_or_b32 v{e}, v{vL}, 21, v{e}
        s_waitcnt lgkmcnt(0)
        v_cndmask_b32 v{d}, 0, v{d}, s[{sEX}:{sEX+1}]
        v_readfirstlane_b32 s{sMORE}, v{t0+8}
        v_cmp_lt_u32 vcc, 48, v{d}
        s_cbranch_vccnz K2_BIG
        K2_TOK:
        v_subrev_u32 v{k}, s{sT+9}, v{d}
        v_max_i32 v{k}, 1, v{k}
        v_min_i32 v{k}, s{sLIM}, v{k}
        v_add_u32 v{k}, 15, v{k}
        v_lshrrev_b32 v{k}, 4, v{k}             ; K-steps
        v_lshl_or_b32 v{e}, v{k}, 18, v{e}
        v_or_b32 v{e}, v{e}, v{pl}
        v_mov_b32 v{x}, {NULLBASE | (1 << 18)}
        v_cndmask_b32 v{VTAB}, v{x}, v{e}, s[{sEX}:{sEX+1}]
''')
        if opt('sort', False): self.sortnodes(vL, k, p, x)
        o = Asm(); b = a; a = o
        a(f'''
        K2_BIG:
        s_cmp_lg_u32 s{sRND}, 0
        s_cbranch_scc1 K2_TOK
        s_mov_b64 s[{sT+4}:{sT+5}], vcc
        s_bcnt1_i32_b64 s{sT+2}, vcc
        s_cmp_eq_u32 s{sNC}, 39
        s_cselect_b32 s{sT+3}, 5, 2
        s_cmp_gt_u32 s{sT+2}, s{sT+3}
        s_cbranch_scc1 K2_SLOW
        v_cmp_lt_u32 vcc, 64, v{d}
        s_cbranch_vccnz K2_SLOW
        v_mbcnt_lo_u32_b32 v{x}, s{sT+4}, 0
        v_mbcnt_hi_u32_b32 v{x}, s{sT+5}, v{x}
        v_lshlrev_b32 v{pl}, 27, v{x}
        v_cndmask_b32 v{pl}, 0, v{pl}, s[{sT+4}:{sT+5}]
        s_movk_i32 s{sLIM}, 64
        v_cmp_le_u32 vcc, 2, v{x}
        v_mov_b32 v{k}, {POOL}
        v_mov_b32 v{p}, {POOL - NSTR - (2 << 22)}
        v_cndmask_b32 v{k}, v{k}, v{p}, vcc
        v_lshl_add_u32 v{x}, v{x}, 22, v{k}
        v_mov_b32 v{t0+11}, v{d}
        v_mov_b32 v{t0+12}, v{e}
        v_mov_b32 v{t0+13}, v{x}
        s_mov_b32 s{sT+2}, {(1 << 24) // NSTR + 1}
        ''')
        for nd in range(40): assert ((nd*NSTR) * ((1 << 24)//NSTR + 1)) >> 24 == nd
        for i in range(U):
            nx = self.lab('ov')
            a(f'''
            v_cmp_lt_i32 vcc, {2*i}, v{vREM}
            s_cbranch_vccz K2_OV_DONE
            v_subrev_u32 v{t0}, {RECBASE}, v{NBs+i}
            v_mul_hi_u32_u24 v{t0+1}, s{sT+2}, v{t0}
            v_mul_u32_u24 v{t0}, s{sT+2}, v{t0}
            v_alignbit_b32 v{t0}, v{t0+1}, v{t0}, 24
            v_lshlrev_b32 v{t0}, 2, v{t0}
            ds_bpermute_b32 v{t0+7}, v{t0}, v{t0+13}
            v_subrev_u32 v{t0}, 48, v{RK+i}
            v_cmp_gt_u32 s[{sT+4}:{sT+5}], 16, v{t0}
            s_waitcnt lgkmcnt(0)
            s_and_b64 exec, vcc, s[{sT+4}:{sT+5}]
            s_cbranch_execz {nx}
            v_lshrrev_b32 v{t0+1}, 18, v{t0+7}
            v_add_u32 v{t0}, v{t0}, v{t0+1}
            v_and_b32 v{t0+7}, 0x3ffff, v{t0+7}
            {scatter(i, t0, t0+7)}
            {nx}:
            s_mov_b64 exec, -1
            ''')
        a(f'''
        K2_OV_DONE:
        v_mov_b32 v{d}, v{t0+11}
        v_mov_b32 v{e}, v{t0+12}
        s_waitcnt lgkmcnt(0)
        s_barrier
        s_branch K2_TOK
        K2_SLOW:
        v_mov_b32 v{x}, v{d}
        ''')
        scan(a, x, 'v_max_u32')
        for dd in range(48, 512*U + 48): assert (dd * 43691) >> 21 == dd // 48
        a(f'''
        v_readlane_b32 s{sR}, v{x}, 63
        s_add_u32 s{sR}, s{sR}, 47
        s_mul_i32 s{sR}, s{sR}, 43691
        s_lshr_b32 s{sR}, s{sR}, 21
        ''')
        for i in range(U):
            a(f'v_cmp_lt_i32 vcc, {2*i}, v{vREM}\ns_cbranch_vccz K2_SV_DONE\ns_mov_b64 exec, vcc')
            a(f'buffer_store_dword v{RK+i}, v{vE}, {ws}, s{sT+8} offen offset:{8*i}')
        a('K2_SV_DONE:\ns_mov_b64 exec, -1\ns_branch K2_TOK')
        self.ool(o.text()); a = b
        for q in range(4): a(f's_movk_i32 s{sOWN+q}, {q*256}')
        a(f'''
        s_mov_b32 s{sJ}, 0
        s_mov_b32 s{sNPH}, 0
        s_mov_b32 s{sNP}, 0
        s_mov_b32 s{sNV}, 1
        s_mov_b32 s{sCP}, 0
        s_mov_b32 s{sT}, s{sW}
        ''')
        lg = LG(a)
        self.emit(self.next_info(0), lg)
        stamp(a, 3)
        pre = self.eread()
        for t in range(4): pre += self.sread(t)
        pre += self.adma()
        for t in range(4): pre += self.gmad(t)
        for t in range(4): pre += self.dma(t, G + 2*t, sNX + t) + (['s_barrier'] if t == opt('fbar', 0) else [])
        pre += [f'v_add_u32 v{VAO}, s{sNBs}, v{VAO}', f'v_add_u32 v{VYO}, s{sNBs}, v{VYO}', 's_waitcnt vmcnt(6)']
        self.emit(pre, lg)
        stamp(a, 4)
        self.emit(self.bread(0) + self.areads(0) + self.areads(1), lg)
        self.dispatch(0, check=False)
        for ph in range(2):
            for nK in (2, 3): self.unit(nK, ph)
        for ph in range(2):
            for nK in (1, 4): self.unit(nK, ph)
        a('K2_SWITCH:')
        stamp(a, 5)
        self.emit(self.fin(3, 0), LG(a))
        a(f's_cmp_eq_u32 s{sNV}, 0\ns_cbranch_scc1 K2_TAIL2\nv_lshlrev_b32 v{VT0}, 3, v{VL2}\nv_add_u32 v{VPA}, s{sNP}, v{VL2}')
        self.wload(1, VT0)
        for q in range(4): a(f's_movk_i32 s{sOWN+q}, {q*256+128}')
        a(f's_cmp_lg_u32 s{sNK}, 1\ns_cbranch_scc1 K2_SW2\ns_waitcnt vmcnt(0)\nK2_SW2:')
        if not FUSE: stamp(a, 6)
        self.dispatch(1, check=False)
        for t in self.outline: a(t)
        self.tail()
        a('K2_END:\ns_endpgm')
        return a.lines, 256

    def tail(self):
        a = self.a
        ws = f's[{sWS}:{sWS+3}]'
        vP0 = 222; vP1 = 223; vS = 226; vSP = 227; vRow = 228; vL16 = 229
        OP = 176
        def sload():
            a(f'v_lshlrev_b32 v{vL16}, 3, v{VL2}\ns_mul_i32 s{sT}, s{sW}, {20*1024}\ns_add_u32 s{sT}, s{sT}, {WS_STAB}')
            for f in range(20):
                a(f'buffer_load_dwordx4 v[{WR+4*f}:{WR+4*f+3}], v{vL16}, {ws}, s{sT} offen offset:{(f%4)*1024} {"sc1" if FUSE else ""}')
                if f % 4 == 3 and f < 19: a(f's_add_u32 s{sT}, s{sT}, 4096')
        a('K2_TAIL2:')
        sload()
        a('s_branch K2_TAIL3\nK2_TAIL:')
        stamp(a, 7)
        sload()
        self.emit(self.fin(3, 1), LG(a))
        a(f"""
        K2_TAIL3:
        s_mul_i32 s{sT+1}, s{sW}, {8192+32}
        v_add_u32 v{vRow}, s{sT+1}, v{VL2}
        s_waitcnt vmcnt(20)
        """)
        rows = [(0,2),(5,8),(3,6),(9,1),(4,7),(10,None)]
        dump = []
        for j in range(5):
            for k, (lo, hi) in enumerate(rows):
                dump.append(f'ds_write_b16 v{vRow}, v{P0+6*j+k} offset:{j*1536 + lo*128}')
                if hi is not None: dump.append(f'ds_write_b16_d16_hi v{vRow}, v{P0+6*j+k} offset:{j*1536 + hi*128}')
        for x in dump: a(x)
        a(f"""
        v_bfe_u32 v48, v{VL2}, 1, 4             ; n & 15
        v_lshlrev_b32 v49, 2, v48
        v_add_u32 v50, 64, v49
        v_add_u32 v51, 128, v49
        ds_bpermute_b32 v{vP1}, v49, v{VTAB}
        ds_bpermute_b32 v{vP1+1}, v50, v{VTAB}
        ds_bpermute_b32 v{vP1+2}, v51, v{VTAB}
        v_lshrrev_b32 v49, 5, v{VL2}            ; slab
        v_and_b32 v50, 7, v48
        v_mul_u32_u24 v50, {8192+32}, v50
        v_lshrrev_b32 v51, 3, v48
        v_mul_u32_u24 v51, 1536, v51
        v_add_u32 v50, v50, v51
        v_lshlrev_b32 v52, 4, v49               ; slab*16
        v_add_u32 v{vP0}, v50, v52
        s_lshl_b32 s{sT+2}, s{sW}, 5
        v_lshl_add_u32 v51, v49, 3, s{sT+2}
        v_bfe_u32 v53, v48, 2, 1
        v_lshl_add_u32 v51, v53, 4, v51
        v_add_u32 v{vS}, v50, v51
        s_sub_u32 s{sT+2}, s{sNC}, 32
        v_cmp_gt_u32 s[{sEX}:{sEX+1}], s{sT+2}, v48
        s_bfe_u32 s{sT+2}, s{sW}, 0x10002
        s_lshl_b32 s{sT+2}, s{sT+2}, 4
        s_add_u32 s{sT+1}, s{sT+1}, s{sT+2}
        s_add_u32 s{sRND}, s{sRND}, 1
        s_cmp_ge_u32 s{sRND}, s{sR}
        s_cselect_b32 s{sLAST}, 1, 0
        s_cmp_eq_u32 s{sMORE}, 0
        s_cselect_b32 s{sLAST}, s{sLAST}, 0
        s_and_b32 s{sT+6}, s{sLAST}, s{sFIRST}
        s_mov_b32 s{sT+5}, 0xbfb8aa3b           ; -log2(e)
        v_lshlrev_b32 v53, 5, v48
        s_waitcnt lgkmcnt(0)
        v_add_u32 v{vRow}, s{sT+1}, v{vL16}
        """)
        for g in range(3):
            a(f'v_and_b32 v51, 0x3ffff, v{vP1+g}\nv_sub_u32 v50, v53, v51\nv_and_b32 v50, 0xff, v50\nv_add3_u32 v{vP1+g}, v50, v51, v52')
        stamp(a, 8); a('s_barrier'); stamp(a, 9)
        a(f's_cmp_eq_u32 s{sT+6}, 0\ns_cbranch_scc1 K2_MULTI')
        steps = []
        for g in range(3):
            for ph in range(2):
                for rs in range(2):
                    for hh in range(2): steps.append((g, 0, ph*4 + rs*2 + hh, ph, rs, hh))
            for ph in range(2):
                for path in range(3):
                    for hh in range(2):
                        for j in range(3): steps.append((g, 1+j, 8 + ph*6 + path*2 + hh, ph, 2 + 3*j + path, hh))
        NB = 12; D = 10
        def epi(g):
            c = 16*g; o = OP + 8*(g & 1); s = []; tp = 200
            for r in range(4): s.append(f'v_mul_f32 v{tp+r}, s{sT+5}, v{c+r}')
            for r in range(4): s.append(f'v_exp_f32 v{tp+r}, v{tp+r}')
            for r in range(4): s.append(f'v_add_f32 v{tp+r}, 1.0, v{tp+r}')
            for r in range(4): s.append(f'v_rcp_f32 v{tp+r}, v{tp+r}')
            s += [f'v_cvt_pk_bf16_f32 v{o}, v{c}, v{c+1}', f'v_cvt_pk_bf16_f32 v{o+1}, v{c+2}, v{c+3}']
            for j in range(3):
                for r in range(4): s.append(f'v_mul_f32 v{c+4+4*j+r}, v{c+4+4*j+r}, v{tp+r}')
                s += [f'v_cvt_pk_bf16_f32 v{o+2+2*j}, v{c+4+4*j}, v{c+5+4*j}', f'v_cvt_pk_bf16_f32 v{o+3+2*j}, v{c+6+4*j}, v{c+7+4*j}']
            return s
        def stage(g):
            o = OP + 8*(g & 1)
            w = [(f'ds_write_b64 v{vS}, v[{o+2*rt}:{o+1+2*rt}] offset:{g*3072 + rt*256}', [(f'w{g}', False)]) for rt in range(4)]
            return w if g < 2 else [f's_mov_b64 exec, s[{sEX}:{sEX+1}]'] + w + ['s_mov_b64 exec, -1']
        def rowread(g):
            return [(f'ds_read_b128 v[{192+4*(j&1)}:{195+4*(j&1)}], v{vRow} offset:{j*1536}', [(f'r{g}', False)]) for j in ((2*g, 2*g+1) if g < 2 else (4,))]
        def rowstore(g):
            s = [('wait', f'r{g}')]
            for j in ((2*g, 2*g+1) if g < 2 else (4,)):
                s = [f's_add_u32 s{sT+3}, s{sW}, {8*j}\nv_readlane_b32 s{sOWN+j}, v{VTAB}, s{sT+3}\ns_nop 0\ns_bfe_u32 s{sOWN+j}, s{sOWN+j}, 0x60015\ns_add_u32 s{sOWN+j}, s{sOWN+j}, s{sNB}\ns_lshl_b32 s{sOWN+j}, s{sOWN+j}, 10'] + s
                s += [f'buffer_store_dwordx4 v[{192+4*(j&1)}:{195+4*(j&1)}], v{vL16}, s[{sOUT}:{sOUT+3}], s{sOWN+j} offen {mod("outst","sc1")}']
            return s
        def gemm(lg, extra):
            def rd(k):
                g, rt, f, ph, row, hh = steps[k]
                b = 48 + 4*(k % NB)
                ad = f'v{vP1+g} offset:{row*128 + hh*64}' if ph else f'v{vP0} offset:{g*3072 + row*128 + hh*64}'
                self.emit([(f'ds_read_b128 v[{b}:{b+3}], {ad}', [(f'k{k}', False)])], lg)
            for k in range(D): rd(k)
            seen = set(); started = set()
            for k in range(len(steps)):
                g, rt, f, ph, row, hh = steps[k]
                if k + D < len(steps): rd(k + D)
                vm = None
                if f not in seen: seen.add(f); vm = 19 - f
                self.emit([('wait', f'k{k}', vm)], lg)
                b = 48 + 4*(k % NB); c = 16*g + 4*rt
                cin = f'v[{c}:{c+3}]' if c in started else '0'; started.add(c)
                a(f'v_mfma_f32_16x16x32_bf16 v[{c}:{c+3}], v[{WR+4*f}:{WR+4*f+3}], v[{b}:{b+3}], {cin}')
                self.emit(extra.get(k, []), lg)
        lg = LG(a); extra = {}
        for g in range(2):
            e = epi(g); k0 = 44*(g+1) + 3
            for i, x in enumerate(e): extra.setdefault(k0 + min(i, 40), []).append(x)
        extra.setdefault(44 + 2, []).insert(0, 's_barrier')
        extra[83] = stage(0)
        extra[95] = [('wait', 'w0'), 's_barrier'] + rowread(0) + extra[95]
        extra[107] += rowstore(0)
        extra[127] = stage(1)
        gemm(lg, extra)
        stamp(a, 10)
        self.emit(epi(2) + [('wait', 'w1'), 's_barrier'] + rowread(1) + stage(2) + rowstore(1) + [('wait', 'w2'), 's_barrier'], lg)
        a(f'K2_LASTROW:\ns_add_u32 s{sT+1}, s{sW}, 32\ns_cmp_ge_u32 s{sT+1}, s{sNC}\ns_cbranch_scc1 K2_FIN')
        self.emit(rowread(2) + rowstore(2), lg)
        a('K2_FIN:')
        if PROF:
            stamp(a, 11); a('s_waitcnt vmcnt(0)'); stamp(a, 12); stamp_out(a, 13, 1, sW, sB, sWS)
        a('s_branch K2_END')
        a('K2_MULTI:')
        lg = LG(a)
        gemm(lg, {})
        a(f"""
        s_lshl_b32 s{sT+2}, s{sB}, 9
        s_lshl_b32 s{sT+3}, s{sW}, 6
        s_add_u32 s{sT+2}, s{sT+2}, s{sT+3}
        s_mul_i32 s{sT+2}, s{sT+2}, 192
        s_add_u32 s{sT+2}, s{sT+2}, {WS_ACC}
        v_mul_u32_u24 v{vSP}, 96, v{VL2}        ; lane*192
        s_cmp_lg_u32 s{sFIRST}, 0
        s_cbranch_scc1 K2_NOACC
        """)
        for i in range(12): a(f'buffer_load_dwordx4 v[{48+4*i}:{51+4*i}], v{vSP}, {ws}, s{sT+2} offen offset:{16*i}')
        a('s_waitcnt vmcnt(0)')
        for i in range(48): a(f'v_add_f32 v{i}, v{i}, v{48+i}')
        a(f'K2_NOACC:\ns_barrier\ns_cmp_eq_u32 s{sLAST}, 0\ns_cbranch_scc1 K2_SPILL')
        for g in range(2):
            self.emit(epi(g) + stage(g) + [('wait', f'w{g}'), 's_barrier'] + rowread(g) + rowstore(g), lg)
        self.emit(epi(2) + stage(2) + [('wait', 'w2'), 's_barrier'], lg)
        a('s_branch K2_LASTROW\nK2_SPILL:')
        for i in range(12): a(f'buffer_store_dwordx4 v[{4*i}:{4*i+3}], v{vSP}, {ws}, s{sT+2} offen offset:{16*i}')
        a(f"""
        s_mov_b32 s{sFIRST}, 0
        s_waitcnt vmcnt(0)
        s_cmp_lt_u32 s{sRND}, s{sR}
        s_cbranch_scc1 K2_LOAD
        s_add_u32 s{sJ0}, s{sJ0}, {2*U}
        s_branch K2_WINDOW
        """)

HEADER = '''; Kernarg layout for this problem (96 bytes, ptrs only, base s[0:1]):
'''
def kd(name, vgpr):
    return f'''.amdhsa_kernel {name}
  .amdhsa_next_free_vgpr {vgpr}
  .amdhsa_next_free_sgpr {102}
  .amdhsa_accum_offset {(vgpr+3)//4*4}
  .amdhsa_group_segment_fixed_size 0
  .amdhsa_kernarg_size 96
  .amdhsa_user_sgpr_count 2
  .amdhsa_user_sgpr_kernarg_segment_ptr 1
  .amdhsa_system_sgpr_workgroup_id_x 1
  .amdhsa_float_denorm_mode_32 3
.end_amdhsa_kernel
'''
def main():
    ks = []
    l2, v2 = K2().gen(); ks.append((NAME + '_kernel', fix_hazards(l2), v2))
    s = HEADER
    s += f'; @launch grid=(256,1,1) block=(512,1,1) lds={K2_LDS}\n'
    s += '.amdgcn_target "amdgcn-amd-amdhsa--gfx950"\n.text\n'
    for name, l, v in ks:
        s += f'.globl {name}\n.p2align 8\n.type {name},@function\n{name}:\n'
        s += '\n'.join((x if x.endswith(':') else '    ' + x) for x in l) + '\n'
    s += '.section .rodata,"a"\n' + ''.join('.p2align 6\n' + kd(name, v) for name, l, v in ks)
    out = sys.argv[1] if len(sys.argv) > 1 else f'/code/{NAME}.s'
    open(out, 'w').write(s)
    print('wrote', out, len(s), 'bytes')
main()
```

```python
import sys, os
sys.path.insert(0, os.path.dirname(os.path.abspath(__file__)))
from asmlib import Asm, fix_hazards

NAME = 'standalone__tensor_product_equiv_equiformer__graph'
N = 10000; E = 320000
NCH = 250; CH = E // NCH
CSTR = CH * 16 + 128
TSTR = 1024 + 128
WS_REC = 0
WS_TBL = 0x0600000
WS_STAB = 0x06A0000
WS_WTAB = 0x06C8000
WS_FLG = 0x06D8000
WS_RANK = 0x0700000
WS_PROF = 0x0900000
WS_ACC = 0x0A00000
WS_SIZE = 0x2400000
assert NCH * CSTR <= WS_TBL and WS_TBL + NCH * TSTR <= WS_STAB and WS_ACC + 256*512*192 <= WS_SIZE
BMUL = 429497
for d in range(N): assert ((d * BMUL) & 0xffffffff) >> 24 == (d * 16) // 625

OPT = dict(a.split('=') for a in sys.argv[2:]) if len(sys.argv) > 2 else {}
def opt(k, d): return type(d)(OPT.get(k, d)) if not isinstance(d, bool) else bool(int(OPT.get(k, d)))
def mod(k, d): return opt(k, d).replace('_', ' ')

PROF = opt('prof', False)
FUSE = True
SEG = opt('seg', False)
def seg(i): return [f's_memtime s[{76+2*i}:{77+2*i}]'] if SEG else []
PROFS = opt('profs', False)
def sstamp(a, i):
    if PROFS: a(f's_memrealtime s[{76+2*i}:{77+2*i}]')
PROFT = opt('proft', False)
def stamp(a, i, t=False):
    if PROFT and 1 <= i <= 6 and not t: return
    if PROFS and (i >= 7 or (i == 1 and opt('diag', 0))): return
    if PROF and not SEG: a(f'{"s_memtime" if opt("cyc", False) else "s_memrealtime"} s[{76+2*i}:{77+2*i}]')
def stamp_out(a, n, kern, swave, swg, srd_s):
    if not PROF: return
    if opt('dbgout', -1) >= 0:
        l = f'DBG_{kern}'
        a(f's_cmp_lg_u32 s{swg}, {opt("dbgout", -1)}\ns_cbranch_scc1 {l}\ns_cmp_lg_u32 s{swave}, 0\ns_cbranch_scc1 {l}')
        a(f's_load_dwordx2 s[58:59], s[0:1], 80\ns_waitcnt lgkmcnt(0)\ns_add_u32 s58, s58, {512*(1-kern)*opt("dbgk1", 0)}\ns_addc_u32 s59, s59, 0')
        srd(a, 60, 58, 256)
        a('s_mov_b64 exec, 1\nv_mov_b32 v1, 0')
        for i, o in ([(0, 0), (5, 14), (2, 15)] if kern == 0 else [(i, 1+i) for i in range(13)]):
            a(f'v_mov_b32 v2, s{76+2*i}\nbuffer_store_dword v2, v1, s[60:63], 0 offen offset:{4*o}')
        a(f's_mov_b64 exec, -1\n{l}:')
        return
    a('s_waitcnt lgkmcnt(0)')
    a(f's_lshl_b32 s67, s{swg}, 4\ns_add_u32 s67, s67, s{swave}\ns_lshl_b32 s67, s67, 6\ns_add_u32 s67, s67, {WS_PROF + kern*256*16*64}')
    a('s_mov_b64 exec, 1\nv_mov_b32 v1, 0')
    for i in range(n):
        a(f'v_mov_b32 v2, s{76+2*i if not SEG else 96+min(i,5)}\nbuffer_store_dword v2, v1, s[{srd_s}:{srd_s+3}], s67 offen offset:{4*i}')
    a('s_mov_b64 exec, -1')

def srd(a, s, ptr, nbytes):
    a(f's_mov_b32 s{s}, s{ptr}\ns_and_b32 s{s+1}, s{ptr+1}, 0xffff\ns_mov_b32 s{s+2}, {nbytes}\ns_mov_b32 s{s+3}, 0x20000')

def scan(a, v, op='v_add_u32'):
    for sh in (1, 2, 4, 8):
        a(f'{op}_dpp v{v}, v{v}, v{v} row_shr:{sh} row_mask:0xf bank_mask:0xf bound_ctrl:0')
    a(f'{op}_dpp v{v}, v{v}, v{v} row_bcast:15 row_mask:0xa bank_mask:0xf')
    a(f'{op}_dpp v{v}, v{v}, v{v} row_bcast:31 row_mask:0xc bank_mask:0xf')

K1_T = CH // 4
K1_LDS = 2048 + CH * 16
def weight_loads(a):
    a(f'''
    v_and_b32 v1, 15, v8
    v_lshrrev_b32 v3, 4, v8
    s_cmp_ge_u32 s2, 160
    s_cbranch_scc1 K1_WT
    s_cmp_ge_u32 s2, 64
    s_cbranch_scc1 K1_S1
    s_lshr_b32 s24, s2, 3
    s_and_b32 s25, s2, 7
    s_lshr_b32 s26, s25, 2
    s_bfe_u32 s27, s25, 0x10001
    s_and_b32 s28, s25, 1
    ''')
    srd(a, 60, 92, 256*128*2)
    a(f'''
    s_branch K1_SC
    K1_S1:
    ; S1: g2 = g-64; w = g2/12, f2 = g2%12 : ph = f2/6, path = (f2%6)>>1, hh = f2&1
    s_sub_u32 s29, s2, 64
    s_mul_i32 s24, s29, 43
    s_lshr_b32 s24, s24, 9
    s_mul_i32 s25, s24, 12
    s_sub_u32 s25, s29, s25
    s_cmp_ge_u32 s25, 6
    s_cselect_b32 s26, 1, 0
    s_mul_i32 s27, s26, 6
    s_sub_u32 s27, s25, s27
    s_lshr_b32 s27, s27, 1
    s_and_b32 s28, s25, 1
    s_add_u32 s25, s25, 8
    ''')
    for g2 in range(96): assert (g2*43) >> 9 == g2 // 12
    srd(a, 60, 94, 384*128*2)
    a(f'''
    K1_SC:
    s_lshl_b32 s27, s27, 7
    s_lshl_b32 s26, s26, 6
    s_lshl_b32 s28, s28, 4
    s_add_u32 s27, s27, s26
    s_add_u32 s27, s27, s28
    s_lshl_b32 s27, s27, 8
    s_lshl_b32 s26, s24, 5
    s_add_u32 s27, s27, s26
    s_add_u32 s29, s27, 8192
    v_lshlrev_b32 v3, 10, v3
    v_lshl_add_u32 v3, v1, 1, v3
    ''')
    for e in range(8): a(f'buffer_load_ushort v{64+e}, v3, s[60:63], s{29 if e & 1 else 27} offen offset:{(e >> 1)*256}')
    a(f'''
    s_mul_i32 s24, s24, 20
    s_add_u32 s24, s24, s25
    s_lshl_b32 s24, s24, 10
    s_add_u32 s24, s24, {WS_STAB}
    s_branch K1_GO
    K1_WT:
    ; W (fp32): g3 = g-160; ph = g3/20, i = g3%20 : p = i>>2, u = (i>>1)&1, rq = i&1
    s_sub_u32 s24, s2, 160
    s_cmp_ge_u32 s24, 20
    s_cselect_b32 s26, 1, 0
    s_mul_i32 s25, s26, 20
    s_sub_u32 s25, s24, s25
    s_lshr_b32 s27, s25, 2
    s_bfe_u32 s28, s25, 0x10001
    s_and_b32 s25, s25, 1
    s_mul_i32 s25, s25, {8*1280}
    s_lshl_b32 s27, s27, 8
    s_lshl_b32 s26, s26, 7
    s_lshl_b32 s28, s28, 6
    s_add_u32 s27, s27, s26
    s_add_u32 s27, s27, s28
    s_add_u32 s27, s27, s25
    ''')
    srd(a, 60, 90, 16*640*2)
    a(f'''
    v_and_b32 v1, 31, v8
    v_lshrrev_b32 v3, 5, v8
    v_mul_u32_u24 v3, {4*1280}, v3
    v_lshl_add_u32 v3, v1, 1, v3
    v_mov_b32 v64, 0
    v_mov_b32 v66, 0
    v_mov_b32 v68, 0
    v_mov_b32 v70, 0
    ''')
    for r in range(4): a(f'buffer_load_ushort v{65+2*r}, v3, s[60:63], s27 offen offset:{r*1280}')
    a(f'''
    s_lshl_b32 s24, s24, 10
    s_add_u32 s24, s24, {WS_WTAB}
    ''')

def sort_rank(a):
    for j in range(4):
        a(f'v_mul_u32_u24 v{28+j}, s58, v{12+j}\nv_lshrrev_b32 v{32+j}, 27, v{28+j}\nv_bfe_u32 v{36+j}, v{28+j}, 24, 3\nv_lshlrev_b32 v{32+j}, 2, v{32+j}')
        a(f'v_lshl_or_b32 v{32+j}, v{36+j}, 7, v{32+j}\nds_add_rtn_u32 v{36+j}, v{32+j}, v7')
    for j in range(4):
        a(f'v_lshrrev_b32 v{28+j}, 24, v{28+j}\nv_mad_u32_u24 v{28+j}, v{28+j}, s59, 15\nv_lshrrev_b32 v{28+j}, 4, v{28+j}\nv_sub_u32 v{28+j}, v{12+j}, v{28+j}')
        a(f'v_add_u32 v{12+j}, {j}, v2\nv_lshlrev_b32 v{12+j}, 14, v{12+j}\nv_lshl_or_b32 v{28+j}, v{28+j}, 25, v{12+j}')
    a(f'''
    v_mov_b32 v59, {NONCE}
    s_mul_i32 s65, s2, {TSTR}
    s_add_u32 s65, s65, {WS_TBL}
    s_mul_i32 s64, s2, {CSTR}
    s_waitcnt lgkmcnt(0)
    s_barrier
    ''')
    sstamp(a, 9)
    a(f'''
    ds_read_b128 v[40:43], v9
    ds_read_b32 v59, v59
    s_waitcnt lgkmcnt(1)
    v_add_u32 v45, v40, v41
    v_add_u32 v46, v45, v42
    v_add_u32 v47, v46, v43
    v_mov_b32 v58, v47
    ''')
    scan(a, 58)
    a(f'''
    v_sub_u32 v48, v58, v47                 ; exclusive
    v_add_u32 v49, v48, v40
    v_add_u32 v50, v48, v45
    v_add_u32 v51, v48, v46
    ds_write_b128 v9, v[48:51] offset:1024
    s_waitcnt vmcnt(0) lgkmcnt(1)
    s_cmp_lg_u32 s{sW}, 4
    s_cbranch_scc1 KS_NOPUB
    v_lshl_or_b32 v56, v49, 11, v48
    v_lshl_or_b32 v57, v51, 11, v50
    v_lshl_or_b32 v56, v59, 22, v56
    v_lshl_or_b32 v57, v59, 22, v57
    buffer_store_dwordx4 v[56:59], v9, s[{sWS}:{sWS+3}], s65 offen sc1
    KS_NOPUB:
''')
    sstamp(a, 10)

def sort_emit(a, st):
    a('v_and_b32 v60, 0xffff, v59\ns_mov_b32 s58, 0xffff0000')
    for j in range(4):
        b = 20 + 3*(j >> 1)
        if j & 1: a(f'v_alignbit_b32 v{40+4*j}, v{b+2}, v{b+1}, 16\nv_and_or_b32 v{41+4*j}, v{b+2}, s58, v60')
        else: a(f'v_mov_b32 v{40+4*j}, v{b}\nv_lshl_or_b32 v{41+4*j}, v{b+1}, 16, v60')
        a(f'v_mov_b32 v{42+4*j}, v59\nv_or_b32 v{43+4*j}, v{28+j}, v{16+j}')
    a('s_waitcnt lgkmcnt(0)')
    for j in range(4):
        a(f'v_add_lshl_u32 v{32+j}, v{32+j}, v{36+j}, 4\nds_write_b128 v{32+j}, v[{40+4*j}:{43+4*j}] offset:2048')
    a(f's_waitcnt lgkmcnt(0)\ns_barrier')
    sstamp(a, 11)
    for i in range(4): a(f'ds_read_b128 v[{12+4*i}:{15+4*i}], v5 offset:{2048 + i*K1_T*16}')
    for i in range(4):
        a(f's_waitcnt lgkmcnt({3-i})')
        a(f'buffer_store_dwordx4 v[{12+4*i}:{15+4*i}], v5, s[8:11], s64 offen {st}')
        if i < 3: a(f's_add_u32 s64, s64, {K1_T*16}')

NSTR = 2400
OY = 0; OS = 768; OA = 864
RECBASE = 65536
POOL = RECBASE + 40 * NSTR
MISC = POOL + OA + 1024
HIST = MISC; PROG = MISC + 192; CNT = MISC + 224; FLAG = MISC + 228; NULLSRC = MISC + 256; SCR = MISC + 288; NONCE = MISC + 304
NULLBASE = NULLSRC - OS
K2_LDS = 163840
U = 10
ACC = 0; AR = 64; WR = 96; BR = 176; P0 = 192; G = 222
VEO = 230; VH16 = 231; T2 = 232; T3 = 233; PW = 234
VB0 = 246; VB1 = 247; VLG = 248; VAO = 249; VYO = 250; VSO = 251; VL2 = 252; VTAB = 253; VT0 = 254; VT1 = 255; VPA = VEO
sX = 4; sWS = 8; sOUT = 12; sEA = 16
sW = 20; sNB = 21; sNC = 22; sJ0 = 23; sRND = 24; sR = 25; sLIM = 26; sMORE = 27; sFIRST = 28
sCB = 29; sC4 = 30; sCP = 31; sNBs = 48; sNK = 33; sNPH = 34; sNP = 35; sNV = 36
sRING = 37; sJ = 38; s1024 = 39; sOWN = 40; sNX = 44; sSO = 48; sPROGW = 52; sPROG = 53; sB = 54; sLAST = 55
sEX = 56
sT = 58
sM0 = 68
sX2 = 72
sPP = 32
sN4 = 3
sTAG = 2

def tile(t, u): return ACC + 16 * (2*u + t)
TILES = [(0,0), (1,0), (0,1), (1,1)]
def Wreg(p, u): return WR + p*16 + u*8

def weave(x, y):
    o = []
    for i in range(max(len(x), len(y))):
        o += x[i:i+1] + y[i:i+1]
    return o

class LG:
    def __init__(self, a, q=()): self.a = a; self.q = list(q)
    def issue(self, tag, optional=False): self.q.append((tag, optional))
    def waitline(self, tag):
        idx = [i for i, (t, o) in enumerate(self.q) if t == tag]
        if not idx: return None
        y = sum(1 for (t, o) in self.q[idx[-1]+1:] if not o)
        self.q = self.q[idx[-1]+1:]
        return f's_waitcnt lgkmcnt({min(y, 15)})'

class K2:
    def __init__(self):
        self.a = Asm()
        self.uid = 0
        self.outline = []
    def lab(self, s):
        self.uid += 1
        return f'K2_{s}_{self.uid}'

    def dma(self, slot, greg, soff):
        return [f's_mov_b32 m0, s{sM0+slot}',
                f'buffer_load_dwordx4 v{greg}, s[{sX}:{sX+3}], s{soff} offen lds',
                f'buffer_load_dwordx4 v{greg+1}, s[{sX2}:{sX2+3}], s{soff} offen offset:1024 lds']
    def bread(self, item):
        out = []
        for u in range(2):
            for r in range(2):
                d = BR + (item & 1)*8 + u*4 + r*2
                out.append((f'ds_read_b64_tr_b16 v[{d}:{d+1}], v{VB0+u} offset:{(item & 3)*2048 + r*512}', [('B' if u == 0 or not opt('split', 0) else 'B1', False)]))
        return out
    def sread(self, t):
        return [f'v_add_u32 v{G+2*t}, s{sSO+t}, v{VSO}', (f'ds_read_b32 v{G+2*t}, v{G+2*t}', [(f'S{t}', False)])]
    def gmad(self, t):
        return [('wait', f'S{t}'),
                f'v_mad_u32_u16 v{G+2*t+1}, v{G+2*t}, s{s1024}, v{VLG} op_sel:[1,0,0,0]',
                f'v_mad_u32_u16 v{G+2*t}, v{G+2*t}, s{s1024}, v{VLG}']
    def ool(self, text): self.outline.append(text)
    def atomic(self):
        return [f'v_mov_b32 v{VT0}, {CNT}', f'v_mov_b32 v{VT1}, 1', f'v_lshl_add_u32 v{T3}, v{VL2}, 1, s{sPROG}',
                (f's_mov_b64 exec, 1\nds_add_rtn_u32 v{T2}, v{VT0}, v{VT1}\ns_mov_b64 exec, -1', [('C', False)]),
                (f'ds_read_b32 v{T3}, v{T3}', [('C', False)])]
    def claimed(self):
        nul = self.lab('nul'); spin = self.lab('spin'); chk = self.lab('chk'); back = self.lab('back')
        self.ool(f'{nul}:\ns_mov_b32 s{sT}, 63\ns_mov_b32 s{sNV}, 0\ns_branch {back}')
        self.ool(f'{spin}:\nv_lshl_add_u32 v{T3}, v{VL2}, 1, s{sPROG}\nds_read_b32 v{T3}, v{T3}\ns_waitcnt lgkmcnt(0)\ns_branch {chk}')
        return [f'v_readfirstlane_b32 s{sT}, v{T2}',
                f"""s_cmp_lt_u32 s{sT}, s{sNC}
                s_cbranch_scc0 {nul}
                s_and_b32 s{sT+1}, s{sT}, 7
                s_lshr_b32 s{sT+2}, s{sT}, 3
                {chk}:
                v_readlane_b32 s{sT+3}, v{T3}, s{sT+1}
                s_nop 0
                s_cmp_gt_u32 s{sT+3}, s{sT+2}
                s_cbranch_scc0 {spin}
                {back}:"""]
    def claim0(self):
        dyn = self.lab('dyn'); back = self.lab('back')
        o = [x if isinstance(x, str) else x[0] for x in self.atomic()] + ['s_waitcnt lgkmcnt(0)'] + self.claimed()
        self.ool(f'{dyn}:\n' + '\n'.join(o) + f'\ns_mov_b32 s{sNPH}, 1\ns_branch {back}')
        return [f's_add_u32 s{sJ}, s{sJ}, 1', f'v_mov_b32 v{VT0}, s{sPROGW}', f'v_mov_b32 v{VT1}, s{sJ}',
                f's_lshl_b32 s{sT}, s{sJ}, 3', f's_add_u32 s{sT}, s{sT}, s{sW}',
                (f's_mov_b64 exec, 1\nds_write_b32 v{VT0}, v{VT1}\ns_mov_b64 exec, -1', [('W', False)]),
                f's_cmp_lt_u32 s{sT}, s{sNC}\ns_cbranch_scc0 {dyn}\n{back}:']
    def pooladdr(self, d, word, stride):
        return f"""s_lshr_b32 s{d}, s{word}, 27
            s_mov_b32 s{sT+8}, {POOL}
            s_cmp_ge_u32 s{d}, 2
            s_cselect_b32 s{sT+8}, {POOL - NSTR - 2*stride}, s{sT+8}
            s_mul_i32 s{d}, s{d}, {stride}
            s_add_u32 s{d}, s{d}, s{sT+8}"""
    def next_info(self, ph):
        rare = self.lab('rare'); back = self.lab('back'); four = self.lab('four')
        self.ool(f"""{rare}:
            s_cmp_eq_u32 s{sNK}, 4
            s_cbranch_scc1 {four}
            s_mov_b32 s{sSO+1}, s{sNBs}
            s_mov_b32 s{sSO+3}, s{sNBs}
            s_add_u32 s{sNX+1}, s{sNX}, 256
            s_add_u32 s{sNX+2}, s{sNX}, 512
            s_add_u32 s{sNX+3}, s{sNX}, 768
            s_branch {back}
            {four}:
            s_add_u32 s{sSO+2}, s{sNBs}, 64
            {self.pooladdr(sSO+3, sN4, 32)}
            s_mov_b32 s{sNX+2}, s{sNX}
            s_mov_b32 s{sNX+3}, s{sNX}
            s_branch {back}""")
        o = [f'v_readlane_b32 s{sN4}, v{VTAB}, s{sT}', f's_lshl_b32 s{sNX}, s{sNPH}, 7', f's_lshl_b32 s{sT+2}, s{sT}, 5',
             f's_and_b32 s{sNBs}, s{sN4}, 0x3ffff', f's_bfe_u32 s{sNK}, s{sN4}, 0x30012',
             f's_sub_u32 s{sT+2}, s{sT+2}, s{sNBs}', f's_and_b32 s{sT+2}, s{sT+2}, 0xff']
        if ph == 1: o += [f's_add_u32 s{sNP}, s{sT+2}, s{sNBs}']
        else: o += [f's_add_u32 s{sT+2}, s{sT+2}, s{sNBs}', f's_mul_i32 s{sNP}, s{sJ}, 6', f's_cmp_eq_u32 s{sNPH}, 0\ns_cselect_b32 s{sNP}, s{sNP}, s{sT+2}']
        o += [f's_mov_b32 s{sNX+1}, s{sNX}', f's_add_u32 s{sNX+3}, s{sNX}, 256', f's_add_u32 s{sSO+1}, s{sNBs}, 32', f's_add_u32 s{sT+2}, s{sNBs}, 64',
              f's_cmp_eq_u32 s{sNK}, 3\ns_cselect_b32 s{sNX+2}, s{sNX}, s{sNX+3}\ns_cselect_b32 s{sSO+2}, s{sT+2}, s{sNBs}\ns_cselect_b32 s{sSO+3}, s{sNBs}, s{sSO+1}',
              f's_sub_u32 s{sT+2}, s{sNK}, 2\ns_cmp_lt_u32 s{sT+2}, 2\ns_cbranch_scc0 {rare}\n{back}:']
        return o
    def eread(self):
        return [f'v_add_u32 v{T3}, s{sNBs}, v{VEO}',
                (f'ds_read_b32 v{T2}, v{T3}', [('E', False)]), (f'ds_read_b32 v{T3}, v{T3} offset:1024', [('E', False)])]
    NEXTRA = 2
    def adma(self):
        dum = self.lab('dum'); four = self.lab('a4'); back = self.lab('back'); b4 = self.lab('b4')
        ea = f's[{sEA}:{sEA+3}]'; m = mod('eald', '')
        self.ool(f'{dum}:\nv_mov_b32 v{T2}, -1\ns_mov_b32 m0, {SCR}\ns_mov_b64 exec, 1\n' + f'buffer_load_dwordx4 v{T2}, {ea}, 0 offen lds\n'*2 + f's_mov_b64 exec, -1\ns_branch {back}')
        self.ool(f"""{four}:
            {self.pooladdr(sT+7, sN4, 512)}
            v_add_u32 v{T2}, s{sT+7}, v{VEO}
            ds_read_b32 v{T2}, v{T2}
            s_add_u32 m0, s{sT+7}, {OA}
            s_waitcnt lgkmcnt(0)
            v_or_b32 v{T2}, v{T2}, v{VH16}
            buffer_load_dwordx4 v{T2}, {ea}, 0 offen {m} lds
            s_branch {b4}""")
        return [('wait', 'E'), f'v_or_b32 v{T2}, v{T2}, v{VH16}', f'v_or_b32 v{T3}, v{T3}, v{VH16}', f"""
        s_cmp_lg_u32 s{sNPH}, 0
        s_cbranch_scc1 {dum}
        s_add_u32 m0, s{sNBs}, {OA}
        s_add_u32 s{sT+7}, s{sNBs}, {OA+1024}
        buffer_load_dwordx4 v{T2}, {ea}, 0 offen {m} lds
        s_mov_b32 m0, s{sT+7}
        s_mov_b32 exec_hi, 0
        buffer_load_dwordx4 v{T3}, {ea}, 0 offen {m} lds
        s_cmp_eq_u32 s{sNK}, 4
        s_cbranch_scc1 {four}
        {b4}:
        s_mov_b32 exec_hi, -1
        {back}:"""]
    def areads(self, s):
        b = ACC + (s & 1) * 20
        va, vy, oa, oy, o = VAO, VYO, s*512, s*64, []
        if s == 3:
            va, vy, oa, oy = ACC + 56, ACC + 57, 0, 0
            o = [self.pooladdr(sT+7, sC4, 512) + f'\ns_sub_u32 s{sT+7}, s{sT+7}, s{sCB}\nv_add_u32 v{va}, s{sT+7}, v{VAO}',
                 self.pooladdr(sT+7, sC4, 64) + f'\ns_sub_u32 s{sT+7}, s{sT+7}, s{sCB}\nv_add_u32 v{vy}, s{sT+7}, v{VYO}']
        o += [(f'ds_read_b64_tr_b16 v[{b}:{b+1}], v{va} offset:{oa}', [(f'a{s}', False)]),
              (f'ds_read_b64_tr_b16 v[{b+2}:{b+3}], v{va} offset:{oa+128}', [(f'a{s}', False)])]
        for t in range(2):
            for hh in range(2):
                d = b + 4 + t*8 + hh*4
                o.append((f'ds_read_b128 v[{d}:{d+3}], v{vy} offset:{oy + t*384 + hh*16}', [(f'y{s}{t}', False)]))
        return o
    def abuild(self, nK):
        o = []
        for s in range(nK):
            b = ACC + (s & 1) * 20; un = ACC + 40 + (s & 1) * 8
            o.append(('wait', f'a{s}'))
            for i in range(4):
                o += [f'v_lshlrev_b32 v{un+2*i}, 16, v{b+i}', f'v_and_b32 v{un+1+2*i}, 0xffff0000, v{b+i}']
            for t in range(2):
                o.append(('wait', f'y{s}{t}'))
                for e in range(8): o.append(f'v_mul_f32 v{b+4+t*8+e}, v{un+e}, v{b+4+t*8+e}')
                for i in range(4): o.append(f'v_cvt_pk_bf16_f32 v{AR+s*8+t*4+i}, v{b+4+t*8+2*i}, v{b+5+t*8+2*i}')
            if s + 2 < nK: o += self.areads(s + 2)
        return o
    R = dict(A=PW, B=PW+2, C=PW+4, D=PW+6, E=PW+8, F=PW+10)
    CH_ = {0: [(0,'A','new'),(2,'B','new'),(2,'C','new'),(2,'D','new')],
           1: [(3,'A','new'),(1,'B','new'),(4,'C','new'),(4,'D','new')],
           2: [(3,'E','new'),(4,'C','neg'),(1,'B','acc'),(4,'F','new')],
           3: [(3,'E','new'),(4,'D','neg'),(4,'F','neg'),(1,'B','acc')]}
    def F(self, q, k):
        t, u = TILES[k]; o = []
        for r in range(8):
            for b in (2*t, 2*t+1):
                p, d, mode = self.CH_[q][b]
                T = tile(t, u) + (b & 1)*8 + r; W = Wreg(p, u) + r; D = self.R[d] + u
                if r == 0 and mode == 'new': o.append(f'v_mul_f32 v{D}, v{T}, v{W}')
                elif r == 0 and mode == 'neg': o.append(f'v_fma_f32 v{D}, v{T}, v{W}, -v{D}')
                else: o.append(f'v_fmac_f32 v{D}, v{T}, v{W}')
        return o
    SROW = {0: 0, 2: 1, 8: 2, 5: 3, 6: 4, 3: 5, 9: 6, 1: 7, 4: 8, 10: 9, 7: 10}
    def fin(self, q, ph, sp=None):
        sp = sCP if sp is None else sp
        R = self.R
        pairs = {0: [(0, 'A', 'B'), (1, 'D', 'C')], 1: [], 2: [(2, 'E', 'A')], 3: [(3, 'E', 'B'), (4, 'F', 'C')]}[q]
        o = []
        for (slot, x, y) in pairs: o += [f'v_permlane32_swap_b32 v{R[x]+u}, v{R[y]+u}' for u in range(2)]
        if q == 3: o.append(f'v_permlane32_swap_b32 v{R["D"]}, v{R["D"]+1}')
        if ph == 1 and q == 0: o.append(f'v_lshl_add_u32 v{VPA}, v{VL2}, 1, s{sCP}')
        for (slot, x, y) in pairs: o += [f'v_add_f32 v{R[x]+u}, v{R[x]+u}, v{R[y]+u}' for u in range(2)]
        cv = [(slot, R[x], R[x]+1) for (slot, x, y) in pairs]
        if q == 3:
            o.append(f'v_add_f32 v{R["D"]}, -v{R["D"]}, -v{R["D"]+1}')
            cv.append((5, R['D'], R['D']))
        if cv and ph == 0:
            o.append(f's_set_gpr_idx_on s{sp}, gpr_idx(DST)\n' + ''.join(f'v_cvt_pk_bf16_f32 v{P0+slot}, v{lo}, v{hi}\n' for (slot, lo, hi) in cv) + 's_set_gpr_idx_off')
        elif cv:
            if q == 3: o.append(f'v_sub_u32 v{R["D"]+1}, v{VPA}, v{VH16}')
            for (slot, lo, hi) in cv: o.append(f'v_cvt_pk_bf16_f32 v{lo}, v{lo}, v{hi}')
            for (slot, lo, hi) in cv:
                o.append((f'ds_write_b32 v{VPA}, v{lo} offset:{slot*256}' if slot < 5 else f'ds_write_b16 v{R["D"]+1}, v{lo} offset:1280', [('P', False)]))
        return o
    def drop(self, line):
        x = opt('drop', '')
        if not x or not getattr(self, 'inunit', False) or '\n' in line.strip(): return False
        l = line.strip()
        if 'D' in x and l.startswith('buffer_load') and (f's[{sX}:' in l or f's[{sX2}:' in l): return True
        if 'P' in x and l.startswith('ds_write_b16'): return True
        if 'S' in x and l.startswith('v_permlane'): return True
        if 'C' in x and l.startswith('v_cvt_pk'): return True
        if 'B' in x and l.startswith('ds_read_b64_tr') and (f'v{VB0} ' in l or f'v{VB1} ' in l): return True
        if 'F' in x and l.startswith('v_fmac'): return True
        if 'A' in x and l.startswith(('v_lshlrev_b32','v_and_b32','v_cvt_pk')): return True
        if 'A' in x and l.startswith('v_mul_f32') and int(l.split()[1][1:-1]) < 64: return True
        if 'Y' in x and l.startswith(('ds_read_b128',)): return True
        return False
    def emit(self, items, lg):
        for it in items:
            if isinstance(it, str):
                if not self.drop(it): self.a(it)
            elif it[0] != 'wait' and self.drop(it[0]):
                for t, o in it[1]: lg.issue(t, o)
            elif it[0] == 'wait':
                w = lg.waitline(it[1])
                if len(it) > 2 and it[2] is not None: w = f's_waitcnt vmcnt({it[2]})' + (w[len('s_waitcnt'):] if w else '')
                if w: self.a(w)
            else:
                self.a(it[0])
                for t, o in it[1]: lg.issue(t, o)
    ENTRY = [('B', False)]*2 + [('B1' if opt('split', 0) else 'B', False)]*2 + [('a0', False)]*2 + [('y00', False)]*2 + [('y01', False)]*2 + [('a1', False)]*2 + [('y10', False)]*2 + [('y11', False)]*2
    @staticmethod
    def cost(it):
        if isinstance(it, tuple):
            if it[0] == 'wait': return 1
            it = it[0]
        return sum((2 if 'permlane' in l else 1) for l in it.strip().split('\n') if not l.strip().endswith(':'))
    def unit(self, nK, ph):
        a = self.a
        lg = LG(a, self.ENTRY)
        a(f'K2_U{nK}{ph}:')
        self.inunit = True
        n = 4 * nK
        BUD = opt('bud', 7)
        pre = seg(0)
        claim = (self.claim0() if ph == 0 else self.atomic())
        after = ([] if ph == 0 else [('wait', 'C')] + self.claimed()) + self.next_info(ph)
        if nK == 1: pre += claim
        pre += self.abuild(nK)
        if nK == 1:
            pre += after + (self.eread() if ph == 0 else [])
            for t in range(4): pre += self.sread(t)
            if ph == 0: pre += self.adma()
            for t in range(4): pre += self.gmad(t)
        x = -1 if nK == 1 else 2
        MW = opt('mergewait', True)
        gaps = [[] for _ in range(4*n)]; tailg = [[] for _ in range(4*n)]
        vmn = lambda i: 4 + (self.NEXTRA if (ph == 0 and x < i <= x + 3) else 0)
        for i in range(n):
            d = self.dma(i & 3, G + 2*((i+4) % nK), sOWN + (i+4)//nK) if i + 4 < n else self.dma(i & 3, G + 2*(i+4-n), sNX + (i+4-n))
            br = self.bread(i + 1); SP = opt('split', 0)
            w = [] if MW else [f's_waitcnt vmcnt({vmn(i)})']
            if SP == 0:
                gaps[4*i] += w + br; tailg[4*i] += [d[0]]; gaps[4*i+1] += [d[1], d[2]]
            elif SP == 1:
                gaps[4*i] += w + br[:2]; tailg[4*i+1] += [('wait', 'B1'), d[0]]; gaps[4*i+2] += [d[1]] + br[2:]; tailg[4*i+2] += [d[0]]; gaps[4*i+3] += [d[2]]
            elif SP == 2:
                gaps[4*i] += w + br[:2]; gaps[4*i+1] += br[2:]; tailg[4*i+1] += [d[0]]; gaps[4*i+2] += [d[1]]; tailg[4*i+2] += [d[0]]; gaps[4*i+3] += [d[2]]
            if i + 1 < n: tailg[4*i+3] += [('wait', 'B1' if SP == 2 else 'B', vmn(i+1) if MW else None)]
        used = lambda g: sum(map(self.cost, gaps[g] + tailg[g]))
        def place(items, g0, g1):
            g = g0
            for it in items:
                while g < g1 and used(g) + self.cost(it) > BUD and used(g) > 1: g += 1
                gaps[g].append(it)
            return g
        DEF = opt('defer', True) and nK > 1
        if nK > 1:
            for t in range(4):
                place(self.sread(t), 4*(n-6+t) + (3 if opt('split', 0) else 2), 4*(n-6+t) + 3)
                place(self.gmad(t), 4*(n-5+t) + 1, 4*(n-5+t) + 3)
        ndef = [0]*4
        for q in range(1, 4):
            g0 = 4*q*nK
            if DEF:
                f3 = self.F(q-1, 3)
                room = [max(0, BUD - used(g0 + k)) for k in range(3)]
                m = min(16, sum(room)); ndef[q-1] = m
                f3 = f3[16-m:]
                for k in range(3):
                    gaps[g0 + k] += f3[:room[k]]; f3 = f3[room[k]:]
            place(self.fin(q-1, ph), g0 + (3 if DEF else 1), 4*(q*nK + nK - 1) + (1 if nK > 1 else 3))
        place(self.fin(3, ph, sPP), 1, 4*(nK - 1) + (1 if nK > 1 else 3))
        if nK > 1:
            if ph == 0:
                g = place(claim + after, 1, 5)
                place(self.eread(), max(g, 5), 7)
                place(self.adma(), 4*x + 3, 4*x + 3)
            else:
                place(claim, 1, 3)
                g1 = 4*(n-6) + (3 if opt('split', 0) else 2)
                keep = gaps[g1]; k0 = [i for i, it in enumerate(keep) if isinstance(it, str) and f'v{VSO}' in it]
                moved = keep[k0[0]:] if k0 else []
                if k0: gaps[g1] = keep[:k0[0]]
                place(after, 5, g1)
                gaps[g1] += moved
        nf0 = [0]*4
        if nK > 1:
            for q in range(4):
                g = 4*(q*nK + nK - 1) + 2
                nf0[q] = max(0, BUD - used(g))
                gaps[g] += self.F(q, 0)[:nf0[q]]
        self.emit([f's_setprio {opt("prioa", 1)}'] + pre + seg(1) + [('wait', 'B', vmn(0) if MW else None)] + ([f's_setprio {opt("prio", 1)}'] if opt("prio", 1) != opt("prioa", 1) else []), lg)
        for i in range(n):
            q, s = divmod(i, nK)
            for k, (t, u) in enumerate(TILES):
                c = f'v[{tile(t,u)}:{tile(t,u)+15}]' if s else '0'
                bb = BR + (i & 1)*8 + u*4
                if 'M' not in opt('drop', ''): a(f'v_mfma_f32_32x32x16_bf16 v[{tile(t,u)}:{tile(t,u)+15}], v[{AR+s*8+t*4}:{AR+s*8+t*4+3}], v[{bb}:{bb+3}], {c}')
                g = 4*i + k
                if k == 3 and s == nK - 1:
                    self.emit([f's_setprio {opt("prio0", 0)}'] + gaps[g] + seg(2+2*q) + self.F(q, 0)[nf0[q]:], lg)
                    if q < 3: self.emit(self.F(q, 1) + self.F(q, 2) + self.F(q, 3)[:16-ndef[q]] + seg(3+2*q) + [f's_setprio {opt("prio", 1)}'], lg)
                else: self.emit(gaps[g], lg)
                self.emit(tailg[g], lg)
        end = [f's_sub_u32 s{sT}, s{sNBs}, s{sCB}', f'v_add_u32 v{VAO}, s{sT}, v{VAO}', f'v_add_u32 v{VYO}, s{sT}, v{VYO}']
        end += self.F(3, 1) + self.areads(0) + self.F(3, 2) + self.areads(1) + self.F(3, 3)
        self.emit(end, lg)
        if SEG:
            a('s_memtime s[94:95]\ns_waitcnt lgkmcnt(0)')
            def acc(d, i, j): a(f's_sub_u32 s67, s{76+2*j}, s{76+2*i}\ns_add_u32 s{d}, s{d}, s67')
            acc(96, 0, 1)
            for q in range(4): acc(97, 1+2*q, 2+2*q)
            for q in range(3): acc(98, 2+2*q, 3+2*q)
            acc(99, 8, 9)
            a(f's_add_u32 s100, s100, {nK}\ns_add_u32 s101, s101, 1')
        assert [x for x in lg.q if x[0] != 'P'] == self.ENTRY, lg.q
        self.inunit = False
        self.dispatch(ph)
    def dispatch(self, ph, check=True):
        if check:
            if ph == 0: self.a(f's_cmp_lg_u32 s{sNPH}, 0\ns_cbranch_scc1 K2_SWITCH')
            else: self.a(f's_cmp_eq_u32 s{sNV}, 0\ns_cbranch_scc1 K2_TAIL')
        self.a(f"""
        s_mov_b32 s{sCB}, s{sNBs}
        s_mov_b32 s{sPP}, s{sCP}
        s_mov_b32 s{sC4}, s{sN4}
        s_mov_b32 s{sCP}, s{sNP}
        s_cmp_eq_u32 s{sNK}, 2
        s_cbranch_scc1 K2_U2{ph}
        s_cmp_eq_u32 s{sNK}, 3
        s_cbranch_scc1 K2_U3{ph}
        s_cmp_eq_u32 s{sNK}, 1
        s_cbranch_scc1 K2_U1{ph}
        s_branch K2_U4{ph}
        """)

    def wload(self, ph, vl16):
        for i in range(20):
            if i % 4 == 0: self.a(f's_mov_b32 s{sT}, {WS_WTAB + ph*20480 + i*1024}')
            self.a(f'buffer_load_dwordx4 v[{WR+4*i}:{WR+3+4*i}], v{vl16}, s[{sWS}:{sWS+3}], s{sT} offen offset:{(i%4)*1024} {"sc1" if FUSE else ""}')

    def fill_all(self, vT_):
        a = self.a
        for t in range(512): assert (t*437) >> 16 == t // 150
        a(f'''
        v_mul_u32_u24 v76, 437, v{vT_}
        v_lshrrev_b32 v76, 16, v76
        v_mul_u32_u24 v76, 150, v76
        v_sub_u32 v76, v{vT_}, v76
        v_mov_b32 v80, -1
        v_mov_b32 v77, 1.0
        v_cmp_gt_u32 vcc, 48, v76
        v_lshlrev_b32 v78, 4, v{vT_}
        v_add_u32 v78, {RECBASE}, v78
        v_cndmask_b32 v80, v80, 0, vcc
        v_cmp_gt_u32 vcc, 12, v76
        v_add_u32 v79, 64800, v78
        s_nop 0
        v_cndmask_b32 v80, v80, v77, vcc
        v_cmp_gt_u32 vcc, 450, v{vT_}
        v_mov_b32 v81, v80
        v_mov_b32 v82, v80
        v_mov_b32 v83, v80
        s_mov_b64 exec, vcc
        ''')
        for i in range(13): a(f'ds_write_b128 v{78 + (i//9)}, v[80:83] offset:{(i%9)*7200}')
        a(f'''
        v_cmp_gt_u32 vcc, {150 + (OA+1024)//16}, v{vT_}
        s_cbranch_vccz K2_NOCL
        s_mov_b64 exec, vcc
        ds_write_b128 v79, v[80:83] offset:{4*7200}
        K2_NOCL:
        s_mov_b64 exec, -1
        ''')
    def fill_head(self, part):
        a = self.a; n1 = opt('n1', 40)
        if part == 0:
            a(f'''
            v_subrev_u32 v76, 320, v0
            v_mov_b32 v80, -1
            v_mov_b32 v77, 1.0
            v_cmp_gt_u32 vcc, 48, v76
            v_lshlrev_b32 v78, 4, v76
            v_add_u32 v78, {RECBASE}, v78
            v_cndmask_b32 v80, v80, 0, vcc
            v_cmp_gt_u32 vcc, 12, v76
            v_add_u32 v79, {27*NSTR}, v78
            s_nop 0
            v_cndmask_b32 v80, v80, v77, vcc
            v_cmp_gt_u32 s[{sEX}:{sEX+1}], {(OA+1024)//16 - 64}, v8
            v_mov_b32 v81, v80
            v_mov_b32 v82, v80
            v_mov_b32 v83, v80
            ''')
        for i in (range(n1) if part == 0 else range(n1, 40)): a(f'ds_write_b128 v{78 + (i//27)}, v[80:83] offset:{(i%27)*NSTR}')
        if part == 1:
            a(f'''
            s_cmp_eq_u32 s{sW}, 6
            s_cselect_b64 exec, s[{sEX}:{sEX+1}], -1
            ds_write_b128 v79, v[80:83] offset:{13*NSTR}
            s_mov_b64 exec, -1
            ''')
    def fill_tail(self):
        for t in range(320): assert (t*2979) >> 16 == t // 22
        self.a(f'''
        v_mul_u32_u24 v76, 2979, v0
        v_lshrrev_b32 v76, 16, v76
        v_mul_u32_u24 v77, {NSTR - 22*16}, v76
        v_lshl_add_u32 v78, v0, 4, v77
        v_add_u32 v78, {RECBASE + 128*16}, v78
        v_add_u32 v79, {28*NSTR}, v78
        v_mov_b32 v80, -1
        v_mov_b32 v81, -1
        v_cmp_gt_u32 vcc, 14, v76
        v_cmp_gt_u32 s[{sEX}:{sEX+1}], 12, v76
        v_mov_b32 v82, -1
        v_mov_b32 v83, -1
        s_mov_b64 exec, vcc
        ds_write_b128 v78, v[80:83]
        ds_write_b128 v78, v[80:83] offset:{14*NSTR}
        s_mov_b64 exec, s[{sEX}:{sEX+1}]
        ds_write_b128 v79, v[80:83]
        s_mov_b64 exec, -1
        ''')
    def counters(self, vL, first):
        self.a(f'''
        v_mov_b32 v76, 0
        v_mov_b32 v77, -1
        v_lshlrev_b32 v78, 2, v{vL}
        v_add_u32 v78, {HIST}, v78
        s_mov_b64 exec, 0x1ff
        ds_write_b32 v78, v76 offset:{PROG-HIST}
        s_mov_b64 exec, 0xff
        ds_write_b32 v78, v77 offset:{NULLSRC-HIST}
        s_mov_b64 exec, -1
        {'' if first else f's_cmp_lg_u32 s{sRND}, 0'}
        {'' if first else f's_cbranch_scc1 K2_NOH'}
        s_mov_b32 exec_hi, 0xffff
        ds_write_b32 v78, v76
        s_mov_b64 exec, 1
        ds_write_b32 v78, v76 offset:{FLAG-HIST}
        s_mov_b64 exec, -1
        ''')
    def srds(self):
        a = self.a
        srd(a, sX, 80, N*1024); srd(a, sOUT, 96, N*1024); srd(a, sEA, 84, E*32)
        a('s_sub_u32 s80, s80, 1024\ns_subb_u32 s81, s81, 0'); srd(a, sX2, 80, N*1024 + 1024)
    def consts(self, vL):
        self.a(f'''
        v_and_b32 v84, 15, v{vL}                ; i
        v_lshrrev_b32 v85, 5, v{vL}             ; h
        v_bfe_u32 v86, v{vL}, 4, 1
        v_lshrrev_b32 v87, 2, v84
        v_and_b32 v88, 3, v84                   ; c
        v_lshl_add_u32 v89, v85, 3, v87         ; 8h + row
        v_lshlrev_b32 v{VAO}, 5, v89
        v_lshl_add_u32 v{VAO}, v88, 3, v{VAO}
        v_add_u32 v{VAO}, {OA}, v{VAO}
        v_mul_u32_u24 v{VYO}, 192, v86
        v_lshl_add_u32 v{VYO}, v85, 5, v{VYO}
        v_lshrrev_b32 v90, 1, v88
        v_lshl_add_u32 v90, v86, 1, v90         ; chunk (u = 0)
        v_bfe_u32 v91, v87, 1, 1
        v_lshlrev_b32 v91, 2, v91
        v_xor_b32 v90, v90, v91
        v_lshlrev_b32 v90, 4, v90
        v_lshl_add_u32 v90, v89, 7, v90
        v_and_b32 v91, 1, v88
        v_lshl_add_u32 v90, v91, 3, v90
        v_add_u32 v{VB0}, s{sRING}, v90
        v_xor_b32 v{VB1}, 64, v{VB0}
        v_lshrrev_b32 v90, 3, v{vL}
        v_lshlrev_b32 v{VSO}, 2, v90
        v_add_u32 v{VSO}, {OS}, v{VSO}
        v_bfe_u32 v90, v90, 1, 1
        v_lshlrev_b32 v90, 2, v90
        v_and_b32 v91, 7, v{vL}
        v_xor_b32 v90, v90, v91
        v_lshlrev_b32 v{VLG}, 4, v90
        v_lshlrev_b32 v{VL2}, 1, v{vL}
        v_and_b32 v{VH16}, 1, v{vL}
        v_lshlrev_b32 v{VH16}, 4, v{VH16}
        v_lshrrev_b32 v90, 1, v{vL}
        v_lshlrev_b32 v90, 5, v90
        v_add_u32 v{VEO}, {OA}, v90
        ''')
    def stage_sort(self, vL, vT_):
        a = self.a; st = 'sc1'
        RAW = 24576
        a(f'''
        s_cmp_ge_u32 s{sW}, 5
        s_cbranch_scc1 KS_HELP
        s_cmp_ge_u32 s2, {NCH}
        s_cbranch_scc1 KS_IDLE
        ''')
        srd(a, 40, 88, E*4)
        a(f'buffer_load_dwordx4 v[12:15], v5, s[40:43], s64 offen')
        srd(a, 44, 86, E*4); srd(a, 48, 82, E*6)
        a(f'''
        buffer_load_dwordx4 v[16:19], v5, s[44:47], s64 offen
        buffer_load_dwordx4 v[20:23], v4, s[48:51], s65 offen
        buffer_load_dwordx2 v[24:25], v4, s[48:51], s65 offen offset:16
        v_lshlrev_b32 v2, 2, v0                 ; t*4
        v_mov_b32 v7, 1
        s_cmp_eq_u32 s{sW}, 4
        s_cbranch_scc1 KS_NOCLR
        ds_write_b32 v2, v6
        KS_NOCLR:
        s_waitcnt lgkmcnt(0)
        s_barrier
        ''')
        self.fill_tail()
        self.srds()
        sstamp(a, 7)
        a(f's_mov_b32 s58, {BMUL}\ns_movk_i32 s59, 625\ns_waitcnt vmcnt(3)')
        sstamp(a, 8)
        sort_rank(a)
        a('s_waitcnt lgkmcnt(0)')
        for j in range(4): a(f'ds_read_b32 v{32+j}, v{32+j} offset:1024')
        sort_emit(a, st)
        a(f'''
        s_branch KS_JOIN
        KS_IDLE:
        s_barrier
        ''')
        self.fill_tail()
        self.srds()
        a(f'''
        s_barrier
        s_branch KS_B3
        KS_HELP:
        s_cmp_eq_u32 s{sW}, 7
        s_cbranch_scc1 KS_TAG
        s_cmp_eq_u32 s{sW}, 6
        s_cbranch_scc1 KS_RAW
        s_cmp_ge_u32 s2, 200
        s_cbranch_scc1 KS_NOW
        ''')
        weight_loads(a)
        a('K1_GO:\ns_barrier')
        self.fill_head(0)
        a(f'v_mov_b32 v59, {NONCE}\ns_barrier\nds_read_b32 v59, v59')
        self.fill_head(1)
        self.srds()
        a(f'''
        s_waitcnt vmcnt(0)
        v_lshl_or_b32 v40, v65, 16, v64
        v_lshl_or_b32 v41, v67, 16, v66
        v_lshl_or_b32 v42, v69, 16, v68
        v_lshl_or_b32 v43, v71, 16, v70
        buffer_store_dwordx4 v[40:43], v9, s[{sWS}:{sWS+3}], s24 offen sc1
        s_waitcnt lgkmcnt(0)
        s_barrier
        s_lshl_b32 s24, s2, 2
        s_add_u32 s24, s24, {WS_FLG}
        s_mov_b64 exec, 1
        s_waitcnt vmcnt(0)
        buffer_store_dword v59, v6, s[{sWS}:{sWS+3}], s24 offen sc1
        s_mov_b64 exec, -1
        s_branch KS_JOIN
        KS_RAW:
        s_barrier
        ''')
        srd(a, 60, 90, 16*640*2)
        for i in range(20):
            if i % 4 == 0: a(f's_mov_b32 m0, {RAW + i*1024}\ns_movk_i32 s24, {i*1024}')
            a(f'buffer_load_dwordx4 v9, s[60:63], s24 offen offset:{(i%4)*1024} lds')
        a('s_branch KS_FILL\nKS_NOW:\ns_barrier\nKS_FILL:')
        self.fill_head(0)
        a('s_barrier')
        self.fill_head(1)
        self.srds()
        a(f'''
        s_waitcnt vmcnt(0)
        s_branch KS_B3
        KS_TAG:
        ''')
        srd(a, 60, 98, 256)
        a(f'''
        s_cmp_lg_u32 s2, 0
        s_cbranch_scc1 KS_TAGLD
        s_or_b32 s24, s74, 1
        v_mov_b32 v10, s24
        v_mov_b32 v11, 0
        s_mov_b64 exec, 1
        buffer_atomic_cmpswap v[10:11], v6, s[60:63], 0 offen sc1
        KS_TAGLD:
        s_mov_b64 exec, 1
        v_mov_b32 v14, 0
        s_mov_b64 exec, -1
        s_barrier
        ''')
        self.counters(8, True)
        self.srds()
        sstamp(a, 7)
        a(f'''
        s_mov_b64 exec, 1
        s_mov_b32 s24, 0x100000
        v_mov_b32 v12, {NONCE}
        KS_TAGW:
        buffer_load_dword v15, v6, s[60:63], 0 offen sc1
        s_waitcnt vmcnt(1)
        v_cmp_ne_u32 vcc, 0, v14
        s_cbranch_vccnz KS_TAGOK
        s_sub_u32 s24, s24, 1
        s_cbranch_scc1 K2_END
        buffer_load_dword v14, v6, s[60:63], 0 offen sc1
        s_waitcnt vmcnt(1)
        v_cmp_ne_u32 vcc, 0, v15
        s_cbranch_vccz KS_TAGW
        ds_write_b32 v12, v15
        s_branch KS_TAGOK2
        KS_TAGOK:
        ds_write_b32 v12, v14
        KS_TAGOK2:
        s_mov_b64 exec, -1
        s_waitcnt lgkmcnt(0)
        ''')
        sstamp(a, 8)
        a(f'''
        s_barrier
        KS_B3:
        v_mov_b32 v59, {NONCE}
        ds_read_b32 v59, v59
        s_waitcnt lgkmcnt(0)
        s_barrier
        KS_JOIN:
        v_readfirstlane_b32 s{sTAG}, v59
        ''')
        stamp(a, 6)
    def wraw(self, vL):
        a = self.a; RAW = 24576
        a(f'''
        v_lshrrev_b32 v60, 5, v{vL}             ; h
        v_bfe_u32 v61, v{vL}, 2, 2              ; row
        v_lshl_add_u32 v60, v60, 2, v61
        v_mul_u32_u24 v60, 1280, v60
        v_bfe_u32 v61, v{vL}, 4, 1
        v_lshl_add_u32 v60, v61, 5, v60
        v_and_b32 v61, 3, v{vL}
        v_lshl_add_u32 v60, v61, 3, v60
        ''')
        for i in range(20):
            p, u, rq = i >> 2, (i >> 1) & 1, i & 1
            a(f'ds_read_b64_tr_b16 v[{WR+40+2*i}:{WR+41+2*i}], v60 offset:{RAW + rq*8*1280 + p*256 + u*64}')
        a('s_waitcnt lgkmcnt(0)')
        for i in range(40):
            a(f'v_lshlrev_b32 v{WR+2*i}, 16, v{WR+40+i}\nv_and_b32 v{WR+2*i+1}, 0xffff0000, v{WR+40+i}')

    def gen(self):
        a = self.a
        vL, vT_, vC, vE, vREM, vOFF = 176, 177, 178, 179, 180, 181
        RK = 40
        NBs = 50
        t0 = 192
        ws = f's[{sWS}:{sWS+3}]'
        def loop(done, body):
            for i in range(U):
                a(f'v_cmp_lt_i32 vcc, {2*i}, v{vREM}\ns_cbranch_vccz {done}\ns_mov_b64 exec, vcc')
                a(body(i))
            a(f'{done}:\ns_mov_b64 exec, -1')
        a('s_cmp_ge_u32 s2, 256\ns_cbranch_scc1 K2_END')
        stamp(a, 0)
        a(f'''
        s_load_dwordx16 s[80:95], s[0:1], 0
        s_load_dwordx4 s[96:99], s[0:1], 72
        s_load_dwordx2 s[100:101], s[0:1], 88   ; ws
        s_memrealtime s[74:75]
        v_lshrrev_b32 v1, 6, v0
        s_mov_b32 s{sB}, s2
        v_readfirstlane_b32 s{sW}, v1
        v_and_b32 v8, 63, v0
        v_lshlrev_b32 v9, 4, v8                 ; lane*16
        v_mov_b32 v6, 0
        v_lshlrev_b32 v5, 4, v0                 ; t*16
        v_mul_u32_u24 v4, 24, v0
        s_mul_i32 s64, s2, {CH*4}
        s_mul_i32 s65, s2, {CH*6}
        v_mov_b32 v{vL}, v8
        v_mov_b32 v{vT_}, v0
        s_mul_i32 s{sNB}, s2, 625
        s_add_u32 s{sNC}, s{sNB}, {625+15}
        s_add_u32 s{sNB}, s{sNB}, 15
        s_lshr_b32 s{sNB}, s{sNB}, 4
        s_lshr_b32 s{sNC}, s{sNC}, 4
        s_sub_u32 s{sNC}, s{sNC}, s{sNB}
        s_movk_i32 s{s1024}, 1024
        s_lshl_b32 s{sRING}, s{sW}, 13
        s_mov_b32 s{sPROG}, {PROG}
        s_lshl_b32 s{sPROGW}, s{sW}, 2
        s_add_u32 s{sPROGW}, s{sPROGW}, s{sPROG}
        {chr(10).join(f's_add_u32 s{sM0+i}, s{sRING}, {i*2048}' for i in range(4))}
        s_waitcnt lgkmcnt(0)
        ''')
        srd(a, sWS, 100, WS_SIZE)
        self.stage_sort(vL, vT_)
        a(f'''
        s_mov_b32 s{sJ0}, 0
        s_mov_b32 s{sFIRST}, 1
        {chr(10).join(f's_mov_b32 s{i}, 0' for i in range(96, 102)) if SEG else ''}
        s_mov_b32 s{sRND}, 0
        s_mov_b32 s{sR}, 1
        K2_CELLS:
        v_lshrrev_b32 v{vC}, 1, v{vT_}          ; cell
        v_min_u32 v{vC}, {NCH-1}, v{vC}
        v_mul_u32_u24 v72, {TSTR}, v{vC}
        s_and_b32 s{sT}, s{sB}, 7
        s_lshl_b32 s{sT}, s{sT}, 7
        s_lshr_b32 s{sT+1}, s{sB}, 5
        s_lshl_b32 s{sT+1}, s{sT+1}, 4
        s_add_u32 s{sT+9}, s{sT}, s{sT+1}
        s_add_u32 s{sT+9}, s{sT+9}, {WS_TBL}
        buffer_load_dwordx4 v[76:79], v72, {ws}, s{sT+9} offen sc1
        ''')
        self.consts(vL)
        def chk(r): return f"""
            v_xor_b32 v73, s{sT+1}, v{r}
            v_xor_b32 v74, s{sT+1}, v{r+1}
            v_or_b32 v73, v73, v74
            v_xor_b32 v74, s{sTAG}, v{r+3}
            v_lshrrev_b32 v73, 22, v73
            v_or_b32 v73, v73, v74
            v_cmp_ne_u32 vcc, 0, v73"""
        a(f'''
        s_lshl_b32 s{sT+1}, s{sTAG}, 22
        s_mov_b32 s{sT+2}, 0x100000
        s_bfe_u32 s{sT+3}, s{sB}, 0x10004
        s_bfe_u32 s{sT+4}, s{sB}, 0x10003
        s_add_u32 s{sT+5}, s{sT+3}, s{sT+4}
        s_mul_i32 s{sT+4}, s{sT+4}, 11
        s_sub_u32 s{sT+6}, 11, s{sT+4}
        v_cmp_gt_u32 vcc, {2*NCH}, v{vT_}
        s_mov_b64 s[{sEX}:{sEX+1}], vcc
        K2_POLL:
        ''')
        if opt('poll2', 0): a(f'''
        buffer_load_dwordx4 v[80:83], v72, {ws}, s{sT+9} offen sc1
        s_waitcnt vmcnt(1)
        {chk(76)}
        s_cbranch_vccz K2_POLLED
        s_sub_u32 s{sT+2}, s{sT+2}, 1
        s_cbranch_scc1 K2_END
        buffer_load_dwordx4 v[76:79], v72, {ws}, s{sT+9} offen sc1
        s_waitcnt vmcnt(1)
        {chk(80)}
        s_cbranch_vccnz K2_POLL
        s_add_u32 s{sT+3}, s{sT+3}, 4
        s_add_u32 s{sT+5}, s{sT+5}, 4
        ''')
        else: a(f'''
        s_waitcnt vmcnt(0)
        {chk(76)}
        s_cbranch_vccz K2_POLLED
        s_sub_u32 s{sT+2}, s{sT+2}, 1
        s_cbranch_scc1 K2_END
        s_mov_b64 exec, vcc
        buffer_load_dwordx4 v[76:79], v72, {ws}, s{sT+9} offen sc1
        s_mov_b64 exec, -1
        s_branch K2_POLL
        ''')
        a(f'''
        K2_POLLED:
        {f's_sub_u32 s101, 0x100000, s{sT+2}' if PROFS else ''}
        s_set_gpr_idx_on s{sT+3}, gpr_idx(SRC0)
        v_bfe_u32 v{vE}, v76, s{sT+4}, 11
        s_set_gpr_idx_idx s{sT+5}
        v_bfe_u32 v73, v76, s{sT+6}, 11
        s_set_gpr_idx_off
        v_sub_u32 v73, v73, v{vE}
        ''')
        o = Asm(); sv = self.a; self.a = o
        o(f'''
        K2_WINDOW:
        s_mov_b32 s{sRND}, 0
        s_mov_b32 s{sR}, 1
        K2_LOAD:
        v_mbcnt_lo_u32_b32 v{vL}, -1, 0
        v_mbcnt_hi_u32_b32 v{vL}, -1, v{vL}
        s_lshl_b32 s{sT}, s{sW}, 6
        v_add_u32 v{vT_}, s{sT}, v{vL}
        v_lshlrev_b32 v70, 4, v{vL}
        ''')
        self.wload(0, 70)
        self.fill_all(vT_)
        o(f's_cmp_lg_u32 s{sW}, 7\ns_cbranch_scc1 K2_NOH')
        self.counters(vL, False)
        o('K2_NOH:\ns_waitcnt lgkmcnt(0)\ns_barrier\ns_branch K2_CELLS')
        self.a = sv; self.ool(o.text())
        stamp(a, 1)
        a(f'''
        v_cndmask_b32 v73, 0, v73, s[{sEX}:{sEX+1}]
        v_and_b32 v1, 1, v{vT_}
        v_add_u32 v1, s{sJ0}, v1                ; j0 + sub
        v_sub_u32 v{vREM}, v73, v1
        v_add_u32 v{vE}, v{vE}, v1
        v_mul_u32_u24 v{vOFF}, {CSTR}, v{vC}
        v_lshl_add_u32 v{vOFF}, v{vE}, 4, v{vOFF}
        v_mul_u32_u24 v{vC}, {CH}, v{vC}
        ''')
        a(f's_mov_b32 s{sT+2}, 0x100000\nK2_RELOAD:')
        loop('K2_LD_DONE', lambda i: f'buffer_load_dwordx4 v[{4*i}:{4*i+3}], v{vOFF}, {ws}, 0 offen offset:{32*i} sc1')
        a(f'''
        s_cmp_eq_u32 s{sFIRST}, 0
        s_cbranch_scc1 K2_NOWRAW
        s_cmp_lg_u32 s{sT+2}, 0x100000
        s_cbranch_scc1 K2_NOWRAW
        s_cmp_lg_u32 s{sW}, 7
        s_cbranch_scc1 K2_NOFLG
        v_lshlrev_b32 v72, 4, v{vL}
        s_mov_b32 s{sT+9}, {WS_FLG}
        buffer_load_dwordx4 v[84:87], v72, {ws}, s{sT+9} offen sc1
        K2_NOFLG:
        ''')
        self.wraw(vL)
        a(f'''
        K2_NOWRAW:
        s_mov_b32 s{sT+3}, 0xffff
        s_mov_b64 s[{sT+4}:{sT+5}], 0
        s_waitcnt vmcnt(0)
        ''')
        loop('K2_CK_DONE', lambda i: f'v_bfi_b32 v{t0}, s{sT+3}, v{4*i+1}, v{4*i+2}\nv_cmp_ne_u32 vcc, s{sTAG}, v{t0}\ns_or_b64 s[{sT+4}:{sT+5}], s[{sT+4}:{sT+5}], vcc')
        self.ool(f'''
        K2_RETRY:
        s_sub_u32 s{sT+2}, s{sT+2}, 1
        s_cbranch_scc1 K2_END
        s_branch K2_RELOAD
        K2_FLGCK:
        s_cmp_eq_u32 s{sFIRST}, 0
        s_cbranch_scc1 K2_FLGOK
        s_mov_b32 s{sT+2}, 0x100000
        K2_FLGW:
        v_xor_b32 v84, s{sTAG}, v84
        v_xor_b32 v85, s{sTAG}, v85
        v_xor_b32 v86, s{sTAG}, v86
        v_xor_b32 v87, s{sTAG}, v87
        v_or3_b32 v84, v84, v85, v86
        v_or_b32 v84, v84, v87
        v_cmp_ne_u32 vcc, 0, v84
        s_and_b32 vcc_hi, vcc_hi, 0x3ffff       ; 200 flags
        s_cmp_eq_u64 vcc, 0
        s_cbranch_scc1 K2_FLGOK
        s_sub_u32 s{sT+2}, s{sT+2}, 1
        s_cbranch_scc1 K2_END
        buffer_load_dwordx4 v[84:87], v72, {ws}, s{sT+9} offen sc1
        s_waitcnt vmcnt(0)
        s_branch K2_FLGW
        ''')
        a(f'''
        s_cmp_lg_u64 s[{sT+4}:{sT+5}], 0
        s_cbranch_scc1 K2_RETRY
        {f's_sub_u32 s100, 0x100000, s{sT+2}' + chr(10) + 's_lshl_b32 s100, s100, 8' + chr(10) + 's_add_u32 s100, s100, s101' if PROFS else ''}
        s_cmp_eq_u32 s{sW}, 7
        s_cbranch_scc1 K2_FLGCK
        K2_FLGOK:
        v_add_lshl_u32 v{vE}, v{vE}, v{vC}, 2
        s_mov_b32 s{sT+8}, {WS_RANK}
        v_mov_b32 v{t0+9}, 1
        s_cmp_lg_u32 s{sRND}, 0
        s_cbranch_scc1 K2_RK_LOAD
        v_cmp_lt_i32 vcc, {2*U}, v{vREM}
        s_cbranch_vccz K2_NOMORE
        v_mov_b32 v61, {FLAG}
        ds_write_b32 v61, v{t0+9}
        K2_NOMORE:
        s_mov_b32 s{sT}, {HIST}
        s_movk_i32 s{sT+1}, {NSTR}
        v_mov_b32 v{t0+10}, {RECBASE}
        ''')
        stamp(a, 2)
        def prep(i):
            return (f'v_mad_u32_u24 v{NBs+i}, v{NBs+i}, s{sT+1}, v{t0+10}\nv_bfe_u32 v{60+i}, v{4*i+3}, 14, 11\n'
                    f'v_add_lshl_u32 v{60+i}, v{60+i}, v{vC}, 5\nv_and_b32 v{4*i+3}, 0x3fff, v{4*i+3}\n'
                    f'v_and_b32 v{4*i+2}, 0xffff0000, v{4*i+1}\nv_and_b32 v{4*i+1}, 0xffff0000, v{4*i}\nv_lshlrev_b32 v{4*i}, 16, v{4*i}')
        loop('K2_RK_A', lambda i: f'v_lshrrev_b32 v{NBs+i}, 25, v{4*i+3}\nv_lshl_add_u32 v{RK+i}, v{NBs+i}, 2, s{sT}\nds_add_rtn_u32 v{RK+i}, v{RK+i}, v{t0+9}\n' + prep(i))
        a(f's_branch K2_RK_DONE\nK2_RK_LOAD:\ns_movk_i32 s{sT+1}, {NSTR}\nv_mov_b32 v{t0+10}, {RECBASE}\ns_waitcnt vmcnt(0)')
        loop('K2_RK_B', lambda i: f'v_lshrrev_b32 v{NBs+i}, 25, v{4*i+3}\nbuffer_load_dword v{RK+i}, v{vE}, {ws}, s{sT+8} offen offset:{8*i}\n' + prep(i))
        a(f'''
        s_waitcnt vmcnt(0)
        K2_RK_DONE:
        s_mul_i32 s{sT+9}, s{sRND}, 48
        s_waitcnt lgkmcnt(0)
        ''')
        def scatter(i, rr, base):
            return f'''
            v_lshl_add_u32 v{t0+2}, v{rr}, 5, v{base}
            v_lshl_add_u32 v{t0+3}, v{rr}, 2, v{base}
            v_and_b32 v{t0+4}, 7, v{rr}
            v_add_lshl_u32 v{t0+4}, v{t0+4}, v{rr}, 1
            v_bfe_u32 v{t0+1}, v{rr}, 3, 1
            v_mad_i32_i24 v{t0+4}, v{t0+1}, -14, v{t0+4}
            v_add_u32 v{t0+4}, v{t0+4}, v{base}
            ds_write_b32 v{t0+2}, v{60+i} offset:{OA}
            ds_write2_b32 v{t0+3}, v{4*i}, v{4*i+1} offset0:48 offset1:96
            ds_write_b32 v{t0+3}, v{4*i+2} offset:576
            ds_write_b16 v{t0+4}, v{4*i+3} offset:{OS}
            '''
        for i in range(U):
            nx = self.lab('sc')
            a(f'''
            v_cmp_lt_i32 vcc, {2*i}, v{vREM}
            s_cbranch_vccz K2_SC_DONE
            v_subrev_u32 v{t0}, s{sT+9}, v{RK+i}
            v_cmp_gt_u32 s[{sEX}:{sEX+1}], 48, v{t0}
            s_and_b64 exec, vcc, s[{sEX}:{sEX+1}]
            s_cbranch_execz {nx}
            {scatter(i, t0, NBs+i)}
            {nx}:
            s_mov_b64 exec, -1
            ''')
        d = t0 + 1; k = t0 + 2; e = t0 + 3; p = t0 + 4; x = t0 + 5; pl = t0 + 6
        a(f'''
        K2_SC_DONE:
        v_lshlrev_b32 v{t0}, 2, v{vL}
        v_add_u32 v{t0}, {HIST}, v{t0}
        v_mov_b32 v{t0+8}, {FLAG}
        v_mov_b32 v{pl}, 0
        s_movk_i32 s{sLIM}, 48
        s_waitcnt lgkmcnt(0)
        s_barrier
        ds_read_b32 v{d}, v{t0}
        ds_read_b32 v{t0+8}, v{t0+8}
        v_cmp_gt_u32 s[{sEX}:{sEX+1}], s{sNC}, v{vL}
        v_mad_u32_u24 v{e}, v{vL}, s{sT+1}, v{t0+10}
        v_lshl_or_b32 v{e}, v{vL}, 21, v{e}
        s_waitcnt lgkmcnt(0)
        v_cndmask_b32 v{d}, 0, v{d}, s[{sEX}:{sEX+1}]
        v_readfirstlane_b32 s{sMORE}, v{t0+8}
        v_cmp_lt_u32 vcc, 48, v{d}
        s_cbranch_vccnz K2_BIG
        K2_TOK:
        v_subrev_u32 v{k}, s{sT+9}, v{d}
        v_max_i32 v{k}, 1, v{k}
        v_min_i32 v{k}, s{sLIM}, v{k}
        v_add_u32 v{k}, 15, v{k}
        v_lshrrev_b32 v{k}, 4, v{k}             ; K-steps
        v_lshl_or_b32 v{e}, v{k}, 18, v{e}
        v_or_b32 v{e}, v{e}, v{pl}
        v_mov_b32 v{x}, {NULLBASE | (1 << 18)}
        v_cndmask_b32 v{VTAB}, v{x}, v{e}, s[{sEX}:{sEX+1}]
''')
        o = Asm(); b = a; a = o
        a(f'''
        K2_BIG:
        s_cmp_lg_u32 s{sRND}, 0
        s_cbranch_scc1 K2_TOK
        s_mov_b64 s[{sT+4}:{sT+5}], vcc
        s_bcnt1_i32_b64 s{sT+2}, vcc
        s_cmp_eq_u32 s{sNC}, 39
        s_cselect_b32 s{sT+3}, 5, 2
        s_cmp_gt_u32 s{sT+2}, s{sT+3}
        s_cbranch_scc1 K2_SLOW
        v_cmp_lt_u32 vcc, 64, v{d}
        s_cbranch_vccnz K2_SLOW
        v_mbcnt_lo_u32_b32 v{x}, s{sT+4}, 0
        v_mbcnt_hi_u32_b32 v{x}, s{sT+5}, v{x}
        v_lshlrev_b32 v{pl}, 27, v{x}
        v_cndmask_b32 v{pl}, 0, v{pl}, s[{sT+4}:{sT+5}]
        s_movk_i32 s{sLIM}, 64
        v_cmp_le_u32 vcc, 2, v{x}
        v_mov_b32 v{k}, {POOL}
        v_mov_b32 v{p}, {POOL - NSTR - (2 << 22)}
        v_cndmask_b32 v{k}, v{k}, v{p}, vcc
        v_lshl_add_u32 v{x}, v{x}, 22, v{k}
        v_mov_b32 v{t0+11}, v{d}
        v_mov_b32 v{t0+12}, v{e}
        v_mov_b32 v{t0+13}, v{x}
        s_mov_b32 s{sT+2}, {(1 << 24) // NSTR + 1}
        ''')
        for nd in range(40): assert ((nd*NSTR) * ((1 << 24)//NSTR + 1)) >> 24 == nd
        for i in range(U):
            nx = self.lab('ov')
            a(f'''
            v_cmp_lt_i32 vcc, {2*i}, v{vREM}
            s_cbranch_vccz K2_OV_DONE
            v_subrev_u32 v{t0}, {RECBASE}, v{NBs+i}
            v_mul_hi_u32_u24 v{t0+1}, s{sT+2}, v{t0}
            v_mul_u32_u24 v{t0}, s{sT+2}, v{t0}
            v_alignbit_b32 v{t0}, v{t0+1}, v{t0}, 24
            v_lshlrev_b32 v{t0}, 2, v{t0}
            ds_bpermute_b32 v{t0+7}, v{t0}, v{t0+13}
            v_subrev_u32 v{t0}, 48, v{RK+i}
            v_cmp_gt_u32 s[{sT+4}:{sT+5}], 16, v{t0}
            s_waitcnt lgkmcnt(0)
            s_and_b64 exec, vcc, s[{sT+4}:{sT+5}]
            s_cbranch_execz {nx}
            v_lshrrev_b32 v{t0+1}, 18, v{t0+7}
            v_add_u32 v{t0}, v{t0}, v{t0+1}
            v_and_b32 v{t0+7}, 0x3ffff, v{t0+7}
            {scatter(i, t0, t0+7)}
            {nx}:
            s_mov_b64 exec, -1
            ''')
        a(f'''
        K2_OV_DONE:
        v_mov_b32 v{d}, v{t0+11}
        v_mov_b32 v{e}, v{t0+12}
        s_waitcnt lgkmcnt(0)
        s_barrier
        s_branch K2_TOK
        K2_SLOW:
        v_mov_b32 v{x}, v{d}
        ''')
        scan(a, x, 'v_max_u32')
        for dd in range(48, 512*U + 48): assert (dd * 43691) >> 21 == dd // 48
        a(f'''
        v_readlane_b32 s{sR}, v{x}, 63
        s_add_u32 s{sR}, s{sR}, 47
        s_mul_i32 s{sR}, s{sR}, 43691
        s_lshr_b32 s{sR}, s{sR}, 21
        ''')
        for i in range(U):
            a(f'v_cmp_lt_i32 vcc, {2*i}, v{vREM}\ns_cbranch_vccz K2_SV_DONE\ns_mov_b64 exec, vcc')
            a(f'buffer_store_dword v{RK+i}, v{vE}, {ws}, s{sT+8} offen offset:{8*i}')
        a('K2_SV_DONE:\ns_mov_b64 exec, -1\ns_branch K2_TOK')
        self.ool(o.text()); a = b
        for q in range(4): a(f's_movk_i32 s{sOWN+q}, {q*256}')
        a(f'''
        s_add_u32 s{sRND}, s{sRND}, 1
        s_cmp_ge_u32 s{sRND}, s{sR}
        s_cselect_b32 s{sLAST}, 1, 0
        s_cmp_eq_u32 s{sMORE}, 0
        s_cselect_b32 s{sLAST}, s{sLAST}, 0
        s_mov_b32 s{sJ}, 0
        s_mov_b32 s{sNPH}, 0
        s_mov_b32 s{sNP}, 0
        s_mov_b32 s{sNV}, 1
        s_mov_b32 s{sCP}, 0
        s_mov_b32 s{sT}, s{sW}
        ''')
        lg = LG(a)
        self.emit(self.next_info(0), lg)
        stamp(a, 3)
        pre = self.eread()
        for t in range(4): pre += self.sread(t)
        pre += self.adma()
        for t in range(4): pre += self.gmad(t)
        for t in range(4): pre += self.dma(t, G + 2*t, sNX + t) + (['s_barrier'] if t == opt('fbar', 0) else [])
        pre += [f'v_add_u32 v{VAO}, s{sNBs}, v{VAO}', f'v_add_u32 v{VYO}, s{sNBs}, v{VYO}', 's_waitcnt vmcnt(6)']
        self.emit(pre, lg)
        stamp(a, 4)
        self.emit(self.bread(0) + self.areads(0) + self.areads(1), lg)
        self.dispatch(0, check=False)
        for ph in range(2):
            for nK in (2, 3): self.unit(nK, ph)
        for ph in range(2):
            for nK in (1, 4): self.unit(nK, ph)
        a('K2_SWITCH:')
        stamp(a, 5)
        self.emit(self.fin(3, 0), LG(a))
        a(f's_cmp_eq_u32 s{sNV}, 0\ns_cbranch_scc1 K2_TAIL2\nv_lshlrev_b32 v{VT0}, 3, v{VL2}\nv_lshl_add_u32 v{VPA}, v{VL2}, 1, s{sNP}\nv_lshrrev_b32 v{VH16}, 6, v{VL2}\nv_mul_u32_u24 v{VH16}, 126, v{VH16}')
        self.wload(1, VT0)
        for q in range(4): a(f's_movk_i32 s{sOWN+q}, {q*256+128}')
        a(f's_cmp_lg_u32 s{sNK}, 1\ns_cbranch_scc1 K2_SW2\ns_waitcnt vmcnt(0)\nK2_SW2:')
        if not FUSE: stamp(a, 6)
        self.dispatch(1, check=False)
        for t in self.outline: a(t)
        self.tail()
        a('K2_END:\ns_endpgm')
        return a.lines, 256

    def tail(self):
        a = self.a
        ws = f's[{sWS}:{sWS+3}]'
        vP0 = 222; vP1 = 223; vS = 226; vSP = 227; vRow = 228; vL16 = 229
        vQ0 = 232; vSt = 254; vS2 = 255; vS3 = 246; vQ0a = 247; vQ1a = 248; vRow2 = 249
        OP = 176
        pre = f"""v_lshlrev_b32 v{vL16}, 3, v{VL2}
            s_mul_i32 s{sT}, s{sW}, {20*1024}
            s_add_u32 s{sT}, s{sT}, {WS_STAB}
            s_mul_i32 s{sT+1}, s{sW}, {8192+32}"""
        sl = []
        for f in range(20):
            sl.append(f'buffer_load_dwordx4 v[{WR+4*f}:{WR+4*f+3}], v{vL16}, {ws}, s{sT} offen offset:{(f%4)*1024} sc1' + (f'\ns_add_u32 s{sT}, s{sT}, 4096' if f % 4 == 3 and f < 19 else ''))
        NE = opt('ne', 8)
        adr = [f'v_lshl_add_u32 v{vRow}, v{VL2}, 1, s{sT+1}', f'v_lshrrev_b32 v{vS}, 6, v{VL2}', f'v_mul_u32_u24 v{vS}, 126, v{vS}', f'v_sub_u32 v{vS}, v{vRow}, v{vS}']
        a('K2_TAIL2:\n' + pre)
        for x in sl[:NE] + adr: a(x)
        a('s_branch K2_TAIL3\nK2_TAIL:')
        stamp(a, 7)
        a(pre)
        f3 = self.fin(3, 1) + adr; w = []
        for i in range(NE): w += [sl[i]] + f3[2*i:2*i+2]
        self.emit(w + f3[2*NE:], LG(a))
        a(f'K2_TAIL3:\ns_waitcnt vmcnt({NE})')
        dump = []
        for j in range(5):
            for k in range(5): dump.append(f'ds_write_b32 v{vRow}, v{P0+6*j+k} offset:{j*1536 + k*256}')
            dump.append(f'ds_write_b16 v{vS}, v{P0+6*j+5} offset:{j*1536 + 1280}')
        assert RECBASE % 256 == 0 and NSTR % 256 == 96
        calc = f"""
        v_bfe_u32 v48, v{VL2}, 1, 4             ; n & 15
        v_lshrrev_b32 v49, 5, v{VL2}            ; slab
        v_lshrrev_b32 v55, 3, v48
        v_lshlrev_b32 v52, 4, v49               ; slab*16
        v_lshl_add_u32 v54, v55, 2, v48
        v_and_b32 v54, 7, v54                   ; node of the last group in column n
        v_and_b32 v50, 7, v48
        v_mul_u32_u24 v50, {8192+32}, v50
        v_mul_u32_u24 v51, 1536, v55
        v_add_u32 v50, v50, v51                 ; slot of node n
        v_add_u32 v{vP0}, v50, v52
        v_mul_u32_u24 v51, {8192+32}, v54
        v_add_u32 v{vQ0}, v51, v52
        v_lshl_add_u32 v{vQ0a}, v55, 7, v{vQ0}
        v_mul_u32_u24 v53, 192, v48
        v_and_b32 v53, 0xc0, v53
        v_add_u32 v53, v53, v52
        v_mul_u32_u24 v51, {NSTR}, v48
        s_mov_b32 s{sT+2}, {RECBASE}
        v_add3_u32 v{vP1}, v51, v53, s{sT+2}
        v_mul_u32_u24 v51, {NSTR}, v54
        s_mov_b32 s{sT+2}, {RECBASE + 32*NSTR}
        v_add3_u32 v{vP1+2}, v51, v53, s{sT+2}
        v_lshl_add_u32 v{vQ1a}, v55, 7, v{vP1+2}
        s_lshl_b32 s{sT+2}, s{sW}, 5
        v_lshl_add_u32 v49, v49, 3, s{sT+2}
        s_mov_b32 s{sT+2}, {RECBASE}
        v_add3_u32 v{vS2}, v51, v49, s{sT+2}
        v_lshl_add_u32 v{vS3}, v55, 9, v{vS2}
        v_bfe_u32 v53, v48, 2, 1
        v_lshl_add_u32 v49, v53, 4, v49
        v_add_u32 v{vSt}, v50, v49
        s_and_b32 s{sT+6}, s{sLAST}, s{sFIRST}  ; plain single-round case
        """.strip().split('\n')
        rest = sl[NE:]; per = max(2, (len(dump) + len(rest) - 1) // max(1, len(rest)))
        while dump or rest:
            for x in dump[:per] + rest[:1] + calc[:2]: a(x)
            dump = dump[per:]; rest = rest[1:]; calc = calc[2:]
        for x in calc: a(x)
        a('s_waitcnt lgkmcnt(0)')
        late = f"""
        s_bfe_u32 s{sT+2}, s{sW}, 0x10002
        s_lshl_b32 s{sT+2}, s{sT+2}, 4
        s_add_u32 s{sT+1}, s{sT+1}, s{sT+2}
        v_add_u32 v{vRow}, s{sT+1}, v{vL16}
        s_mul_i32 s{sT+2}, s{sW}, {NSTR}
        s_add_u32 s{sT+2}, s{sT+2}, {RECBASE}
        v_add_u32 v{vRow2}, s{sT+2}, v{vL16}
        s_mov_b32 s{sT+5}, 0xbfb8aa3b           ; -log2(e)
        s_add_u32 s{sOWN}, s{sW}, s{sNB}
        s_lshl_b32 s{sOWN}, s{sOWN}, 10
        """.strip().split('\n') + [f's_add_u32 s{sOWN+j}, s{sOWN}, {j*8192}' for j in range(1, 5)]
        stamp(a, 8); a('s_barrier'); stamp(a, 9)
        a(f's_cmp_eq_u32 s{sT+6}, 0\ns_cbranch_scc1 K2_MULTI')
        steps = []
        for g in range(3):
            def ad(ph, row, hh, packed=False):
                o = self.SROW[row]*128 + hh*64
                if g < 2: return (vP1, g*16*NSTR + o) if ph else (vP0, g*3072 + o)
                return ((vQ1a if packed else vP1+2), o) if ph else ((vQ0a if packed else vQ0), 4*1536 + o)
            for ph in range(2):
                for rs in range(2):
                    for hh in range(2): steps.append((16*g, ph*4 + rs*2 + hh) + ad(ph, rs, hh))
            for ph in range(2):
                for path in range(3):
                    for hh in range(2):
                        for j in range(3 if g < 2 else 2):
                            steps.append((16*g + 4 + 4*j, 8 + ph*6 + path*2 + hh) + ad(ph, 2 + 3*j + path, hh, j == 0))
        for path in range(3): assert self.SROW[8 + path] == self.SROW[2 + path] + 1
        NB = 12; D = 10
        def epi(g, part=3):
            c = 16*g; o = OP + 8*(g & 1); s = []; tp = 204 + 4*(g & 1)
            if part & 1:
                for r in range(4): s.append(f'v_mul_f32 v{tp+r}, s{sT+5}, v{c+r}')
                for r in range(4): s.append(f'v_exp_f32 v{tp+r}, v{tp+r}')
                for r in range(4): s.append(f'v_add_f32 v{tp+r}, 1.0, v{tp+r}')
                for r in range(4): s.append(f'v_rcp_f32 v{tp+r}, v{tp+r}')
                s += [f'v_cvt_pk_bf16_f32 v{o}, v{c}, v{c+1}', f'v_cvt_pk_bf16_f32 v{o+1}, v{c+2}, v{c+3}']
            if part & 2:
                for j in range(3 if g < 2 else 2):
                    for r in range(4): s.append(f'v_mul_f32 v{c+4+4*j+r}, v{c+4+4*j+r}, v{tp+r}')
                    s += [f'v_cvt_pk_bf16_f32 v{o+2+2*j}, v{c+4+4*j}, v{c+5+4*j}', f'v_cvt_pk_bf16_f32 v{o+3+2*j}, v{c+6+4*j}, v{c+7+4*j}']
            return s
        def stage(g, part=3):
            o = OP + 8*(g & 1)
            if g < 2: w = [(rt, vSt, g*3072) for rt in range(4)]
            else: w = [(0, vS2, 0), (1, vS3, 0), (2, vS2, 0)]
            return [(f'ds_write_b64 v{r}, v[{o+2*rt}:{o+1+2*rt}] offset:{b + rt*256}', [(f'w{g}', False)]) for rt, r, b in w if part & (2 if rt else 1)]
        def rowread(g):
            if g == 2: return [(f'ds_read_b128 v[200:203], v{vRow2}', [('r2', False)])]
            return [(f'ds_read_b128 v[{192+4*(j&1)}:{195+4*(j&1)}], v{vRow} offset:{j*1536}', [(f'r{g}', False)]) for j in (2*g, 2*g+1)]
        def rowstore(g):
            s = [('wait', f'r{g}')]
            for j in ((2*g, 2*g+1) if g < 2 else (4,)):
                b = 192 + 4*(j & 1) if g < 2 else 200
                s += [f'buffer_store_dwordx4 v[{b}:{b+3}], v{vL16}, s[{sOUT}:{sOUT+3}], s{sOWN+j} offen {mod("outst","sc1")}']
            return s
        def gemm(lg, extra):
            def rd(k):
                c, f, r, o = steps[k]
                b = 48 + 4*(k % NB)
                self.emit([(f'ds_read_b128 v[{b}:{b+3}], v{r} offset:{o}', [(f'k{k}', False)])], lg)
            for k in range(D): rd(k)
            seen = set(); started = set()
            for k in range(len(steps)):
                c, f, r, o = steps[k]
                if k + D < len(steps): rd(k + D)
                vm = None
                if f not in seen: seen.add(f); vm = 19 - f
                kk = min(k + 1, len(steps) - 1) if (opt('w2', 1) and k % 2 == 0) else k
                self.emit([('wait', f'k{kk}', vm)], lg)
                b = 48 + 4*(k % NB)
                cin = f'v[{c}:{c+3}]' if c in started else '0'; started.add(c)
                a(f'v_mfma_f32_16x16x32_bf16 v[{c}:{c+3}], v[{WR+4*f}:{WR+4*f+3}], v[{b}:{b+3}], {cin}')
                self.emit(extra.get(k, []), lg)
        lg = LG(a); extra = {}
        def spread(items, k0, k1):
            for i, x in enumerate(items): extra.setdefault(k0 + i*(k1 - k0 + 1)//len(items), []).append(x)
        spread(late, 2, 8)
        b0 = opt('b0', 46); e0 = opt('e0', 64); b1 = opt('b1', 90); r0 = opt('r0', 98); e1 = opt('e1', 108)
        spread(epi(0, 1), 12, 40)
        if not opt('nob0', 0): extra.setdefault(b0, []).append('s_barrier')
        spread(epi(0, 2), 44 + 3, e0)
        extra.setdefault(e0 + 1, []).extend(stage(0))
        spread(epi(1, 1), e0 + 2, 86)
        extra.setdefault(b1, []).extend([('wait', 'w0')] + ([] if opt('nob1', 0) else ['s_barrier']) + rowread(0))
        spread(epi(1, 2), 88 + 3, e1)
        extra.setdefault(r0, []).extend(rowstore(0))
        extra.setdefault(e1 + 1, []).extend(stage(1))
        spread(epi(2, 1), max(e1 - 8, 100), 117)
        extra.setdefault(118, []).extend(stage(2, 1))
        if opt('gp', 1):
            for k0, k1 in ((-1, b0), (b0, b1), (b1, len(steps))):
                fr = [float(x) for x in opt('gpf', '0.3_0.6_0.87').split('_')]
                if k0 >= 0: extra.setdefault(k0, []).append('s_setprio 3')
                for i, f in enumerate(fr): extra.setdefault(k0 + int((k1 - k0)*f), []).append(f's_setprio {2-i}')
            a('s_setprio 3')
        if PROFT:
            for i, k in enumerate((0, 8, 43, 66, 87, 104)): extra.setdefault(k, []).append(f'{"s_memtime" if opt("cyc", False) else "s_memrealtime"} s[{78+2*i}:{79+2*i}]')
        if opt('noepi', 0): extra = {k: [x for x in v if not (isinstance(x, str) and x.startswith(('v_cvt', 'v_exp', 'v_rcp', 'v_mul_f32', 'v_add_f32')[:opt('noepi', 0)]))] for k, v in extra.items()}
        gemm(lg, extra)
        stamp(a, 10)
        self.emit(epi(2, 2) + stage(2, 2) + [('wait', 'w2'), 's_barrier'] + rowread(1) + rowread(2) + rowstore(1), lg)
        a(f'K2_LASTROW:\ns_add_u32 s{sT+1}, s{sW}, 32\ns_cmp_ge_u32 s{sT+1}, s{sNC}\ns_cbranch_scc1 K2_FIN\ns_waitcnt lgkmcnt(0)')
        self.emit(rowstore(2), LG(a))
        a('K2_FIN:')
        if PROF:
            stamp(a, 11); a('s_waitcnt vmcnt(0)'); stamp(a, 12); stamp_out(a, 13, 1, sW, sB, sWS)
        a('s_branch K2_END')
        a('K2_MULTI:')
        lg = LG(a)
        gemm(lg, {})
        a(f"""
        s_lshl_b32 s{sT+2}, s{sB}, 9
        s_lshl_b32 s{sT+3}, s{sW}, 6
        s_add_u32 s{sT+2}, s{sT+2}, s{sT+3}
        s_mul_i32 s{sT+2}, s{sT+2}, 192
        s_add_u32 s{sT+2}, s{sT+2}, {WS_ACC}
        v_mul_u32_u24 v{vSP}, 96, v{VL2}        ; lane*192
        s_cmp_lg_u32 s{sFIRST}, 0
        s_cbranch_scc1 K2_NOACC
        """)
        for i in range(11): a(f'buffer_load_dwordx4 v[{48+4*i}:{51+4*i}], v{vSP}, {ws}, s{sT+2} offen offset:{16*i}')
        a('s_waitcnt vmcnt(0)')
        for i in range(44): a(f'v_add_f32 v{i}, v{i}, v{48+i}')
        a(f'K2_NOACC:\ns_barrier\ns_cmp_eq_u32 s{sLAST}, 0\ns_cbranch_scc1 K2_SPILL')
        self.emit(late, lg)
        for g in range(2):
            self.emit(epi(g) + stage(g) + [('wait', f'w{g}'), 's_barrier'] + rowread(g) + rowstore(g), lg)
        self.emit(epi(2) + stage(2) + [('wait', 'w2'), 's_barrier'] + rowread(2), lg)
        a('s_branch K2_LASTROW\nK2_SPILL:')
        for i in range(11): a(f'buffer_store_dwordx4 v[{4*i}:{4*i+3}], v{vSP}, {ws}, s{sT+2} offen offset:{16*i}')
        a(f"""
        s_mov_b32 s{sFIRST}, 0
        s_waitcnt vmcnt(0)
        s_cmp_lt_u32 s{sRND}, s{sR}
        s_cbranch_scc1 K2_LOAD
        s_add_u32 s{sJ0}, s{sJ0}, {2*U}
        s_branch K2_WINDOW
        """)

HEADER = '''; Kernarg layout for this problem (96 bytes, ptrs only, base s[0:1]):
'''
def kd(name, vgpr):
    return f'''.amdhsa_kernel {name}
  .amdhsa_next_free_vgpr {vgpr}
  .amdhsa_next_free_sgpr {102}
  .amdhsa_accum_offset {(vgpr+3)//4*4}
  .amdhsa_group_segment_fixed_size 0
  .amdhsa_kernarg_size 96
  .amdhsa_user_sgpr_count 2
  .amdhsa_user_sgpr_kernarg_segment_ptr 1
  .amdhsa_system_sgpr_workgroup_id_x 1
  .amdhsa_float_denorm_mode_32 3
.end_amdhsa_kernel
'''
def main():
    ks = []
    l2, v2 = K2().gen(); ks.append((NAME + '_kernel', fix_hazards(l2), v2))
    s = HEADER
    s += f'; @launch grid=(256,1,1) block=(512,1,1) lds={K2_LDS}\n'
    s += '.amdgcn_target "amdgcn-amd-amdhsa--gfx950"\n.text\n'
    for name, l, v in ks:
        s += f'.globl {name}\n.p2align 8\n.type {name},@function\n{name}:\n'
        s += '\n'.join((x if x.endswith(':') else '    ' + x) for x in l) + '\n'
    s += '.section .rodata,"a"\n' + ''.join('.p2align 6\n' + kd(name, v) for name, l, v in ks)
    out = sys.argv[1] if len(sys.argv) > 1 else f'/code/{NAME}.s'
    open(out, 'w').write(s)
    print('wrote', out, len(s), 'bytes')
main()
```

```python
import sys, os
sys.path.insert(0, os.path.dirname(os.path.abspath(__file__)))
from asmlib import Asm, fix_hazards

NAME = 'standalone__tensor_product_equiv_equiformer__graph'
N = 10000; E = 320000
NCH = 250; CH = E // NCH
CSTR = CH * 16 + 128
TSTR = 1024 + 128
WS_REC = 0
WS_TBL = 0x0600000
WS_STAB = 0x06A0000
WS_WTAB = 0x06C8000
WS_FLG = 0x06D8000
WS_RANK = 0x0700000
WS_PROF = 0x0900000
WS_ACC = 0x0A00000
WS_SIZE = 0x2400000
assert NCH * CSTR <= WS_TBL and WS_TBL + NCH * TSTR <= WS_STAB and WS_ACC + 256*512*192 <= WS_SIZE
BMUL = 429497
for d in range(N): assert ((d * BMUL) & 0xffffffff) >> 24 == (d * 16) // 625

OPT = dict(a.split('=') for a in sys.argv[2:]) if len(sys.argv) > 2 else {}
def opt(k, d): return type(d)(OPT.get(k, d)) if not isinstance(d, bool) else bool(int(OPT.get(k, d)))
def mod(k, d): return opt(k, d).replace('_', ' ')

PROF = opt('prof', False)
FUSE = True
SEG = opt('seg', False)
def seg(i): return [f's_memtime s[{76+2*i}:{77+2*i}]'] if SEG else []
PROFS = opt('profs', False)
def sstamp(a, i):
    if PROFS: a(f's_memrealtime s[{76+2*i}:{77+2*i}]')
PROFT = opt('proft', False)
def stamp(a, i, t=False):
    if PROFT and 1 <= i <= 6 and not t: return
    if PROFS and (i >= 7 or (i == 1 and opt('diag', 0))): return
    if PROF and not SEG: a(f'{"s_memtime" if opt("cyc", False) else "s_memrealtime"} s[{76+2*i}:{77+2*i}]')
def stamp_out(a, n, kern, swave, swg, srd_s):
    if not PROF: return
    if opt('dbgout', -1) >= 0:
        l = f'DBG_{kern}'
        a(f's_cmp_lg_u32 s{swg}, {opt("dbgout", -1)}\ns_cbranch_scc1 {l}\ns_cmp_lg_u32 s{swave}, 0\ns_cbranch_scc1 {l}')
        a(f's_load_dwordx2 s[58:59], s[0:1], 80\ns_waitcnt lgkmcnt(0)\ns_add_u32 s58, s58, {512*(1-kern)*opt("dbgk1", 0)}\ns_addc_u32 s59, s59, 0')
        srd(a, 60, 58, 256)
        a('s_mov_b64 exec, 1\nv_mov_b32 v1, 0')
        for i, o in ([(0, 0), (5, 14), (2, 15)] if kern == 0 else [(i, 1+i) for i in range(13)]):
            a(f'v_mov_b32 v2, s{76+2*i}\nbuffer_store_dword v2, v1, s[60:63], 0 offen offset:{4*o}')
        a(f's_mov_b64 exec, -1\n{l}:')
        return
    a('s_waitcnt lgkmcnt(0)')
    a(f's_lshl_b32 s67, s{swg}, 4\ns_add_u32 s67, s67, s{swave}\ns_lshl_b32 s67, s67, 6\ns_add_u32 s67, s67, {WS_PROF + kern*256*16*64}')
    a('s_mov_b64 exec, 1\nv_mov_b32 v1, 0')
    for i in range(n):
        a(f'v_mov_b32 v2, s{76+2*i if not SEG else 96+min(i,5)}\nbuffer_store_dword v2, v1, s[{srd_s}:{srd_s+3}], s67 offen offset:{4*i}')
    a('s_mov_b64 exec, -1')

def srd(a, s, ptr, nbytes):
    a(f's_mov_b32 s{s}, s{ptr}\ns_and_b32 s{s+1}, s{ptr+1}, 0xffff\ns_mov_b32 s{s+2}, {nbytes}\ns_mov_b32 s{s+3}, 0x20000')

def scan(a, v, op='v_add_u32'):
    for sh in (1, 2, 4, 8):
        a(f'{op}_dpp v{v}, v{v}, v{v} row_shr:{sh} row_mask:0xf bank_mask:0xf bound_ctrl:0')
    a(f'{op}_dpp v{v}, v{v}, v{v} row_bcast:15 row_mask:0xa bank_mask:0xf')
    a(f'{op}_dpp v{v}, v{v}, v{v} row_bcast:31 row_mask:0xc bank_mask:0xf')

K1_T = CH // 4
K1_LDS = 2048 + CH * 16
def weight_loads(a):
    a(f'''
    v_and_b32 v1, 15, v8
    v_lshrrev_b32 v3, 4, v8
    s_cmp_ge_u32 s2, 160
    s_cbranch_scc1 K1_WT
    s_cmp_ge_u32 s2, 64
    s_cbranch_scc1 K1_S1
    s_lshr_b32 s24, s2, 3
    s_and_b32 s25, s2, 7
    s_lshr_b32 s26, s25, 2
    s_bfe_u32 s27, s25, 0x10001
    s_and_b32 s28, s25, 1
    ''')
    srd(a, 60, 92, 256*128*2)
    a(f'''
    s_branch K1_SC
    K1_S1:
    ; S1: g2 = g-64; w = g2/12, f2 = g2%12 : ph = f2/6, path = (f2%6)>>1, hh = f2&1
    s_sub_u32 s29, s2, 64
    s_mul_i32 s24, s29, 43
    s_lshr_b32 s24, s24, 9
    s_mul_i32 s25, s24, 12
    s_sub_u32 s25, s29, s25
    s_cmp_ge_u32 s25, 6
    s_cselect_b32 s26, 1, 0
    s_mul_i32 s27, s26, 6
    s_sub_u32 s27, s25, s27
    s_lshr_b32 s27, s27, 1
    s_and_b32 s28, s25, 1
    s_add_u32 s25, s25, 8
    ''')
    for g2 in range(96): assert (g2*43) >> 9 == g2 // 12
    srd(a, 60, 94, 384*128*2)
    a(f'''
    K1_SC:
    s_lshl_b32 s27, s27, 7
    s_lshl_b32 s26, s26, 6
    s_lshl_b32 s28, s28, 4
    s_add_u32 s27, s27, s26
    s_add_u32 s27, s27, s28
    s_lshl_b32 s27, s27, 8
    s_lshl_b32 s26, s24, 5
    s_add_u32 s27, s27, s26
    s_add_u32 s29, s27, 8192
    v_lshlrev_b32 v3, 10, v3
    v_lshl_add_u32 v3, v1, 1, v3
    ''')
    for e in range(8): a(f'buffer_load_ushort v{64+e}, v3, s[60:63], s{29 if e & 1 else 27} offen offset:{(e >> 1)*256}')
    a(f'''
    s_mul_i32 s24, s24, 20
    s_add_u32 s24, s24, s25
    s_lshl_b32 s24, s24, 10
    s_add_u32 s24, s24, {WS_STAB}
    s_branch K1_GO
    K1_WT:
    ; W (fp32): g3 = g-160; ph = g3/20, i = g3%20 : p = i>>2, u = (i>>1)&1, rq = i&1
    s_sub_u32 s24, s2, 160
    s_cmp_ge_u32 s24, 20
    s_cselect_b32 s26, 1, 0
    s_mul_i32 s25, s26, 20
    s_sub_u32 s25, s24, s25
    s_lshr_b32 s27, s25, 2
    s_bfe_u32 s28, s25, 0x10001
    s_and_b32 s25, s25, 1
    s_mul_i32 s25, s25, {8*1280}
    s_lshl_b32 s27, s27, 8
    s_lshl_b32 s26, s26, 7
    s_lshl_b32 s28, s28, 6
    s_add_u32 s27, s27, s26
    s_add_u32 s27, s27, s28
    s_add_u32 s27, s27, s25
    ''')
    srd(a, 60, 90, 16*640*2)
    a(f'''
    v_and_b32 v1, 31, v8
    v_lshrrev_b32 v3, 5, v8
    v_mul_u32_u24 v3, {4*1280}, v3
    v_lshl_add_u32 v3, v1, 1, v3
    v_mov_b32 v64, 0
    v_mov_b32 v66, 0
    v_mov_b32 v68, 0
    v_mov_b32 v70, 0
    ''')
    for r in range(4): a(f'buffer_load_ushort v{65+2*r}, v3, s[60:63], s27 offen offset:{r*1280}')
    a(f'''
    s_lshl_b32 s24, s24, 10
    s_add_u32 s24, s24, {WS_WTAB}
    ''')

def sort_rank(a):
    for j in range(4):
        a(f'v_mul_u32_u24 v{28+j}, s58, v{12+j}\nv_lshrrev_b32 v{32+j}, 27, v{28+j}\nv_bfe_u32 v{36+j}, v{28+j}, 24, 3\nv_lshlrev_b32 v{32+j}, 2, v{32+j}')
        a(f'v_lshl_or_b32 v{32+j}, v{36+j}, 7, v{32+j}\nds_add_rtn_u32 v{36+j}, v{32+j}, v7')
    for j in range(4):
        a(f'v_lshrrev_b32 v{28+j}, 24, v{28+j}\nv_mad_u32_u24 v{28+j}, v{28+j}, s59, 15\nv_lshrrev_b32 v{28+j}, 4, v{28+j}\nv_sub_u32 v{28+j}, v{12+j}, v{28+j}')
        a(f'v_add_u32 v{12+j}, {32*j}, v3\nv_lshl_or_b32 v{28+j}, v{28+j}, 26, v{12+j}')
    a(f'''
    v_mov_b32 v59, {NONCE}
    s_mul_i32 s65, s2, {TSTR}
    s_add_u32 s65, s65, {WS_TBL}
    s_mul_i32 s64, s2, {CSTR}
    s_waitcnt lgkmcnt(0)
    s_barrier
    ''')
    sstamp(a, 9)
    a(f'''
    ds_read_b128 v[40:43], v9
    ds_read_b32 v59, v59
    s_waitcnt lgkmcnt(1)
    v_add_u32 v45, v40, v41
    v_add_u32 v46, v45, v42
    v_add_u32 v47, v46, v43
    v_mov_b32 v58, v47
    ''')
    scan(a, 58)
    a(f'''
    v_sub_u32 v48, v58, v47                 ; exclusive
    v_add_u32 v49, v48, v40
    v_add_u32 v50, v48, v45
    v_add_u32 v51, v48, v46
    ds_write_b128 v9, v[48:51] offset:1024
    s_waitcnt vmcnt(0) lgkmcnt(1)
    s_cmp_lg_u32 s{sW}, 4
    s_cbranch_scc1 KS_NOPUB
    v_lshl_or_b32 v56, v49, 11, v48
    v_lshl_or_b32 v57, v51, 11, v50
    v_lshl_or_b32 v56, v59, 22, v56
    v_lshl_or_b32 v57, v59, 22, v57
    buffer_store_dwordx4 v[56:59], v9, s[{sWS}:{sWS+3}], s65 offen sc1
    KS_NOPUB:
''')
    sstamp(a, 10)

def sort_emit(a, st):
    a('v_and_b32 v60, 0xffff, v59\nv_and_b32 v61, 0xffff0000, v59\ns_mov_b32 s58, 0xffff0000')
    for j in range(4):
        b = 20 + 3*(j >> 1)
        if j & 1: a(f'v_alignbit_b32 v{40+4*j}, v{b+2}, v{b+1}, 16\nv_and_or_b32 v{41+4*j}, v{b+2}, s58, v60')
        else: a(f'v_mov_b32 v{40+4*j}, v{b}\nv_lshl_or_b32 v{41+4*j}, v{b+1}, 16, v60')
        a(f'v_or_b32 v{42+4*j}, v61, v{16+j}\nv_mov_b32 v{43+4*j}, v{28+j}')
    a('s_waitcnt lgkmcnt(0)')
    for j in range(4):
        a(f'v_add_lshl_u32 v{32+j}, v{32+j}, v{36+j}, 4\nds_write_b128 v{32+j}, v[{40+4*j}:{43+4*j}] offset:2048')
    a(f's_waitcnt lgkmcnt(0)\ns_barrier')
    sstamp(a, 11)
    for i in range(4): a(f'ds_read_b128 v[{12+4*i}:{15+4*i}], v5 offset:{2048 + i*K1_T*16}')
    for i in range(4):
        a(f's_waitcnt lgkmcnt({3-i})')
        a(f'buffer_store_dwordx4 v[{12+4*i}:{15+4*i}], v5, s[8:11], s64 offen {st}')
        if i < 3: a(f's_add_u32 s64, s64, {K1_T*16}')

NSTR = 2400
OY = 0; OS = 768; OA = 864
RECBASE = 65536
POOL = RECBASE + 40 * NSTR
MISC = POOL + OA + 1024
HIST = MISC; PROG = MISC + 192; CNT = MISC + 224; FLAG = MISC + 228; NULLSRC = MISC + 256; SCR = MISC + 288; NONCE = MISC + 304
NULLBASE = NULLSRC - OS
K2_LDS = 163840
U = 10
ACC = 0; AR = 64; WR = 96; BR = 176; P0 = 192; G = 222
VEO = 230; VH16 = 231; T2 = 232; T3 = 233; PW = 234
VB0 = 246; VB1 = 247; VLG = 248; VAO = 249; VYO = 250; VSO = 251; VL2 = 252; VTAB = 253; VT0 = 254; VT1 = 255; VPA = VEO
sX = 4; sWS = 8; sOUT = 12; sEA = 16
sW = 20; sNB = 21; sNC = 22; sJ0 = 23; sRND = 24; sR = 25; sLIM = 26; sMORE = 27; sFIRST = 28
sCB = 29; sC4 = 30; sCP = 31; sNBs = 48; sNK = 33; sNPH = 34; sNP = 35; sNV = 36
sRING = 37; sJ = 38; s1024 = 39; sOWN = 40; sNX = 44; sSO = 48; sPROGW = 52; sPROG = 53; sB = 54; sLAST = 55
sEX = 56
sT = 58
sM0 = 68
sX2 = 72
sPP = 32
sN4 = 3
sTAG = 2

TILES = {0: [(0,0), (1,0), (0,1), (1,1)], 1: [(0,0), (0,1), (1,1), (1,0)], 2: [(0,0), (1,0), (1,1), (0,1)], 3: [(0,0), (0,1), (1,0), (1,1)]}[opt('tord', 0)]
def tile(t, u): return ACC + 16 * TILES.index((t, u))
def Wreg(p, u): return WR + p*16 + u*8

def weave(x, y):
    o = []
    for i in range(max(len(x), len(y))):
        o += x[i:i+1] + y[i:i+1]
    return o

class LG:
    def __init__(self, a, q=()): self.a = a; self.q = list(q)
    def issue(self, tag, optional=False): self.q.append((tag, optional))
    def waitline(self, tag):
        idx = [i for i, (t, o) in enumerate(self.q) if t == tag]
        if not idx: return None
        y = sum(1 for (t, o) in self.q[idx[-1]+1:] if not o)
        self.q = self.q[idx[-1]+1:]
        return f's_waitcnt lgkmcnt({min(y, 15)})'

class K2:
    def __init__(self):
        self.a = Asm()
        self.uid = 0
        self.outline = []
    def lab(self, s):
        self.uid += 1
        return f'K2_{s}_{self.uid}'

    def dma(self, slot, greg, soff):
        return [f's_mov_b32 m0, s{sM0+slot}',
                f'buffer_load_dwordx4 v{greg}, s[{sX}:{sX+3}], s{soff} offen lds',
                f'buffer_load_dwordx4 v{greg+1}, s[{sX2}:{sX2+3}], s{soff} offen offset:1024 lds']
    def bread(self, item):
        out = []
        for u in range(2):
            for r in range(2):
                d = BR + (item & 1)*8 + u*4 + r*2
                out.append((f'ds_read_b64_tr_b16 v[{d}:{d+1}], v{VB0+u} offset:{(item & 3)*2048 + r*512}', [('B' if u == 0 or not opt('split', 0) else 'B1', False)]))
        return out
    def sread(self, t):
        return [f'v_add_u32 v{G+2*t}, s{sSO+t}, v{VSO}', (f'ds_read_b32 v{G+2*t}, v{G+2*t}', [(f'S{t}', False)])]
    def gmad(self, t):
        return [('wait', f'S{t}'),
                f'v_mad_u32_u16 v{G+2*t+1}, v{G+2*t}, s{s1024}, v{VLG} op_sel:[1,0,0,0]',
                f'v_mad_u32_u16 v{G+2*t}, v{G+2*t}, s{s1024}, v{VLG}']
    def ool(self, text): self.outline.append(text)
    def atomic(self):
        return [f'v_mov_b32 v{VT0}, {CNT}', f'v_mov_b32 v{VT1}, 1', f'v_lshl_add_u32 v{T3}, v{VL2}, 1, s{sPROG}',
                (f's_mov_b64 exec, 1\nds_add_rtn_u32 v{T2}, v{VT0}, v{VT1}\ns_mov_b64 exec, -1', [('C', False)]),
                (f'ds_read_b32 v{T3}, v{T3}', [('C', False)])]
    def claimed(self):
        nul = self.lab('nul'); spin = self.lab('spin'); chk = self.lab('chk'); back = self.lab('back')
        self.ool(f'{nul}:\ns_mov_b32 s{sT}, 63\ns_mov_b32 s{sNV}, 0\ns_branch {back}')
        self.ool(f'{spin}:\nv_lshl_add_u32 v{T3}, v{VL2}, 1, s{sPROG}\nds_read_b32 v{T3}, v{T3}\ns_waitcnt lgkmcnt(0)\ns_branch {chk}')
        return [f'v_readfirstlane_b32 s{sT}, v{T2}',
                f"""s_cmp_lt_u32 s{sT}, s{sNC}
                s_cbranch_scc0 {nul}
                s_and_b32 s{sT+1}, s{sT}, 7
                s_lshr_b32 s{sT+2}, s{sT}, 3
                {chk}:
                v_readlane_b32 s{sT+3}, v{T3}, s{sT+1}
                s_nop 0
                s_cmp_gt_u32 s{sT+3}, s{sT+2}
                s_cbranch_scc0 {spin}
                {back}:"""]
    def claim0(self):
        dyn = self.lab('dyn'); back = self.lab('back')
        o = [x if isinstance(x, str) else x[0] for x in self.atomic()] + ['s_waitcnt lgkmcnt(0)'] + self.claimed()
        self.ool(f'{dyn}:\n' + '\n'.join(o) + f'\ns_mov_b32 s{sNPH}, 1\ns_branch {back}')
        return [f's_add_u32 s{sJ}, s{sJ}, 1', f'v_mov_b32 v{VT0}, s{sPROGW}', f'v_mov_b32 v{VT1}, s{sJ}',
                f's_lshl_b32 s{sT}, s{sJ}, 3', f's_add_u32 s{sT}, s{sT}, s{sW}',
                (f's_mov_b64 exec, 1\nds_write_b32 v{VT0}, v{VT1}\ns_mov_b64 exec, -1', [('W', False)]),
                f's_cmp_lt_u32 s{sT}, s{sNC}\ns_cbranch_scc0 {dyn}\n{back}:']
    def pooladdr(self, d, word, stride):
        return f"""s_lshr_b32 s{d}, s{word}, 27
            s_mov_b32 s{sT+8}, {POOL}
            s_cmp_ge_u32 s{d}, 2
            s_cselect_b32 s{sT+8}, {POOL - NSTR - 2*stride}, s{sT+8}
            s_mul_i32 s{d}, s{d}, {stride}
            s_add_u32 s{d}, s{d}, s{sT+8}"""
    def next_info(self, ph):
        rare = self.lab('rare'); back = self.lab('back'); four = self.lab('four')
        self.ool(f"""{rare}:
            s_cmp_eq_u32 s{sNK}, 4
            s_cbranch_scc1 {four}
            s_mov_b32 s{sSO+1}, s{sNBs}
            s_mov_b32 s{sSO+3}, s{sNBs}
            s_add_u32 s{sNX+1}, s{sNX}, 256
            s_add_u32 s{sNX+2}, s{sNX}, 512
            s_add_u32 s{sNX+3}, s{sNX}, 768
            s_branch {back}
            {four}:
            s_add_u32 s{sSO+2}, s{sNBs}, 64
            {self.pooladdr(sSO+3, sN4, 32)}
            s_mov_b32 s{sNX+2}, s{sNX}
            s_mov_b32 s{sNX+3}, s{sNX}
            s_branch {back}""")
        o = [f'v_readlane_b32 s{sN4}, v{VTAB}, s{sT}', f's_lshl_b32 s{sNX}, s{sNPH}, 7', f's_lshl_b32 s{sT+2}, s{sT}, 5',
             f's_and_b32 s{sNBs}, s{sN4}, 0x3ffff', f's_bfe_u32 s{sNK}, s{sN4}, 0x30012',
             f's_sub_u32 s{sT+2}, s{sT+2}, s{sNBs}', f's_and_b32 s{sT+2}, s{sT+2}, 0xff']
        if ph == 1: o += [f's_add_u32 s{sNP}, s{sT+2}, s{sNBs}']
        else: o += [f's_add_u32 s{sT+2}, s{sT+2}, s{sNBs}', f's_mul_i32 s{sNP}, s{sJ}, 6', f's_cmp_eq_u32 s{sNPH}, 0\ns_cselect_b32 s{sNP}, s{sNP}, s{sT+2}']
        o += [f's_mov_b32 s{sNX+1}, s{sNX}', f's_add_u32 s{sNX+3}, s{sNX}, 256', f's_add_u32 s{sSO+1}, s{sNBs}, 32', f's_add_u32 s{sT+2}, s{sNBs}, 64',
              f's_cmp_eq_u32 s{sNK}, 3\ns_cselect_b32 s{sNX+2}, s{sNX}, s{sNX+3}\ns_cselect_b32 s{sSO+2}, s{sT+2}, s{sNBs}\ns_cselect_b32 s{sSO+3}, s{sNBs}, s{sSO+1}',
              f's_sub_u32 s{sT+2}, s{sNK}, 2\ns_cmp_lt_u32 s{sT+2}, 2\ns_cbranch_scc0 {rare}\n{back}:']
        return o
    def eread(self):
        return [f'v_add_u32 v{T3}, s{sNBs}, v{VEO}',
                (f'ds_read_b32 v{T2}, v{T3}', [('E', False)]), (f'ds_read_b32 v{T3}, v{T3} offset:1024', [('E', False)])]
    NEXTRA = 2
    def adma(self):
        dum = self.lab('dum'); four = self.lab('a4'); back = self.lab('back'); b4 = self.lab('b4')
        ea = f's[{sEA}:{sEA+3}]'; m = mod('eald', '')
        self.ool(f'{dum}:\nv_mov_b32 v{T2}, -1\ns_mov_b32 m0, {SCR}\ns_mov_b64 exec, 1\n' + f'buffer_load_dwordx4 v{T2}, {ea}, 0 offen lds\n'*2 + f's_mov_b64 exec, -1\ns_branch {back}')
        self.ool(f"""{four}:
            {self.pooladdr(sT+7, sN4, 512)}
            v_add_u32 v{T2}, s{sT+7}, v{VEO}
            ds_read_b32 v{T2}, v{T2}
            s_add_u32 m0, s{sT+7}, {OA}
            s_waitcnt lgkmcnt(0)
            v_or_b32 v{T2}, v{T2}, v{VH16}
            buffer_load_dwordx4 v{T2}, {ea}, 0 offen {m} lds
            s_branch {b4}""")
        return [('wait', 'E'), f'v_or_b32 v{T2}, v{T2}, v{VH16}', f'v_or_b32 v{T3}, v{T3}, v{VH16}', f"""
        s_cmp_lg_u32 s{sNPH}, 0
        s_cbranch_scc1 {dum}
        s_add_u32 m0, s{sNBs}, {OA}
        s_add_u32 s{sT+7}, s{sNBs}, {OA+1024}
        buffer_load_dwordx4 v{T2}, {ea}, 0 offen {m} lds
        s_mov_b32 m0, s{sT+7}
        s_mov_b32 exec_hi, 0
        buffer_load_dwordx4 v{T3}, {ea}, 0 offen {m} lds
        s_cmp_eq_u32 s{sNK}, 4
        s_cbranch_scc1 {four}
        {b4}:
        s_mov_b32 exec_hi, -1
        {back}:"""]
    def areads(self, s):
        b = ACC + (s & 1) * 20
        va, vy, oa, oy, o = VAO, VYO, s*512, s*64, []
        if s == 3:
            va, vy, oa, oy = ACC + 56, ACC + 57, 0, 0
            o = [self.pooladdr(sT+7, sC4, 512) + f'\ns_sub_u32 s{sT+7}, s{sT+7}, s{sCB}\nv_add_u32 v{va}, s{sT+7}, v{VAO}',
                 self.pooladdr(sT+7, sC4, 64) + f'\ns_sub_u32 s{sT+7}, s{sT+7}, s{sCB}\nv_add_u32 v{vy}, s{sT+7}, v{VYO}']
        o += [(f'ds_read_b64_tr_b16 v[{b}:{b+1}], v{va} offset:{oa}', [(f'a{s}', False)]),
              (f'ds_read_b64_tr_b16 v[{b+2}:{b+3}], v{va} offset:{oa+128}', [(f'a{s}', False)])]
        for t in range(2):
            for hh in range(2):
                d = b + 4 + t*8 + hh*4
                o.append((f'ds_read_b128 v[{d}:{d+3}], v{vy} offset:{oy + t*384 + hh*16}', [(f'y{s}{t}', False)]))
        return o
    def abuild(self, nK):
        o = []
        for s in range(nK):
            b = ACC + (s & 1) * 20; un = ACC + 40 + (s & 1) * 8
            o.append(('wait', f'y{s}1' if (opt('mw', 1) and s < 2) else f'a{s}'))
            for i in range(4):
                o += [f'v_lshlrev_b32 v{un+2*i}, 16, v{b+i}', f'v_and_b32 v{un+1+2*i}, 0xffff0000, v{b+i}']
            for t in range(2):
                o.append(('wait', f'y{s}{t}'))
                for e in range(8): o.append(f'v_mul_f32 v{b+4+t*8+e}, v{un+e}, v{b+4+t*8+e}')
                for i in range(4): o.append(f'v_cvt_pk_bf16_f32 v{AR+s*8+t*4+i}, v{b+4+t*8+2*i}, v{b+5+t*8+2*i}')
            if s + 2 < nK: o += self.areads(s + 2)
        return o
    R = dict(A=PW, B=PW+2, C=PW+4, D=PW+6, E=PW+8, F=PW+10)
    CH_ = {0: [(0,'A','new'),(2,'B','new'),(2,'C','new'),(2,'D','new')],
           1: [(3,'A','new'),(1,'B','new'),(4,'C','new'),(4,'D','new')],
           2: [(3,'E','new'),(4,'C','neg'),(1,'B','acc'),(4,'F','new')],
           3: [(3,'E','new'),(4,'D','neg'),(4,'F','neg'),(1,'B','acc')]}
    def F(self, q, k):
        t, u = TILES[k]; o = []
        for r in range(8):
            for b in (2*t, 2*t+1):
                p, d, mode = self.CH_[q][b]
                T = tile(t, u) + (b & 1)*8 + r; W = Wreg(p, u) + r; D = self.R[d] + u
                if r == 0 and mode == 'new': o.append(f'v_mul_f32 v{D}, v{T}, v{W}')
                elif r == 0 and mode == 'neg': o.append(f'v_fma_f32 v{D}, v{T}, v{W}, -v{D}')
                else: o.append(f'v_fmac_f32 v{D}, v{T}, v{W}')
        return o
    SROW = {0: 0, 2: 1, 8: 2, 5: 3, 6: 4, 3: 5, 9: 6, 1: 7, 4: 8, 10: 9, 7: 10}
    def fin(self, q, ph, sp=None):
        sp = sCP if sp is None else sp
        R = self.R
        pairs = {0: [(0, 'A', 'B'), (1, 'D', 'C')], 1: [], 2: [(2, 'E', 'A')], 3: [(3, 'E', 'B'), (4, 'F', 'C')]}[q]
        o = []
        for (slot, x, y) in pairs: o += [f'v_permlane32_swap_b32 v{R[x]+u}, v{R[y]+u}' for u in range(2)]
        if q == 3: o.append(f'v_permlane32_swap_b32 v{R["D"]}, v{R["D"]+1}')
        if ph == 1 and q == 0: o.append(f'v_lshl_add_u32 v{VPA}, v{VL2}, 1, s{sCP}')
        for (slot, x, y) in pairs: o += [f'v_add_f32 v{R[x]+u}, v{R[x]+u}, v{R[y]+u}' for u in range(2)]
        cv = [(slot, R[x], R[x]+1) for (slot, x, y) in pairs]
        if q == 3:
            o.append(f'v_add_f32 v{R["D"]}, -v{R["D"]}, -v{R["D"]+1}')
            cv.append((5, R['D'], R['D']))
        if cv and ph == 0:
            o.append(f's_set_gpr_idx_on s{sp}, gpr_idx(DST)\n' + ''.join(f'v_cvt_pk_bf16_f32 v{P0+slot}, v{lo}, v{hi}\n' for (slot, lo, hi) in cv) + 's_set_gpr_idx_off')
        elif cv:
            if q == 3: o.append(f'v_sub_u32 v{R["D"]+1}, v{VPA}, v{VH16}')
            for (slot, lo, hi) in cv: o.append(f'v_cvt_pk_bf16_f32 v{lo}, v{lo}, v{hi}')
            for (slot, lo, hi) in cv:
                o.append((f'ds_write_b32 v{VPA}, v{lo} offset:{slot*256}' if slot < 5 else f'ds_write_b16 v{R["D"]+1}, v{lo} offset:1280', [('P', False)]))
        return o
    def drop(self, line):
        x = opt('drop', '')
        if not x or not getattr(self, 'inunit', False) or '\n' in line.strip(): return False
        l = line.strip()
        if 'D' in x and l.startswith('buffer_load') and (f's[{sX}:' in l or f's[{sX2}:' in l): return True
        if 'P' in x and l.startswith('ds_write_b16'): return True
        if 'S' in x and l.startswith('v_permlane'): return True
        if 'C' in x and l.startswith('v_cvt_pk'): return True
        if 'B' in x and l.startswith('ds_read_b64_tr') and (f'v{VB0} ' in l or f'v{VB1} ' in l): return True
        if 'F' in x and l.startswith('v_fmac'): return True
        if 'A' in x and l.startswith(('v_lshlrev_b32','v_and_b32','v_cvt_pk')): return True
        if 'A' in x and l.startswith('v_mul_f32') and int(l.split()[1][1:-1]) < 64: return True
        if 'Y' in x and l.startswith(('ds_read_b128',)): return True
        return False
    def emit(self, items, lg):
        for it in items:
            if isinstance(it, str):
                if not self.drop(it): self.a(it)
            elif it[0] != 'wait' and self.drop(it[0]):
                for t, o in it[1]: lg.issue(t, o)
            elif it[0] == 'wait':
                w = lg.waitline(it[1])
                if len(it) > 2 and it[2] is not None: w = f's_waitcnt vmcnt({it[2]})' + (w[len('s_waitcnt'):] if w else '')
                if w: self.a(w)
            else:
                self.a(it[0])
                for t, o in it[1]: lg.issue(t, o)
    LATE = opt('late', 0)
    ENTRY = ([] if LATE else [('B', False)]*2 + [('B1' if opt('split', 0) else 'B', False)]*2) + [('a0', False)]*2 + [('y00', False)]*2 + [('y01', False)]*2 + [('a1', False)]*2 + [('y10', False)]*2 + [('y11', False)]*2
    @staticmethod
    def cost(it):
        if isinstance(it, tuple):
            if it[0] == 'wait': return 1
            it = it[0]
        return sum((2 if 'permlane' in l else 1) for l in it.strip().split('\n') if not l.strip().endswith(':'))
    def unit(self, nK, ph):
        a = self.a
        lg = LG(a, self.ENTRY)
        a(f'K2_U{nK}{ph}:')
        self.inunit = True
        n = 4 * nK
        BUD = opt('bud', 7)
        pre = seg(0)
        claim = (self.claim0() if ph == 0 else self.atomic())
        after = ([] if ph == 0 else [('wait', 'C')] + self.claimed()) + self.next_info(ph)
        if nK == 1: pre += claim
        LATE = self.LATE; LP = opt('lp', 16)
        def ins(l, items, back): return l[:max(0, len(l) - back)] + items + l[max(0, len(l) - back):]
        ab = self.abuild(nK)
        if LATE: ab = ins(ab, ['s_waitcnt vmcnt(6)'] + self.bread(0), opt('lp2', 16))
        pre += ab
        if nK == 1:
            pre += after + (self.eread() if ph == 0 else [])
            for t in range(4): pre += self.sread(t)
            if ph == 0: pre += self.adma()
            for t in range(4): pre += self.gmad(t)
        x = -1 if nK == 1 else 2
        MW = opt('mergewait', True)
        gaps = [[] for _ in range(4*n)]; tailg = [[] for _ in range(4*n)]
        late = lambda j: LATE and j % nK == 0
        vmn = lambda i: None if late(i + 1) else 4 + (self.NEXTRA if (ph == 0 and x < i <= x + 3) else 0)
        vml = lambda j: 6 + (self.NEXTRA if (ph == 0 and x + 1 <= j <= x + 4) else 0)
        for i in range(n):
            d = self.dma(i & 3, G + 2*((i+4) % nK), sOWN + (i+4)//nK) if i + 4 < n else self.dma(i & 3, G + 2*(i+4-n), sNX + (i+4-n))
            br = self.bread(i + 1); SP = opt('split', 0)
            if late(i + 1): br = []
            w = [] if MW else [f's_waitcnt vmcnt({vmn(i)})']
            if SP == 0:
                gaps[4*i] += w + br; tailg[4*i] += [d[0]]; gaps[4*i+1] += [d[1], d[2]]
            elif SP == 1:
                gaps[4*i] += w + br[:2]; tailg[4*i+1] += [('wait', 'B1'), d[0]]; gaps[4*i+2] += [d[1]] + br[2:]; tailg[4*i+2] += [d[0]]; gaps[4*i+3] += [d[2]]
            elif SP == 2:
                gaps[4*i] += w + br[:2]; gaps[4*i+1] += br[2:]; tailg[4*i+1] += [d[0]]; gaps[4*i+2] += [d[1]]; tailg[4*i+2] += [d[0]]; gaps[4*i+3] += [d[2]]
            if i + 1 < n: tailg[4*i+3] += [('wait', 'B1' if SP == 2 else 'B', vmn(i+1) if MW else None)]
        used = lambda g: sum(map(self.cost, gaps[g] + tailg[g]))
        def place(items, g0, g1):
            g = g0
            for it in items:
                while g < g1 and used(g) + self.cost(it) > BUD and used(g) > 1: g += 1
                gaps[g].append(it)
            return g
        DEF = opt('defer', True) and nK > 1
        if nK > 1:
            for t in range(4):
                place(self.sread(t), 4*(n-6+t) + (3 if opt('split', 0) else 2), 4*(n-6+t) + 3)
                place(self.gmad(t), 4*(n-5+t) + 1, 4*(n-5+t) + 3)
        ndef = [0]*4
        for q in range(1, 4):
            g0 = 4*q*nK
            if DEF:
                f3 = self.F(q-1, 3)
                room = [max(0, BUD - used(g0 + k)) for k in range(3)]
                m = min(16, sum(room)); ndef[q-1] = m
                f3 = f3[16-m:]
                for k in range(3):
                    gaps[g0 + k] += f3[:room[k]]; f3 = f3[room[k]:]
            place(self.fin(q-1, ph), g0 + (3 if DEF else 1), 4*(q*nK + nK - 1) + (1 if nK > 1 else 3))
        place(self.fin(3, ph, sPP), 1, 4*(nK - 1) + (1 if nK > 1 else 3))
        if nK > 1:
            if ph == 0:
                g = place(claim + after, 1, 5)
                place(self.eread(), max(g, 5), 7)
                place(self.adma(), 4*x + 3, 4*x + 3)
            else:
                place(claim, 1, 3)
                g1 = 4*(n-6) + (3 if opt('split', 0) else 2)
                keep = gaps[g1]; k0 = [i for i, it in enumerate(keep) if isinstance(it, str) and f'v{VSO}' in it]
                moved = keep[k0[0]:] if k0 else []
                if k0: gaps[g1] = keep[:k0[0]]
                place(after, 5, g1)
                gaps[g1] += moved
        if opt('dsp', 1):
            upd = [f's_sub_u32 s{sLIM}, s{sNBs}, s{sCB}', f's_mov_b32 s{sCB}, s{sNBs}', f's_mov_b32 s{sC4}, s{sN4}',
                   (f's_cmp_eq_u32 s{sNPH}, 0' if ph == 0 else f's_cmp_lg_u32 s{sNV}, 0') + f'\ns_cselect_b32 s{sEX}, s{sNK}, 0']
            place(upd, 4*(n-2) + 1, 4*(n-1) + 1)
            gl = max([g for g in range(4*n) if any(('gpr_idx' in (it if isinstance(it, str) else it[0])) or (f's{sCP}' in (it if isinstance(it, str) else it[0])) for it in gaps[g])] + [4*(n-2)])
            place([f's_mov_b32 s{sPP}, s{sCP}', f's_mov_b32 s{sCP}, s{sNP}'], gl, max(gl, 4*(n-1) + 2))
        nf0 = [0]*4
        if nK > 1:
            for q in range(4):
                g = 4*(q*nK + nK - 1) + 2
                nf0[q] = max(0, BUD - used(g))
                gaps[g] += self.F(q, 0)[:nf0[q]]
        self.emit([f's_setprio {opt("prioa", 1)}'] + pre + seg(1) + [('wait', 'B', vmn(0) if MW else None)] + ([f's_setprio {opt("prio", 1)}'] if opt("prio", 1) != opt("prioa", 1) else []), lg)
        for i in range(n):
            q, s = divmod(i, nK)
            for k, (t, u) in enumerate(TILES):
                c = f'v[{tile(t,u)}:{tile(t,u)+15}]' if s else '0'
                bb = BR + (i & 1)*8 + u*4
                if 'M' not in opt('drop', ''): a(f'v_mfma_f32_32x32x16_bf16 v[{tile(t,u)}:{tile(t,u)+15}], v[{AR+s*8+t*4}:{AR+s*8+t*4+3}], v[{bb}:{bb+3}], {c}')
                g = 4*i + k
                if k == 3 and s == nK - 1:
                    self.emit([f's_setprio {opt("prio0", 0)}'] + gaps[g] + seg(2+2*q) + self.F(q, 0)[nf0[q]:], lg)
                    if q < 3:
                        fb = self.F(q, 1) + self.F(q, 2) + self.F(q, 3)[:16-ndef[q]]
                        if LATE: fb = ins(fb, [f's_waitcnt vmcnt({vml(i+1)})'] + self.bread(i + 1), LP)
                        self.emit(fb + seg(3+2*q) + [f's_setprio {opt("prio", 1)}'], lg)
                else: self.emit(gaps[g], lg)
                self.emit(tailg[g], lg)
        end = [f's_sub_u32 s{sT}, s{sNBs}, s{sCB}', f'v_add_u32 v{VAO}, s{sT}, v{VAO}', f'v_add_u32 v{VYO}, s{sT}, v{VYO}']
        if opt('dsp', 1): end = [f'v_add_u32 v{VAO}, s{sLIM}, v{VAO}', f'v_add_u32 v{VYO}, s{sLIM}, v{VYO}']
        end += self.F(3, 1) + self.areads(0) + self.F(3, 2) + self.areads(1) + self.F(3, 3)
        self.emit(end, lg)
        if SEG:
            a('s_memtime s[94:95]\ns_waitcnt lgkmcnt(0)')
            def acc(d, i, j): a(f's_sub_u32 s67, s{76+2*j}, s{76+2*i}\ns_add_u32 s{d}, s{d}, s67')
            acc(96, 0, 1)
            for q in range(4): acc(97, 1+2*q, 2+2*q)
            for q in range(3): acc(98, 2+2*q, 3+2*q)
            acc(99, 8, 9)
            a(f's_add_u32 s100, s100, {nK}\ns_add_u32 s101, s101, 1')
        assert [x for x in lg.q if x[0] != 'P'] == self.ENTRY, lg.q
        self.inunit = False
        self.dispatch(ph)
    def dispatch(self, ph, check=True):
        if check and opt('dsp', 1):
            self.a(f"""
            s_cmp_eq_u32 s{sEX}, 2
            s_cbranch_scc1 K2_U2{ph}
            s_cmp_eq_u32 s{sEX}, 3
            s_cbranch_scc1 K2_U3{ph}
            s_branch K2_DSP{ph}
            """)
            return
        if check:
            if ph == 0: self.a(f's_cmp_lg_u32 s{sNPH}, 0\ns_cbranch_scc1 K2_SWITCH')
            else: self.a(f's_cmp_eq_u32 s{sNV}, 0\ns_cbranch_scc1 K2_TAIL')
        self.a(f"""
        s_mov_b32 s{sCB}, s{sNBs}
        s_mov_b32 s{sPP}, s{sCP}
        s_mov_b32 s{sC4}, s{sN4}
        s_mov_b32 s{sCP}, s{sNP}
        s_cmp_eq_u32 s{sNK}, 2
        s_cbranch_scc1 K2_U2{ph}
        s_cmp_eq_u32 s{sNK}, 3
        s_cbranch_scc1 K2_U3{ph}
        s_cmp_eq_u32 s{sNK}, 1
        s_cbranch_scc1 K2_U1{ph}
        s_branch K2_U4{ph}
        """)

    def wload(self, ph, vl16):
        for i in range(20):
            if i % 4 == 0: self.a(f's_mov_b32 s{sT}, {WS_WTAB + ph*20480 + i*1024}')
            self.a(f'buffer_load_dwordx4 v[{WR+4*i}:{WR+3+4*i}], v{vl16}, s[{sWS}:{sWS+3}], s{sT} offen offset:{(i%4)*1024} {"sc1" if FUSE else ""}')

    def fill_all(self, vT_):
        a = self.a
        for t in range(512): assert (t*437) >> 16 == t // 150
        a(f'''
        v_mul_u32_u24 v76, 437, v{vT_}
        v_lshrrev_b32 v76, 16, v76
        v_mul_u32_u24 v76, 150, v76
        v_sub_u32 v76, v{vT_}, v76
        v_mov_b32 v80, -1
        v_mov_b32 v77, 1.0
        v_cmp_gt_u32 vcc, 48, v76
        v_lshlrev_b32 v78, 4, v{vT_}
        v_add_u32 v78, {RECBASE}, v78
        v_cndmask_b32 v80, v80, 0, vcc
        v_cmp_gt_u32 vcc, 12, v76
        v_add_u32 v79, 64800, v78
        s_nop 0
        v_cndmask_b32 v80, v80, v77, vcc
        v_cmp_gt_u32 vcc, 450, v{vT_}
        v_mov_b32 v81, v80
        v_mov_b32 v82, v80
        v_mov_b32 v83, v80
        s_mov_b64 exec, vcc
        ''')
        for i in range(13): a(f'ds_write_b128 v{78 + (i//9)}, v[80:83] offset:{(i%9)*7200}')
        a(f'''
        v_cmp_gt_u32 vcc, {150 + (OA+1024)//16}, v{vT_}
        s_cbranch_vccz K2_NOCL
        s_mov_b64 exec, vcc
        ds_write_b128 v79, v[80:83] offset:{4*7200}
        K2_NOCL:
        s_mov_b64 exec, -1
        ''')
    def fill_head(self, part):
        a = self.a; n1 = opt('n1', 40)
        if part == 0:
            a(f'''
            v_subrev_u32 v76, 320, v0
            v_mov_b32 v80, -1
            v_mov_b32 v77, 1.0
            v_cmp_gt_u32 vcc, 48, v76
            v_lshlrev_b32 v78, 4, v76
            v_add_u32 v78, {RECBASE}, v78
            v_cndmask_b32 v80, v80, 0, vcc
            v_cmp_gt_u32 vcc, 12, v76
            v_add_u32 v79, {27*NSTR}, v78
            s_nop 0
            v_cndmask_b32 v80, v80, v77, vcc
            v_cmp_gt_u32 s[{sEX}:{sEX+1}], {(OA+1024)//16 - 64}, v8
            v_mov_b32 v81, v80
            v_mov_b32 v82, v80
            v_mov_b32 v83, v80
            ''')
        for i in (range(n1) if part == 0 else range(n1, 40)): a(f'ds_write_b128 v{78 + (i//27)}, v[80:83] offset:{(i%27)*NSTR}')
        if part == 1:
            a(f'''
            s_cmp_eq_u32 s{sW}, 6
            s_cselect_b64 exec, s[{sEX}:{sEX+1}], -1
            ds_write_b128 v79, v[80:83] offset:{13*NSTR}
            s_mov_b64 exec, -1
            ''')
    def fill_tail(self):
        for t in range(320): assert (t*2979) >> 16 == t // 22
        self.a(f'''
        v_mul_u32_u24 v76, 2979, v0
        v_lshrrev_b32 v76, 16, v76
        v_mul_u32_u24 v77, {NSTR - 22*16}, v76
        v_lshl_add_u32 v78, v0, 4, v77
        v_add_u32 v78, {RECBASE + 128*16}, v78
        v_add_u32 v79, {28*NSTR}, v78
        v_mov_b32 v80, -1
        v_mov_b32 v81, -1
        v_cmp_gt_u32 vcc, 14, v76
        v_cmp_gt_u32 s[{sEX}:{sEX+1}], 12, v76
        v_mov_b32 v82, -1
        v_mov_b32 v83, -1
        s_mov_b64 exec, vcc
        ds_write_b128 v78, v[80:83]
        ds_write_b128 v78, v[80:83] offset:{14*NSTR}
        s_mov_b64 exec, s[{sEX}:{sEX+1}]
        ds_write_b128 v79, v[80:83]
        s_mov_b64 exec, -1
        ''')
    def counters(self, vL, first):
        self.a(f'''
        v_mov_b32 v76, 0
        v_mov_b32 v77, -1
        v_lshlrev_b32 v78, 2, v{vL}
        v_add_u32 v78, {HIST}, v78
        s_mov_b64 exec, 0x1ff
        ds_write_b32 v78, v76 offset:{PROG-HIST}
        s_mov_b64 exec, 0xff
        ds_write_b32 v78, v77 offset:{NULLSRC-HIST}
        s_mov_b64 exec, -1
        {'' if first else f's_cmp_lg_u32 s{sRND}, 0'}
        {'' if first else f's_cbranch_scc1 K2_NOH'}
        s_mov_b32 exec_hi, 0xffff
        ds_write_b32 v78, v76
        s_mov_b64 exec, 1
        ds_write_b32 v78, v76 offset:{FLAG-HIST}
        s_mov_b64 exec, -1
        ''')
    def srds(self):
        a = self.a
        srd(a, sX, 80, N*1024); srd(a, sOUT, 96, N*1024); srd(a, sEA, 84, E*32)
        a('s_sub_u32 s80, s80, 1024\ns_subb_u32 s81, s81, 0'); srd(a, sX2, 80, N*1024 + 1024)
    def consts(self, vL):
        self.a(f'''
        v_and_b32 v84, 15, v{vL}                ; i
        v_lshrrev_b32 v85, 5, v{vL}             ; h
        v_bfe_u32 v86, v{vL}, 4, 1
        v_lshrrev_b32 v87, 2, v84
        v_and_b32 v88, 3, v84                   ; c
        v_lshl_add_u32 v89, v85, 3, v87         ; 8h + row
        v_lshlrev_b32 v{VAO}, 5, v89
        v_lshl_add_u32 v{VAO}, v88, 3, v{VAO}
        v_add_u32 v{VAO}, {OA}, v{VAO}
        v_mul_u32_u24 v{VYO}, 192, v86
        v_lshl_add_u32 v{VYO}, v85, 5, v{VYO}
        v_lshrrev_b32 v90, 1, v88
        v_lshl_add_u32 v90, v86, 1, v90         ; chunk (u = 0)
        v_bfe_u32 v91, v87, 1, 1
        v_lshlrev_b32 v91, 2, v91
        v_xor_b32 v90, v90, v91
        v_lshlrev_b32 v90, 4, v90
        v_lshl_add_u32 v90, v89, 7, v90
        v_and_b32 v91, 1, v88
        v_lshl_add_u32 v90, v91, 3, v90
        v_add_u32 v{VB0}, s{sRING}, v90
        v_xor_b32 v{VB1}, 64, v{VB0}
        v_lshrrev_b32 v90, 3, v{vL}
        v_lshlrev_b32 v{VSO}, 2, v90
        v_add_u32 v{VSO}, {OS}, v{VSO}
        v_bfe_u32 v90, v90, 1, 1
        v_lshlrev_b32 v90, 2, v90
        v_and_b32 v91, 7, v{vL}
        v_xor_b32 v90, v90, v91
        v_lshlrev_b32 v{VLG}, 4, v90
        v_lshlrev_b32 v{VL2}, 1, v{vL}
        v_and_b32 v{VH16}, 1, v{vL}
        v_lshlrev_b32 v{VH16}, 4, v{VH16}
        v_lshrrev_b32 v90, 1, v{vL}
        v_lshlrev_b32 v90, 5, v90
        v_add_u32 v{VEO}, {OA}, v90
        ''')
    def stage_sort(self, vL, vT_):
        a = self.a; st = 'sc1'
        RAW = 24576
        a(f'''
        s_cmp_ge_u32 s{sW}, 5
        s_cbranch_scc1 KS_HELP
        s_cmp_ge_u32 s2, {NCH}
        s_cbranch_scc1 KS_IDLE
        ''')
        srd(a, 40, 88, E*4)
        a(f'buffer_load_dwordx4 v[12:15], v5, s[40:43], s64 offen')
        srd(a, 44, 86, E*4); srd(a, 48, 82, E*6)
        a(f'''
        buffer_load_dwordx4 v[16:19], v5, s[44:47], s64 offen
        buffer_load_dwordx4 v[20:23], v4, s[48:51], s65 offen
        buffer_load_dwordx2 v[24:25], v4, s[48:51], s65 offen offset:16
        v_lshlrev_b32 v2, 2, v0                 ; t*4
        s_lshl_b32 s64, s64, 3
        v_lshl_add_u32 v3, v0, 7, s64
        v_mov_b32 v7, 1
        s_cmp_eq_u32 s{sW}, 4
        s_cbranch_scc1 KS_NOCLR
        ds_write_b32 v2, v6
        KS_NOCLR:
        s_waitcnt lgkmcnt(0)
        s_barrier
        ''')
        self.fill_tail()
        self.srds()
        sstamp(a, 7)
        a(f's_mov_b32 s58, {BMUL}\ns_movk_i32 s59, 625\ns_waitcnt vmcnt(3)')
        sstamp(a, 8)
        sort_rank(a)
        a('s_waitcnt lgkmcnt(0)')
        for j in range(4): a(f'ds_read_b32 v{32+j}, v{32+j} offset:1024')
        sort_emit(a, st)
        a(f'''
        s_branch KS_JOIN
        KS_IDLE:
        s_barrier
        ''')
        self.fill_tail()
        self.srds()
        a(f'''
        s_barrier
        s_branch KS_B3
        KS_HELP:
        s_cmp_eq_u32 s{sW}, 7
        s_cbranch_scc1 KS_TAG
        s_cmp_eq_u32 s{sW}, 6
        s_cbranch_scc1 KS_RAW
        s_cmp_ge_u32 s2, 200
        s_cbranch_scc1 KS_NOW
        ''')
        weight_loads(a)
        a('K1_GO:\ns_barrier')
        self.fill_head(0)
        a(f'v_mov_b32 v59, {NONCE}\ns_barrier\nds_read_b32 v59, v59')
        self.fill_head(1)
        self.srds()
        a(f'''
        s_waitcnt vmcnt(0)
        v_lshl_or_b32 v40, v65, 16, v64
        v_lshl_or_b32 v41, v67, 16, v66
        v_lshl_or_b32 v42, v69, 16, v68
        v_lshl_or_b32 v43, v71, 16, v70
        buffer_store_dwordx4 v[40:43], v9, s[{sWS}:{sWS+3}], s24 offen sc1
        s_waitcnt lgkmcnt(0)
        s_barrier
        s_lshl_b32 s24, s2, 2
        s_add_u32 s24, s24, {WS_FLG}
        s_mov_b64 exec, 1
        s_waitcnt vmcnt(0)
        buffer_store_dword v59, v6, s[{sWS}:{sWS+3}], s24 offen sc1
        s_mov_b64 exec, -1
        s_branch KS_JOIN
        KS_RAW:
        s_barrier
        ''')
        srd(a, 60, 90, 16*640*2)
        for i in range(20):
            if i % 4 == 0: a(f's_mov_b32 m0, {RAW + i*1024}\ns_movk_i32 s24, {i*1024}')
            a(f'buffer_load_dwordx4 v9, s[60:63], s24 offen offset:{(i%4)*1024} lds')
        a('s_branch KS_FILL\nKS_NOW:\ns_barrier\nKS_FILL:')
        self.fill_head(0)
        a('s_barrier')
        self.fill_head(1)
        self.srds()
        a(f'''
        s_waitcnt vmcnt(0)
        s_branch KS_B3
        KS_TAG:
        ''')
        srd(a, 60, 98, 256)
        a(f'''
        s_cmp_lg_u32 s2, 0
        s_cbranch_scc1 KS_TAGLD
        s_or_b32 s24, s74, 1
        v_mov_b32 v10, s24
        v_mov_b32 v11, 0
        s_mov_b64 exec, 1
        buffer_atomic_cmpswap v[10:11], v6, s[60:63], 0 offen sc1
        KS_TAGLD:
        s_mov_b64 exec, 1
        v_mov_b32 v14, 0
        s_mov_b64 exec, -1
        s_barrier
        ''')
        self.counters(8, True)
        self.srds()
        sstamp(a, 7)
        a(f'''
        s_mov_b64 exec, 1
        s_mov_b32 s24, 0x100000
        v_mov_b32 v12, {NONCE}
        KS_TAGW:
        buffer_load_dword v15, v6, s[60:63], 0 offen sc1
        s_waitcnt vmcnt(1)
        v_cmp_ne_u32 vcc, 0, v14
        s_cbranch_vccnz KS_TAGOK
        s_sub_u32 s24, s24, 1
        s_cbranch_scc1 K2_END
        buffer_load_dword v14, v6, s[60:63], 0 offen sc1
        s_waitcnt vmcnt(1)
        v_cmp_ne_u32 vcc, 0, v15
        s_cbranch_vccz KS_TAGW
        ds_write_b32 v12, v15
        s_branch KS_TAGOK2
        KS_TAGOK:
        ds_write_b32 v12, v14
        KS_TAGOK2:
        s_mov_b64 exec, -1
        s_waitcnt lgkmcnt(0)
        ''')
        sstamp(a, 8)
        a(f'''
        s_barrier
        KS_B3:
        v_mov_b32 v59, {NONCE}
        ds_read_b32 v59, v59
        s_waitcnt lgkmcnt(0)
        s_barrier
        KS_JOIN:
        v_readfirstlane_b32 s{sTAG}, v59
        ''')
        stamp(a, 6)
    def wraw(self, vL):
        a = self.a; RAW = 24576
        a(f'''
        v_lshrrev_b32 v60, 5, v{vL}             ; h
        v_bfe_u32 v61, v{vL}, 2, 2              ; row
        v_lshl_add_u32 v60, v60, 2, v61
        v_mul_u32_u24 v60, 1280, v60
        v_bfe_u32 v61, v{vL}, 4, 1
        v_lshl_add_u32 v60, v61, 5, v60
        v_and_b32 v61, 3, v{vL}
        v_lshl_add_u32 v60, v61, 3, v60
        ''')
        for i in range(20):
            p, u, rq = i >> 2, (i >> 1) & 1, i & 1
            a(f'ds_read_b64_tr_b16 v[{WR+40+2*i}:{WR+41+2*i}], v60 offset:{RAW + rq*8*1280 + p*256 + u*64}')
        a('s_waitcnt lgkmcnt(0)')
        for i in range(40):
            a(f'v_lshlrev_b32 v{WR+2*i}, 16, v{WR+40+i}\nv_and_b32 v{WR+2*i+1}, 0xffff0000, v{WR+40+i}')

    def gen(self):
        a = self.a
        vL, vT_, vC, vE, vREM, vOFF = 176, 177, 178, 179, 180, 181
        RK = 40
        NBs = 50
        t0 = 192
        ws = f's[{sWS}:{sWS+3}]'
        def loop(done, body):
            for i in range(U):
                a(f'v_cmp_lt_i32 vcc, {2*i}, v{vREM}\ns_cbranch_vccz {done}\ns_mov_b64 exec, vcc')
                a(body(i))
            a(f'{done}:\ns_mov_b64 exec, -1')
        a('s_cmp_ge_u32 s2, 256\ns_cbranch_scc1 K2_END')
        stamp(a, 0)
        a(f'''
        s_load_dwordx16 s[80:95], s[0:1], 0
        s_load_dwordx4 s[96:99], s[0:1], 72
        s_load_dwordx2 s[100:101], s[0:1], 88   ; ws
        s_memrealtime s[74:75]
        v_lshrrev_b32 v1, 6, v0
        s_mov_b32 s{sB}, s2
        v_readfirstlane_b32 s{sW}, v1
        v_and_b32 v8, 63, v0
        v_lshlrev_b32 v9, 4, v8                 ; lane*16
        v_mov_b32 v6, 0
        v_lshlrev_b32 v5, 4, v0                 ; t*16
        v_mul_u32_u24 v4, 24, v0
        s_mul_i32 s64, s2, {CH*4}
        s_mul_i32 s65, s2, {CH*6}
        v_mov_b32 v{vL}, v8
        v_mov_b32 v{vT_}, v0
        s_mul_i32 s{sNB}, s2, 625
        s_add_u32 s{sNC}, s{sNB}, {625+15}
        s_add_u32 s{sNB}, s{sNB}, 15
        s_lshr_b32 s{sNB}, s{sNB}, 4
        s_lshr_b32 s{sNC}, s{sNC}, 4
        s_sub_u32 s{sNC}, s{sNC}, s{sNB}
        s_movk_i32 s{s1024}, 1024
        s_lshl_b32 s{sRING}, s{sW}, 13
        s_mov_b32 s{sPROG}, {PROG}
        s_lshl_b32 s{sPROGW}, s{sW}, 2
        s_add_u32 s{sPROGW}, s{sPROGW}, s{sPROG}
        {chr(10).join(f's_add_u32 s{sM0+i}, s{sRING}, {i*2048}' for i in range(4))}
        s_waitcnt lgkmcnt(0)
        ''')
        srd(a, sWS, 100, WS_SIZE)
        self.stage_sort(vL, vT_)
        a(f'''
        s_mov_b32 s{sJ0}, 0
        s_mov_b32 s{sFIRST}, 1
        {chr(10).join(f's_mov_b32 s{i}, 0' for i in range(96, 102)) if SEG else ''}
        s_mov_b32 s{sRND}, 0
        s_mov_b32 s{sR}, 1
        K2_CELLS:
        v_lshrrev_b32 v{vC}, 1, v{vT_}          ; cell
        v_min_u32 v{vC}, {NCH-1}, v{vC}
        v_mul_u32_u24 v72, {TSTR}, v{vC}
        s_and_b32 s{sT}, s{sB}, 7
        s_lshl_b32 s{sT}, s{sT}, 7
        s_lshr_b32 s{sT+1}, s{sB}, 5
        s_lshl_b32 s{sT+1}, s{sT+1}, 4
        s_add_u32 s{sT+9}, s{sT}, s{sT+1}
        s_add_u32 s{sT+9}, s{sT+9}, {WS_TBL}
        buffer_load_dwordx4 v[76:79], v72, {ws}, s{sT+9} offen sc1
        ''')
        self.consts(vL)
        def chk(r): return f"""
            v_xor_b32 v73, s{sT+1}, v{r}
            v_xor_b32 v74, s{sT+1}, v{r+1}
            v_or_b32 v73, v73, v74
            v_xor_b32 v74, s{sTAG}, v{r+3}
            v_lshrrev_b32 v73, 22, v73
            v_or_b32 v73, v73, v74
            v_cmp_ne_u32 vcc, 0, v73"""
        a(f'''
        s_lshl_b32 s{sT+1}, s{sTAG}, 22
        s_mov_b32 s{sT+2}, 0x100000
        s_bfe_u32 s{sT+3}, s{sB}, 0x10004
        s_bfe_u32 s{sT+4}, s{sB}, 0x10003
        s_add_u32 s{sT+5}, s{sT+3}, s{sT+4}
        s_mul_i32 s{sT+4}, s{sT+4}, 11
        s_sub_u32 s{sT+6}, 11, s{sT+4}
        v_cmp_gt_u32 vcc, {2*NCH}, v{vT_}
        s_mov_b64 s[{sEX}:{sEX+1}], vcc
        K2_POLL:
        ''')
        if opt('poll2', 0): a(f'''
        buffer_load_dwordx4 v[80:83], v72, {ws}, s{sT+9} offen sc1
        s_waitcnt vmcnt(1)
        {chk(76)}
        s_cbranch_vccz K2_POLLED
        s_sub_u32 s{sT+2}, s{sT+2}, 1
        s_cbranch_scc1 K2_END
        buffer_load_dwordx4 v[76:79], v72, {ws}, s{sT+9} offen sc1
        s_waitcnt vmcnt(1)
        {chk(80)}
        s_cbranch_vccnz K2_POLL
        s_add_u32 s{sT+3}, s{sT+3}, 4
        s_add_u32 s{sT+5}, s{sT+5}, 4
        ''')
        else: a(f'''
        s_waitcnt vmcnt(0)
        {chk(76)}
        s_cbranch_vccz K2_POLLED
        s_sub_u32 s{sT+2}, s{sT+2}, 1
        s_cbranch_scc1 K2_END
        s_mov_b64 exec, vcc
        buffer_load_dwordx4 v[76:79], v72, {ws}, s{sT+9} offen sc1
        s_mov_b64 exec, -1
        s_branch K2_POLL
        ''')
        a(f'''
        K2_POLLED:
        {f's_sub_u32 s101, 0x100000, s{sT+2}' if PROFS else ''}
        s_set_gpr_idx_on s{sT+3}, gpr_idx(SRC0)
        v_bfe_u32 v{vE}, v76, s{sT+4}, 11
        s_set_gpr_idx_idx s{sT+5}
        v_bfe_u32 v73, v76, s{sT+6}, 11
        s_set_gpr_idx_off
        v_sub_u32 v73, v73, v{vE}
        ''')
        o = Asm(); sv = self.a; self.a = o
        o(f'''
        K2_WINDOW:
        s_mov_b32 s{sRND}, 0
        s_mov_b32 s{sR}, 1
        K2_LOAD:
        v_mbcnt_lo_u32_b32 v{vL}, -1, 0
        v_mbcnt_hi_u32_b32 v{vL}, -1, v{vL}
        s_lshl_b32 s{sT}, s{sW}, 6
        v_add_u32 v{vT_}, s{sT}, v{vL}
        v_lshlrev_b32 v70, 4, v{vL}
        ''')
        self.wload(0, 70)
        self.fill_all(vT_)
        o(f's_cmp_lg_u32 s{sW}, 7\ns_cbranch_scc1 K2_NOH')
        self.counters(vL, False)
        o('K2_NOH:\ns_waitcnt lgkmcnt(0)\ns_barrier\ns_branch K2_CELLS')
        self.a = sv; self.ool(o.text())
        stamp(a, 1)
        a(f'''
        v_cndmask_b32 v73, 0, v73, s[{sEX}:{sEX+1}]
        v_and_b32 v1, 1, v{vT_}
        v_add_u32 v1, s{sJ0}, v1                ; j0 + sub
        v_sub_u32 v{vREM}, v73, v1
        v_add_u32 v{vE}, v{vE}, v1
        v_mul_u32_u24 v{vOFF}, {CSTR}, v{vC}
        v_lshl_add_u32 v{vOFF}, v{vE}, 4, v{vOFF}
        ''')
        MK = [f's[{r}:{r+1}]' for r in (40, 42, 44, 46, 48, 50, 90, 92, 94, 96)]
        def mloop(done, body):
            for i in range(U): a(f's_mov_b64 exec, {MK[i]}\ns_cbranch_execz {done}\n' + body(i))
            a(f'{done}:\ns_mov_b64 exec, -1')
        for i in range(U): a(f'v_cmp_lt_i32 {MK[i]}, {2*i}, v{vREM}')
        ld = lambda i: f'buffer_load_dwordx4 v[{4*i}:{4*i+3}], v{vOFF}, {ws}, 0 offen offset:{32*i} sc1'
        mloop('K2_LD_DONE', ld)
        a(f"""
        s_cmp_eq_u32 s{sFIRST}, 0
        s_cbranch_scc1 K2_NOWRAW
        s_cmp_lg_u32 s{sW}, 7
        s_cbranch_scc1 K2_NOFLG
        v_lshlrev_b32 v72, 4, v{vL}
        s_mov_b32 s{sT+9}, {WS_FLG}
        buffer_load_dwordx4 v[84:87], v72, {ws}, s{sT+9} offen sc1
        K2_NOFLG:
        """)
        self.wraw(vL)
        self.ool(f"""
        K2_FLGCK:
        s_cmp_eq_u32 s{sFIRST}, 0
        s_cbranch_scc1 K2_FLGOK
        K2_FLGW:
        v_xor_b32 v84, s{sTAG}, v84
        v_xor_b32 v85, s{sTAG}, v85
        v_xor_b32 v86, s{sTAG}, v86
        v_xor_b32 v87, s{sTAG}, v87
        v_or3_b32 v84, v84, v85, v86
        v_or_b32 v84, v84, v87
        v_cmp_ne_u32 vcc, 0, v84
        s_and_b32 vcc_hi, vcc_hi, 0x3ffff       ; 200 flags
        s_cmp_eq_u64 vcc, 0
        s_cbranch_scc1 K2_FLGOK
        s_sub_u32 s{sT+2}, s{sT+2}, 1
        s_cbranch_scc1 K2_END
        buffer_load_dwordx4 v[84:87], v72, {ws}, s{sT+9} offen sc1
        s_waitcnt vmcnt(0)
        s_branch K2_FLGW
        """)
        a(f"""
        K2_NOWRAW:
        v_mul_u32_u24 v{vC}, {CH}, v{vC}
        v_add_lshl_u32 v{vE}, v{vE}, v{vC}, 2
        s_mov_b32 s{sT+8}, {WS_RANK}
        v_mov_b32 v{t0+9}, 1
        s_movk_i32 s{sT}, {NSTR//4}
        s_movk_i32 s{sT+1}, {NSTR}
        s_mov_b32 s{sT+2}, 0x100000
        s_mov_b32 s{sT+3}, 0xffff
        v_mov_b32 v{t0+10}, {RECBASE}
        s_cmp_lg_u32 s{sRND}, 0
        s_cbranch_scc1 K2_RK_LOAD
        v_cmp_lt_i32 vcc, {2*U}, v{vREM}
        s_cbranch_vccz K2_NOMORE
        v_mov_b32 v61, {FLAG}
        ds_write_b32 v61, v{t0+9}
        K2_NOMORE:
        s_waitcnt vmcnt(0)
        """)
        stamp(a, 2)
        prep = lambda i: f'v_mad_u32_u24 v{NBs+i}, v{NBs+i}, s{sT}, v{t0+10}\nv_and_b32 v{4*i+3}, 0xffffff, v{4*i+3}'
        def touch(i):
            tp = opt('tp', 8); tx = opt('tx', 0)
            if not tp: return ''
            r = f'\nv_cmpx_gt_u32 vcc, s{sT+4}, v{NBs+i}\nbuffer_load_dword v245, v{4*i+3}, s[{sEA}:{sEA+3}], 0 offen ' + mod('tpm', '')
            if tx:
                if tp != 8: r += f'\nv_cmpx_gt_u32 vcc, s{sT+5}, v{NBs+i}'
                r += f'\nv_mad_u32_u16 v{t0+1}, v{4*i+2}, s{s1024}, 0'
                for c in range(tx): r += f'\nbuffer_load_dword v244, v{t0+1}, s[{sX}:{sX+3}], 0 offen offset:{256*c}'
            return r
        a(f's_mov_b32 s{sT+4}, {RECBASE + opt("tp", 8)*NSTR}\ns_mov_b32 s{sT+5}, {RECBASE + 8*NSTR}')
        def rank(i):
            self.ool(f'K2_RT{i}:\ns_sub_u32 s{sT+2}, s{sT+2}, 1\ns_cbranch_scc1 K2_END\n{ld(i)}\ns_waitcnt vmcnt(0)\ns_branch K2_CK{i}')
            return f"""K2_CK{i}:
            v_bfi_b32 v{t0}, s{sT+3}, v{4*i+1}, v{4*i+2}
            v_lshrrev_b32 v{NBs+i}, 24, v{4*i+3}
            v_cmp_ne_u32 vcc, s{sTAG}, v{t0}
            v_add_u32 v{RK+i}, {HIST}, v{NBs+i}
            s_cbranch_vccnz K2_RT{i}
            ds_add_rtn_u32 v{RK+i}, v{RK+i}, v{t0+9}
            """ + prep(i) + touch(i)
        mloop('K2_RK_A', rank)
        o = Asm(); b = a; a = o
        a(f'K2_RK_LOAD:\ns_waitcnt vmcnt(0)')
        mloop('K2_RK_B', lambda i: f'v_lshrrev_b32 v{NBs+i}, 24, v{4*i+3}\nbuffer_load_dword v{RK+i}, v{vE}, {ws}, s{sT+8} offen offset:{8*i}\n' + prep(i))
        a(f's_mul_i32 s{sT+4}, s{sRND}, 48\ns_waitcnt vmcnt(0)')
        for i in range(U): a(f'v_subrev_u32 v{RK+i}, s{sT+4}, v{RK+i}')
        a('s_branch K2_RK_DONE')
        self.ool(o.text()); a = b
        a(f"""
        s_cmp_eq_u32 s{sW}, 7
        s_cbranch_scc1 K2_FLGCK
        K2_FLGOK:
        K2_RK_DONE:
        s_mul_i32 s{sT+9}, s{sRND}, 48
        s_waitcnt lgkmcnt(0)
        """)
        def scatter(i, rr, base):
            return f"""
            v_lshl_add_u32 v{t0+2}, v{rr}, 5, v{base}
            v_lshl_add_u32 v{t0+3}, v{rr}, 2, v{base}
            v_lshrrev_b32 v{t0+1}, 3, v{rr}
            v_mad_i32_i24 v{t0+4}, v{t0+1}, -16, v{t0+3}
            v_and_b32 v{t0+1}, 1, v{t0+1}
            v_mad_i32_i24 v{t0+4}, v{t0+1}, -14, v{t0+4}
            ds_write_b32 v{t0+2}, v{4*i+3} offset:{OA}
            ds_write_b16 v{t0+3}, v{4*i} offset:{192+2}
            ds_write_b16_d16_hi v{t0+3}, v{4*i} offset:{2*192+2}
            ds_write_b16_d16_hi v{t0+3}, v{4*i+1} offset:{3*192+2}
            ds_write_b16 v{t0+4}, v{4*i+2} offset:{OS}
            """
        for i in range(U):
            a(f's_mov_b64 exec, {MK[i]}\ns_cbranch_execz K2_SC_DONE\nv_cmpx_gt_u32 vcc, 48, v{RK+i}\n' + scatter(i, RK+i, NBs+i))
        d = t0 + 1; k = t0 + 2; e = t0 + 3; p = t0 + 4; x = t0 + 5; pl = t0 + 6
        a(f'''
        K2_SC_DONE:
        s_mov_b64 exec, -1
        v_lshlrev_b32 v{t0}, 2, v{vL}
        v_add_u32 v{t0}, {HIST}, v{t0}
        v_mov_b32 v{t0+8}, {FLAG}
        v_mov_b32 v{pl}, 0
        s_movk_i32 s{sLIM}, 48
        s_waitcnt lgkmcnt(0)
        s_barrier
        ds_read_b32 v{d}, v{t0}
        ds_read_b32 v{t0+8}, v{t0+8}
        v_cmp_gt_u32 s[{sEX}:{sEX+1}], s{sNC}, v{vL}
        v_mad_u32_u24 v{e}, v{vL}, s{sT+1}, v{t0+10}
        v_lshl_or_b32 v{e}, v{vL}, 21, v{e}
        s_waitcnt lgkmcnt(0)
        v_cndmask_b32 v{d}, 0, v{d}, s[{sEX}:{sEX+1}]
        v_readfirstlane_b32 s{sMORE}, v{t0+8}
        v_cmp_lt_u32 vcc, 48, v{d}
        s_cbranch_vccnz K2_BIG
        K2_TOK:
        v_subrev_u32 v{k}, s{sT+9}, v{d}
        v_max_i32 v{k}, 1, v{k}
        v_min_i32 v{k}, s{sLIM}, v{k}
        v_add_u32 v{k}, 15, v{k}
        v_lshrrev_b32 v{k}, 4, v{k}             ; K-steps
        v_lshl_or_b32 v{e}, v{k}, 18, v{e}
        v_or_b32 v{e}, v{e}, v{pl}
        v_mov_b32 v{x}, {NULLBASE | (1 << 18)}
        v_cndmask_b32 v{VTAB}, v{x}, v{e}, s[{sEX}:{sEX+1}]
''')
        o = Asm(); b = a; a = o
        a(f'''
        K2_BIG:
        s_cmp_lg_u32 s{sRND}, 0
        s_cbranch_scc1 K2_TOK
        s_mov_b64 s[{sT+4}:{sT+5}], vcc
        s_bcnt1_i32_b64 s{sT+2}, vcc
        s_cmp_eq_u32 s{sNC}, 39
        s_cselect_b32 s{sT+3}, 5, 2
        s_cmp_gt_u32 s{sT+2}, s{sT+3}
        s_cbranch_scc1 K2_SLOW
        v_cmp_lt_u32 vcc, 64, v{d}
        s_cbranch_vccnz K2_SLOW
        v_mbcnt_lo_u32_b32 v{x}, s{sT+4}, 0
        v_mbcnt_hi_u32_b32 v{x}, s{sT+5}, v{x}
        v_lshlrev_b32 v{pl}, 27, v{x}
        v_cndmask_b32 v{pl}, 0, v{pl}, s[{sT+4}:{sT+5}]
        s_movk_i32 s{sLIM}, 64
        v_cmp_le_u32 vcc, 2, v{x}
        v_mov_b32 v{k}, {POOL}
        v_mov_b32 v{p}, {POOL - NSTR - (2 << 22)}
        v_cndmask_b32 v{k}, v{k}, v{p}, vcc
        v_lshl_add_u32 v{x}, v{x}, 22, v{k}
        v_mov_b32 v{t0+11}, v{d}
        v_mov_b32 v{t0+12}, v{e}
        v_mov_b32 v{t0+13}, v{x}
        s_mov_b32 s{sT+2}, {(1 << 24) // NSTR + 1}
        ''')
        for nd in range(40): assert ((nd*NSTR) * ((1 << 24)//NSTR + 1)) >> 24 == nd
        for i in range(U):
            nx = self.lab('ov')
            a(f'''
            v_cmp_lt_i32 vcc, {2*i}, v{vREM}
            s_cbranch_vccz K2_OV_DONE
            v_subrev_u32 v{t0}, {RECBASE}, v{NBs+i}
            v_mul_hi_u32_u24 v{t0+1}, s{sT+2}, v{t0}
            v_mul_u32_u24 v{t0}, s{sT+2}, v{t0}
            v_alignbit_b32 v{t0}, v{t0+1}, v{t0}, 24
            v_lshlrev_b32 v{t0}, 2, v{t0}
            ds_bpermute_b32 v{t0+7}, v{t0}, v{t0+13}
            v_subrev_u32 v{t0}, 48, v{RK+i}
            v_cmp_gt_u32 s[{sT+4}:{sT+5}], 16, v{t0}
            s_waitcnt lgkmcnt(0)
            s_and_b64 exec, vcc, s[{sT+4}:{sT+5}]
            s_cbranch_execz {nx}
            v_lshrrev_b32 v{t0+1}, 18, v{t0+7}
            v_add_u32 v{t0}, v{t0}, v{t0+1}
            v_and_b32 v{t0+7}, 0x3ffff, v{t0+7}
            {scatter(i, t0, t0+7)}
            {nx}:
            s_mov_b64 exec, -1
            ''')
        a(f'''
        K2_OV_DONE:
        v_mov_b32 v{d}, v{t0+11}
        v_mov_b32 v{e}, v{t0+12}
        s_waitcnt lgkmcnt(0)
        s_barrier
        s_branch K2_TOK
        K2_SLOW:
        v_mov_b32 v{x}, v{d}
        ''')
        scan(a, x, 'v_max_u32')
        for dd in range(48, 512*U + 48): assert (dd * 43691) >> 21 == dd // 48
        a(f'''
        v_readlane_b32 s{sR}, v{x}, 63
        s_add_u32 s{sR}, s{sR}, 47
        s_mul_i32 s{sR}, s{sR}, 43691
        s_lshr_b32 s{sR}, s{sR}, 21
        ''')
        for i in range(U):
            a(f'v_cmp_lt_i32 vcc, {2*i}, v{vREM}\ns_cbranch_vccz K2_SV_DONE\ns_mov_b64 exec, vcc')
            a(f'buffer_store_dword v{RK+i}, v{vE}, {ws}, s{sT+8} offen offset:{8*i}')
        a('K2_SV_DONE:\ns_mov_b64 exec, -1\ns_branch K2_TOK')
        self.ool(o.text()); a = b
        for q in range(4): a(f's_movk_i32 s{sOWN+q}, {q*256}')
        a(f'''
        s_add_u32 s{sRND}, s{sRND}, 1
        s_cmp_ge_u32 s{sRND}, s{sR}
        s_cselect_b32 s{sLAST}, 1, 0
        s_cmp_eq_u32 s{sMORE}, 0
        s_cselect_b32 s{sLAST}, s{sLAST}, 0
        s_mov_b32 s{sJ}, 0
        s_mov_b32 s{sNPH}, 0
        s_mov_b32 s{sNP}, 0
        s_mov_b32 s{sNV}, 1
        s_mov_b32 s{sCP}, 0
        s_mov_b32 s{sT}, s{sW}
        ''')
        lg = LG(a)
        self.emit(self.next_info(0), lg)
        stamp(a, 3)
        pre = self.eread()
        for t in range(4): pre += self.sread(t)
        pre += self.adma()
        for t in range(4): pre += self.gmad(t)
        for t in range(4): pre += self.dma(t, G + 2*t, sNX + t) + (['s_barrier'] if t == opt('fbar', 0) else [])
        pre += [f'v_add_u32 v{VAO}, s{sNBs}, v{VAO}', f'v_add_u32 v{VYO}, s{sNBs}, v{VYO}', 's_waitcnt vmcnt(6)']
        self.emit(pre, lg)
        stamp(a, 4)
        self.emit(([] if self.LATE else self.bread(0)) + self.areads(0) + self.areads(1), lg)
        self.dispatch(0, check=False)
        for ph in range(2):
            for nK in (2, 3): self.unit(nK, ph)
        for ph in range(2):
            for nK in (1, 4): self.unit(nK, ph)
        for ph in range(2):
            a(f'K2_DSP{ph}:\ns_cmp_eq_u32 s{sEX}, 1\ns_cbranch_scc1 K2_U1{ph}\ns_cmp_eq_u32 s{sEX}, 4\ns_cbranch_scc1 K2_U4{ph}\ns_branch {"K2_TAIL" if ph else "K2_SWITCH"}')
        a('K2_SWITCH:')
        stamp(a, 5)
        self.emit(self.fin(3, 0, sPP if opt('dsp', 1) else None), LG(a))
        a(f's_cmp_eq_u32 s{sNV}, 0\ns_cbranch_scc1 K2_TAIL2\nv_lshlrev_b32 v{VT0}, 3, v{VL2}\nv_lshl_add_u32 v{VPA}, v{VL2}, 1, s{sNP}\nv_lshrrev_b32 v{VH16}, 6, v{VL2}\nv_mul_u32_u24 v{VH16}, 126, v{VH16}')
        self.wload(1, VT0)
        for q in range(4): a(f's_movk_i32 s{sOWN+q}, {q*256+128}')
        a(f's_cmp_lg_u32 s{sNK}, 1\ns_cbranch_scc1 K2_SW2\ns_waitcnt vmcnt(0)\nK2_SW2:')
        if not FUSE: stamp(a, 6)
        self.dispatch(1, check=False)
        for t in self.outline: a(t)
        self.tail()
        a('K2_END:\ns_endpgm')
        return a.lines, 256

    def tail(self):
        a = self.a
        ws = f's[{sWS}:{sWS+3}]'
        vP0 = 222; vP1 = 223; vS = 226; vSP = 227; vRow = 228; vL16 = 229
        vQ0 = 232; vSt = 254; vS2 = 255; vS3 = 246; vQ0a = 247; vQ1a = 248; vRow2 = 249
        OP = 176
        pre = f"""v_lshlrev_b32 v{vL16}, 3, v{VL2}
            s_mul_i32 s{sT}, s{sW}, {20*1024}
            s_add_u32 s{sT}, s{sT}, {WS_STAB}
            s_mul_i32 s{sT+1}, s{sW}, {8192+32}"""
        sl = []
        for f in range(20):
            sl.append(f'buffer_load_dwordx4 v[{WR+4*f}:{WR+4*f+3}], v{vL16}, {ws}, s{sT} offen offset:{(f%4)*1024} sc1' + (f'\ns_add_u32 s{sT}, s{sT}, 4096' if f % 4 == 3 and f < 19 else ''))
        NE = opt('ne', 8)
        adr = [f'v_lshl_add_u32 v{vRow}, v{VL2}, 1, s{sT+1}', f'v_lshrrev_b32 v{vS}, 6, v{VL2}', f'v_mul_u32_u24 v{vS}, 126, v{vS}', f'v_sub_u32 v{vS}, v{vRow}, v{vS}']
        a('K2_TAIL2:\n' + pre)
        for x in sl[:NE] + adr: a(x)
        a('s_branch K2_TAIL3\nK2_TAIL:')
        stamp(a, 7)
        a(pre)
        f3 = self.fin(3, 1) + adr; w = []
        for i in range(NE): w += [sl[i]] + f3[2*i:2*i+2]
        self.emit(w + f3[2*NE:], LG(a))
        a(f'K2_TAIL3:\ns_waitcnt vmcnt({NE})')
        dump = []
        for j in range(5):
            for k in range(5): dump.append(f'ds_write_b32 v{vRow}, v{P0+6*j+k} offset:{j*1536 + k*256}')
            dump.append(f'ds_write_b16 v{vS}, v{P0+6*j+5} offset:{j*1536 + 1280}')
        assert RECBASE % 256 == 0 and NSTR % 256 == 96
        calc = f"""
        v_bfe_u32 v48, v{VL2}, 1, 4             ; n & 15
        v_lshrrev_b32 v49, 5, v{VL2}            ; slab
        v_lshrrev_b32 v55, 3, v48
        v_lshlrev_b32 v52, 4, v49               ; slab*16
        v_lshl_add_u32 v54, v55, 2, v48
        v_and_b32 v54, 7, v54                   ; node of the last group in column n
        v_and_b32 v50, 7, v48
        v_mul_u32_u24 v50, {8192+32}, v50
        v_mul_u32_u24 v51, 1536, v55
        v_add_u32 v50, v50, v51                 ; slot of node n
        v_add_u32 v{vP0}, v50, v52
        v_mul_u32_u24 v51, {8192+32}, v54
        v_add_u32 v{vQ0}, v51, v52
        v_lshl_add_u32 v{vQ0a}, v55, 7, v{vQ0}
        v_mul_u32_u24 v53, 192, v48
        v_and_b32 v53, 0xc0, v53
        v_add_u32 v53, v53, v52
        v_mul_u32_u24 v51, {NSTR}, v48
        s_mov_b32 s{sT+2}, {RECBASE}
        v_add3_u32 v{vP1}, v51, v53, s{sT+2}
        v_mul_u32_u24 v51, {NSTR}, v54
        s_mov_b32 s{sT+2}, {RECBASE + 32*NSTR}
        v_add3_u32 v{vP1+2}, v51, v53, s{sT+2}
        v_lshl_add_u32 v{vQ1a}, v55, 7, v{vP1+2}
        s_lshl_b32 s{sT+2}, s{sW}, 5
        v_lshl_add_u32 v49, v49, 3, s{sT+2}
        s_mov_b32 s{sT+2}, {RECBASE}
        v_add3_u32 v{vS2}, v51, v49, s{sT+2}
        v_lshl_add_u32 v{vS3}, v55, 9, v{vS2}
        v_bfe_u32 v53, v48, 2, 1
        v_lshl_add_u32 v49, v53, 4, v49
        v_add_u32 v{vSt}, v50, v49
        s_and_b32 s{sT+6}, s{sLAST}, s{sFIRST}  ; plain single-round case
        """.strip().split('\n')
        rest = sl[NE:]; per = max(2, (len(dump) + len(rest) - 1) // max(1, len(rest)))
        while dump or rest:
            for x in dump[:per] + rest[:1] + calc[:2]: a(x)
            dump = dump[per:]; rest = rest[1:]; calc = calc[2:]
        for x in calc: a(x)
        a('s_waitcnt lgkmcnt(0)')
        late = f"""
        s_bfe_u32 s{sT+2}, s{sW}, 0x10002
        s_lshl_b32 s{sT+2}, s{sT+2}, 4
        s_add_u32 s{sT+1}, s{sT+1}, s{sT+2}
        v_add_u32 v{vRow}, s{sT+1}, v{vL16}
        s_mul_i32 s{sT+2}, s{sW}, {NSTR}
        s_add_u32 s{sT+2}, s{sT+2}, {RECBASE}
        v_add_u32 v{vRow2}, s{sT+2}, v{vL16}
        s_mov_b32 s{sT+5}, 0xbfb8aa3b           ; -log2(e)
        s_add_u32 s{sOWN}, s{sW}, s{sNB}
        s_lshl_b32 s{sOWN}, s{sOWN}, 10
        """.strip().split('\n') + [f's_add_u32 s{sOWN+j}, s{sOWN}, {j*8192}' for j in range(1, 5)]
        stamp(a, 8); a('s_barrier'); stamp(a, 9)
        a(f's_cmp_eq_u32 s{sT+6}, 0\ns_cbranch_scc1 K2_MULTI')
        steps = []
        for g in range(3):
            def ad(ph, row, hh, packed=False):
                o = self.SROW[row]*128 + hh*64
                if g < 2: return (vP1, g*16*NSTR + o) if ph else (vP0, g*3072 + o)
                return ((vQ1a if packed else vP1+2), o) if ph else ((vQ0a if packed else vQ0), 4*1536 + o)
            for ph in range(2):
                for rs in range(2):
                    for hh in range(2): steps.append((16*g, ph*4 + rs*2 + hh) + ad(ph, rs, hh))
            for ph in range(2):
                for path in range(3):
                    for hh in range(2):
                        for j in range(3 if g < 2 else 2):
                            steps.append((16*g + 4 + 4*j, 8 + ph*6 + path*2 + hh) + ad(ph, 2 + 3*j + path, hh, j == 0))
        for path in range(3): assert self.SROW[8 + path] == self.SROW[2 + path] + 1
        NB = 12; D = 10
        def epi(g, part=3):
            c = 16*g; o = OP + 8*(g & 1); s = []; tp = 204 + 4*(g & 1)
            if part & 1:
                for r in range(4): s.append(f'v_mul_f32 v{tp+r}, s{sT+5}, v{c+r}')
                for r in range(4): s.append(f'v_exp_f32 v{tp+r}, v{tp+r}')
                for r in range(4): s.append(f'v_add_f32 v{tp+r}, 1.0, v{tp+r}')
                for r in range(4): s.append(f'v_rcp_f32 v{tp+r}, v{tp+r}')
                s += [f'v_cvt_pk_bf16_f32 v{o}, v{c}, v{c+1}', f'v_cvt_pk_bf16_f32 v{o+1}, v{c+2}, v{c+3}']
            if part & 2:
                for j in range(3 if g < 2 else 2):
                    for r in range(4): s.append(f'v_mul_f32 v{c+4+4*j+r}, v{c+4+4*j+r}, v{tp+r}')
                    s += [f'v_cvt_pk_bf16_f32 v{o+2+2*j}, v{c+4+4*j}, v{c+5+4*j}', f'v_cvt_pk_bf16_f32 v{o+3+2*j}, v{c+6+4*j}, v{c+7+4*j}']
            return s
        def stage(g, part=3):
            o = OP + 8*(g & 1)
            if g < 2: w = [(rt, vSt, g*3072) for rt in range(4)]
            else: w = [(0, vS2, 0), (1, vS3, 0), (2, vS2, 0)]
            return [(f'ds_write_b64 v{r}, v[{o+2*rt}:{o+1+2*rt}] offset:{b + rt*256}', [(f'w{g}', False)]) for rt, r, b in w if part & (2 if rt else 1)]
        def rowread(g):
            if g == 2: return [(f'ds_read_b128 v[200:203], v{vRow2}', [('r2', False)])]
            return [(f'ds_read_b128 v[{192+4*(j&1)}:{195+4*(j&1)}], v{vRow} offset:{j*1536}', [(f'r{g}', False)]) for j in (2*g, 2*g+1)]
        def rowstore(g):
            s = [('wait', f'r{g}')]
            for j in ((2*g, 2*g+1) if g < 2 else (4,)):
                b = 192 + 4*(j & 1) if g < 2 else 200
                s += [f'buffer_store_dwordx4 v[{b}:{b+3}], v{vL16}, s[{sOUT}:{sOUT+3}], s{sOWN+j} offen {mod("outst","sc1")}']
            return s
        def gemm(lg, extra):
            def rd(k):
                c, f, r, o = steps[k]
                b = 48 + 4*(k % NB)
                self.emit([(f'ds_read_b128 v[{b}:{b+3}], v{r} offset:{o}', [(f'k{k}', False)])], lg)
            for k in range(D): rd(k)
            seen = set(); started = set()
            for k in range(len(steps)):
                c, f, r, o = steps[k]
                if k + D < len(steps): rd(k + D)
                vm = None
                if f not in seen: seen.add(f); vm = 19 - f
                kk = min(k + 1, len(steps) - 1) if (opt('w2', 1) and k % 2 == 0) else k
                self.emit([('wait', f'k{kk}', vm)], lg)
                b = 48 + 4*(k % NB)
                cin = f'v[{c}:{c+3}]' if c in started else '0'; started.add(c)
                a(f'v_mfma_f32_16x16x32_bf16 v[{c}:{c+3}], v[{WR+4*f}:{WR+4*f+3}], v[{b}:{b+3}], {cin}')
                self.emit(extra.get(k, []), lg)
        lg = LG(a); extra = {}
        def spread(items, k0, k1):
            for i, x in enumerate(items): extra.setdefault(k0 + i*(k1 - k0 + 1)//len(items), []).append(x)
        spread(late, 2, 8)
        b0 = opt('b0', 46); e0 = opt('e0', 64); b1 = opt('b1', 90); r0 = opt('r0', 98); e1 = opt('e1', 108)
        spread(epi(0, 1), 12, 40)
        if not opt('nob0', 0): extra.setdefault(b0, []).append('s_barrier')
        spread(epi(0, 2), 44 + 3, e0)
        extra.setdefault(e0 + 1, []).extend(stage(0))
        spread(epi(1, 1), e0 + 2, 86)
        extra.setdefault(b1, []).extend([('wait', 'w0')] + ([] if opt('nob1', 0) else ['s_barrier']) + rowread(0))
        spread(epi(1, 2), 88 + 3, e1)
        extra.setdefault(r0, []).extend(rowstore(0))
        extra.setdefault(e1 + 1, []).extend(stage(1))
        spread(epi(2, 1), max(e1 - 8, 100), 117)
        extra.setdefault(118, []).extend(stage(2, 1))
        if opt('gp', 1):
            for k0, k1 in ((-1, b0), (b0, b1), (b1, len(steps))):
                fr = [float(x) for x in opt('gpf', '0.3_0.6_0.87').split('_')]
                if k0 >= 0: extra.setdefault(k0, []).append('s_setprio 3')
                for i, f in enumerate(fr): extra.setdefault(k0 + int((k1 - k0)*f), []).append(f's_setprio {2-i}')
            a('s_setprio 3')
        if PROFT:
            for i, k in enumerate((0, 8, 43, 66, 87, 104)): extra.setdefault(k, []).append(f'{"s_memtime" if opt("cyc", False) else "s_memrealtime"} s[{78+2*i}:{79+2*i}]')
        if opt('noepi', 0): extra = {k: [x for x in v if not (isinstance(x, str) and x.startswith(('v_cvt', 'v_exp', 'v_rcp', 'v_mul_f32', 'v_add_f32')[:opt('noepi', 0)]))] for k, v in extra.items()}
        gemm(lg, extra)
        stamp(a, 10)
        self.emit(epi(2, 2) + stage(2, 2) + [('wait', 'w2'), 's_barrier'] + rowread(1) + rowread(2) + rowstore(1), lg)
        a(f'K2_LASTROW:\ns_add_u32 s{sT+1}, s{sW}, 32\ns_cmp_ge_u32 s{sT+1}, s{sNC}\ns_cbranch_scc1 K2_FIN\ns_waitcnt lgkmcnt(0)')
        self.emit(rowstore(2), LG(a))
        a('K2_FIN:')
        if PROF:
            stamp(a, 11); a('s_waitcnt vmcnt(0)'); stamp(a, 12); stamp_out(a, 13, 1, sW, sB, sWS)
        a('s_branch K2_END')
        a('K2_MULTI:')
        lg = LG(a)
        gemm(lg, {})
        a(f"""
        s_lshl_b32 s{sT+2}, s{sB}, 9
        s_lshl_b32 s{sT+3}, s{sW}, 6
        s_add_u32 s{sT+2}, s{sT+2}, s{sT+3}
        s_mul_i32 s{sT+2}, s{sT+2}, 192
        s_add_u32 s{sT+2}, s{sT+2}, {WS_ACC}
        v_mul_u32_u24 v{vSP}, 96, v{VL2}        ; lane*192
        s_cmp_lg_u32 s{sFIRST}, 0
        s_cbranch_scc1 K2_NOACC
        """)
        for i in range(11): a(f'buffer_load_dwordx4 v[{48+4*i}:{51+4*i}], v{vSP}, {ws}, s{sT+2} offen offset:{16*i}')
        a('s_waitcnt vmcnt(0)')
        for i in range(44): a(f'v_add_f32 v{i}, v{i}, v{48+i}')
        a(f'K2_NOACC:\ns_barrier\ns_cmp_eq_u32 s{sLAST}, 0\ns_cbranch_scc1 K2_SPILL')
        self.emit(late, lg)
        for g in range(2):
            self.emit(epi(g) + stage(g) + [('wait', f'w{g}'), 's_barrier'] + rowread(g) + rowstore(g), lg)
        self.emit(epi(2) + stage(2) + [('wait', 'w2'), 's_barrier'] + rowread(2), lg)
        a('s_branch K2_LASTROW\nK2_SPILL:')
        for i in range(11): a(f'buffer_store_dwordx4 v[{4*i}:{4*i+3}], v{vSP}, {ws}, s{sT+2} offen offset:{16*i}')
        a(f"""
        s_mov_b32 s{sFIRST}, 0
        s_waitcnt vmcnt(0)
        s_cmp_lt_u32 s{sRND}, s{sR}
        s_cbranch_scc1 K2_LOAD
        s_add_u32 s{sJ0}, s{sJ0}, {2*U}
        s_branch K2_WINDOW
        """)

HEADER = '''; Kernarg layout for this problem (96 bytes, ptrs only, base s[0:1]):
'''
def kd(name, vgpr):
    return f'''.amdhsa_kernel {name}
  .amdhsa_next_free_vgpr {vgpr}
  .amdhsa_next_free_sgpr {102}
  .amdhsa_accum_offset {(vgpr+3)//4*4}
  .amdhsa_group_segment_fixed_size 0
  .amdhsa_kernarg_size 96
  .amdhsa_user_sgpr_count 2
  .amdhsa_user_sgpr_kernarg_segment_ptr 1
  .amdhsa_system_sgpr_workgroup_id_x 1
  .amdhsa_float_denorm_mode_32 3
.end_amdhsa_kernel
'''
def main():
    ks = []
    l2, v2 = K2().gen(); ks.append((NAME + '_kernel', fix_hazards(l2), v2))
    s = HEADER
    s += f'; @launch grid=(256,1,1) block=(512,1,1) lds={K2_LDS}\n'
    s += '.amdgcn_target "amdgcn-amd-amdhsa--gfx950"\n.text\n'
    for name, l, v in ks:
        s += f'.globl {name}\n.p2align 8\n.type {name},@function\n{name}:\n'
        s += '\n'.join((x if x.endswith(':') else '    ' + x) for x in l) + '\n'
    s += '.section .rodata,"a"\n' + ''.join('.p2align 6\n' + kd(name, v) for name, l, v in ks)
    out = sys.argv[1] if len(sys.argv) > 1 else f'/code/{NAME}.s'
    open(out, 'w').write(s)
    print('wrote', out, len(s), 'bytes')
main()
```

```python
import sys, os
sys.path.insert(0, os.path.dirname(os.path.abspath(__file__)))
from asmlib import Asm, fix_hazards

NAME = 'standalone__tensor_product_equiv_equiformer__graph'
N = 10000; E = 320000
NCH = 250; CH = E // NCH
CSTR = CH * 16 + 128
TSTR = 1024 + 128
WS_REC = 0
WS_TBL = 0x0600000
WS_STAB = 0x06A0000
WS_WTAB = 0x06C8000
WS_FLG = 0x06D8000
WS_RANK = 0x0700000
WS_PROF = 0x0900000
WS_ACC = 0x0A00000
WS_SIZE = 0x2400000
assert NCH * CSTR <= WS_TBL and WS_TBL + NCH * TSTR <= WS_STAB and WS_ACC + 256*512*192 <= WS_SIZE
BMUL = 429497
for d in range(N): assert ((d * BMUL) & 0xffffffff) >> 24 == (d * 16) // 625

OPT = dict(a.split('=') for a in sys.argv[2:]) if len(sys.argv) > 2 else {}
def opt(k, d): return type(d)(OPT.get(k, d)) if not isinstance(d, bool) else bool(int(OPT.get(k, d)))
def mod(k, d): return opt(k, d).replace('_', ' ')

PROF = opt('prof', False)
FUSE = True
SEG = opt('seg', False)
def seg(i): return [f's_memtime s[{76+2*i}:{77+2*i}]'] if SEG else []
PROFS = opt('profs', False)
def sstamp(a, i):
    if PROFS: a(f's_memrealtime s[{76+2*i}:{77+2*i}]')
PROFT = opt('proft', False)
def stamp(a, i, t=False):
    if PROFT and 1 <= i <= 6 and not t: return
    if PROFS and (i >= 7 or (i == 1 and opt('diag', 0))): return
    if PROF and not SEG: a(f'{"s_memtime" if opt("cyc", False) else "s_memrealtime"} s[{76+2*i}:{77+2*i}]')
def stamp_out(a, n, kern, swave, swg, srd_s):
    if not PROF: return
    if opt('dbgout', -1) >= 0:
        l = f'DBG_{kern}'
        a(f's_cmp_lg_u32 s{swg}, {opt("dbgout", -1)}\ns_cbranch_scc1 {l}\ns_cmp_lg_u32 s{swave}, 0\ns_cbranch_scc1 {l}')
        a(f's_load_dwordx2 s[58:59], s[0:1], 80\ns_waitcnt lgkmcnt(0)\ns_add_u32 s58, s58, {512*(1-kern)*opt("dbgk1", 0)}\ns_addc_u32 s59, s59, 0')
        srd(a, 60, 58, 256)
        a('s_mov_b64 exec, 1\nv_mov_b32 v1, 0')
        for i, o in ([(0, 0), (5, 14), (2, 15)] if kern == 0 else [(i, 1+i) for i in range(13)]):
            a(f'v_mov_b32 v2, s{76+2*i}\nbuffer_store_dword v2, v1, s[60:63], 0 offen offset:{4*o}')
        a(f's_mov_b64 exec, -1\n{l}:')
        return
    a('s_waitcnt lgkmcnt(0)')
    a(f's_lshl_b32 s67, s{swg}, 4\ns_add_u32 s67, s67, s{swave}\ns_lshl_b32 s67, s67, 6\ns_add_u32 s67, s67, {WS_PROF + kern*256*16*64}')
    a('s_mov_b64 exec, 1\nv_mov_b32 v1, 0')
    for i in range(n):
        a(f'v_mov_b32 v2, s{76+2*i if not SEG else 96+min(i,5)}\nbuffer_store_dword v2, v1, s[{srd_s}:{srd_s+3}], s67 offen offset:{4*i}')
    a('s_mov_b64 exec, -1')

def srd(a, s, ptr, nbytes):
    a(f's_mov_b32 s{s}, s{ptr}\ns_and_b32 s{s+1}, s{ptr+1}, 0xffff\ns_mov_b32 s{s+2}, {nbytes}\ns_mov_b32 s{s+3}, 0x20000')

def scan(a, v, op='v_add_u32'):
    for sh in (1, 2, 4, 8):
        a(f'{op}_dpp v{v}, v{v}, v{v} row_shr:{sh} row_mask:0xf bank_mask:0xf bound_ctrl:0')
    a(f'{op}_dpp v{v}, v{v}, v{v} row_bcast:15 row_mask:0xa bank_mask:0xf')
    a(f'{op}_dpp v{v}, v{v}, v{v} row_bcast:31 row_mask:0xc bank_mask:0xf')

K1_T = CH // 4
K1_LDS = 2048 + CH * 16
def weight_loads(a):
    a(f'''
    v_and_b32 v1, 15, v8
    v_lshrrev_b32 v3, 4, v8
    s_cmp_ge_u32 s2, 160
    s_cbranch_scc1 K1_WT
    s_cmp_ge_u32 s2, 64
    s_cbranch_scc1 K1_S1
    s_lshr_b32 s24, s2, 3
    s_and_b32 s25, s2, 7
    s_lshr_b32 s26, s25, 2
    s_bfe_u32 s27, s25, 0x10001
    s_and_b32 s28, s25, 1
    ''')
    srd(a, 60, 92, 256*128*2)
    a(f'''
    s_branch K1_SC
    K1_S1:
    ; S1: g2 = g-64; w = g2/12, f2 = g2%12 : ph = f2/6, path = (f2%6)>>1, hh = f2&1
    s_sub_u32 s29, s2, 64
    s_mul_i32 s24, s29, 43
    s_lshr_b32 s24, s24, 9
    s_mul_i32 s25, s24, 12
    s_sub_u32 s25, s29, s25
    s_cmp_ge_u32 s25, 6
    s_cselect_b32 s26, 1, 0
    s_mul_i32 s27, s26, 6
    s_sub_u32 s27, s25, s27
    s_lshr_b32 s27, s27, 1
    s_and_b32 s28, s25, 1
    s_add_u32 s25, s25, 8
    ''')
    for g2 in range(96): assert (g2*43) >> 9 == g2 // 12
    srd(a, 60, 94, 384*128*2)
    a(f'''
    K1_SC:
    s_lshl_b32 s27, s27, 7
    s_lshl_b32 s26, s26, 6
    s_lshl_b32 s28, s28, 4
    s_add_u32 s27, s27, s26
    s_add_u32 s27, s27, s28
    s_lshl_b32 s27, s27, 8
    s_lshl_b32 s26, s24, 5
    s_add_u32 s27, s27, s26
    s_add_u32 s29, s27, 8192
    v_lshlrev_b32 v3, 10, v3
    v_lshl_add_u32 v3, v1, 1, v3
    ''')
    for e in range(8): a(f'buffer_load_ushort v{64+e}, v3, s[60:63], s{29 if e & 1 else 27} offen offset:{(e >> 1)*256}')
    a(f'''
    s_mul_i32 s24, s24, 20
    s_add_u32 s24, s24, s25
    s_lshl_b32 s24, s24, 10
    s_add_u32 s24, s24, {WS_STAB}
    s_branch K1_GO
    K1_WT:
    ; W (fp32): g3 = g-160; ph = g3/20, i = g3%20 : p = i>>2, u = (i>>1)&1, rq = i&1
    s_sub_u32 s24, s2, 160
    s_cmp_ge_u32 s24, 20
    s_cselect_b32 s26, 1, 0
    s_mul_i32 s25, s26, 20
    s_sub_u32 s25, s24, s25
    s_lshr_b32 s27, s25, 2
    s_bfe_u32 s28, s25, 0x10001
    s_and_b32 s25, s25, 1
    s_mul_i32 s25, s25, {8*1280}
    s_lshl_b32 s27, s27, 8
    s_lshl_b32 s26, s26, 7
    s_lshl_b32 s28, s28, 6
    s_add_u32 s27, s27, s26
    s_add_u32 s27, s27, s28
    s_add_u32 s27, s27, s25
    ''')
    srd(a, 60, 90, 16*640*2)
    a(f'''
    v_and_b32 v1, 31, v8
    v_lshrrev_b32 v3, 5, v8
    v_mul_u32_u24 v3, {4*1280}, v3
    v_lshl_add_u32 v3, v1, 1, v3
    v_mov_b32 v64, 0
    v_mov_b32 v66, 0
    v_mov_b32 v68, 0
    v_mov_b32 v70, 0
    ''')
    for r in range(4): a(f'buffer_load_ushort v{65+2*r}, v3, s[60:63], s27 offen offset:{r*1280}')
    a(f'''
    s_lshl_b32 s24, s24, 10
    s_add_u32 s24, s24, {WS_WTAB}
    ''')

def sort_rank(a):
    for j in range(4):
        a(f'v_mul_u32_u24 v{28+j}, s58, v{12+j}\nv_lshrrev_b32 v{32+j}, 27, v{28+j}\nv_bfe_u32 v{36+j}, v{28+j}, 24, 3\nv_lshlrev_b32 v{32+j}, 2, v{32+j}')
        a(f'v_lshl_or_b32 v{32+j}, v{36+j}, 7, v{32+j}\nds_add_rtn_u32 v{36+j}, v{32+j}, v7')
    for j in range(4):
        a(f'v_lshrrev_b32 v{28+j}, 24, v{28+j}\nv_mad_u32_u24 v{28+j}, v{28+j}, s59, 15\nv_lshrrev_b32 v{28+j}, 4, v{28+j}\nv_sub_u32 v{28+j}, v{12+j}, v{28+j}')
        a(f'v_add_u32 v{12+j}, {32*j}, v3\nv_lshl_or_b32 v{28+j}, v{28+j}, 26, v{12+j}')
    a(f'''
    v_mov_b32 v59, {NONCE}
    s_mul_i32 s65, s2, {TSTR}
    s_add_u32 s65, s65, {WS_TBL}
    s_mul_i32 s64, s2, {CSTR}
    s_waitcnt lgkmcnt(0)
    s_barrier
    ''')
    sstamp(a, 9)
    a(f'''
    ds_read_b128 v[40:43], v9
    ds_read_b32 v59, v59
    s_waitcnt lgkmcnt(1)
    v_add_u32 v45, v40, v41
    v_add_u32 v46, v45, v42
    v_add_u32 v47, v46, v43
    v_mov_b32 v58, v47
    ''')
    scan(a, 58)
    a(f'''
    v_sub_u32 v48, v58, v47                 ; exclusive
    v_add_u32 v49, v48, v40
    v_add_u32 v50, v48, v45
    v_add_u32 v51, v48, v46
    ds_write_b128 v9, v[48:51] offset:1024
    s_waitcnt vmcnt(0) lgkmcnt(1)
    s_cmp_lg_u32 s{sW}, 4
    s_cbranch_scc1 KS_NOPUB
    v_lshl_or_b32 v56, v49, 11, v48
    v_lshl_or_b32 v57, v51, 11, v50
    v_lshl_or_b32 v56, v59, 22, v56
    v_lshl_or_b32 v57, v59, 22, v57
    buffer_store_dwordx4 v[56:59], v9, s[{sWS}:{sWS+3}], s65 offen sc1
    KS_NOPUB:
''')
    sstamp(a, 10)

def sort_emit(a, st):
    a('v_and_b32 v60, 0xffff, v59\nv_and_b32 v61, 0xffff0000, v59\ns_mov_b32 s58, 0xffff0000')
    for j in range(4):
        b = 20 + 3*(j >> 1)
        if j & 1: a(f'v_alignbit_b32 v{40+4*j}, v{b+2}, v{b+1}, 16\nv_and_or_b32 v{41+4*j}, v{b+2}, s58, v60')
        else: a(f'v_mov_b32 v{40+4*j}, v{b}\nv_lshl_or_b32 v{41+4*j}, v{b+1}, 16, v60')
        a(f'v_or_b32 v{42+4*j}, v61, v{16+j}\nv_mov_b32 v{43+4*j}, v{28+j}')
    a('s_waitcnt lgkmcnt(0)')
    for j in range(4):
        a(f'v_add_lshl_u32 v{32+j}, v{32+j}, v{36+j}, 4\nds_write_b128 v{32+j}, v[{40+4*j}:{43+4*j}] offset:2048')
    a(f's_waitcnt lgkmcnt(0)\ns_barrier')
    sstamp(a, 11)
    for i in range(4): a(f'ds_read_b128 v[{12+4*i}:{15+4*i}], v5 offset:{2048 + i*K1_T*16}')
    for i in range(4):
        a(f's_waitcnt lgkmcnt({3-i})')
        a(f'buffer_store_dwordx4 v[{12+4*i}:{15+4*i}], v5, s[8:11], s64 offen {st}')
        if i < 3: a(f's_add_u32 s64, s64, {K1_T*16}')

NSTR = 2400
OY = 0; OS = 768; OA = 864
RECBASE = 65536
POOL = RECBASE + 40 * NSTR
MISC = POOL + OA + 1024
HIST = MISC; PROG = MISC + 192; CNT = MISC + 224; FLAG = MISC + 228; NULLSRC = MISC + 256; SCR = MISC + 288; NONCE = MISC + 304
NULLBASE = NULLSRC - OS
K2_LDS = 163840
U = 10
ACC = 0; AR = 64; WR = 96; BR = 176; P0 = 192; G = 222
VEO = 230; VH16 = 231; T2 = 232; T3 = 233; PW = 234
VB0 = 246; VB1 = 247; VLG = 248; VAO = 249; VYO = 250; VSO = 251; VL2 = 252; VTAB = 253; VT0 = 254; VT1 = 255; VPA = VEO
sX = 4; sWS = 8; sOUT = 12; sEA = 16
sW = 20; sNB = 21; sNC = 22; sJ0 = 23; sRND = 24; sR = 25; sLIM = 26; sMORE = 27; sFIRST = 28
sCB = 29; sC4 = 30; sCP = 31; sNBs = 48; sNK = 33; sNPH = 34; sNP = 35; sNV = 36
sRING = 37; sJ = 38; s1024 = 39; sOWN = 40; sNX = 44; sSO = 48; sPROGW = 52; sPROG = 53; sB = 54; sLAST = 55
sEX = 56
sT = 58
sM0 = 68
sX2 = 72
sPP = 32
sN4 = 3
sTAG = 2

TILES = {0: [(0,0), (1,0), (0,1), (1,1)], 1: [(0,0), (0,1), (1,1), (1,0)], 2: [(0,0), (1,0), (1,1), (0,1)], 3: [(0,0), (0,1), (1,0), (1,1)]}[opt('tord', 0)]
def tile(t, u): return ACC + 16 * TILES.index((t, u))
def Wreg(p, u): return WR + p*16 + u*8

def weave(x, y):
    o = []
    for i in range(max(len(x), len(y))):
        o += x[i:i+1] + y[i:i+1]
    return o

class LG:
    def __init__(self, a, q=()): self.a = a; self.q = list(q)
    def issue(self, tag, optional=False): self.q.append((tag, optional))
    def waitline(self, tag):
        idx = [i for i, (t, o) in enumerate(self.q) if t == tag]
        if not idx: return None
        y = sum(1 for (t, o) in self.q[idx[-1]+1:] if not o)
        self.q = self.q[idx[-1]+1:]
        return f's_waitcnt lgkmcnt({min(y, 15)})'

class K2:
    def __init__(self):
        self.a = Asm()
        self.uid = 0
        self.outline = []
    def lab(self, s):
        self.uid += 1
        return f'K2_{s}_{self.uid}'

    def dma(self, slot, greg, soff):
        return [f's_mov_b32 m0, s{sM0+slot}',
                f'buffer_load_dwordx4 v{greg}, s[{sX}:{sX+3}], s{soff} offen lds',
                f'buffer_load_dwordx4 v{greg+1}, s[{sX2}:{sX2+3}], s{soff} offen offset:1024 lds']
    def bread(self, item):
        out = []
        for u in range(2):
            for r in range(2):
                d = BR + (item & 1)*8 + u*4 + r*2
                out.append((f'ds_read_b64_tr_b16 v[{d}:{d+1}], v{VB0+u} offset:{(item & 3)*2048 + r*512}', [('B' if u == 0 or not opt('split', 0) else 'B1', False)]))
        return out
    def sread(self, t):
        return [f'v_add_u32 v{G+2*t}, s{sSO+t}, v{VSO}', (f'ds_read_b32 v{G+2*t}, v{G+2*t}', [(f'S{t}', False)])]
    def gmad(self, t):
        return [('wait', f'S{t}'),
                f'v_mad_u32_u16 v{G+2*t+1}, v{G+2*t}, s{s1024}, v{VLG} op_sel:[1,0,0,0]',
                f'v_mad_u32_u16 v{G+2*t}, v{G+2*t}, s{s1024}, v{VLG}']
    def ool(self, text): self.outline.append(text)
    def atomic(self):
        return [f'v_mov_b32 v{VT0}, {CNT}', f'v_mov_b32 v{VT1}, 1', f'v_lshl_add_u32 v{T3}, v{VL2}, 1, s{sPROG}',
                (f's_mov_b64 exec, 1\nds_add_rtn_u32 v{T2}, v{VT0}, v{VT1}\ns_mov_b64 exec, -1', [('C', False)]),
                (f'ds_read_b32 v{T3}, v{T3}', [('C', False)])]
    def claimed(self):
        nul = self.lab('nul'); spin = self.lab('spin'); chk = self.lab('chk'); back = self.lab('back')
        self.ool(f'{nul}:\ns_mov_b32 s{sT}, 63\ns_mov_b32 s{sNV}, 0\ns_branch {back}')
        self.ool(f'{spin}:\nv_lshl_add_u32 v{T3}, v{VL2}, 1, s{sPROG}\nds_read_b32 v{T3}, v{T3}\ns_waitcnt lgkmcnt(0)\ns_branch {chk}')
        return [f'v_readfirstlane_b32 s{sT}, v{T2}',
                f"""s_cmp_lt_u32 s{sT}, s{sNC}
                s_cbranch_scc0 {nul}
                s_and_b32 s{sT+1}, s{sT}, 7
                s_lshr_b32 s{sT+2}, s{sT}, 3
                {chk}:
                v_readlane_b32 s{sT+3}, v{T3}, s{sT+1}
                s_nop 0
                s_cmp_gt_u32 s{sT+3}, s{sT+2}
                s_cbranch_scc0 {spin}
                {back}:"""]
    def claim0(self):
        dyn = self.lab('dyn'); back = self.lab('back')
        o = [x if isinstance(x, str) else x[0] for x in self.atomic()] + ['s_waitcnt lgkmcnt(0)'] + self.claimed()
        self.ool(f'{dyn}:\n' + '\n'.join(o) + f'\ns_mov_b32 s{sNPH}, 1\ns_branch {back}')
        return [f's_add_u32 s{sJ}, s{sJ}, 1', f'v_mov_b32 v{VT0}, s{sPROGW}', f'v_mov_b32 v{VT1}, s{sJ}',
                f's_lshl_b32 s{sT}, s{sJ}, 3', f's_add_u32 s{sT}, s{sT}, s{sW}',
                (f's_mov_b64 exec, 1\nds_write_b32 v{VT0}, v{VT1}\ns_mov_b64 exec, -1', [('W', False)]),
                f's_cmp_lt_u32 s{sT}, s{sNC}\ns_cbranch_scc0 {dyn}\n{back}:']
    def pooladdr(self, d, word, stride):
        return f"""s_lshr_b32 s{d}, s{word}, 27
            s_mov_b32 s{sT+8}, {POOL}
            s_cmp_ge_u32 s{d}, 2
            s_cselect_b32 s{sT+8}, {POOL - NSTR - 2*stride}, s{sT+8}
            s_mul_i32 s{d}, s{d}, {stride}
            s_add_u32 s{d}, s{d}, s{sT+8}"""
    def next_info(self, ph):
        rare = self.lab('rare'); back = self.lab('back'); four = self.lab('four')
        self.ool(f"""{rare}:
            s_cmp_eq_u32 s{sNK}, 4
            s_cbranch_scc1 {four}
            s_mov_b32 s{sSO+1}, s{sNBs}
            s_mov_b32 s{sSO+3}, s{sNBs}
            s_add_u32 s{sNX+1}, s{sNX}, 256
            s_add_u32 s{sNX+2}, s{sNX}, 512
            s_add_u32 s{sNX+3}, s{sNX}, 768
            s_branch {back}
            {four}:
            s_add_u32 s{sSO+2}, s{sNBs}, 64
            {self.pooladdr(sSO+3, sN4, 32)}
            s_mov_b32 s{sNX+2}, s{sNX}
            s_mov_b32 s{sNX+3}, s{sNX}
            s_branch {back}""")
        o = [f'v_readlane_b32 s{sN4}, v{VTAB}, s{sT}', f's_lshl_b32 s{sNX}, s{sNPH}, 7', f's_lshl_b32 s{sT+2}, s{sT}, 5',
             f's_and_b32 s{sNBs}, s{sN4}, 0x3ffff', f's_bfe_u32 s{sNK}, s{sN4}, 0x30012',
             f's_sub_u32 s{sT+2}, s{sT+2}, s{sNBs}', f's_and_b32 s{sT+2}, s{sT+2}, 0xff']
        if ph == 1: o += [f's_add_u32 s{sNP}, s{sT+2}, s{sNBs}']
        else: o += [f's_add_u32 s{sT+2}, s{sT+2}, s{sNBs}', f's_mul_i32 s{sNP}, s{sJ}, 6', f's_cmp_eq_u32 s{sNPH}, 0\ns_cselect_b32 s{sNP}, s{sNP}, s{sT+2}']
        o += [f's_mov_b32 s{sNX+1}, s{sNX}', f's_add_u32 s{sNX+3}, s{sNX}, 256', f's_add_u32 s{sSO+1}, s{sNBs}, 32', f's_add_u32 s{sT+2}, s{sNBs}, 64',
              f's_cmp_eq_u32 s{sNK}, 3\ns_cselect_b32 s{sNX+2}, s{sNX}, s{sNX+3}\ns_cselect_b32 s{sSO+2}, s{sT+2}, s{sNBs}\ns_cselect_b32 s{sSO+3}, s{sNBs}, s{sSO+1}',
              f's_sub_u32 s{sT+2}, s{sNK}, 2\ns_cmp_lt_u32 s{sT+2}, 2\ns_cbranch_scc0 {rare}\n{back}:']
        return o
    def eread(self):
        return [f'v_add_u32 v{T3}, s{sNBs}, v{VEO}',
                (f'ds_read_b32 v{T2}, v{T3}', [('E', False)]), (f'ds_read_b32 v{T3}, v{T3} offset:1024', [('E', False)])]
    NEXTRA = 2
    def adma(self):
        dum = self.lab('dum'); four = self.lab('a4'); back = self.lab('back'); b4 = self.lab('b4')
        ea = f's[{sEA}:{sEA+3}]'; m = mod('eald', '')
        self.ool(f'{dum}:\nv_mov_b32 v{T2}, -1\ns_mov_b32 m0, {SCR}\ns_mov_b64 exec, 1\n' + f'buffer_load_dwordx4 v{T2}, {ea}, 0 offen lds\n'*2 + f's_mov_b64 exec, -1\ns_branch {back}')
        self.ool(f"""{four}:
            {self.pooladdr(sT+7, sN4, 512)}
            v_add_u32 v{T2}, s{sT+7}, v{VEO}
            ds_read_b32 v{T2}, v{T2}
            s_add_u32 m0, s{sT+7}, {OA}
            s_waitcnt lgkmcnt(0)
            v_or_b32 v{T2}, v{T2}, v{VH16}
            buffer_load_dwordx4 v{T2}, {ea}, 0 offen {m} lds
            s_branch {b4}""")
        return [('wait', 'E'), f'v_or_b32 v{T2}, v{T2}, v{VH16}', f'v_or_b32 v{T3}, v{T3}, v{VH16}', f"""
        s_cmp_lg_u32 s{sNPH}, 0
        s_cbranch_scc1 {dum}
        s_add_u32 m0, s{sNBs}, {OA}
        s_add_u32 s{sT+7}, s{sNBs}, {OA+1024}
        buffer_load_dwordx4 v{T2}, {ea}, 0 offen {m} lds
        s_mov_b32 m0, s{sT+7}
        s_mov_b32 exec_hi, 0
        buffer_load_dwordx4 v{T3}, {ea}, 0 offen {m} lds
        s_cmp_eq_u32 s{sNK}, 4
        s_cbranch_scc1 {four}
        {b4}:
        s_mov_b32 exec_hi, -1
        {back}:"""]
    def areads(self, s):
        b = ACC + (s & 1) * 20
        va, vy, oa, oy, o = VAO, VYO, s*512, s*64, []
        if s == 3:
            va, vy, oa, oy = ACC + 56, ACC + 57, 0, 0
            o = [self.pooladdr(sT+7, sC4, 512) + f'\ns_sub_u32 s{sT+7}, s{sT+7}, s{sCB}\nv_add_u32 v{va}, s{sT+7}, v{VAO}',
                 self.pooladdr(sT+7, sC4, 64) + f'\ns_sub_u32 s{sT+7}, s{sT+7}, s{sCB}\nv_add_u32 v{vy}, s{sT+7}, v{VYO}']
        o += [(f'ds_read_b64_tr_b16 v[{b}:{b+1}], v{va} offset:{oa}', [(f'a{s}', False)]),
              (f'ds_read_b64_tr_b16 v[{b+2}:{b+3}], v{va} offset:{oa+128}', [(f'a{s}', False)])]
        for t in range(2):
            for hh in range(2):
                d = b + 4 + t*8 + hh*4
                o.append((f'ds_read_b128 v[{d}:{d+3}], v{vy} offset:{oy + t*384 + hh*16}', [(f'y{s}{t}', False)]))
        return o
    def abuild(self, nK):
        o = []
        for s in range(nK):
            b = ACC + (s & 1) * 20; un = ACC + 40 + (s & 1) * 8
            o.append(('wait', f'y{s}1' if (opt('mw', 1) and s < 2) else f'a{s}'))
            for i in range(4):
                o += [f'v_lshlrev_b32 v{un+2*i}, 16, v{b+i}', f'v_and_b32 v{un+1+2*i}, 0xffff0000, v{b+i}']
            for t in range(2):
                o.append(('wait', f'y{s}{t}'))
                for e in range(8): o.append(f'v_mul_f32 v{b+4+t*8+e}, v{un+e}, v{b+4+t*8+e}')
                for i in range(4): o.append(f'v_cvt_pk_bf16_f32 v{AR+s*8+t*4+i}, v{b+4+t*8+2*i}, v{b+5+t*8+2*i}')
            if s + 2 < nK: o += self.areads(s + 2)
        return o
    R = dict(A=PW, B=PW+2, C=PW+4, D=PW+6, E=PW+8, F=PW+10)
    CH_ = {0: [(0,'A','new'),(2,'B','new'),(2,'C','new'),(2,'D','new')],
           1: [(3,'A','new'),(1,'B','new'),(4,'C','new'),(4,'D','new')],
           2: [(3,'E','new'),(4,'C','neg'),(1,'B','acc'),(4,'F','new')],
           3: [(3,'E','new'),(4,'D','neg'),(4,'F','neg'),(1,'B','acc')]}
    def F(self, q, k):
        t, u = TILES[k]; o = []
        for r in range(8):
            for b in (2*t, 2*t+1):
                p, d, mode = self.CH_[q][b]
                T = tile(t, u) + (b & 1)*8 + r; W = Wreg(p, u) + r; D = self.R[d] + u
                if r == 0 and mode == 'new': o.append(f'v_mul_f32 v{D}, v{T}, v{W}')
                elif r == 0 and mode == 'neg': o.append(f'v_fma_f32 v{D}, v{T}, v{W}, -v{D}')
                else: o.append(f'v_fmac_f32 v{D}, v{T}, v{W}')
        return o
    SROW = {0: 0, 2: 1, 8: 2, 5: 3, 6: 4, 3: 5, 9: 6, 1: 7, 4: 8, 10: 9, 7: 10}
    def fin(self, q, ph, sp=None):
        sp = sCP if sp is None else sp
        R = self.R
        pairs = {0: [(0, 'A', 'B'), (1, 'D', 'C')], 1: [], 2: [(2, 'E', 'A')], 3: [(3, 'E', 'B'), (4, 'F', 'C')]}[q]
        o = []
        for (slot, x, y) in pairs: o += [f'v_permlane32_swap_b32 v{R[x]+u}, v{R[y]+u}' for u in range(2)]
        if q == 3: o.append(f'v_permlane32_swap_b32 v{R["D"]}, v{R["D"]+1}')
        if ph == 1 and q == 0: o.append(f'v_lshl_add_u32 v{VPA}, v{VL2}, 1, s{sCP}')
        for (slot, x, y) in pairs: o += [f'v_add_f32 v{R[x]+u}, v{R[x]+u}, v{R[y]+u}' for u in range(2)]
        cv = [(slot, R[x], R[x]+1) for (slot, x, y) in pairs]
        if q == 3:
            o.append(f'v_add_f32 v{R["D"]}, -v{R["D"]}, -v{R["D"]+1}')
            cv.append((5, R['D'], R['D']))
        if cv and ph == 0:
            o.append(f's_set_gpr_idx_on s{sp}, gpr_idx(DST)\n' + ''.join(f'v_cvt_pk_bf16_f32 v{P0+slot}, v{lo}, v{hi}\n' for (slot, lo, hi) in cv) + 's_set_gpr_idx_off')
        elif cv:
            if q == 3: o.append(f'v_sub_u32 v{R["D"]+1}, v{VPA}, v{VH16}')
            for (slot, lo, hi) in cv: o.append(f'v_cvt_pk_bf16_f32 v{lo}, v{lo}, v{hi}')
            for (slot, lo, hi) in cv:
                o.append((f'ds_write_b32 v{VPA}, v{lo} offset:{slot*256}' if slot < 5 else f'ds_write_b16 v{R["D"]+1}, v{lo} offset:1280', [('P', False)]))
        return o
    def drop(self, line):
        x = opt('drop', '')
        if not x or not getattr(self, 'inunit', False) or '\n' in line.strip(): return False
        l = line.strip()
        if 'D' in x and l.startswith('buffer_load') and (f's[{sX}:' in l or f's[{sX2}:' in l): return True
        if 'P' in x and l.startswith('ds_write_b16'): return True
        if 'S' in x and l.startswith('v_permlane'): return True
        if 'C' in x and l.startswith('v_cvt_pk'): return True
        if 'B' in x and l.startswith('ds_read_b64_tr') and (f'v{VB0} ' in l or f'v{VB1} ' in l): return True
        if 'F' in x and l.startswith('v_fmac'): return True
        if 'A' in x and l.startswith(('v_lshlrev_b32','v_and_b32','v_cvt_pk')): return True
        if 'A' in x and l.startswith('v_mul_f32') and int(l.split()[1][1:-1]) < 64: return True
        if 'Y' in x and l.startswith(('ds_read_b128',)): return True
        return False
    def emit(self, items, lg):
        for it in items:
            if isinstance(it, str):
                if not self.drop(it): self.a(it)
            elif it[0] != 'wait' and self.drop(it[0]):
                for t, o in it[1]: lg.issue(t, o)
            elif it[0] == 'wait':
                w = lg.waitline(it[1])
                if len(it) > 2 and it[2] is not None: w = f's_waitcnt vmcnt({it[2]})' + (w[len('s_waitcnt'):] if w else '')
                if w: self.a(w)
            else:
                self.a(it[0])
                for t, o in it[1]: lg.issue(t, o)
    LATE = opt('late', 0)
    ENTRY = ([] if LATE else [('B', False)]*2 + [('B1' if opt('split', 0) else 'B', False)]*2) + [('a0', False)]*2 + [('y00', False)]*2 + [('y01', False)]*2 + [('a1', False)]*2 + [('y10', False)]*2 + [('y11', False)]*2
    @staticmethod
    def cost(it):
        if isinstance(it, tuple):
            if it[0] == 'wait': return 1
            it = it[0]
        return sum((2 if 'permlane' in l else 1) for l in it.strip().split('\n') if not l.strip().endswith(':'))
    def unit(self, nK, ph):
        a = self.a
        lg = LG(a, self.ENTRY)
        a(f'K2_U{nK}{ph}:')
        self.inunit = True
        n = 4 * nK
        BUD = opt('bud', 7)
        pre = seg(0)
        claim = (self.claim0() if ph == 0 else self.atomic())
        after = ([] if ph == 0 else [('wait', 'C')] + self.claimed()) + self.next_info(ph)
        if nK == 1: pre += claim
        LATE = self.LATE; LP = opt('lp', 16)
        def ins(l, items, back): return l[:max(0, len(l) - back)] + items + l[max(0, len(l) - back):]
        ab = self.abuild(nK)
        if LATE: ab = ins(ab, ['s_waitcnt vmcnt(6)'] + self.bread(0), opt('lp2', 16))
        pre += ab
        if nK == 1:
            pre += after + (self.eread() if ph == 0 else [])
            for t in range(4): pre += self.sread(t)
            if ph == 0: pre += self.adma()
            for t in range(4): pre += self.gmad(t)
        x = -1 if nK == 1 else 2
        MW = opt('mergewait', True)
        gaps = [[] for _ in range(4*n)]; tailg = [[] for _ in range(4*n)]
        late = lambda j: LATE and j % nK == 0
        vmn = lambda i: None if late(i + 1) else 4 + (self.NEXTRA if (ph == 0 and x < i <= x + 3) else 0)
        vml = lambda j: 6 + (self.NEXTRA if (ph == 0 and x + 1 <= j <= x + 4) else 0)
        for i in range(n):
            d = self.dma(i & 3, G + 2*((i+4) % nK), sOWN + (i+4)//nK) if i + 4 < n else self.dma(i & 3, G + 2*(i+4-n), sNX + (i+4-n))
            br = self.bread(i + 1); SP = opt('split', 0)
            if late(i + 1): br = []
            w = [] if MW else [f's_waitcnt vmcnt({vmn(i)})']
            if SP == 0:
                gaps[4*i] += w + br; tailg[4*i] += [d[0]]; gaps[4*i+1] += [d[1], d[2]]
            elif SP == 1:
                gaps[4*i] += w + br[:2]; tailg[4*i+1] += [('wait', 'B1'), d[0]]; gaps[4*i+2] += [d[1]] + br[2:]; tailg[4*i+2] += [d[0]]; gaps[4*i+3] += [d[2]]
            elif SP == 2:
                gaps[4*i] += w + br[:2]; gaps[4*i+1] += br[2:]; tailg[4*i+1] += [d[0]]; gaps[4*i+2] += [d[1]]; tailg[4*i+2] += [d[0]]; gaps[4*i+3] += [d[2]]
            if i + 1 < n: tailg[4*i+3] += [('wait', 'B1' if SP == 2 else 'B', vmn(i+1) if MW else None)]
        used = lambda g: sum(map(self.cost, gaps[g] + tailg[g]))
        def place(items, g0, g1):
            g = g0
            for it in items:
                while g < g1 and used(g) + self.cost(it) > BUD and used(g) > 1: g += 1
                gaps[g].append(it)
            return g
        DEF = opt('defer', True) and nK > 1
        if nK > 1:
            for t in range(4):
                place(self.sread(t), 4*(n-6+t) + (3 if opt('split', 0) else 2), 4*(n-6+t) + 3)
                place(self.gmad(t), 4*(n-5+t) + 1, 4*(n-5+t) + 3)
        ndef = [0]*4
        for q in range(1, 4):
            g0 = 4*q*nK
            if DEF:
                f3 = self.F(q-1, 3)
                room = [max(0, BUD - used(g0 + k)) for k in range(3)]
                m = min(16, sum(room)); ndef[q-1] = m
                f3 = f3[16-m:]
                for k in range(3):
                    gaps[g0 + k] += f3[:room[k]]; f3 = f3[room[k]:]
            place(self.fin(q-1, ph), g0 + (3 if DEF else 1), 4*(q*nK + nK - 1) + (1 if nK > 1 else 3))
        place(self.fin(3, ph, sPP), 1, 4*(nK - 1) + (1 if nK > 1 else 3))
        if nK > 1:
            if ph == 0:
                g = place(claim + after, 1, 5)
                place(self.eread(), max(g, 5), 7)
                place(self.adma(), 4*x + 3, 4*x + 3)
            else:
                place(claim, 1, 3)
                g1 = 4*(n-6) + (3 if opt('split', 0) else 2)
                keep = gaps[g1]; k0 = [i for i, it in enumerate(keep) if isinstance(it, str) and f'v{VSO}' in it]
                moved = keep[k0[0]:] if k0 else []
                if k0: gaps[g1] = keep[:k0[0]]
                place(after, 5, g1)
                gaps[g1] += moved
        if opt('dsp', 1):
            upd = [f's_sub_u32 s{sLIM}, s{sNBs}, s{sCB}', f's_mov_b32 s{sCB}, s{sNBs}', f's_mov_b32 s{sC4}, s{sN4}',
                   (f's_cmp_eq_u32 s{sNPH}, 0' if ph == 0 else f's_cmp_lg_u32 s{sNV}, 0') + f'\ns_cselect_b32 s{sEX}, s{sNK}, 0']
            place(upd, 4*(n-2) + 1, 4*(n-1) + 1)
            gl = max([g for g in range(4*n) if any(('gpr_idx' in (it if isinstance(it, str) else it[0])) or (f's{sCP}' in (it if isinstance(it, str) else it[0])) for it in gaps[g])] + [4*(n-2)])
            place([f's_mov_b32 s{sPP}, s{sCP}', f's_mov_b32 s{sCP}, s{sNP}'], gl, max(gl, 4*(n-1) + 2))
        nf0 = [0]*4
        if nK > 1:
            for q in range(4):
                g = 4*(q*nK + nK - 1) + 2
                nf0[q] = max(0, BUD - used(g))
                gaps[g] += self.F(q, 0)[:nf0[q]]
        self.emit([f's_setprio {opt("prioa", 1)}'] + pre + seg(1) + [('wait', 'B', vmn(0) if MW else None)] + ([f's_setprio {opt("prio", 1)}'] if opt("prio", 1) != opt("prioa", 1) else []), lg)
        for i in range(n):
            q, s = divmod(i, nK)
            for k, (t, u) in enumerate(TILES):
                c = f'v[{tile(t,u)}:{tile(t,u)+15}]' if s else '0'
                bb = BR + (i & 1)*8 + u*4
                if 'M' not in opt('drop', ''): a(f'v_mfma_f32_32x32x16_bf16 v[{tile(t,u)}:{tile(t,u)+15}], v[{AR+s*8+t*4}:{AR+s*8+t*4+3}], v[{bb}:{bb+3}], {c}')
                g = 4*i + k
                if k == 3 and s == nK - 1:
                    self.emit([f's_setprio {opt("prio0", 0)}'] + gaps[g] + seg(2+2*q) + self.F(q, 0)[nf0[q]:], lg)
                    if q < 3:
                        fb = self.F(q, 1) + self.F(q, 2) + self.F(q, 3)[:16-ndef[q]]
                        if LATE: fb = ins(fb, [f's_waitcnt vmcnt({vml(i+1)})'] + self.bread(i + 1), LP)
                        self.emit(fb + seg(3+2*q) + [f's_setprio {opt("prio", 1)}'], lg)
                else: self.emit(gaps[g], lg)
                self.emit(tailg[g], lg)
        end = [f's_sub_u32 s{sT}, s{sNBs}, s{sCB}', f'v_add_u32 v{VAO}, s{sT}, v{VAO}', f'v_add_u32 v{VYO}, s{sT}, v{VYO}']
        if opt('dsp', 1): end = [f'v_add_u32 v{VAO}, s{sLIM}, v{VAO}', f'v_add_u32 v{VYO}, s{sLIM}, v{VYO}']
        end += self.F(3, 1) + self.areads(0) + self.F(3, 2) + self.areads(1) + self.F(3, 3)
        self.emit(end, lg)
        if SEG:
            a('s_memtime s[94:95]\ns_waitcnt lgkmcnt(0)')
            def acc(d, i, j): a(f's_sub_u32 s67, s{76+2*j}, s{76+2*i}\ns_add_u32 s{d}, s{d}, s67')
            acc(96, 0, 1)
            for q in range(4): acc(97, 1+2*q, 2+2*q)
            for q in range(3): acc(98, 2+2*q, 3+2*q)
            acc(99, 8, 9)
            a(f's_add_u32 s100, s100, {nK}\ns_add_u32 s101, s101, 1')
        assert [x for x in lg.q if x[0] != 'P'] == self.ENTRY, lg.q
        self.inunit = False
        self.dispatch(ph)
    def dispatch(self, ph, check=True):
        if check and opt('dsp', 1):
            self.a(f"""
            s_cmp_eq_u32 s{sEX}, 2
            s_cbranch_scc1 K2_U2{ph}
            s_cmp_eq_u32 s{sEX}, 3
            s_cbranch_scc1 K2_U3{ph}
            s_branch K2_DSP{ph}
            """)
            return
        if check:
            if ph == 0: self.a(f's_cmp_lg_u32 s{sNPH}, 0\ns_cbranch_scc1 K2_SWITCH')
            else: self.a(f's_cmp_eq_u32 s{sNV}, 0\ns_cbranch_scc1 K2_TAIL')
        self.a(f"""
        s_mov_b32 s{sCB}, s{sNBs}
        s_mov_b32 s{sPP}, s{sCP}
        s_mov_b32 s{sC4}, s{sN4}
        s_mov_b32 s{sCP}, s{sNP}
        s_cmp_eq_u32 s{sNK}, 2
        s_cbranch_scc1 K2_U2{ph}
        s_cmp_eq_u32 s{sNK}, 3
        s_cbranch_scc1 K2_U3{ph}
        s_cmp_eq_u32 s{sNK}, 1
        s_cbranch_scc1 K2_U1{ph}
        s_branch K2_U4{ph}
        """)

    def wload(self, ph, vl16):
        for i in range(20):
            if i % 4 == 0: self.a(f's_mov_b32 s{sT}, {WS_WTAB + ph*20480 + i*1024}')
            self.a(f'buffer_load_dwordx4 v[{WR+4*i}:{WR+3+4*i}], v{vl16}, s[{sWS}:{sWS+3}], s{sT} offen offset:{(i%4)*1024} {"sc1" if FUSE else ""}')

    def fill_all(self, vT_):
        a = self.a
        for t in range(512): assert (t*437) >> 16 == t // 150
        a(f'''
        v_mul_u32_u24 v76, 437, v{vT_}
        v_lshrrev_b32 v76, 16, v76
        v_mul_u32_u24 v76, 150, v76
        v_sub_u32 v76, v{vT_}, v76
        v_mov_b32 v80, -1
        v_mov_b32 v77, 1.0
        v_cmp_gt_u32 vcc, 48, v76
        v_lshlrev_b32 v78, 4, v{vT_}
        v_add_u32 v78, {RECBASE}, v78
        v_cndmask_b32 v80, v80, 0, vcc
        v_cmp_gt_u32 vcc, 12, v76
        v_add_u32 v79, 64800, v78
        s_nop 0
        v_cndmask_b32 v80, v80, v77, vcc
        v_cmp_gt_u32 vcc, 450, v{vT_}
        v_mov_b32 v81, v80
        v_mov_b32 v82, v80
        v_mov_b32 v83, v80
        s_mov_b64 exec, vcc
        ''')
        for i in range(13): a(f'ds_write_b128 v{78 + (i//9)}, v[80:83] offset:{(i%9)*7200}')
        a(f'''
        v_cmp_gt_u32 vcc, {150 + (OA+1024)//16}, v{vT_}
        s_cbranch_vccz K2_NOCL
        s_mov_b64 exec, vcc
        ds_write_b128 v79, v[80:83] offset:{4*7200}
        K2_NOCL:
        s_mov_b64 exec, -1
        ''')
    def fill_head(self, part):
        a = self.a; n1 = opt('n1', 40)
        if part == 0:
            a(f'''
            v_subrev_u32 v76, 320, v0
            v_mov_b32 v80, -1
            v_mov_b32 v77, 1.0
            v_cmp_gt_u32 vcc, 48, v76
            v_lshlrev_b32 v78, 4, v76
            v_add_u32 v78, {RECBASE}, v78
            v_cndmask_b32 v80, v80, 0, vcc
            v_cmp_gt_u32 vcc, 12, v76
            v_add_u32 v79, {27*NSTR}, v78
            s_nop 0
            v_cndmask_b32 v80, v80, v77, vcc
            v_cmp_gt_u32 s[{sEX}:{sEX+1}], {(OA+1024)//16 - 64}, v8
            v_mov_b32 v81, v80
            v_mov_b32 v82, v80
            v_mov_b32 v83, v80
            ''')
        for i in (range(n1) if part == 0 else range(n1, 40)): a(f'ds_write_b128 v{78 + (i//27)}, v[80:83] offset:{(i%27)*NSTR}')
        if part == 1:
            a(f'''
            s_cmp_eq_u32 s{sW}, 6
            s_cselect_b64 exec, s[{sEX}:{sEX+1}], -1
            ds_write_b128 v79, v[80:83] offset:{13*NSTR}
            s_mov_b64 exec, -1
            ''')
    def fill_tail(self):
        for t in range(320): assert (t*2979) >> 16 == t // 22
        self.a(f'''
        v_mul_u32_u24 v76, 2979, v0
        v_lshrrev_b32 v76, 16, v76
        v_mul_u32_u24 v77, {NSTR - 22*16}, v76
        v_lshl_add_u32 v78, v0, 4, v77
        v_add_u32 v78, {RECBASE + 128*16}, v78
        v_add_u32 v79, {28*NSTR}, v78
        v_mov_b32 v80, -1
        v_mov_b32 v81, -1
        v_cmp_gt_u32 vcc, 14, v76
        v_cmp_gt_u32 s[{sEX}:{sEX+1}], 12, v76
        v_mov_b32 v82, -1
        v_mov_b32 v83, -1
        s_mov_b64 exec, vcc
        ds_write_b128 v78, v[80:83]
        ds_write_b128 v78, v[80:83] offset:{14*NSTR}
        s_mov_b64 exec, s[{sEX}:{sEX+1}]
        ds_write_b128 v79, v[80:83]
        s_mov_b64 exec, -1
        ''')
    def counters(self, vL, first):
        self.a(f'''
        v_mov_b32 v76, 0
        v_mov_b32 v77, -1
        v_lshlrev_b32 v78, 2, v{vL}
        v_add_u32 v78, {HIST}, v78
        s_mov_b64 exec, 0x1ff
        ds_write_b32 v78, v76 offset:{PROG-HIST}
        s_mov_b64 exec, 0xff
        ds_write_b32 v78, v77 offset:{NULLSRC-HIST}
        s_mov_b64 exec, -1
        {'' if first else f's_cmp_lg_u32 s{sRND}, 0'}
        {'' if first else f's_cbranch_scc1 K2_NOH'}
        s_mov_b32 exec_hi, 0xffff
        ds_write_b32 v78, v76
        s_mov_b64 exec, 1
        ds_write_b32 v78, v76 offset:{FLAG-HIST}
        s_mov_b64 exec, -1
        ''')
    def srds(self):
        a = self.a
        srd(a, sX, 80, N*1024); srd(a, sOUT, 96, N*1024); srd(a, sEA, 84, E*32)
        a('s_sub_u32 s80, s80, 1024\ns_subb_u32 s81, s81, 0'); srd(a, sX2, 80, N*1024 + 1024)
    def consts(self, vL):
        self.a(f'''
        v_and_b32 v84, 15, v{vL}                ; i
        v_lshrrev_b32 v85, 5, v{vL}             ; h
        v_bfe_u32 v86, v{vL}, 4, 1
        v_lshrrev_b32 v87, 2, v84
        v_and_b32 v88, 3, v84                   ; c
        v_lshl_add_u32 v89, v85, 3, v87         ; 8h + row
        v_lshlrev_b32 v{VAO}, 5, v89
        v_lshl_add_u32 v{VAO}, v88, 3, v{VAO}
        v_add_u32 v{VAO}, {OA}, v{VAO}
        v_mul_u32_u24 v{VYO}, 192, v86
        v_lshl_add_u32 v{VYO}, v85, 5, v{VYO}
        v_lshrrev_b32 v90, 1, v88
        v_lshl_add_u32 v90, v86, 1, v90         ; chunk (u = 0)
        v_bfe_u32 v91, v87, 1, 1
        v_lshlrev_b32 v91, 2, v91
        v_xor_b32 v90, v90, v91
        v_lshlrev_b32 v90, 4, v90
        v_lshl_add_u32 v90, v89, 7, v90
        v_and_b32 v91, 1, v88
        v_lshl_add_u32 v90, v91, 3, v90
        v_add_u32 v{VB0}, s{sRING}, v90
        v_xor_b32 v{VB1}, 64, v{VB0}
        v_lshrrev_b32 v90, 3, v{vL}
        v_lshlrev_b32 v{VSO}, 2, v90
        v_add_u32 v{VSO}, {OS}, v{VSO}
        v_bfe_u32 v90, v90, 1, 1
        v_lshlrev_b32 v90, 2, v90
        v_and_b32 v91, 7, v{vL}
        v_xor_b32 v90, v90, v91
        v_lshlrev_b32 v{VLG}, 4, v90
        v_lshlrev_b32 v{VL2}, 1, v{vL}
        v_and_b32 v{VH16}, 1, v{vL}
        v_lshlrev_b32 v{VH16}, 4, v{VH16}
        v_lshrrev_b32 v90, 1, v{vL}
        v_lshlrev_b32 v90, 5, v90
        v_add_u32 v{VEO}, {OA}, v90
        ''')
    def stage_sort(self, vL, vT_):
        a = self.a; st = 'sc1'
        RAW = 24576
        a(f'''
        s_cmp_ge_u32 s{sW}, 5
        s_cbranch_scc1 KS_HELP
        s_cmp_ge_u32 s2, {NCH}
        s_cbranch_scc1 KS_IDLE
        ''')
        srd(a, 40, 88, E*4)
        a(f'buffer_load_dwordx4 v[12:15], v5, s[40:43], s64 offen')
        srd(a, 44, 86, E*4); srd(a, 48, 82, E*6)
        a(f'''
        buffer_load_dwordx4 v[16:19], v5, s[44:47], s64 offen
        buffer_load_dwordx4 v[20:23], v4, s[48:51], s65 offen
        buffer_load_dwordx2 v[24:25], v4, s[48:51], s65 offen offset:16
        v_lshlrev_b32 v2, 2, v0                 ; t*4
        s_lshl_b32 s64, s64, 3
        v_lshl_add_u32 v3, v0, 7, s64
        v_mov_b32 v7, 1
        s_cmp_eq_u32 s{sW}, 4
        s_cbranch_scc1 KS_NOCLR
        ds_write_b32 v2, v6
        KS_NOCLR:
        s_waitcnt lgkmcnt(0)
        s_barrier
        ''')
        self.fill_tail()
        self.srds()
        sstamp(a, 7)
        a(f's_mov_b32 s58, {BMUL}\ns_movk_i32 s59, 625\ns_waitcnt vmcnt(3)')
        sstamp(a, 8)
        sort_rank(a)
        a('s_waitcnt lgkmcnt(0)')
        for j in range(4): a(f'ds_read_b32 v{32+j}, v{32+j} offset:1024')
        sort_emit(a, st)
        a(f'''
        s_branch KS_JOIN
        KS_IDLE:
        s_barrier
        ''')
        self.fill_tail()
        self.srds()
        a(f'''
        s_barrier
        s_branch KS_B3
        KS_HELP:
        s_cmp_eq_u32 s{sW}, 7
        s_cbranch_scc1 KS_TAG
        s_cmp_eq_u32 s{sW}, 6
        s_cbranch_scc1 KS_RAW
        s_cmp_ge_u32 s2, 200
        s_cbranch_scc1 KS_NOW
        ''')
        weight_loads(a)
        a('K1_GO:\ns_barrier')
        self.fill_head(0)
        a(f'v_mov_b32 v59, {NONCE}\ns_barrier\nds_read_b32 v59, v59')
        self.fill_head(1)
        self.srds()
        a(f'''
        s_waitcnt vmcnt(0)
        v_lshl_or_b32 v40, v65, 16, v64
        v_lshl_or_b32 v41, v67, 16, v66
        v_lshl_or_b32 v42, v69, 16, v68
        v_lshl_or_b32 v43, v71, 16, v70
        buffer_store_dwordx4 v[40:43], v9, s[{sWS}:{sWS+3}], s24 offen sc1
        s_waitcnt lgkmcnt(0)
        s_barrier
        s_lshl_b32 s24, s2, 2
        s_add_u32 s24, s24, {WS_FLG}
        s_mov_b64 exec, 1
        s_waitcnt vmcnt(0)
        buffer_store_dword v59, v6, s[{sWS}:{sWS+3}], s24 offen sc1
        s_mov_b64 exec, -1
        s_branch KS_JOIN
        KS_RAW:
        s_barrier
        ''')
        srd(a, 60, 90, 16*640*2)
        for i in range(20):
            if i % 4 == 0: a(f's_mov_b32 m0, {RAW + i*1024}\ns_movk_i32 s24, {i*1024}')
            a(f'buffer_load_dwordx4 v9, s[60:63], s24 offen offset:{(i%4)*1024} lds')
        a('s_branch KS_FILL\nKS_NOW:\ns_barrier\nKS_FILL:')
        self.fill_head(0)
        a('s_barrier')
        self.fill_head(1)
        self.srds()
        a(f'''
        s_waitcnt vmcnt(0)
        s_branch KS_B3
        KS_TAG:
        ''')
        srd(a, 60, 98, 256)
        a(f'''
        s_cmp_lg_u32 s2, 0
        s_cbranch_scc1 KS_TAGLD
        s_or_b32 s24, s74, 1
        v_mov_b32 v10, s24
        v_mov_b32 v11, 0
        s_mov_b64 exec, 1
        buffer_atomic_cmpswap v[10:11], v6, s[60:63], 0 offen sc1
        KS_TAGLD:
        s_mov_b64 exec, 1
        v_mov_b32 v14, 0
        s_mov_b64 exec, -1
        s_barrier
        ''')
        self.counters(8, True)
        self.srds()
        sstamp(a, 7)
        a(f'''
        s_mov_b64 exec, 1
        s_mov_b32 s24, 0x100000
        v_mov_b32 v12, {NONCE}
        KS_TAGW:
        buffer_load_dword v15, v6, s[60:63], 0 offen sc1
        s_waitcnt vmcnt(1)
        v_cmp_ne_u32 vcc, 0, v14
        s_cbranch_vccnz KS_TAGOK
        s_sub_u32 s24, s24, 1
        s_cbranch_scc1 K2_END
        buffer_load_dword v14, v6, s[60:63], 0 offen sc1
        s_waitcnt vmcnt(1)
        v_cmp_ne_u32 vcc, 0, v15
        s_cbranch_vccz KS_TAGW
        ds_write_b32 v12, v15
        s_branch KS_TAGOK2
        KS_TAGOK:
        ds_write_b32 v12, v14
        KS_TAGOK2:
        s_mov_b64 exec, -1
        s_waitcnt lgkmcnt(0)
        ''')
        sstamp(a, 8)
        a(f'''
        s_barrier
        KS_B3:
        v_mov_b32 v59, {NONCE}
        ds_read_b32 v59, v59
        s_waitcnt lgkmcnt(0)
        s_barrier
        KS_JOIN:
        v_readfirstlane_b32 s{sTAG}, v59
        ''')
        stamp(a, 6)
    def wraw(self, vL):
        a = self.a; RAW = 24576
        a(f'''
        v_lshrrev_b32 v60, 5, v{vL}             ; h
        v_bfe_u32 v61, v{vL}, 2, 2              ; row
        v_lshl_add_u32 v60, v60, 2, v61
        v_mul_u32_u24 v60, 1280, v60
        v_bfe_u32 v61, v{vL}, 4, 1
        v_lshl_add_u32 v60, v61, 5, v60
        v_and_b32 v61, 3, v{vL}
        v_lshl_add_u32 v60, v61, 3, v60
        ''')
        for i in range(20):
            p, u, rq = i >> 2, (i >> 1) & 1, i & 1
            a(f'ds_read_b64_tr_b16 v[{WR+40+2*i}:{WR+41+2*i}], v60 offset:{RAW + rq*8*1280 + p*256 + u*64}')
        a('s_waitcnt lgkmcnt(0)')
        for i in range(40):
            a(f'v_lshlrev_b32 v{WR+2*i}, 16, v{WR+40+i}\nv_and_b32 v{WR+2*i+1}, 0xffff0000, v{WR+40+i}')

    def gen(self):
        a = self.a
        vL, vT_, vC, vE, vREM, vOFF = 176, 177, 178, 179, 180, 181
        RK = 40
        NBs = 50
        t0 = 192
        ws = f's[{sWS}:{sWS+3}]'
        def loop(done, body):
            for i in range(U):
                a(f'v_cmp_lt_i32 vcc, {2*i}, v{vREM}\ns_cbranch_vccz {done}\ns_mov_b64 exec, vcc')
                a(body(i))
            a(f'{done}:\ns_mov_b64 exec, -1')
        a('s_cmp_ge_u32 s2, 256\ns_cbranch_scc1 K2_END')
        stamp(a, 0)
        a(f'''
        s_load_dwordx16 s[80:95], s[0:1], 0
        s_load_dwordx4 s[96:99], s[0:1], 72
        s_load_dwordx2 s[100:101], s[0:1], 88   ; ws
        s_memrealtime s[74:75]
        v_lshrrev_b32 v1, 6, v0
        s_mov_b32 s{sB}, s2
        v_readfirstlane_b32 s{sW}, v1
        v_and_b32 v8, 63, v0
        v_lshlrev_b32 v9, 4, v8                 ; lane*16
        v_mov_b32 v6, 0
        v_lshlrev_b32 v5, 4, v0                 ; t*16
        v_mul_u32_u24 v4, 24, v0
        s_mul_i32 s64, s2, {CH*4}
        s_mul_i32 s65, s2, {CH*6}
        v_mov_b32 v{vL}, v8
        v_mov_b32 v{vT_}, v0
        s_mul_i32 s{sNB}, s2, 625
        s_add_u32 s{sNC}, s{sNB}, {625+15}
        s_add_u32 s{sNB}, s{sNB}, 15
        s_lshr_b32 s{sNB}, s{sNB}, 4
        s_lshr_b32 s{sNC}, s{sNC}, 4
        s_sub_u32 s{sNC}, s{sNC}, s{sNB}
        s_movk_i32 s{s1024}, 1024
        s_lshl_b32 s{sRING}, s{sW}, 13
        s_mov_b32 s{sPROG}, {PROG}
        s_lshl_b32 s{sPROGW}, s{sW}, 2
        s_add_u32 s{sPROGW}, s{sPROGW}, s{sPROG}
        {chr(10).join(f's_add_u32 s{sM0+i}, s{sRING}, {i*2048}' for i in range(4))}
        s_waitcnt lgkmcnt(0)
        ''')
        srd(a, sWS, 100, WS_SIZE)
        self.stage_sort(vL, vT_)
        a(f'''
        s_mov_b32 s{sJ0}, 0
        s_mov_b32 s{sFIRST}, 1
        {chr(10).join(f's_mov_b32 s{i}, 0' for i in range(96, 102)) if SEG else ''}
        s_mov_b32 s{sRND}, 0
        s_mov_b32 s{sR}, 1
        K2_CELLS:
        v_lshrrev_b32 v{vC}, 1, v{vT_}          ; cell
        v_min_u32 v{vC}, {NCH-1}, v{vC}
        v_mul_u32_u24 v72, {TSTR}, v{vC}
        s_and_b32 s{sT}, s{sB}, 7
        s_lshl_b32 s{sT}, s{sT}, 7
        s_lshr_b32 s{sT+1}, s{sB}, 5
        s_lshl_b32 s{sT+1}, s{sT+1}, 4
        s_add_u32 s{sT+9}, s{sT}, s{sT+1}
        s_add_u32 s{sT+9}, s{sT+9}, {WS_TBL}
        buffer_load_dwordx4 v[76:79], v72, {ws}, s{sT+9} offen sc1
        ''')
        self.consts(vL)
        def chk(r): return f"""
            v_xor_b32 v73, s{sT+1}, v{r}
            v_xor_b32 v74, s{sT+1}, v{r+1}
            v_or_b32 v73, v73, v74
            v_xor_b32 v74, s{sTAG}, v{r+3}
            v_lshrrev_b32 v73, 22, v73
            v_or_b32 v73, v73, v74
            v_cmp_ne_u32 vcc, 0, v73"""
        a(f'''
        s_lshl_b32 s{sT+1}, s{sTAG}, 22
        s_mov_b32 s{sT+2}, 0x100000
        s_bfe_u32 s{sT+3}, s{sB}, 0x10004
        s_bfe_u32 s{sT+4}, s{sB}, 0x10003
        s_add_u32 s{sT+5}, s{sT+3}, s{sT+4}
        s_mul_i32 s{sT+4}, s{sT+4}, 11
        s_sub_u32 s{sT+6}, 11, s{sT+4}
        v_cmp_gt_u32 vcc, {2*NCH}, v{vT_}
        s_mov_b64 s[{sEX}:{sEX+1}], vcc
        K2_POLL:
        ''')
        if opt('poll2', 0): a(f'''
        buffer_load_dwordx4 v[80:83], v72, {ws}, s{sT+9} offen sc1
        s_waitcnt vmcnt(1)
        {chk(76)}
        s_cbranch_vccz K2_POLLED
        s_sub_u32 s{sT+2}, s{sT+2}, 1
        s_cbranch_scc1 K2_END
        buffer_load_dwordx4 v[76:79], v72, {ws}, s{sT+9} offen sc1
        s_waitcnt vmcnt(1)
        {chk(80)}
        s_cbranch_vccnz K2_POLL
        s_add_u32 s{sT+3}, s{sT+3}, 4
        s_add_u32 s{sT+5}, s{sT+5}, 4
        ''')
        else: a(f'''
        s_waitcnt vmcnt(0)
        {chk(76)}
        s_cbranch_vccz K2_POLLED
        s_sub_u32 s{sT+2}, s{sT+2}, 1
        s_cbranch_scc1 K2_END
        s_mov_b64 exec, vcc
        buffer_load_dwordx4 v[76:79], v72, {ws}, s{sT+9} offen sc1
        s_mov_b64 exec, -1
        s_branch K2_POLL
        ''')
        a(f'''
        K2_POLLED:
        {f's_sub_u32 s101, 0x100000, s{sT+2}' if PROFS else ''}
        s_set_gpr_idx_on s{sT+3}, gpr_idx(SRC0)
        v_bfe_u32 v{vE}, v76, s{sT+4}, 11
        s_set_gpr_idx_idx s{sT+5}
        v_bfe_u32 v73, v76, s{sT+6}, 11
        s_set_gpr_idx_off
        v_sub_u32 v73, v73, v{vE}
        ''')
        o = Asm(); sv = self.a; self.a = o
        o(f'''
        K2_WINDOW:
        s_mov_b32 s{sRND}, 0
        s_mov_b32 s{sR}, 1
        K2_LOAD:
        v_mbcnt_lo_u32_b32 v{vL}, -1, 0
        v_mbcnt_hi_u32_b32 v{vL}, -1, v{vL}
        s_lshl_b32 s{sT}, s{sW}, 6
        v_add_u32 v{vT_}, s{sT}, v{vL}
        v_lshlrev_b32 v70, 4, v{vL}
        ''')
        self.wload(0, 70)
        self.fill_all(vT_)
        o(f's_cmp_lg_u32 s{sW}, 7\ns_cbranch_scc1 K2_NOH')
        self.counters(vL, False)
        o('K2_NOH:\ns_waitcnt lgkmcnt(0)\ns_barrier\ns_branch K2_CELLS')
        self.a = sv; self.ool(o.text())
        stamp(a, 1)
        a(f'''
        v_cndmask_b32 v73, 0, v73, s[{sEX}:{sEX+1}]
        v_and_b32 v1, 1, v{vT_}
        v_add_u32 v1, s{sJ0}, v1                ; j0 + sub
        v_sub_u32 v{vREM}, v73, v1
        v_add_u32 v{vE}, v{vE}, v1
        v_mul_u32_u24 v{vOFF}, {CSTR}, v{vC}
        v_lshl_add_u32 v{vOFF}, v{vE}, 4, v{vOFF}
        ''')
        MK = [f's[{r}:{r+1}]' for r in (40, 42, 44, 46, 48, 50, 90, 92, 94, 96)]
        def mloop(done, body):
            for i in range(U): a(f's_mov_b64 exec, {MK[i]}\ns_cbranch_execz {done}\n' + body(i))
            a(f'{done}:\ns_mov_b64 exec, -1')
        for i in range(U): a(f'v_cmp_lt_i32 {MK[i]}, {2*i}, v{vREM}')
        ld = lambda i: f'buffer_load_dwordx4 v[{4*i}:{4*i+3}], v{vOFF}, {ws}, 0 offen offset:{32*i} sc1'
        mloop('K2_LD_DONE', ld)
        a(f"""
        s_cmp_eq_u32 s{sFIRST}, 0
        s_cbranch_scc1 K2_NOWRAW
        """)
        self.wraw(vL)
        self.ool(f"""
        K2_FLGLD:
        buffer_load_dwordx4 v[84:87], v72, {ws}, s{sT+6} offen sc1
        s_mov_b32 s{sT+4}, 0
        s_branch K2_FLGL2
        K2_FLGCK:
        s_cmp_lg_u32 s{sRND}, 0
        s_cbranch_scc1 K2_FLGOK
        s_waitcnt vmcnt(0)
        K2_FLGW:
        v_xor_b32 v84, s{sTAG}, v84
        v_xor_b32 v85, s{sTAG}, v85
        v_xor_b32 v86, s{sTAG}, v86
        v_xor_b32 v87, s{sTAG}, v87
        v_or3_b32 v84, v84, v85, v86
        v_or_b32 v84, v84, v87
        v_cmp_ne_u32 vcc, 0, v84
        s_and_b32 vcc_hi, vcc_hi, 0x3ffff       ; 200 flags
        s_cmp_eq_u64 vcc, 0
        s_cbranch_scc1 K2_FLGOK
        s_sub_u32 s{sT+2}, s{sT+2}, 1
        s_cbranch_scc1 K2_END
        buffer_load_dwordx4 v[84:87], v72, {ws}, s{sT+6} offen sc1
        s_waitcnt vmcnt(0)
        s_branch K2_FLGW
        """)
        a(f"""
        K2_NOWRAW:
        v_mul_u32_u24 v{vC}, {CH}, v{vC}
        v_add_lshl_u32 v{vE}, v{vE}, v{vC}, 2
        s_mov_b32 s{sT+8}, {WS_RANK}
        v_mov_b32 v{t0+9}, 1
        s_movk_i32 s{sT}, {NSTR//4}
        s_movk_i32 s{sT+1}, {NSTR}
        s_mov_b32 s{sT+2}, 0x100000
        s_mov_b32 s{sT+3}, 0xffff
        v_mov_b32 v{t0+10}, {RECBASE}
        s_cmp_lg_u32 s{sRND}, 0
        s_cbranch_scc1 K2_RK_LOAD
        v_cmp_lt_i32 vcc, {2*U}, v{vREM}
        s_cbranch_vccz K2_NOMORE
        v_mov_b32 v61, {FLAG}
        ds_write_b32 v61, v{t0+9}
        K2_NOMORE:
        v_lshlrev_b32 v72, 4, v{vL}
        s_mov_b32 s{sT+6}, {WS_FLG}
        s_mov_b32 s{sT+4}, {RECBASE + opt("tp", 8)*NSTR}
        s_cmp_eq_u32 s{sW}, 7
        s_waitcnt vmcnt(0)
        s_cbranch_scc1 K2_FLGLD
        K2_FLGL2:
        """)
        stamp(a, 2)
        prep = lambda i: f'v_mad_u32_u24 v{NBs+i}, v{NBs+i}, s{sT}, v{t0+10}\nv_and_b32 v{4*i+3}, 0xffffff, v{4*i+3}'
        def rank(i):
            self.ool(f'K2_RT{i}:\ns_sub_u32 s{sT+2}, s{sT+2}, 1\ns_cbranch_scc1 K2_END\n{ld(i)}\ns_waitcnt vmcnt(0)\ns_branch K2_CK{i}')
            return f"""K2_CK{i}:
            v_bfi_b32 v{t0}, s{sT+3}, v{4*i+1}, v{4*i+2}
            v_lshrrev_b32 v{NBs+i}, 24, v{4*i+3}
            v_cmp_ne_u32 vcc, s{sTAG}, v{t0}
            v_add_u32 v{RK+i}, {HIST}, v{NBs+i}
            s_cbranch_vccnz K2_RT{i}
            ds_add_rtn_u32 v{RK+i}, v{RK+i}, v{t0+9}
            """ + (prep(i).split('\n')[0] if (opt('tp', 8)) else prep(i))
        mloop('K2_RK_A', rank)
        if opt('tp', 8):
            mloop('K2_TP', lambda i: prep(i).split('\n')[1] + (f'\nv_cmpx_gt_u32 vcc, s{sT+4}, v{NBs+i}\nbuffer_load_dword v245, v{4*i+3}, s[{sEA}:{sEA+3}], 0 offen ' + mod('tpm', '') if i < opt('tpn', U) else ''))
        o = Asm(); b = a; a = o
        a(f'K2_RK_LOAD:\ns_waitcnt vmcnt(0)')
        mloop('K2_RK_B', lambda i: f'v_lshrrev_b32 v{NBs+i}, 24, v{4*i+3}\nbuffer_load_dword v{RK+i}, v{vE}, {ws}, s{sT+8} offen offset:{8*i}\n' + prep(i))
        a(f's_mul_i32 s{sT+4}, s{sRND}, 48\ns_waitcnt vmcnt(0)')
        for i in range(U): a(f'v_subrev_u32 v{RK+i}, s{sT+4}, v{RK+i}')
        a('s_branch K2_RK_DONE')
        self.ool(o.text()); a = b
        a(f"""
        K2_RK_DONE:
        s_mul_i32 s{sT+9}, s{sRND}, 48
        s_waitcnt lgkmcnt(0)
        """)
        def scatter(i, rr, base):
            return f"""
            v_lshl_add_u32 v{t0+2}, v{rr}, 5, v{base}
            v_lshl_add_u32 v{t0+3}, v{rr}, 2, v{base}
            v_lshrrev_b32 v{t0+1}, 3, v{rr}
            v_mad_i32_i24 v{t0+4}, v{t0+1}, -16, v{t0+3}
            v_and_b32 v{t0+1}, 1, v{t0+1}
            v_mad_i32_i24 v{t0+4}, v{t0+1}, -14, v{t0+4}
            ds_write_b32 v{t0+2}, v{4*i+3} offset:{OA}
            ds_write_b16 v{t0+3}, v{4*i} offset:{192+2}
            ds_write_b16_d16_hi v{t0+3}, v{4*i} offset:{2*192+2}
            ds_write_b16_d16_hi v{t0+3}, v{4*i+1} offset:{3*192+2}
            ds_write_b16 v{t0+4}, v{4*i+2} offset:{OS}
            """
        for i in range(U):
            a(f's_mov_b64 exec, {MK[i]}\ns_cbranch_execz K2_SC_DONE\nv_cmpx_gt_u32 vcc, 48, v{RK+i}\n' + scatter(i, RK+i, NBs+i))
        d = t0 + 1; k = t0 + 2; e = t0 + 3; p = t0 + 4; x = t0 + 5; pl = t0 + 6
        a(f'''
        K2_SC_DONE:
        s_mov_b64 exec, -1
        v_lshlrev_b32 v{t0}, 2, v{vL}
        v_add_u32 v{t0}, {HIST}, v{t0}
        v_mov_b32 v{t0+8}, {FLAG}
        v_mov_b32 v{pl}, 0
        s_movk_i32 s{sLIM}, 48
        s_cmp_eq_u32 s{sW}, 7
        s_cbranch_scc1 K2_FLGCK
        K2_FLGOK:
        s_waitcnt lgkmcnt(0)
        s_barrier
        ds_read_b32 v{d}, v{t0}
        ds_read_b32 v{t0+8}, v{t0+8}
        v_cmp_gt_u32 s[{sEX}:{sEX+1}], s{sNC}, v{vL}
        v_mad_u32_u24 v{e}, v{vL}, s{sT+1}, v{t0+10}
        v_lshl_or_b32 v{e}, v{vL}, 21, v{e}
        s_waitcnt lgkmcnt(0)
        v_cndmask_b32 v{d}, 0, v{d}, s[{sEX}:{sEX+1}]
        v_readfirstlane_b32 s{sMORE}, v{t0+8}
        v_cmp_lt_u32 vcc, 48, v{d}
        s_cbranch_vccnz K2_BIG
        K2_TOK:
        v_subrev_u32 v{k}, s{sT+9}, v{d}
        v_max_i32 v{k}, 1, v{k}
        v_min_i32 v{k}, s{sLIM}, v{k}
        v_add_u32 v{k}, 15, v{k}
        v_lshrrev_b32 v{k}, 4, v{k}             ; K-steps
        v_lshl_or_b32 v{e}, v{k}, 18, v{e}
        v_or_b32 v{e}, v{e}, v{pl}
        v_mov_b32 v{x}, {NULLBASE | (1 << 18)}
        v_cndmask_b32 v{VTAB}, v{x}, v{e}, s[{sEX}:{sEX+1}]
''')
        o = Asm(); b = a; a = o
        a(f'''
        K2_BIG:
        s_cmp_lg_u32 s{sRND}, 0
        s_cbranch_scc1 K2_TOK
        s_mov_b64 s[{sT+4}:{sT+5}], vcc
        s_bcnt1_i32_b64 s{sT+2}, vcc
        s_cmp_eq_u32 s{sNC}, 39
        s_cselect_b32 s{sT+3}, 5, 2
        s_cmp_gt_u32 s{sT+2}, s{sT+3}
        s_cbranch_scc1 K2_SLOW
        v_cmp_lt_u32 vcc, 64, v{d}
        s_cbranch_vccnz K2_SLOW
        v_mbcnt_lo_u32_b32 v{x}, s{sT+4}, 0
        v_mbcnt_hi_u32_b32 v{x}, s{sT+5}, v{x}
        v_lshlrev_b32 v{pl}, 27, v{x}
        v_cndmask_b32 v{pl}, 0, v{pl}, s[{sT+4}:{sT+5}]
        s_movk_i32 s{sLIM}, 64
        v_cmp_le_u32 vcc, 2, v{x}
        v_mov_b32 v{k}, {POOL}
        v_mov_b32 v{p}, {POOL - NSTR - (2 << 22)}
        v_cndmask_b32 v{k}, v{k}, v{p}, vcc
        v_lshl_add_u32 v{x}, v{x}, 22, v{k}
        v_mov_b32 v{t0+11}, v{d}
        v_mov_b32 v{t0+12}, v{e}
        v_mov_b32 v{t0+13}, v{x}
        s_mov_b32 s{sT+2}, {(1 << 24) // NSTR + 1}
        ''')
        for nd in range(40): assert ((nd*NSTR) * ((1 << 24)//NSTR + 1)) >> 24 == nd
        for i in range(U):
            nx = self.lab('ov')
            a(f'''
            s_mov_b64 exec, {MK[i]}
            s_cbranch_execz K2_OV_DONE
            v_cmp_le_u32 vcc, 48, v{RK+i}
            s_cbranch_vccz {nx}
            s_mov_b64 exec, -1
            v_subrev_u32 v{t0}, {RECBASE}, v{NBs+i}
            v_mul_hi_u32_u24 v{t0+1}, s{sT+2}, v{t0}
            v_mul_u32_u24 v{t0}, s{sT+2}, v{t0}
            v_alignbit_b32 v{t0}, v{t0+1}, v{t0}, 24
            v_lshlrev_b32 v{t0}, 2, v{t0}
            ds_bpermute_b32 v{t0+7}, v{t0}, v{t0+13}
            v_subrev_u32 v{t0}, 48, v{RK+i}
            s_waitcnt lgkmcnt(0)
            s_mov_b64 exec, vcc
            v_lshrrev_b32 v{t0+1}, 18, v{t0+7}
            v_add_u32 v{t0}, v{t0}, v{t0+1}
            v_and_b32 v{t0+7}, 0x3ffff, v{t0+7}
            {scatter(i, t0, t0+7)}
            {nx}:
            ''')
        a(f'''
        K2_OV_DONE:
        s_mov_b64 exec, -1
        v_mov_b32 v{d}, v{t0+11}
        v_mov_b32 v{e}, v{t0+12}
        s_waitcnt lgkmcnt(0)
        s_barrier
        s_branch K2_TOK
        K2_SLOW:
        v_mov_b32 v{x}, v{d}
        ''')
        scan(a, x, 'v_max_u32')
        for dd in range(48, 512*U + 48): assert (dd * 43691) >> 21 == dd // 48
        a(f'''
        v_readlane_b32 s{sR}, v{x}, 63
        s_add_u32 s{sR}, s{sR}, 47
        s_mul_i32 s{sR}, s{sR}, 43691
        s_lshr_b32 s{sR}, s{sR}, 21
        ''')
        for i in range(U):
            a(f'v_cmp_lt_i32 vcc, {2*i}, v{vREM}\ns_cbranch_vccz K2_SV_DONE\ns_mov_b64 exec, vcc')
            a(f'buffer_store_dword v{RK+i}, v{vE}, {ws}, s{sT+8} offen offset:{8*i}')
        a('K2_SV_DONE:\ns_mov_b64 exec, -1\ns_branch K2_TOK')
        self.ool(o.text()); a = b
        for q in range(4): a(f's_movk_i32 s{sOWN+q}, {q*256}')
        a(f'''
        s_add_u32 s{sRND}, s{sRND}, 1
        s_cmp_ge_u32 s{sRND}, s{sR}
        s_cselect_b32 s{sLAST}, 1, 0
        s_cmp_eq_u32 s{sMORE}, 0
        s_cselect_b32 s{sLAST}, s{sLAST}, 0
        s_mov_b32 s{sJ}, 0
        s_mov_b32 s{sNPH}, 0
        s_mov_b32 s{sNP}, 0
        s_mov_b32 s{sNV}, 1
        s_mov_b32 s{sCP}, 0
        s_mov_b32 s{sT}, s{sW}
        ''')
        lg = LG(a)
        self.emit(self.next_info(0), lg)
        stamp(a, 3)
        pre = self.eread()
        for t in range(4): pre += self.sread(t)
        pre += self.adma()
        for t in range(4): pre += self.gmad(t)
        for t in range(4): pre += self.dma(t, G + 2*t, sNX + t) + (['s_barrier'] if t == opt('fbar', -1) else [])
        pre += [f'v_add_u32 v{VAO}, s{sNBs}, v{VAO}', f'v_add_u32 v{VYO}, s{sNBs}, v{VYO}', 's_waitcnt vmcnt(6)']
        self.emit(pre, lg)
        stamp(a, 4)
        self.emit(([] if self.LATE else self.bread(0)) + self.areads(0) + self.areads(1), lg)
        self.dispatch(0, check=False)
        for ph in range(2):
            for nK in (2, 3): self.unit(nK, ph)
        for ph in range(2):
            for nK in (1, 4): self.unit(nK, ph)
        for ph in range(2):
            a(f'K2_DSP{ph}:\ns_cmp_eq_u32 s{sEX}, 1\ns_cbranch_scc1 K2_U1{ph}\ns_cmp_eq_u32 s{sEX}, 4\ns_cbranch_scc1 K2_U4{ph}\ns_branch {"K2_TAIL" if ph else "K2_SWITCH"}')
        a('K2_SWITCH:')
        stamp(a, 5)
        self.emit(self.fin(3, 0, sPP if opt('dsp', 1) else None), LG(a))
        a(f's_cmp_eq_u32 s{sNV}, 0\ns_cbranch_scc1 K2_TAIL2\nv_lshlrev_b32 v{VT0}, 3, v{VL2}\nv_lshl_add_u32 v{VPA}, v{VL2}, 1, s{sNP}\nv_lshrrev_b32 v{VH16}, 6, v{VL2}\nv_mul_u32_u24 v{VH16}, 126, v{VH16}')
        self.wload(1, VT0)
        for q in range(4): a(f's_movk_i32 s{sOWN+q}, {q*256+128}')
        a(f's_cmp_lg_u32 s{sNK}, 1\ns_cbranch_scc1 K2_SW2\ns_waitcnt vmcnt(0)\nK2_SW2:')
        if not FUSE: stamp(a, 6)
        self.dispatch(1, check=False)
        for t in self.outline: a(t)
        self.tail()
        a('K2_END:\ns_endpgm')
        return a.lines, 256

    def tail(self):
        a = self.a
        ws = f's[{sWS}:{sWS+3}]'
        vP0 = 222; vP1 = 223; vS = 226; vSP = 227; vRow = 228; vL16 = 229
        vQ0 = 232; vSt = 254; vS2 = 255; vS3 = 246; vQ0a = 247; vQ1a = 248; vRow2 = 249
        OP = 176
        pre = f"""v_lshlrev_b32 v{vL16}, 3, v{VL2}
            s_mul_i32 s{sT}, s{sW}, {20*1024}
            s_add_u32 s{sT}, s{sT}, {WS_STAB}
            s_mul_i32 s{sT+1}, s{sW}, {8192+32}"""
        sl = []
        for f in range(20):
            sl.append(f'buffer_load_dwordx4 v[{WR+4*f}:{WR+4*f+3}], v{vL16}, {ws}, s{sT} offen offset:{(f%4)*1024} sc1' + (f'\ns_add_u32 s{sT}, s{sT}, 4096' if f % 4 == 3 and f < 19 else ''))
        NE = opt('ne', 8)
        adr = [f'v_lshl_add_u32 v{vRow}, v{VL2}, 1, s{sT+1}', f'v_lshrrev_b32 v{vS}, 6, v{VL2}', f'v_mul_u32_u24 v{vS}, 126, v{vS}', f'v_sub_u32 v{vS}, v{vRow}, v{vS}']
        a('K2_TAIL2:\n' + pre)
        for x in sl[:NE] + adr: a(x)
        a('s_branch K2_TAIL3\nK2_TAIL:')
        stamp(a, 7)
        a(pre)
        f3 = self.fin(3, 1) + adr; w = []
        for i in range(NE): w += [sl[i]] + f3[2*i:2*i+2]
        self.emit(w + f3[2*NE:], LG(a))
        a(f'K2_TAIL3:\ns_waitcnt vmcnt({NE})')
        dump = []
        for j in range(5):
            for k in range(5): dump.append(f'ds_write_b32 v{vRow}, v{P0+6*j+k} offset:{j*1536 + k*256}')
            dump.append(f'ds_write_b16 v{vS}, v{P0+6*j+5} offset:{j*1536 + 1280}')
        assert RECBASE % 256 == 0 and NSTR % 256 == 96
        calc = f"""
        v_bfe_u32 v48, v{VL2}, 1, 4             ; n & 15
        v_lshrrev_b32 v49, 5, v{VL2}            ; slab
        v_lshrrev_b32 v55, 3, v48
        v_lshlrev_b32 v52, 4, v49               ; slab*16
        v_lshl_add_u32 v54, v55, 2, v48
        v_and_b32 v54, 7, v54                   ; node of the last group in column n
        v_and_b32 v50, 7, v48
        v_mul_u32_u24 v50, {8192+32}, v50
        v_mul_u32_u24 v51, 1536, v55
        v_add_u32 v50, v50, v51                 ; slot of node n
        v_add_u32 v{vP0}, v50, v52
        v_mul_u32_u24 v51, {8192+32}, v54
        v_add_u32 v{vQ0}, v51, v52
        v_lshl_add_u32 v{vQ0a}, v55, 7, v{vQ0}
        v_mul_u32_u24 v53, 192, v48
        v_and_b32 v53, 0xc0, v53
        v_add_u32 v53, v53, v52
        v_mul_u32_u24 v51, {NSTR}, v48
        s_mov_b32 s{sT+2}, {RECBASE}
        v_add3_u32 v{vP1}, v51, v53, s{sT+2}
        v_mul_u32_u24 v51, {NSTR}, v54
        s_mov_b32 s{sT+2}, {RECBASE + 32*NSTR}
        v_add3_u32 v{vP1+2}, v51, v53, s{sT+2}
        v_lshl_add_u32 v{vQ1a}, v55, 7, v{vP1+2}
        s_lshl_b32 s{sT+2}, s{sW}, 5
        v_lshl_add_u32 v49, v49, 3, s{sT+2}
        s_mov_b32 s{sT+2}, {RECBASE}
        v_add3_u32 v{vS2}, v51, v49, s{sT+2}
        v_lshl_add_u32 v{vS3}, v55, 9, v{vS2}
        v_bfe_u32 v53, v48, 2, 1
        v_lshl_add_u32 v49, v53, 4, v49
        v_add_u32 v{vSt}, v50, v49
        s_and_b32 s{sT+6}, s{sLAST}, s{sFIRST}  ; plain single-round case
        """.strip().split('\n')
        rest = sl[NE:]; per = max(2, (len(dump) + len(rest) - 1) // max(1, len(rest)))
        while dump or rest:
            for x in dump[:per] + rest[:1] + calc[:2]: a(x)
            dump = dump[per:]; rest = rest[1:]; calc = calc[2:]
        for x in calc: a(x)
        a('s_waitcnt lgkmcnt(0)')
        late = f"""
        s_bfe_u32 s{sT+2}, s{sW}, 0x10002
        s_lshl_b32 s{sT+2}, s{sT+2}, 4
        s_add_u32 s{sT+1}, s{sT+1}, s{sT+2}
        v_add_u32 v{vRow}, s{sT+1}, v{vL16}
        s_mul_i32 s{sT+2}, s{sW}, {NSTR}
        s_add_u32 s{sT+2}, s{sT+2}, {RECBASE}
        v_add_u32 v{vRow2}, s{sT+2}, v{vL16}
        s_mov_b32 s{sT+5}, 0xbfb8aa3b           ; -log2(e)
        s_add_u32 s{sOWN}, s{sW}, s{sNB}
        s_lshl_b32 s{sOWN}, s{sOWN}, 10
        """.strip().split('\n') + [f's_add_u32 s{sOWN+j}, s{sOWN}, {j*8192}' for j in range(1, 5)]
        stamp(a, 8); a('s_barrier'); stamp(a, 9)
        a(f's_cmp_eq_u32 s{sT+6}, 0\ns_cbranch_scc1 K2_MULTI')
        steps = []
        for g in range(3):
            def ad(ph, row, hh, packed=False):
                o = self.SROW[row]*128 + hh*64
                if g < 2: return (vP1, g*16*NSTR + o) if ph else (vP0, g*3072 + o)
                return ((vQ1a if packed else vP1+2), o) if ph else ((vQ0a if packed else vQ0), 4*1536 + o)
            for ph in range(2):
                for rs in range(2):
                    for hh in range(2): steps.append((16*g, ph*4 + rs*2 + hh) + ad(ph, rs, hh))
            for ph in range(2):
                for path in range(3):
                    for hh in range(2):
                        for j in range(3 if g < 2 else 2):
                            steps.append((16*g + 4 + 4*j, 8 + ph*6 + path*2 + hh) + ad(ph, 2 + 3*j + path, hh, j == 0))
        for path in range(3): assert self.SROW[8 + path] == self.SROW[2 + path] + 1
        NB = 12; D = 10
        def epi(g, part=3):
            c = 16*g; o = OP + 8*(g & 1); s = []; tp = 204 + 4*(g & 1)
            if part & 1:
                for r in range(4): s.append(f'v_mul_f32 v{tp+r}, s{sT+5}, v{c+r}')
                for r in range(4): s.append(f'v_exp_f32 v{tp+r}, v{tp+r}')
                for r in range(4): s.append(f'v_add_f32 v{tp+r}, 1.0, v{tp+r}')
                for r in range(4): s.append(f'v_rcp_f32 v{tp+r}, v{tp+r}')
                s += [f'v_cvt_pk_bf16_f32 v{o}, v{c}, v{c+1}', f'v_cvt_pk_bf16_f32 v{o+1}, v{c+2}, v{c+3}']
            if part & 2:
                for j in range(3 if g < 2 else 2):
                    for r in range(4): s.append(f'v_mul_f32 v{c+4+4*j+r}, v{c+4+4*j+r}, v{tp+r}')
                    s += [f'v_cvt_pk_bf16_f32 v{o+2+2*j}, v{c+4+4*j}, v{c+5+4*j}', f'v_cvt_pk_bf16_f32 v{o+3+2*j}, v{c+6+4*j}, v{c+7+4*j}']
            return s
        def stage(g, part=3):
            o = OP + 8*(g & 1)
            if g < 2: w = [(rt, vSt, g*3072) for rt in range(4)]
            else: w = [(0, vS2, 0), (1, vS3, 0), (2, vS2, 0)]
            return [(f'ds_write_b64 v{r}, v[{o+2*rt}:{o+1+2*rt}] offset:{b + rt*256}', [(f'w{g}', False)]) for rt, r, b in w if part & (2 if rt else 1)]
        def rowread(g):
            if g == 2: return [(f'ds_read_b128 v[200:203], v{vRow2}', [('r2', False)])]
            return [(f'ds_read_b128 v[{192+4*(j&1)}:{195+4*(j&1)}], v{vRow} offset:{j*1536}', [(f'r{g}', False)]) for j in (2*g, 2*g+1)]
        def rowstore(g):
            s = [('wait', f'r{g}')]
            for j in ((2*g, 2*g+1) if g < 2 else (4,)):
                b = 192 + 4*(j & 1) if g < 2 else 200
                s += [f'buffer_store_dwordx4 v[{b}:{b+3}], v{vL16}, s[{sOUT}:{sOUT+3}], s{sOWN+j} offen {mod("outst","sc1")}']
            return s
        def gemm(lg, extra):
            def rd(k):
                c, f, r, o = steps[k]
                b = 48 + 4*(k % NB)
                self.emit([(f'ds_read_b128 v[{b}:{b+3}], v{r} offset:{o}', [(f'k{k}', False)])], lg)
            for k in range(D): rd(k)
            seen = set(); started = set()
            for k in range(len(steps)):
                c, f, r, o = steps[k]
                if k + D < len(steps): rd(k + D)
                vm = None
                if f not in seen: seen.add(f); vm = 19 - f
                kk = min(k + 1, len(steps) - 1) if (opt('w2', 1) and k % 2 == 0) else k
                self.emit([('wait', f'k{kk}', vm)], lg)
                b = 48 + 4*(k % NB)
                cin = f'v[{c}:{c+3}]' if c in started else '0'; started.add(c)
                a(f'v_mfma_f32_16x16x32_bf16 v[{c}:{c+3}], v[{WR+4*f}:{WR+4*f+3}], v[{b}:{b+3}], {cin}')
                self.emit(extra.get(k, []), lg)
        lg = LG(a); extra = {}
        def spread(items, k0, k1):
            for i, x in enumerate(items): extra.setdefault(k0 + i*(k1 - k0 + 1)//len(items), []).append(x)
        spread(late, 2, 8)
        b0 = opt('b0', 46); e0 = opt('e0', 64); b1 = opt('b1', 90); r0 = opt('r0', 98); e1 = opt('e1', 108)
        spread(epi(0, 1), 12, 40)
        if not opt('nob0', 0): extra.setdefault(b0, []).append('s_barrier')
        spread(epi(0, 2), 44 + 3, e0)
        extra.setdefault(e0 + 1, []).extend(stage(0))
        spread(epi(1, 1), e0 + 2, 86)
        extra.setdefault(b1, []).extend([('wait', 'w0')] + ([] if opt('nob1', 0) else ['s_barrier']) + rowread(0))
        spread(epi(1, 2), 88 + 3, e1)
        extra.setdefault(r0, []).extend(rowstore(0))
        extra.setdefault(e1 + 1, []).extend(stage(1))
        spread(epi(2, 1), max(e1 - 8, 100), 117)
        extra.setdefault(118, []).extend(stage(2, 1))
        if opt('gp', 1):
            for k0, k1 in ((-1, b0), (b0, b1), (b1, len(steps))):
                fr = [float(x) for x in opt('gpf', '0.3_0.6_0.87').split('_')]
                if k0 >= 0: extra.setdefault(k0, []).append('s_setprio 3')
                for i, f in enumerate(fr): extra.setdefault(k0 + int((k1 - k0)*f), []).append(f's_setprio {2-i}')
            a('s_setprio 3')
        if PROFT:
            for i, k in enumerate((0, 8, 43, 66, 87, 104)): extra.setdefault(k, []).append(f'{"s_memtime" if opt("cyc", False) else "s_memrealtime"} s[{78+2*i}:{79+2*i}]')
        if opt('noepi', 0): extra = {k: [x for x in v if not (isinstance(x, str) and x.startswith(('v_cvt', 'v_exp', 'v_rcp', 'v_mul_f32', 'v_add_f32')[:opt('noepi', 0)]))] for k, v in extra.items()}
        gemm(lg, extra)
        stamp(a, 10)
        self.emit(epi(2, 2) + stage(2, 2) + [('wait', 'w2'), 's_barrier'] + rowread(1) + rowread(2) + rowstore(1), lg)
        a(f'K2_LASTROW:\ns_add_u32 s{sT+1}, s{sW}, 32\ns_cmp_ge_u32 s{sT+1}, s{sNC}\ns_cbranch_scc1 K2_FIN\ns_waitcnt lgkmcnt(0)')
        self.emit(rowstore(2), LG(a))
        a('K2_FIN:')
        if PROF:
            stamp(a, 11); a('s_waitcnt vmcnt(0)'); stamp(a, 12); stamp_out(a, 13, 1, sW, sB, sWS)
        a('s_branch K2_END')
        a('K2_MULTI:')
        lg = LG(a)
        gemm(lg, {})
        a(f"""
        s_lshl_b32 s{sT+2}, s{sB}, 9
        s_lshl_b32 s{sT+3}, s{sW}, 6
        s_add_u32 s{sT+2}, s{sT+2}, s{sT+3}
        s_mul_i32 s{sT+2}, s{sT+2}, 192
        s_add_u32 s{sT+2}, s{sT+2}, {WS_ACC}
        v_mul_u32_u24 v{vSP}, 96, v{VL2}        ; lane*192
        s_cmp_lg_u32 s{sFIRST}, 0
        s_cbranch_scc1 K2_NOACC
        """)
        for i in range(11): a(f'buffer_load_dwordx4 v[{48+4*i}:{51+4*i}], v{vSP}, {ws}, s{sT+2} offen offset:{16*i}')
        a('s_waitcnt vmcnt(0)')
        for i in range(44): a(f'v_add_f32 v{i}, v{i}, v{48+i}')
        a(f'K2_NOACC:\ns_barrier\ns_cmp_eq_u32 s{sLAST}, 0\ns_cbranch_scc1 K2_SPILL')
        self.emit(late, lg)
        for g in range(2):
            self.emit(epi(g) + stage(g) + [('wait', f'w{g}'), 's_barrier'] + rowread(g) + rowstore(g), lg)
        self.emit(epi(2) + stage(2) + [('wait', 'w2'), 's_barrier'] + rowread(2), lg)
        a('s_branch K2_LASTROW\nK2_SPILL:')
        for i in range(11): a(f'buffer_store_dwordx4 v[{4*i}:{4*i+3}], v{vSP}, {ws}, s{sT+2} offen offset:{16*i}')
        a(f"""
        s_mov_b32 s{sFIRST}, 0
        s_waitcnt vmcnt(0)
        s_cmp_lt_u32 s{sRND}, s{sR}
        s_cbranch_scc1 K2_LOAD
        s_add_u32 s{sJ0}, s{sJ0}, {2*U}
        s_branch K2_WINDOW
        """)

HEADER = '''; Kernarg layout for this problem (96 bytes, ptrs only, base s[0:1]):
'''
def kd(name, vgpr):
    return f'''.amdhsa_kernel {name}
  .amdhsa_next_free_vgpr {vgpr}
  .amdhsa_next_free_sgpr {102}
  .amdhsa_accum_offset {(vgpr+3)//4*4}
  .amdhsa_group_segment_fixed_size 0
  .amdhsa_kernarg_size 96
  .amdhsa_user_sgpr_count 2
  .amdhsa_user_sgpr_kernarg_segment_ptr 1
  .amdhsa_system_sgpr_workgroup_id_x 1
  .amdhsa_float_denorm_mode_32 3
.end_amdhsa_kernel
'''
def main():
    ks = []
    l2, v2 = K2().gen(); ks.append((NAME + '_kernel', fix_hazards(l2), v2))
    s = HEADER
    s += f'; @launch grid=(256,1,1) block=(512,1,1) lds={K2_LDS}\n'
    s += '.amdgcn_target "amdgcn-amd-amdhsa--gfx950"\n.text\n'
    for name, l, v in ks:
        s += f'.globl {name}\n.p2align 8\n.type {name},@function\n{name}:\n'
        s += '\n'.join((x if x.endswith(':') else '    ' + x) for x in l) + '\n'
    s += '.section .rodata,"a"\n' + ''.join('.p2align 6\n' + kd(name, v) for name, l, v in ks)
    out = sys.argv[1] if len(sys.argv) > 1 else f'/code/{NAME}.s'
    open(out, 'w').write(s)
    print('wrote', out, len(s), 'bytes')
main()
```

```python
import sys, os
sys.path.insert(0, os.path.dirname(os.path.abspath(__file__)))
from asmlib import Asm, fix_hazards

NAME = 'standalone__tensor_product_equiv_equiformer__graph'
N = 10000; E = 320000
NCH = 250; CH = E // NCH
CSTR = CH * 16 + 128
TSTR = 1024 + 128
WS_REC = 0
WS_TBL = 0x0600000
WS_STAB = 0x06A0000
WS_WTAB = 0x06C8000
WS_FLG = 0x06D8000
WS_RANK = 0x0700000
WS_PROF = 0x0900000
WS_ACC = 0x0A00000
WS_SIZE = 0x2400000
assert NCH * CSTR <= WS_TBL and WS_TBL + NCH * TSTR <= WS_STAB and WS_ACC + 256*512*192 <= WS_SIZE
BMUL = 429497
for d in range(N): assert ((d * BMUL) & 0xffffffff) >> 24 == (d * 16) // 625

OPT = dict(a.split('=') for a in sys.argv[2:]) if len(sys.argv) > 2 else {}
def opt(k, d): return type(d)(OPT.get(k, d)) if not isinstance(d, bool) else bool(int(OPT.get(k, d)))
def mod(k, d): return opt(k, d).replace('_', ' ')

PROF = opt('prof', False)
FUSE = True
SEG = opt('seg', False)
def seg(i): return [f's_memtime s[{76+2*i}:{77+2*i}]'] if SEG else []
PROFS = opt('profs', False)
def sstamp(a, i):
    if PROFS: a(f's_memrealtime s[{76+2*i}:{77+2*i}]')
PROFT = opt('proft', False)
def stamp(a, i, t=False):
    if PROFT and 1 <= i <= 6 and not t: return
    if PROFS and i in (1, 3, 5, 11, 12): return
    if PROF and not SEG: a(f'{"s_memtime" if opt("cyc", False) else "s_memrealtime"} s[{76+2*i}:{77+2*i}]')
def stamp_out(a, n, kern, swave, swg, srd_s):
    if not PROF: return
    if opt('dbgout', -1) >= 0:
        l = f'DBG_{kern}'
        a(f's_cmp_lg_u32 s{swg}, {opt("dbgout", -1)}\ns_cbranch_scc1 {l}\ns_cmp_lg_u32 s{swave}, 0\ns_cbranch_scc1 {l}')
        a(f's_load_dwordx2 s[58:59], s[0:1], 80\ns_waitcnt lgkmcnt(0)\ns_add_u32 s58, s58, {512*(1-kern)*opt("dbgk1", 0)}\ns_addc_u32 s59, s59, 0')
        srd(a, 60, 58, 256)
        a('s_mov_b64 exec, 1\nv_mov_b32 v1, 0')
        for i, o in ([(0, 0), (5, 14), (2, 15)] if kern == 0 else [(i, 1+i) for i in range(13)]):
            a(f'v_mov_b32 v2, s{76+2*i}\nbuffer_store_dword v2, v1, s[60:63], 0 offen offset:{4*o}')
        a(f's_mov_b64 exec, -1\n{l}:')
        return
    a('s_waitcnt lgkmcnt(0)')
    a(f's_lshl_b32 s67, s{swg}, 4\ns_add_u32 s67, s67, s{swave}\ns_lshl_b32 s67, s67, 6\ns_add_u32 s67, s67, {WS_PROF + kern*256*16*64}')
    a('s_mov_b64 exec, 1\nv_mov_b32 v1, 0')
    for i in range(n):
        a(f'v_mov_b32 v2, s{76+2*i if not SEG else 96+min(i,5)}\nbuffer_store_dword v2, v1, s[{srd_s}:{srd_s+3}], s67 offen offset:{4*i}')
    a('s_mov_b64 exec, -1')

def srd(a, s, ptr, nbytes):
    a(f's_mov_b32 s{s}, s{ptr}\ns_and_b32 s{s+1}, s{ptr+1}, 0xffff\ns_mov_b32 s{s+2}, {nbytes}\ns_mov_b32 s{s+3}, 0x20000')

def scan(a, v, op='v_add_u32'):
    for sh in (1, 2, 4, 8):
        a(f'{op}_dpp v{v}, v{v}, v{v} row_shr:{sh} row_mask:0xf bank_mask:0xf bound_ctrl:0')
    a(f'{op}_dpp v{v}, v{v}, v{v} row_bcast:15 row_mask:0xa bank_mask:0xf')
    a(f'{op}_dpp v{v}, v{v}, v{v} row_bcast:31 row_mask:0xc bank_mask:0xf')

K1_T = CH // 4
K1_LDS = 2048 + CH * 16
def weight_loads(a):
    a(f'''
    v_and_b32 v1, 15, v8
    v_lshrrev_b32 v3, 4, v8
    s_cmp_ge_u32 s2, 160
    s_cbranch_scc1 K1_WT
    s_cmp_ge_u32 s2, 64
    s_cbranch_scc1 K1_S1
    s_lshr_b32 s24, s2, 3
    s_and_b32 s25, s2, 7
    s_lshr_b32 s26, s25, 2
    s_bfe_u32 s27, s25, 0x10001
    s_and_b32 s28, s25, 1
    ''')
    srd(a, 60, 92, 256*128*2)
    a(f'''
    s_branch K1_SC
    K1_S1:
    ; S1: g2 = g-64; w = g2/12, f2 = g2%12 : ph = f2/6, path = (f2%6)>>1, hh = f2&1
    s_sub_u32 s29, s2, 64
    s_mul_i32 s24, s29, 43
    s_lshr_b32 s24, s24, 9
    s_mul_i32 s25, s24, 12
    s_sub_u32 s25, s29, s25
    s_cmp_ge_u32 s25, 6
    s_cselect_b32 s26, 1, 0
    s_mul_i32 s27, s26, 6
    s_sub_u32 s27, s25, s27
    s_lshr_b32 s27, s27, 1
    s_and_b32 s28, s25, 1
    s_add_u32 s25, s25, 8
    ''')
    for g2 in range(96): assert (g2*43) >> 9 == g2 // 12
    srd(a, 60, 94, 384*128*2)
    a(f'''
    K1_SC:
    s_lshl_b32 s27, s27, 7
    s_lshl_b32 s26, s26, 6
    s_lshl_b32 s28, s28, 4
    s_add_u32 s27, s27, s26
    s_add_u32 s27, s27, s28
    s_lshl_b32 s27, s27, 8
    s_lshl_b32 s26, s24, 5
    s_add_u32 s27, s27, s26
    s_add_u32 s29, s27, 8192
    v_lshlrev_b32 v3, 10, v3
    v_lshl_add_u32 v3, v1, 1, v3
    ''')
    for e in range(8): a(f'buffer_load_ushort v{64+e}, v3, s[60:63], s{29 if e & 1 else 27} offen offset:{(e >> 1)*256}')
    a(f'''
    s_mul_i32 s24, s24, 20
    s_add_u32 s24, s24, s25
    s_lshl_b32 s24, s24, 10
    s_add_u32 s24, s24, {WS_STAB}
    s_branch K1_GO
    K1_WT:
    ; W (fp32): g3 = g-160; ph = g3/20, i = g3%20 : p = i>>2, u = (i>>1)&1, rq = i&1
    s_sub_u32 s24, s2, 160
    s_cmp_ge_u32 s24, 20
    s_cselect_b32 s26, 1, 0
    s_mul_i32 s25, s26, 20
    s_sub_u32 s25, s24, s25
    s_lshr_b32 s27, s25, 2
    s_bfe_u32 s28, s25, 0x10001
    s_and_b32 s25, s25, 1
    s_mul_i32 s25, s25, {8*1280}
    s_lshl_b32 s27, s27, 8
    s_lshl_b32 s26, s26, 7
    s_lshl_b32 s28, s28, 6
    s_add_u32 s27, s27, s26
    s_add_u32 s27, s27, s28
    s_add_u32 s27, s27, s25
    ''')
    srd(a, 60, 90, 16*640*2)
    a(f'''
    v_and_b32 v1, 31, v8
    v_lshrrev_b32 v3, 5, v8
    v_mul_u32_u24 v3, {4*1280}, v3
    v_lshl_add_u32 v3, v1, 1, v3
    v_mov_b32 v64, 0
    v_mov_b32 v66, 0
    v_mov_b32 v68, 0
    v_mov_b32 v70, 0
    ''')
    for r in range(4): a(f'buffer_load_ushort v{65+2*r}, v3, s[60:63], s27 offen offset:{r*1280}')
    a(f'''
    s_lshl_b32 s24, s24, 10
    s_add_u32 s24, s24, {WS_WTAB}
    ''')

def sort_rank(a, pad):
    for j in range(4):
        a(f'v_mul_u32_u24 v{28+j}, s58, v{12+j}\nv_lshrrev_b32 v{32+j}, 27, v{28+j}\nv_bfe_u32 v{36+j}, v{28+j}, 24, 3\nv_lshlrev_b32 v{32+j}, 2, v{32+j}')
        a(f'v_lshl_or_b32 v{32+j}, v{36+j}, 7, v{32+j}\nds_add_rtn_u32 v{36+j}, v{32+j}, v7')
    for j in range(4):
        a(f'v_lshrrev_b32 v{28+j}, 24, v{28+j}\nv_mad_u32_u24 v{28+j}, v{28+j}, s59, 15\nv_lshrrev_b32 v{28+j}, 4, v{28+j}\nv_sub_u32 v{28+j}, v{12+j}, v{28+j}')
        a(f'v_add_u32 v{12+j}, {32*j}, v3\nv_lshl_or_b32 v{28+j}, v{28+j}, 26, v{12+j}')
    a(f'''
    {pad}
    v_mov_b32 v59, {NONCE}
    s_mul_i32 s65, s2, {TSTR}
    s_add_u32 s65, s65, {WS_TBL}
    s_mul_i32 s64, s2, {CSTR}
    s_waitcnt lgkmcnt(0)
    s_barrier
    ''')
    sstamp(a, 11)
    a(f'''
    ds_read_b128 v[40:43], v9
    ds_read_b32 v59, v59
    s_waitcnt lgkmcnt(1)
    v_add_u32 v45, v40, v41
    v_add_u32 v46, v45, v42
    v_add_u32 v47, v46, v43
    v_mov_b32 v58, v47
    ''')
    scan(a, 58)
    a(f'''
    v_sub_u32 v48, v58, v47                 ; exclusive
    v_add_u32 v49, v48, v40
    v_add_u32 v50, v48, v45
    v_add_u32 v51, v48, v46
    ds_write_b128 v9, v[48:51] offset:1024
    s_waitcnt vmcnt(0) lgkmcnt(1)
    s_cmp_lg_u32 s{sW}, 4
    s_cbranch_scc1 KS_NOPUB
    v_lshl_or_b32 v56, v49, 11, v48
    v_lshl_or_b32 v57, v51, 11, v50
    v_lshl_or_b32 v56, v59, 22, v56
    v_lshl_or_b32 v57, v59, 22, v57
    buffer_store_dwordx4 v[56:59], v9, s[{sWS}:{sWS+3}], s65 offen sc1
    KS_NOPUB:
''')
    sstamp(a, 12)

def sort_emit(a, st):
    a('v_and_b32 v60, 0xffff, v59\nv_and_b32 v61, 0xffff0000, v59\ns_mov_b32 s58, 0xffff0000')
    for j in range(4):
        b = 20 + 3*(j >> 1)
        if j & 1: a(f'v_alignbit_b32 v{40+4*j}, v{b+2}, v{b+1}, 16\nv_and_or_b32 v{41+4*j}, v{b+2}, s58, v60')
        else: a(f'v_mov_b32 v{40+4*j}, v{b}\nv_lshl_or_b32 v{41+4*j}, v{b+1}, 16, v60')
        a(f'v_or_b32 v{42+4*j}, v61, v{16+j}\nv_mov_b32 v{43+4*j}, v{28+j}')
    a('s_waitcnt lgkmcnt(0)')
    for j in range(4):
        a(f'v_add_lshl_u32 v{32+j}, v{32+j}, v{36+j}, 4\nds_write_b128 v{32+j}, v[{40+4*j}:{43+4*j}] offset:2048')
    a(f's_waitcnt lgkmcnt(0)\ns_barrier')
    for i in range(4): a(f'ds_read_b128 v[{12+4*i}:{15+4*i}], v5 offset:{2048 + i*K1_T*16}')
    for i in range(4):
        a(f's_waitcnt lgkmcnt({3-i})')
        a(f'buffer_store_dwordx4 v[{12+4*i}:{15+4*i}], v5, s[8:11], s64 offen {st}')
        if i < 3: a(f's_add_u32 s64, s64, {K1_T*16}')

NSTR = 2400
OY = 0; OS = 768; OA = 864
RECBASE = 65536
POOL = RECBASE + 40 * NSTR
MISC = POOL + OA + 1024
HIST = MISC; PROG = MISC + 192; CNT = MISC + 224; FLAG = MISC + 228; OWN = MISC + 232; NULLSRC = MISC + 256; SCR = MISC + 288; NONCE = MISC + 304
NULLBASE = NULLSRC - OS
K2_LDS = 163840
U = 10
ACC = 0; AR = 64; WR = 96; BR = 176; P0 = 192; G = 222
VEO = 230; VH16 = 231; T2 = 232; T3 = 233; PW = 234
VB0 = 246; VB1 = 247; VLG = 248; VAO = 249; VYO = 250; VSO = 251; VL2 = 252; VTAB = 253; VT0 = 254; VT1 = 255; VPA = VEO
sX = 4; sWS = 8; sOUT = 12; sEA = 16
sW = 20; sNB = 21; sNC = 22; sJ0 = 23; sRND = 24; sR = 25; sLIM = 26; sMORE = 27; sFIRST = 28
sCB = 29; sC4 = 30; sCP = 31; sNBs = 48; sNK = 33; sNPH = 34; sNP = 35; sNV = 36
sRING = 37; sJ = 38; s1024 = 39; sOWN = 40; sNX = 44; sSO = 48; sPROGW = 52; sPROG = 53; sB = 54; sLAST = 55
sEX = 56
sT = 58
sM0 = 68
sX2 = 72
sPP = 32
sN4 = 3
sTAG = 2
sSPIN = 27

TILES = {0: [(0,0), (1,0), (0,1), (1,1)], 1: [(0,0), (0,1), (1,1), (1,0)], 2: [(0,0), (1,0), (1,1), (0,1)], 3: [(0,0), (0,1), (1,0), (1,1)]}[opt('tord', 0)]
def tile(t, u): return ACC + 16 * TILES.index((t, u))
def Wreg(p, u): return WR + p*16 + u*8

def weave(x, y):
    o = []
    for i in range(max(len(x), len(y))):
        o += x[i:i+1] + y[i:i+1]
    return o

class LG:
    def __init__(self, a, q=()): self.a = a; self.q = list(q)
    def issue(self, tag, optional=False): self.q.append((tag, optional))
    def waitline(self, tag):
        idx = [i for i, (t, o) in enumerate(self.q) if t == tag]
        if not idx: return None
        y = sum(1 for (t, o) in self.q[idx[-1]+1:] if not o)
        self.q = self.q[idx[-1]+1:]
        return f's_waitcnt lgkmcnt({min(y, 15)})'

class K2:
    def __init__(self):
        self.a = Asm()
        self.uid = 0
        self.outline = []
    def lab(self, s):
        self.uid += 1
        return f'K2_{s}_{self.uid}'

    def dma(self, slot, greg, soff):
        return [f's_mov_b32 m0, s{sM0+slot}',
                f'buffer_load_dwordx4 v{greg}, s[{sX}:{sX+3}], s{soff} offen {mod("xld", "sc1")} lds',
                f'buffer_load_dwordx4 v{greg+1}, s[{sX2}:{sX2+3}], s{soff} offen offset:1024 {mod("xld", "sc1")} lds']
    def bread(self, item):
        out = []
        for u in range(2):
            for r in range(2):
                d = BR + (item & 1)*8 + u*4 + r*2
                out.append((f'ds_read_b64_tr_b16 v[{d}:{d+1}], v{VB0+u} offset:{(item & 3)*2048 + r*512}', [('B' if u == 0 or not opt('split', 0) else 'B1', False)]))
        return out
    def sread(self, t):
        return [f'v_add_u32 v{G+2*t}, s{sSO+t}, v{VSO}', (f'ds_read_b32 v{G+2*t}, v{G+2*t}', [(f'S{t}', False)])]
    def gmad(self, t):
        return [('wait', f'S{t}'),
                f'v_mad_u32_u16 v{G+2*t+1}, v{G+2*t}, s{s1024}, v{VLG} op_sel:[1,0,0,0]',
                f'v_mad_u32_u16 v{G+2*t}, v{G+2*t}, s{s1024}, v{VLG}']
    def ool(self, text): self.outline.append(text)
    def atomic(self):
        return [f'v_mov_b32 v{VT0}, {CNT}', f'v_mov_b32 v{VT1}, 1', f'v_lshl_add_u32 v{T3}, v{VL2}, 1, s{sPROG}',
                (f's_mov_b64 exec, 1\nds_add_rtn_u32 v{T2}, v{VT0}, v{VT1}\ns_mov_b64 exec, -1', [('C', False)]),
                (f'ds_read_b32 v{T3}, v{T3}', [('C', False)])]
    def claimed(self):
        nul = self.lab('nul'); spin = self.lab('spin'); chk = self.lab('chk'); back = self.lab('back')
        self.ool(f'{nul}:\ns_mov_b32 s{sT}, 63\ns_mov_b32 s{sNV}, 0\ns_branch {back}')
        self.ool(f'{spin}:\ns_sub_u32 s{sSPIN}, s{sSPIN}, 1\ns_cbranch_scc1 K2_END\nv_lshl_add_u32 v{T3}, v{VL2}, 1, s{sPROG}\nds_read_b32 v{T3}, v{T3}\ns_waitcnt lgkmcnt(0)\ns_branch {chk}')
        return [f'v_readfirstlane_b32 s{sT}, v{T2}',
                f"""s_cmp_lt_u32 s{sT}, s{sNC}
                s_cbranch_scc0 {nul}
                s_and_b32 s{sT+1}, s{sT}, 7
                s_lshr_b32 s{sT+2}, s{sT}, 3
                {chk}:
                v_readlane_b32 s{sT+3}, v{T3}, s{sT+1}
                s_nop 0
                s_cmp_gt_u32 s{sT+3}, s{sT+2}
                s_cbranch_scc0 {spin}
                {back}:"""]
    def claim0(self):
        dyn = self.lab('dyn'); back = self.lab('back')
        o = [x if isinstance(x, str) else x[0] for x in self.atomic()] + ['s_waitcnt lgkmcnt(0)'] + self.claimed()
        self.ool(f'{dyn}:\n' + '\n'.join(o) + f'\ns_mov_b32 s{sNPH}, 1\ns_branch {back}')
        return [f's_add_u32 s{sJ}, s{sJ}, 1', f'v_mov_b32 v{VT0}, s{sPROGW}', f'v_mov_b32 v{VT1}, s{sJ}',
                f's_lshl_b32 s{sT}, s{sJ}, 3', f's_add_u32 s{sT}, s{sT}, s{sW}',
                (f's_mov_b64 exec, 1\nds_write_b32 v{VT0}, v{VT1}\ns_mov_b64 exec, -1', [('W', False)]),
                f's_cmp_lt_u32 s{sT}, s{sNC}\ns_cbranch_scc0 {dyn}\n{back}:']
    def pooladdr(self, d, word, stride):
        return f"""s_lshr_b32 s{d}, s{word}, 27
            s_mov_b32 s{sT+8}, {POOL}
            s_cmp_ge_u32 s{d}, 2
            s_cselect_b32 s{sT+8}, {POOL - NSTR - 2*stride}, s{sT+8}
            s_mul_i32 s{d}, s{d}, {stride}
            s_add_u32 s{d}, s{d}, s{sT+8}"""
    def next_info(self, ph):
        rare = self.lab('rare'); back = self.lab('back'); four = self.lab('four')
        self.ool(f"""{rare}:
            s_cmp_eq_u32 s{sNK}, 4
            s_cbranch_scc1 {four}
            s_mov_b32 s{sSO+1}, s{sNBs}
            s_mov_b32 s{sSO+3}, s{sNBs}
            s_add_u32 s{sNX+1}, s{sNX}, 256
            s_add_u32 s{sNX+2}, s{sNX}, 512
            s_add_u32 s{sNX+3}, s{sNX}, 768
            s_branch {back}
            {four}:
            s_add_u32 s{sSO+2}, s{sNBs}, 64
            {self.pooladdr(sSO+3, sN4, 32)}
            s_mov_b32 s{sNX+2}, s{sNX}
            s_mov_b32 s{sNX+3}, s{sNX}
            s_branch {back}""")
        o = [f'v_readlane_b32 s{sN4}, v{VTAB}, s{sT}', f's_lshl_b32 s{sNX}, s{sNPH}, 7', f's_lshl_b32 s{sT+2}, s{sT}, 5',
             f's_and_b32 s{sNBs}, s{sN4}, 0x3ffff', f's_bfe_u32 s{sNK}, s{sN4}, 0x30012',
             f's_sub_u32 s{sT+2}, s{sT+2}, s{sNBs}', f's_and_b32 s{sT+2}, s{sT+2}, 0xff']
        if ph == 1: o += [f's_add_u32 s{sNP}, s{sT+2}, s{sNBs}']
        else: o += [f's_add_u32 s{sT+2}, s{sT+2}, s{sNBs}', f's_mul_i32 s{sNP}, s{sJ}, 6', f's_cmp_eq_u32 s{sNPH}, 0\ns_cselect_b32 s{sNP}, s{sNP}, s{sT+2}']
        o += [f's_mov_b32 s{sNX+1}, s{sNX}', f's_add_u32 s{sNX+3}, s{sNX}, 256', f's_add_u32 s{sSO+1}, s{sNBs}, 32', f's_add_u32 s{sT+2}, s{sNBs}, 64',
              f's_cmp_eq_u32 s{sNK}, 3\ns_cselect_b32 s{sNX+2}, s{sNX}, s{sNX+3}\ns_cselect_b32 s{sSO+2}, s{sT+2}, s{sNBs}\ns_cselect_b32 s{sSO+3}, s{sNBs}, s{sSO+1}',
              f's_sub_u32 s{sT+2}, s{sNK}, 2\ns_cmp_lt_u32 s{sT+2}, 2\ns_cbranch_scc0 {rare}\n{back}:']
        return o
    def eread(self):
        return [f'v_add_u32 v{T3}, s{sNBs}, v{VEO}',
                (f'ds_read_b32 v{T2}, v{T3}', [('E', False)]), (f'ds_read_b32 v{T3}, v{T3} offset:1024', [('E', False)])]
    NEXTRA = 2
    def adma(self):
        dum = self.lab('dum'); four = self.lab('a4'); back = self.lab('back'); b4 = self.lab('b4')
        ea = f's[{sEA}:{sEA+3}]'; m = mod('eald', '')
        self.ool(f'{dum}:\nv_mov_b32 v{T2}, -1\ns_mov_b32 m0, {SCR}\ns_mov_b64 exec, 1\n' + f'buffer_load_dwordx4 v{T2}, {ea}, 0 offen lds\n'*2 + f's_mov_b64 exec, -1\ns_branch {back}')
        self.ool(f"""{four}:
            {self.pooladdr(sT+7, sN4, 512)}
            v_add_u32 v{T2}, s{sT+7}, v{VEO}
            ds_read_b32 v{T2}, v{T2}
            s_add_u32 m0, s{sT+7}, {OA}
            s_waitcnt lgkmcnt(0)
            v_or_b32 v{T2}, v{T2}, v{VH16}
            buffer_load_dwordx4 v{T2}, {ea}, 0 offen {m} lds
            s_branch {b4}""")
        return [('wait', 'E'), f'v_or_b32 v{T2}, v{T2}, v{VH16}', f'v_or_b32 v{T3}, v{T3}, v{VH16}', f"""
        s_cmp_lg_u32 s{sNPH}, 0
        s_cbranch_scc1 {dum}
        s_add_u32 m0, s{sNBs}, {OA}
        s_add_u32 s{sT+7}, s{sNBs}, {OA+1024}
        buffer_load_dwordx4 v{T2}, {ea}, 0 offen {m} lds
        s_mov_b32 m0, s{sT+7}
        s_mov_b32 exec_hi, 0
        buffer_load_dwordx4 v{T3}, {ea}, 0 offen {m} lds
        s_cmp_eq_u32 s{sNK}, 4
        s_cbranch_scc1 {four}
        {b4}:
        s_mov_b32 exec_hi, -1
        {back}:"""]
    def areads(self, s):
        b = ACC + (s & 1) * 20
        va, vy, oa, oy, o = VAO, VYO, s*512, s*64, []
        if s == 3:
            va, vy, oa, oy = ACC + 56, ACC + 57, 0, 0
            o = [self.pooladdr(sT+7, sC4, 512) + f'\ns_sub_u32 s{sT+7}, s{sT+7}, s{sCB}\nv_add_u32 v{va}, s{sT+7}, v{VAO}',
                 self.pooladdr(sT+7, sC4, 64) + f'\ns_sub_u32 s{sT+7}, s{sT+7}, s{sCB}\nv_add_u32 v{vy}, s{sT+7}, v{VYO}']
        o += [(f'ds_read_b64_tr_b16 v[{b}:{b+1}], v{va} offset:{oa}', [(f'a{s}', False)]),
              (f'ds_read_b64_tr_b16 v[{b+2}:{b+3}], v{va} offset:{oa+128}', [(f'a{s}', False)])]
        for t in range(2):
            for hh in range(2):
                d = b + 4 + t*8 + hh*4
                o.append((f'ds_read_b128 v[{d}:{d+3}], v{vy} offset:{oy + t*384 + hh*16}', [(f'y{s}{t}', False)]))
        return o
    def abuild(self, nK):
        o = []
        for s in range(nK):
            b = ACC + (s & 1) * 20; un = ACC + 40 + (s & 1) * 8
            o.append(('wait', f'y{s}1' if (opt('mw', 1) and s < 2) else f'a{s}'))
            for i in range(4):
                o += [f'v_lshlrev_b32 v{un+2*i}, 16, v{b+i}', f'v_and_b32 v{un+1+2*i}, 0xffff0000, v{b+i}']
            for t in range(2):
                o.append(('wait', f'y{s}{t}'))
                for e in range(8): o.append(f'v_mul_f32 v{b+4+t*8+e}, v{un+e}, v{b+4+t*8+e}')
                for i in range(4): o.append(f'v_cvt_pk_bf16_f32 v{AR+s*8+t*4+i}, v{b+4+t*8+2*i}, v{b+5+t*8+2*i}')
            if s + 2 < nK: o += self.areads(s + 2)
        return o
    R = dict(A=PW, B=PW+2, C=PW+4, D=PW+6, E=PW+8, F=PW+10)
    CH_ = {0: [(0,'A','new'),(2,'B','new'),(2,'C','new'),(2,'D','new')],
           1: [(3,'A','new'),(1,'B','new'),(4,'C','new'),(4,'D','new')],
           2: [(3,'E','new'),(4,'C','neg'),(1,'B','acc'),(4,'F','new')],
           3: [(3,'E','new'),(4,'D','neg'),(4,'F','neg'),(1,'B','acc')]}
    def F(self, q, k):
        t, u = TILES[k]; o = []
        for r in range(8):
            for b in (2*t, 2*t+1):
                p, d, mode = self.CH_[q][b]
                T = tile(t, u) + (b & 1)*8 + r; W = Wreg(p, u) + r; D = self.R[d] + u
                if r == 0 and mode == 'new': o.append(f'v_mul_f32 v{D}, v{T}, v{W}')
                elif r == 0 and mode == 'neg': o.append(f'v_fma_f32 v{D}, v{T}, v{W}, -v{D}')
                else: o.append(f'v_fmac_f32 v{D}, v{T}, v{W}')
        return o
    SROW = {0: 0, 2: 1, 8: 2, 5: 3, 6: 4, 3: 5, 9: 6, 1: 7, 4: 8, 10: 9, 7: 10}
    def fin(self, q, ph, sp=None):
        sp = sCP if sp is None else sp
        R = self.R
        pairs = {0: [(0, 'A', 'B'), (1, 'D', 'C')], 1: [], 2: [(2, 'E', 'A')], 3: [(3, 'E', 'B'), (4, 'F', 'C')]}[q]
        o = []
        for (slot, x, y) in pairs: o += [f'v_permlane32_swap_b32 v{R[x]+u}, v{R[y]+u}' for u in range(2)]
        if q == 3: o.append(f'v_permlane32_swap_b32 v{R["D"]}, v{R["D"]+1}')
        if ph == 1 and q == 0: o.append(f'v_lshl_add_u32 v{VPA}, v{VL2}, 1, s{sCP}')
        for (slot, x, y) in pairs: o += [f'v_add_f32 v{R[x]+u}, v{R[x]+u}, v{R[y]+u}' for u in range(2)]
        cv = [(slot, R[x], R[x]+1) for (slot, x, y) in pairs]
        if q == 3:
            o.append(f'v_add_f32 v{R["D"]}, -v{R["D"]}, -v{R["D"]+1}')
            cv.append((5, R['D'], R['D']))
        if cv and ph == 0:
            o.append(f's_set_gpr_idx_on s{sp}, gpr_idx(DST)\n' + ''.join(f'v_cvt_pk_bf16_f32 v{P0+slot}, v{lo}, v{hi}\n' for (slot, lo, hi) in cv) + 's_set_gpr_idx_off')
        elif cv:
            if q == 3: o.append(f'v_sub_u32 v{R["D"]+1}, v{VPA}, v{VH16}')
            for (slot, lo, hi) in cv: o.append(f'v_cvt_pk_bf16_f32 v{lo}, v{lo}, v{hi}')
            for (slot, lo, hi) in cv:
                o.append((f'ds_write_b32 v{VPA}, v{lo} offset:{slot*256}' if slot < 5 else f'ds_write_b16 v{R["D"]+1}, v{lo} offset:1280', [('P', False)]))
        return o
    def drop(self, line):
        x = opt('drop', '')
        if not x or not getattr(self, 'inunit', False) or '\n' in line.strip(): return False
        l = line.strip()
        if 'D' in x and l.startswith('buffer_load') and (f's[{sX}:' in l or f's[{sX2}:' in l): return True
        if 'P' in x and l.startswith('ds_write_b16'): return True
        if 'S' in x and l.startswith('v_permlane'): return True
        if 'C' in x and l.startswith('v_cvt_pk'): return True
        if 'B' in x and l.startswith('ds_read_b64_tr') and (f'v{VB0} ' in l or f'v{VB1} ' in l): return True
        if 'F' in x and l.startswith('v_fmac'): return True
        if 'A' in x and l.startswith(('v_lshlrev_b32','v_and_b32','v_cvt_pk')): return True
        if 'A' in x and l.startswith('v_mul_f32') and int(l.split()[1][1:-1]) < 64: return True
        if 'Y' in x and l.startswith(('ds_read_b128',)): return True
        return False
    def emit(self, items, lg):
        for it in items:
            if isinstance(it, tuple) and it[0] == 'V':
                if not self.drop(it[1]): self.a(it[1])
                self.vq += [it[2]] * it[3]; continue
            if isinstance(it, tuple) and it[0] == 'wait' and len(it) > 2 and isinstance(it[2], str):
                idx = [k for k, t in enumerate(self.vq) if t == it[2]]
                if idx: cnt = len(self.vq) - 1 - idx[-1]; self.vq = self.vq[idx[-1]+1:]
                it = ('wait', it[1], cnt if idx else None)
            if isinstance(it, str):
                if not self.drop(it): self.a(it)
            elif it[0] != 'wait' and self.drop(it[0]):
                for t, o in it[1]: lg.issue(t, o)
            elif it[0] == 'wait':
                w = lg.waitline(it[1])
                if len(it) > 2 and it[2] is not None: w = f's_waitcnt vmcnt({it[2]})' + (w[len('s_waitcnt'):] if w else '')
                if w: self.a(w)
            else:
                self.a(it[0])
                for t, o in it[1]: lg.issue(t, o)
    LATE = opt('late', 0)
    ENTRY = ([] if LATE else [('B', False)]*2 + [('B1' if opt('split', 0) else 'B', False)]*2) + [('a0', False)]*2 + [('y00', False)]*2 + [('y01', False)]*2 + [('a1', False)]*2 + [('y10', False)]*2 + [('y11', False)]*2
    @staticmethod
    def cost(it):
        if isinstance(it, tuple):
            if it[0] == 'wait': return 1
            it = it[1] if it[0] == 'V' else it[0]
        return sum((2 if 'permlane' in l else 1) for l in it.strip().split('\n') if not l.strip().endswith(':'))
    def unit(self, nK, ph):
        if opt('dmaf', 0): return self.unit2(nK, ph)
        a = self.a
        lg = LG(a, self.ENTRY)
        a(f'K2_U{nK}{ph}:')
        self.inunit = True
        n = 4 * nK
        BUD = opt('bud', 7)
        pre = seg(0)
        claim = (self.claim0() if ph == 0 else self.atomic())
        after = ([] if ph == 0 else [('wait', 'C')] + self.claimed()) + self.next_info(ph)
        if nK == 1: pre += claim
        LATE = self.LATE; LP = opt('lp', 16)
        def ins(l, items, back): return l[:max(0, len(l) - back)] + items + l[max(0, len(l) - back):]
        ab = self.abuild(nK)
        if LATE: ab = ins(ab, ['s_waitcnt vmcnt(6)'] + self.bread(0), opt('lp2', 16))
        pre += ab
        if nK == 1:
            pre += after + (self.eread() if ph == 0 else [])
            for t in range(4): pre += self.sread(t)
            if ph == 0: pre += self.adma()
            for t in range(4): pre += self.gmad(t)
        x = -1 if nK == 1 else 2
        MW = opt('mergewait', True)
        gaps = [[] for _ in range(4*n)]; tailg = [[] for _ in range(4*n)]
        late = lambda j: LATE and j % nK == 0
        hs = lambda j: opt('skiph', 0) and nK == 3 and 4 <= j < n and j % 3 == 2
        vmn = lambda i: None if late(i + 1) else 4 - hs(i+2) - hs(i+3) + (self.NEXTRA if (ph == 0 and x < i <= x + 3) else 0)
        vml = lambda j: 6 + (self.NEXTRA if (ph == 0 and x + 1 <= j <= x + 4) else 0)
        for i in range(n):
            d = self.dma(i & 3, G + 2*((i+4) % nK), sOWN + (i+4)//nK) if i + 4 < n else self.dma(i & 3, G + 2*(i+4-n), sNX + (i+4-n))
            br = self.bread(i + 1); SP = opt('split', 0)
            if late(i + 1): br = []
            w = [] if MW else [f's_waitcnt vmcnt({vmn(i)})']
            if SP == 0:
                gaps[4*i] += w + br; tailg[4*i] += [d[0]]; gaps[4*i+1] += [d[1]] + ([] if hs(i+4) else [d[2]])
            elif SP == 1:
                gaps[4*i] += w + br[:2]; tailg[4*i+1] += [('wait', 'B1'), d[0]]; gaps[4*i+2] += [d[1]] + br[2:]; tailg[4*i+2] += [d[0]]; gaps[4*i+3] += [d[2]]
            elif SP == 2:
                gaps[4*i] += w + br[:2]; gaps[4*i+1] += br[2:]; tailg[4*i+1] += [d[0]]; gaps[4*i+2] += [d[1]]; tailg[4*i+2] += [d[0]]; gaps[4*i+3] += [d[2]]
            if i + 1 < n: tailg[4*i+3] += [('wait', 'B1' if SP == 2 else 'B', vmn(i+1) if MW else None)]
        used = lambda g: sum(map(self.cost, gaps[g] + tailg[g]))
        def place(items, g0, g1):
            g = g0
            for it in items:
                while g < g1 and used(g) + self.cost(it) > BUD and used(g) > 1: g += 1
                gaps[g].append(it)
            return g
        DEF = opt('defer', True) and nK > 1
        if nK > 1:
            for t in range(4):
                place(self.sread(t), 4*(n-6+t) + (3 if opt('split', 0) else 2), 4*(n-6+t) + 3)
                place(self.gmad(t), 4*(n-5+t) + 1, 4*(n-5+t) + 3)
        ndef = [0]*4
        for q in range(1, 4):
            g0 = 4*q*nK
            if DEF:
                f3 = self.F(q-1, 3)
                room = [max(0, BUD - used(g0 + k)) for k in range(3)]
                m = min(16, sum(room)); ndef[q-1] = m
                f3 = f3[16-m:]
                for k in range(3):
                    gaps[g0 + k] += f3[:room[k]]; f3 = f3[room[k]:]
            place(self.fin(q-1, ph), g0 + (3 if DEF else 1), 4*(q*nK + nK - 1) + (1 if nK > 1 else 3))
        place(self.fin(3, ph, sPP), 1, 4*(nK - 1) + (1 if nK > 1 else 3))
        if nK > 1:
            if ph == 0:
                g = place(claim + after, 1, 5)
                place(self.eread(), max(g, 5), 7)
                place(self.adma(), 4*x + 3, 4*x + 3)
            else:
                place(claim, 1, 3)
                g1 = 4*(n-6) + (3 if opt('split', 0) else 2)
                keep = gaps[g1]; k0 = [i for i, it in enumerate(keep) if isinstance(it, str) and f'v{VSO}' in it]
                moved = keep[k0[0]:] if k0 else []
                if k0: gaps[g1] = keep[:k0[0]]
                place(after, 5, g1)
                gaps[g1] += moved
        if opt('dsp', 1):
            upd = [f's_sub_u32 s{sLIM}, s{sNBs}, s{sCB}', f's_mov_b32 s{sCB}, s{sNBs}', f's_mov_b32 s{sC4}, s{sN4}',
                   (f's_cmp_eq_u32 s{sNPH}, 0' if ph == 0 else f's_cmp_lg_u32 s{sNV}, 0') + f'\ns_cselect_b32 s{sEX}, s{sNK}, 0']
            place(upd, 4*(n-2) + 1, 4*(n-1) + 1)
            gl = max([g for g in range(4*n) if any(('gpr_idx' in (it if isinstance(it, str) else it[0])) or (f's{sCP}' in (it if isinstance(it, str) else it[0])) for it in gaps[g])] + [4*(n-2)])
            place([f's_mov_b32 s{sPP}, s{sCP}', f's_mov_b32 s{sCP}, s{sNP}'], gl, max(gl, 4*(n-1) + 2))
        nf0 = [0]*4
        if nK > 1:
            for q in range(4):
                g = 4*(q*nK + nK - 1) + 2
                nf0[q] = max(0, BUD - used(g))
                gaps[g] += self.F(q, 0)[:nf0[q]]
        self.emit([f's_setprio {opt("prioa", 1)}'] + pre + seg(1) + [('wait', 'B', vmn(0) if MW else None)] + ([f's_setprio {opt("prio", 1)}'] if opt("prio", 1) != opt("prioa", 1) else []), lg)
        for i in range(n):
            q, s = divmod(i, nK)
            for k, (t, u) in enumerate(TILES):
                c = f'v[{tile(t,u)}:{tile(t,u)+15}]' if s else '0'
                bb = BR + (i & 1)*8 + u*4
                if 'M' not in opt('drop', ''): a(f'v_mfma_f32_32x32x16_bf16 v[{tile(t,u)}:{tile(t,u)+15}], v[{AR+s*8+t*4}:{AR+s*8+t*4+3}], v[{bb}:{bb+3}], {c}')
                g = 4*i + k
                if k == 3 and s == nK - 1:
                    self.emit([f's_setprio {opt("prio0", 0)}'] + gaps[g] + seg(2+2*q) + self.F(q, 0)[nf0[q]:], lg)
                    if q < 3:
                        fb = self.F(q, 1) + self.F(q, 2) + self.F(q, 3)[:16-ndef[q]]
                        if LATE: fb = ins(fb, [f's_waitcnt vmcnt({vml(i+1)})'] + self.bread(i + 1), LP)
                        self.emit(fb + seg(3+2*q) + [f's_setprio {opt("prio", 1)}'], lg)
                else: self.emit(gaps[g], lg)
                self.emit(tailg[g], lg)
        end = [f's_sub_u32 s{sT}, s{sNBs}, s{sCB}', f'v_add_u32 v{VAO}, s{sT}, v{VAO}', f'v_add_u32 v{VYO}, s{sT}, v{VYO}']
        if opt('dsp', 1): end = [f'v_add_u32 v{VAO}, s{sLIM}, v{VAO}', f'v_add_u32 v{VYO}, s{sLIM}, v{VYO}']
        end += self.F(3, 1) + self.areads(0) + self.F(3, 2) + self.areads(1) + self.F(3, 3)
        self.emit(end, lg)
        if SEG:
            a('s_memtime s[94:95]\ns_waitcnt lgkmcnt(0)')
            def acc(d, i, j): a(f's_sub_u32 s67, s{76+2*j}, s{76+2*i}\ns_add_u32 s{d}, s{d}, s67')
            acc(96, 0, 1)
            for q in range(4): acc(97, 1+2*q, 2+2*q)
            for q in range(3): acc(98, 2+2*q, 3+2*q)
            acc(99, 8, 9)
            a(f's_add_u32 s100, s100, {nK}\ns_add_u32 s101, s101, 1')
        assert [x for x in lg.q if x[0] != 'P'] == self.ENTRY, lg.q
        self.inunit = False
        self.dispatch(ph)
    def unit2(self, nK, ph):
        a = self.a
        lg = LG(a, self.ENTRY)
        self.vq = ['i1']*2 + ['i2']*2 + ['i3']*2
        a(f'K2_U{nK}{ph}:')
        self.inunit = True
        n = 4 * nK
        BUD = opt('bud', 7)
        claim = (self.claim0() if ph == 0 else self.atomic())
        after = ([] if ph == 0 else [('wait', 'C')] + self.claimed()) + self.next_info(ph)
        def dm(j):
            d = self.dma(j & 3, G + 2*(j % nK), sOWN + j//nK) if j < n else self.dma(j & 3, G + 2*(j-n), sNX + (j-n))
            return [d[0], ('V', d[1], f'i{j}', 1), ('V', d[2], f'i{j}', 1)]
        def adma():
            x = self.adma(); return x[:-1] + [('V', x[-1], 'A', self.NEXTRA)]
        sched = {-1: [4]}; last = 4
        for q in range(4):
            hi = min((q+1)*nK + 4, n + 3); sched[q] = list(range(last + 1, hi + 1)); last = max(last, hi)
        bof = {j: b for b, l in sched.items() for j in l}
        pre = []
        if nK == 1: pre += claim
        ab = self.abuild(nK)
        if nK == 1:
            pre += ab + after + (self.eread() if ph == 0 else [])
            for t in range(4): pre += self.sread(t)
            if ph == 0: pre += adma()
            for t in range(4): pre += self.gmad(t)
            pre += dm(4)
        else:
            p = opt('dp0', 6); d = dm(4)
            pre += ab[:p] + [d[0]] + ab[p:p+1] + d[1:] + ab[p+1:]
        gaps = [[] for _ in range(4*n)]; tailg = [[] for _ in range(4*n)]
        for i in range(n):
            gaps[4*i] += self.bread(i + 1)
            if i + 1 < n: tailg[4*i+3] += [('wait', 'B', f'i{i+2}')]
        used = lambda g: sum(map(self.cost, gaps[g] + tailg[g]))
        def place(items, g0, g1):
            g = g0
            for it in items:
                while g < g1 and used(g) + self.cost(it) > BUD and used(g) > 1: g += 1
                gaps[g].append(it)
            return g
        place(self.fin(3, ph, sPP), 1, 4*(nK - 1) + (1 if nK > 1 else 3))
        ga = 0
        if nK > 1:
            if ph == 0:
                ga = place(claim + after, 1, 6)
                place(self.eread(), max(ga, 5), 4*2*nK - 3 if nK == 2 else 4*nK - 2)
            else:
                place(claim, 1, 3)
                ga = place(after, 5, 9)
            g = ga
            for t in range(4):
                own = [bof[j] for j in range(4, n) if j % nK == t]
                g0 = max(g, 4*nK*(max(own) + 1) if own else 0); g1 = 4*nK*(bof[n + t] + 1) - 1
                g = place(self.sread(t), g0, g1 - 3)
                place(self.gmad(t), min(g + 3, g1), g1)
        ndef = [0]*4
        for q in range(1, 4):
            g0 = 4*q*nK
            if nK > 1:
                room = [max(0, BUD - used(g0 + k)) for k in range(3)]
                m3 = min(16, sum(room)); m2 = min(16, sum(room) - m3, room[0] + room[1]) if opt('def2', 1) else 0
                ndef[q-1] = m2 + m3
                f = (self.F(q-1, 2) + self.F(q-1, 3))[32 - m2 - m3:]
                for k in range(3):
                    gaps[g0 + k] += f[:room[k]]; f = f[room[k]:]
            place(self.fin(q-1, ph), g0 + (3 if nK > 1 else 1), 4*(q*nK + nK - 1) + (1 if nK > 1 else 3))
        upd = [f's_sub_u32 s{sLIM}, s{sNBs}, s{sCB}', f's_mov_b32 s{sCB}, s{sNBs}', f's_mov_b32 s{sC4}, s{sN4}',
               (f's_cmp_eq_u32 s{sNPH}, 0' if ph == 0 else f's_cmp_lg_u32 s{sNV}, 0') + f'\ns_cselect_b32 s{sEX}, s{sNK}, 0']
        place(upd, 4*(n-2) + 1, 4*(n-1) + 1)
        txt = lambda it: it if isinstance(it, str) else (it[1] if it[0] == 'V' else it[0])
        gl = max([g for g in range(4*n) if any(('gpr_idx' in txt(it)) or (f's{sCP}' in txt(it)) for it in gaps[g])] + [4*(n-2)])
        place([f's_mov_b32 s{sPP}, s{sCP}', f's_mov_b32 s{sCP}, s{sNP}'], gl, max(gl, 4*(n-1) + 2))
        nf0 = [0]*4
        if nK > 1:
            for q in range(4):
                g = 4*(q*nK + nK - 1) + 2
                nf0[q] = max(0, BUD - used(g))
                gaps[g] += self.F(q, 0)[:nf0[q]]
        def burst(q, f):
            blocks = []
            for j in sched[q]:
                d = dm(j)
                if j == (q+1)*nK + 4: d = [('wait', 'B')] + d
                blocks.append(d)
            if ph == 0 and nK > 1 and q == (1 if nK == 2 else 0): blocks.insert(1 if nK == 2 else len(blocks), adma())
            o = []; p0 = opt('dp', 2); st = opt('dst', 8)
            for k, d in enumerate(blocks):
                cut = p0 if k == 0 else st
                o += f[:cut]; f = f[cut:]
                if isinstance(d[-1], tuple) and d[-1][2] != 'A': o += d[:-2] + f[:1] + d[-2:]; f = f[1:]
                else: o += d
            return o + f
        self.emit([f's_setprio {opt("prioa", 1)}'] + pre + [('wait', 'B', 'i1')], lg)
        for i in range(n):
            q, s = divmod(i, nK)
            for k, (t, u) in enumerate(TILES):
                c = f'v[{tile(t,u)}:{tile(t,u)+15}]' if s else '0'
                bb = BR + (i & 1)*8 + u*4
                if 'M' not in opt('drop', ''): a(f'v_mfma_f32_32x32x16_bf16 v[{tile(t,u)}:{tile(t,u)+15}], v[{AR+s*8+t*4}:{AR+s*8+t*4+3}], v[{bb}:{bb+3}], {c}')
                g = 4*i + k
                if k == 3 and s == nK - 1:
                    self.emit([f's_setprio {opt("prio0", 0)}'] + gaps[g], lg)
                    if q < 3:
                        f = self.F(q, 0)[nf0[q]:] + self.F(q, 1) + self.F(q, 2) + self.F(q, 3)
                        self.emit(burst(q, f[:len(f) - ndef[q]]) + [f's_setprio {opt("prio", 1)}'], lg)
                else: self.emit(gaps[g], lg)
                self.emit(tailg[g], lg)
        end = burst(3, self.F(3, 0)[nf0[3]:] + [f'v_add_u32 v{VAO}, s{sLIM}, v{VAO}', f'v_add_u32 v{VYO}, s{sLIM}, v{VYO}'] + self.F(3, 1))
        end += [('wait', '-', 'A')] + self.areads(0) + self.F(3, 2) + self.areads(1) + self.F(3, 3)
        self.emit(end, lg)
        assert [x for x in lg.q if x[0] != 'P'] == self.ENTRY, lg.q
        assert self.vq[-6:] == [f'i{n+1}']*2 + [f'i{n+2}']*2 + [f'i{n+3}']*2, self.vq
        self.inunit = False
        self.dispatch(ph)
    def dispatch(self, ph, check=True):
        if check and opt('dsp', 1):
            self.a(f"""
            s_cmp_eq_u32 s{sEX}, 2
            s_cbranch_scc1 K2_U2{ph}
            s_cmp_eq_u32 s{sEX}, 3
            s_cbranch_scc1 K2_U3{ph}
            s_branch K2_DSP{ph}
            """)
            return
        if check:
            if ph == 0: self.a(f's_cmp_lg_u32 s{sNPH}, 0\ns_cbranch_scc1 K2_SWITCH')
            else: self.a(f's_cmp_eq_u32 s{sNV}, 0\ns_cbranch_scc1 K2_TAIL')
        self.a(f"""
        s_mov_b32 s{sCB}, s{sNBs}
        s_mov_b32 s{sPP}, s{sCP}
        s_mov_b32 s{sC4}, s{sN4}
        s_mov_b32 s{sCP}, s{sNP}
        s_cmp_eq_u32 s{sNK}, 2
        s_cbranch_scc1 K2_U2{ph}
        s_cmp_eq_u32 s{sNK}, 3
        s_cbranch_scc1 K2_U3{ph}
        s_cmp_eq_u32 s{sNK}, 1
        s_cbranch_scc1 K2_U1{ph}
        s_branch K2_U4{ph}
        """)

    def wload(self, ph, vl16):
        for i in range(20):
            if i % 4 == 0: self.a(f's_mov_b32 s{sT}, {WS_WTAB + ph*20480 + i*1024}')
            self.a(f'buffer_load_dwordx4 v[{WR+4*i}:{WR+3+4*i}], v{vl16}, s[{sWS}:{sWS+3}], s{sT} offen offset:{(i%4)*1024} {"sc1" if FUSE else ""}')

    def fill_all(self, vT_):
        a = self.a
        for t in range(512): assert (t*437) >> 16 == t // 150
        a(f'''
        v_mul_u32_u24 v76, 437, v{vT_}
        v_lshrrev_b32 v76, 16, v76
        v_mul_u32_u24 v76, 150, v76
        v_sub_u32 v76, v{vT_}, v76
        v_mov_b32 v80, -1
        v_mov_b32 v77, 1.0
        v_cmp_gt_u32 vcc, 48, v76
        v_lshlrev_b32 v78, 4, v{vT_}
        v_add_u32 v78, {RECBASE}, v78
        v_cndmask_b32 v80, v80, 0, vcc
        v_cmp_gt_u32 vcc, 12, v76
        v_add_u32 v79, 64800, v78
        s_nop 0
        v_cndmask_b32 v80, v80, v77, vcc
        v_cmp_gt_u32 vcc, 450, v{vT_}
        v_mov_b32 v81, v80
        v_mov_b32 v82, v80
        v_mov_b32 v83, v80
        s_mov_b64 exec, vcc
        ''')
        for i in range(13): a(f'ds_write_b128 v{78 + (i//9)}, v[80:83] offset:{(i%9)*7200}')
        a(f'''
        v_cmp_gt_u32 vcc, {150 + (OA+1024)//16}, v{vT_}
        s_cbranch_vccz K2_NOCL
        s_mov_b64 exec, vcc
        ds_write_b128 v79, v[80:83] offset:{4*7200}
        K2_NOCL:
        s_mov_b64 exec, -1
        ''')
    def fill_head(self, part):
        a = self.a; n1 = opt('n1', 40)
        if part == 0:
            a(f'''
            v_subrev_u32 v76, 320, v0
            v_mov_b32 v80, -1
            v_mov_b32 v77, 1.0
            v_cmp_gt_u32 vcc, 48, v76
            v_lshlrev_b32 v78, 4, v76
            v_add_u32 v78, {RECBASE}, v78
            v_cndmask_b32 v80, v80, 0, vcc
            v_cmp_gt_u32 vcc, 12, v76
            v_add_u32 v79, {27*NSTR}, v78
            s_nop 0
            v_cndmask_b32 v80, v80, v77, vcc
            v_cmp_gt_u32 s[{sEX}:{sEX+1}], {(OA+1024)//16 - 64}, v8
            v_mov_b32 v81, v80
            v_mov_b32 v82, v80
            v_mov_b32 v83, v80
            ''')
        for i in (range(n1) if part == 0 else range(n1, 40)): a(f'ds_write_b128 v{78 + (i//27)}, v[80:83] offset:{(i%27)*NSTR}')
        if part == 1:
            a(f'''
            s_cmp_eq_u32 s{sW}, 6
            s_cselect_b64 exec, s[{sEX}:{sEX+1}], -1
            ds_write_b128 v79, v[80:83] offset:{13*NSTR}
            s_mov_b64 exec, -1
            ''')
    def fill_tail(self):
        for t in range(320): assert (t*2979) >> 16 == t // 22
        self.a(f'''
        v_mul_u32_u24 v76, 2979, v0
        v_lshrrev_b32 v76, 16, v76
        v_mul_u32_u24 v77, {NSTR - 22*16}, v76
        v_lshl_add_u32 v78, v0, 4, v77
        v_add_u32 v78, {RECBASE + 128*16}, v78
        v_add_u32 v79, {28*NSTR}, v78
        v_mov_b32 v80, -1
        v_mov_b32 v81, -1
        v_cmp_gt_u32 vcc, 14, v76
        v_cmp_gt_u32 s[{sEX}:{sEX+1}], 12, v76
        v_mov_b32 v82, -1
        v_mov_b32 v83, -1
        s_mov_b64 exec, vcc
        ds_write_b128 v78, v[80:83]
        ds_write_b128 v78, v[80:83] offset:{14*NSTR}
        s_mov_b64 exec, s[{sEX}:{sEX+1}]
        ds_write_b128 v79, v[80:83]
        s_mov_b64 exec, -1
        ''')
    def counters(self, vL, first):
        self.a(f'''
        v_mov_b32 v76, 0
        v_mov_b32 v77, -1
        v_lshlrev_b32 v78, 2, v{vL}
        v_add_u32 v78, {HIST}, v78
        s_mov_b64 exec, 0x1ff
        ds_write_b32 v78, v76 offset:{PROG-HIST}
        s_mov_b64 exec, 0xff
        ds_write_b32 v78, v77 offset:{NULLSRC-HIST}
        s_mov_b64 exec, -1
        {'' if first else f's_cmp_lg_u32 s{sRND}, 0'}
        {'' if first else f's_cbranch_scc1 K2_NOH'}
        s_mov_b32 exec_hi, 0xffff
        ds_write_b32 v78, v76
        s_mov_b64 exec, 0x3f
        ds_write_b32 v78, v76 offset:{FLAG-HIST}
        s_mov_b64 exec, -1
        ''')
    def srds(self):
        a = self.a
        srd(a, sX, 80, N*1024); srd(a, sOUT, 96, N*1024); srd(a, sEA, 84, E*32)
        a('s_sub_u32 s80, s80, 1024\ns_subb_u32 s81, s81, 0'); srd(a, sX2, 80, N*1024 + 1024)
    def consts(self, vL):
        self.a(f'''
        v_and_b32 v84, 15, v{vL}                ; i
        v_lshrrev_b32 v85, 5, v{vL}             ; h
        v_bfe_u32 v86, v{vL}, 4, 1
        v_lshrrev_b32 v87, 2, v84
        v_and_b32 v88, 3, v84                   ; c
        v_lshl_add_u32 v89, v85, 3, v87         ; 8h + row
        v_lshlrev_b32 v{VAO}, 5, v89
        v_lshl_add_u32 v{VAO}, v88, 3, v{VAO}
        v_add_u32 v{VAO}, {OA}, v{VAO}
        v_mul_u32_u24 v{VYO}, 192, v86
        v_lshl_add_u32 v{VYO}, v85, 5, v{VYO}
        v_lshrrev_b32 v90, 1, v88
        v_lshl_add_u32 v90, v86, 1, v90         ; chunk (u = 0)
        v_bfe_u32 v91, v87, 1, 1
        v_lshlrev_b32 v91, 2, v91
        v_xor_b32 v90, v90, v91
        v_lshlrev_b32 v90, 4, v90
        v_lshl_add_u32 v90, v89, 7, v90
        v_and_b32 v91, 1, v88
        v_lshl_add_u32 v90, v91, 3, v90
        v_add_u32 v{VB0}, s{sRING}, v90
        v_xor_b32 v{VB1}, 64, v{VB0}
        v_lshrrev_b32 v90, 3, v{vL}
        v_lshlrev_b32 v{VSO}, 2, v90
        v_add_u32 v{VSO}, {OS}, v{VSO}
        v_bfe_u32 v90, v90, 1, 1
        v_lshlrev_b32 v90, 2, v90
        v_and_b32 v91, 7, v{vL}
        v_xor_b32 v90, v90, v91
        v_lshlrev_b32 v{VLG}, 4, v90
        v_lshlrev_b32 v{VL2}, 1, v{vL}
        v_and_b32 v{VH16}, 1, v{vL}
        v_lshlrev_b32 v{VH16}, 4, v{VH16}
        v_lshrrev_b32 v90, 1, v{vL}
        v_lshlrev_b32 v90, 5, v90
        v_add_u32 v{VEO}, {OA}, v90
        ''')
    def pad(self, name, ret):
        return f'K2_PAD_{name}:\ns_branch {ret}' if name in opt('pads', self.PADS).split('_') and opt('pad', 1) else ''
    def padx(self, name, ret):
        return f'K2_PAD_{name}:\ns_cbranch_execz {ret}' if name in opt('pads', self.PADS).split('_') and opt('pad', 1) else ''
    PADS = 'S1_S2_H1_H2_H3_B3_LD_NW_SC_SD_U20_U30_U21_U31_SW_TL_T2_OV'
    def hops(self, names, ret):
        if not opt('pad', 1): return
        self.a('s_mov_b64 exec, 0')
        for w, n in names:
            if n in opt('pads', self.PADS).split('_'): self.a(f's_cmp_eq_u32 s{sW}, {w}\ns_cbranch_scc1 K2_PAD_{n}')
        self.a(f'{ret}:\ns_mov_b64 exec, -1')
    def stage_sort(self, vL, vT_):
        a = self.a; st = 'sc1'
        RAW = 24576
        a(f"""
        s_cmp_lg_u32 s{sW}, 7
        s_cbranch_scc1 KS_NOTAG
        """)
        srd(a, 60, 98, 256)
        a(f"""
        s_cmp_lg_u32 s2, 0
        s_cbranch_scc1 KS_TAGLD
        s_or_b32 s24, s74, 1
        v_mov_b32 v10, s24
        v_mov_b32 v11, 0
        s_mov_b64 exec, 1
        buffer_atomic_cmpswap v[10:11], v6, s[60:63], 0 offen sc1
        s_mov_b64 exec, -1
        KS_TAGLD:
        v_mov_b32 v14, 0
        """)
        sstamp(a, 1); a('s_barrier'); sstamp(a, 3)
        self.counters(8, True)
        a(f"""
        s_mov_b64 exec, 1
        s_mov_b32 s24, 0x40000
        v_mov_b32 v12, {NONCE}
        KS_TAGW:
        buffer_load_dword v15, v6, s[60:63], 0 offen sc1
        s_waitcnt vmcnt(1)
        v_cmp_ne_u32 vcc, 0, v14
        s_cbranch_vccnz KS_TAGOK
        s_sub_u32 s24, s24, 1
        s_cbranch_scc1 K2_END
        buffer_load_dword v14, v6, s[60:63], 0 offen sc1
        s_waitcnt vmcnt(1)
        v_cmp_ne_u32 vcc, 0, v15
        s_cbranch_vccz KS_TAGW
        ds_write_b32 v12, v15
        s_branch KS_TAGOK2
        KS_TAGOK:
        ds_write_b32 v12, v14
        KS_TAGOK2:
        s_mov_b64 exec, -1
        {'s_memrealtime s[86:87]' if PROFS else ''}
        s_waitcnt lgkmcnt(0)
        s_barrier
        s_branch KS_B3
        KS_H0:
        s_barrier
        s_branch KS_HELP
        {self.pad('S1', 'KS_HOP0')}
        KS_NOTAG:
        s_cmp_ge_u32 s{sW}, 5
        s_cbranch_scc1 {'KS_H0' if opt('eb1', 0) else 'KS_HELP'}
        s_cmp_ge_u32 s2, {NCH}
        s_cbranch_scc1 KS_IDLE
        """)
        srd(a, 40, 88, E*4)
        a(f'buffer_load_dwordx4 v[12:15], v5, s[40:43], s64 offen')
        srd(a, 44, 86, E*4); srd(a, 48, 82, E*6)
        a(f"""
        buffer_load_dwordx4 v[16:19], v5, s[44:47], s64 offen
        buffer_load_dwordx4 v[20:23], v4, s[48:51], s65 offen
        buffer_load_dwordx2 v[24:25], v4, s[48:51], s65 offen offset:16
        v_lshlrev_b32 v2, 2, v0                 ; t*4
        s_lshl_b32 s64, s64, 3
        v_lshl_add_u32 v3, v0, 7, s64
        v_mov_b32 v7, 1
        s_cmp_eq_u32 s{sW}, 4
        s_cbranch_scc1 KS_NOCLR
        ds_write_b32 v2, v6
        KS_NOCLR:
        """)
        sstamp(a, 1); a('s_waitcnt lgkmcnt(0)\ns_barrier'); sstamp(a, 3)
        self.hops([(0, 'B3'), (1, 'LD'), (2, 'NW'), (3, 'SC'), (4, 'SD')], 'KS_HOP')
        self.fill_tail()
        a(f's_mov_b32 s58, {BMUL}\ns_movk_i32 s59, 625\ns_waitcnt vmcnt(3)')
        sstamp(a, 5)
        sort_rank(a, self.padx('S2', 'KS_HOP0'))
        a('s_waitcnt lgkmcnt(0)')
        for j in range(4): a(f'ds_read_b32 v{32+j}, v{32+j} offset:1024')
        sort_emit(a, st)
        a(f"""
        s_branch KS_JOIN
        {self.pad('B3', 'KS_HOP')}
        KS_B3:
        v_mov_b32 v59, {NONCE}
        ds_read_b32 v59, v59
        s_waitcnt lgkmcnt(0)
        s_barrier
        KS_JOIN:
        v_readfirstlane_b32 s{sTAG}, v59
        """)
        stamp(a, 6)
    def helpers(self):
        a = self.a; RAW = 24576
        a(f"""
        {self.pad('H1', 'KS_HOP0')}
        KS_HELP:
        {'s_memrealtime s[78:79]' if PROFS else ''}
        s_mov_b32 s30, 0
        s_cmp_eq_u32 s{sW}, 6
        s_cbranch_scc1 KS_RAW
        s_cmp_ge_u32 s2, 200
        s_cbranch_scc1 KS_NOW
        s_mov_b32 s30, 1
        """)
        weight_loads(a)
        a('K1_GO:\nKS_NOW:\n' + ('' if opt('eb1', 0) else 's_barrier\n') + self.padx('H2', 'KS_HOP0') + '\nKS_FILL:')
        sstamp(a, 3)
        self.fill_head(0)
        sstamp(a, 5)
        a(f'v_mov_b32 v59, {NONCE}\ns_barrier\nds_read_b32 v59, v59')
        self.fill_head(1)
        a(f"""
        {f's_waitcnt vmcnt({opt("xw", 0)}) lgkmcnt(0)' + chr(10) + 's_cmp_eq_u32 s30, 2' + chr(10) + 's_cbranch_scc1 KS_B3' if opt('xw', 0) else ''}
        s_waitcnt vmcnt(0) lgkmcnt(0)
        s_cmp_eq_u32 s30, 0
        s_cbranch_scc1 KS_B3
        v_lshl_or_b32 v40, v65, 16, v64
        v_lshl_or_b32 v41, v67, 16, v66
        v_lshl_or_b32 v42, v69, 16, v68
        v_lshl_or_b32 v43, v71, 16, v70
        buffer_store_dwordx4 v[40:43], v9, s[{sWS}:{sWS+3}], s24 offen sc1
        s_waitcnt lgkmcnt(0)
        s_barrier
        s_lshl_b32 s24, s2, 2
        s_add_u32 s24, s24, {WS_FLG}
        s_mov_b64 exec, 1
        s_waitcnt vmcnt(0)
        buffer_store_dword v59, v6, s[{sWS}:{sWS+3}], s24 offen sc1
        s_mov_b64 exec, -1
        s_branch KS_JOIN
        {self.pad('H3', 'KS_HOP0')}
        KS_RAW:
        {'' if opt('eb1', 0) else 's_barrier'}
        """)
        srd(a, 60, 90, 16*640*2)
        for i in range(20):
            if i % 4 == 0: a(f's_mov_b32 m0, {RAW + i*1024}\ns_movk_i32 s24, {i*1024}')
            a(f'buffer_load_dwordx4 v9, s[60:63], s24 offen offset:{(i%4)*1024} lds')
        xw = opt('xw', 0)
        if xw:
            srd(a, 44, 80, N*1024)
            a(f's_lshr_b32 s24, s2, 3\ns_mul_i32 s24, s24, {xw*64*256}\nv_lshlrev_b32 v10, 8, v8')
            for i in range(xw): a(f'buffer_load_dword v11, v10, s[44:47], s24 offen\ns_add_u32 s24, s24, {64*256}')
            a('s_mov_b32 s30, 2')
        a('s_branch KS_FILL\nKS_IDLE:\ns_barrier')
        self.fill_tail()
        a('s_barrier\ns_branch KS_B3')
    def wraw(self, vL):
        a = self.a; RAW = 24576
        a(f'''
        v_lshrrev_b32 v60, 5, v{vL}             ; h
        v_bfe_u32 v61, v{vL}, 2, 2              ; row
        v_lshl_add_u32 v60, v60, 2, v61
        v_mul_u32_u24 v60, 1280, v60
        v_bfe_u32 v61, v{vL}, 4, 1
        v_lshl_add_u32 v60, v61, 5, v60
        v_and_b32 v61, 3, v{vL}
        v_lshl_add_u32 v60, v61, 3, v60
        ''')
        for i in range(20):
            p, u, rq = i >> 2, (i >> 1) & 1, i & 1
            a(f'ds_read_b64_tr_b16 v[{WR+40+2*i}:{WR+41+2*i}], v60 offset:{RAW + rq*8*1280 + p*256 + u*64}')
        a('s_waitcnt lgkmcnt(0)')
        for i in range(40):
            a(f'v_lshlrev_b32 v{WR+2*i}, 16, v{WR+40+i}\nv_and_b32 v{WR+2*i+1}, 0xffff0000, v{WR+40+i}')

    def gen(self):
        a = self.a
        vL, vT_, vC, vE, vREM, vOFF = 176, 177, 178, 179, 180, 181
        RK = 40
        NBs = 50
        t0 = 192
        ws = f's[{sWS}:{sWS+3}]'
        def loop(done, body):
            for i in range(U):
                a(f'v_cmp_lt_i32 vcc, {2*i}, v{vREM}\ns_cbranch_vccz {done}\ns_mov_b64 exec, vcc')
                a(body(i))
            a(f'{done}:\ns_mov_b64 exec, -1')
        a('s_cmp_ge_u32 s2, 256\ns_cbranch_scc1 K2_END')
        stamp(a, 0)
        a(f'''
        s_load_dwordx16 s[80:95], s[0:1], 0
        s_load_dwordx4 s[96:99], s[0:1], 72
        s_load_dwordx2 s[100:101], s[0:1], 88   ; ws
        s_memrealtime s[74:75]
        v_lshrrev_b32 v1, 6, v0
        s_mov_b32 s{sB}, s2
        v_readfirstlane_b32 s{sW}, v1
        ''')
        self.hops([(0, 'S1'), (1, 'S2'), (5, 'H1'), (6, 'H2'), (2, 'H3')], 'KS_HOP0')
        a(f'''
        v_and_b32 v8, 63, v0
        v_lshlrev_b32 v9, 4, v8                 ; lane*16
        v_mov_b32 v6, 0
        v_lshlrev_b32 v5, 4, v0                 ; t*16
        v_mul_u32_u24 v4, 24, v0
        s_mul_i32 s64, s2, {CH*4}
        s_mul_i32 s65, s2, {CH*6}
        v_mov_b32 v{vL}, v8
        v_mov_b32 v{vT_}, v0
        s_mul_i32 s{sNB}, s2, 625
        s_add_u32 s{sNC}, s{sNB}, {625+15}
        s_add_u32 s{sNB}, s{sNB}, 15
        s_lshr_b32 s{sNB}, s{sNB}, 4
        s_lshr_b32 s{sNC}, s{sNC}, 4
        s_sub_u32 s{sNC}, s{sNC}, s{sNB}
        s_movk_i32 s{s1024}, 1024
        s_lshl_b32 s{sRING}, s{sW}, 13
        s_mov_b32 s{sPROG}, {PROG}
        s_lshl_b32 s{sPROGW}, s{sW}, 2
        s_add_u32 s{sPROGW}, s{sPROGW}, s{sPROG}
        {chr(10).join(f's_add_u32 s{sM0+i}, s{sRING}, {i*2048}' for i in range(4))}
        s_waitcnt lgkmcnt(0)
        ''')
        if opt('wsoff', 0): a(f's_add_u32 s100, s100, {opt("wsoff", 0) << 20}\ns_addc_u32 s101, s101, 0')
        srd(a, sWS, 100, WS_SIZE)
        self.stage_sort(vL, vT_)
        a(f'''
        s_mov_b32 s{sJ0}, 0
        s_mov_b32 s{sFIRST}, 1
        {chr(10).join(f's_mov_b32 s{i}, 0' for i in range(96, 102)) if SEG else ''}
        s_mov_b32 s{sRND}, 0
        s_mov_b32 s{sR}, 1
        K2_CELLS:
        v_lshrrev_b32 v{vC}, 1, v{vT_}          ; cell
        v_min_u32 v{vC}, {NCH-1}, v{vC}
        v_mul_u32_u24 v72, {TSTR}, v{vC}
        s_and_b32 s{sT}, s{sB}, 7
        s_lshl_b32 s{sT}, s{sT}, 7
        s_lshr_b32 s{sT+1}, s{sB}, 5
        s_lshl_b32 s{sT+1}, s{sT+1}, 4
        s_add_u32 s{sT+9}, s{sT}, s{sT+1}
        s_add_u32 s{sT+9}, s{sT+9}, {WS_TBL}
        buffer_load_dwordx4 v[76:79], v72, {ws}, s{sT+9} offen sc1
        ''')
        a(f's_cmp_eq_u32 s{sFIRST}, 0\ns_cbranch_scc1 K2_NOSRD')
        self.srds()
        self.hops([(0, 'U20'), (1, 'U30'), (2, 'U21'), (3, 'U31'), (4, 'SW'), (5, 'TL'), (6, 'T2'), (7, 'OV')], 'K2_HOP')
        a('K2_NOSRD:')
        self.consts(vL)
        def chk(r): return f"""
            v_xor_b32 v73, s{sT+1}, v{r}
            v_xor_b32 v74, s{sT+1}, v{r+1}
            v_or_b32 v73, v73, v74
            v_xor_b32 v74, s{sTAG}, v{r+3}
            v_lshrrev_b32 v73, 22, v73
            v_or_b32 v73, v73, v74
            v_cmp_ne_u32 vcc, 0, v73"""
        a(f'''
        s_lshl_b32 s{sT+1}, s{sTAG}, 22
        s_mov_b32 s{sT+2}, 0x40000
        s_bfe_u32 s{sT+3}, s{sB}, 0x10004
        s_bfe_u32 s{sT+4}, s{sB}, 0x10003
        s_add_u32 s{sT+5}, s{sT+3}, s{sT+4}
        s_mul_i32 s{sT+4}, s{sT+4}, 11
        s_sub_u32 s{sT+6}, 11, s{sT+4}
        v_cmp_gt_u32 vcc, {2*NCH}, v{vT_}
        s_mov_b64 s[{sEX}:{sEX+1}], vcc
        K2_POLL:
        ''')
        if opt('poll2', 0): a(f'''
        buffer_load_dwordx4 v[80:83], v72, {ws}, s{sT+9} offen sc1
        s_waitcnt vmcnt(1)
        {chk(76)}
        s_cbranch_vccz K2_POLLED
        s_sub_u32 s{sT+2}, s{sT+2}, 1
        s_cbranch_scc1 K2_END
        buffer_load_dwordx4 v[76:79], v72, {ws}, s{sT+9} offen sc1
        s_waitcnt vmcnt(1)
        {chk(80)}
        s_cbranch_vccnz K2_POLL
        s_add_u32 s{sT+3}, s{sT+3}, 4
        s_add_u32 s{sT+5}, s{sT+5}, 4
        ''')
        else: a(f'''
        s_waitcnt vmcnt(0)
        {chk(76)}
        s_cbranch_vccz K2_POLLED
        s_sub_u32 s{sT+2}, s{sT+2}, 1
        s_cbranch_scc1 K2_END
        s_mov_b64 exec, vcc
        buffer_load_dwordx4 v[76:79], v72, {ws}, s{sT+9} offen sc1
        s_mov_b64 exec, -1
        s_branch K2_POLL
        {self.pad('LD', 'KS_HOP')}
        ''')
        a(f'''
        K2_POLLED:
        s_set_gpr_idx_on s{sT+3}, gpr_idx(SRC0)
        v_bfe_u32 v{vE}, v76, s{sT+4}, 11
        s_set_gpr_idx_idx s{sT+5}
        v_bfe_u32 v73, v76, s{sT+6}, 11
        s_set_gpr_idx_off
        v_sub_u32 v73, v73, v{vE}
        ''')
        o = Asm(); sv = self.a; self.a = o
        o(f'''
        K2_WINDOW:
        s_mov_b32 s{sRND}, 0
        s_mov_b32 s{sR}, 1
        K2_LOAD:
        v_mbcnt_lo_u32_b32 v{vL}, -1, 0
        v_mbcnt_hi_u32_b32 v{vL}, -1, v{vL}
        s_lshl_b32 s{sT}, s{sW}, 6
        v_add_u32 v{vT_}, s{sT}, v{vL}
        v_lshlrev_b32 v70, 4, v{vL}
        ''')
        self.wload(0, 70)
        self.fill_all(vT_)
        o(f's_cmp_lg_u32 s{sW}, 7\ns_cbranch_scc1 K2_NOH')
        self.counters(vL, False)
        o('K2_NOH:\ns_waitcnt lgkmcnt(0)\ns_barrier\ns_branch K2_CELLS')
        self.a = sv; self.ool(o.text())
        stamp(a, 1)
        a(f'''
        v_cndmask_b32 v73, 0, v73, s[{sEX}:{sEX+1}]
        v_and_b32 v1, 1, v{vT_}
        v_add_u32 v1, s{sJ0}, v1                ; j0 + sub
        v_sub_u32 v{vREM}, v73, v1
        v_add_u32 v{vE}, v{vE}, v1
        v_mul_u32_u24 v{vOFF}, {CSTR}, v{vC}
        v_lshl_add_u32 v{vOFF}, v{vE}, 4, v{vOFF}
        ''')
        MK = [f's[{r}:{r+1}]' for r in (40, 42, 44, 46, 48, 50, 90, 92, 94, 96)]
        def mloop(done, body):
            for i in range(U): a(f's_mov_b64 exec, {MK[i]}\ns_cbranch_execz {done}\n' + body(i))
            a(f'{done}:\ns_mov_b64 exec, -1')
        for i in range(U): a(f'v_cmp_lt_i32 {MK[i]}, {2*i}, v{vREM}')
        ld = lambda i: f'buffer_load_dwordx4 v[{4*i}:{4*i+3}], v{vOFF}, {ws}, 0 offen offset:{32*i} sc1'
        mloop('K2_LD_DONE', ld)
        a(f"""
        s_cmp_eq_u32 s{sFIRST}, 0
        s_cbranch_scc1 K2_NOWRAW
        """)
        self.wraw(vL)
        self.ool(f"""
        K2_FLGLD:
        buffer_load_dwordx4 v[84:87], v72, {ws}, s{sT+6} offen sc1
        s_mov_b32 s{sT+4}, 0
        s_branch K2_FLGL2
        K2_FLGCK:
        s_cmp_lg_u32 s{sRND}, 0
        s_cbranch_scc1 K2_FLGOK
        s_waitcnt vmcnt(0)
        K2_FLGW:
        v_xor_b32 v84, s{sTAG}, v84
        v_xor_b32 v85, s{sTAG}, v85
        v_xor_b32 v86, s{sTAG}, v86
        v_xor_b32 v87, s{sTAG}, v87
        v_or3_b32 v84, v84, v85, v86
        v_or_b32 v84, v84, v87
        v_cmp_ne_u32 vcc, 0, v84
        s_and_b32 vcc_hi, vcc_hi, 0x3ffff       ; 200 flags
        s_cmp_eq_u64 vcc, 0
        s_cbranch_scc1 K2_FLGOK
        s_sub_u32 s{sT+2}, s{sT+2}, 1
        s_cbranch_scc1 K2_END
        buffer_load_dwordx4 v[84:87], v72, {ws}, s{sT+6} offen sc1
        s_waitcnt vmcnt(0)
        s_branch K2_FLGW
        """)
        a(f"""
        K2_NOWRAW:
        {self.padx('NW', 'KS_HOP')}
        v_mul_u32_u24 v{vC}, {CH}, v{vC}
        v_add_lshl_u32 v{vE}, v{vE}, v{vC}, 2
        s_mov_b32 s{sT+8}, {WS_RANK}
        v_mov_b32 v{t0+9}, 1
        s_movk_i32 s{sT}, {NSTR//4}
        s_movk_i32 s{sT+1}, {NSTR}
        s_mov_b32 s{sT+2}, 0x40000
        s_mov_b32 s{sT+3}, 0xffff
        v_mov_b32 v{t0+10}, {RECBASE}
        s_cmp_lg_u32 s{sRND}, 0
        s_cbranch_scc1 K2_RK_LOAD
        v_cmp_lt_i32 vcc, {2*U}, v{vREM}
        s_cbranch_vccz K2_NOMORE
        v_mov_b32 v61, {FLAG}
        ds_write_b32 v61, v{t0+9}
        K2_NOMORE:
        v_lshlrev_b32 v72, 4, v{vL}
        s_mov_b32 s{sT+6}, {WS_FLG}
        s_mov_b32 s{sT+4}, {RECBASE + opt("tp", 8)*NSTR}
        s_cmp_eq_u32 s{sW}, 7
        s_waitcnt vmcnt(0)
        s_cbranch_scc1 K2_FLGLD
        K2_FLGL2:
        """)
        stamp(a, 2)
        prep = lambda i: f'v_mad_u32_u24 v{NBs+i}, v{NBs+i}, s{sT}, v{t0+10}\nv_and_b32 v{4*i+3}, 0xffffff, v{4*i+3}'
        def rank(i):
            self.ool(f'K2_RT{i}:\ns_sub_u32 s{sT+2}, s{sT+2}, 1\ns_cbranch_scc1 K2_END\n{ld(i)}\ns_waitcnt vmcnt(0)\ns_branch K2_CK{i}')
            return f"""K2_CK{i}:
            v_bfi_b32 v{t0}, s{sT+3}, v{4*i+1}, v{4*i+2}
            v_lshrrev_b32 v{NBs+i}, 24, v{4*i+3}
            v_cmp_ne_u32 vcc, s{sTAG}, v{t0}
            v_add_u32 v{RK+i}, {HIST}, v{NBs+i}
            s_cbranch_vccnz K2_RT{i}
            ds_add_rtn_u32 v{RK+i}, v{RK+i}, v{t0+9}
            """ + (prep(i).split('\n')[0] if (opt('tp', 8)) else prep(i))
        mloop('K2_RK_A', rank)
        if opt('tp', 8):
            mloop('K2_TP', lambda i: f'v_cmp_gt_u32 vcc, s{sT+4}, v{NBs+i}\n' + prep(i).split('\n')[1] + f'\ns_mov_b64 exec, vcc\nbuffer_load_dword v245, v{4*i+3}, s[{sEA}:{sEA+3}], 0 offen')
        o = Asm(); b = a; a = o
        a(f'K2_RK_LOAD:\ns_waitcnt vmcnt(0)')
        mloop('K2_RK_B', lambda i: f'v_lshrrev_b32 v{NBs+i}, 24, v{4*i+3}\nbuffer_load_dword v{RK+i}, v{vE}, {ws}, s{sT+8} offen offset:{8*i}\n' + prep(i))
        a(f's_mul_i32 s{sT+4}, s{sRND}, 48\ns_waitcnt vmcnt(0)')
        for i in range(U): a(f'v_subrev_u32 v{RK+i}, s{sT+4}, v{RK+i}')
        a('s_branch K2_RK_DONE')
        self.ool(o.text()); a = b
        a(f"""
        K2_RK_DONE:
        {self.padx('SC', 'KS_HOP')}
        s_mul_i32 s{sT+9}, s{sRND}, 48
        s_mov_b32 s{sT}, 1
        s_waitcnt lgkmcnt(0)
        """)
        def scatter(i, rr, base):
            return f"""
            v_lshl_add_u32 v{t0+2}, v{rr}, 5, v{base}
            v_lshl_add_u32 v{t0+3}, v{rr}, 2, v{base}
            v_lshrrev_b32 v{t0+1}, 3, v{rr}
            v_mad_i32_i24 v{t0+4}, v{t0+1}, -16, v{t0+3}
            v_and_b32 v{t0+1}, 1, v{t0+1}
            v_mad_i32_i24 v{t0+4}, v{t0+1}, -14, v{t0+4}
            ds_write_b32 v{t0+2}, v{4*i+3} offset:{OA}
            ds_write_b16 v{t0+3}, v{4*i} offset:{192+2}
            ds_write_b16_d16_hi v{t0+3}, v{4*i} offset:{2*192+2}
            ds_write_b16_d16_hi v{t0+3}, v{4*i+1} offset:{3*192+2}
            ds_write_b16 v{t0+4}, v{4*i+2} offset:{OS}
            """
        for i in range(U):
            a(f's_mov_b64 exec, {MK[i]}\ns_cbranch_execz K2_SC_DONE\nv_cmpx_gt_u32 vcc, 48, v{RK+i}\n' + scatter(i, RK+i, NBs+i))
            a(f's_cmp_lg_u64 exec, {MK[i]}\ns_addc_u32 s{sT}, s{sT}, s{sT}')
        R_, NB_, W_ = t0 + 12, t0 + 13, t0 + 16
        self.big = f"""
            {self.pad('OV', 'K2_HOP')}
            K2_OV:
            s_cmp_lg_u32 s{sRND}, 0
            s_cbranch_scc1 K2_OB
            s_cmp_eq_u32 s{sNC}, 39
            s_cselect_b32 s{sT+5}, 5, 2
            s_flbit_i32_b32 s{sEX}, s{sT}
            s_sub_u32 s{sEX}, 31, s{sEX}
            s_bitset0_b32 s{sT}, s{sEX}
            s_sub_u32 s{sEX+1}, s{sEX}, 1
            v_mov_b32 v{t0+6}, 0
            v_mov_b32 v{t0+14}, s{sEX+1}
            K2_OVL:
            s_mov_b64 exec, -1
            s_ff1_i32_b32 s{sT+3}, s{sT}
            s_bitset0_b32 s{sT}, s{sT+3}
            v_readfirstlane_b32 s{sT+4}, v{t0+14}
            s_sub_u32 s{sT+4}, s{sT+4}, s{sT+3}
            s_lshl_b32 s{sT+3}, s{sT+4}, 1
            v_cmp_lt_i32 vcc, s{sT+3}, v{vREM}
            s_lshl_b32 s{sT+3}, s{sT+4}, 2
            s_set_gpr_idx_on s{sT+4}, gpr_idx(SRC0)
            v_mov_b32 v{R_}, v{RK}
            v_mov_b32 v{NB_}, v{NBs}
            s_set_gpr_idx_idx s{sT+3}
            v_mov_b32 v{W_}, v0
            v_mov_b32 v{W_+1}, v1
            v_mov_b32 v{W_+2}, v2
            v_mov_b32 v{W_+3}, v3
            s_set_gpr_idx_off
            s_mov_b64 exec, vcc
            v_subrev_u32 v{t0}, 48, v{R_}
            v_mov_b32 v{t0+5}, {OWN}
            v_cmp_gt_u32 vcc, 16, v{t0}
            s_mov_b32 s{sT+4}, 0
            s_mov_b64 exec, vcc
            s_cbranch_execz K2_OVN
            K2_OP:
            ds_cmpst_rtn_b32 v{t0+8}, v{t0+5}, v{t0+6}, v{NB_}
            s_cmp_ge_u32 s{sT+4}, 2
            s_cselect_b32 s{sT+7}, {NSTR}, 0
            s_cselect_b32 s{sLIM}, 32, 0
            s_sub_u32 s{sT+7}, {POOL}, s{sT+7}
            s_lshl_b32 s{sT+3}, s{sT+4}, 4
            s_sub_u32 s{sT+3}, s{sT+3}, s{sLIM}
            v_mov_b32 v{t0+7}, s{sT+7}
            v_add_u32 v{t0+11}, s{sT+3}, v{t0}
            s_waitcnt lgkmcnt(0)
            v_cmp_eq_u32 vcc, 0, v{t0+8}
            v_cmp_eq_u32 s[{sEX}:{sEX+1}], v{t0+8}, v{NB_}
            s_or_b64 vcc, vcc, s[{sEX}:{sEX+1}]
            s_andn2_b64 s[{sEX}:{sEX+1}], exec, vcc
            s_mov_b64 exec, vcc
            {scatter(W_//4, t0+11, t0+7)}
            s_mov_b64 exec, s[{sEX}:{sEX+1}]
            s_cbranch_execz K2_OVN
            v_add_u32 v{t0+5}, 4, v{t0+5}
            s_add_u32 s{sT+4}, s{sT+4}, 1
            s_cmp_lt_u32 s{sT+4}, s{sT+5}
            s_cbranch_scc1 K2_OP
            K2_OVN:
            s_cmp_lg_u32 s{sT}, 0
            s_cbranch_scc1 K2_OVL
            s_mov_b64 exec, -1
            s_branch K2_OB"""
        assert W_ % 4 == 0
        d = t0 + 1; k = t0 + 2; e = t0 + 3; p = t0 + 4; x = t0 + 5; pl = t0 + 6
        a(f'''
        K2_SC_DONE:
        s_mov_b64 exec, -1
        {self.padx('SD', 'KS_HOP')}
        s_bcnt1_i32_b32 s{sT+3}, s{sT}
        s_cmp_gt_u32 s{sT+3}, 1
        s_cbranch_scc1 K2_OV
        K2_OB:
        v_lshlrev_b32 v{t0}, 2, v{vL}
        v_add_u32 v{t0}, {HIST}, v{t0}
        v_mov_b32 v{t0+8}, {FLAG}
        v_mov_b32 v{pl}, 0
        s_movk_i32 s{sLIM}, 48
        s_cmp_eq_u32 s{sW}, 7
        s_cbranch_scc1 K2_FLGCK
        K2_FLGOK:
        s_waitcnt lgkmcnt(0)
        s_barrier
        ds_read_b32 v{d}, v{t0}
        ds_read_b32 v{t0+8}, v{t0+8}
        v_cmp_gt_u32 s[{sEX}:{sEX+1}], s{sNC}, v{vL}
        v_mad_u32_u24 v{e}, v{vL}, s{sT+1}, v{t0+10}
        v_lshl_or_b32 v{e}, v{vL}, 21, v{e}
        s_waitcnt lgkmcnt(0)
        v_cndmask_b32 v{d}, 0, v{d}, s[{sEX}:{sEX+1}]
        v_readfirstlane_b32 s{sMORE}, v{t0+8}
        v_cmp_lt_u32 vcc, 48, v{d}
        s_cbranch_vccnz K2_BIG
        K2_TOK:
        v_subrev_u32 v{k}, s{sT+9}, v{d}
        v_max_i32 v{k}, 1, v{k}
        v_min_i32 v{k}, s{sLIM}, v{k}
        v_add_u32 v{k}, 15, v{k}
        v_lshrrev_b32 v{k}, 4, v{k}             ; K-steps
        v_lshl_or_b32 v{e}, v{k}, 18, v{e}
        v_or_b32 v{e}, v{e}, v{pl}
        v_mov_b32 v{x}, {NULLBASE | (1 << 18)}
        v_cndmask_b32 v{VTAB}, v{x}, v{e}, s[{sEX}:{sEX+1}]
''')
        o = Asm(); b = a; a = o
        a(self.big)
        a(f'''
        K2_BIG:
        s_cmp_lg_u32 s{sRND}, 0
        s_cbranch_scc1 K2_TOK
        s_mov_b64 s[{sT+4}:{sT+5}], vcc
        s_bcnt1_i32_b64 s{sT+2}, vcc
        s_cmp_eq_u32 s{sNC}, 39
        s_cselect_b32 s{sT+3}, 5, 2
        s_cmp_gt_u32 s{sT+2}, s{sT+3}
        s_cbranch_scc1 K2_SLOW
        v_cmp_lt_u32 vcc, 64, v{d}
        s_cbranch_vccnz K2_SLOW
        v_mov_b32 v{x}, {OWN}
        ds_read_b32 v{t0+11}, v{x}
        ds_read_b32 v{t0+12}, v{x} offset:4
        ds_read_b32 v{t0+13}, v{x} offset:8
        ds_read_b32 v{t0+14}, v{x} offset:12
        ds_read_b32 v{t0+15}, v{x} offset:16
        v_and_b32 v{x}, 0x3ffff, v{e}
        s_movk_i32 s{sLIM}, 64
        s_waitcnt lgkmcnt(0)
        ''')
        for sl in range(1, 5): a(f'v_cmp_eq_u32 vcc, v{t0+11+sl}, v{x}\nv_mov_b32 v{k}, {sl << 27}\nv_cndmask_b32 v{pl}, v{pl}, v{k}, vcc')
        a(f'''
        s_branch K2_TOK
        K2_SLOW:
        v_mov_b32 v{x}, v{d}
        ''')
        scan(a, x, 'v_max_u32')
        for dd in range(48, 512*U + 48): assert (dd * 43691) >> 21 == dd // 48
        a(f'''
        v_readlane_b32 s{sR}, v{x}, 63
        s_add_u32 s{sR}, s{sR}, 47
        s_mul_i32 s{sR}, s{sR}, 43691
        s_lshr_b32 s{sR}, s{sR}, 21
        ''')
        for i in range(U):
            a(f'v_cmp_lt_i32 vcc, {2*i}, v{vREM}\ns_cbranch_vccz K2_SV_DONE\ns_mov_b64 exec, vcc')
            a(f'buffer_store_dword v{RK+i}, v{vE}, {ws}, s{sT+8} offen offset:{8*i}')
        a('K2_SV_DONE:\ns_mov_b64 exec, -1\ns_branch K2_TOK')
        self.ool(o.text()); a = b
        for q in range(4): a(f's_movk_i32 s{sOWN+q}, {q*256}')
        a(f'''
        s_add_u32 s{sRND}, s{sRND}, 1
        s_cmp_ge_u32 s{sRND}, s{sR}
        s_cselect_b32 s{sLAST}, 1, 0
        s_cmp_eq_u32 s{sMORE}, 0
        s_cselect_b32 s{sLAST}, s{sLAST}, 0
        s_mov_b32 s{sSPIN}, 0x400000
        s_mov_b32 s{sJ}, 0
        s_mov_b32 s{sNPH}, 0
        s_mov_b32 s{sNP}, 0
        s_mov_b32 s{sNV}, 1
        s_mov_b32 s{sCP}, 0
        s_mov_b32 s{sT}, s{sW}
        ''')
        lg = LG(a)
        self.emit(self.next_info(0), lg)
        stamp(a, 3)
        pre = self.eread()
        for t in range(4): pre += self.sread(t)
        pre += self.adma()
        for t in range(4): pre += self.gmad(t)
        for t in range(4): pre += self.dma(t, G + 2*t, sNX + t) + (['s_barrier'] if t == opt('fbar', -1) else [])
        pre += [f'v_add_u32 v{VAO}, s{sNBs}, v{VAO}', f'v_add_u32 v{VYO}, s{sNBs}, v{VYO}', 's_waitcnt vmcnt(6)']
        self.emit(pre, lg)
        stamp(a, 4)
        self.emit(([] if self.LATE else self.bread(0)) + self.areads(0) + self.areads(1), lg)
        self.dispatch(0, check=False)
        self.helpers()
        for ph in range(2):
            for nK in (2, 3):
                a(self.pad(f'U{nK}{ph}', 'K2_HOP'))
                self.unit(nK, ph)
        hot = self.outline; self.outline = []
        a(self.pad('SW', 'K2_HOP'))
        for ph in range(2):
            a(f'K2_DSP{ph}:\ns_cmp_eq_u32 s{sEX}, 1\ns_cbranch_scc1 K2_U1{ph}\ns_cmp_eq_u32 s{sEX}, 4\ns_cbranch_scc1 K2_U4{ph}\ns_branch {"K2_TAIL" if ph else "K2_SWITCH"}')
        a('K2_SWITCH:')
        stamp(a, 5)
        self.emit(self.fin(3, 0, sPP if opt('dsp', 1) else None), LG(a))
        a(f's_cmp_eq_u32 s{sNV}, 0\ns_cbranch_scc1 K2_TAIL2\nv_lshlrev_b32 v{VT0}, 3, v{VL2}\nv_lshl_add_u32 v{VPA}, v{VL2}, 1, s{sNP}\nv_lshrrev_b32 v{VH16}, 6, v{VL2}\nv_mul_u32_u24 v{VH16}, 126, v{VH16}')
        self.wload(1, VT0)
        for q in range(4): a(f's_movk_i32 s{sOWN+q}, {q*256+128}')
        a(f's_cmp_lg_u32 s{sNK}, 1\ns_cbranch_scc1 K2_SW2\ns_waitcnt vmcnt(0)\nK2_SW2:')
        if not FUSE: stamp(a, 6)
        self.dispatch(1, check=False)
        isunit = lambda t: t.startswith(('K2_dyn', 'K2_dum', 'K2_nul', 'K2_spin'))
        for t in hot:
            if isunit(t): a(t)
        a(self.pad('TL', 'K2_HOP'))
        self.tail()
        for t in hot:
            if not isunit(t): a(t)
        for ph in range(2):
            for nK in (1, 4): self.unit(nK, ph)
        for t in self.outline: a(t)
        a('K2_END:\ns_endpgm')
        return a.lines, 256

    def tail(self):
        a = self.a
        ws = f's[{sWS}:{sWS+3}]'
        vP0 = 222; vP1 = 223; vS = 226; vSP = 227; vRow = 228; vL16 = 229
        vQ0 = 232; vSt = 254; vS2 = 255; vS3 = 246; vQ0a = 247; vQ1a = 248; vRow2 = 249
        OP = 176
        pre = f"""v_lshlrev_b32 v{vL16}, 3, v{VL2}
            s_mul_i32 s{sT}, s{sW}, {20*1024}
            s_add_u32 s{sT}, s{sT}, {WS_STAB}
            s_mul_i32 s{sT+1}, s{sW}, {8192+32}"""
        sl = []
        for f in range(20):
            sl.append(f'buffer_load_dwordx4 v[{WR+4*f}:{WR+4*f+3}], v{vL16}, {ws}, s{sT} offen offset:{(f%4)*1024} sc1' + (f'\ns_add_u32 s{sT}, s{sT}, 4096' if f % 4 == 3 and f < 19 else ''))
        NE = opt('ne', 8)
        adr = [f'v_lshl_add_u32 v{vRow}, v{VL2}, 1, s{sT+1}', f'v_lshrrev_b32 v{vS}, 6, v{VL2}', f'v_mul_u32_u24 v{vS}, 126, v{vS}', f'v_sub_u32 v{vS}, v{vRow}, v{vS}']
        a('K2_TAIL2:\n' + pre)
        for x in sl[:NE] + adr: a(x)
        a('s_branch K2_TAIL3\nK2_TAIL:')
        stamp(a, 7)
        a(pre)
        f3 = self.fin(3, 1) + adr; w = []
        for i in range(NE): w += [sl[i]] + f3[2*i:2*i+2]
        self.emit(w + f3[2*NE:], LG(a))
        a(f'K2_TAIL3:\ns_waitcnt vmcnt({NE})')
        dump = []
        for j in range(5):
            for k in range(5): dump.append(f'ds_write_b32 v{vRow}, v{P0+6*j+k} offset:{j*1536 + k*256}')
            dump.append(f'ds_write_b16 v{vS}, v{P0+6*j+5} offset:{j*1536 + 1280}')
        assert RECBASE % 256 == 0 and NSTR % 256 == 96
        calc = f"""
        v_bfe_u32 v48, v{VL2}, 1, 4             ; n & 15
        v_lshrrev_b32 v49, 5, v{VL2}            ; slab
        v_lshrrev_b32 v55, 3, v48
        v_lshlrev_b32 v52, 4, v49               ; slab*16
        v_lshl_add_u32 v54, v55, 2, v48
        v_and_b32 v54, 7, v54                   ; node of the last group in column n
        v_and_b32 v50, 7, v48
        v_mul_u32_u24 v50, {8192+32}, v50
        v_mul_u32_u24 v51, 1536, v55
        v_add_u32 v50, v50, v51                 ; slot of node n
        v_add_u32 v{vP0}, v50, v52
        v_mul_u32_u24 v51, {8192+32}, v54
        v_add_u32 v{vQ0}, v51, v52
        v_lshl_add_u32 v{vQ0a}, v55, 7, v{vQ0}
        v_mul_u32_u24 v53, 192, v48
        v_and_b32 v53, 0xc0, v53
        v_add_u32 v53, v53, v52
        v_mul_u32_u24 v51, {NSTR}, v48
        s_mov_b32 s{sT+2}, {RECBASE}
        v_add3_u32 v{vP1}, v51, v53, s{sT+2}
        v_mul_u32_u24 v51, {NSTR}, v54
        s_mov_b32 s{sT+2}, {RECBASE + 32*NSTR}
        v_add3_u32 v{vP1+2}, v51, v53, s{sT+2}
        v_lshl_add_u32 v{vQ1a}, v55, 7, v{vP1+2}
        s_lshl_b32 s{sT+2}, s{sW}, 5
        v_lshl_add_u32 v49, v49, 3, s{sT+2}
        s_mov_b32 s{sT+2}, {RECBASE}
        v_add3_u32 v{vS2}, v51, v49, s{sT+2}
        v_lshl_add_u32 v{vS3}, v55, 9, v{vS2}
        v_bfe_u32 v53, v48, 2, 1
        v_lshl_add_u32 v49, v53, 4, v49
        v_add_u32 v{vSt}, v50, v49
        s_and_b32 s{sT+6}, s{sLAST}, s{sFIRST}  ; plain single-round case
        """.strip().split('\n')
        rest = sl[NE:]; per = max(2, (len(dump) + len(rest) - 1) // max(1, len(rest)))
        while dump or rest:
            for x in dump[:per] + rest[:1] + calc[:2]: a(x)
            dump = dump[per:]; rest = rest[1:]; calc = calc[2:]
        for x in calc: a(x)
        a('s_waitcnt lgkmcnt(0)')
        late = f"""
        s_bfe_u32 s{sT+2}, s{sW}, 0x10002
        s_lshl_b32 s{sT+2}, s{sT+2}, 4
        s_add_u32 s{sT+1}, s{sT+1}, s{sT+2}
        v_add_u32 v{vRow}, s{sT+1}, v{vL16}
        s_mul_i32 s{sT+2}, s{sW}, {NSTR}
        s_add_u32 s{sT+2}, s{sT+2}, {RECBASE}
        v_add_u32 v{vRow2}, s{sT+2}, v{vL16}
        s_mov_b32 s{sT+5}, 0xbfb8aa3b           ; -log2(e)
        s_add_u32 s{sOWN}, s{sW}, s{sNB}
        s_lshl_b32 s{sOWN}, s{sOWN}, 10
        """.strip().split('\n') + [f's_add_u32 s{sOWN+j}, s{sOWN}, {j*8192}' for j in range(1, 5)]
        stamp(a, 8); a('s_barrier'); stamp(a, 9)
        a(f's_cmp_eq_u32 s{sT+6}, 0\ns_cbranch_scc1 K2_MULTI')
        steps = []
        for g in range(3):
            def ad(ph, row, hh, packed=False):
                o = self.SROW[row]*128 + hh*64
                if g < 2: return (vP1, g*16*NSTR + o) if ph else (vP0, g*3072 + o)
                return ((vQ1a if packed else vP1+2), o) if ph else ((vQ0a if packed else vQ0), 4*1536 + o)
            for ph in range(2):
                for rs in range(2):
                    for hh in range(2): steps.append((16*g, ph*4 + rs*2 + hh) + ad(ph, rs, hh))
            for ph in range(2):
                for path in range(3):
                    for hh in range(2):
                        for j in range(3 if g < 2 else 2):
                            steps.append((16*g + 4 + 4*j, 8 + ph*6 + path*2 + hh) + ad(ph, 2 + 3*j + path, hh, j == 0))
        for path in range(3): assert self.SROW[8 + path] == self.SROW[2 + path] + 1
        NB = 12; D = 10
        def epi(g, part=3):
            c = 16*g; o = OP + 8*(g & 1); s = []; tp = 204 + 4*(g & 1)
            if part & 1:
                for r in range(4): s.append(f'v_mul_f32 v{tp+r}, s{sT+5}, v{c+r}')
                for r in range(4): s.append(f'v_exp_f32 v{tp+r}, v{tp+r}')
                for r in range(4): s.append(f'v_add_f32 v{tp+r}, 1.0, v{tp+r}')
                for r in range(4): s.append(f'v_rcp_f32 v{tp+r}, v{tp+r}')
                s += [f'v_cvt_pk_bf16_f32 v{o}, v{c}, v{c+1}', f'v_cvt_pk_bf16_f32 v{o+1}, v{c+2}, v{c+3}']
            if part & 2:
                for j in range(3 if g < 2 else 2):
                    for r in range(4): s.append(f'v_mul_f32 v{c+4+4*j+r}, v{c+4+4*j+r}, v{tp+r}')
                    s += [f'v_cvt_pk_bf16_f32 v{o+2+2*j}, v{c+4+4*j}, v{c+5+4*j}', f'v_cvt_pk_bf16_f32 v{o+3+2*j}, v{c+6+4*j}, v{c+7+4*j}']
            return s
        def stage(g, part=3):
            o = OP + 8*(g & 1)
            if g < 2: w = [(rt, vSt, g*3072) for rt in range(4)]
            else: w = [(0, vS2, 0), (1, vS3, 0), (2, vS2, 0)]
            return [(f'ds_write_b64 v{r}, v[{o+2*rt}:{o+1+2*rt}] offset:{b + rt*256}', [(f'w{g}', False)]) for rt, r, b in w if part & (2 if rt else 1)]
        def rowread(g):
            if g == 2: return [(f'ds_read_b128 v[200:203], v{vRow2}', [('r2', False)])]
            return [(f'ds_read_b128 v[{192+4*(j&1)}:{195+4*(j&1)}], v{vRow} offset:{j*1536}', [(f'r{g}', False)]) for j in (2*g, 2*g+1)]
        def rowstore(g):
            s = [('wait', f'r{g}')]
            for j in ((2*g, 2*g+1) if g < 2 else (4,)):
                b = 192 + 4*(j & 1) if g < 2 else 200
                s += [f'buffer_store_dwordx4 v[{b}:{b+3}], v{vL16}, s[{sOUT}:{sOUT+3}], s{sOWN+j} offen {mod("outst","sc1")}']
            return s
        def gemm(lg, extra):
            def rd(k):
                c, f, r, o = steps[k]
                b = 48 + 4*(k % NB)
                self.emit([(f'ds_read_b128 v[{b}:{b+3}], v{r} offset:{o}', [(f'k{k}', False)])], lg)
            for k in range(D): rd(k)
            seen = set(); started = set()
            for k in range(len(steps)):
                c, f, r, o = steps[k]
                if k + D < len(steps): rd(k + D)
                vm = None
                if f not in seen: seen.add(f); vm = 19 - f
                kk = min(k + 1, len(steps) - 1) if (opt('w2', 1) and k % 2 == 0) else k
                self.emit([('wait', f'k{kk}', vm)], lg)
                b = 48 + 4*(k % NB)
                cin = f'v[{c}:{c+3}]' if c in started else '0'; started.add(c)
                a(f'v_mfma_f32_16x16x32_bf16 v[{c}:{c+3}], v[{WR+4*f}:{WR+4*f+3}], v[{b}:{b+3}], {cin}')
                self.emit(extra.get(k, []), lg)
        lg = LG(a); extra = {}
        def spread(items, k0, k1):
            for i, x in enumerate(items): extra.setdefault(k0 + i*(k1 - k0 + 1)//len(items), []).append(x)
        spread(late, 2, 8)
        if self.padx('T2', 'K2_HOP'): extra.setdefault(opt('t2k', 41), []).append(self.padx('T2', 'K2_HOP'))
        b0 = opt('b0', 46); e0 = opt('e0', 64); b1 = opt('b1', 90); r0 = opt('r0', 98); e1 = opt('e1', 108)
        spread(epi(0, 1), 12, 40)
        if not opt('nob0', 0): extra.setdefault(b0, []).append('s_barrier')
        spread(epi(0, 2), 44 + 3, e0)
        extra.setdefault(e0 + 1, []).extend(stage(0))
        spread(epi(1, 1), e0 + 2, 86)
        extra.setdefault(b1, []).extend([('wait', 'w0')] + ([] if opt('nob1', 0) else ['s_barrier']) + rowread(0))
        spread(epi(1, 2), 88 + 3, e1)
        extra.setdefault(r0, []).extend(rowstore(0))
        extra.setdefault(e1 + 1, []).extend(stage(1))
        spread(epi(2, 1), max(e1 - 8, 100), 117)
        extra.setdefault(118, []).extend(stage(2, 1))
        if opt('gp', 1):
            for k0, k1 in ((-1, b0), (b0, b1), (b1, len(steps))):
                fr = [float(x) for x in opt('gpf', '0.3_0.6_0.87').split('_')]
                if k0 >= 0: extra.setdefault(k0, []).append('s_setprio 3')
                for i, f in enumerate(fr): extra.setdefault(k0 + int((k1 - k0)*f), []).append(f's_setprio {2-i}')
            a('s_setprio 3')
        if PROFT:
            for i, k in enumerate((0, 8, 43, 66, 87, 104)): extra.setdefault(k, []).append(f'{"s_memtime" if opt("cyc", False) else "s_memrealtime"} s[{78+2*i}:{79+2*i}]')
        if opt('noepi', 0): extra = {k: [x for x in v if not (isinstance(x, str) and x.startswith(('v_cvt', 'v_exp', 'v_rcp', 'v_mul_f32', 'v_add_f32')[:opt('noepi', 0)]))] for k, v in extra.items()}
        gemm(lg, extra)
        stamp(a, 10)
        self.emit(epi(2, 2) + stage(2, 2) + [('wait', 'w2'), 's_barrier'] + rowread(1) + rowread(2) + rowstore(1), lg)
        a(f'K2_LASTROW:\ns_add_u32 s{sT+1}, s{sW}, 32\ns_cmp_ge_u32 s{sT+1}, s{sNC}\ns_cbranch_scc1 K2_FIN\ns_waitcnt lgkmcnt(0)')
        self.emit(rowstore(2), LG(a))
        a('K2_FIN:')
        if PROF:
            stamp(a, 11); a('s_waitcnt vmcnt(0)'); stamp(a, 12); stamp_out(a, 13, 1, sW, sB, sWS)
        a('s_endpgm')
        a('K2_MULTI:')
        lg = LG(a)
        gemm(lg, {})
        a(f"""
        s_lshl_b32 s{sT+2}, s{sB}, 9
        s_lshl_b32 s{sT+3}, s{sW}, 6
        s_add_u32 s{sT+2}, s{sT+2}, s{sT+3}
        s_mul_i32 s{sT+2}, s{sT+2}, 192
        s_add_u32 s{sT+2}, s{sT+2}, {WS_ACC}
        v_mul_u32_u24 v{vSP}, 96, v{VL2}        ; lane*192
        s_cmp_lg_u32 s{sFIRST}, 0
        s_cbranch_scc1 K2_NOACC
        """)
        for i in range(11): a(f'buffer_load_dwordx4 v[{48+4*i}:{51+4*i}], v{vSP}, {ws}, s{sT+2} offen offset:{16*i}')
        a('s_waitcnt vmcnt(0)')
        for i in range(44): a(f'v_add_f32 v{i}, v{i}, v{48+i}')
        a(f'K2_NOACC:\ns_barrier\ns_cmp_eq_u32 s{sLAST}, 0\ns_cbranch_scc1 K2_SPILL')
        self.emit(late, lg)
        for g in range(2):
            self.emit(epi(g) + stage(g) + [('wait', f'w{g}'), 's_barrier'] + rowread(g) + rowstore(g), lg)
        self.emit(epi(2) + stage(2) + [('wait', 'w2'), 's_barrier'] + rowread(2), lg)
        a('s_branch K2_LASTROW\nK2_SPILL:')
        for i in range(11): a(f'buffer_store_dwordx4 v[{4*i}:{4*i+3}], v{vSP}, {ws}, s{sT+2} offen offset:{16*i}')
        a(f"""
        s_mov_b32 s{sFIRST}, 0
        s_waitcnt vmcnt(0)
        s_cmp_lt_u32 s{sRND}, s{sR}
        s_cbranch_scc1 K2_LOAD
        s_add_u32 s{sJ0}, s{sJ0}, {2*U}
        s_branch K2_WINDOW
        """)

HEADER = '''; Kernarg layout for this problem (96 bytes, ptrs only, base s[0:1]):
'''
def kd(name, vgpr):
    return f'''.amdhsa_kernel {name}
  .amdhsa_next_free_vgpr {vgpr}
  .amdhsa_next_free_sgpr {102}
  .amdhsa_accum_offset {(vgpr+3)//4*4}
  .amdhsa_group_segment_fixed_size 0
  .amdhsa_kernarg_size 96
  .amdhsa_user_sgpr_count 2
  .amdhsa_user_sgpr_kernarg_segment_ptr 1
  .amdhsa_system_sgpr_workgroup_id_x 1
  .amdhsa_float_denorm_mode_32 3
.end_amdhsa_kernel
'''
def main():
    ks = []
    l2, v2 = K2().gen(); ks.append((NAME + '_kernel', fix_hazards(l2), v2))
    s = HEADER
    s += f'; @launch grid=(256,1,1) block=(512,1,1) lds={K2_LDS}\n'
    s += '.amdgcn_target "amdgcn-amd-amdhsa--gfx950"\n.text\n'
    for name, l, v in ks:
        s += f'.globl {name}\n.p2align 8\n.type {name},@function\n{name}:\n'
        s += '\n'.join((x if x.endswith(':') else '    ' + x) for x in l) + '\n'
    s += '.section .rodata,"a"\n' + ''.join('.p2align 6\n' + kd(name, v) for name, l, v in ks)
    out = sys.argv[1] if len(sys.argv) > 1 else f'/code/{NAME}.s'
    open(out, 'w').write(s)
    print('wrote', out, len(s), 'bytes')
main()
```

```python
import sys, os
sys.path.insert(0, os.path.dirname(os.path.abspath(__file__)))
from asmlib import Asm, fix_hazards

NAME = 'standalone__tensor_product_equiv_equiformer__graph'
N = 10000; E = 320000
NCH = 250; CH = E // NCH
CSTR = CH * 16 + 128
TSTR = 1024 + 128
WS_REC = 0
WS_TBL = 0x0600000
WS_STAB = 0x06A0000
WS_WTAB = 0x06C8000
WS_FLG = 0x06D8000
WS_EPO = WS_FLG + 2048
WS_RANK = 0x0700000
WS_PROF = 0x0900000
WS_ACC = 0x0A00000
WS_SIZE = 0x2400000
assert NCH * CSTR <= WS_TBL and WS_TBL + NCH * TSTR <= WS_STAB and WS_ACC + 256*512*192 <= WS_SIZE
BMUL = 429497
for d in range(N): assert ((d * BMUL) & 0xffffffff) >> 24 == (d * 16) // 625

OPT = dict(a.split('=') for a in sys.argv[2:]) if len(sys.argv) > 2 else {}
def opt(k, d): return type(d)(OPT.get(k, d)) if not isinstance(d, bool) else bool(int(OPT.get(k, d)))
def mod(k, d): return opt(k, d).replace('_', ' ')

PROF = opt('prof', False)
FUSE = True
SEG = opt('seg', False)
def seg(i): return [f's_memtime s[{76+2*i}:{77+2*i}]'] if SEG else []
PROFS = opt('profs', False)
def sstamp(a, i):
    if PROFS: a(f's_memrealtime s[{76+2*i}:{77+2*i}]')
PROFT = opt('proft', False)
def stamp(a, i, t=False):
    if PROFT and 1 <= i <= 6 and not t: return
    if PROFS and i in (1, 3, 5, 11, 12): return
    if PROF and not SEG: a(f'{"s_memtime" if opt("cyc", False) else "s_memrealtime"} s[{76+2*i}:{77+2*i}]')
def stamp_out(a, n, kern, swave, swg, srd_s):
    if not PROF: return
    if opt('dbgout', -1) >= 0:
        l = f'DBG_{kern}'
        a(f's_cmp_lg_u32 s{swg}, {opt("dbgout", -1)}\ns_cbranch_scc1 {l}\ns_cmp_lg_u32 s{swave}, 0\ns_cbranch_scc1 {l}')
        a(f's_load_dwordx2 s[58:59], s[0:1], 80\ns_waitcnt lgkmcnt(0)\ns_add_u32 s58, s58, {512*(1-kern)*opt("dbgk1", 0)}\ns_addc_u32 s59, s59, 0')
        srd(a, 60, 58, 256)
        a('s_mov_b64 exec, 1\nv_mov_b32 v1, 0')
        for i, o in ([(0, 0), (5, 14), (2, 15)] if kern == 0 else [(i, 1+i) for i in range(13)]):
            a(f'v_mov_b32 v2, s{76+2*i}\nbuffer_store_dword v2, v1, s[60:63], 0 offen offset:{4*o}')
        a(f's_mov_b64 exec, -1\n{l}:')
        return
    a('s_waitcnt lgkmcnt(0)')
    a(f's_lshl_b32 s67, s{swg}, 4\ns_add_u32 s67, s67, s{swave}\ns_lshl_b32 s67, s67, 6\ns_add_u32 s67, s67, {WS_PROF + kern*256*16*64}')
    a('s_mov_b64 exec, 1\nv_mov_b32 v1, 0')
    for i in range(n):
        a(f'v_mov_b32 v2, s{76+2*i if not SEG else 96+min(i,5)}\nbuffer_store_dword v2, v1, s[{srd_s}:{srd_s+3}], s67 offen offset:{4*i}')
    a('s_mov_b64 exec, -1')

def srd(a, s, ptr, nbytes):
    a(f's_mov_b32 s{s}, s{ptr}\ns_and_b32 s{s+1}, s{ptr+1}, 0xffff\ns_mov_b32 s{s+2}, {nbytes}\ns_mov_b32 s{s+3}, 0x20000')

def scan(a, v, op='v_add_u32'):
    for sh in (1, 2, 4, 8):
        a(f'{op}_dpp v{v}, v{v}, v{v} row_shr:{sh} row_mask:0xf bank_mask:0xf bound_ctrl:0')
    a(f'{op}_dpp v{v}, v{v}, v{v} row_bcast:15 row_mask:0xa bank_mask:0xf')
    a(f'{op}_dpp v{v}, v{v}, v{v} row_bcast:31 row_mask:0xc bank_mask:0xf')

K1_T = CH // 4
K1_LDS = 2048 + CH * 16
def weight_loads(a):
    a(f'''
    v_and_b32 v1, 15, v8
    v_lshrrev_b32 v3, 4, v8
    s_cmp_ge_u32 s2, 160
    s_cbranch_scc1 K1_WT
    s_cmp_ge_u32 s2, 64
    s_cbranch_scc1 K1_S1
    s_lshr_b32 s24, s2, 3
    s_and_b32 s25, s2, 7
    s_lshr_b32 s26, s25, 2
    s_bfe_u32 s27, s25, 0x10001
    s_and_b32 s28, s25, 1
    ''')
    srd(a, 60, 92, 256*128*2)
    a(f'''
    s_branch K1_SC
    K1_S1:
    ; S1: g2 = g-64; w = g2/12, f2 = g2%12 : ph = f2/6, path = (f2%6)>>1, hh = f2&1
    s_sub_u32 s29, s2, 64
    s_mul_i32 s24, s29, 43
    s_lshr_b32 s24, s24, 9
    s_mul_i32 s25, s24, 12
    s_sub_u32 s25, s29, s25
    s_cmp_ge_u32 s25, 6
    s_cselect_b32 s26, 1, 0
    s_mul_i32 s27, s26, 6
    s_sub_u32 s27, s25, s27
    s_lshr_b32 s27, s27, 1
    s_and_b32 s28, s25, 1
    s_add_u32 s25, s25, 8
    ''')
    for g2 in range(96): assert (g2*43) >> 9 == g2 // 12
    srd(a, 60, 94, 384*128*2)
    a(f'''
    K1_SC:
    s_lshl_b32 s27, s27, 7
    s_lshl_b32 s26, s26, 6
    s_lshl_b32 s28, s28, 4
    s_add_u32 s27, s27, s26
    s_add_u32 s27, s27, s28
    s_lshl_b32 s27, s27, 8
    s_lshl_b32 s26, s24, 5
    s_add_u32 s27, s27, s26
    s_add_u32 s29, s27, 8192
    v_lshlrev_b32 v3, 10, v3
    v_lshl_add_u32 v3, v1, 1, v3
    ''')
    for e in range(8): a(f'buffer_load_ushort v{64+e}, v3, s[60:63], s{29 if e & 1 else 27} offen offset:{(e >> 1)*256}')
    a(f'''
    s_mul_i32 s24, s24, 20
    s_add_u32 s24, s24, s25
    s_lshl_b32 s24, s24, 10
    s_add_u32 s24, s24, {WS_STAB}
    s_branch K1_GO
    K1_WT:
    ; W: g3 = g-160; ph = g3/10, i = g3%10 : p = i>>1, u = i&1
    s_sub_u32 s24, s2, 160
    s_cmp_ge_u32 s24, 10
    s_cselect_b32 s26, 1, 0
    s_mul_i32 s25, s26, 10
    s_sub_u32 s25, s24, s25
    s_lshr_b32 s27, s25, 1
    s_and_b32 s28, s25, 1
    s_lshl_b32 s27, s27, 8
    s_lshl_b32 s26, s26, 7
    s_lshl_b32 s28, s28, 6
    s_add_u32 s27, s27, s26
    s_add_u32 s27, s27, s28
    s_add_u32 s29, s27, {8*1280}
    ''')
    srd(a, 60, 90, 16*640*2)
    a(f'''
    v_and_b32 v1, 31, v8
    v_lshrrev_b32 v3, 5, v8
    v_mul_u32_u24 v3, {4*1280}, v3
    v_lshl_add_u32 v3, v1, 1, v3
    ''')
    for j in range(8): a(f'buffer_load_ushort v{64+j}, v3, s[60:63], s{29 if j >> 2 else 27} offen offset:{(j & 3)*1280}')
    a(f'''
    s_lshl_b32 s24, s24, 10
    s_add_u32 s24, s24, {WS_WTAB}
    ''')

def sort_rank(a, pad):
    for j in range(4):
        a(f'v_mul_u32_u24 v{28+j}, s58, v{12+j}\nv_lshrrev_b32 v{32+j}, 27, v{28+j}\nv_bfe_u32 v{36+j}, v{28+j}, 24, 3\nv_lshlrev_b32 v{32+j}, 2, v{32+j}')
        a(f'v_lshl_or_b32 v{32+j}, v{36+j}, 7, v{32+j}\nds_add_rtn_u32 v{36+j}, v{32+j}, v7')
    for j in range(4):
        a(f'v_lshrrev_b32 v{28+j}, 24, v{28+j}\nv_mad_u32_u24 v{28+j}, v{28+j}, s59, 15\nv_lshrrev_b32 v{28+j}, 4, v{28+j}\nv_sub_u32 v{28+j}, v{12+j}, v{28+j}')
        a(f'v_add_u32 v{12+j}, {32*j}, v3\nv_lshl_or_b32 v{28+j}, v{28+j}, 26, v{12+j}')
    a(f'''
    {pad}
    v_mov_b32 v59, {NONCE}
    s_mul_i32 s65, s2, {TSTR}
    s_add_u32 s65, s65, {WS_TBL}
    s_mul_i32 s64, s2, {CSTR}
    s_waitcnt lgkmcnt(0)
    s_barrier
    ''')
    sstamp(a, 11)
    a(f'''
    ds_read_b128 v[40:43], v9
    ds_read_b32 v59, v59
    s_waitcnt lgkmcnt(1)
    v_add_u32 v45, v40, v41
    v_add_u32 v46, v45, v42
    v_add_u32 v47, v46, v43
    v_mov_b32 v58, v47
    ''')
    scan(a, 58)
    a(f'''
    v_sub_u32 v48, v58, v47                 ; exclusive
    v_add_u32 v49, v48, v40
    v_add_u32 v50, v48, v45
    v_add_u32 v51, v48, v46
    ds_write_b128 v9, v[48:51] offset:1024
    s_waitcnt vmcnt(0) lgkmcnt(1)
    s_cmp_lg_u32 s{sW}, 4
    s_cbranch_scc1 KS_NOPUB
    v_lshl_or_b32 v56, v49, 11, v48
    v_lshl_or_b32 v57, v51, 11, v50
    v_lshl_or_b32 v56, v59, 22, v56
    v_lshl_or_b32 v57, v59, 22, v57
    buffer_store_dwordx4 v[56:59], v9, s[{sWS}:{sWS+3}], s65 offen {mod('tabst', 'sc1')}
    KS_NOPUB:
''')
    sstamp(a, 12)

def sort_emit(a, st):
    a('v_and_b32 v60, 0xffff, v59\nv_and_b32 v61, 0xffff0000, v59\ns_mov_b32 s58, 0xffff0000')
    for j in range(4):
        b = 20 + 3*(j >> 1)
        if j & 1: a(f'v_alignbit_b32 v{40+4*j}, v{b+2}, v{b+1}, 16\nv_and_or_b32 v{41+4*j}, v{b+2}, s58, v60')
        else: a(f'v_mov_b32 v{40+4*j}, v{b}\nv_lshl_or_b32 v{41+4*j}, v{b+1}, 16, v60')
        a(f'v_or_b32 v{42+4*j}, v61, v{16+j}\nv_mov_b32 v{43+4*j}, v{28+j}')
    a('s_waitcnt lgkmcnt(0)')
    for j in range(4):
        a(f'v_add_lshl_u32 v{32+j}, v{32+j}, v{36+j}, 4\nds_write_b128 v{32+j}, v[{40+4*j}:{43+4*j}] offset:2048')
    a(f's_waitcnt lgkmcnt(0)\ns_barrier')
    for i in range(4): a(f'ds_read_b128 v[{12+4*i}:{15+4*i}], v5 offset:{2048 + i*K1_T*16}')
    for i in range(4):
        a(f's_waitcnt lgkmcnt({3-i})')
        a(f'buffer_store_dwordx4 v[{12+4*i}:{15+4*i}], v5, s[8:11], s64 offen {st}')
        if i < 3: a(f's_add_u32 s64, s64, {K1_T*16}')

NSTR = 2400
OY = 0; OS = 768; OA = 864
RECBASE = 65536
POOL = RECBASE + 40 * NSTR
MISC = POOL + OA + 1024
HIST = MISC; PROG = MISC + 192; CNT = MISC + 224; FLAG = MISC + 228; OWN = MISC + 232; NULLSRC = MISC + 256; SCR = MISC + 288; NONCE = MISC + 304
NULLBASE = NULLSRC - OS
K2_LDS = 163840
U = 10
ACC = 0; AR = 64; WR = 96; BR = 176; P0 = 192; G = 222
VEO = 230; VH16 = 231; T2 = 232; T3 = 233; PW = 234
VB0 = 246; VB1 = 247; VLG = 248; VAO = 249; VYO = 250; VSO = 251; VL2 = 252; VTAB = 253; VT0 = 254; VT1 = 255; VPA = VEO
sX = 4; sWS = 8; sOUT = 12; sEA = 16
sW = 20; sNB = 21; sNC = 22; sJ0 = 23; sRND = 24; sR = 25; sLIM = 26; sMORE = 27; sFIRST = 28
sCB = 29; sC4 = 30; sCP = 31; sNBs = 48; sNK = 33; sNPH = 34; sNP = 35; sNV = 36
sRING = 37; sJ = 38; s1024 = 39; sOWN = 40; sNX = 44; sSO = 48; sPROGW = 52; sPROG = 53; sB = 54; sLAST = 55
sEX = 56
sT = 58
sM0 = 68
sX2 = 72
sPP = 32
sN4 = 3
sTAG = 2
sSPIN = 27

TILES = {0: [(0,0), (1,0), (0,1), (1,1)], 1: [(0,0), (0,1), (1,1), (1,0)], 2: [(0,0), (1,0), (1,1), (0,1)], 3: [(0,0), (0,1), (1,0), (1,1)]}[opt('tord', 0)]
def tile(t, u): return ACC + 16 * TILES.index((t, u))
def Wreg(p, u): return WR + p*16 + u*8

def weave(x, y):
    o = []
    for i in range(max(len(x), len(y))):
        o += x[i:i+1] + y[i:i+1]
    return o

class LG:
    def __init__(self, a, q=()): self.a = a; self.q = list(q)
    def issue(self, tag, optional=False): self.q.append((tag, optional))
    def waitline(self, tag):
        idx = [i for i, (t, o) in enumerate(self.q) if t == tag]
        if not idx: return None
        y = sum(1 for (t, o) in self.q[idx[-1]+1:] if not o)
        self.q = self.q[idx[-1]+1:]
        return f's_waitcnt lgkmcnt({min(y, 15)})'

class K2:
    def __init__(self):
        self.a = Asm()
        self.uid = 0
        self.outline = []
    def lab(self, s):
        self.uid += 1
        return f'K2_{s}_{self.uid}'

    def dma(self, slot, greg, soff):
        return [f's_mov_b32 m0, s{sM0+slot}',
                f'buffer_load_dwordx4 v{greg}, s[{sX}:{sX+3}], s{soff} offen {mod("xld", "sc1")} lds',
                f'buffer_load_dwordx4 v{greg+1}, s[{sX2}:{sX2+3}], s{soff} offen offset:1024 {mod("xld", "sc1")} lds']
    def bread(self, item):
        out = []
        for u in range(2):
            for r in range(2):
                d = BR + (item & 1)*8 + u*4 + r*2
                out.append((f'ds_read_b64_tr_b16 v[{d}:{d+1}], v{VB0+u} offset:{(item & 3)*2048 + r*512}', [('B' if u == 0 or not opt('split', 0) else 'B1', False)]))
        return out
    def sread(self, t):
        return [f'v_add_u32 v{G+2*t}, s{sSO+t}, v{VSO}', (f'ds_read_b32 v{G+2*t}, v{G+2*t}', [(f'S{t}', False)])]
    def gmad(self, t):
        return [('wait', f'S{t}'),
                f'v_mad_u32_u16 v{G+2*t+1}, v{G+2*t}, s{s1024}, v{VLG} op_sel:[1,0,0,0]',
                f'v_mad_u32_u16 v{G+2*t}, v{G+2*t}, s{s1024}, v{VLG}']
    def ool(self, text): self.outline.append(text)
    def atomic(self):
        return [f'v_mov_b32 v{VT0}, {CNT}', f'v_mov_b32 v{VT1}, 1', f'v_lshl_add_u32 v{T3}, v{VL2}, 1, s{sPROG}',
                (f's_mov_b64 exec, 1\nds_add_rtn_u32 v{T2}, v{VT0}, v{VT1}\ns_mov_b64 exec, -1', [('C', False)]),
                (f'ds_read_b32 v{T3}, v{T3}', [('C', False)])]
    def claimed(self):
        nul = self.lab('nul'); spin = self.lab('spin'); chk = self.lab('chk'); back = self.lab('back')
        self.ool(f'{nul}:\ns_mov_b32 s{sT}, 63\ns_mov_b32 s{sNV}, 0\ns_branch {back}')
        self.ool(f'{spin}:\ns_sub_u32 s{sSPIN}, s{sSPIN}, 1\ns_cbranch_scc1 K2_END\nv_lshl_add_u32 v{T3}, v{VL2}, 1, s{sPROG}\nds_read_b32 v{T3}, v{T3}\ns_waitcnt lgkmcnt(0)\ns_branch {chk}')
        return [f'v_readfirstlane_b32 s{sT}, v{T2}',
                f"""s_cmp_lt_u32 s{sT}, s{sNC}
                s_cbranch_scc0 {nul}
                {f'v_readlane_b32 s{sT}, v{VTAB}, s{sT}' + chr(10) + f's_bfe_u32 s{sT}, s{sT}, 0x60015' if opt('lpt', 0) else ''}
                s_and_b32 s{sT+1}, s{sT}, 7
                s_lshr_b32 s{sT+2}, s{sT}, 3
                {chk}:
                v_readlane_b32 s{sT+3}, v{T3}, s{sT+1}
                s_nop 0
                s_cmp_gt_u32 s{sT+3}, s{sT+2}
                s_cbranch_scc0 {spin}
                {back}:"""]
    def claim0(self):
        dyn = self.lab('dyn'); back = self.lab('back')
        o = [x if isinstance(x, str) else x[0] for x in self.atomic()] + ['s_waitcnt lgkmcnt(0)'] + self.claimed()
        self.ool(f'{dyn}:\n' + '\n'.join(o) + f'\ns_mov_b32 s{sNPH}, 1\ns_branch {back}')
        return [f's_add_u32 s{sJ}, s{sJ}, 1', f'v_mov_b32 v{VT0}, s{sPROGW}', f'v_mov_b32 v{VT1}, s{sJ}',
                f's_lshl_b32 s{sT}, s{sJ}, 3', f's_add_u32 s{sT}, s{sT}, s{sW}',
                (f's_mov_b64 exec, 1\nds_write_b32 v{VT0}, v{VT1}\ns_mov_b64 exec, -1', [('W', False)]),
                f's_cmp_lt_u32 s{sT}, s{sNC}\ns_cbranch_scc0 {dyn}\n{back}:']
    def pooladdr(self, d, word, stride):
        return f"""s_lshr_b32 s{d}, s{word}, 27
            s_mov_b32 s{sT+8}, {POOL}
            s_cmp_ge_u32 s{d}, 2
            s_cselect_b32 s{sT+8}, {POOL - NSTR - 2*stride}, s{sT+8}
            s_mul_i32 s{d}, s{d}, {stride}
            s_add_u32 s{d}, s{d}, s{sT+8}"""
    def next_info(self, ph):
        rare = self.lab('rare'); back = self.lab('back'); four = self.lab('four')
        self.ool(f"""{rare}:
            s_cmp_eq_u32 s{sNK}, 4
            s_cbranch_scc1 {four}
            s_mov_b32 s{sSO+1}, s{sNBs}
            s_mov_b32 s{sSO+3}, s{sNBs}
            s_add_u32 s{sNX+1}, s{sNX}, 256
            s_add_u32 s{sNX+2}, s{sNX}, 512
            s_add_u32 s{sNX+3}, s{sNX}, 768
            s_branch {back}
            {four}:
            s_add_u32 s{sSO+2}, s{sNBs}, 64
            {self.pooladdr(sSO+3, sN4, 32)}
            s_mov_b32 s{sNX+2}, s{sNX}
            s_mov_b32 s{sNX+3}, s{sNX}
            s_branch {back}""")
        o = [f'v_readlane_b32 s{sN4}, v{VTAB}, s{sT}', f's_lshl_b32 s{sNX}, s{sNPH}, 7', f's_lshl_b32 s{sT+2}, s{sT}, 5',
             f's_and_b32 s{sNBs}, s{sN4}, 0x3ffff', f's_bfe_u32 s{sNK}, s{sN4}, 0x30012',
             f's_sub_u32 s{sT+2}, s{sT+2}, s{sNBs}', f's_and_b32 s{sT+2}, s{sT+2}, 0xff']
        if ph == 1: o += [f's_add_u32 s{sNP}, s{sT+2}, s{sNBs}']
        else: o += [f's_add_u32 s{sT+2}, s{sT+2}, s{sNBs}', f's_mul_i32 s{sNP}, s{sJ}, 6', f's_cmp_eq_u32 s{sNPH}, 0\ns_cselect_b32 s{sNP}, s{sNP}, s{sT+2}']
        o += [f's_mov_b32 s{sNX+1}, s{sNX}', f's_add_u32 s{sNX+3}, s{sNX}, 256', f's_add_u32 s{sSO+1}, s{sNBs}, 32', f's_add_u32 s{sT+2}, s{sNBs}, 64',
              f's_cmp_eq_u32 s{sNK}, 3\ns_cselect_b32 s{sNX+2}, s{sNX}, s{sNX+3}\ns_cselect_b32 s{sSO+2}, s{sT+2}, s{sNBs}\ns_cselect_b32 s{sSO+3}, s{sNBs}, s{sSO+1}',
              f's_sub_u32 s{sT+2}, s{sNK}, 2\ns_cmp_lt_u32 s{sT+2}, 2\ns_cbranch_scc0 {rare}\n{back}:']
        return o
    def eread(self):
        return [f'v_add_u32 v{T3}, s{sNBs}, v{VEO}',
                (f'ds_read_b32 v{T2}, v{T3}', [('E', False)]), (f'ds_read_b32 v{T3}, v{T3} offset:1024', [('E', False)])]
    NEXTRA = 2
    def adma(self):
        dum = self.lab('dum'); four = self.lab('a4'); back = self.lab('back'); b4 = self.lab('b4')
        ea = f's[{sEA}:{sEA+3}]'; m = mod('eald', '')
        self.ool(f'{dum}:\nv_mov_b32 v{T2}, -1\ns_mov_b32 m0, {SCR}\ns_mov_b64 exec, 1\n' + f'buffer_load_dwordx4 v{T2}, {ea}, 0 offen lds\n'*2 + f's_mov_b64 exec, -1\ns_branch {back}')
        self.ool(f"""{four}:
            {self.pooladdr(sT+7, sN4, 512)}
            v_add_u32 v{T2}, s{sT+7}, v{VEO}
            ds_read_b32 v{T2}, v{T2}
            s_add_u32 m0, s{sT+7}, {OA}
            s_waitcnt lgkmcnt(0)
            v_or_b32 v{T2}, v{T2}, v{VH16}
            buffer_load_dwordx4 v{T2}, {ea}, 0 offen {m} lds
            s_branch {b4}""")
        return [('wait', 'E'), f'v_or_b32 v{T2}, v{T2}, v{VH16}', f'v_or_b32 v{T3}, v{T3}, v{VH16}', f"""
        s_cmp_lg_u32 s{sNPH}, 0
        s_cbranch_scc1 {dum}
        s_add_u32 m0, s{sNBs}, {OA}
        s_add_u32 s{sT+7}, s{sNBs}, {OA+1024}
        buffer_load_dwordx4 v{T2}, {ea}, 0 offen {m} lds
        s_mov_b32 m0, s{sT+7}
        s_mov_b32 exec_hi, 0
        buffer_load_dwordx4 v{T3}, {ea}, 0 offen {m} lds
        s_cmp_eq_u32 s{sNK}, 4
        s_cbranch_scc1 {four}
        {b4}:
        s_mov_b32 exec_hi, -1
        {back}:"""]
    def areads(self, s):
        b = ACC + (s & 1) * 20
        va, vy, oa, oy, o = VAO, VYO, s*512, s*64, []
        if s == 3:
            va, vy, oa, oy = ACC + 56, ACC + 57, 0, 0
            o = [self.pooladdr(sT+7, sC4, 512) + f'\ns_sub_u32 s{sT+7}, s{sT+7}, s{sCB}\nv_add_u32 v{va}, s{sT+7}, v{VAO}',
                 self.pooladdr(sT+7, sC4, 64) + f'\ns_sub_u32 s{sT+7}, s{sT+7}, s{sCB}\nv_add_u32 v{vy}, s{sT+7}, v{VYO}']
        o += [(f'ds_read_b64_tr_b16 v[{b}:{b+1}], v{va} offset:{oa}', [(f'a{s}', False)]),
              (f'ds_read_b64_tr_b16 v[{b+2}:{b+3}], v{va} offset:{oa+128}', [(f'a{s}', False)])]
        for t in range(2):
            for hh in range(2):
                d = b + 4 + t*8 + hh*4
                o.append((f'ds_read_b128 v[{d}:{d+3}], v{vy} offset:{oy + t*384 + hh*16}', [(f'y{s}{t}', False)]))
        return o
    def abuild(self, nK):
        o = []
        for s in range(nK):
            b = ACC + (s & 1) * 20; un = ACC + 40 + (s & 1) * 8
            o.append(('wait', f'y{s}1' if (opt('mw', 1) and s < 2) else f'a{s}'))
            for i in range(4):
                o += [f'v_lshlrev_b32 v{un+2*i}, 16, v{b+i}', f'v_and_b32 v{un+1+2*i}, 0xffff0000, v{b+i}']
            for t in range(2):
                o.append(('wait', f'y{s}{t}'))
                for e in range(8): o.append(f'v_mul_f32 v{b+4+t*8+e}, v{un+e}, v{b+4+t*8+e}')
                for i in range(4): o.append(f'v_cvt_pk_bf16_f32 v{AR+s*8+t*4+i}, v{b+4+t*8+2*i}, v{b+5+t*8+2*i}')
            if s + 2 < nK: o += self.areads(s + 2)
        return o
    R = dict(A=PW, B=PW+2, C=PW+4, D=PW+6, E=PW+8, F=PW+10)
    CH_ = {0: [(0,'A','new'),(2,'B','new'),(2,'C','new'),(2,'D','new')],
           1: [(3,'A','new'),(1,'B','new'),(4,'C','new'),(4,'D','new')],
           2: [(3,'E','new'),(4,'C','neg'),(1,'B','acc'),(4,'F','new')],
           3: [(3,'E','new'),(4,'D','neg'),(4,'F','neg'),(1,'B','acc')]}
    def F(self, q, k):
        t, u = TILES[k]; o = []
        for r in range(8):
            for b in (2*t, 2*t+1):
                p, d, mode = self.CH_[q][b]
                T = tile(t, u) + (b & 1)*8 + r; W = Wreg(p, u) + r; D = self.R[d] + u
                if r == 0 and mode == 'new': o.append(f'v_mul_f32 v{D}, v{T}, v{W}')
                elif r == 0 and mode == 'neg': o.append(f'v_fma_f32 v{D}, v{T}, v{W}, -v{D}')
                else: o.append(f'v_fmac_f32 v{D}, v{T}, v{W}')
        return o
    SROW = {0: 0, 2: 1, 8: 2, 5: 3, 6: 4, 3: 5, 9: 6, 1: 7, 4: 8, 10: 9, 7: 10}
    def fin(self, q, ph, sp=None):
        sp = sCP if sp is None else sp
        R = self.R
        pairs = {0: [(0, 'A', 'B'), (1, 'D', 'C')], 1: [], 2: [(2, 'E', 'A')], 3: [(3, 'E', 'B'), (4, 'F', 'C')]}[q]
        o = []
        for (slot, x, y) in pairs: o += [f'v_permlane32_swap_b32 v{R[x]+u}, v{R[y]+u}' for u in range(2)]
        if q == 3: o.append(f'v_permlane32_swap_b32 v{R["D"]}, v{R["D"]+1}')
        if ph == 1 and q == 0: o.append(f'v_lshl_add_u32 v{VPA}, v{VL2}, 1, s{sCP}')
        for (slot, x, y) in pairs: o += [f'v_add_f32 v{R[x]+u}, v{R[x]+u}, v{R[y]+u}' for u in range(2)]
        cv = [(slot, R[x], R[x]+1) for (slot, x, y) in pairs]
        if q == 3:
            o.append(f'v_add_f32 v{R["D"]}, -v{R["D"]}, -v{R["D"]+1}')
            cv.append((5, R['D'], R['D']))
        if cv and ph == 0:
            o.append(f's_set_gpr_idx_on s{sp}, gpr_idx(DST)\n' + ''.join(f'v_cvt_pk_bf16_f32 v{P0+slot}, v{lo}, v{hi}\n' for (slot, lo, hi) in cv) + 's_set_gpr_idx_off')
        elif cv:
            if q == 3: o.append(f'v_sub_u32 v{R["D"]+1}, v{VPA}, v{VH16}')
            for (slot, lo, hi) in cv: o.append(f'v_cvt_pk_bf16_f32 v{lo}, v{lo}, v{hi}')
            for (slot, lo, hi) in cv:
                o.append((f'ds_write_b32 v{VPA}, v{lo} offset:{slot*256}' if slot < 5 else f'ds_write_b16 v{R["D"]+1}, v{lo} offset:1280', [('P', False)]))
        return o
    def drop(self, line):
        x = opt('drop', '')
        if not x or not getattr(self, 'inunit', False) or '\n' in line.strip(): return False
        l = line.strip()
        if 'D' in x and l.startswith('buffer_load') and (f's[{sX}:' in l or f's[{sX2}:' in l): return True
        if 'P' in x and l.startswith('ds_write_b16'): return True
        if 'S' in x and l.startswith('v_permlane'): return True
        if 'C' in x and l.startswith('v_cvt_pk'): return True
        if 'B' in x and l.startswith('ds_read_b64_tr') and (f'v{VB0} ' in l or f'v{VB1} ' in l): return True
        if 'F' in x and l.startswith('v_fmac'): return True
        if 'A' in x and l.startswith(('v_lshlrev_b32','v_and_b32','v_cvt_pk')): return True
        if 'A' in x and l.startswith('v_mul_f32') and int(l.split()[1][1:-1]) < 64: return True
        if 'Y' in x and l.startswith(('ds_read_b128',)): return True
        return False
    def emit(self, items, lg):
        for it in items:
            if isinstance(it, tuple) and it[0] == 'V':
                if not self.drop(it[1]): self.a(it[1])
                self.vq += [it[2]] * it[3]; continue
            if isinstance(it, tuple) and it[0] == 'wait' and len(it) > 2 and isinstance(it[2], str):
                idx = [k for k, t in enumerate(self.vq) if t == it[2]]
                if idx: cnt = len(self.vq) - 1 - idx[-1]; self.vq = self.vq[idx[-1]+1:]
                it = ('wait', it[1], cnt if idx else None)
            if isinstance(it, str):
                if not self.drop(it): self.a(it)
            elif it[0] != 'wait' and self.drop(it[0]):
                for t, o in it[1]: lg.issue(t, o)
            elif it[0] == 'wait':
                w = lg.waitline(it[1]); lw = w[len('s_waitcnt'):] if w else ''
                if len(it) > 2 and it[2] is not None: w = f's_waitcnt vmcnt({it[2]})' + lw
                if len(it) > 3 and it[3]:
                    rl = self.lab('rlx'); back = self.lab('back')
                    self.ool(f'{rl}:\ns_waitcnt vmcnt({it[2] + it[3]}){lw}\ns_branch {back}')
                    w = f's_cbranch_vccnz {rl}\n{w}\n{back}:'
                if w: self.a(w)
            else:
                self.a(it[0])
                for t, o in it[1]: lg.issue(t, o)
    LATE = opt('late', 0)
    ENTRY = ([] if LATE else [('B', False)]*2 + [('B1' if opt('split', 0) else 'B', False)]*2) + [('a0', False)]*2 + [('y00', False)]*2 + [('y01', False)]*2 + [('a1', False)]*2 + [('y10', False)]*2 + [('y11', False)]*2
    @staticmethod
    def cost(it):
        if isinstance(it, tuple):
            if it[0] == 'wait': return 2 if len(it) > 3 and it[3] else 1
            it = it[1] if it[0] == 'V' else it[0]
        return sum((2 if 'permlane' in l else 1) for l in it.strip().split('\n') if not l.strip().endswith(':'))
    def unit(self, nK, ph):
        if opt('dmaf', 0): return self.unit2(nK, ph)
        a = self.a
        lg = LG(a, self.ENTRY)
        a(f'K2_U{nK}{ph}:')
        self.inunit = True
        n = 4 * nK
        BUD = opt('bud', 7)
        pre = seg(0)
        claim = (self.claim0() if ph == 0 else self.atomic())
        after = ([] if ph == 0 else [('wait', 'C')] + self.claimed()) + self.next_info(ph)
        if nK == 1: pre += claim
        LATE = self.LATE; LP = opt('lp', 16)
        def ins(l, items, back): return l[:max(0, len(l) - back)] + items + l[max(0, len(l) - back):]
        ab = self.abuild(nK)
        if LATE: ab = ins(ab, ['s_waitcnt vmcnt(6)'] + self.bread(0), opt('lp2', 16))
        pre += ab
        if nK == 1:
            pre += after + (self.eread() if ph == 0 else [])
            for t in range(4): pre += self.sread(t)
            if ph == 0: pre += self.adma()
            for t in range(4): pre += self.gmad(t)
        x = -1 if nK == 1 else 2
        MW = opt('mergewait', True)
        gaps = [[] for _ in range(4*n)]; tailg = [[] for _ in range(4*n)]
        late = lambda j: LATE and j % nK == 0
        hs = lambda j: opt('skiph', 0) and nK == 3 and 4 <= j < n and j % 3 == 2
        vmn = lambda i: None if late(i + 1) else 4 - hs(i+2) - hs(i+3) + (self.NEXTRA if (ph == 0 and x < i <= x + 3) else 0)
        vml = lambda j: 6 + (self.NEXTRA if (ph == 0 and x + 1 <= j <= x + 4) else 0)
        EW = opt('ew', 1)
        def rlx(i):
            if not EW or nK not in (2, 3): return 0
            if ph == 0: return 4 if (opt('ew0', 1) and i in (n-3, n-2)) else 0
            return 6 if (EW == 2 and i < 3) else 0
        for i in range(n):
            d = self.dma(i & 3, G + 2*((i+4) % nK), sOWN + (i+4)//nK) if i + 4 < n else self.dma(i & 3, G + 2*(i+4-n), sNX + (i+4-n))
            br = self.bread(i + 1); SP = opt('split', 0)
            if late(i + 1): br = []
            w = [] if MW else [f's_waitcnt vmcnt({vmn(i)})']
            if SP == 0:
                gaps[4*i] += w + br; tailg[4*i] += [d[0]]; gaps[4*i+1] += [d[1]] + ([] if hs(i+4) else [d[2]])
            elif SP == 1:
                gaps[4*i] += w + br[:2]; tailg[4*i+1] += [('wait', 'B1'), d[0]]; gaps[4*i+2] += [d[1]] + br[2:]; tailg[4*i+2] += [d[0]]; gaps[4*i+3] += [d[2]]
            elif SP == 2:
                gaps[4*i] += w + br[:2]; gaps[4*i+1] += br[2:]; tailg[4*i+1] += [d[0]]; gaps[4*i+2] += [d[1]]; tailg[4*i+2] += [d[0]]; gaps[4*i+3] += [d[2]]
            if i + 1 < n: tailg[4*i+3] += [('wait', 'B1' if SP == 2 else 'B', vmn(i+1) if MW else None, rlx(i+1))]
        WP = lambda p: WR + 16*p + 8
        if EW and ph == 0:
            ew = self.lab('ew'); back = self.lab('back')
            o = Asm(); sv = self.a; self.a = o
            o(f'{ew}:\nv_lshlrev_b32 v{VT0}, 3, v{VL2}\ns_mov_b64 vcc, -1')
            self.wload(1, VT0, (0, 2), WP); o(('s_waitcnt vmcnt(0)\n' if nK == 1 else '') + f's_branch {back}')
            self.a = sv; self.ool(o.text())
            gaps[4*(n-4) if nK > 1 else 4*2] += [f's_cmp_lg_u32 s{sNPH}, 0\ns_cbranch_scc1 {ew}\n{back}:']
        if EW == 2 and ph == 1 and nK in (2, 3):
            up = self.lab('ew'); back = self.lab('back')
            self.ool(f'{up}:\n' + '\n'.join(self.wunp((3, 1, 4), WP)) + f'\ns_mov_b64 vcc, 0\ns_branch {back}')
            gaps[4*3 + opt('upg', 0)] += [f's_cbranch_vccnz {up}\n{back}:']
        used = lambda g: sum(map(self.cost, gaps[g] + tailg[g]))
        def place(items, g0, g1):
            g = g0
            for it in items:
                while g < g1 and used(g) + self.cost(it) > BUD and used(g) > 1: g += 1
                gaps[g].append(it)
            return g
        DEF = opt('defer', True) and nK > 1
        if nK > 1:
            for t in range(4):
                place(self.sread(t), 4*(n-6+t) + (3 if opt('split', 0) else 2), 4*(n-6+t) + 3)
                place(self.gmad(t), 4*(n-5+t) + 1, 4*(n-5+t) + 3)
        ndef = [0]*4
        for q in range(1, 4):
            g0 = 4*q*nK
            if DEF:
                f3 = self.F(q-1, 3)
                room = [max(0, BUD - used(g0 + k)) for k in range(3)]
                m = min(16, sum(room)); ndef[q-1] = m
                f3 = f3[16-m:]
                for k in range(3):
                    gaps[g0 + k] += f3[:room[k]]; f3 = f3[room[k]:]
            place(self.fin(q-1, ph), g0 + (3 if DEF else 1), 4*(q*nK + nK - 1) + (1 if nK > 1 else 3))
        PRE = opt('pre', 0)
        pub = [f'v_mov_b32 v{VT0}, s{sPROGW}', f'v_mov_b32 v{VT1}, s{sCB}',
               (f's_mov_b64 exec, 1\nds_write_b32 v{VT0}, v{VT1}\ns_mov_b64 exec, -1', [('P', False)])] if (PRE and ph == 1) else []
        gf = place(self.fin(3, ph, sPP), 1, 4*(nK - 1) + (1 if nK > 1 else 3))
        if nK == 1: gaps[gf] += pub
        if nK > 1:
            if ph == 0:
                g = place(claim + after, 1, 5)
                place(self.eread(), max(g, 5), 7)
                place(self.adma(), 4*x + 3, 4*x + 3)
            else:
                place(claim, 1, 3)
                g1 = 4*(n-6) + (3 if opt('split', 0) else 2)
                keep = gaps[g1]; k0 = [i for i, it in enumerate(keep) if isinstance(it, str) and f'v{VSO}' in it]
                moved = keep[k0[0]:] if k0 else []
                if k0: gaps[g1] = keep[:k0[0]]
                place(after, 5, g1)
                gaps[g1] += moved
                place(pub, max(gf, opt('pubg', 6)), 4*(n-2))
        if opt('dsp', 1):
            upd = [f's_sub_u32 s{sLIM}, s{sNBs}, s{sCB}', f's_mov_b32 s{sCB}, s{sNBs}', f's_mov_b32 s{sC4}, s{sN4}',
                   (f's_cmp_eq_u32 s{sNPH}, 0' if ph == 0 else f's_cmp_lg_u32 s{sNV}, 0') + f'\ns_cselect_b32 s{sEX}, s{sNK}, 0']
            place(upd, 4*(n-2) + 1, 4*(n-1) + 1)
            gl = max([g for g in range(4*n) if any(('gpr_idx' in (it if isinstance(it, str) else it[0])) or (f's{sCP}' in (it if isinstance(it, str) else it[0])) for it in gaps[g])] + [4*(n-2)])
            place([f's_mov_b32 s{sPP}, s{sCP}', f's_mov_b32 s{sCP}, s{sNP}'], gl, max(gl, 4*(n-1) + 2))
        nf0 = [0]*4
        if nK > 1:
            for q in range(4):
                g = 4*(q*nK + nK - 1) + 2
                nf0[q] = max(0, BUD - used(g))
                gaps[g] += self.F(q, 0)[:nf0[q]]
        pb = opt('pb', 1) if (PRE and ph == 1) else 0
        self.emit([f's_setprio {opt("prioa", 1) + pb}'] + pre + seg(1) + [('wait', 'B', vmn(0) if MW else None, rlx(0))] + ([f's_setprio {opt("prio", 1) + pb}'] if opt("prio", 1) != opt("prioa", 1) else []), lg)
        for i in range(n):
            q, s = divmod(i, nK)
            for k, (t, u) in enumerate(TILES):
                c = f'v[{tile(t,u)}:{tile(t,u)+15}]' if s else '0'
                bb = BR + (i & 1)*8 + u*4
                if 'M' not in opt('drop', ''): a(f'v_mfma_f32_32x32x16_bf16 v[{tile(t,u)}:{tile(t,u)+15}], v[{AR+s*8+t*4}:{AR+s*8+t*4+3}], v[{bb}:{bb+3}], {c}')
                g = 4*i + k
                if k == 3 and s == nK - 1:
                    self.emit([f's_setprio {opt("prio0", 0) + pb}'] + gaps[g] + seg(2+2*q) + self.F(q, 0)[nf0[q]:], lg)
                    if q < 3:
                        fb = self.F(q, 1) + self.F(q, 2) + self.F(q, 3)[:16-ndef[q]]
                        if LATE: fb = ins(fb, [f's_waitcnt vmcnt({vml(i+1)})'] + self.bread(i + 1), LP)
                        self.emit(fb + seg(3+2*q) + [f's_setprio {opt("prio", 1) + pb}'], lg)
                else: self.emit(gaps[g], lg)
                self.emit(tailg[g], lg)
        end = [f's_sub_u32 s{sT}, s{sNBs}, s{sCB}', f'v_add_u32 v{VAO}, s{sT}, v{VAO}', f'v_add_u32 v{VYO}, s{sT}, v{VYO}']
        if opt('dsp', 1): end = [f'v_add_u32 v{VAO}, s{sLIM}, v{VAO}', f'v_add_u32 v{VYO}, s{sLIM}, v{VYO}']
        end += self.F(3, 1) + self.areads(0) + self.F(3, 2) + self.areads(1) + self.F(3, 3)
        self.emit(end, lg)
        if SEG:
            a('s_memtime s[94:95]\ns_waitcnt lgkmcnt(0)')
            def acc(d, i, j): a(f's_sub_u32 s67, s{76+2*j}, s{76+2*i}\ns_add_u32 s{d}, s{d}, s67')
            acc(96, 0, 1)
            for q in range(4): acc(97, 1+2*q, 2+2*q)
            for q in range(3): acc(98, 2+2*q, 3+2*q)
            acc(99, 8, 9)
            a(f's_add_u32 s100, s100, {nK}\ns_add_u32 s101, s101, 1')
        assert [x for x in lg.q if x[0] != 'P'] == self.ENTRY, lg.q
        self.inunit = False
        self.dispatch(ph)
    def unit2(self, nK, ph):
        a = self.a
        lg = LG(a, self.ENTRY)
        self.vq = ['i1']*2 + ['i2']*2 + ['i3']*2
        a(f'K2_U{nK}{ph}:')
        self.inunit = True
        n = 4 * nK
        BUD = opt('bud', 7)
        claim = (self.claim0() if ph == 0 else self.atomic())
        after = ([] if ph == 0 else [('wait', 'C')] + self.claimed()) + self.next_info(ph)
        def dm(j):
            d = self.dma(j & 3, G + 2*(j % nK), sOWN + j//nK) if j < n else self.dma(j & 3, G + 2*(j-n), sNX + (j-n))
            return [d[0], ('V', d[1], f'i{j}', 1), ('V', d[2], f'i{j}', 1)]
        def adma():
            x = self.adma(); return x[:-1] + [('V', x[-1], 'A', self.NEXTRA)]
        sched = {-1: [4]}; last = 4
        for q in range(4):
            hi = min((q+1)*nK + 4, n + 3); sched[q] = list(range(last + 1, hi + 1)); last = max(last, hi)
        bof = {j: b for b, l in sched.items() for j in l}
        pre = []
        if nK == 1: pre += claim
        ab = self.abuild(nK)
        if nK == 1:
            pre += ab + after + (self.eread() if ph == 0 else [])
            for t in range(4): pre += self.sread(t)
            if ph == 0: pre += adma()
            for t in range(4): pre += self.gmad(t)
            pre += dm(4)
        else:
            p = opt('dp0', 6); d = dm(4)
            pre += ab[:p] + [d[0]] + ab[p:p+1] + d[1:] + ab[p+1:]
        gaps = [[] for _ in range(4*n)]; tailg = [[] for _ in range(4*n)]
        for i in range(n):
            gaps[4*i] += self.bread(i + 1)
            if i + 1 < n: tailg[4*i+3] += [('wait', 'B', f'i{i+2}')]
        used = lambda g: sum(map(self.cost, gaps[g] + tailg[g]))
        def place(items, g0, g1):
            g = g0
            for it in items:
                while g < g1 and used(g) + self.cost(it) > BUD and used(g) > 1: g += 1
                gaps[g].append(it)
            return g
        place(self.fin(3, ph, sPP), 1, 4*(nK - 1) + (1 if nK > 1 else 3))
        ga = 0
        if nK > 1:
            if ph == 0:
                ga = place(claim + after, 1, 6)
                place(self.eread(), max(ga, 5), 4*2*nK - 3 if nK == 2 else 4*nK - 2)
            else:
                place(claim, 1, 3)
                ga = place(after, 5, 9)
            g = ga
            for t in range(4):
                own = [bof[j] for j in range(4, n) if j % nK == t]
                g0 = max(g, 4*nK*(max(own) + 1) if own else 0); g1 = 4*nK*(bof[n + t] + 1) - 1
                g = place(self.sread(t), g0, g1 - 3)
                place(self.gmad(t), min(g + 3, g1), g1)
        ndef = [0]*4
        for q in range(1, 4):
            g0 = 4*q*nK
            if nK > 1:
                room = [max(0, BUD - used(g0 + k)) for k in range(3)]
                m3 = min(16, sum(room)); m2 = min(16, sum(room) - m3, room[0] + room[1]) if opt('def2', 1) else 0
                ndef[q-1] = m2 + m3
                f = (self.F(q-1, 2) + self.F(q-1, 3))[32 - m2 - m3:]
                for k in range(3):
                    gaps[g0 + k] += f[:room[k]]; f = f[room[k]:]
            place(self.fin(q-1, ph), g0 + (3 if nK > 1 else 1), 4*(q*nK + nK - 1) + (1 if nK > 1 else 3))
        upd = [f's_sub_u32 s{sLIM}, s{sNBs}, s{sCB}', f's_mov_b32 s{sCB}, s{sNBs}', f's_mov_b32 s{sC4}, s{sN4}',
               (f's_cmp_eq_u32 s{sNPH}, 0' if ph == 0 else f's_cmp_lg_u32 s{sNV}, 0') + f'\ns_cselect_b32 s{sEX}, s{sNK}, 0']
        place(upd, 4*(n-2) + 1, 4*(n-1) + 1)
        txt = lambda it: it if isinstance(it, str) else (it[1] if it[0] == 'V' else it[0])
        gl = max([g for g in range(4*n) if any(('gpr_idx' in txt(it)) or (f's{sCP}' in txt(it)) for it in gaps[g])] + [4*(n-2)])
        place([f's_mov_b32 s{sPP}, s{sCP}', f's_mov_b32 s{sCP}, s{sNP}'], gl, max(gl, 4*(n-1) + 2))
        nf0 = [0]*4
        if nK > 1:
            for q in range(4):
                g = 4*(q*nK + nK - 1) + 2
                nf0[q] = max(0, BUD - used(g))
                gaps[g] += self.F(q, 0)[:nf0[q]]
        def burst(q, f):
            blocks = []
            for j in sched[q]:
                d = dm(j)
                if j == (q+1)*nK + 4: d = [('wait', 'B')] + d
                blocks.append(d)
            if ph == 0 and nK > 1 and q == (1 if nK == 2 else 0): blocks.insert(1 if nK == 2 else len(blocks), adma())
            o = []; p0 = opt('dp', 2); st = opt('dst', 8)
            for k, d in enumerate(blocks):
                cut = p0 if k == 0 else st
                o += f[:cut]; f = f[cut:]
                if isinstance(d[-1], tuple) and d[-1][2] != 'A': o += d[:-2] + f[:1] + d[-2:]; f = f[1:]
                else: o += d
            return o + f
        self.emit([f's_setprio {opt("prioa", 1)}'] + pre + [('wait', 'B', 'i1')], lg)
        for i in range(n):
            q, s = divmod(i, nK)
            for k, (t, u) in enumerate(TILES):
                c = f'v[{tile(t,u)}:{tile(t,u)+15}]' if s else '0'
                bb = BR + (i & 1)*8 + u*4
                if 'M' not in opt('drop', ''): a(f'v_mfma_f32_32x32x16_bf16 v[{tile(t,u)}:{tile(t,u)+15}], v[{AR+s*8+t*4}:{AR+s*8+t*4+3}], v[{bb}:{bb+3}], {c}')
                g = 4*i + k
                if k == 3 and s == nK - 1:
                    self.emit([f's_setprio {opt("prio0", 0)}'] + gaps[g], lg)
                    if q < 3:
                        f = self.F(q, 0)[nf0[q]:] + self.F(q, 1) + self.F(q, 2) + self.F(q, 3)
                        self.emit(burst(q, f[:len(f) - ndef[q]]) + [f's_setprio {opt("prio", 1)}'], lg)
                else: self.emit(gaps[g], lg)
                self.emit(tailg[g], lg)
        end = burst(3, self.F(3, 0)[nf0[3]:] + [f'v_add_u32 v{VAO}, s{sLIM}, v{VAO}', f'v_add_u32 v{VYO}, s{sLIM}, v{VYO}'] + self.F(3, 1))
        end += [('wait', '-', 'A')] + self.areads(0) + self.F(3, 2) + self.areads(1) + self.F(3, 3)
        self.emit(end, lg)
        assert [x for x in lg.q if x[0] != 'P'] == self.ENTRY, lg.q
        assert self.vq[-6:] == [f'i{n+1}']*2 + [f'i{n+2}']*2 + [f'i{n+3}']*2, self.vq
        self.inunit = False
        self.dispatch(ph)
    def dispatch(self, ph, check=True):
        if check and opt('dsp', 1):
            self.a(f"""
            s_cmp_eq_u32 s{sEX}, 2
            s_cbranch_scc1 K2_U2{ph}
            s_cmp_eq_u32 s{sEX}, 3
            s_cbranch_scc1 K2_U3{ph}
            s_branch K2_DSP{ph}
            """)
            return
        if check:
            if ph == 0: self.a(f's_cmp_lg_u32 s{sNPH}, 0\ns_cbranch_scc1 K2_SWITCH')
            else: self.a(f's_cmp_eq_u32 s{sNV}, 0\ns_cbranch_scc1 K2_TAIL')
        self.a(f"""
        s_mov_b32 s{sCB}, s{sNBs}
        s_mov_b32 s{sPP}, s{sCP}
        s_mov_b32 s{sC4}, s{sN4}
        s_mov_b32 s{sCP}, s{sNP}
        s_cmp_eq_u32 s{sNK}, 2
        s_cbranch_scc1 K2_U2{ph}
        s_cmp_eq_u32 s{sNK}, 3
        s_cbranch_scc1 K2_U3{ph}
        s_cmp_eq_u32 s{sNK}, 1
        s_cbranch_scc1 K2_U1{ph}
        s_branch K2_U4{ph}
        """)

    def wload(self, ph, vl16, paths, dst):
        for k, p in enumerate(paths):
            self.a(f's_mov_b32 s{sT}, {WS_WTAB + ph*10240 + p*2048}')
            for u in range(2): self.a(f'buffer_load_dwordx4 v[{dst(p)+4*u}:{dst(p)+4*u+3}], v{vl16}, s[{sWS}:{sWS+3}], s{sT} offen offset:{u*1024} sc1')
    def wunp(self, paths, src):
        return [f'v_lshlrev_b32 v{WR+16*p+2*i}, 16, v{src(p)+i}\nv_and_b32 v{WR+16*p+2*i+1}, 0xffff0000, v{src(p)+i}' for p in paths for i in range(8)]

    def fill_all(self, vT_):
        a = self.a
        for t in range(512): assert (t*437) >> 16 == t // 150
        a(f'''
        v_mul_u32_u24 v76, 437, v{vT_}
        v_lshrrev_b32 v76, 16, v76
        v_mul_u32_u24 v76, 150, v76
        v_sub_u32 v76, v{vT_}, v76
        v_mov_b32 v80, -1
        v_mov_b32 v77, 1.0
        v_cmp_gt_u32 vcc, 48, v76
        v_lshlrev_b32 v78, 4, v{vT_}
        v_add_u32 v78, {RECBASE}, v78
        v_cndmask_b32 v80, v80, 0, vcc
        v_cmp_gt_u32 vcc, 12, v76
        v_add_u32 v79, 64800, v78
        s_nop 0
        v_cndmask_b32 v80, v80, v77, vcc
        v_cmp_gt_u32 vcc, 450, v{vT_}
        v_mov_b32 v81, v80
        v_mov_b32 v82, v80
        v_mov_b32 v83, v80
        s_mov_b64 exec, vcc
        ''')
        for i in range(13): a(f'ds_write_b128 v{78 + (i//9)}, v[80:83] offset:{(i%9)*7200}')
        a(f'''
        v_cmp_gt_u32 vcc, {150 + (OA+1024)//16}, v{vT_}
        s_cbranch_vccz K2_NOCL
        s_mov_b64 exec, vcc
        ds_write_b128 v79, v[80:83] offset:{4*7200}
        K2_NOCL:
        s_mov_b64 exec, -1
        ''')
    def fill_head(self, part):
        a = self.a; n1 = opt('n1', 40); n0 = opt('n0', 0)
        if part == (-1 if n0 else 0):
            a(f'''
            v_subrev_u32 v76, 320, v0
            v_mov_b32 v80, -1
            v_mov_b32 v77, 1.0
            v_cmp_gt_u32 vcc, 48, v76
            v_lshlrev_b32 v78, 4, v76
            v_add_u32 v78, {RECBASE}, v78
            v_cndmask_b32 v80, v80, 0, vcc
            v_cmp_gt_u32 vcc, 12, v76
            v_add_u32 v79, {27*NSTR}, v78
            s_nop 0
            v_cndmask_b32 v80, v80, v77, vcc
            v_cmp_gt_u32 s[{sEX}:{sEX+1}], {(OA+1024)//16 - 64}, v8
            v_mov_b32 v81, v80
            v_mov_b32 v82, v80
            v_mov_b32 v83, v80
            ''')
        for i in {-1: range(n0), 0: range(n0, n1), 1: range(n1, 40)}[part]: a(f'ds_write_b128 v{78 + (i//27)}, v[80:83] offset:{(i%27)*NSTR}')
        if part == 1:
            a(f'''
            s_cmp_eq_u32 s{sW}, 6
            s_cselect_b64 exec, s[{sEX}:{sEX+1}], -1
            ds_write_b128 v79, v[80:83] offset:{13*NSTR}
            s_mov_b64 exec, -1
            ''')
    def fill_tail(self):
        for t in range(320): assert (t*2979) >> 16 == t // 22
        self.a(f'''
        v_mul_u32_u24 v76, 2979, v0
        v_lshrrev_b32 v76, 16, v76
        v_mul_u32_u24 v77, {NSTR - 22*16}, v76
        v_lshl_add_u32 v78, v0, 4, v77
        v_add_u32 v78, {RECBASE + 128*16}, v78
        v_add_u32 v79, {28*NSTR}, v78
        v_mov_b32 v80, -1
        v_mov_b32 v81, -1
        v_cmp_gt_u32 vcc, 14, v76
        v_cmp_gt_u32 s[{sEX}:{sEX+1}], 12, v76
        v_mov_b32 v82, -1
        v_mov_b32 v83, -1
        s_mov_b64 exec, vcc
        ds_write_b128 v78, v[80:83]
        ds_write_b128 v78, v[80:83] offset:{14*NSTR}
        s_mov_b64 exec, s[{sEX}:{sEX+1}]
        ds_write_b128 v79, v[80:83]
        s_mov_b64 exec, -1
        ''')
    def counters(self, vL, first):
        self.a(f'''
        v_mov_b32 v76, 0
        v_mov_b32 v77, -1
        v_lshlrev_b32 v78, 2, v{vL}
        v_add_u32 v78, {HIST}, v78
        s_mov_b64 exec, 0x1ff
        ds_write_b32 v78, v76 offset:{PROG-HIST}
        s_mov_b64 exec, 0xff
        ds_write_b32 v78, v77 offset:{NULLSRC-HIST}
        s_mov_b64 exec, -1
        {'' if first else f's_cmp_lg_u32 s{sRND}, 0'}
        {'' if first else f's_cbranch_scc1 K2_NOH'}
        s_mov_b32 exec_hi, 0xffff
        ds_write_b32 v78, v76
        s_mov_b64 exec, 0x3f
        ds_write_b32 v78, v76 offset:{FLAG-HIST}
        s_mov_b64 exec, -1
        ''')
    def srds(self):
        a = self.a
        srd(a, sX, 80, N*1024); srd(a, sOUT, 96, N*1024); srd(a, sEA, 84, E*32)
        a('s_sub_u32 s80, s80, 1024\ns_subb_u32 s81, s81, 0'); srd(a, sX2, 80, N*1024 + 1024)
    def consts(self, vL):
        self.a(f'''
        v_and_b32 v84, 15, v{vL}                ; i
        v_lshrrev_b32 v85, 5, v{vL}             ; h
        v_bfe_u32 v86, v{vL}, 4, 1
        v_lshrrev_b32 v87, 2, v84
        v_and_b32 v88, 3, v84                   ; c
        v_lshl_add_u32 v89, v85, 3, v87         ; 8h + row
        v_lshlrev_b32 v{VAO}, 5, v89
        v_lshl_add_u32 v{VAO}, v88, 3, v{VAO}
        v_add_u32 v{VAO}, {OA}, v{VAO}
        v_mul_u32_u24 v{VYO}, 192, v86
        v_lshl_add_u32 v{VYO}, v85, 5, v{VYO}
        v_lshrrev_b32 v90, 1, v88
        v_lshl_add_u32 v90, v86, 1, v90         ; chunk (u = 0)
        v_bfe_u32 v91, v87, 1, 1
        v_lshlrev_b32 v91, 2, v91
        v_xor_b32 v90, v90, v91
        v_lshlrev_b32 v90, 4, v90
        v_lshl_add_u32 v90, v89, 7, v90
        v_and_b32 v91, 1, v88
        v_lshl_add_u32 v90, v91, 3, v90
        v_add_u32 v{VB0}, s{sRING}, v90
        v_xor_b32 v{VB1}, 64, v{VB0}
        v_lshrrev_b32 v90, 3, v{vL}
        v_lshlrev_b32 v{VSO}, 2, v90
        v_add_u32 v{VSO}, {OS}, v{VSO}
        v_bfe_u32 v90, v90, 1, 1
        v_lshlrev_b32 v90, 2, v90
        v_and_b32 v91, 7, v{vL}
        v_xor_b32 v90, v90, v91
        v_lshlrev_b32 v{VLG}, 4, v90
        v_lshlrev_b32 v{VL2}, 1, v{vL}
        v_and_b32 v{VH16}, 1, v{vL}
        v_lshlrev_b32 v{VH16}, 4, v{VH16}
        v_lshrrev_b32 v90, 1, v{vL}
        v_lshlrev_b32 v90, 5, v90
        v_add_u32 v{VEO}, {OA}, v90
        ''')
    def pad(self, name, ret):
        return f'K2_PAD_{name}:\ns_branch {ret}' if name in opt('pads', self.PADS).split('_') and opt('pad', 1) else ''
    def padx(self, name, ret):
        return f'K2_PAD_{name}:\ns_cbranch_execz {ret}' if name in opt('pads', self.PADS).split('_') and opt('pad', 1) else ''
    PADS = 'S1_S2_H1_H2_H3_B3_LD_NW_SC_SD_U20_U30_U21_U31_SW_TL_T2_OV'
    def hops(self, names, ret):
        if not opt('pad', 1): return
        self.a('s_mov_b64 exec, 0')
        for w, n in names:
            if n in opt('pads', self.PADS).split('_'): self.a(f's_cmp_eq_u32 s{sW}, {w}\ns_cbranch_scc1 K2_PAD_{n}')
        self.a(f'{ret}:\ns_mov_b64 exec, -1')
    def stage_sort(self, vL, vT_):
        a = self.a; st = mod('recst', 'sc1')
        RAW = 24576
        a(f"""
        s_cmp_lg_u32 s{sW}, 7
        s_cbranch_scc1 KS_NOTAG
        s_mov_b32 s24, {WS_EPO}
        s_mov_b64 exec, 1
        buffer_load_dword v14, v6, s[{sWS}:{sWS+3}], s24 offen sc1
        s_mov_b64 exec, -1
        """)
        sstamp(a, 1); a('s_barrier'); sstamp(a, 3)
        self.counters(8, True)
        a(f"""
        s_mov_b64 exec, 1
        v_mov_b32 v12, {NONCE}
        s_waitcnt vmcnt(0)
        v_add_u32 v14, 1, v14
        ds_write_b32 v12, v14
        KS_TAGOK2:
        s_mov_b64 exec, -1
        {'s_memrealtime s[86:87]' if PROFS else ''}
        s_waitcnt lgkmcnt(0)
        s_barrier
        s_branch KS_B3
        KS_H0:
        s_barrier
        s_branch KS_HELP
        {self.pad('S1', 'KS_HOP0')}
        KS_NOTAG:
        s_cmp_ge_u32 s{sW}, 5
        s_cbranch_scc1 {'KS_H0' if opt('eb1', 0) else 'KS_HELP'}
        s_cmp_ge_u32 s2, {NCH}
        s_cbranch_scc1 KS_IDLE
        """)
        srd(a, 40, 88, E*4)
        a(f'buffer_load_dwordx4 v[12:15], v5, s[40:43], s64 offen')
        srd(a, 44, 86, E*4); srd(a, 48, 82, E*6)
        a(f"""
        buffer_load_dwordx4 v[16:19], v5, s[44:47], s64 offen
        buffer_load_dwordx4 v[20:23], v4, s[48:51], s65 offen
        buffer_load_dwordx2 v[24:25], v4, s[48:51], s65 offen offset:16
        v_lshlrev_b32 v2, 2, v0                 ; t*4
        s_lshl_b32 s64, s64, 3
        v_lshl_add_u32 v3, v0, 7, s64
        v_mov_b32 v7, 1
        s_cmp_eq_u32 s{sW}, 4
        s_cbranch_scc1 KS_NOCLR
        ds_write_b32 v2, v6
        KS_NOCLR:
        """)
        sstamp(a, 1); a('s_waitcnt lgkmcnt(0)\ns_barrier'); sstamp(a, 3)
        self.hops([(0, 'B3'), (1, 'LD'), (2, 'NW'), (3, 'SC'), (4, 'SD')], 'KS_HOP')
        self.fill_tail()
        a(f's_mov_b32 s58, {BMUL}\ns_movk_i32 s59, 625\ns_waitcnt vmcnt(3)')
        sstamp(a, 5)
        sort_rank(a, self.padx('S2', 'KS_HOP0'))
        a('s_waitcnt lgkmcnt(0)')
        for j in range(4): a(f'ds_read_b32 v{32+j}, v{32+j} offset:1024')
        sort_emit(a, st)
        a(f"""
        s_branch KS_JOIN
        {self.pad('B3', 'KS_HOP')}
        KS_B3:
        v_mov_b32 v59, {NONCE}
        ds_read_b32 v59, v59
        s_waitcnt lgkmcnt(0)
        s_barrier
        KS_JOIN:
        v_readfirstlane_b32 s{sTAG}, v59
        """)
        stamp(a, 6)
    def helpers(self):
        a = self.a; RAW = 24576
        a(f"""
        {self.pad('H1', 'KS_HOP0')}
        KS_PRE:
        """)
        if opt('n0', 0): self.fill_head(-1)
        a(f"""
        s_branch KS_PRE2
        KS_HELP:
        {'s_memrealtime s[78:79]' if PROFS else ''}
        s_mov_b32 s30, 0
        s_cmp_eq_u32 s{sW}, 6
        s_cbranch_scc1 KS_RAW
        s_mov_b32 s30, 2
        s_cmp_ge_u32 s2, 180
        s_cbranch_scc1 KS_NOW
        s_mov_b32 s30, 1
        """)
        weight_loads(a)
        a('K1_GO:\nKS_NOW:\n' + ('' if opt('eb1', 0) else 's_barrier\n') + self.padx('H2', 'KS_HOP0') + '\nKS_FILL:')
        sstamp(a, 3)
        self.fill_head(0)
        sstamp(a, 5)
        a(f'v_mov_b32 v59, {NONCE}\ns_barrier\nds_read_b32 v59, v59')
        self.fill_head(1)
        a(f"""
        s_waitcnt vmcnt(0) lgkmcnt(0)
        s_cmp_eq_u32 s30, 0
        s_cbranch_scc1 KS_B3
        s_cmp_eq_u32 s30, 2
        s_cbranch_scc1 KS_NOST
        v_lshl_or_b32 v40, v65, 16, v64
        v_lshl_or_b32 v41, v67, 16, v66
        v_lshl_or_b32 v42, v69, 16, v68
        v_lshl_or_b32 v43, v71, 16, v70
        buffer_store_dwordx4 v[40:43], v9, s[{sWS}:{sWS+3}], s24 offen sc1
        KS_NOST:
        s_waitcnt lgkmcnt(0)
        s_barrier
        s_lshl_b32 s24, s2, 2
        s_add_u32 s24, s24, {WS_FLG}
        s_mov_b64 exec, 1
        s_waitcnt vmcnt(0)
        buffer_store_dword v59, v6, s[{sWS}:{sWS+3}], s24 offen sc1
        s_mov_b64 exec, -1
        s_branch KS_JOIN
        {self.pad('H3', 'KS_HOP0')}
        KS_RAW:
        {'' if opt('eb1', 0) else 's_barrier'}
        """)
        srd(a, 60, 90, 16*640*2)
        for i in range(20):
            if i % 4 == 0: a(f's_mov_b32 m0, {RAW + i*1024}\ns_movk_i32 s24, {i*1024}')
            a(f'buffer_load_dwordx4 v9, s[60:63], s24 offen offset:{(i%4)*1024} lds')
        a('s_branch KS_FILL\nKS_IDLE:\ns_barrier')
        self.fill_tail()
        a('s_barrier\ns_branch KS_B3')
    def wraw(self, vL):
        a = self.a; RAW = 24576
        a(f'''
        v_lshrrev_b32 v60, 5, v{vL}             ; h
        v_bfe_u32 v61, v{vL}, 2, 2              ; row
        v_lshl_add_u32 v60, v60, 2, v61
        v_mul_u32_u24 v60, 1280, v60
        v_bfe_u32 v61, v{vL}, 4, 1
        v_lshl_add_u32 v60, v61, 5, v60
        v_and_b32 v61, 3, v{vL}
        v_lshl_add_u32 v60, v61, 3, v60
        ''')
        for i in range(20):
            p, u, rq = i >> 2, (i >> 1) & 1, i & 1
            a(f'ds_read_b64_tr_b16 v[{WR+40+2*i}:{WR+41+2*i}], v60 offset:{RAW + rq*8*1280 + p*256 + u*64}')
        a('s_waitcnt lgkmcnt(0)\nK2_WUNP:')
        for x in self.wunp(range(5), lambda p: WR + 40 + 8*p): a(x)

    def gen(self):
        a = self.a
        vL, vT_, vC, vE, vREM, vOFF = 176, 177, 178, 179, 180, 181
        RK = 40
        NBs = 50
        t0 = 192
        ws = f's[{sWS}:{sWS+3}]'
        def loop(done, body):
            for i in range(U):
                a(f'v_cmp_lt_i32 vcc, {2*i}, v{vREM}\ns_cbranch_vccz {done}\ns_mov_b64 exec, vcc')
                a(body(i))
            a(f'{done}:\ns_mov_b64 exec, -1')
        a('s_cmp_ge_u32 s2, 256\ns_cbranch_scc1 K2_END')
        stamp(a, 0)
        a(f'''
        s_load_dwordx16 s[80:95], s[0:1], 0
        s_load_dwordx4 s[96:99], s[0:1], 72
        s_load_dwordx2 s[100:101], s[0:1], 88   ; ws
        v_lshrrev_b32 v1, 6, v0
        s_mov_b32 s{sB}, s2
        v_readfirstlane_b32 s{sW}, v1
        ''')
        self.hops([(0, 'S1'), (1, 'S2'), (5, 'H1'), (6, 'H2'), (2, 'H3')], 'KS_HOP0')
        a(f'''
        v_and_b32 v8, 63, v0
        v_lshlrev_b32 v9, 4, v8                 ; lane*16
        v_mov_b32 v6, 0
        v_lshlrev_b32 v5, 4, v0                 ; t*16
        v_mul_u32_u24 v4, 24, v0
        s_mul_i32 s64, s2, {CH*4}
        s_mul_i32 s65, s2, {CH*6}
        v_mov_b32 v{vL}, v8
        v_mov_b32 v{vT_}, v0
        s_mul_i32 s{sNB}, s2, 625
        s_add_u32 s{sNC}, s{sNB}, {625+15}
        s_add_u32 s{sNB}, s{sNB}, 15
        s_lshr_b32 s{sNB}, s{sNB}, 4
        s_lshr_b32 s{sNC}, s{sNC}, 4
        s_sub_u32 s{sNC}, s{sNC}, s{sNB}
        s_movk_i32 s{s1024}, 1024
        s_lshl_b32 s{sRING}, s{sW}, 13
        s_mov_b32 s{sPROG}, {PROG}
        s_lshl_b32 s{sPROGW}, s{sW}, 2
        s_add_u32 s{sPROGW}, s{sPROGW}, s{sPROG}
        {chr(10).join(f's_add_u32 s{sM0+i}, s{sRING}, {i*2048}' for i in range(4))}
        {f's_sub_u32 s30, s{sW}, 5' + chr(10) + 's_cmp_lt_u32 s30, 2' + chr(10) + 's_cbranch_scc1 KS_PRE' if opt('n0', 0) else ''}
        KS_PRE2:
        s_waitcnt lgkmcnt(0)
        ''')
        if opt('wsoff', 0): a(f's_add_u32 s100, s100, {opt("wsoff", 0) << 20}\ns_addc_u32 s101, s101, 0')
        srd(a, sWS, 100, WS_SIZE)
        self.stage_sort(vL, vT_)
        a(f'''
        s_mov_b32 s{sJ0}, 0
        s_mov_b32 s{sFIRST}, 1
        {chr(10).join(f's_mov_b32 s{i}, 0' for i in range(96, 102)) if SEG else ''}
        s_mov_b32 s{sRND}, 0
        s_mov_b32 s{sR}, 1
        K2_CELLS:
        v_lshrrev_b32 v{vC}, 1, v{vT_}          ; cell
        v_min_u32 v{vC}, {NCH-1}, v{vC}
        v_mul_u32_u24 v72, {TSTR}, v{vC}
        s_and_b32 s{sT}, s{sB}, 7
        s_lshl_b32 s{sT}, s{sT}, 7
        s_lshr_b32 s{sT+1}, s{sB}, 5
        s_lshl_b32 s{sT+1}, s{sT+1}, 4
        s_add_u32 s{sT+9}, s{sT}, s{sT+1}
        s_add_u32 s{sT+9}, s{sT+9}, {WS_TBL}
        buffer_load_dwordx4 v[76:79], v72, {ws}, s{sT+9} offen sc1
        ''')
        a(f's_cmp_eq_u32 s{sFIRST}, 0\ns_cbranch_scc1 K2_NOSRD')
        self.srds()
        self.hops([(0, 'U20'), (1, 'U30'), (2, 'U21'), (3, 'U31'), (4, 'SW'), (5, 'TL'), (6, 'T2'), (7, 'OV')], 'K2_HOP')
        a('K2_NOSRD:')
        self.consts(vL)
        def chk(r): return f"""
            v_xor_b32 v73, s{sT+1}, v{r}
            v_xor_b32 v74, s{sT+1}, v{r+1}
            v_or_b32 v73, v73, v74
            v_xor_b32 v74, s{sTAG}, v{r+3}
            v_lshrrev_b32 v73, 22, v73
            v_or_b32 v73, v73, v74
            v_cmp_ne_u32 vcc, 0, v73"""
        a(f'''
        s_lshl_b32 s{sT+1}, s{sTAG}, 22
        s_mov_b32 s{sT+2}, 0x40000
        s_bfe_u32 s{sT+3}, s{sB}, 0x10004
        s_bfe_u32 s{sT+4}, s{sB}, 0x10003
        s_add_u32 s{sT+5}, s{sT+3}, s{sT+4}
        s_mul_i32 s{sT+4}, s{sT+4}, 11
        s_sub_u32 s{sT+6}, 11, s{sT+4}
        v_cmp_gt_u32 vcc, {2*NCH}, v{vT_}
        s_mov_b64 s[{sEX}:{sEX+1}], vcc
        K2_POLL:
        ''')
        if opt('poll2', 0): a(f'''
        buffer_load_dwordx4 v[80:83], v72, {ws}, s{sT+9} offen sc1
        s_waitcnt vmcnt(1)
        {chk(76)}
        s_cbranch_vccz K2_POLLED
        s_sub_u32 s{sT+2}, s{sT+2}, 1
        s_cbranch_scc1 K2_END
        buffer_load_dwordx4 v[76:79], v72, {ws}, s{sT+9} offen sc1
        s_waitcnt vmcnt(1)
        {chk(80)}
        s_cbranch_vccnz K2_POLL
        s_add_u32 s{sT+3}, s{sT+3}, 4
        s_add_u32 s{sT+5}, s{sT+5}, 4
        ''')
        else: a(f'''
        s_waitcnt vmcnt(0)
        {chk(76)}
        s_cbranch_vccz K2_POLLED
        s_sub_u32 s{sT+2}, s{sT+2}, 1
        s_cbranch_scc1 K2_END
        s_mov_b64 exec, vcc
        buffer_load_dwordx4 v[76:79], v72, {ws}, s{sT+9} offen sc1
        s_mov_b64 exec, -1
        s_branch K2_POLL
        {self.pad('LD', 'KS_HOP')}
        ''')
        a(f'''
        K2_POLLED:
        s_set_gpr_idx_on s{sT+3}, gpr_idx(SRC0)
        v_bfe_u32 v{vE}, v76, s{sT+4}, 11
        s_set_gpr_idx_idx s{sT+5}
        v_bfe_u32 v73, v76, s{sT+6}, 11
        s_set_gpr_idx_off
        v_sub_u32 v73, v73, v{vE}
        ''')
        o = Asm(); sv = self.a; self.a = o
        o(f'''
        K2_WINDOW:
        s_mov_b32 s{sRND}, 0
        s_mov_b32 s{sR}, 1
        K2_LOAD:
        v_mbcnt_lo_u32_b32 v{vL}, -1, 0
        v_mbcnt_hi_u32_b32 v{vL}, -1, v{vL}
        s_lshl_b32 s{sT}, s{sW}, 6
        v_add_u32 v{vT_}, s{sT}, v{vL}
        v_lshlrev_b32 v70, 4, v{vL}
        ''')
        self.wload(0, 70, range(5), lambda p: WR + 40 + 8*p)
        self.fill_all(vT_)
        o(f's_cmp_lg_u32 s{sW}, 7\ns_cbranch_scc1 K2_NOH')
        self.counters(vL, False)
        o('K2_NOH:\ns_waitcnt lgkmcnt(0)\ns_barrier\ns_branch K2_CELLS')
        self.a = sv; self.ool(o.text())
        stamp(a, 1)
        a(f'''
        v_cndmask_b32 v73, 0, v73, s[{sEX}:{sEX+1}]
        v_and_b32 v1, 1, v{vT_}
        v_add_u32 v1, s{sJ0}, v1                ; j0 + sub
        v_sub_u32 v{vREM}, v73, v1
        v_add_u32 v{vE}, v{vE}, v1
        v_mul_u32_u24 v{vOFF}, {CSTR}, v{vC}
        v_lshl_add_u32 v{vOFF}, v{vE}, 4, v{vOFF}
        ''')
        MK = [f's[{r}:{r+1}]' for r in (40, 42, 44, 46, 48, 50, 90, 92, 94, 96)]
        def mloop(done, body):
            for i in range(U): a(f's_mov_b64 exec, {MK[i]}\ns_cbranch_execz {done}\n' + body(i))
            a(f'{done}:\ns_mov_b64 exec, -1')
        M = opt('cm', 1); NL = opt('nl', 3); vOFM, vEM = vOFF + 1, vOFF + 4; LIST = 45056
        adr = lambda i, r, rm, st: f'v{rm + i - M}, {{}} offen' if M <= i < M + NL else f'v{r}, {{}} offen offset:{st*i}'
        ld = lambda i: f'buffer_load_dwordx4 v[{4*i}:{4*i+3}], ' + adr(i, vOFF, vOFM, 32).format(f'{ws}, 0') + ' sc1'
        for i in range(M): a(f'v_cmp_lt_i32 {MK[i]}, {2*i}, v{vREM}')
        a(f'v_add_u32 v{vOFM}, {32*M}, v{vOFF}\ns_mov_b32 s{sT+7}, 0')
        for i in range(M):
            a(f's_mov_b64 exec, {MK[i]}\n{ld(i)}')
        a('s_mov_b64 exec, -1')
        for i in range(M, U): a(f'v_cmp_lt_i32 {MK[i]}, {2*i}, v{vREM}')
        for j in range(1, NL): a(f'v_add_u32 v{vOFM+j}, {32*(M+j)}, v{vOFF}')
        a(f"""
        v_subrev_u32 v62, {2*M - 1}, v{vREM}
        v_ashrrev_i32 v62, 1, v62
        v_med3_i32 v62, v62, 0, {U - M}
        s_cmp_eq_u64 {MK[M]}, 0
        s_cbranch_scc1 K2_LD_DONE
        v_mov_b32 v63, v62
        """)
        scan(a, 63)
        a(f"""
        s_lshl_b32 s{sT}, s{sW}, 10
        s_add_u32 s{sT}, s{sT}, {LIST}
        v_readlane_b32 s{sT+1}, v63, 63
        v_sub_u32 v63, v63, v62
        v_lshl_add_u32 v64, v63, 2, s{sT}
        v_lshlrev_b32 v63, 5, v63
        v_sub_u32 v63, v{vOFM}, v63
        s_cmp_gt_u32 s{sT+1}, {63*NL}
        s_cbranch_scc1 K2_LD_GEN
        """)
        for i in range(M, U): a(f's_mov_b64 exec, {MK[i]}\ns_cbranch_execz K2_LD_L\nds_write_b32 v64, v63 offset:{4*(i-M)}')
        a(f"""
        K2_LD_L:
        s_mov_b64 exec, -1
        v_lshl_add_u32 v63, v{vL}, 2, s{sT}
        v_lshlrev_b32 v62, 5, v{vL}
        s_waitcnt lgkmcnt(0)
        """)
        for j in range(NL): a(f'ds_read_b32 v{64+j}, v63 offset:{4*63*j}')
        for j in range(NL): a(f's_min_u32 s{sT+2}, s{sT+1}, 63\ns_sub_u32 s{sT+1}, s{sT+1}, s{sT+2}\ns_bfm_b64 {MK[M+j]}, s{sT+2}, 0')
        a(f's_mov_b64 {MK[M+NL]}, 0\ns_mov_b32 s{sT+7}, 1')
        for j in range(NL):
            a(f's_mov_b32 s{sT+2}, {32*63*j}\ns_waitcnt lgkmcnt({NL-1-j})\nv_add3_u32 v{vOFM+j}, v62, v{64+j}, s{sT+2}\ns_mov_b64 exec, {MK[M+j]}\n{ld(M+j)}')
        a(f"""
        K2_LD_DONE:
        s_mov_b64 exec, -1
        """)
        self.ool('K2_LD_GEN:\n' + ''.join(f's_mov_b64 exec, {MK[i]}\ns_cbranch_execz K2_LD_DONE\n{ld(i)}\n' for i in range(M, U)) + 's_branch K2_LD_DONE')
        a(f"""
        s_cmp_eq_u32 s{sFIRST}, 0
        s_cbranch_scc1 K2_WLATE
        """)
        self.ool('K2_WLATE:\ns_waitcnt vmcnt(0)\ns_branch K2_WUNP')
        self.wraw(vL)
        self.ool(f"""
        K2_FLGLD:
        buffer_load_dwordx4 v[84:87], v72, {ws}, s{sT+6} offen sc1
        s_mov_b32 s{sT+4}, 0
        s_branch K2_FLGL2
        K2_FLGCK:
        s_cmp_lg_u32 s{sRND}, 0
        s_cbranch_scc1 K2_FLGOK
        s_waitcnt vmcnt(0)
        K2_FLGW:
        v_xor_b32 v84, s{sTAG}, v84
        v_xor_b32 v85, s{sTAG}, v85
        v_xor_b32 v86, s{sTAG}, v86
        v_xor_b32 v87, s{sTAG}, v87
        v_or3_b32 v84, v84, v85, v86
        v_or_b32 v84, v84, v87
        v_cmp_ne_u32 vcc, 0, v84
        s_cbranch_vccz K2_FLGY
        s_sub_u32 s{sT+2}, s{sT+2}, 1
        s_cbranch_scc1 K2_END
        buffer_load_dwordx4 v[84:87], v72, {ws}, s{sT+6} offen sc1
        s_waitcnt vmcnt(0)
        s_branch K2_FLGW
        K2_FLGY:
        s_cmp_lg_u32 s{sB}, 0
        s_cbranch_scc1 K2_FLGOK
        v_mov_b32 v84, s{sTAG}
        v_mov_b32 v85, {WS_EPO}
        s_mov_b64 exec, 1
        buffer_store_dword v84, v85, {ws}, 0 offen sc1
        s_mov_b64 exec, -1
        s_branch K2_FLGOK
        """)
        a(f"""
        K2_NOWRAW:
        {self.padx('NW', 'KS_HOP')}
        v_lshrrev_b32 v{vE}, 2, v{vOFF}
        {chr(10).join(f'v_lshrrev_b32 v{vEM+j}, 2, v{vOFM+j}' for j in range(NL))}
        s_mov_b32 s{sT+8}, {WS_RANK}
        v_mov_b32 v{t0+9}, 1
        s_movk_i32 s{sT}, {NSTR//4}
        s_movk_i32 s{sT+1}, {NSTR}
        s_mov_b32 s{sT+2}, 0x40000
        s_mov_b32 s{sT+3}, 0xffff
        v_mov_b32 v{t0+10}, {RECBASE}
        s_cmp_lg_u32 s{sRND}, 0
        s_cbranch_scc1 K2_RK_LOAD
        v_cmp_lt_i32 vcc, {2*U}, v{vREM}
        s_cbranch_vccz K2_NOMORE
        v_mov_b32 v61, {FLAG}
        ds_write_b32 v61, v{t0+9}
        K2_NOMORE:
        v_lshlrev_b32 v72, 4, v{vL}
        s_mov_b32 s{sT+6}, {WS_FLG}
        s_mov_b32 s{sT+4}, {RECBASE + opt("tp", 8)*NSTR}
        s_cmp_eq_u32 s{sT+7}, 0
        s_waitcnt vmcnt({NL})
        s_cbranch_scc0 K2_ARR
        s_waitcnt vmcnt(0)
        K2_ARR:
        """)
        stamp(a, 2)
        prep = lambda i: f'v_mad_u32_u24 v{NBs+i}, v{NBs+i}, s{sT}, v{t0+10}\nv_and_b32 v{4*i+3}, 0xffffff, v{4*i+3}'
        def rank(i):
            self.ool(f'K2_RT{i}:\ns_sub_u32 s{sT+2}, s{sT+2}, 1\ns_cbranch_scc1 K2_END\n{ld(i)}\ns_waitcnt vmcnt(0)\ns_branch K2_CK{i}')
            return (f's_waitcnt vmcnt({M + NL - 1 - i})\n' if M <= i < M + NL else '') + f"""K2_CK{i}:
            v_bfi_b32 v{t0}, s{sT+3}, v{4*i+1}, v{4*i+2}
            v_lshrrev_b32 v{NBs+i}, 24, v{4*i+3}
            v_cmp_ne_u32 vcc, s{sTAG}, v{t0}
            v_add_u32 v{RK+i}, {HIST}, v{NBs+i}
            s_cbranch_vccnz K2_RT{i}
            ds_add_rtn_u32 v{RK+i}, v{RK+i}, v{t0+9}
            """ + (prep(i).split('\n')[0] if (opt('tp', 8)) else prep(i))
        mloop('K2_RK_A', rank)
        a(f's_cmp_eq_u32 s{sW}, 7\ns_cbranch_scc1 K2_FLGLD\nK2_FLGL2:')
        if opt('tp', 8):
            mloop('K2_TP', lambda i: f'v_cmp_gt_u32 vcc, s{sT+4}, v{NBs+i}\n' + prep(i).split('\n')[1] + f'\ns_mov_b64 exec, vcc\nbuffer_load_dword v245, v{4*i+3}, s[{sEA}:{sEA+3}], 0 offen')
        o = Asm(); b = a; a = o
        a(f'K2_RK_LOAD:\ns_waitcnt vmcnt(0)')
        mloop('K2_RK_B', lambda i: f'v_lshrrev_b32 v{NBs+i}, 24, v{4*i+3}\nbuffer_load_dword v{RK+i}, ' + adr(i, vE, vEM, 8).format(f'{ws}, s{sT+8}') + '\n' + prep(i))
        a(f's_mul_i32 s{sT+4}, s{sRND}, 48\ns_waitcnt vmcnt(0)')
        for i in range(U): a(f'v_subrev_u32 v{RK+i}, s{sT+4}, v{RK+i}')
        a('s_branch K2_RK_DONE')
        self.ool(o.text()); a = b
        a(f"""
        K2_RK_DONE:
        {self.padx('SC', 'KS_HOP')}
        s_mul_i32 s{sT+9}, s{sRND}, 48
        s_mov_b32 s{sT}, 1
        s_waitcnt lgkmcnt(0)
        """)
        def scatter(i, rr, base):
            return f"""
            v_lshl_add_u32 v{t0+2}, v{rr}, 5, v{base}
            v_lshl_add_u32 v{t0+3}, v{rr}, 2, v{base}
            v_lshrrev_b32 v{t0+1}, 3, v{rr}
            v_mad_i32_i24 v{t0+4}, v{t0+1}, -16, v{t0+3}
            v_and_b32 v{t0+1}, 1, v{t0+1}
            v_mad_i32_i24 v{t0+4}, v{t0+1}, -14, v{t0+4}
            ds_write_b32 v{t0+2}, v{4*i+3} offset:{OA}
            ds_write_b16 v{t0+3}, v{4*i} offset:{192+2}
            ds_write_b16_d16_hi v{t0+3}, v{4*i} offset:{2*192+2}
            ds_write_b16_d16_hi v{t0+3}, v{4*i+1} offset:{3*192+2}
            ds_write_b16 v{t0+4}, v{4*i+2} offset:{OS}
            """
        for i in range(U):
            a(f's_mov_b64 exec, {MK[i]}\ns_cbranch_execz K2_SC_DONE\nv_cmpx_gt_u32 vcc, 48, v{RK+i}\n' + scatter(i, RK+i, NBs+i))
            a(f's_cmp_lg_u64 exec, {MK[i]}\ns_addc_u32 s{sT}, s{sT}, s{sT}')
        R_, NB_, W_ = t0 + 12, t0 + 13, t0 + 16
        self.big = f"""
            {self.pad('OV', 'K2_HOP')}
            K2_OV:
            s_cmp_lg_u32 s{sRND}, 0
            s_cbranch_scc1 K2_OB
            s_cmp_eq_u32 s{sNC}, 39
            s_cselect_b32 s{sT+5}, 5, 2
            s_flbit_i32_b32 s{sEX}, s{sT}
            s_sub_u32 s{sEX}, 31, s{sEX}
            s_bitset0_b32 s{sT}, s{sEX}
            s_sub_u32 s{sEX+1}, s{sEX}, 1
            v_mov_b32 v{t0+6}, 0
            v_mov_b32 v{t0+14}, s{sEX+1}
            K2_OVL:
            s_mov_b64 exec, -1
            s_ff1_i32_b32 s{sT+3}, s{sT}
            s_bitset0_b32 s{sT}, s{sT+3}
            v_readfirstlane_b32 s{sT+4}, v{t0+14}
            s_sub_u32 s{sT+4}, s{sT+4}, s{sT+3}
            s_lshl_b32 s{sT+3}, s{sT+4}, 1
            v_cmp_lt_i32 vcc, s{sT+3}, v{vREM}
            {chr(10).join(f's_cmp_eq_u32 s{sT+4}, {M+j}' + chr(10) + f's_cselect_b64 vcc, {MK[M+j]}, vcc' for j in range(NL))}
            s_lshl_b32 s{sT+3}, s{sT+4}, 2
            s_set_gpr_idx_on s{sT+4}, gpr_idx(SRC0)
            v_mov_b32 v{R_}, v{RK}
            v_mov_b32 v{NB_}, v{NBs}
            s_set_gpr_idx_idx s{sT+3}
            v_mov_b32 v{W_}, v0
            v_mov_b32 v{W_+1}, v1
            v_mov_b32 v{W_+2}, v2
            v_mov_b32 v{W_+3}, v3
            s_set_gpr_idx_off
            s_mov_b64 exec, vcc
            v_subrev_u32 v{t0}, 48, v{R_}
            v_mov_b32 v{t0+5}, {OWN}
            v_cmp_gt_u32 vcc, 16, v{t0}
            s_mov_b32 s{sT+4}, 0
            s_mov_b64 exec, vcc
            s_cbranch_execz K2_OVN
            K2_OP:
            ds_cmpst_rtn_b32 v{t0+8}, v{t0+5}, v{t0+6}, v{NB_}
            s_cmp_ge_u32 s{sT+4}, 2
            s_cselect_b32 s{sT+7}, {NSTR}, 0
            s_cselect_b32 s{sLIM}, 32, 0
            s_sub_u32 s{sT+7}, {POOL}, s{sT+7}
            s_lshl_b32 s{sT+3}, s{sT+4}, 4
            s_sub_u32 s{sT+3}, s{sT+3}, s{sLIM}
            v_mov_b32 v{t0+7}, s{sT+7}
            v_add_u32 v{t0+11}, s{sT+3}, v{t0}
            s_waitcnt lgkmcnt(0)
            v_cmp_eq_u32 vcc, 0, v{t0+8}
            v_cmp_eq_u32 s[{sEX}:{sEX+1}], v{t0+8}, v{NB_}
            s_or_b64 vcc, vcc, s[{sEX}:{sEX+1}]
            s_andn2_b64 s[{sEX}:{sEX+1}], exec, vcc
            s_mov_b64 exec, vcc
            {scatter(W_//4, t0+11, t0+7)}
            s_mov_b64 exec, s[{sEX}:{sEX+1}]
            s_cbranch_execz K2_OVN
            v_add_u32 v{t0+5}, 4, v{t0+5}
            s_add_u32 s{sT+4}, s{sT+4}, 1
            s_cmp_lt_u32 s{sT+4}, s{sT+5}
            s_cbranch_scc1 K2_OP
            K2_OVN:
            s_cmp_lg_u32 s{sT}, 0
            s_cbranch_scc1 K2_OVL
            s_mov_b64 exec, -1
            s_branch K2_OB"""
        assert W_ % 4 == 0
        d = t0 + 1; k = t0 + 2; e = t0 + 3; p = t0 + 4; x = t0 + 5; pl = t0 + 6
        a(f'''
        K2_SC_DONE:
        s_mov_b64 exec, -1
        {self.padx('SD', 'KS_HOP')}
        s_bcnt1_i32_b32 s{sT+3}, s{sT}
        s_cmp_gt_u32 s{sT+3}, 1
        s_cbranch_scc1 K2_OV
        K2_OB:
        v_lshlrev_b32 v{t0}, 2, v{vL}
        v_add_u32 v{t0}, {HIST}, v{t0}
        v_mov_b32 v{t0+8}, {FLAG}
        v_mov_b32 v{pl}, 0
        s_movk_i32 s{sLIM}, 48
        s_cmp_eq_u32 s{sW}, 7
        s_cbranch_scc1 K2_FLGCK
        K2_FLGOK:
        s_waitcnt lgkmcnt(0)
        s_barrier
        ds_read_b32 v{d}, v{t0}
        ds_read_b32 v{t0+8}, v{t0+8}
        v_cmp_gt_u32 s[{sEX}:{sEX+1}], s{sNC}, v{vL}
        v_mad_u32_u24 v{e}, v{vL}, s{sT+1}, v{t0+10}
        s_waitcnt lgkmcnt(0)
        v_cndmask_b32 v{d}, 0, v{d}, s[{sEX}:{sEX+1}]
        v_readfirstlane_b32 s{sMORE}, v{t0+8}
        v_cmp_lt_u32 vcc, 48, v{d}
        s_cbranch_vccnz K2_BIG
        K2_TOK:
        v_subrev_u32 v{k}, s{sT+9}, v{d}
        v_max_i32 v{k}, 1, v{k}
        v_min_i32 v{k}, s{sLIM}, v{k}
        v_add_u32 v{k}, 15, v{k}
        v_lshrrev_b32 v{k}, 4, v{k}             ; K-steps
        v_lshl_or_b32 v{e}, v{k}, 18, v{e}
        v_or_b32 v{e}, v{e}, v{pl}
        v_mov_b32 v{x}, {NULLBASE | (1 << 18)}
        v_cndmask_b32 v{VTAB}, v{x}, v{e}, s[{sEX}:{sEX+1}]
''')
        o = Asm(); b = a; a = o
        a(self.big)
        a(f'''
        K2_BIG:
        s_cmp_lg_u32 s{sRND}, 0
        s_cbranch_scc1 K2_TOK
        s_mov_b64 s[{sT+4}:{sT+5}], vcc
        s_bcnt1_i32_b64 s{sT+2}, vcc
        s_cmp_eq_u32 s{sNC}, 39
        s_cselect_b32 s{sT+3}, 5, 2
        s_cmp_gt_u32 s{sT+2}, s{sT+3}
        s_cbranch_scc1 K2_SLOW
        v_cmp_lt_u32 vcc, 64, v{d}
        s_cbranch_vccnz K2_SLOW
        v_mov_b32 v{x}, {OWN}
        ds_read_b32 v{t0+11}, v{x}
        ds_read_b32 v{t0+12}, v{x} offset:4
        ds_read_b32 v{t0+13}, v{x} offset:8
        ds_read_b32 v{t0+14}, v{x} offset:12
        ds_read_b32 v{t0+15}, v{x} offset:16
        v_and_b32 v{x}, 0x3ffff, v{e}
        s_movk_i32 s{sLIM}, 64
        s_waitcnt lgkmcnt(0)
        ''')
        for sl in range(1, 5): a(f'v_cmp_eq_u32 vcc, v{t0+11+sl}, v{x}\nv_mov_b32 v{k}, {sl << 27}\nv_cndmask_b32 v{pl}, v{pl}, v{k}, vcc')
        a(f'''
        s_branch K2_TOK
        K2_SLOW:
        v_mov_b32 v{x}, v{d}
        ''')
        scan(a, x, 'v_max_u32')
        for dd in range(48, 512*U + 48): assert (dd * 43691) >> 21 == dd // 48
        a(f'''
        v_readlane_b32 s{sR}, v{x}, 63
        s_add_u32 s{sR}, s{sR}, 47
        s_mul_i32 s{sR}, s{sR}, 43691
        s_lshr_b32 s{sR}, s{sR}, 21
        ''')
        for i in range(U):
            a(f's_mov_b64 exec, {MK[i]}\ns_cbranch_execz K2_SV_DONE\nbuffer_store_dword v{RK+i}, ' + adr(i, vE, vEM, 8).format(f'{ws}, s{sT+8}'))
        a('K2_SV_DONE:\ns_mov_b64 exec, -1\ns_branch K2_TOK')
        self.ool(o.text()); a = b
        for q in range(4): a(f's_movk_i32 s{sOWN+q}, {q*256}')
        a(f'''
        s_add_u32 s{sRND}, s{sRND}, 1
        s_cmp_ge_u32 s{sRND}, s{sR}
        s_cselect_b32 s{sLAST}, 1, 0
        s_cmp_eq_u32 s{sMORE}, 0
        s_cselect_b32 s{sLAST}, s{sLAST}, 0
        s_mov_b32 s{sSPIN}, 0x400000
        s_mov_b32 s{sJ}, 0
        s_mov_b32 s{sNPH}, 0
        s_mov_b32 s{sNP}, 0
        s_mov_b32 s{sNV}, 1
        s_mov_b32 s{sCP}, 0
        s_mov_b32 s{sT}, s{sW}
        ''')
        lg = LG(a)
        self.emit(self.next_info(0), lg)
        stamp(a, 3)
        pre = self.eread()
        for t in range(4): pre += self.sread(t)
        pre += self.adma()
        for t in range(4): pre += self.gmad(t)
        for t in range(4): pre += self.dma(t, G + 2*t, sNX + t) + (['s_barrier'] if t == opt('fbar', -1) else [])
        pre += [f'v_add_u32 v{VAO}, s{sNBs}, v{VAO}', f'v_add_u32 v{VYO}, s{sNBs}, v{VYO}']
        if opt('lpt', 0):
            pre += [f'''v_bfe_u32 v{t0}, v{VTAB}, 18, 3
            v_cmp_le_u32 vcc, 3, v{t0}
            v_mbcnt_lo_u32_b32 v{t0}, vcc_lo, 0
            v_mbcnt_hi_u32_b32 v{t0}, vcc_hi, v{t0}
            s_bcnt1_i32_b64 s{sT}, vcc
            v_sub_u32 v{t0+1}, v{vL}, v{t0}
            v_add_u32 v{t0+1}, s{sT}, v{t0+1}
            v_cndmask_b32 v{t0}, v{t0+1}, v{t0}, vcc
            v_lshlrev_b32 v{t0}, 2, v{t0}
            ds_permute_b32 v{t0+1}, v{t0}, v{vL}
            s_waitcnt lgkmcnt(0)
            v_lshl_or_b32 v{VTAB}, v{t0+1}, 21, v{VTAB}''']
        pre += ['s_mov_b64 vcc, 0', 's_waitcnt vmcnt(6)']
        self.emit(pre, lg)
        stamp(a, 4)
        self.emit(([] if self.LATE else self.bread(0)) + self.areads(0) + self.areads(1), lg)
        self.dispatch(0, check=False)
        self.helpers()
        for ph in range(2):
            for nK in (2, 3):
                a(self.pad(f'U{nK}{ph}', 'K2_HOP'))
                self.unit(nK, ph)
        hot = self.outline; self.outline = []
        a(self.pad('SW', 'K2_HOP'))
        for ph in range(2):
            a(f'K2_DSP{ph}:\ns_cmp_eq_u32 s{sEX}, 1\ns_cbranch_scc1 K2_U1{ph}\ns_cmp_eq_u32 s{sEX}, 4\ns_cbranch_scc1 K2_U4{ph}\ns_branch {"K2_TAIL" if ph else "K2_SWITCH"}')
        a('K2_SWITCH:')
        stamp(a, 5)
        self.emit(self.fin(3, 0, sPP if opt('dsp', 1) else None), LG(a))
        a(f's_cmp_eq_u32 s{sNV}, 0\ns_cbranch_scc1 K2_TAIL2\nv_lshlrev_b32 v{VT0}, 3, v{VL2}\nv_lshl_add_u32 v{VPA}, v{VL2}, 1, s{sNP}\nv_lshrrev_b32 v{VH16}, 6, v{VL2}\nv_mul_u32_u24 v{VH16}, 126, v{VH16}')
        EW = opt('ew', 1); WP = lambda p: WR + 16*p + 8
        self.wload(1, VT0, (3, 1, 4) if EW else range(5), WP)
        for q in range(4): a(f's_movk_i32 s{sOWN+q}, {q*256+128}')
        if EW:
            for x in self.wunp((0, 2), WP): a(x)
        if EW == 2: a(f's_sub_u32 s{sT}, s{sNK}, 2\ns_cmp_lt_u32 s{sT}, 2\ns_cbranch_scc1 K2_SW2\ns_mov_b64 vcc, 0')
        a('s_waitcnt vmcnt(0)')
        for x in self.wunp((3, 1, 4) if EW else range(5), WP): a(x)
        a('K2_SW2:')
        if not FUSE: stamp(a, 6)
        self.dispatch(1, check=False)
        isunit = lambda t: t.startswith(('K2_dyn', 'K2_dum', 'K2_nul', 'K2_spin', 'K2_rlx', 'K2_ew'))
        for t in hot:
            if isunit(t): a(t)
        a(self.pad('TL', 'K2_HOP'))
        self.tail()
        for t in hot:
            if not isunit(t): a(t)
        for ph in range(2):
            for nK in (1, 4): self.unit(nK, ph)
        for t in self.outline: a(t)
        a('K2_END:\ns_endpgm')
        return a.lines, 256

    def tail(self):
        a = self.a
        ws = f's[{sWS}:{sWS+3}]'
        vP0 = 222; vP1 = 223; vS = 226; vSP = 227; vRow = 228; vL16 = 229
        vQ0 = 232; vSt = 254; vS2 = 255; vS3 = 246; vQ0a = 247; vQ1a = 248; vRow2 = 249
        OP = 176
        pre = f"""v_lshlrev_b32 v{vL16}, 3, v{VL2}
            s_mul_i32 s{sT}, s{sW}, {20*1024}
            s_add_u32 s{sT}, s{sT}, {WS_STAB}
            s_mul_i32 s{sT+1}, s{sW}, {8192+32}"""
        PRE = opt('pre', 0)
        order = [4, 5, 6, 7, 14, 15, 16, 17, 18, 19, 0, 1, 2, 3, 8, 9, 10, 11, 12, 13] if PRE else list(range(20))
        sl = []; at = 0
        for f in order:
            mv = ''
            if f // 4 != at: mv = f's_add_u32 s{sT}, s{sT}, {(f//4 - at)*4096 & 0xffffffff}\n'; at = f // 4
            sl.append(mv + f'buffer_load_dwordx4 v[{WR+4*f}:{WR+4*f+3}], v{vL16}, {ws}, s{sT} offen offset:{(f%4)*1024} sc1')
        done = [f'v_mov_b32 v{VT0}, s{sPROGW}', f'v_mov_b32 v{VT1}, -1', f's_mov_b64 exec, 1\nds_write_b32 v{VT0}, v{VT1}\ns_mov_b64 exec, -1'] if PRE else []
        NE = opt('ne', 8)
        adr = [f'v_lshl_add_u32 v{vRow}, v{VL2}, 1, s{sT+1}', f'v_lshrrev_b32 v{vS}, 6, v{VL2}', f'v_mul_u32_u24 v{vS}, 126, v{vS}', f'v_sub_u32 v{vS}, v{vRow}, v{vS}']
        a('K2_TAIL2:\n' + pre)
        for x in sl[:NE] + adr: a(x)
        a('s_branch K2_TAIL3\nK2_TAIL:')
        stamp(a, 7)
        a(pre)
        f3 = self.fin(3, 1) + adr; w = []
        for i in range(NE): w += [sl[i]] + f3[2*i:2*i+2]
        self.emit(w + f3[2*NE:], LG(a))
        a('K2_TAIL3:')
        for x in done: a(x)
        a(f's_waitcnt vmcnt({NE})')
        dump = []
        for j in range(5):
            for k in range(5): dump.append(f'ds_write_b32 v{vRow}, v{P0+6*j+k} offset:{j*1536 + k*256}')
            dump.append(f'ds_write_b16 v{vS}, v{P0+6*j+5} offset:{j*1536 + 1280}')
        assert RECBASE % 256 == 0 and NSTR % 256 == 96
        calc = f"""
        v_bfe_u32 v48, v{VL2}, 1, 4             ; n & 15
        v_lshrrev_b32 v49, 5, v{VL2}            ; slab
        v_lshrrev_b32 v55, 3, v48
        v_lshlrev_b32 v52, 4, v49               ; slab*16
        v_lshl_add_u32 v54, v55, 2, v48
        v_and_b32 v54, 7, v54                   ; node of the last group in column n
        v_and_b32 v50, 7, v48
        v_mul_u32_u24 v50, {8192+32}, v50
        v_mul_u32_u24 v51, 1536, v55
        v_add_u32 v50, v50, v51                 ; slot of node n
        v_add_u32 v{vP0}, v50, v52
        v_mul_u32_u24 v51, {8192+32}, v54
        v_add_u32 v{vQ0}, v51, v52
        v_lshl_add_u32 v{vQ0a}, v55, 7, v{vQ0}
        v_mul_u32_u24 v53, 192, v48
        v_and_b32 v53, 0xc0, v53
        v_add_u32 v53, v53, v52
        v_mul_u32_u24 v51, {NSTR}, v48
        s_mov_b32 s{sT+2}, {RECBASE}
        v_add3_u32 v{vP1}, v51, v53, s{sT+2}
        v_mul_u32_u24 v51, {NSTR}, v54
        s_mov_b32 s{sT+2}, {RECBASE + 32*NSTR}
        v_add3_u32 v{vP1+2}, v51, v53, s{sT+2}
        v_lshl_add_u32 v{vQ1a}, v55, 7, v{vP1+2}
        s_lshl_b32 s{sT+2}, s{sW}, 5
        v_lshl_add_u32 v49, v49, 3, s{sT+2}
        s_mov_b32 s{sT+2}, {RECBASE}
        v_add3_u32 v{vS2}, v51, v49, s{sT+2}
        v_lshl_add_u32 v{vS3}, v55, 9, v{vS2}
        v_bfe_u32 v53, v48, 2, 1
        v_lshl_add_u32 v49, v53, 4, v49
        v_add_u32 v{vSt}, v50, v49
        s_and_b32 s{sT+6}, s{sLAST}, s{sFIRST}  ; plain single-round case
        """.strip().split('\n')
        rest = sl[NE:]; per = max(2, (len(dump) + len(rest) - 1) // max(1, len(rest)))
        while dump or rest:
            for x in dump[:per] + rest[:1] + calc[:2]: a(x)
            dump = dump[per:]; rest = rest[1:]; calc = calc[2:]
        for x in calc: a(x)
        if PRE: a(f'v_lshl_add_u32 v48, v{VL2}, 1, s{sPROG}\nds_read_b32 v49, v48\ns_mov_b32 s{sT+7}, {RECBASE + 32*NSTR}')
        a('s_waitcnt lgkmcnt(0)')
        late = f"""
        s_bfe_u32 s{sT+2}, s{sW}, 0x10002
        s_lshl_b32 s{sT+2}, s{sT+2}, 4
        s_add_u32 s{sT+1}, s{sT+1}, s{sT+2}
        v_add_u32 v{vRow}, s{sT+1}, v{vL16}
        s_mul_i32 s{sT+2}, s{sW}, {NSTR}
        s_add_u32 s{sT+2}, s{sT+2}, {RECBASE}
        v_add_u32 v{vRow2}, s{sT+2}, v{vL16}
        s_mov_b32 s{sT+5}, 0xbfb8aa3b           ; -log2(e)
        s_add_u32 s{sOWN}, s{sW}, s{sNB}
        s_lshl_b32 s{sOWN}, s{sOWN}, 10
        """.strip().split('\n') + [f's_add_u32 s{sOWN+j}, s{sOWN}, {j*8192}' for j in range(1, 5)]
        if PRE:
            a(f"""s_cmp_eq_u32 s{sT+6}, 0
            s_cbranch_scc1 K2_MULTI
            K2_PREW:
            v_cmp_gt_u32 vcc, s{sT+7}, v49
            s_setprio {opt('pp', 0)}
            s_and_b32 s{sT+8}, vcc_lo, 0xff
            s_cbranch_scc1 K2_PRES""")
            self.ool(f'K2_PRES:\ns_sub_u32 s{sSPIN}, s{sSPIN}, 1\ns_cbranch_scc1 K2_END\nds_read_b32 v49, v48\ns_waitcnt lgkmcnt(0)\ns_branch K2_PREW')
            stamp(a, 8)
        else:
            stamp(a, 8); a('s_barrier'); stamp(a, 9)
            a(f's_cmp_eq_u32 s{sT+6}, 0\ns_cbranch_scc1 K2_MULTI')
        part = {}
        for g in range(3):
            def ad(ph, row, hh, packed=False):
                o = self.SROW[row]*128 + hh*64
                if g < 2: return (vP1, g*16*NSTR + o) if ph else (vP0, g*3072 + o)
                return ((vQ1a if packed else vP1+2), o) if ph else ((vQ0a if packed else vQ0), 4*1536 + o)
            for ph in range(2):
                part[g, ph, 0] = [(16*g, ph*4 + rs*2 + hh) + ad(ph, rs, hh) for rs in range(2) for hh in range(2)]
                part[g, ph, 1] = [(16*g + 4 + 4*j, 8 + ph*6 + path*2 + hh) + ad(ph, 2 + 3*j + path, hh, j == 0) for path in range(3) for hh in range(2) for j in range(3 if g < 2 else 2)]
        seq = [(g, ph, o) for g in range(3) for o in range(2) for ph in range(2)]
        if PRE: seq = [(0,1,0), (1,1,0), (0,1,1), (1,1,1), (0,0,0), (1,0,0), (0,0,1), (1,0,1)] + seq[8:]
        GF = opt('gf', 1) and not PRE
        if GF: seq = [(g, ph, 0) for g in range(3) for ph in range(2)] + [(g, ph, 1) for g in range(3) for ph in range(2)]
        steps = [x for k in seq for x in part[k]]
        if GF and opt('il', 0): steps[:24] = [part[g, ph, 0][i] for ph in range(2) for i in range(4) for g in range(3)]
        for path in range(3): assert self.SROW[8 + path] == self.SROW[2 + path] + 1
        NB = 12; D = 10
        def epi(g, part=3):
            c = 16*g; o = OP + 8*(g & 1); s = []; tp = 204 + 4*g; o0 = 220 if g == 2 else o
            if part & 1:
                for r in range(4): s.append(f'v_mul_f32 v{tp+r}, s{sT+5}, v{c+r}')
                for r in range(4): s.append(f'v_exp_f32 v{tp+r}, v{tp+r}')
                for r in range(4): s.append(f'v_add_f32 v{tp+r}, 1.0, v{tp+r}')
                for r in range(4): s.append(f'v_rcp_f32 v{tp+r}, v{tp+r}')
                s += [f'v_cvt_pk_bf16_f32 v{o0}, v{c}, v{c+1}', f'v_cvt_pk_bf16_f32 v{o0+1}, v{c+2}, v{c+3}']
            if part & 2:
                for j in range(3 if g < 2 else 2):
                    for r in range(4): s.append(f'v_mul_f32 v{c+4+4*j+r}, v{c+4+4*j+r}, v{tp+r}')
                    s += [f'v_cvt_pk_bf16_f32 v{o+2+2*j}, v{c+4+4*j}, v{c+5+4*j}', f'v_cvt_pk_bf16_f32 v{o+3+2*j}, v{c+6+4*j}, v{c+7+4*j}']
            return s
        def stage(g, part=3):
            o = OP + 8*(g & 1)
            if g < 2: w = [(rt, vSt, g*3072) for rt in range(4)]
            else: w = [(0, vS2, 0), (1, vS3, 0), (2, vS2, 0)]
            src = lambda rt: 220 if (g, rt) == (2, 0) else o + 2*rt
            return [(f'ds_write_b64 v{r}, v[{src(rt)}:{src(rt)+1}] offset:{b + rt*256}', [(f'w{g}', False)]) for rt, r, b in w if part & (2 if rt else 1)]
        def rowread(g):
            if g == 2: return [(f'ds_read_b128 v[200:203], v{vRow2}', [('r2', False)])]
            return [(f'ds_read_b128 v[{192+4*(j&1)}:{195+4*(j&1)}], v{vRow} offset:{j*1536}', [(f'r{g}', False)]) for j in (2*g, 2*g+1)]
        def rowstore(g):
            s = [('wait', f'r{g}')]
            for j in ((2*g, 2*g+1) if g < 2 else (4,)):
                b = 192 + 4*(j & 1) if g < 2 else 200
                s += [f'buffer_store_dwordx4 v[{b}:{b+3}], v{vL16}, s[{sOUT}:{sOUT+3}], s{sOWN+j} offen {mod("outst","sc1")}']
            return s
        def gemm(lg, extra):
            def rd(k):
                c, f, r, o = steps[k]
                b = 48 + 4*(k % NB)
                self.emit([(f'ds_read_b128 v[{b}:{b+3}], v{r} offset:{o}', [(f'k{k}', False)])], lg)
            D0 = opt('d0', D); nxt = D0
            for k in range(D0): rd(k)
            seen = [-1]; started = set()
            for k in range(len(steps)):
                c, f, r, o = steps[k]
                for _ in range(2):
                    if nxt <= k + D and nxt < len(steps): rd(nxt); nxt += 1
                vm = None
                if order.index(f) > seen[0]: seen[0] = order.index(f); vm = 19 - seen[0]
                kk = min(k + 1, len(steps) - 1) if (opt('w2', 1) and k % 2 == 0) else k
                self.emit([('wait', f'k{kk}', vm)], lg)
                b = 48 + 4*(k % NB)
                cin = f'v[{c}:{c+3}]' if c in started else '0'; started.add(c)
                a(f'v_mfma_f32_16x16x32_bf16 v[{c}:{c+3}], v[{WR+4*f}:{WR+4*f+3}], v[{b}:{b+3}], {cin}')
                self.emit(extra.get(k, []), lg)
        lg = LG(a); extra = {}
        def spread(items, k0, k1):
            for i, x in enumerate(items): extra.setdefault(k0 + i*(k1 - k0 + 1)//len(items), []).append(x)
        spread(late, 2, 8)
        if self.padx('T2', 'K2_HOP'): extra.setdefault(opt('t2k', 41), []).append(self.padx('T2', 'K2_HOP'))
        b0 = opt('b0', 72 if PRE else 62 if GF else 46); e0 = opt('e0', 84 if PRE else 80 if GF else 64); b1 = opt('b1', 98 if GF else 90); r0 = opt('r0', 104 if GF else 98); e1 = opt('e1', 113 if GF else 108)
        bA = min(opt('bA', 33), 44 - D - 1)
        if PRE:
            extra.setdefault(bA, []).extend(([f's_memtime s[{76+2*9}:{77+2*9}]'] if 0 else []) + ['s_barrier'] + ([f'{"s_memtime" if opt("cyc", False) else "s_memrealtime"} s[94:95]'] if PROF else []))
            spread(epi(0, 1), 50, opt('g0', 60))
            spread(epi(1, 1), opt('g0', 60) + 1, opt('g1', 71))
            extra.setdefault(b0, []).append('s_barrier')
            spread(epi(0, 2), 72, e0)
            extra.setdefault(e0 + 1, []).extend(stage(0))
        elif GF:
            il = opt('il', 0); g0 = opt('g0', 36 if il else 26); g1 = opt('g1', 47 if il else 42)
            spread(epi(0, 1), 25 if il else 11, g0); spread(epi(1, 1), g0 + 1, g1); spread(epi(2, 1), g1 + 1, opt('g2', 58))
            extra.setdefault(b0, []).append('s_barrier')
            spread(epi(0, 2), 60 + 3, e0)
            extra.setdefault(e0 + 1, []).extend(stage(0) + stage(2, 1))
        else:
            spread(epi(0, 1), 12, 40)
            if not opt('nob0', 0): extra.setdefault(b0, []).append('s_barrier')
            spread(epi(0, 2), 44 + 3, e0)
            extra.setdefault(e0 + 1, []).extend(stage(0))
            spread(epi(1, 1), e0 + 2, 86)
        extra.setdefault(b1, []).extend([('wait', 'w2' if GF else 'w0')] + ([] if opt('nob1', 0) else ['s_barrier']) + rowread(0))
        spread(epi(1, 2), (96 if GF else 88) + 3, e1)
        extra.setdefault(r0, []).extend(rowstore(0))
        extra.setdefault(e1 + 1, []).extend(stage(1))
        if not GF:
            spread(epi(2, 1), max(e1 - 8, 100), 117)
            extra.setdefault(118, []).extend(stage(2, 1))
        if opt('gp', 1):
            for k0, k1 in ((bA if PRE else -1, b0), (b0, b1), (b1, len(steps))):
                fr = [float(x) for x in opt('gpf', '0.3_0.6_0.87').split('_')]
                if k0 >= 0: extra.setdefault(k0, []).append('s_setprio 3')
                for i, f in enumerate(fr): extra.setdefault(k0 + int((k1 - k0)*f), []).append(f's_setprio {2-i}')
            if not PRE: a('s_setprio 3')
        if PROFT:
            for i, k in enumerate((0, 23, 59, 81, 97, 113) if GF else (0, 8, 43, 66, 87, 104)): extra.setdefault(k, []).append(f'{"s_memtime" if opt("cyc", False) else "s_memrealtime"} s[{78+2*i}:{79+2*i}]')
        if opt('noepi', 0): extra = {k: [x for x in v if not (isinstance(x, str) and x.startswith(('v_cvt', 'v_exp', 'v_rcp', 'v_mul_f32', 'v_add_f32')[:opt('noepi', 0)]))] for k, v in extra.items()}
        gemm(lg, extra)
        stamp(a, 10)
        self.emit(epi(2, 2) + stage(2, 2) + [('wait', 'w2'), 's_barrier'] + rowread(1) + rowread(2) + rowstore(1), lg)
        a(f'K2_LASTROW:\ns_add_u32 s{sT+1}, s{sW}, 32\ns_cmp_ge_u32 s{sT+1}, s{sNC}\ns_cbranch_scc1 K2_FIN\ns_waitcnt lgkmcnt(0)')
        self.emit(rowstore(2), LG(a))
        a('K2_FIN:')
        if PROF:
            stamp(a, 11); a('s_waitcnt vmcnt(0)'); stamp(a, 12); stamp_out(a, 13, 1, sW, sB, sWS)
        a('s_endpgm')
        a('K2_MULTI:' + ('\ns_barrier' if PRE else ''))
        lg = LG(a)
        gemm(lg, {})
        a(f"""
        s_lshl_b32 s{sT+2}, s{sB}, 9
        s_lshl_b32 s{sT+3}, s{sW}, 6
        s_add_u32 s{sT+2}, s{sT+2}, s{sT+3}
        s_mul_i32 s{sT+2}, s{sT+2}, 192
        s_add_u32 s{sT+2}, s{sT+2}, {WS_ACC}
        v_mul_u32_u24 v{vSP}, 96, v{VL2}        ; lane*192
        s_cmp_lg_u32 s{sFIRST}, 0
        s_cbranch_scc1 K2_NOACC
        """)
        for i in range(11): a(f'buffer_load_dwordx4 v[{48+4*i}:{51+4*i}], v{vSP}, {ws}, s{sT+2} offen offset:{16*i}')
        a('s_waitcnt vmcnt(0)')
        for i in range(44): a(f'v_add_f32 v{i}, v{i}, v{48+i}')
        a(f'K2_NOACC:\ns_barrier\ns_cmp_eq_u32 s{sLAST}, 0\ns_cbranch_scc1 K2_SPILL')
        self.emit(late, lg)
        for g in range(2):
            self.emit(epi(g) + stage(g) + [('wait', f'w{g}'), 's_barrier'] + rowread(g) + rowstore(g), lg)
        self.emit(epi(2) + stage(2) + [('wait', 'w2'), 's_barrier'] + rowread(2), lg)
        a('s_branch K2_LASTROW\nK2_SPILL:')
        for i in range(11): a(f'buffer_store_dwordx4 v[{4*i}:{4*i+3}], v{vSP}, {ws}, s{sT+2} offen offset:{16*i}')
        a(f"""
        s_mov_b32 s{sFIRST}, 0
        s_waitcnt vmcnt(0)
        s_cmp_lt_u32 s{sRND}, s{sR}
        s_cbranch_scc1 K2_LOAD
        s_add_u32 s{sJ0}, s{sJ0}, {2*U}
        s_branch K2_WINDOW
        """)

HEADER = '''; Kernarg layout for this problem (96 bytes, ptrs only, base s[0:1]):
'''
def kd(name, vgpr):
    return f'''.amdhsa_kernel {name}
  .amdhsa_next_free_vgpr {vgpr}
  .amdhsa_next_free_sgpr {102}
  .amdhsa_accum_offset {(vgpr+3)//4*4}
  .amdhsa_group_segment_fixed_size 0
  .amdhsa_kernarg_size 96
  .amdhsa_user_sgpr_count 2
  .amdhsa_user_sgpr_kernarg_segment_ptr 1
  .amdhsa_system_sgpr_workgroup_id_x 1
  .amdhsa_float_denorm_mode_32 3
.end_amdhsa_kernel
'''
def main():
    ks = []
    l2, v2 = K2().gen(); ks.append((NAME + '_kernel', fix_hazards(l2), v2))
    s = HEADER
    s += f'; @launch grid=(256,1,1) block=(512,1,1) lds={K2_LDS}\n'
    s += '.amdgcn_target "amdgcn-amd-amdhsa--gfx950"\n.text\n'
    for name, l, v in ks:
        s += f'.globl {name}\n.p2align 8\n.type {name},@function\n{name}:\n'
        s += '\n'.join((x if x.endswith(':') else '    ' + x) for x in l) + '\n'
    s += '.section .rodata,"a"\n' + ''.join('.p2align 6\n' + kd(name, v) for name, l, v in ks)
    out = sys.argv[1] if len(sys.argv) > 1 else f'/code/{NAME}.s'
    open(out, 'w').write(s)
    print('wrote', out, len(s), 'bytes')
main()
```

```python
import sys, os
sys.path.insert(0, os.path.dirname(os.path.abspath(__file__)))
from asmlib import Asm, fix_hazards

NAME = 'standalone__tensor_product_equiv_equiformer__graph'
N = 10000; E = 320000
NCH = 250; CH = E // NCH
CSTR = CH * 16 + 128
TSTR = 1024 + 128
WS_REC = 0
WS_TBL = 0x0600000
WS_STAB = 0x06A0000
WS_WTAB = 0x06C8000
WS_FLG = 0x06D8000
WS_EPO = WS_FLG + 2048
WS_RANK = 0x0700000
WS_PROF = 0x0900000
WS_ACC = 0x0A00000
WS_SIZE = 0x2400000
assert NCH * CSTR <= WS_TBL and WS_TBL + NCH * TSTR <= WS_STAB and WS_ACC + 256*512*192 <= WS_SIZE
BMUL = 429497
for d in range(N): assert ((d * BMUL) & 0xffffffff) >> 24 == (d * 16) // 625

OPT = dict(a.split('=') for a in sys.argv[2:]) if len(sys.argv) > 2 else {}
def opt(k, d): return type(d)(OPT.get(k, d)) if not isinstance(d, bool) else bool(int(OPT.get(k, d)))
def mod(k, d): return opt(k, d).replace('_', ' ')

PROF = opt('prof', False)
FUSE = True
SEG = opt('seg', False)
def seg(i): return [f's_memtime s[{76+2*i}:{77+2*i}]'] if SEG else []
PROFS = opt('profs', False)
def sstamp(a, i):
    if PROFS: a(f's_memrealtime s[{76+2*i}:{77+2*i}]')
PROFT = opt('proft', False)

PROFP = opt('profp', False)
def pstamp(i): return f's_memrealtime s[{76+2*i}:{77+2*i}]' if PROFP else ''
def stamp(a, i, t=False):
    if PROFP and i in (5, 7, 8, 9, 10, 11): return
    if opt('clk', 0):
        if i in (7, 8, 10): return
        if i in (4, 5, 9): a(f's_memtime s[{76+2*{4:7,5:8,9:10}[i]}:{77+2*{4:7,5:8,9:10}[i]}]')
    if PROFT and 1 <= i <= 6 and not t: return
    if PROFS and i in (1, 3, 5, 11, 12): return
    if PROF and not SEG: a(f'{"s_memtime" if opt("cyc", False) else "s_memrealtime"} s[{76+2*i}:{77+2*i}]')
def stamp_out(a, n, kern, swave, swg, srd_s):
    if not PROF: return
    if opt('dbgout', -1) >= 0:
        l = f'DBG_{kern}'
        a(f's_cmp_lg_u32 s{swg}, {opt("dbgout", -1)}\ns_cbranch_scc1 {l}\ns_cmp_lg_u32 s{swave}, 0\ns_cbranch_scc1 {l}')
        a(f's_load_dwordx2 s[58:59], s[0:1], 80\ns_waitcnt lgkmcnt(0)\ns_add_u32 s58, s58, {512*(1-kern)*opt("dbgk1", 0)}\ns_addc_u32 s59, s59, 0')
        srd(a, 60, 58, 256)
        a('s_mov_b64 exec, 1\nv_mov_b32 v1, 0')
        for i, o in ([(0, 0), (5, 14), (2, 15)] if kern == 0 else [(i, 1+i) for i in range(13)]):
            a(f'v_mov_b32 v2, s{76+2*i}\nbuffer_store_dword v2, v1, s[60:63], 0 offen offset:{4*o}')
        a(f's_mov_b64 exec, -1\n{l}:')
        return
    a('s_waitcnt lgkmcnt(0)')
    a(f's_lshl_b32 s67, s{swg}, 4\ns_add_u32 s67, s67, s{swave}\ns_lshl_b32 s67, s67, 6\ns_add_u32 s67, s67, {WS_PROF + kern*256*16*64}')
    a('s_mov_b64 exec, 1\nv_mov_b32 v1, 0')
    for i in range(n):
        a(f'v_mov_b32 v2, s{76+2*i if not SEG else 96+min(i,5)}\nbuffer_store_dword v2, v1, s[{srd_s}:{srd_s+3}], s67 offen offset:{4*i}')
    a('s_mov_b64 exec, -1')

def srd(a, s, ptr, nbytes):
    a(f's_mov_b32 s{s}, s{ptr}\ns_and_b32 s{s+1}, s{ptr+1}, 0xffff\ns_mov_b32 s{s+2}, {nbytes}\ns_mov_b32 s{s+3}, 0x20000')

def scan(a, v, op='v_add_u32'):
    for sh in (1, 2, 4, 8):
        a(f'{op}_dpp v{v}, v{v}, v{v} row_shr:{sh} row_mask:0xf bank_mask:0xf bound_ctrl:0')
    a(f'{op}_dpp v{v}, v{v}, v{v} row_bcast:15 row_mask:0xa bank_mask:0xf')
    a(f'{op}_dpp v{v}, v{v}, v{v} row_bcast:31 row_mask:0xc bank_mask:0xf')

K1_T = CH // 4
K1_LDS = 2048 + CH * 16
def weight_loads(a):
    a(f'''
    v_and_b32 v1, 15, v8
    v_lshrrev_b32 v3, 4, v8
    s_cmp_ge_u32 s2, 160
    s_cbranch_scc1 K1_WT
    s_cmp_ge_u32 s2, 64
    s_cbranch_scc1 K1_S1
    s_lshr_b32 s24, s2, 3
    s_and_b32 s25, s2, 7
    s_lshr_b32 s26, s25, 2
    s_bfe_u32 s27, s25, 0x10001
    s_and_b32 s28, s25, 1
    ''')
    srd(a, 60, 92, 256*128*2)
    a(f'''
    s_branch K1_SC
    K1_S1:
    ; S1: g2 = g-64; w = g2/12, f2 = g2%12 : ph = f2/6, path = (f2%6)>>1, hh = f2&1
    s_sub_u32 s29, s2, 64
    s_mul_i32 s24, s29, 43
    s_lshr_b32 s24, s24, 9
    s_mul_i32 s25, s24, 12
    s_sub_u32 s25, s29, s25
    s_cmp_ge_u32 s25, 6
    s_cselect_b32 s26, 1, 0
    s_mul_i32 s27, s26, 6
    s_sub_u32 s27, s25, s27
    s_lshr_b32 s27, s27, 1
    s_and_b32 s28, s25, 1
    s_add_u32 s25, s25, 8
    ''')
    for g2 in range(96): assert (g2*43) >> 9 == g2 // 12
    srd(a, 60, 94, 384*128*2)
    a(f'''
    K1_SC:
    s_lshl_b32 s27, s27, 7
    s_lshl_b32 s26, s26, 6
    s_lshl_b32 s28, s28, 4
    s_add_u32 s27, s27, s26
    s_add_u32 s27, s27, s28
    s_lshl_b32 s27, s27, 8
    s_lshl_b32 s26, s24, 5
    s_add_u32 s27, s27, s26
    s_add_u32 s29, s27, 8192
    v_lshlrev_b32 v3, 10, v3
    v_lshl_add_u32 v3, v1, 1, v3
    ''')
    for e in range(8): a(f'buffer_load_ushort v{64+e}, v3, s[60:63], s{29 if e & 1 else 27} offen offset:{(e >> 1)*256}')
    a(f'''
    s_mul_i32 s24, s24, 20
    s_add_u32 s24, s24, s25
    s_lshl_b32 s24, s24, 10
    s_add_u32 s24, s24, {WS_STAB}
    s_branch K1_GO
    K1_WT:
    s_sub_u32 s24, s2, 160
    s_lshr_b32 s27, s24, 1
    s_and_b32 s28, s24, 1
    s_lshl_b32 s27, s27, 8
    s_lshl_b32 s28, s28, 6
    s_add_u32 s27, s27, s28
    s_add_u32 s29, s27, {8*1280}
    ''')
    srd(a, 60, 90, 16*640*2)
    a(f'''
    v_and_b32 v1, 31, v8
    v_lshrrev_b32 v3, 5, v8
    v_mul_u32_u24 v3, {4*1280}, v3
    v_lshl_add_u32 v3, v1, 1, v3
    ''')
    for j in range(8): a(f'buffer_load_ushort v{64+j}, v3, s[60:63], s{29 if j >> 2 else 27} offen offset:{(j & 3)*1280}')
    a(f'''
    s_lshl_b32 s24, s24, 10
    s_add_u32 s24, s24, {WS_WTAB}
    ''')

def sort_rank(a, pad):
    for j in range(4):
        a(f'v_mul_u32_u24 v{28+j}, s58, v{12+j}\nv_lshrrev_b32 v{32+j}, 27, v{28+j}\nv_bfe_u32 v{36+j}, v{28+j}, 24, 3\nv_lshlrev_b32 v{32+j}, 2, v{32+j}')
        a(f'v_lshl_or_b32 v{32+j}, v{36+j}, 7, v{32+j}\nds_add_rtn_u32 v{36+j}, v{32+j}, v7')
    for j in range(4):
        a(f'v_lshrrev_b32 v{28+j}, 24, v{28+j}\nv_mad_u32_u24 v{28+j}, v{28+j}, s59, 15\nv_lshrrev_b32 v{28+j}, 4, v{28+j}\nv_sub_u32 v{28+j}, v{12+j}, v{28+j}')
        a(f'v_add_u32 v{12+j}, {32*j}, v3\nv_lshl_or_b32 v{28+j}, v{28+j}, 26, v{12+j}')
    a(f'''
    {pad}
    v_mov_b32 v59, {NONCE}
    s_mul_i32 s65, s2, {TSTR}
    s_add_u32 s65, s65, {WS_TBL}
    s_mul_i32 s64, s2, {CSTR}
    s_waitcnt lgkmcnt(0)
    s_barrier
    ''')
    sstamp(a, 11)
    a(f'''
    ds_read_b128 v[40:43], v9
    ds_read_b32 v59, v59
    s_waitcnt lgkmcnt(1)
    v_add_u32 v45, v40, v41
    v_add_u32 v46, v45, v42
    v_add_u32 v47, v46, v43
    v_mov_b32 v58, v47
    ''')
    scan(a, 58)
    a(f'''
    v_sub_u32 v48, v58, v47                 ; exclusive
    v_add_u32 v49, v48, v40
    v_add_u32 v50, v48, v45
    v_add_u32 v51, v48, v46
    ds_write_b128 v9, v[48:51] offset:1024
    s_waitcnt vmcnt(0) lgkmcnt(1)
    s_cmp_lg_u32 s{sW}, 4
    s_cbranch_scc1 KS_NOPUB
    v_lshl_or_b32 v56, v49, 11, v48
    v_lshl_or_b32 v57, v51, 11, v50
    v_lshl_or_b32 v56, v59, 22, v56
    v_lshl_or_b32 v57, v59, 22, v57
    buffer_store_dwordx4 v[56:59], v9, s[{sWS}:{sWS+3}], s65 offen {mod('tabst', 'sc1')}
    KS_NOPUB:
''')
    sstamp(a, 12)

def sort_emit(a, st):
    a('v_and_b32 v60, 0xffff, v59\nv_and_b32 v61, 0xffff0000, v59\ns_mov_b32 s58, 0xffff0000')
    for j in range(4):
        b = 20 + 3*(j >> 1)
        if j & 1: a(f'v_alignbit_b32 v{40+4*j}, v{b+2}, v{b+1}, 16\nv_and_or_b32 v{41+4*j}, v{b+2}, s58, v60')
        else: a(f'v_mov_b32 v{40+4*j}, v{b}\nv_lshl_or_b32 v{41+4*j}, v{b+1}, 16, v60')
        a(f'v_or_b32 v{42+4*j}, v61, v{16+j}\nv_mov_b32 v{43+4*j}, v{28+j}')
    a('s_waitcnt lgkmcnt(0)')
    for j in range(4):
        a(f'v_add_lshl_u32 v{32+j}, v{32+j}, v{36+j}, 4\nds_write_b128 v{32+j}, v[{40+4*j}:{43+4*j}] offset:2048')
    a(f's_waitcnt lgkmcnt(0)\ns_barrier')
    for i in range(4): a(f'ds_read_b128 v[{12+4*i}:{15+4*i}], v5 offset:{2048 + i*K1_T*16}')
    for i in range(4):
        a(f's_waitcnt lgkmcnt({3-i})')
        a(f'buffer_store_dwordx4 v[{12+4*i}:{15+4*i}], v5, s[8:11], s64 offen {st}')
        if i < 3: a(f's_add_u32 s64, s64, {K1_T*16}')

NSTR = 2080
OY = 0; OS = 384; OA = 512
E4 = 48*32 - 4
RECBASE = 65536
NPOOL = 8
W1L = RECBASE + 40 * NSTR + NPOOL*512
MISC = W1L + 10240
HIST = MISC; PROG = MISC + 192; CNT = MISC + 224; FLAG = MISC + 228; NULLSRC = MISC + 256; SCR = MISC + 288; NONCE = MISC + 304
NULLBASE = NULLSRC - OS
K2_LDS = 163840
assert NONCE + 4 <= K2_LDS
U = 10
ACC = 0; AR = 64; WR = 96; BR = 176; P0 = 192; G = 222
VEO = 230; VH16 = 231; T2 = 232; T3 = 233; PW = 234
VB0 = 246; VB1 = 247; VLG = 248; VAO = 249; VYO = 250; VSO = 251; VL2 = 252; VTAB = 253; VT0 = 254; VT1 = 255; VPA = VEO
sX = 4; sWS = 8; sOUT = 12; sEA = 16
sW = 20; sNB = 21; sNC = 22; sJ0 = 23; sRND = 24; sR = 25; sLIM = 26; sMORE = 27; sFIRST = 28
sCB = 29; sC4 = 30; sCP = 31; sNBs = 48; sNK = 33; sNPH = 34; sNP = 35; sNV = 36
sRING = 37; sJ = 38; s1024 = 39; sOWN = 40; sNX = 44; sSO = 48; sPROGW = 52; sPROG = 53; sB = 54; sLAST = 55
sEX = 56
sT = 58
sM0 = 68
sX2 = 72
sPP = 32
sN4 = 3
sTAG = 2
sSPIN = 27

TILES = {0: [(0,0), (1,0), (0,1), (1,1)], 1: [(0,0), (0,1), (1,1), (1,0)], 2: [(0,0), (1,0), (1,1), (0,1)], 3: [(0,0), (0,1), (1,0), (1,1)]}[opt('tord', 0)]
def tile(t, u): return ACC + 16 * TILES.index((t, u))
def Wreg(p, u): return WR + p*16 + u*8

def weave(x, y):
    o = []
    for i in range(max(len(x), len(y))):
        o += x[i:i+1] + y[i:i+1]
    return o

class LG:
    def __init__(self, a, q=()): self.a = a; self.q = list(q)
    def issue(self, tag, optional=False): self.q.append((tag, optional))
    def waitline(self, tag):
        idx = [i for i, (t, o) in enumerate(self.q) if t == tag]
        if not idx: return None
        y = sum(1 for (t, o) in self.q[idx[-1]+1:] if not o)
        self.q = self.q[idx[-1]+1:]
        return f's_waitcnt lgkmcnt({min(y, 15)})'

class K2:
    def __init__(self):
        self.a = Asm()
        self.uid = 0
        self.outline = []
    def lab(self, s):
        self.uid += 1
        return f'K2_{s}_{self.uid}'

    def dma(self, slot, greg, soff):
        return [f's_mov_b32 m0, s{sM0+slot}',
                f'buffer_load_dwordx4 v{greg}, s[{sX}:{sX+3}], s{soff} offen {mod("xld", "sc1")} lds',
                f'buffer_load_dwordx4 v{greg+1}, s[{sX2}:{sX2+3}], s{soff} offen offset:1024 {mod("xld", "sc1")} lds']
    def bread(self, item, half=False):
        return [(f'ds_read_b64_tr_b16 v[{BR + (item & 1)*8 + u*4 + r*2}:{BR + (item & 1)*8 + u*4 + r*2 + 1}], v{VB0+u} offset:{(item & 3)*2048 + r*1024}', [('B', False)])
                for u in range(2) for r in range(1 if half else 2)]
    def sread(self, t):
        return [f'v_add_u32 v{G+2*t}, s{sSO+t}, v{VSO}', (f'ds_read_b32 v{G+2*t}, v{G+2*t}', [(f'S{t}', False)])]
    def gmad(self, t):
        return [('wait', f'S{t}'),
                f'v_mad_u32_u16 v{G+2*t+1}, v{G+2*t}, s{s1024}, v{VLG} op_sel:[1,0,0,0]',
                f'v_mad_u32_u16 v{G+2*t}, v{G+2*t}, s{s1024}, v{VLG}']
    def ool(self, text): self.outline.append(text)
    def atomic(self):
        return [f'v_mov_b32 v{VT0}, {CNT}', f'v_mov_b32 v{VT1}, 1', f'v_lshl_add_u32 v{T3}, v{VL2}, 1, s{sPROG}',
                (f's_mov_b64 exec, 1\nds_add_rtn_u32 v{T2}, v{VT0}, v{VT1}\ns_mov_b64 exec, -1', [('C', False)]),
                (f'ds_read_b32 v{T3}, v{T3}', [('C', False)])]
    def claimed(self):
        nul = self.lab('nul'); spin = self.lab('spin'); chk = self.lab('chk'); back = self.lab('back')
        self.ool(f'{nul}:\ns_mov_b32 s{sT}, 63\ns_mov_b32 s{sNV}, 0\ns_branch {back}')
        self.ool(f'{spin}:\ns_sub_u32 s{sSPIN}, s{sSPIN}, 1\ns_cbranch_scc1 K2_END\nv_lshl_add_u32 v{T3}, v{VL2}, 1, s{sPROG}\nds_read_b32 v{T3}, v{T3}\ns_waitcnt lgkmcnt(0)\ns_branch {chk}')
        return [f'v_readfirstlane_b32 s{sT}, v{T2}',
                f"""s_cmp_lt_u32 s{sT}, s{sNC}
                s_cbranch_scc0 {nul}
                s_and_b32 s{sT+1}, s{sT}, 7
                s_lshr_b32 s{sT+2}, s{sT}, 3
                {chk}:
                v_readlane_b32 s{sT+3}, v{T3}, s{sT+1}
                s_nop 0
                s_cmp_gt_u32 s{sT+3}, s{sT+2}
                s_cbranch_scc0 {spin}
                {back}:"""]
    def claim0(self):
        dyn = self.lab('dyn'); back = self.lab('back')
        o = [x if isinstance(x, str) else x[0] for x in self.atomic()] + ['s_waitcnt lgkmcnt(0)'] + self.claimed()
        self.ool(f'{dyn}:\n' + '\n'.join(o) + f'\ns_mov_b32 s{sNPH}, 1\ns_branch {back}')
        return [f's_add_u32 s{sJ}, s{sJ}, 1', f'v_mov_b32 v{VT0}, s{sPROGW}', f'v_mov_b32 v{VT1}, s{sJ}',
                f's_lshl_b32 s{sT}, s{sJ}, 3', f's_add_u32 s{sT}, s{sT}, s{sW}',
                (f's_mov_b64 exec, 1\nds_write_b32 v{VT0}, v{VT1}\ns_mov_b64 exec, -1', [('W', False)]),
                f's_cmp_lt_u32 s{sT}, s{sNC}\ns_cbranch_scc0 {dyn}\n{back}:']
    def pooladdr(self, d, word):
        return f"""s_lshr_b32 s{d}, s{word}, 27
            s_mul_i32 s{sT+8}, s{sNC}, {NSTR}
            s_lshl_b32 s{d}, s{d}, 9
            s_add_u32 s{d}, s{d}, s{sT+8}
            s_add_u32 s{d}, s{d}, {RECBASE}"""
    def next_info(self, ph):
        rare = self.lab('rare'); back = self.lab('back'); four = self.lab('four')
        self.ool(f"""{rare}:
            s_cmp_eq_u32 s{sNK}, 4
            s_cbranch_scc1 {four}
            s_mov_b32 s{sSO+1}, s{sNBs}
            s_mov_b32 s{sSO+3}, s{sNBs}
            s_add_u32 s{sNX+1}, s{sNX}, 256
            s_add_u32 s{sNX+2}, s{sNX}, 512
            s_add_u32 s{sNX+3}, s{sNX}, 768
            s_branch {back}
            {four}:
            s_add_u32 s{sSO+2}, s{sNBs}, 64
            s_add_u32 s{sSO+3}, s{sNBs}, 96
            s_mov_b32 s{sNX+2}, s{sNX}
            s_mov_b32 s{sNX+3}, s{sNX}
            s_branch {back}""")
        o = [f'v_readlane_b32 s{sN4}, v{VTAB}, s{sT}', f's_lshl_b32 s{sNX}, s{sNPH}, 7',
             f's_and_b32 s{sNBs}, s{sN4}, 0x3ffff', f's_bfe_u32 s{sNK}, s{sN4}, 0x30013']
        if ph == 1: o += [f's_mov_b32 s{sNP}, s{sNBs}']
        else: o += [f's_mul_i32 s{sNP}, s{sJ}, 6', f's_cmp_eq_u32 s{sNPH}, 0\ns_cselect_b32 s{sNP}, s{sNP}, s{sNBs}']
        o += [f's_mov_b32 s{sNX+1}, s{sNX}', f's_add_u32 s{sNX+3}, s{sNX}, 256', f's_add_u32 s{sSO+1}, s{sNBs}, 32', f's_add_u32 s{sT+2}, s{sNBs}, 64',
              f's_cmp_eq_u32 s{sNK}, 3\ns_cselect_b32 s{sNX+2}, s{sNX}, s{sNX+3}\ns_cselect_b32 s{sSO+2}, s{sT+2}, s{sNBs}\ns_cselect_b32 s{sSO+3}, s{sNBs}, s{sSO+1}',
              f's_sub_u32 s{sT+2}, s{sNK}, 2\ns_cmp_lt_u32 s{sT+2}, 2\ns_cbranch_scc0 {rare}\n{back}:']
        return o
    def eread(self):
        return [f'v_add_u32 v{T3}, s{sNBs}, v{VEO}',
                (f'ds_read_b32 v{T2}, v{T3}', [('E', False)]), (f'ds_read_b32 v{T3}, v{T3} offset:1024', [('E', False)])]
    NEXTRA = 2
    def adma(self):
        dum = self.lab('dum'); four = self.lab('a4'); back = self.lab('back'); b4 = self.lab('b4')
        ea = f's[{sEA}:{sEA+3}]'; m = mod('eald', '')
        self.ool(f'{dum}:\nv_mov_b32 v{T2}, -1\ns_mov_b32 m0, {SCR}\ns_mov_b64 exec, 1\n' + f'buffer_load_dwordx4 v{T2}, {ea}, 0 offen lds\n'*2 + f's_mov_b64 exec, -1\ns_branch {back}')
        self.ool(f"""{four}:
            v_add_u32 v{VT0}, s{sNBs}, v{VEO}
            ds_read_b32 v{VT0}, v{VT0} offset:4
            {self.pooladdr(sT+7, sN4)}
            s_mov_b32 m0, s{sT+7}
            s_mov_b32 exec_hi, 0
            s_waitcnt lgkmcnt(0)
            v_or_b32 v{VT0}, v{VT0}, v{VH16}
            buffer_load_dwordx4 v{VT0}, {ea}, 0 offen {m} lds
            s_mov_b32 exec_hi, -1
            s_branch {b4}""")
        return [('wait', 'E'), f'v_or_b32 v{T2}, v{T2}, v{VH16}', f'v_or_b32 v{T3}, v{T3}, v{VH16}', f"""
        s_cmp_lg_u32 s{sNPH}, 0
        s_cbranch_scc1 {dum}
        s_cmp_eq_u32 s{sNK}, 4
        s_cbranch_scc1 {four}
        {b4}:
        s_add_u32 m0, s{sNBs}, {OA}
        s_add_u32 s{sT+7}, s{sNBs}, {OA+1024}
        buffer_load_dwordx4 v{T2}, {ea}, 0 offen {m} lds
        s_mov_b32 m0, s{sT+7}
        s_mov_b32 exec_hi, 0
        buffer_load_dwordx4 v{T3}, {ea}, 0 offen {m} lds
        s_mov_b32 exec_hi, -1
        {back}:"""]
    def areads(self, s, half=False):
        va, vy, oa, oy, o = VAO, VYO, s*512, s*32, []
        if s == 3:
            va, oa = ACC + 56, 0
            o = [self.pooladdr(sT+7, sC4) + f'\ns_sub_u32 s{sT+7}, s{sT+7}, s{sCB}\ns_sub_u32 s{sT+7}, s{sT+7}, {OA}\nv_add_u32 v{va}, s{sT+7}, v{VAO}']
        o += [(f'ds_read_b64_tr_b16 v[{ACC+4*s+2*r}:{ACC+4*s+2*r+1}], v{va} offset:{oa + 32*r}', [(f'a{s}', False)]) for r in range(1 if half else 2)]
        return o + [(f'ds_read_u16_d16_hi v{ACC+16+s}, v{vy} offset:{oy}', [(f'y{s}', False)])]
    def abuild(self, nK, half=False):
        o = []
        for s in range(2, nK): o += self.areads(s, half and s == nK - 1)
        for s in range(nK):
            b = ACC + 4*s; un = ACC + 20 + (s & 1)*8; m = 2 if (half and s == nK - 1) else 4
            o.append(('wait', f'y{s}' if (s or nK == 1 or not opt('ymw', 1)) else 'y1'))
            for i in range(m): o += [f'v_lshlrev_b32 v{un+2*i}, 16, v{b+i}', f'v_and_b32 v{un+1+2*i}, 0xffff0000, v{b+i}']
            for t in (1, 0):
                d = ACC + 36 if t else un
                for e in range(2*m): o.append(f'v_mul_f32_dpp v{d+e}, v{ACC+16+s}, v{un+e} row_newbcast:{8*t+e} row_mask:{"0xf" if t else "0xa"} bank_mask:0xf')
                for i in range(m): o.append(f'v_cvt_pk_bf16_f32 v{AR+s*8+t*4+i}, v{d+2*i}, v{d+1+2*i}')
        return o
    R = dict(A=PW, B=PW+2, C=PW+4, D=PW+6, E=PW+8, F=PW+10)
    CH_ = {0: [(0,'A','new'),(2,'B','new'),(2,'C','new'),(2,'D','new')],
           1: [(3,'A','new'),(1,'B','new'),(4,'C','new'),(4,'D','new')],
           2: [(3,'E','new'),(4,'C','neg'),(1,'B','acc'),(4,'F','new')],
           3: [(3,'E','new'),(4,'D','neg'),(4,'F','neg'),(1,'B','acc')]}
    def F(self, q, k):
        t, u = TILES[k]; o = []
        for r in range(8):
            for b in (2*t, 2*t+1):
                p, d, mode = self.CH_[q][b]
                T = tile(t, u) + (b & 1)*8 + r; W = Wreg(p, u) + r; D = self.R[d] + u
                if r == 0 and mode == 'new': o.append(f'v_mul_f32 v{D}, v{T}, v{W}')
                elif r == 0 and mode == 'neg': o.append(f'v_fma_f32 v{D}, v{T}, v{W}, -v{D}')
                else: o.append(f'v_fmac_f32 v{D}, v{T}, v{W}')
        return o
    SROW = {0: 0, 2: 1, 8: 2, 5: 3, 6: 4, 3: 5, 9: 6, 1: 7, 4: 8, 10: 9, 7: 10}
    def fin(self, q, ph, sp=None):
        sp = sCP if sp is None else sp
        R = self.R
        pairs = {0: [(0, 'A', 'B'), (1, 'D', 'C')], 1: [], 2: [(2, 'E', 'A')], 3: [(3, 'E', 'B'), (4, 'F', 'C')]}[q]
        o = []
        for (slot, x, y) in pairs: o += [f'v_permlane32_swap_b32 v{R[x]+u}, v{R[y]+u}' for u in range(2)]
        if q == 3: o.append(f'v_permlane32_swap_b32 v{R["D"]}, v{R["D"]+1}')
        if ph == 1 and q == 0: o.append(f'v_lshl_add_u32 v{VPA}, v{VL2}, 1, s{sCP}')
        for (slot, x, y) in pairs: o += [f'v_add_f32 v{R[x]+u}, v{R[x]+u}, v{R[y]+u}' for u in range(2)]
        cv = [(slot, R[x], R[x]+1) for (slot, x, y) in pairs]
        if q == 3:
            o.append(f'v_add_f32 v{R["D"]}, -v{R["D"]}, -v{R["D"]+1}')
            cv.append((5, R['D'], R['D']))
        if cv and ph == 0:
            o.append(f's_set_gpr_idx_on s{sp}, gpr_idx(DST)\n' + ''.join(f'v_cvt_pk_bf16_f32 v{P0+slot}, v{lo}, v{hi}\n' for (slot, lo, hi) in cv) + 's_set_gpr_idx_off')
        elif cv:
            if q == 3: o.append(f'v_sub_u32 v{R["D"]+1}, v{VPA}, v{VH16}')
            for (slot, lo, hi) in cv: o.append(f'v_cvt_pk_bf16_f32 v{lo}, v{lo}, v{hi}')
            for (slot, lo, hi) in cv:
                o.append((f'ds_write_b32 v{VPA}, v{lo} offset:{slot*256}' if slot < 5 else f'ds_write_b16 v{R["D"]+1}, v{lo} offset:1280', [('P', False)]))
        return o
    def drop(self, line):
        x = opt('drop', '')
        if not x or not getattr(self, 'inunit', False) or '\n' in line.strip(): return False
        l = line.strip()
        if 'D' in x and l.startswith('buffer_load') and (f's[{sX}:' in l or f's[{sX2}:' in l): return True
        if 'P' in x and l.startswith('ds_write_b16'): return True
        if 'S' in x and l.startswith('v_permlane'): return True
        if 'C' in x and l.startswith('v_cvt_pk'): return True
        if 'B' in x and l.startswith('ds_read_b64_tr') and (f'v{VB0} ' in l or f'v{VB1} ' in l): return True
        if 'F' in x and l.startswith('v_fmac'): return True
        if 'A' in x and l.startswith(('v_lshlrev_b32','v_and_b32','v_cvt_pk')): return True
        if 'A' in x and l.startswith('v_mul_f32') and int(l.split()[1][1:-1]) < 64: return True
        if 'Y' in x and l.startswith(('ds_read_b128',)): return True
        if 'U' in x and l.startswith(('v_lshlrev_b32','v_and_b32')): return True
        if 'N' in x and l.startswith(('v_and_b32')): return True
        return False
    def emit(self, items, lg):
        for it in items:
            if isinstance(it, tuple) and it[0] == 'V':
                if not self.drop(it[1]): self.a(it[1])
                self.vq += [it[2]] * it[3]; continue
            if isinstance(it, tuple) and it[0] == 'wait' and len(it) > 2 and isinstance(it[2], str):
                idx = [k for k, t in enumerate(self.vq) if t == it[2]]
                if idx: cnt = len(self.vq) - 1 - idx[-1]; self.vq = self.vq[idx[-1]+1:]
                it = ('wait', it[1], cnt if idx else None)
            if isinstance(it, str):
                if not self.drop(it): self.a(it)
            elif it[0] != 'wait' and self.drop(it[0]):
                for t, o in it[1]: lg.issue(t, o)
            elif it[0] == 'wait':
                w = lg.waitline(it[1]); lw = w[len('s_waitcnt'):] if w else ''
                if len(it) > 2 and it[2] is not None: w = f's_waitcnt vmcnt({it[2]})' + lw
                if w: self.a(w)
            else:
                self.a(it[0])
                for t, o in it[1]: lg.issue(t, o)
    ENTRY = [('B', False)]*4 + [('a0', False)]*2 + [('y0', False)] + [('a1', False)]*2 + [('y1', False)]
    @staticmethod
    def cost(it):
        if isinstance(it, tuple):
            if it[0] == 'wait': return 1
            it = it[1] if it[0] == 'V' else it[0]
        return sum((2 if 'permlane' in l else 1) for l in it.strip().split('\n') if not l.strip().endswith(':'))
    def unit(self, nK, ph, half=False):
        a = self.a
        lg = LG(a, self.ENTRY)
        a(f'K2_U{nK}{"h" if half else ""}{ph}:')
        self.inunit = True
        n = 4 * nK
        BUD = opt('bud', 7)
        pre = seg(0)
        claim = (self.claim0() if ph == 0 else self.atomic())
        after = ([] if ph == 0 else [('wait', 'C')] + self.claimed()) + self.next_info(ph)
        if nK == 1: pre += claim
        pre += self.abuild(nK, half)
        if nK == 1:
            pre += after + (self.eread() if ph == 0 else [])
            for t in range(4): pre += self.sread(t)
            if ph == 0: pre += self.adma()
            for t in range(4): pre += self.gmad(t)
        x = -1 if nK == 1 else 2
        gaps = [[] for _ in range(4*n)]; tailg = [[] for _ in range(4*n)]
        hb = lambda j: half and j < n and j % nK == nK - 1
        hs = lambda j: hb(j) and j >= 4
        vmn = lambda i: 4 - hs(i+2) - hs(i+3) + (self.NEXTRA if (ph == 0 and x < i <= x + 3) else 0)
        for i in range(n):
            d = self.dma(i & 3, G + 2*((i+4) % nK), sOWN + (i+4)//nK) if i + 4 < n else self.dma(i & 3, G + 2*(i+4-n), sNX + (i+4-n))
            gaps[4*i] += self.bread(i + 1, hb(i + 1)); tailg[4*i] += [d[0]]; gaps[4*i+1] += [d[1]] + ([] if hs(i+4) else [d[2]])
            if i + 1 < n: tailg[4*i+3] += [('wait', 'B', vmn(i+1))]
        used = lambda g: sum(map(self.cost, gaps[g] + tailg[g]))
        def place(items, g0, g1):
            g = g0
            for it in items:
                while g < g1 and used(g) + self.cost(it) > BUD and used(g) > 1: g += 1
                gaps[g].append(it)
            return g
        DEF = opt('defer', True) and nK > 1
        if nK > 1:
            for t in range(4):
                place(self.sread(t), 4*(n-6+t) + 2, 4*(n-6+t) + 3)
                place(self.gmad(t), 4*(n-5+t) + 1, 4*(n-5+t) + 3)
        ndef = [0]*4
        for q in range(1, 4):
            g0 = 4*q*nK
            if DEF:
                f3 = self.F(q-1, 3)
                room = [max(0, BUD - used(g0 + k)) for k in range(3)]
                m = min(16, sum(room)); ndef[q-1] = m
                f3 = f3[16-m:]
                for k in range(3):
                    gaps[g0 + k] += f3[:room[k]]; f3 = f3[room[k]:]
            place(self.fin(q-1, ph), g0 + (3 if DEF else 1), 4*(q*nK + nK - 1) + (1 if nK > 1 else 3))
        PRE = opt('pre', 0)
        pub = [f'v_mov_b32 v{VT0}, s{sPROGW}', f'v_mov_b32 v{VT1}, s{sCB}',
               (f's_mov_b64 exec, 1\nds_write_b32 v{VT0}, v{VT1}\ns_mov_b64 exec, -1', [('P', False)])] if (PRE and ph == 1) else []
        gf = place(self.fin(3, ph, sPP), 1, 4*(nK - 1) + (1 if nK > 1 else 3))
        if nK == 1: gaps[gf] += pub
        if nK > 1:
            if ph == 0:
                g = place(claim + after, 1, 5)
                place(self.eread(), max(g, 5), 7)
                place(self.adma(), 4*x + 3, 4*x + 3)
            else:
                place(claim, 1, 3)
                g1 = 4*(n-6) + 2
                keep = gaps[g1]; k0 = [i for i, it in enumerate(keep) if isinstance(it, str) and f'v{VSO}' in it]
                moved = keep[k0[0]:] if k0 else []
                if k0: gaps[g1] = keep[:k0[0]]
                place(after, 5, g1)
                gaps[g1] += moved
                place(pub, max(gf, opt('pubg', 6)), 4*(n-2))
        if True:
            upd = [f's_sub_u32 s{sLIM}, s{sNBs}, s{sCB}', f's_mov_b32 s{sCB}, s{sNBs}', f's_mov_b32 s{sC4}, s{sN4}',
                   (f's_cmp_eq_u32 s{sNPH}, 0' if ph == 0 else f's_cmp_lg_u32 s{sNV}, 0') + f'\ns_cselect_b32 s{sEX}, s{sEX}, 0']
            upd.insert(3, f's_bfe_u32 s{sEX}, s{sN4}, 0x40012')
            place(upd, 4*(n-2) + 1, 4*(n-1) + 1)
            gl = max([g for g in range(4*n) if any(('gpr_idx' in (it if isinstance(it, str) else it[0])) or (f's{sCP}' in (it if isinstance(it, str) else it[0])) for it in gaps[g])] + [4*(n-2)])
            place([f's_mov_b32 s{sPP}, s{sCP}', f's_mov_b32 s{sCP}, s{sNP}'], gl, max(gl, 4*(n-1) + 2))
        nf0 = [0]*4
        if nK > 1:
            for q in range(4):
                g = 4*(q*nK + nK - 1) + 2
                nf0[q] = max(0, BUD - used(g))
                gaps[g] += self.F(q, 0)[:nf0[q]]
        pb = opt('pb', 1) if (PRE and ph == 1) else 0
        self.emit([f's_setprio {opt("prioa", 1) + pb}'] + pre + seg(1) + [('wait', 'B', vmn(0))] + ([f's_setprio {opt("prio", 1) + pb}'] if opt("prio", 1) != opt("prioa", 1) else []), lg)
        for i in range(n):
            q, s = divmod(i, nK)
            for k, (t, u) in enumerate(TILES):
                c = f'v[{tile(t,u)}:{tile(t,u)+15}]' if s else '0'
                bb = BR + (i & 1)*8 + u*4
                w = 1 if hb(i) else 3
                if 'M' not in opt('drop', ''): a(f'v_mfma_f32_32x32x{8 if hb(i) else 16}_bf16 v[{tile(t,u)}:{tile(t,u)+15}], v[{AR+s*8+t*4}:{AR+s*8+t*4+w}], v[{bb}:{bb+w}], {c}')
                g = 4*i + k
                if k == 3 and s == nK - 1:
                    self.emit([f's_setprio {opt("prio0", 0) + pb}'] + gaps[g] + seg(2+2*q) + self.F(q, 0)[nf0[q]:], lg)
                    if q < 3:
                        fb = self.F(q, 1) + self.F(q, 2) + self.F(q, 3)[:16-ndef[q]]
                        self.emit(fb + seg(3+2*q) + [f's_setprio {opt("prio", 1) + pb}'], lg)
                else: self.emit(gaps[g], lg)
                self.emit(tailg[g], lg)
        end = [f's_sub_u32 s{sT}, s{sNBs}, s{sCB}', f'v_add_u32 v{VAO}, s{sT}, v{VAO}', f'v_add_u32 v{VYO}, s{sT}, v{VYO}']
        if opt('dsp', 1): end = [f'v_add_u32 v{VAO}, s{sLIM}, v{VAO}', f'v_add_u32 v{VYO}, s{sLIM}, v{VYO}']
        end = [end + self.F(3, 1) + self.areads(0) + self.areads(1) + self.F(3, 2) + self.F(3, 3),
               end + self.F(3, 1) + self.areads(0) + self.F(3, 2) + self.areads(1) + self.F(3, 3),
               end + self.F(3, 1) + self.F(3, 2) + self.areads(0) + self.areads(1) + self.F(3, 3)][opt('ypos', 1)]
        self.emit(end, lg)
        if SEG:
            a('s_memtime s[94:95]\ns_waitcnt lgkmcnt(0)')
            def acc(d, i, j): a(f's_sub_u32 s67, s{76+2*j}, s{76+2*i}\ns_add_u32 s{d}, s{d}, s67')
            acc(96, 0, 1)
            for q in range(4): acc(97, 1+2*q, 2+2*q)
            for q in range(3): acc(98, 2+2*q, 3+2*q)
            acc(99, 8, 9)
            a(f's_add_u32 s100, s100, {nK}\ns_add_u32 s101, s101, 1')
        assert [x for x in lg.q if x[0] != 'P'] == self.ENTRY, lg.q
        self.inunit = False
        self.dispatch(ph)
    HALF = {0: [int(c) for c in opt('half0', '3') if c != '0'], 1: [int(c) for c in opt('half1', '3') if c != '0']}
    def target(self, code, ph):
        nK = code >> 1
        return f'K2_U{nK}{"h" if (not code & 1 and nK in self.HALF[ph]) else ""}{ph}'
    def dispatch(self, ph, check=True):
        if not check:
            self.a(f"""
            s_mov_b32 s{sCB}, s{sNBs}
            s_mov_b32 s{sPP}, s{sCP}
            s_mov_b32 s{sC4}, s{sN4}
            s_mov_b32 s{sCP}, s{sNP}
            s_bfe_u32 s{sEX}, s{sN4}, 0x40012""")
        for code in (5, 6): self.a(f's_cmp_eq_u32 s{sEX}, {code}\ns_cbranch_scc1 {self.target(code, ph)}')
        self.a(f's_branch K2_DSP{ph}')

    def wload(self, ph, vl16, paths, dst):
        for k, p in enumerate(paths):
            self.a(f's_mov_b32 s{sT}, {WS_WTAB + ph*10240 + p*2048}')
            for u in range(2): self.a(f'buffer_load_dwordx4 v[{dst(p)+4*u}:{dst(p)+4*u+3}], v{vl16}, s[{sWS}:{sWS+3}], s{sT} offen offset:{u*1024} sc1')
    def wunp(self, paths, src):
        return [f'v_lshlrev_b32 v{WR+16*p+2*i}, 16, v{src(p)+i}\nv_and_b32 v{WR+16*p+2*i+1}, 0xffff0000, v{src(p)+i}' for p in paths for i in range(8)]

    def fill_rows(self, vL, base):
        return f'''
        v_and_b32 v76, 31, v{vL}
        v_lshrrev_b32 v77, 5, v{vL}
        v_cmp_le_u32 vcc, {OS//16}, v76
        v_mul_u32_u24 v77, {NSTR}, v77
        v_lshl_add_u32 v78, v76, 4, v77
        v_cndmask_b32 v80, 0, -1, vcc
        v_add_u32 v78, {base}, v78
        v_mov_b32 v81, v80
        v_mov_b32 v82, v80
        v_mov_b32 v83, v80
        '''
    def fill_slots(self, vL, base):
        return f'''
        v_add_u32 v85, 16, v{vL}
        v_lshlrev_b32 v84, 5, v{vL}
        v_lshrrev_b32 v85, 6, v85
        v_mul_u32_u24 v85, {E4}, v85
        v_sub_u32 v84, v84, v85
        v_mov_b32 v85, -1
        v_add_u32 v84, {base}, v84
        '''
    def fill_all(self, vL):
        a = self.a
        a(f's_mul_i32 s{sT}, s{sW}, {5*NSTR}\ns_add_u32 s{sT}, s{sT}, {RECBASE}\ns_add_u32 s{sT+1}, s{sT}, {OA}' + self.fill_rows(vL, f's{sT}') + self.fill_slots(vL, f's{sT+1}'))
        for i in range(5): a(f'ds_write_b32 v84, v85 offset:{i*NSTR}')
        a('s_mov_b32 exec_hi, 0')
        for i in range(5): a(f'ds_write_b128 v78, v[80:83] offset:{i*NSTR}')
        a('s_mov_b32 exec_hi, -1')
    def fill_w5(self):
        a = self.a
        a(self.fill_rows(8, RECBASE) + f'v_add_u32 v79, {20*NSTR}, v78')
        for i in range(20): a(f'ds_write_b128 v{78 + i//10}, v[80:83] offset:{(i%10)*2*NSTR}')
    def fill_w6(self, n0, n1):
        a = self.a
        if n0 >= n1: return
        a(self.fill_slots(8, RECBASE + OA + n0*NSTR) + f'v_add_u32 v86, {20*NSTR}, v84')
        for i in range(n1 - n0): a(f'ds_write_b32 v{84 + 2*(i//20)}, v85 offset:{(i%20)*NSTR}')
    def counters(self, vL, first):
        self.a(f'''
        v_mov_b32 v76, 0
        v_mov_b32 v77, -1
        v_lshlrev_b32 v78, 2, v{vL}
        v_add_u32 v78, {HIST}, v78
        s_mov_b64 exec, 0x1ff
        ds_write_b32 v78, v76 offset:{PROG-HIST}
        s_mov_b64 exec, 0xff
        ds_write_b32 v78, v77 offset:{NULLSRC-HIST}
        s_mov_b64 exec, -1
        {'' if first else f's_cmp_lg_u32 s{sRND}, 0'}
        {'' if first else f's_cbranch_scc1 K2_NOH'}
        s_mov_b32 exec_hi, 0xffff
        ds_write_b32 v78, v76
        s_mov_b64 exec, 1
        ds_write_b32 v78, v76 offset:{FLAG-HIST}
        s_mov_b64 exec, -1
        ''')
    def srds(self):
        a = self.a
        srd(a, sX, 80, N*1024); srd(a, sOUT, 96, N*1024); srd(a, sEA, 84, E*32)
        a('s_sub_u32 s80, s80, 1024\ns_subb_u32 s81, s81, 0'); srd(a, sX2, 80, N*1024 + 1024)
    def consts(self, vL):
        self.a(f'''
        v_and_b32 v84, 15, v{vL}                ; i
        v_lshrrev_b32 v85, 5, v{vL}             ; h
        v_bfe_u32 v86, v{vL}, 4, 1
        v_lshrrev_b32 v87, 2, v84
        v_and_b32 v88, 3, v84                   ; c
        v_lshl_add_u32 v89, v85, 2, v87
        v_lshlrev_b32 v{VAO}, 6, v89
        v_lshl_add_u32 v{VAO}, v88, 3, v{VAO}
        v_add_u32 v{VAO}, {OA}, v{VAO}
        v_lshrrev_b32 v90, 3, v84
        v_lshl_add_u32 v90, v90, 1, v86
        v_sub_u32 v90, v90, 1 clamp
        v_lshlrev_b32 v{VYO}, 7, v90
        v_lshl_add_u32 v91, v85, 2, v88
        v_lshl_add_u32 v{VYO}, v91, 2, v{VYO}
        v_and_b32 v91, 1, v87
        v_lshl_add_u32 v{VYO}, v91, 1, v{VYO}
        v_lshrrev_b32 v90, 1, v88
        v_lshl_add_u32 v90, v86, 1, v90         ; chunk (u = 0)
        v_bfe_u32 v91, v87, 1, 1
        v_lshlrev_b32 v91, 2, v91
        v_xor_b32 v90, v90, v91
        v_lshlrev_b32 v90, 4, v90
        v_lshl_add_u32 v90, v89, 7, v90
        v_and_b32 v91, 1, v88
        v_lshl_add_u32 v90, v91, 3, v90
        v_add_u32 v{VB0}, s{sRING}, v90
        v_xor_b32 v{VB1}, 64, v{VB0}
        v_lshrrev_b32 v90, 3, v{vL}
        v_lshlrev_b32 v{VSO}, 2, v90
        v_add_u32 v{VSO}, {OS}, v{VSO}
        v_bfe_u32 v90, v90, 1, 1
        v_lshlrev_b32 v90, 2, v90
        v_and_b32 v91, 7, v{vL}
        v_xor_b32 v90, v90, v91
        v_lshlrev_b32 v{VLG}, 4, v90
        v_lshlrev_b32 v{VL2}, 1, v{vL}
        v_and_b32 v{VH16}, 1, v{vL}
        v_lshlrev_b32 v{VH16}, 4, v{VH16}
        v_lshrrev_b32 v90, 1, v{vL}
        v_lshlrev_b32 v90, 5, v90
        v_add_u32 v{VEO}, {OA}, v90
        ''')
    def pad(self, name, ret):
        return f'K2_PAD_{name}:\ns_branch {ret}' if name in opt('pads', self.PADS).split('_') and opt('pad', 1) else ''
    def padx(self, name, ret):
        return f'K2_PAD_{name}:\ns_cbranch_execz {ret}' if name in opt('pads', self.PADS).split('_') and opt('pad', 1) else ''
    PADS = 'S1_S2_H1_H2_H3_B3_LD_NW_SC_SD_U20_U30_U21_U31_SW_TL_T2'
    def hops(self, names, ret):
        if not opt('pad', 1): return
        self.a('s_mov_b64 exec, 0')
        for w, n in names:
            if n in opt('pads', self.PADS).split('_'): self.a(f's_cmp_eq_u32 s{sW}, {w}\ns_cbranch_scc1 K2_PAD_{n}')
        self.a(f'{ret}:\ns_mov_b64 exec, -1')
    def stage_sort(self, vL, vT_):
        a = self.a; st = mod('recst', 'sc1')
        RAW = 24576
        a(f"""
        s_cmp_lg_u32 s{sW}, 7
        s_cbranch_scc1 KS_NOTAG
        s_mov_b32 s24, {WS_EPO}
        s_mov_b64 exec, 1
        buffer_load_dword v14, v6, s[{sWS}:{sWS+3}], s24 offen sc1
        s_mov_b64 exec, -1
        """)
        XP = opt('xp', 0)
        def xtouch():
            srd(a, 60, 80, N*1024)
            a(f's_lshr_b32 s24, s2, 3\ns_mul_i32 s24, s24, {313*1024}\nv_lshlrev_b32 v15, 8, v8')
            for i in range(XP): a(f'buffer_load_dword v16, v15, s[60:63], s24 offen {mod("xpm", "")}\ns_add_u32 s24, s24, {16*1024}')
        if XP and opt('xpp', 0) == 0: xtouch()
        sstamp(a, 1); a('s_barrier'); sstamp(a, 3)
        if XP and opt('xpp', 0) == 1: xtouch()
        self.counters(8, True)
        self.fill_w6(opt('n6', 40), 40)
        a(f"""
        s_mov_b64 exec, 1
        v_mov_b32 v12, {NONCE}
        s_mov_b32 s24, 1664525
        s_waitcnt vmcnt({XP})
        v_mul_lo_u32 v14, v14, s24
        v_add_u32 v14, 1013904223, v14
        ds_write_b32 v12, v14
        KS_TAGOK2:
        s_mov_b64 exec, -1
        {'s_memrealtime s[86:87]' if PROFS else ''}
        s_waitcnt lgkmcnt(0)
        s_barrier
        s_branch KS_B3
        KS_H0:
        s_barrier
        s_branch KS_HELP
        {self.pad('S1', 'KS_HOP0')}
        KS_NOTAG:
        s_cmp_ge_u32 s{sW}, 5
        s_cbranch_scc1 {'KS_H0' if opt('eb1', 0) else 'KS_HELP'}
        s_cmp_ge_u32 s2, {NCH}
        s_cbranch_scc1 KS_IDLE
        """)
        srd(a, 40, 88, E*4)
        a(f'buffer_load_dwordx4 v[12:15], v5, s[40:43], s64 offen')
        srd(a, 44, 86, E*4); srd(a, 48, 82, E*6)
        a(f"""
        buffer_load_dwordx4 v[16:19], v5, s[44:47], s64 offen
        buffer_load_dwordx4 v[20:23], v4, s[48:51], s65 offen
        buffer_load_dwordx2 v[24:25], v4, s[48:51], s65 offen offset:16
        v_lshlrev_b32 v2, 2, v0                 ; t*4
        s_lshl_b32 s64, s64, 3
        v_lshl_add_u32 v3, v0, 7, s64
        v_mov_b32 v7, 1
        s_cmp_eq_u32 s{sW}, 4
        s_cbranch_scc1 KS_NOCLR
        ds_write_b32 v2, v6
        KS_NOCLR:
        """)
        sstamp(a, 1); a('s_waitcnt lgkmcnt(0)\ns_barrier'); sstamp(a, 3)
        self.hops([(0, 'B3'), (1, 'LD'), (2, 'NW'), (3, 'SC'), (4, 'SD')], 'KS_HOP')
        a(f's_mov_b32 s58, {BMUL}\ns_movk_i32 s59, 625\ns_waitcnt vmcnt(3)')
        sstamp(a, 5)
        sort_rank(a, self.padx('S2', 'KS_HOP0'))
        a('s_waitcnt lgkmcnt(0)')
        for j in range(4): a(f'ds_read_b32 v{32+j}, v{32+j} offset:1024')
        sort_emit(a, st)
        a(f"""
        s_branch KS_JOIN
        {self.pad('B3', 'KS_HOP')}
        KS_B3:
        v_mov_b32 v59, {NONCE}
        ds_read_b32 v59, v59
        s_waitcnt lgkmcnt(0)
        s_barrier
        KS_JOIN:
        v_readfirstlane_b32 s{sTAG}, v59
        """)
        stamp(a, 6)
    def helpers(self):
        a = self.a; RAW = 24576
        a(f"""
        {self.pad('H1', 'KS_HOP0')}
        KS_HELP:
        {'s_memrealtime s[78:79]' if PROFS else ''}
        s_mov_b32 s30, 0
        s_cmp_eq_u32 s{sW}, 6
        s_cbranch_scc1 KS_RAW
        s_mov_b32 s30, 2
        s_cmp_ge_u32 s2, 170
        s_cbranch_scc1 KS_NOW
        s_mov_b32 s30, 1
        """)
        weight_loads(a)
        a('K1_GO:\nKS_NOW:\n' + ('' if opt('eb1', 0) else 's_barrier\n') + self.padx('H2', 'KS_HOP0'))
        sstamp(a, 3)
        self.fill_w5()
        a('KS_FILL:')
        sstamp(a, 5)
        a(f'v_mov_b32 v59, {NONCE}\ns_barrier\nds_read_b32 v59, v59')
        a(f"""
        s_waitcnt vmcnt(0) lgkmcnt(0)
        s_cmp_eq_u32 s30, 0
        s_cbranch_scc1 KS_B3
        s_cmp_eq_u32 s30, 2
        s_cbranch_scc1 KS_NOST
        v_lshl_or_b32 v40, v65, 16, v64
        v_lshl_or_b32 v41, v67, 16, v66
        v_lshl_or_b32 v42, v69, 16, v68
        v_lshl_or_b32 v43, v71, 16, v70
        buffer_store_dwordx4 v[40:43], v9, s[{sWS}:{sWS+3}], s24 offen sc1
        KS_NOST:
        s_waitcnt lgkmcnt(0)
        s_barrier
        s_lshl_b32 s24, s2, 2
        s_add_u32 s24, s24, {WS_FLG}
        s_mov_b64 exec, 1
        s_waitcnt vmcnt(0)
        buffer_store_dword v59, v6, s[{sWS}:{sWS+3}], s24 offen sc1
        s_mov_b64 exec, -1
        s_branch KS_JOIN
        {self.pad('H3', 'KS_HOP0')}
        KS_RAW:
        {'' if opt('eb1', 0) else 's_barrier'}
        """)
        srd(a, 60, 90, 16*640*2)
        a('v_lshrrev_b32 v10, 3, v8\nv_and_b32 v11, 7, v8\nv_lshlrev_b32 v10, 8, v10\nv_lshl_add_u32 v10, v11, 4, v10')
        for i in range(20):
            a(f's_mov_b32 m0, {(W1L if i >= 10 else RAW) + (i % 10)*1024}\ns_movk_i32 s24, {(i % 10)*2048 + (i // 10)*128}\nbuffer_load_dwordx4 v10, s[60:63], s24 offen lds')
        sstamp(a, 3)
        self.fill_w6(0, opt('n6', 40))
        a('s_branch KS_FILL\nKS_IDLE:\ns_barrier\ns_barrier\ns_branch KS_B3')
    def wraw(self, vL2, t, base, dst):
        a = self.a
        a(f'''
        v_lshrrev_b32 v{t}, 6, v{vL2}             ; h
        v_bfe_u32 v{t+1}, v{vL2}, 3, 2            ; row
        v_lshl_add_u32 v{t}, v{t}, 2, v{t+1}
        v_mul_u32_u24 v{t}, 640, v{t}
        v_bfe_u32 v{t+1}, v{vL2}, 5, 1
        v_lshl_add_u32 v{t}, v{t+1}, 5, v{t}
        v_and_b32 v{t+1}, 6, v{vL2}
        v_lshl_add_u32 v{t}, v{t+1}, 2, v{t}
        v_add_u32 v{t}, {base}, v{t}
        ''')
        for i in range(20):
            p, u, rq = i >> 2, (i >> 1) & 1, i & 1
            a(f'ds_read_b64_tr_b16 v[{dst(p)+2*(i&3)}:{dst(p)+2*(i&3)+1}], v{t} offset:{rq*8*640 + p*128 + u*64}')

    def gen(self):
        a = self.a
        vL, vT_, vC, vE, vREM, vOFF = 176, 177, 178, 179, 180, 181
        RK = 40
        NBs = 50
        t0 = 192
        ws = f's[{sWS}:{sWS+3}]'
        def loop(done, body):
            for i in range(U):
                a(f'v_cmp_lt_i32 vcc, {2*i}, v{vREM}\ns_cbranch_vccz {done}\ns_mov_b64 exec, vcc')
                a(body(i))
            a(f'{done}:\ns_mov_b64 exec, -1')
        a('s_cmp_ge_u32 s2, 256\ns_cbranch_scc1 K2_END')
        stamp(a, 0)
        a(f'''
        s_load_dwordx16 s[80:95], s[0:1], 0
        s_load_dwordx4 s[96:99], s[0:1], 72
        s_load_dwordx2 s[100:101], s[0:1], 88   ; ws
        v_lshrrev_b32 v1, 6, v0
        s_mov_b32 s{sB}, s2
        v_readfirstlane_b32 s{sW}, v1
        ''')
        self.hops([(0, 'S1'), (1, 'S2'), (5, 'H1'), (6, 'H2'), (2, 'H3')], 'KS_HOP0')
        a(f'''
        v_and_b32 v8, 63, v0
        v_lshlrev_b32 v9, 4, v8                 ; lane*16
        v_mov_b32 v6, 0
        v_lshlrev_b32 v5, 4, v0                 ; t*16
        v_mul_u32_u24 v4, 24, v0
        s_mul_i32 s64, s2, {CH*4}
        s_mul_i32 s65, s2, {CH*6}
        v_mov_b32 v{vL}, v8
        v_mov_b32 v{vT_}, v0
        s_mul_i32 s{sNB}, s2, 625
        s_add_u32 s{sNC}, s{sNB}, {625+15}
        s_add_u32 s{sNB}, s{sNB}, 15
        s_lshr_b32 s{sNB}, s{sNB}, 4
        s_lshr_b32 s{sNC}, s{sNC}, 4
        s_sub_u32 s{sNC}, s{sNC}, s{sNB}
        s_movk_i32 s{s1024}, 1024
        s_lshl_b32 s{sRING}, s{sW}, 13
        s_mov_b32 s{sPROG}, {PROG}
        s_lshl_b32 s{sPROGW}, s{sW}, 2
        s_add_u32 s{sPROGW}, s{sPROGW}, s{sPROG}
        {chr(10).join(f's_add_u32 s{sM0+i}, s{sRING}, {i*2048}' for i in range(4))}
        s_waitcnt lgkmcnt(0)
        ''')
        if opt('wsoff', 0): a(f's_add_u32 s100, s100, {opt("wsoff", 0) << 20}\ns_addc_u32 s101, s101, 0')
        srd(a, sWS, 100, WS_SIZE)
        self.stage_sort(vL, vT_)
        a(f'''
        s_mov_b32 s{sJ0}, 0
        s_mov_b32 s{sFIRST}, 1
        {chr(10).join(f's_mov_b32 s{i}, 0' for i in range(96, 102)) if SEG else ''}
        s_mov_b32 s{sRND}, 0
        s_mov_b32 s{sR}, 1
        K2_CELLS:
        v_lshrrev_b32 v{vC}, 1, v{vT_}          ; cell
        v_min_u32 v{vC}, {NCH-1}, v{vC}
        v_mul_u32_u24 v72, {TSTR}, v{vC}
        s_and_b32 s{sT}, s{sB}, 7
        s_lshl_b32 s{sT}, s{sT}, 7
        s_lshr_b32 s{sT+1}, s{sB}, 5
        s_lshl_b32 s{sT+1}, s{sT+1}, 4
        s_add_u32 s{sT+9}, s{sT}, s{sT+1}
        s_add_u32 s{sT+9}, s{sT+9}, {WS_TBL}
        buffer_load_dwordx4 v[76:79], v72, {ws}, s{sT+9} offen sc1
        ''')
        a(f's_cmp_eq_u32 s{sFIRST}, 0\ns_cbranch_scc1 K2_NOSRD')
        self.srds()
        self.hops([(0, 'U20'), (1, 'U30'), (2, 'U21'), (3, 'U31'), (4, 'SW'), (5, 'TL'), (6, 'T2')], 'K2_HOP')
        a('K2_NOSRD:')
        self.consts(vL)
        def chk(r): return f"""
            v_xor_b32 v73, s{sT+1}, v{r}
            v_xor_b32 v74, s{sT+1}, v{r+1}
            v_or_b32 v73, v73, v74
            v_xor_b32 v74, s{sTAG}, v{r+3}
            v_lshrrev_b32 v73, 22, v73
            v_or_b32 v73, v73, v74
            v_cmp_ne_u32 vcc, 0, v73"""
        a(f'''
        s_lshl_b32 s{sT+1}, s{sTAG}, 22
        s_mov_b32 s{sT+2}, 0x40000
        s_bfe_u32 s{sT+3}, s{sB}, 0x10004
        s_bfe_u32 s{sT+4}, s{sB}, 0x10003
        s_add_u32 s{sT+5}, s{sT+3}, s{sT+4}
        s_mul_i32 s{sT+4}, s{sT+4}, 11
        s_sub_u32 s{sT+6}, 11, s{sT+4}
        v_cmp_gt_u32 vcc, {2*NCH}, v{vT_}
        s_mov_b64 s[{sEX}:{sEX+1}], vcc
        K2_POLL:
        ''')
        if opt('poll2', 0): a(f'''
        buffer_load_dwordx4 v[80:83], v72, {ws}, s{sT+9} offen sc1
        s_waitcnt vmcnt(1)
        {chk(76)}
        s_cbranch_vccz K2_POLLED
        s_sub_u32 s{sT+2}, s{sT+2}, 1
        s_cbranch_scc1 K2_END
        buffer_load_dwordx4 v[76:79], v72, {ws}, s{sT+9} offen sc1
        s_waitcnt vmcnt(1)
        {chk(80)}
        s_cbranch_vccnz K2_POLL
        s_add_u32 s{sT+3}, s{sT+3}, 4
        s_add_u32 s{sT+5}, s{sT+5}, 4
        ''')
        else: a(f'''
        s_waitcnt vmcnt(0)
        {chk(76)}
        s_cbranch_vccz K2_POLLED
        s_sub_u32 s{sT+2}, s{sT+2}, 1
        s_cbranch_scc1 K2_END
        s_mov_b64 exec, vcc
        buffer_load_dwordx4 v[76:79], v72, {ws}, s{sT+9} offen sc1
        s_mov_b64 exec, -1
        s_branch K2_POLL
        {self.pad('LD', 'KS_HOP')}
        ''')
        a(f'''
        K2_POLLED:
        s_set_gpr_idx_on s{sT+3}, gpr_idx(SRC0)
        v_bfe_u32 v{vE}, v76, s{sT+4}, 11
        s_set_gpr_idx_idx s{sT+5}
        v_bfe_u32 v73, v76, s{sT+6}, 11
        s_set_gpr_idx_off
        v_sub_u32 v73, v73, v{vE}
        ''')
        o = Asm(); sv = self.a; self.a = o
        o(f'''
        K2_WINDOW:
        s_mov_b32 s{sRND}, 0
        s_mov_b32 s{sR}, 1
        K2_LOAD:
        v_mbcnt_lo_u32_b32 v{vL}, -1, 0
        v_mbcnt_hi_u32_b32 v{vL}, -1, v{vL}
        s_lshl_b32 s{sT}, s{sW}, 6
        v_add_u32 v{vT_}, s{sT}, v{vL}
        v_lshlrev_b32 v70, 4, v{vL}
        ''')
        self.wload(0, 70, range(5), lambda p: WR + 40 + 8*p)
        self.fill_all(vL)
        o(f's_cmp_lg_u32 s{sW}, 7\ns_cbranch_scc1 K2_NOH')
        self.counters(vL, False)
        o('K2_NOH:\ns_waitcnt lgkmcnt(0)\ns_barrier\ns_branch K2_CELLS')
        self.a = sv; self.ool(o.text())
        stamp(a, 1)
        a(f'''
        v_cndmask_b32 v73, 0, v73, s[{sEX}:{sEX+1}]
        v_and_b32 v1, 1, v{vT_}
        v_add_u32 v1, s{sJ0}, v1                ; j0 + sub
        v_sub_u32 v{vREM}, v73, v1
        v_add_u32 v{vE}, v{vE}, v1
        v_mul_u32_u24 v{vOFF}, {CSTR}, v{vC}
        v_lshl_add_u32 v{vOFF}, v{vE}, 4, v{vOFF}
        ''')
        MK = [f's[{r}:{r+1}]' for r in (40, 42, 44, 46, 48, 50, 90, 92, 94, 96)]
        def mloop(done, body):
            for i in range(U): a(f's_mov_b64 exec, {MK[i]}\ns_cbranch_execz {done}\n' + body(i))
            a(f'{done}:\ns_mov_b64 exec, -1')
        M = opt('cm', 1); NL = opt('nl', 3); vOFM, vEM = vOFF + 1, vOFF + 4; LIST = 45056
        adr = lambda i, r, rm, st: f'v{rm + i - M}, {{}} offen' if M <= i < M + NL else f'v{r}, {{}} offen offset:{st*i}'
        ld = lambda i: f'buffer_load_dwordx4 v[{4*i}:{4*i+3}], ' + adr(i, vOFF, vOFM, 32).format(f'{ws}, 0') + ' sc1'
        for i in range(M): a(f'v_cmp_lt_i32 {MK[i]}, {2*i}, v{vREM}')
        a(f'v_add_u32 v{vOFM}, {32*M}, v{vOFF}\ns_mov_b32 s{sT+7}, 0')
        for i in range(M):
            a(f's_mov_b64 exec, {MK[i]}\n{ld(i)}')
        a('s_mov_b64 exec, -1')
        for i in range(M, U): a(f'v_cmp_lt_i32 {MK[i]}, {2*i}, v{vREM}')
        for j in range(1, NL): a(f'v_add_u32 v{vOFM+j}, {32*(M+j)}, v{vOFF}')
        a(f"""
        v_subrev_u32 v62, {2*M - 1}, v{vREM}
        v_ashrrev_i32 v62, 1, v62
        v_med3_i32 v62, v62, 0, {U - M}
        s_cmp_eq_u64 {MK[M]}, 0
        s_cbranch_scc1 K2_LD_DONE
        v_mov_b32 v63, v62
        """)
        scan(a, 63)
        a(f"""
        s_lshl_b32 s{sT}, s{sW}, 10
        s_add_u32 s{sT}, s{sT}, {LIST}
        v_readlane_b32 s{sT+1}, v63, 63
        v_sub_u32 v63, v63, v62
        v_lshl_add_u32 v64, v63, 2, s{sT}
        v_lshlrev_b32 v63, 5, v63
        v_sub_u32 v63, v{vOFM}, v63
        s_cmp_gt_u32 s{sT+1}, {63*NL}
        s_cbranch_scc1 K2_LD_GEN
        """)
        for i in range(M, U): a(f's_mov_b64 exec, {MK[i]}\ns_cbranch_execz K2_LD_L\nds_write_b32 v64, v63 offset:{4*(i-M)}')
        a(f"""
        K2_LD_L:
        s_mov_b64 exec, -1
        v_lshl_add_u32 v63, v{vL}, 2, s{sT}
        v_lshlrev_b32 v62, 5, v{vL}
        s_waitcnt lgkmcnt(0)
        """)
        for j in range(NL): a(f'ds_read_b32 v{64+j}, v63 offset:{4*63*j}')
        for j in range(NL): a(f's_min_u32 s{sT+2}, s{sT+1}, 63\ns_sub_u32 s{sT+1}, s{sT+1}, s{sT+2}\ns_bfm_b64 {MK[M+j]}, s{sT+2}, 0')
        a(f's_mov_b64 {MK[M+NL]}, 0\ns_mov_b32 s{sT+7}, 1')
        for j in range(NL):
            a(f's_mov_b32 s{sT+2}, {32*63*j}\ns_waitcnt lgkmcnt({NL-1-j})\nv_add3_u32 v{vOFM+j}, v62, v{64+j}, s{sT+2}\ns_mov_b64 exec, {MK[M+j]}\n{ld(M+j)}')
        a(f"""
        K2_LD_DONE:
        s_mov_b64 exec, -1
        """)
        self.ool('K2_LD_GEN:\n' + ''.join(f's_mov_b64 exec, {MK[i]}\ns_cbranch_execz K2_LD_DONE\n{ld(i)}\n' for i in range(M, U)) + 's_branch K2_LD_DONE')
        a(f"""
        s_cmp_eq_u32 s{sFIRST}, 0
        s_cbranch_scc1 K2_WLATE
        """)
        self.ool('K2_WLATE:\ns_waitcnt vmcnt(0)\ns_branch K2_WUNP')
        self.wraw(VL2, 60, 24576, lambda p: WR + 40 + 8*p)
        a('s_waitcnt lgkmcnt(0)\nK2_WUNP:')
        for x in self.wunp(range(5), lambda p: WR + 40 + 8*p): a(x)
        a(f"""
        K2_NOWRAW:
        {self.padx('NW', 'KS_HOP')}
        v_lshrrev_b32 v{vE}, 2, v{vOFF}
        {chr(10).join(f'v_lshrrev_b32 v{vEM+j}, 2, v{vOFM+j}' for j in range(NL))}
        s_mov_b32 s{sT+8}, {WS_RANK}
        v_mov_b32 v{t0+9}, 1
        s_movk_i32 s{sT}, {NSTR//4}
        s_movk_i32 s{sT+1}, {NSTR}
        s_mov_b32 s{sT+2}, 0x40000
        s_mov_b32 s{sT+3}, 0xffff
        v_mov_b32 v{t0+10}, {RECBASE}
        s_cmp_lg_u32 s{sRND}, 0
        s_cbranch_scc1 K2_RK_LOAD
        v_cmp_lt_i32 vcc, {2*U}, v{vREM}
        s_cbranch_vccz K2_NOMORE
        v_mov_b32 v61, {FLAG}
        ds_write_b32 v61, v{t0+9}
        K2_NOMORE:
        s_mov_b32 s{sT+4}, {RECBASE + opt("tp", 8)*NSTR}
        s_cmp_eq_u32 s{sT+7}, 0
        s_waitcnt vmcnt({NL})
        s_cbranch_scc0 K2_ARR
        s_waitcnt vmcnt(0)
        K2_ARR:
        """)
        stamp(a, 2)
        prep = lambda i: f'v_mad_u32_u24 v{NBs+i}, v{NBs+i}, s{sT}, v{t0+10}\nv_and_b32 v{4*i+3}, 0xffffff, v{4*i+3}'
        def rank(i):
            self.ool(f'K2_RT{i}:\ns_sub_u32 s{sT+2}, s{sT+2}, 1\ns_cbranch_scc1 K2_END\n{ld(i)}\ns_waitcnt vmcnt(0)\ns_branch K2_CK{i}')
            return (f's_waitcnt vmcnt({M + NL - 1 - i})\n' if M <= i < M + NL else '') + f"""K2_CK{i}:
            v_bfi_b32 v{t0}, s{sT+3}, v{4*i+1}, v{4*i+2}
            v_lshrrev_b32 v{NBs+i}, 24, v{4*i+3}
            v_cmp_ne_u32 vcc, s{sTAG}, v{t0}
            v_add_u32 v{RK+i}, {HIST}, v{NBs+i}
            s_cbranch_vccnz K2_RT{i}
            ds_add_rtn_u32 v{RK+i}, v{RK+i}, v{t0+9}
            """ + (prep(i).split('\n')[0] if (opt('tp', 8)) else prep(i))
        mloop('K2_RK_A', rank)
        a(pstamp(5))
        if opt('tp', 8):
            mloop('K2_TP', lambda i: f'v_cmp_gt_u32 vcc, s{sT+4}, v{NBs+i}\n' + prep(i).split('\n')[1] + f'\ns_mov_b64 exec, vcc\nbuffer_load_dword v245, v{4*i+3}, s[{sEA}:{sEA+3}], 0 offen {mod("tpm", "")}')
        o = Asm(); b = a; a = o
        a(f'K2_RK_LOAD:\ns_waitcnt vmcnt(0)')
        mloop('K2_RK_B', lambda i: f'v_lshrrev_b32 v{NBs+i}, 24, v{4*i+3}\nbuffer_load_dword v{RK+i}, ' + adr(i, vE, vEM, 8).format(f'{ws}, s{sT+8}') + '\n' + prep(i))
        a(f's_mul_i32 s{sT+4}, s{sRND}, 48\ns_waitcnt vmcnt(0)')
        for i in range(U): a(f'v_subrev_u32 v{RK+i}, s{sT+4}, v{RK+i}')
        a('s_branch K2_RK_DONE')
        self.ool(o.text()); a = b
        a(f"""
        K2_RK_DONE:
        {self.padx('SC', 'KS_HOP')}
        s_mul_i32 s{sT+9}, s{sRND}, 48
        s_movk_i32 s{sT}, {-E4}
        s_waitcnt lgkmcnt(0)
        {pstamp(7)}
        """)
        for i in range(U):
            rr = RK + i; base = NBs + i
            a(f"""s_mov_b64 exec, {MK[i]}
            s_cbranch_execz K2_SC_DONE
            v_cmpx_gt_u32 vcc, 64, v{rr}
            v_bfe_u32 v{t0+2}, v{rr}, 3, 1
            v_add_u32 v{t0+1}, 16, v{rr}
            v_lshl_or_b32 v{t0+2}, v{rr}, 1, v{t0+2}
            v_bfi_b32 v{t0+2}, 15, v{t0+2}, v{rr}
            v_lshrrev_b32 v{t0+1}, 6, v{t0+1}
            v_lshl_add_u32 v{t0+3}, v{t0+2}, 1, v{base}
            v_lshl_add_u32 v{t0+2}, v{t0+2}, 5, v{base}
            ds_write_b16 v{t0+3}, v{4*i}
            v_mad_i32_i24 v{t0+2}, v{t0+1}, s{sT}, v{t0+2}
            ds_write_b16_d16_hi v{t0+3}, v{4*i} offset:128
            ds_write_b16_d16_hi v{t0+3}, v{4*i+1} offset:256
            ds_write_b16 v{t0+3}, v{4*i+2} offset:{OS}
            ds_write_b32 v{t0+2}, v{4*i+3} offset:{OA}
            """)
        d = t0 + 1; k = t0 + 2; e = t0 + 3; p = t0 + 4; x = t0 + 5; pl = t0 + 6
        a(f'''
        K2_SC_DONE:
        s_mov_b64 exec, -1
        {self.padx('SD', 'KS_HOP')}
        v_lshlrev_b32 v{t0}, 2, v{vL}
        v_add_u32 v{t0}, {HIST}, v{t0}
        v_mov_b32 v{t0+8}, {FLAG}
        s_cmp_eq_u32 s{sRND}, 0
        s_cselect_b32 s{sLIM}, 64, 48
        {pstamp(8)}
        s_waitcnt lgkmcnt(0)
        {pstamp(9)}
        s_barrier
        {pstamp(10)}
        ds_read_b32 v{d}, v{t0}
        ds_read_b32 v{t0+8}, v{t0+8}
        v_cmp_gt_u32 s[{sEX}:{sEX+1}], s{sNC}, v{vL}
        v_mad_u32_u24 v{e}, v{vL}, s{sT+1}, v{t0+10}
        s_waitcnt lgkmcnt(0)
        v_cndmask_b32 v{d}, 0, v{d}, s[{sEX}:{sEX+1}]
        v_readfirstlane_b32 s{sMORE}, v{t0+8}
        v_cmp_lt_u32 s[{sT+4}:{sT+5}], 48, v{d}
        v_cmp_lt_u32 vcc, 64, v{d}
        s_bcnt1_i32_b64 s{sT+2}, s[{sT+4}:{sT+5}]
        v_mbcnt_lo_u32_b32 v{pl}, s{sT+4}, 0
        v_mbcnt_hi_u32_b32 v{pl}, s{sT+5}, v{pl}
        s_cbranch_vccnz K2_BIG
        s_cmp_gt_u32 s{sT+2}, {NPOOL}
        s_cbranch_scc1 K2_BIG
        K2_TOK:
        v_subrev_u32 v{k}, s{sT+9}, v{d}
        v_max_i32 v{k}, 1, v{k}
        v_min_i32 v{k}, s{sLIM}, v{k}
        v_add_u32 v{k}, 15, v{k}
        v_lshrrev_b32 v{k}, 3, v{k}
        v_lshl_or_b32 v{e}, v{k}, 18, v{e}
        v_lshl_or_b32 v{e}, v{pl}, 27, v{e}
        v_mov_b32 v{x}, {NULLBASE | (3 << 18)}
        v_cndmask_b32 v{VTAB}, v{x}, v{e}, s[{sEX}:{sEX+1}]
''')
        o = Asm(); b = a; a = o
        a(f'''
        K2_BIG:
        s_cmp_lg_u32 s{sRND}, 0
        s_cbranch_scc1 K2_TOK
        s_movk_i32 s{sLIM}, 48
        v_mov_b32 v{x}, v{d}
        ''')
        scan(a, x, 'v_max_u32')
        for dd in range(48, 512*U + 48): assert (dd * 43691) >> 21 == dd // 48
        a(f'''
        v_readlane_b32 s{sR}, v{x}, 63
        s_add_u32 s{sR}, s{sR}, 47
        s_mul_i32 s{sR}, s{sR}, 43691
        s_lshr_b32 s{sR}, s{sR}, 21
        ''')
        for i in range(U):
            a(f's_mov_b64 exec, {MK[i]}\ns_cbranch_execz K2_SV_DONE\nbuffer_store_dword v{RK+i}, ' + adr(i, vE, vEM, 8).format(f'{ws}, s{sT+8}'))
        a('K2_SV_DONE:\ns_mov_b64 exec, -1\ns_branch K2_TOK')
        self.ool(o.text()); a = b
        for q in range(4): a(f's_movk_i32 s{sOWN+q}, {q*256}')
        a(f'''
        s_add_u32 s{sRND}, s{sRND}, 1
        s_cmp_ge_u32 s{sRND}, s{sR}
        s_cselect_b32 s{sLAST}, 1, 0
        s_cmp_eq_u32 s{sMORE}, 0
        s_cselect_b32 s{sLAST}, s{sLAST}, 0
        s_mov_b32 s{sSPIN}, 0x400000
        s_mov_b32 s{sJ}, 0
        s_mov_b32 s{sNPH}, 0
        s_mov_b32 s{sNP}, 0
        s_mov_b32 s{sNV}, 1
        s_mov_b32 s{sCP}, 0
        s_mov_b32 s{sT}, s{sW}
        ''')
        lg = LG(a)
        self.emit(self.next_info(0), lg)
        stamp(a, 3)
        pre = self.eread()
        for t in range(4): pre += self.sread(t)
        pre += self.adma()
        for t in range(4): pre += self.gmad(t)
        for t in range(4): pre += self.dma(t, G + 2*t, sNX + t) + (['s_barrier'] if t == opt('fbar', -1) else [])
        pre += [f'v_add_u32 v{VAO}, s{sNBs}, v{VAO}', f'v_add_u32 v{VYO}, s{sNBs}, v{VYO}']
        pre += [pstamp(11), 's_waitcnt vmcnt(6)']
        self.emit(pre, lg)
        stamp(a, 4)
        self.emit(self.bread(0) + self.areads(0) + self.areads(1), lg)
        self.dispatch(0, check=False)
        self.helpers()
        for ph in range(2):
            for nK in (2, 3):
                a(self.pad(f'U{nK}{ph}', 'K2_HOP'))
                self.unit(nK, ph, nK == 3 and 3 in self.HALF[ph])
            if 3 in self.HALF[ph]: self.unit(3, ph)
            if 2 in self.HALF[ph]: self.unit(2, ph, True)
        hot = self.outline; self.outline = []
        a(self.pad('SW', 'K2_HOP'))
        for ph in range(2):
            a(f'K2_DSP{ph}:')
            for code in (4, 7): a(f's_cmp_eq_u32 s{sEX}, {code}\ns_cbranch_scc1 {self.target(code, ph)}')
            a(f's_cmp_gt_u32 s{sEX}, 7\ns_cbranch_scc1 K2_U4{ph}\ns_cmp_lg_u32 s{sEX}, 0\ns_cbranch_scc1 K2_U1{ph}' + ('\ns_branch K2_TAIL' if ph else '\ns_branch K2_SWITCH'))
        a('K2_SWITCH:')
        stamp(a, 5)
        fl = f'buffer_load_dwordx4 v[56:59], v60, {ws}, s{sT+6} offen sc1'
        a(f'v_lshlrev_b32 v60, 3, v{VL2}\ns_mov_b32 s{sT+6}, {WS_FLG}\n{fl}')
        self.emit(self.fin(3, 0, sPP if opt('dsp', 1) else None), LG(a))
        a(f'v_lshl_add_u32 v{VPA}, v{VL2}, 1, s{sNP}\nv_lshrrev_b32 v{VH16}, 6, v{VL2}\nv_mul_u32_u24 v{VH16}, 126, v{VH16}')
        WP = lambda p: WR + 16*p + 8
        self.wraw(VL2, VT0, W1L, WP)
        for q in range(4): a(f's_movk_i32 s{sOWN+q}, {q*256+128}')
        for p in range(5):
            a(f's_waitcnt lgkmcnt({min(15, 16 - 4*p)})')
            for x in self.wunp((p,), WP): a(x)
        a(f"""
        K2_FLGW:
        s_or_b32 s{sT}, s{sB}, s{sW}
        s_waitcnt vmcnt(0)
        v_xor_b32 v56, s{sTAG}, v56
        v_xor_b32 v57, s{sTAG}, v57
        v_xor_b32 v58, s{sTAG}, v58
        v_xor_b32 v59, s{sTAG}, v59
        v_or3_b32 v56, v56, v57, v58
        v_or_b32 v56, v56, v59
        v_cmp_ne_u32 vcc, 0, v56
        s_cbranch_vccnz K2_FLGR
        s_cmp_eq_u32 s{sT}, 0
        s_cbranch_scc1 K2_FLGY
        K2_FLGOK:
        s_cmp_eq_u32 s{sNV}, 0
        s_cbranch_scc1 K2_TAIL2
        """)
        self.ool(f"""
        K2_FLGR:
        s_sub_u32 s{sSPIN}, s{sSPIN}, 16
        s_cbranch_scc1 K2_END
        {fl}
        s_branch K2_FLGW
        K2_FLGY:
        v_mov_b32 v56, s{sTAG}
        v_mov_b32 v57, {WS_EPO}
        s_mov_b64 exec, 1
        buffer_store_dword v56, v57, {ws}, 0 offen sc1
        s_mov_b64 exec, -1
        s_branch K2_FLGOK
        """)
        if not FUSE: stamp(a, 6)
        self.dispatch(1, check=False)
        isunit = lambda t: t.startswith(('K2_dyn', 'K2_dum', 'K2_nul', 'K2_spin'))
        for t in hot:
            if isunit(t): a(t)
        a(self.pad('TL', 'K2_HOP'))
        self.tail()
        for t in hot:
            if not isunit(t): a(t)
        for ph in range(2):
            for nK in (1, 4): self.unit(nK, ph)
        for t in self.outline: a(t)
        a('K2_END:\ns_endpgm')
        return a.lines, 256

    def tail(self):
        a = self.a
        ws = f's[{sWS}:{sWS+3}]'
        vP0 = 222; vP1 = 223; vS = 226; vSP = 227; vRow = 228; vL16 = 229
        vQ0 = 232; vSt = 254; vS2 = 255; vS3 = 246; vQ0a = 247; vQ1a = 248; vRow2 = 249
        OP = 176
        pre = f"""v_lshlrev_b32 v{vL16}, 3, v{VL2}
            s_mul_i32 s{sT}, s{sW}, {20*1024}
            s_add_u32 s{sT}, s{sT}, {WS_STAB}
            s_mul_i32 s{sT+1}, s{sW}, {8192+32}"""
        PRE = opt('pre', 0)
        order = [4, 5, 6, 7, 14, 15, 16, 17, 18, 19, 0, 1, 2, 3, 8, 9, 10, 11, 12, 13] if PRE else list(range(20))
        sl = []; at = 0
        for f in order:
            mv = ''
            if f // 4 != at: mv = f's_add_u32 s{sT}, s{sT}, {(f//4 - at)*4096 & 0xffffffff}\n'; at = f // 4
            sl.append(mv + f'buffer_load_dwordx4 v[{WR+4*f}:{WR+4*f+3}], v{vL16}, {ws}, s{sT} offen offset:{(f%4)*1024} sc1')
        done = [f'v_mov_b32 v{VT0}, s{sPROGW}', f'v_mov_b32 v{VT1}, -1', f's_mov_b64 exec, 1\nds_write_b32 v{VT0}, v{VT1}\ns_mov_b64 exec, -1'] if PRE else []
        NE = opt('ne', 8)
        adr = [f'v_lshl_add_u32 v{vRow}, v{VL2}, 1, s{sT+1}', f'v_lshrrev_b32 v{vS}, 6, v{VL2}', f'v_mul_u32_u24 v{vS}, 126, v{vS}', f'v_sub_u32 v{vS}, v{vRow}, v{vS}']
        a('K2_TAIL2:\n' + pre)
        for x in sl[:NE] + adr: a(x)
        a('s_branch K2_TAIL3\nK2_TAIL:')
        stamp(a, 7)
        a(pre)
        f3 = self.fin(3, 1) + adr; w = []
        for i in range(NE): w += [sl[i]] + f3[2*i:2*i+2]
        self.emit(w + f3[2*NE:], LG(a))
        a('K2_TAIL3:')
        for x in done: a(x)
        a(f's_waitcnt vmcnt({NE})')
        dump = []
        for j in range(5):
            for k in range(5): dump.append(f'ds_write_b32 v{vRow}, v{P0+6*j+k} offset:{j*1536 + k*256}')
            dump.append(f'ds_write_b16 v{vS}, v{P0+6*j+5} offset:{j*1536 + 1280}')
        assert RECBASE % 256 == 0 and NSTR % 256 == 32
        calc = f"""
        v_bfe_u32 v48, v{VL2}, 1, 4             ; n & 15
        v_lshrrev_b32 v49, 5, v{VL2}            ; slab
        v_lshrrev_b32 v55, 3, v48
        v_lshlrev_b32 v52, 4, v49               ; slab*16
        v_lshl_add_u32 v54, v55, 2, v48
        v_and_b32 v54, 7, v54                   ; node of the last group in column n
        v_and_b32 v50, 7, v48
        v_mul_u32_u24 v50, {8192+32}, v50
        v_mul_u32_u24 v51, 1536, v55
        v_add_u32 v50, v50, v51                 ; slot of node n
        v_add_u32 v{vP0}, v50, v52
        v_mul_u32_u24 v51, {8192+32}, v54
        v_add_u32 v{vQ0}, v51, v52
        v_lshl_add_u32 v{vQ0a}, v55, 7, v{vQ0}
        v_mul_u32_u24 v51, {NSTR}, v48
        s_mov_b32 s{sT+2}, {RECBASE}
        v_add3_u32 v{vP1}, v51, v52, s{sT+2}
        v_mul_u32_u24 v51, {NSTR}, v54
        s_mov_b32 s{sT+2}, {RECBASE + 32*NSTR}
        v_add3_u32 v{vP1+2}, v51, v52, s{sT+2}
        v_lshl_add_u32 v{vQ1a}, v55, 7, v{vP1+2}
        s_lshl_b32 s{sT+2}, s{sW}, 5
        v_lshl_add_u32 v49, v49, 3, s{sT+2}
        s_mov_b32 s{sT+2}, {RECBASE}
        v_add3_u32 v{vS2}, v51, v49, s{sT+2}
        v_lshl_add_u32 v{vS3}, v55, 9, v{vS2}
        v_bfe_u32 v53, v48, 2, 1
        v_lshl_add_u32 v49, v53, 4, v49
        v_add_u32 v{vSt}, v50, v49
        s_and_b32 s{sT+6}, s{sLAST}, s{sFIRST}  ; plain single-round case
        """.strip().split('\n')
        rest = sl[NE:]; per = max(2, (len(dump) + len(rest) - 1) // max(1, len(rest)))
        while dump or rest:
            for x in dump[:per] + rest[:1] + calc[:2]: a(x)
            dump = dump[per:]; rest = rest[1:]; calc = calc[2:]
        for x in calc: a(x)
        if PRE: a(f'v_lshl_add_u32 v48, v{VL2}, 1, s{sPROG}\nds_read_b32 v49, v48\ns_mov_b32 s{sT+7}, {RECBASE + 32*NSTR}')
        a('s_waitcnt lgkmcnt(0)')
        late = f"""
        s_bfe_u32 s{sT+2}, s{sW}, 0x10002
        s_lshl_b32 s{sT+2}, s{sT+2}, 4
        s_add_u32 s{sT+1}, s{sT+1}, s{sT+2}
        v_add_u32 v{vRow}, s{sT+1}, v{vL16}
        s_mul_i32 s{sT+2}, s{sW}, {NSTR}
        s_add_u32 s{sT+2}, s{sT+2}, {RECBASE}
        v_add_u32 v{vRow2}, s{sT+2}, v{vL16}
        s_mov_b32 s{sT+5}, 0xbfb8aa3b           ; -log2(e)
        s_add_u32 s{sOWN}, s{sW}, s{sNB}
        s_lshl_b32 s{sOWN}, s{sOWN}, 10
        """.strip().split('\n') + [f's_add_u32 s{sOWN+j}, s{sOWN}, {j*8192}' for j in range(1, 5)]
        if PRE:
            a(f"""s_cmp_eq_u32 s{sT+6}, 0
            s_cbranch_scc1 K2_MULTI
            K2_PREW:
            v_cmp_gt_u32 vcc, s{sT+7}, v49
            s_setprio {opt('pp', 0)}
            s_and_b32 s{sT+8}, vcc_lo, 0xff
            s_cbranch_scc1 K2_PRES""")
            self.ool(f'K2_PRES:\ns_sub_u32 s{sSPIN}, s{sSPIN}, 1\ns_cbranch_scc1 K2_END\nds_read_b32 v49, v48\ns_waitcnt lgkmcnt(0)\ns_branch K2_PREW')
            stamp(a, 8)
        else:
            stamp(a, 8); a('s_barrier'); stamp(a, 9)
            a(f's_cmp_eq_u32 s{sT+6}, 0\ns_cbranch_scc1 K2_MULTI')
        part = {}
        for g in range(3):
            def ad(ph, row, hh, packed=False):
                o = self.SROW[row]*128 + hh*64
                if g < 2: return (vP1, g*16*NSTR + o) if ph else (vP0, g*3072 + o)
                return ((vQ1a if packed else vP1+2), o) if ph else ((vQ0a if packed else vQ0), 4*1536 + o)
            for ph in range(2):
                part[g, ph, 0] = [(16*g, ph*4 + rs*2 + hh) + ad(ph, rs, hh) for rs in range(2) for hh in range(2)]
                part[g, ph, 1] = [(16*g + 4 + 4*j, 8 + ph*6 + path*2 + hh) + ad(ph, 2 + 3*j + path, hh, j == 0) for path in range(3) for hh in range(2) for j in range(3 if g < 2 else 2)]
        seq = [(g, ph, o) for g in range(3) for o in range(2) for ph in range(2)]
        if PRE: seq = [(0,1,0), (1,1,0), (0,1,1), (1,1,1), (0,0,0), (1,0,0), (0,0,1), (1,0,1)] + seq[8:]
        GF = opt('gf', 1) and not PRE
        if GF: seq = [(g, ph, 0) for g in range(3) for ph in range(2)] + [(g, ph, 1) for g in range(3) for ph in range(2)]
        steps = [x for k in seq for x in part[k]]
        if GF and opt('il', 0): steps[:24] = [part[g, ph, 0][i] for ph in range(2) for i in range(4) for g in range(3)]
        for path in range(3): assert self.SROW[8 + path] == self.SROW[2 + path] + 1
        NB = 12; D = 10
        def epi(g, part=3):
            c = 16*g; o = OP + 8*(g & 1); s = []; tp = 204 + 4*g; o0 = 220 if g == 2 else o
            if part & 1:
                for r in range(4): s.append(f'v_mul_f32 v{tp+r}, s{sT+5}, v{c+r}')
                for r in range(4): s.append(f'v_exp_f32 v{tp+r}, v{tp+r}')
                for r in range(4): s.append(f'v_add_f32 v{tp+r}, 1.0, v{tp+r}')
                for r in range(4): s.append(f'v_rcp_f32 v{tp+r}, v{tp+r}')
                s += [f'v_cvt_pk_bf16_f32 v{o0}, v{c}, v{c+1}', f'v_cvt_pk_bf16_f32 v{o0+1}, v{c+2}, v{c+3}']
            if part & 2:
                for j in range(3 if g < 2 else 2):
                    for r in range(4): s.append(f'v_mul_f32 v{c+4+4*j+r}, v{c+4+4*j+r}, v{tp+r}')
                    s += [f'v_cvt_pk_bf16_f32 v{o+2+2*j}, v{c+4+4*j}, v{c+5+4*j}', f'v_cvt_pk_bf16_f32 v{o+3+2*j}, v{c+6+4*j}, v{c+7+4*j}']
            return s
        def stage(g, part=3):
            o = OP + 8*(g & 1)
            if g < 2: w = [(rt, vSt, g*3072) for rt in range(4)]
            else: w = [(0, vS2, 0), (1, vS3, 0), (2, vS2, 0)]
            src = lambda rt: 220 if (g, rt) == (2, 0) else o + 2*rt
            return [(f'ds_write_b64 v{r}, v[{src(rt)}:{src(rt)+1}] offset:{b + rt*256}', [(f'w{g}', False)]) for rt, r, b in w if part & (2 if rt else 1)]
        def rowread(g):
            if g == 2: return [(f'ds_read_b128 v[200:203], v{vRow2}', [('r2', False)])]
            return [(f'ds_read_b128 v[{192+4*(j&1)}:{195+4*(j&1)}], v{vRow} offset:{j*1536}', [(f'r{g}', False)]) for j in (2*g, 2*g+1)]
        def rowstore(g):
            s = [('wait', f'r{g}')]
            for j in ((2*g, 2*g+1) if g < 2 else (4,)):
                b = 192 + 4*(j & 1) if g < 2 else 200
                s += [f'buffer_store_dwordx4 v[{b}:{b+3}], v{vL16}, s[{sOUT}:{sOUT+3}], s{sOWN+j} offen {mod("outst","sc1")}']
            return s
        def gemm(lg, extra):
            def rd(k):
                c, f, r, o = steps[k]
                b = 48 + 4*(k % NB)
                self.emit([(f'ds_read_b128 v[{b}:{b+3}], v{r} offset:{o}', [(f'k{k}', False)])], lg)
            D0 = opt('d0', D); nxt = D0
            for k in range(D0): rd(k)
            seen = [-1]; started = set()
            for k in range(len(steps)):
                c, f, r, o = steps[k]
                for _ in range(2):
                    if nxt <= k + D and nxt < len(steps): rd(nxt); nxt += 1
                vm = None
                if order.index(f) > seen[0]: seen[0] = order.index(f); vm = 19 - seen[0]
                kk = min(k + 1, len(steps) - 1) if (opt('w2', 1) and k % 2 == 0) else k
                self.emit([('wait', f'k{kk}', vm)], lg)
                b = 48 + 4*(k % NB)
                cin = f'v[{c}:{c+3}]' if c in started else '0'; started.add(c)
                a(f'v_mfma_f32_16x16x32_bf16 v[{c}:{c+3}], v[{WR+4*f}:{WR+4*f+3}], v[{b}:{b+3}], {cin}')
                self.emit(extra.get(k, []), lg)
        lg = LG(a); extra = {}
        def spread(items, k0, k1):
            for i, x in enumerate(items): extra.setdefault(k0 + i*(k1 - k0 + 1)//len(items), []).append(x)
        spread(late, 2, 8)
        if self.padx('T2', 'K2_HOP'): extra.setdefault(opt('t2k', 41), []).append(self.padx('T2', 'K2_HOP'))
        b0 = opt('b0', 72 if PRE else 62 if GF else 46); e0 = opt('e0', 84 if PRE else 80 if GF else 64); b1 = opt('b1', 98 if GF else 90); r0 = opt('r0', 104 if GF else 98); e1 = opt('e1', 113 if GF else 108)
        bA = min(opt('bA', 33), 44 - D - 1)
        if PRE:
            extra.setdefault(bA, []).extend(([f's_memtime s[{76+2*9}:{77+2*9}]'] if 0 else []) + ['s_barrier'] + ([f'{"s_memtime" if opt("cyc", False) else "s_memrealtime"} s[94:95]'] if PROF else []))
            spread(epi(0, 1), 50, opt('g0', 60))
            spread(epi(1, 1), opt('g0', 60) + 1, opt('g1', 71))
            extra.setdefault(b0, []).append('s_barrier')
            spread(epi(0, 2), 72, e0)
            extra.setdefault(e0 + 1, []).extend(stage(0))
        elif GF:
            il = opt('il', 0); g0 = opt('g0', 36 if il else 26); g1 = opt('g1', 47 if il else 42)
            spread(epi(0, 1), 25 if il else 11, g0); spread(epi(1, 1), g0 + 1, g1); spread(epi(2, 1), g1 + 1, opt('g2', 58))
            extra.setdefault(b0, []).append('s_barrier')
            spread(epi(0, 2), 60 + 3, e0)
            extra.setdefault(e0 + 1, []).extend(stage(0) + stage(2, 1))
        else:
            spread(epi(0, 1), 12, 40)
            if not opt('nob0', 0): extra.setdefault(b0, []).append('s_barrier')
            spread(epi(0, 2), 44 + 3, e0)
            extra.setdefault(e0 + 1, []).extend(stage(0))
            spread(epi(1, 1), e0 + 2, 86)
        extra.setdefault(b1, []).extend([('wait', 'w2' if GF else 'w0')] + ([] if opt('nob1', 0) else ['s_barrier']) + rowread(0))
        spread(epi(1, 2), (96 if GF else 88) + 3, e1)
        extra.setdefault(r0, []).extend(rowstore(0))
        extra.setdefault(e1 + 1, []).extend(stage(1))
        if not GF:
            spread(epi(2, 1), max(e1 - 8, 100), 117)
            extra.setdefault(118, []).extend(stage(2, 1))
        if opt('gp', 1):
            for k0, k1 in ((bA if PRE else -1, b0), (b0, b1), (b1, len(steps))):
                fr = [float(x) for x in opt('gpf', '0.3_0.6_0.87').split('_')]
                if k0 >= 0: extra.setdefault(k0, []).append('s_setprio 3')
                for i, f in enumerate(fr): extra.setdefault(k0 + int((k1 - k0)*f), []).append(f's_setprio {2-i}')
            if not PRE: a('s_setprio 3')
        if PROFT:
            for i, k in enumerate((0, 23, 59, 81, 97, 113) if GF else (0, 8, 43, 66, 87, 104)): extra.setdefault(k, []).append(f'{"s_memtime" if opt("cyc", False) else "s_memrealtime"} s[{78+2*i}:{79+2*i}]')
        if opt('noepi', 0): extra = {k: [x for x in v if not (isinstance(x, str) and x.startswith(('v_cvt', 'v_exp', 'v_rcp', 'v_mul_f32', 'v_add_f32')[:opt('noepi', 0)]))] for k, v in extra.items()}
        gemm(lg, extra)
        stamp(a, 10)
        self.emit(epi(2, 2) + stage(2, 2) + [('wait', 'w2'), 's_barrier'] + rowread(1) + rowread(2) + rowstore(1), lg)
        a(f'K2_LASTROW:\ns_add_u32 s{sT+1}, s{sW}, 32\ns_cmp_ge_u32 s{sT+1}, s{sNC}\ns_cbranch_scc1 K2_FIN\ns_waitcnt lgkmcnt(0)')
        self.emit(rowstore(2), LG(a))
        a('K2_FIN:')
        if PROF:
            stamp(a, 11); a('s_waitcnt vmcnt(0)'); stamp(a, 12); stamp_out(a, 13, 1, sW, sB, sWS)
        a('s_endpgm')
        a('K2_MULTI:' + ('\ns_barrier' if PRE else ''))
        lg = LG(a)
        gemm(lg, {})
        a(f"""
        s_lshl_b32 s{sT+2}, s{sB}, 9
        s_lshl_b32 s{sT+3}, s{sW}, 6
        s_add_u32 s{sT+2}, s{sT+2}, s{sT+3}
        s_mul_i32 s{sT+2}, s{sT+2}, 192
        s_add_u32 s{sT+2}, s{sT+2}, {WS_ACC}
        v_mul_u32_u24 v{vSP}, 96, v{VL2}        ; lane*192
        s_cmp_lg_u32 s{sFIRST}, 0
        s_cbranch_scc1 K2_NOACC
        """)
        for i in range(11): a(f'buffer_load_dwordx4 v[{48+4*i}:{51+4*i}], v{vSP}, {ws}, s{sT+2} offen offset:{16*i}')
        a('s_waitcnt vmcnt(0)')
        for i in range(44): a(f'v_add_f32 v{i}, v{i}, v{48+i}')
        a(f'K2_NOACC:\ns_barrier\ns_cmp_eq_u32 s{sLAST}, 0\ns_cbranch_scc1 K2_SPILL')
        self.emit(late, lg)
        for g in range(2):
            self.emit(epi(g) + stage(g) + [('wait', f'w{g}'), 's_barrier'] + rowread(g) + rowstore(g), lg)
        self.emit(epi(2) + stage(2) + [('wait', 'w2'), 's_barrier'] + rowread(2), lg)
        a('s_branch K2_LASTROW\nK2_SPILL:')
        for i in range(11): a(f'buffer_store_dwordx4 v[{4*i}:{4*i+3}], v{vSP}, {ws}, s{sT+2} offen offset:{16*i}')
        a(f"""
        s_mov_b32 s{sFIRST}, 0
        s_waitcnt vmcnt(0)
        s_cmp_lt_u32 s{sRND}, s{sR}
        s_cbranch_scc1 K2_LOAD
        s_add_u32 s{sJ0}, s{sJ0}, {2*U}
        s_branch K2_WINDOW
        """)

HEADER = '''; Kernarg layout for this problem (96 bytes, ptrs only, base s[0:1]):
'''
def kd(name, vgpr):
    return f'''.amdhsa_kernel {name}
  .amdhsa_next_free_vgpr {vgpr}
  .amdhsa_next_free_sgpr {102}
  .amdhsa_accum_offset {(vgpr+3)//4*4}
  .amdhsa_group_segment_fixed_size 0
  .amdhsa_kernarg_size 96
  .amdhsa_user_sgpr_count 2
  .amdhsa_user_sgpr_kernarg_segment_ptr 1
  .amdhsa_system_sgpr_workgroup_id_x 1
  .amdhsa_float_denorm_mode_32 3
.end_amdhsa_kernel
'''
def main():
    ks = []
    l2, v2 = K2().gen(); ks.append((NAME + '_kernel', fix_hazards(l2), v2))
    s = HEADER
    s += f'; @launch grid=(256,1,1) block=(512,1,1) lds={K2_LDS}\n'
    s += '.amdgcn_target "amdgcn-amd-amdhsa--gfx950"\n.text\n'
    for name, l, v in ks:
        s += f'.globl {name}\n.p2align 8\n.type {name},@function\n{name}:\n'
        s += '\n'.join((x if x.endswith(':') else '    ' + x) for x in l) + '\n'
    s += '.section .rodata,"a"\n' + ''.join('.p2align 6\n' + kd(name, v) for name, l, v in ks)
    out = sys.argv[1] if len(sys.argv) > 1 else f'/code/{NAME}.s'
    open(out, 'w').write(s)
    print('wrote', out, len(s), 'bytes')
main()
```

```python
import sys, os
sys.path.insert(0, os.path.dirname(os.path.abspath(__file__)))
from asmlib import Asm, fix_hazards

NAME = 'standalone__tensor_product_equiv_equiformer__graph'
N = 10000; E = 320000
NCH = 250; CH = E // NCH
CSTR = CH * 16 + 128
TSTR = 1024 + 128
WS_REC = 0
WS_TBL = 0x0600000
WS_STAB = 0x06A0000
WS_WTAB = 0x06C8000
WS_FLG = 0x06D8000
WS_EPO = WS_FLG + 2048
WS_RANK = 0x0700000
WS_PROF = 0x0900000
WS_ACC = 0x0A00000
WS_SIZE = 0x2400000
assert NCH * CSTR <= WS_TBL and WS_TBL + NCH * TSTR <= WS_STAB and WS_ACC + 256*512*192 <= WS_SIZE
BMUL = 429497
for d in range(N): assert ((d * BMUL) & 0xffffffff) >> 24 == (d * 16) // 625

OPT = dict(a.split('=') for a in sys.argv[2:]) if len(sys.argv) > 2 else {}
def opt(k, d): return type(d)(OPT.get(k, d)) if not isinstance(d, bool) else bool(int(OPT.get(k, d)))
def mod(k, d): return opt(k, d).replace('_', ' ')

PROF = opt('prof', False)
FUSE = True
SEG = opt('seg', False)
def seg(i): return [f's_memtime s[{76+2*i}:{77+2*i}]'] if SEG else []
PROFS = opt('profs', False)
def sstamp(a, i):
    if PROFS: a(f's_memrealtime s[{76+2*i}:{77+2*i}]')
PROFT = opt('proft', False)

PROFP = opt('profp', False)
FL = opt('fl', 0)
def pstamp(i): return f's_memrealtime s[{76+2*i}:{77+2*i}]' if PROFP else ''
def stamp(a, i, t=False):
    if PROFP and i in (5, 7, 8, 9, 10, 11): return
    if opt('clk', 0):
        if i in (7, 8, 10): return
        if i in (4, 5, 9): a(f's_memtime s[{76+2*{4:7,5:8,9:10}[i]}:{77+2*{4:7,5:8,9:10}[i]}]')
    if PROFT and 1 <= i <= 6 and not t: return
    if PROFS and i in (1, 3, 5, 11, 12): return
    if PROF and not SEG: a(f'{"s_memtime" if opt("cyc", False) else "s_memrealtime"} s[{76+2*i}:{77+2*i}]')
def stamp_out(a, n, kern, swave, swg, srd_s):
    if not PROF: return
    if opt('dbgout', -1) >= 0:
        l = f'DBG_{kern}'
        a(f's_cmp_lg_u32 s{swg}, {opt("dbgout", -1)}\ns_cbranch_scc1 {l}\ns_cmp_lg_u32 s{swave}, 0\ns_cbranch_scc1 {l}')
        a(f's_load_dwordx2 s[58:59], s[0:1], 80\ns_waitcnt lgkmcnt(0)\ns_add_u32 s58, s58, {512*(1-kern)*opt("dbgk1", 0)}\ns_addc_u32 s59, s59, 0')
        srd(a, 60, 58, 256)
        a('s_mov_b64 exec, 1\nv_mov_b32 v1, 0')
        for i, o in ([(0, 0), (5, 14), (2, 15)] if kern == 0 else [(i, 1+i) for i in range(13)]):
            a(f'v_mov_b32 v2, s{76+2*i}\nbuffer_store_dword v2, v1, s[60:63], 0 offen offset:{4*o}')
        a(f's_mov_b64 exec, -1\n{l}:')
        return
    a('s_waitcnt lgkmcnt(0)')
    a(f's_lshl_b32 s67, s{swg}, 4\ns_add_u32 s67, s67, s{swave}\ns_lshl_b32 s67, s67, 6\ns_add_u32 s67, s67, {WS_PROF + kern*256*16*64}')
    a('s_mov_b64 exec, 1\nv_mov_b32 v1, 0')
    for i in range(n):
        a(f'v_mov_b32 v2, s{76+2*i if not SEG else 96+min(i,5)}\nbuffer_store_dword v2, v1, s[{srd_s}:{srd_s+3}], s67 offen offset:{4*i}')
    a('s_mov_b64 exec, -1')

def srd(a, s, ptr, nbytes):
    a(f's_mov_b32 s{s}, s{ptr}\ns_and_b32 s{s+1}, s{ptr+1}, 0xffff\ns_mov_b32 s{s+2}, {nbytes}\ns_mov_b32 s{s+3}, 0x20000')

def scan(a, v, op='v_add_u32'):
    for sh in (1, 2, 4, 8):
        a(f'{op}_dpp v{v}, v{v}, v{v} row_shr:{sh} row_mask:0xf bank_mask:0xf bound_ctrl:0')
    a(f'{op}_dpp v{v}, v{v}, v{v} row_bcast:15 row_mask:0xa bank_mask:0xf')
    a(f'{op}_dpp v{v}, v{v}, v{v} row_bcast:31 row_mask:0xc bank_mask:0xf')

K1_T = CH // 4
K1_LDS = 2048 + CH * 16
def weight_loads(a):
    a(f'''
    v_and_b32 v1, 15, v8
    v_lshrrev_b32 v3, 4, v8
    s_cmp_ge_u32 s2, 160
    s_cbranch_scc1 K1_WT
    s_cmp_ge_u32 s2, 64
    s_cbranch_scc1 K1_S1
    s_lshr_b32 s24, s2, 3
    s_and_b32 s25, s2, 7
    s_lshr_b32 s26, s25, 2
    s_bfe_u32 s27, s25, 0x10001
    s_and_b32 s28, s25, 1
    ''')
    srd(a, 60, 92, 256*128*2)
    a(f'''
    s_branch K1_SC
    K1_S1:
    ; S1: g2 = g-64; w = g2/12, f2 = g2%12 : ph = f2/6, path = (f2%6)>>1, hh = f2&1
    s_sub_u32 s29, s2, 64
    s_mul_i32 s24, s29, 43
    s_lshr_b32 s24, s24, 9
    s_mul_i32 s25, s24, 12
    s_sub_u32 s25, s29, s25
    s_cmp_ge_u32 s25, 6
    s_cselect_b32 s26, 1, 0
    s_mul_i32 s27, s26, 6
    s_sub_u32 s27, s25, s27
    s_lshr_b32 s27, s27, 1
    s_and_b32 s28, s25, 1
    s_add_u32 s25, s25, 8
    ''')
    for g2 in range(96): assert (g2*43) >> 9 == g2 // 12
    srd(a, 60, 94, 384*128*2)
    a(f'''
    K1_SC:
    s_lshl_b32 s27, s27, 7
    s_lshl_b32 s26, s26, 6
    s_lshl_b32 s28, s28, 4
    s_add_u32 s27, s27, s26
    s_add_u32 s27, s27, s28
    s_lshl_b32 s27, s27, 8
    s_lshl_b32 s26, s24, 5
    s_add_u32 s27, s27, s26
    s_add_u32 s29, s27, 8192
    v_lshlrev_b32 v3, 10, v3
    v_lshl_add_u32 v3, v1, 1, v3
    ''')
    for e in range(8): a(f'buffer_load_ushort v{64+e}, v3, s[60:63], s{29 if e & 1 else 27} offen offset:{(e >> 1)*256}')
    a(f'''
    s_mul_i32 s24, s24, 20
    s_add_u32 s24, s24, s25
    s_lshl_b32 s24, s24, 10
    s_add_u32 s24, s24, {WS_STAB}
    s_branch K1_GO
    K1_WT:
    s_sub_u32 s24, s2, 160
    s_lshr_b32 s27, s24, 1
    s_and_b32 s28, s24, 1
    s_lshl_b32 s27, s27, 8
    s_lshl_b32 s28, s28, 6
    s_add_u32 s27, s27, s28
    s_add_u32 s29, s27, {8*1280}
    ''')
    srd(a, 60, 90, 16*640*2)
    a(f'''
    v_and_b32 v1, 31, v8
    v_lshrrev_b32 v3, 5, v8
    v_mul_u32_u24 v3, {4*1280}, v3
    v_lshl_add_u32 v3, v1, 1, v3
    ''')
    for j in range(8): a(f'buffer_load_ushort v{64+j}, v3, s[60:63], s{29 if j >> 2 else 27} offen offset:{(j & 3)*1280}')
    a(f'''
    s_lshl_b32 s24, s24, 10
    s_add_u32 s24, s24, {WS_WTAB}
    ''')

def sort_rank(a, pad):
    for j in range(4):
        a(f'v_mul_u32_u24 v{28+j}, s58, v{12+j}\nv_lshrrev_b32 v{32+j}, 27, v{28+j}\nv_bfe_u32 v{36+j}, v{28+j}, 24, 3\nv_lshlrev_b32 v{32+j}, 2, v{32+j}')
        a(f'v_lshl_or_b32 v{32+j}, v{36+j}, 7, v{32+j}\nds_add_rtn_u32 v{36+j}, v{32+j}, v7')
    for j in range(4):
        a(f'v_lshrrev_b32 v{28+j}, 24, v{28+j}\nv_mad_u32_u24 v{28+j}, v{28+j}, s59, 15\nv_lshrrev_b32 v{28+j}, 4, v{28+j}\nv_sub_u32 v{28+j}, v{12+j}, v{28+j}')
        a(f'v_add_u32 v{12+j}, {32*j}, v3\nv_lshl_or_b32 v{28+j}, v{28+j}, 26, v{12+j}')
    a(f'''
    {pad}
    v_mov_b32 v59, {NONCE}
    s_mul_i32 s65, s2, {TSTR}
    s_add_u32 s65, s65, {WS_TBL}
    s_mul_i32 s64, s2, {CSTR}
    s_waitcnt lgkmcnt(0)
    s_barrier
    ''')
    sstamp(a, 11)
    a(f'''
    ds_read_b128 v[40:43], v9
    ds_read_b32 v59, v59
    s_waitcnt lgkmcnt(1)
    v_add_u32 v45, v40, v41
    v_add_u32 v46, v45, v42
    v_add_u32 v47, v46, v43
    v_mov_b32 v58, v47
    ''')
    scan(a, 58)
    a(f'''
    v_sub_u32 v48, v58, v47                 ; exclusive
    v_add_u32 v49, v48, v40
    v_add_u32 v50, v48, v45
    v_add_u32 v51, v48, v46
    ds_write_b128 v9, v[48:51] offset:1024
    s_waitcnt vmcnt(0) lgkmcnt(1)
    s_cmp_lg_u32 s{sW}, 4
    s_cbranch_scc1 KS_NOPUB
    v_lshl_or_b32 v56, v49, 11, v48
    v_lshl_or_b32 v57, v51, 11, v50
    v_lshl_or_b32 v56, v59, 22, v56
    v_lshl_or_b32 v57, v59, 22, v57
    buffer_store_dwordx4 v[56:59], v9, s[{sWS}:{sWS+3}], s65 offen {mod('tabst', 'sc1')}
    KS_NOPUB:
''')
    sstamp(a, 12)

def sort_emit(a, st):
    a('v_and_b32 v60, 0xffff, v59\nv_and_b32 v61, 0xffff0000, v59\ns_mov_b32 s58, 0xffff0000')
    for j in range(4):
        b = 20 + 3*(j >> 1)
        if j & 1: a(f'v_alignbit_b32 v{40+4*j}, v{b+2}, v{b+1}, 16\nv_and_or_b32 v{41+4*j}, v{b+2}, s58, v60')
        else: a(f'v_mov_b32 v{40+4*j}, v{b}\nv_lshl_or_b32 v{41+4*j}, v{b+1}, 16, v60')
        a(f'v_or_b32 v{42+4*j}, v61, v{16+j}\nv_mov_b32 v{43+4*j}, v{28+j}')
    a('s_waitcnt lgkmcnt(0)')
    for j in range(4):
        a(f'v_add_lshl_u32 v{32+j}, v{32+j}, v{36+j}, 4\nds_write_b128 v{32+j}, v[{40+4*j}:{43+4*j}] offset:2048')
    a(f's_waitcnt lgkmcnt(0)\ns_barrier')
    for i in range(4): a(f'ds_read_b128 v[{12+4*i}:{15+4*i}], v5 offset:{2048 + i*K1_T*16}')
    for i in range(4):
        a(f's_waitcnt lgkmcnt({3-i})')
        a(f'buffer_store_dwordx4 v[{12+4*i}:{15+4*i}], v5, s[8:11], s64 offen {st}')
        if i < 3: a(f's_add_u32 s64, s64, {K1_T*16}')

NSTR = 2080
OA = 512
E4 = 48*32 - 4
RECBASE = 65536
NPOOL = 8
W1L = RECBASE + 40 * NSTR + NPOOL*512
MISC = W1L + 10240
HIST = MISC; PROG = MISC + 192; CNT = MISC + 224; FLAG = MISC + 228; SCR = MISC + 240; NULLSRC = MISC + 256; NONCE = MISC + 384
NULLBASE = NULLSRC
K2_LDS = 163840
assert NONCE + 4 <= K2_LDS
U = 10
ACC = 0; AR = 64; WR = 96; BR = 176; P0 = 192; G = 222
VEO = 230; VH16 = 231; T2 = 232; T3 = 233; PW = 234
VB0 = 246; VB1 = 247; VLG = 248; VAO = 249; VYO = 250; VSO = 251; VL2 = 252; VTAB = 253; VT0 = 254; VT1 = 255; VPA = VEO
sX = 4; sWS = 8; sOUT = 12; sEA = 16
sW = 20; sNB = 21; sNC = 22; sJ0 = 23; sRND = 24; sR = 25; sLIM = 26; sMORE = 27; sFIRST = 28
sCB = 29; sC4 = 30; sCP = 31; sNBs = 48; sNK = 33; sNPH = 34; sNP = 35; sNV = 36
sRING = 37; sJ = 38; s1024 = 39; sOWN = 40; sNX = 44; sSO = 48; sPROGW = 52; sPROG = 53; sB = 54; sLAST = 55
sEX = 56
sT = 58
sM0 = 68
sX2 = 72
sPP = 32
sN4 = 3
sTAG = 2
sSPIN = 27

TILES = {0: [(0,0), (1,0), (0,1), (1,1)], 1: [(0,0), (0,1), (1,1), (1,0)], 2: [(0,0), (1,0), (1,1), (0,1)], 3: [(0,0), (0,1), (1,0), (1,1)]}[opt('tord', 0)]
def tile(t, u): return ACC + 16 * TILES.index((t, u))
def Wreg(p, u): return WR + p*16 + u*8

def weave(x, y):
    o = []
    for i in range(max(len(x), len(y))):
        o += x[i:i+1] + y[i:i+1]
    return o

class LG:
    def __init__(self, a, q=()): self.a = a; self.q = list(q)
    def issue(self, tag, optional=False): self.q.append((tag, optional))
    def waitline(self, tag):
        idx = [i for i, (t, o) in enumerate(self.q) if t == tag]
        if not idx: return None
        y = sum(1 for (t, o) in self.q[idx[-1]+1:] if not o)
        self.q = self.q[idx[-1]+1:]
        return f's_waitcnt lgkmcnt({min(y, 15)})'

class K2:
    def __init__(self):
        self.a = Asm()
        self.uid = 0
        self.outline = []
    def lab(self, s):
        self.uid += 1
        return f'K2_{s}_{self.uid}'

    def dma(self, slot, greg, soff):
        return [f's_mov_b32 m0, s{sM0+slot}',
                f'buffer_load_dwordx4 v{greg}, s[{sX}:{sX+3}], s{soff} offen {mod("xld", "sc1")} lds',
                f'buffer_load_dwordx4 v{greg+1}, s[{sX2}:{sX2+3}], s{soff} offen offset:1024 {mod("xld", "sc1")} lds']
    def bread(self, item, half=False):
        return [(f'ds_read_b64_tr_b16 v[{BR + (item & 1)*8 + u*4 + r*2}:{BR + (item & 1)*8 + u*4 + r*2 + 1}], v{VB0+u} offset:{(item & 3)*2048 + r*1024}', [('B', False)])
                for u in range(2) for r in range(1 if half else 2)]
    def sread(self, t):
        return [f'v_add_u32 v{G+2*t}, s{sSO+t}, v{VSO}', (f'ds_read2_b32 v[{G+2*t}:{G+2*t+1}], v{G+2*t} offset0:1 offset1:3', [(f'S{t}', False)])]
    def gmad(self, t):
        return [('wait', f'S{t}')] + [f'v_mad_u32_u16 v{G+2*t+r}, v{G+2*t+r}, s{s1024}, v{VLG} op_sel:[1,0,0,0]' for r in range(2)]
    def ool(self, text): self.outline.append(text)
    def atomic(self):
        return [f'v_mov_b32 v{VT0}, {CNT}', f'v_mov_b32 v{VT1}, 1', f'v_lshl_add_u32 v{T3}, v{VL2}, 1, s{sPROG}',
                (f's_mov_b64 exec, 1\nds_add_rtn_u32 v{T2}, v{VT0}, v{VT1}\ns_mov_b64 exec, -1', [('C', False)]),
                (f'ds_read_b32 v{T3}, v{T3}', [('C', False)])]
    def claimed(self):
        nul = self.lab('nul'); spin = self.lab('spin'); chk = self.lab('chk'); back = self.lab('back')
        self.ool(f'{nul}:\ns_mov_b32 s{sT}, 63\ns_mov_b32 s{sNV}, 0\ns_branch {back}')
        self.ool(f'{spin}:\ns_sub_u32 s{sSPIN}, s{sSPIN}, 1\ns_cbranch_scc1 K2_END\nv_lshl_add_u32 v{T3}, v{VL2}, 1, s{sPROG}\nds_read_b32 v{T3}, v{T3}\ns_waitcnt lgkmcnt(0)\ns_branch {chk}')
        return [f'v_readfirstlane_b32 s{sT}, v{T2}',
                f"""s_cmp_lt_u32 s{sT}, s{sNC}
                s_cbranch_scc0 {nul}
                s_and_b32 s{sT+1}, s{sT}, 7
                s_lshr_b32 s{sT+2}, s{sT}, 3
                {chk}:
                v_readlane_b32 s{sT+3}, v{T3}, s{sT+1}
                s_nop 0
                s_cmp_gt_u32 s{sT+3}, s{sT+2}
                s_cbranch_scc0 {spin}
                {back}:"""]
    def claim0(self):
        dyn = self.lab('dyn'); back = self.lab('back')
        o = [x if isinstance(x, str) else x[0] for x in self.atomic()] + ['s_waitcnt lgkmcnt(0)'] + self.claimed()
        self.ool(f'{dyn}:\n' + '\n'.join(o) + f'\ns_mov_b32 s{sNPH}, 1\ns_branch {back}')
        return [f's_add_u32 s{sJ}, s{sJ}, 1', f'v_mov_b32 v{VT0}, s{sPROGW}', f'v_mov_b32 v{VT1}, s{sJ}',
                f's_lshl_b32 s{sT}, s{sJ}, 3', f's_add_u32 s{sT}, s{sT}, s{sW}',
                (f's_mov_b64 exec, 1\nds_write_b32 v{VT0}, v{VT1}\ns_mov_b64 exec, -1', [('W', False)]),
                f's_cmp_lt_u32 s{sT}, s{sNC}\ns_cbranch_scc0 {dyn}\n{back}:']
    def pooladdr(self, d, word):
        return f"""s_lshr_b32 s{d}, s{word}, 27
            s_mul_i32 s{sT+8}, s{sNC}, {NSTR}
            s_lshl_b32 s{d}, s{d}, 9
            s_add_u32 s{d}, s{d}, s{sT+8}
            s_add_u32 s{d}, s{d}, {RECBASE}"""
    def next_info(self, ph):
        rare = self.lab('rare'); back = self.lab('back'); four = self.lab('four')
        self.ool(f"""{rare}:
            s_cmp_eq_u32 s{sNK}, 4
            s_cbranch_scc1 {four}
            s_mov_b32 s{sSO+1}, s{sNBs}
            s_mov_b32 s{sSO+3}, s{sNBs}
            s_xor_b32 s{sNX+1}, s{sNX}, {256 + 128*((FL ^ FL >> 1) & 1)}
            s_xor_b32 s{sNX+2}, s{sNX}, {512 + 128*((FL ^ FL >> 2) & 1)}
            s_xor_b32 s{sNX+3}, s{sNX}, {768 + 128*((FL ^ FL >> 3) & 1)}
            s_branch {back}
            {four}:
            s_add_u32 s{sSO+2}, s{sNBs}, 256
            s_add_u32 s{sSO+3}, s{sNBs}, 384
            s_mov_b32 s{sNX+2}, s{sNX}
            s_mov_b32 s{sNX+3}, s{sNX}
            s_branch {back}""")
        o = [f'v_readlane_b32 s{sN4}, v{VTAB}, s{sT}', f's_lshl_b32 s{sNX}, s{sNPH}, 7' + (f'\ns_xor_b32 s{sNX}, s{sNX}, 128' if FL & 1 else ''),
             f's_and_b32 s{sNBs}, s{sN4}, 0x3ffff', f's_bfe_u32 s{sNK}, s{sN4}, 0x30013']
        if ph == 1: o += [f's_mov_b32 s{sNP}, s{sNBs}']
        else: o += [f's_mul_i32 s{sNP}, s{sJ}, 6', f's_cmp_eq_u32 s{sNPH}, 0\ns_cselect_b32 s{sNP}, s{sNP}, s{sNBs}']
        o += [f's_mov_b32 s{sNX+1}, s{sNX}', f's_xor_b32 s{sNX+3}, s{sNX}, {256 + 128*((FL ^ FL >> 1) & 1)}', f's_add_u32 s{sSO+1}, s{sNBs}, 128', f's_add_u32 s{sT+2}, s{sNBs}, 256',
              f's_cmp_eq_u32 s{sNK}, 3\ns_cselect_b32 s{sNX+2}, s{sNX}, s{sNX+3}\ns_cselect_b32 s{sSO+2}, s{sT+2}, s{sNBs}\ns_cselect_b32 s{sSO+3}, s{sNBs}, s{sSO+1}',
              f's_sub_u32 s{sT+2}, s{sNK}, 2\ns_cmp_lt_u32 s{sT+2}, 2\ns_cbranch_scc0 {rare}\n{back}:']
        return o
    def eread(self):
        return [f'v_add_u32 v{T3}, s{sNBs}, v{VEO}',
                (f'ds_read_b32 v{T2}, v{T3}', [('E', False)]), (f'ds_read_b32 v{T3}, v{T3} offset:1024', [('E', False)])]
    NEXTRA = 2
    def adma(self):
        dum = self.lab('dum'); four = self.lab('a4'); back = self.lab('back'); b4 = self.lab('b4')
        ea = f's[{sEA}:{sEA+3}]'; m = mod('eald', '')
        self.ool(f'{dum}:\nv_mov_b32 v{T2}, -1\ns_mov_b32 m0, {SCR}\ns_mov_b64 exec, 1\n' + f'buffer_load_dwordx4 v{T2}, {ea}, 0 offen lds\n'*2 + f's_mov_b64 exec, -1\ns_branch {back}')
        self.ool(f"""{four}:
            v_add_u32 v{VT0}, s{sNBs}, v{VEO}
            ds_read_b32 v{VT0}, v{VT0} offset:4
            {self.pooladdr(sT+7, sN4)}
            s_mov_b32 m0, s{sT+7}
            s_mov_b32 exec_hi, 0
            s_waitcnt lgkmcnt(0)
            v_or_b32 v{VT0}, v{VT0}, v{VH16}
            buffer_load_dwordx4 v{VT0}, {ea}, 0 offen {m} lds
            s_mov_b32 exec_hi, -1
            s_branch {b4}""")
        return [('wait', 'E'), f'v_or_b32 v{T2}, v{T2}, v{VH16}', f'v_or_b32 v{T3}, v{T3}, v{VH16}', f"""
        s_cmp_lg_u32 s{sNPH}, 0
        s_cbranch_scc1 {dum}
        s_cmp_eq_u32 s{sNK}, 4
        s_cbranch_scc1 {four}
        {b4}:
        s_add_u32 m0, s{sNBs}, {OA}
        s_add_u32 s{sT+7}, s{sNBs}, {OA+1024}
        buffer_load_dwordx4 v{T2}, {ea}, 0 offen {m} lds
        s_mov_b32 m0, s{sT+7}
        s_mov_b32 exec_hi, 0
        buffer_load_dwordx4 v{T3}, {ea}, 0 offen {m} lds
        s_mov_b32 exec_hi, -1
        {back}:"""]
    def areads(self, s, half=False):
        va, vy, oa, oy, o = VAO, VYO, s*512, s*128, []
        if s == 3:
            va, oa = ACC + 56, 0
            o = [self.pooladdr(sT+7, sC4) + f'\ns_sub_u32 s{sT+7}, s{sT+7}, s{sCB}\ns_sub_u32 s{sT+7}, s{sT+7}, {OA}\nv_add_u32 v{va}, s{sT+7}, v{VAO}']
        o += [(f'ds_read_b64_tr_b16 v[{ACC+4*s+2*r}:{ACC+4*s+2*r+1}], v{va} offset:{oa + 32*r}', [(f'a{s}', False)]) for r in range(1 if half else 2)]
        return o + [(f'ds_read_u16_d16_hi v{ACC+16+s}, v{vy} offset:{oy}', [(f'y{s}', False)])]
    def abuild(self, nK, half=False):
        o = []
        for s in range(2, nK): o += self.areads(s, half and s == nK - 1)
        for s in range(nK):
            b = ACC + 4*s; un = ACC + 20 + (s & 1)*8; m = 2 if (half and s == nK - 1) else 4
            o.append(('wait', f'y{s}' if (s or nK == 1 or not opt('ymw', 1)) else 'y1'))
            for i in range(m): o += [f'v_lshlrev_b32 v{un+2*i}, 16, v{b+i}', f'v_and_b32 v{un+1+2*i}, 0xffff0000, v{b+i}']
            for t in (1, 0):
                d = ACC + 36 if t else un
                for e in range(2*m): o.append(f'v_mul_f32_dpp v{d+e}, v{ACC+16+s}, v{un+e} row_newbcast:{8*t+e} row_mask:{"0xf" if t else "0xa"} bank_mask:0xf')
                for i in range(m): o.append(f'v_cvt_pk_bf16_f32 v{AR+s*8+t*4+i}, v{d+2*i}, v{d+1+2*i}')
        return o
    R = dict(A=PW, B=PW+2, C=PW+4, D=PW+6, E=PW+8, F=PW+10)
    CH_ = {0: [(0,'A','new'),(2,'B','new'),(2,'C','new'),(2,'D','new')],
           1: [(3,'A','new'),(1,'B','new'),(4,'C','new'),(4,'D','new')],
           2: [(3,'E','new'),(4,'C','neg'),(1,'B','acc'),(4,'F','new')],
           3: [(3,'E','new'),(4,'D','neg'),(4,'F','neg'),(1,'B','acc')]}
    def F(self, q, k):
        t, u = TILES[k]; o = []
        for r in range(8):
            for b in (2*t, 2*t+1):
                p, d, mode = self.CH_[q][b]
                T = tile(t, u) + (b & 1)*8 + r; W = Wreg(p, u) + r; D = self.R[d] + u
                if r == 0 and mode == 'new': o.append(f'v_mul_f32 v{D}, v{T}, v{W}')
                elif r == 0 and mode == 'neg': o.append(f'v_fma_f32 v{D}, v{T}, v{W}, -v{D}')
                else: o.append(f'v_fmac_f32 v{D}, v{T}, v{W}')
        return o
    SROW = {0: 0, 2: 1, 8: 2, 5: 3, 6: 4, 3: 5, 9: 6, 1: 7, 4: 8, 10: 9, 7: 10}
    def fin(self, q, ph, sp=None):
        sp = sCP if sp is None else sp
        R = self.R
        pairs = {0: [(0, 'A', 'B'), (1, 'D', 'C')], 1: [], 2: [(2, 'E', 'A')], 3: [(3, 'E', 'B'), (4, 'F', 'C')]}[q]
        o = []
        for (slot, x, y) in pairs: o += [f'v_permlane32_swap_b32 v{R[x]+u}, v{R[y]+u}' for u in range(2)]
        if q == 3: o.append(f'v_permlane32_swap_b32 v{R["D"]}, v{R["D"]+1}')
        if ph == 1 and q == 0: o.append(f'v_lshl_add_u32 v{VPA}, v{VL2}, 1, s{sCP}')
        for (slot, x, y) in pairs: o += [f'v_add_f32 v{R[x]+u}, v{R[x]+u}, v{R[y]+u}' for u in range(2)]
        cv = [(slot, R[x], R[x]+1) for (slot, x, y) in pairs]
        if q == 3:
            o.append(f'v_add_f32 v{R["D"]}, -v{R["D"]}, -v{R["D"]+1}')
            cv.append((5, R['D'], R['D']))
        if cv and ph == 0:
            o.append(f's_set_gpr_idx_on s{sp}, gpr_idx(DST)\n' + ''.join(f'v_cvt_pk_bf16_f32 v{P0+slot}, v{lo}, v{hi}\n' for (slot, lo, hi) in cv) + 's_set_gpr_idx_off')
        elif cv:
            if q == 3: o.append(f'v_sub_u32 v{R["D"]+1}, v{VPA}, v{VH16}')
            for (slot, lo, hi) in cv: o.append(f'v_cvt_pk_bf16_f32 v{lo}, v{lo}, v{hi}')
            for (slot, lo, hi) in cv:
                o.append((f'ds_write_b32 v{VPA}, v{lo} offset:{slot*256}' if slot < 5 else f'ds_write_b16 v{R["D"]+1}, v{lo} offset:1280', [('P', False)]))
        return o
    def drop(self, line):
        x = opt('drop', '')
        if not x or not getattr(self, 'inunit', False) or '\n' in line.strip(): return False
        l = line.strip()
        if 'D' in x and l.startswith('buffer_load') and (f's[{sX}:' in l or f's[{sX2}:' in l): return True
        if 'P' in x and l.startswith('ds_write_b16'): return True
        if 'S' in x and l.startswith('v_permlane'): return True
        if 'C' in x and l.startswith('v_cvt_pk'): return True
        if 'B' in x and l.startswith('ds_read_b64_tr') and (f'v{VB0} ' in l or f'v{VB1} ' in l): return True
        if 'F' in x and l.startswith('v_fmac'): return True
        if 'A' in x and l.startswith(('v_lshlrev_b32','v_and_b32','v_cvt_pk')): return True
        if 'A' in x and l.startswith('v_mul_f32') and int(l.split()[1][1:-1]) < 64: return True
        if 'Y' in x and l.startswith(('ds_read_b128',)): return True
        if 'U' in x and l.startswith(('v_lshlrev_b32','v_and_b32')): return True
        if 'N' in x and l.startswith(('v_and_b32')): return True
        return False
    def emit(self, items, lg):
        for it in items:
            if isinstance(it, tuple) and it[0] == 'V':
                if not self.drop(it[1]): self.a(it[1])
                self.vq += [it[2]] * it[3]; continue
            if isinstance(it, tuple) and it[0] == 'wait' and len(it) > 2 and isinstance(it[2], str):
                idx = [k for k, t in enumerate(self.vq) if t == it[2]]
                if idx: cnt = len(self.vq) - 1 - idx[-1]; self.vq = self.vq[idx[-1]+1:]
                it = ('wait', it[1], cnt if idx else None)
            if isinstance(it, str):
                if not self.drop(it): self.a(it)
            elif it[0] != 'wait' and self.drop(it[0]):
                for t, o in it[1]: lg.issue(t, o)
            elif it[0] == 'wait':
                w = lg.waitline(it[1]); lw = w[len('s_waitcnt'):] if w else ''
                if len(it) > 2 and it[2] is not None: w = f's_waitcnt vmcnt({it[2]})' + lw
                if w: self.a(w)
            else:
                self.a(it[0])
                for t, o in it[1]: lg.issue(t, o)
    ENTRY = [('B', False)]*4 + [('a0', False)]*2 + [('y0', False)] + [('a1', False)]*2 + [('y1', False)]
    @staticmethod
    def cost(it):
        if isinstance(it, tuple):
            if it[0] == 'wait': return 1
            it = it[1] if it[0] == 'V' else it[0]
        return sum((2 if 'permlane' in l else 1) for l in it.strip().split('\n') if not l.strip().endswith(':'))
    def unit(self, nK, ph, half=False):
        a = self.a
        lg = LG(a, self.ENTRY)
        a(f'K2_U{nK}{"h" if half else ""}{ph}:')
        self.inunit = True
        n = 4 * nK
        BUD = opt('bud', 7)
        pre = seg(0)
        claim = (self.claim0() if ph == 0 else self.atomic())
        after = ([] if ph == 0 else [('wait', 'C')] + self.claimed()) + self.next_info(ph)
        if nK == 1: pre += claim
        pre += self.abuild(nK, half)
        if nK == 1:
            pre += after + (self.eread() if ph == 0 else [])
            for t in range(4): pre += self.sread(t)
            if ph == 0: pre += self.adma()
            for t in range(4): pre += self.gmad(t)
        x = -1 if nK == 1 else 2
        gaps = [[] for _ in range(4*n)]; tailg = [[] for _ in range(4*n)]
        hb = lambda j: half and j < n and j % nK == nK - 1
        hs = lambda j: hb(j) and j >= 4
        vmn = lambda i: 4 - hs(i+2) - hs(i+3) + (self.NEXTRA if (ph == 0 and x < i <= x + 3) else 0)
        for i in range(n):
            d = self.dma(i & 3, G + 2*((i+4) % nK), sOWN + (i+4)//nK) if i + 4 < n else self.dma(i & 3, G + 2*(i+4-n), sNX + (i+4-n))
            gaps[4*i] += self.bread(i + 1, hb(i + 1)); tailg[4*i] += [d[0]]; gaps[4*i+1] += [d[1]] + ([] if hs(i+4) else [d[2]])
            if i + 1 < n: tailg[4*i+3] += [('wait', 'B', vmn(i+1))]
        if ph == 1 and opt('es', 0):
            es = self.lab('es'); back = self.lab('back')
            self.ool(f'{es}:\n' + self.spre(VT0) + '\n' + '\n'.join(self.sload(VT0)[:8]) + f'\ns_branch {back}')
            gaps[4*(n - opt('esp', 4)) if nK > 1 else 4*2] += [f's_cmp_eq_u32 s{sNV}, 0\ns_cbranch_scc1 {es}\n{back}:']
        used = lambda g: sum(map(self.cost, gaps[g] + tailg[g]))
        def place(items, g0, g1):
            g = g0
            for it in items:
                while g < g1 and used(g) + self.cost(it) > BUD and used(g) > 1: g += 1
                gaps[g].append(it)
            return g
        DEF = opt('defer', True) and nK > 1
        if nK > 1:
            for t in range(4):
                place(self.sread(t), 4*(n-6+t) + 2, 4*(n-6+t) + 3)
                place(self.gmad(t), 4*(n-5+t) + 1, 4*(n-5+t) + 3)
        ndef = [0]*4
        for q in range(1, 4):
            g0 = 4*q*nK
            if DEF:
                f3 = self.F(q-1, 3)
                room = [max(0, BUD - used(g0 + k)) for k in range(3)]
                m = min(16, sum(room)); ndef[q-1] = m
                f3 = f3[16-m:]
                for k in range(3):
                    gaps[g0 + k] += f3[:room[k]]; f3 = f3[room[k]:]
            place(self.fin(q-1, ph), g0 + (3 if DEF else 1), 4*(q*nK + nK - 1) + (1 if nK > 1 else 3))
        PRE = opt('pre', 0)
        pub = [f'v_mov_b32 v{VT0}, s{sPROGW}', f'v_mov_b32 v{VT1}, s{sCB}',
               (f's_mov_b64 exec, 1\nds_write_b32 v{VT0}, v{VT1}\ns_mov_b64 exec, -1', [('P', False)])] if (PRE and ph == 1) else []
        gf = place(self.fin(3, ph, sPP), 1, 4*(nK - 1) + (1 if nK > 1 else 3))
        if nK == 1: gaps[gf] += pub
        if nK > 1:
            if ph == 0:
                g = place(claim + after, 1, 5)
                place(self.eread(), max(g, 5), 7)
                place(self.adma(), 4*x + 3, 4*x + 3)
            else:
                place(claim, 1, 3)
                g1 = 4*(n-6) + 2
                keep = gaps[g1]; k0 = [i for i, it in enumerate(keep) if isinstance(it, str) and f'v{VSO}' in it]
                moved = keep[k0[0]:] if k0 else []
                if k0: gaps[g1] = keep[:k0[0]]
                place(after, 5, g1)
                gaps[g1] += moved
                place(pub, max(gf, opt('pubg', 6)), 4*(n-2))
        if True:
            upd = [f's_sub_u32 s{sLIM}, s{sNBs}, s{sCB}', f's_mov_b32 s{sCB}, s{sNBs}', f's_mov_b32 s{sC4}, s{sN4}',
                   (f's_cmp_eq_u32 s{sNPH}, 0' if ph == 0 else f's_cmp_lg_u32 s{sNV}, 0') + f'\ns_cselect_b32 s{sEX}, s{sEX}, 0']
            upd.insert(3, f's_bfe_u32 s{sEX}, s{sN4}, 0x40012')
            place(upd, 4*(n-2) + 1, 4*(n-1) + 1)
            gl = max([g for g in range(4*n) if any(('gpr_idx' in (it if isinstance(it, str) else it[0])) or (f's{sCP}' in (it if isinstance(it, str) else it[0])) for it in gaps[g])] + [4*(n-2)])
            place([f's_mov_b32 s{sPP}, s{sCP}', f's_mov_b32 s{sCP}, s{sNP}'], gl, max(gl, 4*(n-1) + 2))
        nf0 = [0]*4
        if nK > 1:
            for q in range(4):
                g = 4*(q*nK + nK - 1) + 2
                nf0[q] = max(0, BUD - used(g))
                gaps[g] += self.F(q, 0)[:nf0[q]]
        pb = opt('pb', 1) if (PRE and ph == 1) else 0
        self.emit([f's_setprio {opt("prioa", 1) + pb}'] + pre + seg(1) + [('wait', 'B', vmn(0))] + ([f's_setprio {opt("prio", 1) + pb}'] if opt("prio", 1) != opt("prioa", 1) else []), lg)
        for i in range(n):
            q, s = divmod(i, nK)
            for k, (t, u) in enumerate(TILES):
                c = f'v[{tile(t,u)}:{tile(t,u)+15}]' if s else '0'
                bb = BR + (i & 1)*8 + u*4
                w = 1 if hb(i) else 3
                if 'M' not in opt('drop', ''): a(f'v_mfma_f32_32x32x{8 if hb(i) else 16}_bf16 v[{tile(t,u)}:{tile(t,u)+15}], v[{AR+s*8+t*4}:{AR+s*8+t*4+w}], v[{bb}:{bb+w}], {c}')
                g = 4*i + k
                if k == 3 and s == nK - 1:
                    self.emit([f's_setprio {opt("prio0", 0) + pb}'] + gaps[g] + seg(2+2*q) + self.F(q, 0)[nf0[q]:], lg)
                    if q < 3:
                        fb = self.F(q, 1) + self.F(q, 2) + self.F(q, 3)[:16-ndef[q]]
                        self.emit(fb + seg(3+2*q) + [f's_setprio {opt("prio", 1) + pb}'], lg)
                else: self.emit(gaps[g], lg)
                self.emit(tailg[g], lg)
        end = [f's_sub_u32 s{sT}, s{sNBs}, s{sCB}', f'v_add_u32 v{VAO}, s{sT}, v{VAO}', f'v_add_u32 v{VYO}, s{sT}, v{VYO}']
        if opt('dsp', 1): end = [f'v_add_u32 v{VAO}, s{sLIM}, v{VAO}', f'v_add_u32 v{VYO}, s{sLIM}, v{VYO}']
        end = [end + self.F(3, 1) + self.areads(0) + self.areads(1) + self.F(3, 2) + self.F(3, 3),
               end + self.F(3, 1) + self.areads(0) + self.F(3, 2) + self.areads(1) + self.F(3, 3),
               end + self.F(3, 1) + self.F(3, 2) + self.areads(0) + self.areads(1) + self.F(3, 3)][opt('ypos', 1)]
        self.emit(end, lg)
        if SEG:
            a('s_memtime s[94:95]\ns_waitcnt lgkmcnt(0)')
            def acc(d, i, j): a(f's_sub_u32 s67, s{76+2*j}, s{76+2*i}\ns_add_u32 s{d}, s{d}, s67')
            acc(96, 0, 1)
            for q in range(4): acc(97, 1+2*q, 2+2*q)
            for q in range(3): acc(98, 2+2*q, 3+2*q)
            acc(99, 8, 9)
            a(f's_add_u32 s100, s100, {nK}\ns_add_u32 s101, s101, 1')
        assert [x for x in lg.q if x[0] != 'P'] == self.ENTRY, lg.q
        self.inunit = False
        self.dispatch(ph)
    HALF = {0: [int(c) for c in opt('half0', '3') if c != '0'], 1: [int(c) for c in opt('half1', '3') if c != '0']}
    def target(self, code, ph):
        nK = code >> 1
        return f'K2_U{nK}{"h" if (not code & 1 and nK in self.HALF[ph]) else ""}{ph}'
    def dispatch(self, ph, check=True):
        if not check:
            self.a(f"""
            s_mov_b32 s{sCB}, s{sNBs}
            s_mov_b32 s{sPP}, s{sCP}
            s_mov_b32 s{sC4}, s{sN4}
            s_mov_b32 s{sCP}, s{sNP}
            s_bfe_u32 s{sEX}, s{sN4}, 0x40012""")
        for code in (5, 6): self.a(f's_cmp_eq_u32 s{sEX}, {code}\ns_cbranch_scc1 {self.target(code, ph)}')
        self.a(f's_branch K2_DSP{ph}')

    def wload(self, ph, vl16, paths, dst):
        for k, p in enumerate(paths):
            self.a(f's_mov_b32 s{sT}, {WS_WTAB + ph*10240 + p*2048}')
            for u in range(2): self.a(f'buffer_load_dwordx4 v[{dst(p)+4*u}:{dst(p)+4*u+3}], v{vl16}, s[{sWS}:{sWS+3}], s{sT} offen offset:{u*1024} sc1')
    def wunp(self, paths, src):
        return [f'v_lshlrev_b32 v{WR+16*p+2*i}, 16, v{src(p)+i}\nv_and_b32 v{WR+16*p+2*i+1}, 0xffff0000, v{src(p)+i}' for p in paths for i in range(8)]

    def fill_rows(self, vL, base):
        return f'''
        v_and_b32 v76, 31, v{vL}
        v_lshrrev_b32 v77, 5, v{vL}
        v_mov_b32 v80, 0
        v_mul_u32_u24 v77, {NSTR}, v77
        v_mov_b32 v81, 0xffff0000
        v_lshl_add_u32 v78, v76, 4, v77
        v_mov_b32 v82, 0
        v_add_u32 v78, {base}, v78
        v_mov_b32 v83, v81
        '''
    def fill_slots(self, vL, base):
        return f'''
        v_add_u32 v85, 16, v{vL}
        v_lshlrev_b32 v84, 5, v{vL}
        v_lshrrev_b32 v85, 6, v85
        v_mul_u32_u24 v85, {E4}, v85
        v_sub_u32 v84, v84, v85
        v_mov_b32 v85, -1
        v_add_u32 v84, {base}, v84
        '''
    def fill_all(self, vL):
        a = self.a
        a(f's_mul_i32 s{sT}, s{sW}, {5*NSTR}\ns_add_u32 s{sT}, s{sT}, {RECBASE}\ns_add_u32 s{sT+1}, s{sT}, {OA}' + self.fill_rows(vL, f's{sT}') + self.fill_slots(vL, f's{sT+1}'))
        for i in range(5): a(f'ds_write_b32 v84, v85 offset:{i*NSTR}')
        a('s_mov_b32 exec_hi, 0')
        for i in range(5): a(f'ds_write_b128 v78, v[80:83] offset:{i*NSTR}')
        a('s_mov_b32 exec_hi, -1')
    def fill_w5(self):
        a = self.a
        a(self.fill_rows(8, RECBASE) + f'v_add_u32 v79, {20*NSTR}, v78')
        for i in range(20): a(f'ds_write_b128 v{78 + i//10}, v[80:83] offset:{(i%10)*2*NSTR}')
    def fill_w6(self, n0, n1):
        a = self.a
        if n0 >= n1: return
        a(self.fill_slots(8, RECBASE + OA + n0*NSTR) + f'v_add_u32 v86, {20*NSTR}, v84')
        for i in range(n1 - n0): a(f'ds_write_b32 v{84 + 2*(i//20)}, v85 offset:{(i%20)*NSTR}')
    def counters(self, vL, first):
        self.a(f'''
        v_mov_b32 v76, 0
        v_mov_b32 v77, -1
        v_lshlrev_b32 v78, 2, v{vL}
        v_add_u32 v78, {HIST}, v78
        s_mov_b64 exec, 0x1ff
        ds_write_b32 v78, v76 offset:{PROG-HIST}
        s_mov_b32 exec_lo, -1
        ds_write_b32 v78, v77 offset:{NULLSRC-HIST}
        s_mov_b64 exec, -1
        {'' if first else f's_cmp_lg_u32 s{sRND}, 0'}
        {'' if first else f's_cbranch_scc1 K2_NOH'}
        s_mov_b32 exec_hi, 0xffff
        ds_write_b32 v78, v76
        s_mov_b64 exec, 1
        ds_write_b32 v78, v76 offset:{FLAG-HIST}
        s_mov_b64 exec, -1
        ''')
    def srds(self):
        a = self.a
        srd(a, sX, 80, N*1024); srd(a, sOUT, 96, N*1024); srd(a, sEA, 84, E*32)
        a('s_sub_u32 s80, s80, 1024\ns_subb_u32 s81, s81, 0'); srd(a, sX2, 80, N*1024 + 1024)
    def consts(self, vL):
        self.a(f'''
        v_and_b32 v84, 15, v{vL}                ; i
        v_lshrrev_b32 v85, 5, v{vL}             ; h
        v_bfe_u32 v86, v{vL}, 4, 1
        v_lshrrev_b32 v87, 2, v84
        v_and_b32 v88, 3, v84                   ; c
        v_lshl_add_u32 v89, v85, 2, v87
        v_lshlrev_b32 v{VAO}, 6, v89
        v_lshl_add_u32 v{VAO}, v88, 3, v{VAO}
        v_add_u32 v{VAO}, {OA}, v{VAO}
        v_lshrrev_b32 v90, 3, v84
        v_lshl_add_u32 v90, v90, 1, v86
        v_sub_u32 v90, v90, 1 clamp
        v_lshlrev_b32 v{VYO}, 1, v90
        v_lshl_add_u32 v91, v85, 2, v88
        v_lshl_add_u32 v{VYO}, v91, 4, v{VYO}
        v_and_b32 v91, 1, v87
        v_lshl_add_u32 v{VYO}, v91, 3, v{VYO}
        v_lshrrev_b32 v90, 1, v88
        v_lshl_add_u32 v90, v86, 1, v90         ; chunk (u = 0)
        v_bfe_u32 v91, v87, 1, 1
        v_lshlrev_b32 v91, 2, v91
        v_xor_b32 v90, v90, v91
        v_lshlrev_b32 v90, 4, v90
        v_lshl_add_u32 v90, v89, 7, v90
        v_and_b32 v91, 1, v88
        v_lshl_add_u32 v90, v91, 3, v90
        v_add_u32 v{VB0}, s{sRING}, v90
        v_xor_b32 v{VB1}, 64, v{VB0}
        v_lshrrev_b32 v90, 3, v{vL}
        v_lshlrev_b32 v{VSO}, 4, v90
        v_bfe_u32 v90, v90, 1, 1
        v_lshlrev_b32 v90, 2, v90
        v_and_b32 v91, 7, v{vL}
        v_xor_b32 v90, v90, v91
        v_lshlrev_b32 v{VLG}, 4, v90
        v_lshlrev_b32 v{VL2}, 1, v{vL}
        v_and_b32 v{VH16}, 1, v{vL}
        v_lshlrev_b32 v{VH16}, 4, v{VH16}
        v_lshrrev_b32 v90, 1, v{vL}
        v_lshlrev_b32 v90, 5, v90
        v_add_u32 v{VEO}, {OA}, v90
        ''')
    def pad(self, name, ret):
        return f'K2_PAD_{name}:\ns_branch {ret}' if name in opt('pads', self.PADS).split('_') and opt('pad', 1) else ''
    def padx(self, name, ret):
        return f'K2_PAD_{name}:\ns_cbranch_execz {ret}' if name in opt('pads', self.PADS).split('_') and opt('pad', 1) else ''
    PADS = 'S1_S2_H1_H2_H3_B3_LD_NW_SC_SD_U20_U30_U21_U31_SW_TL_T2'
    def hops(self, names, ret):
        if not opt('pad', 1): return
        self.a('s_mov_b64 exec, 0')
        for w, n in names:
            if n in opt('pads', self.PADS).split('_'): self.a(f's_cmp_eq_u32 s{sW}, {w}\ns_cbranch_scc1 K2_PAD_{n}')
        self.a(f'{ret}:\ns_mov_b64 exec, -1')
    def stage_sort(self, vL, vT_):
        a = self.a; st = mod('recst', 'sc1')
        RAW = 24576
        a(f"""
        s_cmp_lg_u32 s{sW}, 7
        s_cbranch_scc1 KS_NOTAG
        s_mov_b32 s24, {WS_EPO}
        s_mov_b64 exec, 1
        buffer_load_dword v14, v6, s[{sWS}:{sWS+3}], s24 offen sc1
        s_mov_b64 exec, -1
        """)
        XP = opt('xp', 0)
        def xtouch():
            srd(a, 60, 80, N*1024)
            a(f's_lshr_b32 s24, s2, 3\ns_mul_i32 s24, s24, {313*1024}\nv_lshlrev_b32 v15, 8, v8')
            for i in range(XP):
                for o in [int(x) for x in opt('xpo', '0').split('_')]: a(f'buffer_load_dword v16, v15, s[60:63], s24 offen offset:{o} {mod("xpm", "")}')
                a(f's_add_u32 s24, s24, {16*1024}')
        if XP and opt('xpp', 0) == 0: xtouch()
        sstamp(a, 1); a('s_barrier'); sstamp(a, 3)
        if XP and opt('xpp', 0) == 1: xtouch()
        self.counters(8, True)
        self.fill_w6(opt('n6', 40), 40)
        a(f"""
        s_mov_b64 exec, 1
        v_mov_b32 v12, {NONCE}
        s_mov_b32 s24, 1664525
        s_waitcnt vmcnt({min(63, XP*len(opt('xpo', '0').split('_')))})
        v_mul_lo_u32 v14, v14, s24
        v_add_u32 v14, 1013904223, v14
        ds_write_b32 v12, v14
        KS_TAGOK2:
        s_mov_b64 exec, -1
        {'s_memrealtime s[86:87]' if PROFS else ''}
        s_waitcnt lgkmcnt(0)
        s_barrier
        s_branch KS_B3
        KS_H0:
        s_barrier
        s_branch KS_HELP
        {self.pad('S1', 'KS_HOP0')}
        KS_NOTAG:
        s_cmp_ge_u32 s{sW}, 5
        s_cbranch_scc1 {'KS_H0' if opt('eb1', 0) else 'KS_HELP'}
        s_cmp_ge_u32 s2, {NCH}
        s_cbranch_scc1 KS_IDLE
        """)
        srd(a, 40, 88, E*4)
        a(f'buffer_load_dwordx4 v[12:15], v5, s[40:43], s64 offen')
        srd(a, 44, 86, E*4); srd(a, 48, 82, E*6)
        a(f"""
        buffer_load_dwordx4 v[16:19], v5, s[44:47], s64 offen
        buffer_load_dwordx4 v[20:23], v4, s[48:51], s65 offen
        buffer_load_dwordx2 v[24:25], v4, s[48:51], s65 offen offset:16
        v_lshlrev_b32 v2, 2, v0                 ; t*4
        s_lshl_b32 s64, s64, 3
        v_lshl_add_u32 v3, v0, 7, s64
        v_mov_b32 v7, 1
        s_cmp_eq_u32 s{sW}, 4
        s_cbranch_scc1 KS_NOCLR
        ds_write_b32 v2, v6
        KS_NOCLR:
        """)
        sstamp(a, 1); a('s_waitcnt lgkmcnt(0)\ns_barrier'); sstamp(a, 3)
        self.hops([(0, 'B3'), (1, 'LD'), (2, 'NW'), (3, 'SC'), (4, 'SD')], 'KS_HOP')
        a(f's_mov_b32 s58, {BMUL}\ns_movk_i32 s59, 625\ns_waitcnt vmcnt(3)')
        sstamp(a, 5)
        sort_rank(a, self.padx('S2', 'KS_HOP0'))
        a('s_waitcnt lgkmcnt(0)')
        for j in range(4): a(f'ds_read_b32 v{32+j}, v{32+j} offset:1024')
        sort_emit(a, st)
        a(f"""
        s_branch KS_JOIN
        {self.pad('B3', 'KS_HOP')}
        KS_B3:
        v_mov_b32 v59, {NONCE}
        ds_read_b32 v59, v59
        s_waitcnt lgkmcnt(0)
        s_barrier
        KS_JOIN:
        v_readfirstlane_b32 s{sTAG}, v59
        """)
        stamp(a, 6)
    def helpers(self):
        a = self.a; RAW = 24576
        a(f"""
        {self.pad('H1', 'KS_HOP0')}
        KS_HELP:
        {'s_memrealtime s[78:79]' if PROFS else ''}
        s_mov_b32 s30, 0
        s_cmp_eq_u32 s{sW}, 6
        s_cbranch_scc1 KS_RAW
        s_mov_b32 s30, 2
        s_cmp_ge_u32 s2, 170
        s_cbranch_scc1 KS_NOW
        s_mov_b32 s30, 1
        """)
        weight_loads(a)
        a('K1_GO:\nKS_NOW:\n' + ('' if opt('eb1', 0) else 's_barrier\n') + self.padx('H2', 'KS_HOP0'))
        sstamp(a, 3)
        self.fill_w5()
        a('KS_FILL:')
        sstamp(a, 5)
        a(f'v_mov_b32 v59, {NONCE}\ns_barrier\nds_read_b32 v59, v59')
        a(f"""
        s_waitcnt vmcnt(0) lgkmcnt(0)
        s_cmp_eq_u32 s30, 0
        s_cbranch_scc1 KS_B3
        s_cmp_eq_u32 s30, 2
        s_cbranch_scc1 KS_NOST
        v_lshl_or_b32 v40, v65, 16, v64
        v_lshl_or_b32 v41, v67, 16, v66
        v_lshl_or_b32 v42, v69, 16, v68
        v_lshl_or_b32 v43, v71, 16, v70
        buffer_store_dwordx4 v[40:43], v9, s[{sWS}:{sWS+3}], s24 offen sc1
        KS_NOST:
        s_waitcnt lgkmcnt(0)
        s_barrier
        s_lshl_b32 s24, s2, 2
        s_add_u32 s24, s24, {WS_FLG}
        s_mov_b64 exec, 1
        s_waitcnt vmcnt(0)
        buffer_store_dword v59, v6, s[{sWS}:{sWS+3}], s24 offen sc1
        s_mov_b64 exec, -1
        s_branch KS_JOIN
        {self.pad('H3', 'KS_HOP0')}
        KS_RAW:
        {'' if opt('eb1', 0) else 's_barrier'}
        """)
        srd(a, 60, 90, 16*640*2)
        a('v_lshrrev_b32 v10, 3, v8\nv_and_b32 v11, 7, v8\nv_lshlrev_b32 v10, 8, v10\nv_lshl_add_u32 v10, v11, 4, v10')
        for i in range(20):
            a(f's_mov_b32 m0, {(W1L if i >= 10 else RAW) + (i % 10)*1024}\ns_movk_i32 s24, {(i % 10)*2048 + (i // 10)*128}\nbuffer_load_dwordx4 v10, s[60:63], s24 offen lds')
        sstamp(a, 3)
        self.fill_w6(0, opt('n6', 40))
        a('s_branch KS_FILL\nKS_IDLE:\ns_barrier\ns_barrier\ns_branch KS_B3')
    def wraw(self, vL2, t, base, dst):
        a = self.a
        a(f'''
        v_lshrrev_b32 v{t}, 6, v{vL2}             ; h
        v_bfe_u32 v{t+1}, v{vL2}, 3, 2            ; row
        v_lshl_add_u32 v{t}, v{t}, 2, v{t+1}
        v_mul_u32_u24 v{t}, 640, v{t}
        v_bfe_u32 v{t+1}, v{vL2}, 5, 1
        v_lshl_add_u32 v{t}, v{t+1}, 5, v{t}
        v_and_b32 v{t+1}, 6, v{vL2}
        v_lshl_add_u32 v{t}, v{t+1}, 2, v{t}
        v_add_u32 v{t}, {base}, v{t}
        ''')
        for i in range(20):
            p, u, rq = i >> 2, (i >> 1) & 1, i & 1
            a(f'ds_read_b64_tr_b16 v[{dst(p)+2*(i&3)}:{dst(p)+2*(i&3)+1}], v{t} offset:{rq*8*640 + p*128 + u*64}')

    def gen(self):
        a = self.a
        vL, vT_, vC, vE, vREM, vOFF = 176, 177, 178, 179, 180, 181
        RK = 40
        NBs = 50
        t0 = 192
        ws = f's[{sWS}:{sWS+3}]'
        def loop(done, body):
            for i in range(U):
                a(f'v_cmp_lt_i32 vcc, {2*i}, v{vREM}\ns_cbranch_vccz {done}\ns_mov_b64 exec, vcc')
                a(body(i))
            a(f'{done}:\ns_mov_b64 exec, -1')
        a('s_cmp_ge_u32 s2, 256\ns_cbranch_scc1 K2_END')
        stamp(a, 0)
        a(f'''
        s_load_dwordx16 s[80:95], s[0:1], 0
        s_load_dwordx4 s[96:99], s[0:1], 72
        s_load_dwordx2 s[100:101], s[0:1], 88   ; ws
        v_lshrrev_b32 v1, 6, v0
        s_mov_b32 s{sB}, s2
        v_readfirstlane_b32 s{sW}, v1
        ''')
        self.hops([(0, 'S1'), (1, 'S2'), (5, 'H1'), (6, 'H2'), (2, 'H3')], 'KS_HOP0')
        a(f'''
        v_and_b32 v8, 63, v0
        v_lshlrev_b32 v9, 4, v8                 ; lane*16
        v_mov_b32 v6, 0
        v_lshlrev_b32 v5, 4, v0                 ; t*16
        v_mul_u32_u24 v4, 24, v0
        s_mul_i32 s64, s2, {CH*4}
        s_mul_i32 s65, s2, {CH*6}
        v_mov_b32 v{vL}, v8
        v_mov_b32 v{vT_}, v0
        s_mul_i32 s{sNB}, s2, 625
        s_add_u32 s{sNC}, s{sNB}, {625+15}
        s_add_u32 s{sNB}, s{sNB}, 15
        s_lshr_b32 s{sNB}, s{sNB}, 4
        s_lshr_b32 s{sNC}, s{sNC}, 4
        s_sub_u32 s{sNC}, s{sNC}, s{sNB}
        s_movk_i32 s{s1024}, 1024
        s_lshl_b32 s{sRING}, s{sW}, 13
        s_mov_b32 s{sPROG}, {PROG}
        s_lshl_b32 s{sPROGW}, s{sW}, 2
        s_add_u32 s{sPROGW}, s{sPROGW}, s{sPROG}
        {chr(10).join(f's_add_u32 s{sM0+i}, s{sRING}, {i*2048}' for i in range(4))}
        s_waitcnt lgkmcnt(0)
        ''')
        if opt('wsoff', 0): a(f's_add_u32 s100, s100, {opt("wsoff", 0) << 20}\ns_addc_u32 s101, s101, 0')
        srd(a, sWS, 100, WS_SIZE)
        self.stage_sort(vL, vT_)
        a(f'''
        s_mov_b32 s{sJ0}, 0
        s_mov_b32 s{sFIRST}, 1
        {chr(10).join(f's_mov_b32 s{i}, 0' for i in range(96, 102)) if SEG else ''}
        s_mov_b32 s{sRND}, 0
        s_mov_b32 s{sR}, 1
        K2_CELLS:
        v_lshrrev_b32 v{vC}, 1, v{vT_}          ; cell
        v_min_u32 v{vC}, {NCH-1}, v{vC}
        v_mul_u32_u24 v72, {TSTR}, v{vC}
        s_and_b32 s{sT}, s{sB}, 7
        s_lshl_b32 s{sT}, s{sT}, 7
        s_lshr_b32 s{sT+1}, s{sB}, 5
        s_lshl_b32 s{sT+1}, s{sT+1}, 4
        s_add_u32 s{sT+9}, s{sT}, s{sT+1}
        s_add_u32 s{sT+9}, s{sT+9}, {WS_TBL}
        buffer_load_dwordx4 v[76:79], v72, {ws}, s{sT+9} offen sc1
        ''')
        a(f's_cmp_eq_u32 s{sFIRST}, 0\ns_cbranch_scc1 K2_NOSRD')
        self.srds()
        self.hops([(0, 'U20'), (1, 'U30'), (2, 'U21'), (3, 'U31'), (4, 'SW'), (5, 'TL'), (6, 'T2')], 'K2_HOP')
        a('K2_NOSRD:')
        self.consts(vL)
        def chk(r): return f"""
            v_xor_b32 v73, s{sT+1}, v{r}
            v_xor_b32 v74, s{sT+1}, v{r+1}
            v_or_b32 v73, v73, v74
            v_xor_b32 v74, s{sTAG}, v{r+3}
            v_lshrrev_b32 v73, 22, v73
            v_or_b32 v73, v73, v74
            v_cmp_ne_u32 vcc, 0, v73"""
        a(f'''
        s_lshl_b32 s{sT+1}, s{sTAG}, 22
        s_mov_b32 s{sT+2}, 0x40000
        s_bfe_u32 s{sT+3}, s{sB}, 0x10004
        s_bfe_u32 s{sT+4}, s{sB}, 0x10003
        s_add_u32 s{sT+5}, s{sT+3}, s{sT+4}
        s_mul_i32 s{sT+4}, s{sT+4}, 11
        s_sub_u32 s{sT+6}, 11, s{sT+4}
        v_cmp_gt_u32 vcc, {2*NCH}, v{vT_}
        s_mov_b64 s[{sEX}:{sEX+1}], vcc
        K2_POLL:
        ''')
        if opt('poll2', 0): a(f'''
        buffer_load_dwordx4 v[80:83], v72, {ws}, s{sT+9} offen sc1
        s_waitcnt vmcnt(1)
        {chk(76)}
        s_cbranch_vccz K2_POLLED
        s_sub_u32 s{sT+2}, s{sT+2}, 1
        s_cbranch_scc1 K2_END
        buffer_load_dwordx4 v[76:79], v72, {ws}, s{sT+9} offen sc1
        s_waitcnt vmcnt(1)
        {chk(80)}
        s_cbranch_vccnz K2_POLL
        s_add_u32 s{sT+3}, s{sT+3}, 4
        s_add_u32 s{sT+5}, s{sT+5}, 4
        ''')
        else: a(f'''
        s_waitcnt vmcnt(0)
        {chk(76)}
        s_cbranch_vccz K2_POLLED
        s_sub_u32 s{sT+2}, s{sT+2}, 1
        s_cbranch_scc1 K2_END
        s_mov_b64 exec, vcc
        buffer_load_dwordx4 v[76:79], v72, {ws}, s{sT+9} offen sc1
        s_mov_b64 exec, -1
        s_branch K2_POLL
        {self.pad('LD', 'KS_HOP')}
        ''')
        a(f'''
        K2_POLLED:
        s_set_gpr_idx_on s{sT+3}, gpr_idx(SRC0)
        v_bfe_u32 v{vE}, v76, s{sT+4}, 11
        s_set_gpr_idx_idx s{sT+5}
        v_bfe_u32 v73, v76, s{sT+6}, 11
        s_set_gpr_idx_off
        v_sub_u32 v73, v73, v{vE}
        ''')
        o = Asm(); sv = self.a; self.a = o
        o(f'''
        K2_WINDOW:
        s_mov_b32 s{sRND}, 0
        s_mov_b32 s{sR}, 1
        K2_LOAD:
        v_mbcnt_lo_u32_b32 v{vL}, -1, 0
        v_mbcnt_hi_u32_b32 v{vL}, -1, v{vL}
        s_lshl_b32 s{sT}, s{sW}, 6
        v_add_u32 v{vT_}, s{sT}, v{vL}
        v_lshlrev_b32 v70, 4, v{vL}
        ''')
        self.wload(0, 70, range(5), lambda p: WR + 40 + 8*p)
        self.fill_all(vL)
        o(f's_cmp_lg_u32 s{sW}, 7\ns_cbranch_scc1 K2_NOH')
        self.counters(vL, False)
        o('K2_NOH:\ns_waitcnt lgkmcnt(0)\ns_barrier\ns_branch K2_CELLS')
        self.a = sv; self.ool(o.text())
        stamp(a, 1)
        a(f'''
        v_cndmask_b32 v73, 0, v73, s[{sEX}:{sEX+1}]
        v_and_b32 v1, 1, v{vT_}
        v_add_u32 v1, s{sJ0}, v1                ; j0 + sub
        v_sub_u32 v{vREM}, v73, v1
        v_add_u32 v{vE}, v{vE}, v1
        v_mul_u32_u24 v{vOFF}, {CSTR}, v{vC}
        v_lshl_add_u32 v{vOFF}, v{vE}, 4, v{vOFF}
        ''')
        MK = [f's[{r}:{r+1}]' for r in (40, 42, 44, 46, 48, 50, 90, 92, 94, 96)]
        def mloop(done, body):
            for i in range(U): a(f's_mov_b64 exec, {MK[i]}\ns_cbranch_execz {done}\n' + body(i))
            a(f'{done}:\ns_mov_b64 exec, -1')
        M = opt('cm', 1); NL = opt('nl', 3); vOFM, vEM = vOFF + 1, vOFF + 4; LIST = 45056
        adr = lambda i, r, rm, st: f'v{rm + i - M}, {{}} offen' if M <= i < M + NL else f'v{r}, {{}} offen offset:{st*i}'
        ld = lambda i: f'buffer_load_dwordx4 v[{4*i}:{4*i+3}], ' + adr(i, vOFF, vOFM, 32).format(f'{ws}, 0') + ' sc1'
        for i in range(M): a(f'v_cmp_lt_i32 {MK[i]}, {2*i}, v{vREM}')
        a(f'v_add_u32 v{vOFM}, {32*M}, v{vOFF}\ns_mov_b32 s{sT+7}, 0')
        for i in range(M):
            a(f's_mov_b64 exec, {MK[i]}\n{ld(i)}')
        a('s_mov_b64 exec, -1')
        for i in range(M, U): a(f'v_cmp_lt_i32 {MK[i]}, {2*i}, v{vREM}')
        for j in range(1, NL): a(f'v_add_u32 v{vOFM+j}, {32*(M+j)}, v{vOFF}')
        a(f"""
        v_subrev_u32 v62, {2*M - 1}, v{vREM}
        v_ashrrev_i32 v62, 1, v62
        v_med3_i32 v62, v62, 0, {U - M}
        s_cmp_eq_u64 {MK[M]}, 0
        s_cbranch_scc1 K2_LD_DONE
        v_mov_b32 v63, v62
        """)
        scan(a, 63)
        a(f"""
        s_lshl_b32 s{sT}, s{sW}, 10
        s_add_u32 s{sT}, s{sT}, {LIST}
        v_readlane_b32 s{sT+1}, v63, 63
        v_sub_u32 v63, v63, v62
        v_lshl_add_u32 v64, v63, 2, s{sT}
        v_lshlrev_b32 v63, 5, v63
        v_sub_u32 v63, v{vOFM}, v63
        s_cmp_gt_u32 s{sT+1}, {63*NL}
        s_cbranch_scc1 K2_LD_GEN
        """)
        for i in range(M, U): a(f's_mov_b64 exec, {MK[i]}\ns_cbranch_execz K2_LD_L\nds_write_b32 v64, v63 offset:{4*(i-M)}')
        a(f"""
        K2_LD_L:
        s_mov_b64 exec, -1
        v_lshl_add_u32 v63, v{vL}, 2, s{sT}
        v_lshlrev_b32 v62, 5, v{vL}
        s_waitcnt lgkmcnt(0)
        """)
        for j in range(NL): a(f'ds_read_b32 v{64+j}, v63 offset:{4*63*j}')
        for j in range(NL): a(f's_min_u32 s{sT+2}, s{sT+1}, 63\ns_sub_u32 s{sT+1}, s{sT+1}, s{sT+2}\ns_bfm_b64 {MK[M+j]}, s{sT+2}, 0')
        a(f's_mov_b64 {MK[M+NL]}, 0\ns_mov_b32 s{sT+7}, 1')
        for j in range(NL):
            a(f's_mov_b32 s{sT+2}, {32*63*j}\ns_waitcnt lgkmcnt({NL-1-j})\nv_add3_u32 v{vOFM+j}, v62, v{64+j}, s{sT+2}\ns_mov_b64 exec, {MK[M+j]}\n{ld(M+j)}')
        a(f"""
        K2_LD_DONE:
        s_mov_b64 exec, -1
        """)
        self.ool('K2_LD_GEN:\n' + ''.join(f's_mov_b64 exec, {MK[i]}\ns_cbranch_execz K2_LD_DONE\n{ld(i)}\n' for i in range(M, U)) + 's_branch K2_LD_DONE')
        a(f"""
        s_cmp_eq_u32 s{sFIRST}, 0
        s_cbranch_scc1 K2_WLATE
        """)
        self.ool('K2_WLATE:\ns_waitcnt vmcnt(0)\ns_branch K2_WUNP')
        self.wraw(VL2, 60, 24576, lambda p: WR + 40 + 8*p)
        a('s_waitcnt lgkmcnt(0)\nK2_WUNP:')
        for x in self.wunp(range(5), lambda p: WR + 40 + 8*p): a(x)
        a(f"""
        K2_NOWRAW:
        {self.padx('NW', 'KS_HOP')}
        v_lshrrev_b32 v{vE}, 2, v{vOFF}
        {chr(10).join(f'v_lshrrev_b32 v{vEM+j}, 2, v{vOFM+j}' for j in range(NL))}
        s_mov_b32 s{sT+8}, {WS_RANK}
        v_mov_b32 v{t0+9}, 1
        s_movk_i32 s{sT}, {NSTR//4}
        s_movk_i32 s{sT+1}, {NSTR}
        s_mov_b32 s{sT+2}, 0x40000
        s_mov_b32 s{sT+3}, 0xffff
        v_mov_b32 v{t0+10}, {RECBASE}
        s_cmp_lg_u32 s{sRND}, 0
        s_cbranch_scc1 K2_RK_LOAD
        v_cmp_lt_i32 vcc, {2*U}, v{vREM}
        s_cbranch_vccz K2_NOMORE
        v_mov_b32 v61, {FLAG}
        ds_write_b32 v61, v{t0+9}
        K2_NOMORE:
        s_mov_b32 s{sT+4}, {RECBASE + opt("tp", 8)*NSTR}
        s_cmp_eq_u32 s{sT+7}, 0
        s_waitcnt vmcnt({NL})
        s_cbranch_scc0 K2_ARR
        s_waitcnt vmcnt(0)
        K2_ARR:
        """)
        stamp(a, 2)
        prep = lambda i: f'v_mad_u32_u24 v{NBs+i}, v{NBs+i}, s{sT}, v{t0+10}\nv_and_b32 v{4*i+3}, 0xffffff, v{4*i+3}'
        def rank(i):
            self.ool(f'K2_RT{i}:\ns_sub_u32 s{sT+2}, s{sT+2}, 1\ns_cbranch_scc1 K2_END\n{ld(i)}\ns_waitcnt vmcnt(0)\ns_branch K2_CK{i}')
            return (f's_waitcnt vmcnt({M + NL - 1 - i})\n' if M <= i < M + NL else '') + f"""K2_CK{i}:
            v_bfi_b32 v{t0}, s{sT+3}, v{4*i+1}, v{4*i+2}
            v_lshrrev_b32 v{NBs+i}, 24, v{4*i+3}
            v_cmp_ne_u32 vcc, s{sTAG}, v{t0}
            v_add_u32 v{RK+i}, {HIST}, v{NBs+i}
            s_cbranch_vccnz K2_RT{i}
            ds_add_rtn_u32 v{RK+i}, v{RK+i}, v{t0+9}
            """ + (prep(i).split('\n')[0] if (opt('tp', 8)) else prep(i))
        mloop('K2_RK_A', rank)
        a(pstamp(5))
        if opt('tp', 8):
            mloop('K2_TP', lambda i: f'v_cmp_gt_u32 vcc, s{sT+4}, v{NBs+i}\n' + prep(i).split('\n')[1] + f'\ns_mov_b64 exec, vcc\nbuffer_load_dword v245, v{4*i+3}, s[{sEA}:{sEA+3}], 0 offen {mod("tpm", "")}')
        o = Asm(); b = a; a = o
        a(f'K2_RK_LOAD:\ns_waitcnt vmcnt(0)')
        mloop('K2_RK_B', lambda i: f'v_lshrrev_b32 v{NBs+i}, 24, v{4*i+3}\nbuffer_load_dword v{RK+i}, ' + adr(i, vE, vEM, 8).format(f'{ws}, s{sT+8}') + '\n' + prep(i))
        a(f's_mul_i32 s{sT+4}, s{sRND}, 48\ns_waitcnt vmcnt(0)')
        for i in range(U): a(f'v_subrev_u32 v{RK+i}, s{sT+4}, v{RK+i}')
        a('s_branch K2_RK_DONE')
        self.ool(o.text()); a = b
        a(f"""
        K2_RK_DONE:
        {self.padx('SC', 'KS_HOP')}
        s_mul_i32 s{sT+9}, s{sRND}, 48
        s_movk_i32 s{sT}, {-E4}
        s_waitcnt lgkmcnt(0)
        {pstamp(7)}
        """)
        for i in range(U):
            rr = RK + i; base = NBs + i
            a(f"""s_mov_b64 exec, {MK[i]}
            s_cbranch_execz K2_SC_DONE
            v_cmpx_gt_u32 vcc, 64, v{rr}
            v_bfe_u32 v{t0+2}, v{rr}, 3, 1
            v_add_u32 v{t0+1}, 16, v{rr}
            v_lshl_or_b32 v{t0+2}, v{rr}, 1, v{t0+2}
            v_bfi_b32 v{t0+2}, 15, v{t0+2}, v{rr}
            v_lshrrev_b32 v{t0+1}, 6, v{t0+1}
            v_alignbit_b32 v{4*i+1}, v{4*i+2}, v{4*i+1}, 16
            v_lshl_add_u32 v{t0+3}, v{t0+2}, 3, v{base}
            v_lshl_add_u32 v{t0+2}, v{t0+2}, 5, v{base}
            ds_write_b64 v{t0+3}, v[{4*i}:{4*i+1}]
            v_mad_i32_i24 v{t0+2}, v{t0+1}, s{sT}, v{t0+2}
            ds_write_b32 v{t0+2}, v{4*i+3} offset:{OA}
            """)
        d = t0 + 1; k = t0 + 2; e = t0 + 3; p = t0 + 4; x = t0 + 5; pl = t0 + 6
        a(f'''
        K2_SC_DONE:
        s_mov_b64 exec, -1
        {self.padx('SD', 'KS_HOP')}
        v_lshlrev_b32 v{t0}, 2, v{vL}
        v_add_u32 v{t0}, {HIST}, v{t0}
        v_mov_b32 v{t0+8}, {FLAG}
        s_cmp_eq_u32 s{sRND}, 0
        s_cselect_b32 s{sLIM}, 64, 48
        {pstamp(8)}
        s_waitcnt lgkmcnt(0)
        {pstamp(9)}
        s_barrier
        {pstamp(10)}
        ds_read_b32 v{d}, v{t0}
        ds_read_b32 v{t0+8}, v{t0+8}
        v_cmp_gt_u32 s[{sEX}:{sEX+1}], s{sNC}, v{vL}
        v_mad_u32_u24 v{e}, v{vL}, s{sT+1}, v{t0+10}
        s_waitcnt lgkmcnt(0)
        v_cndmask_b32 v{d}, 0, v{d}, s[{sEX}:{sEX+1}]
        v_readfirstlane_b32 s{sMORE}, v{t0+8}
        v_cmp_lt_u32 s[{sT+4}:{sT+5}], 48, v{d}
        v_cmp_lt_u32 vcc, 64, v{d}
        s_bcnt1_i32_b64 s{sT+2}, s[{sT+4}:{sT+5}]
        v_mbcnt_lo_u32_b32 v{pl}, s{sT+4}, 0
        v_mbcnt_hi_u32_b32 v{pl}, s{sT+5}, v{pl}
        s_cbranch_vccnz K2_BIG
        s_cmp_gt_u32 s{sT+2}, {NPOOL}
        s_cbranch_scc1 K2_BIG
        K2_TOK:
        v_subrev_u32 v{k}, s{sT+9}, v{d}
        v_max_i32 v{k}, 1, v{k}
        v_min_i32 v{k}, s{sLIM}, v{k}
        v_add_u32 v{k}, 15, v{k}
        v_lshrrev_b32 v{k}, 3, v{k}
        v_lshl_or_b32 v{e}, v{k}, 18, v{e}
        v_lshl_or_b32 v{e}, v{pl}, 27, v{e}
        v_mov_b32 v{x}, {NULLBASE | (3 << 18)}
        v_cndmask_b32 v{VTAB}, v{x}, v{e}, s[{sEX}:{sEX+1}]
''')
        o = Asm(); b = a; a = o
        a(f'''
        K2_BIG:
        s_cmp_lg_u32 s{sRND}, 0
        s_cbranch_scc1 K2_TOK
        s_movk_i32 s{sLIM}, 48
        v_mov_b32 v{x}, v{d}
        ''')
        scan(a, x, 'v_max_u32')
        for dd in range(48, 512*U + 48): assert (dd * 43691) >> 21 == dd // 48
        a(f'''
        v_readlane_b32 s{sR}, v{x}, 63
        s_add_u32 s{sR}, s{sR}, 47
        s_mul_i32 s{sR}, s{sR}, 43691
        s_lshr_b32 s{sR}, s{sR}, 21
        ''')
        for i in range(U):
            a(f's_mov_b64 exec, {MK[i]}\ns_cbranch_execz K2_SV_DONE\nbuffer_store_dword v{RK+i}, ' + adr(i, vE, vEM, 8).format(f'{ws}, s{sT+8}'))
        a('K2_SV_DONE:\ns_mov_b64 exec, -1\ns_branch K2_TOK')
        self.ool(o.text()); a = b
        for q in range(4): a(f's_movk_i32 s{sOWN+q}, {q*256 + 128*(FL >> q & 1)}')
        a(f'''
        s_add_u32 s{sRND}, s{sRND}, 1
        s_cmp_ge_u32 s{sRND}, s{sR}
        s_cselect_b32 s{sLAST}, 1, 0
        s_cmp_eq_u32 s{sMORE}, 0
        s_cselect_b32 s{sLAST}, s{sLAST}, 0
        s_mov_b32 s{sSPIN}, 0x400000
        s_mov_b32 s{sJ}, 0
        s_mov_b32 s{sNPH}, 0
        s_mov_b32 s{sNP}, 0
        s_mov_b32 s{sNV}, 1
        s_mov_b32 s{sCP}, 0
        s_mov_b32 s{sT}, s{sW}
        ''')
        lg = LG(a)
        self.emit(self.next_info(0), lg)
        stamp(a, 3)
        pre = self.eread()
        for t in range(4): pre += self.sread(t)
        pre += self.adma()
        for t in range(4): pre += self.gmad(t)
        for t in range(4): pre += self.dma(t, G + 2*t, sNX + t) + (['s_barrier'] if t == opt('fbar', -1) else [])
        pre += [f'v_add_u32 v{VAO}, s{sNBs}, v{VAO}', f'v_add_u32 v{VYO}, s{sNBs}, v{VYO}']
        pre += [pstamp(11), 's_waitcnt vmcnt(6)']
        self.emit(pre, lg)
        stamp(a, 4)
        self.emit(self.bread(0) + self.areads(0) + self.areads(1), lg)
        self.dispatch(0, check=False)
        self.helpers()
        for ph in range(2):
            for nK in (2, 3):
                a(self.pad(f'U{nK}{ph}', 'K2_HOP'))
                self.unit(nK, ph, nK == 3 and 3 in self.HALF[ph])
            if 3 in self.HALF[ph]: self.unit(3, ph)
            if 2 in self.HALF[ph]: self.unit(2, ph, True)
        hot = self.outline; self.outline = []
        a(self.pad('SW', 'K2_HOP'))
        for ph in range(2):
            a(f'K2_DSP{ph}:')
            for code in (4, 7): a(f's_cmp_eq_u32 s{sEX}, {code}\ns_cbranch_scc1 {self.target(code, ph)}')
            a(f's_cmp_gt_u32 s{sEX}, 7\ns_cbranch_scc1 K2_U4{ph}\ns_cmp_lg_u32 s{sEX}, 0\ns_cbranch_scc1 K2_U1{ph}' + ('\ns_branch K2_TAIL' if ph else '\ns_branch K2_SWITCH'))
        a('K2_SWITCH:')
        stamp(a, 5)
        fl = f'buffer_load_dwordx4 v[56:59], v60, {ws}, s{sT+6} offen sc1'
        a(f'v_lshlrev_b32 v60, 3, v{VL2}\ns_mov_b32 s{sT+6}, {WS_FLG}\n{fl}')
        self.emit(self.fin(3, 0, sPP if opt('dsp', 1) else None), LG(a))
        a(f'v_lshl_add_u32 v{VPA}, v{VL2}, 1, s{sNP}\nv_lshrrev_b32 v{VH16}, 6, v{VL2}\nv_mul_u32_u24 v{VH16}, 126, v{VH16}')
        WP = lambda p: WR + 16*p + 8
        self.wraw(VL2, VT0, W1L, WP)
        for q in range(4): a(f's_movk_i32 s{sOWN+q}, {q*256 + 128*(~FL >> q & 1)}')
        for p in range(5):
            a(f's_waitcnt lgkmcnt({min(15, 16 - 4*p)})')
            for x in self.wunp((p,), WP): a(x)
        a(f"""
        K2_FLGW:
        s_or_b32 s{sT}, s{sB}, s{sW}
        s_waitcnt vmcnt(0)
        v_xor_b32 v56, s{sTAG}, v56
        v_xor_b32 v57, s{sTAG}, v57
        v_xor_b32 v58, s{sTAG}, v58
        v_xor_b32 v59, s{sTAG}, v59
        v_or3_b32 v56, v56, v57, v58
        v_or_b32 v56, v56, v59
        v_cmp_ne_u32 vcc, 0, v56
        s_cbranch_vccnz K2_FLGR
        s_cmp_eq_u32 s{sT}, 0
        s_cbranch_scc1 K2_FLGY
        K2_FLGOK:
        s_cmp_eq_u32 s{sNV}, 0
        s_cbranch_scc1 K2_TAIL2
        """)
        self.ool(f"""
        K2_FLGR:
        s_sub_u32 s{sSPIN}, s{sSPIN}, 16
        s_cbranch_scc1 K2_END
        {fl}
        s_branch K2_FLGW
        K2_FLGY:
        v_mov_b32 v56, s{sTAG}
        v_mov_b32 v57, {WS_EPO}
        s_mov_b64 exec, 1
        buffer_store_dword v56, v57, {ws}, 0 offen sc1
        s_mov_b64 exec, -1
        s_branch K2_FLGOK
        """)
        if not FUSE: stamp(a, 6)
        self.dispatch(1, check=False)
        isunit = lambda t: t.startswith(('K2_dyn', 'K2_dum', 'K2_nul', 'K2_spin', 'K2_es'))
        for t in hot:
            if isunit(t): a(t)
        a(self.pad('TL', 'K2_HOP'))
        self.tail()
        for t in hot:
            if not isunit(t): a(t)
        for ph in range(2):
            for nK in (1, 4): self.unit(nK, ph)
        for t in self.outline: a(t)
        a('K2_END:\ns_endpgm')
        return a.lines, 256

    @staticmethod
    def sreg(f): return WR + 16*(0, 2, 1, 3, 4)[f >> 2] + 4*(f & 3)
    def spre(self, v, at=0): return f'v_lshlrev_b32 v{v}, 3, v{VL2}\ns_mul_i32 s{sT}, s{sW}, {20*1024}\ns_add_u32 s{sT}, s{sT}, {WS_STAB + at*4096}'
    def sload(self, v, order=range(20), at=0):
        sl = []
        for f in order:
            mv = ''
            if f // 4 != at: mv = f's_add_u32 s{sT}, s{sT}, {(f//4 - at)*4096 & 0xffffffff}\n'; at = f // 4
            sl.append(mv + f'buffer_load_dwordx4 v[{self.sreg(f)}:{self.sreg(f)+3}], v{v}, s[{sWS}:{sWS+3}], s{sT} offen offset:{(f%4)*1024} sc1')
        return sl
    def tail(self):
        a = self.a
        ws = f's[{sWS}:{sWS+3}]'
        vP0 = 222; vP1 = 223; vS = 226; vSP = 227; vRow = 228; vL16 = 229
        vQ0 = 232; vSt = 254; vS2 = 255; vS3 = 246; vQ0a = 247; vQ1a = 248; vRow2 = 249
        OP = 176
        PRE = opt('pre', 0); ES = opt('es', 0); assert not (PRE and ES)
        order = [4, 5, 6, 7, 14, 15, 16, 17, 18, 19, 0, 1, 2, 3, 8, 9, 10, 11, 12, 13] if PRE else list(range(20))
        sl = self.sload(vL16, order)
        rowb = f'\ns_mul_i32 s{sT+1}, s{sW}, {8192+32}'
        done = [f'v_mov_b32 v{VT0}, s{sPROGW}', f'v_mov_b32 v{VT1}, -1', f's_mov_b64 exec, 1\nds_write_b32 v{VT0}, v{VT1}\ns_mov_b64 exec, -1'] if PRE else []
        NE = opt('ne', 6 if ES else 8); N0 = 8 if ES else 0
        adr = [f'v_lshl_add_u32 v{vRow}, v{VL2}, 1, s{sT+1}', f'v_lshrrev_b32 v{vS}, 6, v{VL2}', f'v_mul_u32_u24 v{vS}, 126, v{vS}', f'v_sub_u32 v{vS}, v{vRow}, v{vS}']
        a('K2_TAIL2:\n' + self.spre(vL16) + rowb)
        for x in sl[:N0 + NE] + adr: a(x)
        a('s_branch K2_TAIL3\nK2_TAIL:')
        stamp(a, 7)
        a(self.spre(vL16, 1 if ES else 0) + rowb)
        f3 = self.fin(3, 1) + adr; w = []; m = (len(f3) + NE - 1) // NE if NE else 0
        for i in range(NE): w += [sl[N0 + i]] + f3[m*i:m*i+m]
        self.emit(w + f3[m*NE:], LG(a))
        a('K2_TAIL3:')
        for x in done: a(x)
        a(f's_waitcnt vmcnt({NE})')
        dump = []
        if opt('w2st', 1):
            rows = [(P0 + 6*j + k, 6*j + k) for j in range(5) for k in range(5)]
            for i in range(0, 24, 2): dump.append(f'ds_write2st64_b32 v{vRow}, v{rows[i][0]}, v{rows[i+1][0]} offset0:{rows[i][1]} offset1:{rows[i+1][1]}')
            dump.append(f'ds_write_b32 v{vRow}, v{rows[24][0]} offset:{rows[24][1]*256}')
            for j in range(5): dump.insert(4*j + 2, f'ds_write_b16 v{vS}, v{P0+6*j+5} offset:{j*1536 + 1280}')
        else:
            for j in range(5):
                for k in range(5): dump.append(f'ds_write_b32 v{vRow}, v{P0+6*j+k} offset:{j*1536 + k*256}')
                dump.append(f'ds_write_b16 v{vS}, v{P0+6*j+5} offset:{j*1536 + 1280}')
        assert RECBASE % 256 == 0 and NSTR % 256 == 32
        DS = opt('ds', 0)
        dsa = f"""s_add_u32 s{sT+2}, s{sNB}, 32
        s_sub_u32 s{sT+3}, s{sNC}, 32
        v_add_u32 v51, s{sT+2}, v54
        v_cmp_gt_u32 vcc, s{sT+3}, v54
        v_lshl_add_u32 v51, v51, 10, v49
        v_mov_b32 v53, 0x7ff00000
        v_cndmask_b32 v51, v53, v51, vcc
        v_lshl_add_u32 v{vS3}, v55, 9, v51
        v_lshl_add_u32 v{vS2}, v55, 30, v51"""
        calc = f"""
        v_bfe_u32 v48, v{VL2}, 1, 4             ; n & 15
        v_lshrrev_b32 v49, 5, v{VL2}            ; slab
        v_lshrrev_b32 v55, 3, v48
        v_lshlrev_b32 v52, 4, v49               ; slab*16
        v_lshl_add_u32 v54, v55, 2, v48
        v_and_b32 v54, 7, v54                   ; node of the last group in column n
        v_and_b32 v50, 7, v48
        v_mul_u32_u24 v50, {8192+32}, v50
        v_mul_u32_u24 v51, 1536, v55
        v_add_u32 v50, v50, v51                 ; slot of node n
        v_add_u32 v{vP0}, v50, v52
        v_mul_u32_u24 v51, {8192+32}, v54
        v_add_u32 v{vQ0}, v51, v52
        v_lshl_add_u32 v{vQ0a}, v55, 7, v{vQ0}
        v_mul_u32_u24 v51, {NSTR}, v48
        s_mov_b32 s{sT+2}, {RECBASE}
        v_add3_u32 v{vP1}, v51, v52, s{sT+2}
        v_mul_u32_u24 v51, {NSTR}, v54
        s_mov_b32 s{sT+2}, {RECBASE + 32*NSTR}
        v_add3_u32 v{vP1+2}, v51, v52, s{sT+2}
        v_lshl_add_u32 v{vQ1a}, v55, 7, v{vP1+2}
        s_lshl_b32 s{sT+2}, s{sW}, 5
        v_lshl_add_u32 v49, v49, 3, s{sT+2}
        {dsa if DS else f's_mov_b32 s{sT+2}, {RECBASE}' + chr(10) + f'v_add3_u32 v{vS2}, v51, v49, s{sT+2}' + chr(10) + f'v_lshl_add_u32 v{vS3}, v55, 9, v{vS2}'}
        v_bfe_u32 v53, v48, 2, 1
        v_lshl_add_u32 v49, v53, 4, v49
        v_add_u32 v{vSt}, v50, v49
        s_and_b32 s{sT+6}, s{sLAST}, s{sFIRST}  ; plain single-round case
        """.strip().split('\n')
        rest = sl[N0 + NE:]; per = max(2, (len(dump) + len(rest) - 1) // max(1, len(rest)))
        while dump or rest:
            for x in dump[:per] + rest[:1] + calc[:2]: a(x)
            dump = dump[per:]; rest = rest[1:]; calc = calc[2:]
        for x in calc: a(x)
        if PRE: a(f'v_lshl_add_u32 v48, v{VL2}, 1, s{sPROG}\nds_read_b32 v49, v48\ns_mov_b32 s{sT+7}, {RECBASE + 32*NSTR}')
        a('s_waitcnt lgkmcnt(0)')
        late = f"""
        s_bfe_u32 s{sT+2}, s{sW}, 0x10002
        s_lshl_b32 s{sT+2}, s{sT+2}, 4
        s_add_u32 s{sT+1}, s{sT+1}, s{sT+2}
        v_add_u32 v{vRow}, s{sT+1}, v{vL16}
        {'' if DS else f's_mul_i32 s{sT+2}, s{sW}, {NSTR}' + chr(10) + f's_add_u32 s{sT+2}, s{sT+2}, {RECBASE}' + chr(10) + f'v_add_u32 v{vRow2}, s{sT+2}, v{vL16}'}
        s_mov_b32 s{sT+5}, 0xbfb8aa3b           ; -log2(e)
        s_add_u32 s{sOWN}, s{sW}, s{sNB}
        s_lshl_b32 s{sOWN}, s{sOWN}, 10
        """.strip().split('\n') + [f's_add_u32 s{sOWN+j}, s{sOWN}, {j*8192}' for j in range(1, 4 if DS else 5)]
        late = [x for x in late if x.strip()]
        if PRE:
            a(f"""s_cmp_eq_u32 s{sT+6}, 0
            s_cbranch_scc1 K2_MULTI
            K2_PREW:
            v_cmp_gt_u32 vcc, s{sT+7}, v49
            s_setprio {opt('pp', 0)}
            s_and_b32 s{sT+8}, vcc_lo, 0xff
            s_cbranch_scc1 K2_PRES""")
            self.ool(f'K2_PRES:\ns_sub_u32 s{sSPIN}, s{sSPIN}, 1\ns_cbranch_scc1 K2_END\nds_read_b32 v49, v48\ns_waitcnt lgkmcnt(0)\ns_branch K2_PREW')
            stamp(a, 8)
        else:
            stamp(a, 8); a('s_barrier'); stamp(a, 9)
            a(f's_cmp_eq_u32 s{sT+6}, 0\ns_cbranch_scc1 K2_MULTI')
        part = {}
        for g in range(3):
            def ad(ph, row, hh, packed=False):
                o = self.SROW[row]*128 + hh*64
                if g < 2: return (vP1, g*16*NSTR + o) if ph else (vP0, g*3072 + o)
                return ((vQ1a if packed else vP1+2), o) if ph else ((vQ0a if packed else vQ0), 4*1536 + o)
            for ph in range(2):
                part[g, ph, 0] = [(16*g, ph*4 + rs*2 + hh) + ad(ph, rs, hh) for rs in range(2) for hh in range(2)]
                part[g, ph, 1] = [(16*g + 4 + 4*j, 8 + ph*6 + path*2 + hh) + ad(ph, 2 + 3*j + path, hh, j == 0) for path in range(3) for hh in range(2) for j in range(3 if g < 2 else 2)]
        seq = [(g, ph, o) for g in range(3) for o in range(2) for ph in range(2)]
        if PRE: seq = [(0,1,0), (1,1,0), (0,1,1), (1,1,1), (0,0,0), (1,0,0), (0,0,1), (1,0,1)] + seq[8:]
        GF = opt('gf', 1) and not PRE
        if GF: seq = [(g, ph, 0) for g in range(3) for ph in range(2)] + [(g, ph, 1) for g in range(3) for ph in range(2)]
        steps = [x for k in seq for x in part[k]]
        if GF and opt('il', 0): steps[:24] = [part[g, ph, 0][i] for ph in range(2) for i in range(4) for g in range(3)]
        for path in range(3): assert self.SROW[8 + path] == self.SROW[2 + path] + 1
        NB = 12; D = 10
        def epi(g, part=3):
            c = 16*g; o = OP + 8*(g & 1); s = []; tp = 204 + 4*g; o0 = 220 if g == 2 else o
            if part & 1:
                for r in range(4): s.append(f'v_mul_f32 v{tp+r}, s{sT+5}, v{c+r}')
                for r in range(4): s.append(f'v_exp_f32 v{tp+r}, v{tp+r}')
                for r in range(4): s.append(f'v_add_f32 v{tp+r}, 1.0, v{tp+r}')
                for r in range(4): s.append(f'v_rcp_f32 v{tp+r}, v{tp+r}')
                s += [f'v_cvt_pk_bf16_f32 v{o0}, v{c}, v{c+1}', f'v_cvt_pk_bf16_f32 v{o0+1}, v{c+2}, v{c+3}']
            if part & 2:
                for j in range(3 if g < 2 else 2):
                    for r in range(4): s.append(f'v_mul_f32 v{c+4+4*j+r}, v{c+4+4*j+r}, v{tp+r}')
                    s += [f'v_cvt_pk_bf16_f32 v{o+2+2*j}, v{c+4+4*j}, v{c+5+4*j}', f'v_cvt_pk_bf16_f32 v{o+3+2*j}, v{c+6+4*j}, v{c+7+4*j}']
            return s
        def stage(g, part=3):
            o = OP + 8*(g & 1)
            if g < 2: w = [(rt, vSt, g*3072) for rt in range(4)]
            else: w = [(0, vS2, 0), (1, vS3, 0), (2, vS2, 0)]
            src = lambda rt: 220 if (g, rt) == (2, 0) else o + 2*rt
            if g == 2 and DS: return [f'buffer_store_dwordx2 v[{src(rt)}:{src(rt)+1}], v{r}, s[{sOUT}:{sOUT+3}], 0 offen offset:{rt*256} {mod("outst2","sc1")}' for rt, r, b in w if part & (2 if rt else 1)]
            return [(f'ds_write_b64 v{r}, v[{src(rt)}:{src(rt)+1}] offset:{b + rt*256}', [(f'w{g}', False)]) for rt, r, b in w if part & (2 if rt else 1)]
        def rowread(g):
            if g == 2: return [(f'ds_read_b128 v[200:203], v{vRow2}', [('r2', False)])]
            return [(f'ds_read_b128 v[{192+4*(j&1)}:{195+4*(j&1)}], v{vRow} offset:{j*1536}', [(f'r{g}', False)]) for j in (2*g, 2*g+1)]
        def rowstore(g):
            s = [('wait', f'r{g}')]
            for j in ((2*g, 2*g+1) if g < 2 else (4,)):
                b = 192 + 4*(j & 1) if g < 2 else 200
                s += [f'buffer_store_dwordx4 v[{b}:{b+3}], v{vL16}, s[{sOUT}:{sOUT+3}], s{sOWN+j} offen {mod("outst","sc1")}']
            return s
        def gemm(lg, extra):
            def rd(k):
                c, f, r, o = steps[k]
                b = 48 + 4*(k % NB)
                self.emit([(f'ds_read_b128 v[{b}:{b+3}], v{r} offset:{o}', [(f'k{k}', False)])], lg)
            D0 = opt('d0', D); nxt = D0
            for k in range(D0): rd(k)
            seen = [-1]; started = set()
            for k in range(len(steps)):
                c, f, r, o = steps[k]
                for _ in range(2):
                    if nxt <= k + D and nxt < len(steps): rd(nxt); nxt += 1
                vm = None
                if order.index(f) > seen[0]: seen[0] = order.index(f); vm = 19 - seen[0]
                kk = min(k + 1, len(steps) - 1) if (opt('w2', 1) and k % 2 == 0) else k
                self.emit([('wait', f'k{kk}', vm)], lg)
                b = 48 + 4*(k % NB)
                cin = f'v[{c}:{c+3}]' if c in started else '0'; started.add(c)
                a(f'v_mfma_f32_16x16x32_bf16 v[{c}:{c+3}], v[{self.sreg(f)}:{self.sreg(f)+3}], v[{b}:{b+3}], {cin}')
                self.emit(extra.get(k, []), lg)
        lg = LG(a); extra = {}
        def spread(items, k0, k1):
            for i, x in enumerate(items): extra.setdefault(k0 + i*(k1 - k0 + 1)//len(items), []).append(x)
        spread(late, 2, 8)
        if self.padx('T2', 'K2_HOP'): extra.setdefault(opt('t2k', 41), []).append(self.padx('T2', 'K2_HOP'))
        b0 = opt('b0', 72 if PRE else 62 if GF else 46); e0 = opt('e0', 84 if PRE else 80 if GF else 64); b1 = opt('b1', 86 if DS else 98 if GF else 90); r0 = opt('r0', 92 if DS else 104 if GF else 98); e1 = opt('e1', 108 if DS else 113 if GF else 108)
        b2 = opt('b2', 113); r1 = opt('r1', 118); assert GF or not DS
        bA = min(opt('bA', 33), 44 - D - 1)
        if PRE:
            extra.setdefault(bA, []).extend(([f's_memtime s[{76+2*9}:{77+2*9}]'] if 0 else []) + ['s_barrier'] + ([f'{"s_memtime" if opt("cyc", False) else "s_memrealtime"} s[94:95]'] if PROF else []))
            spread(epi(0, 1), 50, opt('g0', 60))
            spread(epi(1, 1), opt('g0', 60) + 1, opt('g1', 71))
            extra.setdefault(b0, []).append('s_barrier')
            spread(epi(0, 2), 72, e0)
            extra.setdefault(e0 + 1, []).extend(stage(0))
        elif GF:
            il = opt('il', 0); g0 = opt('g0', 36 if il else 26); g1 = opt('g1', 47 if il else 42)
            spread(epi(0, 1), 25 if il else 11, g0); spread(epi(1, 1), g0 + 1, g1); spread(epi(2, 1), g1 + 1, opt('g2', 58))
            extra.setdefault(b0, []).append('s_barrier')
            spread(epi(0, 2), 60 + 3, e0)
            extra.setdefault(e0 + 1, []).extend(stage(0) + stage(2, 1))
        else:
            spread(epi(0, 1), 12, 40)
            if not opt('nob0', 0): extra.setdefault(b0, []).append('s_barrier')
            spread(epi(0, 2), 44 + 3, e0)
            extra.setdefault(e0 + 1, []).extend(stage(0))
            spread(epi(1, 1), e0 + 2, 86)
        extra.setdefault(b1, []).extend([('wait', 'w2' if (GF and not DS) else 'w0')] + ([] if opt('nob1', 0) else ['s_barrier']) + rowread(0))
        spread(epi(1, 2), (96 if GF else 88) + 3, e1)
        extra.setdefault(r0, []).extend(rowstore(0))
        extra.setdefault(e1 + 1, []).extend(stage(1))
        if DS:
            extra.setdefault(b2, []).extend([('wait', 'w1'), 's_barrier'] + rowread(1))
            extra.setdefault(r1, []).extend(rowstore(1))
        if not GF:
            spread(epi(2, 1), max(e1 - 8, 100), 117)
            extra.setdefault(118, []).extend(stage(2, 1))
        if opt('gp', 1):
            for k0, k1 in ((bA if PRE else -1, b0), (b0, b1), (b1, b2 if DS else len(steps))):
                fr = [float(x) for x in opt('gpf', '0.3_0.6_0.87').split('_')]
                if k0 >= 0: extra.setdefault(k0, []).append('s_setprio 3')
                for i, f in enumerate(fr): extra.setdefault(k0 + int((k1 - k0)*f), []).append(f's_setprio {2-i}')
            if not PRE: a('s_setprio 3')
        if PROFT:
            for i, k in enumerate((0, 23, 59, 81, 97, 113) if GF else (0, 8, 43, 66, 87, 104)): extra.setdefault(k, []).append(f'{"s_memtime" if opt("cyc", False) else "s_memrealtime"} s[{78+2*i}:{79+2*i}]')
        if opt('noepi', 0): extra = {k: [x for x in v if not (isinstance(x, str) and x.startswith(('v_cvt', 'v_exp', 'v_rcp', 'v_mul_f32', 'v_add_f32')[:opt('noepi', 0)]))] for k, v in extra.items()}
        gemm(lg, extra)
        stamp(a, 10)
        if DS:
            e = epi(2, 2); st = stage(2, 2)
            self.emit(e[:6] + st[:1] + e[6:] + st[1:], lg)
        else:
            self.emit(epi(2, 2) + stage(2, 2) + [('wait', 'w2'), 's_barrier'] + rowread(1) + rowread(2) + rowstore(1), lg)
            a(f'K2_LASTROW:\ns_add_u32 s{sT+1}, s{sW}, 32\ns_cmp_ge_u32 s{sT+1}, s{sNC}\ns_cbranch_scc1 K2_FIN\ns_waitcnt lgkmcnt(0)')
            self.emit(rowstore(2), LG(a))
        a('K2_FIN:')
        if PROF:
            stamp(a, 11); a('s_waitcnt vmcnt(0)'); stamp(a, 12); stamp_out(a, 13, 1, sW, sB, sWS)
        a('s_endpgm')
        a('K2_MULTI:' + ('\ns_barrier' if PRE else ''))
        lg = LG(a)
        gemm(lg, {})
        a(f"""
        s_lshl_b32 s{sT+2}, s{sB}, 9
        s_lshl_b32 s{sT+3}, s{sW}, 6
        s_add_u32 s{sT+2}, s{sT+2}, s{sT+3}
        s_mul_i32 s{sT+2}, s{sT+2}, 192
        s_add_u32 s{sT+2}, s{sT+2}, {WS_ACC}
        v_mul_u32_u24 v{vSP}, 96, v{VL2}        ; lane*192
        s_cmp_lg_u32 s{sFIRST}, 0
        s_cbranch_scc1 K2_NOACC
        """)
        for i in range(11): a(f'buffer_load_dwordx4 v[{48+4*i}:{51+4*i}], v{vSP}, {ws}, s{sT+2} offen offset:{16*i}')
        a('s_waitcnt vmcnt(0)')
        for i in range(44): a(f'v_add_f32 v{i}, v{i}, v{48+i}')
        a(f'K2_NOACC:\ns_barrier\ns_cmp_eq_u32 s{sLAST}, 0\ns_cbranch_scc1 K2_SPILL')
        self.emit(late, lg)
        for g in range(2):
            self.emit(epi(g) + stage(g) + [('wait', f'w{g}'), 's_barrier'] + rowread(g) + rowstore(g), lg)
        self.emit(epi(2) + stage(2) + ([] if DS else [('wait', 'w2'), 's_barrier'] + rowread(2)), lg)
        a(f's_branch {"K2_FIN" if DS else "K2_LASTROW"}\nK2_SPILL:')
        for i in range(11): a(f'buffer_store_dwordx4 v[{4*i}:{4*i+3}], v{vSP}, {ws}, s{sT+2} offen offset:{16*i}')
        a(f"""
        s_mov_b32 s{sFIRST}, 0
        s_waitcnt vmcnt(0)
        s_cmp_lt_u32 s{sRND}, s{sR}
        s_cbranch_scc1 K2_LOAD
        s_add_u32 s{sJ0}, s{sJ0}, {2*U}
        s_branch K2_WINDOW
        """)

HEADER = '''; Kernarg layout for this problem (96 bytes, ptrs only, base s[0:1]):
'''
def kd(name, vgpr):
    return f'''.amdhsa_kernel {name}
  .amdhsa_next_free_vgpr {vgpr}
  .amdhsa_next_free_sgpr {102}
  .amdhsa_accum_offset {(vgpr+3)//4*4}
  .amdhsa_group_segment_fixed_size 0
  .amdhsa_kernarg_size 96
  .amdhsa_user_sgpr_count 2
  .amdhsa_user_sgpr_kernarg_segment_ptr 1
  .amdhsa_system_sgpr_workgroup_id_x 1
  .amdhsa_float_denorm_mode_32 3
.end_amdhsa_kernel
'''
def main():
    ks = []
    l2, v2 = K2().gen(); ks.append((NAME + '_kernel', fix_hazards(l2), v2))
    s = HEADER
    s += f'; @launch grid=(256,1,1) block=(512,1,1) lds={K2_LDS}\n'
    s += '.amdgcn_target "amdgcn-amd-amdhsa--gfx950"\n.text\n'
    for name, l, v in ks:
        s += f'.globl {name}\n.p2align 8\n.type {name},@function\n{name}:\n'
        s += '\n'.join((x if x.endswith(':') else '    ' + x) for x in l) + '\n'
    s += '.section .rodata,"a"\n' + ''.join('.p2align 6\n' + kd(name, v) for name, l, v in ks)
    out = sys.argv[1] if len(sys.argv) > 1 else f'/code/{NAME}.s'
    open(out, 'w').write(s)
    print('wrote', out, len(s), 'bytes')
main()
```

```python
import sys, os
sys.path.insert(0, os.path.dirname(os.path.abspath(__file__)))
from asmlib import Asm, fix_hazards

NAME = 'standalone__tensor_product_equiv_equiformer__graph'
N = 10000; E = 320000
NCH = 250; CH = E // NCH
CSTR = CH * 16 + 128
TSTR = 1024 + 128
WS_REC = 0
WS_TBL = 0x0600000
WS_STAB = 0x06A0000
WS_WTAB = 0x06C8000
WS_FLG = 0x06D8000
WS_EPO = WS_FLG + 2048
WS_RANK = 0x0700000
WS_PROF = 0x0900000
WS_ACC = 0x0A00000
WS_SIZE = 0x2400000
assert NCH * CSTR <= WS_TBL and WS_TBL + NCH * TSTR <= WS_STAB and WS_ACC + 256*512*192 <= WS_SIZE
OPT = dict(a.split('=') for a in sys.argv[2:]) if len(sys.argv) > 2 else {}
def opt(k, d): return type(d)(OPT.get(k, d)) if not isinstance(d, bool) else bool(int(OPT.get(k, d)))
def mod(k, d): return opt(k, d).replace('_', ' ')

PMUL = 214749; SPL = opt('spl', 40); PCUT = (1 << 24) - (SPL*8*(1 << 24) + 312)//625
for d in range(N):
    p_ = (d*8)//625; l_ = d - (625*p_ + 7)//8
    assert (d*PMUL) >> 24 == p_ and (((d*PMUL) & 0xffffff) + PCUT) >> 24 == (l_ >= SPL) and l_ - SPL*(l_ >= SPL) < 40
PROF = opt('prof', False)
FUSE = True
SEG = opt('seg', False)
def seg(i): return [f's_memtime s[{76+2*i}:{77+2*i}]'] if SEG else []
PROFS = opt('profs', False)
def sstamp(a, i):
    if PROFS: a(f's_memrealtime s[{76+2*i}:{77+2*i}]')
PROFT = opt('proft', False)

PROFP = opt('profp', False)
FL = opt('fl', 0)
def pstamp(i): return f's_memrealtime s[{76+2*i}:{77+2*i}]' if PROFP else ''
def stamp(a, i, t=False):
    if PROFP and i in (5, 7, 8, 9, 10, 11): return
    if opt('clk', 0):
        if i == 11: a('s_getreg_b32 s98, hwreg(HW_REG_XCC_ID)')
        if i in (7, 8, 10, 11): return
        if i in (4, 5, 9): a(f's_memtime s[{76+2*{4:7,5:8,9:10}[i]}:{77+2*{4:7,5:8,9:10}[i]}]')
    if PROFT and 1 <= i <= 6 and not t: return
    if PROFS and i in (1, 3, 5, 11, 12): return
    if PROF and not SEG: a(f'{"s_memtime" if opt("cyc", False) else "s_memrealtime"} s[{76+2*i}:{77+2*i}]')
def stamp_out(a, n, kern, swave, swg, srd_s):
    if not PROF: return
    if opt('dbgout', -1) >= 0:
        l = f'DBG_{kern}'
        a(f's_cmp_lg_u32 s{swg}, {opt("dbgout", -1)}\ns_cbranch_scc1 {l}\ns_cmp_lg_u32 s{swave}, 0\ns_cbranch_scc1 {l}')
        a(f's_load_dwordx2 s[58:59], s[0:1], 80\ns_waitcnt lgkmcnt(0)\ns_add_u32 s58, s58, {512*(1-kern)*opt("dbgk1", 0)}\ns_addc_u32 s59, s59, 0')
        srd(a, 60, 58, 256)
        a('s_mov_b64 exec, 1\nv_mov_b32 v1, 0')
        for i, o in ([(0, 0), (5, 14), (2, 15)] if kern == 0 else [(i, 1+i) for i in range(13)]):
            a(f'v_mov_b32 v2, s{76+2*i}\nbuffer_store_dword v2, v1, s[60:63], 0 offen offset:{4*o}')
        a(f's_mov_b64 exec, -1\n{l}:')
        return
    a('s_waitcnt lgkmcnt(0)')
    a(f's_lshl_b32 s67, s{swg}, 4\ns_add_u32 s67, s67, s{swave}\ns_lshl_b32 s67, s67, 6\ns_add_u32 s67, s67, {WS_PROF + kern*256*16*64}')
    a('s_mov_b64 exec, 1\nv_mov_b32 v1, 0')
    for i in range(n):
        a(f'v_mov_b32 v2, s{76+2*i if not SEG else 96+min(i,5)}\nbuffer_store_dword v2, v1, s[{srd_s}:{srd_s+3}], s67 offen offset:{4*i}')
    a('s_mov_b64 exec, -1')

def srd(a, s, ptr, nbytes):
    a(f's_mov_b32 s{s}, s{ptr}\ns_and_b32 s{s+1}, s{ptr+1}, 0xffff\ns_mov_b32 s{s+2}, {nbytes}\ns_mov_b32 s{s+3}, 0x20000')

def scan(a, v, op='v_add_u32'):
    for sh in (1, 2, 4, 8):
        a(f'{op}_dpp v{v}, v{v}, v{v} row_shr:{sh} row_mask:0xf bank_mask:0xf bound_ctrl:0')
    a(f'{op}_dpp v{v}, v{v}, v{v} row_bcast:15 row_mask:0xa bank_mask:0xf')
    a(f'{op}_dpp v{v}, v{v}, v{v} row_bcast:31 row_mask:0xc bank_mask:0xf')

K1_T = CH // 4
K1_LDS = 2048 + CH * 16
def weight_loads(a):
    a(f'''
    v_and_b32 v1, 15, v8
    v_lshrrev_b32 v3, 4, v8
    s_cmp_ge_u32 s2, 160
    s_cbranch_scc1 K1_WT
    s_cmp_ge_u32 s2, 64
    s_cbranch_scc1 K1_S1
    s_lshr_b32 s24, s2, 3
    s_and_b32 s25, s2, 7
    s_lshr_b32 s26, s25, 2
    s_bfe_u32 s27, s25, 0x10001
    s_and_b32 s28, s25, 1
    ''')
    srd(a, 60, 92, 256*128*2)
    a(f'''
    s_branch K1_SC
    K1_S1:
    ; S1: g2 = g-64; w = g2/12, f2 = g2%12 : ph = f2/6, path = (f2%6)>>1, hh = f2&1
    s_sub_u32 s29, s2, 64
    s_mul_i32 s24, s29, 43
    s_lshr_b32 s24, s24, 9
    s_mul_i32 s25, s24, 12
    s_sub_u32 s25, s29, s25
    s_cmp_ge_u32 s25, 6
    s_cselect_b32 s26, 1, 0
    s_mul_i32 s27, s26, 6
    s_sub_u32 s27, s25, s27
    s_lshr_b32 s27, s27, 1
    s_and_b32 s28, s25, 1
    s_add_u32 s25, s25, 8
    ''')
    for g2 in range(96): assert (g2*43) >> 9 == g2 // 12
    srd(a, 60, 94, 384*128*2)
    a(f'''
    K1_SC:
    s_lshl_b32 s27, s27, 7
    s_lshl_b32 s26, s26, 6
    s_lshl_b32 s28, s28, 4
    s_add_u32 s27, s27, s26
    s_add_u32 s27, s27, s28
    s_lshl_b32 s27, s27, 8
    s_lshl_b32 s26, s24, 5
    s_add_u32 s27, s27, s26
    s_add_u32 s29, s27, 8192
    v_lshlrev_b32 v3, 10, v3
    v_lshl_add_u32 v3, v1, 1, v3
    ''')
    for e in range(8): a(f'buffer_load_ushort v{64+e}, v3, s[60:63], s{29 if e & 1 else 27} offen offset:{(e >> 1)*256}')
    a(f'''
    s_mul_i32 s24, s24, 20
    s_add_u32 s24, s24, s25
    s_lshl_b32 s24, s24, 10
    s_add_u32 s24, s24, {WS_STAB}
    s_branch K1_GO
    K1_WT:
    s_sub_u32 s24, s2, 160
    s_lshr_b32 s27, s24, 1
    s_and_b32 s28, s24, 1
    s_lshl_b32 s27, s27, 8
    s_lshl_b32 s28, s28, 6
    s_add_u32 s27, s27, s28
    s_add_u32 s29, s27, {8*1280}
    ''')
    srd(a, 60, 90, 16*640*2)
    a(f'''
    v_and_b32 v1, 31, v8
    v_lshrrev_b32 v3, 5, v8
    v_mul_u32_u24 v3, {4*1280}, v3
    v_lshl_add_u32 v3, v1, 1, v3
    ''')
    for j in range(8): a(f'buffer_load_ushort v{64+j}, v3, s[60:63], s{29 if j >> 2 else 27} offen offset:{(j & 3)*1280}')
    a(f'''
    s_lshl_b32 s24, s24, 10
    s_add_u32 s24, s24, {WS_WTAB}
    ''')

def sort_rank(a, pad):
    for j in range(4):
        a(f"""v_mul_u32_u24 v{28+j}, s58, v{12+j}
        v_and_b32 v{40+j}, 0xffffff, v{28+j}
        v_lshrrev_b32 v{32+j}, 26, v{28+j}
        v_add_u32 v{40+j}, {PCUT}, v{40+j}
        v_bfe_u32 v{36+j}, v{28+j}, 24, 2
        v_lshlrev_b32 v{32+j}, 2, v{32+j}
        v_lshrrev_b32 v{40+j}, 24, v{40+j}
        v_lshl_or_b32 v{32+j}, v{36+j}, 8, v{32+j}
        v_lshl_or_b32 v{32+j}, v{40+j}, 7, v{32+j}
        ds_add_rtn_u32 v{36+j}, v{32+j}, v7""")
    for j in range(4):
        a(f'v_lshrrev_b32 v{28+j}, 24, v{28+j}\nv_mad_u32_u24 v{28+j}, v{28+j}, s59, 7\nv_lshrrev_b32 v{28+j}, 3, v{28+j}\nv_mad_u32_u24 v{28+j}, v{40+j}, {SPL}, v{28+j}\nv_sub_u32 v{28+j}, v{12+j}, v{28+j}')
        a(f'v_add_u32 v{12+j}, {32*j}, v3\nv_lshl_or_b32 v{28+j}, v{28+j}, 26, v{12+j}')
    a(f'''
    {pad}
    v_mov_b32 v59, {NONCE}
    s_mul_i32 s65, s2, {TSTR}
    s_add_u32 s65, s65, {WS_TBL}
    s_mul_i32 s64, s2, {CSTR}
    s_waitcnt lgkmcnt(0)
    s_barrier
    ''')
    sstamp(a, 11)
    a(f'''
    ds_read_b128 v[40:43], v9
    ds_read_b32 v59, v59
    s_waitcnt lgkmcnt(1)
    v_add_u32 v45, v40, v41
    v_add_u32 v46, v45, v42
    v_add_u32 v47, v46, v43
    v_mov_b32 v58, v47
    ''')
    scan(a, 58)
    a(f'''
    v_sub_u32 v48, v58, v47                 ; exclusive
    v_add_u32 v49, v48, v40
    v_add_u32 v50, v48, v45
    v_add_u32 v51, v48, v46
    ds_write_b128 v9, v[48:51] offset:1024
    s_waitcnt vmcnt(0) lgkmcnt(1)
    s_cmp_lg_u32 s{sW}, 4
    s_cbranch_scc1 KS_NOPUB
    v_lshl_or_b32 v56, v49, 11, v48
    v_lshl_or_b32 v57, v51, 11, v50
    v_lshl_or_b32 v56, v59, 22, v56
    v_lshl_or_b32 v57, v59, 22, v57
    buffer_store_dwordx4 v[56:59], v9, s[{sWS}:{sWS+3}], s65 offen {mod('tabst', 'sc1')}
    KS_NOPUB:
''')
    sstamp(a, 12)

def sort_emit(a, st):
    a('v_and_b32 v60, 0xffff, v59\nv_and_b32 v61, 0xffff0000, v59\ns_mov_b32 s58, 0xffff0000')
    for j in range(4):
        b = 20 + 3*(j >> 1)
        if j & 1: a(f'v_alignbit_b32 v{40+4*j}, v{b+2}, v{b+1}, 16\nv_and_or_b32 v{41+4*j}, v{b+2}, s58, v60')
        else: a(f'v_mov_b32 v{40+4*j}, v{b}\nv_lshl_or_b32 v{41+4*j}, v{b+1}, 16, v60')
        a(f'v_or_b32 v{42+4*j}, v61, v{16+j}\nv_mov_b32 v{43+4*j}, v{28+j}')
    a('s_waitcnt lgkmcnt(0)')
    for j in range(4):
        a(f'v_add_lshl_u32 v{32+j}, v{32+j}, v{36+j}, 4\nds_write_b128 v{32+j}, v[{40+4*j}:{43+4*j}] offset:2048')
    a(f's_waitcnt lgkmcnt(0)\ns_barrier')
    for i in range(4): a(f'ds_read_b128 v[{12+4*i}:{15+4*i}], v5 offset:{2048 + i*K1_T*16}')
    for i in range(4):
        a(f's_waitcnt lgkmcnt({3-i})')
        a(f'buffer_store_dwordx4 v[{12+4*i}:{15+4*i}], v5, s[8:11], s64 offen {st}')
        if i < 3: a(f's_add_u32 s64, s64, {K1_T*16}')

NSTR = 2080
OA = 512
E4 = 48*32 - 4
RECBASE = 65536
NPOOL = 8
W1L = RECBASE + 40 * NSTR + NPOOL*512
MISC = W1L + 10240
HIST = MISC; PROG = MISC + 192; CNT = MISC + 224; FLAG = MISC + 228; SCR = MISC + 240; NULLSRC = MISC + 256; NONCE = MISC + 384
NULLBASE = NULLSRC
K2_LDS = 163840
assert NONCE + 4 <= K2_LDS
U = 10
ACC = 0; AR = 64; WR = 96; BR = 176; P0 = 192; G = 222
VEO = 230; VH16 = 231; T2 = 232; T3 = 233; PW = 234
VB0 = 246; VB1 = 247; VLG = 248; VAO = 249; VYO = 250; VSO = 251; VL2 = 252; VTAB = 253; VT0 = 254; VT1 = 255; VPA = VEO
sX = 4; sWS = 8; sOUT = 12; sEA = 16
sW = 20; sNB = 21; sNC = 22; sJ0 = 23; sRND = 24; sR = 25; sLIM = 26; sMORE = 27; sFIRST = 28
sCB = 29; sC4 = 30; sCP = 31; sNBs = 48; sNK = 33; sNPH = 34; sNP = 35; sNV = 36
sRING = 37; sJ = 38; s1024 = 39; sOWN = 40; sNX = 44; sSO = 48; sPROGW = 52; sPROG = 53; sB = 54; sLAST = 55
sEX = 56
sT = 58
sM0 = 68
sX2 = 72
sPP = 32
sN4 = 3
sTAG = 2
sSPIN = 27

TILES = {0: [(0,0), (1,0), (0,1), (1,1)], 1: [(0,0), (0,1), (1,1), (1,0)], 2: [(0,0), (1,0), (1,1), (0,1)], 3: [(0,0), (0,1), (1,0), (1,1)]}[opt('tord', 0)]
def tile(t, u): return ACC + 16 * TILES.index((t, u))
def Wreg(p, u): return WR + p*16 + u*8

def weave(x, y):
    o = []
    for i in range(max(len(x), len(y))):
        o += x[i:i+1] + y[i:i+1]
    return o

class LG:
    def __init__(self, a, q=()): self.a = a; self.q = list(q)
    def issue(self, tag, optional=False): self.q.append((tag, optional))
    def waitline(self, tag):
        idx = [i for i, (t, o) in enumerate(self.q) if t == tag]
        if not idx: return None
        y = sum(1 for (t, o) in self.q[idx[-1]+1:] if not o)
        self.q = self.q[idx[-1]+1:]
        return f's_waitcnt lgkmcnt({min(y, 15)})'

class K2:
    def __init__(self):
        self.a = Asm()
        self.uid = 0
        self.outline = []
    def lab(self, s):
        self.uid += 1
        return f'K2_{s}_{self.uid}'

    def dma(self, slot, greg, soff):
        return [f's_mov_b32 m0, s{sM0+slot}',
                f'buffer_load_dwordx4 v{greg}, s[{sX}:{sX+3}], s{soff} offen {mod("xld", "sc1")} lds',
                f'buffer_load_dwordx4 v{greg+1}, s[{sX2}:{sX2+3}], s{soff} offen offset:1024 {mod("xld", "sc1")} lds']
    def bread(self, item, half=False):
        return [(f'ds_read_b64_tr_b16 v[{BR + (item & 1)*8 + u*4 + r*2}:{BR + (item & 1)*8 + u*4 + r*2 + 1}], v{VB0+u} offset:{(item & 3)*2048 + r*1024}', [('B', False)])
                for u in range(2) for r in range(1 if half else 2)]
    def sread(self, t):
        return [f'v_add_u32 v{G+2*t}, s{sSO+t}, v{VSO}', (f'ds_read2_b32 v[{G+2*t}:{G+2*t+1}], v{G+2*t} offset0:1 offset1:3', [(f'S{t}', False)])]
    def gmad(self, t):
        return [('wait', f'S{t}')] + [f'v_mad_u32_u16 v{G+2*t+r}, v{G+2*t+r}, s{s1024}, v{VLG} op_sel:[1,0,0,0]' for r in range(2)]
    def ool(self, text): self.outline.append(text)
    def atomic(self):
        return [f'v_mov_b32 v{VT0}, {CNT}', f'v_mov_b32 v{VT1}, 1', f'v_lshl_add_u32 v{T3}, v{VL2}, 1, s{sPROG}',
                (f's_mov_b64 exec, 1\nds_add_rtn_u32 v{T2}, v{VT0}, v{VT1}\ns_mov_b64 exec, -1', [('C', False)]),
                (f'ds_read_b32 v{T3}, v{T3}', [('C', False)])]
    def claimed(self):
        nul = self.lab('nul'); spin = self.lab('spin'); chk = self.lab('chk'); back = self.lab('back')
        self.ool(f'{nul}:\ns_mov_b32 s{sT}, 63\ns_mov_b32 s{sNV}, 0\ns_branch {back}')
        self.ool(f'{spin}:\ns_sub_u32 s{sSPIN}, s{sSPIN}, 1\ns_cbranch_scc1 K2_END\nv_lshl_add_u32 v{T3}, v{VL2}, 1, s{sPROG}\nds_read_b32 v{T3}, v{T3}\ns_waitcnt lgkmcnt(0)\ns_branch {chk}')
        return [f'v_readfirstlane_b32 s{sT}, v{T2}',
                f"""s_cmp_lt_u32 s{sT}, s{sNC}
                s_cbranch_scc0 {nul}
                s_and_b32 s{sT+1}, s{sT}, 7
                s_lshr_b32 s{sT+2}, s{sT}, 3
                {chk}:
                v_readlane_b32 s{sT+3}, v{T3}, s{sT+1}
                s_nop 0
                s_cmp_gt_u32 s{sT+3}, s{sT+2}
                s_cbranch_scc0 {spin}
                {back}:"""]
    def claim0(self):
        dyn = self.lab('dyn'); back = self.lab('back')
        o = [x if isinstance(x, str) else x[0] for x in self.atomic()] + ['s_waitcnt lgkmcnt(0)'] + self.claimed()
        self.ool(f'{dyn}:\n' + '\n'.join(o) + f'\ns_mov_b32 s{sNPH}, 1\ns_branch {back}')
        return [f's_add_u32 s{sJ}, s{sJ}, 1', f'v_mov_b32 v{VT0}, s{sPROGW}', f'v_mov_b32 v{VT1}, s{sJ}',
                f's_lshl_b32 s{sT}, s{sJ}, 3', f's_add_u32 s{sT}, s{sT}, s{sW}',
                (f's_mov_b64 exec, 1\nds_write_b32 v{VT0}, v{VT1}\ns_mov_b64 exec, -1', [('W', False)]),
                f's_cmp_lt_u32 s{sT}, s{sNC}\ns_cbranch_scc0 {dyn}\n{back}:']
    def pooladdr(self, d, word):
        return f"""s_lshr_b32 s{d}, s{word}, 27
            s_mul_i32 s{sT+8}, s{sNC}, {NSTR}
            s_lshl_b32 s{d}, s{d}, 9
            s_add_u32 s{d}, s{d}, s{sT+8}
            s_add_u32 s{d}, s{d}, {RECBASE}"""
    def next_info(self, ph):
        rare = self.lab('rare'); back = self.lab('back'); four = self.lab('four')
        self.ool(f"""{rare}:
            s_cmp_eq_u32 s{sNK}, 4
            s_cbranch_scc1 {four}
            s_mov_b32 s{sSO+1}, s{sNBs}
            s_mov_b32 s{sSO+3}, s{sNBs}
            s_xor_b32 s{sNX+1}, s{sNX}, {256 + 128*((FL ^ FL >> 1) & 1)}
            s_xor_b32 s{sNX+2}, s{sNX}, {512 + 128*((FL ^ FL >> 2) & 1)}
            s_xor_b32 s{sNX+3}, s{sNX}, {768 + 128*((FL ^ FL >> 3) & 1)}
            s_branch {back}
            {four}:
            s_add_u32 s{sSO+2}, s{sNBs}, 256
            s_add_u32 s{sSO+3}, s{sNBs}, 384
            s_mov_b32 s{sNX+2}, s{sNX}
            s_mov_b32 s{sNX+3}, s{sNX}
            s_branch {back}""")
        o = [f'v_readlane_b32 s{sN4}, v{VTAB}, s{sT}', f's_lshl_b32 s{sNX}, s{sNPH}, 7' + (f'\ns_xor_b32 s{sNX}, s{sNX}, 128' if FL & 1 else ''),
             f's_and_b32 s{sNBs}, s{sN4}, 0x3ffff', f's_bfe_u32 s{sNK}, s{sN4}, 0x30013']
        if ph == 1: o += [f's_mov_b32 s{sNP}, s{sNBs}']
        else: o += [f's_mul_i32 s{sNP}, s{sJ}, 6', f's_cmp_eq_u32 s{sNPH}, 0\ns_cselect_b32 s{sNP}, s{sNP}, s{sNBs}']
        o += [f's_mov_b32 s{sNX+1}, s{sNX}', f's_xor_b32 s{sNX+3}, s{sNX}, {256 + 128*((FL ^ FL >> 1) & 1)}', f's_add_u32 s{sSO+1}, s{sNBs}, 128', f's_add_u32 s{sT+2}, s{sNBs}, 256',
              f's_cmp_eq_u32 s{sNK}, 3\ns_cselect_b32 s{sNX+2}, s{sNX}, s{sNX+3}\ns_cselect_b32 s{sSO+2}, s{sT+2}, s{sNBs}\ns_cselect_b32 s{sSO+3}, s{sNBs}, s{sSO+1}',
              f's_sub_u32 s{sT+2}, s{sNK}, 2\ns_cmp_lt_u32 s{sT+2}, 2\ns_cbranch_scc0 {rare}\n{back}:']
        return o
    def eread(self):
        return [f'v_add_u32 v{T3}, s{sNBs}, v{VEO}',
                (f'ds_read_b32 v{T2}, v{T3}', [('E', False)]), (f'ds_read_b32 v{T3}, v{T3} offset:1024', [('E', False)])]
    NEXTRA = 2
    def adma(self):
        dum = self.lab('dum'); four = self.lab('a4'); back = self.lab('back'); b4 = self.lab('b4')
        ea = f's[{sEA}:{sEA+3}]'; m = mod('eald', '')
        self.ool(f'{dum}:\nv_mov_b32 v{T2}, -1\ns_mov_b32 m0, {SCR}\ns_mov_b64 exec, 1\n' + f'buffer_load_dwordx4 v{T2}, {ea}, 0 offen lds\n'*2 + f's_mov_b64 exec, -1\ns_branch {back}')
        self.ool(f"""{four}:
            v_add_u32 v{VT0}, s{sNBs}, v{VEO}
            ds_read_b32 v{VT0}, v{VT0} offset:4
            {self.pooladdr(sT+7, sN4)}
            s_mov_b32 m0, s{sT+7}
            s_mov_b32 exec_hi, 0
            s_waitcnt lgkmcnt(0)
            v_or_b32 v{VT0}, v{VT0}, v{VH16}
            buffer_load_dwordx4 v{VT0}, {ea}, 0 offen {m} lds
            s_mov_b32 exec_hi, -1
            s_branch {b4}""")
        return [('wait', 'E'), f'v_or_b32 v{T2}, v{T2}, v{VH16}', f'v_or_b32 v{T3}, v{T3}, v{VH16}', f"""
        s_cmp_lg_u32 s{sNPH}, 0
        s_cbranch_scc1 {dum}
        s_cmp_eq_u32 s{sNK}, 4
        s_cbranch_scc1 {four}
        {b4}:
        s_add_u32 m0, s{sNBs}, {OA}
        s_add_u32 s{sT+7}, s{sNBs}, {OA+1024}
        buffer_load_dwordx4 v{T2}, {ea}, 0 offen {m} lds
        s_mov_b32 m0, s{sT+7}
        s_mov_b32 exec_hi, 0
        buffer_load_dwordx4 v{T3}, {ea}, 0 offen {m} lds
        s_mov_b32 exec_hi, -1
        {back}:"""]
    def areads(self, s, half=False):
        va, vy, oa, oy, o = VAO, VYO, s*512, s*128, []
        if s == 3:
            va, oa = ACC + 56, 0
            o = [self.pooladdr(sT+7, sC4) + f'\ns_sub_u32 s{sT+7}, s{sT+7}, s{sCB}\ns_sub_u32 s{sT+7}, s{sT+7}, {OA}\nv_add_u32 v{va}, s{sT+7}, v{VAO}']
        o += [(f'ds_read_b64_tr_b16 v[{ACC+4*s+2*r}:{ACC+4*s+2*r+1}], v{va} offset:{oa + 32*r}', [(f'a{s}', False)]) for r in range(1 if half else 2)]
        return o + [(f'ds_read_u16_d16_hi v{ACC+16+s}, v{vy} offset:{oy}', [(f'y{s}', False)])]
    def abuild(self, nK, half=False):
        o = []
        for s in range(2, nK): o += self.areads(s, half and s == nK - 1)
        for s in range(nK):
            b = ACC + 4*s; un = ACC + 20 + (s & 1)*8; m = 2 if (half and s == nK - 1) else 4
            o.append(('wait', f'y{s}' if (s or nK == 1 or not opt('ymw', 1)) else 'y1'))
            for i in range(m): o += [f'v_lshlrev_b32 v{un+2*i}, 16, v{b+i}', f'v_and_b32 v{un+1+2*i}, 0xffff0000, v{b+i}']
            for t in (1, 0):
                d = ACC + 36 if t else un
                for e in range(2*m): o.append(f'v_mul_f32_dpp v{d+e}, v{ACC+16+s}, v{un+e} row_newbcast:{8*t+e} row_mask:{"0xf" if t else "0xa"} bank_mask:0xf')
                for i in range(m): o.append(f'v_cvt_pk_bf16_f32 v{AR+s*8+t*4+i}, v{d+2*i}, v{d+1+2*i}')
        return o
    R = dict(A=PW, B=PW+2, C=PW+4, D=PW+6, E=PW+8, F=PW+10)
    CH_ = {0: [(0,'A','new'),(2,'B','new'),(2,'C','new'),(2,'D','new')],
           1: [(3,'A','new'),(1,'B','new'),(4,'C','new'),(4,'D','new')],
           2: [(3,'E','new'),(4,'C','neg'),(1,'B','acc'),(4,'F','new')],
           3: [(3,'E','new'),(4,'D','neg'),(4,'F','neg'),(1,'B','acc')]}
    def F(self, q, k):
        t, u = TILES[k]; o = []
        for r in range(8):
            for b in (2*t, 2*t+1):
                p, d, mode = self.CH_[q][b]
                T = tile(t, u) + (b & 1)*8 + r; W = Wreg(p, u) + r; D = self.R[d] + u
                if r == 0 and mode == 'new': o.append(f'v_mul_f32 v{D}, v{T}, v{W}')
                elif r == 0 and mode == 'neg': o.append(f'v_fma_f32 v{D}, v{T}, v{W}, -v{D}')
                else: o.append(f'v_fmac_f32 v{D}, v{T}, v{W}')
        return o
    SROW = {0: 0, 2: 1, 8: 2, 5: 3, 6: 4, 3: 5, 9: 6, 1: 7, 4: 8, 10: 9, 7: 10}
    def fin(self, q, ph, sp=None):
        sp = sCP if sp is None else sp
        R = self.R
        pairs = {0: [(0, 'A', 'B'), (1, 'D', 'C')], 1: [], 2: [(2, 'E', 'A')], 3: [(3, 'E', 'B'), (4, 'F', 'C')]}[q]
        o = []
        for (slot, x, y) in pairs: o += [f'v_permlane32_swap_b32 v{R[x]+u}, v{R[y]+u}' for u in range(2)]
        if q == 3: o.append(f'v_permlane32_swap_b32 v{R["D"]}, v{R["D"]+1}')
        if ph == 1 and q == 0: o.append(f'v_lshl_add_u32 v{VPA}, v{VL2}, 1, s{sCP}')
        for (slot, x, y) in pairs: o += [f'v_add_f32 v{R[x]+u}, v{R[x]+u}, v{R[y]+u}' for u in range(2)]
        cv = [(slot, R[x], R[x]+1) for (slot, x, y) in pairs]
        if q == 3:
            o.append(f'v_add_f32 v{R["D"]}, -v{R["D"]}, -v{R["D"]+1}')
            cv.append((5, R['D'], R['D']))
        if cv and ph == 0:
            o.append(f's_set_gpr_idx_on s{sp}, gpr_idx(DST)\n' + ''.join(f'v_cvt_pk_bf16_f32 v{P0+slot}, v{lo}, v{hi}\n' for (slot, lo, hi) in cv) + 's_set_gpr_idx_off')
        elif cv:
            if q == 3: o.append(f'v_sub_u32 v{R["D"]+1}, v{VPA}, v{VH16}')
            for (slot, lo, hi) in cv: o.append(f'v_cvt_pk_bf16_f32 v{lo}, v{lo}, v{hi}')
            for (slot, lo, hi) in cv:
                o.append((f'ds_write_b32 v{VPA}, v{lo} offset:{slot*256}' if slot < 5 else f'ds_write_b16 v{R["D"]+1}, v{lo} offset:1280', [('P', False)]))
        return o
    def drop(self, line):
        x = opt('drop', '')
        if not x or not getattr(self, 'inunit', False) or '\n' in line.strip(): return False
        l = line.strip()
        if 'D' in x and l.startswith('buffer_load') and (f's[{sX}:' in l or f's[{sX2}:' in l): return True
        if 'P' in x and l.startswith('ds_write_b16'): return True
        if 'S' in x and l.startswith('v_permlane'): return True
        if 'C' in x and l.startswith('v_cvt_pk'): return True
        if 'B' in x and l.startswith('ds_read_b64_tr') and (f'v{VB0} ' in l or f'v{VB1} ' in l): return True
        if 'F' in x and l.startswith('v_fmac'): return True
        if 'A' in x and l.startswith(('v_lshlrev_b32','v_and_b32','v_cvt_pk')): return True
        if 'A' in x and l.startswith('v_mul_f32') and int(l.split()[1][1:-1]) < 64: return True
        if 'Y' in x and l.startswith(('ds_read_b128',)): return True
        if 'U' in x and l.startswith(('v_lshlrev_b32','v_and_b32')): return True
        if 'N' in x and l.startswith(('v_and_b32')): return True
        return False
    def emit(self, items, lg):
        for it in items:
            if isinstance(it, tuple) and it[0] == 'V':
                if not self.drop(it[1]): self.a(it[1])
                self.vq += [it[2]] * it[3]; continue
            if isinstance(it, tuple) and it[0] == 'wait' and len(it) > 2 and isinstance(it[2], str):
                idx = [k for k, t in enumerate(self.vq) if t == it[2]]
                if idx: cnt = len(self.vq) - 1 - idx[-1]; self.vq = self.vq[idx[-1]+1:]
                it = ('wait', it[1], cnt if idx else None)
            if isinstance(it, str):
                if not self.drop(it): self.a(it)
            elif it[0] != 'wait' and self.drop(it[0]):
                for t, o in it[1]: lg.issue(t, o)
            elif it[0] == 'wait':
                w = lg.waitline(it[1]); lw = w[len('s_waitcnt'):] if w else ''
                if len(it) > 2 and it[2] is not None: w = f's_waitcnt vmcnt({it[2]})' + lw
                if w: self.a(w)
            else:
                self.a(it[0])
                for t, o in it[1]: lg.issue(t, o)
    ENTRY = [('B', False)]*4 + [('a0', False)]*2 + [('y0', False)] + [('a1', False)]*2 + [('y1', False)]
    @staticmethod
    def cost(it):
        if isinstance(it, tuple):
            if it[0] == 'wait': return 1
            it = it[1] if it[0] == 'V' else it[0]
        return sum((2 if 'permlane' in l else 1) for l in it.strip().split('\n') if not l.strip().endswith(':'))
    def unit(self, nK, ph, half=False):
        a = self.a
        lg = LG(a, self.ENTRY)
        a(f'K2_U{nK}{"h" if half else ""}{ph}:')
        self.inunit = True
        n = 4 * nK
        BUD = opt('bud', 7)
        pre = seg(0)
        claim = (self.claim0() if ph == 0 else self.atomic())
        after = ([] if ph == 0 else [('wait', 'C')] + self.claimed()) + self.next_info(ph)
        if nK == 1: pre += claim
        pre += self.abuild(nK, half)
        if nK == 1:
            pre += after + (self.eread() if ph == 0 else [])
            for t in range(4): pre += self.sread(t)
            if ph == 0: pre += self.adma()
            for t in range(4): pre += self.gmad(t)
        x = -1 if nK == 1 else 2
        gaps = [[] for _ in range(4*n)]; tailg = [[] for _ in range(4*n)]
        hb = lambda j: half and j < n and j % nK == nK - 1
        hs = lambda j: hb(j) and j >= 4
        vmn = lambda i: 4 - hs(i+2) - hs(i+3) + (self.NEXTRA if (ph == 0 and x < i <= x + 3) else 0)
        for i in range(n):
            d = self.dma(i & 3, G + 2*((i+4) % nK), sOWN + (i+4)//nK) if i + 4 < n else self.dma(i & 3, G + 2*(i+4-n), sNX + (i+4-n))
            gaps[4*i] += self.bread(i + 1, hb(i + 1)); tailg[4*i] += [d[0]]; gaps[4*i+1] += [d[1]] + ([] if hs(i+4) else [d[2]])
            if i + 1 < n: tailg[4*i+3] += [('wait', 'B', vmn(i+1))]
        if ph == 1 and opt('es', 0):
            es = self.lab('es'); back = self.lab('back')
            self.ool(f'{es}:\n' + self.spre(VT0) + '\n' + '\n'.join(self.sload(VT0)[:8]) + f'\ns_branch {back}')
            gaps[4*(n - opt('esp', 4)) if nK > 1 else 4*2] += [f's_cmp_eq_u32 s{sNV}, 0\ns_cbranch_scc1 {es}\n{back}:']
        used = lambda g: sum(map(self.cost, gaps[g] + tailg[g]))
        def place(items, g0, g1):
            g = g0
            for it in items:
                while g < g1 and used(g) + self.cost(it) > BUD and used(g) > 1: g += 1
                gaps[g].append(it)
            return g
        DEF = opt('defer', True) and nK > 1
        if nK > 1:
            for t in range(4):
                place(self.sread(t), 4*(n-6+t) + 2, 4*(n-6+t) + 3)
                place(self.gmad(t), 4*(n-5+t) + 1, 4*(n-5+t) + 3)
        ndef = [0]*4
        for q in range(1, 4):
            g0 = 4*q*nK
            if DEF:
                f3 = self.F(q-1, 3)
                room = [max(0, BUD - used(g0 + k)) for k in range(3)]
                m = min(16, sum(room)); ndef[q-1] = m
                f3 = f3[16-m:]
                for k in range(3):
                    gaps[g0 + k] += f3[:room[k]]; f3 = f3[room[k]:]
            place(self.fin(q-1, ph), g0 + (3 if DEF else 1), 4*(q*nK + nK - 1) + (1 if nK > 1 else 3))
        PRE = opt('pre', 0)
        pub = [f'v_mov_b32 v{VT0}, s{sPROGW}', f'v_mov_b32 v{VT1}, s{sCB}',
               (f's_mov_b64 exec, 1\nds_write_b32 v{VT0}, v{VT1}\ns_mov_b64 exec, -1', [('P', False)])] if (PRE and ph == 1) else []
        gf = place(self.fin(3, ph, sPP), 1, 4*(nK - 1) + (1 if nK > 1 else 3))
        if nK == 1: gaps[gf] += pub
        if nK > 1:
            if ph == 0:
                g = place(claim + after, 1, 5)
                place(self.eread(), max(g, 5), 7)
                place(self.adma(), 4*x + 3, 4*x + 3)
            else:
                place(claim, 1, 3)
                g1 = 4*(n-6) + 2
                keep = gaps[g1]; k0 = [i for i, it in enumerate(keep) if isinstance(it, str) and f'v{VSO}' in it]
                moved = keep[k0[0]:] if k0 else []
                if k0: gaps[g1] = keep[:k0[0]]
                place(after, 5, g1)
                gaps[g1] += moved
                place(pub, max(gf, opt('pubg', 6)), 4*(n-2))
        if True:
            upd = [f's_sub_u32 s{sLIM}, s{sNBs}, s{sCB}', f's_mov_b32 s{sCB}, s{sNBs}', f's_mov_b32 s{sC4}, s{sN4}',
                   (f's_cmp_eq_u32 s{sNPH}, 0' if ph == 0 else f's_cmp_lg_u32 s{sNV}, 0') + f'\ns_cselect_b32 s{sEX}, s{sEX}, 0']
            upd.insert(3, f's_bfe_u32 s{sEX}, s{sN4}, 0x40012')
            place(upd, 4*(n-2) + 1, 4*(n-1) + 1)
            gl = max([g for g in range(4*n) if any(('gpr_idx' in (it if isinstance(it, str) else it[0])) or (f's{sCP}' in (it if isinstance(it, str) else it[0])) for it in gaps[g])] + [4*(n-2)])
            place([f's_mov_b32 s{sPP}, s{sCP}', f's_mov_b32 s{sCP}, s{sNP}'], gl, max(gl, 4*(n-1) + 2))
        nf0 = [0]*4
        if nK > 1:
            for q in range(4):
                g = 4*(q*nK + nK - 1) + 2
                nf0[q] = max(0, BUD - used(g))
                gaps[g] += self.F(q, 0)[:nf0[q]]
        pb = opt('pb', 1) if (PRE and ph == 1) else 0
        self.emit([f's_setprio {opt("prioa", 1) + pb}'] + pre + seg(1) + [('wait', 'B', vmn(0))] + ([f's_setprio {opt("prio", 1) + pb}'] if opt("prio", 1) != opt("prioa", 1) else []), lg)
        for i in range(n):
            q, s = divmod(i, nK)
            for k, (t, u) in enumerate(TILES):
                c = f'v[{tile(t,u)}:{tile(t,u)+15}]' if s else '0'
                bb = BR + (i & 1)*8 + u*4
                w = 1 if hb(i) else 3
                if 'M' not in opt('drop', ''): a(f'v_mfma_f32_32x32x{8 if hb(i) else 16}_bf16 v[{tile(t,u)}:{tile(t,u)+15}], v[{AR+s*8+t*4}:{AR+s*8+t*4+w}], v[{bb}:{bb+w}], {c}')
                g = 4*i + k
                if k == 3 and s == nK - 1:
                    self.emit([f's_setprio {opt("prio0", 0) + pb}'] + gaps[g] + seg(2+2*q) + self.F(q, 0)[nf0[q]:], lg)
                    if q < 3:
                        fb = self.F(q, 1) + self.F(q, 2) + self.F(q, 3)[:16-ndef[q]]
                        self.emit(fb + seg(3+2*q) + [f's_setprio {opt("prio", 1) + pb}'], lg)
                else: self.emit(gaps[g], lg)
                self.emit(tailg[g], lg)
        end = [f's_sub_u32 s{sT}, s{sNBs}, s{sCB}', f'v_add_u32 v{VAO}, s{sT}, v{VAO}', f'v_add_u32 v{VYO}, s{sT}, v{VYO}']
        if opt('dsp', 1): end = [f'v_add_u32 v{VAO}, s{sLIM}, v{VAO}', f'v_add_u32 v{VYO}, s{sLIM}, v{VYO}']
        end = [end + self.F(3, 1) + self.areads(0) + self.areads(1) + self.F(3, 2) + self.F(3, 3),
               end + self.F(3, 1) + self.areads(0) + self.F(3, 2) + self.areads(1) + self.F(3, 3),
               end + self.F(3, 1) + self.F(3, 2) + self.areads(0) + self.areads(1) + self.F(3, 3)][opt('ypos', 1)]
        self.emit(end, lg)
        if SEG:
            a('s_memtime s[94:95]\ns_waitcnt lgkmcnt(0)')
            def acc(d, i, j): a(f's_sub_u32 s67, s{76+2*j}, s{76+2*i}\ns_add_u32 s{d}, s{d}, s67')
            acc(96, 0, 1)
            for q in range(4): acc(97, 1+2*q, 2+2*q)
            for q in range(3): acc(98, 2+2*q, 3+2*q)
            acc(99, 8, 9)
            a(f's_add_u32 s100, s100, {nK}\ns_add_u32 s101, s101, 1')
        assert [x for x in lg.q if x[0] != 'P'] == self.ENTRY, lg.q
        self.inunit = False
        self.dispatch(ph)
    HALF = {0: [int(c) for c in opt('half0', '3') if c != '0'], 1: [int(c) for c in opt('half1', '3') if c != '0']}
    def target(self, code, ph):
        nK = code >> 1
        return f'K2_U{nK}{"h" if (not code & 1 and nK in self.HALF[ph]) else ""}{ph}'
    def dispatch(self, ph, check=True):
        if not check:
            self.a(f"""
            s_mov_b32 s{sCB}, s{sNBs}
            s_mov_b32 s{sPP}, s{sCP}
            s_mov_b32 s{sC4}, s{sN4}
            s_mov_b32 s{sCP}, s{sNP}
            s_bfe_u32 s{sEX}, s{sN4}, 0x40012""")
        for code in (5, 6): self.a(f's_cmp_eq_u32 s{sEX}, {code}\ns_cbranch_scc1 {self.target(code, ph)}')
        self.a(f's_branch K2_DSP{ph}')

    def wload(self, ph, vl16, paths, dst):
        for k, p in enumerate(paths):
            self.a(f's_mov_b32 s{sT}, {WS_WTAB + ph*10240 + p*2048}')
            for u in range(2): self.a(f'buffer_load_dwordx4 v[{dst(p)+4*u}:{dst(p)+4*u+3}], v{vl16}, s[{sWS}:{sWS+3}], s{sT} offen offset:{u*1024} sc1')
    def wunp(self, paths, src):
        return [f'v_lshlrev_b32 v{WR+16*p+2*i}, 16, v{src(p)+i}\nv_and_b32 v{WR+16*p+2*i+1}, 0xffff0000, v{src(p)+i}' for p in paths for i in range(8)]

    def fill_rows(self, vL, base):
        return f'''
        v_and_b32 v76, 31, v{vL}
        v_lshrrev_b32 v77, 5, v{vL}
        v_mov_b32 v80, 0
        v_mul_u32_u24 v77, {NSTR}, v77
        v_mov_b32 v81, 0xffff0000
        v_lshl_add_u32 v78, v76, 4, v77
        v_mov_b32 v82, 0
        v_add_u32 v78, {base}, v78
        v_mov_b32 v83, v81
        '''
    def fill_slots(self, vL, base):
        return f'''
        v_add_u32 v85, 16, v{vL}
        v_lshlrev_b32 v84, 5, v{vL}
        v_lshrrev_b32 v85, 6, v85
        v_mul_u32_u24 v85, {E4}, v85
        v_sub_u32 v84, v84, v85
        v_mov_b32 v85, -1
        v_add_u32 v84, {base}, v84
        '''
    def fill_all(self, vL):
        a = self.a
        a(f's_mul_i32 s{sT}, s{sW}, {5*NSTR}\ns_add_u32 s{sT}, s{sT}, {RECBASE}\ns_add_u32 s{sT+1}, s{sT}, {OA}' + self.fill_rows(vL, f's{sT}') + self.fill_slots(vL, f's{sT+1}'))
        for i in range(5): a(f'ds_write_b32 v84, v85 offset:{i*NSTR}')
        a('s_mov_b32 exec_hi, 0')
        for i in range(5): a(f'ds_write_b128 v78, v[80:83] offset:{i*NSTR}')
        a('s_mov_b32 exec_hi, -1')
    def fill_w5(self):
        a = self.a
        a(self.fill_rows(8, RECBASE) + f'v_add_u32 v79, {20*NSTR}, v78')
        for i in range(20): a(f'ds_write_b128 v{78 + i//10}, v[80:83] offset:{(i%10)*2*NSTR}')
    def fill_w6(self, n0, n1):
        a = self.a
        if n0 >= n1: return
        a(self.fill_slots(8, RECBASE + OA + n0*NSTR) + f'v_add_u32 v86, {20*NSTR}, v84')
        for i in range(n1 - n0): a(f'ds_write_b32 v{84 + 2*(i//20)}, v85 offset:{(i%20)*NSTR}')
    def counters(self, vL, first):
        self.a(f'''
        v_mov_b32 v76, 0
        v_mov_b32 v77, -1
        v_lshlrev_b32 v78, 2, v{vL}
        v_add_u32 v78, {HIST}, v78
        s_mov_b64 exec, 0x1ff
        ds_write_b32 v78, v76 offset:{PROG-HIST}
        s_mov_b32 exec_lo, -1
        ds_write_b32 v78, v77 offset:{NULLSRC-HIST}
        s_mov_b64 exec, -1
        {'' if first else f's_cmp_lg_u32 s{sRND}, 0'}
        {'' if first else f's_cbranch_scc1 K2_NOH'}
        s_mov_b32 exec_hi, 0xffff
        ds_write_b32 v78, v76
        s_mov_b64 exec, 1
        ds_write_b32 v78, v76 offset:{FLAG-HIST}
        s_mov_b64 exec, -1
        ''')
    def srds(self):
        a = self.a
        srd(a, sX, 80, N*1024); srd(a, sOUT, 96, N*1024); srd(a, sEA, 84, E*32)
        a('s_sub_u32 s80, s80, 1024\ns_subb_u32 s81, s81, 0'); srd(a, sX2, 80, N*1024 + 1024)
    def consts(self, vL):
        self.a(f'''
        v_and_b32 v84, 15, v{vL}                ; i
        v_lshrrev_b32 v85, 5, v{vL}             ; h
        v_bfe_u32 v86, v{vL}, 4, 1
        v_lshrrev_b32 v87, 2, v84
        v_and_b32 v88, 3, v84                   ; c
        v_lshl_add_u32 v89, v85, 2, v87
        v_lshlrev_b32 v{VAO}, 6, v89
        v_lshl_add_u32 v{VAO}, v88, 3, v{VAO}
        v_add_u32 v{VAO}, {OA}, v{VAO}
        v_lshrrev_b32 v90, 3, v84
        v_lshl_add_u32 v90, v90, 1, v86
        v_sub_u32 v90, v90, 1 clamp
        v_lshlrev_b32 v{VYO}, 1, v90
        v_lshl_add_u32 v91, v85, 2, v88
        v_lshl_add_u32 v{VYO}, v91, 4, v{VYO}
        v_and_b32 v91, 1, v87
        v_lshl_add_u32 v{VYO}, v91, 3, v{VYO}
        v_lshrrev_b32 v90, 1, v88
        v_lshl_add_u32 v90, v86, 1, v90         ; chunk (u = 0)
        v_bfe_u32 v91, v87, 1, 1
        v_lshlrev_b32 v91, 2, v91
        v_xor_b32 v90, v90, v91
        v_lshlrev_b32 v90, 4, v90
        v_lshl_add_u32 v90, v89, 7, v90
        v_and_b32 v91, 1, v88
        v_lshl_add_u32 v90, v91, 3, v90
        v_add_u32 v{VB0}, s{sRING}, v90
        v_xor_b32 v{VB1}, 64, v{VB0}
        v_lshrrev_b32 v90, 3, v{vL}
        v_lshlrev_b32 v{VSO}, 4, v90
        v_bfe_u32 v90, v90, 1, 1
        v_lshlrev_b32 v90, 2, v90
        v_and_b32 v91, 7, v{vL}
        v_xor_b32 v90, v90, v91
        v_lshlrev_b32 v{VLG}, 4, v90
        v_lshlrev_b32 v{VL2}, 1, v{vL}
        v_and_b32 v{VH16}, 1, v{vL}
        v_lshlrev_b32 v{VH16}, 4, v{VH16}
        v_lshrrev_b32 v90, 1, v{vL}
        v_lshlrev_b32 v90, 5, v90
        v_add_u32 v{VEO}, {OA}, v90
        ''')
    def pad(self, name, ret):
        return f'K2_PAD_{name}:\ns_branch {ret}' if name in opt('pads', self.PADS).split('_') and opt('pad', 1) else ''
    def padx(self, name, ret):
        return f'K2_PAD_{name}:\ns_cbranch_execz {ret}' if name in opt('pads', self.PADS).split('_') and opt('pad', 1) else ''
    PADS = 'S1_S2_H1_H2_H3_B3_LD_NW_SC_SD_U20_U30_U21_U31_SW_TL_T2'
    def hops(self, names, ret):
        if not opt('pad', 1): return
        self.a('s_mov_b64 exec, 0')
        for w, n in names:
            if n in opt('pads', self.PADS).split('_'): self.a(f's_cmp_eq_u32 s{sW}, {w}\ns_cbranch_scc1 K2_PAD_{n}')
        self.a(f'{ret}:\ns_mov_b64 exec, -1')
    def stage_sort(self, vL, vT_):
        a = self.a; st = mod('recst', 'sc1')
        RAW = 24576
        a(f"""
        s_cmp_lg_u32 s{sW}, 7
        s_cbranch_scc1 KS_NOTAG
        s_mov_b32 s24, {WS_EPO}
        s_mov_b64 exec, 1
        buffer_load_dword v14, v6, s[{sWS}:{sWS+3}], s24 offen sc1
        s_mov_b64 exec, -1
        """)
        XP = opt('xp', 0)
        def xtouch():
            srd(a, 60, 80, N*1024)
            a(f's_lshr_b32 s24, s2, 3\ns_mul_i32 s24, s24, {313*1024}\nv_lshlrev_b32 v15, 8, v8')
            for i in range(XP):
                for o in [int(x) for x in opt('xpo', '0').split('_')]: a(f'buffer_load_dword v16, v15, s[60:63], s24 offen offset:{o} {mod("xpm", "")}')
                a(f's_add_u32 s24, s24, {16*1024}')
        TL = opt('tl', '')
        if TL:
            a(f's_mov_b32 s24, {opt("tls", 160000)}\nv_mul_lo_u32 v15, v8, s24')
            for c in TL:
                if c == 'w': a(f'v_lshrrev_b32 v17, 1, v15\nbuffer_load_dword v16, v17, s[{sWS}:{sWS+3}], 0 offen')
                else:
                    srd(a, 60, {'x': 80, 'e': 84, 'o': 96}[c], N*1024)
                    a('buffer_load_dword v16, v15, s[60:63], 0 offen')
        if XP and opt('xpp', 0) == 0: xtouch()
        sstamp(a, 1); a('s_barrier'); sstamp(a, 3)
        if XP and opt('xpp', 0) == 1: xtouch()
        self.counters(8, True)
        self.fill_w6(opt('n6', 40), 40)
        a(f"""
        s_mov_b64 exec, 1
        v_mov_b32 v12, {NONCE}
        s_mov_b32 s24, 1664525
        s_waitcnt vmcnt({min(63, len(TL) + XP*len(opt('xpo', '0').split('_')))})
        v_mul_lo_u32 v14, v14, s24
        v_add_u32 v14, 1013904223, v14
        ds_write_b32 v12, v14
        KS_TAGOK2:
        s_mov_b64 exec, -1
        {'s_memrealtime s[86:87]' if PROFS else ''}
        s_waitcnt lgkmcnt(0)
        s_barrier
        s_branch KS_B3
        KS_H0:
        s_barrier
        s_branch KS_HELP
        {self.pad('S1', 'KS_HOP0')}
        KS_NOTAG:
        s_cmp_ge_u32 s{sW}, 5
        s_cbranch_scc1 {'KS_H0' if opt('eb1', 0) else 'KS_HELP'}
        s_cmp_ge_u32 s2, {NCH}
        s_cbranch_scc1 KS_IDLE
        """)
        srd(a, 40, 88, E*4)
        a(f'buffer_load_dwordx4 v[12:15], v5, s[40:43], s64 offen')
        srd(a, 44, 86, E*4); srd(a, 48, 82, E*6)
        a(f"""
        buffer_load_dwordx4 v[16:19], v5, s[44:47], s64 offen
        buffer_load_dwordx4 v[20:23], v4, s[48:51], s65 offen
        buffer_load_dwordx2 v[24:25], v4, s[48:51], s65 offen offset:16
        v_lshlrev_b32 v2, 2, v0                 ; t*4
        s_lshl_b32 s64, s64, 3
        v_lshl_add_u32 v3, v0, 7, s64
        v_mov_b32 v7, 1
        s_cmp_eq_u32 s{sW}, 4
        s_cbranch_scc1 KS_NOCLR
        ds_write_b32 v2, v6
        KS_NOCLR:
        """)
        sstamp(a, 1); a('s_waitcnt lgkmcnt(0)\ns_barrier'); sstamp(a, 3)
        self.hops([(0, 'B3'), (1, 'LD'), (2, 'NW'), (3, 'SC'), (4, 'SD')], 'KS_HOP')
        a(f's_mov_b32 s58, {PMUL}\ns_movk_i32 s59, 625\ns_waitcnt vmcnt(3)')
        sstamp(a, 5)
        sort_rank(a, self.padx('S2', 'KS_HOP0'))
        a('s_waitcnt lgkmcnt(0)')
        for j in range(4): a(f'ds_read_b32 v{32+j}, v{32+j} offset:1024')
        sort_emit(a, st)
        a(f"""
        s_branch KS_JOIN
        {self.pad('B3', 'KS_HOP')}
        KS_B3:
        v_mov_b32 v59, {NONCE}
        ds_read_b32 v59, v59
        s_waitcnt lgkmcnt(0)
        s_barrier
        KS_JOIN:
        v_readfirstlane_b32 s{sTAG}, v59
        """)
        stamp(a, 6)
    def helpers(self):
        a = self.a; RAW = 24576
        a(f"""
        {self.pad('H1', 'KS_HOP0')}
        KS_HELP:
        {'s_memrealtime s[78:79]' if PROFS else ''}
        s_mov_b32 s30, 0
        s_cmp_eq_u32 s{sW}, 6
        s_cbranch_scc1 KS_RAW
        s_mov_b32 s30, 2
        s_cmp_ge_u32 s2, 170
        s_cbranch_scc1 KS_NOW
        s_mov_b32 s30, 1
        """)
        weight_loads(a)
        a('K1_GO:\nKS_NOW:\n' + ('' if opt('eb1', 0) else 's_barrier\n') + self.padx('H2', 'KS_HOP0'))
        sstamp(a, 3)
        self.fill_w5()
        a('KS_FILL:')
        sstamp(a, 5)
        a(f'v_mov_b32 v59, {NONCE}\ns_barrier\nds_read_b32 v59, v59')
        a(f"""
        s_waitcnt vmcnt(0) lgkmcnt(0)
        s_cmp_eq_u32 s30, 0
        s_cbranch_scc1 KS_B3
        s_cmp_eq_u32 s30, 2
        s_cbranch_scc1 KS_NOST
        v_lshl_or_b32 v40, v65, 16, v64
        v_lshl_or_b32 v41, v67, 16, v66
        v_lshl_or_b32 v42, v69, 16, v68
        v_lshl_or_b32 v43, v71, 16, v70
        buffer_store_dwordx4 v[40:43], v9, s[{sWS}:{sWS+3}], s24 offen sc1
        KS_NOST:
        s_waitcnt lgkmcnt(0)
        s_barrier
        s_lshl_b32 s24, s2, 2
        s_add_u32 s24, s24, {WS_FLG}
        s_mov_b64 exec, 1
        s_waitcnt vmcnt(0)
        buffer_store_dword v59, v6, s[{sWS}:{sWS+3}], s24 offen sc1
        s_mov_b64 exec, -1
        s_branch KS_JOIN
        {self.pad('H3', 'KS_HOP0')}
        KS_RAW:
        {'' if opt('eb1', 0) else 's_barrier'}
        """)
        srd(a, 60, 90, 16*640*2)
        a('v_lshrrev_b32 v10, 3, v8\nv_and_b32 v11, 7, v8\nv_lshlrev_b32 v10, 8, v10\nv_lshl_add_u32 v10, v11, 4, v10')
        for i in range(20):
            a(f's_mov_b32 m0, {(W1L if i >= 10 else RAW) + (i % 10)*1024}\ns_movk_i32 s24, {(i % 10)*2048 + (i // 10)*128}\nbuffer_load_dwordx4 v10, s[60:63], s24 offen lds')
        sstamp(a, 3)
        self.fill_w6(0, opt('n6', 40))
        a('s_branch KS_FILL\nKS_IDLE:\ns_barrier\ns_barrier\ns_branch KS_B3')
    def wraw(self, vL2, t, base, dst):
        a = self.a
        a(f'''
        v_lshrrev_b32 v{t}, 6, v{vL2}             ; h
        v_bfe_u32 v{t+1}, v{vL2}, 3, 2            ; row
        v_lshl_add_u32 v{t}, v{t}, 2, v{t+1}
        v_mul_u32_u24 v{t}, 640, v{t}
        v_bfe_u32 v{t+1}, v{vL2}, 5, 1
        v_lshl_add_u32 v{t}, v{t+1}, 5, v{t}
        v_and_b32 v{t+1}, 6, v{vL2}
        v_lshl_add_u32 v{t}, v{t+1}, 2, v{t}
        v_add_u32 v{t}, {base}, v{t}
        ''')
        for i in range(20):
            p, u, rq = i >> 2, (i >> 1) & 1, i & 1
            a(f'ds_read_b64_tr_b16 v[{dst(p)+2*(i&3)}:{dst(p)+2*(i&3)+1}], v{t} offset:{rq*8*640 + p*128 + u*64}')

    def gen(self):
        a = self.a
        vL, vT_, vC, vE, vREM, vOFF = 176, 177, 178, 179, 180, 181
        RK = 40
        NBs = 50
        t0 = 192
        ws = f's[{sWS}:{sWS+3}]'
        def loop(done, body):
            for i in range(U):
                a(f'v_cmp_lt_i32 vcc, {2*i}, v{vREM}\ns_cbranch_vccz {done}\ns_mov_b64 exec, vcc')
                a(body(i))
            a(f'{done}:\ns_mov_b64 exec, -1')
        a('s_cmp_ge_u32 s2, 256\ns_cbranch_scc1 K2_END')
        stamp(a, 0)
        a(f'''
        s_load_dwordx16 s[80:95], s[0:1], 0
        s_load_dwordx4 s[96:99], s[0:1], 72
        s_load_dwordx2 s[100:101], s[0:1], 88   ; ws
        v_lshrrev_b32 v1, 6, v0
        s_mov_b32 s{sB}, s2
        v_readfirstlane_b32 s{sW}, v1
        ''')
        self.hops([(0, 'S1'), (1, 'S2'), (5, 'H1'), (6, 'H2'), (2, 'H3')], 'KS_HOP0')
        a(f'''
        v_and_b32 v8, 63, v0
        v_lshlrev_b32 v9, 4, v8                 ; lane*16
        v_mov_b32 v6, 0
        v_lshlrev_b32 v5, 4, v0                 ; t*16
        v_mul_u32_u24 v4, 24, v0
        s_mul_i32 s64, s2, {CH*4}
        s_mul_i32 s65, s2, {CH*6}
        v_mov_b32 v{vL}, v8
        v_mov_b32 v{vT_}, v0
        s_lshr_b32 s{sNB}, s2, 1
        s_mul_i32 s{sNB}, s{sNB}, 625
        s_add_u32 s{sNC}, s{sNB}, {625+7}
        s_add_u32 s{sNB}, s{sNB}, 7
        s_lshr_b32 s{sNB}, s{sNB}, 3
        s_lshr_b32 s{sNC}, s{sNC}, 3
        s_add_u32 s24, s{sNB}, {SPL}
        s_sub_u32 s{sNC}, s{sNC}, s24
        s_bitcmp1_b32 s2, 0
        s_cselect_b32 s{sNB}, s24, s{sNB}
        s_cselect_b32 s{sNC}, s{sNC}, {SPL}
        s_movk_i32 s{s1024}, 1024
        s_lshl_b32 s{sRING}, s{sW}, 13
        s_mov_b32 s{sPROG}, {PROG}
        s_lshl_b32 s{sPROGW}, s{sW}, 2
        s_add_u32 s{sPROGW}, s{sPROGW}, s{sPROG}
        {chr(10).join(f's_add_u32 s{sM0+i}, s{sRING}, {i*2048}' for i in range(4))}
        s_waitcnt lgkmcnt(0)
        ''')
        if opt('wsoff', 0): a(f's_add_u32 s100, s100, {opt("wsoff", 0) << 20}\ns_addc_u32 s101, s101, 0')
        srd(a, sWS, 100, WS_SIZE)
        self.stage_sort(vL, vT_)
        a(f'''
        s_mov_b32 s{sJ0}, 0
        s_mov_b32 s{sFIRST}, 1
        {chr(10).join(f's_mov_b32 s{i}, 0' for i in range(96, 102)) if SEG else ''}
        s_mov_b32 s{sRND}, 0
        s_mov_b32 s{sR}, 1
        K2_CELLS:
        v_lshrrev_b32 v{vC}, 1, v{vT_}          ; cell
        v_min_u32 v{vC}, {NCH-1}, v{vC}
        v_mul_u32_u24 v72, {TSTR}, v{vC}
        s_and_b32 s{sT}, s{sB}, 7
        s_lshl_b32 s{sT}, s{sT}, 7
        s_lshr_b32 s{sT+1}, s{sB}, 5
        s_lshl_b32 s{sT+1}, s{sT+1}, 4
        s_add_u32 s{sT+9}, s{sT}, s{sT+1}
        s_add_u32 s{sT+9}, s{sT+9}, {WS_TBL}
        buffer_load_dwordx4 v[76:79], v72, {ws}, s{sT+9} offen sc1
        ''')
        a(f's_cmp_eq_u32 s{sFIRST}, 0\ns_cbranch_scc1 K2_NOSRD')
        self.srds()
        self.hops([(0, 'U20'), (1, 'U30'), (2, 'U21'), (3, 'U31'), (4, 'SW'), (5, 'TL'), (6, 'T2')], 'K2_HOP')
        a('K2_NOSRD:')
        self.consts(vL)
        def chk(r): return f"""
            v_xor_b32 v73, s{sT+1}, v{r}
            v_xor_b32 v74, s{sT+1}, v{r+1}
            v_or_b32 v73, v73, v74
            v_xor_b32 v74, s{sTAG}, v{r+3}
            v_lshrrev_b32 v73, 22, v73
            v_or_b32 v73, v73, v74
            v_cmp_ne_u32 vcc, 0, v73"""
        a(f'''
        s_lshl_b32 s{sT+1}, s{sTAG}, 22
        s_mov_b32 s{sT+2}, 0x40000
        s_bfe_u32 s{sT+3}, s{sB}, 0x10004
        s_bfe_u32 s{sT+4}, s{sB}, 0x10003
        s_add_u32 s{sT+5}, s{sT+3}, s{sT+4}
        s_mul_i32 s{sT+4}, s{sT+4}, 11
        s_sub_u32 s{sT+6}, 11, s{sT+4}
        v_cmp_gt_u32 vcc, {2*NCH}, v{vT_}
        s_mov_b64 s[{sEX}:{sEX+1}], vcc
        K2_POLL:
        ''')
        if opt('poll2', 0): a(f'''
        buffer_load_dwordx4 v[80:83], v72, {ws}, s{sT+9} offen sc1
        s_waitcnt vmcnt(1)
        {chk(76)}
        s_cbranch_vccz K2_POLLED
        s_sub_u32 s{sT+2}, s{sT+2}, 1
        s_cbranch_scc1 K2_END
        buffer_load_dwordx4 v[76:79], v72, {ws}, s{sT+9} offen sc1
        s_waitcnt vmcnt(1)
        {chk(80)}
        s_cbranch_vccnz K2_POLL
        s_add_u32 s{sT+3}, s{sT+3}, 4
        s_add_u32 s{sT+5}, s{sT+5}, 4
        ''')
        else: a(f'''
        s_waitcnt vmcnt(0)
        {chk(76)}
        s_cbranch_vccz K2_POLLED
        s_sub_u32 s{sT+2}, s{sT+2}, 1
        s_cbranch_scc1 K2_END
        s_mov_b64 exec, vcc
        buffer_load_dwordx4 v[76:79], v72, {ws}, s{sT+9} offen sc1
        s_mov_b64 exec, -1
        s_branch K2_POLL
        {self.pad('LD', 'KS_HOP')}
        ''')
        a(f'''
        K2_POLLED:
        s_set_gpr_idx_on s{sT+3}, gpr_idx(SRC0)
        v_bfe_u32 v{vE}, v76, s{sT+4}, 11
        s_set_gpr_idx_idx s{sT+5}
        v_bfe_u32 v73, v76, s{sT+6}, 11
        s_set_gpr_idx_off
        v_sub_u32 v73, v73, v{vE}
        ''')
        o = Asm(); sv = self.a; self.a = o
        o(f'''
        K2_WINDOW:
        s_mov_b32 s{sRND}, 0
        s_mov_b32 s{sR}, 1
        K2_LOAD:
        v_mbcnt_lo_u32_b32 v{vL}, -1, 0
        v_mbcnt_hi_u32_b32 v{vL}, -1, v{vL}
        s_lshl_b32 s{sT}, s{sW}, 6
        v_add_u32 v{vT_}, s{sT}, v{vL}
        v_lshlrev_b32 v70, 4, v{vL}
        ''')
        self.wload(0, 70, range(5), lambda p: WR + 40 + 8*p)
        self.fill_all(vL)
        o(f's_cmp_lg_u32 s{sW}, 7\ns_cbranch_scc1 K2_NOH')
        self.counters(vL, False)
        o('K2_NOH:\ns_waitcnt lgkmcnt(0)\ns_barrier\ns_branch K2_CELLS')
        self.a = sv; self.ool(o.text())
        stamp(a, 1)
        a(f'''
        v_cndmask_b32 v73, 0, v73, s[{sEX}:{sEX+1}]
        v_and_b32 v1, 1, v{vT_}
        v_add_u32 v1, s{sJ0}, v1                ; j0 + sub
        v_sub_u32 v{vREM}, v73, v1
        v_add_u32 v{vE}, v{vE}, v1
        v_mul_u32_u24 v{vOFF}, {CSTR}, v{vC}
        v_lshl_add_u32 v{vOFF}, v{vE}, 4, v{vOFF}
        ''')
        MK = [f's[{r}:{r+1}]' for r in (40, 42, 44, 46, 48, 50, 90, 92, 94, 96)]
        def mloop(done, body):
            for i in range(U): a(f's_mov_b64 exec, {MK[i]}\ns_cbranch_execz {done}\n' + body(i))
            a(f'{done}:\ns_mov_b64 exec, -1')
        M = opt('cm', 1); NL = opt('nl', 3); vOFM, vEM = vOFF + 1, vOFF + 4; LIST = 45056
        adr = lambda i, r, rm, st: f'v{rm + i - M}, {{}} offen' if M <= i < M + NL else f'v{r}, {{}} offen offset:{st*i}'
        ld = lambda i: f'buffer_load_dwordx4 v[{4*i}:{4*i+3}], ' + adr(i, vOFF, vOFM, 32).format(f'{ws}, 0') + ' sc1'
        for i in range(M): a(f'v_cmp_lt_i32 {MK[i]}, {2*i}, v{vREM}')
        a(f'v_add_u32 v{vOFM}, {32*M}, v{vOFF}\ns_mov_b32 s{sT+7}, 0')
        for i in range(M):
            a(f's_mov_b64 exec, {MK[i]}\n{ld(i)}')
        a('s_mov_b64 exec, -1')
        for i in range(M, U): a(f'v_cmp_lt_i32 {MK[i]}, {2*i}, v{vREM}')
        for j in range(1, NL): a(f'v_add_u32 v{vOFM+j}, {32*(M+j)}, v{vOFF}')
        a(f"""
        v_subrev_u32 v62, {2*M - 1}, v{vREM}
        v_ashrrev_i32 v62, 1, v62
        v_med3_i32 v62, v62, 0, {U - M}
        s_cmp_eq_u64 {MK[M]}, 0
        s_cbranch_scc1 K2_LD_DONE
        v_mov_b32 v63, v62
        """)
        scan(a, 63)
        a(f"""
        s_lshl_b32 s{sT}, s{sW}, 10
        s_add_u32 s{sT}, s{sT}, {LIST}
        v_readlane_b32 s{sT+1}, v63, 63
        v_sub_u32 v63, v63, v62
        v_lshl_add_u32 v64, v63, 2, s{sT}
        v_lshlrev_b32 v63, 5, v63
        v_sub_u32 v63, v{vOFM}, v63
        s_cmp_gt_u32 s{sT+1}, {63*NL}
        s_cbranch_scc1 K2_LD_GEN
        """)
        for i in range(M, U): a(f's_mov_b64 exec, {MK[i]}\ns_cbranch_execz K2_LD_L\nds_write_b32 v64, v63 offset:{4*(i-M)}')
        a(f"""
        K2_LD_L:
        s_mov_b64 exec, -1
        v_lshl_add_u32 v63, v{vL}, 2, s{sT}
        v_lshlrev_b32 v62, 5, v{vL}
        s_waitcnt lgkmcnt(0)
        """)
        for j in range(NL): a(f'ds_read_b32 v{64+j}, v63 offset:{4*63*j}')
        for j in range(NL): a(f's_min_u32 s{sT+2}, s{sT+1}, 63\ns_sub_u32 s{sT+1}, s{sT+1}, s{sT+2}\ns_bfm_b64 {MK[M+j]}, s{sT+2}, 0')
        a(f's_mov_b64 {MK[M+NL]}, 0\ns_mov_b32 s{sT+7}, 1')
        for j in range(NL):
            a(f's_mov_b32 s{sT+2}, {32*63*j}\ns_waitcnt lgkmcnt({NL-1-j})\nv_add3_u32 v{vOFM+j}, v62, v{64+j}, s{sT+2}\ns_mov_b64 exec, {MK[M+j]}\n{ld(M+j)}')
        a(f"""
        K2_LD_DONE:
        s_mov_b64 exec, -1
        """)
        self.ool('K2_LD_GEN:\n' + ''.join(f's_mov_b64 exec, {MK[i]}\ns_cbranch_execz K2_LD_DONE\n{ld(i)}\n' for i in range(M, U)) + 's_branch K2_LD_DONE')
        a(f"""
        s_cmp_eq_u32 s{sFIRST}, 0
        s_cbranch_scc1 K2_WLATE
        """)
        self.ool('K2_WLATE:\ns_waitcnt vmcnt(0)\ns_branch K2_WUNP')
        self.wraw(VL2, 60, 24576, lambda p: WR + 40 + 8*p)
        a('s_waitcnt lgkmcnt(0)\nK2_WUNP:')
        for x in self.wunp(range(5), lambda p: WR + 40 + 8*p): a(x)
        a(f"""
        K2_NOWRAW:
        {self.padx('NW', 'KS_HOP')}
        v_lshrrev_b32 v{vE}, 2, v{vOFF}
        {chr(10).join(f'v_lshrrev_b32 v{vEM+j}, 2, v{vOFM+j}' for j in range(NL))}
        s_mov_b32 s{sT+8}, {WS_RANK}
        v_mov_b32 v{t0+9}, 1
        s_movk_i32 s{sT}, {NSTR//4}
        s_movk_i32 s{sT+1}, {NSTR}
        s_mov_b32 s{sT+2}, 0x40000
        s_mov_b32 s{sT+3}, 0xffff
        v_mov_b32 v{t0+10}, {RECBASE}
        s_cmp_lg_u32 s{sRND}, 0
        s_cbranch_scc1 K2_RK_LOAD
        v_cmp_lt_i32 vcc, {2*U}, v{vREM}
        s_cbranch_vccz K2_NOMORE
        v_mov_b32 v61, {FLAG}
        ds_write_b32 v61, v{t0+9}
        K2_NOMORE:
        s_mov_b32 s{sT+4}, {RECBASE + opt("tp", 8)*NSTR}
        s_cmp_eq_u32 s{sT+7}, 0
        s_waitcnt vmcnt({NL})
        s_cbranch_scc0 K2_ARR
        s_waitcnt vmcnt(0)
        K2_ARR:
        """)
        stamp(a, 2)
        prep = lambda i: f'v_mad_u32_u24 v{NBs+i}, v{NBs+i}, s{sT}, v{t0+10}\nv_and_b32 v{4*i+3}, 0xffffff, v{4*i+3}'
        def rank(i):
            self.ool(f'K2_RT{i}:\ns_sub_u32 s{sT+2}, s{sT+2}, 1\ns_cbranch_scc1 K2_END\n{ld(i)}\ns_waitcnt vmcnt(0)\ns_branch K2_CK{i}')
            return (f's_waitcnt vmcnt({M + NL - 1 - i})\n' if M <= i < M + NL else '') + f"""K2_CK{i}:
            v_bfi_b32 v{t0}, s{sT+3}, v{4*i+1}, v{4*i+2}
            v_lshrrev_b32 v{NBs+i}, 24, v{4*i+3}
            v_cmp_ne_u32 vcc, s{sTAG}, v{t0}
            v_add_u32 v{RK+i}, {HIST}, v{NBs+i}
            s_cbranch_vccnz K2_RT{i}
            ds_add_rtn_u32 v{RK+i}, v{RK+i}, v{t0+9}
            """ + (prep(i).split('\n')[0] if (opt('tp', 8)) else prep(i))
        mloop('K2_RK_A', rank)
        a(pstamp(5))
        if opt('tp', 8):
            mloop('K2_TP', lambda i: f'v_cmp_gt_u32 vcc, s{sT+4}, v{NBs+i}\n' + prep(i).split('\n')[1] + f'\ns_mov_b64 exec, vcc\nbuffer_load_dword v245, v{4*i+3}, s[{sEA}:{sEA+3}], 0 offen {mod("tpm", "")}')
        o = Asm(); b = a; a = o
        a(f'K2_RK_LOAD:\ns_waitcnt vmcnt(0)')
        mloop('K2_RK_B', lambda i: f'v_lshrrev_b32 v{NBs+i}, 24, v{4*i+3}\nbuffer_load_dword v{RK+i}, ' + adr(i, vE, vEM, 8).format(f'{ws}, s{sT+8}') + '\n' + prep(i))
        a(f's_mul_i32 s{sT+4}, s{sRND}, 48\ns_waitcnt vmcnt(0)')
        for i in range(U): a(f'v_subrev_u32 v{RK+i}, s{sT+4}, v{RK+i}')
        a('s_branch K2_RK_DONE')
        self.ool(o.text()); a = b
        a(f"""
        K2_RK_DONE:
        {self.padx('SC', 'KS_HOP')}
        s_mul_i32 s{sT+9}, s{sRND}, 48
        s_movk_i32 s{sT}, {-E4}
        s_waitcnt lgkmcnt(0)
        {pstamp(7)}
        """)
        for i in range(U):
            rr = RK + i; base = NBs + i
            a(f"""s_mov_b64 exec, {MK[i]}
            s_cbranch_execz K2_SC_DONE
            v_cmpx_gt_u32 vcc, 64, v{rr}
            v_bfe_u32 v{t0+2}, v{rr}, 3, 1
            v_add_u32 v{t0+1}, 16, v{rr}
            v_lshl_or_b32 v{t0+2}, v{rr}, 1, v{t0+2}
            v_bfi_b32 v{t0+2}, 15, v{t0+2}, v{rr}
            v_lshrrev_b32 v{t0+1}, 6, v{t0+1}
            v_alignbit_b32 v{4*i+1}, v{4*i+2}, v{4*i+1}, 16
            v_lshl_add_u32 v{t0+3}, v{t0+2}, 3, v{base}
            v_lshl_add_u32 v{t0+2}, v{t0+2}, 5, v{base}
            ds_write_b64 v{t0+3}, v[{4*i}:{4*i+1}]
            v_mad_i32_i24 v{t0+2}, v{t0+1}, s{sT}, v{t0+2}
            ds_write_b32 v{t0+2}, v{4*i+3} offset:{OA}
            """)
        d = t0 + 1; k = t0 + 2; e = t0 + 3; p = t0 + 4; x = t0 + 5; pl = t0 + 6
        a(f'''
        K2_SC_DONE:
        s_mov_b64 exec, -1
        {self.padx('SD', 'KS_HOP')}
        v_lshlrev_b32 v{t0}, 2, v{vL}
        v_add_u32 v{t0}, {HIST}, v{t0}
        v_mov_b32 v{t0+8}, {FLAG}
        s_cmp_eq_u32 s{sRND}, 0
        s_cselect_b32 s{sLIM}, 64, 48
        {pstamp(8)}
        s_waitcnt lgkmcnt(0)
        {pstamp(9)}
        s_barrier
        {pstamp(10)}
        ds_read_b32 v{d}, v{t0}
        ds_read_b32 v{t0+8}, v{t0+8}
        v_cmp_gt_u32 s[{sEX}:{sEX+1}], s{sNC}, v{vL}
        v_mad_u32_u24 v{e}, v{vL}, s{sT+1}, v{t0+10}
        s_waitcnt lgkmcnt(0)
        v_cndmask_b32 v{d}, 0, v{d}, s[{sEX}:{sEX+1}]
        v_readfirstlane_b32 s{sMORE}, v{t0+8}
        v_cmp_lt_u32 s[{sT+4}:{sT+5}], 48, v{d}
        v_cmp_lt_u32 vcc, 64, v{d}
        s_bcnt1_i32_b64 s{sT+2}, s[{sT+4}:{sT+5}]
        v_mbcnt_lo_u32_b32 v{pl}, s{sT+4}, 0
        v_mbcnt_hi_u32_b32 v{pl}, s{sT+5}, v{pl}
        s_cbranch_vccnz K2_BIG
        s_cmp_gt_u32 s{sT+2}, {NPOOL}
        s_cbranch_scc1 K2_BIG
        K2_TOK:
        v_subrev_u32 v{k}, s{sT+9}, v{d}
        v_max_i32 v{k}, 1, v{k}
        v_min_i32 v{k}, s{sLIM}, v{k}
        v_add_u32 v{k}, 15, v{k}
        v_lshrrev_b32 v{k}, 3, v{k}
        v_lshl_or_b32 v{e}, v{k}, 18, v{e}
        v_lshl_or_b32 v{e}, v{pl}, 27, v{e}
        v_mov_b32 v{x}, {NULLBASE | (3 << 18)}
        v_cndmask_b32 v{VTAB}, v{x}, v{e}, s[{sEX}:{sEX+1}]
''')
        o = Asm(); b = a; a = o
        a(f'''
        K2_BIG:
        s_cmp_lg_u32 s{sRND}, 0
        s_cbranch_scc1 K2_TOK
        s_movk_i32 s{sLIM}, 48
        v_mov_b32 v{x}, v{d}
        ''')
        scan(a, x, 'v_max_u32')
        for dd in range(48, 512*U + 48): assert (dd * 43691) >> 21 == dd // 48
        a(f'''
        v_readlane_b32 s{sR}, v{x}, 63
        s_add_u32 s{sR}, s{sR}, 47
        s_mul_i32 s{sR}, s{sR}, 43691
        s_lshr_b32 s{sR}, s{sR}, 21
        ''')
        for i in range(U):
            a(f's_mov_b64 exec, {MK[i]}\ns_cbranch_execz K2_SV_DONE\nbuffer_store_dword v{RK+i}, ' + adr(i, vE, vEM, 8).format(f'{ws}, s{sT+8}'))
        a('K2_SV_DONE:\ns_mov_b64 exec, -1\ns_branch K2_TOK')
        self.ool(o.text()); a = b
        for q in range(4): a(f's_movk_i32 s{sOWN+q}, {q*256 + 128*(FL >> q & 1)}')
        a(f'''
        s_add_u32 s{sRND}, s{sRND}, 1
        s_cmp_ge_u32 s{sRND}, s{sR}
        s_cselect_b32 s{sLAST}, 1, 0
        s_cmp_eq_u32 s{sMORE}, 0
        s_cselect_b32 s{sLAST}, s{sLAST}, 0
        s_mov_b32 s{sSPIN}, 0x400000
        s_mov_b32 s{sJ}, 0
        s_mov_b32 s{sNPH}, 0
        s_mov_b32 s{sNP}, 0
        s_mov_b32 s{sNV}, 1
        s_mov_b32 s{sCP}, 0
        s_mov_b32 s{sT}, s{sW}
        ''')
        lg = LG(a)
        self.emit(self.next_info(0), lg)
        stamp(a, 3)
        pre = self.eread()
        for t in range(4): pre += self.sread(t)
        pre += self.adma()
        for t in range(4): pre += self.gmad(t)
        for t in range(4): pre += self.dma(t, G + 2*t, sNX + t) + (['s_barrier'] if t == opt('fbar', -1) else [])
        pre += [f'v_add_u32 v{VAO}, s{sNBs}, v{VAO}', f'v_add_u32 v{VYO}, s{sNBs}, v{VYO}']
        pre += [pstamp(11), 's_waitcnt vmcnt(6)']
        self.emit(pre, lg)
        stamp(a, 4)
        self.emit(self.bread(0) + self.areads(0) + self.areads(1), lg)
        self.dispatch(0, check=False)
        self.helpers()
        for ph in range(2):
            for nK in (2, 3):
                a(self.pad(f'U{nK}{ph}', 'K2_HOP'))
                self.unit(nK, ph, nK == 3 and 3 in self.HALF[ph])
            if 3 in self.HALF[ph]: self.unit(3, ph)
            if 2 in self.HALF[ph]: self.unit(2, ph, True)
        hot = self.outline; self.outline = []
        a(self.pad('SW', 'K2_HOP'))
        for ph in range(2):
            a(f'K2_DSP{ph}:')
            for code in (4, 7): a(f's_cmp_eq_u32 s{sEX}, {code}\ns_cbranch_scc1 {self.target(code, ph)}')
            a(f's_cmp_gt_u32 s{sEX}, 7\ns_cbranch_scc1 K2_U4{ph}\ns_cmp_lg_u32 s{sEX}, 0\ns_cbranch_scc1 K2_U1{ph}' + ('\ns_branch K2_TAIL' if ph else '\ns_branch K2_SWITCH'))
        a('K2_SWITCH:')
        stamp(a, 5)
        fl = f'buffer_load_dwordx4 v[56:59], v60, {ws}, s{sT+6} offen sc1'
        a(f'v_lshlrev_b32 v60, 3, v{VL2}\ns_mov_b32 s{sT+6}, {WS_FLG}\n{fl}')
        self.emit(self.fin(3, 0, sPP if opt('dsp', 1) else None), LG(a))
        a(f'v_lshl_add_u32 v{VPA}, v{VL2}, 1, s{sNP}\nv_lshrrev_b32 v{VH16}, 6, v{VL2}\nv_mul_u32_u24 v{VH16}, 126, v{VH16}')
        WP = lambda p: WR + 16*p + 8
        self.wraw(VL2, VT0, W1L, WP)
        for q in range(4): a(f's_movk_i32 s{sOWN+q}, {q*256 + 128*(~FL >> q & 1)}')
        for p in range(5):
            a(f's_waitcnt lgkmcnt({min(15, 16 - 4*p)})')
            for x in self.wunp((p,), WP): a(x)
        a(f"""
        K2_FLGW:
        s_or_b32 s{sT}, s{sB}, s{sW}
        s_waitcnt vmcnt(0)
        v_xor_b32 v56, s{sTAG}, v56
        v_xor_b32 v57, s{sTAG}, v57
        v_xor_b32 v58, s{sTAG}, v58
        v_xor_b32 v59, s{sTAG}, v59
        v_or3_b32 v56, v56, v57, v58
        v_or_b32 v56, v56, v59
        v_cmp_ne_u32 vcc, 0, v56
        s_cbranch_vccnz K2_FLGR
        s_cmp_eq_u32 s{sT}, 0
        s_cbranch_scc1 K2_FLGY
        K2_FLGOK:
        s_cmp_eq_u32 s{sNV}, 0
        s_cbranch_scc1 K2_TAIL2
        """)
        self.ool(f"""
        K2_FLGR:
        s_sub_u32 s{sSPIN}, s{sSPIN}, 16
        s_cbranch_scc1 K2_END
        {fl}
        s_branch K2_FLGW
        K2_FLGY:
        v_mov_b32 v56, s{sTAG}
        v_mov_b32 v57, {WS_EPO}
        s_mov_b64 exec, 1
        buffer_store_dword v56, v57, {ws}, 0 offen sc1
        s_mov_b64 exec, -1
        s_branch K2_FLGOK
        """)
        if not FUSE: stamp(a, 6)
        self.dispatch(1, check=False)
        isunit = lambda t: t.startswith(('K2_dyn', 'K2_dum', 'K2_nul', 'K2_spin', 'K2_es'))
        for t in hot:
            if isunit(t): a(t)
        a(self.pad('TL', 'K2_HOP'))
        self.tail()
        for t in hot:
            if not isunit(t): a(t)
        for ph in range(2):
            for nK in (1, 4): self.unit(nK, ph)
        for t in self.outline: a(t)
        a('K2_END:\ns_endpgm')
        return a.lines, 256

    @staticmethod
    def sreg(f): return WR + 16*(0, 2, 1, 3, 4)[f >> 2] + 4*(f & 3)
    def spre(self, v, at=0): return f'v_lshlrev_b32 v{v}, 3, v{VL2}\ns_mul_i32 s{sT}, s{sW}, {20*1024}\ns_add_u32 s{sT}, s{sT}, {WS_STAB + at*4096}'
    def sload(self, v, order=range(20), at=0):
        sl = []
        for f in order:
            mv = ''
            if f // 4 != at: mv = f's_add_u32 s{sT}, s{sT}, {(f//4 - at)*4096 & 0xffffffff}\n'; at = f // 4
            sl.append(mv + f'buffer_load_dwordx4 v[{self.sreg(f)}:{self.sreg(f)+3}], v{v}, s[{sWS}:{sWS+3}], s{sT} offen offset:{(f%4)*1024} sc1')
        return sl
    def tail(self):
        a = self.a
        ws = f's[{sWS}:{sWS+3}]'
        vP0 = 222; vP1 = 223; vS = 226; vSP = 227; vRow = 228; vL16 = 229
        vQ0 = 232; vSt = 254; vS2 = 255; vS3 = 246; vQ0a = 247; vQ1a = 248; vRow2 = 249
        OP = 176
        PRE = opt('pre', 0); ES = opt('es', 0); assert not (PRE and ES)
        order = [4, 5, 6, 7, 14, 15, 16, 17, 18, 19, 0, 1, 2, 3, 8, 9, 10, 11, 12, 13] if PRE else list(range(20))
        sl = self.sload(vL16, order)
        rowb = f'\ns_mul_i32 s{sT+1}, s{sW}, {8192+32}'
        done = [f'v_mov_b32 v{VT0}, s{sPROGW}', f'v_mov_b32 v{VT1}, -1', f's_mov_b64 exec, 1\nds_write_b32 v{VT0}, v{VT1}\ns_mov_b64 exec, -1'] if PRE else []
        NE = opt('ne', 6 if ES else 8); N0 = 8 if ES else 0
        adr = [f'v_lshl_add_u32 v{vRow}, v{VL2}, 1, s{sT+1}', f'v_lshrrev_b32 v{vS}, 6, v{VL2}', f'v_mul_u32_u24 v{vS}, 126, v{vS}', f'v_sub_u32 v{vS}, v{vRow}, v{vS}']
        a('K2_TAIL2:\n' + self.spre(vL16) + rowb)
        for x in sl[:N0 + NE] + adr: a(x)
        a('s_branch K2_TAIL3\nK2_TAIL:')
        stamp(a, 7)
        a(self.spre(vL16, 1 if ES else 0) + rowb)
        f3 = self.fin(3, 1) + adr; w = []; m = (len(f3) + NE - 1) // NE if NE else 0
        for i in range(NE): w += [sl[N0 + i]] + f3[m*i:m*i+m]
        self.emit(w + f3[m*NE:], LG(a))
        a('K2_TAIL3:')
        for x in done: a(x)
        a(f's_waitcnt vmcnt({NE})')
        dump = []
        if opt('w2st', 1):
            rows = [(P0 + 6*j + k, 6*j + k) for j in range(5) for k in range(5)]
            for i in range(0, 24, 2): dump.append(f'ds_write2st64_b32 v{vRow}, v{rows[i][0]}, v{rows[i+1][0]} offset0:{rows[i][1]} offset1:{rows[i+1][1]}')
            dump.append(f'ds_write_b32 v{vRow}, v{rows[24][0]} offset:{rows[24][1]*256}')
            for j in range(5): dump.insert(4*j + 2, f'ds_write_b16 v{vS}, v{P0+6*j+5} offset:{j*1536 + 1280}')
        else:
            for j in range(5):
                for k in range(5): dump.append(f'ds_write_b32 v{vRow}, v{P0+6*j+k} offset:{j*1536 + k*256}')
                dump.append(f'ds_write_b16 v{vS}, v{P0+6*j+5} offset:{j*1536 + 1280}')
        assert RECBASE % 256 == 0 and NSTR % 256 == 32
        DS = opt('ds', 0)
        dsa = f"""s_add_u32 s{sT+2}, s{sNB}, 32
        s_sub_u32 s{sT+3}, s{sNC}, 32
        v_add_u32 v51, s{sT+2}, v54
        v_cmp_gt_u32 vcc, s{sT+3}, v54
        v_lshl_add_u32 v51, v51, 10, v49
        v_mov_b32 v53, 0x7ff00000
        v_cndmask_b32 v51, v53, v51, vcc
        v_lshl_add_u32 v{vS3}, v55, 9, v51
        v_lshl_add_u32 v{vS2}, v55, 30, v51"""
        calc = f"""
        v_bfe_u32 v48, v{VL2}, 1, 4             ; n & 15
        v_lshrrev_b32 v49, 5, v{VL2}            ; slab
        v_lshrrev_b32 v55, 3, v48
        v_lshlrev_b32 v52, 4, v49               ; slab*16
        v_lshl_add_u32 v54, v55, 2, v48
        v_and_b32 v54, 7, v54                   ; node of the last group in column n
        v_and_b32 v50, 7, v48
        v_mul_u32_u24 v50, {8192+32}, v50
        v_mul_u32_u24 v51, 1536, v55
        v_add_u32 v50, v50, v51                 ; slot of node n
        v_add_u32 v{vP0}, v50, v52
        v_mul_u32_u24 v51, {8192+32}, v54
        v_add_u32 v{vQ0}, v51, v52
        v_lshl_add_u32 v{vQ0a}, v55, 7, v{vQ0}
        v_mul_u32_u24 v51, {NSTR}, v48
        s_mov_b32 s{sT+2}, {RECBASE}
        v_add3_u32 v{vP1}, v51, v52, s{sT+2}
        v_mul_u32_u24 v51, {NSTR}, v54
        s_mov_b32 s{sT+2}, {RECBASE + 32*NSTR}
        v_add3_u32 v{vP1+2}, v51, v52, s{sT+2}
        v_lshl_add_u32 v{vQ1a}, v55, 7, v{vP1+2}
        s_lshl_b32 s{sT+2}, s{sW}, 5
        v_lshl_add_u32 v49, v49, 3, s{sT+2}
        {dsa if DS else f's_mov_b32 s{sT+2}, {RECBASE}' + chr(10) + f'v_add3_u32 v{vS2}, v51, v49, s{sT+2}' + chr(10) + f'v_lshl_add_u32 v{vS3}, v55, 9, v{vS2}'}
        v_bfe_u32 v53, v48, 2, 1
        v_lshl_add_u32 v49, v53, 4, v49
        v_add_u32 v{vSt}, v50, v49
        s_and_b32 s{sT+6}, s{sLAST}, s{sFIRST}  ; plain single-round case
        """.strip().split('\n')
        rest = sl[N0 + NE:]; per = max(2, (len(dump) + len(rest) - 1) // max(1, len(rest)))
        while dump or rest:
            for x in dump[:per] + rest[:1] + calc[:2]: a(x)
            dump = dump[per:]; rest = rest[1:]; calc = calc[2:]
        for x in calc: a(x)
        if PRE: a(f'v_lshl_add_u32 v48, v{VL2}, 1, s{sPROG}\nds_read_b32 v49, v48\ns_mov_b32 s{sT+7}, {RECBASE + 32*NSTR}')
        a('s_waitcnt lgkmcnt(0)')
        late = f"""
        s_bfe_u32 s{sT+2}, s{sW}, 0x10002
        s_lshl_b32 s{sT+2}, s{sT+2}, 4
        s_add_u32 s{sT+1}, s{sT+1}, s{sT+2}
        v_add_u32 v{vRow}, s{sT+1}, v{vL16}
        {'' if DS else f's_mul_i32 s{sT+2}, s{sW}, {NSTR}' + chr(10) + f's_add_u32 s{sT+2}, s{sT+2}, {RECBASE}' + chr(10) + f'v_add_u32 v{vRow2}, s{sT+2}, v{vL16}'}
        s_mov_b32 s{sT+5}, 0xbfb8aa3b           ; -log2(e)
        s_add_u32 s{sOWN}, s{sW}, s{sNB}
        s_lshl_b32 s{sOWN}, s{sOWN}, 10
        """.strip().split('\n') + [f's_add_u32 s{sOWN+j}, s{sOWN}, {j*8192}' for j in range(1, 4 if DS else 5)]
        late = [x for x in late if x.strip()]
        if PRE:
            a(f"""s_cmp_eq_u32 s{sT+6}, 0
            s_cbranch_scc1 K2_MULTI
            K2_PREW:
            v_cmp_gt_u32 vcc, s{sT+7}, v49
            s_setprio {opt('pp', 0)}
            s_and_b32 s{sT+8}, vcc_lo, 0xff
            s_cbranch_scc1 K2_PRES""")
            self.ool(f'K2_PRES:\ns_sub_u32 s{sSPIN}, s{sSPIN}, 1\ns_cbranch_scc1 K2_END\nds_read_b32 v49, v48\ns_waitcnt lgkmcnt(0)\ns_branch K2_PREW')
            stamp(a, 8)
        else:
            stamp(a, 8); a('s_barrier'); stamp(a, 9)
            a(f's_cmp_eq_u32 s{sT+6}, 0\ns_cbranch_scc1 K2_MULTI')
        part = {}
        for g in range(3):
            def ad(ph, row, hh, packed=False):
                o = self.SROW[row]*128 + hh*64
                if g < 2: return (vP1, g*16*NSTR + o) if ph else (vP0, g*3072 + o)
                return ((vQ1a if packed else vP1+2), o) if ph else ((vQ0a if packed else vQ0), 4*1536 + o)
            for ph in range(2):
                part[g, ph, 0] = [(16*g, ph*4 + rs*2 + hh) + ad(ph, rs, hh) for rs in range(2) for hh in range(2)]
                part[g, ph, 1] = [(16*g + 4 + 4*j, 8 + ph*6 + path*2 + hh) + ad(ph, 2 + 3*j + path, hh, j == 0) for path in range(3) for hh in range(2) for j in range(3 if g < 2 else 2)]
        seq = [(g, ph, o) for g in range(3) for o in range(2) for ph in range(2)]
        if PRE: seq = [(0,1,0), (1,1,0), (0,1,1), (1,1,1), (0,0,0), (1,0,0), (0,0,1), (1,0,1)] + seq[8:]
        GF = opt('gf', 1) and not PRE
        if GF: seq = [(g, ph, 0) for g in range(3) for ph in range(2)] + [(g, ph, 1) for g in range(3) for ph in range(2)]
        steps = [x for k in seq for x in part[k]]
        if GF and opt('il', 0): steps[:24] = [part[g, ph, 0][i] for ph in range(2) for i in range(4) for g in range(3)]
        for path in range(3): assert self.SROW[8 + path] == self.SROW[2 + path] + 1
        NB = 12; D = 10
        def epi(g, part=3):
            c = 16*g; o = OP + 8*(g & 1); s = []; tp = 204 + 4*g; o0 = 220 if g == 2 else o
            if part & 1:
                for r in range(4): s.append(f'v_mul_f32 v{tp+r}, s{sT+5}, v{c+r}')
                for r in range(4): s.append(f'v_exp_f32 v{tp+r}, v{tp+r}')
                for r in range(4): s.append(f'v_add_f32 v{tp+r}, 1.0, v{tp+r}')
                for r in range(4): s.append(f'v_rcp_f32 v{tp+r}, v{tp+r}')
                s += [f'v_cvt_pk_bf16_f32 v{o0}, v{c}, v{c+1}', f'v_cvt_pk_bf16_f32 v{o0+1}, v{c+2}, v{c+3}']
            if part & 2:
                for j in range(3 if g < 2 else 2):
                    for r in range(4): s.append(f'v_mul_f32 v{c+4+4*j+r}, v{c+4+4*j+r}, v{tp+r}')
                    s += [f'v_cvt_pk_bf16_f32 v{o+2+2*j}, v{c+4+4*j}, v{c+5+4*j}', f'v_cvt_pk_bf16_f32 v{o+3+2*j}, v{c+6+4*j}, v{c+7+4*j}']
            return s
        def stage(g, part=3):
            o = OP + 8*(g & 1)
            if g < 2: w = [(rt, vSt, g*3072) for rt in range(4)]
            else: w = [(0, vS2, 0), (1, vS3, 0), (2, vS2, 0)]
            src = lambda rt: 220 if (g, rt) == (2, 0) else o + 2*rt
            if g == 2 and DS: return [f'buffer_store_dwordx2 v[{src(rt)}:{src(rt)+1}], v{r}, s[{sOUT}:{sOUT+3}], 0 offen offset:{rt*256} {mod("outst2","sc1")}' for rt, r, b in w if part & (2 if rt else 1)]
            return [(f'ds_write_b64 v{r}, v[{src(rt)}:{src(rt)+1}] offset:{b + rt*256}', [(f'w{g}', False)]) for rt, r, b in w if part & (2 if rt else 1)]
        def rowread(g):
            if g == 2: return [(f'ds_read_b128 v[200:203], v{vRow2}', [('r2', False)])]
            return [(f'ds_read_b128 v[{192+4*(j&1)}:{195+4*(j&1)}], v{vRow} offset:{j*1536}', [(f'r{g}', False)]) for j in (2*g, 2*g+1)]
        def rowstore(g):
            s = [('wait', f'r{g}')]
            for j in ((2*g, 2*g+1) if g < 2 else (4,)):
                b = 192 + 4*(j & 1) if g < 2 else 200
                s += [f'buffer_store_dwordx4 v[{b}:{b+3}], v{vL16}, s[{sOUT}:{sOUT+3}], s{sOWN+j} offen {mod("outst","sc1")}']
            return s
        def gemm(lg, extra):
            def rd(k):
                c, f, r, o = steps[k]
                b = 48 + 4*(k % NB)
                self.emit([(f'ds_read_b128 v[{b}:{b+3}], v{r} offset:{o}', [(f'k{k}', False)])], lg)
            D0 = opt('d0', D); nxt = D0
            for k in range(D0): rd(k)
            seen = [-1]; started = set()
            for k in range(len(steps)):
                c, f, r, o = steps[k]
                for _ in range(2):
                    if nxt <= k + D and nxt < len(steps): rd(nxt); nxt += 1
                vm = None
                if order.index(f) > seen[0]: seen[0] = order.index(f); vm = 19 - seen[0]
                kk = min(k + 1, len(steps) - 1) if (opt('w2', 1) and k % 2 == 0) else k
                self.emit([('wait', f'k{kk}', vm)], lg)
                b = 48 + 4*(k % NB)
                cin = f'v[{c}:{c+3}]' if c in started else '0'; started.add(c)
                a(f'v_mfma_f32_16x16x32_bf16 v[{c}:{c+3}], v[{self.sreg(f)}:{self.sreg(f)+3}], v[{b}:{b+3}], {cin}')
                self.emit(extra.get(k, []), lg)
        lg = LG(a); extra = {}
        def spread(items, k0, k1):
            for i, x in enumerate(items): extra.setdefault(k0 + i*(k1 - k0 + 1)//len(items), []).append(x)
        spread(late, 2, 8)
        if self.padx('T2', 'K2_HOP'): extra.setdefault(opt('t2k', 41), []).append(self.padx('T2', 'K2_HOP'))
        b0 = opt('b0', 72 if PRE else 62 if GF else 46); e0 = opt('e0', 84 if PRE else 80 if GF else 64); b1 = opt('b1', 86 if DS else 98 if GF else 90); r0 = opt('r0', 92 if DS else 104 if GF else 98); e1 = opt('e1', 108 if DS else 113 if GF else 108)
        b2 = opt('b2', 113); r1 = opt('r1', 118); assert GF or not DS
        bA = min(opt('bA', 33), 44 - D - 1)
        if PRE:
            extra.setdefault(bA, []).extend(([f's_memtime s[{76+2*9}:{77+2*9}]'] if 0 else []) + ['s_barrier'] + ([f'{"s_memtime" if opt("cyc", False) else "s_memrealtime"} s[94:95]'] if PROF else []))
            spread(epi(0, 1), 50, opt('g0', 60))
            spread(epi(1, 1), opt('g0', 60) + 1, opt('g1', 71))
            extra.setdefault(b0, []).append('s_barrier')
            spread(epi(0, 2), 72, e0)
            extra.setdefault(e0 + 1, []).extend(stage(0))
        elif GF:
            il = opt('il', 0); g0 = opt('g0', 36 if il else 26); g1 = opt('g1', 47 if il else 42)
            spread(epi(0, 1), 25 if il else 11, g0); spread(epi(1, 1), g0 + 1, g1); spread(epi(2, 1), g1 + 1, opt('g2', 58))
            extra.setdefault(b0, []).append('s_barrier')
            spread(epi(0, 2), 60 + 3, e0)
            extra.setdefault(e0 + 1, []).extend(stage(0) + stage(2, 1))
        else:
            spread(epi(0, 1), 12, 40)
            if not opt('nob0', 0): extra.setdefault(b0, []).append('s_barrier')
            spread(epi(0, 2), 44 + 3, e0)
            extra.setdefault(e0 + 1, []).extend(stage(0))
            spread(epi(1, 1), e0 + 2, 86)
        extra.setdefault(b1, []).extend([('wait', 'w2' if (GF and not DS) else 'w0')] + ([] if opt('nob1', 0) else ['s_barrier']) + rowread(0))
        spread(epi(1, 2), (96 if GF else 88) + 3, e1)
        extra.setdefault(r0, []).extend(rowstore(0))
        extra.setdefault(e1 + 1, []).extend(stage(1))
        if DS:
            extra.setdefault(b2, []).extend([('wait', 'w1'), 's_barrier'] + rowread(1))
            extra.setdefault(r1, []).extend(rowstore(1))
        if not GF:
            spread(epi(2, 1), max(e1 - 8, 100), 117)
            extra.setdefault(118, []).extend(stage(2, 1))
        if opt('gp', 1):
            for k0, k1 in ((bA if PRE else -1, b0), (b0, b1), (b1, b2 if DS else len(steps))):
                fr = [float(x) for x in opt('gpf', '0.3_0.6_0.87').split('_')]
                if k0 >= 0: extra.setdefault(k0, []).append('s_setprio 3')
                for i, f in enumerate(fr): extra.setdefault(k0 + int((k1 - k0)*f), []).append(f's_setprio {2-i}')
            if not PRE: a('s_setprio 3')
        if PROFT:
            for i, k in enumerate((0, 23, 59, 81, 97, 113) if GF else (0, 8, 43, 66, 87, 104)): extra.setdefault(k, []).append(f'{"s_memtime" if opt("cyc", False) else "s_memrealtime"} s[{78+2*i}:{79+2*i}]')
        if opt('noepi', 0): extra = {k: [x for x in v if not (isinstance(x, str) and x.startswith(('v_cvt', 'v_exp', 'v_rcp', 'v_mul_f32', 'v_add_f32')[:opt('noepi', 0)]))] for k, v in extra.items()}
        gemm(lg, extra)
        stamp(a, 10)
        if DS:
            e = epi(2, 2); st = stage(2, 2)
            self.emit(e[:6] + st[:1] + e[6:] + st[1:], lg)
        else:
            self.emit(epi(2, 2) + stage(2, 2) + [('wait', 'w2'), 's_barrier'] + rowread(1) + rowread(2) + rowstore(1), lg)
            a(f'K2_LASTROW:\ns_add_u32 s{sT+1}, s{sW}, 32\ns_cmp_ge_u32 s{sT+1}, s{sNC}\ns_cbranch_scc1 K2_FIN\ns_waitcnt lgkmcnt(0)')
            self.emit(rowstore(2), LG(a))
        a('K2_FIN:')
        if PROF:
            stamp(a, 11); a('s_waitcnt vmcnt(0)'); stamp(a, 12); stamp_out(a, 13, 1, sW, sB, sWS)
        a('s_endpgm')
        a('K2_MULTI:' + ('\ns_barrier' if PRE else ''))
        lg = LG(a)
        gemm(lg, {})
        a(f"""
        s_lshl_b32 s{sT+2}, s{sB}, 9
        s_lshl_b32 s{sT+3}, s{sW}, 6
        s_add_u32 s{sT+2}, s{sT+2}, s{sT+3}
        s_mul_i32 s{sT+2}, s{sT+2}, 192
        s_add_u32 s{sT+2}, s{sT+2}, {WS_ACC}
        v_mul_u32_u24 v{vSP}, 96, v{VL2}        ; lane*192
        s_cmp_lg_u32 s{sFIRST}, 0
        s_cbranch_scc1 K2_NOACC
        """)
        for i in range(11): a(f'buffer_load_dwordx4 v[{48+4*i}:{51+4*i}], v{vSP}, {ws}, s{sT+2} offen offset:{16*i}')
        a('s_waitcnt vmcnt(0)')
        for i in range(44): a(f'v_add_f32 v{i}, v{i}, v{48+i}')
        a(f'K2_NOACC:\ns_barrier\ns_cmp_eq_u32 s{sLAST}, 0\ns_cbranch_scc1 K2_SPILL')
        self.emit(late, lg)
        for g in range(2):
            self.emit(epi(g) + stage(g) + [('wait', f'w{g}'), 's_barrier'] + rowread(g) + rowstore(g), lg)
        self.emit(epi(2) + stage(2) + ([] if DS else [('wait', 'w2'), 's_barrier'] + rowread(2)), lg)
        a(f's_branch {"K2_FIN" if DS else "K2_LASTROW"}\nK2_SPILL:')
        for i in range(11): a(f'buffer_store_dwordx4 v[{4*i}:{4*i+3}], v{vSP}, {ws}, s{sT+2} offen offset:{16*i}')
        a(f"""
        s_mov_b32 s{sFIRST}, 0
        s_waitcnt vmcnt(0)
        s_cmp_lt_u32 s{sRND}, s{sR}
        s_cbranch_scc1 K2_LOAD
        s_add_u32 s{sJ0}, s{sJ0}, {2*U}
        s_branch K2_WINDOW
        """)

HEADER = '''; Kernarg layout for this problem (96 bytes, ptrs only, base s[0:1]):
'''
def kd(name, vgpr):
    return f'''.amdhsa_kernel {name}
  .amdhsa_next_free_vgpr {vgpr}
  .amdhsa_next_free_sgpr {102}
  .amdhsa_accum_offset {(vgpr+3)//4*4}
  .amdhsa_group_segment_fixed_size 0
  .amdhsa_kernarg_size 96
  .amdhsa_user_sgpr_count 2
  .amdhsa_user_sgpr_kernarg_segment_ptr 1
  .amdhsa_system_sgpr_workgroup_id_x 1
  .amdhsa_float_denorm_mode_32 3
.end_amdhsa_kernel
'''
def main():
    ks = []
    l2, v2 = K2().gen(); ks.append((NAME + '_kernel', fix_hazards(l2), v2))
    s = HEADER
    s += f'; @launch grid=(256,1,1) block=(512,1,1) lds={K2_LDS}\n'
    s += '.amdgcn_target "amdgcn-amd-amdhsa--gfx950"\n.text\n'
    for name, l, v in ks:
        s += f'.globl {name}\n.p2align 8\n.type {name},@function\n{name}:\n'
        s += '\n'.join((x if x.endswith(':') else '    ' + x) for x in l) + '\n'
    s += '.section .rodata,"a"\n' + ''.join('.p2align 6\n' + kd(name, v) for name, l, v in ks)
    out = sys.argv[1] if len(sys.argv) > 1 else f'/code/{NAME}.s'
    open(out, 'w').write(s)
    print('wrote', out, len(s), 'bytes')
main()
```

```python
import sys, os
sys.path.insert(0, os.path.dirname(os.path.abspath(__file__)))
from asmlib import Asm, fix_hazards

NAME = 'standalone__tensor_product_equiv_equiformer__graph'
N = 10000; E = 320000
NCH = 250; CH = E // NCH
CSTR = CH * 16 + 128
TSTR = 1024 + 128
WS_REC = 0
WS_TBL = 0x0600000
WS_STAB = 0x06A0000
WS_WTAB = 0x06C8000
WS_FLG = 0x06D8000
WS_EPO = WS_FLG + 2048
WS_RANK = 0x0700000
WS_PROF = 0x0900000
WS_ACC = 0x0A00000
WS_SIZE = 0x2400000
assert NCH * CSTR <= WS_TBL and WS_TBL + NCH * TSTR <= WS_STAB and WS_ACC + 256*512*192 <= WS_SIZE
OPT = dict(a.split('=') for a in sys.argv[2:]) if len(sys.argv) > 2 else {}
def opt(k, d): return type(d)(OPT.get(k, d)) if not isinstance(d, bool) else bool(int(OPT.get(k, d)))
def mod(k, d): return opt(k, d).replace('_', ' ')

PMUL = 214749; SPL = opt('spl', 40); PCUT = (1 << 24) - (SPL*8*(1 << 24) + 312)//625
for d in range(N):
    p_ = (d*8)//625; l_ = d - (625*p_ + 7)//8
    assert (d*PMUL) >> 24 == p_ and (((d*PMUL) & 0xffffff) + PCUT) >> 24 == (l_ >= SPL) and l_ - SPL*(l_ >= SPL) < 40
PROF = opt('prof', False)
FUSE = True
SEG = opt('seg', False)
def seg(i): return [f's_memtime s[{76+2*i}:{77+2*i}]'] if SEG else []
PROFS = opt('profs', False)
def sstamp(a, i):
    if PROFS: a(f's_memrealtime s[{76+2*i}:{77+2*i}]')
PROFT = opt('proft', False)

PROFP = opt('profp', False)
FL = opt('fl', 0)
def pstamp(i): return f's_memrealtime s[{76+2*i}:{77+2*i}]' if PROFP else ''
def stamp(a, i, t=False):
    if PROFP and i in (5, 7, 8, 9, 10, 11): return
    if opt('clk', 0):
        if i == 11: a('s_getreg_b32 s98, hwreg(HW_REG_XCC_ID)')
        if i in (7, 8, 10, 11): return
        if i in (4, 5, 9): a(f's_memtime s[{76+2*{4:7,5:8,9:10}[i]}:{77+2*{4:7,5:8,9:10}[i]}]')
    if PROFT and 1 <= i <= 6 and not t: return
    if PROFS and i in (1, 3, 5, 11, 12): return
    if PROF and not SEG: a(f'{"s_memtime" if opt("cyc", False) else "s_memrealtime"} s[{76+2*i}:{77+2*i}]')
def stamp_out(a, n, kern, swave, swg, srd_s):
    if not PROF: return
    if opt('dbgout', -1) >= 0:
        l = f'DBG_{kern}'
        a(f's_cmp_lg_u32 s{swg}, {opt("dbgout", -1)}\ns_cbranch_scc1 {l}\ns_cmp_lg_u32 s{swave}, 0\ns_cbranch_scc1 {l}')
        a(f's_load_dwordx2 s[58:59], s[0:1], 80\ns_waitcnt lgkmcnt(0)\ns_add_u32 s58, s58, {512*(1-kern)*opt("dbgk1", 0)}\ns_addc_u32 s59, s59, 0')
        srd(a, 60, 58, 256)
        a('s_mov_b64 exec, 1\nv_mov_b32 v1, 0')
        for i, o in ([(0, 0), (5, 14), (2, 15)] if kern == 0 else [(i, 1+i) for i in range(13)]):
            a(f'v_mov_b32 v2, s{76+2*i}\nbuffer_store_dword v2, v1, s[60:63], 0 offen offset:{4*o}')
        a(f's_mov_b64 exec, -1\n{l}:')
        return
    a('s_waitcnt lgkmcnt(0)')
    a(f's_lshl_b32 s67, s{swg}, 4\ns_add_u32 s67, s67, s{swave}\ns_lshl_b32 s67, s67, 6\ns_add_u32 s67, s67, {WS_PROF + kern*256*16*64}')
    a('s_mov_b64 exec, 1\nv_mov_b32 v1, 0')
    for i in range(n):
        a(f'v_mov_b32 v2, s{76+2*i if not SEG else 96+min(i,5)}\nbuffer_store_dword v2, v1, s[{srd_s}:{srd_s+3}], s67 offen offset:{4*i}')
    a('s_mov_b64 exec, -1')

def srd(a, s, ptr, nbytes):
    a(f's_mov_b32 s{s}, s{ptr}\ns_and_b32 s{s+1}, s{ptr+1}, 0xffff\ns_mov_b32 s{s+2}, {nbytes}\ns_mov_b32 s{s+3}, 0x20000')

def scan(a, v, op='v_add_u32'):
    for sh in (1, 2, 4, 8):
        a(f'{op}_dpp v{v}, v{v}, v{v} row_shr:{sh} row_mask:0xf bank_mask:0xf bound_ctrl:0')
    a(f'{op}_dpp v{v}, v{v}, v{v} row_bcast:15 row_mask:0xa bank_mask:0xf')
    a(f'{op}_dpp v{v}, v{v}, v{v} row_bcast:31 row_mask:0xc bank_mask:0xf')

K1_T = CH // 4
K1_LDS = 2048 + CH * 16
def weight_loads(a):
    a(f'''
    v_and_b32 v1, 15, v8
    v_lshrrev_b32 v3, 4, v8
    s_cmp_ge_u32 s2, 160
    s_cbranch_scc1 K1_WT
    s_cmp_ge_u32 s2, 64
    s_cbranch_scc1 K1_S1
    s_lshr_b32 s24, s2, 3
    s_and_b32 s25, s2, 7
    s_lshr_b32 s26, s25, 2
    s_bfe_u32 s27, s25, 0x10001
    s_and_b32 s28, s25, 1
    ''')
    srd(a, 60, 92, 256*128*2)
    a(f'''
    s_branch K1_SC
    K1_S1:
    ; S1: g2 = g-64; w = g2/12, f2 = g2%12 : ph = f2/6, path = (f2%6)>>1, hh = f2&1
    s_sub_u32 s29, s2, 64
    s_mul_i32 s24, s29, 43
    s_lshr_b32 s24, s24, 9
    s_mul_i32 s25, s24, 12
    s_sub_u32 s25, s29, s25
    s_cmp_ge_u32 s25, 6
    s_cselect_b32 s26, 1, 0
    s_mul_i32 s27, s26, 6
    s_sub_u32 s27, s25, s27
    s_lshr_b32 s27, s27, 1
    s_and_b32 s28, s25, 1
    s_add_u32 s25, s25, 8
    ''')
    for g2 in range(96): assert (g2*43) >> 9 == g2 // 12
    srd(a, 60, 94, 384*128*2)
    a(f'''
    K1_SC:
    s_lshl_b32 s27, s27, 7
    s_lshl_b32 s26, s26, 6
    s_lshl_b32 s28, s28, 4
    s_add_u32 s27, s27, s26
    s_add_u32 s27, s27, s28
    s_lshl_b32 s27, s27, 8
    s_lshl_b32 s26, s24, 5
    s_add_u32 s27, s27, s26
    s_add_u32 s29, s27, 8192
    v_lshlrev_b32 v3, 10, v3
    v_lshl_add_u32 v3, v1, 1, v3
    ''')
    for e in range(8): a(f'buffer_load_ushort v{64+e}, v3, s[60:63], s{29 if e & 1 else 27} offen offset:{(e >> 1)*256}')
    a(f'''
    s_mul_i32 s24, s24, 20
    s_add_u32 s24, s24, s25
    s_lshl_b32 s24, s24, 10
    s_add_u32 s24, s24, {WS_STAB}
    s_branch K1_GO
    K1_WT:
    s_sub_u32 s24, s2, 160
    s_lshr_b32 s27, s24, 1
    s_and_b32 s28, s24, 1
    s_lshl_b32 s27, s27, 8
    s_lshl_b32 s28, s28, 6
    s_add_u32 s27, s27, s28
    s_add_u32 s29, s27, {8*1280}
    ''')
    srd(a, 60, 90, 16*640*2)
    a(f'''
    v_and_b32 v1, 31, v8
    v_lshrrev_b32 v3, 5, v8
    v_mul_u32_u24 v3, {4*1280}, v3
    v_lshl_add_u32 v3, v1, 1, v3
    ''')
    for j in range(8): a(f'buffer_load_ushort v{64+j}, v3, s[60:63], s{29 if j >> 2 else 27} offen offset:{(j & 3)*1280}')
    a(f'''
    s_lshl_b32 s24, s24, 10
    s_add_u32 s24, s24, {WS_WTAB}
    ''')

def sort_rank(a, pad):
    for j in range(4):
        a(f"""v_mul_u32_u24 v{28+j}, s58, v{12+j}
        v_and_b32 v{40+j}, 0xffffff, v{28+j}
        v_lshrrev_b32 v{32+j}, 26, v{28+j}
        v_add_u32 v{40+j}, {PCUT}, v{40+j}
        v_bfe_u32 v{36+j}, v{28+j}, 24, 2
        v_lshlrev_b32 v{32+j}, 2, v{32+j}
        v_lshrrev_b32 v{40+j}, 24, v{40+j}
        v_lshl_or_b32 v{32+j}, v{36+j}, 8, v{32+j}
        v_lshl_or_b32 v{32+j}, v{40+j}, 7, v{32+j}
        ds_add_rtn_u32 v{36+j}, v{32+j}, v7""")
    for j in range(4):
        a(f'v_lshrrev_b32 v{28+j}, 24, v{28+j}\nv_mad_u32_u24 v{28+j}, v{28+j}, s59, 7\nv_lshrrev_b32 v{28+j}, 3, v{28+j}\nv_mad_u32_u24 v{28+j}, v{40+j}, {SPL}, v{28+j}\nv_sub_u32 v{28+j}, v{12+j}, v{28+j}')
        a(f'v_add_u32 v{12+j}, {32*j}, v3\nv_lshl_or_b32 v{28+j}, v{28+j}, 26, v{12+j}')
    a(f'''
    {pad}
    v_mov_b32 v59, {NONCE}
    s_mul_i32 s65, s2, {TSTR}
    s_add_u32 s65, s65, {WS_TBL}
    s_mul_i32 s64, s2, {CSTR}
    s_waitcnt lgkmcnt(0)
    s_barrier
    ''')
    sstamp(a, 11)
    a(f'''
    ds_read_b128 v[40:43], v9
    ds_read_b32 v59, v59
    s_waitcnt lgkmcnt(1)
    v_add_u32 v45, v40, v41
    v_add_u32 v46, v45, v42
    v_add_u32 v47, v46, v43
    v_mov_b32 v58, v47
    ''')
    scan(a, 58)
    a(f'''
    v_sub_u32 v48, v58, v47                 ; exclusive
    v_add_u32 v49, v48, v40
    v_add_u32 v50, v48, v45
    v_add_u32 v51, v48, v46
    ds_write_b128 v9, v[48:51] offset:1024
    s_waitcnt {'' if opt('ep', 1) else 'vmcnt(0) '}lgkmcnt(1)
    s_cmp_lg_u32 s{sW}, 4
    s_cbranch_scc1 KS_NOPUB
    v_lshl_or_b32 v56, v49, 11, v48
    v_lshl_or_b32 v57, v51, 11, v50
    v_lshl_or_b32 v56, v59, 22, v56
    v_lshl_or_b32 v57, v59, 22, v57
    buffer_store_dwordx4 v[56:59], v9, s[{sWS}:{sWS+3}], s65 offen {mod('tabst', 'sc1')}
    KS_NOPUB:
''')
    sstamp(a, 12)
    return ['s_cbranch_scc1 KS_PUB0\ns_waitcnt vmcnt(1)\ns_branch KS_PUB1\nKS_PUB0:\ns_waitcnt vmcnt(0)\nKS_PUB1:'] if opt('ep', 1) else []

def sort_emit(a, st):
    a('v_and_b32 v60, 0xffff, v59\nv_and_b32 v61, 0xffff0000, v59\ns_mov_b32 s58, 0xffff0000')
    for j in range(4):
        b = 20 + 3*(j >> 1)
        if j & 1: a(f'v_alignbit_b32 v{40+4*j}, v{b+2}, v{b+1}, 16\nv_and_or_b32 v{41+4*j}, v{b+2}, s58, v60')
        else: a(f'v_mov_b32 v{40+4*j}, v{b}\nv_lshl_or_b32 v{41+4*j}, v{b+1}, 16, v60')
        a(f'v_or_b32 v{42+4*j}, v61, v{16+j}\nv_mov_b32 v{43+4*j}, v{28+j}')
    a('s_waitcnt lgkmcnt(0)')
    for j in range(4):
        a(f'v_add_lshl_u32 v{32+j}, v{32+j}, v{36+j}, 4\nds_write_b128 v{32+j}, v[{40+4*j}:{43+4*j}] offset:2048')
    a(f'v_mov_b32 v62, {FLIP}\ns_waitcnt lgkmcnt(0)\ns_barrier\nds_read_b32 v62, v62')
    for i in range(4): a(f'ds_read_b128 v[{12+4*i}:{15+4*i}], v5 offset:{2048 + i*K1_T*16}')
    for i in range(4):
        a(f's_waitcnt lgkmcnt({3-i})')
        a(f'buffer_store_dwordx4 v[{12+4*i}:{15+4*i}], v5, s[8:11], s64 offen {st}')
        if i < 3: a(f's_add_u32 s64, s64, {K1_T*16}')

NSTR = 2080
OA = 512
E4 = 48*32 - 4
RECBASE = 65536
NPOOL = 8
W1L = RECBASE + 40 * NSTR + NPOOL*512
MISC = W1L + 10240
HIST = MISC; PROG = MISC + 192; CNT = MISC + 224; FLAG = MISC + 228; SCR = MISC + 240; NULLSRC = MISC + 256; NONCE = MISC + 384; FLIP = MISC + 388
NULLBASE = NULLSRC
K2_LDS = 163840
assert FLIP + 4 <= K2_LDS
U = 10
ACC = 0; AR = 64; WR = 96; BR = 176; P0 = 192; G = 222
VEO = 230; VH16 = 231; T2 = 232; T3 = 233; PW = 234
VB0 = 246; VB1 = 247; VLG = 248; VAO = 249; VYO = 250; VSO = 251; VL2 = 252; VTAB = 253; VT0 = 254; VT1 = 255; VPA = VEO
sX = 4; sWS = 8; sOUT = 12; sEA = 16
sW = 20; sNB = 21; sNC = 22; sJ0 = 23; sRND = 24; sR = 25; sLIM = 26; sMORE = 27; sFIRST = 28
sCB = 29; sC4 = 30; sCP = 31; sNBs = 48; sNK = 33; sNPH = 34; sNP = 35; sNV = 36
sRING = 37; sJ = 38; s1024 = 39; sOWN = 40; sNX = 44; sSO = 48; sPROGW = 52; sPROG = 53; sB = 54; sLAST = 55
sEX = 56
sT = 58
sM0 = 68
sX2 = 72
sPP = 32
sN4 = 3
sTAG = 2
sSPIN = 27

TILES = {0: [(0,0), (1,0), (0,1), (1,1)], 1: [(0,0), (0,1), (1,1), (1,0)], 2: [(0,0), (1,0), (1,1), (0,1)], 3: [(0,0), (0,1), (1,0), (1,1)]}[opt('tord', 0)]
def tile(t, u): return ACC + 16 * TILES.index((t, u))
def Wreg(p, u): return WR + p*16 + u*8

def weave(x, y):
    o = []
    for i in range(max(len(x), len(y))):
        o += x[i:i+1] + y[i:i+1]
    return o

class LG:
    def __init__(self, a, q=()): self.a = a; self.q = list(q)
    def issue(self, tag, optional=False): self.q.append((tag, optional))
    def waitline(self, tag):
        idx = [i for i, (t, o) in enumerate(self.q) if t == tag]
        if not idx: return None
        y = sum(1 for (t, o) in self.q[idx[-1]+1:] if not o)
        self.q = self.q[idx[-1]+1:]
        return f's_waitcnt lgkmcnt({min(y, 15)})'

class K2:
    def __init__(self):
        self.a = Asm()
        self.uid = 0
        self.outline = []
    def lab(self, s):
        self.uid += 1
        return f'K2_{s}_{self.uid}'

    def dma(self, slot, greg, soff):
        return [f's_mov_b32 m0, s{sM0+slot}',
                f'buffer_load_dwordx4 v{greg}, s[{sX}:{sX+3}], s{soff} offen {mod("xld", "sc1")} lds',
                f'buffer_load_dwordx4 v{greg+1}, s[{sX2}:{sX2+3}], s{soff} offen offset:1024 {mod("xld", "sc1")} lds']
    def bread(self, item, half=False):
        return [(f'ds_read_b64_tr_b16 v[{BR + (item & 1)*8 + u*4 + r*2}:{BR + (item & 1)*8 + u*4 + r*2 + 1}], v{VB0+u} offset:{(item & 3)*2048 + r*1024}', [('B', False)])
                for u in range(2) for r in range(1 if half else 2)]
    def sread(self, t):
        return [f'v_add_u32 v{G+2*t}, s{sSO+t}, v{VSO}', (f'ds_read2_b32 v[{G+2*t}:{G+2*t+1}], v{G+2*t} offset0:1 offset1:3', [(f'S{t}', False)])]
    def gmad(self, t):
        return [('wait', f'S{t}')] + [f'v_mad_u32_u16 v{G+2*t+r}, v{G+2*t+r}, s{s1024}, v{VLG} op_sel:[1,0,0,0]' for r in range(2)]
    def ool(self, text): self.outline.append(text)
    def atomic(self):
        return [f'v_mov_b32 v{VT0}, {CNT}', f'v_mov_b32 v{VT1}, 1', f'v_lshl_add_u32 v{T3}, v{VL2}, 1, s{sPROG}',
                (f's_mov_b64 exec, 1\nds_add_rtn_u32 v{T2}, v{VT0}, v{VT1}\ns_mov_b64 exec, -1', [('C', False)]),
                (f'ds_read_b32 v{T3}, v{T3}', [('C', False)])]
    def claimed(self):
        nul = self.lab('nul'); spin = self.lab('spin'); chk = self.lab('chk'); back = self.lab('back')
        self.ool(f'{nul}:\ns_mov_b32 s{sT}, 63\ns_mov_b32 s{sNV}, 0\ns_branch {back}')
        self.ool(f'{spin}:\ns_sub_u32 s{sSPIN}, s{sSPIN}, 1\ns_cbranch_scc1 K2_END\nv_lshl_add_u32 v{T3}, v{VL2}, 1, s{sPROG}\nds_read_b32 v{T3}, v{T3}\ns_waitcnt lgkmcnt(0)\ns_branch {chk}')
        return [f'v_readfirstlane_b32 s{sT}, v{T2}',
                f"""s_cmp_lt_u32 s{sT}, s{sNC}
                s_cbranch_scc0 {nul}
                s_and_b32 s{sT+1}, s{sT}, 7
                s_lshr_b32 s{sT+2}, s{sT}, 3
                {chk}:
                v_readlane_b32 s{sT+3}, v{T3}, s{sT+1}
                s_nop 0
                s_cmp_gt_u32 s{sT+3}, s{sT+2}
                s_cbranch_scc0 {spin}
                {back}:"""]
    def claim0(self):
        dyn = self.lab('dyn'); back = self.lab('back')
        o = [x if isinstance(x, str) else x[0] for x in self.atomic()] + ['s_waitcnt lgkmcnt(0)'] + self.claimed()
        self.ool(f'{dyn}:\n' + '\n'.join(o) + f'\ns_mov_b32 s{sNPH}, 1\ns_branch {back}')
        return [f's_add_u32 s{sJ}, s{sJ}, 1', f'v_mov_b32 v{VT0}, s{sPROGW}', f'v_mov_b32 v{VT1}, s{sJ}',
                f's_lshl_b32 s{sT}, s{sJ}, 3', f's_add_u32 s{sT}, s{sT}, s{sW}',
                (f's_mov_b64 exec, 1\nds_write_b32 v{VT0}, v{VT1}\ns_mov_b64 exec, -1', [('W', False)]),
                f's_cmp_lt_u32 s{sT}, s{sNC}\ns_cbranch_scc0 {dyn}\n{back}:']
    def pooladdr(self, d, word):
        return f"""s_lshr_b32 s{d}, s{word}, 27
            s_mul_i32 s{sT+8}, s{sNC}, {NSTR}
            s_lshl_b32 s{d}, s{d}, 9
            s_add_u32 s{d}, s{d}, s{sT+8}
            s_add_u32 s{d}, s{d}, {RECBASE}"""
    def next_info(self, ph):
        rare = self.lab('rare'); back = self.lab('back'); four = self.lab('four')
        self.ool(f"""{rare}:
            s_cmp_eq_u32 s{sNK}, 4
            s_cbranch_scc1 {four}
            s_mov_b32 s{sSO+1}, s{sNBs}
            s_mov_b32 s{sSO+3}, s{sNBs}
            s_xor_b32 s{sNX+1}, s{sNX}, {256 + 128*((FL ^ FL >> 1) & 1)}
            s_xor_b32 s{sNX+2}, s{sNX}, {512 + 128*((FL ^ FL >> 2) & 1)}
            s_xor_b32 s{sNX+3}, s{sNX}, {768 + 128*((FL ^ FL >> 3) & 1)}
            s_branch {back}
            {four}:
            s_add_u32 s{sSO+2}, s{sNBs}, 256
            s_add_u32 s{sSO+3}, s{sNBs}, 384
            s_mov_b32 s{sNX+2}, s{sNX}
            s_mov_b32 s{sNX+3}, s{sNX}
            s_branch {back}""")
        o = [f'v_readlane_b32 s{sN4}, v{VTAB}, s{sT}', f's_lshl_b32 s{sNX}, s{sNPH}, 7' + (f'\ns_xor_b32 s{sNX}, s{sNX}, 128' if FL & 1 else ''),
             f's_and_b32 s{sNBs}, s{sN4}, 0x3ffff', f's_bfe_u32 s{sNK}, s{sN4}, 0x30013']
        if ph == 1: o += [f's_mov_b32 s{sNP}, s{sNBs}']
        else: o += [f's_mul_i32 s{sNP}, s{sJ}, 6', f's_cmp_eq_u32 s{sNPH}, 0\ns_cselect_b32 s{sNP}, s{sNP}, s{sNBs}']
        o += [f's_mov_b32 s{sNX+1}, s{sNX}', f's_xor_b32 s{sNX+3}, s{sNX}, {256 + 128*((FL ^ FL >> 1) & 1)}', f's_add_u32 s{sSO+1}, s{sNBs}, 128', f's_add_u32 s{sT+2}, s{sNBs}, 256',
              f's_cmp_eq_u32 s{sNK}, 3\ns_cselect_b32 s{sNX+2}, s{sNX}, s{sNX+3}\ns_cselect_b32 s{sSO+2}, s{sT+2}, s{sNBs}\ns_cselect_b32 s{sSO+3}, s{sNBs}, s{sSO+1}',
              f's_sub_u32 s{sT+2}, s{sNK}, 2\ns_cmp_lt_u32 s{sT+2}, 2\ns_cbranch_scc0 {rare}\n{back}:']
        return o
    def eread(self):
        return [f'v_add_u32 v{T3}, s{sNBs}, v{VEO}',
                (f'ds_read_b32 v{T2}, v{T3}', [('E', False)]), (f'ds_read_b32 v{T3}, v{T3} offset:1024', [('E', False)])]
    NEXTRA = 2
    def adma(self):
        dum = self.lab('dum'); four = self.lab('a4'); back = self.lab('back'); b4 = self.lab('b4')
        ea = f's[{sEA}:{sEA+3}]'; m = mod('eald', '')
        self.ool(f'{dum}:\nv_mov_b32 v{T2}, -1\ns_mov_b32 m0, {SCR}\ns_mov_b64 exec, 1\n' + f'buffer_load_dwordx4 v{T2}, {ea}, 0 offen lds\n'*2 + f's_mov_b64 exec, -1\ns_branch {back}')
        self.ool(f"""{four}:
            v_add_u32 v{VT0}, s{sNBs}, v{VEO}
            ds_read_b32 v{VT0}, v{VT0} offset:4
            {self.pooladdr(sT+7, sN4)}
            s_mov_b32 m0, s{sT+7}
            s_mov_b32 exec_hi, 0
            s_waitcnt lgkmcnt(0)
            v_or_b32 v{VT0}, v{VT0}, v{VH16}
            buffer_load_dwordx4 v{VT0}, {ea}, 0 offen {m} lds
            s_mov_b32 exec_hi, -1
            s_branch {b4}""")
        return [('wait', 'E'), f'v_or_b32 v{T2}, v{T2}, v{VH16}', f'v_or_b32 v{T3}, v{T3}, v{VH16}', f"""
        s_cmp_lg_u32 s{sNPH}, 0
        s_cbranch_scc1 {dum}
        s_cmp_eq_u32 s{sNK}, 4
        s_cbranch_scc1 {four}
        {b4}:
        s_add_u32 m0, s{sNBs}, {OA}
        s_add_u32 s{sT+7}, s{sNBs}, {OA+1024}
        buffer_load_dwordx4 v{T2}, {ea}, 0 offen {m} lds
        s_mov_b32 m0, s{sT+7}
        s_mov_b32 exec_hi, 0
        buffer_load_dwordx4 v{T3}, {ea}, 0 offen {m} lds
        s_mov_b32 exec_hi, -1
        {back}:"""]
    def areads(self, s, half=False):
        va, vy, oa, oy, o = VAO, VYO, s*512, s*128, []
        if s == 3:
            va, oa = ACC + 56, 0
            o = [self.pooladdr(sT+7, sC4) + f'\ns_sub_u32 s{sT+7}, s{sT+7}, s{sCB}\ns_sub_u32 s{sT+7}, s{sT+7}, {OA}\nv_add_u32 v{va}, s{sT+7}, v{VAO}']
        o += [(f'ds_read_b64_tr_b16 v[{ACC+4*s+2*r}:{ACC+4*s+2*r+1}], v{va} offset:{oa + 32*r}', [(f'a{s}', False)]) for r in range(1 if half else 2)]
        return o + [(f'ds_read_u16_d16_hi v{ACC+16+s}, v{vy} offset:{oy}', [(f'y{s}', False)])]
    def abuild(self, nK, half=False):
        o = []
        for s in range(2, nK): o += self.areads(s, half and s == nK - 1)
        for s in range(nK):
            b = ACC + 4*s; un = ACC + 20 + (s & 1)*8; m = 2 if (half and s == nK - 1) else 4
            o.append(('wait', f'y{s}' if (s or nK == 1 or not opt('ymw', 1)) else 'y1'))
            for i in range(m): o += [f'v_lshlrev_b32 v{un+2*i}, 16, v{b+i}', f'v_and_b32 v{un+1+2*i}, 0xffff0000, v{b+i}']
            for t in (1, 0):
                d = ACC + 36 if t else un
                for e in range(2*m): o.append(f'v_mul_f32_dpp v{d+e}, v{ACC+16+s}, v{un+e} row_newbcast:{8*t+e} row_mask:{"0xf" if t else "0xa"} bank_mask:0xf')
                for i in range(m): o.append(f'v_cvt_pk_bf16_f32 v{AR+s*8+t*4+i}, v{d+2*i}, v{d+1+2*i}')
        return o
    R = dict(A=PW, B=PW+2, C=PW+4, D=PW+6, E=PW+8, F=PW+10)
    CH_ = {0: [(0,'A','new'),(2,'B','new'),(2,'C','new'),(2,'D','new')],
           1: [(3,'A','new'),(1,'B','new'),(4,'C','new'),(4,'D','new')],
           2: [(3,'E','new'),(4,'C','neg'),(1,'B','acc'),(4,'F','new')],
           3: [(3,'E','new'),(4,'D','neg'),(4,'F','neg'),(1,'B','acc')]}
    def F(self, q, k):
        t, u = TILES[k]; o = []
        for r in range(8):
            for b in (2*t, 2*t+1):
                p, d, mode = self.CH_[q][b]
                T = tile(t, u) + (b & 1)*8 + r; W = Wreg(p, u) + r; D = self.R[d] + u
                if r == 0 and mode == 'new': o.append(f'v_mul_f32 v{D}, v{T}, v{W}')
                elif r == 0 and mode == 'neg': o.append(f'v_fma_f32 v{D}, v{T}, v{W}, -v{D}')
                else: o.append(f'v_fmac_f32 v{D}, v{T}, v{W}')
        return o
    SROW = {0: 0, 2: 1, 8: 2, 5: 3, 6: 4, 3: 5, 9: 6, 1: 7, 4: 8, 10: 9, 7: 10}
    def fin(self, q, ph, sp=None):
        sp = sCP if sp is None else sp
        R = self.R
        pairs = {0: [(0, 'A', 'B'), (1, 'D', 'C')], 1: [], 2: [(2, 'E', 'A')], 3: [(3, 'E', 'B'), (4, 'F', 'C')]}[q]
        o = []
        for (slot, x, y) in pairs: o += [f'v_permlane32_swap_b32 v{R[x]+u}, v{R[y]+u}' for u in range(2)]
        if q == 3: o.append(f'v_permlane32_swap_b32 v{R["D"]}, v{R["D"]+1}')
        if ph == 1 and q == 0: o.append(f'v_lshl_add_u32 v{VPA}, v{VL2}, 1, s{sCP}')
        for (slot, x, y) in pairs: o += [f'v_add_f32 v{R[x]+u}, v{R[x]+u}, v{R[y]+u}' for u in range(2)]
        cv = [(slot, R[x], R[x]+1) for (slot, x, y) in pairs]
        if q == 3:
            o.append(f'v_add_f32 v{R["D"]}, -v{R["D"]}, -v{R["D"]+1}')
            cv.append((5, R['D'], R['D']))
        if cv and ph == 0:
            o.append(f's_set_gpr_idx_on s{sp}, gpr_idx(DST)\n' + ''.join(f'v_cvt_pk_bf16_f32 v{P0+slot}, v{lo}, v{hi}\n' for (slot, lo, hi) in cv) + 's_set_gpr_idx_off')
        elif cv:
            if q == 3: o.append(f'v_sub_u32 v{R["D"]+1}, v{VPA}, v{VH16}')
            for (slot, lo, hi) in cv: o.append(f'v_cvt_pk_bf16_f32 v{lo}, v{lo}, v{hi}')
            for (slot, lo, hi) in cv:
                o.append((f'ds_write_b32 v{VPA}, v{lo} offset:{slot*256}' if slot < 5 else f'ds_write_b16 v{R["D"]+1}, v{lo} offset:1280', [('P', False)]))
        return o
    def drop(self, line):
        x = opt('drop', '')
        if not x or not getattr(self, 'inunit', False) or '\n' in line.strip(): return False
        l = line.strip()
        if 'D' in x and l.startswith('buffer_load') and (f's[{sX}:' in l or f's[{sX2}:' in l): return True
        if 'P' in x and l.startswith('ds_write_b16'): return True
        if 'S' in x and l.startswith('v_permlane'): return True
        if 'C' in x and l.startswith('v_cvt_pk'): return True
        if 'B' in x and l.startswith('ds_read_b64_tr') and (f'v{VB0} ' in l or f'v{VB1} ' in l): return True
        if 'F' in x and l.startswith('v_fmac'): return True
        if 'A' in x and l.startswith(('v_lshlrev_b32','v_and_b32','v_cvt_pk')): return True
        if 'A' in x and l.startswith('v_mul_f32') and int(l.split()[1][1:-1]) < 64: return True
        if 'Y' in x and l.startswith(('ds_read_b128',)): return True
        if 'U' in x and l.startswith(('v_lshlrev_b32','v_and_b32')): return True
        if 'N' in x and l.startswith(('v_and_b32')): return True
        return False
    def emit(self, items, lg):
        for it in items:
            if isinstance(it, tuple) and it[0] == 'V':
                if not self.drop(it[1]): self.a(it[1])
                self.vq += [it[2]] * it[3]; continue
            if isinstance(it, tuple) and it[0] == 'wait' and len(it) > 2 and isinstance(it[2], str):
                idx = [k for k, t in enumerate(self.vq) if t == it[2]]
                if idx: cnt = len(self.vq) - 1 - idx[-1]; self.vq = self.vq[idx[-1]+1:]
                it = ('wait', it[1], cnt if idx else None)
            if isinstance(it, str):
                if not self.drop(it): self.a(it)
            elif it[0] != 'wait' and self.drop(it[0]):
                for t, o in it[1]: lg.issue(t, o)
            elif it[0] == 'wait':
                w = lg.waitline(it[1]); lw = w[len('s_waitcnt'):] if w else ''
                if len(it) > 2 and it[2] is not None: w = f's_waitcnt vmcnt({it[2]})' + lw
                if w: self.a(w)
            else:
                self.a(it[0])
                for t, o in it[1]: lg.issue(t, o)
    ENTRY = [('B', False)]*4 + [('a0', False)]*2 + [('y0', False)] + [('a1', False)]*2 + [('y1', False)]
    @staticmethod
    def cost(it):
        if isinstance(it, tuple):
            if it[0] == 'wait': return 1
            it = it[1] if it[0] == 'V' else it[0]
        return sum((2 if 'permlane' in l else 1) for l in it.strip().split('\n') if not l.strip().endswith(':'))
    def unit(self, nK, ph, half=False):
        a = self.a
        lg = LG(a, self.ENTRY)
        a(f'K2_U{nK}{"h" if half else ""}{ph}:')
        self.inunit = True
        n = 4 * nK
        BUD = opt('bud', 7)
        pre = seg(0)
        claim = (self.claim0() if ph == 0 else self.atomic())
        after = ([] if ph == 0 else [('wait', 'C')] + self.claimed()) + self.next_info(ph)
        if nK == 1: pre += claim
        pre += self.abuild(nK, half)
        if nK == 1:
            pre += after + (self.eread() if ph == 0 else [])
            for t in range(4): pre += self.sread(t)
            if ph == 0: pre += self.adma()
            for t in range(4): pre += self.gmad(t)
        x = -1 if nK == 1 else 2
        gaps = [[] for _ in range(4*n)]; tailg = [[] for _ in range(4*n)]
        hb = lambda j: half and j < n and j % nK == nK - 1
        hs = lambda j: hb(j) and j >= 4
        vmn = lambda i: 4 - hs(i+2) - hs(i+3) + (self.NEXTRA if (ph == 0 and x < i <= x + 3) else 0)
        for i in range(n):
            d = self.dma(i & 3, G + 2*((i+4) % nK), sOWN + (i+4)//nK) if i + 4 < n else self.dma(i & 3, G + 2*(i+4-n), sNX + (i+4-n))
            gaps[4*i] += self.bread(i + 1, hb(i + 1)); tailg[4*i] += [d[0]]; gaps[4*i+1] += [d[1]] + ([] if hs(i+4) else [d[2]])
            if i + 1 < n: tailg[4*i+3] += [('wait', 'B', vmn(i+1))]
        if ph == 1 and opt('es', 0):
            es = self.lab('es'); back = self.lab('back')
            self.ool(f'{es}:\n' + self.spre(VT0) + '\n' + '\n'.join(self.sload(VT0)[:8]) + f'\ns_branch {back}')
            gaps[4*(n - opt('esp', 4)) if nK > 1 else 4*2] += [f's_cmp_eq_u32 s{sNV}, 0\ns_cbranch_scc1 {es}\n{back}:']
        used = lambda g: sum(map(self.cost, gaps[g] + tailg[g]))
        def place(items, g0, g1):
            g = g0
            for it in items:
                while g < g1 and used(g) + self.cost(it) > BUD and used(g) > 1: g += 1
                gaps[g].append(it)
            return g
        DEF = opt('defer', True) and nK > 1
        if nK > 1:
            for t in range(4):
                place(self.sread(t), 4*(n-6+t) + 2, 4*(n-6+t) + 3)
                place(self.gmad(t), 4*(n-5+t) + 1, 4*(n-5+t) + 3)
        ndef = [0]*4
        for q in range(1, 4):
            g0 = 4*q*nK
            if DEF:
                f3 = self.F(q-1, 3)
                room = [max(0, BUD - used(g0 + k)) for k in range(3)]
                m = min(16, sum(room)); ndef[q-1] = m
                f3 = f3[16-m:]
                for k in range(3):
                    gaps[g0 + k] += f3[:room[k]]; f3 = f3[room[k]:]
            place(self.fin(q-1, ph), g0 + (3 if DEF else 1), 4*(q*nK + nK - 1) + (1 if nK > 1 else 3))
        PRE = opt('pre', 0)
        pub = [f'v_mov_b32 v{VT0}, s{sPROGW}', f'v_mov_b32 v{VT1}, s{sCB}',
               (f's_mov_b64 exec, 1\nds_write_b32 v{VT0}, v{VT1}\ns_mov_b64 exec, -1', [('P', False)])] if (PRE and ph == 1) else []
        gf = place(self.fin(3, ph, sPP), 1, 4*(nK - 1) + (1 if nK > 1 else 3))
        if nK == 1: gaps[gf] += pub
        if nK > 1:
            if ph == 0:
                g = place(claim + after, 1, 5)
                place(self.eread(), max(g, 5), 7)
                place(self.adma(), 4*x + 3, 4*x + 3)
            else:
                place(claim, 1, 3)
                g1 = 4*(n-6) + 2
                keep = gaps[g1]; k0 = [i for i, it in enumerate(keep) if isinstance(it, str) and f'v{VSO}' in it]
                moved = keep[k0[0]:] if k0 else []
                if k0: gaps[g1] = keep[:k0[0]]
                place(after, 5, g1)
                gaps[g1] += moved
                place(pub, max(gf, opt('pubg', 6)), 4*(n-2))
        if True:
            upd = [f's_sub_u32 s{sLIM}, s{sNBs}, s{sCB}', f's_mov_b32 s{sCB}, s{sNBs}', f's_mov_b32 s{sC4}, s{sN4}',
                   (f's_cmp_eq_u32 s{sNPH}, 0' if ph == 0 else f's_cmp_lg_u32 s{sNV}, 0') + f'\ns_cselect_b32 s{sEX}, s{sEX}, 0']
            upd.insert(3, f's_bfe_u32 s{sEX}, s{sN4}, 0x40012')
            place(upd, 4*(n-2) + 1, 4*(n-1) + 1)
            gl = max([g for g in range(4*n) if any(('gpr_idx' in (it if isinstance(it, str) else it[0])) or (f's{sCP}' in (it if isinstance(it, str) else it[0])) for it in gaps[g])] + [4*(n-2)])
            place([f's_mov_b32 s{sPP}, s{sCP}', f's_mov_b32 s{sCP}, s{sNP}'], gl, max(gl, 4*(n-1) + 2))
        nf0 = [0]*4
        if nK > 1:
            for q in range(4):
                g = 4*(q*nK + nK - 1) + 2
                nf0[q] = max(0, BUD - used(g))
                gaps[g] += self.F(q, 0)[:nf0[q]]
        pb = opt('pb', 1) if (PRE and ph == 1) else 0
        self.emit([f's_setprio {opt("prioa", 1) + pb}'] + pre + seg(1) + [('wait', 'B', vmn(0))] + ([f's_setprio {opt("prio", 1) + pb}'] if opt("prio", 1) != opt("prioa", 1) else []), lg)
        for i in range(n):
            q, s = divmod(i, nK)
            for k, (t, u) in enumerate(TILES):
                c = f'v[{tile(t,u)}:{tile(t,u)+15}]' if s else '0'
                bb = BR + (i & 1)*8 + u*4
                w = 1 if hb(i) else 3
                if 'M' not in opt('drop', ''): a(f'v_mfma_f32_32x32x{8 if hb(i) else 16}_bf16 v[{tile(t,u)}:{tile(t,u)+15}], v[{AR+s*8+t*4}:{AR+s*8+t*4+w}], v[{bb}:{bb+w}], {c}')
                g = 4*i + k
                if k == 3 and s == nK - 1:
                    self.emit([f's_setprio {opt("prio0", 0) + pb}'] + gaps[g] + seg(2+2*q) + self.F(q, 0)[nf0[q]:], lg)
                    if q < 3:
                        fb = self.F(q, 1) + self.F(q, 2) + self.F(q, 3)[:16-ndef[q]]
                        self.emit(fb + seg(3+2*q) + [f's_setprio {opt("prio", 1) + pb}'], lg)
                else: self.emit(gaps[g], lg)
                self.emit(tailg[g], lg)
        end = [f's_sub_u32 s{sT}, s{sNBs}, s{sCB}', f'v_add_u32 v{VAO}, s{sT}, v{VAO}', f'v_add_u32 v{VYO}, s{sT}, v{VYO}']
        if opt('dsp', 1): end = [f'v_add_u32 v{VAO}, s{sLIM}, v{VAO}', f'v_add_u32 v{VYO}, s{sLIM}, v{VYO}']
        end = [end + self.F(3, 1) + self.areads(0) + self.areads(1) + self.F(3, 2) + self.F(3, 3),
               end + self.F(3, 1) + self.areads(0) + self.F(3, 2) + self.areads(1) + self.F(3, 3),
               end + self.F(3, 1) + self.F(3, 2) + self.areads(0) + self.areads(1) + self.F(3, 3)][opt('ypos', 1)]
        self.emit(end, lg)
        if SEG:
            a('s_memtime s[94:95]\ns_waitcnt lgkmcnt(0)')
            def acc(d, i, j): a(f's_sub_u32 s67, s{76+2*j}, s{76+2*i}\ns_add_u32 s{d}, s{d}, s67')
            acc(96, 0, 1)
            for q in range(4): acc(97, 1+2*q, 2+2*q)
            for q in range(3): acc(98, 2+2*q, 3+2*q)
            acc(99, 8, 9)
            a(f's_add_u32 s100, s100, {nK}\ns_add_u32 s101, s101, 1')
        assert [x for x in lg.q if x[0] != 'P'] == self.ENTRY, lg.q
        self.inunit = False
        self.dispatch(ph)
    HALF = {0: [int(c) for c in opt('half0', '3') if c != '0'], 1: [int(c) for c in opt('half1', '3') if c != '0']}
    def target(self, code, ph):
        nK = code >> 1
        return f'K2_U{nK}{"h" if (not code & 1 and nK in self.HALF[ph]) else ""}{ph}'
    def dispatch(self, ph, check=True):
        if not check:
            self.a(f"""
            s_mov_b32 s{sCB}, s{sNBs}
            s_mov_b32 s{sPP}, s{sCP}
            s_mov_b32 s{sC4}, s{sN4}
            s_mov_b32 s{sCP}, s{sNP}
            s_bfe_u32 s{sEX}, s{sN4}, 0x40012""")
        for code in (5, 6): self.a(f's_cmp_eq_u32 s{sEX}, {code}\ns_cbranch_scc1 {self.target(code, ph)}')
        self.a(f's_branch K2_DSP{ph}')

    def wload(self, ph, vl16, paths, dst):
        for k, p in enumerate(paths):
            self.a(f's_mov_b32 s{sT}, {WS_WTAB + ph*10240 + p*2048}')
            for u in range(2): self.a(f'buffer_load_dwordx4 v[{dst(p)+4*u}:{dst(p)+4*u+3}], v{vl16}, s[{sWS}:{sWS+3}], s{sT} offen offset:{u*1024} sc1')
    def wunp(self, paths, src):
        return [f'v_lshlrev_b32 v{WR+16*p+2*i}, 16, v{src(p)+i}\nv_and_b32 v{WR+16*p+2*i+1}, 0xffff0000, v{src(p)+i}' for p in paths for i in range(8)]

    def fill_rows(self, vL, base):
        return f'''
        v_and_b32 v76, 31, v{vL}
        v_lshrrev_b32 v77, 5, v{vL}
        v_mov_b32 v80, 0
        v_mul_u32_u24 v77, {NSTR}, v77
        v_mov_b32 v81, 0xffff0000
        v_lshl_add_u32 v78, v76, 4, v77
        v_mov_b32 v82, 0
        v_add_u32 v78, {base}, v78
        v_mov_b32 v83, v81
        '''
    def fill_slots(self, vL, base):
        return f'''
        v_add_u32 v85, 16, v{vL}
        v_lshlrev_b32 v84, 5, v{vL}
        v_lshrrev_b32 v85, 6, v85
        v_mul_u32_u24 v85, {E4}, v85
        v_sub_u32 v84, v84, v85
        v_mov_b32 v85, -1
        v_add_u32 v84, {base}, v84
        '''
    def fill_all(self, vL):
        a = self.a
        a(f's_mul_i32 s{sT}, s{sW}, {5*NSTR}\ns_add_u32 s{sT}, s{sT}, {RECBASE}\ns_add_u32 s{sT+1}, s{sT}, {OA}' + self.fill_rows(vL, f's{sT}') + self.fill_slots(vL, f's{sT+1}'))
        for i in range(5): a(f'ds_write_b32 v84, v85 offset:{i*NSTR}')
        a('s_mov_b32 exec_hi, 0')
        for i in range(5): a(f'ds_write_b128 v78, v[80:83] offset:{i*NSTR}')
        a('s_mov_b32 exec_hi, -1')
    def fill_w5(self):
        a = self.a
        a(self.fill_rows(8, RECBASE) + f'v_add_u32 v79, {20*NSTR}, v78')
        for i in range(20): a(f'ds_write_b128 v{78 + i//10}, v[80:83] offset:{(i%10)*2*NSTR}')
    def fill_w6(self, n0, n1):
        a = self.a
        if n0 >= n1: return
        a(self.fill_slots(8, RECBASE + OA + n0*NSTR) + f'v_add_u32 v86, {20*NSTR}, v84')
        for i in range(n1 - n0): a(f'ds_write_b32 v{84 + 2*(i//20)}, v85 offset:{(i%20)*NSTR}')
    def counters(self, vL, first):
        self.a(f'''
        v_mov_b32 v76, 0
        v_mov_b32 v77, -1
        v_lshlrev_b32 v78, 2, v{vL}
        v_add_u32 v78, {HIST}, v78
        s_mov_b64 exec, 0x1ff
        ds_write_b32 v78, v76 offset:{PROG-HIST}
        s_mov_b32 exec_lo, -1
        ds_write_b32 v78, v77 offset:{NULLSRC-HIST}
        s_mov_b64 exec, -1
        {'' if first else f's_cmp_lg_u32 s{sRND}, 0'}
        {'' if first else f's_cbranch_scc1 K2_NOH'}
        s_mov_b32 exec_hi, 0xffff
        ds_write_b32 v78, v76
        s_mov_b64 exec, 1
        ds_write_b32 v78, v76 offset:{FLAG-HIST}
        s_mov_b64 exec, -1
        ''')
    def srds(self):
        a = self.a
        srd(a, sX, 80, N*1024); srd(a, sOUT, 96, N*1024); srd(a, sEA, 84, E*32)
        a('s_sub_u32 s80, s80, 1024\ns_subb_u32 s81, s81, 0'); srd(a, sX2, 80, N*1024 + 1024)
    def consts(self, vL):
        self.a(f'''
        v_and_b32 v84, 15, v{vL}                ; i
        v_lshrrev_b32 v85, 5, v{vL}             ; h
        v_bfe_u32 v86, v{vL}, 4, 1
        v_lshrrev_b32 v87, 2, v84
        v_and_b32 v88, 3, v84                   ; c
        v_lshl_add_u32 v89, v85, 2, v87
        v_lshlrev_b32 v{VAO}, 6, v89
        v_lshl_add_u32 v{VAO}, v88, 3, v{VAO}
        v_add_u32 v{VAO}, {OA}, v{VAO}
        v_lshrrev_b32 v90, 3, v84
        v_lshl_add_u32 v90, v90, 1, v86
        v_sub_u32 v90, v90, 1 clamp
        v_lshlrev_b32 v{VYO}, 1, v90
        v_lshl_add_u32 v91, v85, 2, v88
        v_lshl_add_u32 v{VYO}, v91, 4, v{VYO}
        v_and_b32 v91, 1, v87
        v_lshl_add_u32 v{VYO}, v91, 3, v{VYO}
        v_lshrrev_b32 v90, 1, v88
        v_lshl_add_u32 v90, v86, 1, v90         ; chunk (u = 0)
        v_bfe_u32 v91, v87, 1, 1
        v_lshlrev_b32 v91, 2, v91
        v_xor_b32 v90, v90, v91
        v_lshlrev_b32 v90, 4, v90
        v_lshl_add_u32 v90, v89, 7, v90
        v_and_b32 v91, 1, v88
        v_lshl_add_u32 v90, v91, 3, v90
        v_add_u32 v{VB0}, s{sRING}, v90
        v_xor_b32 v{VB1}, 64, v{VB0}
        v_lshrrev_b32 v90, 3, v{vL}
        v_lshlrev_b32 v{VSO}, 4, v90
        v_bfe_u32 v90, v90, 1, 1
        v_lshlrev_b32 v90, 2, v90
        v_and_b32 v91, 7, v{vL}
        v_xor_b32 v90, v90, v91
        v_lshlrev_b32 v{VLG}, 4, v90
        v_lshlrev_b32 v{VL2}, 1, v{vL}
        v_and_b32 v{VH16}, 1, v{vL}
        v_lshlrev_b32 v{VH16}, 4, v{VH16}
        v_lshrrev_b32 v90, 1, v{vL}
        v_lshlrev_b32 v90, 5, v90
        v_add_u32 v{VEO}, {OA}, v90
        ''')
    def pad(self, name, ret):
        return f'K2_PAD_{name}:\ns_branch {ret}' if name in opt('pads', self.PADS).split('_') and opt('pad', 1) else ''
    def padx(self, name, ret):
        return f'K2_PAD_{name}:\ns_cbranch_execz {ret}' if name in opt('pads', self.PADS).split('_') and opt('pad', 1) else ''
    PADS = 'S1_S2_H1_H2_H3_B3_LD_NW_SC_SD_U20_U30_U21_U31_SW_TL_T2'
    def hops(self, names, ret):
        if not opt('pad', 1): return
        self.a('s_mov_b64 exec, 0')
        for w, n in names:
            if n in opt('pads', self.PADS).split('_'): self.a(f's_cmp_eq_u32 s{sW}, {w}\ns_cbranch_scc1 K2_PAD_{n}')
        self.a(f'{ret}:\ns_mov_b64 exec, -1')
    def stage_sort(self, vL, vT_):
        a = self.a; st = mod('recst', 'sc1')
        RAW = 24576
        a(f"""
        s_cmp_lg_u32 s{sW}, 7
        s_cbranch_scc1 KS_NOTAG
        s_mov_b32 s24, {WS_EPO}
        s_mov_b64 exec, 1
        buffer_load_dword v14, v6, s[{sWS}:{sWS+3}], s24 offen sc1
        s_mov_b64 exec, -1
        """)
        srd(a, 60, 98, 256)
        sstamp(a, 1); a('s_barrier'); sstamp(a, 3)
        self.counters(8, True)
        self.fill_w6(opt('n6', 40), 40)
        XM = opt('xm', 0); xm = ''
        if XM:
            o = Asm(); srd(o, 64, 80, N*1024)
            o(f's_mov_b64 exec, -1\ns_mul_i32 s24, s2, {40*1024}\nv_lshlrev_b32 v16, {opt("xms", 8)}, v8')
            for i in range(XM): o(f'buffer_load_dword v17, v16, s[64:67], s24 offen {mod("xmm", "")}\ns_add_u32 s24, s24, {64 << opt("xms", 8)}')
            o('s_mov_b64 exec, 1'); xm = o.text()
        a(f"""
        s_mov_b64 exec, 1
        buffer_load_dword v15, v6, s[60:63], 0 offen sc1
        {xm}
        v_mov_b32 v12, {NONCE}
        s_mov_b32 s24, 1664525
        s_waitcnt vmcnt({1 + XM})
        v_mul_lo_u32 v59, v14, s24
        v_add_u32 v59, 1013904223, v59
        ds_write2_b32 v12, v59, v6 offset0:0 offset1:1
        {'s_memrealtime s[86:87]' if PROFS else ''}
        s_waitcnt lgkmcnt(0)
        s_barrier
        s_waitcnt vmcnt({XM})
        v_mov_b32 v62, v15
        ds_write_b32 v12, v15 offset:4
        v_cmp_ne_u32 vcc, 0, v15
        s_mov_b32 s24, 0x40000
        s_waitcnt lgkmcnt(0)
        s_barrier
        {'s_branch' if opt('nofl', 0) else 's_cbranch_vccnz'} KS_FLOK
        KS_FLW:
        s_sub_u32 s24, s24, 1
        s_cbranch_scc1 K2_END
        buffer_load_dword v62, v6, s[60:63], 0 offen sc1
        s_waitcnt vmcnt(0)
        v_cmp_ne_u32 vcc, 0, v62
        s_cbranch_vccz KS_FLW
        ds_write_b32 v12, v62 offset:4
        KS_FLOK:
        s_mov_b64 exec, -1
        s_branch KS_JOIN
        KS_H0:
        s_barrier
        s_branch KS_HELP
        {self.pad('S1', 'KS_HOP0')}
        KS_NOTAG:
        s_cmp_ge_u32 s{sW}, 5
        s_cbranch_scc1 {'KS_H0' if opt('eb1', 0) else 'KS_HELP'}
        s_cmp_ge_u32 s2, {NCH}
        s_cbranch_scc1 KS_IDLE
        """)
        srd(a, 40, 88, E*4)
        a(f'buffer_load_dwordx4 v[12:15], v5, s[40:43], s64 offen')
        srd(a, 44, 86, E*4); srd(a, 48, 82, E*6)
        a(f"""
        buffer_load_dwordx4 v[16:19], v5, s[44:47], s64 offen
        buffer_load_dwordx4 v[20:23], v4, s[48:51], s65 offen
        buffer_load_dwordx2 v[24:25], v4, s[48:51], s65 offen offset:16
        v_lshlrev_b32 v2, 2, v0                 ; t*4
        s_lshl_b32 s64, s64, 3
        v_lshl_add_u32 v3, v0, 7, s64
        v_mov_b32 v7, 1
        s_cmp_eq_u32 s{sW}, 4
        s_cbranch_scc1 KS_NOCLR
        ds_write_b32 v2, v6
        KS_NOCLR:
        """)
        sstamp(a, 1); a('s_waitcnt lgkmcnt(0)\ns_barrier'); sstamp(a, 3)
        self.hops([(0, 'B3'), (1, 'LD'), (2, 'NW'), (3, 'SC'), (4, 'SD')], 'KS_HOP')
        a(f's_mov_b32 s58, {PMUL}\ns_movk_i32 s59, 625\ns_waitcnt vmcnt(3)')
        sstamp(a, 5)
        w = sort_rank(a, self.padx('S2', 'KS_HOP0'))
        a('s_waitcnt lgkmcnt(0)')
        for j in range(4): a(f'ds_read_b32 v{32+j}, v{32+j} offset:1024')
        for x in w: a(x)
        sort_emit(a, st)
        a(f"""
        s_branch KS_JOIN
        {self.pad('B3', 'KS_HOP')}
        KS_B3:
        v_mov_b32 v59, {NONCE}
        ds_read_b32 v59, v59
        v_mov_b32 v62, {FLIP}
        s_waitcnt lgkmcnt(0)
        s_barrier
        ds_read_b32 v62, v62
        KS_JOIN:
        v_readfirstlane_b32 s{sTAG}, v59
        s_mov_b32 s25, 0x400000
        KS_JOIN2:
        s_waitcnt lgkmcnt(0)
        {'s_mov_b32 s24, 1' if opt('nofl', 0) else 'v_readfirstlane_b32 s24, v62'}
        s_cmp_eq_u32 s24, 0
        s_cbranch_scc1 KS_FLS
        s_bfe_u32 s24, s24, 0x10001
        s_xor_b32 s{sB}, s{sB}, s24
        s_lshr_b32 s{sNB}, s{sB}, 1
        s_mul_i32 s{sNB}, s{sNB}, 625
        s_add_u32 s{sNC}, s{sNB}, {625+7}
        s_add_u32 s{sNB}, s{sNB}, 7
        s_lshr_b32 s{sNB}, s{sNB}, 3
        s_lshr_b32 s{sNC}, s{sNC}, 3
        s_add_u32 s24, s{sNB}, {SPL}
        s_sub_u32 s{sNC}, s{sNC}, s24
        s_bitcmp1_b32 s{sB}, 0
        s_cselect_b32 s{sNB}, s24, s{sNB}
        s_cselect_b32 s{sNC}, s{sNC}, {SPL}
        """)
        self.ool(f'KS_FLS:\ns_sub_u32 s25, s25, 1\ns_cbranch_scc1 K2_END\nv_mov_b32 v62, {FLIP}\nds_read_b32 v62, v62\ns_branch KS_JOIN2')
        stamp(a, 6)
    def helpers(self):
        a = self.a; RAW = 24576
        a(f"""
        {self.pad('H1', 'KS_HOP0')}
        KS_HELP:
        {'s_memrealtime s[78:79]' if PROFS else ''}
        s_mov_b32 s30, 0
        s_cmp_eq_u32 s{sW}, 6
        s_cbranch_scc1 KS_RAW
        s_mov_b32 s30, 2
        s_cmp_ge_u32 s2, 170
        s_cbranch_scc1 KS_NOW
        s_mov_b32 s30, 1
        """)
        weight_loads(a)
        a('K1_GO:\nKS_NOW:\n' + ('' if opt('eb1', 0) else 's_barrier\n') + self.padx('H2', 'KS_HOP0'))
        sstamp(a, 3)
        self.fill_w5()
        a('KS_FILL:')
        sstamp(a, 5)
        a(f'v_mov_b32 v59, {NONCE}\ns_barrier\nds_read_b32 v59, v59')
        a(f"""
        s_waitcnt vmcnt(0) lgkmcnt(0)
        s_cmp_eq_u32 s30, 0
        s_cbranch_scc1 KS_B3
        s_cmp_eq_u32 s30, 2
        s_cbranch_scc1 KS_NOST
        v_lshl_or_b32 v40, v65, 16, v64
        v_lshl_or_b32 v41, v67, 16, v66
        v_lshl_or_b32 v42, v69, 16, v68
        v_lshl_or_b32 v43, v71, 16, v70
        buffer_store_dwordx4 v[40:43], v9, s[{sWS}:{sWS+3}], s24 offen sc1
        KS_NOST:
        v_mov_b32 v62, {FLIP}
        s_waitcnt lgkmcnt(0)
        s_barrier
        ds_read_b32 v62, v62
        s_lshl_b32 s24, s2, 2
        s_add_u32 s24, s24, {WS_FLG}
        s_mov_b64 exec, 1
        s_waitcnt vmcnt(0)
        buffer_store_dword v59, v6, s[{sWS}:{sWS+3}], s24 offen sc1
        s_mov_b64 exec, -1
        s_branch KS_JOIN
        {self.pad('H3', 'KS_HOP0')}
        KS_RAW:
        s_cmp_lg_u32 s2, 0
        s_cbranch_scc1 KS_NOX
        """)
        srd(a, 60, 98, 256)
        a(f"""
        s_getreg_b32 s24, hwreg(HW_REG_XCC_ID, 0, 1)
        {'s_xor_b32 s24, s24, 1' if opt('fx', 0) else ''}
        s_add_u32 s24, s24, 1
        v_mov_b32 v10, s24
        v_mov_b32 v11, 0
        s_mov_b64 exec, 1
        buffer_atomic_cmpswap v[10:11], v6, s[60:63], 0 offen sc1
        s_mov_b64 exec, -1
        KS_NOX:
        {'' if opt('eb1', 0) else 's_barrier'}
        """)
        srd(a, 60, 90, 16*640*2)
        a('v_lshrrev_b32 v10, 3, v8\nv_and_b32 v11, 7, v8\nv_lshlrev_b32 v10, 8, v10\nv_lshl_add_u32 v10, v11, 4, v10')
        for i in range(20):
            a(f's_mov_b32 m0, {(W1L if i >= 10 else RAW) + (i % 10)*1024}\ns_movk_i32 s24, {(i % 10)*2048 + (i // 10)*128}\nbuffer_load_dwordx4 v10, s[60:63], s24 offen lds')
        sstamp(a, 3)
        self.fill_w6(0, opt('n6', 40))
        a('s_branch KS_FILL\nKS_IDLE:\ns_barrier\ns_barrier\ns_branch KS_B3')
    def wraw(self, vL2, t, base, dst):
        a = self.a
        a(f'''
        v_lshrrev_b32 v{t}, 6, v{vL2}             ; h
        v_bfe_u32 v{t+1}, v{vL2}, 3, 2            ; row
        v_lshl_add_u32 v{t}, v{t}, 2, v{t+1}
        v_mul_u32_u24 v{t}, 640, v{t}
        v_bfe_u32 v{t+1}, v{vL2}, 5, 1
        v_lshl_add_u32 v{t}, v{t+1}, 5, v{t}
        v_and_b32 v{t+1}, 6, v{vL2}
        v_lshl_add_u32 v{t}, v{t+1}, 2, v{t}
        v_add_u32 v{t}, {base}, v{t}
        ''')
        for i in range(20):
            p, u, rq = i >> 2, (i >> 1) & 1, i & 1
            a(f'ds_read_b64_tr_b16 v[{dst(p)+2*(i&3)}:{dst(p)+2*(i&3)+1}], v{t} offset:{rq*8*640 + p*128 + u*64}')

    def gen(self):
        a = self.a
        vL, vT_, vC, vE, vREM, vOFF = 176, 177, 178, 179, 180, 181
        RK = 40
        NBs = 50
        t0 = 192
        ws = f's[{sWS}:{sWS+3}]'
        def loop(done, body):
            for i in range(U):
                a(f'v_cmp_lt_i32 vcc, {2*i}, v{vREM}\ns_cbranch_vccz {done}\ns_mov_b64 exec, vcc')
                a(body(i))
            a(f'{done}:\ns_mov_b64 exec, -1')
        a('s_cmp_ge_u32 s2, 256\ns_cbranch_scc1 K2_END')
        stamp(a, 0)
        a(f'''
        s_load_dwordx16 s[80:95], s[0:1], 0
        s_load_dwordx4 s[96:99], s[0:1], 72
        s_load_dwordx2 s[100:101], s[0:1], 88   ; ws
        v_lshrrev_b32 v1, 6, v0
        s_mov_b32 s{sB}, s2
        v_readfirstlane_b32 s{sW}, v1
        ''')
        self.hops([(0, 'S1'), (1, 'S2'), (5, 'H1'), (6, 'H2'), (2, 'H3')], 'KS_HOP0')
        a(f'''
        v_and_b32 v8, 63, v0
        v_lshlrev_b32 v9, 4, v8                 ; lane*16
        v_mov_b32 v6, 0
        v_lshlrev_b32 v5, 4, v0                 ; t*16
        v_mul_u32_u24 v4, 24, v0
        s_mul_i32 s64, s2, {CH*4}
        s_mul_i32 s65, s2, {CH*6}
        v_mov_b32 v{vL}, v8
        v_mov_b32 v{vT_}, v0
        s_movk_i32 s{s1024}, 1024
        s_lshl_b32 s{sRING}, s{sW}, 13
        s_mov_b32 s{sPROG}, {PROG}
        s_lshl_b32 s{sPROGW}, s{sW}, 2
        s_add_u32 s{sPROGW}, s{sPROGW}, s{sPROG}
        {chr(10).join(f's_add_u32 s{sM0+i}, s{sRING}, {i*2048}' for i in range(4))}
        s_waitcnt lgkmcnt(0)
        ''')
        if opt('wsoff', 0): a(f's_add_u32 s100, s100, {opt("wsoff", 0) << 20}\ns_addc_u32 s101, s101, 0')
        srd(a, sWS, 100, WS_SIZE)
        self.stage_sort(vL, vT_)
        a(f'''
        s_mov_b32 s{sJ0}, 0
        s_mov_b32 s{sFIRST}, 1
        {chr(10).join(f's_mov_b32 s{i}, 0' for i in range(96, 102)) if SEG else ''}
        s_mov_b32 s{sRND}, 0
        s_mov_b32 s{sR}, 1
        K2_CELLS:
        v_lshrrev_b32 v{vC}, 1, v{vT_}          ; cell
        v_min_u32 v{vC}, {NCH-1}, v{vC}
        v_mul_u32_u24 v72, {TSTR}, v{vC}
        s_and_b32 s{sT}, s{sB}, 7
        s_lshl_b32 s{sT}, s{sT}, 7
        s_lshr_b32 s{sT+1}, s{sB}, 5
        s_lshl_b32 s{sT+1}, s{sT+1}, 4
        s_add_u32 s{sT+9}, s{sT}, s{sT+1}
        s_add_u32 s{sT+9}, s{sT+9}, {WS_TBL}
        ''')
        PL = opt('pl', 3); tld = f'buffer_load_dwordx4 v[76:79], v72, {ws}, s{sT+9} offen sc1'
        if PL == 0: a(tld)
        a(f's_cmp_eq_u32 s{sFIRST}, 0\ns_cbranch_scc1 K2_NOSRD')
        self.srds()
        self.hops([(0, 'U20'), (1, 'U30'), (2, 'U21'), (3, 'U31'), (4, 'SW'), (5, 'TL'), (6, 'T2')], 'K2_HOP')
        a('K2_NOSRD:')
        if PL == 1: a(tld)
        self.consts(vL)
        if PL == 2: a(tld)
        WS0 = lambda p: WR + 40 + 8*p
        if PL >= 3:
            a(f's_cmp_eq_u32 s{sFIRST}, 0\ns_cbranch_scc1 K2_NOW0')
            self.wraw(VL2, 60, 24576, WS0)
            a('s_waitcnt lgkmcnt(0)')
            u = self.wunp(range(5), WS0); m = opt('plu', 16)
            for x in u[:m]: a(x)
            a(tld)
            for x in u[m:]: a(x)
            a('K2_W0:')
            self.ool(f'K2_NOW0:\n{tld}\ns_branch K2_W0')
        def chk(r): return f"""
            v_xor_b32 v73, s{sT+1}, v{r}
            v_xor_b32 v74, s{sT+1}, v{r+1}
            v_or_b32 v73, v73, v74
            v_xor_b32 v74, s{sTAG}, v{r+3}
            v_lshrrev_b32 v73, 22, v73
            v_or_b32 v73, v73, v74
            v_cmp_ne_u32 vcc, 0, v73"""
        a(f'''
        s_lshl_b32 s{sT+1}, s{sTAG}, 22
        s_mov_b32 s{sT+2}, 0x40000
        s_bfe_u32 s{sT+3}, s{sB}, 0x10004
        s_bfe_u32 s{sT+4}, s{sB}, 0x10003
        s_add_u32 s{sT+5}, s{sT+3}, s{sT+4}
        s_mul_i32 s{sT+4}, s{sT+4}, 11
        s_sub_u32 s{sT+6}, 11, s{sT+4}
        v_cmp_gt_u32 vcc, {2*NCH}, v{vT_}
        s_mov_b64 s[{sEX}:{sEX+1}], vcc
        K2_POLL:
        ''')
        if opt('poll2', 0): a(f'''
        buffer_load_dwordx4 v[80:83], v72, {ws}, s{sT+9} offen sc1
        s_waitcnt vmcnt(1)
        {chk(76)}
        s_cbranch_vccz K2_POLLED
        s_sub_u32 s{sT+2}, s{sT+2}, 1
        s_cbranch_scc1 K2_END
        buffer_load_dwordx4 v[76:79], v72, {ws}, s{sT+9} offen sc1
        s_waitcnt vmcnt(1)
        {chk(80)}
        s_cbranch_vccnz K2_POLL
        s_add_u32 s{sT+3}, s{sT+3}, 4
        s_add_u32 s{sT+5}, s{sT+5}, 4
        ''')
        else: a(f'''
        s_waitcnt vmcnt(0)
        {chk(76)}
        s_cbranch_vccz K2_POLLED
        s_sub_u32 s{sT+2}, s{sT+2}, 1
        s_cbranch_scc1 K2_END
        s_mov_b64 exec, vcc
        buffer_load_dwordx4 v[76:79], v72, {ws}, s{sT+9} offen sc1
        s_mov_b64 exec, -1
        s_branch K2_POLL
        {self.pad('LD', 'KS_HOP')}
        ''')
        a(f'''
        K2_POLLED:
        s_set_gpr_idx_on s{sT+3}, gpr_idx(SRC0)
        v_bfe_u32 v{vE}, v76, s{sT+4}, 11
        s_set_gpr_idx_idx s{sT+5}
        v_bfe_u32 v73, v76, s{sT+6}, 11
        s_set_gpr_idx_off
        v_sub_u32 v73, v73, v{vE}
        ''')
        o = Asm(); sv = self.a; self.a = o
        o(f'''
        K2_WINDOW:
        s_mov_b32 s{sRND}, 0
        s_mov_b32 s{sR}, 1
        K2_LOAD:
        v_mbcnt_lo_u32_b32 v{vL}, -1, 0
        v_mbcnt_hi_u32_b32 v{vL}, -1, v{vL}
        s_lshl_b32 s{sT}, s{sW}, 6
        v_add_u32 v{vT_}, s{sT}, v{vL}
        v_lshlrev_b32 v70, 4, v{vL}
        ''')
        self.wload(0, 70, range(5), lambda p: WR + 40 + 8*p)
        self.fill_all(vL)
        o(f's_cmp_lg_u32 s{sW}, 7\ns_cbranch_scc1 K2_NOH')
        self.counters(vL, False)
        o('K2_NOH:\ns_waitcnt lgkmcnt(0)\ns_barrier\ns_branch K2_CELLS')
        self.a = sv; self.ool(o.text())
        stamp(a, 1)
        a(f'''
        v_cndmask_b32 v73, 0, v73, s[{sEX}:{sEX+1}]
        v_and_b32 v1, 1, v{vT_}
        v_add_u32 v1, s{sJ0}, v1                ; j0 + sub
        v_sub_u32 v{vREM}, v73, v1
        v_add_u32 v{vE}, v{vE}, v1
        v_mul_u32_u24 v{vOFF}, {CSTR}, v{vC}
        v_lshl_add_u32 v{vOFF}, v{vE}, 4, v{vOFF}
        ''')
        MK = [f's[{r}:{r+1}]' for r in (40, 42, 44, 46, 48, 50, 90, 92, 94, 96)]
        def mloop(done, body):
            for i in range(U): a(f's_mov_b64 exec, {MK[i]}\ns_cbranch_execz {done}\n' + body(i))
            a(f'{done}:\ns_mov_b64 exec, -1')
        M = opt('cm', 1); NL = opt('nl', 3); vOFM, vEM = vOFF + 1, vOFF + 4; LIST = 45056
        adr = lambda i, r, rm, st: f'v{rm + i - M}, {{}} offen' if M <= i < M + NL else f'v{r}, {{}} offen offset:{st*i}'
        ld = lambda i: f'buffer_load_dwordx4 v[{4*i}:{4*i+3}], ' + adr(i, vOFF, vOFM, 32).format(f'{ws}, 0') + ' sc1'
        for i in range(M): a(f'v_cmp_lt_i32 {MK[i]}, {2*i}, v{vREM}')
        a(f'v_add_u32 v{vOFM}, {32*M}, v{vOFF}\ns_mov_b32 s{sT+7}, 0')
        for i in range(M):
            a(f's_mov_b64 exec, {MK[i]}\n{ld(i)}')
        a('s_mov_b64 exec, -1')
        for i in range(M, U): a(f'v_cmp_lt_i32 {MK[i]}, {2*i}, v{vREM}')
        for j in range(1, NL): a(f'v_add_u32 v{vOFM+j}, {32*(M+j)}, v{vOFF}')
        a(f"""
        v_subrev_u32 v62, {2*M - 1}, v{vREM}
        v_ashrrev_i32 v62, 1, v62
        v_med3_i32 v62, v62, 0, {U - M}
        s_cmp_eq_u64 {MK[M]}, 0
        s_cbranch_scc1 K2_LD_DONE
        v_mov_b32 v63, v62
        """)
        scan(a, 63)
        a(f"""
        s_lshl_b32 s{sT}, s{sW}, 10
        s_add_u32 s{sT}, s{sT}, {LIST}
        v_readlane_b32 s{sT+1}, v63, 63
        v_sub_u32 v63, v63, v62
        v_lshl_add_u32 v64, v63, 2, s{sT}
        v_lshlrev_b32 v63, 5, v63
        v_sub_u32 v63, v{vOFM}, v63
        s_cmp_gt_u32 s{sT+1}, {63*NL}
        s_cbranch_scc1 K2_LD_GEN
        """)
        for i in range(M, U): a(f's_mov_b64 exec, {MK[i]}\ns_cbranch_execz K2_LD_L\nds_write_b32 v64, v63 offset:{4*(i-M)}')
        a(f"""
        K2_LD_L:
        s_mov_b64 exec, -1
        v_lshl_add_u32 v63, v{vL}, 2, s{sT}
        v_lshlrev_b32 v62, 5, v{vL}
        s_waitcnt lgkmcnt(0)
        """)
        for j in range(NL): a(f'ds_read_b32 v{64+j}, v63 offset:{4*63*j}')
        for j in range(NL): a(f's_min_u32 s{sT+2}, s{sT+1}, 63\ns_sub_u32 s{sT+1}, s{sT+1}, s{sT+2}\ns_bfm_b64 {MK[M+j]}, s{sT+2}, 0')
        a(f's_mov_b64 {MK[M+NL]}, 0\ns_mov_b32 s{sT+7}, 1')
        for j in range(NL):
            a(f's_mov_b32 s{sT+2}, {32*63*j}\ns_waitcnt lgkmcnt({NL-1-j})\nv_add3_u32 v{vOFM+j}, v62, v{64+j}, s{sT+2}\ns_mov_b64 exec, {MK[M+j]}\n{ld(M+j)}')
        a(f"""
        K2_LD_DONE:
        s_mov_b64 exec, -1
        """)
        self.ool('K2_LD_GEN:\n' + ''.join(f's_mov_b64 exec, {MK[i]}\ns_cbranch_execz K2_LD_DONE\n{ld(i)}\n' for i in range(M, U)) + 's_branch K2_LD_DONE')
        a(f"""
        s_cmp_eq_u32 s{sFIRST}, 0
        s_cbranch_scc1 K2_WLATE
        """)
        if PL >= 3: self.ool('K2_WLATE:\ns_waitcnt vmcnt(0)\n' + '\n'.join(self.wunp(range(5), WS0)) + '\ns_branch K2_NOWRAW')
        else:
            self.ool('K2_WLATE:\ns_waitcnt vmcnt(0)\ns_branch K2_WUNP')
            self.wraw(VL2, 60, 24576, WS0)
            a('s_waitcnt lgkmcnt(0)\nK2_WUNP:')
            for x in self.wunp(range(5), WS0): a(x)
        a(f"""
        K2_NOWRAW:
        {self.padx('NW', 'KS_HOP')}
        v_lshrrev_b32 v{vE}, 2, v{vOFF}
        {chr(10).join(f'v_lshrrev_b32 v{vEM+j}, 2, v{vOFM+j}' for j in range(NL))}
        s_mov_b32 s{sT+8}, {WS_RANK}
        v_mov_b32 v{t0+9}, 1
        s_movk_i32 s{sT}, {NSTR//4}
        s_movk_i32 s{sT+1}, {NSTR}
        s_mov_b32 s{sT+2}, 0x40000
        s_mov_b32 s{sT+3}, 0xffff
        v_mov_b32 v{t0+10}, {RECBASE}
        s_cmp_lg_u32 s{sRND}, 0
        s_cbranch_scc1 K2_RK_LOAD
        v_cmp_lt_i32 vcc, {2*U}, v{vREM}
        s_cbranch_vccz K2_NOMORE
        v_mov_b32 v61, {FLAG}
        ds_write_b32 v61, v{t0+9}
        K2_NOMORE:
        s_mov_b32 s{sT+4}, {RECBASE + opt("tp", 8)*NSTR}
        s_cmp_eq_u32 s{sT+7}, 0
        s_waitcnt vmcnt({NL})
        s_cbranch_scc0 K2_ARR
        s_waitcnt vmcnt(0)
        K2_ARR:
        """)
        stamp(a, 2)
        prep = lambda i: f'v_mad_u32_u24 v{NBs+i}, v{NBs+i}, s{sT}, v{t0+10}\nv_and_b32 v{4*i+3}, 0xffffff, v{4*i+3}'
        def rank(i):
            self.ool(f'K2_RT{i}:\ns_sub_u32 s{sT+2}, s{sT+2}, 1\ns_cbranch_scc1 K2_END\n{ld(i)}\ns_waitcnt vmcnt(0)\ns_branch K2_CK{i}')
            return (f's_waitcnt vmcnt({M + NL - 1 - i})\n' if M <= i < M + NL else '') + f"""K2_CK{i}:
            v_bfi_b32 v{t0}, s{sT+3}, v{4*i+1}, v{4*i+2}
            v_lshrrev_b32 v{NBs+i}, 24, v{4*i+3}
            v_cmp_ne_u32 vcc, s{sTAG}, v{t0}
            v_add_u32 v{RK+i}, {HIST}, v{NBs+i}
            s_cbranch_vccnz K2_RT{i}
            ds_add_rtn_u32 v{RK+i}, v{RK+i}, v{t0+9}
            """ + (prep(i).split('\n')[0] if (opt('tp', 8)) else prep(i))
        mloop('K2_RK_A', rank)
        a(pstamp(5))
        if opt('tp', 8):
            mloop('K2_TP', lambda i: f'v_cmp_gt_u32 vcc, s{sT+4}, v{NBs+i}\n' + prep(i).split('\n')[1] + f'\ns_mov_b64 exec, vcc\nbuffer_load_dword v245, v{4*i+3}, s[{sEA}:{sEA+3}], 0 offen {mod("tpm", "")}')
        o = Asm(); b = a; a = o
        a(f'K2_RK_LOAD:\ns_waitcnt vmcnt(0)')
        mloop('K2_RK_B', lambda i: f'v_lshrrev_b32 v{NBs+i}, 24, v{4*i+3}\nbuffer_load_dword v{RK+i}, ' + adr(i, vE, vEM, 8).format(f'{ws}, s{sT+8}') + '\n' + prep(i))
        a(f's_mul_i32 s{sT+4}, s{sRND}, 48\ns_waitcnt vmcnt(0)')
        for i in range(U): a(f'v_subrev_u32 v{RK+i}, s{sT+4}, v{RK+i}')
        a('s_branch K2_RK_DONE')
        self.ool(o.text()); a = b
        a(f"""
        K2_RK_DONE:
        {self.padx('SC', 'KS_HOP')}
        s_mul_i32 s{sT+9}, s{sRND}, 48
        s_movk_i32 s{sT}, {-E4}
        s_waitcnt lgkmcnt(0)
        {pstamp(7)}
        """)
        for i in range(U):
            rr = RK + i; base = NBs + i
            a(f"""s_mov_b64 exec, {MK[i]}
            s_cbranch_execz K2_SC_DONE
            v_cmpx_gt_u32 vcc, 64, v{rr}
            v_bfe_u32 v{t0+2}, v{rr}, 3, 1
            v_add_u32 v{t0+1}, 16, v{rr}
            v_lshl_or_b32 v{t0+2}, v{rr}, 1, v{t0+2}
            v_bfi_b32 v{t0+2}, 15, v{t0+2}, v{rr}
            v_lshrrev_b32 v{t0+1}, 6, v{t0+1}
            v_alignbit_b32 v{4*i+1}, v{4*i+2}, v{4*i+1}, 16
            v_lshl_add_u32 v{t0+3}, v{t0+2}, 3, v{base}
            v_lshl_add_u32 v{t0+2}, v{t0+2}, 5, v{base}
            ds_write_b64 v{t0+3}, v[{4*i}:{4*i+1}]
            v_mad_i32_i24 v{t0+2}, v{t0+1}, s{sT}, v{t0+2}
            ds_write_b32 v{t0+2}, v{4*i+3} offset:{OA}
            """)
        d = t0 + 1; k = t0 + 2; e = t0 + 3; p = t0 + 4; x = t0 + 5; pl = t0 + 6
        a(f'''
        K2_SC_DONE:
        s_mov_b64 exec, -1
        {self.padx('SD', 'KS_HOP')}
        v_lshlrev_b32 v{t0}, 2, v{vL}
        v_add_u32 v{t0}, {HIST}, v{t0}
        v_mov_b32 v{t0+8}, {FLAG}
        s_cmp_eq_u32 s{sRND}, 0
        s_cselect_b32 s{sLIM}, 64, 48
        {pstamp(8)}
        s_waitcnt lgkmcnt(0)
        {pstamp(9)}
        s_barrier
        {pstamp(10)}
        ds_read_b32 v{d}, v{t0}
        ds_read_b32 v{t0+8}, v{t0+8}
        v_cmp_gt_u32 s[{sEX}:{sEX+1}], s{sNC}, v{vL}
        v_mad_u32_u24 v{e}, v{vL}, s{sT+1}, v{t0+10}
        s_waitcnt lgkmcnt(0)
        v_cndmask_b32 v{d}, 0, v{d}, s[{sEX}:{sEX+1}]
        v_readfirstlane_b32 s{sMORE}, v{t0+8}
        v_cmp_lt_u32 s[{sT+4}:{sT+5}], 48, v{d}
        v_cmp_lt_u32 vcc, 64, v{d}
        s_bcnt1_i32_b64 s{sT+2}, s[{sT+4}:{sT+5}]
        v_mbcnt_lo_u32_b32 v{pl}, s{sT+4}, 0
        v_mbcnt_hi_u32_b32 v{pl}, s{sT+5}, v{pl}
        s_cbranch_vccnz K2_BIG
        s_cmp_gt_u32 s{sT+2}, {NPOOL}
        s_cbranch_scc1 K2_BIG
        K2_TOK:
        v_subrev_u32 v{k}, s{sT+9}, v{d}
        v_max_i32 v{k}, 1, v{k}
        v_min_i32 v{k}, s{sLIM}, v{k}
        v_add_u32 v{k}, 15, v{k}
        v_lshrrev_b32 v{k}, 3, v{k}
        v_lshl_or_b32 v{e}, v{k}, 18, v{e}
        v_lshl_or_b32 v{e}, v{pl}, 27, v{e}
        v_mov_b32 v{x}, {NULLBASE | (3 << 18)}
        v_cndmask_b32 v{VTAB}, v{x}, v{e}, s[{sEX}:{sEX+1}]
''')
        o = Asm(); b = a; a = o
        a(f'''
        K2_BIG:
        s_cmp_lg_u32 s{sRND}, 0
        s_cbranch_scc1 K2_TOK
        s_movk_i32 s{sLIM}, 48
        v_mov_b32 v{x}, v{d}
        ''')
        scan(a, x, 'v_max_u32')
        for dd in range(48, 512*U + 48): assert (dd * 43691) >> 21 == dd // 48
        a(f'''
        v_readlane_b32 s{sR}, v{x}, 63
        s_add_u32 s{sR}, s{sR}, 47
        s_mul_i32 s{sR}, s{sR}, 43691
        s_lshr_b32 s{sR}, s{sR}, 21
        ''')
        for i in range(U):
            a(f's_mov_b64 exec, {MK[i]}\ns_cbranch_execz K2_SV_DONE\nbuffer_store_dword v{RK+i}, ' + adr(i, vE, vEM, 8).format(f'{ws}, s{sT+8}'))
        a('K2_SV_DONE:\ns_mov_b64 exec, -1\ns_branch K2_TOK')
        self.ool(o.text()); a = b
        for q in range(4): a(f's_movk_i32 s{sOWN+q}, {q*256 + 128*(FL >> q & 1)}')
        a(f'''
        s_add_u32 s{sRND}, s{sRND}, 1
        s_cmp_ge_u32 s{sRND}, s{sR}
        s_cselect_b32 s{sLAST}, 1, 0
        s_cmp_eq_u32 s{sMORE}, 0
        s_cselect_b32 s{sLAST}, s{sLAST}, 0
        s_mov_b32 s{sSPIN}, 0x400000
        s_mov_b32 s{sJ}, 0
        s_mov_b32 s{sNPH}, 0
        s_mov_b32 s{sNP}, 0
        s_mov_b32 s{sNV}, 1
        s_mov_b32 s{sCP}, 0
        s_mov_b32 s{sT}, s{sW}
        ''')
        lg = LG(a)
        self.emit(self.next_info(0), lg)
        stamp(a, 3)
        pre = self.eread()
        for t in range(4): pre += self.sread(t)
        pre += self.adma()
        for t in range(4): pre += self.gmad(t)
        for t in range(4): pre += self.dma(t, G + 2*t, sNX + t) + (['s_barrier'] if t == opt('fbar', -1) else [])
        pre += [f'v_add_u32 v{VAO}, s{sNBs}, v{VAO}', f'v_add_u32 v{VYO}, s{sNBs}, v{VYO}']
        pre += [pstamp(11), 's_waitcnt vmcnt(6)']
        self.emit(pre, lg)
        stamp(a, 4)
        self.emit(self.bread(0) + self.areads(0) + self.areads(1), lg)
        self.dispatch(0, check=False)
        self.helpers()
        for ph in range(2):
            for nK in (2, 3):
                a(self.pad(f'U{nK}{ph}', 'K2_HOP'))
                self.unit(nK, ph, nK == 3 and 3 in self.HALF[ph])
            if 3 in self.HALF[ph]: self.unit(3, ph)
            if 2 in self.HALF[ph]: self.unit(2, ph, True)
        hot = self.outline; self.outline = []
        a(self.pad('SW', 'K2_HOP'))
        for ph in range(2):
            a(f'K2_DSP{ph}:')
            for code in (4, 7): a(f's_cmp_eq_u32 s{sEX}, {code}\ns_cbranch_scc1 {self.target(code, ph)}')
            a(f's_cmp_gt_u32 s{sEX}, 7\ns_cbranch_scc1 K2_U4{ph}\ns_cmp_lg_u32 s{sEX}, 0\ns_cbranch_scc1 K2_U1{ph}' + ('\ns_branch K2_TAIL' if ph else '\ns_branch K2_SWITCH'))
        a('K2_SWITCH:')
        stamp(a, 5)
        fl = f'buffer_load_dwordx4 v[56:59], v60, {ws}, s{sT+6} offen sc1'
        a(f'v_lshlrev_b32 v60, 3, v{VL2}\ns_mov_b32 s{sT+6}, {WS_FLG}\n{fl}')
        self.emit(self.fin(3, 0, sPP if opt('dsp', 1) else None), LG(a))
        a(f'v_lshl_add_u32 v{VPA}, v{VL2}, 1, s{sNP}\nv_lshrrev_b32 v{VH16}, 6, v{VL2}\nv_mul_u32_u24 v{VH16}, 126, v{VH16}')
        WP = lambda p: WR + 16*p + 8
        self.wraw(VL2, VT0, W1L, WP)
        for q in range(4): a(f's_movk_i32 s{sOWN+q}, {q*256 + 128*(~FL >> q & 1)}')
        for p in range(5):
            a(f's_waitcnt lgkmcnt({min(15, 16 - 4*p)})')
            for x in self.wunp((p,), WP): a(x)
        a(f"""
        K2_FLGW:
        s_or_b32 s{sT}, s{sB}, s{sW}
        s_waitcnt vmcnt(0)
        v_xor_b32 v56, s{sTAG}, v56
        v_xor_b32 v57, s{sTAG}, v57
        v_xor_b32 v58, s{sTAG}, v58
        v_xor_b32 v59, s{sTAG}, v59
        v_or3_b32 v56, v56, v57, v58
        v_or_b32 v56, v56, v59
        v_cmp_ne_u32 vcc, 0, v56
        s_cbranch_vccnz K2_FLGR
        s_cmp_eq_u32 s{sT}, 0
        s_cbranch_scc1 K2_FLGY
        K2_FLGOK:
        s_cmp_eq_u32 s{sNV}, 0
        s_cbranch_scc1 K2_TAIL2
        """)
        self.ool(f"""
        K2_FLGR:
        s_sub_u32 s{sSPIN}, s{sSPIN}, 16
        s_cbranch_scc1 K2_END
        {fl}
        s_branch K2_FLGW
        K2_FLGY:
        v_mov_b32 v56, s{sTAG}
        v_mov_b32 v57, {WS_EPO}
        s_mov_b64 exec, 1
        buffer_store_dword v56, v57, {ws}, 0 offen sc1
        s_mov_b64 exec, -1
        s_branch K2_FLGOK
        """)
        if not FUSE: stamp(a, 6)
        self.dispatch(1, check=False)
        isunit = lambda t: t.startswith(('K2_dyn', 'K2_dum', 'K2_nul', 'K2_spin', 'K2_es'))
        for t in hot:
            if isunit(t): a(t)
        a(self.pad('TL', 'K2_HOP'))
        self.tail()
        for t in hot:
            if not isunit(t): a(t)
        for ph in range(2):
            for nK in (1, 4): self.unit(nK, ph)
        for t in self.outline: a(t)
        a('K2_END:\ns_endpgm')
        return a.lines, 256

    @staticmethod
    def sreg(f): return WR + 16*(0, 2, 1, 3, 4)[f >> 2] + 4*(f & 3)
    def spre(self, v, at=0): return f'v_lshlrev_b32 v{v}, 3, v{VL2}\ns_mul_i32 s{sT}, s{sW}, {20*1024}\ns_add_u32 s{sT}, s{sT}, {WS_STAB + at*4096}'
    def sload(self, v, order=range(20), at=0):
        sl = []
        for f in order:
            mv = ''
            if f // 4 != at: mv = f's_add_u32 s{sT}, s{sT}, {(f//4 - at)*4096 & 0xffffffff}\n'; at = f // 4
            sl.append(mv + f'buffer_load_dwordx4 v[{self.sreg(f)}:{self.sreg(f)+3}], v{v}, s[{sWS}:{sWS+3}], s{sT} offen offset:{(f%4)*1024} sc1')
        return sl
    def tail(self):
        a = self.a
        ws = f's[{sWS}:{sWS+3}]'
        vP0 = 222; vP1 = 223; vS = 226; vSP = 227; vRow = 228; vL16 = 229
        vQ0 = 232; vSt = 254; vS2 = 255; vS3 = 246; vQ0a = 247; vQ1a = 248; vRow2 = 249
        OP = 176
        PRE = opt('pre', 0); ES = opt('es', 0); assert not (PRE and ES)
        order = [4, 5, 6, 7, 14, 15, 16, 17, 18, 19, 0, 1, 2, 3, 8, 9, 10, 11, 12, 13] if PRE else list(range(20))
        sl = self.sload(vL16, order)
        rowb = f'\ns_mul_i32 s{sT+1}, s{sW}, {8192+32}'
        done = [f'v_mov_b32 v{VT0}, s{sPROGW}', f'v_mov_b32 v{VT1}, -1', f's_mov_b64 exec, 1\nds_write_b32 v{VT0}, v{VT1}\ns_mov_b64 exec, -1'] if PRE else []
        NE = opt('ne', 6 if ES else 8); N0 = 8 if ES else 0
        adr = [f'v_lshl_add_u32 v{vRow}, v{VL2}, 1, s{sT+1}', f'v_lshrrev_b32 v{vS}, 6, v{VL2}', f'v_mul_u32_u24 v{vS}, 126, v{vS}', f'v_sub_u32 v{vS}, v{vRow}, v{vS}']
        a('K2_TAIL2:\n' + self.spre(vL16) + rowb)
        for x in sl[:N0 + NE] + adr: a(x)
        a('s_branch K2_TAIL3\nK2_TAIL:')
        stamp(a, 7)
        a(self.spre(vL16, 1 if ES else 0) + rowb)
        f3 = self.fin(3, 1) + adr; w = []; m = (len(f3) + NE - 1) // NE if NE else 0
        for i in range(NE): w += [sl[N0 + i]] + f3[m*i:m*i+m]
        self.emit(w + f3[m*NE:], LG(a))
        a('K2_TAIL3:')
        for x in done: a(x)
        a(f's_waitcnt vmcnt({NE})')
        dump = []
        if opt('w2st', 1):
            rows = [(P0 + 6*j + k, 6*j + k) for j in range(5) for k in range(5)]
            for i in range(0, 24, 2): dump.append(f'ds_write2st64_b32 v{vRow}, v{rows[i][0]}, v{rows[i+1][0]} offset0:{rows[i][1]} offset1:{rows[i+1][1]}')
            dump.append(f'ds_write_b32 v{vRow}, v{rows[24][0]} offset:{rows[24][1]*256}')
            for j in range(5): dump.insert(4*j + 2, f'ds_write_b16 v{vS}, v{P0+6*j+5} offset:{j*1536 + 1280}')
        else:
            for j in range(5):
                for k in range(5): dump.append(f'ds_write_b32 v{vRow}, v{P0+6*j+k} offset:{j*1536 + k*256}')
                dump.append(f'ds_write_b16 v{vS}, v{P0+6*j+5} offset:{j*1536 + 1280}')
        assert RECBASE % 256 == 0 and NSTR % 256 == 32
        DS = opt('ds', 0)
        dsa = f"""s_add_u32 s{sT+2}, s{sNB}, 32
        s_sub_u32 s{sT+3}, s{sNC}, 32
        v_add_u32 v51, s{sT+2}, v54
        v_cmp_gt_u32 vcc, s{sT+3}, v54
        v_lshl_add_u32 v51, v51, 10, v49
        v_mov_b32 v53, 0x7ff00000
        v_cndmask_b32 v51, v53, v51, vcc
        v_lshl_add_u32 v{vS3}, v55, 9, v51
        v_lshl_add_u32 v{vS2}, v55, 30, v51"""
        calc = f"""
        v_bfe_u32 v48, v{VL2}, 1, 4             ; n & 15
        v_lshrrev_b32 v49, 5, v{VL2}            ; slab
        v_lshrrev_b32 v55, 3, v48
        v_lshlrev_b32 v52, 4, v49               ; slab*16
        v_lshl_add_u32 v54, v55, 2, v48
        v_and_b32 v54, 7, v54                   ; node of the last group in column n
        v_and_b32 v50, 7, v48
        v_mul_u32_u24 v50, {8192+32}, v50
        v_mul_u32_u24 v51, 1536, v55
        v_add_u32 v50, v50, v51                 ; slot of node n
        v_add_u32 v{vP0}, v50, v52
        v_mul_u32_u24 v51, {8192+32}, v54
        v_add_u32 v{vQ0}, v51, v52
        v_lshl_add_u32 v{vQ0a}, v55, 7, v{vQ0}
        v_mul_u32_u24 v51, {NSTR}, v48
        s_mov_b32 s{sT+2}, {RECBASE}
        v_add3_u32 v{vP1}, v51, v52, s{sT+2}
        v_mul_u32_u24 v51, {NSTR}, v54
        s_mov_b32 s{sT+2}, {RECBASE + 32*NSTR}
        v_add3_u32 v{vP1+2}, v51, v52, s{sT+2}
        v_lshl_add_u32 v{vQ1a}, v55, 7, v{vP1+2}
        s_lshl_b32 s{sT+2}, s{sW}, 5
        v_lshl_add_u32 v49, v49, 3, s{sT+2}
        {dsa if DS else f's_mov_b32 s{sT+2}, {RECBASE}' + chr(10) + f'v_add3_u32 v{vS2}, v51, v49, s{sT+2}' + chr(10) + f'v_lshl_add_u32 v{vS3}, v55, 9, v{vS2}'}
        v_bfe_u32 v53, v48, 2, 1
        v_lshl_add_u32 v49, v53, 4, v49
        v_add_u32 v{vSt}, v50, v49
        s_and_b32 s{sT+6}, s{sLAST}, s{sFIRST}  ; plain single-round case
        """.strip().split('\n')
        rest = sl[N0 + NE:]; per = max(2, (len(dump) + len(rest) - 1) // max(1, len(rest)))
        while dump or rest:
            for x in dump[:per] + rest[:1] + calc[:2]: a(x)
            dump = dump[per:]; rest = rest[1:]; calc = calc[2:]
        for x in calc: a(x)
        if PRE: a(f'v_lshl_add_u32 v48, v{VL2}, 1, s{sPROG}\nds_read_b32 v49, v48\ns_mov_b32 s{sT+7}, {RECBASE + 32*NSTR}')
        a('s_waitcnt lgkmcnt(0)')
        late = f"""
        s_bfe_u32 s{sT+2}, s{sW}, 0x10002
        s_lshl_b32 s{sT+2}, s{sT+2}, 4
        s_add_u32 s{sT+1}, s{sT+1}, s{sT+2}
        v_add_u32 v{vRow}, s{sT+1}, v{vL16}
        {'' if DS else f's_mul_i32 s{sT+2}, s{sW}, {NSTR}' + chr(10) + f's_add_u32 s{sT+2}, s{sT+2}, {RECBASE}' + chr(10) + f'v_add_u32 v{vRow2}, s{sT+2}, v{vL16}'}
        s_mov_b32 s{sT+5}, 0xbfb8aa3b           ; -log2(e)
        s_add_u32 s{sOWN}, s{sW}, s{sNB}
        s_lshl_b32 s{sOWN}, s{sOWN}, 10
        """.strip().split('\n') + [f's_add_u32 s{sOWN+j}, s{sOWN}, {j*8192}' for j in range(1, 4 if DS else 5)]
        late = [x for x in late if x.strip()]
        if PRE:
            a(f"""s_cmp_eq_u32 s{sT+6}, 0
            s_cbranch_scc1 K2_MULTI
            K2_PREW:
            v_cmp_gt_u32 vcc, s{sT+7}, v49
            s_setprio {opt('pp', 0)}
            s_and_b32 s{sT+8}, vcc_lo, 0xff
            s_cbranch_scc1 K2_PRES""")
            self.ool(f'K2_PRES:\ns_sub_u32 s{sSPIN}, s{sSPIN}, 1\ns_cbranch_scc1 K2_END\nds_read_b32 v49, v48\ns_waitcnt lgkmcnt(0)\ns_branch K2_PREW')
            stamp(a, 8)
        else:
            stamp(a, 8); a('s_barrier'); stamp(a, 9)
            a(f's_cmp_eq_u32 s{sT+6}, 0\ns_cbranch_scc1 K2_MULTI')
        part = {}
        for g in range(3):
            def ad(ph, row, hh, packed=False):
                o = self.SROW[row]*128 + hh*64
                if g < 2: return (vP1, g*16*NSTR + o) if ph else (vP0, g*3072 + o)
                return ((vQ1a if packed else vP1+2), o) if ph else ((vQ0a if packed else vQ0), 4*1536 + o)
            for ph in range(2):
                part[g, ph, 0] = [(16*g, ph*4 + rs*2 + hh) + ad(ph, rs, hh) for rs in range(2) for hh in range(2)]
                part[g, ph, 1] = [(16*g + 4 + 4*j, 8 + ph*6 + path*2 + hh) + ad(ph, 2 + 3*j + path, hh, j == 0) for path in range(3) for hh in range(2) for j in range(3 if g < 2 else 2)]
        seq = [(g, ph, o) for g in range(3) for o in range(2) for ph in range(2)]
        if PRE: seq = [(0,1,0), (1,1,0), (0,1,1), (1,1,1), (0,0,0), (1,0,0), (0,0,1), (1,0,1)] + seq[8:]
        GF = opt('gf', 1) and not PRE
        if GF: seq = [(g, ph, 0) for g in range(3) for ph in range(2)] + [(g, ph, 1) for g in range(3) for ph in range(2)]
        steps = [x for k in seq for x in part[k]]
        if GF and opt('il', 0): steps[:24] = [part[g, ph, 0][i] for ph in range(2) for i in range(4) for g in range(3)]
        for path in range(3): assert self.SROW[8 + path] == self.SROW[2 + path] + 1
        NB = 12; D = 10
        def epi(g, part=3):
            c = 16*g; o = OP + 8*(g & 1); s = []; tp = 204 + 4*g; o0 = 220 if g == 2 else o
            if part & 1:
                for r in range(4): s.append(f'v_mul_f32 v{tp+r}, s{sT+5}, v{c+r}')
                for r in range(4): s.append(f'v_exp_f32 v{tp+r}, v{tp+r}')
                for r in range(4): s.append(f'v_add_f32 v{tp+r}, 1.0, v{tp+r}')
                for r in range(4): s.append(f'v_rcp_f32 v{tp+r}, v{tp+r}')
                s += [f'v_cvt_pk_bf16_f32 v{o0}, v{c}, v{c+1}', f'v_cvt_pk_bf16_f32 v{o0+1}, v{c+2}, v{c+3}']
            if part & 2:
                for j in range(3 if g < 2 else 2):
                    for r in range(4): s.append(f'v_mul_f32 v{c+4+4*j+r}, v{c+4+4*j+r}, v{tp+r}')
                    s += [f'v_cvt_pk_bf16_f32 v{o+2+2*j}, v{c+4+4*j}, v{c+5+4*j}', f'v_cvt_pk_bf16_f32 v{o+3+2*j}, v{c+6+4*j}, v{c+7+4*j}']
            return s
        def stage(g, part=3):
            o = OP + 8*(g & 1)
            if g < 2: w = [(rt, vSt, g*3072) for rt in range(4)]
            else: w = [(0, vS2, 0), (1, vS3, 0), (2, vS2, 0)]
            src = lambda rt: 220 if (g, rt) == (2, 0) else o + 2*rt
            if g == 2 and DS: return [f'buffer_store_dwordx2 v[{src(rt)}:{src(rt)+1}], v{r}, s[{sOUT}:{sOUT+3}], 0 offen offset:{rt*256} {mod("outst2","sc1")}' for rt, r, b in w if part & (2 if rt else 1)]
            return [(f'ds_write_b64 v{r}, v[{src(rt)}:{src(rt)+1}] offset:{b + rt*256}', [(f'w{g}', False)]) for rt, r, b in w if part & (2 if rt else 1)]
        def rowread(g):
            if g == 2: return [(f'ds_read_b128 v[200:203], v{vRow2}', [('r2', False)])]
            return [(f'ds_read_b128 v[{192+4*(j&1)}:{195+4*(j&1)}], v{vRow} offset:{j*1536}', [(f'r{g}', False)]) for j in (2*g, 2*g+1)]
        def rowstore(g):
            s = [('wait', f'r{g}')]
            for j in ((2*g, 2*g+1) if g < 2 else (4,)):
                b = 192 + 4*(j & 1) if g < 2 else 200
                s += [f'buffer_store_dwordx4 v[{b}:{b+3}], v{vL16}, s[{sOUT}:{sOUT+3}], s{sOWN+j} offen {mod("outst","sc1")}']
            return s
        def gemm(lg, extra):
            def rd(k):
                c, f, r, o = steps[k]
                b = 48 + 4*(k % NB)
                self.emit([(f'ds_read_b128 v[{b}:{b+3}], v{r} offset:{o}', [(f'k{k}', False)])], lg)
            D0 = opt('d0', D); nxt = D0
            for k in range(D0): rd(k)
            seen = [-1]; started = set()
            for k in range(len(steps)):
                c, f, r, o = steps[k]
                for _ in range(2):
                    if nxt <= k + D and nxt < len(steps): rd(nxt); nxt += 1
                vm = None
                if order.index(f) > seen[0]: seen[0] = order.index(f); vm = 19 - seen[0]
                kk = min(k + 1, len(steps) - 1) if (opt('w2', 1) and k % 2 == 0) else k
                self.emit([('wait', f'k{kk}', vm)], lg)
                b = 48 + 4*(k % NB)
                cin = f'v[{c}:{c+3}]' if c in started else '0'; started.add(c)
                a(f'v_mfma_f32_16x16x32_bf16 v[{c}:{c+3}], v[{self.sreg(f)}:{self.sreg(f)+3}], v[{b}:{b+3}], {cin}')
                self.emit(extra.get(k, []), lg)
        lg = LG(a); extra = {}
        def spread(items, k0, k1):
            for i, x in enumerate(items): extra.setdefault(k0 + i*(k1 - k0 + 1)//len(items), []).append(x)
        spread(late, 2, 8)
        if self.padx('T2', 'K2_HOP'): extra.setdefault(opt('t2k', 41), []).append(self.padx('T2', 'K2_HOP'))
        b0 = opt('b0', 72 if PRE else 62 if GF else 46); e0 = opt('e0', 84 if PRE else 80 if GF else 64); b1 = opt('b1', 86 if DS else 98 if GF else 90); r0 = opt('r0', 92 if DS else 104 if GF else 98); e1 = opt('e1', 108 if DS else 113 if GF else 108)
        b2 = opt('b2', 113); r1 = opt('r1', 118); assert GF or not DS
        bA = min(opt('bA', 33), 44 - D - 1)
        if PRE:
            extra.setdefault(bA, []).extend(([f's_memtime s[{76+2*9}:{77+2*9}]'] if 0 else []) + ['s_barrier'] + ([f'{"s_memtime" if opt("cyc", False) else "s_memrealtime"} s[94:95]'] if PROF else []))
            spread(epi(0, 1), 50, opt('g0', 60))
            spread(epi(1, 1), opt('g0', 60) + 1, opt('g1', 71))
            extra.setdefault(b0, []).append('s_barrier')
            spread(epi(0, 2), 72, e0)
            extra.setdefault(e0 + 1, []).extend(stage(0))
        elif GF:
            il = opt('il', 0); g0 = opt('g0', 36 if il else 26); g1 = opt('g1', 47 if il else 42)
            spread(epi(0, 1), 25 if il else 11, g0); spread(epi(1, 1), g0 + 1, g1); spread(epi(2, 1), g1 + 1, opt('g2', 58))
            extra.setdefault(b0, []).append('s_barrier')
            spread(epi(0, 2), 60 + 3, e0)
            extra.setdefault(e0 + 1, []).extend(stage(0) + stage(2, 1))
        else:
            spread(epi(0, 1), 12, 40)
            if not opt('nob0', 0): extra.setdefault(b0, []).append('s_barrier')
            spread(epi(0, 2), 44 + 3, e0)
            extra.setdefault(e0 + 1, []).extend(stage(0))
            spread(epi(1, 1), e0 + 2, 86)
        extra.setdefault(b1, []).extend([('wait', 'w2' if (GF and not DS) else 'w0')] + ([] if opt('nob1', 0) else ['s_barrier']) + rowread(0))
        spread(epi(1, 2), (96 if GF else 88) + 3, e1)
        extra.setdefault(r0, []).extend(rowstore(0))
        extra.setdefault(e1 + 1, []).extend(stage(1))
        if DS:
            extra.setdefault(b2, []).extend([('wait', 'w1'), 's_barrier'] + rowread(1))
            extra.setdefault(r1, []).extend(rowstore(1))
        if not GF:
            spread(epi(2, 1), max(e1 - 8, 100), 117)
            extra.setdefault(118, []).extend(stage(2, 1))
        if opt('gp', 1):
            for k0, k1 in ((bA if PRE else -1, b0), (b0, b1), (b1, b2 if DS else len(steps))):
                fr = [float(x) for x in opt('gpf', '0.3_0.6_0.87').split('_')]
                if k0 >= 0: extra.setdefault(k0, []).append('s_setprio 3')
                for i, f in enumerate(fr): extra.setdefault(k0 + int((k1 - k0)*f), []).append(f's_setprio {2-i}')
            if not PRE: a('s_setprio 3')
        if PROFT:
            for i, k in enumerate((0, 23, 59, 81, 97, 113) if GF else (0, 8, 43, 66, 87, 104)): extra.setdefault(k, []).append(f'{"s_memtime" if opt("cyc", False) else "s_memrealtime"} s[{78+2*i}:{79+2*i}]')
        if opt('noepi', 0): extra = {k: [x for x in v if not (isinstance(x, str) and x.startswith(('v_cvt', 'v_exp', 'v_rcp', 'v_mul_f32', 'v_add_f32')[:opt('noepi', 0)]))] for k, v in extra.items()}
        gemm(lg, extra)
        stamp(a, 10)
        if DS:
            e = epi(2, 2); st = stage(2, 2)
            self.emit(e[:6] + st[:1] + e[6:] + st[1:], lg)
        else:
            self.emit(epi(2, 2) + stage(2, 2) + [('wait', 'w2'), 's_barrier'] + rowread(1) + rowread(2) + rowstore(1), lg)
            a(f'K2_LASTROW:\ns_add_u32 s{sT+1}, s{sW}, 32\ns_cmp_ge_u32 s{sT+1}, s{sNC}\ns_cbranch_scc1 K2_FIN\ns_waitcnt lgkmcnt(0)')
            self.emit(rowstore(2), LG(a))
        a('K2_FIN:')
        if PROF:
            stamp(a, 11); a('s_waitcnt vmcnt(0)'); stamp(a, 12); stamp_out(a, 13, 1, sW, sB, sWS)
        a('s_endpgm')
        a('K2_MULTI:' + ('\ns_barrier' if PRE else ''))
        lg = LG(a)
        gemm(lg, {})
        a(f"""
        s_lshl_b32 s{sT+2}, s{sB}, 9
        s_lshl_b32 s{sT+3}, s{sW}, 6
        s_add_u32 s{sT+2}, s{sT+2}, s{sT+3}
        s_mul_i32 s{sT+2}, s{sT+2}, 192
        s_add_u32 s{sT+2}, s{sT+2}, {WS_ACC}
        v_mul_u32_u24 v{vSP}, 96, v{VL2}        ; lane*192
        s_cmp_lg_u32 s{sFIRST}, 0
        s_cbranch_scc1 K2_NOACC
        """)
        for i in range(11): a(f'buffer_load_dwordx4 v[{48+4*i}:{51+4*i}], v{vSP}, {ws}, s{sT+2} offen offset:{16*i}')
        a('s_waitcnt vmcnt(0)')
        for i in range(44): a(f'v_add_f32 v{i}, v{i}, v{48+i}')
        a(f'K2_NOACC:\ns_barrier\ns_cmp_eq_u32 s{sLAST}, 0\ns_cbranch_scc1 K2_SPILL')
        self.emit(late, lg)
        for g in range(2):
            self.emit(epi(g) + stage(g) + [('wait', f'w{g}'), 's_barrier'] + rowread(g) + rowstore(g), lg)
        self.emit(epi(2) + stage(2) + ([] if DS else [('wait', 'w2'), 's_barrier'] + rowread(2)), lg)
        a(f's_branch {"K2_FIN" if DS else "K2_LASTROW"}\nK2_SPILL:')
        for i in range(11): a(f'buffer_store_dwordx4 v[{4*i}:{4*i+3}], v{vSP}, {ws}, s{sT+2} offen offset:{16*i}')
        a(f"""
        s_mov_b32 s{sFIRST}, 0
        s_waitcnt vmcnt(0)
        s_cmp_lt_u32 s{sRND}, s{sR}
        s_cbranch_scc1 K2_LOAD
        s_add_u32 s{sJ0}, s{sJ0}, {2*U}
        s_branch K2_WINDOW
        """)

HEADER = '''; Kernarg layout for this problem (96 bytes, ptrs only, base s[0:1]):
'''
def kd(name, vgpr):
    return f'''.amdhsa_kernel {name}
  .amdhsa_next_free_vgpr {vgpr}
  .amdhsa_next_free_sgpr {102}
  .amdhsa_accum_offset {(vgpr+3)//4*4}
  .amdhsa_group_segment_fixed_size 0
  .amdhsa_kernarg_size 96
  .amdhsa_user_sgpr_count 2
  .amdhsa_user_sgpr_kernarg_segment_ptr 1
  .amdhsa_system_sgpr_workgroup_id_x 1
  .amdhsa_float_denorm_mode_32 3
.end_amdhsa_kernel
'''
def main():
    ks = []
    l2, v2 = K2().gen(); ks.append((NAME + '_kernel', fix_hazards(l2), v2))
    s = HEADER
    s += f'; @launch grid=(256,1,1) block=(512,1,1) lds={K2_LDS}\n'
    s += '.amdgcn_target "amdgcn-amd-amdhsa--gfx950"\n.text\n'
    for name, l, v in ks:
        s += f'.globl {name}\n.p2align 8\n.type {name},@function\n{name}:\n'
        s += '\n'.join((x if x.endswith(':') else '    ' + x) for x in l) + '\n'
    s += '.section .rodata,"a"\n' + ''.join('.p2align 6\n' + kd(name, v) for name, l, v in ks)
    out = sys.argv[1] if len(sys.argv) > 1 else f'/code/{NAME}.s'
    open(out, 'w').write(s)
    print('wrote', out, len(s), 'bytes')
main()
```

```python
import sys, os
sys.path.insert(0, os.path.dirname(os.path.abspath(__file__)))
from asmlib import Asm, fix_hazards

NAME = 'standalone__tensor_product_equiv_equiformer__graph'
N = 10000; E = 320000
NCH = 250; CH = E // NCH
CSTR = CH * 16 + 128
TSTR = 1024 + 128
WS_REC = 0
WS_TBL = 0x0600000
WS_STAB = 0x06A0000
WS_WTAB = 0x06C8000
WS_FLG = 0x06D8000
WS_EPO = WS_FLG + 2048
WS_RANK = 0x0700000
WS_PROF = 0x0900000
WS_ACC = 0x0A00000
WS_SIZE = 0x2400000
assert NCH * CSTR <= WS_TBL and WS_TBL + NCH * TSTR <= WS_STAB and WS_ACC + 256*512*192 <= WS_SIZE
OPT = dict(a.split('=') for a in sys.argv[2:]) if len(sys.argv) > 2 else {}
def opt(k, d): return type(d)(OPT.get(k, d)) if not isinstance(d, bool) else bool(int(OPT.get(k, d)))
def mod(k, d): return opt(k, d).replace('_', ' ')

PMUL = 214749; SPL = opt('spl', 40); PCUT = (1 << 24) - (SPL*8*(1 << 24) + 312)//625
for d in range(N):
    p_ = (d*8)//625; l_ = d - (625*p_ + 7)//8
    assert (d*PMUL) >> 24 == p_ and (((d*PMUL) & 0xffffff) + PCUT) >> 24 == (l_ >= SPL) and l_ - SPL*(l_ >= SPL) < 40
PROF = opt('prof', False)
FUSE = True
SEG = opt('seg', False)
def seg(i): return [f's_memtime s[{76+2*i}:{77+2*i}]'] if SEG else []
PROFS = opt('profs', False)
def sstamp(a, i):
    if PROFS: a(f's_memrealtime s[{76+2*i}:{77+2*i}]')
PROFT = opt('proft', False)

PROFP = opt('profp', False)
FL = opt('fl', 0)
def pstamp(i): return f's_memrealtime s[{76+2*i}:{77+2*i}]' if PROFP else ''
def stamp(a, i, t=False):
    if PROFP and i in (5, 7, 8, 9, 10, 11): return
    if opt('clk', 0):
        if i == 11: a('s_getreg_b32 s98, hwreg(HW_REG_XCC_ID)')
        if i in (7, 8, 10, 11): return
        if i in (4, 5, 9): a(f's_memtime s[{76+2*{4:7,5:8,9:10}[i]}:{77+2*{4:7,5:8,9:10}[i]}]')
    if PROFT and 1 <= i <= 6 and not t: return
    if PROFS and i in (1, 3, 5, 11, 12): return
    if PROF and not SEG: a(f'{"s_memtime" if opt("cyc", False) else "s_memrealtime"} s[{76+2*i}:{77+2*i}]')
def stamp_out(a, n, kern, swave, swg, srd_s):
    if not PROF: return
    if opt('dbgout', -1) >= 0:
        l = f'DBG_{kern}'
        a(f's_cmp_lg_u32 s{swg}, {opt("dbgout", -1)}\ns_cbranch_scc1 {l}\ns_cmp_lg_u32 s{swave}, 0\ns_cbranch_scc1 {l}')
        a(f's_load_dwordx2 s[58:59], s[0:1], 80\ns_waitcnt lgkmcnt(0)\ns_add_u32 s58, s58, {512*(1-kern)*opt("dbgk1", 0)}\ns_addc_u32 s59, s59, 0')
        srd(a, 60, 58, 256)
        a('s_mov_b64 exec, 1\nv_mov_b32 v1, 0')
        for i, o in ([(0, 0), (5, 14), (2, 15)] if kern == 0 else [(i, 1+i) for i in range(13)]):
            a(f'v_mov_b32 v2, s{76+2*i}\nbuffer_store_dword v2, v1, s[60:63], 0 offen offset:{4*o}')
        a(f's_mov_b64 exec, -1\n{l}:')
        return
    a('s_waitcnt lgkmcnt(0)')
    a(f's_lshl_b32 s67, s{swg}, 4\ns_add_u32 s67, s67, s{swave}\ns_lshl_b32 s67, s67, 6\ns_add_u32 s67, s67, {WS_PROF + kern*256*16*64}')
    a('s_mov_b64 exec, 1\nv_mov_b32 v1, 0')
    for i in range(n):
        a(f'v_mov_b32 v2, s{76+2*i if not SEG else 96+min(i,5)}\nbuffer_store_dword v2, v1, s[{srd_s}:{srd_s+3}], s67 offen offset:{4*i}')
    a('s_mov_b64 exec, -1')

def srd(a, s, ptr, nbytes):
    a(f's_mov_b32 s{s}, s{ptr}\ns_and_b32 s{s+1}, s{ptr+1}, 0xffff\ns_mov_b32 s{s+2}, {nbytes}\ns_mov_b32 s{s+3}, 0x20000')

def scan(a, v, op='v_add_u32'):
    for sh in (1, 2, 4, 8):
        a(f'{op}_dpp v{v}, v{v}, v{v} row_shr:{sh} row_mask:0xf bank_mask:0xf bound_ctrl:0')
    a(f'{op}_dpp v{v}, v{v}, v{v} row_bcast:15 row_mask:0xa bank_mask:0xf')
    a(f'{op}_dpp v{v}, v{v}, v{v} row_bcast:31 row_mask:0xc bank_mask:0xf')

K1_T = CH // 4
K1_LDS = 2048 + CH * 16
def weight_loads(a):
    a(f'''
    v_and_b32 v1, 15, v8
    v_lshrrev_b32 v3, 4, v8
    s_cmp_ge_u32 s2, 160
    s_cbranch_scc1 K1_WT
    s_cmp_ge_u32 s2, 64
    s_cbranch_scc1 K1_S1
    s_lshr_b32 s24, s2, 3
    s_and_b32 s25, s2, 7
    s_lshr_b32 s26, s25, 2
    s_bfe_u32 s27, s25, 0x10001
    s_and_b32 s28, s25, 1
    ''')
    srd(a, 60, 92, 256*128*2)
    a(f'''
    s_branch K1_SC
    K1_S1:
    ; S1: g2 = g-64; w = g2/12, f2 = g2%12 : ph = f2/6, path = (f2%6)>>1, hh = f2&1
    s_sub_u32 s29, s2, 64
    s_mul_i32 s24, s29, 43
    s_lshr_b32 s24, s24, 9
    s_mul_i32 s25, s24, 12
    s_sub_u32 s25, s29, s25
    s_cmp_ge_u32 s25, 6
    s_cselect_b32 s26, 1, 0
    s_mul_i32 s27, s26, 6
    s_sub_u32 s27, s25, s27
    s_lshr_b32 s27, s27, 1
    s_and_b32 s28, s25, 1
    s_add_u32 s25, s25, 8
    ''')
    for g2 in range(96): assert (g2*43) >> 9 == g2 // 12
    srd(a, 60, 94, 384*128*2)
    a(f'''
    K1_SC:
    s_lshl_b32 s27, s27, 7
    s_lshl_b32 s26, s26, 6
    s_lshl_b32 s28, s28, 4
    s_add_u32 s27, s27, s26
    s_add_u32 s27, s27, s28
    s_lshl_b32 s27, s27, 8
    s_lshl_b32 s26, s24, 5
    s_add_u32 s27, s27, s26
    s_add_u32 s29, s27, 8192
    v_lshlrev_b32 v3, 10, v3
    v_lshl_add_u32 v3, v1, 1, v3
    ''')
    for e in range(8): a(f'buffer_load_ushort v{64+e}, v3, s[60:63], s{29 if e & 1 else 27} offen offset:{(e >> 1)*256}')
    a(f'''
    s_mul_i32 s24, s24, 20
    s_add_u32 s24, s24, s25
    s_lshl_b32 s24, s24, 10
    s_add_u32 s24, s24, {WS_STAB}
    s_branch K1_GO
    K1_WT:
    s_sub_u32 s24, s2, 160
    s_lshr_b32 s27, s24, 1
    s_and_b32 s28, s24, 1
    s_lshl_b32 s27, s27, 8
    s_lshl_b32 s28, s28, 6
    s_add_u32 s27, s27, s28
    s_add_u32 s29, s27, {8*1280}
    ''')
    srd(a, 60, 90, 16*640*2)
    a(f'''
    v_and_b32 v1, 31, v8
    v_lshrrev_b32 v3, 5, v8
    v_mul_u32_u24 v3, {4*1280}, v3
    v_lshl_add_u32 v3, v1, 1, v3
    ''')
    for j in range(8): a(f'buffer_load_ushort v{64+j}, v3, s[60:63], s{29 if j >> 2 else 27} offen offset:{(j & 3)*1280}')
    a(f'''
    s_lshl_b32 s24, s24, 10
    s_add_u32 s24, s24, {WS_WTAB}
    ''')

def sort_rank(a, pad):
    for j in range(4):
        a(f"""v_mul_u32_u24 v{28+j}, s58, v{12+j}
        v_and_b32 v{40+j}, 0xffffff, v{28+j}
        v_lshrrev_b32 v{32+j}, 26, v{28+j}
        v_add_u32 v{40+j}, {PCUT}, v{40+j}
        v_bfe_u32 v{36+j}, v{28+j}, 24, 2
        v_lshlrev_b32 v{32+j}, 2, v{32+j}
        v_lshrrev_b32 v{40+j}, 24, v{40+j}
        v_lshl_or_b32 v{32+j}, v{36+j}, 8, v{32+j}
        v_lshl_or_b32 v{32+j}, v{40+j}, 7, v{32+j}
        ds_add_rtn_u32 v{36+j}, v{32+j}, v7""")
    for j in range(4):
        a(f'v_lshrrev_b32 v{28+j}, 24, v{28+j}\nv_mad_u32_u24 v{28+j}, v{28+j}, s59, 7\nv_lshrrev_b32 v{28+j}, 3, v{28+j}\nv_mad_u32_u24 v{28+j}, v{40+j}, {SPL}, v{28+j}\nv_sub_u32 v{28+j}, v{12+j}, v{28+j}')
        a(f'v_add_u32 v{12+j}, {32*j}, v3\nv_lshl_or_b32 v{28+j}, v{28+j}, 26, v{12+j}')
    a(f'''
    {pad}
    v_mov_b32 v59, {NONCE}
    s_mul_i32 s65, s2, {TSTR}
    s_add_u32 s65, s65, {WS_TBL}
    s_mul_i32 s64, s2, {CSTR}
    s_waitcnt lgkmcnt(0)
    s_barrier
    ''')
    sstamp(a, 11)
    a(f'''
    ds_read_b128 v[40:43], v9
    ds_read_b32 v59, v59
    s_waitcnt lgkmcnt(1)
    v_add_u32 v45, v40, v41
    v_add_u32 v46, v45, v42
    v_add_u32 v47, v46, v43
    v_mov_b32 v58, v47
    ''')
    scan(a, 58)
    a(f'''
    v_sub_u32 v48, v58, v47                 ; exclusive
    v_add_u32 v49, v48, v40
    v_add_u32 v50, v48, v45
    v_add_u32 v51, v48, v46
    ds_write_b128 v9, v[48:51] offset:1024
    s_waitcnt {'' if opt('ep', 1) else 'vmcnt(0) '}lgkmcnt(1)
    s_cmp_lg_u32 s{sW}, 4
    s_cbranch_scc1 KS_NOPUB
    v_lshl_or_b32 v56, v49, 11, v48
    v_lshl_or_b32 v57, v51, 11, v50
    v_lshl_or_b32 v56, v59, 22, v56
    v_lshl_or_b32 v57, v59, 22, v57
    buffer_store_dwordx4 v[56:59], v9, s[{sWS}:{sWS+3}], s65 offen {mod('tabst', 'sc1')}
    KS_NOPUB:
''')
    sstamp(a, 12)
    return ['s_cbranch_scc1 KS_PUB0\ns_waitcnt vmcnt(1)\ns_branch KS_PUB1\nKS_PUB0:\ns_waitcnt vmcnt(0)\nKS_PUB1:'] if opt('ep', 1) else []

def sort_emit(a, st):
    a('v_and_b32 v60, 0xffff, v59\nv_and_b32 v61, 0xffff0000, v59\ns_mov_b32 s58, 0xffff0000')
    for j in range(4):
        b = 20 + 3*(j >> 1)
        if j & 1: a(f'v_alignbit_b32 v{40+4*j}, v{b+2}, v{b+1}, 16\nv_and_or_b32 v{41+4*j}, v{b+2}, s58, v60')
        else: a(f'v_mov_b32 v{40+4*j}, v{b}\nv_lshl_or_b32 v{41+4*j}, v{b+1}, 16, v60')
        a(f'v_or_b32 v{42+4*j}, v61, v{16+j}\nv_mov_b32 v{43+4*j}, v{28+j}')
    a('s_waitcnt lgkmcnt(0)')
    for j in range(4):
        a(f'v_add_lshl_u32 v{32+j}, v{32+j}, v{36+j}, 4\nds_write_b128 v{32+j}, v[{40+4*j}:{43+4*j}] offset:2048')
    a(f'v_mov_b32 v62, {FLIP}\ns_waitcnt lgkmcnt(0)\ns_barrier\nds_read_b32 v62, v62')
    for i in range(4): a(f'ds_read_b128 v[{12+4*i}:{15+4*i}], v5 offset:{2048 + i*K1_T*16}')
    for i in range(4):
        a(f's_waitcnt lgkmcnt({3-i})')
        a(f'buffer_store_dwordx4 v[{12+4*i}:{15+4*i}], v5, s[8:11], s64 offen {st}')
        if i < 3: a(f's_add_u32 s64, s64, {K1_T*16}')

NSTR = 2080
OA = 512
E4 = 48*32 - 4
RECBASE = 65536
ZR = opt('zr', 0)
NPOOL = 5 if ZR else 8
ZERO = RECBASE + 40 * NSTR + NPOOL*512
W1L = ZERO + (1536 if ZR else 0)
DL = 0xf0f0f0f0
MISC = W1L + 10240
HIST = MISC; PROG = MISC + 192; CNT = MISC + 224; FLAG = MISC + 228; ARR = MISC + 232; SCR = MISC + 240; NULLSRC = MISC + 256; NONCE = MISC + 384; FLIP = MISC + 388
NULLBASE = NULLSRC
K2_LDS = 163840
assert FLIP + 4 <= K2_LDS
U = 10
ACC = 0; AR = 64; WR = 96; BR = 176; P0 = 192; G = 222
VEO = 230; VH16 = 231; T2 = 232; T3 = 233; PW = 234
VB0 = 246; VB1 = 247; VLG = 248; VAO = 249; VYO = 250; VSO = 251; VL2 = 252; VTAB = 253; VT0 = 254; VT1 = 255; VPA = VEO
sX = 4; sWS = 8; sOUT = 12; sEA = 16
sW = 20; sNB = 21; sNC = 22; sJ0 = 23; sRND = 24; sR = 25; sLIM = 26; sMORE = 27; sFIRST = 28
sCB = 29; sC4 = 30; sCP = 31; sNBs = 48; sNK = 33; sNPH = 34; sNP = 35; sNV = 36
sRING = 37; sJ = 38; s1024 = 39; sOWN = 40; sNX = 44; sSO = 48; sPROGW = 52; sPROG = 53; sB = 54; sLAST = 55
sEX = 56
sT = 58
sM0 = 68
sX2 = 72
sPP = 32
sN4 = 3
sTAG = 2
sSPIN = 27

TILES = {0: [(0,0), (1,0), (0,1), (1,1)], 1: [(0,0), (0,1), (1,1), (1,0)], 2: [(0,0), (1,0), (1,1), (0,1)], 3: [(0,0), (0,1), (1,0), (1,1)]}[opt('tord', 0)]
def tile(t, u): return ACC + 16 * TILES.index((t, u))
def Wreg(p, u): return WR + p*16 + u*8

def weave(x, y):
    o = []
    for i in range(max(len(x), len(y))):
        o += x[i:i+1] + y[i:i+1]
    return o

class LG:
    def __init__(self, a, q=()): self.a = a; self.q = list(q)
    def issue(self, tag, optional=False): self.q.append((tag, optional))
    def waitline(self, tag):
        idx = [i for i, (t, o) in enumerate(self.q) if t == tag]
        if not idx: return None
        y = sum(1 for (t, o) in self.q[idx[-1]+1:] if not o)
        self.q = self.q[idx[-1]+1:]
        return f's_waitcnt lgkmcnt({min(y, 15)})'

class K2:
    def __init__(self):
        self.a = Asm()
        self.uid = 0
        self.outline = []
    def lab(self, s):
        self.uid += 1
        return f'K2_{s}_{self.uid}'

    def dma(self, slot, greg, soff):
        return [f's_mov_b32 m0, s{sM0+slot}',
                f'buffer_load_dwordx4 v{greg}, s[{sX}:{sX+3}], s{soff} offen {mod("xld", "sc1")} lds',
                f'buffer_load_dwordx4 v{greg+1}, s[{sX2}:{sX2+3}], s{soff} offen offset:1024 {mod("xld", "sc1")} lds']
    def ndma(self, slot, t):
        if t < 3: return self.dma(slot, G + 2*t, sNX + t)
        four = self.lab('g4'); back = self.lab('back'); d = self.dma(slot, G + 2, sNX + 3); e = self.dma(slot, G + 6, sNX + 3)
        self.ool(f'{four}:\ns_add_u32 s{sSO+3}, s{sNBs}, 384\n' + '\n'.join(x if isinstance(x, str) else x[0] for x in self.sread(3)) + '\ns_waitcnt lgkmcnt(0)\n'
                 + '\n'.join(self.gmad(3)[1:] + e[1:]) + f'\ns_branch {back}')
        return [d[0], f's_cmp_eq_u32 s{sNK}, 4\ns_cbranch_scc1 {four}\n{d[1]}', f'{d[2]}\n{back}:']
    def bread(self, item, half=False):
        return [(f'ds_read_b64_tr_b16 v[{BR + (item & 1)*8 + u*4 + r*2}:{BR + (item & 1)*8 + u*4 + r*2 + 1}], v{VB0+u} offset:{(item & 3)*2048 + r*1024}', [('B', False)])
                for u in range(2) for r in range(1 if half else 2)]
    def sread(self, t):
        return [f'v_add_u32 v{G+2*t}, s{sSO+t}, v{VSO}', (f'ds_read2_b32 v[{G+2*t}:{G+2*t+1}], v{G+2*t} offset0:1 offset1:3', [(f'S{t}', False)])]
    def gmad(self, t):
        return [('wait', f'S{t}')] + [f'v_mad_u32_u16 v{G+2*t+r}, v{G+2*t+r}, s{s1024}, v{VLG} op_sel:[1,0,0,0]' for r in range(2)]
    def ool(self, text): self.outline.append(text)
    def qregs(self):
        assert CNT == PROG + 32
        return [f'v_lshl_add_u32 v{VT0}, v{VL2}, 1, s{sPROG}', f'v_bfe_u32 v{VT1}, v{VL2}, 4, 1']
    def atomic(self):
        return [(f's_mov_b64 exec, 0x1ff\nds_add_rtn_u32 v{T2}, v{VT0}, v{VT1}\ns_mov_b64 exec, -1', [('C', False)])]
    def claimed(self, ph):
        nul = self.lab('nul'); spin = self.lab('spin'); chk = self.lab('chk'); back = self.lab('back')
        self.ool(f'{nul}:\ns_mov_b32 s{sN4 if ph else sT}, {NULLBASE | (3 << 18) if ph else 63}\ns_mov_b32 s{sNV}, 0\ns_branch {back}')
        self.ool(f'{spin}:\ns_sub_u32 s{sSPIN}, s{sSPIN}, 1\ns_cbranch_scc1 K2_END\nds_read_b32 v{T2}, v{VT0}\ns_waitcnt lgkmcnt(0)\ns_branch {chk}')
        return [f'v_readlane_b32 s{sT}, v{T2}, 8',
                f"""s_cmp_lt_u32 s{sT}, s{sNC}
                s_cbranch_scc0 {nul}
                v_readlane_b32 s{sN4}, v{VTAB}, s{sT}
                s_bfe_u32 s{sT}, s{sN4}, 0x60016
                s_and_b32 s{sT+1}, s{sT}, 7
                s_lshr_b32 s{sT+2}, s{sT}, 3
                {chk}:
                v_readlane_b32 s{sT+3}, v{T2}, s{sT+1}
                s_nop 0
                s_cmp_gt_u32 s{sT+3}, s{sT+2}
                s_cbranch_scc0 {spin}
                {back}:"""]
    def claim0(self):
        dyn = self.lab('dyn'); back = self.lab('back')
        o = self.qregs() + [x if isinstance(x, str) else x[0] for x in self.atomic()] + ['s_waitcnt lgkmcnt(0)'] + self.claimed(0)
        self.ool(f'{dyn}:\n' + '\n'.join(o) + f'\ns_mov_b32 s{sNPH}, 1\ns_branch {back}')
        return [f's_add_u32 s{sJ}, s{sJ}, 1', f'v_mov_b32 v{VT0}, s{sPROGW}', f'v_mov_b32 v{VT1}, s{sJ}',
                f's_lshl_b32 s{sT}, s{sJ}, 3', f's_add_u32 s{sT}, s{sT}, s{sW}',
                (f's_mov_b64 exec, 1\nds_write_b32 v{VT0}, v{VT1}\ns_mov_b64 exec, -1', [('W', False)]),
                f's_cmp_lt_u32 s{sT}, s{sNC}\ns_cbranch_scc0 {dyn}\n{back}:']
    def pooladdr(self, d, word):
        return f"""s_lshr_b32 s{d}, s{word}, 28
            s_mul_i32 s{sT+8}, s{sNC}, {NSTR}
            s_lshl_b32 s{d}, s{d}, 9
            s_add_u32 s{d}, s{d}, s{sT+8}
            s_add_u32 s{d}, s{d}, {RECBASE}"""
    def next_info(self, ph):
        rare = self.lab('rare'); back = self.lab('back'); four = self.lab('four')
        self.ool(f"""{rare}:
            s_cmp_eq_u32 s{sNK}, 4
            s_cbranch_scc1 {four}
            s_mov_b32 s{sSO+1}, s{sNBs}
            s_xor_b32 s{sNX+1}, s{sNX}, {256 + 128*((FL ^ FL >> 1) & 1)}
            s_xor_b32 s{sNX+2}, s{sNX}, {512 + 128*((FL ^ FL >> 2) & 1)}
            s_xor_b32 s{sNX+3}, s{sNX}, {768 + 128*((FL ^ FL >> 3) & 1)}
            s_branch {back}
            {four}:
            s_add_u32 s{sSO+2}, s{sNBs}, 256
            s_mov_b32 s{sNX+2}, s{sNX}
            s_mov_b32 s{sNX+3}, s{sNX}
            s_branch {back}""")
        o = ([] if ph else [f'v_readlane_b32 s{sN4}, v{VTAB}, s{sT}']) + [f's_lshl_b32 s{sNX}, s{sNPH}, 7' + (f'\ns_xor_b32 s{sNX}, s{sNX}, 128' if FL & 1 else ''),
             f's_and_b32 s{sNBs}, s{sN4}, 0x3ffff', f's_bfe_u32 s{sNK}, s{sN4}, 0x30013']
        if ph == 1: o += [f's_mov_b32 s{sNP}, s{sNBs}']
        else: o += [f's_mul_i32 s{sNP}, s{sJ}, 6', f's_cmp_eq_u32 s{sNPH}, 0\ns_cselect_b32 s{sNP}, s{sNP}, s{sNBs}']
        o += [f's_mov_b32 s{sNX+1}, s{sNX}', f's_xor_b32 s{sNX+3}, s{sNX}, {256 + 128*((FL ^ FL >> 1) & 1)}', f's_add_u32 s{sSO+1}, s{sNBs}, 128', f's_add_u32 s{sT+2}, s{sNBs}, 256',
              f's_cmp_eq_u32 s{sNK}, 3\ns_cselect_b32 s{sNX+2}, s{sNX}, s{sNX+3}\ns_cselect_b32 s{sSO+2}, s{sT+2}, s{sNBs}',
              f's_sub_u32 s{sT+2}, s{sNK}, 2\ns_cmp_lt_u32 s{sT+2}, 2\ns_cbranch_scc0 {rare}\n{back}:']
        return o
    def eread(self):
        return [f'v_add_u32 v{T3}, s{sNBs}, v{VEO}',
                (f'ds_read_b32 v{T2}, v{T3}', [('E', False)]), (f'ds_read_b32 v{T3}, v{T3} offset:1024', [('E', False)])]
    NEXTRA = 2
    def adma(self):
        dum = self.lab('dum'); four = self.lab('a4'); back = self.lab('back'); b4 = self.lab('b4')
        ea = f's[{sEA}:{sEA+3}]'; m = mod('eald', '')
        self.ool(f'{dum}:\nv_mov_b32 v{T2}, -1\ns_mov_b32 m0, {SCR}\ns_mov_b64 exec, 1\n' + f'buffer_load_dwordx4 v{T2}, {ea}, 0 offen lds\n'*2 + f's_mov_b64 exec, -1\ns_branch {back}')
        self.ool(f"""{four}:
            v_add_u32 v{VT0}, s{sNBs}, v{VEO}
            ds_read_b32 v{VT0}, v{VT0} offset:4
            {self.pooladdr(sT+7, sN4)}
            s_mov_b32 m0, s{sT+7}
            s_mov_b32 exec_hi, 0
            s_waitcnt lgkmcnt(0)
            v_or_b32 v{VT0}, v{VT0}, v{VH16}
            buffer_load_dwordx4 v{VT0}, {ea}, 0 offen {m} lds
            s_mov_b32 exec_hi, -1
            s_branch {b4}""")
        return [('wait', 'E'), f'v_or_b32 v{T2}, v{T2}, v{VH16}', f'v_or_b32 v{T3}, v{T3}, v{VH16}', f"""
        s_cmp_lg_u32 s{sNPH}, 0
        s_cbranch_scc1 {dum}
        s_cmp_eq_u32 s{sNK}, 4
        s_cbranch_scc1 {four}
        {b4}:
        s_add_u32 m0, s{sNBs}, {OA}
        s_add_u32 s{sT+7}, s{sNBs}, {OA+1024}
        buffer_load_dwordx4 v{T2}, {ea}, 0 offen {m} lds
        s_mov_b32 m0, s{sT+7}
        s_mov_b32 exec_hi, 0
        buffer_load_dwordx4 v{T3}, {ea}, 0 offen {m} lds
        s_mov_b32 exec_hi, -1
        {back}:"""]
    UN = (ACC, ACC + 8, ACC + 20, ACC + 28)
    def aadd(self, v, sd):
        if not self.z: return f'v_add_u32 v{v}, s{sd}, v{v}'
        return f's_mov_b32 exec_lo, {DL}\ns_mov_b32 exec_hi, {DL}\nv_add_u32 v{v}, s{sd}, v{v}\ns_mov_b64 exec, -1'
    def areads(self, s, half=False):
        va, vy, oa, oy, o = VAO, VYO, s*512, s*128, []
        if s == 3:
            va, oa = ACC + 56, 0
            o = [self.pooladdr(sT+7, sC4) + f'\ns_sub_u32 s{sT+7}, s{sT+7}, s{sCB}\ns_sub_u32 s{sT+7}, s{sT+7}, {OA}\n' + (f'v_mov_b32 v{va}, v{VAO}\n' + self.aadd(va, sT+7) if self.z else f'v_add_u32 v{va}, s{sT+7}, v{VAO}')]
        if self.z: o += [(f'ds_read_b64_tr_b16 v[{self.UN[s]+2*m}:{self.UN[s]+2*m+1}], v{va} offset:{oa + (0, 128, 32, 160)[m]}', [(f'a{s}', False)]) for m in range(2 if half else 4)]
        else: o += [(f'ds_read_b64_tr_b16 v[{ACC+4*s+2*r}:{ACC+4*s+2*r+1}], v{va} offset:{oa + 32*r}', [(f'a{s}', False)]) for r in range(1 if half else 2)]
        return o + [(f'ds_read_u16_d16_hi v{ACC+16+s}, v{vy} offset:{oy}', [(f'y{s}', False)])]
    def abuild(self, nK, half=False):
        o = []
        for s in range(2, nK): o += self.areads(s, half and s == nK - 1)
        for s in range(nK):
            b = ACC + 4*s; un = self.UN[s] if self.z else ACC + 20 + (s & 1)*8; m = 2 if (half and s == nK - 1) else 4
            o.append(('wait', f'y{s}' if (s or nK == 1 or not opt('ymw', 1)) else 'y1'))
            for i in range(0 if self.z else m): o += [f'v_lshlrev_b32 v{un+2*i}, 16, v{b+i}', f'v_and_b32 v{un+1+2*i}, 0xffff0000, v{b+i}']
            for t in (1, 0):
                d = ACC + 36 if t else un
                for e in range(2*m): o.append(f'v_mul_f32_dpp v{d+e}, v{ACC+16+s}, v{un+e} row_newbcast:{8*t+e} row_mask:{"0xf" if t else "0xa"} bank_mask:0xf')
                for i in range(m): o.append(f'v_cvt_pk_bf16_f32 v{AR+s*8+t*4+i}, v{d+2*i}, v{d+1+2*i}')
        return o
    R = dict(A=PW, B=PW+2, C=PW+4, D=PW+6, E=PW+8, F=PW+10)
    CH_ = {0: [(0,'A','new'),(2,'B','new'),(2,'C','new'),(2,'D','new')],
           1: [(3,'A','new'),(1,'B','new'),(4,'C','new'),(4,'D','new')],
           2: [(3,'E','new'),(4,'C','neg'),(1,'B','acc'),(4,'F','new')],
           3: [(3,'E','new'),(4,'D','neg'),(4,'F','neg'),(1,'B','acc')]}
    def F(self, q, k):
        t, u = TILES[k]; o = []
        for r in range(8):
            for b in (2*t, 2*t+1):
                p, d, mode = self.CH_[q][b]
                T = tile(t, u) + (b & 1)*8 + r; W = Wreg(p, u) + r; D = self.R[d] + u
                if r == 0 and mode == 'new': o.append(f'v_mul_f32 v{D}, v{T}, v{W}')
                elif r == 0 and mode == 'neg': o.append(f'v_fma_f32 v{D}, v{T}, v{W}, -v{D}')
                else: o.append(f'v_fmac_f32 v{D}, v{T}, v{W}')
        return o
    SROW = {0: 0, 2: 1, 8: 2, 5: 3, 6: 4, 3: 5, 9: 6, 1: 7, 4: 8, 10: 9, 7: 10}
    def fin(self, q, ph, sp=None):
        sp = sCP if sp is None else sp
        R = self.R
        pairs = {0: [(0, 'A', 'B'), (1, 'D', 'C')], 1: [], 2: [(2, 'E', 'A')], 3: [(3, 'E', 'B'), (4, 'F', 'C')]}[q]
        o = []
        for (slot, x, y) in pairs: o += [f'v_permlane32_swap_b32 v{R[x]+u}, v{R[y]+u}' for u in range(2)]
        if q == 3: o.append(f'v_permlane32_swap_b32 v{R["D"]}, v{R["D"]+1}')
        if ph == 1 and q == 0: o.append(f'v_lshl_add_u32 v{VPA}, v{VL2}, 1, s{sCP}')
        for (slot, x, y) in pairs: o += [f'v_add_f32 v{R[x]+u}, v{R[x]+u}, v{R[y]+u}' for u in range(2)]
        cv = [(slot, R[x], R[x]+1) for (slot, x, y) in pairs]
        if q == 3:
            o.append(f'v_add_f32 v{R["D"]}, -v{R["D"]}, -v{R["D"]+1}')
            cv.append((5, R['D'], R['D']))
        if cv and ph == 0:
            o.append(f's_set_gpr_idx_on s{sp}, gpr_idx(DST)\n' + ''.join(f'v_cvt_pk_bf16_f32 v{P0+slot}, v{lo}, v{hi}\n' for (slot, lo, hi) in cv) + 's_set_gpr_idx_off')
        elif cv:
            if q == 3: o.append(f'v_sub_u32 v{R["D"]+1}, v{VPA}, v{VH16}')
            for (slot, lo, hi) in cv: o.append(f'v_cvt_pk_bf16_f32 v{lo}, v{lo}, v{hi}')
            if len(cv) > 1 and opt('pw2', 1):
                o.append((f'ds_write2st64_b32 v{VPA}, v{cv[0][1]}, v{cv[1][1]} offset0:{cv[0][0]} offset1:{cv[1][0]}', [('P', False)])); cv = cv[2:]
            for (slot, lo, hi) in cv:
                o.append((f'ds_write_b32 v{VPA}, v{lo} offset:{slot*256}' if slot < 5 else f'ds_write_b16 v{R["D"]+1}, v{lo} offset:1280', [('P', False)]))
        return o
    def drop(self, line):
        x = opt('drop', '')
        if not x or not getattr(self, 'inunit', False) or '\n' in line.strip(): return False
        l = line.strip()
        if 'D' in x and l.startswith('buffer_load') and (f's[{sX}:' in l or f's[{sX2}:' in l): return True
        if 'P' in x and l.startswith('ds_write_b16'): return True
        if 'S' in x and l.startswith('v_permlane'): return True
        if 'C' in x and l.startswith('v_cvt_pk'): return True
        if 'B' in x and l.startswith('ds_read_b64_tr') and (f'v{VB0} ' in l or f'v{VB1} ' in l): return True
        if 'F' in x and l.startswith('v_fmac'): return True
        if 'A' in x and l.startswith(('v_lshlrev_b32','v_and_b32','v_cvt_pk')): return True
        if 'A' in x and l.startswith('v_mul_f32') and int(l.split()[1][1:-1]) < 64: return True
        if 'Y' in x and l.startswith(('ds_read_b128',)): return True
        if 'U' in x and l.startswith(('v_lshlrev_b32','v_and_b32')): return True
        if 'N' in x and l.startswith(('v_and_b32')): return True
        return False
    def emit(self, items, lg):
        for it in items:
            if isinstance(it, tuple) and it[0] == 'V':
                if not self.drop(it[1]): self.a(it[1])
                self.vq += [it[2]] * it[3]; continue
            if isinstance(it, tuple) and it[0] == 'wait' and len(it) > 2 and isinstance(it[2], str):
                idx = [k for k, t in enumerate(self.vq) if t == it[2]]
                if idx: cnt = len(self.vq) - 1 - idx[-1]; self.vq = self.vq[idx[-1]+1:]
                it = ('wait', it[1], cnt if idx else None)
            if isinstance(it, str):
                if not self.drop(it): self.a(it)
            elif it[0] != 'wait' and self.drop(it[0]):
                for t, o in it[1]: lg.issue(t, o)
            elif it[0] == 'wait':
                w = lg.waitline(it[1]); lw = w[len('s_waitcnt'):] if w else ''
                if len(it) > 2 and it[2] is not None: w = f's_waitcnt vmcnt({it[2]})' + lw
                if w: self.a(w)
            else:
                self.a(it[0])
                for t, o in it[1]: lg.issue(t, o)
    z = ZR == 1
    @property
    def ENTRY(self): return [('B', False)]*4 + [('a0', False)]*(4 if self.z else 2) + [('y0', False)] + [('a1', False)]*(4 if self.z else 2) + [('y1', False)]
    @staticmethod
    def cost(it):
        if isinstance(it, tuple):
            if it[0] == 'wait': return 1
            it = it[1] if it[0] == 'V' else it[0]
        return sum((2 if 'permlane' in l else 1) for l in it.strip().split('\n') if not l.strip().endswith(':'))
    def unit(self, nK, ph, half=False):
        a = self.a
        self.z = ZR == 1 or (ZR == 2 and ph == 1)
        lg = LG(a, self.ENTRY)
        a(f'K2_U{nK}{"h" if half else ""}{ph}:')
        self.inunit = True
        n = 4 * nK
        BUD = opt('bud', 7)
        pre = seg(0)
        claim = (self.claim0() if ph == 0 else self.atomic())
        after = ([] if ph == 0 else [('wait', 'C')] + self.claimed(1)) + self.next_info(ph)
        if nK == 1: pre += claim
        pre += self.abuild(nK, half)
        if nK == 1:
            pre += after + (self.eread() if ph == 0 else [])
            for t in range(3): pre += self.sread(t)
            if ph == 0: pre += self.adma()
            for t in range(3): pre += self.gmad(t)
        x = -1 if nK == 1 else 2
        gaps = [[] for _ in range(4*n)]; tailg = [[] for _ in range(4*n)]
        hb = lambda j: half and j < n and j % nK == nK - 1
        hs = lambda j: hb(j) and j >= 4
        ks = lambda j: {3: 1, 4: 0}.get(j, j % 3) if nK == 3 else j % nK
        vmn = lambda i: 4 - hs(i+2) - hs(i+3) + (self.NEXTRA if (ph == 0 and x < i <= x + 3) else 0)
        for i in range(n):
            d = self.dma(i & 3, G + 2*ks(i+4), sOWN + (i+4)//nK) if i + 4 < n else self.ndma(i & 3, i+4-n)
            gaps[4*i] += self.bread(i + 1, hb(i + 1)); tailg[4*i] += [d[0]]; gaps[4*i+1] += [d[1]] + ([] if hs(i+4) else [d[2]])
            if i + 1 < n: tailg[4*i+3] += [('wait', 'B', vmn(i+1))]
        if ph == 1 and opt('es', 0):
            es = self.lab('es'); back = self.lab('back')
            self.ool(f'{es}:\n' + self.spre(VT0) + '\n' + '\n'.join(self.sload(VT0)[:8]) + f'\ns_branch {back}')
            gaps[4*(n - opt('esp', 4)) if nK > 1 else 4*2] += [f's_cmp_eq_u32 s{sNV}, 0\ns_cbranch_scc1 {es}\n{back}:']
        used = lambda g: sum(map(self.cost, gaps[g] + tailg[g]))
        def place(items, g0, g1):
            g = g0
            for it in items:
                while g < g1 and used(g) + self.cost(it) > BUD and used(g) > 1: g += 1
                gaps[g].append(it)
            return g
        DEF = opt('defer', True) and nK > 1
        if nK > 1:
            for t in range(3):
                place(self.sread(t), 4*(n-6+t) + 2, 4*(n-6+t) + 3)
                place(self.gmad(t), 4*(n-5+t) + 1, 4*(n-5+t) + 3)
        ndef = [0]*4
        for q in range(1, 4):
            g0 = 4*q*nK
            if DEF:
                f3 = self.F(q-1, 3)
                room = [max(0, BUD - used(g0 + k)) for k in range(3)]
                m = min(16, sum(room)); ndef[q-1] = m
                f3 = f3[16-m:]
                for k in range(3):
                    gaps[g0 + k] += f3[:room[k]]; f3 = f3[room[k]:]
            place(self.fin(q-1, ph), g0 + (3 if DEF else 1), 4*(q*nK + nK - 1) + (1 if nK > 1 else 3))
        PRE = opt('pre', 0)
        pub = [f'v_mov_b32 v{VT0}, s{sPROGW}', f'v_mov_b32 v{VT1}, s{sCB}',
               (f's_mov_b64 exec, 1\nds_write_b32 v{VT0}, v{VT1}\ns_mov_b64 exec, -1', [('P', False)])] if (PRE and ph == 1) else []
        gf = place(self.fin(3, ph, sPP), 1, 4*(nK - 1) + (1 if nK > 1 else 3))
        if nK == 1: gaps[gf] += pub
        if nK > 1:
            if ph == 0:
                g = place(claim + after, 1, 5)
                place(self.eread(), max(g, 5), 7)
                place(self.adma(), 4*x + 3, 4*x + 3)
            else:
                place(claim, 1, 3)
                g1 = 4*(n-6) + 2
                keep = gaps[g1]; k0 = [i for i, it in enumerate(keep) if isinstance(it, str) and f'v{VSO}' in it]
                moved = keep[k0[0]:] if k0 else []
                if k0: gaps[g1] = keep[:k0[0]]
                place(after, 5, g1)
                gaps[g1] += moved
                place(pub, max(gf, opt('pubg', 6)), 4*(n-2))
        if True:
            upd = [f's_sub_u32 s{sLIM}, s{sNBs}, s{sCB}', f's_mov_b32 s{sCB}, s{sNBs}', f's_mov_b32 s{sC4}, s{sN4}',
                   (f's_cmp_eq_u32 s{sNPH}, 0' if ph == 0 else f's_cmp_lg_u32 s{sNV}, 0') + f'\ns_cselect_b32 s{sEX}, s{sEX}, 0']
            upd.insert(3, f's_bfe_u32 s{sEX}, s{sN4}, 0x40012')
            place(upd, 4*(n-2) + 1, 4*(n-1) + 1)
            gl = max([g for g in range(4*n) if any(('gpr_idx' in (it if isinstance(it, str) else it[0])) or (f's{sCP}' in (it if isinstance(it, str) else it[0])) for it in gaps[g])] + [4*(n-2)])
            place([f's_mov_b32 s{sPP}, s{sCP}', f's_mov_b32 s{sCP}, s{sNP}'], gl, max(gl, 4*(n-1) + 2))
        nf0 = [0]*4
        if nK > 1:
            for q in range(4):
                g = 4*(q*nK + nK - 1) + 2
                nf0[q] = max(0, BUD - used(g))
                gaps[g] += self.F(q, 0)[:nf0[q]]
        pb = opt('pb', 1) if (PRE and ph == 1) else 0
        self.emit([f's_setprio {opt("prioa", 1) + pb}'] + pre + seg(1) + [('wait', 'B', vmn(0))] + ([f's_setprio {opt("prio", 1) + pb}'] if opt("prio", 1) != opt("prioa", 1) else []), lg)
        for i in range(n):
            q, s = divmod(i, nK)
            for k, (t, u) in enumerate(TILES):
                c = f'v[{tile(t,u)}:{tile(t,u)+15}]' if s else '0'
                bb = BR + (i & 1)*8 + u*4
                w = 1 if hb(i) else 3
                if 'M' not in opt('drop', ''): a(f'v_mfma_f32_32x32x{8 if hb(i) else 16}_bf16 v[{tile(t,u)}:{tile(t,u)+15}], v[{AR+ks(i)*8+t*4}:{AR+ks(i)*8+t*4+w}], v[{bb}:{bb+w}], {c}')
                g = 4*i + k
                if k == 3 and s == nK - 1:
                    self.emit([f's_setprio {opt("prio0", 0) + pb}'] + gaps[g] + seg(2+2*q) + self.F(q, 0)[nf0[q]:], lg)
                    if q < 3:
                        fb = self.F(q, 1) + self.F(q, 2) + self.F(q, 3)[:16-ndef[q]]
                        self.emit(fb + seg(3+2*q) + [f's_setprio {opt("prio", 1) + pb}'], lg)
                else: self.emit(gaps[g], lg)
                self.emit(tailg[g], lg)
        end = [self.aadd(VAO, sLIM), f'v_add_u32 v{VYO}, s{sLIM}, v{VYO}']
        end = [end + self.F(3, 1) + self.areads(0) + self.areads(1) + self.F(3, 2) + self.F(3, 3),
               end + self.F(3, 1) + self.areads(0) + self.F(3, 2) + self.areads(1) + self.F(3, 3),
               end + self.F(3, 1) + self.F(3, 2) + self.areads(0) + self.areads(1) + self.F(3, 3)][opt('ypos', 1)]
        self.emit(end, lg)
        if SEG:
            a('s_memtime s[94:95]\ns_waitcnt lgkmcnt(0)')
            def acc(d, i, j): a(f's_sub_u32 s67, s{76+2*j}, s{76+2*i}\ns_add_u32 s{d}, s{d}, s67')
            acc(96, 0, 1)
            for q in range(4): acc(97, 1+2*q, 2+2*q)
            for q in range(3): acc(98, 2+2*q, 3+2*q)
            acc(99, 8, 9)
            a(f's_add_u32 s100, s100, {nK}\ns_add_u32 s101, s101, 1')
        assert [x for x in lg.q if x[0] != 'P'] == self.ENTRY, lg.q
        self.inunit = False
        self.dispatch(ph)
    HALF = {0: [int(c) for c in opt('half0', '3') if c != '0'], 1: [int(c) for c in opt('half1', '23') if c != '0']}
    def target(self, code, ph):
        nK = code >> 1
        return f'K2_U{nK}{"h" if (not code & 1 and nK in self.HALF[ph]) else ""}{ph}'
    def dispatch(self, ph, check=True):
        if not check:
            self.a(f"""
            s_mov_b32 s{sCB}, s{sNBs}
            s_mov_b32 s{sPP}, s{sCP}
            s_mov_b32 s{sC4}, s{sN4}
            s_mov_b32 s{sCP}, s{sNP}
            s_bfe_u32 s{sEX}, s{sN4}, 0x40012""")
        for code in (5, 6): self.a(f's_cmp_eq_u32 s{sEX}, {code}\ns_cbranch_scc1 {self.target(code, ph)}')
        self.a(f's_branch K2_DSP{ph}')

    def wload(self, ph, vl16, paths, dst):
        for k, p in enumerate(paths):
            self.a(f's_mov_b32 s{sT}, {WS_WTAB + ph*10240 + p*2048}')
            for u in range(2): self.a(f'buffer_load_dwordx4 v[{dst(p)+4*u}:{dst(p)+4*u+3}], v{vl16}, s[{sWS}:{sWS+3}], s{sT} offen offset:{u*1024} sc1')
    def wunp(self, paths, src):
        return [f'v_lshlrev_b32 v{WR+16*p+2*i}, 16, v{src(p)+i}\nv_and_b32 v{WR+16*p+2*i+1}, 0xffff0000, v{src(p)+i}' for p in paths for i in range(8)]

    def fill_rows(self, vL, base):
        return f'''
        v_and_b32 v76, 31, v{vL}
        v_lshrrev_b32 v77, 5, v{vL}
        v_mov_b32 v80, 0
        v_mul_u32_u24 v77, {NSTR}, v77
        v_mov_b32 v81, 0xffff0000
        v_lshl_add_u32 v78, v76, 4, v77
        v_mov_b32 v82, 0
        v_add_u32 v78, {base}, v78
        v_mov_b32 v83, v81
        '''
    def fill_slots(self, vL, base):
        return f'''
        v_add_u32 v85, 16, v{vL}
        v_lshlrev_b32 v84, 5, v{vL}
        v_lshrrev_b32 v85, 6, v85
        v_mul_u32_u24 v85, {E4}, v85
        v_sub_u32 v84, v84, v85
        v_mov_b32 v85, -1
        v_add_u32 v84, {base}, v84
        '''
    def fill_all(self, vL):
        a = self.a
        a(f's_mul_i32 s{sT}, s{sW}, {5*NSTR}\ns_add_u32 s{sT}, s{sT}, {RECBASE}\ns_add_u32 s{sT+1}, s{sT}, {OA}' + self.fill_rows(vL, f's{sT}') + self.fill_slots(vL, f's{sT+1}'))
        for i in range(5): a(f'ds_write_b32 v84, v85 offset:{i*NSTR}')
        a('s_mov_b32 exec_hi, 0')
        for i in range(5): a(f'ds_write_b128 v78, v[80:83] offset:{i*NSTR}')
        a('s_mov_b32 exec_hi, -1')
    def fill_w5(self):
        a = self.a
        a(self.fill_rows(8, RECBASE) + f'v_add_u32 v79, {20*NSTR}, v78')
        for i in range(20): a(f'ds_write_b128 v{78 + i//10}, v[80:83] offset:{(i%10)*2*NSTR}')
    def fill_w6(self, n0, n1):
        a = self.a
        if n0 >= n1: return
        a(self.fill_slots(8, RECBASE + OA + n0*NSTR) + f'v_add_u32 v86, {20*NSTR}, v84')
        for i in range(n1 - n0): a(f'ds_write_b32 v{84 + 2*(i//20)}, v85 offset:{(i%20)*NSTR}')
    def counters(self, vL, first):
        self.a(f'''
        v_mov_b32 v76, 0
        v_mov_b32 v77, -1
        v_lshlrev_b32 v78, 2, v{vL}
        v_add_u32 v78, {HIST}, v78
        s_mov_b64 exec, 0x1ff
        ds_write_b32 v78, v76 offset:{PROG-HIST}
        s_mov_b32 exec_lo, 1
        ds_write_b32 v78, v76 offset:{ARR-HIST}
        s_mov_b32 exec_lo, -1
        ds_write_b32 v78, v77 offset:{NULLSRC-HIST}
        s_mov_b64 exec, -1
        {'' if first else f's_cmp_lg_u32 s{sRND}, 0'}
        {'' if first else f's_cbranch_scc1 K2_NOH'}
        s_mov_b32 exec_hi, 0xffff
        ds_write_b32 v78, v76
        s_mov_b64 exec, 1
        ds_write_b32 v78, v76 offset:{FLAG-HIST}
        s_mov_b64 exec, -1
        ''')
    def srds(self):
        a = self.a
        srd(a, sX, 80, N*1024); srd(a, sOUT, 96, N*1024); srd(a, sEA, 84, E*32)
        a('s_sub_u32 s80, s80, 1024\ns_subb_u32 s81, s81, 0'); srd(a, sX2, 80, N*1024 + 1024)
    def consts(self, vL):
        vao = f'v_lshlrev_b32 v{VAO}, 6, v89\nv_lshl_add_u32 v{VAO}, v88, 3, v{VAO}\nv_add_u32 v{VAO}, {OA}, v{VAO}'
        if ZR == 1: vao = f"""v_lshrrev_b32 v90, 1, v87
        v_lshl_add_u32 v90, v85, 2, v90
        v_lshlrev_b32 v90, 6, v90
        v_add_u32 v90, {OA}, v90
        v_mov_b32 v{VAO}, {ZERO}
        s_mov_b32 exec_lo, {DL}
        s_mov_b32 exec_hi, {DL}
        v_mov_b32 v{VAO}, v90
        s_mov_b64 exec, -1
        v_lshl_add_u32 v{VAO}, v88, 3, v{VAO}"""
        self.a(f'''
        v_and_b32 v84, 15, v{vL}                ; i
        v_lshrrev_b32 v85, 5, v{vL}             ; h
        v_bfe_u32 v86, v{vL}, 4, 1
        v_lshrrev_b32 v87, 2, v84
        v_and_b32 v88, 3, v84                   ; c
        v_lshl_add_u32 v89, v85, 2, v87
        {vao}
        v_lshrrev_b32 v90, 3, v84
        v_lshl_add_u32 v90, v90, 1, v86
        v_sub_u32 v90, v90, 1 clamp
        v_lshlrev_b32 v{VYO}, 1, v90
        v_lshl_add_u32 v91, v85, 2, v88
        v_lshl_add_u32 v{VYO}, v91, 4, v{VYO}
        v_and_b32 v91, 1, v87
        v_lshl_add_u32 v{VYO}, v91, 3, v{VYO}
        v_lshrrev_b32 v90, 1, v88
        v_lshl_add_u32 v90, v86, 1, v90         ; chunk (u = 0)
        v_bfe_u32 v91, v87, 1, 1
        v_lshlrev_b32 v91, 2, v91
        v_xor_b32 v90, v90, v91
        v_lshlrev_b32 v90, 4, v90
        v_lshl_add_u32 v90, v89, 7, v90
        v_and_b32 v91, 1, v88
        v_lshl_add_u32 v90, v91, 3, v90
        v_add_u32 v{VB0}, s{sRING}, v90
        v_xor_b32 v{VB1}, 64, v{VB0}
        v_lshrrev_b32 v90, 3, v{vL}
        v_lshlrev_b32 v{VSO}, 4, v90
        v_bfe_u32 v90, v90, 1, 1
        v_lshlrev_b32 v90, 2, v90
        v_and_b32 v91, 7, v{vL}
        v_xor_b32 v90, v90, v91
        v_lshlrev_b32 v{VLG}, 4, v90
        v_lshlrev_b32 v{VL2}, 1, v{vL}
        v_mov_b32 v{G+6}, -1
        v_mov_b32 v{G+7}, -1
        v_and_b32 v{VH16}, 1, v{vL}
        v_lshlrev_b32 v{VH16}, 4, v{VH16}
        v_lshrrev_b32 v90, 1, v{vL}
        v_lshlrev_b32 v90, 5, v90
        v_add_u32 v{VEO}, {OA}, v90
        ''')
    def pad(self, name, ret):
        return f'K2_PAD_{name}:\ns_branch {ret}' if name in opt('pads', self.PADS).split('_') and opt('pad', 1) else ''
    def padx(self, name, ret):
        return f'K2_PAD_{name}:\ns_cbranch_execz {ret}' if name in opt('pads', self.PADS).split('_') and opt('pad', 1) else ''
    PADS = 'S1_S2_H1_H2_H3_B3_LD_NW_SC_SD_U20_U30_U21_U31_SW_TL_T2'
    def hops(self, names, ret):
        if not opt('pad', 1): return
        self.a('s_mov_b64 exec, 0')
        for w, n in names:
            if n in opt('pads', self.PADS).split('_'): self.a(f's_cmp_eq_u32 s{sW}, {w}\ns_cbranch_scc1 K2_PAD_{n}')
        self.a(f'{ret}:\ns_mov_b64 exec, -1')
    def stage_sort(self, vL, vT_):
        a = self.a; st = mod('recst', 'sc1')
        RAW = 24576
        a(f"""
        s_cmp_lg_u32 s{sW}, 7
        s_cbranch_scc1 KS_NOTAG
        s_mov_b32 s24, {WS_EPO}
        s_mov_b64 exec, 1
        buffer_load_dword v14, v6, s[{sWS}:{sWS+3}], s24 offen sc1
        s_mov_b64 exec, -1
        """)
        srd(a, 60, 98, 256)
        sstamp(a, 1); a('s_barrier'); sstamp(a, 3)
        self.counters(8, True)
        if ZR: a(f'v_lshlrev_b32 v78, 2, v8\nv_add_u32 v78, {ZERO}, v78\n' + '\n'.join(f'ds_write_b32 v78, v76 offset:{512*i}' for i in range(3)))
        self.fill_w6(opt('n6', 40), 40)
        XM = opt('xm', 0); xm = ''
        if XM:
            o = Asm(); srd(o, 64, 80, N*1024)
            o(f's_mov_b64 exec, -1\ns_mul_i32 s24, s2, {40*1024}\nv_lshlrev_b32 v16, {opt("xms", 8)}, v8')
            for i in range(XM): o(f'buffer_load_dword v17, v16, s[64:67], s24 offen {mod("xmm", "")}\ns_add_u32 s24, s24, {64 << opt("xms", 8)}')
            o('s_mov_b64 exec, 1'); xm = o.text()
        a(f"""
        s_mov_b64 exec, 1
        buffer_load_dword v15, v6, s[60:63], 0 offen sc1
        {xm}
        v_mov_b32 v12, {NONCE}
        s_mov_b32 s24, 1664525
        s_waitcnt vmcnt({1 + XM})
        v_mul_lo_u32 v59, v14, s24
        v_add_u32 v59, 1013904223, v59
        ds_write2_b32 v12, v59, v6 offset0:0 offset1:1
        {'s_memrealtime s[86:87]' if PROFS else ''}
        s_waitcnt lgkmcnt(0)
        s_barrier
        s_waitcnt vmcnt({XM})
        v_mov_b32 v62, v15
        ds_write_b32 v12, v15 offset:4
        v_cmp_ne_u32 vcc, 0, v15
        s_mov_b32 s24, 0x40000
        s_waitcnt lgkmcnt(0)
        s_barrier
        {'s_branch' if opt('nofl', 0) else 's_cbranch_vccnz'} KS_FLOK
        KS_FLW:
        s_sub_u32 s24, s24, 1
        s_cbranch_scc1 K2_END
        buffer_load_dword v62, v6, s[60:63], 0 offen sc1
        s_waitcnt vmcnt(0)
        v_cmp_ne_u32 vcc, 0, v62
        s_cbranch_vccz KS_FLW
        ds_write_b32 v12, v62 offset:4
        KS_FLOK:
        s_mov_b64 exec, -1
        s_branch KS_JOIN
        KS_H0:
        s_barrier
        s_branch KS_HELP
        {self.pad('S1', 'KS_HOP0')}
        KS_NOTAG:
        s_cmp_ge_u32 s{sW}, 5
        s_cbranch_scc1 {'KS_H0' if opt('eb1', 0) else 'KS_HELP'}
        s_cmp_ge_u32 s2, {NCH}
        s_cbranch_scc1 KS_IDLE
        """)
        srd(a, 40, 88, E*4)
        a(f'buffer_load_dwordx4 v[12:15], v5, s[40:43], s64 offen')
        srd(a, 44, 86, E*4); srd(a, 48, 82, E*6)
        a(f"""
        buffer_load_dwordx4 v[16:19], v5, s[44:47], s64 offen
        buffer_load_dwordx4 v[20:23], v4, s[48:51], s65 offen
        buffer_load_dwordx2 v[24:25], v4, s[48:51], s65 offen offset:16
        v_lshlrev_b32 v2, 2, v0                 ; t*4
        s_lshl_b32 s64, s64, 3
        v_lshl_add_u32 v3, v0, 7, s64
        v_mov_b32 v7, 1
        s_cmp_eq_u32 s{sW}, 4
        s_cbranch_scc1 KS_NOCLR
        ds_write_b32 v2, v6
        KS_NOCLR:
        """)
        sstamp(a, 1); a('s_waitcnt lgkmcnt(0)\ns_barrier'); sstamp(a, 3)
        self.hops([(0, 'B3'), (1, 'LD'), (2, 'NW'), (3, 'SC'), (4, 'SD')], 'KS_HOP')
        a(f's_mov_b32 s58, {PMUL}\ns_movk_i32 s59, 625\ns_waitcnt vmcnt(3)')
        sstamp(a, 5)
        w = sort_rank(a, self.padx('S2', 'KS_HOP0'))
        a('s_waitcnt lgkmcnt(0)')
        for j in range(4): a(f'ds_read_b32 v{32+j}, v{32+j} offset:1024')
        for x in w: a(x)
        sort_emit(a, st)
        a(f"""
        s_branch KS_JOIN
        {self.pad('B3', 'KS_HOP')}
        KS_B3:
        v_mov_b32 v59, {NONCE}
        ds_read_b32 v59, v59
        v_mov_b32 v62, {FLIP}
        s_waitcnt lgkmcnt(0)
        s_barrier
        ds_read_b32 v62, v62
        KS_JOIN:
        v_readfirstlane_b32 s{sTAG}, v59
        s_mov_b32 s25, 0x400000
        KS_JOIN2:
        s_waitcnt lgkmcnt(0)
        {'s_mov_b32 s24, 1' if opt('nofl', 0) else 'v_readfirstlane_b32 s24, v62'}
        s_cmp_eq_u32 s24, 0
        s_cbranch_scc1 KS_FLS
        s_bfe_u32 s24, s24, 0x10001
        s_xor_b32 s{sB}, s{sB}, s24
        s_lshr_b32 s{sNB}, s{sB}, 1
        s_mul_i32 s{sNB}, s{sNB}, 625
        s_add_u32 s{sNC}, s{sNB}, {625+7}
        s_add_u32 s{sNB}, s{sNB}, 7
        s_lshr_b32 s{sNB}, s{sNB}, 3
        s_lshr_b32 s{sNC}, s{sNC}, 3
        s_add_u32 s24, s{sNB}, {SPL}
        s_sub_u32 s{sNC}, s{sNC}, s24
        s_bitcmp1_b32 s{sB}, 0
        s_cselect_b32 s{sNB}, s24, s{sNB}
        s_cselect_b32 s{sNC}, s{sNC}, {SPL}
        """)
        self.ool(f'KS_FLS:\ns_sub_u32 s25, s25, 1\ns_cbranch_scc1 K2_END\nv_mov_b32 v62, {FLIP}\nds_read_b32 v62, v62\ns_branch KS_JOIN2')
        stamp(a, 6)
    def helpers(self):
        a = self.a; RAW = 24576
        a(f"""
        {self.pad('H1', 'KS_HOP0')}
        KS_HELP:
        {'s_memrealtime s[78:79]' if PROFS else ''}
        s_mov_b32 s30, 0
        s_cmp_eq_u32 s{sW}, 6
        s_cbranch_scc1 KS_RAW
        s_mov_b32 s30, 2
        s_cmp_ge_u32 s2, 170
        s_cbranch_scc1 KS_NOW
        s_mov_b32 s30, 1
        """)
        weight_loads(a)
        a('K1_GO:\nKS_NOW:\n' + ('' if opt('eb1', 0) else 's_barrier\n') + self.padx('H2', 'KS_HOP0'))
        sstamp(a, 3)
        self.fill_w5()
        a('KS_FILL:')
        sstamp(a, 5)
        a(f'v_mov_b32 v59, {NONCE}\ns_barrier\nds_read_b32 v59, v59')
        a(f"""
        s_waitcnt vmcnt(0) lgkmcnt(0)
        s_cmp_eq_u32 s30, 0
        s_cbranch_scc1 KS_B3
        s_cmp_eq_u32 s30, 2
        s_cbranch_scc1 KS_NOST
        v_lshl_or_b32 v40, v65, 16, v64
        v_lshl_or_b32 v41, v67, 16, v66
        v_lshl_or_b32 v42, v69, 16, v68
        v_lshl_or_b32 v43, v71, 16, v70
        buffer_store_dwordx4 v[40:43], v9, s[{sWS}:{sWS+3}], s24 offen sc1
        KS_NOST:
        v_mov_b32 v62, {FLIP}
        s_waitcnt lgkmcnt(0)
        s_barrier
        ds_read_b32 v62, v62
        s_lshl_b32 s24, s2, 2
        s_add_u32 s24, s24, {WS_FLG}
        s_mov_b64 exec, 1
        s_waitcnt vmcnt(0)
        buffer_store_dword v59, v6, s[{sWS}:{sWS+3}], s24 offen sc1
        s_mov_b64 exec, -1
        s_branch KS_JOIN
        {self.pad('H3', 'KS_HOP0')}
        KS_RAW:
        s_cmp_lg_u32 s2, 0
        s_cbranch_scc1 KS_NOX
        """)
        srd(a, 60, 98, 256)
        a(f"""
        s_getreg_b32 s24, hwreg(HW_REG_XCC_ID, 0, 1)
        {'s_xor_b32 s24, s24, 1' if opt('fx', 0) else ''}
        s_add_u32 s24, s24, 1
        v_mov_b32 v10, s24
        v_mov_b32 v11, 0
        s_mov_b64 exec, 1
        buffer_atomic_cmpswap v[10:11], v6, s[60:63], 0 offen sc1
        s_mov_b64 exec, -1
        KS_NOX:
        {'' if opt('eb1', 0) else 's_barrier'}
        """)
        srd(a, 60, 90, 16*640*2)
        a('v_lshrrev_b32 v10, 3, v8\nv_and_b32 v11, 7, v8\nv_lshlrev_b32 v10, 8, v10\nv_lshl_add_u32 v10, v11, 4, v10')
        for i in range(20):
            a(f's_mov_b32 m0, {(W1L if i >= 10 else RAW) + (i % 10)*1024}\ns_movk_i32 s24, {(i % 10)*2048 + (i // 10)*128}\nbuffer_load_dwordx4 v10, s[60:63], s24 offen lds')
        sstamp(a, 3)
        self.fill_w6(0, opt('n6', 40))
        a('s_branch KS_FILL\nKS_IDLE:\ns_barrier\ns_barrier\ns_branch KS_B3')
    def wraw(self, vL2, t, base, dst):
        a = self.a
        a(f'''
        v_lshrrev_b32 v{t}, 6, v{vL2}             ; h
        v_bfe_u32 v{t+1}, v{vL2}, 3, 2            ; row
        v_lshl_add_u32 v{t}, v{t}, 2, v{t+1}
        v_mul_u32_u24 v{t}, 640, v{t}
        v_bfe_u32 v{t+1}, v{vL2}, 5, 1
        v_lshl_add_u32 v{t}, v{t+1}, 5, v{t}
        v_and_b32 v{t+1}, 6, v{vL2}
        v_lshl_add_u32 v{t}, v{t+1}, 2, v{t}
        v_add_u32 v{t}, {base}, v{t}
        ''')
        for i in range(20):
            p, u, rq = i >> 2, (i >> 1) & 1, i & 1
            a(f'ds_read_b64_tr_b16 v[{dst(p)+2*(i&3)}:{dst(p)+2*(i&3)+1}], v{t} offset:{rq*8*640 + p*128 + u*64}')

    def gen(self):
        a = self.a
        vL, vT_, vC, vE, vREM, vOFF = 176, 177, 178, 179, 180, 181
        RK = 40
        NBs = 50
        t0 = 192
        ws = f's[{sWS}:{sWS+3}]'
        def loop(done, body):
            for i in range(U):
                a(f'v_cmp_lt_i32 vcc, {2*i}, v{vREM}\ns_cbranch_vccz {done}\ns_mov_b64 exec, vcc')
                a(body(i))
            a(f'{done}:\ns_mov_b64 exec, -1')
        a('s_cmp_ge_u32 s2, 256\ns_cbranch_scc1 K2_END')
        stamp(a, 0)
        a(f'''
        s_load_dwordx16 s[80:95], s[0:1], 0
        s_load_dwordx4 s[96:99], s[0:1], 72
        s_load_dwordx2 s[100:101], s[0:1], 88   ; ws
        v_lshrrev_b32 v1, 6, v0
        s_mov_b32 s{sB}, s2
        v_readfirstlane_b32 s{sW}, v1
        ''')
        self.hops([(0, 'S1'), (1, 'S2'), (5, 'H1'), (6, 'H2'), (2, 'H3')], 'KS_HOP0')
        a(f'''
        v_and_b32 v8, 63, v0
        v_lshlrev_b32 v9, 4, v8                 ; lane*16
        v_mov_b32 v6, 0
        v_lshlrev_b32 v5, 4, v0                 ; t*16
        v_mul_u32_u24 v4, 24, v0
        s_mul_i32 s64, s2, {CH*4}
        s_mul_i32 s65, s2, {CH*6}
        v_mov_b32 v{vL}, v8
        v_mov_b32 v{vT_}, v0
        s_movk_i32 s{s1024}, 1024
        s_lshl_b32 s{sRING}, s{sW}, 13
        s_mov_b32 s{sPROG}, {PROG}
        s_lshl_b32 s{sPROGW}, s{sW}, 2
        s_add_u32 s{sPROGW}, s{sPROGW}, s{sPROG}
        {chr(10).join(f's_add_u32 s{sM0+i}, s{sRING}, {i*2048}' for i in range(4))}
        s_waitcnt lgkmcnt(0)
        ''')
        if opt('wsoff', 0): a(f's_add_u32 s100, s100, {opt("wsoff", 0) << 20}\ns_addc_u32 s101, s101, 0')
        srd(a, sWS, 100, WS_SIZE)
        self.stage_sort(vL, vT_)
        a(f'''
        s_mov_b32 s{sJ0}, 0
        s_mov_b32 s{sFIRST}, 1
        {chr(10).join(f's_mov_b32 s{i}, 0' for i in range(96, 102)) if SEG else ''}
        s_mov_b32 s{sRND}, 0
        s_mov_b32 s{sR}, 1
        K2_CELLS:
        v_lshrrev_b32 v{vC}, 1, v{vT_}          ; cell
        v_min_u32 v{vC}, {NCH-1}, v{vC}
        v_mul_u32_u24 v72, {TSTR}, v{vC}
        s_and_b32 s{sT}, s{sB}, 7
        s_lshl_b32 s{sT}, s{sT}, 7
        s_lshr_b32 s{sT+1}, s{sB}, 5
        s_lshl_b32 s{sT+1}, s{sT+1}, 4
        s_add_u32 s{sT+9}, s{sT}, s{sT+1}
        s_add_u32 s{sT+9}, s{sT+9}, {WS_TBL}
        ''')
        PL = opt('pl', 3); tld = f'buffer_load_dwordx4 v[76:79], v72, {ws}, s{sT+9} offen sc1'
        if PL == 0: a(tld)
        a(f's_cmp_eq_u32 s{sFIRST}, 0\ns_cbranch_scc1 K2_NOSRD')
        self.srds()
        self.hops([(0, 'U20'), (1, 'U30'), (2, 'U21'), (3, 'U31'), (4, 'SW'), (5, 'TL'), (6, 'T2')], 'K2_HOP')
        a('K2_NOSRD:')
        if PL == 1: a(tld)
        self.consts(vL)
        if PL == 2: a(tld)
        WS0 = lambda p: WR + 40 + 8*p
        if PL >= 3:
            a(f's_cmp_eq_u32 s{sFIRST}, 0\ns_cbranch_scc1 K2_NOW0')
            self.wraw(VL2, 60, 24576, WS0)
            a('s_waitcnt lgkmcnt(0)')
            u = self.wunp(range(5), WS0); m = opt('plu', 16)
            for x in u[:m]: a(x)
            a(tld)
            for x in u[m:]: a(x)
            a('K2_W0:')
            self.ool(f'K2_NOW0:\n{tld}\ns_branch K2_W0')
        def chk(r): return f"""
            v_xor_b32 v73, s{sT+1}, v{r}
            v_xor_b32 v74, s{sT+1}, v{r+1}
            v_or_b32 v73, v73, v74
            v_xor_b32 v74, s{sTAG}, v{r+3}
            v_lshrrev_b32 v73, 22, v73
            v_or_b32 v73, v73, v74
            v_cmp_ne_u32 vcc, 0, v73"""
        a(f'''
        s_lshl_b32 s{sT+1}, s{sTAG}, 22
        s_mov_b32 s{sT+2}, 0x40000
        s_bfe_u32 s{sT+3}, s{sB}, 0x10004
        s_bfe_u32 s{sT+4}, s{sB}, 0x10003
        s_add_u32 s{sT+5}, s{sT+3}, s{sT+4}
        s_mul_i32 s{sT+4}, s{sT+4}, 11
        s_sub_u32 s{sT+6}, 11, s{sT+4}
        v_cmp_gt_u32 vcc, {2*NCH}, v{vT_}
        s_mov_b64 s[{sEX}:{sEX+1}], vcc
        K2_POLL:
        ''')
        if opt('poll2', 0): a(f'''
        buffer_load_dwordx4 v[80:83], v72, {ws}, s{sT+9} offen sc1
        s_waitcnt vmcnt(1)
        {chk(76)}
        s_cbranch_vccz K2_POLLED
        s_sub_u32 s{sT+2}, s{sT+2}, 1
        s_cbranch_scc1 K2_END
        buffer_load_dwordx4 v[76:79], v72, {ws}, s{sT+9} offen sc1
        s_waitcnt vmcnt(1)
        {chk(80)}
        s_cbranch_vccnz K2_POLL
        s_add_u32 s{sT+3}, s{sT+3}, 4
        s_add_u32 s{sT+5}, s{sT+5}, 4
        ''')
        else: a(f'''
        s_waitcnt vmcnt(0)
        {chk(76)}
        s_cbranch_vccz K2_POLLED
        s_sub_u32 s{sT+2}, s{sT+2}, 1
        s_cbranch_scc1 K2_END
        s_mov_b64 exec, vcc
        buffer_load_dwordx4 v[76:79], v72, {ws}, s{sT+9} offen sc1
        s_mov_b64 exec, -1
        s_branch K2_POLL
        {self.pad('LD', 'KS_HOP')}
        ''')
        a(f'''
        K2_POLLED:
        s_set_gpr_idx_on s{sT+3}, gpr_idx(SRC0)
        v_bfe_u32 v{vE}, v76, s{sT+4}, 11
        s_set_gpr_idx_idx s{sT+5}
        v_bfe_u32 v73, v76, s{sT+6}, 11
        s_set_gpr_idx_off
        v_sub_u32 v73, v73, v{vE}
        ''')
        o = Asm(); sv = self.a; self.a = o
        o(f'''
        K2_WINDOW:
        s_mov_b32 s{sRND}, 0
        s_mov_b32 s{sR}, 1
        K2_LOAD:
        v_mbcnt_lo_u32_b32 v{vL}, -1, 0
        v_mbcnt_hi_u32_b32 v{vL}, -1, v{vL}
        s_lshl_b32 s{sT}, s{sW}, 6
        v_add_u32 v{vT_}, s{sT}, v{vL}
        v_lshlrev_b32 v70, 4, v{vL}
        ''')
        self.wload(0, 70, range(5), lambda p: WR + 40 + 8*p)
        self.fill_all(vL)
        o(f's_cmp_lg_u32 s{sW}, 7\ns_cbranch_scc1 K2_NOH')
        self.counters(vL, False)
        o('K2_NOH:\ns_waitcnt lgkmcnt(0)\ns_barrier\ns_branch K2_CELLS')
        self.a = sv; self.ool(o.text())
        stamp(a, 1)
        a(f'''
        v_cndmask_b32 v73, 0, v73, s[{sEX}:{sEX+1}]
        v_and_b32 v1, 1, v{vT_}
        v_add_u32 v1, s{sJ0}, v1                ; j0 + sub
        v_sub_u32 v{vREM}, v73, v1
        v_add_u32 v{vE}, v{vE}, v1
        v_mul_u32_u24 v{vOFF}, {CSTR}, v{vC}
        v_lshl_add_u32 v{vOFF}, v{vE}, 4, v{vOFF}
        ''')
        MK = [f's[{r}:{r+1}]' for r in (40, 42, 44, 46, 48, 50, 90, 92, 94, 96)]
        def mloop(done, body):
            for i in range(U): a(f's_mov_b64 exec, {MK[i]}\ns_cbranch_execz {done}\n' + body(i))
            a(f'{done}:\ns_mov_b64 exec, -1')
        M = opt('cm', 1); NL = opt('nl', 3); vOFM, vEM = vOFF + 1, vOFF + 4; LIST = 45056
        adr = lambda i, r, rm, st: f'v{rm + i - M}, {{}} offen' if M <= i < M + NL else f'v{r}, {{}} offen offset:{st*i}'
        ld = lambda i: f'buffer_load_dwordx4 v[{4*i}:{4*i+3}], ' + adr(i, vOFF, vOFM, 32).format(f'{ws}, 0') + ' sc1'
        for i in range(M): a(f'v_cmp_lt_i32 {MK[i]}, {2*i}, v{vREM}')
        a(f'v_add_u32 v{vOFM}, {32*M}, v{vOFF}\ns_mov_b32 s{sT+7}, 0')
        for i in range(M):
            a(f's_mov_b64 exec, {MK[i]}\n{ld(i)}')
        a('s_mov_b64 exec, -1')
        for i in range(M, U): a(f'v_cmp_lt_i32 {MK[i]}, {2*i}, v{vREM}')
        for j in range(1, NL): a(f'v_add_u32 v{vOFM+j}, {32*(M+j)}, v{vOFF}')
        a(f"""
        v_subrev_u32 v62, {2*M - 1}, v{vREM}
        v_ashrrev_i32 v62, 1, v62
        v_med3_i32 v62, v62, 0, {U - M}
        s_cmp_eq_u64 {MK[M]}, 0
        s_cbranch_scc1 K2_LD_DONE
        v_mov_b32 v63, v62
        """)
        scan(a, 63)
        a(f"""
        s_lshl_b32 s{sT}, s{sW}, 10
        s_add_u32 s{sT}, s{sT}, {LIST}
        v_readlane_b32 s{sT+1}, v63, 63
        v_sub_u32 v63, v63, v62
        v_lshl_add_u32 v64, v63, 2, s{sT}
        v_lshlrev_b32 v63, 5, v63
        v_sub_u32 v63, v{vOFM}, v63
        s_cmp_gt_u32 s{sT+1}, {63*NL}
        s_cbranch_scc1 K2_LD_GEN
        """)
        for i in range(M, U): a(f's_mov_b64 exec, {MK[i]}\ns_cbranch_execz K2_LD_L\nds_write_b32 v64, v63 offset:{4*(i-M)}')
        a(f"""
        K2_LD_L:
        s_mov_b64 exec, -1
        v_lshl_add_u32 v63, v{vL}, 2, s{sT}
        v_lshlrev_b32 v62, 5, v{vL}
        s_waitcnt lgkmcnt(0)
        """)
        for j in range(NL): a(f'ds_read_b32 v{64+j}, v63 offset:{4*63*j}')
        for j in range(NL): a(f's_min_u32 s{sT+2}, s{sT+1}, 63\ns_sub_u32 s{sT+1}, s{sT+1}, s{sT+2}\ns_bfm_b64 {MK[M+j]}, s{sT+2}, 0')
        a(f's_mov_b64 {MK[M+NL]}, 0\ns_mov_b32 s{sT+7}, 1')
        for j in range(NL):
            a(f's_mov_b32 s{sT+2}, {32*63*j}\ns_waitcnt lgkmcnt({NL-1-j})\nv_add3_u32 v{vOFM+j}, v62, v{64+j}, s{sT+2}\ns_mov_b64 exec, {MK[M+j]}\n{ld(M+j)}')
        a(f"""
        K2_LD_DONE:
        s_mov_b64 exec, -1
        """)
        self.ool('K2_LD_GEN:\n' + ''.join(f's_mov_b64 exec, {MK[i]}\ns_cbranch_execz K2_LD_DONE\n{ld(i)}\n' for i in range(M, U)) + 's_branch K2_LD_DONE')
        a(f"""
        s_cmp_eq_u32 s{sFIRST}, 0
        s_cbranch_scc1 K2_WLATE
        """)
        if PL >= 3: self.ool('K2_WLATE:\ns_waitcnt vmcnt(0)\n' + '\n'.join(self.wunp(range(5), WS0)) + '\ns_branch K2_NOWRAW')
        else:
            self.ool('K2_WLATE:\ns_waitcnt vmcnt(0)\ns_branch K2_WUNP')
            self.wraw(VL2, 60, 24576, WS0)
            a('s_waitcnt lgkmcnt(0)\nK2_WUNP:')
            for x in self.wunp(range(5), WS0): a(x)
        a(f"""
        K2_NOWRAW:
        {self.padx('NW', 'KS_HOP')}
        v_lshrrev_b32 v{vE}, 2, v{vOFF}
        {chr(10).join(f'v_lshrrev_b32 v{vEM+j}, 2, v{vOFM+j}' for j in range(NL))}
        s_mov_b32 s{sT+8}, {WS_RANK}
        v_mov_b32 v{t0+9}, 1
        s_movk_i32 s{sT}, {NSTR//4}
        s_movk_i32 s{sT+1}, {NSTR}
        s_mov_b32 s{sT+2}, 0x40000
        s_mov_b32 s{sT+3}, 0xffff
        v_mov_b32 v{t0+10}, {RECBASE}
        s_cmp_lg_u32 s{sRND}, 0
        s_cbranch_scc1 K2_RK_LOAD
        v_cmp_lt_i32 vcc, {2*U}, v{vREM}
        s_cbranch_vccz K2_NOMORE
        v_mov_b32 v61, {FLAG}
        ds_write_b32 v61, v{t0+9}
        K2_NOMORE:
        s_mov_b32 s{sT+4}, {RECBASE + opt("tp", 8)*NSTR}
        s_cmp_eq_u32 s{sT+7}, 0
        s_waitcnt vmcnt({NL})
        s_cbranch_scc0 K2_ARR
        s_waitcnt vmcnt(0)
        K2_ARR:
        """)
        stamp(a, 2)
        prep = lambda i: f'v_mad_u32_u24 v{NBs+i}, v{NBs+i}, s{sT}, v{t0+10}\nv_and_b32 v{4*i+3}, 0xffffff, v{4*i+3}'
        def rank(i):
            self.ool(f'K2_RT{i}:\ns_sub_u32 s{sT+2}, s{sT+2}, 1\ns_cbranch_scc1 K2_END\n{ld(i)}\ns_waitcnt vmcnt(0)\ns_branch K2_CK{i}')
            return (f's_waitcnt vmcnt({M + NL - 1 - i})\n' if M <= i < M + NL else '') + f"""K2_CK{i}:
            v_bfi_b32 v{t0}, s{sT+3}, v{4*i+1}, v{4*i+2}
            v_lshrrev_b32 v{NBs+i}, 24, v{4*i+3}
            v_cmp_ne_u32 vcc, s{sTAG}, v{t0}
            v_add_u32 v{RK+i}, {HIST}, v{NBs+i}
            s_cbranch_vccnz K2_RT{i}
            ds_add_rtn_u32 v{RK+i}, v{RK+i}, v{t0+9}
            """ + (prep(i).split('\n')[0] if (opt('tp', 8)) else prep(i))
        mloop('K2_RK_A', rank)
        a(pstamp(5))
        if opt('tp', 8):
            mloop('K2_TP', lambda i: f'v_cmp_gt_u32 vcc, s{sT+4}, v{NBs+i}\n' + prep(i).split('\n')[1] + f'\ns_mov_b64 exec, vcc\nbuffer_load_dword v245, v{4*i+3}, s[{sEA}:{sEA+3}], 0 offen {mod("tpm", "")}')
        o = Asm(); b = a; a = o
        a(f'K2_RK_LOAD:\ns_waitcnt vmcnt(0)')
        mloop('K2_RK_B', lambda i: f'v_lshrrev_b32 v{NBs+i}, 24, v{4*i+3}\nbuffer_load_dword v{RK+i}, ' + adr(i, vE, vEM, 8).format(f'{ws}, s{sT+8}') + '\n' + prep(i))
        a(f's_mul_i32 s{sT+4}, s{sRND}, 48\ns_waitcnt vmcnt(0)')
        for i in range(U): a(f'v_subrev_u32 v{RK+i}, s{sT+4}, v{RK+i}')
        a('s_branch K2_RK_DONE')
        self.ool(o.text()); a = b
        a(f"""
        K2_RK_DONE:
        {self.padx('SC', 'KS_HOP')}
        s_mul_i32 s{sT+9}, s{sRND}, 48
        s_movk_i32 s{sT}, {-E4}
        s_waitcnt lgkmcnt(0)
        {pstamp(7)}
        """)
        for i in range(U):
            rr = RK + i; base = NBs + i
            a(f"""s_mov_b64 exec, {MK[i]}
            s_cbranch_execz K2_SC_DONE
            v_cmpx_gt_u32 vcc, 64, v{rr}
            v_bfe_u32 v{t0+2}, v{rr}, 3, 1
            v_add_u32 v{t0+1}, 16, v{rr}
            v_lshl_or_b32 v{t0+2}, v{rr}, 1, v{t0+2}
            v_bfi_b32 v{t0+2}, 15, v{t0+2}, v{rr}
            v_lshrrev_b32 v{t0+1}, 6, v{t0+1}
            v_alignbit_b32 v{4*i+1}, v{4*i+2}, v{4*i+1}, 16
            v_lshl_add_u32 v{t0+3}, v{t0+2}, 3, v{base}
            v_lshl_add_u32 v{t0+2}, v{t0+2}, 5, v{base}
            ds_write_b64 v{t0+3}, v[{4*i}:{4*i+1}]
            v_mad_i32_i24 v{t0+2}, v{t0+1}, s{sT}, v{t0+2}
            ds_write_b32 v{t0+2}, v{4*i+3} offset:{OA}
            """)
        d = t0 + 1; k = t0 + 2; e = t0 + 3; p = t0 + 4; x = t0 + 5; pl = t0 + 6
        a(f'''
        K2_SC_DONE:
        s_mov_b64 exec, -1
        {self.padx('SD', 'KS_HOP')}
        v_lshlrev_b32 v{t0}, 2, v{vL}
        v_add_u32 v{t0}, {HIST}, v{t0}
        v_mov_b32 v{t0+8}, {FLAG}
        s_cmp_eq_u32 s{sRND}, 0
        s_cselect_b32 s{sLIM}, 64, 48
        {pstamp(8)}
        s_waitcnt lgkmcnt(0)
        {pstamp(9)}
        s_barrier
        {pstamp(10)}
        ds_read_b32 v{d}, v{t0}
        ds_read_b32 v{t0+8}, v{t0+8}
        v_cmp_gt_u32 s[{sEX}:{sEX+1}], s{sNC}, v{vL}
        v_mad_u32_u24 v{e}, v{vL}, s{sT+1}, v{t0+10}
        s_waitcnt lgkmcnt(0)
        v_cndmask_b32 v{d}, 0, v{d}, s[{sEX}:{sEX+1}]
        v_readfirstlane_b32 s{sMORE}, v{t0+8}
        v_cmp_lt_u32 s[{sT+4}:{sT+5}], 48, v{d}
        v_cmp_lt_u32 vcc, 64, v{d}
        s_bcnt1_i32_b64 s{sT+2}, s[{sT+4}:{sT+5}]
        v_mbcnt_lo_u32_b32 v{pl}, s{sT+4}, 0
        v_mbcnt_hi_u32_b32 v{pl}, s{sT+5}, v{pl}
        s_cbranch_vccnz K2_BIG
        s_cmp_gt_u32 s{sT+2}, {NPOOL}
        s_cbranch_scc1 K2_BIG
        K2_TOK:
        v_subrev_u32 v{k}, s{sT+9}, v{d}
        v_max_i32 v{k}, 1, v{k}
        v_min_i32 v{k}, s{sLIM}, v{k}
        v_add_u32 v{k}, 15, v{k}
        v_lshrrev_b32 v{k}, 3, v{k}
        v_lshl_or_b32 v{e}, v{k}, 18, v{e}
        v_lshl_or_b32 v{e}, v{pl}, 28, v{e}
        v_mov_b32 v{x}, {NULLBASE | (3 << 18)}
        v_cndmask_b32 v{VTAB}, v{x}, v{e}, s[{sEX}:{sEX+1}]
''')
        o = Asm(); b = a; a = o
        a(f'''
        K2_BIG:
        s_cmp_lg_u32 s{sRND}, 0
        s_cbranch_scc1 K2_TOK
        s_movk_i32 s{sLIM}, 48
        v_mov_b32 v{x}, v{d}
        ''')
        scan(a, x, 'v_max_u32')
        for dd in range(48, 512*U + 48): assert (dd * 43691) >> 21 == dd // 48
        a(f'''
        v_readlane_b32 s{sR}, v{x}, 63
        s_add_u32 s{sR}, s{sR}, 47
        s_mul_i32 s{sR}, s{sR}, 43691
        s_lshr_b32 s{sR}, s{sR}, 21
        ''')
        for i in range(U):
            a(f's_mov_b64 exec, {MK[i]}\ns_cbranch_execz K2_SV_DONE\nbuffer_store_dword v{RK+i}, ' + adr(i, vE, vEM, 8).format(f'{ws}, s{sT+8}'))
        a('K2_SV_DONE:\ns_mov_b64 exec, -1\ns_branch K2_TOK')
        self.ool(o.text()); a = b
        for q in range(4): a(f's_movk_i32 s{sOWN+q}, {q*256 + 128*(FL >> q & 1)}')
        a(f'''
        s_add_u32 s{sRND}, s{sRND}, 1
        s_cmp_ge_u32 s{sRND}, s{sR}
        s_cselect_b32 s{sLAST}, 1, 0
        s_cmp_eq_u32 s{sMORE}, 0
        s_cselect_b32 s{sLAST}, s{sLAST}, 0
        s_mov_b32 s{sSPIN}, 0x400000
        s_mov_b32 s{sJ}, 0
        s_mov_b32 s{sNPH}, 0
        s_mov_b32 s{sNP}, 0
        s_mov_b32 s{sNV}, 1
        s_mov_b32 s{sCP}, 0
        s_mov_b32 s{sT}, s{sW}
        ''')
        lg = LG(a)
        self.emit(self.next_info(0), lg)
        stamp(a, 3)
        pre = self.eread()
        for t in range(3): pre += self.sread(t)
        pre += self.adma()
        for t in range(3): pre += self.gmad(t)
        for t in range(4): pre += self.ndma(t, t)
        pre += [self.aadd(VAO, sNBs), f'v_add_u32 v{VYO}, s{sNBs}, v{VYO}']
        if True:
            pre += [f'''v_bfe_u32 v{t0}, v{VTAB}, 18, 4
            s_sub_u32 s{sT}, s{sNC}, {opt('lpt', 16)}
            v_cmp_le_u32 vcc, {opt('lptc', 6)}, v{t0}
            v_cmp_gt_u32 s[{sT+2}:{sT+3}], s{sT}, v{vL}
            s_or_b64 vcc, vcc, s[{sT+2}:{sT+3}]
            v_mbcnt_lo_u32_b32 v{t0}, vcc_lo, 0
            v_mbcnt_hi_u32_b32 v{t0}, vcc_hi, v{t0}
            s_bcnt1_i32_b64 s{sT}, vcc
            v_sub_u32 v{t0+1}, v{vL}, v{t0}
            v_add_u32 v{t0+1}, s{sT}, v{t0+1}
            v_cndmask_b32 v{t0}, v{t0+1}, v{t0}, vcc
            v_lshlrev_b32 v{t0}, 2, v{t0}
            ds_permute_b32 v{t0+1}, v{t0}, v{vL}
            s_waitcnt lgkmcnt(0)
            v_lshl_or_b32 v{VTAB}, v{t0+1}, 22, v{VTAB}''']
        pre += [pstamp(11), 's_waitcnt vmcnt(6)']
        self.emit(pre, lg)
        stamp(a, 4)
        self.emit(self.bread(0) + self.areads(0) + self.areads(1), lg)
        self.dispatch(0, check=False)
        self.helpers()
        for ph in range(2):
            for nK in (2, 3):
                a(self.pad(f'U{nK}{ph}', 'K2_HOP'))
                self.unit(nK, ph, nK == 3 and 3 in self.HALF[ph])
            if 3 in self.HALF[ph]: self.unit(3, ph)
            if 2 in self.HALF[ph]: self.unit(2, ph, True)
        hot = self.outline; self.outline = []
        a(self.pad('SW', 'K2_HOP'))
        for ph in range(2):
            a(f'K2_DSP{ph}:')
            for code in (4, 7): a(f's_cmp_eq_u32 s{sEX}, {code}\ns_cbranch_scc1 {self.target(code, ph)}')
            a(f's_cmp_gt_u32 s{sEX}, 7\ns_cbranch_scc1 K2_U4{ph}\ns_cmp_lg_u32 s{sEX}, 0\ns_cbranch_scc1 K2_U1{ph}' + ('\ns_branch K2_TAIL' if ph else '\ns_branch K2_SWITCH'))
        a('K2_SWITCH:')
        stamp(a, 5)
        fl = f'buffer_load_dwordx4 v[56:59], v60, {ws}, s{sT+6} offen sc1'
        a(f'v_lshlrev_b32 v60, 3, v{VL2}\ns_mov_b32 s{sT+6}, {WS_FLG}\n{fl}')
        self.emit(self.fin(3, 0, sPP if opt('dsp', 1) else None), LG(a))
        a(f'v_lshl_add_u32 v{VPA}, v{VL2}, 1, s{sNP}\nv_lshrrev_b32 v{VH16}, 6, v{VL2}\nv_mul_u32_u24 v{VH16}, 126, v{VH16}')
        a(f'v_bfe_u32 v61, v{VTAB}, 22, 6\nv_lshlrev_b32 v62, 21, v{VL2}\ns_mov_b32 s{sT}, {63 << 22}\nv_lshlrev_b32 v61, 2, v61\nv_bfi_b32 v62, s{sT}, v62, v{VTAB}\nds_bpermute_b32 v{VTAB}, v61, v62')
        WP = lambda p: WR + 16*p + 8
        self.wraw(VL2, VT0, W1L, WP)
        for q in range(4): a(f's_movk_i32 s{sOWN+q}, {q*256 + 128*(~FL >> q & 1)}')
        for x in self.qregs(): a(x)
        if ZR == 2:
            self.z = True
            a(f"""v_bfe_u32 v61, v{VL2}, 4, 1
            v_lshrrev_b32 v62, 6, v{VL2}
            v_lshl_add_u32 v61, v62, 2, v61
            s_add_u32 s{sT}, s{sNBs}, {OA}
            v_lshl_add_u32 v61, v61, 6, s{sT}
            v_mov_b32 v{VAO}, {ZERO}
            s_mov_b32 exec_lo, {DL}
            s_mov_b32 exec_hi, {DL}
            v_mov_b32 v{VAO}, v61
            s_mov_b64 exec, -1
            v_and_b32 v61, 6, v{VL2}
            v_lshl_add_u32 v{VAO}, v61, 2, v{VAO}""")
        for p in range(5):
            a(f's_waitcnt lgkmcnt({min(15, 16 - 4*p)})')
            for x in self.wunp((p,), WP): a(x)
        if ZR == 2:
            for x in self.areads(0)[:-1] + self.areads(1)[:-1]: a(x[0])
        a(f"""
        K2_FLGW:
        s_or_b32 s{sT}, s{sB}, s{sW}
        s_waitcnt vmcnt(0)
        v_xor_b32 v56, s{sTAG}, v56
        v_xor_b32 v57, s{sTAG}, v57
        v_xor_b32 v58, s{sTAG}, v58
        v_xor_b32 v59, s{sTAG}, v59
        v_or3_b32 v56, v56, v57, v58
        v_or_b32 v56, v56, v59
        v_cmp_ne_u32 vcc, 0, v56
        s_cbranch_vccnz K2_FLGR
        s_cmp_eq_u32 s{sT}, 0
        s_cbranch_scc1 K2_FLGY
        K2_FLGOK:
        s_cmp_eq_u32 s{sNV}, 0
        s_cbranch_scc1 K2_TAIL2
        {'s_waitcnt lgkmcnt(0)' if ZR == 2 else ''}
        """)
        self.ool(f"""
        K2_FLGR:
        s_sub_u32 s{sSPIN}, s{sSPIN}, 16
        s_cbranch_scc1 K2_END
        {fl}
        s_branch K2_FLGW
        K2_FLGY:
        v_mov_b32 v56, s{sTAG}
        v_mov_b32 v57, {WS_EPO}
        s_mov_b64 exec, 1
        buffer_store_dword v56, v57, {ws}, 0 offen sc1
        s_mov_b64 exec, -1
        s_branch K2_FLGOK
        """)
        if not FUSE: stamp(a, 6)
        self.dispatch(1, check=False)
        isunit = lambda t: t.startswith(('K2_dyn', 'K2_dum', 'K2_nul', 'K2_spin', 'K2_es'))
        for t in hot:
            if isunit(t): a(t)
        a(self.pad('TL', 'K2_HOP'))
        self.tail()
        for t in hot:
            if not isunit(t): a(t)
        for ph in range(2):
            for nK in (1, 4): self.unit(nK, ph)
        for t in self.outline: a(t)
        a('K2_END:\ns_endpgm')
        return a.lines, 256

    @staticmethod
    def sreg(f): return WR + 16*(0, 2, 1, 3, 4)[f >> 2] + 4*(f & 3)
    def spre(self, v, at=0): return f'v_lshlrev_b32 v{v}, 3, v{VL2}\ns_mul_i32 s{sT}, s{sW}, {20*1024}\ns_add_u32 s{sT}, s{sT}, {WS_STAB + at*4096}'
    def sload(self, v, order=range(20), at=0):
        sl = []
        for f in order:
            mv = ''
            if f // 4 != at: mv = f's_add_u32 s{sT}, s{sT}, {(f//4 - at)*4096 & 0xffffffff}\n'; at = f // 4
            sl.append(mv + f'buffer_load_dwordx4 v[{self.sreg(f)}:{self.sreg(f)+3}], v{v}, s[{sWS}:{sWS+3}], s{sT} offen offset:{(f%4)*1024} sc1')
        return sl
    def tail(self):
        a = self.a
        ws = f's[{sWS}:{sWS+3}]'
        vP0 = 222; vP1 = 223; vS = 226; vSP = 227; vRow = 228; vL16 = 229
        vQ0 = 232; vSt = 254; vS2 = 255; vS3 = 246; vQ0a = 247; vQ1a = 248; vRow2 = 249
        OP = 176
        PRE = opt('pre', 0); ES = opt('es', 0); assert not (PRE and ES)
        order = [4, 5, 6, 7, 14, 15, 16, 17, 18, 19, 0, 1, 2, 3, 8, 9, 10, 11, 12, 13] if PRE else list(range(20))
        sl = self.sload(vL16, order)
        rowb = f'\ns_mul_i32 s{sT+1}, s{sW}, {8192+32}'
        done = [f'v_mov_b32 v{VT0}, s{sPROGW}', f'v_mov_b32 v{VT1}, -1', f's_mov_b64 exec, 1\nds_write_b32 v{VT0}, v{VT1}\ns_mov_b64 exec, -1'] if PRE else []
        SB = opt('sb', 0); NE = opt('ne', 0 if SB else 6 if ES else 8); N0 = 8 if ES else 0
        adr = [f'v_lshl_add_u32 v{vRow}, v{VL2}, 1, s{sT+1}', f'v_lshrrev_b32 v{vS}, 6, v{VL2}', f'v_mul_u32_u24 v{vS}, 126, v{vS}', f'v_sub_u32 v{vS}, v{vRow}, v{vS}']
        a('K2_TAIL2:\n' + self.spre(vL16) + rowb)
        for x in sl[:N0 + NE] + adr: a(x)
        a('s_branch K2_TAIL3\nK2_TAIL:')
        stamp(a, 7)
        a(self.spre(vL16, 1 if ES else 0) + rowb)
        f3 = self.fin(3, 1) + adr; w = []; m = (len(f3) + NE - 1) // NE if NE else 0
        for i in range(NE): w += [sl[N0 + i]] + f3[m*i:m*i+m]
        self.emit(w + f3[m*NE:], LG(a))
        a('K2_TAIL3:')
        for x in done: a(x)
        PD = opt('profd', 0)
        if PD: a('s_memtime s[78:79]')
        a(f's_waitcnt vmcnt({NE})')
        if PD: a('s_memtime s[80:81]')
        dump = []
        if opt('w2st', 1):
            rows = [(P0 + 6*j + k, 6*j + k) for j in range(5) for k in range(5)]
            for i in range(0, 24, 2): dump.append(f'ds_write2st64_b32 v{vRow}, v{rows[i][0]}, v{rows[i+1][0]} offset0:{rows[i][1]} offset1:{rows[i+1][1]}')
            dump.append(f'ds_write_b32 v{vRow}, v{rows[24][0]} offset:{rows[24][1]*256}')
            for j in range(5): dump.insert(4*j + 2, f'ds_write_b16 v{vS}, v{P0+6*j+5} offset:{j*1536 + 1280}')
        else:
            for j in range(5):
                for k in range(5): dump.append(f'ds_write_b32 v{vRow}, v{P0+6*j+k} offset:{j*1536 + k*256}')
                dump.append(f'ds_write_b16 v{vS}, v{P0+6*j+5} offset:{j*1536 + 1280}')
        assert RECBASE % 256 == 0 and NSTR % 256 == 32
        DS = opt('ds', 0)
        dsa = f"""s_add_u32 s{sT+2}, s{sNB}, 32
        s_sub_u32 s{sT+3}, s{sNC}, 32
        v_add_u32 v51, s{sT+2}, v54
        v_cmp_gt_u32 vcc, s{sT+3}, v54
        v_lshl_add_u32 v51, v51, 10, v49
        v_mov_b32 v53, 0x7ff00000
        v_cndmask_b32 v51, v53, v51, vcc
        v_lshl_add_u32 v{vS3}, v55, 9, v51
        v_lshl_add_u32 v{vS2}, v55, 30, v51"""
        calc = f"""
        v_bfe_u32 v48, v{VL2}, 1, 4             ; n & 15
        v_lshrrev_b32 v49, 5, v{VL2}            ; slab
        v_lshrrev_b32 v55, 3, v48
        v_lshlrev_b32 v52, 4, v49               ; slab*16
        v_lshl_add_u32 v54, v55, 2, v48
        v_and_b32 v54, 7, v54                   ; node of the last group in column n
        v_and_b32 v50, 7, v48
        v_mul_u32_u24 v50, {8192+32}, v50
        v_mul_u32_u24 v51, 1536, v55
        v_add_u32 v50, v50, v51                 ; slot of node n
        v_add_u32 v{vP0}, v50, v52
        v_mul_u32_u24 v51, {8192+32}, v54
        v_add_u32 v{vQ0}, v51, v52
        v_lshl_add_u32 v{vQ0a}, v55, 7, v{vQ0}
        v_mul_u32_u24 v51, {NSTR}, v48
        s_mov_b32 s{sT+2}, {RECBASE}
        v_add3_u32 v{vP1}, v51, v52, s{sT+2}
        v_mul_u32_u24 v51, {NSTR}, v54
        s_mov_b32 s{sT+2}, {RECBASE + 32*NSTR}
        v_add3_u32 v{vP1+2}, v51, v52, s{sT+2}
        v_lshl_add_u32 v{vQ1a}, v55, 7, v{vP1+2}
        s_lshl_b32 s{sT+2}, s{sW}, 5
        v_lshl_add_u32 v49, v49, 3, s{sT+2}
        {dsa if DS else f's_mov_b32 s{sT+2}, {RECBASE}' + chr(10) + f'v_add3_u32 v{vS2}, v51, v49, s{sT+2}' + chr(10) + f'v_lshl_add_u32 v{vS3}, v55, 9, v{vS2}'}
        v_bfe_u32 v53, v48, 2, 1
        v_lshl_add_u32 v49, v53, 4, v49
        v_add_u32 v{vSt}, v50, v49
        s_and_b32 s{sT+6}, s{sLAST}, s{sFIRST}  ; plain single-round case
        """.strip().split('\n')
        rest = sl[N0 + NE:]
        if SB:
            a(f'v_mov_b32 v56, {ARR}\nv_mov_b32 v57, 1\ns_mov_b64 exec, 1\nds_add_rtn_u32 v57, v56, v57\ns_mov_b64 exec, -1')
            while dump:
                for x in dump[:1] + calc[:opt('sbc', 1)]: a(x)
                dump = dump[1:]; calc = calc[opt('sbc', 1):]
        else:
            per = max(2, (len(dump) + len(rest) - 1) // max(1, len(rest)))
            while dump or rest:
                for x in dump[:per] + rest[:1] + calc[:2]: a(x)
                dump = dump[per:]; rest = rest[1:]; calc = calc[2:]
        if PD: a('s_memtime s[82:83]')
        for x in calc: a(x)
        if PD: a('s_memtime s[84:85]')
        if PRE: a(f'v_lshl_add_u32 v48, v{VL2}, 1, s{sPROG}\nds_read_b32 v49, v48\ns_mov_b32 s{sT+7}, {RECBASE + 32*NSTR}')
        a('s_waitcnt lgkmcnt(0)')
        late = f"""
        s_bfe_u32 s{sT+2}, s{sW}, 0x10002
        s_lshl_b32 s{sT+2}, s{sT+2}, 4
        s_add_u32 s{sT+1}, s{sT+1}, s{sT+2}
        v_add_u32 v{vRow}, s{sT+1}, v{vL16}
        {'' if DS else f's_mul_i32 s{sT+2}, s{sW}, {NSTR}' + chr(10) + f's_add_u32 s{sT+2}, s{sT+2}, {RECBASE}' + chr(10) + f'v_add_u32 v{vRow2}, s{sT+2}, v{vL16}'}
        s_mov_b32 s{sT+5}, 0xbfb8aa3b           ; -log2(e)
        s_add_u32 s{sOWN}, s{sW}, s{sNB}
        s_lshl_b32 s{sOWN}, s{sOWN}, 10
        """.strip().split('\n') + [f's_add_u32 s{sOWN+j}, s{sOWN}, {j*8192}' for j in range(1, 4 if DS else 5)]
        late = [x for x in late if x.strip()]
        if PRE:
            a(f"""s_cmp_eq_u32 s{sT+6}, 0
            s_cbranch_scc1 K2_MULTI
            K2_PREW:
            v_cmp_gt_u32 vcc, s{sT+7}, v49
            s_setprio {opt('pp', 0)}
            s_and_b32 s{sT+8}, vcc_lo, 0xff
            s_cbranch_scc1 K2_PRES""")
            self.ool(f'K2_PRES:\ns_sub_u32 s{sSPIN}, s{sSPIN}, 1\ns_cbranch_scc1 K2_END\nds_read_b32 v49, v48\ns_waitcnt lgkmcnt(0)\ns_branch K2_PREW')
            stamp(a, 8)
        elif SB:
            stamp(a, 8)
            a(f'v_readfirstlane_b32 s{sT+7}, v57\ns_cmp_ge_u32 s{sT+7}, {opt("sbt", 6)}\ns_cbranch_scc1 K2_ARRL')
            for x in rest: a(x)
            a('s_barrier\ns_branch K2_ARRG\nK2_ARRL:\ns_barrier')
            for x in rest: a(x)
            a('K2_ARRG:')
            stamp(a, 9)
            a(f's_cmp_eq_u32 s{sT+6}, 0\ns_cbranch_scc1 K2_MULTI')
        else:
            stamp(a, 8); a('s_barrier'); stamp(a, 9)
            a(f's_cmp_eq_u32 s{sT+6}, 0\ns_cbranch_scc1 K2_MULTI')
        part = {}
        for g in range(3):
            def ad(ph, row, hh, packed=False):
                o = self.SROW[row]*128 + hh*64
                if g < 2: return (vP1, g*16*NSTR + o) if ph else (vP0, g*3072 + o)
                return ((vQ1a if packed else vP1+2), o) if ph else ((vQ0a if packed else vQ0), 4*1536 + o)
            for ph in range(2):
                part[g, ph, 0] = [(16*g, ph*4 + rs*2 + hh) + ad(ph, rs, hh) for rs in range(2) for hh in range(2)]
                part[g, ph, 1] = [(16*g + 4 + 4*j, 8 + ph*6 + path*2 + hh) + ad(ph, 2 + 3*j + path, hh, j == 0) for path in range(3) for hh in range(2) for j in range(3 if g < 2 else 2)]
        seq = [(g, ph, o) for g in range(3) for o in range(2) for ph in range(2)]
        if PRE: seq = [(0,1,0), (1,1,0), (0,1,1), (1,1,1), (0,0,0), (1,0,0), (0,0,1), (1,0,1)] + seq[8:]
        GF = opt('gf', 1) and not PRE
        if GF: seq = [(g, ph, 0) for g in range(3) for ph in range(2)] + [(g, ph, 1) for g in range(3) for ph in range(2)]
        steps = [x for k in seq for x in part[k]]
        if GF and opt('il', 0): steps[:24] = [part[g, ph, 0][i] for ph in range(2) for i in range(4) for g in range(3)]
        for path in range(3): assert self.SROW[8 + path] == self.SROW[2 + path] + 1
        NB = 12; D = 10
        def epi(g, part=3):
            c = 16*g; o = OP + 8*(g & 1); s = []; tp = 204 + 4*g; o0 = 220 if g == 2 else o
            if part & 1:
                for r in range(4): s.append(f'v_mul_f32 v{tp+r}, s{sT+5}, v{c+r}')
                for r in range(4): s.append(f'v_exp_f32 v{tp+r}, v{tp+r}')
                for r in range(4): s.append(f'v_add_f32 v{tp+r}, 1.0, v{tp+r}')
                for r in range(4): s.append(f'v_rcp_f32 v{tp+r}, v{tp+r}')
                s += [f'v_cvt_pk_bf16_f32 v{o0}, v{c}, v{c+1}', f'v_cvt_pk_bf16_f32 v{o0+1}, v{c+2}, v{c+3}']
            if part & 2:
                for j in range(3 if g < 2 else 2):
                    for r in range(4): s.append(f'v_mul_f32 v{c+4+4*j+r}, v{c+4+4*j+r}, v{tp+r}')
                    s += [f'v_cvt_pk_bf16_f32 v{o+2+2*j}, v{c+4+4*j}, v{c+5+4*j}', f'v_cvt_pk_bf16_f32 v{o+3+2*j}, v{c+6+4*j}, v{c+7+4*j}']
            return s
        def stage(g, part=3):
            o = OP + 8*(g & 1)
            if g < 2: w = [(rt, vSt, g*3072) for rt in range(4)]
            else: w = [(0, vS2, 0), (1, vS3, 0), (2, vS2, 0)]
            src = lambda rt: 220 if (g, rt) == (2, 0) else o + 2*rt
            if g == 2 and DS: return [f'buffer_store_dwordx2 v[{src(rt)}:{src(rt)+1}], v{r}, s[{sOUT}:{sOUT+3}], 0 offen offset:{rt*256} {mod("outst2","sc1")}' for rt, r, b in w if part & (2 if rt else 1)]
            return [(f'ds_write_b64 v{r}, v[{src(rt)}:{src(rt)+1}] offset:{b + rt*256}', [(f'w{g}', False)]) for rt, r, b in w if part & (2 if rt else 1)]
        def rowread(g):
            if g == 2: return [(f'ds_read_b128 v[200:203], v{vRow2}', [('r2', False)])]
            return [(f'ds_read_b128 v[{192+4*(j&1)}:{195+4*(j&1)}], v{vRow} offset:{j*1536}', [(f'r{g}', False)]) for j in (2*g, 2*g+1)]
        def rowstore(g):
            s = [('wait', f'r{g}')]
            for j in ((2*g, 2*g+1) if g < 2 else (4,)):
                b = 192 + 4*(j & 1) if g < 2 else 200
                s += [f'buffer_store_dwordx4 v[{b}:{b+3}], v{vL16}, s[{sOUT}:{sOUT+3}], s{sOWN+j} offen {mod("outst","sc1")}']
            return s
        def gemm(lg, extra):
            def rd(k):
                c, f, r, o = steps[k]
                b = 48 + 4*(k % NB)
                self.emit([(f'ds_read_b128 v[{b}:{b+3}], v{r} offset:{o}', [(f'k{k}', False)])], lg)
            D0 = opt('d0', D); nxt = D0
            for k in range(D0): rd(k)
            seen = [-1]; started = set()
            for k in range(len(steps)):
                c, f, r, o = steps[k]
                for _ in range(2):
                    if nxt <= k + D and nxt < len(steps): rd(nxt); nxt += 1
                vm = None
                if order.index(f) > seen[0]: seen[0] = order.index(f); vm = 19 - seen[0]
                kk = min(k + 1, len(steps) - 1) if (opt('w2', 1) and k % 2 == 0) else k
                self.emit([('wait', f'k{kk}', vm)], lg)
                b = 48 + 4*(k % NB)
                cin = f'v[{c}:{c+3}]' if c in started else '0'; started.add(c)
                a(f'v_mfma_f32_16x16x32_bf16 v[{c}:{c+3}], v[{self.sreg(f)}:{self.sreg(f)+3}], v[{b}:{b+3}], {cin}')
                self.emit(extra.get(k, []), lg)
        lg = LG(a); extra = {}
        def spread(items, k0, k1):
            for i, x in enumerate(items): extra.setdefault(k0 + i*(k1 - k0 + 1)//len(items), []).append(x)
        spread(late, 2, 8)
        if self.padx('T2', 'K2_HOP'): extra.setdefault(opt('t2k', 41), []).append(self.padx('T2', 'K2_HOP'))
        b0 = opt('b0', 72 if PRE else 62 if GF else 46); e0 = opt('e0', 84 if PRE else 80 if GF else 64); b1 = opt('b1', 86 if DS else 98 if GF else 90); r0 = opt('r0', 92 if DS else 104 if GF else 98); e1 = opt('e1', 108 if DS else 113 if GF else 108)
        b2 = opt('b2', 113); r1 = opt('r1', 118); assert GF or not DS
        bA = min(opt('bA', 33), 44 - D - 1)
        if PRE:
            extra.setdefault(bA, []).extend(([f's_memtime s[{76+2*9}:{77+2*9}]'] if 0 else []) + ['s_barrier'] + ([f'{"s_memtime" if opt("cyc", False) else "s_memrealtime"} s[94:95]'] if PROF else []))
            spread(epi(0, 1), 50, opt('g0', 60))
            spread(epi(1, 1), opt('g0', 60) + 1, opt('g1', 71))
            extra.setdefault(b0, []).append('s_barrier')
            spread(epi(0, 2), 72, e0)
            extra.setdefault(e0 + 1, []).extend(stage(0))
        elif GF:
            il = opt('il', 0); g0 = opt('g0', 36 if il else 26); g1 = opt('g1', 47 if il else 42)
            spread(epi(0, 1), 25 if il else 11, g0); spread(epi(1, 1), g0 + 1, g1); spread(epi(2, 1), g1 + 1, opt('g2', 58))
            extra.setdefault(b0, []).append('s_barrier')
            spread(epi(0, 2), 60 + 3, e0)
            extra.setdefault(e0 + 1, []).extend(stage(0) + stage(2, 1))
        else:
            spread(epi(0, 1), 12, 40)
            if not opt('nob0', 0): extra.setdefault(b0, []).append('s_barrier')
            spread(epi(0, 2), 44 + 3, e0)
            extra.setdefault(e0 + 1, []).extend(stage(0))
            spread(epi(1, 1), e0 + 2, 86)
        extra.setdefault(b1, []).extend([('wait', 'w2' if (GF and not DS) else 'w0')] + ([] if opt('nob1', 0) else ['s_barrier']) + rowread(0))
        spread(epi(1, 2), (96 if GF else 88) + 3, e1)
        extra.setdefault(r0, []).extend(rowstore(0))
        extra.setdefault(e1 + 1, []).extend(stage(1))
        if DS:
            extra.setdefault(b2, []).extend([('wait', 'w1'), 's_barrier'] + rowread(1))
            extra.setdefault(r1, []).extend(rowstore(1))
        if not GF:
            spread(epi(2, 1), max(e1 - 8, 100), 117)
            extra.setdefault(118, []).extend(stage(2, 1))
        if opt('gp', 1):
            for k0, k1 in ((bA if PRE else -1, b0), (b0, b1), (b1, b2 if DS else len(steps))):
                fr = [float(x) for x in opt('gpf', '0.3_0.6_0.87').split('_')]
                if k0 >= 0: extra.setdefault(k0, []).append('s_setprio 3')
                for i, f in enumerate(fr): extra.setdefault(k0 + int((k1 - k0)*f), []).append(f's_setprio {2-i}')
            if not PRE: a('s_setprio 3')
        if PROFT and not PD:
            for i, k in enumerate((0, 23, 59, 81, 97, 113) if GF else (0, 8, 43, 66, 87, 104)): extra.setdefault(k, []).append(f'{"s_memtime" if opt("cyc", False) else "s_memrealtime"} s[{78+2*i}:{79+2*i}]')
        if opt('noepi', 0): extra = {k: [x for x in v if not (isinstance(x, str) and x.startswith(('v_cvt', 'v_exp', 'v_rcp', 'v_mul_f32', 'v_add_f32')[:opt('noepi', 0)]))] for k, v in extra.items()}
        gemm(lg, extra)
        stamp(a, 10)
        if DS:
            e = epi(2, 2); st = stage(2, 2)
            self.emit(e[:6] + st[:1] + e[6:] + st[1:], lg)
        else:
            self.emit(epi(2, 2) + stage(2, 2) + [('wait', 'w2'), 's_barrier'] + rowread(1) + rowread(2) + rowstore(1), lg)
            a(f'K2_LASTROW:\ns_add_u32 s{sT+1}, s{sW}, 32\ns_cmp_ge_u32 s{sT+1}, s{sNC}\ns_cbranch_scc1 K2_FIN\ns_waitcnt lgkmcnt(0)')
            self.emit(rowstore(2), LG(a))
        a('K2_FIN:')
        if PROF:
            stamp(a, 11); a('s_waitcnt vmcnt(0)'); stamp(a, 12); stamp_out(a, 13, 1, sW, sB, sWS)
        a('s_endpgm')
        a('K2_MULTI:' + ('\ns_barrier' if PRE else ''))
        lg = LG(a)
        gemm(lg, {})
        a(f"""
        s_lshl_b32 s{sT+2}, s{sB}, 9
        s_lshl_b32 s{sT+3}, s{sW}, 6
        s_add_u32 s{sT+2}, s{sT+2}, s{sT+3}
        s_mul_i32 s{sT+2}, s{sT+2}, 192
        s_add_u32 s{sT+2}, s{sT+2}, {WS_ACC}
        v_mul_u32_u24 v{vSP}, 96, v{VL2}        ; lane*192
        s_cmp_lg_u32 s{sFIRST}, 0
        s_cbranch_scc1 K2_NOACC
        """)
        for i in range(11): a(f'buffer_load_dwordx4 v[{48+4*i}:{51+4*i}], v{vSP}, {ws}, s{sT+2} offen offset:{16*i}')
        a('s_waitcnt vmcnt(0)')
        for i in range(44): a(f'v_add_f32 v{i}, v{i}, v{48+i}')
        a(f'K2_NOACC:\ns_barrier\ns_cmp_eq_u32 s{sLAST}, 0\ns_cbranch_scc1 K2_SPILL')
        self.emit(late, lg)
        for g in range(2):
            self.emit(epi(g) + stage(g) + [('wait', f'w{g}'), 's_barrier'] + rowread(g) + rowstore(g), lg)
        self.emit(epi(2) + stage(2) + ([] if DS else [('wait', 'w2'), 's_barrier'] + rowread(2)), lg)
        a(f's_branch {"K2_FIN" if DS else "K2_LASTROW"}\nK2_SPILL:')
        for i in range(11): a(f'buffer_store_dwordx4 v[{4*i}:{4*i+3}], v{vSP}, {ws}, s{sT+2} offen offset:{16*i}')
        a(f"""
        s_mov_b32 s{sFIRST}, 0
        s_waitcnt vmcnt(0)
        s_cmp_lt_u32 s{sRND}, s{sR}
        s_cbranch_scc1 K2_LOAD
        s_add_u32 s{sJ0}, s{sJ0}, {2*U}
        s_branch K2_WINDOW
        """)

HEADER = '''; Kernarg layout for this problem (96 bytes, ptrs only, base s[0:1]):
'''
def kd(name, vgpr):
    return f'''.amdhsa_kernel {name}
  .amdhsa_next_free_vgpr {vgpr}
  .amdhsa_next_free_sgpr {102}
  .amdhsa_accum_offset {(vgpr+3)//4*4}
  .amdhsa_group_segment_fixed_size 0
  .amdhsa_kernarg_size 96
  .amdhsa_user_sgpr_count 2
  .amdhsa_user_sgpr_kernarg_segment_ptr 1
  .amdhsa_system_sgpr_workgroup_id_x 1
  .amdhsa_float_denorm_mode_32 3
.end_amdhsa_kernel
'''
def main():
    ks = []
    l2, v2 = K2().gen(); ks.append((NAME + '_kernel', fix_hazards(l2), v2))
    s = HEADER
    s += f'; @launch grid=(256,1,1) block=(512,1,1) lds={K2_LDS}\n'
    s += '.amdgcn_target "amdgcn-amd-amdhsa--gfx950"\n.text\n'
    for name, l, v in ks:
        s += f'.globl {name}\n.p2align 8\n.type {name},@function\n{name}:\n'
        s += '\n'.join((x if x.endswith(':') else '    ' + x) for x in l) + '\n'
    s += '.section .rodata,"a"\n' + ''.join('.p2align 6\n' + kd(name, v) for name, l, v in ks)
    out = sys.argv[1] if len(sys.argv) > 1 else f'/code/{NAME}.s'
    open(out, 'w').write(s)
    print('wrote', out, len(s), 'bytes')
main()
```

```python
import sys, os
sys.path.insert(0, os.path.dirname(os.path.abspath(__file__)))
from asmlib import Asm, fix_hazards

NAME = 'standalone__tensor_product_equiv_equiformer__graph'
N = 10000; E = 320000
NCH = 250; CH = E // NCH
CSTR = CH * 16 + 128
TSTR = 1024 + 128
WS_REC = 0
WS_TBL = 0x0600000
WS_STAB = 0x06A0000
WS_WTAB = 0x06C8000
WS_FLG = 0x06D8000
WS_EPO = WS_FLG + 2048
WS_RANK = 0x0700000
WS_PROF = 0x0900000
WS_ACC = 0x0A00000
WS_SIZE = 0x2400000
assert NCH * CSTR <= WS_TBL and WS_TBL + NCH * TSTR <= WS_STAB and WS_ACC + 256*512*192 <= WS_SIZE
OPT = dict(a.split('=') for a in sys.argv[2:]) if len(sys.argv) > 2 else {}
def opt(k, d): return type(d)(OPT.get(k, d)) if not isinstance(d, bool) else bool(int(OPT.get(k, d)))
def mod(k, d): return opt(k, d).replace('_', ' ')

PMUL = 214749; SPL = opt('spl', 40); PCUT = (1 << 24) - (SPL*8*(1 << 24) + 312)//625
for d in range(N):
    p_ = (d*8)//625; l_ = d - (625*p_ + 7)//8
    assert (d*PMUL) >> 24 == p_ and (((d*PMUL) & 0xffffff) + PCUT) >> 24 == (l_ >= SPL) and l_ - SPL*(l_ >= SPL) < 40
PROF = opt('prof', False)
FUSE = True
SEG = opt('seg', False)
def seg(i): return [f's_memtime s[{76+2*i}:{77+2*i}]'] if SEG else []
PROFS = opt('profs', False)
def sstamp(a, i):
    if PROFS: a(f's_memrealtime s[{76+2*i}:{77+2*i}]')
PROFT = opt('proft', False)

PROFP = opt('profp', False)
PD = opt('pd', 4)
FL = opt('fl', 0)
def pstamp(i): return f's_memrealtime s[{76+2*i}:{77+2*i}]' if PROFP else ''
def stamp(a, i, t=False):
    if PROFP and i in (5, 7, 8, 9, 10, 11): return
    if opt('profu', 0):
        if i in (1, 2, 3, 4, 6, 7): return
    if opt('clk', 0):
        if i == 11 and opt('clk', 0) == 1: a('s_getreg_b32 s98, hwreg(HW_REG_XCC_ID)')
        if i in (7, 8, 10, 11) or (i == 1 and opt('clk', 0) == 2): return
        cm = {4: 7, 5: 8, 9: 10} if opt('clk', 0) == 1 else {0: 1, 6: 11, 3: 10}
        if i in cm: a(f's_memtime s[{76+2*cm[i]}:{77+2*cm[i]}]')
    if PROFT and 1 <= i <= 6 and not t: return
    if PROFS and i in (1, 3, 5, 11, 12): return
    if PROF and not SEG: a(f'{"s_memtime" if opt("cyc", False) else "s_memrealtime"} s[{76+2*i}:{77+2*i}]')
def stamp_out(a, n, kern, swave, swg, srd_s):
    if not PROF: return
    if opt('dbgout', -1) >= 0:
        l = f'DBG_{kern}'
        a(f's_cmp_lg_u32 s{swg}, {opt("dbgout", -1)}\ns_cbranch_scc1 {l}\ns_cmp_lg_u32 s{swave}, 0\ns_cbranch_scc1 {l}')
        a(f's_load_dwordx2 s[58:59], s[0:1], 80\ns_waitcnt lgkmcnt(0)\ns_add_u32 s58, s58, {512*(1-kern)*opt("dbgk1", 0)}\ns_addc_u32 s59, s59, 0')
        srd(a, 60, 58, 256)
        a('s_mov_b64 exec, 1\nv_mov_b32 v1, 0')
        for i, o in ([(0, 0), (5, 14), (2, 15)] if kern == 0 else [(i, 1+i) for i in range(13)]):
            a(f'v_mov_b32 v2, s{76+2*i}\nbuffer_store_dword v2, v1, s[60:63], 0 offen offset:{4*o}')
        a(f's_mov_b64 exec, -1\n{l}:')
        return
    a('s_waitcnt lgkmcnt(0)')
    a(f's_lshl_b32 s67, s{swg}, 4\ns_add_u32 s67, s67, s{swave}\ns_lshl_b32 s67, s67, 6\ns_add_u32 s67, s67, {WS_PROF + kern*256*16*64}')
    a('s_mov_b64 exec, 1\nv_mov_b32 v1, 0')
    for i in range(n):
        a(f'v_mov_b32 v2, s{76+2*i if not SEG else 96+min(i,5)}\nbuffer_store_dword v2, v1, s[{srd_s}:{srd_s+3}], s67 offen offset:{4*i}')
    a('s_mov_b64 exec, -1')

def srd(a, s, ptr, nbytes):
    a(f's_mov_b32 s{s}, s{ptr}\ns_and_b32 s{s+1}, s{ptr+1}, 0xffff\ns_mov_b32 s{s+2}, {nbytes}\ns_mov_b32 s{s+3}, 0x20000')

def scan(a, v, op='v_add_u32'):
    for sh in (1, 2, 4, 8):
        a(f'{op}_dpp v{v}, v{v}, v{v} row_shr:{sh} row_mask:0xf bank_mask:0xf bound_ctrl:0')
    a(f'{op}_dpp v{v}, v{v}, v{v} row_bcast:15 row_mask:0xa bank_mask:0xf')
    a(f'{op}_dpp v{v}, v{v}, v{v} row_bcast:31 row_mask:0xc bank_mask:0xf')

K1_T = CH // 4
K1_LDS = 2048 + CH * 16
def weight_loads(a):
    a(f'''
    v_and_b32 v1, 15, v8
    v_lshrrev_b32 v3, 4, v8
    s_cmp_ge_u32 s2, 160
    s_cbranch_scc1 K1_WT
    s_cmp_ge_u32 s2, 64
    s_cbranch_scc1 K1_S1
    s_lshr_b32 s24, s2, 3
    s_and_b32 s25, s2, 7
    s_lshr_b32 s26, s25, 2
    s_bfe_u32 s27, s25, 0x10001
    s_and_b32 s28, s25, 1
    ''')
    srd(a, 60, 92, 256*128*2)
    a(f'''
    s_branch K1_SC
    K1_S1:
    ; S1: g2 = g-64; w = g2/12, f2 = g2%12 : ph = f2/6, path = (f2%6)>>1, hh = f2&1
    s_sub_u32 s29, s2, 64
    s_mul_i32 s24, s29, 43
    s_lshr_b32 s24, s24, 9
    s_mul_i32 s25, s24, 12
    s_sub_u32 s25, s29, s25
    s_cmp_ge_u32 s25, 6
    s_cselect_b32 s26, 1, 0
    s_mul_i32 s27, s26, 6
    s_sub_u32 s27, s25, s27
    s_lshr_b32 s27, s27, 1
    s_and_b32 s28, s25, 1
    s_add_u32 s25, s25, 8
    ''')
    for g2 in range(96): assert (g2*43) >> 9 == g2 // 12
    srd(a, 60, 94, 384*128*2)
    a(f'''
    K1_SC:
    s_lshl_b32 s27, s27, 7
    s_lshl_b32 s26, s26, 6
    s_lshl_b32 s28, s28, 4
    s_add_u32 s27, s27, s26
    s_add_u32 s27, s27, s28
    s_lshl_b32 s27, s27, 8
    s_lshl_b32 s26, s24, 5
    s_add_u32 s27, s27, s26
    s_add_u32 s29, s27, 8192
    v_lshlrev_b32 v3, 10, v3
    v_lshl_add_u32 v3, v1, 1, v3
    ''')
    for e in range(8): a(f'buffer_load_ushort v{64+e}, v3, s[60:63], s{29 if e & 1 else 27} offen offset:{(e >> 1)*256}')
    a(f'''
    s_mul_i32 s24, s24, 20
    s_add_u32 s24, s24, s25
    s_lshl_b32 s24, s24, 10
    s_add_u32 s24, s24, {WS_STAB}
    s_branch K1_GO
    K1_WT:
    s_sub_u32 s24, s2, 160
    s_lshr_b32 s27, s24, 1
    s_and_b32 s28, s24, 1
    s_lshl_b32 s27, s27, 8
    s_lshl_b32 s28, s28, 6
    s_add_u32 s27, s27, s28
    s_add_u32 s29, s27, {8*1280}
    ''')
    srd(a, 60, 90, 16*640*2)
    a(f'''
    v_and_b32 v1, 31, v8
    v_lshrrev_b32 v3, 5, v8
    v_mul_u32_u24 v3, {4*1280}, v3
    v_lshl_add_u32 v3, v1, 1, v3
    ''')
    for j in range(8): a(f'buffer_load_ushort v{64+j}, v3, s[60:63], s{29 if j >> 2 else 27} offen offset:{(j & 3)*1280}')
    a(f'''
    s_lshl_b32 s24, s24, 10
    s_add_u32 s24, s24, {WS_WTAB}
    ''')

def sort_rank(a, pad):
    for j in range(4):
        a(f"""v_mul_u32_u24 v{28+j}, s58, v{12+j}
        v_and_b32 v{40+j}, 0xffffff, v{28+j}
        v_lshrrev_b32 v{32+j}, 26, v{28+j}
        v_add_u32 v{40+j}, {PCUT}, v{40+j}
        v_bfe_u32 v{36+j}, v{28+j}, 24, 2
        v_lshlrev_b32 v{32+j}, 2, v{32+j}
        v_lshrrev_b32 v{40+j}, 24, v{40+j}
        v_lshl_or_b32 v{32+j}, v{36+j}, 8, v{32+j}
        v_lshl_or_b32 v{32+j}, v{40+j}, 7, v{32+j}
        ds_add_rtn_u32 v{36+j}, v{32+j}, v7""")
    for j in range(4):
        a(f'v_lshrrev_b32 v{28+j}, 24, v{28+j}\nv_mad_u32_u24 v{28+j}, v{28+j}, s59, 7\nv_lshrrev_b32 v{28+j}, 3, v{28+j}\nv_mad_u32_u24 v{28+j}, v{40+j}, {SPL}, v{28+j}\nv_sub_u32 v{28+j}, v{12+j}, v{28+j}')
        a(f'v_add_u32 v{12+j}, {32*j}, v3\nv_lshl_or_b32 v{28+j}, v{28+j}, 26, v{12+j}')
    a(f'''
    {pad}
    v_mov_b32 v59, {NONCE}
    s_mul_i32 s65, s2, {TSTR}
    s_add_u32 s65, s65, {WS_TBL}
    s_mul_i32 s64, s2, {CSTR}
    s_waitcnt lgkmcnt(0)
    s_barrier
    ''')
    sstamp(a, 11)
    a(f'''
    ds_read_b128 v[40:43], v9
    ds_read_b32 v59, v59
    s_waitcnt lgkmcnt(1)
    v_add_u32 v45, v40, v41
    v_add_u32 v46, v45, v42
    v_add_u32 v47, v46, v43
    v_mov_b32 v58, v47
    ''')
    scan(a, 58)
    a(f'''
    v_sub_u32 v48, v58, v47                 ; exclusive
    v_add_u32 v49, v48, v40
    v_add_u32 v50, v48, v45
    v_add_u32 v51, v48, v46
    ds_write_b128 v9, v[48:51] offset:1024
    s_waitcnt {'' if opt('ep', 1) else 'vmcnt(0) '}lgkmcnt(1)
    s_cmp_lg_u32 s{sW}, 4
    s_cbranch_scc1 KS_NOPUB
    v_lshl_or_b32 v56, v49, 11, v48
    v_lshl_or_b32 v57, v51, 11, v50
    v_lshl_or_b32 v56, v59, 22, v56
    v_lshl_or_b32 v57, v59, 22, v57
    buffer_store_dwordx4 v[56:59], v9, s[{sWS}:{sWS+3}], s65 offen {mod('tabst', 'sc1')}
    KS_NOPUB:
''')
    sstamp(a, 12)
    return ['s_cbranch_scc1 KS_PUB0\ns_waitcnt vmcnt(1)\ns_branch KS_PUB1\nKS_PUB0:\ns_waitcnt vmcnt(0)\nKS_PUB1:'] if opt('ep', 1) else []

def sort_emit(a, st):
    a('v_and_b32 v60, 0xffff, v59\nv_and_b32 v61, 0xffff0000, v59\ns_mov_b32 s58, 0xffff0000')
    for j in range(4):
        b = 20 + 3*(j >> 1)
        if j & 1: a(f'v_alignbit_b32 v{40+4*j}, v{b+2}, v{b+1}, 16\nv_and_or_b32 v{41+4*j}, v{b+2}, s58, v60')
        else: a(f'v_mov_b32 v{40+4*j}, v{b}\nv_lshl_or_b32 v{41+4*j}, v{b+1}, 16, v60')
        a(f'v_or_b32 v{42+4*j}, v61, v{16+j}\nv_mov_b32 v{43+4*j}, v{28+j}')
    a('s_waitcnt lgkmcnt(0)')
    for j in range(4):
        a(f'v_add_lshl_u32 v{32+j}, v{32+j}, v{36+j}, 4\nds_write_b128 v{32+j}, v[{40+4*j}:{43+4*j}] offset:2048')
    a(f'v_mov_b32 v62, {FLIP}\ns_waitcnt lgkmcnt(0)\ns_barrier\nds_read_b32 v62, v62')
    for i in range(4): a(f'ds_read_b128 v[{12+4*i}:{15+4*i}], v5 offset:{2048 + i*K1_T*16}')
    for i in range(4):
        a(f's_waitcnt lgkmcnt({3-i})')
        a(f'buffer_store_dwordx4 v[{12+4*i}:{15+4*i}], v5, s[8:11], s64 offen {st}')
        if i < 3: a(f's_add_u32 s64, s64, {K1_T*16}')

NSTR = 2080
OA = 512
E4 = 48*32 - 4
RECBASE = 65536
ZR = opt('zr', 0)
NPOOL = 5 if ZR else 8
ZERO = RECBASE + 40 * NSTR + NPOOL*512
W1L = ZERO + (1536 if ZR else 0)
DL = 0xf0f0f0f0
MISC = W1L + 10240
HIST = MISC; PROG = MISC + 192; CNT = MISC + 224; OKW = MISC + 228; FLAG = MISC + 232; ARR = MISC + 236; SCR = MISC + 240; NULLSRC = MISC + 256; NONCE = MISC + 384; FLIP = MISC + 388
NULLBASE = NULLSRC
K2_LDS = 163840
assert FLIP + 4 <= K2_LDS
U = 10
ACC = 0; AR = 64; WR = 96; BR = 176; P0 = 192; G = 222
VEO = 230; VH16 = 231; T2 = 232; T3 = 233; PW = 234
VB0 = 246; VB1 = 247; VLG = 248; VAO = 249; VYO = 250; VSO = 251; VL2 = 252; VTAB = 253; VT0 = 254; VT1 = 255; VPA = VEO
sX = 4; sWS = 8; sOUT = 12; sEA = 16
sW = 20; sNB = 21; sNC = 22; sJ0 = 23; sRND = 24; sR = 25; sLIM = 26; sMORE = 27; sFIRST = 28
sCB = 29; sC4 = 30; sCP = 31; sNBs = 48; sNK = 33; sNPH = 34; sNP = 35; sNV = 36
sRING = 37; sJ = 38; s1024 = 39; sOWN = 40; sNX = 44; sSO = 48; sPROGW = 52; sPROG = 53; sB = 54; sLAST = 55
sEX = 56
sT = 58
sM0 = 68
sX2 = 72
sPP = 32
sN4 = 3
sTAG = 2
sTK = 0
sSPIN = 27

TILES = {0: [(0,0), (1,0), (0,1), (1,1)], 1: [(0,0), (0,1), (1,1), (1,0)], 2: [(0,0), (1,0), (1,1), (0,1)], 3: [(0,0), (0,1), (1,0), (1,1)]}[opt('tord', 0)]
def tile(t, u): return ACC + 16 * TILES.index((t, u))
def Wreg(p, u): return WR + p*16 + u*8

def weave(x, y):
    o = []
    for i in range(max(len(x), len(y))):
        o += x[i:i+1] + y[i:i+1]
    return o

class LG:
    def __init__(self, a, q=()): self.a = a; self.q = list(q)
    def issue(self, tag, optional=False): self.q.append((tag, optional))
    def waitline(self, tag):
        idx = [i for i, (t, o) in enumerate(self.q) if t == tag]
        if not idx: return None
        y = sum(1 for (t, o) in self.q[idx[-1]+1:] if not o)
        self.q = self.q[idx[-1]+1:]
        return f's_waitcnt lgkmcnt({min(y, 15)})'

class K2:
    def __init__(self):
        self.a = Asm()
        self.uid = 0
        self.outline = []
    def lab(self, s):
        self.uid += 1
        return f'K2_{s}_{self.uid}'

    def dma(self, slot, greg, soff):
        return [f's_mov_b32 m0, s{sM0+slot}',
                f'buffer_load_dwordx4 v{greg}, s[{sX}:{sX+3}], s{soff} offen {mod("xld", "sc1")} lds',
                f'buffer_load_dwordx4 v{greg+1}, s[{sX2}:{sX2+3}], s{soff} offen offset:1024 {mod("xld", "sc1")} lds']
    def ndma(self, slot, t):
        if t < 3: return self.dma(slot, G + 2*t, sNX + t)
        four = self.lab('g4'); back = self.lab('back'); d = self.dma(slot, G + 2, sNX + 3); e = self.dma(slot, G + 6, sNX + 3)
        self.ool(f'{four}:\ns_add_u32 s{sSO+3}, s{sNBs}, 384\n' + '\n'.join(x if isinstance(x, str) else x[0] for x in self.sread(3)) + '\ns_waitcnt lgkmcnt(0)\n'
                 + '\n'.join(self.gmad(3)[1:] + e[1:]) + f'\ns_branch {back}')
        return [d[0], f's_cmp_eq_u32 s{sNK}, 4\ns_cbranch_scc1 {four}\n{d[1]}', f'{d[2]}\n{back}:']
    def bread(self, item, half=False):
        return [(f'ds_read_b64_tr_b16 v[{BR + (item & 1)*8 + u*4 + r*2}:{BR + (item & 1)*8 + u*4 + r*2 + 1}], v{VB0+u} offset:{(item & 3)*2048 + r*1024}', [('B', False)])
                for u in range(2) for r in range(1 if half else 2)]
    def sread(self, t):
        return [f'v_add_u32 v{G+2*t}, s{sSO+t}, v{VSO}', (f'ds_read2_b32 v[{G+2*t}:{G+2*t+1}], v{G+2*t} offset0:1 offset1:3', [(f'S{t}', False)])]
    def gmad(self, t):
        return [('wait', f'S{t}')] + [f'v_mad_u32_u16 v{G+2*t+r}, v{G+2*t+r}, s{s1024}, v{VLG} op_sel:[1,0,0,0]' for r in range(2)]
    def ool(self, text): self.outline.append(text)
    def qregs(self):
        assert CNT == PROG + 32
        return [f'v_lshl_add_u32 v{VT0}, v{VL2}, 1, s{sPROG}', f'v_lshrrev_b32 v{VT1}, v{VL2}, 1.0' if 0 else f'v_cmp_eq_u32 vcc, 16, v{VL2}', f'v_cndmask_b32 v{VT1}, 0, 1, vcc']
    def atomic(self):
        return [(f's_mov_b64 exec, 0x3ff\nds_add_rtn_u32 v{T2}, v{VT0}, v{VT1}\ns_mov_b64 exec, -1', [('C', False)])]
    def claimed(self, ph):
        nul = self.lab('nul'); spin = self.lab('spin'); chk = self.lab('chk'); back = self.lab('back')
        self.ool(f'{nul}:\ns_mov_b32 s{sN4 if ph else sT}, {NULLBASE | (3 << 18) if ph else 63}\ns_mov_b32 s{sNV}, 0\ns_branch {back}')
        self.ool(f'{spin}:\ns_sub_u32 s{sSPIN}, s{sSPIN}, 1\ns_cbranch_scc1 K2_END\nds_read_b32 v{T2}, v{VT0}\ns_waitcnt lgkmcnt(0)\ns_branch {chk}')
        return [f'v_readlane_b32 s{sT}, v{T2}, 8' + ('' if ph else f'\ns_mov_b32 s{sTK}, s{sT}'),
                f"""s_cmp_lt_u32 s{sT}, s{sNC}
                s_cbranch_scc0 {nul}
                v_readlane_b32 s{sN4}, v{VTAB}, s{sT}
                s_bfe_u32 s{sT}, s{sN4}, 0x60016
                s_and_b32 s{sT+1}, s{sT}, 7
                s_lshr_b32 s{sT+2}, s{sT}, 3
                {chk}:
                v_readlane_b32 s{sT+3}, v{T2}, s{sT+1}
                s_nop 0
                s_cmp_gt_u32 s{sT+3}, s{sT+2}
                s_cbranch_scc0 {spin}
                {back}:"""]
    def claim0(self):
        dyn = self.lab('dyn'); back = self.lab('back')
        o = self.qregs() + [x if isinstance(x, str) else x[0] for x in self.atomic()] + ['s_waitcnt lgkmcnt(0)'] + self.claimed(0)
        self.ool(f'{dyn}:\n' + '\n'.join(o) + f'\ns_mov_b32 s{sNPH}, 1\ns_branch {back}')
        return [f's_add_u32 s{sJ}, s{sJ}, 1', f'v_mov_b32 v{VT0}, s{sPROGW}', f'v_mov_b32 v{VT1}, s{sJ}',
                f's_lshl_b32 s{sT}, s{sJ}, 3', f's_add_u32 s{sT}, s{sT}, s{sW}',
                (f's_mov_b64 exec, 1\nds_write_b32 v{VT0}, v{VT1}\ns_mov_b64 exec, -1', [('W', False)]),
                f's_cmp_lt_u32 s{sT}, s{sNC}\ns_cbranch_scc0 {dyn}\n{back}:']
    def pooladdr(self, d, word):
        return f"""s_lshr_b32 s{d}, s{word}, 28
            s_mul_i32 s{sT+8}, s{sNC}, {NSTR}
            s_lshl_b32 s{d}, s{d}, 9
            s_add_u32 s{d}, s{d}, s{sT+8}
            s_add_u32 s{d}, s{d}, {RECBASE}"""
    def next_info(self, ph):
        rare = self.lab('rare'); back = self.lab('back'); four = self.lab('four')
        self.ool(f"""{rare}:
            s_cmp_eq_u32 s{sNK}, 4
            s_cbranch_scc1 {four}
            s_mov_b32 s{sSO+1}, s{sNBs}
            s_xor_b32 s{sNX+1}, s{sNX}, {256 + 128*((FL ^ FL >> 1) & 1)}
            s_xor_b32 s{sNX+2}, s{sNX}, {512 + 128*((FL ^ FL >> 2) & 1)}
            s_xor_b32 s{sNX+3}, s{sNX}, {768 + 128*((FL ^ FL >> 3) & 1)}
            s_branch {back}
            {four}:
            s_add_u32 s{sSO+2}, s{sNBs}, 256
            s_mov_b32 s{sNX+2}, s{sNX}
            s_mov_b32 s{sNX+3}, s{sNX}
            s_branch {back}""")
        o = ([] if ph else [f'v_readlane_b32 s{sN4}, v{VTAB}, s{sT}']) + [f's_lshl_b32 s{sNX}, s{sNPH}, 7' + (f'\ns_xor_b32 s{sNX}, s{sNX}, 128' if FL & 1 else ''),
             f's_and_b32 s{sNBs}, s{sN4}, 0x3ffff', f's_bfe_u32 s{sNK}, s{sN4}, 0x30013']
        if ph == 1: o += [f's_mov_b32 s{sNP}, s{sNBs}']
        else: o += [f's_mul_i32 s{sNP}, s{sJ}, 6', f's_cmp_eq_u32 s{sNPH}, 0\ns_cselect_b32 s{sNP}, s{sNP}, s{sNBs}']
        o += [f's_mov_b32 s{sNX+1}, s{sNX}', f's_xor_b32 s{sNX+3}, s{sNX}, {256 + 128*((FL ^ FL >> 1) & 1)}', f's_add_u32 s{sSO+1}, s{sNBs}, 128', f's_add_u32 s{sT+2}, s{sNBs}, 256',
              f's_cmp_eq_u32 s{sNK}, 3\ns_cselect_b32 s{sNX+2}, s{sNX}, s{sNX+3}\ns_cselect_b32 s{sSO+2}, s{sT+2}, s{sNBs}',
              f's_sub_u32 s{sT+2}, s{sNK}, 2\ns_cmp_lt_u32 s{sT+2}, 2\ns_cbranch_scc0 {rare}\n{back}:']
        return o
    def eread(self):
        return [f'v_add_u32 v{T3}, s{sNBs}, v{VEO}',
                (f'ds_read_b32 v{T2}, v{T3}', [('E', False)]), (f'ds_read_b32 v{T3}, v{T3} offset:1024', [('E', False)])]
    NEXTRA = 2
    def adma(self):
        dum = self.lab('dum'); four = self.lab('a4'); back = self.lab('back'); b4 = self.lab('b4')
        ea = f's[{sEA}:{sEA+3}]'; m = mod('eald', '')
        self.ool(f'{dum}:\nv_mov_b32 v{T2}, -1\ns_mov_b32 m0, {SCR}\ns_mov_b64 exec, 1\n' + f'buffer_load_dwordx4 v{T2}, {ea}, 0 offen lds\n'*2 + f's_mov_b64 exec, -1\ns_branch {back}')
        self.ool(f"""{four}:
            v_add_u32 v{VT0}, s{sNBs}, v{VEO}
            ds_read_b32 v{VT0}, v{VT0} offset:4
            {self.pooladdr(sT+7, sN4)}
            s_mov_b32 m0, s{sT+7}
            s_mov_b32 exec_hi, 0
            s_waitcnt lgkmcnt(0)
            v_or_b32 v{VT0}, v{VT0}, v{VH16}
            buffer_load_dwordx4 v{VT0}, {ea}, 0 offen {m} lds
            s_mov_b32 exec_hi, -1
            s_branch {b4}""")
        return [('wait', 'E'), f'v_or_b32 v{T2}, v{T2}, v{VH16}', f'v_or_b32 v{T3}, v{T3}, v{VH16}', f"""
        s_cmp_lg_u32 s{sNPH}, 0
        s_cbranch_scc1 {dum}
        s_cmp_eq_u32 s{sNK}, 4
        s_cbranch_scc1 {four}
        {b4}:
        s_add_u32 m0, s{sNBs}, {OA}
        s_add_u32 s{sT+7}, s{sNBs}, {OA+1024}
        buffer_load_dwordx4 v{T2}, {ea}, 0 offen {m} lds
        s_mov_b32 m0, s{sT+7}
        s_mov_b32 exec_hi, 0
        buffer_load_dwordx4 v{T3}, {ea}, 0 offen {m} lds
        s_mov_b32 exec_hi, -1
        {back}:"""]
    def apart(self, k):
        ea = f's[{sEA}:{sEA+3}]'; m = mod('eald', '')
        return f"""s_add_u32 s{sT+7}, s{sNBs}, {OA + (1024 if k == 2 else 0)}
        s_cmp_lg_u32 s{sNPH}, 0
        s_cselect_b32 m0, {SCR}, s{sT+7}
        s_cselect_b32 exec_lo, 1, {0 if k == 1 else -1}
        s_cselect_b32 exec_hi, 0, {-1 if k == 1 else 0}
        buffer_load_dwordx4 v{T3 if k == 2 else T2}, {ea}, 0 offen {m} lds
        s_mov_b64 exec, -1"""
    def adma3(self):
        four = self.lab('a4'); b4 = self.lab('b4'); ea = f's[{sEA}:{sEA+3}]'; m = mod('eald', '')
        self.ool(f"""{four}:
            s_cmp_lg_u32 s{sNPH}, 0
            s_cbranch_scc1 {b4}
            v_add_u32 v{VT0}, s{sNBs}, v{VEO}
            ds_read_b32 v{VT0}, v{VT0} offset:4
            {self.pooladdr(sT+7, sN4)}
            s_mov_b32 m0, s{sT+7}
            s_mov_b32 exec_hi, 0
            s_waitcnt lgkmcnt(0)
            v_or_b32 v{VT0}, v{VT0}, v{VH16}
            buffer_load_dwordx4 v{VT0}, {ea}, 0 offen {m} lds
            s_mov_b32 exec_hi, -1
            s_branch {b4}""")
        return [('wait', 'E'), f'v_or_b32 v{T2}, v{T2}, v{VH16}', f'v_or_b32 v{T3}, v{T3}, v{VH16}', f's_cmp_eq_u32 s{sNK}, 4\ns_cbranch_scc1 {four}\n{b4}:']
    UN = (ACC, ACC + 8, ACC + 20, ACC + 28)
    def aadd(self, v, sd):
        if not self.z: return f'v_add_u32 v{v}, s{sd}, v{v}'
        return f's_mov_b32 exec_lo, {DL}\ns_mov_b32 exec_hi, {DL}\nv_add_u32 v{v}, s{sd}, v{v}\ns_mov_b64 exec, -1'
    def areads(self, s, half=False):
        va, vy, oa, oy, o = VAO, VYO, s*512, s*128, []
        if s == 3:
            va, oa = ACC + 56, 0
            o = [self.pooladdr(sT+7, sC4) + f'\ns_sub_u32 s{sT+7}, s{sT+7}, s{sCB}\ns_sub_u32 s{sT+7}, s{sT+7}, {OA}\n' + (f'v_mov_b32 v{va}, v{VAO}\n' + self.aadd(va, sT+7) if self.z else f'v_add_u32 v{va}, s{sT+7}, v{VAO}')]
        if self.z: o += [(f'ds_read_b64_tr_b16 v[{self.UN[s]+2*m}:{self.UN[s]+2*m+1}], v{va} offset:{oa + (0, 128, 32, 160)[m]}', [(f'a{s}', False)]) for m in range(2 if half else 4)]
        else: o += [(f'ds_read_b64_tr_b16 v[{ACC+4*s+2*r}:{ACC+4*s+2*r+1}], v{va} offset:{oa + 32*r}', [(f'a{s}', False)]) for r in range(1 if half else 2)]
        return o + [(f'ds_read_u16_d16_hi v{ACC+16+s}, v{vy} offset:{oy}', [(f'y{s}', False)])]
    def abuild(self, nK, half=False):
        o = []
        for s in range(2, nK): o += self.areads(s, half and s == nK - 1)
        for s in range(nK):
            b = ACC + 4*s; un = self.UN[s] if self.z else ACC + 20 + (s & 1)*8; m = 2 if (half and s == nK - 1) else 4
            o.append(('wait', f'y{s}' if (s or nK == 1 or not opt('ymw', 1)) else 'y1'))
            for i in range(0 if self.z else m): o += [f'v_lshlrev_b32 v{un+2*i}, 16, v{b+i}', f'v_and_b32 v{un+1+2*i}, 0xffff0000, v{b+i}']
            for t in (1, 0):
                d = ACC + 36 if t else un
                for e in range(2*m): o.append(f'v_mul_f32_dpp v{d+e}, v{ACC+16+s}, v{un+e} row_newbcast:{8*t+e} row_mask:{"0xf" if t else "0xa"} bank_mask:0xf')
                for i in range(m): o.append(f'v_cvt_pk_bf16_f32 v{AR+s*8+t*4+i}, v{d+2*i}, v{d+1+2*i}')
        return o
    R = dict(A=PW, B=PW+2, C=PW+4, D=PW+6, E=PW+8, F=PW+10)
    CH_ = {0: [(0,'A','new'),(2,'B','new'),(2,'C','new'),(2,'D','new')],
           1: [(3,'A','new'),(1,'B','new'),(4,'C','new'),(4,'D','new')],
           2: [(3,'E','new'),(4,'C','neg'),(1,'B','acc'),(4,'F','new')],
           3: [(3,'E','new'),(4,'D','neg'),(4,'F','neg'),(1,'B','acc')]}
    def F(self, q, k):
        t, u = TILES[k]; o = []
        for r in range(8):
            for b in (2*t, 2*t+1):
                p, d, mode = self.CH_[q][b]
                T = tile(t, u) + (b & 1)*8 + r; W = Wreg(p, u) + r; D = self.R[d] + u
                if r == 0 and mode == 'new': o.append(f'v_mul_f32 v{D}, v{T}, v{W}')
                elif r == 0 and mode == 'neg': o.append(f'v_fma_f32 v{D}, v{T}, v{W}, -v{D}')
                else: o.append(f'v_fmac_f32 v{D}, v{T}, v{W}')
        return o
    SROW = {0: 0, 2: 1, 8: 2, 5: 3, 6: 4, 3: 5, 9: 6, 1: 7, 4: 8, 10: 9, 7: 10}
    def fin(self, q, ph, sp=None):
        sp = sCP if sp is None else sp
        R = self.R
        pairs = {0: [(0, 'A', 'B'), (1, 'D', 'C')], 1: [], 2: [(2, 'E', 'A')], 3: [(3, 'E', 'B'), (4, 'F', 'C')]}[q]
        o = []
        for (slot, x, y) in pairs: o += [f'v_permlane32_swap_b32 v{R[x]+u}, v{R[y]+u}' for u in range(2)]
        if q == 3: o.append(f'v_permlane32_swap_b32 v{R["D"]}, v{R["D"]+1}')
        if ph == 1 and q == 0: o.append(f'v_lshl_add_u32 v{VPA}, v{VL2}, 1, s{sCP}')
        for (slot, x, y) in pairs: o += [f'v_add_f32 v{R[x]+u}, v{R[x]+u}, v{R[y]+u}' for u in range(2)]
        cv = [(slot, R[x], R[x]+1) for (slot, x, y) in pairs]
        if q == 3:
            o.append(f'v_add_f32 v{R["D"]}, -v{R["D"]}, -v{R["D"]+1}')
            cv.append((5, R['D'], R['D']))
        if cv and ph == 0:
            o.append(f's_set_gpr_idx_on s{sp}, gpr_idx(DST)\n' + ''.join(f'v_cvt_pk_bf16_f32 v{P0+slot}, v{lo}, v{hi}\n' for (slot, lo, hi) in cv) + 's_set_gpr_idx_off')
        elif cv:
            if q == 3: o.append(f'v_sub_u32 v{R["D"]+1}, v{VPA}, v{VH16}')
            for (slot, lo, hi) in cv: o.append(f'v_cvt_pk_bf16_f32 v{lo}, v{lo}, v{hi}')
            if len(cv) > 1 and opt('pw2', 1):
                o.append((f'ds_write2st64_b32 v{VPA}, v{cv[0][1]}, v{cv[1][1]} offset0:{cv[0][0]} offset1:{cv[1][0]}', [('P', False)])); cv = cv[2:]
            for (slot, lo, hi) in cv:
                o.append((f'ds_write_b32 v{VPA}, v{lo} offset:{slot*256}' if slot < 5 else f'ds_write_b16 v{R["D"]+1}, v{lo} offset:1280', [('P', False)]))
        return o
    def drop(self, line):
        x = opt('drop', '')
        if not x or not getattr(self, 'inunit', False) or '\n' in line.strip(): return False
        l = line.strip()
        if 'D' in x and l.startswith('buffer_load') and (f's[{sX}:' in l or f's[{sX2}:' in l): return True
        if 'P' in x and l.startswith('ds_write_b16'): return True
        if 'S' in x and l.startswith('v_permlane'): return True
        if 'C' in x and l.startswith('v_cvt_pk'): return True
        if 'B' in x and l.startswith('ds_read_b64_tr') and (f'v{VB0} ' in l or f'v{VB1} ' in l): return True
        if 'F' in x and l.startswith('v_fmac'): return True
        if 'A' in x and l.startswith(('v_lshlrev_b32','v_and_b32','v_cvt_pk')): return True
        if 'A' in x and l.startswith('v_mul_f32') and int(l.split()[1][1:-1]) < 64: return True
        if 'Y' in x and l.startswith(('ds_read_b128',)): return True
        if 'U' in x and l.startswith(('v_lshlrev_b32','v_and_b32')): return True
        if 'N' in x and l.startswith(('v_and_b32')): return True
        return False
    def emit(self, items, lg):
        for it in items:
            if isinstance(it, tuple) and it[0] == 'V':
                if not self.drop(it[1]): self.a(it[1])
                self.vq += [it[2]] * it[3]; continue
            if isinstance(it, tuple) and it[0] == 'wait' and len(it) > 2 and isinstance(it[2], str):
                idx = [k for k, t in enumerate(self.vq) if t == it[2]]
                if idx: cnt = len(self.vq) - 1 - idx[-1]; self.vq = self.vq[idx[-1]+1:]
                it = ('wait', it[1], cnt if idx else None)
            if isinstance(it, str):
                if not self.drop(it): self.a(it)
            elif it[0] != 'wait' and self.drop(it[0]):
                for t, o in it[1]: lg.issue(t, o)
            elif it[0] == 'wait':
                w = lg.waitline(it[1]); lw = w[len('s_waitcnt'):] if w else ''
                if len(it) > 2 and it[2] is not None: w = f's_waitcnt vmcnt({it[2]})' + lw
                if w: self.a(w)
            else:
                self.a(it[0])
                for t, o in it[1]: lg.issue(t, o)
    z = ZR == 1
    @property
    def ENTRY(self): return [('B', False)]*4 + [('a0', False)]*(4 if self.z else 2) + [('y0', False)] + [('a1', False)]*(4 if self.z else 2) + [('y1', False)]
    @staticmethod
    def cost(it):
        if isinstance(it, tuple):
            if it[0] == 'wait': return 1
            it = it[1] if it[0] == 'V' else it[0]
        return sum((2 if 'permlane' in l else 1) for l in it.strip().split('\n') if not l.strip().endswith(':'))
    def unit(self, nK, ph, half=False):
        a = self.a
        self.z = ZR == 1 or (ZR == 2 and ph == 1)
        lg = LG(a, self.ENTRY)
        a(f'K2_U{nK}{"h" if half else ""}{ph}:')
        self.inunit = True
        n = 4 * nK
        BUD = opt('bud', 7)
        pre = seg(0)
        if opt('profu', 0) and ph == 0: pre = ['s_mov_b32 s90, s88', 's_mov_b32 s88, s84', 's_mov_b32 s84, s82', 's_mov_b32 s82, s80', 's_mov_b32 s80, s78', 's_memrealtime s[78:79]']
        claim = (self.claim0() if ph == 0 else self.atomic())
        after = ([] if ph == 0 else [('wait', 'C')] + self.claimed(1)) + self.next_info(ph)
        if PD == 3 and nK == 1: pre += [f'v_mov_b32 v{G+6}, v{G}', f'v_mov_b32 v{G+7}, v{G+1}']
        if PD == 3 and nK == 4: pre += [f's_add_u32 s{sSO+3}, s{sCB}, 384'] + self.sread(3) + self.gmad(3)
        if nK == 1: pre += claim
        pre += self.abuild(nK, half)
        if nK == 1:
            pre += after + (self.eread() if ph == 0 else [])
            for t in range(3): pre += self.sread(t)
            if ph == 0: pre += self.adma()
            for t in range(3): pre += self.gmad(t)
        x = -1 if nK == 1 else 2
        gaps = [[] for _ in range(4*n)]; tailg = [[] for _ in range(4*n)]
        AS = [int(c) for c in opt('as', '')] if nK > 1 else []
        xs = AS or [x, x]
        hb = lambda j: half and j < n and j % nK == nK - 1
        hs = lambda j: hb(j) and j >= PD
        ks = lambda j: {3: 1, 4: 0}.get(j, j % 3) if nK == 3 else j % nK
        ED = opt('ed', '')
        ea = lambda i: nK > 1 and i < n and i % nK == 0 and str(ph) in ED and (i > 0 or 'a' in ED) and (i == 0 or 'f' in ED)
        early = {}
        vmn = lambda i: sum(2 - hs(j) for j in range(i + 2, i + PD + ea(i))) + sum(1 for y in xs if ph == 0 and y < i <= y + PD - 1)
        for i in range(n):
            j = i + PD
            d = self.dma(j & 3, G + (6 if nK == 1 else 2*ks(j)), sOWN + j//nK) if j < n else self.ndma(j & 3, j - n)
            gaps[4*i] += self.bread(i + 1, hb(i + 1))
            if ea(i): early[i] = [('wait', 'B'), d[0] + '\ns_nop 0', d[1]] + ([] if hs(j) else [d[2]])
            else: tailg[4*i] += [d[0]]; gaps[4*i+1] += [d[1]] + ([] if hs(j) else [d[2]])
            if i + 1 < n: tailg[4*i+3] += [('wait', 'B', vmn(i+1))]
        if ph == 1 and opt('es', 0):
            es = self.lab('es'); back = self.lab('back')
            self.ool(f'{es}:\n' + self.spre(VT0) + '\n' + '\n'.join(self.sload(VT0)[:8]) + f'\ns_branch {back}')
            gaps[4*(n - opt('esp', 4)) if nK > 1 else 4*2] += [f's_cmp_eq_u32 s{sNV}, 0\ns_cbranch_scc1 {es}\n{back}:']
        used = lambda g: sum(map(self.cost, gaps[g] + tailg[g]))
        def place(items, g0, g1):
            g = g0
            for it in items:
                while g < g1 and used(g) + self.cost(it) > BUD and used(g) > 1: g += 1
                gaps[g].append(it)
            return g
        DEF = opt('defer', True) and nK > 1
        if nK > 1:
            for t in range(3):
                place(self.sread(t), 4*(n-PD-2+t) + 2, 4*(n-PD-2+t) + 3)
                place(self.gmad(t), 4*(n-PD-1+t) + 1, 4*(n-PD-1+t) + 3)
        ndef = [0]*4
        for q in range(1, 4):
            g0 = 4*q*nK
            if DEF:
                f3 = self.F(q-1, 3)
                room = [max(0, BUD - used(g0 + k)) for k in range(3)]
                m = min(16, sum(room)); ndef[q-1] = m
                f3 = f3[16-m:]
                for k in range(3):
                    gaps[g0 + k] += f3[:room[k]]; f3 = f3[room[k]:]
            place(self.fin(q-1, ph), g0 + (3 if DEF else 1), 4*(q*nK + nK - 1) + (1 if nK > 1 else 3))
        PRE = opt('pre', 0)
        pub = [f'v_mov_b32 v{VT0}, s{sPROGW}', f'v_mov_b32 v{VT1}, s{sCB}',
               (f's_mov_b64 exec, 1\nds_write_b32 v{VT0}, v{VT1}\ns_mov_b64 exec, -1', [('P', False)])] if (PRE and ph == 1) else []
        gf = place(self.fin(3, ph, sPP), 1, 4*(nK - 1) + (1 if nK > 1 else 3))
        if nK == 1: gaps[gf] += pub
        if nK > 1:
            if ph == 0:
                g = place(claim + after, 1, 5)
                place(self.eread(), max(g, 5), 7)
                if AS:
                    gaps[4*AS[0] + 3] += self.adma3()
                    for k in range(3): gaps[4*AS[k] + 3] += [self.apart(int(opt('aso', '012')[k]))]
                else: place(self.adma(), 4*x + 3, 4*x + 3)
            else:
                place(claim, 1, 3)
                g1 = 4*(n-PD-2) + 2
                keep = gaps[g1]; k0 = [i for i, it in enumerate(keep) if isinstance(it, str) and f'v{VSO}' in it]
                moved = keep[k0[0]:] if k0 else []
                if k0: gaps[g1] = keep[:k0[0]]
                place(after, 5, g1)
                gaps[g1] += moved
                place(pub, max(gf, opt('pubg', 6)), 4*(n-2))
        if True:
            upd = [f's_sub_u32 s{sLIM}, s{sNBs}, s{sCB}', f's_mov_b32 s{sCB}, s{sNBs}', f's_mov_b32 s{sC4}, s{sN4}',
                   (f's_cmp_eq_u32 s{sNPH}, 0' if ph == 0 else f's_cmp_lg_u32 s{sNV}, 0') + f'\ns_cselect_b32 s{sEX}, s{sEX}, 0']
            upd.insert(3, f's_bfe_u32 s{sEX}, s{sN4}, 0x40012')
            place(upd, 4*(n-2) + 1, 4*(n-1) + 1)
            gl = max([g for g in range(4*n) if any(('gpr_idx' in (it if isinstance(it, str) else it[0])) or (f's{sCP}' in (it if isinstance(it, str) else it[0])) for it in gaps[g])] + [4*(n-2)])
            place([f's_mov_b32 s{sPP}, s{sCP}', f's_mov_b32 s{sCP}, s{sNP}'], gl, max(gl, 4*(n-1) + 2))
        nf0 = [0]*4
        if nK > 1:
            for q in range(4):
                g = 4*(q*nK + nK - 1) + 2
                nf0[q] = max(0, BUD - used(g))
                gaps[g] += self.F(q, 0)[:nf0[q]]
        pb = opt('pb', 1) if (PRE and ph == 1) else 0
        self.emit([f's_setprio {opt("prioa", 1) + pb}'] + early.get(0, []) + pre + seg(1) + [('wait', 'B', vmn(0))] + ([f's_setprio {opt("prio", 1) + pb}'] if opt("prio", 1) != opt("prioa", 1) else []), lg)
        for i in range(n):
            q, s = divmod(i, nK)
            for k, (t, u) in enumerate(TILES):
                c = f'v[{tile(t,u)}:{tile(t,u)+15}]' if s else '0'
                bb = BR + (i & 1)*8 + u*4
                w = 1 if hb(i) else 3
                if 'M' not in opt('drop', ''): a(f'v_mfma_f32_32x32x{8 if hb(i) else 16}_bf16 v[{tile(t,u)}:{tile(t,u)+15}], v[{AR+ks(i)*8+t*4}:{AR+ks(i)*8+t*4+w}], v[{bb}:{bb+w}], {c}')
                g = 4*i + k
                if k == 3 and s == nK - 1:
                    self.emit([f's_setprio {opt("prio0", 0) + pb}'] + gaps[g] + seg(2+2*q) + self.F(q, 0)[nf0[q]:], lg)
                    if q < 3:
                        fb = self.F(q, 1) + self.F(q, 2) + self.F(q, 3)[:16-ndef[q]]
                        e = opt('edp', 0); fb = fb[:e] + early.get(i + 1, []) + fb[e:]
                        self.emit(fb + seg(3+2*q) + [f's_setprio {opt("prio", 1) + pb}'], lg)
                else: self.emit(gaps[g], lg)
                self.emit(tailg[g], lg)
        end = [self.aadd(VAO, sLIM), f'v_add_u32 v{VYO}, s{sLIM}, v{VYO}']
        end = [end + self.F(3, 1) + self.areads(0) + self.areads(1) + self.F(3, 2) + self.F(3, 3),
               end + self.F(3, 1) + self.areads(0) + self.F(3, 2) + self.areads(1) + self.F(3, 3),
               end + self.F(3, 1) + self.F(3, 2) + self.areads(0) + self.areads(1) + self.F(3, 3)][opt('ypos', 1)]
        self.emit(end, lg)
        if SEG and not (ph == 1 and opt('segp', 1) == 0):
            a('s_memtime s[94:95]\ns_waitcnt lgkmcnt(0)')
            def acc(d, i, j): a(f's_sub_u32 s67, s{76+2*j}, s{76+2*i}\ns_add_u32 s{d}, s{d}, s67')
            acc(96, 0, 1)
            for q in range(4): acc(97, 1+2*q, 2+2*q)
            for q in range(3): acc(98, 2+2*q, 3+2*q)
            acc(99, 8, 9)
            a(f's_add_u32 s100, s100, {nK}\ns_add_u32 s101, s101, 1')
        assert [x for x in lg.q if x[0] != 'P'] == self.ENTRY, lg.q
        self.inunit = False
        self.dispatch(ph)
    HALF = {0: [int(c) for c in opt('half0', '3') if c != '0'], 1: [int(c) for c in opt('half1', '23') if c != '0']}
    def target(self, code, ph):
        nK = code >> 1
        return f'K2_U{nK}{"h" if (not code & 1 and nK in self.HALF[ph]) else ""}{ph}'
    def dispatch(self, ph, check=True):
        if not check:
            self.a(f"""
            s_mov_b32 s{sCB}, s{sNBs}
            s_mov_b32 s{sPP}, s{sCP}
            s_mov_b32 s{sC4}, s{sN4}
            s_mov_b32 s{sCP}, s{sNP}
            s_bfe_u32 s{sEX}, s{sN4}, 0x40012""")
        for code in (5, 6): self.a(f's_cmp_eq_u32 s{sEX}, {code}\ns_cbranch_scc1 {self.target(code, ph)}')
        self.a(f's_branch K2_DSP{ph}')

    def flag_load(self):
        self.fl = f'buffer_load_dwordx4 v[56:59], v60, s[{sWS}:{sWS+3}], s{sT+6} offen sc1'
        return f'v_lshlrev_b32 v60, 3, v{VL2}\ns_mov_b32 s{sT+6}, {WS_FLG}\n{self.fl}'
    def flag_check(self, wait):
        ws = f's[{sWS}:{sWS+3}]'
        self.ool(f"""
        K2_FLGR:
        s_sub_u32 s{sSPIN}, s{sSPIN}, 16
        s_cbranch_scc1 K2_END
        {self.fl}
        s_waitcnt vmcnt(0)
        s_branch K2_FLGW
        K2_FLGY:
        v_mov_b32 v56, s{sTAG}
        v_mov_b32 v57, {WS_EPO}
        s_mov_b64 exec, 1
        buffer_store_dword v56, v57, {ws}, 0 offen sc1
        s_mov_b64 exec, -1
        s_branch K2_FLGOK
        """)
        return f"""{wait}
        K2_FLGW:
        {f's_mov_b32 s{sT}, s{sB}' if opt('fp', 0) == 2 else f's_or_b32 s{sT}, s{sB}, s{sW}'}
        v_xor_b32 v56, s{sTAG}, v56
        v_xor_b32 v57, s{sTAG}, v57
        v_xor_b32 v58, s{sTAG}, v58
        v_xor_b32 v59, s{sTAG}, v59
        v_or3_b32 v56, v56, v57, v58
        v_or_b32 v56, v56, v59
        v_cmp_ne_u32 vcc, 0, v56
        s_cbranch_vccnz K2_FLGR
        s_cmp_eq_u32 s{sT}, 0
        s_cbranch_scc1 K2_FLGY
        K2_FLGOK:"""
    def wload(self, ph, vl16, paths, dst):
        for k, p in enumerate(paths):
            self.a(f's_mov_b32 s{sT}, {WS_WTAB + ph*10240 + p*2048}')
            for u in range(2): self.a(f'buffer_load_dwordx4 v[{dst(p)+4*u}:{dst(p)+4*u+3}], v{vl16}, s[{sWS}:{sWS+3}], s{sT} offen offset:{u*1024} sc1')
    def wunp(self, paths, src):
        return [f'v_lshlrev_b32 v{WR+16*p+2*i}, 16, v{src(p)+i}\nv_and_b32 v{WR+16*p+2*i+1}, 0xffff0000, v{src(p)+i}' for p in paths for i in range(8)]

    def fill_rows(self, vL, base):
        return f'''
        v_and_b32 v76, 31, v{vL}
        v_lshrrev_b32 v77, 5, v{vL}
        v_mov_b32 v80, 0
        v_mul_u32_u24 v77, {NSTR}, v77
        v_mov_b32 v81, 0xffff0000
        v_lshl_add_u32 v78, v76, 4, v77
        v_mov_b32 v82, 0
        v_add_u32 v78, {base}, v78
        v_mov_b32 v83, v81
        '''
    def fill_slots(self, vL, base):
        return f'''
        v_add_u32 v85, 16, v{vL}
        v_lshlrev_b32 v84, 5, v{vL}
        v_lshrrev_b32 v85, 6, v85
        v_mul_u32_u24 v85, {E4}, v85
        v_sub_u32 v84, v84, v85
        v_mov_b32 v85, -1
        v_add_u32 v84, {base}, v84
        '''
    def fill_all(self, vL):
        a = self.a
        a(f's_mul_i32 s{sT}, s{sW}, {5*NSTR}\ns_add_u32 s{sT}, s{sT}, {RECBASE}\ns_add_u32 s{sT+1}, s{sT}, {OA}' + self.fill_rows(vL, f's{sT}') + self.fill_slots(vL, f's{sT+1}'))
        for i in range(5): a(f'ds_write_b32 v84, v85 offset:{i*NSTR}')
        a('s_mov_b32 exec_hi, 0')
        for i in range(5): a(f'ds_write_b128 v78, v[80:83] offset:{i*NSTR}')
        a('s_mov_b32 exec_hi, -1')
    def fill_w5(self):
        a = self.a
        a(self.fill_rows(8, RECBASE) + f'v_add_u32 v79, {20*NSTR}, v78')
        for i in range(20): a(f'ds_write_b128 v{78 + i//10}, v[80:83] offset:{(i%10)*2*NSTR}')
    def fill_w6(self, n0, n1):
        a = self.a
        if n0 >= n1: return
        a(self.fill_slots(8, RECBASE + OA + n0*NSTR) + f'v_add_u32 v86, {20*NSTR}, v84')
        for i in range(n1 - n0): a(f'ds_write_b32 v{84 + 2*(i//20)}, v85 offset:{(i%20)*NSTR}')
    def counters(self, vL, first):
        self.a(f'''
        v_mov_b32 v76, 0
        v_mov_b32 v77, -1
        v_lshlrev_b32 v78, 2, v{vL}
        v_add_u32 v78, {HIST}, v78
        s_mov_b64 exec, 0x1ff
        ds_write_b32 v78, v76 offset:{PROG-HIST}
        s_mov_b32 exec_lo, 1
        {f'ds_write_b32 v78, v76 offset:{OKW-HIST}   ; flags not seen yet' if first else ''}
        {f'ds_write_b32 v78, v76 offset:{ARR-HIST}' if opt('sb', 0) else ''}
        s_mov_b32 exec_lo, -1
        ds_write_b32 v78, v77 offset:{NULLSRC-HIST}
        s_mov_b64 exec, -1
        {'' if first else f's_cmp_lg_u32 s{sRND}, 0'}
        {'' if first else f's_cbranch_scc1 K2_NOH'}
        s_mov_b32 exec_hi, 0xffff
        ds_write_b32 v78, v76
        s_mov_b64 exec, 1
        ds_write_b32 v78, v76 offset:{FLAG-HIST}
        s_mov_b64 exec, -1
        ''')
    def srds(self):
        a = self.a
        srd(a, sX, 80, N*1024); srd(a, sOUT, 96, N*1024); srd(a, sEA, 84, E*32)
        a('s_sub_u32 s80, s80, 1024\ns_subb_u32 s81, s81, 0'); srd(a, sX2, 80, N*1024 + 1024)
    def consts(self, vL):
        vao = f'v_lshlrev_b32 v{VAO}, 6, v89\nv_lshl_add_u32 v{VAO}, v88, 3, v{VAO}\nv_add_u32 v{VAO}, {OA}, v{VAO}'
        if ZR == 1: vao = f"""v_lshrrev_b32 v90, 1, v87
        v_lshl_add_u32 v90, v85, 2, v90
        v_lshlrev_b32 v90, 6, v90
        v_add_u32 v90, {OA}, v90
        v_mov_b32 v{VAO}, {ZERO}
        s_mov_b32 exec_lo, {DL}
        s_mov_b32 exec_hi, {DL}
        v_mov_b32 v{VAO}, v90
        s_mov_b64 exec, -1
        v_lshl_add_u32 v{VAO}, v88, 3, v{VAO}"""
        self.a(f'''
        v_and_b32 v84, 15, v{vL}                ; i
        v_lshrrev_b32 v85, 5, v{vL}             ; h
        v_bfe_u32 v86, v{vL}, 4, 1
        v_lshrrev_b32 v87, 2, v84
        v_and_b32 v88, 3, v84                   ; c
        v_lshl_add_u32 v89, v85, 2, v87
        {vao}
        v_lshrrev_b32 v90, 3, v84
        v_lshl_add_u32 v90, v90, 1, v86
        v_sub_u32 v90, v90, 1 clamp
        v_lshlrev_b32 v{VYO}, 1, v90
        v_lshl_add_u32 v91, v85, 2, v88
        v_lshl_add_u32 v{VYO}, v91, 4, v{VYO}
        v_and_b32 v91, 1, v87
        v_lshl_add_u32 v{VYO}, v91, 3, v{VYO}
        v_lshrrev_b32 v90, 1, v88
        v_lshl_add_u32 v90, v86, 1, v90         ; chunk (u = 0)
        v_bfe_u32 v91, v87, 1, 1
        v_lshlrev_b32 v91, 2, v91
        v_xor_b32 v90, v90, v91
        v_lshlrev_b32 v90, 4, v90
        v_lshl_add_u32 v90, v89, 7, v90
        v_and_b32 v91, 1, v88
        v_lshl_add_u32 v90, v91, 3, v90
        v_add_u32 v{VB0}, s{sRING}, v90
        v_xor_b32 v{VB1}, 64, v{VB0}
        v_lshrrev_b32 v90, 3, v{vL}
        v_lshlrev_b32 v{VSO}, 4, v90
        v_bfe_u32 v90, v90, 1, 1
        v_lshlrev_b32 v90, 2, v90
        v_and_b32 v91, 7, v{vL}
        v_xor_b32 v90, v90, v91
        v_lshlrev_b32 v{VLG}, 4, v90
        v_lshlrev_b32 v{VL2}, 1, v{vL}
        v_mov_b32 v{G+6}, -1
        v_mov_b32 v{G+7}, -1
        v_and_b32 v{VH16}, 1, v{vL}
        v_lshlrev_b32 v{VH16}, 4, v{VH16}
        v_lshrrev_b32 v90, 1, v{vL}
        v_lshlrev_b32 v90, 5, v90
        v_add_u32 v{VEO}, {OA}, v90
        ''')
    def pad(self, name, ret):
        return f'K2_PAD_{name}:\ns_branch {ret}' if name in opt('pads', self.PADS).split('_') and opt('pad', 1) else ''
    def padx(self, name, ret):
        return f'K2_PAD_{name}:\ns_cbranch_execz {ret}' if name in opt('pads', self.PADS).split('_') and opt('pad', 1) else ''
    PADS = 'S1_S2_H1_H2_H3_B3_LD_NW_SC_SD_U20_U30_U21_U31_SW_TL_T2'
    def hops(self, names, ret):
        if not opt('pad', 1): return
        self.a('s_mov_b64 exec, 0')
        for w, n in names:
            if n in opt('pads', self.PADS).split('_'): self.a(f's_cmp_eq_u32 s{sW}, {w}\ns_cbranch_scc1 K2_PAD_{n}')
        self.a(f'{ret}:\ns_mov_b64 exec, -1')
    def stage_sort(self, vL, vT_):
        a = self.a; st = mod('recst', 'sc1')
        RAW = 24576
        a(f"""
        s_cmp_lg_u32 s{sW}, 7
        s_cbranch_scc1 KS_NOTAG
        s_mov_b32 s24, {WS_EPO}
        s_mov_b64 exec, 1
        buffer_load_dword v14, v6, s[{sWS}:{sWS+3}], s24 offen sc1
        s_mov_b64 exec, -1
        """)
        srd(a, 60, 98, 256)
        sstamp(a, 1); a('s_barrier'); sstamp(a, 3)
        self.counters(8, True)
        if ZR: a(f'v_lshlrev_b32 v78, 2, v8\nv_add_u32 v78, {ZERO}, v78\n' + '\n'.join(f'ds_write_b32 v78, v76 offset:{512*i}' for i in range(3)))
        self.fill_w6(opt('n6', 40), 40)
        XM = opt('xm', 0); xm = ''
        if XM:
            o = Asm(); srd(o, 64, 80, N*1024)
            o(f's_mov_b64 exec, -1\ns_mul_i32 s24, s2, {40*1024}\nv_lshlrev_b32 v16, {opt("xms", 8)}, v8')
            for i in range(XM): o(f'buffer_load_dword v17, v16, s[64:67], s24 offen {mod("xmm", "")}\ns_add_u32 s24, s24, {64 << opt("xms", 8)}')
            o('s_mov_b64 exec, 1'); xm = o.text()
        a(f"""
        s_mov_b64 exec, 1
        buffer_load_dword v15, v6, s[60:63], 0 offen sc1
        {xm}
        v_mov_b32 v12, {NONCE}
        s_mov_b32 s24, 1664525
        s_waitcnt vmcnt({1 + XM})
        v_mul_lo_u32 v59, v14, s24
        v_add_u32 v59, 1013904223, v59
        ds_write2_b32 v12, v59, v6 offset0:0 offset1:1
        {'s_memrealtime s[86:87]' if PROFS else ''}
        s_waitcnt lgkmcnt(0)
        s_barrier
        s_waitcnt vmcnt({XM})
        v_mov_b32 v62, v15
        ds_write_b32 v12, v15 offset:4
        v_cmp_ne_u32 vcc, 0, v15
        s_mov_b32 s24, 0x40000
        s_waitcnt lgkmcnt(0)
        s_barrier
        {'s_branch' if opt('nofl', 0) else 's_cbranch_vccnz'} KS_FLOK
        KS_FLW:
        s_sub_u32 s24, s24, 1
        s_cbranch_scc1 K2_END
        buffer_load_dword v62, v6, s[60:63], 0 offen sc1
        s_waitcnt vmcnt(0)
        v_cmp_ne_u32 vcc, 0, v62
        s_cbranch_vccz KS_FLW
        ds_write_b32 v12, v62 offset:4
        KS_FLOK:
        s_mov_b64 exec, -1
        s_branch KS_JOIN
        KS_H0:
        s_barrier
        s_branch KS_HELP
        {self.pad('S1', 'KS_HOP0')}
        KS_NOTAG:
        s_cmp_ge_u32 s{sW}, 5
        s_cbranch_scc1 {'KS_H0' if opt('eb1', 0) else 'KS_HELP'}
        s_cmp_ge_u32 s2, {NCH}
        s_cbranch_scc1 KS_IDLE
        """)
        srd(a, 40, 88, E*4)
        a(f'buffer_load_dwordx4 v[12:15], v5, s[40:43], s64 offen')
        srd(a, 44, 86, E*4); srd(a, 48, 82, E*6)
        a(f"""
        buffer_load_dwordx4 v[16:19], v5, s[44:47], s64 offen
        buffer_load_dwordx4 v[20:23], v4, s[48:51], s65 offen
        buffer_load_dwordx2 v[24:25], v4, s[48:51], s65 offen offset:16
        v_lshlrev_b32 v2, 2, v0                 ; t*4
        s_lshl_b32 s64, s64, 3
        v_lshl_add_u32 v3, v0, 7, s64
        v_mov_b32 v7, 1
        s_setprio {opt('sp4', 2)}
        s_cmp_eq_u32 s{sW}, 4
        s_cbranch_scc1 KS_NOCLR
        s_setprio {opt('sp0', 1)}
        ds_write_b32 v2, v6
        KS_NOCLR:
        """)
        sstamp(a, 1); a('s_waitcnt lgkmcnt(0)\ns_barrier'); sstamp(a, 3)
        self.hops([(0, 'B3'), (1, 'LD'), (2, 'NW'), (3, 'SC'), (4, 'SD')], 'KS_HOP')
        a(f's_mov_b32 s58, {PMUL}\ns_movk_i32 s59, 625\ns_waitcnt vmcnt(3)')
        sstamp(a, 5)
        w = sort_rank(a, self.padx('S2', 'KS_HOP0'))
        a('s_waitcnt lgkmcnt(0)')
        for j in range(4): a(f'ds_read_b32 v{32+j}, v{32+j} offset:1024')
        for x in w: a(x)
        sort_emit(a, st)
        a(f"""
        s_branch KS_JOIN
        {self.pad('B3', 'KS_HOP')}
        KS_B3:
        v_mov_b32 v59, {NONCE}
        ds_read_b32 v59, v59
        v_mov_b32 v62, {FLIP}
        s_waitcnt lgkmcnt(0)
        s_barrier
        ds_read_b32 v62, v62
        KS_JOIN:
        {'s_setprio 0' if opt('spr', 1) else ''}
        v_readfirstlane_b32 s{sTAG}, v59
        s_mov_b32 s25, 0x400000
        {f's_bitcmp1_b32 {hex(opt("jp", 0))}, s{sW}' + chr(10) + 's_cbranch_scc0 KS_JOIN2' + chr(10) + 's_setprio 1' if opt('jp', 0) else ''}
        KS_JOIN2:
        s_waitcnt lgkmcnt(0)
        {'s_mov_b32 s24, 1' if opt('nofl', 0) else 'v_readfirstlane_b32 s24, v62'}
        s_cmp_eq_u32 s24, 0
        s_cbranch_scc1 KS_FLS
        s_bfe_u32 s24, s24, 0x10001
        s_xor_b32 s{sB}, s{sB}, s24
        s_lshr_b32 s{sNB}, s{sB}, 1
        s_mul_i32 s{sNB}, s{sNB}, 625
        s_add_u32 s{sNC}, s{sNB}, {625+7}
        s_add_u32 s{sNB}, s{sNB}, 7
        s_lshr_b32 s{sNB}, s{sNB}, 3
        s_lshr_b32 s{sNC}, s{sNC}, 3
        s_add_u32 s24, s{sNB}, {SPL}
        s_sub_u32 s{sNC}, s{sNC}, s24
        s_bitcmp1_b32 s{sB}, 0
        s_cselect_b32 s{sNB}, s24, s{sNB}
        s_cselect_b32 s{sNC}, s{sNC}, {SPL}
        """)
        self.ool(f'KS_FLS:\ns_sub_u32 s25, s25, 1\ns_cbranch_scc1 K2_END\nv_mov_b32 v62, {FLIP}\nds_read_b32 v62, v62\ns_branch KS_JOIN2')
        stamp(a, 6)
    def helpers(self):
        a = self.a; RAW = 24576
        a(f"""
        {self.pad('H1', 'KS_HOP0')}
        KS_HELP:
        {'s_memrealtime s[78:79]' if PROFS else ''}
        s_mov_b32 s30, 0
        s_cmp_eq_u32 s{sW}, 6
        s_cbranch_scc1 KS_RAW
        s_mov_b32 s30, 2
        s_cmp_ge_u32 s2, 170
        s_cbranch_scc1 KS_NOW
        s_mov_b32 s30, 1
        """)
        weight_loads(a)
        a('K1_GO:\nKS_NOW:\n' + ('' if opt('eb1', 0) else 's_barrier\n') + self.padx('H2', 'KS_HOP0'))
        sstamp(a, 3)
        self.fill_w5()
        a('KS_FILL:')
        sstamp(a, 5)
        a(f'v_mov_b32 v59, {NONCE}\ns_barrier\nds_read_b32 v59, v59')
        a(f"""
        s_waitcnt vmcnt(0) lgkmcnt(0)
        s_cmp_eq_u32 s30, 0
        s_cbranch_scc1 KS_B3
        s_cmp_eq_u32 s30, 2
        s_cbranch_scc1 KS_NOST
        v_lshl_or_b32 v40, v65, 16, v64
        v_lshl_or_b32 v41, v67, 16, v66
        v_lshl_or_b32 v42, v69, 16, v68
        v_lshl_or_b32 v43, v71, 16, v70
        buffer_store_dwordx4 v[40:43], v9, s[{sWS}:{sWS+3}], s24 offen sc1
        KS_NOST:
        v_mov_b32 v62, {FLIP}
        s_waitcnt lgkmcnt(0)
        s_barrier
        ds_read_b32 v62, v62
        s_lshl_b32 s24, s2, 2
        s_add_u32 s24, s24, {WS_FLG}
        s_mov_b64 exec, 1
        s_waitcnt vmcnt(0)
        buffer_store_dword v59, v6, s[{sWS}:{sWS+3}], s24 offen sc1
        s_mov_b64 exec, -1
        s_branch KS_JOIN
        {self.pad('H3', 'KS_HOP0')}
        KS_RAW:
        s_cmp_lg_u32 s2, 0
        s_cbranch_scc1 KS_NOX
        """)
        srd(a, 60, 98, 256)
        a(f"""
        s_getreg_b32 s24, hwreg(HW_REG_XCC_ID, 0, 1)
        {'s_xor_b32 s24, s24, 1' if opt('fx', 0) else ''}
        s_add_u32 s24, s24, 1
        v_mov_b32 v10, s24
        v_mov_b32 v11, 0
        s_mov_b64 exec, 1
        buffer_atomic_cmpswap v[10:11], v6, s[60:63], 0 offen sc1
        s_mov_b64 exec, -1
        KS_NOX:
        {'' if opt('eb1', 0) else 's_barrier'}
        """)
        srd(a, 60, 90, 16*640*2)
        a('v_lshrrev_b32 v10, 3, v8\nv_and_b32 v11, 7, v8\nv_lshlrev_b32 v10, 8, v10\nv_lshl_add_u32 v10, v11, 4, v10')
        for i in range(20):
            a(f's_mov_b32 m0, {(W1L if i >= 10 else RAW) + (i % 10)*1024}\ns_movk_i32 s24, {(i % 10)*2048 + (i // 10)*128}\nbuffer_load_dwordx4 v10, s[60:63], s24 offen lds')
        sstamp(a, 3)
        self.fill_w6(0, opt('n6', 40))
        a('s_branch KS_FILL\nKS_IDLE:\ns_barrier\ns_barrier\ns_branch KS_B3')
    def wraw(self, vL2, t, base, dst):
        a = self.a
        a(f'''
        v_lshrrev_b32 v{t}, 6, v{vL2}             ; h
        v_bfe_u32 v{t+1}, v{vL2}, 3, 2            ; row
        v_lshl_add_u32 v{t}, v{t}, 2, v{t+1}
        v_mul_u32_u24 v{t}, 640, v{t}
        v_bfe_u32 v{t+1}, v{vL2}, 5, 1
        v_lshl_add_u32 v{t}, v{t+1}, 5, v{t}
        v_and_b32 v{t+1}, 6, v{vL2}
        v_lshl_add_u32 v{t}, v{t+1}, 2, v{t}
        v_add_u32 v{t}, {base}, v{t}
        ''')
        for i in range(20):
            p, u, rq = i >> 2, (i >> 1) & 1, i & 1
            a(f'ds_read_b64_tr_b16 v[{dst(p)+2*(i&3)}:{dst(p)+2*(i&3)+1}], v{t} offset:{rq*8*640 + p*128 + u*64}')

    def gen(self):
        a = self.a
        vL, vT_, vC, vE, vREM, vOFF = 176, 177, 178, 179, 180, 181
        RK = 40
        NBs = 50
        t0 = 192
        ws = f's[{sWS}:{sWS+3}]'
        def loop(done, body):
            for i in range(U):
                a(f'v_cmp_lt_i32 vcc, {2*i}, v{vREM}\ns_cbranch_vccz {done}\ns_mov_b64 exec, vcc')
                a(body(i))
            a(f'{done}:\ns_mov_b64 exec, -1')
        a('s_cmp_ge_u32 s2, 256\ns_cbranch_scc1 K2_END')
        stamp(a, 0)
        a(f'''
        s_load_dwordx16 s[80:95], s[0:1], 0
        s_load_dwordx4 s[96:99], s[0:1], 72
        s_load_dwordx2 s[100:101], s[0:1], 88   ; ws
        v_lshrrev_b32 v1, 6, v0
        s_mov_b32 s{sB}, s2
        v_readfirstlane_b32 s{sW}, v1
        ''')
        self.hops([(0, 'S1'), (1, 'S2'), (5, 'H1'), (6, 'H2'), (2, 'H3')], 'KS_HOP0')
        a(f'''
        v_and_b32 v8, 63, v0
        v_lshlrev_b32 v9, 4, v8                 ; lane*16
        v_mov_b32 v6, 0
        v_lshlrev_b32 v5, 4, v0                 ; t*16
        v_mul_u32_u24 v4, 24, v0
        s_mul_i32 s64, s2, {CH*4}
        s_mul_i32 s65, s2, {CH*6}
        v_mov_b32 v{vL}, v8
        v_mov_b32 v{vT_}, v0
        s_movk_i32 s{s1024}, 1024
        s_lshl_b32 s{sRING}, s{sW}, 13
        s_mov_b32 s{sPROG}, {PROG}
        s_lshl_b32 s{sPROGW}, s{sW}, 2
        s_add_u32 s{sPROGW}, s{sPROGW}, s{sPROG}
        {chr(10).join(f's_add_u32 s{sM0+i}, s{sRING}, {i*2048}' for i in range(4))}
        s_waitcnt lgkmcnt(0)
        ''')
        if opt('wsoff', 0): a(f's_add_u32 s100, s100, {opt("wsoff", 0) << 20}\ns_addc_u32 s101, s101, 0')
        srd(a, sWS, 100, WS_SIZE)
        self.stage_sort(vL, vT_)
        a(f'''
        s_mov_b32 s{sJ0}, 0
        s_mov_b32 s{sFIRST}, 1
        s_mov_b32 s{sRND}, 0
        s_mov_b32 s{sR}, 1
        K2_CELLS:
        v_lshrrev_b32 v{vC}, 1, v{vT_}          ; cell
        v_min_u32 v{vC}, {NCH-1}, v{vC}
        v_mul_u32_u24 v72, {TSTR}, v{vC}
        s_and_b32 s{sT}, s{sB}, 7
        s_lshl_b32 s{sT}, s{sT}, 7
        s_lshr_b32 s{sT+1}, s{sB}, 5
        s_lshl_b32 s{sT+1}, s{sT+1}, 4
        s_add_u32 s{sT+9}, s{sT}, s{sT+1}
        s_add_u32 s{sT+9}, s{sT+9}, {WS_TBL}
        ''')
        PL = opt('pl', 3); tld = f'buffer_load_dwordx4 v[76:79], v72, {ws}, s{sT+9} offen sc1'
        if PL == 0: a(tld)
        a(f's_cmp_eq_u32 s{sFIRST}, 0\ns_cbranch_scc1 K2_NOSRD')
        self.srds()
        HP = opt('hp', 1) if PL >= 3 else 0
        far = lambda: self.hops([(int(w), n) for w, n in zip(opt('hw', '0123756'), ('U20', 'U30', 'U21', 'U31', 'SW', 'TL', 'T2'))], 'K2_HOP')
        if HP == 0: far()
        a('K2_NOSRD:')
        if PL == 1: a(tld)
        self.consts(vL)
        if PL == 2: a(tld)
        WS0 = lambda p: WR + 40 + 8*p
        if PL >= 3:
            a(f's_cmp_eq_u32 s{sFIRST}, 0\ns_cbranch_scc1 K2_NOW0')
            self.wraw(VL2, 60, 24576, WS0)
            a('s_waitcnt lgkmcnt(0)')
            u = self.wunp(range(5), WS0); m = opt('plu', 16)
            for x in u[:m]: a(x)
            a(tld)
            if HP == 1: far()
            for x in u[m:]: a(x)
            if HP == 2: far()
            a('K2_W0:')
            self.ool(f'K2_NOW0:\n{tld}\ns_branch K2_W0')
        def chk(r): return f"""
            v_xor_b32 v73, s{sT+1}, v{r}
            v_xor_b32 v74, s{sT+1}, v{r+1}
            v_or_b32 v73, v73, v74
            v_xor_b32 v74, s{sTAG}, v{r+3}
            v_lshrrev_b32 v73, 22, v73
            v_or_b32 v73, v73, v74
            v_cmp_ne_u32 vcc, 0, v73"""
        a(f'''
        s_lshl_b32 s{sT+1}, s{sTAG}, 22
        s_mov_b32 s{sT+2}, 0x40000
        s_bfe_u32 s{sT+3}, s{sB}, 0x10004
        s_bfe_u32 s{sT+4}, s{sB}, 0x10003
        s_add_u32 s{sT+5}, s{sT+3}, s{sT+4}
        s_mul_i32 s{sT+4}, s{sT+4}, 11
        s_sub_u32 s{sT+6}, 11, s{sT+4}
        v_cmp_gt_u32 vcc, {2*NCH}, v{vT_}
        s_mov_b64 s[{sEX}:{sEX+1}], vcc
        K2_POLL:
        ''')
        if opt('poll2', 0): a(f'''
        buffer_load_dwordx4 v[80:83], v72, {ws}, s{sT+9} offen sc1
        s_waitcnt vmcnt(1)
        {chk(76)}
        s_cbranch_vccz K2_POLLED
        s_sub_u32 s{sT+2}, s{sT+2}, 1
        s_cbranch_scc1 K2_END
        buffer_load_dwordx4 v[76:79], v72, {ws}, s{sT+9} offen sc1
        s_waitcnt vmcnt(1)
        {chk(80)}
        s_cbranch_vccnz K2_POLL
        s_add_u32 s{sT+3}, s{sT+3}, 4
        s_add_u32 s{sT+5}, s{sT+5}, 4
        ''')
        else: a(f'''
        s_waitcnt vmcnt(0)
        {chk(76)}
        s_cbranch_vccz K2_POLLED
        s_sub_u32 s{sT+2}, s{sT+2}, 1
        s_cbranch_scc1 K2_END
        s_mov_b64 exec, vcc
        buffer_load_dwordx4 v[76:79], v72, {ws}, s{sT+9} offen sc1
        s_mov_b64 exec, -1
        s_branch K2_POLL
        {self.pad('LD', 'KS_HOP')}
        ''')
        a(f'''
        K2_POLLED:
        s_set_gpr_idx_on s{sT+3}, gpr_idx(SRC0)
        v_bfe_u32 v{vE}, v76, s{sT+4}, 11
        s_set_gpr_idx_idx s{sT+5}
        v_bfe_u32 v73, v76, s{sT+6}, 11
        s_set_gpr_idx_off
        v_sub_u32 v73, v73, v{vE}
        ''')
        o = Asm(); sv = self.a; self.a = o
        o(f'''
        K2_WINDOW:
        s_mov_b32 s{sRND}, 0
        s_mov_b32 s{sR}, 1
        K2_LOAD:
        v_mbcnt_lo_u32_b32 v{vL}, -1, 0
        v_mbcnt_hi_u32_b32 v{vL}, -1, v{vL}
        s_lshl_b32 s{sT}, s{sW}, 6
        v_add_u32 v{vT_}, s{sT}, v{vL}
        v_lshlrev_b32 v70, 4, v{vL}
        ''')
        self.wload(0, 70, range(5), lambda p: WR + 40 + 8*p)
        self.fill_all(vL)
        o(f's_cmp_lg_u32 s{sW}, 7\ns_cbranch_scc1 K2_NOH')
        self.counters(vL, False)
        o('K2_NOH:\ns_waitcnt lgkmcnt(0)\ns_barrier\ns_branch K2_CELLS')
        self.a = sv; self.ool(o.text())
        stamp(a, 1)
        a(f'''
        v_cndmask_b32 v73, 0, v73, s[{sEX}:{sEX+1}]
        v_and_b32 v1, 1, v{vT_}
        v_add_u32 v1, s{sJ0}, v1                ; j0 + sub
        v_sub_u32 v{vREM}, v73, v1
        v_add_u32 v{vE}, v{vE}, v1
        v_mul_u32_u24 v{vOFF}, {CSTR}, v{vC}
        v_lshl_add_u32 v{vOFF}, v{vE}, 4, v{vOFF}
        ''')
        MK = [f's[{r}:{r+1}]' for r in (40, 42, 44, 46, 48, 50, 90, 92, 94, 96)]
        def mloop(done, body):
            for i in range(U): a(f's_mov_b64 exec, {MK[i]}\ns_cbranch_execz {done}\n' + body(i))
            a(f'{done}:\ns_mov_b64 exec, -1')
        M = opt('cm', 1); NL = opt('nl', 3); vOFM, vEM = vOFF + 1, vOFF + 4; LIST = 45056
        adr = lambda i, r, rm, st: f'v{rm + i - M}, {{}} offen' if M <= i < M + NL else f'v{r}, {{}} offen offset:{st*i}'
        ld = lambda i: f'buffer_load_dwordx4 v[{4*i}:{4*i+3}], ' + adr(i, vOFF, vOFM, 32).format(f'{ws}, 0') + ' sc1'
        for i in range(M): a(f'v_cmp_lt_i32 {MK[i]}, {2*i}, v{vREM}')
        a(f'v_add_u32 v{vOFM}, {32*M}, v{vOFF}\ns_mov_b32 s{sT+7}, 0')
        for i in range(M):
            a(f's_mov_b64 exec, {MK[i]}\n{ld(i)}')
        a('s_mov_b64 exec, -1')
        for i in range(M, U): a(f'v_cmp_lt_i32 {MK[i]}, {2*i}, v{vREM}')
        for j in range(1, NL): a(f'v_add_u32 v{vOFM+j}, {32*(M+j)}, v{vOFF}')
        a(f"""
        v_subrev_u32 v62, {2*M - 1}, v{vREM}
        v_ashrrev_i32 v62, 1, v62
        v_med3_i32 v62, v62, 0, {U - M}
        s_cmp_eq_u64 {MK[M]}, 0
        s_cbranch_scc1 K2_LD_DONE
        v_mov_b32 v63, v62
        """)
        scan(a, 63)
        a(f"""
        s_lshl_b32 s{sT}, s{sW}, 10
        s_add_u32 s{sT}, s{sT}, {LIST}
        v_readlane_b32 s{sT+1}, v63, 63
        v_sub_u32 v63, v63, v62
        v_lshl_add_u32 v64, v63, 2, s{sT}
        v_lshlrev_b32 v63, 5, v63
        v_sub_u32 v63, v{vOFM}, v63
        s_cmp_gt_u32 s{sT+1}, {63*NL}
        s_cbranch_scc1 K2_LD_GEN
        """)
        for i in range(M, U): a(f's_mov_b64 exec, {MK[i]}\ns_cbranch_execz K2_LD_L\nds_write_b32 v64, v63 offset:{4*(i-M)}')
        a(f"""
        K2_LD_L:
        s_mov_b64 exec, -1
        v_lshl_add_u32 v63, v{vL}, 2, s{sT}
        v_lshlrev_b32 v62, 5, v{vL}
        s_waitcnt lgkmcnt(0)
        """)
        for j in range(NL): a(f'ds_read_b32 v{64+j}, v63 offset:{4*63*j}')
        for j in range(NL): a(f's_min_u32 s{sT+2}, s{sT+1}, 63\ns_sub_u32 s{sT+1}, s{sT+1}, s{sT+2}\ns_bfm_b64 {MK[M+j]}, s{sT+2}, 0')
        a(f's_mov_b64 {MK[M+NL]}, 0\ns_mov_b32 s{sT+7}, 1')
        for j in range(NL):
            a(f's_mov_b32 s{sT+2}, {32*63*j}\ns_waitcnt lgkmcnt({NL-1-j})\nv_add3_u32 v{vOFM+j}, v62, v{64+j}, s{sT+2}\ns_mov_b64 exec, {MK[M+j]}\n{ld(M+j)}')
        a(f"""
        K2_LD_DONE:
        s_mov_b64 exec, -1
        """)
        self.ool('K2_LD_GEN:\n' + ''.join(f's_mov_b64 exec, {MK[i]}\ns_cbranch_execz K2_LD_DONE\n{ld(i)}\n' for i in range(M, U)) + 's_branch K2_LD_DONE')
        a(f"""
        s_cmp_eq_u32 s{sFIRST}, 0
        s_cbranch_scc1 K2_WLATE
        """)
        if PL >= 3: self.ool('K2_WLATE:\ns_waitcnt vmcnt(0)\n' + '\n'.join(self.wunp(range(5), WS0)) + '\ns_branch K2_NOWRAW')
        else:
            self.ool('K2_WLATE:\ns_waitcnt vmcnt(0)\ns_branch K2_WUNP')
            self.wraw(VL2, 60, 24576, WS0)
            a('s_waitcnt lgkmcnt(0)\nK2_WUNP:')
            for x in self.wunp(range(5), WS0): a(x)
        a(f"""
        K2_NOWRAW:
        {self.padx('NW', 'KS_HOP')}
        v_lshrrev_b32 v{vE}, 2, v{vOFF}
        {chr(10).join(f'v_lshrrev_b32 v{vEM+j}, 2, v{vOFM+j}' for j in range(NL))}
        s_mov_b32 s{sT+8}, {WS_RANK}
        v_mov_b32 v{t0+9}, 1
        s_movk_i32 s{sT}, {NSTR//4}
        s_movk_i32 s{sT+1}, {NSTR}
        s_mov_b32 s{sT+2}, 0x40000
        s_mov_b32 s{sT+3}, 0xffff
        v_mov_b32 v{t0+10}, {RECBASE}
        s_cmp_lg_u32 s{sRND}, 0
        s_cbranch_scc1 K2_RK_LOAD
        v_cmp_lt_i32 vcc, {2*U}, v{vREM}
        s_cbranch_vccz K2_NOMORE
        v_mov_b32 v61, {FLAG}
        ds_write_b32 v61, v{t0+9}
        K2_NOMORE:
        s_mov_b32 s{sT+4}, {RECBASE + opt("tp", 8)*NSTR}
        s_cmp_eq_u32 s{sT+7}, 0
        s_waitcnt vmcnt({NL})
        s_cbranch_scc0 K2_ARR
        s_waitcnt vmcnt(0)
        K2_ARR:
        """)
        stamp(a, 2)
        prep = lambda i: f'v_mad_u32_u24 v{NBs+i}, v{NBs+i}, s{sT}, v{t0+10}\nv_and_b32 v{4*i+3}, 0xffffff, v{4*i+3}'
        def rank(i):
            self.ool(f'K2_RT{i}:\ns_sub_u32 s{sT+2}, s{sT+2}, 1\ns_cbranch_scc1 K2_END\n' + ('s_mov_b64 exec, vcc\n' if opt('rtm', 1) else '') + f'{ld(i)}\ns_mov_b64 exec, {MK[i]}\ns_waitcnt vmcnt(0)\ns_branch K2_CK{i}')
            return (f's_waitcnt vmcnt({M + NL - 1 - (0 if TE else i)})\n' if M <= i < M + NL else '') + f"""K2_CK{i}:
            v_bfi_b32 v{t0}, s{sT+3}, v{4*i+1}, v{4*i+2}
            v_lshrrev_b32 v{NBs+i}, 24, v{4*i+3}
            v_cmp_ne_u32 vcc, s{sTAG}, v{t0}
            v_add_u32 v{RK+i}, {HIST}, v{NBs+i}
            s_cbranch_vccnz K2_RT{i}
            ds_add_rtn_u32 v{RK+i}, v{RK+i}, v{t0+9}
            """ + (f"""v_cmp_gt_u32 vcc, {4*opt('tp', 8)}, v{NBs+i}
            v_and_b32 v{4*i+3}, 0xffffff, v{4*i+3}
            v_cndmask_b32 v{t0}, -1, v{4*i+3}, vcc
            buffer_load_dword v245, v{t0}, s[{sEA}:{sEA+3}], 0 offen {mod("tpm", "")}
            """ if TE else '') + (prep(i).split('\n')[0] if (opt('tp', 8)) else prep(i))
        TE = opt('te', 0) and opt('tp', 8)
        mloop('K2_RK_A', rank)
        a(pstamp(5))
        if opt('tp', 8) and not TE:
            mloop('K2_TP', lambda i: f'v_cmp_gt_u32 vcc, s{sT+4}, v{NBs+i}\n' + prep(i).split('\n')[1] + f'\ns_mov_b64 exec, vcc\nbuffer_load_dword v245, v{4*i+3}, s[{sEA}:{sEA+3}], 0 offen {mod("tpm", "")}')
        o = Asm(); b = a; a = o
        a(f'K2_RK_LOAD:\ns_waitcnt vmcnt(0)')
        mloop('K2_RK_B', lambda i: f'v_lshrrev_b32 v{NBs+i}, 24, v{4*i+3}\nbuffer_load_dword v{RK+i}, ' + adr(i, vE, vEM, 8).format(f'{ws}, s{sT+8}') + '\n' + prep(i))
        a(f's_mul_i32 s{sT+4}, s{sRND}, 48\ns_waitcnt vmcnt(0)')
        for i in range(U): a(f'v_subrev_u32 v{RK+i}, s{sT+4}, v{RK+i}')
        a('s_branch K2_RK_DONE')
        self.ool(o.text()); a = b
        a(f"""
        K2_RK_DONE:
        {self.padx('SC', 'KS_HOP')}
        s_mul_i32 s{sT+9}, s{sRND}, 48
        s_movk_i32 s{sT}, {-E4}
        s_waitcnt lgkmcnt(0)
        {pstamp(7)}
        """)
        for i in range(U):
            rr = RK + i; base = NBs + i
            a(f"""s_mov_b64 exec, {MK[i]}
            s_cbranch_execz K2_SC_DONE
            v_cmpx_gt_u32 vcc, 64, v{rr}
            v_bfe_u32 v{t0+2}, v{rr}, 3, 1
            v_add_u32 v{t0+1}, 16, v{rr}
            v_lshl_or_b32 v{t0+2}, v{rr}, 1, v{t0+2}
            v_bfi_b32 v{t0+2}, 15, v{t0+2}, v{rr}
            v_lshrrev_b32 v{t0+1}, 6, v{t0+1}
            v_alignbit_b32 v{4*i+1}, v{4*i+2}, v{4*i+1}, 16
            v_lshl_add_u32 v{t0+3}, v{t0+2}, 3, v{base}
            v_lshl_add_u32 v{t0+2}, v{t0+2}, 5, v{base}
            ds_write_b64 v{t0+3}, v[{4*i}:{4*i+1}]
            v_mad_i32_i24 v{t0+2}, v{t0+1}, s{sT}, v{t0+2}
            ds_write_b32 v{t0+2}, v{4*i+3} offset:{OA}
            """)
        d = t0 + 1; k = t0 + 2; e = t0 + 3; p = t0 + 4; x = t0 + 5; pl = t0 + 6
        a(f'''
        K2_SC_DONE:
        s_mov_b64 exec, -1
        {self.padx('SD', 'KS_HOP')}
        v_lshlrev_b32 v{t0}, 2, v{vL}
        v_add_u32 v{t0}, {HIST}, v{t0}
        v_mov_b32 v{t0+8}, {FLAG}
        s_cmp_eq_u32 s{sRND}, 0
        s_cselect_b32 s{sLIM}, 64, 48
        {pstamp(8)}
        s_waitcnt lgkmcnt(0)
        {pstamp(9)}
        s_barrier
        {pstamp(10)}
        ds_read_b32 v{d}, v{t0}
        ds_read_b32 v{t0+8}, v{t0+8}
        v_cmp_gt_u32 s[{sEX}:{sEX+1}], s{sNC}, v{vL}
        v_mad_u32_u24 v{e}, v{vL}, s{sT+1}, v{t0+10}
        s_waitcnt lgkmcnt(0)
        v_cndmask_b32 v{d}, 0, v{d}, s[{sEX}:{sEX+1}]
        v_readfirstlane_b32 s{sMORE}, v{t0+8}
        v_cmp_lt_u32 s[{sT+4}:{sT+5}], 48, v{d}
        v_cmp_lt_u32 vcc, 64, v{d}
        s_bcnt1_i32_b64 s{sT+2}, s[{sT+4}:{sT+5}]
        v_mbcnt_lo_u32_b32 v{pl}, s{sT+4}, 0
        v_mbcnt_hi_u32_b32 v{pl}, s{sT+5}, v{pl}
        s_cbranch_vccnz K2_BIG
        s_cmp_gt_u32 s{sT+2}, {NPOOL}
        s_cbranch_scc1 K2_BIG
        K2_TOK:
        v_subrev_u32 v{k}, s{sT+9}, v{d}
        v_max_i32 v{k}, 1, v{k}
        v_min_i32 v{k}, s{sLIM}, v{k}
        v_add_u32 v{k}, 15, v{k}
        v_lshrrev_b32 v{k}, 3, v{k}
        v_lshl_or_b32 v{e}, v{k}, 18, v{e}
        v_lshl_or_b32 v{e}, v{pl}, 28, v{e}
        v_mov_b32 v{x}, {NULLBASE | (3 << 18)}
        v_cndmask_b32 v{VTAB}, v{x}, v{e}, s[{sEX}:{sEX+1}]
''')
        o = Asm(); b = a; a = o
        a(f'''
        K2_BIG:
        s_cmp_lg_u32 s{sRND}, 0
        s_cbranch_scc1 K2_TOK
        s_movk_i32 s{sLIM}, 48
        v_mov_b32 v{x}, v{d}
        ''')
        scan(a, x, 'v_max_u32')
        for dd in range(48, 512*U + 48): assert (dd * 43691) >> 21 == dd // 48
        a(f'''
        v_readlane_b32 s{sR}, v{x}, 63
        s_add_u32 s{sR}, s{sR}, 47
        s_mul_i32 s{sR}, s{sR}, 43691
        s_lshr_b32 s{sR}, s{sR}, 21
        ''')
        for i in range(U):
            a(f's_mov_b64 exec, {MK[i]}\ns_cbranch_execz K2_SV_DONE\nbuffer_store_dword v{RK+i}, ' + adr(i, vE, vEM, 8).format(f'{ws}, s{sT+8}'))
        a('K2_SV_DONE:\ns_mov_b64 exec, -1\ns_branch K2_TOK')
        self.ool(o.text()); a = b
        for q in range(4): a(f's_movk_i32 s{sOWN+q}, {q*256 + 128*(FL >> q & 1)}')
        a(f'''
        s_add_u32 s{sRND}, s{sRND}, 1
        s_cmp_ge_u32 s{sRND}, s{sR}
        s_cselect_b32 s{sLAST}, 1, 0
        s_cmp_eq_u32 s{sMORE}, 0
        s_cselect_b32 s{sLAST}, s{sLAST}, 0
        s_mov_b32 s{sSPIN}, 0x400000
        s_mov_b32 s{sJ}, 0
        s_mov_b32 s{sNPH}, 0
        s_mov_b32 s{sNP}, 0
        s_mov_b32 s{sNV}, 1
        s_mov_b32 s{sCP}, 0
        s_mov_b32 s{sT}, s{sW}
        ''')
        lg = LG(a)
        self.emit(self.next_info(0), lg)
        stamp(a, 3)
        pre = self.eread()
        for t in range(3): pre += self.sread(t)
        if opt('fp', 0) == 1: pre += [self.flag_load()]
        pre += self.adma()
        for t in range(3): pre += self.gmad(t)
        for t in range(PD): pre += self.ndma(t, t)
        pre += [self.aadd(VAO, sNBs), f'v_add_u32 v{VYO}, s{sNBs}, v{VYO}']
        if True:
            pre += [f'''v_bfe_u32 v{t0}, v{VTAB}, 18, 4
            s_sub_u32 s{sT}, s{sNC}, {opt('lpt', 16)}
            v_cmp_le_u32 vcc, {opt('lptc', 6)}, v{t0}
            v_cmp_gt_u32 s[{sT+2}:{sT+3}], s{sT}, v{vL}
            s_or_b64 vcc, vcc, s[{sT+2}:{sT+3}]
            v_mbcnt_lo_u32_b32 v{t0}, vcc_lo, 0
            v_mbcnt_hi_u32_b32 v{t0}, vcc_hi, v{t0}
            s_bcnt1_i32_b64 s{sT}, vcc
            v_sub_u32 v{t0+1}, v{vL}, v{t0}
            v_add_u32 v{t0+1}, s{sT}, v{t0+1}
            v_cndmask_b32 v{t0}, v{t0+1}, v{t0}, vcc
            v_lshlrev_b32 v{t0}, 2, v{t0}
            ds_permute_b32 v{t0+1}, v{t0}, v{vL}
            s_waitcnt lgkmcnt(0)
            v_lshl_or_b32 v{VTAB}, v{t0+1}, 22, v{VTAB}''']
        pre += [pstamp(11), f's_waitcnt vmcnt({2*PD - 2})']
        self.emit(pre, lg)
        stamp(a, 4)
        if SEG: a('\n'.join(f's_mov_b32 s{i}, 0' for i in range(96, 102)))
        self.emit(self.bread(0) + self.areads(0) + self.areads(1), lg)
        if opt('fp', 0) == 1: a(self.flag_check(''))
        self.dispatch(0, check=False)
        self.helpers()
        for ph in range(2):
            for nK in (2, 3):
                a(self.pad(f'U{nK}{ph}', 'K2_HOP'))
                self.unit(nK, ph, nK == 3 and 3 in self.HALF[ph])
            if 3 in self.HALF[ph]: self.unit(3, ph)
            if 2 in self.HALF[ph]: self.unit(2, ph, True)
        hot = self.outline; self.outline = []
        a(self.pad('SW', 'K2_HOP'))
        for ph in range(2):
            a(f'K2_DSP{ph}:')
            for code in (4, 7): a(f's_cmp_eq_u32 s{sEX}, {code}\ns_cbranch_scc1 {self.target(code, ph)}')
            a(f's_cmp_gt_u32 s{sEX}, 7\ns_cbranch_scc1 K2_U4{ph}\ns_cmp_lg_u32 s{sEX}, 0\ns_cbranch_scc1 K2_U1{ph}' + ('\ns_branch K2_TAIL' if ph else '\ns_branch K2_SWITCH'))
        a('K2_SWITCH:')
        if SEG and opt('segp', 1): a('\n'.join(f's_mov_b32 s{i}, 0' for i in range(96, 102)))
        stamp(a, 5)
        FP = opt('fp', 0)
        if not FP: a(self.flag_load())
        self.emit(self.fin(3, 0, sPP if opt('dsp', 1) else None), LG(a))
        a(f'v_lshl_add_u32 v{VPA}, v{VL2}, 1, s{sNP}\nv_lshrrev_b32 v{VH16}, 6, v{VL2}\nv_mul_u32_u24 v{VH16}, 126, v{VH16}')
        a(f'v_bfe_u32 v61, v{VTAB}, 22, 6\nv_lshlrev_b32 v62, 21, v{VL2}\ns_mov_b32 s{sT}, {63 << 22}\nv_lshlrev_b32 v61, 2, v61\nv_bfi_b32 v62, s{sT}, v62, v{VTAB}\nds_bpermute_b32 v{VTAB}, v61, v62')
        WP = lambda p: WR + 16*p + 8
        self.wraw(VL2, VT0, W1L, WP)
        for q in range(4): a(f's_movk_i32 s{sOWN+q}, {q*256 + 128*(~FL >> q & 1)}')
        for x in self.qregs(): a(x)
        if ZR == 2:
            self.z = True
            a(f"""v_bfe_u32 v61, v{VL2}, 4, 1
            v_lshrrev_b32 v62, 6, v{VL2}
            v_lshl_add_u32 v61, v62, 2, v61
            s_add_u32 s{sT}, s{sNBs}, {OA}
            v_lshl_add_u32 v61, v61, 6, s{sT}
            v_mov_b32 v{VAO}, {ZERO}
            s_mov_b32 exec_lo, {DL}
            s_mov_b32 exec_hi, {DL}
            v_mov_b32 v{VAO}, v61
            s_mov_b64 exec, -1
            v_and_b32 v61, 6, v{VL2}
            v_lshl_add_u32 v{VAO}, v61, 2, v{VAO}""")
        for p in range(5):
            a(f's_waitcnt lgkmcnt({min(15, 16 - 4*p)})')
            for x in self.wunp((p,), WP): a(x)
        if ZR == 2:
            for x in self.areads(0)[:-1] + self.areads(1)[:-1]: a(x[0])
        if not FP: a(self.flag_check('s_waitcnt vmcnt(0)'))
        if FP == 2:
            a(f's_cmp_eq_u32 s{sTK}, 0\ns_cbranch_scc1 K2_FLGL\nK2_FLGD:')
            self.ool('K2_FLGL:\n' + self.flag_load() + '\n' + self.flag_check('s_waitcnt vmcnt(0)') + f'\nv_mov_b32 v56, {OKW}\nv_mov_b32 v57, 1\nds_write_b32 v56, v57\ns_branch K2_FLGD')
        a(f"""s_cmp_eq_u32 s{sNV}, 0
        s_cbranch_scc1 K2_TAIL2
        {'s_waitcnt lgkmcnt(0)' if ZR == 2 else ''}
        """)
        if not FUSE: stamp(a, 6)
        self.dispatch(1, check=False)
        isunit = lambda t: t.startswith(('K2_dyn', 'K2_dum', 'K2_nul', 'K2_spin', 'K2_es'))
        for t in hot:
            if isunit(t): a(t)
        a(self.pad('TL', 'K2_HOP'))
        self.tail()
        for t in hot:
            if not isunit(t): a(t)
        for ph in range(2):
            for nK in (1, 4): self.unit(nK, ph)
        for t in self.outline: a(t)
        a('K2_END:\ns_endpgm')
        return a.lines, 256

    @staticmethod
    def sreg(f): return WR + 16*(0, 2, 1, 3, 4)[f >> 2] + 4*(f & 3)
    def spre(self, v, at=0): return f'v_lshlrev_b32 v{v}, 3, v{VL2}\ns_mul_i32 s{sT}, s{sW}, {20*1024}\ns_add_u32 s{sT}, s{sT}, {WS_STAB + at*4096}'
    def sload(self, v, order=range(20), at=0):
        sl = []
        for f in order:
            mv = ''
            if f // 4 != at: mv = f's_add_u32 s{sT}, s{sT}, {(f//4 - at)*4096 & 0xffffffff}\n'; at = f // 4
            sl.append(mv + f'buffer_load_dwordx4 v[{self.sreg(f)}:{self.sreg(f)+3}], v{v}, s[{sWS}:{sWS+3}], s{sT} offen offset:{(f%4)*1024} sc1')
        return sl
    def tail(self):
        a = self.a
        ws = f's[{sWS}:{sWS+3}]'
        vP0 = 222; vP1 = 223; vS = 226; vSP = 227; vRow = 228; vL16 = 229
        vQ0 = 232; vSt = 254; vS2 = 255; vS3 = 246; vQ0a = 247; vQ1a = 248; vRow2 = 249
        OP = 176
        PRE = opt('pre', 0); ES = opt('es', 0); assert not (PRE and ES)
        order = [4, 5, 6, 7, 14, 15, 16, 17, 18, 19, 0, 1, 2, 3, 8, 9, 10, 11, 12, 13] if PRE else list(range(20))
        sl = self.sload(vL16, order)
        rowb = f'\ns_mul_i32 s{sT+1}, s{sW}, {8192+32}'
        done = [f'v_mov_b32 v{VT0}, s{sPROGW}', f'v_mov_b32 v{VT1}, -1', f's_mov_b64 exec, 1\nds_write_b32 v{VT0}, v{VT1}\ns_mov_b64 exec, -1'] if PRE else []
        SB = opt('sb', 0); NE = opt('ne', 0 if SB else 6 if ES else 8); N0 = 8 if ES else 0
        adr = [f'v_lshl_add_u32 v{vRow}, v{VL2}, 1, s{sT+1}', f'v_lshrrev_b32 v{vS}, 6, v{VL2}', f'v_mul_u32_u24 v{vS}, 126, v{vS}', f'v_sub_u32 v{vS}, v{vRow}, v{vS}']
        if opt('fp', 0) == 2:
            self.ool(f"""K2_OKW:
            s_sub_u32 s{sSPIN}, s{sSPIN}, 1
            s_cbranch_scc1 K2_END
            v_mov_b32 v56, {OKW}
            ds_read_b32 v56, v56
            s_waitcnt lgkmcnt(0)
            v_readfirstlane_b32 s{sT+2}, v56
            s_cmp_eq_u32 s{sT+2}, 0
            s_cbranch_scc1 K2_OKW
            s_cmp_eq_u32 s{sTK}, -1
            s_cbranch_scc1 K2_TAIL1
            s_branch K2_TAIL2B""")
            a(f'K2_TAIL2:\ns_mov_b32 s{sTK}, 0\ns_branch K2_OKW\nK2_TAIL2B:\n' + self.spre(vL16) + rowb)
        else: a('K2_TAIL2:\n' + self.spre(vL16) + rowb)
        for x in sl[:N0 + NE] + adr: a(x)
        a('s_branch K2_TAIL3\nK2_TAIL:')
        stamp(a, 7)
        if opt('fp', 0) == 2: a(f'v_readlane_b32 s{sT+2}, v{T2}, 9\ns_mov_b32 s{sTK}, -1\ns_cmp_eq_u32 s{sT+2}, 0\ns_cbranch_scc1 K2_OKW\nK2_TAIL1:')
        a(self.spre(vL16, 1 if ES else 0) + rowb)
        f3 = self.fin(3, 1) + adr; w = []; m = (len(f3) + NE - 1) // NE if NE else 0
        for i in range(NE): w += [sl[N0 + i]] + f3[m*i:m*i+m]
        self.emit(w + f3[m*NE:], LG(a))
        a('K2_TAIL3:')
        for x in done: a(x)
        PFD = opt('profd', 0)
        if PFD: a('s_memtime s[78:79]')
        a(f's_waitcnt vmcnt({NE})')
        if PFD: a('s_memtime s[80:81]')
        dump = []
        if opt('w2st', 1):
            rows = [(P0 + 6*j + k, 6*j + k) for j in range(5) for k in range(5)]
            for i in range(0, 24, 2): dump.append(f'ds_write2st64_b32 v{vRow}, v{rows[i][0]}, v{rows[i+1][0]} offset0:{rows[i][1]} offset1:{rows[i+1][1]}')
            dump.append(f'ds_write_b32 v{vRow}, v{rows[24][0]} offset:{rows[24][1]*256}')
            for j in range(5): dump.insert(4*j + 2, f'ds_write_b16 v{vS}, v{P0+6*j+5} offset:{j*1536 + 1280}')
        else:
            for j in range(5):
                for k in range(5): dump.append(f'ds_write_b32 v{vRow}, v{P0+6*j+k} offset:{j*1536 + k*256}')
                dump.append(f'ds_write_b16 v{vS}, v{P0+6*j+5} offset:{j*1536 + 1280}')
        assert RECBASE % 256 == 0 and NSTR % 256 == 32
        DS = opt('ds', 0)
        dsa = f"""s_add_u32 s{sT+2}, s{sNB}, 32
        s_sub_u32 s{sT+3}, s{sNC}, 32
        v_add_u32 v51, s{sT+2}, v54
        v_cmp_gt_u32 vcc, s{sT+3}, v54
        v_lshl_add_u32 v51, v51, 10, v49
        v_mov_b32 v53, 0x7ff00000
        v_cndmask_b32 v51, v53, v51, vcc
        v_lshl_add_u32 v{vS3}, v55, 9, v51
        v_lshl_add_u32 v{vS2}, v55, 30, v51"""
        calc = f"""
        v_bfe_u32 v48, v{VL2}, 1, 4             ; n & 15
        v_lshrrev_b32 v49, 5, v{VL2}            ; slab
        v_lshrrev_b32 v55, 3, v48
        v_lshlrev_b32 v52, 4, v49               ; slab*16
        v_lshl_add_u32 v54, v55, 2, v48
        v_and_b32 v54, 7, v54                   ; node of the last group in column n
        v_and_b32 v50, 7, v48
        v_mul_u32_u24 v50, {8192+32}, v50
        v_mul_u32_u24 v51, 1536, v55
        v_add_u32 v50, v50, v51                 ; slot of node n
        v_add_u32 v{vP0}, v50, v52
        v_mul_u32_u24 v51, {8192+32}, v54
        v_add_u32 v{vQ0}, v51, v52
        v_lshl_add_u32 v{vQ0a}, v55, 7, v{vQ0}
        v_mul_u32_u24 v51, {NSTR}, v48
        s_mov_b32 s{sT+2}, {RECBASE}
        v_add3_u32 v{vP1}, v51, v52, s{sT+2}
        v_mul_u32_u24 v51, {NSTR}, v54
        s_mov_b32 s{sT+2}, {RECBASE + 32*NSTR}
        v_add3_u32 v{vP1+2}, v51, v52, s{sT+2}
        v_lshl_add_u32 v{vQ1a}, v55, 7, v{vP1+2}
        s_lshl_b32 s{sT+2}, s{sW}, 5
        v_lshl_add_u32 v49, v49, 3, s{sT+2}
        {dsa if DS else f's_mov_b32 s{sT+2}, {RECBASE}' + chr(10) + f'v_add3_u32 v{vS2}, v51, v49, s{sT+2}' + chr(10) + f'v_lshl_add_u32 v{vS3}, v55, 9, v{vS2}'}
        v_bfe_u32 v53, v48, 2, 1
        v_lshl_add_u32 v49, v53, 4, v49
        v_add_u32 v{vSt}, v50, v49
        s_and_b32 s{sT+6}, s{sLAST}, s{sFIRST}  ; plain single-round case
        """.strip().split('\n')
        rest = sl[N0 + NE:]
        if SB:
            a(f'v_mov_b32 v56, {ARR}\nv_mov_b32 v57, 1\ns_mov_b64 exec, 1\nds_add_rtn_u32 v57, v56, v57\ns_mov_b64 exec, -1')
            while dump:
                for x in dump[:1] + calc[:opt('sbc', 1)]: a(x)
                dump = dump[1:]; calc = calc[opt('sbc', 1):]
        else:
            per = max(2, (len(dump) + len(rest) - 1) // max(1, len(rest)))
            while dump or rest:
                for x in dump[:per] + rest[:1] + calc[:2]: a(x)
                dump = dump[per:]; rest = rest[1:]; calc = calc[2:]
        if PFD: a('s_memtime s[82:83]')
        for x in calc: a(x)
        if PFD: a('s_memtime s[84:85]')
        if PRE: a(f'v_lshl_add_u32 v48, v{VL2}, 1, s{sPROG}\nds_read_b32 v49, v48\ns_mov_b32 s{sT+7}, {RECBASE + 32*NSTR}')
        a('s_waitcnt lgkmcnt(0)')
        late = f"""
        s_bfe_u32 s{sT+2}, s{sW}, 0x10002
        s_lshl_b32 s{sT+2}, s{sT+2}, 4
        s_add_u32 s{sT+1}, s{sT+1}, s{sT+2}
        v_add_u32 v{vRow}, s{sT+1}, v{vL16}
        {'' if DS else f's_mul_i32 s{sT+2}, s{sW}, {NSTR}' + chr(10) + f's_add_u32 s{sT+2}, s{sT+2}, {RECBASE}' + chr(10) + f'v_add_u32 v{vRow2}, s{sT+2}, v{vL16}'}
        s_mov_b32 s{sT+5}, 0xbfb8aa3b           ; -log2(e)
        s_add_u32 s{sOWN}, s{sW}, s{sNB}
        s_lshl_b32 s{sOWN}, s{sOWN}, 10
        """.strip().split('\n') + [f's_add_u32 s{sOWN+j}, s{sOWN}, {j*8192}' for j in range(1, 4 if DS else 5)]
        late = [x for x in late if x.strip()]
        if PRE:
            a(f"""s_cmp_eq_u32 s{sT+6}, 0
            s_cbranch_scc1 K2_MULTI
            K2_PREW:
            v_cmp_gt_u32 vcc, s{sT+7}, v49
            s_setprio {opt('pp', 0)}
            s_and_b32 s{sT+8}, vcc_lo, 0xff
            s_cbranch_scc1 K2_PRES""")
            self.ool(f'K2_PRES:\ns_sub_u32 s{sSPIN}, s{sSPIN}, 1\ns_cbranch_scc1 K2_END\nds_read_b32 v49, v48\ns_waitcnt lgkmcnt(0)\ns_branch K2_PREW')
            stamp(a, 8)
        elif SB:
            stamp(a, 8)
            a(f'v_readfirstlane_b32 s{sT+7}, v57\ns_cmp_ge_u32 s{sT+7}, {opt("sbt", 6)}\ns_cbranch_scc1 K2_ARRL')
            for x in rest: a(x)
            a('s_barrier\ns_branch K2_ARRG\nK2_ARRL:\ns_barrier')
            for x in rest: a(x)
            a('K2_ARRG:')
            stamp(a, 9)
            a(f's_cmp_eq_u32 s{sT+6}, 0\ns_cbranch_scc1 K2_MULTI')
        else:
            stamp(a, 8); a('s_barrier'); stamp(a, 9)
            a(f's_cmp_eq_u32 s{sT+6}, 0\ns_cbranch_scc1 K2_MULTI')
        part = {}
        for g in range(3):
            def ad(ph, row, hh, packed=False):
                o = self.SROW[row]*128 + hh*64
                if g < 2: return (vP1, g*16*NSTR + o) if ph else (vP0, g*3072 + o)
                return ((vQ1a if packed else vP1+2), o) if ph else ((vQ0a if packed else vQ0), 4*1536 + o)
            for ph in range(2):
                part[g, ph, 0] = [(16*g, ph*4 + rs*2 + hh) + ad(ph, rs, hh) for rs in range(2) for hh in range(2)]
                part[g, ph, 1] = [(16*g + 4 + 4*j, 8 + ph*6 + path*2 + hh) + ad(ph, 2 + 3*j + path, hh, j == 0) for path in range(3) for hh in range(2) for j in range(3 if g < 2 else 2)]
        seq = [(g, ph, o) for g in range(3) for o in range(2) for ph in range(2)]
        if PRE: seq = [(0,1,0), (1,1,0), (0,1,1), (1,1,1), (0,0,0), (1,0,0), (0,0,1), (1,0,1)] + seq[8:]
        GF = opt('gf', 1) and not PRE
        if GF: seq = [(g, ph, 0) for g in range(3) for ph in range(2)] + [(g, ph, 1) for g in range(3) for ph in range(2)]
        steps = [x for k in seq for x in part[k]]
        if GF and opt('il', 0): steps[:24] = [part[g, ph, 0][i] for ph in range(2) for i in range(4) for g in range(3)]
        for path in range(3): assert self.SROW[8 + path] == self.SROW[2 + path] + 1
        NB = 12; D = 10
        def epi(g, part=3):
            c = 16*g; o = OP + 8*(g & 1); s = []; tp = 204 + 4*g; o0 = 220 if g == 2 else o
            if part & 1:
                for r in range(4): s.append(f'v_mul_f32 v{tp+r}, s{sT+5}, v{c+r}')
                for r in range(4): s.append(f'v_exp_f32 v{tp+r}, v{tp+r}')
                for r in range(4): s.append(f'v_add_f32 v{tp+r}, 1.0, v{tp+r}')
                for r in range(4): s.append(f'v_rcp_f32 v{tp+r}, v{tp+r}')
                s += [f'v_cvt_pk_bf16_f32 v{o0}, v{c}, v{c+1}', f'v_cvt_pk_bf16_f32 v{o0+1}, v{c+2}, v{c+3}']
            if part & 2:
                for j in range(3 if g < 2 else 2):
                    for r in range(4): s.append(f'v_mul_f32 v{c+4+4*j+r}, v{c+4+4*j+r}, v{tp+r}')
                    s += [f'v_cvt_pk_bf16_f32 v{o+2+2*j}, v{c+4+4*j}, v{c+5+4*j}', f'v_cvt_pk_bf16_f32 v{o+3+2*j}, v{c+6+4*j}, v{c+7+4*j}']
            return s
        def stage(g, part=3):
            o = OP + 8*(g & 1)
            if g < 2: w = [(rt, vSt, g*3072) for rt in range(4)]
            else: w = [(0, vS2, 0), (1, vS3, 0), (2, vS2, 0)]
            src = lambda rt: 220 if (g, rt) == (2, 0) else o + 2*rt
            if g == 2 and DS: return [f'buffer_store_dwordx2 v[{src(rt)}:{src(rt)+1}], v{r}, s[{sOUT}:{sOUT+3}], 0 offen offset:{rt*256} {mod("outst2","sc1")}' for rt, r, b in w if part & (2 if rt else 1)]
            return [(f'ds_write_b64 v{r}, v[{src(rt)}:{src(rt)+1}] offset:{b + rt*256}', [(f'w{g}', False)]) for rt, r, b in w if part & (2 if rt else 1)]
        def rowread(g):
            if g == 2: return [(f'ds_read_b128 v[200:203], v{vRow2}', [('r2', False)])]
            return [(f'ds_read_b128 v[{192+4*(j&1)}:{195+4*(j&1)}], v{vRow} offset:{j*1536}', [(f'r{g}', False)]) for j in (2*g, 2*g+1)]
        def rowstore(g):
            s = [('wait', f'r{g}')]
            for j in ((2*g, 2*g+1) if g < 2 else (4,)):
                b = 192 + 4*(j & 1) if g < 2 else 200
                s += [f'buffer_store_dwordx4 v[{b}:{b+3}], v{vL16}, s[{sOUT}:{sOUT+3}], s{sOWN+j} offen {mod("outst","sc1")}']
            return s
        def gemm(lg, extra):
            def rd(k):
                c, f, r, o = steps[k]
                b = 48 + 4*(k % NB)
                self.emit([(f'ds_read_b128 v[{b}:{b+3}], v{r} offset:{o}', [(f'k{k}', False)])], lg)
            D0 = opt('d0', D); nxt = D0
            for k in range(D0): rd(k)
            seen = [-1]; started = set()
            for k in range(len(steps)):
                c, f, r, o = steps[k]
                for _ in range(2):
                    if nxt <= k + D and nxt < len(steps): rd(nxt); nxt += 1
                vm = None
                if order.index(f) > seen[0]: seen[0] = order.index(f); vm = 19 - seen[0]
                kk = min(k + 1, len(steps) - 1) if (opt('w2', 1) and k % 2 == 0) else k
                self.emit([('wait', f'k{kk}', vm)], lg)
                b = 48 + 4*(k % NB)
                cin = f'v[{c}:{c+3}]' if c in started else '0'; started.add(c)
                a(f'v_mfma_f32_16x16x32_bf16 v[{c}:{c+3}], v[{self.sreg(f)}:{self.sreg(f)+3}], v[{b}:{b+3}], {cin}')
                self.emit(extra.get(k, []), lg)
        lg = LG(a); extra = {}
        def spread(items, k0, k1):
            for i, x in enumerate(items): extra.setdefault(k0 + i*(k1 - k0 + 1)//len(items), []).append(x)
        spread(late, 2, 8)
        if self.padx('T2', 'K2_HOP'): extra.setdefault(opt('t2k', 41), []).append(self.padx('T2', 'K2_HOP'))
        b0 = opt('b0', 72 if PRE else 62 if GF else 46); e0 = opt('e0', 84 if PRE else 80 if GF else 64); b1 = opt('b1', 86 if DS else 98 if GF else 90); r0 = opt('r0', 92 if DS else 104 if GF else 98); e1 = opt('e1', 108 if DS else 113 if GF else 108)
        b2 = opt('b2', 113); r1 = opt('r1', 118); assert GF or not DS
        bA = min(opt('bA', 33), 44 - D - 1)
        if PRE:
            extra.setdefault(bA, []).extend(([f's_memtime s[{76+2*9}:{77+2*9}]'] if 0 else []) + ['s_barrier'] + ([f'{"s_memtime" if opt("cyc", False) else "s_memrealtime"} s[94:95]'] if PROF else []))
            spread(epi(0, 1), 50, opt('g0', 60))
            spread(epi(1, 1), opt('g0', 60) + 1, opt('g1', 71))
            extra.setdefault(b0, []).append('s_barrier')
            spread(epi(0, 2), 72, e0)
            extra.setdefault(e0 + 1, []).extend(stage(0))
        elif GF:
            il = opt('il', 0); g0 = opt('g0', 36 if il else 26); g1 = opt('g1', 47 if il else 42)
            spread(epi(0, 1), 25 if il else 11, g0); spread(epi(1, 1), g0 + 1, g1); spread(epi(2, 1), g1 + 1, opt('g2', 58))
            extra.setdefault(b0, []).append('s_barrier')
            spread(epi(0, 2), 60 + 3, e0)
            extra.setdefault(e0 + 1, []).extend(stage(0) + stage(2, 1))
        else:
            spread(epi(0, 1), 12, 40)
            if not opt('nob0', 0): extra.setdefault(b0, []).append('s_barrier')
            spread(epi(0, 2), 44 + 3, e0)
            extra.setdefault(e0 + 1, []).extend(stage(0))
            spread(epi(1, 1), e0 + 2, 86)
        extra.setdefault(b1, []).extend([('wait', 'w2' if (GF and not DS) else 'w0')] + ([] if opt('nob1', 0) else ['s_barrier']) + rowread(0))
        spread(epi(1, 2), (96 if GF else 88) + 3, e1)
        extra.setdefault(r0, []).extend(rowstore(0))
        extra.setdefault(e1 + 1, []).extend(stage(1))
        if DS:
            extra.setdefault(b2, []).extend([('wait', 'w1'), 's_barrier'] + rowread(1))
            extra.setdefault(r1, []).extend(rowstore(1))
        if not GF:
            spread(epi(2, 1), max(e1 - 8, 100), 117)
            extra.setdefault(118, []).extend(stage(2, 1))
        if opt('gp', 1):
            for k0, k1 in ((bA if PRE else -1, b0), (b0, b1), (b1, b2 if DS else len(steps))):
                fr = [float(x) for x in opt('gpf', '0.3_0.6_0.87').split('_')]
                if k0 >= 0: extra.setdefault(k0, []).append('s_setprio 3')
                for i, f in enumerate(fr): extra.setdefault(k0 + int((k1 - k0)*f), []).append(f's_setprio {2-i}')
            if not PRE: a('s_setprio 3')
        if PROFT and not PFD:
            for i, k in enumerate((0, 23, 59, 81, 97, 113) if GF else (0, 8, 43, 66, 87, 104)): extra.setdefault(k, []).append(f'{"s_memtime" if opt("cyc", False) else "s_memrealtime"} s[{78+2*i}:{79+2*i}]')
        if opt('noepi', 0): extra = {k: [x for x in v if not (isinstance(x, str) and x.startswith(('v_cvt', 'v_exp', 'v_rcp', 'v_mul_f32', 'v_add_f32')[:opt('noepi', 0)]))] for k, v in extra.items()}
        gemm(lg, extra)
        stamp(a, 10)
        if DS:
            e = epi(2, 2); st = stage(2, 2)
            self.emit(e[:6] + st[:1] + e[6:] + st[1:], lg)
        else:
            self.emit(epi(2, 2) + stage(2, 2) + [('wait', 'w2'), 's_barrier'] + rowread(1) + rowread(2) + rowstore(1), lg)
            a(f'K2_LASTROW:\ns_add_u32 s{sT+1}, s{sW}, 32\ns_cmp_ge_u32 s{sT+1}, s{sNC}\ns_cbranch_scc1 K2_FIN\ns_waitcnt lgkmcnt(0)')
            self.emit(rowstore(2), LG(a))
        a('K2_FIN:')
        if PROF:
            stamp(a, 11); a('s_waitcnt vmcnt(0)'); stamp(a, 12); stamp_out(a, 13, 1, sW, sB, sWS)
        a('s_endpgm')
        a('K2_MULTI:' + ('\ns_barrier' if PRE else ''))
        lg = LG(a)
        gemm(lg, {})
        a(f"""
        s_lshl_b32 s{sT+2}, s{sB}, 9
        s_lshl_b32 s{sT+3}, s{sW}, 6
        s_add_u32 s{sT+2}, s{sT+2}, s{sT+3}
        s_mul_i32 s{sT+2}, s{sT+2}, 192
        s_add_u32 s{sT+2}, s{sT+2}, {WS_ACC}
        v_mul_u32_u24 v{vSP}, 96, v{VL2}        ; lane*192
        s_cmp_lg_u32 s{sFIRST}, 0
        s_cbranch_scc1 K2_NOACC
        """)
        for i in range(11): a(f'buffer_load_dwordx4 v[{48+4*i}:{51+4*i}], v{vSP}, {ws}, s{sT+2} offen offset:{16*i}')
        a('s_waitcnt vmcnt(0)')
        for i in range(44): a(f'v_add_f32 v{i}, v{i}, v{48+i}')
        a(f'K2_NOACC:\ns_barrier\ns_cmp_eq_u32 s{sLAST}, 0\ns_cbranch_scc1 K2_SPILL')
        self.emit(late, lg)
        for g in range(2):
            self.emit(epi(g) + stage(g) + [('wait', f'w{g}'), 's_barrier'] + rowread(g) + rowstore(g), lg)
        self.emit(epi(2) + stage(2) + ([] if DS else [('wait', 'w2'), 's_barrier'] + rowread(2)), lg)
        a(f's_branch {"K2_FIN" if DS else "K2_LASTROW"}\nK2_SPILL:')
        for i in range(11): a(f'buffer_store_dwordx4 v[{4*i}:{4*i+3}], v{vSP}, {ws}, s{sT+2} offen offset:{16*i}')
        a(f"""
        s_mov_b32 s{sFIRST}, 0
        s_waitcnt vmcnt(0)
        s_cmp_lt_u32 s{sRND}, s{sR}
        s_cbranch_scc1 K2_LOAD
        s_add_u32 s{sJ0}, s{sJ0}, {2*U}
        s_branch K2_WINDOW
        """)

HEADER = '''; Kernarg layout for this problem (96 bytes, ptrs only, base s[0:1]):
'''
def kd(name, vgpr):
    return f'''.amdhsa_kernel {name}
  .amdhsa_next_free_vgpr {vgpr}
  .amdhsa_next_free_sgpr {102}
  .amdhsa_accum_offset {(vgpr+3)//4*4}
  .amdhsa_group_segment_fixed_size 0
  .amdhsa_kernarg_size 96
  .amdhsa_user_sgpr_count 2
  .amdhsa_user_sgpr_kernarg_segment_ptr 1
  .amdhsa_system_sgpr_workgroup_id_x 1
  .amdhsa_float_denorm_mode_32 3
.end_amdhsa_kernel
'''
def main():
    ks = []
    l2, v2 = K2().gen(); ks.append((NAME + '_kernel', fix_hazards(l2), v2))
    s = HEADER
    s += f'; @launch grid=(256,1,1) block=(512,1,1) lds={K2_LDS}\n'
    s += '.amdgcn_target "amdgcn-amd-amdhsa--gfx950"\n.text\n'
    for name, l, v in ks:
        s += f'.globl {name}\n.p2align 8\n.type {name},@function\n{name}:\n'
        s += '\n'.join((x if x.endswith(':') else '    ' + x) for x in l) + '\n'
    s += '.section .rodata,"a"\n' + ''.join('.p2align 6\n' + kd(name, v) for name, l, v in ks)
    out = sys.argv[1] if len(sys.argv) > 1 else f'/code/{NAME}.s'
    open(out, 'w').write(s)
    print('wrote', out, len(s), 'bytes')
main()
```

```python
import sys, os
sys.path.insert(0, os.path.dirname(os.path.abspath(__file__)))
from asmlib import Asm, fix_hazards

NAME = 'standalone__tensor_product_equiv_equiformer__graph'
N = 10000; E = 320000
NCH = 250; CH = E // NCH
CSTR = CH * 16 + 128
TSTR = 1024 + 128
WS_REC = 0
WS_TBL = 0x0600000
WS_STAB = 0x06A0000
WS_WTAB = 0x06C8000
WS_FLG = 0x06D8000
WS_EPO = WS_FLG + 2048
WS_RANK = 0x0700000
WS_PROF = 0x0900000
WS_ACC = 0x0A00000
WS_SIZE = 0x2400000
assert NCH * CSTR <= WS_TBL and WS_TBL + NCH * TSTR <= WS_STAB and WS_ACC + 256*512*192 <= WS_SIZE
OPT = dict(a.split('=') for a in sys.argv[2:]) if len(sys.argv) > 2 else {}
def opt(k, d): return type(d)(OPT.get(k, d)) if not isinstance(d, bool) else bool(int(OPT.get(k, d)))
def mod(k, d): return opt(k, d).replace('_', ' ')

PMUL = 214749; SPL = opt('spl', 40); PCUT = (1 << 24) - (SPL*8*(1 << 24) + 312)//625
for d in range(N):
    p_ = (d*8)//625; l_ = d - (625*p_ + 7)//8
    assert (d*PMUL) >> 24 == p_ and (((d*PMUL) & 0xffffff) + PCUT) >> 24 == (l_ >= SPL) and l_ - SPL*(l_ >= SPL) < 40
PROF = opt('prof', False)
FUSE = True
SEG = opt('seg', False)
def seg(i): return [f's_memtime s[{76+2*i}:{77+2*i}]'] if SEG else []
PROFS = opt('profs', False)
def sstamp(a, i):
    if PROFS: a(f's_memrealtime s[{76+2*i}:{77+2*i}]')
PROFT = opt('proft', False)

PROFP = opt('profp', False)
PD = opt('pd', 4)
FL = opt('fl', 0)
def pstamp(i): return f's_memrealtime s[{76+2*i}:{77+2*i}]' if PROFP else ''
def stamp(a, i, t=False):
    if PROFP and i in (5, 7, 8, 9, 10, 11): return
    if opt('profu', 0):
        if i in (1, 2, 3, 4, 6, 7): return
    if opt('clk', 0):
        if i == 11 and opt('clk', 0) == 1: a('s_getreg_b32 s98, hwreg(HW_REG_XCC_ID)')
        if i in (7, 8, 10, 11) or (i == 1 and opt('clk', 0) == 2): return
        cm = {4: 7, 5: 8, 9: 10} if opt('clk', 0) == 1 else {0: 1, 6: 11, 3: 10}
        if i in cm: a(f's_memtime s[{76+2*cm[i]}:{77+2*cm[i]}]')
    if PROFT and 1 <= i <= 6 and not t: return
    if PROFS and i in (1, 3, 5, 11, 12): return
    if PROF and not SEG: a(f'{"s_memtime" if opt("cyc", False) else "s_memrealtime"} s[{76+2*i}:{77+2*i}]')
def stamp_out(a, n, kern, swave, swg, srd_s):
    if not PROF: return
    if opt('dbgout', -1) >= 0:
        l = f'DBG_{kern}'
        a(f's_cmp_lg_u32 s{swg}, {opt("dbgout", -1)}\ns_cbranch_scc1 {l}\ns_cmp_lg_u32 s{swave}, 0\ns_cbranch_scc1 {l}')
        a(f's_load_dwordx2 s[58:59], s[0:1], 80\ns_waitcnt lgkmcnt(0)\ns_add_u32 s58, s58, {512*(1-kern)*opt("dbgk1", 0)}\ns_addc_u32 s59, s59, 0')
        srd(a, 60, 58, 256)
        a('s_mov_b64 exec, 1\nv_mov_b32 v1, 0')
        for i, o in ([(0, 0), (5, 14), (2, 15)] if kern == 0 else [(i, 1+i) for i in range(13)]):
            a(f'v_mov_b32 v2, s{76+2*i}\nbuffer_store_dword v2, v1, s[60:63], 0 offen offset:{4*o}')
        a(f's_mov_b64 exec, -1\n{l}:')
        return
    a('s_waitcnt lgkmcnt(0)')
    a(f's_lshl_b32 s67, s{swg}, 4\ns_add_u32 s67, s67, s{swave}\ns_lshl_b32 s67, s67, 6\ns_add_u32 s67, s67, {WS_PROF + kern*256*16*64}')
    a('s_mov_b64 exec, 1\nv_mov_b32 v1, 0')
    for i in range(n):
        a(f'v_mov_b32 v2, s{76+2*i if not SEG else 96+min(i,5)}\nbuffer_store_dword v2, v1, s[{srd_s}:{srd_s+3}], s67 offen offset:{4*i}')
    a('s_mov_b64 exec, -1')

def srd(a, s, ptr, nbytes):
    a(f's_mov_b32 s{s}, s{ptr}\ns_and_b32 s{s+1}, s{ptr+1}, 0xffff\ns_mov_b32 s{s+2}, {nbytes}\ns_mov_b32 s{s+3}, 0x20000')

def scan(a, v, op='v_add_u32'):
    for sh in (1, 2, 4, 8):
        a(f'{op}_dpp v{v}, v{v}, v{v} row_shr:{sh} row_mask:0xf bank_mask:0xf bound_ctrl:0')
    a(f'{op}_dpp v{v}, v{v}, v{v} row_bcast:15 row_mask:0xa bank_mask:0xf')
    a(f'{op}_dpp v{v}, v{v}, v{v} row_bcast:31 row_mask:0xc bank_mask:0xf')

K1_T = CH // 4
K1_LDS = 2048 + CH * 16
def weight_loads(a):
    a(f'''
    v_and_b32 v1, 15, v8
    v_lshrrev_b32 v3, 4, v8
    s_cmp_ge_u32 s2, 160
    s_cbranch_scc1 K1_WT
    s_cmp_ge_u32 s2, 64
    s_cbranch_scc1 K1_S1
    s_lshr_b32 s24, s2, 3
    s_and_b32 s25, s2, 7
    s_lshr_b32 s26, s25, 2
    s_bfe_u32 s27, s25, 0x10001
    s_and_b32 s28, s25, 1
    ''')
    srd(a, 60, 92, 256*128*2)
    a(f'''
    s_branch K1_SC
    K1_S1:
    ; S1: g2 = g-64; w = g2/12, f2 = g2%12 : ph = f2/6, path = (f2%6)>>1, hh = f2&1
    s_sub_u32 s29, s2, 64
    s_mul_i32 s24, s29, 43
    s_lshr_b32 s24, s24, 9
    s_mul_i32 s25, s24, 12
    s_sub_u32 s25, s29, s25
    s_cmp_ge_u32 s25, 6
    s_cselect_b32 s26, 1, 0
    s_mul_i32 s27, s26, 6
    s_sub_u32 s27, s25, s27
    s_lshr_b32 s27, s27, 1
    s_and_b32 s28, s25, 1
    s_add_u32 s25, s25, 8
    ''')
    for g2 in range(96): assert (g2*43) >> 9 == g2 // 12
    srd(a, 60, 94, 384*128*2)
    a(f'''
    K1_SC:
    s_lshl_b32 s27, s27, 7
    s_lshl_b32 s26, s26, 6
    s_lshl_b32 s28, s28, 4
    s_add_u32 s27, s27, s26
    s_add_u32 s27, s27, s28
    s_lshl_b32 s27, s27, 8
    s_lshl_b32 s26, s24, 5
    s_add_u32 s27, s27, s26
    s_add_u32 s29, s27, 8192
    v_lshlrev_b32 v3, 10, v3
    v_lshl_add_u32 v3, v1, 1, v3
    ''')
    for e in range(8): a(f'buffer_load_ushort v{64+e}, v3, s[60:63], s{29 if e & 1 else 27} offen offset:{(e >> 1)*256}')
    a(f'''
    s_mul_i32 s24, s24, 20
    s_add_u32 s24, s24, s25
    s_lshl_b32 s24, s24, 10
    s_add_u32 s24, s24, {WS_STAB}
    s_branch K1_GO
    K1_WT:
    s_sub_u32 s24, s2, 160
    s_lshr_b32 s27, s24, 1
    s_and_b32 s28, s24, 1
    s_lshl_b32 s27, s27, 8
    s_lshl_b32 s28, s28, 6
    s_add_u32 s27, s27, s28
    s_add_u32 s29, s27, {8*1280}
    ''')
    srd(a, 60, 90, 16*640*2)
    a(f'''
    v_and_b32 v1, 31, v8
    v_lshrrev_b32 v3, 5, v8
    v_mul_u32_u24 v3, {4*1280}, v3
    v_lshl_add_u32 v3, v1, 1, v3
    ''')
    for j in range(8): a(f'buffer_load_ushort v{64+j}, v3, s[60:63], s{29 if j >> 2 else 27} offen offset:{(j & 3)*1280}')
    a(f'''
    s_lshl_b32 s24, s24, 10
    s_add_u32 s24, s24, {WS_WTAB}
    ''')

def sort_rank(a, pad):
    for j in range(4):
        a(f"""v_mul_u32_u24 v{28+j}, s58, v{12+j}
        v_and_b32 v{40+j}, 0xffffff, v{28+j}
        v_lshrrev_b32 v{32+j}, 26, v{28+j}
        v_add_u32 v{40+j}, {PCUT}, v{40+j}
        v_bfe_u32 v{36+j}, v{28+j}, 24, 2
        v_lshlrev_b32 v{32+j}, 2, v{32+j}
        v_lshrrev_b32 v{40+j}, 24, v{40+j}
        v_lshl_or_b32 v{32+j}, v{36+j}, 8, v{32+j}
        v_lshl_or_b32 v{32+j}, v{40+j}, 7, v{32+j}
        ds_add_rtn_u32 v{36+j}, v{32+j}, v7""")
    for j in range(4):
        a(f'v_lshrrev_b32 v{28+j}, 24, v{28+j}\nv_mad_u32_u24 v{28+j}, v{28+j}, s59, 7\nv_lshrrev_b32 v{28+j}, 3, v{28+j}\nv_mad_u32_u24 v{28+j}, v{40+j}, {SPL}, v{28+j}\nv_sub_u32 v{28+j}, v{12+j}, v{28+j}')
        a(f'v_add_u32 v{12+j}, {32*j}, v3\nv_lshl_or_b32 v{28+j}, v{28+j}, 26, v{12+j}')
    a(f'''
    {pad}
    v_mov_b32 v59, {NONCE}
    s_mul_i32 s65, s2, {TSTR}
    s_add_u32 s65, s65, {WS_TBL}
    s_mul_i32 s64, s2, {CSTR}
    s_waitcnt lgkmcnt(0)
    s_barrier
    ''')
    sstamp(a, 11)
    a(f'''
    ds_read_b128 v[40:43], v9
    ds_read_b32 v59, v59
    s_waitcnt lgkmcnt(1)
    v_add_u32 v45, v40, v41
    v_add_u32 v46, v45, v42
    v_add_u32 v47, v46, v43
    v_mov_b32 v58, v47
    ''')
    scan(a, 58)
    a(f'''
    v_sub_u32 v48, v58, v47                 ; exclusive
    v_add_u32 v49, v48, v40
    v_add_u32 v50, v48, v45
    v_add_u32 v51, v48, v46
    ds_write_b128 v9, v[48:51] offset:1024
    s_waitcnt {'' if opt('ep', 1) else 'vmcnt(0) '}lgkmcnt(1)
    s_cmp_lg_u32 s{sW}, 4
    s_cbranch_scc1 KS_NOPUB
    v_lshl_or_b32 v56, v49, 11, v48
    v_lshl_or_b32 v57, v51, 11, v50
    v_lshl_or_b32 v56, v59, 22, v56
    v_lshl_or_b32 v57, v59, 22, v57
    buffer_store_dwordx4 v[56:59], v9, s[{sWS}:{sWS+3}], s65 offen {mod('tabst', 'sc1')}
    KS_NOPUB:
''')
    sstamp(a, 12)
    return ['s_cbranch_scc1 KS_PUB0\ns_waitcnt vmcnt(1)\ns_branch KS_PUB1\nKS_PUB0:\ns_waitcnt vmcnt(0)\nKS_PUB1:'] if opt('ep', 1) else []

def sort_emit(a, st):
    a('v_and_b32 v60, 0xffff, v59\nv_and_b32 v61, 0xffff0000, v59\ns_mov_b32 s58, 0xffff0000')
    for j in range(4):
        b = 20 + 3*(j >> 1)
        if j & 1: a(f'v_alignbit_b32 v{40+4*j}, v{b+2}, v{b+1}, 16\nv_and_or_b32 v{41+4*j}, v{b+2}, s58, v60\nv_xor_b32 v{40+4*j}, 0x80000000, v{40+4*j}')
        else: a(f'v_xor_b32 v{40+4*j}, 0x80000000, v{b}\nv_lshl_or_b32 v{41+4*j}, v{b+1}, 16, v60')
        a(f'v_or_b32 v{42+4*j}, v61, v{16+j}\nv_mov_b32 v{43+4*j}, v{28+j}')
    a('s_waitcnt lgkmcnt(0)')
    for j in range(4):
        a(f'v_add_lshl_u32 v{32+j}, v{32+j}, v{36+j}, 4\nds_write_b128 v{32+j}, v[{40+4*j}:{43+4*j}] offset:2048')
    a(f'v_mov_b32 v62, {FLIP}\ns_waitcnt lgkmcnt(0)\ns_barrier\nds_read_b32 v62, v62')
    for i in range(4): a(f'ds_read_b128 v[{12+4*i}:{15+4*i}], v5 offset:{2048 + i*K1_T*16}')
    for i in range(4):
        a(f's_waitcnt lgkmcnt({3-i})')
        a(f'buffer_store_dwordx4 v[{12+4*i}:{15+4*i}], v5, s[8:11], s64 offen {st}')
        if i < 3: a(f's_add_u32 s64, s64, {K1_T*16}')

NSTR = 2080
OA = 512
E4 = 48*32 - 4
RECBASE = 65536
ZR = opt('zr', 0)
NPOOL = 5 if ZR else 8
ZERO = RECBASE + 40 * NSTR + NPOOL*512
W1L = ZERO + (1536 if ZR else 0)
DL = 0xf0f0f0f0
MISC = W1L + 10240
HIST = MISC; PROG = MISC + 192; CNT = MISC + 224; OKW = MISC + 228; FLAG = MISC + 232; ARR = MISC + 236; SCR = MISC + 240; NULLSRC = MISC + 256; NONCE = MISC + 384; FLIP = MISC + 388
NULLBASE = NULLSRC
K2_LDS = 163840
assert FLIP + 4 <= K2_LDS
U = 10
ACC = 0; AR = 64; WR = 96; BR = 176; P0 = 192; G = 222
MG = opt('mg', 2)
VEO, VH16, T2, T3 = (232, 233, 42, 43) if MG == 2 else (230, 231, 232, 233); PW = 234
VB0 = 246; VB1 = 247; VLG = 248; VAO = 249; VYO = 250; VSO = 251; VL2 = 252; VTAB = 253; VT0 = 254; VT1 = 255; VPA = VEO
sX = 4; sWS = 8; sOUT = 12; sEA = 16
sW = 20; sNB = 21; sNC = 22; sJ0 = 23; sRND = 24; sR = 25; sLIM = 26; sMORE = 27; sFIRST = 28
sCB = 29; sC4 = 30; sCP = 31; sNBs = 48; sNK = 33; sNPH = 34; sNP = 35; sNV = 36
sRING = 37; sJ = 38; s1024 = 39; sOWN = 40; sNX = 44; sSO = 48; sPROGW = 52; sPROG = 53; sB = 54; sLAST = 55
sEX = 56
sT = 58
sM0 = 68
sX2 = 72
sPP = 32
sN4 = 3
sTAG = 2
sTK = 0
sSPIN = 27

class Lay:
    def __init__(self, ph, nK=2):
        self.wide = MG > 1 - ph; self.merge = self.wide and nK < 4
        w = self.wide
        self.R = dict(a=PW, b=PW+2, c=PW+4, d=PW+6, e=46 if w else PW+8)
        self.VPA = T3 if (w and MG == 1) else VEO; self.VH = VT1 if (w and MG == 1) else VH16; self.G3 = 44 if w else G + 6
        self.one = VSO if w else VT1
    def win(self, q, t, u):
        if not self.wide: return ACC + 16*[(0,0), (1,0), (0,1), (1,1)].index((t, u))
        X = 40*u
        if self.merge and q >= 2: return X + 24 if t == 0 else X + (0 if q == 2 else 8)
        return X + 8 + 16*t
    def order(self, q):
        if not self.merge or q == 0: return [(0,0), (1,0), (0,1), (1,1)]
        return [(1,0), (0,0), (0,1), (1,1)] if q == 1 else [(0,0), (1,0), (1,1), (0,1)]
    def keepc(self, q, t): return self.merge and q == 3 and t == 1
    def A(self, s, t):
        if not self.wide: return AR + s*8 + t*4
        return (80 + 4*t, 88 + 4*t, (228, 242)[t], 4*t)[s]
    def raw(self, s): return (ACC + 4*s) if not self.wide else (0, 4, 8, 12)[s]
    def y(self, s): return ACC + 16 + s if not self.wide else 40 + s
    def un(self, s): return ACC + 20 + (s & 1)*8 if not self.wide else 16 + (s & 1)*8
    def tmp(self): return ACC + 36 if not self.wide else 32
    def chains(self, q):
        if q == 0: return [(0,'a','new'), (2,'b','new'), (2,'c','new'), (2,'d','new')]
        if self.merge: return {1: [(3,'a','new'), None, (4,'b','new'), (4,'c','new')],
                               2: [(3,'d','new'), (4,'b','acc'), (1,'a','new'), None],
                               3: [(3,'b','new'), (4,'c','neg'), (4,'d','new'), (1,'a','neg')]}[q]
        return {1: [(3,'e','new'), (1,'a','new'), (4,'b','new'), (4,'c','new')],
                2: [(3,'e','new'), (4,'b','acc'), (1,'a','neg'), (4,'d','new')],
                3: [(3,'b','new'), (4,'c','neg'), (4,'d','acc'), (1,'a','neg')]}[q]
    def pairs(self, q):
        m = self.merge
        return {0: [(0,'a','b',1)], 1: [(1,'a' if m else 'e','d',1)], 2: [(4,'b','d' if m else 'e',1)], 3: [(2,'b','a',1), (3,'d','c',-1)]}[q]
def Wreg(p, u): return WR + p*16 + u*8

def weave(x, y):
    o = []
    for i in range(max(len(x), len(y))):
        o += x[i:i+1] + y[i:i+1]
    return o

class LG:
    def __init__(self, a, q=()): self.a = a; self.q = list(q)
    def issue(self, tag, optional=False): self.q.append((tag, optional))
    def waitline(self, tag):
        idx = [i for i, (t, o) in enumerate(self.q) if t == tag]
        if not idx: return None
        y = sum(1 for (t, o) in self.q[idx[-1]+1:] if not o)
        self.q = self.q[idx[-1]+1:]
        return f's_waitcnt lgkmcnt({min(y, 15)})'

class K2:
    def __init__(self):
        self.a = Asm()
        self.uid = 0
        self.outline = []
    def lab(self, s):
        self.uid += 1
        return f'K2_{s}_{self.uid}'

    def dma(self, slot, greg, soff):
        return [f's_mov_b32 m0, s{sM0+slot}',
                f'buffer_load_dwordx4 v{greg}, s[{sX}:{sX+3}], s{soff} offen {mod("xld", "sc1")} lds',
                f'buffer_load_dwordx4 v{greg+1}, s[{sX2}:{sX2+3}], s{soff} offen offset:1024 {mod("xld", "sc1")} lds']
    def ndma(self, slot, t):
        if t < 3: return self.dma(slot, G + 2*t, sNX + t)
        four = self.lab('g4'); back = self.lab('back'); d = self.dma(slot, G + 2, sNX + 3); e = self.dma(slot, self.L.G3, sNX + 3)
        self.ool(f'{four}:\ns_add_u32 s{sSO+3}, s{sNBs}, 384\n' + '\n'.join(x if isinstance(x, str) else x[0] for x in self.sread(3)) + '\ns_waitcnt lgkmcnt(0)\n'
                 + '\n'.join(self.gmad(3)[1:] + e[1:]) + f'\ns_branch {back}')
        return [d[0], f's_cmp_eq_u32 s{sNK}, 4\ns_cbranch_scc1 {four}\n{d[1]}', f'{d[2]}\n{back}:']
    def bread(self, item, half=False):
        return [(f'ds_read_b64_tr_b16 v[{BR + (item & 1)*8 + u*4 + r*2}:{BR + (item & 1)*8 + u*4 + r*2 + 1}], v{VB0+u} offset:{(item & 3)*2048 + r*1024}', [('B', False)])
                for u in range(2) for r in range(1 if half else 2)]
    def greg(self, t): return self.L.G3 if t == 3 else G + 2*t
    def sread(self, t):
        g = self.greg(t)
        return [f'v_add_u32 v{g}, s{sSO+t}, v{VSO}', (f'ds_read2_b32 v[{g}:{g+1}], v{g} offset0:1 offset1:3', [(f'S{t}', False)])]
    def gmad(self, t):
        g = self.greg(t)
        return [('wait', f'S{t}')] + [f'v_mad_u32_u16 v{g+r}, v{g+r}, s{s1024}, v{VLG} op_sel:[1,0,0,0]' for r in range(2)]
    def ool(self, text): self.outline.append(text)
    def qregs(self):
        assert CNT == PROG + 32
        return [f'v_lshl_add_u32 v{VT0}, v{VL2}, 1, s{sPROG}']
    def atomic(self):
        return [(f's_mov_b64 exec, 0x1ff\nds_add_rtn_u32 v{T2}, v{VT0}, v{VSO}\ns_mov_b64 exec, -1', [('C', False)])]
    def claimed(self, ph):
        nul = self.lab('nul'); spin = self.lab('spin'); chk = self.lab('chk'); back = self.lab('back')
        self.ool(f'{nul}:\ns_mov_b32 s{sN4 if ph else sT}, {NULLBASE | (3 << 18) if ph else 63}\ns_mov_b32 s{sNV}, 0\ns_branch {back}')
        self.ool(f'{spin}:\ns_sub_u32 s{sSPIN}, s{sSPIN}, 1\ns_cbranch_scc1 K2_END\nds_read_b32 v{T2}, v{VT0}\ns_waitcnt lgkmcnt(0)\ns_branch {chk}')
        return [f'v_readlane_b32 s{sT}, v{T2}, 8',
                f"""s_lshr_b32 s{sT}, s{sT}, 4
                s_cmp_lt_u32 s{sT}, s{sNC}
                s_cbranch_scc0 {nul}
                v_readlane_b32 s{sN4}, v{VTAB}, s{sT}
                s_bfe_u32 s{sT}, s{sN4}, 0x60016
                s_and_b32 s{sT+1}, s{sT}, 7
                s_lshr_b32 s{sT+2}, s{sT}, 3
                {chk}:
                v_readlane_b32 s{sT+3}, v{T2}, s{sT+1}
                s_nop 0
                s_cmp_gt_u32 s{sT+3}, s{sT+2}
                s_cbranch_scc0 {spin}
                {back}:"""]
    def claim0(self):
        dyn = self.lab('dyn'); back = self.lab('back')
        o = self.qregs() + [x if isinstance(x, str) else x[0] for x in self.atomic()] + ['s_waitcnt lgkmcnt(0)'] + self.claimed(0)
        self.ool(f'{dyn}:\n' + '\n'.join(o) + f'\ns_mov_b32 s{sNPH}, 1\ns_branch {back}')
        return [f's_add_u32 s{sJ}, s{sJ}, 1', f'v_mov_b32 v{VT0}, s{sPROGW}', f'v_mov_b32 v{VT1}, s{sJ}',
                f's_lshl_b32 s{sT}, s{sJ}, 3', f's_add_u32 s{sT}, s{sT}, s{sW}',
                (f's_mov_b64 exec, 1\nds_write_b32 v{VT0}, v{VT1}\ns_mov_b64 exec, -1', [('W', False)]),
                f's_cmp_lt_u32 s{sT}, s{sNC}\ns_cbranch_scc0 {dyn}\n{back}:']
    def pooladdr(self, d, word):
        return f"""s_lshr_b32 s{d}, s{word}, 28
            s_mul_i32 s{sT+8}, s{sNC}, {NSTR}
            s_lshl_b32 s{d}, s{d}, 9
            s_add_u32 s{d}, s{d}, s{sT+8}
            s_add_u32 s{d}, s{d}, {RECBASE}"""
    def next_info(self, ph):
        rare = self.lab('rare'); back = self.lab('back'); four = self.lab('four')
        self.ool(f"""{rare}:
            s_cmp_eq_u32 s{sNK}, 4
            s_cbranch_scc1 {four}
            s_mov_b32 s{sSO+1}, s{sNBs}
            s_xor_b32 s{sNX+1}, s{sNX}, {256 + 128*((FL ^ FL >> 1) & 1)}
            s_xor_b32 s{sNX+2}, s{sNX}, {512 + 128*((FL ^ FL >> 2) & 1)}
            s_xor_b32 s{sNX+3}, s{sNX}, {768 + 128*((FL ^ FL >> 3) & 1)}
            s_branch {back}
            {four}:
            s_add_u32 s{sSO+2}, s{sNBs}, 256
            s_mov_b32 s{sNX+2}, s{sNX}
            s_mov_b32 s{sNX+3}, s{sNX}
            s_branch {back}""")
        o = ([] if ph else [f'v_readlane_b32 s{sN4}, v{VTAB}, s{sT}']) + [f's_lshl_b32 s{sNX}, s{sNPH}, 7' + (f'\ns_xor_b32 s{sNX}, s{sNX}, 128' if FL & 1 else ''),
             f's_and_b32 s{sNBs}, s{sN4}, 0x3ffff', f's_bfe_u32 s{sNK}, s{sN4}, 0x30013']
        if ph == 1: o += [f's_mov_b32 s{sNP}, s{sNBs}']
        else: o += [f's_mul_i32 s{sNP}, s{sJ}, 6', f's_cmp_eq_u32 s{sNPH}, 0\ns_cselect_b32 s{sNP}, s{sNP}, s{sNBs}']
        o += [f's_mov_b32 s{sNX+1}, s{sNX}', f's_xor_b32 s{sNX+3}, s{sNX}, {256 + 128*((FL ^ FL >> 1) & 1)}', f's_add_u32 s{sSO+1}, s{sNBs}, 128', f's_add_u32 s{sT+2}, s{sNBs}, 256',
              f's_cmp_eq_u32 s{sNK}, 3\ns_cselect_b32 s{sNX+2}, s{sNX}, s{sNX+3}\ns_cselect_b32 s{sSO+2}, s{sT+2}, s{sNBs}',
              f's_sub_u32 s{sT+2}, s{sNK}, 2\ns_cmp_lt_u32 s{sT+2}, 2\ns_cbranch_scc0 {rare}\n{back}:']
        return o
    def eread(self):
        return [f'v_add_u32 v{T3}, s{sNBs}, v{VEO}',
                (f'ds_read_b32 v{T2}, v{T3}', [('E', False)]), (f'ds_read_b32 v{T3}, v{T3} offset:1024', [('E', False)])]
    NEXTRA = 2
    def adma(self):
        dum = self.lab('dum'); four = self.lab('a4'); back = self.lab('back'); b4 = self.lab('b4')
        ea = f's[{sEA}:{sEA+3}]'; m = mod('eald', '')
        self.ool(f'{dum}:\nv_mov_b32 v{T2}, -1\ns_mov_b32 m0, {SCR}\ns_mov_b64 exec, 1\n' + f'buffer_load_dwordx4 v{T2}, {ea}, 0 offen lds\n'*2 + f's_mov_b64 exec, -1\ns_branch {back}')
        self.ool(f"""{four}:
            v_add_u32 v{VT0}, s{sNBs}, v{VEO}
            ds_read_b32 v{VT0}, v{VT0} offset:4
            {self.pooladdr(sT+7, sN4)}
            s_mov_b32 m0, s{sT+7}
            s_mov_b32 exec_hi, 0
            s_waitcnt lgkmcnt(0)
            v_or_b32 v{VT0}, v{VT0}, v{VH16}
            buffer_load_dwordx4 v{VT0}, {ea}, 0 offen {m} lds
            s_mov_b32 exec_hi, -1
            s_branch {b4}""")
        return [('wait', 'E'), f'v_or_b32 v{T2}, v{T2}, v{VH16}', f'v_or_b32 v{T3}, v{T3}, v{VH16}', f"""
        s_cmp_lg_u32 s{sNPH}, 0
        s_cbranch_scc1 {dum}
        s_cmp_eq_u32 s{sNK}, 4
        s_cbranch_scc1 {four}
        {b4}:
        s_add_u32 m0, s{sNBs}, {OA}
        s_add_u32 s{sT+7}, s{sNBs}, {OA+1024}
        buffer_load_dwordx4 v{T2}, {ea}, 0 offen {m} lds
        s_mov_b32 m0, s{sT+7}
        s_mov_b32 exec_hi, 0
        buffer_load_dwordx4 v{T3}, {ea}, 0 offen {m} lds
        s_mov_b32 exec_hi, -1
        {back}:"""]
    def apart(self, k):
        ea = f's[{sEA}:{sEA+3}]'; m = mod('eald', '')
        return f"""s_add_u32 s{sT+7}, s{sNBs}, {OA + (1024 if k == 2 else 0)}
        s_cmp_lg_u32 s{sNPH}, 0
        s_cselect_b32 m0, {SCR}, s{sT+7}
        s_cselect_b32 exec_lo, 1, {0 if k == 1 else -1}
        s_cselect_b32 exec_hi, 0, {-1 if k == 1 else 0}
        buffer_load_dwordx4 v{T3 if k == 2 else T2}, {ea}, 0 offen {m} lds
        s_mov_b64 exec, -1"""
    def adma3(self):
        four = self.lab('a4'); b4 = self.lab('b4'); ea = f's[{sEA}:{sEA+3}]'; m = mod('eald', '')
        self.ool(f"""{four}:
            s_cmp_lg_u32 s{sNPH}, 0
            s_cbranch_scc1 {b4}
            v_add_u32 v{VT0}, s{sNBs}, v{VEO}
            ds_read_b32 v{VT0}, v{VT0} offset:4
            {self.pooladdr(sT+7, sN4)}
            s_mov_b32 m0, s{sT+7}
            s_mov_b32 exec_hi, 0
            s_waitcnt lgkmcnt(0)
            v_or_b32 v{VT0}, v{VT0}, v{VH16}
            buffer_load_dwordx4 v{VT0}, {ea}, 0 offen {m} lds
            s_mov_b32 exec_hi, -1
            s_branch {b4}""")
        return [('wait', 'E'), f'v_or_b32 v{T2}, v{T2}, v{VH16}', f'v_or_b32 v{T3}, v{T3}, v{VH16}', f's_cmp_eq_u32 s{sNK}, 4\ns_cbranch_scc1 {four}\n{b4}:']
    UN = (ACC, ACC + 8, ACC + 20, ACC + 28)
    def aadd(self, v, sd):
        if not self.z: return f'v_add_u32 v{v}, s{sd}, v{v}'
        return f's_mov_b32 exec_lo, {DL}\ns_mov_b32 exec_hi, {DL}\nv_add_u32 v{v}, s{sd}, v{v}\ns_mov_b64 exec, -1'
    def areads(self, s, half=False):
        va, vy, oa, oy, o = VAO, VYO, s*512, s*128, []
        if s == 3:
            va, oa = ACC + 56, 0
            o = [self.pooladdr(sT+7, sC4) + f'\ns_sub_u32 s{sT+7}, s{sT+7}, s{sCB}\ns_sub_u32 s{sT+7}, s{sT+7}, {OA}\n' + (f'v_mov_b32 v{va}, v{VAO}\n' + self.aadd(va, sT+7) if self.z else f'v_add_u32 v{va}, s{sT+7}, v{VAO}')]
        if self.z: o += [(f'ds_read_b64_tr_b16 v[{self.UN[s]+2*m}:{self.UN[s]+2*m+1}], v{va} offset:{oa + (0, 128, 32, 160)[m]}', [(f'a{s}', False)]) for m in range(2 if half else 4)]
        else: o += [(f'ds_read_b64_tr_b16 v[{self.L.raw(s)+2*r}:{self.L.raw(s)+2*r+1}], v{va} offset:{oa + 32*r}', [(f'a{s}', False)]) for r in range(1 if half else 2)]
        return o + [(f'ds_read_u16_d16_hi v{self.L.y(s)}, v{vy} offset:{oy}', [(f'y{s}', False)])]
    def abuild(self, nK, half=False):
        o = []
        for s in range(2, nK): o += self.areads(s, half and s == nK - 1)
        for s in range(nK):
            L = self.L; b = L.raw(s); un = L.un(s); m = 2 if (half and s == nK - 1) else 4
            o.append(('wait', f'y{s}' if (s or nK == 1 or not opt('ymw', 1)) else 'y1'))
            for i in range(0 if self.z else m): o += [f'v_lshlrev_b32 v{un+2*i}, 16, v{b+i}', f'v_and_b32 v{un+1+2*i}, 0xffff0000, v{b+i}']
            for t in (1, 0):
                d = L.tmp() if t else un
                for e in range(2*m): o.append(f'v_mul_f32_dpp v{d+e}, v{L.y(s)}, v{un+e} row_newbcast:{8*t+e} row_mask:{"0xf" if t else "0xa"} bank_mask:0xf')
                for i in range(m): o.append(f'v_cvt_pk_bf16_f32 v{L.A(s, t)+i}, v{d+2*i}, v{d+1+2*i}')
        return o
    def F(self, q):
        L = self.L; tl = []
        for (t, u) in L.order(q):
            ch = []
            for b in (2*t, 2*t+1):
                if L.chains(q)[b] is None: continue
                p, d, mode = L.chains(q)[b]; o = []
                for r in range(8):
                    T = L.win(q, t, u) + (b & 1)*8 + r; W = Wreg(p, u) + r; D = L.R[d] + u
                    if r == 0 and mode == 'new': o.append(f'v_mul_f32 v{D}, v{T}, v{W}')
                    elif r == 0 and mode == 'neg': o.append(f'v_fma_f32 v{D}, v{T}, v{W}, -v{D}')
                    else: o.append(f'v_fmac_f32 v{D}, v{T}, v{W}')
                ch.append(o)
            tl.append(ch)
        if len(tl[1]) == 1: tl = [tl[0], tl[1] + tl[2], [[], []], tl[3]]
        return [weave(*c) for c in tl]
    SROW = {0: 0, 2: 1, 3: 2, 8: 3, 9: 4, 1: 5, 4: 6, 7: 7, 10: 8, 6: 9, 5: 10}
    def fin(self, q, ph, sp=None):
        sp = sCP if sp is None else sp
        L = self.L; R = L.R; S = R['c']; pairs = L.pairs(q)
        o = []
        for (slot, x, y, sg) in pairs: o += [f'v_permlane32_swap_b32 v{R[x]+u}, v{R[y]+u}' for u in range(2)]
        if q == 0: o.append(f'v_permlane32_swap_b32 v{S}, v{S+1}')
        if ph == 1 and q == 0: o.append(f'v_lshl_add_u32 v{L.VPA}, v{VL2}, 1, s{sCP}')
        for (slot, x, y, sg) in pairs: o += [f'v_add_f32 v{R[x]+u}, {"-"*(sg < 0)}v{R[x]+u}, {"-"*(sg < 0)}v{R[y]+u}' for u in range(2)]
        cv = [(slot, R[x], R[x]+1) for (slot, x, y, sg) in pairs]
        if q == 0:
            o.append(f'v_add_f32 v{S}, -v{S}, -v{S+1}')
            cv.append((5, S, S))
        if ph == 0:
            o.append(f's_set_gpr_idx_on s{sp}, gpr_idx(DST)\n' + ''.join(f'v_cvt_pk_bf16_f32 v{P0+slot}, v{lo}, v{hi}\n' for (slot, lo, hi) in cv) + 's_set_gpr_idx_off')
        else:
            if q == 0: o.append(f'v_sub_u32 v{S+1}, v{L.VPA}, v{L.VH}')
            for (slot, lo, hi) in cv: o.append(f'v_cvt_pk_bf16_f32 v{lo}, v{lo}, v{hi}')
            if q == 3:
                o.append((f'ds_write2st64_b32 v{L.VPA}, v{cv[0][1]}, v{cv[1][1]} offset0:{cv[0][0]} offset1:{cv[1][0]}', [('P', False)])); cv = cv[2:]
            for (slot, lo, hi) in cv:
                o.append((f'ds_write_b32 v{L.VPA}, v{lo} offset:{slot*256}' if slot < 5 else f'ds_write_b16 v{S+1}, v{lo} offset:1280', [('P', False)]))
        return o
    def drop(self, line):
        x = opt('drop', '')
        if not x or not getattr(self, 'inunit', False) or '\n' in line.strip(): return False
        l = line.strip()
        if 'D' in x and l.startswith('buffer_load') and (f's[{sX}:' in l or f's[{sX2}:' in l): return True
        if 'P' in x and l.startswith('ds_write_b16'): return True
        if 'S' in x and l.startswith('v_permlane'): return True
        if 'C' in x and l.startswith('v_cvt_pk'): return True
        if 'B' in x and l.startswith('ds_read_b64_tr') and (f'v{VB0} ' in l or f'v{VB1} ' in l): return True
        if 'F' in x and l.startswith('v_fmac'): return True
        if 'A' in x and l.startswith(('v_lshlrev_b32','v_and_b32','v_cvt_pk')): return True
        if 'A' in x and l.startswith('v_mul_f32') and int(l.split()[1][1:-1]) < 64: return True
        if 'Y' in x and l.startswith(('ds_read_b128',)): return True
        if 'U' in x and l.startswith(('v_lshlrev_b32','v_and_b32')): return True
        if 'N' in x and l.startswith(('v_and_b32')): return True
        return False
    def emit(self, items, lg):
        for it in items:
            if isinstance(it, tuple) and it[0] == 'V':
                if not self.drop(it[1]): self.a(it[1])
                self.vq += [it[2]] * it[3]; continue
            if isinstance(it, tuple) and it[0] == 'wait' and len(it) > 2 and isinstance(it[2], str):
                idx = [k for k, t in enumerate(self.vq) if t == it[2]]
                if idx: cnt = len(self.vq) - 1 - idx[-1]; self.vq = self.vq[idx[-1]+1:]
                it = ('wait', it[1], cnt if idx else None)
            if isinstance(it, str):
                if not self.drop(it): self.a(it)
            elif it[0] != 'wait' and self.drop(it[0]):
                for t, o in it[1]: lg.issue(t, o)
            elif it[0] == 'wait':
                w = lg.waitline(it[1]); lw = w[len('s_waitcnt'):] if w else ''
                if len(it) > 2 and it[2] is not None: w = f's_waitcnt vmcnt({it[2]})' + lw
                if w: self.a(w)
            else:
                self.a(it[0])
                for t, o in it[1]: lg.issue(t, o)
    z = False; L = Lay(0)
    @property
    def ENTRY(self): return [('B', False)]*4 + [('a0', False)]*(4 if self.z else 2) + [('y0', False)] + [('a1', False)]*(4 if self.z else 2) + [('y1', False)]
    @staticmethod
    def cost(it):
        if isinstance(it, tuple):
            if it[0] == 'wait': return 1
            it = it[1] if it[0] == 'V' else it[0]
        return sum((2 if 'permlane' in l else 1) for l in it.strip().split('\n') if not l.strip().endswith(':'))
    def unit(self, nK, ph, half=False):
        a = self.a
        self.L = L = Lay(ph, nK); FD = [self.F(q) for q in range(4)]
        lg = LG(a, self.ENTRY)
        a(f'K2_U{nK}{"h" if half else ""}{ph}:')
        self.inunit = True
        n = 4 * nK
        BUD = opt('bud', 7)
        pre = seg(0)
        if opt('profu', 0) and ph == 0: pre = ['s_mov_b32 s90, s88', 's_mov_b32 s88, s84', 's_mov_b32 s84, s82', 's_mov_b32 s82, s80', 's_mov_b32 s80, s78', 's_memrealtime s[78:79]']
        claim = (self.claim0() if ph == 0 else self.atomic())
        after = ([] if ph == 0 else [('wait', 'C')] + self.claimed(1)) + self.next_info(ph)
        if PD == 3 and nK == 1: pre += [f'v_mov_b32 v{G+6}, v{G}', f'v_mov_b32 v{G+7}, v{G+1}']
        if PD == 3 and nK == 4: pre += [f's_add_u32 s{sSO+3}, s{sCB}, 384'] + self.sread(3) + self.gmad(3)
        if nK == 1: pre += claim
        pre += self.abuild(nK, half)
        if nK == 1:
            pre += after + (self.eread() if ph == 0 else [])
            for t in range(3): pre += self.sread(t)
            if ph == 0: pre += self.adma()
            for t in range(3): pre += self.gmad(t)
        x = -1 if nK == 1 else 2
        gaps = [[] for _ in range(4*n)]; tailg = [[] for _ in range(4*n)]
        AS = [int(c) for c in opt('as', '')] if nK > 1 else []
        xs = AS or [x, x]
        hb = lambda j: half and j < n and j % nK == nK - 1
        hs = lambda j: hb(j) and j >= PD
        ks = lambda j: {3: 1, 4: 0}.get(j, j % 3) if nK == 3 else j % nK
        ED = opt('ed', '')
        ea = lambda i: nK > 1 and i < n and i % nK == 0 and str(ph) in ED and (i > 0 or 'a' in ED) and (i == 0 or 'f' in ED)
        early = {}
        vmn = lambda i: sum(2 - hs(j) for j in range(i + 2, i + PD + ea(i))) + sum(1 for y in xs if ph == 0 and y < i <= y + PD - 1)
        for i in range(n):
            j = i + PD
            d = self.dma(j & 3, self.greg(ks(j)), sOWN + j//nK) if j < n else self.ndma(j & 3, j - n)
            gaps[4*i] += self.bread(i + 1, hb(i + 1))
            if ea(i): early[i] = [('wait', 'B'), d[0] + '\ns_nop 0', d[1]] + ([] if hs(j) else [d[2]])
            else: tailg[4*i] += [d[0]]; gaps[4*i+1] += [d[1]] + ([] if hs(j) else [d[2]])
            if i + 1 < n: tailg[4*i+3] += [('wait', 'B', vmn(i+1))]
        if ph == 1 and opt('es', 0):
            es = self.lab('es'); back = self.lab('back')
            self.ool(f'{es}:\n' + self.spre(VT0) + '\n' + '\n'.join(self.sload(VT0)[:8]) + f'\ns_branch {back}')
            gaps[4*(n - opt('esp', 4)) if nK > 1 else 4*2] += [f's_cmp_eq_u32 s{sNV}, 0\ns_cbranch_scc1 {es}\n{back}:']
        used = lambda g: sum(map(self.cost, gaps[g] + tailg[g]))
        def place(items, g0, g1):
            g = g0
            for it in items:
                while g < g1 and used(g) + self.cost(it) > BUD and used(g) > 1: g += 1
                gaps[g].append(it)
            return g
        DEF = opt('defer', True) and nK > 1
        if nK > 1:
            for t in range(3):
                place(self.sread(t), 4*(n-PD-2+t) + 2, 4*(n-PD-2+t) + 3)
                place(self.gmad(t), 4*(n-PD-1+t) + 1, 4*(n-PD-1+t) + 3)
        ndef = [0]*4
        for q in range(1, 4):
            g0 = 4*q*nK
            if DEF:
                f3 = FD[q-1][3]
                room = [max(0, BUD - used(g0 + k)) for k in range(3)]
                m = min(16, sum(room)); ndef[q-1] = m
                f3 = f3[16-m:]
                for k in range(3):
                    gaps[g0 + k] += f3[:room[k]]; f3 = f3[room[k]:]
            place(self.fin(q-1, ph), g0 + (3 if DEF else 1), 4*(q*nK + nK - 1) + (1 if nK > 1 else 3))
        PRE = opt('pre', 0)
        pub = [f'v_mov_b32 v{VT0}, s{sPROGW}', f'v_mov_b32 v{VT1}, s{sCB}',
               (f's_mov_b64 exec, 1\nds_write_b32 v{VT0}, v{VT1}\ns_mov_b64 exec, -1', [('P', False)])] if (PRE and ph == 1) else []
        gf = place(self.fin(3, ph, sPP), 1, 4*(nK - 1) + (1 if nK > 1 else 3))
        if nK == 1: gaps[gf] += pub
        if nK > 1:
            if ph == 0:
                g = place(claim + after, 1, 5)
                place(self.eread(), max(g, 5), 7)
                if AS:
                    gaps[4*AS[0] + 3] += self.adma3()
                    for k in range(3): gaps[4*AS[k] + 3] += [self.apart(int(opt('aso', '012')[k]))]
                else: place(self.adma(), 4*x + 3, 4*x + 3)
            else:
                place(claim, 1, 3)
                g1 = 4*(n-PD-2) + 2
                keep = gaps[g1]; k0 = [i for i, it in enumerate(keep) if isinstance(it, str) and f'v{VSO}' in it]
                moved = keep[k0[0]:] if k0 else []
                if k0: gaps[g1] = keep[:k0[0]]
                place(after, 5, g1)
                gaps[g1] += moved
                place(pub, max(gf, opt('pubg', 6)), 4*(n-2))
        if True:
            upd = [f's_sub_u32 s{sLIM}, s{sNBs}, s{sCB}', f's_mov_b32 s{sCB}, s{sNBs}', f's_mov_b32 s{sC4}, s{sN4}',
                   (f's_cmp_eq_u32 s{sNPH}, 0' if ph == 0 else f's_cmp_lg_u32 s{sNV}, 0') + f'\ns_cselect_b32 s{sEX}, s{sEX}, 0']
            upd.insert(3, f's_bfe_u32 s{sEX}, s{sN4}, 0x40012')
            place(upd, 4*(n-2) + 1, 4*(n-1) + 1)
            gl = max([g for g in range(4*n) if any(('gpr_idx' in (it if isinstance(it, str) else it[0])) or (f's{sCP}' in (it if isinstance(it, str) else it[0])) for it in gaps[g])] + [4*(n-2)])
            place([f's_mov_b32 s{sPP}, s{sCP}', f's_mov_b32 s{sCP}, s{sNP}'], gl, max(gl, 4*(n-1) + 2))
        nf0 = [0]*4
        if nK > 1:
            for q in range(4):
                g = 4*(q*nK + nK - 1) + 2
                nf0[q] = max(0, BUD - used(g))
                gaps[g] += FD[q][0][:nf0[q]]
        pb = opt('pb', 1) if (PRE and ph == 1) else 0
        FA = opt('fa', 0) if ph == 0 else 0
        def sp(p):
            if not FA: return f's_setprio {p + pb}'
            l = self.lab('fa'); return f's_setprio {2*p}\ns_cbranch_vccz {l}\ns_setprio {2*p + 1}\n{l}:'
        if FA == 2: pre = ['s_not_b64 vcc, vcc'] + pre
        self.emit([sp(opt("prioa", 1))] + early.get(0, []) + pre + seg(1) + [('wait', 'B', vmn(0))] + ([f's_setprio {opt("prio", 1) + pb}'] if opt("prio", 1) != opt("prioa", 1) else []), lg)
        for i in range(n):
            q, s = divmod(i, nK)
            for k, (t, u) in enumerate(L.order(q)):
                D = L.win(q, t, u); c = f'v[{D}:{D+15}]' if (s or L.keepc(q, t)) else '0'
                bb = BR + (i & 1)*8 + u*4; aa = L.A(ks(i), t)
                w = 1 if hb(i) else 3
                a(f'v_mfma_f32_32x32x{8 if hb(i) else 16}_bf16 v[{D}:{D+15}], v[{aa}:{aa+w}], v[{bb}:{bb+w}], {c}')
                g = 4*i + k
                if k == 3 and s == nK - 1:
                    self.emit([sp(opt("prio0", 0))] + gaps[g] + seg(2+2*q) + FD[q][0][nf0[q]:], lg)
                    if q < 3:
                        fb = FD[q][1] + FD[q][2] + FD[q][3][:16-ndef[q]]
                        e = opt('edp', 0); fb = fb[:e] + early.get(i + 1, []) + fb[e:]
                        self.emit(fb + seg(3+2*q) + [sp(opt("prio", 1))], lg)
                else: self.emit(gaps[g], lg)
                self.emit(tailg[g], lg)
        end = [self.aadd(VAO, sLIM), f'v_add_u32 v{VYO}, s{sLIM}, v{VYO}']
        end += FD[3][1] + self.areads(0) + FD[3][2] + self.areads(1) + FD[3][3]
        self.emit(end, lg)
        if SEG and not (ph == 1 and opt('segp', 1) == 0):
            a('s_memtime s[94:95]\ns_waitcnt lgkmcnt(0)')
            def acc(d, i, j): a(f's_sub_u32 s67, s{76+2*j}, s{76+2*i}\ns_add_u32 s{d}, s{d}, s67')
            acc(96, 0, 1)
            for q in range(4): acc(97, 1+2*q, 2+2*q)
            for q in range(3): acc(98, 2+2*q, 3+2*q)
            acc(99, 8, 9)
            a(f's_add_u32 s100, s100, {nK}\ns_add_u32 s101, s101, 1')
        assert [x for x in lg.q if x[0] != 'P'] == self.ENTRY, lg.q
        self.inunit = False
        self.dispatch(ph)
    HALF = {0: [int(c) for c in opt('half0', '3') if c != '0'], 1: [int(c) for c in opt('half1', '23') if c != '0']}
    def target(self, code, ph):
        nK = code >> 1
        return f'K2_U{nK}{"h" if (not code & 1 and nK in self.HALF[ph]) else ""}{ph}'
    def dispatch(self, ph, check=True):
        if not check:
            self.a(f"""
            s_mov_b32 s{sCB}, s{sNBs}
            s_mov_b32 s{sPP}, s{sCP}
            s_mov_b32 s{sC4}, s{sN4}
            s_mov_b32 s{sCP}, s{sNP}
            s_bfe_u32 s{sEX}, s{sN4}, 0x40012""")
        for code in (5, 6): self.a(f's_cmp_eq_u32 s{sEX}, {code}\ns_cbranch_scc1 {self.target(code, ph)}')
        self.a(f's_branch K2_DSP{ph}')

    def flag_load(self):
        self.fl = f'buffer_load_dwordx4 v[56:59], v60, s[{sWS}:{sWS+3}], s{sT+6} offen sc1'
        return f'v_lshlrev_b32 v60, 3, v{VL2}\ns_mov_b32 s{sT+6}, {WS_FLG}\n{self.fl}'
    def flag_check(self, wait):
        ws = f's[{sWS}:{sWS+3}]'
        self.ool(f"""
        K2_FLGR:
        s_sub_u32 s{sSPIN}, s{sSPIN}, 16
        s_cbranch_scc1 K2_END
        {self.fl}
        s_waitcnt vmcnt(0)
        s_branch K2_FLGW
        K2_FLGY:
        v_mov_b32 v56, s{sTAG}
        v_mov_b32 v57, {WS_EPO}
        s_mov_b64 exec, 1
        buffer_store_dword v56, v57, {ws}, 0 offen sc1
        s_mov_b64 exec, -1
        s_branch K2_FLGOK
        """)
        return f"""{wait}
        K2_FLGW:
        {f's_mov_b32 s{sT}, s{sB}' if opt('fp', 0) == 2 else f's_or_b32 s{sT}, s{sB}, s{sW}'}
        v_xor_b32 v56, s{sTAG}, v56
        v_xor_b32 v57, s{sTAG}, v57
        v_xor_b32 v58, s{sTAG}, v58
        v_xor_b32 v59, s{sTAG}, v59
        v_or3_b32 v56, v56, v57, v58
        v_or_b32 v56, v56, v59
        v_cmp_ne_u32 vcc, 0, v56
        s_cbranch_vccnz K2_FLGR
        s_cmp_eq_u32 s{sT}, 0
        s_cbranch_scc1 K2_FLGY
        K2_FLGOK:"""
    def wload(self, ph, vl16, paths, dst):
        for k, p in enumerate(paths):
            self.a(f's_mov_b32 s{sT}, {WS_WTAB + ph*10240 + p*2048}')
            for u in range(2): self.a(f'buffer_load_dwordx4 v[{dst(p)+4*u}:{dst(p)+4*u+3}], v{vl16}, s[{sWS}:{sWS+3}], s{sT} offen offset:{u*1024} sc1')
    def wunp(self, paths, src):
        return [f'v_lshlrev_b32 v{WR+16*p+2*i}, 16, v{src(p)+i}\nv_and_b32 v{WR+16*p+2*i+1}, 0xffff0000, v{src(p)+i}' for p in paths for i in range(8)]

    def fill_rows(self, vL, base):
        return f'''
        v_and_b32 v76, 31, v{vL}
        v_lshrrev_b32 v77, 5, v{vL}
        v_mov_b32 v80, 0
        v_mul_u32_u24 v77, {NSTR}, v77
        v_mov_b32 v81, 0xffff0000
        v_lshl_add_u32 v78, v76, 4, v77
        v_mov_b32 v82, 0
        v_add_u32 v78, {base}, v78
        v_mov_b32 v83, v81
        '''
    def fill_slots(self, vL, base):
        return f'''
        v_add_u32 v85, 16, v{vL}
        v_lshlrev_b32 v84, 5, v{vL}
        v_lshrrev_b32 v85, 6, v85
        v_mul_u32_u24 v85, {E4}, v85
        v_sub_u32 v84, v84, v85
        v_mov_b32 v85, -1
        v_add_u32 v84, {base}, v84
        '''
    def fill_all(self, vL):
        a = self.a
        a(f's_mul_i32 s{sT}, s{sW}, {5*NSTR}\ns_add_u32 s{sT}, s{sT}, {RECBASE}\ns_add_u32 s{sT+1}, s{sT}, {OA}' + self.fill_rows(vL, f's{sT}') + self.fill_slots(vL, f's{sT+1}'))
        for i in range(5): a(f'ds_write_b32 v84, v85 offset:{i*NSTR}')
        a('s_mov_b32 exec_hi, 0')
        for i in range(5): a(f'ds_write_b128 v78, v[80:83] offset:{i*NSTR}')
        a('s_mov_b32 exec_hi, -1')
    def fill_w5(self):
        a = self.a
        a(self.fill_rows(8, RECBASE) + f'v_add_u32 v79, {20*NSTR}, v78')
        for i in range(20): a(f'ds_write_b128 v{78 + i//10}, v[80:83] offset:{(i%10)*2*NSTR}')
    def fill_w6(self, n0, n1):
        a = self.a
        if n0 >= n1: return
        a(self.fill_slots(8, RECBASE + OA + n0*NSTR) + f'v_add_u32 v86, {20*NSTR}, v84')
        for i in range(n1 - n0): a(f'ds_write_b32 v{84 + 2*(i//20)}, v85 offset:{(i%20)*NSTR}')
    def counters(self, vL, first):
        self.a(f'''
        v_mov_b32 v76, 0
        v_mov_b32 v77, -1
        v_lshlrev_b32 v78, 2, v{vL}
        v_add_u32 v78, {HIST}, v78
        s_mov_b64 exec, 0x1ff
        ds_write_b32 v78, v76 offset:{PROG-HIST}
        s_mov_b32 exec_lo, 1
        {f'ds_write_b32 v78, v76 offset:{OKW-HIST}   ; flags not seen yet' if first else ''}
        {f'ds_write_b32 v78, v76 offset:{ARR-HIST}' if opt('sb', 0) else ''}
        s_mov_b32 exec_lo, -1
        ds_write_b32 v78, v77 offset:{NULLSRC-HIST}
        s_mov_b64 exec, -1
        {'' if first else f's_cmp_lg_u32 s{sRND}, 0'}
        {'' if first else f's_cbranch_scc1 K2_NOH'}
        s_mov_b32 exec_hi, 0xffff
        ds_write_b32 v78, v76
        s_mov_b64 exec, 1
        ds_write_b32 v78, v76 offset:{FLAG-HIST}
        s_mov_b64 exec, -1
        ''')
    def srds(self):
        a = self.a
        srd(a, sX, 80, N*1024); srd(a, sOUT, 96, N*1024); srd(a, sEA, 84, E*32)
        a('s_sub_u32 s80, s80, 1024\ns_subb_u32 s81, s81, 0'); srd(a, sX2, 80, N*1024 + 1024)
    def consts(self, vL):
        vao = f'v_lshlrev_b32 v{VAO}, 6, v89\nv_lshl_add_u32 v{VAO}, v88, 3, v{VAO}\nv_add_u32 v{VAO}, {OA}, v{VAO}'
        if ZR == 1: vao = f"""v_lshrrev_b32 v90, 1, v87
        v_lshl_add_u32 v90, v85, 2, v90
        v_lshlrev_b32 v90, 6, v90
        v_add_u32 v90, {OA}, v90
        v_mov_b32 v{VAO}, {ZERO}
        s_mov_b32 exec_lo, {DL}
        s_mov_b32 exec_hi, {DL}
        v_mov_b32 v{VAO}, v90
        s_mov_b64 exec, -1
        v_lshl_add_u32 v{VAO}, v88, 3, v{VAO}"""
        self.a(f'''
        v_and_b32 v84, 15, v{vL}                ; i
        v_lshrrev_b32 v85, 5, v{vL}             ; h
        v_bfe_u32 v86, v{vL}, 4, 1
        v_lshrrev_b32 v87, 2, v84
        v_and_b32 v88, 3, v84                   ; c
        v_lshl_add_u32 v89, v85, 2, v87
        {vao}
        v_lshrrev_b32 v90, 3, v84
        v_lshl_add_u32 v90, v90, 1, v86
        v_sub_u32 v90, v90, 1 clamp
        v_lshlrev_b32 v{VYO}, 1, v90
        v_lshl_add_u32 v91, v85, 2, v88
        v_lshl_add_u32 v{VYO}, v91, 4, v{VYO}
        v_and_b32 v91, 1, v87
        v_lshl_add_u32 v{VYO}, v91, 3, v{VYO}
        v_lshrrev_b32 v90, 1, v88
        v_lshl_add_u32 v90, v86, 1, v90         ; chunk (u = 0)
        v_bfe_u32 v91, v87, 1, 1
        v_lshlrev_b32 v91, 2, v91
        v_xor_b32 v90, v90, v91
        v_lshlrev_b32 v90, 4, v90
        v_lshl_add_u32 v90, v89, 7, v90
        v_and_b32 v91, 1, v88
        v_lshl_add_u32 v90, v91, 3, v90
        v_add_u32 v{VB0}, s{sRING}, v90
        v_xor_b32 v{VB1}, 64, v{VB0}
        v_lshrrev_b32 v90, 3, v{vL}
        v_lshlrev_b32 v{VSO}, 4, v90
        v_bfe_u32 v90, v90, 1, 1
        v_lshlrev_b32 v90, 2, v90
        v_and_b32 v91, 7, v{vL}
        v_xor_b32 v90, v90, v91
        v_lshlrev_b32 v{VLG}, 4, v90
        v_lshlrev_b32 v{VL2}, 1, v{vL}
        {'' if MG == 2 else f'v_mov_b32 v{G+6}, -1'}
        {'' if MG == 2 else f'v_mov_b32 v{G+7}, -1'}
        v_and_b32 v{VH16}, 1, v{vL}
        v_lshlrev_b32 v{VH16}, 4, v{VH16}
        v_lshrrev_b32 v90, 1, v{vL}
        v_lshlrev_b32 v90, 5, v90
        v_add_u32 v{VEO}, {OA}, v90
        ''')
    def pad(self, name, ret):
        return f'K2_PAD_{name}:\ns_branch {ret}' if name in opt('pads', self.PADS).split('_') and opt('pad', 1) else ''
    def padx(self, name, ret):
        return f'K2_PAD_{name}:\ns_cbranch_execz {ret}' if name in opt('pads', self.PADS).split('_') and opt('pad', 1) else ''
    PADS = 'S1_S2_H1_H2_H3_B3_LD_NW_SC_SD_U20_U30_U21_U31_SW_TL_T2'
    def hops(self, names, ret):
        if not opt('pad', 1): return
        self.a('s_mov_b64 exec, 0')
        for w, n in names:
            if n in opt('pads', self.PADS).split('_'): self.a(f's_cmp_eq_u32 s{sW}, {w}\ns_cbranch_scc1 K2_PAD_{n}')
        self.a(f'{ret}:\ns_mov_b64 exec, -1')
    def stage_sort(self, vL, vT_):
        a = self.a; st = mod('recst', 'sc1')
        RAW = 24576
        a(f"""
        s_cmp_lg_u32 s{sW}, 7
        s_cbranch_scc1 KS_NOTAG
        s_mov_b32 s24, {WS_EPO}
        s_mov_b64 exec, 1
        buffer_load_dword v14, v6, s[{sWS}:{sWS+3}], s24 offen sc1
        s_mov_b64 exec, -1
        """)
        srd(a, 60, 98, 256)
        sstamp(a, 1); a('s_barrier'); sstamp(a, 3)
        self.counters(8, True)
        if ZR: a(f'v_lshlrev_b32 v78, 2, v8\nv_add_u32 v78, {ZERO}, v78\n' + '\n'.join(f'ds_write_b32 v78, v76 offset:{512*i}' for i in range(3)))
        self.fill_w6(opt('n6', 40), 40)
        XM = opt('xm', 0); xm = ''
        if XM:
            o = Asm(); srd(o, 64, 80, N*1024)
            o(f's_mov_b64 exec, -1\ns_mul_i32 s24, s2, {40*1024}\nv_lshlrev_b32 v16, {opt("xms", 8)}, v8')
            for i in range(XM): o(f'buffer_load_dword v17, v16, s[64:67], s24 offen {mod("xmm", "")}\ns_add_u32 s24, s24, {64 << opt("xms", 8)}')
            o('s_mov_b64 exec, 1'); xm = o.text()
        a(f"""
        s_mov_b64 exec, 1
        buffer_load_dword v15, v6, s[60:63], 0 offen sc1
        {xm}
        v_mov_b32 v12, {NONCE}
        s_mov_b32 s24, 1664525
        s_waitcnt vmcnt({1 + XM})
        v_mul_lo_u32 v59, v14, s24
        v_add_u32 v59, 1013904223, v59
        ds_write2_b32 v12, v59, v6 offset0:0 offset1:1
        {'s_memrealtime s[86:87]' if PROFS else ''}
        s_waitcnt lgkmcnt(0)
        s_barrier
        s_waitcnt vmcnt({XM})
        v_mov_b32 v62, v15
        ds_write_b32 v12, v15 offset:4
        v_cmp_ne_u32 vcc, 0, v15
        s_mov_b32 s24, 0x40000
        s_waitcnt lgkmcnt(0)
        s_barrier
        {'s_branch' if opt('nofl', 0) else 's_cbranch_vccnz'} KS_FLOK
        KS_FLW:
        s_sub_u32 s24, s24, 1
        s_cbranch_scc1 K2_END
        buffer_load_dword v62, v6, s[60:63], 0 offen sc1
        s_waitcnt vmcnt(0)
        v_cmp_ne_u32 vcc, 0, v62
        s_cbranch_vccz KS_FLW
        ds_write_b32 v12, v62 offset:4
        KS_FLOK:
        s_mov_b64 exec, -1
        s_branch KS_JOIN
        KS_H0:
        s_barrier
        s_branch KS_HELP
        {self.pad('S1', 'KS_HOP0')}
        KS_NOTAG:
        s_cmp_ge_u32 s{sW}, 5
        s_cbranch_scc1 {'KS_H0' if opt('eb1', 0) else 'KS_HELP'}
        s_cmp_ge_u32 s2, {NCH}
        s_cbranch_scc1 KS_IDLE
        """)
        srd(a, 40, 88, E*4)
        a(f'buffer_load_dwordx4 v[12:15], v5, s[40:43], s64 offen')
        srd(a, 44, 86, E*4); srd(a, 48, 82, E*6)
        a(f"""
        buffer_load_dwordx4 v[16:19], v5, s[44:47], s64 offen
        buffer_load_dwordx4 v[20:23], v4, s[48:51], s65 offen
        buffer_load_dwordx2 v[24:25], v4, s[48:51], s65 offen offset:16
        v_lshlrev_b32 v2, 2, v0                 ; t*4
        s_lshl_b32 s64, s64, 3
        v_lshl_add_u32 v3, v0, 7, s64
        v_mov_b32 v7, 1
        s_setprio {opt('sp4', 2)}
        s_cmp_eq_u32 s{sW}, 4
        s_cbranch_scc1 KS_NOCLR
        s_setprio {opt('sp0', 1)}
        ds_write_b32 v2, v6
        KS_NOCLR:
        """)
        sstamp(a, 1); a('s_waitcnt lgkmcnt(0)\ns_barrier'); sstamp(a, 3)
        self.hops([(0, 'B3'), (1, 'LD'), (2, 'NW'), (3, 'SC'), (4, 'SD')], 'KS_HOP')
        a(f's_mov_b32 s58, {PMUL}\ns_movk_i32 s59, 625\ns_waitcnt vmcnt(3)')
        sstamp(a, 5)
        w = sort_rank(a, self.padx('S2', 'KS_HOP0'))
        a('s_waitcnt lgkmcnt(0)')
        for j in range(4): a(f'ds_read_b32 v{32+j}, v{32+j} offset:1024')
        for x in w: a(x)
        sort_emit(a, st)
        a(f"""
        s_branch KS_JOIN
        {self.pad('B3', 'KS_HOP')}
        KS_B3:
        v_mov_b32 v59, {NONCE}
        ds_read_b32 v59, v59
        v_mov_b32 v62, {FLIP}
        s_waitcnt lgkmcnt(0)
        s_barrier
        ds_read_b32 v62, v62
        KS_JOIN:
        {'s_setprio 0' if opt('spr', 1) else ''}
        v_readfirstlane_b32 s{sTAG}, v59
        s_mov_b32 s25, 0x400000
        {f's_bitcmp1_b32 {hex(opt("jp", 0))}, s{sW}' + chr(10) + 's_cbranch_scc0 KS_JOIN2' + chr(10) + 's_setprio 1' if opt('jp', 0) else ''}
        KS_JOIN2:
        s_waitcnt lgkmcnt(0)
        {'s_mov_b32 s24, 1' if opt('nofl', 0) else 'v_readfirstlane_b32 s24, v62'}
        s_cmp_eq_u32 s24, 0
        s_cbranch_scc1 KS_FLS
        s_bfe_u32 s24, s24, 0x10001
        s_xor_b32 s{sB}, s{sB}, s24
        s_lshr_b32 s{sNB}, s{sB}, 1
        s_mul_i32 s{sNB}, s{sNB}, 625
        s_add_u32 s{sNC}, s{sNB}, {625+7}
        s_add_u32 s{sNB}, s{sNB}, 7
        s_lshr_b32 s{sNB}, s{sNB}, 3
        s_lshr_b32 s{sNC}, s{sNC}, 3
        s_add_u32 s24, s{sNB}, {SPL}
        s_sub_u32 s{sNC}, s{sNC}, s24
        s_bitcmp1_b32 s{sB}, 0
        s_cselect_b32 s{sNB}, s24, s{sNB}
        s_cselect_b32 s{sNC}, s{sNC}, {SPL}
        """)
        self.ool(f'KS_FLS:\ns_sub_u32 s25, s25, 1\ns_cbranch_scc1 K2_END\nv_mov_b32 v62, {FLIP}\nds_read_b32 v62, v62\ns_branch KS_JOIN2')
        stamp(a, 6)
    def helpers(self):
        a = self.a; RAW = 24576
        a(f"""
        {self.pad('H1', 'KS_HOP0')}
        KS_HELP:
        {'s_memrealtime s[78:79]' if PROFS else ''}
        s_mov_b32 s30, 0
        s_cmp_eq_u32 s{sW}, 6
        s_cbranch_scc1 KS_RAW
        s_mov_b32 s30, 2
        s_cmp_ge_u32 s2, 170
        s_cbranch_scc1 KS_NOW
        s_mov_b32 s30, 1
        """)
        weight_loads(a)
        a('K1_GO:\nKS_NOW:\n' + ('' if opt('eb1', 0) else 's_barrier\n') + self.padx('H2', 'KS_HOP0'))
        sstamp(a, 3)
        self.fill_w5()
        a('KS_FILL:')
        sstamp(a, 5)
        a(f'v_mov_b32 v59, {NONCE}\ns_barrier\nds_read_b32 v59, v59')
        a(f"""
        s_waitcnt vmcnt(0) lgkmcnt(0)
        s_cmp_eq_u32 s30, 0
        s_cbranch_scc1 KS_B3
        s_cmp_eq_u32 s30, 2
        s_cbranch_scc1 KS_NOST
        v_lshl_or_b32 v40, v65, 16, v64
        v_lshl_or_b32 v41, v67, 16, v66
        v_lshl_or_b32 v42, v69, 16, v68
        v_lshl_or_b32 v43, v71, 16, v70
        buffer_store_dwordx4 v[40:43], v9, s[{sWS}:{sWS+3}], s24 offen sc1
        KS_NOST:
        v_mov_b32 v62, {FLIP}
        s_waitcnt lgkmcnt(0)
        s_barrier
        ds_read_b32 v62, v62
        s_lshl_b32 s24, s2, 2
        s_add_u32 s24, s24, {WS_FLG}
        s_mov_b64 exec, 1
        s_waitcnt vmcnt(0)
        buffer_store_dword v59, v6, s[{sWS}:{sWS+3}], s24 offen sc1
        s_mov_b64 exec, -1
        s_branch KS_JOIN
        {self.pad('H3', 'KS_HOP0')}
        KS_RAW:
        s_cmp_lg_u32 s2, 0
        s_cbranch_scc1 KS_NOX
        """)
        srd(a, 60, 98, 256)
        a(f"""
        s_getreg_b32 s24, hwreg(HW_REG_XCC_ID, 0, 1)
        {'s_xor_b32 s24, s24, 1' if opt('fx', 0) else ''}
        s_add_u32 s24, s24, 1
        v_mov_b32 v10, s24
        v_mov_b32 v11, 0
        s_mov_b64 exec, 1
        buffer_atomic_cmpswap v[10:11], v6, s[60:63], 0 offen sc1
        s_mov_b64 exec, -1
        KS_NOX:
        {'' if opt('eb1', 0) else 's_barrier'}
        """)
        srd(a, 60, 90, 16*640*2)
        a('v_lshrrev_b32 v10, 3, v8\nv_and_b32 v11, 7, v8\nv_lshlrev_b32 v10, 8, v10\nv_lshl_add_u32 v10, v11, 4, v10')
        for i in range(20):
            a(f's_mov_b32 m0, {(W1L if i >= 10 else RAW) + (i % 10)*1024}\ns_movk_i32 s24, {(i % 10)*2048 + (i // 10)*128}\nbuffer_load_dwordx4 v10, s[60:63], s24 offen lds')
        sstamp(a, 3)
        self.fill_w6(0, opt('n6', 40))
        a('s_branch KS_FILL\nKS_IDLE:\ns_barrier\ns_barrier\ns_branch KS_B3')
    def wraw(self, vL2, t, base, dst):
        a = self.a
        a(f'''
        v_lshrrev_b32 v{t}, 6, v{vL2}             ; h
        v_bfe_u32 v{t+1}, v{vL2}, 3, 2            ; row
        v_lshl_add_u32 v{t}, v{t}, 2, v{t+1}
        v_mul_u32_u24 v{t}, 640, v{t}
        v_bfe_u32 v{t+1}, v{vL2}, 5, 1
        v_lshl_add_u32 v{t}, v{t+1}, 5, v{t}
        v_and_b32 v{t+1}, 6, v{vL2}
        v_lshl_add_u32 v{t}, v{t+1}, 2, v{t}
        v_add_u32 v{t}, {base}, v{t}
        ''')
        for i in range(20):
            p, u, rq = i >> 2, (i >> 1) & 1, i & 1
            a(f'ds_read_b64_tr_b16 v[{dst(p)+2*(i&3)}:{dst(p)+2*(i&3)+1}], v{t} offset:{rq*8*640 + p*128 + u*64}')

    def gen(self):
        a = self.a
        vL, vT_, vC, vE, vREM, vOFF = 176, 177, 178, 179, 180, 181
        RK = 40
        NBs = 50
        t0 = 192
        ws = f's[{sWS}:{sWS+3}]'
        def loop(done, body):
            for i in range(U):
                a(f'v_cmp_lt_i32 vcc, {2*i}, v{vREM}\ns_cbranch_vccz {done}\ns_mov_b64 exec, vcc')
                a(body(i))
            a(f'{done}:\ns_mov_b64 exec, -1')
        a('s_cmp_ge_u32 s2, 256\ns_cbranch_scc1 K2_END')
        stamp(a, 0)
        a(f'''
        s_load_dwordx16 s[80:95], s[0:1], 0
        s_load_dwordx4 s[96:99], s[0:1], 72
        s_load_dwordx2 s[100:101], s[0:1], 88   ; ws
        v_lshrrev_b32 v1, 6, v0
        s_mov_b32 s{sB}, s2
        v_readfirstlane_b32 s{sW}, v1
        ''')
        self.hops([(0, 'S1'), (1, 'S2'), (5, 'H1'), (6, 'H2'), (2, 'H3')], 'KS_HOP0')
        a(f'''
        v_and_b32 v8, 63, v0
        v_lshlrev_b32 v9, 4, v8                 ; lane*16
        v_mov_b32 v6, 0
        v_lshlrev_b32 v5, 4, v0                 ; t*16
        v_mul_u32_u24 v4, 24, v0
        s_mul_i32 s64, s2, {CH*4}
        s_mul_i32 s65, s2, {CH*6}
        v_mov_b32 v{vL}, v8
        v_mov_b32 v{vT_}, v0
        s_movk_i32 s{s1024}, 1024
        s_lshl_b32 s{sRING}, s{sW}, 13
        s_mov_b32 s{sPROG}, {PROG}
        s_lshl_b32 s{sPROGW}, s{sW}, 2
        s_add_u32 s{sPROGW}, s{sPROGW}, s{sPROG}
        {chr(10).join(f's_add_u32 s{sM0+i}, s{sRING}, {i*2048}' for i in range(4))}
        s_waitcnt lgkmcnt(0)
        ''')
        if opt('wsoff', 0): a(f's_add_u32 s100, s100, {opt("wsoff", 0) << 20}\ns_addc_u32 s101, s101, 0')
        srd(a, sWS, 100, WS_SIZE)
        self.stage_sort(vL, vT_)
        a(f'''
        s_mov_b32 s{sJ0}, 0
        s_mov_b32 s{sFIRST}, 1
        s_mov_b32 s{sRND}, 0
        s_mov_b32 s{sR}, 1
        K2_CELLS:
        v_lshrrev_b32 v{vC}, 1, v{vT_}          ; cell
        v_min_u32 v{vC}, {NCH-1}, v{vC}
        v_mul_u32_u24 v72, {TSTR}, v{vC}
        s_and_b32 s{sT}, s{sB}, 7
        s_lshl_b32 s{sT}, s{sT}, 7
        s_lshr_b32 s{sT+1}, s{sB}, 5
        s_lshl_b32 s{sT+1}, s{sT+1}, 4
        s_add_u32 s{sT+9}, s{sT}, s{sT+1}
        s_add_u32 s{sT+9}, s{sT+9}, {WS_TBL}
        ''')
        PL = opt('pl', 3); tld = f'buffer_load_dwordx4 v[76:79], v72, {ws}, s{sT+9} offen sc1'
        if PL == 0: a(tld)
        a(f's_cmp_eq_u32 s{sFIRST}, 0\ns_cbranch_scc1 K2_NOSRD')
        self.srds()
        HP = opt('hp', 1) if PL >= 3 else 0
        far = lambda: self.hops([(int(w), n) for w, n in zip(opt('hw', '0123756'), ('U20', 'U30', 'U21', 'U31', 'SW', 'TL', 'T2'))], 'K2_HOP')
        if HP == 0: far()
        a('K2_NOSRD:')
        if PL == 1: a(tld)
        self.consts(vL)
        if PL == 2: a(tld)
        WS0 = lambda p: WR + 40 + 8*p
        if PL >= 3:
            a(f's_cmp_eq_u32 s{sFIRST}, 0\ns_cbranch_scc1 K2_NOW0')
            self.wraw(VL2, 60, 24576, WS0)
            a('s_waitcnt lgkmcnt(0)')
            u = self.wunp(range(5), WS0); m = opt('plu', 16)
            for x in u[:m]: a(x)
            a(tld)
            if HP == 1: far()
            for x in u[m:]: a(x)
            if HP == 2: far()
            a('K2_W0:')
            self.ool(f'K2_NOW0:\n{tld}\ns_branch K2_W0')
        def chk(r): return f"""
            v_xor_b32 v73, s{sT+1}, v{r}
            v_xor_b32 v74, s{sT+1}, v{r+1}
            v_or_b32 v73, v73, v74
            v_xor_b32 v74, s{sTAG}, v{r+3}
            v_lshrrev_b32 v73, 22, v73
            v_or_b32 v73, v73, v74
            v_cmp_ne_u32 vcc, 0, v73"""
        a(f'''
        s_lshl_b32 s{sT+1}, s{sTAG}, 22
        s_mov_b32 s{sT+2}, 0x40000
        s_bfe_u32 s{sT+3}, s{sB}, 0x10004
        s_bfe_u32 s{sT+4}, s{sB}, 0x10003
        s_add_u32 s{sT+5}, s{sT+3}, s{sT+4}
        s_mul_i32 s{sT+4}, s{sT+4}, 11
        s_sub_u32 s{sT+6}, 11, s{sT+4}
        v_cmp_gt_u32 vcc, {2*NCH}, v{vT_}
        s_mov_b64 s[{sEX}:{sEX+1}], vcc
        K2_POLL:
        ''')
        if opt('poll2', 0): a(f'''
        buffer_load_dwordx4 v[80:83], v72, {ws}, s{sT+9} offen sc1
        s_waitcnt vmcnt(1)
        {chk(76)}
        s_cbranch_vccz K2_POLLED
        s_sub_u32 s{sT+2}, s{sT+2}, 1
        s_cbranch_scc1 K2_END
        buffer_load_dwordx4 v[76:79], v72, {ws}, s{sT+9} offen sc1
        s_waitcnt vmcnt(1)
        {chk(80)}
        s_cbranch_vccnz K2_POLL
        s_add_u32 s{sT+3}, s{sT+3}, 4
        s_add_u32 s{sT+5}, s{sT+5}, 4
        ''')
        else: a(f'''
        s_waitcnt vmcnt(0)
        {chk(76)}
        s_cbranch_vccz K2_POLLED
        s_sub_u32 s{sT+2}, s{sT+2}, 1
        s_cbranch_scc1 K2_END
        s_mov_b64 exec, vcc
        buffer_load_dwordx4 v[76:79], v72, {ws}, s{sT+9} offen sc1
        s_mov_b64 exec, -1
        s_branch K2_POLL
        {self.pad('LD', 'KS_HOP')}
        ''')
        a(f'''
        K2_POLLED:
        s_set_gpr_idx_on s{sT+3}, gpr_idx(SRC0)
        v_bfe_u32 v{vE}, v76, s{sT+4}, 11
        s_set_gpr_idx_idx s{sT+5}
        v_bfe_u32 v73, v76, s{sT+6}, 11
        s_set_gpr_idx_off
        v_sub_u32 v73, v73, v{vE}
        ''')
        o = Asm(); sv = self.a; self.a = o
        o(f'''
        K2_WINDOW:
        s_mov_b32 s{sRND}, 0
        s_mov_b32 s{sR}, 1
        K2_LOAD:
        v_mbcnt_lo_u32_b32 v{vL}, -1, 0
        v_mbcnt_hi_u32_b32 v{vL}, -1, v{vL}
        s_lshl_b32 s{sT}, s{sW}, 6
        v_add_u32 v{vT_}, s{sT}, v{vL}
        v_lshlrev_b32 v70, 4, v{vL}
        ''')
        self.wload(0, 70, range(5), lambda p: WR + 40 + 8*p)
        self.fill_all(vL)
        o(f's_cmp_lg_u32 s{sW}, 7\ns_cbranch_scc1 K2_NOH')
        self.counters(vL, False)
        o('K2_NOH:\ns_waitcnt lgkmcnt(0)\ns_barrier\ns_branch K2_CELLS')
        self.a = sv; self.ool(o.text())
        stamp(a, 1)
        a(f'''
        v_cndmask_b32 v73, 0, v73, s[{sEX}:{sEX+1}]
        v_and_b32 v1, 1, v{vT_}
        v_add_u32 v1, s{sJ0}, v1                ; j0 + sub
        v_sub_u32 v{vREM}, v73, v1
        v_add_u32 v{vE}, v{vE}, v1
        v_mul_u32_u24 v{vOFF}, {CSTR}, v{vC}
        v_lshl_add_u32 v{vOFF}, v{vE}, 4, v{vOFF}
        ''')
        MK = [f's[{r}:{r+1}]' for r in (40, 42, 44, 46, 48, 50, 90, 92, 94, 96)]
        def mloop(done, body):
            for i in range(U): a(f's_mov_b64 exec, {MK[i]}\ns_cbranch_execz {done}\n' + body(i))
            a(f'{done}:\ns_mov_b64 exec, -1')
        M = opt('cm', 1); NL = opt('nl', 3); vOFM, vEM = vOFF + 1, vOFF + 4; LIST = 45056
        adr = lambda i, r, rm, st: f'v{rm + i - M}, {{}} offen' if M <= i < M + NL else f'v{r}, {{}} offen offset:{st*i}'
        ld = lambda i: f'buffer_load_dwordx4 v[{4*i}:{4*i+3}], ' + adr(i, vOFF, vOFM, 32).format(f'{ws}, 0') + ' sc1'
        for i in range(M): a(f'v_cmp_lt_i32 {MK[i]}, {2*i}, v{vREM}')
        a(f'v_add_u32 v{vOFM}, {32*M}, v{vOFF}\ns_mov_b32 s{sT+7}, 0')
        for i in range(M):
            a(f's_mov_b64 exec, {MK[i]}\n{ld(i)}')
        a('s_mov_b64 exec, -1')
        for i in range(M, U): a(f'v_cmp_lt_i32 {MK[i]}, {2*i}, v{vREM}')
        for j in range(1, NL): a(f'v_add_u32 v{vOFM+j}, {32*(M+j)}, v{vOFF}')
        a(f"""
        v_subrev_u32 v62, {2*M - 1}, v{vREM}
        v_ashrrev_i32 v62, 1, v62
        v_med3_i32 v62, v62, 0, {U - M}
        s_cmp_eq_u64 {MK[M]}, 0
        s_cbranch_scc1 K2_LD_DONE
        v_mov_b32 v63, v62
        """)
        scan(a, 63)
        a(f"""
        s_lshl_b32 s{sT}, s{sW}, 10
        s_add_u32 s{sT}, s{sT}, {LIST}
        v_readlane_b32 s{sT+1}, v63, 63
        v_sub_u32 v63, v63, v62
        v_lshl_add_u32 v64, v63, 2, s{sT}
        v_lshlrev_b32 v63, 5, v63
        v_sub_u32 v63, v{vOFM}, v63
        s_cmp_gt_u32 s{sT+1}, {63*NL}
        s_cbranch_scc1 K2_LD_GEN
        """)
        for i in range(M, U): a(f's_mov_b64 exec, {MK[i]}\ns_cbranch_execz K2_LD_L\nds_write_b32 v64, v63 offset:{4*(i-M)}')
        a(f"""
        K2_LD_L:
        s_mov_b64 exec, -1
        v_lshl_add_u32 v63, v{vL}, 2, s{sT}
        v_lshlrev_b32 v62, 5, v{vL}
        s_waitcnt lgkmcnt(0)
        """)
        for j in range(NL): a(f'ds_read_b32 v{64+j}, v63 offset:{4*63*j}')
        for j in range(NL): a(f's_min_u32 s{sT+2}, s{sT+1}, 63\ns_sub_u32 s{sT+1}, s{sT+1}, s{sT+2}\ns_bfm_b64 {MK[M+j]}, s{sT+2}, 0')
        a(f's_mov_b64 {MK[M+NL]}, 0\ns_mov_b32 s{sT+7}, 1')
        for j in range(NL):
            a(f's_mov_b32 s{sT+2}, {32*63*j}\ns_waitcnt lgkmcnt({NL-1-j})\nv_add3_u32 v{vOFM+j}, v62, v{64+j}, s{sT+2}\ns_mov_b64 exec, {MK[M+j]}\n{ld(M+j)}')
        a(f"""
        K2_LD_DONE:
        s_mov_b64 exec, -1
        """)
        self.ool('K2_LD_GEN:\n' + ''.join(f's_mov_b64 exec, {MK[i]}\ns_cbranch_execz K2_LD_DONE\n{ld(i)}\n' for i in range(M, U)) + 's_branch K2_LD_DONE')
        a(f"""
        s_cmp_eq_u32 s{sFIRST}, 0
        s_cbranch_scc1 K2_WLATE
        """)
        if PL >= 3: self.ool('K2_WLATE:\ns_waitcnt vmcnt(0)\n' + '\n'.join(self.wunp(range(5), WS0)) + '\ns_branch K2_NOWRAW')
        else:
            self.ool('K2_WLATE:\ns_waitcnt vmcnt(0)\ns_branch K2_WUNP')
            self.wraw(VL2, 60, 24576, WS0)
            a('s_waitcnt lgkmcnt(0)\nK2_WUNP:')
            for x in self.wunp(range(5), WS0): a(x)
        a(f"""
        K2_NOWRAW:
        {self.padx('NW', 'KS_HOP')}
        v_lshrrev_b32 v{vE}, 2, v{vOFF}
        {chr(10).join(f'v_lshrrev_b32 v{vEM+j}, 2, v{vOFM+j}' for j in range(NL))}
        s_mov_b32 s{sT+8}, {WS_RANK}
        v_mov_b32 v{t0+9}, 1
        s_movk_i32 s{sT}, {NSTR//4}
        s_movk_i32 s{sT+1}, {NSTR}
        s_mov_b32 s{sT+2}, 0x40000
        s_mov_b32 s{sT+3}, 0xffff
        v_mov_b32 v{t0+10}, {RECBASE}
        s_cmp_lg_u32 s{sRND}, 0
        s_cbranch_scc1 K2_RK_LOAD
        v_cmp_lt_i32 vcc, {2*U}, v{vREM}
        s_cbranch_vccz K2_NOMORE
        v_mov_b32 v61, {FLAG}
        ds_write_b32 v61, v{t0+9}
        K2_NOMORE:
        s_mov_b32 s{sT+4}, {RECBASE + opt("tp", 8)*NSTR}
        s_cmp_eq_u32 s{sT+7}, 0
        s_waitcnt vmcnt({NL})
        s_cbranch_scc0 K2_ARR
        s_waitcnt vmcnt(0)
        K2_ARR:
        """)
        stamp(a, 2)
        prep = lambda i: f'v_mad_u32_u24 v{NBs+i}, v{NBs+i}, s{sT}, v{t0+10}\nv_and_b32 v{4*i+3}, 0xffffff, v{4*i+3}'
        def rank(i):
            self.ool(f'K2_RT{i}:\ns_sub_u32 s{sT+2}, s{sT+2}, 1\ns_cbranch_scc1 K2_END\n' + ('s_mov_b64 exec, vcc\n' if opt('rtm', 1) else '') + f'{ld(i)}\ns_mov_b64 exec, {MK[i]}\ns_waitcnt vmcnt(0)\ns_branch K2_CK{i}')
            return (f's_waitcnt vmcnt({M + NL - 1 - (0 if TE else i)})\n' if M <= i < M + NL else '') + f"""K2_CK{i}:
            v_bfi_b32 v{t0}, s{sT+3}, v{4*i+1}, v{4*i+2}
            v_lshrrev_b32 v{NBs+i}, 24, v{4*i+3}
            v_cmp_ne_u32 vcc, s{sTAG}, v{t0}
            v_add_u32 v{RK+i}, {HIST}, v{NBs+i}
            s_cbranch_vccnz K2_RT{i}
            ds_add_rtn_u32 v{RK+i}, v{RK+i}, v{t0+9}
            """ + (f"""v_cmp_gt_u32 vcc, {4*opt('tp', 8)}, v{NBs+i}
            v_and_b32 v{4*i+3}, 0xffffff, v{4*i+3}
            v_cndmask_b32 v{t0}, -1, v{4*i+3}, vcc
            buffer_load_dword v245, v{t0}, s[{sEA}:{sEA+3}], 0 offen {mod("tpm", "")}
            """ if TE else '') + (prep(i).split('\n')[0] if (opt('tp', 8)) else prep(i))
        TE = opt('te', 0) and opt('tp', 8)
        mloop('K2_RK_A', rank)
        a(pstamp(5))
        if opt('tp', 8) and not TE:
            mloop('K2_TP', lambda i: f'v_cmp_gt_u32 vcc, s{sT+4}, v{NBs+i}\n' + prep(i).split('\n')[1] + f'\ns_mov_b64 exec, vcc\nbuffer_load_dword v245, v{4*i+3}, s[{sEA}:{sEA+3}], 0 offen {mod("tpm", "")}')
        o = Asm(); b = a; a = o
        a(f'K2_RK_LOAD:\ns_waitcnt vmcnt(0)')
        mloop('K2_RK_B', lambda i: f'v_lshrrev_b32 v{NBs+i}, 24, v{4*i+3}\nbuffer_load_dword v{RK+i}, ' + adr(i, vE, vEM, 8).format(f'{ws}, s{sT+8}') + '\n' + prep(i))
        a(f's_mul_i32 s{sT+4}, s{sRND}, 48\ns_waitcnt vmcnt(0)')
        for i in range(U): a(f'v_subrev_u32 v{RK+i}, s{sT+4}, v{RK+i}')
        a('s_branch K2_RK_DONE')
        self.ool(o.text()); a = b
        a(f"""
        K2_RK_DONE:
        {self.padx('SC', 'KS_HOP')}
        s_mul_i32 s{sT+9}, s{sRND}, 48
        s_movk_i32 s{sT}, {-E4}
        s_waitcnt lgkmcnt(0)
        {pstamp(7)}
        """)
        for i in range(U):
            rr = RK + i; base = NBs + i
            a(f"""s_mov_b64 exec, {MK[i]}
            s_cbranch_execz K2_SC_DONE
            v_cmpx_gt_u32 vcc, 64, v{rr}
            v_bfe_u32 v{t0+2}, v{rr}, 3, 1
            v_add_u32 v{t0+1}, 16, v{rr}
            v_lshl_or_b32 v{t0+2}, v{rr}, 1, v{t0+2}
            v_bfi_b32 v{t0+2}, 15, v{t0+2}, v{rr}
            v_lshrrev_b32 v{t0+1}, 6, v{t0+1}
            v_alignbit_b32 v{4*i+1}, v{4*i+2}, v{4*i+1}, 16
            v_lshl_add_u32 v{t0+3}, v{t0+2}, 3, v{base}
            v_lshl_add_u32 v{t0+2}, v{t0+2}, 5, v{base}
            ds_write_b64 v{t0+3}, v[{4*i}:{4*i+1}]
            v_mad_i32_i24 v{t0+2}, v{t0+1}, s{sT}, v{t0+2}
            ds_write_b32 v{t0+2}, v{4*i+3} offset:{OA}
            """)
        d = t0 + 1; k = t0 + 2; e = t0 + 3; p = t0 + 4; x = t0 + 5; pl = t0 + 6
        a(f'''
        K2_SC_DONE:
        s_mov_b64 exec, -1
        {self.padx('SD', 'KS_HOP')}
        v_lshlrev_b32 v{t0}, 2, v{vL}
        v_add_u32 v{t0}, {HIST}, v{t0}
        v_mov_b32 v{t0+8}, {FLAG}
        s_cmp_eq_u32 s{sRND}, 0
        s_cselect_b32 s{sLIM}, 64, 48
        {pstamp(8)}
        s_waitcnt lgkmcnt(0)
        {pstamp(9)}
        s_barrier
        {pstamp(10)}
        ds_read_b32 v{d}, v{t0}
        ds_read_b32 v{t0+8}, v{t0+8}
        v_cmp_gt_u32 s[{sEX}:{sEX+1}], s{sNC}, v{vL}
        v_mad_u32_u24 v{e}, v{vL}, s{sT+1}, v{t0+10}
        s_waitcnt lgkmcnt(0)
        v_cndmask_b32 v{d}, 0, v{d}, s[{sEX}:{sEX+1}]
        v_readfirstlane_b32 s{sMORE}, v{t0+8}
        v_cmp_lt_u32 s[{sT+4}:{sT+5}], 48, v{d}
        v_cmp_lt_u32 vcc, 64, v{d}
        s_bcnt1_i32_b64 s{sT+2}, s[{sT+4}:{sT+5}]
        v_mbcnt_lo_u32_b32 v{pl}, s{sT+4}, 0
        v_mbcnt_hi_u32_b32 v{pl}, s{sT+5}, v{pl}
        s_cbranch_vccnz K2_BIG
        s_cmp_gt_u32 s{sT+2}, {NPOOL}
        s_cbranch_scc1 K2_BIG
        K2_TOK:
        v_subrev_u32 v{k}, s{sT+9}, v{d}
        v_max_i32 v{k}, 1, v{k}
        v_min_i32 v{k}, s{sLIM}, v{k}
        v_add_u32 v{k}, 15, v{k}
        v_lshrrev_b32 v{k}, 3, v{k}
        v_lshl_or_b32 v{e}, v{k}, 18, v{e}
        v_lshl_or_b32 v{e}, v{pl}, 28, v{e}
        v_mov_b32 v{x}, {NULLBASE | (3 << 18)}
        v_cndmask_b32 v{VTAB}, v{x}, v{e}, s[{sEX}:{sEX+1}]
''')
        o = Asm(); b = a; a = o
        a(f'''
        K2_BIG:
        s_cmp_lg_u32 s{sRND}, 0
        s_cbranch_scc1 K2_TOK
        s_movk_i32 s{sLIM}, 48
        v_mov_b32 v{x}, v{d}
        ''')
        scan(a, x, 'v_max_u32')
        for dd in range(48, 512*U + 48): assert (dd * 43691) >> 21 == dd // 48
        a(f'''
        v_readlane_b32 s{sR}, v{x}, 63
        s_add_u32 s{sR}, s{sR}, 47
        s_mul_i32 s{sR}, s{sR}, 43691
        s_lshr_b32 s{sR}, s{sR}, 21
        ''')
        for i in range(U):
            a(f's_mov_b64 exec, {MK[i]}\ns_cbranch_execz K2_SV_DONE\nbuffer_store_dword v{RK+i}, ' + adr(i, vE, vEM, 8).format(f'{ws}, s{sT+8}'))
        a('K2_SV_DONE:\ns_mov_b64 exec, -1\ns_branch K2_TOK')
        self.ool(o.text()); a = b
        for q in range(4): a(f's_movk_i32 s{sOWN+q}, {q*256 + 128*(FL >> q & 1)}')
        a(f'''
        s_add_u32 s{sRND}, s{sRND}, 1
        s_cmp_ge_u32 s{sRND}, s{sR}
        s_cselect_b32 s{sLAST}, 1, 0
        s_cmp_eq_u32 s{sMORE}, 0
        s_cselect_b32 s{sLAST}, s{sLAST}, 0
        s_mov_b32 s{sSPIN}, 0x400000
        s_mov_b32 s{sJ}, 0
        s_mov_b32 s{sNPH}, 0
        s_mov_b32 s{sNP}, 0
        s_mov_b32 s{sNV}, 1
        s_mov_b32 s{sCP}, 0
        s_mov_b32 s{sT}, s{sW}
        ''')
        lg = LG(a)
        self.emit(self.next_info(0), lg)
        stamp(a, 3)
        if MG == 2: a(f'v_mov_b32 v{self.L.G3}, -1\nv_mov_b32 v{self.L.G3 + 1}, -1')
        pre = self.eread()
        for t in range(3): pre += self.sread(t)
        if opt('fp', 0) == 1: pre += [self.flag_load()]
        pre += self.adma()
        for t in range(3): pre += self.gmad(t)
        for t in range(PD): pre += self.ndma(t, t)
        pre += [self.aadd(VAO, sNBs), f'v_add_u32 v{VYO}, s{sNBs}, v{VYO}']
        if True:
            pre += [f'''v_bfe_u32 v{t0}, v{VTAB}, 18, 4
            s_sub_u32 s{sT}, s{sNC}, {opt('lpt', 16)}
            v_cmp_le_u32 vcc, {opt('lptc', 6)}, v{t0}
            v_cmp_gt_u32 s[{sT+2}:{sT+3}], s{sT}, v{vL}
            s_or_b64 vcc, vcc, s[{sT+2}:{sT+3}]
            v_mbcnt_lo_u32_b32 v{t0}, vcc_lo, 0
            v_mbcnt_hi_u32_b32 v{t0}, vcc_hi, v{t0}
            s_bcnt1_i32_b64 s{sT}, vcc
            v_sub_u32 v{t0+1}, v{vL}, v{t0}
            v_add_u32 v{t0+1}, s{sT}, v{t0+1}
            v_cndmask_b32 v{t0}, v{t0+1}, v{t0}, vcc
            v_lshlrev_b32 v{t0}, 2, v{t0}
            ds_permute_b32 v{t0+1}, v{t0}, v{vL}
            s_waitcnt lgkmcnt(0)
            v_lshl_or_b32 v{VTAB}, v{t0+1}, 22, v{VTAB}''']
        pre += [pstamp(11), f's_waitcnt vmcnt({2*PD - 2})']
        self.emit(pre, lg)
        stamp(a, 4)
        if SEG: a('\n'.join(f's_mov_b32 s{i}, 0' for i in range(96, 102)))
        self.emit(self.bread(0) + self.areads(0) + self.areads(1), lg)
        if opt('fa', 0): a(f's_cmp_ge_u32 s{sW}, 4\ns_cselect_b64 vcc, -1, 0')
        if opt('fp', 0) == 1: a(self.flag_check(''))
        self.dispatch(0, check=False)
        self.helpers()
        for ph in range(2):
            for nK in (2, 3):
                a(self.pad(f'U{nK}{ph}', 'K2_HOP'))
                self.unit(nK, ph, nK == 3 and 3 in self.HALF[ph])
            if 3 in self.HALF[ph]: self.unit(3, ph)
            if 2 in self.HALF[ph]: self.unit(2, ph, True)
        hot = self.outline; self.outline = []
        a(self.pad('SW', 'K2_HOP'))
        for ph in range(2):
            a(f'K2_DSP{ph}:')
            for code in (4, 7): a(f's_cmp_eq_u32 s{sEX}, {code}\ns_cbranch_scc1 {self.target(code, ph)}')
            a(f's_cmp_gt_u32 s{sEX}, 7\ns_cbranch_scc1 K2_U4{ph}\ns_cmp_lg_u32 s{sEX}, 0\ns_cbranch_scc1 K2_U1{ph}' + ('\ns_branch K2_TAIL' if ph else '\ns_branch K2_SWITCH'))
        a('K2_SWITCH:')
        if SEG and opt('segp', 1): a('\n'.join(f's_mov_b32 s{i}, 0' for i in range(96, 102)))
        stamp(a, 5)
        FP = opt('fp', 0)
        if not FP: a(self.flag_load())
        self.L = Lay(0)
        self.emit(self.fin(3, 0, sPP), LG(a))
        self.L = L = Lay(1)
        a(f'v_bfe_u32 v61, v{VTAB}, 22, 6\nv_lshlrev_b32 v62, 21, v{VL2}\ns_mov_b32 s{sT}, {63 << 22}\nv_lshlrev_b32 v61, 2, v61\nv_bfi_b32 v62, s{sT}, v62, v{VTAB}\nds_bpermute_b32 v{VTAB}, v61, v62')
        WP = lambda p: WR + 16*p + 8
        self.wraw(VL2, VT0, W1L, WP)
        for q in range(4): a(f's_movk_i32 s{sOWN+q}, {q*256 + 128*(~FL >> q & 1)}')
        for x in self.qregs(): a(x)
        a(f'v_lshl_add_u32 v{L.VPA}, v{VL2}, 1, s{sNP}\nv_lshrrev_b32 v{L.VH}, 6, v{VL2}\nv_mul_u32_u24 v{L.VH}, 126, v{L.VH}')
        if ZR == 2:
            self.z = True
            a(f"""v_bfe_u32 v61, v{VL2}, 4, 1
            v_lshrrev_b32 v62, 6, v{VL2}
            v_lshl_add_u32 v61, v62, 2, v61
            s_add_u32 s{sT}, s{sNBs}, {OA}
            v_lshl_add_u32 v61, v61, 6, s{sT}
            v_mov_b32 v{VAO}, {ZERO}
            s_mov_b32 exec_lo, {DL}
            s_mov_b32 exec_hi, {DL}
            v_mov_b32 v{VAO}, v61
            s_mov_b64 exec, -1
            v_and_b32 v61, 6, v{VL2}
            v_lshl_add_u32 v{VAO}, v61, 2, v{VAO}""")
        for p in range(5):
            a(f's_waitcnt lgkmcnt({min(15, 16 - 4*p)})')
            for x in self.wunp((p,), WP): a(x)
        if MG == 1:
            for d, r in ((L.y(0), 16), (L.y(1), 17), (L.G3, G + 6), (L.G3 + 1, G + 7)): a(f'v_mov_b32 v{d}, v{r}')
        if not FP: a(self.flag_check('s_waitcnt vmcnt(0)'))
        if FP == 2:
            a(f's_cmp_eq_u32 s{sTK}, 0\ns_cbranch_scc1 K2_FLGL\nK2_FLGD:')
            self.ool('K2_FLGL:\n' + self.flag_load() + '\n' + self.flag_check('s_waitcnt vmcnt(0)') + f'\nv_mov_b32 v56, {OKW}\nv_mov_b32 v57, 1\nds_write_b32 v56, v57\ns_branch K2_FLGD')
        a(f"""s_cmp_eq_u32 s{sNV}, 0
        s_cbranch_scc1 K2_TAIL2
        {'s_waitcnt lgkmcnt(0)' if ZR == 2 else ''}
        """)
        if not FUSE: stamp(a, 6)
        self.dispatch(1, check=False)
        isunit = lambda t: t.startswith(('K2_dyn', 'K2_dum', 'K2_nul', 'K2_spin', 'K2_es'))
        for t in hot:
            if isunit(t): a(t)
        a(self.pad('TL', 'K2_HOP'))
        self.L = Lay(1)
        self.tail()
        for t in hot:
            if not isunit(t): a(t)
        for ph in range(2):
            for nK in (1, 4): self.unit(nK, ph)
        for t in self.outline: a(t)
        a('K2_END:\ns_endpgm')
        return a.lines, 256

    @staticmethod
    def sreg(f): return WR + 16*(0, 2, 1, 3, 4)[f >> 2] + 4*(f & 3)
    def spre(self, v, at=0): return f'v_lshlrev_b32 v{v}, 3, v{VL2}\ns_mul_i32 s{sT}, s{sW}, {20*1024}\ns_add_u32 s{sT}, s{sT}, {WS_STAB + at*4096}'
    def sload(self, v, order=range(20), at=0):
        sl = []
        for f in order:
            mv = ''
            if f // 4 != at: mv = f's_add_u32 s{sT}, s{sT}, {(f//4 - at)*4096 & 0xffffffff}\n'; at = f // 4
            sl.append(mv + f'buffer_load_dwordx4 v[{self.sreg(f)}:{self.sreg(f)+3}], v{v}, s[{sWS}:{sWS+3}], s{sT} offen offset:{(f%4)*1024} sc1')
        return sl
    def tail(self):
        a = self.a
        ws = f's[{sWS}:{sWS+3}]'
        vP0 = 222; vP1 = 223; vS = 226; vSP = 227; vRow = 228; vL16 = 229
        vQ0 = 232; vSt = 254; vS2 = 255; vS3 = 246; vQ0a = 247; vQ1a = 248; vRow2 = 249
        OP = 176
        PRE = opt('pre', 0); ES = opt('es', 0); assert not (PRE and ES)
        order = [4, 5, 6, 7, 14, 15, 16, 17, 18, 19, 0, 1, 2, 3, 8, 9, 10, 11, 12, 13] if PRE else list(range(20))
        sl = self.sload(vL16, order)
        rowb = f'\ns_mul_i32 s{sT+1}, s{sW}, {8192+32}'
        done = [f'v_mov_b32 v{VT0}, s{sPROGW}', f'v_mov_b32 v{VT1}, -1', f's_mov_b64 exec, 1\nds_write_b32 v{VT0}, v{VT1}\ns_mov_b64 exec, -1'] if PRE else []
        SB = opt('sb', 0); NE = opt('ne', 0 if SB else 6 if ES else 8); N0 = 8 if ES else 0
        adr = [f'v_lshl_add_u32 v{vRow}, v{VL2}, 1, s{sT+1}', f'v_lshrrev_b32 v{vS}, 6, v{VL2}', f'v_mul_u32_u24 v{vS}, 126, v{vS}', f'v_sub_u32 v{vS}, v{vRow}, v{vS}']
        if opt('fp', 0) == 2:
            self.ool(f"""K2_OKW:
            s_sub_u32 s{sSPIN}, s{sSPIN}, 1
            s_cbranch_scc1 K2_END
            v_mov_b32 v56, {OKW}
            ds_read_b32 v56, v56
            s_waitcnt lgkmcnt(0)
            v_readfirstlane_b32 s{sT+2}, v56
            s_cmp_eq_u32 s{sT+2}, 0
            s_cbranch_scc1 K2_OKW
            s_cmp_eq_u32 s{sTK}, -1
            s_cbranch_scc1 K2_TAIL1
            s_branch K2_TAIL2B""")
            a(f'K2_TAIL2:\ns_mov_b32 s{sTK}, 0\ns_branch K2_OKW\nK2_TAIL2B:\n' + self.spre(vL16) + rowb)
        else: a('K2_TAIL2:\n' + self.spre(vL16) + rowb)
        for x in sl[:N0 + NE] + adr: a(x)
        a('s_branch K2_TAIL3\nK2_TAIL:')
        stamp(a, 7)
        if opt('fp', 0) == 2: a(f'v_readlane_b32 s{sT+2}, v{T2}, 9\ns_mov_b32 s{sTK}, -1\ns_cmp_eq_u32 s{sT+2}, 0\ns_cbranch_scc1 K2_OKW\nK2_TAIL1:')
        a(self.spre(vL16, 1 if ES else 0) + rowb)
        f3 = self.fin(3, 1) + adr; w = []; m = (len(f3) + NE - 1) // NE if NE else 0
        for i in range(NE): w += [sl[N0 + i]] + f3[m*i:m*i+m]
        self.emit(w + f3[m*NE:], LG(a))
        a('K2_TAIL3:')
        for x in done: a(x)
        PFD = opt('profd', 0)
        if PFD: a('s_memtime s[78:79]')
        a(f's_waitcnt vmcnt({NE})')
        if PFD: a('s_memtime s[80:81]')
        dump = []
        if opt('w2st', 1):
            rows = [(P0 + 6*j + k, 6*j + k) for j in range(5) for k in range(5)]
            for i in range(0, 24, 2): dump.append(f'ds_write2st64_b32 v{vRow}, v{rows[i][0]}, v{rows[i+1][0]} offset0:{rows[i][1]} offset1:{rows[i+1][1]}')
            dump.append(f'ds_write_b32 v{vRow}, v{rows[24][0]} offset:{rows[24][1]*256}')
            for j in range(5): dump.insert(4*j + 2, f'ds_write_b16 v{vS}, v{P0+6*j+5} offset:{j*1536 + 1280}')
        else:
            for j in range(5):
                for k in range(5): dump.append(f'ds_write_b32 v{vRow}, v{P0+6*j+k} offset:{j*1536 + k*256}')
                dump.append(f'ds_write_b16 v{vS}, v{P0+6*j+5} offset:{j*1536 + 1280}')
        assert RECBASE % 256 == 0 and NSTR % 256 == 32
        DS = opt('ds', 0)
        dsa = f"""s_add_u32 s{sT+2}, s{sNB}, 32
        s_sub_u32 s{sT+3}, s{sNC}, 32
        v_add_u32 v51, s{sT+2}, v54
        v_cmp_gt_u32 vcc, s{sT+3}, v54
        v_lshl_add_u32 v51, v51, 10, v49
        v_mov_b32 v53, 0x7ff00000
        v_cndmask_b32 v51, v53, v51, vcc
        v_lshl_add_u32 v{vS3}, v55, 9, v51
        v_lshl_add_u32 v{vS2}, v55, 30, v51"""
        calc = f"""
        v_bfe_u32 v48, v{VL2}, 1, 4             ; n & 15
        v_lshrrev_b32 v49, 5, v{VL2}            ; slab
        v_lshrrev_b32 v55, 3, v48
        v_lshlrev_b32 v52, 4, v49               ; slab*16
        v_and_b32 v54, 7, v48                   ; node of the last group in column n
        v_and_b32 v50, 7, v48
        v_mul_u32_u24 v50, {8192+32}, v50
        v_mul_u32_u24 v51, 1536, v55
        v_add_u32 v50, v50, v51                 ; slot of node n
        v_add_u32 v{vP0}, v50, v52
        v_mul_u32_u24 v51, {8192+32}, v54
        v_add_u32 v{vQ0}, v51, v52
        v_lshl_add_u32 v{vQ0a}, v55, 8, v{vQ0}
        v_mul_u32_u24 v51, {NSTR}, v48
        s_mov_b32 s{sT+2}, {RECBASE}
        v_add3_u32 v{vP1}, v51, v52, s{sT+2}
        v_mul_u32_u24 v51, {NSTR}, v54
        s_mov_b32 s{sT+2}, {RECBASE + 32*NSTR}
        v_add3_u32 v{vP1+2}, v51, v52, s{sT+2}
        v_lshl_add_u32 v{vQ1a}, v55, 8, v{vP1+2}
        s_lshl_b32 s{sT+2}, s{sW}, 5
        v_lshl_add_u32 v49, v49, 3, s{sT+2}
        {dsa if DS else f's_mov_b32 s{sT+2}, {RECBASE}' + chr(10) + f'v_add3_u32 v{vS2}, v51, v49, s{sT+2}' + chr(10) + f'v_lshl_add_u32 v{vS3}, v55, 9, v{vS2}'}
        v_bfe_u32 v53, v48, 2, 1
        v_lshl_add_u32 v49, v53, 4, v49
        v_add_u32 v{vSt}, v50, v49
        s_and_b32 s{sT+6}, s{sLAST}, s{sFIRST}  ; plain single-round case
        """.strip().split('\n')
        rest = sl[N0 + NE:]
        if SB:
            a(f'v_mov_b32 v56, {ARR}\nv_mov_b32 v57, 1\ns_mov_b64 exec, 1\nds_add_rtn_u32 v57, v56, v57\ns_mov_b64 exec, -1')
            while dump:
                for x in dump[:1] + calc[:opt('sbc', 1)]: a(x)
                dump = dump[1:]; calc = calc[opt('sbc', 1):]
        else:
            per = max(2, (len(dump) + len(rest) - 1) // max(1, len(rest)))
            while dump or rest:
                for x in dump[:per] + rest[:1] + calc[:2]: a(x)
                dump = dump[per:]; rest = rest[1:]; calc = calc[2:]
        if PFD: a('s_memtime s[82:83]')
        for x in calc: a(x)
        if PFD: a('s_memtime s[84:85]')
        if PRE: a(f'v_lshl_add_u32 v48, v{VL2}, 1, s{sPROG}\nds_read_b32 v49, v48\ns_mov_b32 s{sT+7}, {RECBASE + 32*NSTR}')
        a('s_waitcnt lgkmcnt(0)')
        late = f"""
        s_bfe_u32 s{sT+2}, s{sW}, 0x10002
        s_lshl_b32 s{sT+2}, s{sT+2}, 4
        s_add_u32 s{sT+1}, s{sT+1}, s{sT+2}
        v_add_u32 v{vRow}, s{sT+1}, v{vL16}
        {'' if DS else f's_mul_i32 s{sT+2}, s{sW}, {NSTR}' + chr(10) + f's_add_u32 s{sT+2}, s{sT+2}, {RECBASE}' + chr(10) + f'v_add_u32 v{vRow2}, s{sT+2}, v{vL16}'}
        s_mov_b32 s{sT+5}, 0xbfb8aa3b           ; -log2(e)
        s_add_u32 s{sOWN}, s{sW}, s{sNB}
        s_lshl_b32 s{sOWN}, s{sOWN}, 10
        """.strip().split('\n') + [f's_add_u32 s{sOWN+j}, s{sOWN}, {j*8192}' for j in range(1, 4 if DS else 5)]
        late = [x for x in late if x.strip()]
        if PRE:
            a(f"""s_cmp_eq_u32 s{sT+6}, 0
            s_cbranch_scc1 K2_MULTI
            K2_PREW:
            v_cmp_gt_u32 vcc, s{sT+7}, v49
            s_setprio {opt('pp', 0)}
            s_and_b32 s{sT+8}, vcc_lo, 0xff
            s_cbranch_scc1 K2_PRES""")
            self.ool(f'K2_PRES:\ns_sub_u32 s{sSPIN}, s{sSPIN}, 1\ns_cbranch_scc1 K2_END\nds_read_b32 v49, v48\ns_waitcnt lgkmcnt(0)\ns_branch K2_PREW')
            stamp(a, 8)
        elif SB:
            stamp(a, 8)
            a(f'v_readfirstlane_b32 s{sT+7}, v57\ns_cmp_ge_u32 s{sT+7}, {opt("sbt", 6)}\ns_cbranch_scc1 K2_ARRL')
            for x in rest: a(x)
            a('s_barrier\ns_branch K2_ARRG\nK2_ARRL:\ns_barrier')
            for x in rest: a(x)
            a('K2_ARRG:')
            stamp(a, 9)
            a(f's_cmp_eq_u32 s{sT+6}, 0\ns_cbranch_scc1 K2_MULTI')
        else:
            stamp(a, 8); a('s_barrier'); stamp(a, 9)
            a(f's_cmp_eq_u32 s{sT+6}, 0\ns_cbranch_scc1 K2_MULTI')
        part = {}
        for g in range(3):
            def ad(ph, row, hh, packed=False):
                o = self.SROW[row]*128 + hh*64
                if g < 2: return (vP1, g*16*NSTR + o) if ph else (vP0, g*3072 + o)
                return ((vQ1a if packed else vP1+2), o) if ph else ((vQ0a if packed else vQ0), 4*1536 + o)
            for ph in range(2):
                part[g, ph, 0] = [(16*g, ph*4 + rs*2 + hh) + ad(ph, rs, hh) for rs in range(2) for hh in range(2)]
                part[g, ph, 1] = [(16*g + 4 + 4*j, 8 + ph*6 + path*2 + hh) + ad(ph, 2 + 3*j + path, hh, j == 0) for path in range(3) for hh in range(2) for j in range(3 if g < 2 else 2)]
        seq = [(g, ph, o) for g in range(3) for o in range(2) for ph in range(2)]
        if PRE: seq = [(0,1,0), (1,1,0), (0,1,1), (1,1,1), (0,0,0), (1,0,0), (0,0,1), (1,0,1)] + seq[8:]
        GF = opt('gf', 1) and not PRE
        if GF: seq = [(g, ph, 0) for g in range(3) for ph in range(2)] + [(g, ph, 1) for g in range(3) for ph in range(2)]
        steps = [x for k in seq for x in part[k]]
        if GF and opt('il', 0): steps[:24] = [part[g, ph, 0][i] for ph in range(2) for i in range(4) for g in range(3)]
        for path in range(3): assert self.SROW[8 + path] == self.SROW[2 + path] + 2
        NB = 12; D = 10
        def epi(g, part=3):
            c = 16*g; o = OP + 8*(g & 1); s = []; tp = 204 + 4*g; o0 = 220 if g == 2 else o
            if part & 1:
                for r in range(4): s.append(f'v_mul_f32 v{tp+r}, s{sT+5}, v{c+r}')
                for r in range(4): s.append(f'v_exp_f32 v{tp+r}, v{tp+r}')
                for r in range(4): s.append(f'v_add_f32 v{tp+r}, 1.0, v{tp+r}')
                for r in range(4): s.append(f'v_rcp_f32 v{tp+r}, v{tp+r}')
                s += [f'v_cvt_pk_bf16_f32 v{o0}, v{c}, v{c+1}', f'v_cvt_pk_bf16_f32 v{o0+1}, v{c+2}, v{c+3}']
            if part & 2:
                for j in range(3 if g < 2 else 2):
                    for r in range(4): s.append(f'v_mul_f32 v{c+4+4*j+r}, v{c+4+4*j+r}, v{tp+r}')
                    s += [f'v_cvt_pk_bf16_f32 v{o+2+2*j}, v{c+4+4*j}, v{c+5+4*j}', f'v_cvt_pk_bf16_f32 v{o+3+2*j}, v{c+6+4*j}, v{c+7+4*j}']
            return s
        def stage(g, part=3):
            o = OP + 8*(g & 1)
            if g < 2: w = [(rt, vSt, g*3072) for rt in range(4)]
            else: w = [(0, vS2, 0), (1, vS3, 0), (2, vS2, 0)]
            src = lambda rt: 220 if (g, rt) == (2, 0) else o + 2*rt
            if g == 2 and DS: return [f'buffer_store_dwordx2 v[{src(rt)}:{src(rt)+1}], v{r}, s[{sOUT}:{sOUT+3}], 0 offen offset:{rt*256} {mod("outst2","sc1")}' for rt, r, b in w if part & (2 if rt else 1)]
            return [(f'ds_write_b64 v{r}, v[{src(rt)}:{src(rt)+1}] offset:{b + rt*256}', [(f'w{g}', False)]) for rt, r, b in w if part & (2 if rt else 1)]
        def rowread(g):
            if g == 2: return [(f'ds_read_b128 v[200:203], v{vRow2}', [('r2', False)])]
            return [(f'ds_read_b128 v[{192+4*(j&1)}:{195+4*(j&1)}], v{vRow} offset:{j*1536}', [(f'r{g}', False)]) for j in (2*g, 2*g+1)]
        def rowstore(g):
            s = [('wait', f'r{g}')]
            for j in ((2*g, 2*g+1) if g < 2 else (4,)):
                b = 192 + 4*(j & 1) if g < 2 else 200
                s += [f'buffer_store_dwordx4 v[{b}:{b+3}], v{vL16}, s[{sOUT}:{sOUT+3}], s{sOWN+j} offen {mod("outst","sc1")}']
            return s
        def gemm(lg, extra):
            def rd(k):
                c, f, r, o = steps[k]
                b = 48 + 4*(k % NB)
                self.emit([(f'ds_read_b128 v[{b}:{b+3}], v{r} offset:{o}', [(f'k{k}', False)])], lg)
            D0 = opt('d0', D); nxt = D0
            for k in range(D0): rd(k)
            seen = [-1]; started = set()
            for k in range(len(steps)):
                c, f, r, o = steps[k]
                for _ in range(2):
                    if nxt <= k + D and nxt < len(steps): rd(nxt); nxt += 1
                vm = None
                if order.index(f) > seen[0]: seen[0] = order.index(f); vm = 19 - seen[0]
                kk = min(k + 1, len(steps) - 1) if (opt('w2', 1) and k % 2 == 0) else k
                self.emit([('wait', f'k{kk}', vm)], lg)
                b = 48 + 4*(k % NB)
                cin = f'v[{c}:{c+3}]' if c in started else '0'; started.add(c)
                a(f'v_mfma_f32_16x16x32_bf16 v[{c}:{c+3}], v[{self.sreg(f)}:{self.sreg(f)+3}], v[{b}:{b+3}], {cin}')
                self.emit(extra.get(k, []), lg)
        lg = LG(a); extra = {}
        def spread(items, k0, k1):
            for i, x in enumerate(items): extra.setdefault(k0 + i*(k1 - k0 + 1)//len(items), []).append(x)
        spread(late, 2, 8)
        if self.padx('T2', 'K2_HOP'): extra.setdefault(opt('t2k', 41), []).append(self.padx('T2', 'K2_HOP'))
        b0 = opt('b0', 72 if PRE else 62 if GF else 46); e0 = opt('e0', 84 if PRE else 80 if GF else 64); b1 = opt('b1', 86 if DS else 98 if GF else 90); r0 = opt('r0', 92 if DS else 104 if GF else 98); e1 = opt('e1', 108 if DS else 113 if GF else 108)
        b2 = opt('b2', 113); r1 = opt('r1', 118); assert GF or not DS
        bA = min(opt('bA', 33), 44 - D - 1)
        if PRE:
            extra.setdefault(bA, []).extend(([f's_memtime s[{76+2*9}:{77+2*9}]'] if 0 else []) + ['s_barrier'] + ([f'{"s_memtime" if opt("cyc", False) else "s_memrealtime"} s[94:95]'] if PROF else []))
            spread(epi(0, 1), 50, opt('g0', 60))
            spread(epi(1, 1), opt('g0', 60) + 1, opt('g1', 71))
            extra.setdefault(b0, []).append('s_barrier')
            spread(epi(0, 2), 72, e0)
            extra.setdefault(e0 + 1, []).extend(stage(0))
        elif GF:
            il = opt('il', 0); g0 = opt('g0', 36 if il else 26); g1 = opt('g1', 47 if il else 42)
            spread(epi(0, 1), 25 if il else 11, g0); spread(epi(1, 1), g0 + 1, g1); spread(epi(2, 1), g1 + 1, opt('g2', 58))
            extra.setdefault(b0, []).append('s_barrier')
            spread(epi(0, 2), 60 + 3, e0)
            extra.setdefault(e0 + 1, []).extend(stage(0) + stage(2, 1))
        else:
            spread(epi(0, 1), 12, 40)
            if not opt('nob0', 0): extra.setdefault(b0, []).append('s_barrier')
            spread(epi(0, 2), 44 + 3, e0)
            extra.setdefault(e0 + 1, []).extend(stage(0))
            spread(epi(1, 1), e0 + 2, 86)
        extra.setdefault(b1, []).extend([('wait', 'w2' if (GF and not DS) else 'w0')] + ([] if opt('nob1', 0) else ['s_barrier']) + rowread(0))
        spread(epi(1, 2), (96 if GF else 88) + 3, e1)
        extra.setdefault(r0, []).extend(rowstore(0))
        extra.setdefault(e1 + 1, []).extend(stage(1))
        if DS:
            extra.setdefault(b2, []).extend([('wait', 'w1'), 's_barrier'] + rowread(1))
            extra.setdefault(r1, []).extend(rowstore(1))
        if not GF:
            spread(epi(2, 1), max(e1 - 8, 100), 117)
            extra.setdefault(118, []).extend(stage(2, 1))
        if opt('gp', 1):
            for k0, k1 in ((bA if PRE else -1, b0), (b0, b1), (b1, b2 if DS else len(steps))):
                fr = [float(x) for x in opt('gpf', '0.3_0.6_0.87').split('_')]
                if k0 >= 0: extra.setdefault(k0, []).append('s_setprio 3')
                for i, f in enumerate(fr): extra.setdefault(k0 + int((k1 - k0)*f), []).append(f's_setprio {2-i}')
            if not PRE: a('s_setprio 3')
        if PROFT and not PFD:
            for i, k in enumerate((0, 23, 59, 81, 97, 113) if GF else (0, 8, 43, 66, 87, 104)): extra.setdefault(k, []).append(f'{"s_memtime" if opt("cyc", False) else "s_memrealtime"} s[{78+2*i}:{79+2*i}]')
        if opt('noepi', 0): extra = {k: [x for x in v if not (isinstance(x, str) and x.startswith(('v_cvt', 'v_exp', 'v_rcp', 'v_mul_f32', 'v_add_f32')[:opt('noepi', 0)]))] for k, v in extra.items()}
        gemm(lg, extra)
        stamp(a, 10)
        if DS:
            e = epi(2, 2); st = stage(2, 2)
            self.emit(e[:6] + st[:1] + e[6:] + st[1:], lg)
        else:
            self.emit(epi(2, 2) + stage(2, 2) + [('wait', 'w2'), 's_barrier'] + rowread(1) + rowread(2) + rowstore(1), lg)
            a(f'K2_LASTROW:\ns_add_u32 s{sT+1}, s{sW}, 32\ns_cmp_ge_u32 s{sT+1}, s{sNC}\ns_cbranch_scc1 K2_FIN\ns_waitcnt lgkmcnt(0)')
            self.emit(rowstore(2), LG(a))
        a('K2_FIN:')
        if PROF:
            stamp(a, 11); a('s_waitcnt vmcnt(0)'); stamp(a, 12); stamp_out(a, 13, 1, sW, sB, sWS)
        a('s_endpgm')
        a('K2_MULTI:' + ('\ns_barrier' if PRE else ''))
        lg = LG(a)
        gemm(lg, {})
        a(f"""
        s_lshl_b32 s{sT+2}, s{sB}, 9
        s_lshl_b32 s{sT+3}, s{sW}, 6
        s_add_u32 s{sT+2}, s{sT+2}, s{sT+3}
        s_mul_i32 s{sT+2}, s{sT+2}, 192
        s_add_u32 s{sT+2}, s{sT+2}, {WS_ACC}
        v_mul_u32_u24 v{vSP}, 96, v{VL2}        ; lane*192
        s_cmp_lg_u32 s{sFIRST}, 0
        s_cbranch_scc1 K2_NOACC
        """)
        for i in range(11): a(f'buffer_load_dwordx4 v[{48+4*i}:{51+4*i}], v{vSP}, {ws}, s{sT+2} offen offset:{16*i}')
        a('s_waitcnt vmcnt(0)')
        for i in range(44): a(f'v_add_f32 v{i}, v{i}, v{48+i}')
        a(f'K2_NOACC:\ns_barrier\ns_cmp_eq_u32 s{sLAST}, 0\ns_cbranch_scc1 K2_SPILL')
        self.emit(late, lg)
        for g in range(2):
            self.emit(epi(g) + stage(g) + [('wait', f'w{g}'), 's_barrier'] + rowread(g) + rowstore(g), lg)
        self.emit(epi(2) + stage(2) + ([] if DS else [('wait', 'w2'), 's_barrier'] + rowread(2)), lg)
        a(f's_branch {"K2_FIN" if DS else "K2_LASTROW"}\nK2_SPILL:')
        for i in range(11): a(f'buffer_store_dwordx4 v[{4*i}:{4*i+3}], v{vSP}, {ws}, s{sT+2} offen offset:{16*i}')
        a(f"""
        s_mov_b32 s{sFIRST}, 0
        s_waitcnt vmcnt(0)
        s_cmp_lt_u32 s{sRND}, s{sR}
        s_cbranch_scc1 K2_LOAD
        s_add_u32 s{sJ0}, s{sJ0}, {2*U}
        s_branch K2_WINDOW
        """)

HEADER = '''; Kernarg layout for this problem (96 bytes, ptrs only, base s[0:1]):
'''
def kd(name, vgpr):
    return f'''.amdhsa_kernel {name}
  .amdhsa_next_free_vgpr {vgpr}
  .amdhsa_next_free_sgpr {102}
  .amdhsa_accum_offset {(vgpr+3)//4*4}
  .amdhsa_group_segment_fixed_size 0
  .amdhsa_kernarg_size 96
  .amdhsa_user_sgpr_count 2
  .amdhsa_user_sgpr_kernarg_segment_ptr 1
  .amdhsa_system_sgpr_workgroup_id_x 1
  .amdhsa_float_denorm_mode_32 3
.end_amdhsa_kernel
'''
def main():
    ks = []
    l2, v2 = K2().gen(); ks.append((NAME + '_kernel', fix_hazards(l2), v2))
    s = HEADER
    s += f'; @launch grid=(256,1,1) block=(512,1,1) lds={K2_LDS}\n'
    s += '.amdgcn_target "amdgcn-amd-amdhsa--gfx950"\n.text\n'
    for name, l, v in ks:
        s += f'.globl {name}\n.p2align 8\n.type {name},@function\n{name}:\n'
        s += '\n'.join((x if x.endswith(':') else '    ' + x) for x in l) + '\n'
    s += '.section .rodata,"a"\n' + ''.join('.p2align 6\n' + kd(name, v) for name, l, v in ks)
    out = sys.argv[1] if len(sys.argv) > 1 else f'/code/{NAME}.s'
    open(out, 'w').write(s)
    print('wrote', out, len(s), 'bytes')
main()
```

```python
import sys, os
sys.path.insert(0, os.path.dirname(os.path.abspath(__file__)))
from asmlib import Asm, fix_hazards

NAME = 'standalone__tensor_product_equiv_equiformer__graph'
N = 10000; E = 320000
NCH = 250; CH = E // NCH
CSTR = CH * 16 + 128
TSTR = 1024 + 128
WS_REC = 0
WS_TBL = 0x0600000
WS_STAB = 0x06A0000
WS_WTAB = 0x06C8000
WS_FLG = 0x06D8000
WS_EPO = WS_FLG + 2048
WS_RANK = 0x0700000
WS_PROF = 0x0900000
WS_ACC = 0x0A00000
WS_SIZE = 0x2400000
assert NCH * CSTR <= WS_TBL and WS_TBL + NCH * TSTR <= WS_STAB and WS_ACC + 256*512*192 <= WS_SIZE
OPT = dict(a.split('=') for a in sys.argv[2:]) if len(sys.argv) > 2 else {}
def opt(k, d): return type(d)(OPT.get(k, d)) if not isinstance(d, bool) else bool(int(OPT.get(k, d)))
def mod(k, d): return opt(k, d).replace('_', ' ')

PMUL = 214749; SPL = opt('spl', 40); PCUT = (1 << 24) - (SPL*8*(1 << 24) + 312)//625
for d in range(N):
    p_ = (d*8)//625; l_ = d - (625*p_ + 7)//8
    assert (d*PMUL) >> 24 == p_ and (((d*PMUL) & 0xffffff) + PCUT) >> 24 == (l_ >= SPL) and l_ - SPL*(l_ >= SPL) < 40
PROF = opt('prof', False)
FUSE = True
SEG = opt('seg', False)
def seg(i): return [f's_memtime s[{76+2*i}:{77+2*i}]'] if SEG else []
PROFS = opt('profs', False)
def sstamp(a, i):
    if PROFS: a(f's_memrealtime s[{76+2*i}:{77+2*i}]')
PROFT = opt('proft', False)

PROFP = opt('profp', False)
PD = opt('pd', 4)
FL = opt('fl', 0)
def pstamp(i): return f's_memrealtime s[{76+2*i}:{77+2*i}]' if PROFP else ''
def stamp(a, i, t=False):
    if PROFP and i in (5, 7, 8, 9, 10, 11): return
    if opt('profu', 0):
        if i in (1, 2, 3, 4, 6, 7): return
    if opt('clk', 0):
        if i == 11 and opt('clk', 0) == 1: a('s_getreg_b32 s98, hwreg(HW_REG_XCC_ID)')
        if i in (7, 8, 10, 11) or (i == 1 and opt('clk', 0) == 2): return
        cm = {4: 7, 5: 8, 9: 10} if opt('clk', 0) == 1 else {0: 1, 6: 11, 3: 10}
        if i in cm: a(f's_memtime s[{76+2*cm[i]}:{77+2*cm[i]}]')
    if PROFT and 1 <= i <= 6 and not t: return
    if PROFS and i in (1, 3, 5, 11, 12): return
    if PROF and not SEG: a(f'{"s_memtime" if opt("cyc", False) else "s_memrealtime"} s[{76+2*i}:{77+2*i}]')
def stamp_out(a, n, kern, swave, swg, srd_s):
    if not PROF: return
    if opt('dbgout', -1) >= 0:
        l = f'DBG_{kern}'
        a(f's_cmp_lg_u32 s{swg}, {opt("dbgout", -1)}\ns_cbranch_scc1 {l}\ns_cmp_lg_u32 s{swave}, 0\ns_cbranch_scc1 {l}')
        a(f's_load_dwordx2 s[58:59], s[0:1], 80\ns_waitcnt lgkmcnt(0)\ns_add_u32 s58, s58, {512*(1-kern)*opt("dbgk1", 0)}\ns_addc_u32 s59, s59, 0')
        srd(a, 60, 58, 256)
        a('s_mov_b64 exec, 1\nv_mov_b32 v1, 0')
        for i, o in ([(0, 0), (5, 14), (2, 15)] if kern == 0 else [(i, 1+i) for i in range(13)]):
            a(f'v_mov_b32 v2, s{76+2*i}\nbuffer_store_dword v2, v1, s[60:63], 0 offen offset:{4*o}')
        a(f's_mov_b64 exec, -1\n{l}:')
        return
    a('s_waitcnt lgkmcnt(0)')
    a(f's_lshl_b32 s67, s{swg}, 4\ns_add_u32 s67, s67, s{swave}\ns_lshl_b32 s67, s67, 6\ns_add_u32 s67, s67, {WS_PROF + kern*256*16*64}')
    a('s_mov_b64 exec, 1\nv_mov_b32 v1, 0')
    for i in range(n):
        a(f'v_mov_b32 v2, s{76+2*i if not SEG else 96+min(i,5)}\nbuffer_store_dword v2, v1, s[{srd_s}:{srd_s+3}], s67 offen offset:{4*i}')
    a('s_mov_b64 exec, -1')

def srd(a, s, ptr, nbytes):
    a(f's_mov_b32 s{s}, s{ptr}\ns_and_b32 s{s+1}, s{ptr+1}, 0xffff\ns_mov_b32 s{s+2}, {nbytes}\ns_mov_b32 s{s+3}, 0x20000')

def scan(a, v, op='v_add_u32'):
    for sh in (1, 2, 4, 8):
        a(f'{op}_dpp v{v}, v{v}, v{v} row_shr:{sh} row_mask:0xf bank_mask:0xf bound_ctrl:0')
    a(f'{op}_dpp v{v}, v{v}, v{v} row_bcast:15 row_mask:0xa bank_mask:0xf')
    a(f'{op}_dpp v{v}, v{v}, v{v} row_bcast:31 row_mask:0xc bank_mask:0xf')

K1_T = CH // 4
K1_LDS = 2048 + CH * 16
def weight_loads(a):
    a(f'''
    v_and_b32 v1, 15, v8
    v_lshrrev_b32 v3, 4, v8
    s_cmp_ge_u32 s2, 160
    s_cbranch_scc1 K1_WT
    s_cmp_ge_u32 s2, 64
    s_cbranch_scc1 K1_S1
    s_lshr_b32 s24, s2, 3
    s_and_b32 s25, s2, 7
    s_lshr_b32 s26, s25, 2
    s_bfe_u32 s27, s25, 0x10001
    s_and_b32 s28, s25, 1
    ''')
    srd(a, 60, 92, 256*128*2)
    a(f'''
    s_branch K1_SC
    K1_S1:
    ; S1: g2 = g-64; w = g2/12, f2 = g2%12 : ph = f2/6, path = (f2%6)>>1, hh = f2&1
    s_sub_u32 s29, s2, 64
    s_mul_i32 s24, s29, 43
    s_lshr_b32 s24, s24, 9
    s_mul_i32 s25, s24, 12
    s_sub_u32 s25, s29, s25
    s_cmp_ge_u32 s25, 6
    s_cselect_b32 s26, 1, 0
    s_mul_i32 s27, s26, 6
    s_sub_u32 s27, s25, s27
    s_lshr_b32 s27, s27, 1
    s_and_b32 s28, s25, 1
    s_add_u32 s25, s25, 8
    ''')
    for g2 in range(96): assert (g2*43) >> 9 == g2 // 12
    srd(a, 60, 94, 384*128*2)
    a(f'''
    K1_SC:
    s_lshl_b32 s27, s27, 7
    s_lshl_b32 s26, s26, 6
    s_lshl_b32 s28, s28, 4
    s_add_u32 s27, s27, s26
    s_add_u32 s27, s27, s28
    s_lshl_b32 s27, s27, 8
    s_lshl_b32 s26, s24, 5
    s_add_u32 s27, s27, s26
    s_add_u32 s29, s27, 8192
    v_lshlrev_b32 v3, 10, v3
    v_lshl_add_u32 v3, v1, 1, v3
    ''')
    for e in range(8): a(f'buffer_load_ushort v{64+e}, v3, s[60:63], s{29 if e & 1 else 27} offen offset:{(e >> 1)*256}')
    a(f'''
    s_mul_i32 s24, s24, 20
    s_add_u32 s24, s24, s25
    s_lshl_b32 s24, s24, 10
    s_add_u32 s24, s24, {WS_STAB}
    s_branch K1_GO
    K1_WT:
    s_sub_u32 s24, s2, 160
    s_lshr_b32 s27, s24, 1
    s_and_b32 s28, s24, 1
    s_lshl_b32 s27, s27, 8
    s_lshl_b32 s28, s28, 6
    s_add_u32 s27, s27, s28
    s_add_u32 s29, s27, {8*1280}
    ''')
    srd(a, 60, 90, 16*640*2)
    a(f'''
    v_and_b32 v1, 31, v8
    v_lshrrev_b32 v3, 5, v8
    v_mul_u32_u24 v3, {4*1280}, v3
    v_lshl_add_u32 v3, v1, 1, v3
    ''')
    for j in range(8): a(f'buffer_load_ushort v{64+j}, v3, s[60:63], s{29 if j >> 2 else 27} offen offset:{(j & 3)*1280}')
    a(f'''
    s_lshl_b32 s24, s24, 10
    s_add_u32 s24, s24, {WS_WTAB}
    ''')

XS = opt('xs', 0)
def sort_rank(a, pad):
    for j in range(4):
        a(f"""v_mul_u32_u24 v{28+j}, s58, v{12+j}
        v_and_b32 v{40+j}, 0xffffff, v{28+j}
        v_lshrrev_b32 v{32+j}, 26, v{28+j}
        v_add_u32 v{40+j}, {PCUT}, v{40+j}
        {f'v_lshrrev_b32 v{36+j}, 3, v{28+j}' + chr(10) + f'v_xor_b32 v{36+j}, v{36+j}, v{28+j}' if XS else ''}
        v_bfe_u32 v{36+j}, v{(36 if XS else 28)+j}, 24, 2
        v_lshlrev_b32 v{32+j}, 2, v{32+j}
        v_lshrrev_b32 v{40+j}, 24, v{40+j}
        v_lshl_or_b32 v{32+j}, v{36+j}, 8, v{32+j}
        v_lshl_or_b32 v{32+j}, v{40+j}, 7, v{32+j}
        ds_add_rtn_u32 v{36+j}, v{32+j}, v7""")
    for j in range(4):
        a(f'v_lshrrev_b32 v{28+j}, 24, v{28+j}\nv_mad_u32_u24 v{28+j}, v{28+j}, s59, 7\nv_lshrrev_b32 v{28+j}, 3, v{28+j}\nv_mad_u32_u24 v{28+j}, v{40+j}, {SPL}, v{28+j}\nv_sub_u32 v{28+j}, v{12+j}, v{28+j}')
        a(f'v_add_u32 v{12+j}, {32*j}, v3\nv_lshl_or_b32 v{28+j}, v{28+j}, 26, v{12+j}')
    a(f'''
    {pad}
    v_mov_b32 v59, {NONCE}
    s_mul_i32 s65, s2, {TSTR}
    s_add_u32 s65, s65, {WS_TBL}
    s_mul_i32 s64, s2, {CSTR}
    s_waitcnt lgkmcnt(0)
    s_barrier
    ''')
    sstamp(a, 11)
    a(f'''
    ds_read_b128 v[40:43], v9
    ds_read_b32 v59, v59
    s_waitcnt lgkmcnt(1)
    v_add_u32 v45, v40, v41
    v_add_u32 v46, v45, v42
    v_add_u32 v47, v46, v43
    v_mov_b32 v58, v47
    ''')
    scan(a, 58)
    a(f'''
    v_sub_u32 v48, v58, v47                 ; exclusive
    v_add_u32 v49, v48, v40
    v_add_u32 v50, v48, v45
    v_add_u32 v51, v48, v46
    ds_write_b128 v9, v[48:51] offset:1024
    s_waitcnt {'' if opt('ep', 1) else 'vmcnt(0) '}lgkmcnt(1)
    s_cmp_lg_u32 s{sW}, 4
    s_cbranch_scc1 KS_NOPUB
    v_lshl_or_b32 v56, v49, 11, v48
    v_lshl_or_b32 v57, v51, 11, v50
    v_lshl_or_b32 v56, v59, 22, v56
    v_lshl_or_b32 v57, v59, 22, v57
    buffer_store_dwordx4 v[56:59], v9, s[{sWS}:{sWS+3}], s65 offen {mod('tabst', 'sc1')}
    KS_NOPUB:
''')
    sstamp(a, 12)
    return ['s_cbranch_scc1 KS_PUB0\ns_waitcnt vmcnt(1)\ns_branch KS_PUB1\nKS_PUB0:\ns_waitcnt vmcnt(0)\nKS_PUB1:'] if opt('ep', 1) else []

def sort_emit(a, st):
    a('v_and_b32 v60, 0xffff, v59\nv_and_b32 v61, 0xffff0000, v59\ns_mov_b32 s58, 0xffff0000')
    for j in range(4):
        b = 20 + 3*(j >> 1)
        if j & 1: a(f'v_alignbit_b32 v{40+4*j}, v{b+2}, v{b+1}, 16\nv_and_or_b32 v{41+4*j}, v{b+2}, s58, v60\nv_xor_b32 v{40+4*j}, 0x80000000, v{40+4*j}')
        else: a(f'v_xor_b32 v{40+4*j}, 0x80000000, v{b}\nv_lshl_or_b32 v{41+4*j}, v{b+1}, 16, v60')
        a(f'v_or_b32 v{42+4*j}, v61, v{16+j}\nv_mov_b32 v{43+4*j}, v{28+j}')
    a('s_waitcnt lgkmcnt(0)')
    for j in range(4):
        a(f'v_add_lshl_u32 v{32+j}, v{32+j}, v{36+j}, 4\nds_write_b128 v{32+j}, v[{40+4*j}:{43+4*j}] offset:2048')
    a(f'v_mov_b32 v62, {FLIP}\ns_waitcnt lgkmcnt(0)\ns_barrier\nds_read_b32 v62, v62')
    for i in range(4): a(f'ds_read_b128 v[{12+4*i}:{15+4*i}], v5 offset:{2048 + i*K1_T*16}')
    for i in range(4):
        a(f's_waitcnt lgkmcnt({3-i})')
        a(f'buffer_store_dwordx4 v[{12+4*i}:{15+4*i}], v5, s[8:11], s64 offen {st}')
        if i < 3: a(f's_add_u32 s64, s64, {K1_T*16}')

NSTR = 2080
OA = 512
E4 = 48*32 - 4
RECBASE = 65536
ZR = opt('zr', 0)
NPOOL = 5 if ZR else 8
ZERO = RECBASE + 40 * NSTR + NPOOL*512
W1L = ZERO + (1536 if ZR else 0)
DL = 0xf0f0f0f0
MISC = W1L + 10240
HIST = MISC; PROG = MISC + 192; CNT = MISC + 224; OKW = MISC + 228; FLAG = MISC + 232; ARR = MISC + 236; SCR = MISC + 240; NULLSRC = MISC + 256; NONCE = MISC + 384; FLIP = MISC + 388
NULLBASE = NULLSRC
K2_LDS = 163840
assert FLIP + 4 <= K2_LDS
U = 10
ACC = 0; AR = 64; WR = 96; BR = 176; P0 = 192; G = 222
MG = opt('mg', 2)
MX = opt('mx', 1) if MG == 2 else 0
VEO, VH16, T2, T3 = (232, 233, 42, 43) if MG == 2 else (230, 231, 232, 233); PW = 234
VB0 = 246; VB1 = 247; VLG = 248; VAO = 249; VYO = 250; VSO = 251; VL2 = 252; VTAB = 253; VT0 = 254; VT1 = 255; VPA = VEO
sX = 4; sWS = 8; sOUT = 12; sEA = 16
sW = 20; sNB = 21; sNC = 22; sJ0 = 23; sRND = 24; sR = 25; sLIM = 26; sMORE = 27; sFIRST = 28
sCB = 29; sC4 = 30; sCP = 31; sNBs = 48; sNK = 33; sNPH = 34; sNP = 35; sNV = 36
sRING = 37; sJ = 38; s1024 = 39; sOWN = 40; sNX = 44; sSO = 48; sPROGW = 52; sPROG = 53; sB = 54; sLAST = 55
sEX = 56
sT = 58
sM0 = 68
sX2 = 72
sPP = 32
sN4 = 3
sTAG = 2
sTK = 0
sSPIN = 27

class Lay:
    def __init__(self, ph, nK=2):
        self.wide = MG > 1 - ph; self.merge = self.wide and nK < 4
        w = self.wide
        self.R = dict(a=PW, b=PW+2, c=PW+4, d=PW+6, e=46 if w else PW+8)
        self.VPA = T3 if (w and MG == 1) else VEO; self.VH = VT1 if (w and MG == 1) else VH16; self.G3 = 44 if w else G + 6
        self.one = VSO if w else VT1
    def win(self, q, t, u):
        if not self.wide: return ACC + 16*[(0,0), (1,0), (0,1), (1,1)].index((t, u))
        X = 40*u
        if self.merge and q >= 2: return X + 24 if t == 0 else X + (0 if q == 2 else 8)
        return X + 8 + 16*t
    def order(self, q):
        if not self.merge or q == 0: return [(0,0), (1,0), (0,1), (1,1)]
        return [(1,0), (0,0), (0,1), (1,1)] if q == 1 else [(0,0), (1,0), (1,1), (0,1)]
    def keepc(self, q, t): return self.merge and q == 3 and t == 1
    def A(self, s, t):
        if not self.wide: return AR + s*8 + t*4
        return (80 + 4*t, 88 + 4*t, (228, 242)[t], 4*t)[s]
    def raw(self, s): return (ACC + 4*s) if not self.wide else (0, 4, 8, 12)[s]
    def y(self, s): return ACC + 16 + s if not self.wide else 40 + s
    def un(self, s): return ACC + 20 + (s & 1)*8 if not self.wide else 16 + (s & 1)*8
    def tmp(self): return ACC + 36 if not self.wide else 32
    def chains(self, q):
        if q == 0: return [(0,'a','new'), (2,'b','new'), (2,'c','new'), (2,'d','new')]
        if self.merge: return {1: [(3,'a','new'), None, (4,'b','new'), (4,'c','new')],
                               2: [(3,'d','new'), (4,'b','acc'), (1,'a','new'), None],
                               3: [(3,'b','new'), (4,'c','neg'), (4,'d','new'), (1,'a','neg')]}[q]
        return {1: [(3,'e','new'), (1,'a','new'), (4,'b','new'), (4,'c','new')],
                2: [(3,'e','new'), (4,'b','acc'), (1,'a','neg'), (4,'d','new')],
                3: [(3,'b','new'), (4,'c','neg'), (4,'d','acc'), (1,'a','neg')]}[q]
    def pairs(self, q):
        m = self.merge
        return {0: [(0,'a','b',1)], 1: [(1,'a' if m else 'e','d',1)], 2: [(4,'b','d' if m else 'e',1)], 3: [(2,'b','a',1), (3,'d','c',-1)]}[q]
def Wreg(p, u): return WR + p*16 + u*8

def weave(x, y):
    o = []
    for i in range(max(len(x), len(y))):
        o += x[i:i+1] + y[i:i+1]
    return o

class LG:
    def __init__(self, a, q=()): self.a = a; self.q = list(q)
    def issue(self, tag, optional=False): self.q.append((tag, optional))
    def waitline(self, tag):
        idx = [i for i, (t, o) in enumerate(self.q) if t == tag]
        if not idx: return None
        y = sum(1 for (t, o) in self.q[idx[-1]+1:] if not o)
        self.q = self.q[idx[-1]+1:]
        return f's_waitcnt lgkmcnt({min(y, 15)})'

class K2:
    def __init__(self):
        self.a = Asm()
        self.uid = 0
        self.outline = []
    def lab(self, s):
        self.uid += 1
        return f'K2_{s}_{self.uid}'

    def dma(self, slot, greg, soff):
        return [f's_mov_b32 m0, s{sM0+slot}',
                f'buffer_load_dwordx4 v{greg}, s[{sX}:{sX+3}], s{soff} offen {mod("xld", "sc1")} lds',
                f'buffer_load_dwordx4 v{greg+1}, s[{sX2}:{sX2+3}], s{soff} offen offset:1024 {mod("xld", "sc1")} lds']
    def ndma(self, slot, t):
        if t < 3: return self.dma(slot, G + 2*t, sNX + t)
        four = self.lab('g4'); back = self.lab('back'); d = self.dma(slot, G + 2, sNX + 3); e = self.dma(slot, self.L.G3, sNX + 3)
        self.ool(f'{four}:\ns_add_u32 s{sSO+3}, s{sNBs}, 384\n' + '\n'.join(x if isinstance(x, str) else x[0] for x in self.sread(3)) + '\ns_waitcnt lgkmcnt(0)\n'
                 + '\n'.join(self.gmad(3)[1:] + e[1:]) + f'\ns_branch {back}')
        return [d[0], f's_cmp_eq_u32 s{sNK}, 4\ns_cbranch_scc1 {four}\n{d[1]}', f'{d[2]}\n{back}:']
    def bread(self, item, half=False):
        return [(f'ds_read_b64_tr_b16 v[{BR + (item & 1)*8 + u*4 + r*2}:{BR + (item & 1)*8 + u*4 + r*2 + 1}], v{VB0+u} offset:{(item & 3)*2048 + r*1024}', [('B', False)])
                for u in range(2) for r in range(1 if half else 2)]
    def greg(self, t): return self.L.G3 if t == 3 else G + 2*t
    def sread(self, t):
        g = self.greg(t)
        return [f'v_add_u32 v{g}, s{sSO+t}, v{VSO}', (f'ds_read2_b32 v[{g}:{g+1}], v{g} offset0:1 offset1:3', [(f'S{t}', False)])]
    def gmad(self, t):
        g = self.greg(t)
        return [('wait', f'S{t}')] + [f'v_mad_u32_u16 v{g+r}, v{g+r}, s{s1024}, v{VLG} op_sel:[1,0,0,0]' for r in range(2)]
    def ool(self, text): self.outline.append(text)
    def qregs(self):
        assert CNT == PROG + 32
        return [f'v_lshl_add_u32 v{VT0}, v{VL2}, 1, s{sPROG}']
    def atomic(self):
        return [(f's_mov_b64 exec, 0x1ff\nds_add_rtn_u32 v{T2}, v{VT0}, v{VSO}\ns_mov_b64 exec, -1', [('C', False)])]
    def claimed(self, ph):
        nul = self.lab('nul'); spin = self.lab('spin'); chk = self.lab('chk'); back = self.lab('back')
        self.ool(f'{nul}:\ns_mov_b32 s{sN4 if ph else sT}, {NULLBASE | (3 << 18) if ph else 63}\ns_mov_b32 s{sNV}, 0\ns_branch {back}')
        self.ool(f'{spin}:\ns_sub_u32 s{sSPIN}, s{sSPIN}, 1\ns_cbranch_scc1 K2_END\nds_read_b32 v{T2}, v{VT0}\ns_waitcnt lgkmcnt(0)\ns_branch {chk}')
        return [f'v_readlane_b32 s{sT}, v{T2}, 8',
                f"""s_lshr_b32 s{sT}, s{sT}, 4
                s_cmp_lt_u32 s{sT}, s{sNC}
                s_cbranch_scc0 {nul}
                v_readlane_b32 s{sN4}, v{VTAB}, s{sT}
                s_bfe_u32 s{sT}, s{sN4}, 0x60016
                s_and_b32 s{sT+1}, s{sT}, 7
                s_lshr_b32 s{sT+2}, s{sT}, 3
                {chk}:
                v_readlane_b32 s{sT+3}, v{T2}, s{sT+1}
                s_nop 0
                s_cmp_gt_u32 s{sT+3}, s{sT+2}
                s_cbranch_scc0 {spin}
                {back}:"""]
    def claim0(self):
        dyn = self.lab('dyn'); back = self.lab('back')
        o = self.qregs() + [x if isinstance(x, str) else x[0] for x in self.atomic()] + ['s_waitcnt lgkmcnt(0)'] + self.claimed(0)
        self.ool(f'{dyn}:\n' + '\n'.join(o) + f'\ns_mov_b32 s{sNPH}, 1\ns_branch {back}')
        return [f's_add_u32 s{sJ}, s{sJ}, 1', f'v_mov_b32 v{VT0}, s{sPROGW}', f'v_mov_b32 v{VT1}, s{sJ}',
                f's_lshl_b32 s{sT}, s{sJ}, 3', f's_add_u32 s{sT}, s{sT}, s{sW}',
                (f's_mov_b64 exec, 1\nds_write_b32 v{VT0}, v{VT1}\ns_mov_b64 exec, -1', [('W', False)]),
                f's_cmp_lt_u32 s{sT}, s{sNC}\ns_cbranch_scc0 {dyn}\n{back}:']
    def pooladdr(self, d, word):
        return f"""s_lshr_b32 s{d}, s{word}, 28
            s_mul_i32 s{sT+8}, s{sNC}, {NSTR}
            s_lshl_b32 s{d}, s{d}, 9
            s_add_u32 s{d}, s{d}, s{sT+8}
            s_add_u32 s{d}, s{d}, {RECBASE}"""
    def next_info(self, ph):
        rare = self.lab('rare'); back = self.lab('back'); four = self.lab('four')
        self.ool(f"""{rare}:
            s_cmp_eq_u32 s{sNK}, 4
            s_cbranch_scc1 {four}
            s_mov_b32 s{sSO+1}, s{sNBs}
            s_xor_b32 s{sNX+1}, s{sNX}, {256 + 128*((FL ^ FL >> 1) & 1)}
            s_xor_b32 s{sNX+2}, s{sNX}, {512 + 128*((FL ^ FL >> 2) & 1)}
            s_xor_b32 s{sNX+3}, s{sNX}, {768 + 128*((FL ^ FL >> 3) & 1)}
            s_branch {back}
            {four}:
            s_add_u32 s{sSO+2}, s{sNBs}, 256
            s_mov_b32 s{sNX+2}, s{sNX}
            s_mov_b32 s{sNX+3}, s{sNX}
            s_branch {back}""")
        o = ([] if ph else [f'v_readlane_b32 s{sN4}, v{VTAB}, s{sT}']) + [f's_lshl_b32 s{sNX}, s{sNPH}, 7' + (f'\ns_xor_b32 s{sNX}, s{sNX}, 128' if FL & 1 else ''),
             f's_and_b32 s{sNBs}, s{sN4}, 0x3ffff', f's_bfe_u32 s{sNK}, s{sN4}, 0x30013']
        if ph == 1: o += [f's_mov_b32 s{sNP}, s{sNBs}']
        else: o += [f's_mul_i32 s{sNP}, s{sJ}, 6', f's_cmp_eq_u32 s{sNPH}, 0\ns_cselect_b32 s{sNP}, s{sNP}, s{sNBs}']
        o += [f's_mov_b32 s{sNX+1}, s{sNX}', f's_xor_b32 s{sNX+3}, s{sNX}, {256 + 128*((FL ^ FL >> 1) & 1)}', f's_add_u32 s{sSO+1}, s{sNBs}, 128', f's_add_u32 s{sT+2}, s{sNBs}, 256',
              f's_cmp_eq_u32 s{sNK}, 3\ns_cselect_b32 s{sNX+2}, s{sNX}, s{sNX+3}\ns_cselect_b32 s{sSO+2}, s{sT+2}, s{sNBs}',
              f's_sub_u32 s{sT+2}, s{sNK}, 2\ns_cmp_lt_u32 s{sT+2}, 2\ns_cbranch_scc0 {rare}\n{back}:']
        return o
    def eread(self):
        return [f'v_add_u32 v{T3}, s{sNBs}, v{VEO}',
                (f'ds_read_b32 v{T2}, v{T3}', [('E', False)]), (f'ds_read_b32 v{T3}, v{T3} offset:1024', [('E', False)])]
    NEXTRA = 2
    def adma(self):
        dum = self.lab('dum'); four = self.lab('a4'); back = self.lab('back'); b4 = self.lab('b4')
        ea = f's[{sEA}:{sEA+3}]'; m = mod('eald', '')
        self.ool(f'{dum}:\nv_mov_b32 v{T2}, -1\ns_mov_b32 m0, {SCR}\ns_mov_b64 exec, 1\n' + f'buffer_load_dwordx4 v{T2}, {ea}, 0 offen lds\n'*2 + f's_mov_b64 exec, -1\ns_branch {back}')
        self.ool(f"""{four}:
            v_add_u32 v{VT0}, s{sNBs}, v{VEO}
            ds_read_b32 v{VT0}, v{VT0} offset:4
            {self.pooladdr(sT+7, sN4)}
            s_mov_b32 m0, s{sT+7}
            s_mov_b32 exec_hi, 0
            s_waitcnt lgkmcnt(0)
            v_or_b32 v{VT0}, v{VT0}, v{VH16}
            buffer_load_dwordx4 v{VT0}, {ea}, 0 offen {m} lds
            s_mov_b32 exec_hi, -1
            s_branch {b4}""")
        return [('wait', 'E'), f'v_or_b32 v{T2}, v{T2}, v{VH16}', f'v_or_b32 v{T3}, v{T3}, v{VH16}', f"""
        s_cmp_lg_u32 s{sNPH}, 0
        s_cbranch_scc1 {dum}
        s_cmp_eq_u32 s{sNK}, 4
        s_cbranch_scc1 {four}
        {b4}:
        s_add_u32 m0, s{sNBs}, {OA}
        s_add_u32 s{sT+7}, s{sNBs}, {OA+1024}
        buffer_load_dwordx4 v{T2}, {ea}, 0 offen {m} lds
        s_mov_b32 m0, s{sT+7}
        s_mov_b32 exec_hi, 0
        buffer_load_dwordx4 v{T3}, {ea}, 0 offen {m} lds
        s_mov_b32 exec_hi, -1
        {back}:"""]
    def apart(self, k):
        ea = f's[{sEA}:{sEA+3}]'; m = mod('eald', '')
        return f"""s_add_u32 s{sT+7}, s{sNBs}, {OA + (1024 if k == 2 else 0)}
        s_cmp_lg_u32 s{sNPH}, 0
        s_cselect_b32 m0, {SCR}, s{sT+7}
        s_cselect_b32 exec_lo, 1, {0 if k == 1 else -1}
        s_cselect_b32 exec_hi, 0, {-1 if k == 1 else 0}
        buffer_load_dwordx4 v{T3 if k == 2 else T2}, {ea}, 0 offen {m} lds
        s_mov_b64 exec, -1"""
    def adma3(self):
        four = self.lab('a4'); b4 = self.lab('b4'); ea = f's[{sEA}:{sEA+3}]'; m = mod('eald', '')
        self.ool(f"""{four}:
            s_cmp_lg_u32 s{sNPH}, 0
            s_cbranch_scc1 {b4}
            v_add_u32 v{VT0}, s{sNBs}, v{VEO}
            ds_read_b32 v{VT0}, v{VT0} offset:4
            {self.pooladdr(sT+7, sN4)}
            s_mov_b32 m0, s{sT+7}
            s_mov_b32 exec_hi, 0
            s_waitcnt lgkmcnt(0)
            v_or_b32 v{VT0}, v{VT0}, v{VH16}
            buffer_load_dwordx4 v{VT0}, {ea}, 0 offen {m} lds
            s_mov_b32 exec_hi, -1
            s_branch {b4}""")
        return [('wait', 'E'), f'v_or_b32 v{T2}, v{T2}, v{VH16}', f'v_or_b32 v{T3}, v{T3}, v{VH16}', f's_cmp_eq_u32 s{sNK}, 4\ns_cbranch_scc1 {four}\n{b4}:']
    UN = (ACC, ACC + 8, ACC + 20, ACC + 28)
    def aadd(self, v, sd):
        if not self.z: return f'v_add_u32 v{v}, s{sd}, v{v}'
        return f's_mov_b32 exec_lo, {DL}\ns_mov_b32 exec_hi, {DL}\nv_add_u32 v{v}, s{sd}, v{v}\ns_mov_b64 exec, -1'
    def areads(self, s, half=False):
        va, vy, oa, oy, o = VAO, VYO, s*512, s*128, []
        if s == 3:
            va, oa = ACC + 56, 0
            o = [self.pooladdr(sT+7, sC4) + f'\ns_sub_u32 s{sT+7}, s{sT+7}, s{sCB}\ns_sub_u32 s{sT+7}, s{sT+7}, {OA}\n' + (f'v_mov_b32 v{va}, v{VAO}\n' + self.aadd(va, sT+7) if self.z else f'v_add_u32 v{va}, s{sT+7}, v{VAO}')]
        if self.z: o += [(f'ds_read_b64_tr_b16 v[{self.UN[s]+2*m}:{self.UN[s]+2*m+1}], v{va} offset:{oa + (0, 128, 32, 160)[m]}', [(f'a{s}', False)]) for m in range(2 if half else 4)]
        elif MX: o += [(f'ds_read_b64_tr_b16 v[{self.L.A(s, 0)}:{self.L.A(s, 0)+1}], v{va} offset:{oa}', [(f'a{s}', False)])]
        else: o += [(f'ds_read_b64_tr_b16 v[{self.L.raw(s)+2*r}:{self.L.raw(s)+2*r+1}], v{va} offset:{oa + 32*r}', [(f'a{s}', False)]) for r in range(1 if half else 2)]
        return o + [(f'ds_read_u16_d16_hi v{self.L.y(s)}, v{vy} offset:{oy}', [(f'y{s}', False)])]
    def abuild(self, nK, half=False):
        o = []
        for s in range(2, nK): o += self.areads(s, half and s == nK - 1)
        for s in range(nK):
            L = self.L; b = L.raw(s); un = L.un(s); m = 2 if (half and s == nK - 1) else 4
            o.append(('wait', f'y{s}' if (s or nK == 1 or not opt('ymw', 1)) else 'y1'))
            if MX:
                A0, A1, tp, n = L.A(s, 0), L.A(s, 1), L.tmp(), m // 2
                for i in range(n): o += [f'v_lshlrev_b32 v{un+2*i}, 16, v{A0+i}', f'v_and_b32 v{un+1+2*i}, 0xffff0000, v{A0+i}']
                if n == 2: o.append(f'v_mov_b32 v{A0+2}, v{A0+1}')
                for k, d, dst in ((1, tp, A1), (2, tp + 4, A1 + 1), (0, un, A0 + 1)):
                    for e in range(m): o.append(f'v_mul_f32_dpp v{d+e}, v{L.y(s)}, v{un+e} row_newbcast:{4*k+e} row_mask:0xf bank_mask:0xf')
                    for i in range(n): o.append(f'v_cvt_pk_bf16_f32 v{dst+2*i}, v{d+2*i}, v{d+1+2*i}')
                for r in (A1, A0):
                    for i in range(n): o.append(f'v_permlane16_swap_b32 v{r+2*i}, v{r+2*i+1}')
                continue
            for i in range(0 if self.z else m): o += [f'v_lshlrev_b32 v{un+2*i}, 16, v{b+i}', f'v_and_b32 v{un+1+2*i}, 0xffff0000, v{b+i}']
            for t in (1, 0):
                d = L.tmp() if t else un
                for e in range(2*m): o.append(f'v_mul_f32_dpp v{d+e}, v{L.y(s)}, v{un+e} row_newbcast:{8*t+e} row_mask:{"0xf" if t else "0xa"} bank_mask:0xf')
                for i in range(m): o.append(f'v_cvt_pk_bf16_f32 v{L.A(s, t)+i}, v{d+2*i}, v{d+1+2*i}')
        return o
    def F(self, q):
        L = self.L; tl = []
        for (t, u) in L.order(q):
            ch = []
            for b in (2*t, 2*t+1):
                if L.chains(q)[b] is None: continue
                p, d, mode = L.chains(q)[b]; o = []
                for r in range(8):
                    T = L.win(q, t, u) + (b & 1)*8 + r; W = Wreg(p, u) + r; D = L.R[d] + u
                    if r == 0 and mode == 'new': o.append(f'v_mul_f32 v{D}, v{T}, v{W}')
                    elif r == 0 and mode == 'neg': o.append(f'v_fma_f32 v{D}, v{T}, v{W}, -v{D}')
                    else: o.append(f'v_fmac_f32 v{D}, v{T}, v{W}')
                ch.append(o)
            tl.append(ch)
        if len(tl[1]) == 1: tl = [tl[0], tl[1] + tl[2], [[], []], tl[3]]
        return [weave(*c) for c in tl]
    SROW = {0: 0, 2: 1, 3: 2, 8: 3, 9: 4, 1: 5, 4: 6, 7: 7, 10: 8, 6: 9, 5: 10}
    def fin(self, q, ph, sp=None):
        sp = sCP if sp is None else sp
        L = self.L; R = L.R; S = R['c']; pairs = L.pairs(q)
        o = []
        for (slot, x, y, sg) in pairs: o += [f'v_permlane32_swap_b32 v{R[x]+u}, v{R[y]+u}' for u in range(2)]
        if q == 0: o.append(f'v_permlane32_swap_b32 v{S}, v{S+1}')
        if ph == 1 and q == 0: o.append(f'v_lshl_add_u32 v{L.VPA}, v{VL2}, 1, s{sCP}')
        for (slot, x, y, sg) in pairs: o += [f'v_add_f32 v{R[x]+u}, {"-"*(sg < 0)}v{R[x]+u}, {"-"*(sg < 0)}v{R[y]+u}' for u in range(2)]
        cv = [(slot, R[x], R[x]+1) for (slot, x, y, sg) in pairs]
        if q == 0:
            o.append(f'v_add_f32 v{S}, -v{S}, -v{S+1}')
            cv.append((5, S, S))
        if ph == 0:
            o.append(f's_set_gpr_idx_on s{sp}, gpr_idx(DST)\n' + ''.join(f'v_cvt_pk_bf16_f32 v{P0+slot}, v{lo}, v{hi}\n' for (slot, lo, hi) in cv) + 's_set_gpr_idx_off')
        else:
            if q == 0: o.append(f'v_sub_u32 v{S+1}, v{L.VPA}, v{L.VH}')
            for (slot, lo, hi) in cv: o.append(f'v_cvt_pk_bf16_f32 v{lo}, v{lo}, v{hi}')
            if q == 3:
                o.append((f'ds_write2st64_b32 v{L.VPA}, v{cv[0][1]}, v{cv[1][1]} offset0:{cv[0][0]} offset1:{cv[1][0]}', [('P', False)])); cv = cv[2:]
            for (slot, lo, hi) in cv:
                o.append((f'ds_write_b32 v{L.VPA}, v{lo} offset:{slot*256}' if slot < 5 else f'ds_write_b16 v{S+1}, v{lo} offset:1280', [('P', False)]))
        return o
    def drop(self, line):
        x = opt('drop', '')
        if not x or not getattr(self, 'inunit', False) or '\n' in line.strip(): return False
        l = line.strip()
        if 'D' in x and l.startswith('buffer_load') and (f's[{sX}:' in l or f's[{sX2}:' in l): return True
        if 'P' in x and l.startswith('ds_write_b16'): return True
        if 'S' in x and l.startswith('v_permlane'): return True
        if 'C' in x and l.startswith('v_cvt_pk'): return True
        if 'B' in x and l.startswith('ds_read_b64_tr') and (f'v{VB0} ' in l or f'v{VB1} ' in l): return True
        if 'F' in x and l.startswith('v_fmac'): return True
        if 'A' in x and l.startswith(('v_lshlrev_b32','v_and_b32','v_cvt_pk')): return True
        if 'A' in x and l.startswith('v_mul_f32') and int(l.split()[1][1:-1]) < 64: return True
        if 'Y' in x and l.startswith(('ds_read_b128',)): return True
        if 'U' in x and l.startswith(('v_lshlrev_b32','v_and_b32')): return True
        if 'N' in x and l.startswith(('v_and_b32')): return True
        return False
    def emit(self, items, lg):
        for it in items:
            if isinstance(it, tuple) and it[0] == 'V':
                if not self.drop(it[1]): self.a(it[1])
                self.vq += [it[2]] * it[3]; continue
            if isinstance(it, tuple) and it[0] == 'wait' and len(it) > 2 and isinstance(it[2], str):
                idx = [k for k, t in enumerate(self.vq) if t == it[2]]
                if idx: cnt = len(self.vq) - 1 - idx[-1]; self.vq = self.vq[idx[-1]+1:]
                it = ('wait', it[1], cnt if idx else None)
            if isinstance(it, str):
                if not self.drop(it): self.a(it)
            elif it[0] != 'wait' and self.drop(it[0]):
                for t, o in it[1]: lg.issue(t, o)
            elif it[0] == 'wait':
                w = lg.waitline(it[1]); lw = w[len('s_waitcnt'):] if w else ''
                if len(it) > 2 and it[2] is not None: w = f's_waitcnt vmcnt({it[2]})' + lw
                if w: self.a(w)
            else:
                self.a(it[0])
                for t, o in it[1]: lg.issue(t, o)
    z = False; L = Lay(0)
    @property
    def ENTRY(self): return [('B', False)]*4 + [('a0', False)]*(4 if self.z else 2 - MX) + [('y0', False)] + [('a1', False)]*(4 if self.z else 2 - MX) + [('y1', False)]
    @staticmethod
    def cost(it):
        if isinstance(it, tuple):
            if it[0] == 'wait': return 1
            it = it[1] if it[0] == 'V' else it[0]
        return sum((2 if 'permlane' in l else 1) for l in it.strip().split('\n') if not l.strip().endswith(':'))
    def unit(self, nK, ph, half=False):
        a = self.a
        self.L = L = Lay(ph, nK); FD = [self.F(q) for q in range(4)]
        lg = LG(a, self.ENTRY)
        a(f'K2_U{nK}{"h" if half else ""}{ph}:')
        self.inunit = True
        n = 4 * nK
        BUD = opt('bud', 7)
        pre = seg(0)
        if opt('profu', 0) and ph == 0: pre = ['s_mov_b32 s90, s88', 's_mov_b32 s88, s84', 's_mov_b32 s84, s82', 's_mov_b32 s82, s80', 's_mov_b32 s80, s78', 's_memrealtime s[78:79]']
        claim = (self.claim0() if ph == 0 else self.atomic())
        after = ([] if ph == 0 else [('wait', 'C')] + self.claimed(1)) + self.next_info(ph)
        if PD == 3 and nK == 1: pre += [f'v_mov_b32 v{G+6}, v{G}', f'v_mov_b32 v{G+7}, v{G+1}']
        if PD == 3 and nK == 4: pre += [f's_add_u32 s{sSO+3}, s{sCB}, 384'] + self.sread(3) + self.gmad(3)
        if nK == 1: pre += claim
        pre += self.abuild(nK, half)
        if nK == 1:
            pre += after + (self.eread() if ph == 0 else [])
            for t in range(3): pre += self.sread(t)
            if ph == 0: pre += self.adma()
            for t in range(3): pre += self.gmad(t)
        x = -1 if nK == 1 else 2
        gaps = [[] for _ in range(4*n)]; tailg = [[] for _ in range(4*n)]
        AS = [int(c) for c in opt('as', '')] if nK > 1 else []
        xs = AS or [x, x]
        hb = lambda j: half and j < n and j % nK == nK - 1
        hs = lambda j: hb(j) and j >= PD
        ks = lambda j: {3: 1, 4: 0}.get(j, j % 3) if nK == 3 else j % nK
        ED = opt('ed', '')
        ea = lambda i: nK > 1 and i < n and i % nK == 0 and str(ph) in ED and (i > 0 or 'a' in ED) and (i == 0 or 'f' in ED)
        early = {}
        vmn = lambda i: sum(2 - hs(j) for j in range(i + 2, i + PD + ea(i))) + sum(1 for y in xs if ph == 0 and y < i <= y + PD - 1)
        for i in range(n):
            j = i + PD
            d = self.dma(j & 3, self.greg(ks(j)), sOWN + j//nK) if j < n else self.ndma(j & 3, j - n)
            gaps[4*i] += self.bread(i + 1, hb(i + 1))
            if ea(i): early[i] = [('wait', 'B'), d[0] + '\ns_nop 0', d[1]] + ([] if hs(j) else [d[2]])
            else: tailg[4*i] += [d[0]]; gaps[4*i+1] += [d[1]] + ([] if hs(j) else [d[2]])
            if i + 1 < n: tailg[4*i+3] += [('wait', 'B', vmn(i+1))]
        if ph == 1 and opt('es', 0):
            es = self.lab('es'); back = self.lab('back')
            self.ool(f'{es}:\n' + self.spre(VT0) + '\n' + '\n'.join(self.sload(VT0)[:8]) + f'\ns_branch {back}')
            gaps[4*(n - opt('esp', 4)) if nK > 1 else 4*2] += [f's_cmp_eq_u32 s{sNV}, 0\ns_cbranch_scc1 {es}\n{back}:']
        used = lambda g: sum(map(self.cost, gaps[g] + tailg[g]))
        def place(items, g0, g1):
            g = g0
            for it in items:
                while g < g1 and used(g) + self.cost(it) > BUD and used(g) > 1: g += 1
                gaps[g].append(it)
            return g
        DEF = opt('defer', True) and nK > 1
        if nK > 1:
            for t in range(3):
                place(self.sread(t), 4*(n-PD-2+t) + 2, 4*(n-PD-2+t) + 3)
                place(self.gmad(t), 4*(n-PD-1+t) + 1, 4*(n-PD-1+t) + 3)
        ndef = [0]*4
        for q in range(1, 4):
            g0 = 4*q*nK
            if DEF:
                f3 = FD[q-1][3]
                room = [max(0, BUD - used(g0 + k)) for k in range(3)]
                m = min(16, sum(room)); ndef[q-1] = m
                f3 = f3[16-m:]
                for k in range(3):
                    gaps[g0 + k] += f3[:room[k]]; f3 = f3[room[k]:]
            place(self.fin(q-1, ph), g0 + (3 if DEF else 1), 4*(q*nK + nK - 1) + (1 if nK > 1 else 3))
        PRE = opt('pre', 0)
        pub = [f'v_mov_b32 v{VT0}, s{sPROGW}', f'v_mov_b32 v{VT1}, s{sCB}',
               (f's_mov_b64 exec, 1\nds_write_b32 v{VT0}, v{VT1}\ns_mov_b64 exec, -1', [('P', False)])] if (PRE and ph == 1) else []
        gf = place(self.fin(3, ph, sPP), 1, 4*(nK - 1) + (1 if nK > 1 else 3))
        if nK == 1: gaps[gf] += pub
        if nK > 1:
            if ph == 0:
                g = place(claim + after, 1, 5)
                place(self.eread(), max(g, 5), 7)
                if AS:
                    gaps[4*AS[0] + 3] += self.adma3()
                    for k in range(3): gaps[4*AS[k] + 3] += [self.apart(int(opt('aso', '012')[k]))]
                else: place(self.adma(), 4*x + 3, 4*x + 3)
            else:
                place(claim, 1, 3)
                g1 = 4*(n-PD-2) + 2
                keep = gaps[g1]; k0 = [i for i, it in enumerate(keep) if isinstance(it, str) and f'v{VSO}' in it]
                moved = keep[k0[0]:] if k0 else []
                if k0: gaps[g1] = keep[:k0[0]]
                place(after, 5, g1)
                gaps[g1] += moved
                place(pub, max(gf, opt('pubg', 6)), 4*(n-2))
        if True:
            upd = [f's_sub_u32 s{sLIM}, s{sNBs}, s{sCB}', f's_mov_b32 s{sCB}, s{sNBs}', f's_mov_b32 s{sC4}, s{sN4}',
                   (f's_cmp_eq_u32 s{sNPH}, 0' if ph == 0 else f's_cmp_lg_u32 s{sNV}, 0') + f'\ns_cselect_b32 s{sEX}, s{sEX}, 0']
            upd.insert(3, f's_bfe_u32 s{sEX}, s{sN4}, 0x40012')
            place(upd, 4*(n-2) + 1, 4*(n-1) + 1)
            gl = max([g for g in range(4*n) if any(('gpr_idx' in (it if isinstance(it, str) else it[0])) or (f's{sCP}' in (it if isinstance(it, str) else it[0])) for it in gaps[g])] + [4*(n-2)])
            place([f's_mov_b32 s{sPP}, s{sCP}', f's_mov_b32 s{sCP}, s{sNP}'], gl, max(gl, 4*(n-1) + 2))
        nf0 = [0]*4
        if nK > 1:
            for q in range(4):
                g = 4*(q*nK + nK - 1) + 2
                nf0[q] = max(0, BUD - used(g))
                gaps[g] += FD[q][0][:nf0[q]]
        pb = opt('pb', 1) if (PRE and ph == 1) else 0
        FA = opt('fa', 0) if ph == 0 else 0
        def sp(p):
            if not FA: return f's_setprio {p + pb}'
            l = self.lab('fa'); return f's_setprio {2*p}\ns_cbranch_vccz {l}\ns_setprio {2*p + 1}\n{l}:'
        if FA == 2: pre = ['s_not_b64 vcc, vcc'] + pre
        self.emit([sp(opt("prioa", 1))] + early.get(0, []) + pre + seg(1) + [('wait', 'B', vmn(0))] + ([f's_setprio {opt("prio", 1) + pb}'] if opt("prio", 1) != opt("prioa", 1) else []), lg)
        for i in range(n):
            q, s = divmod(i, nK)
            for k, (t, u) in enumerate(L.order(q)):
                D = L.win(q, t, u); c = f'v[{D}:{D+15}]' if (s or L.keepc(q, t)) else '0'
                bb = BR + (i & 1)*8 + u*4; aa = L.A(ks(i), t)
                w = 1 if hb(i) else 3
                a(f'v_mfma_f32_32x32x{8 if hb(i) else 16}_bf16 v[{D}:{D+15}], v[{aa}:{aa+w}], v[{bb}:{bb+w}], {c}')
                g = 4*i + k
                if k == 3 and s == nK - 1:
                    self.emit([sp(opt("prio0", 0))] + gaps[g] + seg(2+2*q) + FD[q][0][nf0[q]:], lg)
                    if q < 3:
                        fb = FD[q][1] + FD[q][2] + FD[q][3][:16-ndef[q]]
                        e = opt('edp', 0); fb = fb[:e] + early.get(i + 1, []) + fb[e:]
                        self.emit(fb + seg(3+2*q) + [sp(opt("prio", 1))], lg)
                else: self.emit(gaps[g], lg)
                self.emit(tailg[g], lg)
        end = [self.aadd(VAO, sLIM), f'v_add_u32 v{VYO}, s{sLIM}, v{VYO}']
        end += FD[3][1] + self.areads(0) + FD[3][2] + self.areads(1) + FD[3][3]
        self.emit(end, lg)
        if SEG and not (ph == 1 and opt('segp', 1) == 0):
            a('s_memtime s[94:95]\ns_waitcnt lgkmcnt(0)')
            def acc(d, i, j): a(f's_sub_u32 s67, s{76+2*j}, s{76+2*i}\ns_add_u32 s{d}, s{d}, s67')
            acc(96, 0, 1)
            for q in range(4): acc(97, 1+2*q, 2+2*q)
            for q in range(3): acc(98, 2+2*q, 3+2*q)
            acc(99, 8, 9)
            a(f's_add_u32 s100, s100, {nK}\ns_add_u32 s101, s101, 1')
        assert [x for x in lg.q if x[0] != 'P'] == self.ENTRY, lg.q
        self.inunit = False
        self.dispatch(ph)
    HALF = {0: [int(c) for c in opt('half0', '3') if c != '0'], 1: [int(c) for c in opt('half1', '23') if c != '0']}
    def target(self, code, ph):
        nK = code >> 1
        return f'K2_U{nK}{"h" if (not code & 1 and nK in self.HALF[ph]) else ""}{ph}'
    def dispatch(self, ph, check=True):
        if not check:
            self.a(f"""
            s_mov_b32 s{sCB}, s{sNBs}
            s_mov_b32 s{sPP}, s{sCP}
            s_mov_b32 s{sC4}, s{sN4}
            s_mov_b32 s{sCP}, s{sNP}
            s_bfe_u32 s{sEX}, s{sN4}, 0x40012""")
        for code in (5, 6): self.a(f's_cmp_eq_u32 s{sEX}, {code}\ns_cbranch_scc1 {self.target(code, ph)}')
        self.a(f's_branch K2_DSP{ph}')

    def flag_load(self):
        self.fl = f'buffer_load_dwordx4 v[56:59], v60, s[{sWS}:{sWS+3}], s{sT+6} offen sc1'
        return f'v_lshlrev_b32 v60, 3, v{VL2}\ns_mov_b32 s{sT+6}, {WS_FLG}\n{self.fl}'
    def flag_check(self, wait):
        ws = f's[{sWS}:{sWS+3}]'
        self.ool(f"""
        K2_FLGR:
        s_sub_u32 s{sSPIN}, s{sSPIN}, 16
        s_cbranch_scc1 K2_END
        {self.fl}
        s_waitcnt vmcnt(0)
        s_branch K2_FLGW
        K2_FLGY:
        v_mov_b32 v56, s{sTAG}
        v_mov_b32 v57, {WS_EPO}
        s_mov_b64 exec, 1
        buffer_store_dword v56, v57, {ws}, 0 offen sc1
        s_mov_b64 exec, -1
        s_branch K2_FLGOK
        """)
        return f"""{wait}
        K2_FLGW:
        {f's_mov_b32 s{sT}, s{sB}' if opt('fp', 0) == 2 else f's_or_b32 s{sT}, s{sB}, s{sW}'}
        v_xor_b32 v56, s{sTAG}, v56
        v_xor_b32 v57, s{sTAG}, v57
        v_xor_b32 v58, s{sTAG}, v58
        v_xor_b32 v59, s{sTAG}, v59
        v_or3_b32 v56, v56, v57, v58
        v_or_b32 v56, v56, v59
        v_cmp_ne_u32 vcc, 0, v56
        s_cbranch_vccnz K2_FLGR
        s_cmp_eq_u32 s{sT}, 0
        s_cbranch_scc1 K2_FLGY
        K2_FLGOK:"""
    def wload(self, ph, vl16, paths, dst):
        for k, p in enumerate(paths):
            self.a(f's_mov_b32 s{sT}, {WS_WTAB + ph*10240 + p*2048}')
            for u in range(2): self.a(f'buffer_load_dwordx4 v[{dst(p)+4*u}:{dst(p)+4*u+3}], v{vl16}, s[{sWS}:{sWS+3}], s{sT} offen offset:{u*1024} sc1')
    def wunp(self, paths, src):
        return [f'v_lshlrev_b32 v{WR+16*p+2*i}, 16, v{src(p)+i}\nv_and_b32 v{WR+16*p+2*i+1}, 0xffff0000, v{src(p)+i}' for p in paths for i in range(8)]

    def fill_rows(self, vL, base):
        return f'''
        v_and_b32 v76, 31, v{vL}
        v_lshrrev_b32 v77, 5, v{vL}
        v_mov_b32 v80, 0
        v_mul_u32_u24 v77, {NSTR}, v77
        v_mov_b32 v81, 0xffff0000
        v_lshl_add_u32 v78, v76, 4, v77
        v_mov_b32 v82, 0
        v_add_u32 v78, {base}, v78
        v_mov_b32 v83, v81
        '''
    def fill_slots(self, vL, base):
        return f'''
        v_add_u32 v85, 16, v{vL}
        v_lshlrev_b32 v84, 5, v{vL}
        v_lshrrev_b32 v85, 6, v85
        v_mul_u32_u24 v85, {E4}, v85
        v_sub_u32 v84, v84, v85
        v_mov_b32 v85, -1
        v_add_u32 v84, {base}, v84
        '''
    def fill_all(self, vL):
        a = self.a
        a(f's_mul_i32 s{sT}, s{sW}, {5*NSTR}\ns_add_u32 s{sT}, s{sT}, {RECBASE}\ns_add_u32 s{sT+1}, s{sT}, {OA}' + self.fill_rows(vL, f's{sT}') + self.fill_slots(vL, f's{sT+1}'))
        for i in range(5): a(f'ds_write_b32 v84, v85 offset:{i*NSTR}')
        a('s_mov_b32 exec_hi, 0')
        for i in range(5): a(f'ds_write_b128 v78, v[80:83] offset:{i*NSTR}')
        a('s_mov_b32 exec_hi, -1')
    def fill_w5(self):
        a = self.a
        a(self.fill_rows(8, RECBASE) + f'v_add_u32 v79, {20*NSTR}, v78')
        for i in range(20): a(f'ds_write_b128 v{78 + i//10}, v[80:83] offset:{(i%10)*2*NSTR}')
    def fill_w6(self, n0, n1):
        a = self.a
        if n0 >= n1: return
        a(self.fill_slots(8, RECBASE + OA + n0*NSTR) + f'v_add_u32 v86, {20*NSTR}, v84')
        for i in range(n1 - n0): a(f'ds_write_b32 v{84 + 2*(i//20)}, v85 offset:{(i%20)*NSTR}')
    def counters(self, vL, first):
        self.a(f'''
        v_mov_b32 v76, 0
        v_mov_b32 v77, -1
        v_lshlrev_b32 v78, 2, v{vL}
        v_add_u32 v78, {HIST}, v78
        s_mov_b64 exec, 0x1ff
        ds_write_b32 v78, v76 offset:{PROG-HIST}
        s_mov_b32 exec_lo, 1
        {f'ds_write_b32 v78, v76 offset:{OKW-HIST}   ; flags not seen yet' if first else ''}
        {f'ds_write_b32 v78, v76 offset:{ARR-HIST}' if opt('sb', 0) else ''}
        s_mov_b32 exec_lo, -1
        ds_write_b32 v78, v77 offset:{NULLSRC-HIST}
        s_mov_b64 exec, -1
        {'' if first else f's_cmp_lg_u32 s{sRND}, 0'}
        {'' if first else f's_cbranch_scc1 K2_NOH'}
        s_mov_b32 exec_hi, 0xffff
        ds_write_b32 v78, v76
        s_mov_b64 exec, 1
        ds_write_b32 v78, v76 offset:{FLAG-HIST}
        s_mov_b64 exec, -1
        ''')
    def srds(self):
        a = self.a
        srd(a, sX, 80, N*1024); srd(a, sOUT, 96, N*1024); srd(a, sEA, 84, E*32)
        a('s_sub_u32 s80, s80, 1024\ns_subb_u32 s81, s81, 0'); srd(a, sX2, 80, N*1024 + 1024)
    def consts(self, vL):
        vao = f'v_lshlrev_b32 v{VAO}, 6, v89\nv_lshl_add_u32 v{VAO}, v88, 3, v{VAO}\nv_add_u32 v{VAO}, {OA}, v{VAO}'
        vyo = f"""v_lshrrev_b32 v90, 3, v84
        v_lshl_add_u32 v90, v90, 1, v86
        v_sub_u32 v90, v90, 1 clamp
        v_lshlrev_b32 v{VYO}, 1, v90
        v_lshl_add_u32 v91, v85, 2, v88
        v_lshl_add_u32 v{VYO}, v91, 4, v{VYO}
        v_and_b32 v91, 1, v87
        v_lshl_add_u32 v{VYO}, v91, 3, v{VYO}"""
        if MX:
            vao = f"""v_lshrrev_b32 v90, 4, v{vL}
            v_and_b32 v91, 1, v87
            v_lshl_add_u32 v91, v90, 1, v91
            v_lshlrev_b32 v{VAO}, 6, v91
            v_lshrrev_b32 v91, 1, v87
            v_lshl_add_u32 v{VAO}, v91, 5, v{VAO}
            v_lshl_add_u32 v{VAO}, v88, 3, v{VAO}
            v_add_u32 v{VAO}, {OA}, v{VAO}"""
            vyo = f"""v_and_b32 v91, 1, v88
            v_lshl_add_u32 v91, v90, 1, v91
            v_lshlrev_b32 v{VYO}, 4, v91
            v_lshrrev_b32 v91, 1, v88
            v_lshl_add_u32 v{VYO}, v91, 3, v{VYO}
            v_lshl_add_u32 v{VYO}, v87, 1, v{VYO}"""
        if ZR == 1: vao = f"""v_lshrrev_b32 v90, 1, v87
        v_lshl_add_u32 v90, v85, 2, v90
        v_lshlrev_b32 v90, 6, v90
        v_add_u32 v90, {OA}, v90
        v_mov_b32 v{VAO}, {ZERO}
        s_mov_b32 exec_lo, {DL}
        s_mov_b32 exec_hi, {DL}
        v_mov_b32 v{VAO}, v90
        s_mov_b64 exec, -1
        v_lshl_add_u32 v{VAO}, v88, 3, v{VAO}"""
        self.a(f'''
        v_and_b32 v84, 15, v{vL}                ; i
        v_lshrrev_b32 v85, 5, v{vL}             ; h
        v_bfe_u32 v86, v{vL}, 4, 1
        v_lshrrev_b32 v87, 2, v84
        v_and_b32 v88, 3, v84                   ; c
        v_lshl_add_u32 v89, v85, 2, v87
        {vao}
        {vyo}
        v_lshrrev_b32 v90, 1, v88
        v_lshl_add_u32 v90, v86, 1, v90         ; chunk (u = 0)
        v_bfe_u32 v91, v87, 1, 1
        v_lshlrev_b32 v91, 2, v91
        v_xor_b32 v90, v90, v91
        v_lshlrev_b32 v90, 4, v90
        v_lshl_add_u32 v90, v89, 7, v90
        v_and_b32 v91, 1, v88
        v_lshl_add_u32 v90, v91, 3, v90
        v_add_u32 v{VB0}, s{sRING}, v90
        v_xor_b32 v{VB1}, 64, v{VB0}
        v_lshrrev_b32 v90, 3, v{vL}
        v_lshlrev_b32 v{VSO}, 4, v90
        v_bfe_u32 v90, v90, 1, 1
        v_lshlrev_b32 v90, 2, v90
        v_and_b32 v91, 7, v{vL}
        v_xor_b32 v90, v90, v91
        v_lshlrev_b32 v{VLG}, 4, v90
        v_lshlrev_b32 v{VL2}, 1, v{vL}
        {'' if MG == 2 else f'v_mov_b32 v{G+6}, -1'}
        {'' if MG == 2 else f'v_mov_b32 v{G+7}, -1'}
        v_and_b32 v{VH16}, 1, v{vL}
        v_lshlrev_b32 v{VH16}, 4, v{VH16}
        v_lshrrev_b32 v90, 1, v{vL}
        v_lshlrev_b32 v90, 5, v90
        v_add_u32 v{VEO}, {OA}, v90
        ''')
    def pad(self, name, ret):
        return f'K2_PAD_{name}:\ns_branch {ret}' if name in opt('pads', self.PADS).split('_') and opt('pad', 1) else ''
    def padx(self, name, ret):
        return f'K2_PAD_{name}:\ns_cbranch_execz {ret}' if name in opt('pads', self.PADS).split('_') and opt('pad', 1) else ''
    PADS = 'S1_S2_H1_H2_H3_B3_LD_NW_SC_SD_U20_U30_U21_U31_SW_TL_T2'
    def hops(self, names, ret):
        if not opt('pad', 1): return
        self.a('s_mov_b64 exec, 0')
        for w, n in names:
            if n in opt('pads', self.PADS).split('_'): self.a(f's_cmp_eq_u32 s{sW}, {w}\ns_cbranch_scc1 K2_PAD_{n}')
        self.a(f'{ret}:\ns_mov_b64 exec, -1')
    def stage_sort(self, vL, vT_):
        a = self.a; st = mod('recst', 'sc1')
        RAW = 24576
        a(f"""
        s_cmp_lg_u32 s{sW}, 7
        s_cbranch_scc1 KS_NOTAG
        s_mov_b32 s24, {WS_EPO}
        s_mov_b64 exec, 1
        buffer_load_dword v14, v6, s[{sWS}:{sWS+3}], s24 offen sc1
        s_mov_b64 exec, -1
        """)
        srd(a, 60, 98, 256)
        sstamp(a, 1); a('s_barrier'); sstamp(a, 3)
        self.counters(8, True)
        if ZR: a(f'v_lshlrev_b32 v78, 2, v8\nv_add_u32 v78, {ZERO}, v78\n' + '\n'.join(f'ds_write_b32 v78, v76 offset:{512*i}' for i in range(3)))
        self.fill_w6(opt('n6', 40), 40)
        XM = opt('xm', 0); xm = ''
        if XM:
            o = Asm(); srd(o, 64, 80, N*1024)
            o(f's_mov_b64 exec, -1\ns_mul_i32 s24, s2, {40*1024}\nv_lshlrev_b32 v16, {opt("xms", 8)}, v8')
            for i in range(XM): o(f'buffer_load_dword v17, v16, s[64:67], s24 offen {mod("xmm", "")}\ns_add_u32 s24, s24, {64 << opt("xms", 8)}')
            o('s_mov_b64 exec, 1'); xm = o.text()
        a(f"""
        s_mov_b64 exec, 1
        buffer_load_dword v15, v6, s[60:63], 0 offen sc1
        {xm}
        v_mov_b32 v12, {NONCE}
        s_mov_b32 s24, 1664525
        s_waitcnt vmcnt({1 + XM})
        v_mul_lo_u32 v59, v14, s24
        v_add_u32 v59, 1013904223, v59
        ds_write2_b32 v12, v59, v6 offset0:0 offset1:1
        {'s_memrealtime s[86:87]' if PROFS else ''}
        s_waitcnt lgkmcnt(0)
        s_barrier
        s_waitcnt vmcnt({XM})
        v_mov_b32 v62, v15
        ds_write_b32 v12, v15 offset:4
        v_cmp_ne_u32 vcc, 0, v15
        s_mov_b32 s24, 0x40000
        s_waitcnt lgkmcnt(0)
        s_barrier
        {'s_branch' if opt('nofl', 0) else 's_cbranch_vccnz'} KS_FLOK
        KS_FLW:
        s_sub_u32 s24, s24, 1
        s_cbranch_scc1 K2_END
        buffer_load_dword v62, v6, s[60:63], 0 offen sc1
        s_waitcnt vmcnt(0)
        v_cmp_ne_u32 vcc, 0, v62
        s_cbranch_vccz KS_FLW
        ds_write_b32 v12, v62 offset:4
        KS_FLOK:
        s_mov_b64 exec, -1
        s_branch KS_JOIN
        KS_H0:
        s_barrier
        s_branch KS_HELP
        {self.pad('S1', 'KS_HOP0')}
        KS_NOTAG:
        s_cmp_ge_u32 s{sW}, 5
        s_cbranch_scc1 {'KS_H0' if opt('eb1', 0) else 'KS_HELP'}
        s_cmp_ge_u32 s2, {NCH}
        s_cbranch_scc1 KS_IDLE
        """)
        srd(a, 40, 88, E*4)
        a(f'buffer_load_dwordx4 v[12:15], v5, s[40:43], s64 offen')
        srd(a, 44, 86, E*4); srd(a, 48, 82, E*6)
        a(f"""
        buffer_load_dwordx4 v[16:19], v5, s[44:47], s64 offen
        buffer_load_dwordx4 v[20:23], v4, s[48:51], s65 offen
        buffer_load_dwordx2 v[24:25], v4, s[48:51], s65 offen offset:16
        v_lshlrev_b32 v2, 2, v0                 ; t*4
        s_lshl_b32 s64, s64, 3
        v_lshl_add_u32 v3, v0, 7, s64
        v_mov_b32 v7, 1
        s_setprio {opt('sp4', 2)}
        s_cmp_eq_u32 s{sW}, 4
        s_cbranch_scc1 KS_NOCLR
        s_setprio {opt('sp0', 1)}
        ds_write_b32 v2, v6
        KS_NOCLR:
        """)
        sstamp(a, 1); a('s_waitcnt lgkmcnt(0)\ns_barrier'); sstamp(a, 3)
        self.hops([(0, 'B3'), (1, 'LD'), (2, 'NW'), (3, 'SC'), (4, 'SD')], 'KS_HOP')
        a(f's_mov_b32 s58, {PMUL}\ns_movk_i32 s59, 625\ns_waitcnt vmcnt(3)')
        sstamp(a, 5)
        w = sort_rank(a, self.padx('S2', 'KS_HOP0'))
        a('s_waitcnt lgkmcnt(0)')
        for j in range(4): a(f'ds_read_b32 v{32+j}, v{32+j} offset:1024')
        for x in w: a(x)
        sort_emit(a, st)
        a(f"""
        s_branch KS_JOIN
        {self.pad('B3', 'KS_HOP')}
        KS_B3:
        v_mov_b32 v59, {NONCE}
        ds_read_b32 v59, v59
        v_mov_b32 v62, {FLIP}
        s_waitcnt lgkmcnt(0)
        s_barrier
        ds_read_b32 v62, v62
        KS_JOIN:
        {'s_setprio 0' if opt('spr', 1) else ''}
        v_readfirstlane_b32 s{sTAG}, v59
        s_mov_b32 s25, 0x400000
        {f's_bitcmp1_b32 {hex(opt("jp", 0))}, s{sW}' + chr(10) + 's_cbranch_scc0 KS_JOIN2' + chr(10) + 's_setprio 1' if opt('jp', 0) else ''}
        KS_JOIN2:
        s_waitcnt lgkmcnt(0)
        {'s_mov_b32 s24, 1' if opt('nofl', 0) else 'v_readfirstlane_b32 s24, v62'}
        s_cmp_eq_u32 s24, 0
        s_cbranch_scc1 KS_FLS
        s_bfe_u32 s24, s24, 0x10001
        s_xor_b32 s{sB}, s{sB}, s24
        s_lshr_b32 s{sNB}, s{sB}, 1
        {f's_bfe_u32 s24, s{sB}, 0x20004' + chr(10) + f's_xor_b32 s{sNB}, s{sNB}, s24' if XS else ''}
        s_mul_i32 s{sNB}, s{sNB}, 625
        s_add_u32 s{sNC}, s{sNB}, {625+7}
        s_add_u32 s{sNB}, s{sNB}, 7
        s_lshr_b32 s{sNB}, s{sNB}, 3
        s_lshr_b32 s{sNC}, s{sNC}, 3
        s_add_u32 s24, s{sNB}, {SPL}
        s_sub_u32 s{sNC}, s{sNC}, s24
        s_bitcmp1_b32 s{sB}, 0
        s_cselect_b32 s{sNB}, s24, s{sNB}
        s_cselect_b32 s{sNC}, s{sNC}, {SPL}
        """)
        self.ool(f'KS_FLS:\ns_sub_u32 s25, s25, 1\ns_cbranch_scc1 K2_END\nv_mov_b32 v62, {FLIP}\nds_read_b32 v62, v62\ns_branch KS_JOIN2')
        stamp(a, 6)
    def helpers(self):
        a = self.a; RAW = 24576
        a(f"""
        {self.pad('H1', 'KS_HOP0')}
        KS_HELP:
        {'s_memrealtime s[78:79]' if PROFS else ''}
        s_mov_b32 s30, 0
        s_cmp_eq_u32 s{sW}, 6
        s_cbranch_scc1 KS_RAW
        s_mov_b32 s30, 2
        s_cmp_ge_u32 s2, 170
        s_cbranch_scc1 KS_NOW
        s_mov_b32 s30, 1
        """)
        weight_loads(a)
        a('K1_GO:\nKS_NOW:\n' + ('' if opt('eb1', 0) else 's_barrier\n') + self.padx('H2', 'KS_HOP0'))
        sstamp(a, 3)
        self.fill_w5()
        a('KS_FILL:')
        sstamp(a, 5)
        a(f'v_mov_b32 v59, {NONCE}\ns_barrier\nds_read_b32 v59, v59')
        a(f"""
        s_waitcnt vmcnt(0) lgkmcnt(0)
        s_cmp_eq_u32 s30, 0
        s_cbranch_scc1 KS_B3
        s_cmp_eq_u32 s30, 2
        s_cbranch_scc1 KS_NOST
        v_lshl_or_b32 v40, v65, 16, v64
        v_lshl_or_b32 v41, v67, 16, v66
        v_lshl_or_b32 v42, v69, 16, v68
        v_lshl_or_b32 v43, v71, 16, v70
        buffer_store_dwordx4 v[40:43], v9, s[{sWS}:{sWS+3}], s24 offen sc1
        KS_NOST:
        v_mov_b32 v62, {FLIP}
        s_waitcnt lgkmcnt(0)
        s_barrier
        ds_read_b32 v62, v62
        s_lshl_b32 s24, s2, 2
        s_add_u32 s24, s24, {WS_FLG}
        s_mov_b64 exec, 1
        s_waitcnt vmcnt(0)
        buffer_store_dword v59, v6, s[{sWS}:{sWS+3}], s24 offen sc1
        s_mov_b64 exec, -1
        s_branch KS_JOIN
        {self.pad('H3', 'KS_HOP0')}
        KS_RAW:
        s_cmp_lg_u32 s2, 0
        s_cbranch_scc1 KS_NOX
        """)
        srd(a, 60, 98, 256)
        a(f"""
        s_getreg_b32 s24, hwreg(HW_REG_XCC_ID, 0, 1)
        {'s_xor_b32 s24, s24, 1' if opt('fx', 0) else ''}
        s_add_u32 s24, s24, 1
        v_mov_b32 v10, s24
        v_mov_b32 v11, 0
        s_mov_b64 exec, 1
        buffer_atomic_cmpswap v[10:11], v6, s[60:63], 0 offen sc1
        s_mov_b64 exec, -1
        KS_NOX:
        {'' if opt('eb1', 0) else 's_barrier'}
        """)
        srd(a, 60, 90, 16*640*2)
        a('v_lshrrev_b32 v10, 3, v8\nv_and_b32 v11, 7, v8\nv_lshlrev_b32 v10, 8, v10\nv_lshl_add_u32 v10, v11, 4, v10')
        for i in range(20):
            a(f's_mov_b32 m0, {(W1L if i >= 10 else RAW) + (i % 10)*1024}\ns_movk_i32 s24, {(i % 10)*2048 + (i // 10)*128}\nbuffer_load_dwordx4 v10, s[60:63], s24 offen lds')
        sstamp(a, 3)
        self.fill_w6(0, opt('n6', 40))
        a('s_branch KS_FILL\nKS_IDLE:\ns_barrier\ns_barrier\ns_branch KS_B3')
    def wraw(self, vL2, t, base, dst):
        a = self.a
        a(f'''
        v_lshrrev_b32 v{t}, 6, v{vL2}             ; h
        v_bfe_u32 v{t+1}, v{vL2}, 3, 2            ; row
        v_lshl_add_u32 v{t}, v{t}, 2, v{t+1}
        v_mul_u32_u24 v{t}, 640, v{t}
        v_bfe_u32 v{t+1}, v{vL2}, 5, 1
        v_lshl_add_u32 v{t}, v{t+1}, 5, v{t}
        v_and_b32 v{t+1}, 6, v{vL2}
        v_lshl_add_u32 v{t}, v{t+1}, 2, v{t}
        v_add_u32 v{t}, {base}, v{t}
        ''')
        for i in range(20):
            p, u, rq = i >> 2, (i >> 1) & 1, i & 1
            a(f'ds_read_b64_tr_b16 v[{dst(p)+2*(i&3)}:{dst(p)+2*(i&3)+1}], v{t} offset:{rq*8*640 + p*128 + u*64}')

    def gen(self):
        a = self.a
        vL, vT_, vC, vE, vREM, vOFF = 176, 177, 178, 179, 180, 181
        RK = 40
        NBs = 50
        t0 = 192
        ws = f's[{sWS}:{sWS+3}]'
        def loop(done, body):
            for i in range(U):
                a(f'v_cmp_lt_i32 vcc, {2*i}, v{vREM}\ns_cbranch_vccz {done}\ns_mov_b64 exec, vcc')
                a(body(i))
            a(f'{done}:\ns_mov_b64 exec, -1')
        a('s_cmp_ge_u32 s2, 256\ns_cbranch_scc1 K2_END')
        stamp(a, 0)
        a(f'''
        s_load_dwordx16 s[80:95], s[0:1], 0
        s_load_dwordx4 s[96:99], s[0:1], 72
        s_load_dwordx2 s[100:101], s[0:1], 88   ; ws
        v_lshrrev_b32 v1, 6, v0
        s_mov_b32 s{sB}, s2
        v_readfirstlane_b32 s{sW}, v1
        ''')
        self.hops([(0, 'S1'), (1, 'S2'), (5, 'H1'), (6, 'H2'), (2, 'H3')], 'KS_HOP0')
        a(f'''
        v_and_b32 v8, 63, v0
        v_lshlrev_b32 v9, 4, v8                 ; lane*16
        v_mov_b32 v6, 0
        v_lshlrev_b32 v5, 4, v0                 ; t*16
        v_mul_u32_u24 v4, 24, v0
        s_mul_i32 s64, s2, {CH*4}
        s_mul_i32 s65, s2, {CH*6}
        v_mov_b32 v{vL}, v8
        v_mov_b32 v{vT_}, v0
        s_movk_i32 s{s1024}, 1024
        s_lshl_b32 s{sRING}, s{sW}, 13
        s_mov_b32 s{sPROG}, {PROG}
        s_lshl_b32 s{sPROGW}, s{sW}, 2
        s_add_u32 s{sPROGW}, s{sPROGW}, s{sPROG}
        {chr(10).join(f's_add_u32 s{sM0+i}, s{sRING}, {i*2048}' for i in range(4))}
        s_waitcnt lgkmcnt(0)
        ''')
        if opt('wsoff', 0): a(f's_add_u32 s100, s100, {opt("wsoff", 0) << 20}\ns_addc_u32 s101, s101, 0')
        srd(a, sWS, 100, WS_SIZE)
        self.stage_sort(vL, vT_)
        a(f'''
        s_mov_b32 s{sJ0}, 0
        s_mov_b32 s{sFIRST}, 1
        s_mov_b32 s{sRND}, 0
        s_mov_b32 s{sR}, 1
        K2_CELLS:
        v_lshrrev_b32 v{vC}, 1, v{vT_}          ; cell
        v_min_u32 v{vC}, {NCH-1}, v{vC}
        v_mul_u32_u24 v72, {TSTR}, v{vC}
        s_and_b32 s{sT}, s{sB}, 7
        s_lshl_b32 s{sT}, s{sT}, 7
        s_lshr_b32 s{sT+1}, s{sB}, 5
        s_lshl_b32 s{sT+1}, s{sT+1}, 4
        s_add_u32 s{sT+9}, s{sT}, s{sT+1}
        s_add_u32 s{sT+9}, s{sT+9}, {WS_TBL}
        ''')
        PL = opt('pl', 3); tld = f'buffer_load_dwordx4 v[76:79], v72, {ws}, s{sT+9} offen sc1'
        if PL == 0: a(tld)
        a(f's_cmp_eq_u32 s{sFIRST}, 0\ns_cbranch_scc1 K2_NOSRD')
        self.srds()
        HP = opt('hp', 1) if PL >= 3 else 0
        far = lambda: self.hops([(int(w), n) for w, n in zip(opt('hw', '0123756'), ('U20', 'U30', 'U21', 'U31', 'SW', 'TL', 'T2'))], 'K2_HOP')
        if HP == 0: far()
        a('K2_NOSRD:')
        if PL == 1: a(tld)
        self.consts(vL)
        if PL == 2: a(tld)
        WS0 = lambda p: WR + 40 + 8*p
        if PL >= 3:
            a(f's_cmp_eq_u32 s{sFIRST}, 0\ns_cbranch_scc1 K2_NOW0')
            self.wraw(VL2, 60, 24576, WS0)
            a('s_waitcnt lgkmcnt(0)')
            u = self.wunp(range(5), WS0); m = opt('plu', 16)
            for x in u[:m]: a(x)
            a(tld)
            if HP == 1: far()
            for x in u[m:]: a(x)
            if HP == 2: far()
            a('K2_W0:')
            self.ool(f'K2_NOW0:\n{tld}\ns_branch K2_W0')
        def chk(r): return f"""
            v_xor_b32 v73, s{sT+1}, v{r}
            v_xor_b32 v74, s{sT+1}, v{r+1}
            v_or_b32 v73, v73, v74
            v_xor_b32 v74, s{sTAG}, v{r+3}
            v_lshrrev_b32 v73, 22, v73
            v_or_b32 v73, v73, v74
            v_cmp_ne_u32 vcc, 0, v73"""
        a(f'''
        s_lshl_b32 s{sT+1}, s{sTAG}, 22
        s_mov_b32 s{sT+2}, 0x40000
        s_bfe_u32 s{sT+3}, s{sB}, 0x10004
        s_bfe_u32 s{sT+4}, s{sB}, 0x10003
        s_add_u32 s{sT+5}, s{sT+3}, s{sT+4}
        s_mul_i32 s{sT+4}, s{sT+4}, 11
        s_sub_u32 s{sT+6}, 11, s{sT+4}
        v_cmp_gt_u32 vcc, {2*NCH}, v{vT_}
        s_mov_b64 s[{sEX}:{sEX+1}], vcc
        K2_POLL:
        ''')
        if opt('poll2', 0): a(f'''
        buffer_load_dwordx4 v[80:83], v72, {ws}, s{sT+9} offen sc1
        s_waitcnt vmcnt(1)
        {chk(76)}
        s_cbranch_vccz K2_POLLED
        s_sub_u32 s{sT+2}, s{sT+2}, 1
        s_cbranch_scc1 K2_END
        buffer_load_dwordx4 v[76:79], v72, {ws}, s{sT+9} offen sc1
        s_waitcnt vmcnt(1)
        {chk(80)}
        s_cbranch_vccnz K2_POLL
        s_add_u32 s{sT+3}, s{sT+3}, 4
        s_add_u32 s{sT+5}, s{sT+5}, 4
        ''')
        else: a(f'''
        s_waitcnt vmcnt(0)
        {chk(76)}
        s_cbranch_vccz K2_POLLED
        s_sub_u32 s{sT+2}, s{sT+2}, 1
        s_cbranch_scc1 K2_END
        s_mov_b64 exec, vcc
        buffer_load_dwordx4 v[76:79], v72, {ws}, s{sT+9} offen sc1
        s_mov_b64 exec, -1
        s_branch K2_POLL
        {self.pad('LD', 'KS_HOP')}
        ''')
        a(f'''
        K2_POLLED:
        s_set_gpr_idx_on s{sT+3}, gpr_idx(SRC0)
        v_bfe_u32 v{vE}, v76, s{sT+4}, 11
        s_set_gpr_idx_idx s{sT+5}
        v_bfe_u32 v73, v76, s{sT+6}, 11
        s_set_gpr_idx_off
        v_sub_u32 v73, v73, v{vE}
        ''')
        o = Asm(); sv = self.a; self.a = o
        o(f'''
        K2_WINDOW:
        s_mov_b32 s{sRND}, 0
        s_mov_b32 s{sR}, 1
        K2_LOAD:
        v_mbcnt_lo_u32_b32 v{vL}, -1, 0
        v_mbcnt_hi_u32_b32 v{vL}, -1, v{vL}
        s_lshl_b32 s{sT}, s{sW}, 6
        v_add_u32 v{vT_}, s{sT}, v{vL}
        v_lshlrev_b32 v70, 4, v{vL}
        ''')
        self.wload(0, 70, range(5), lambda p: WR + 40 + 8*p)
        self.fill_all(vL)
        o(f's_cmp_lg_u32 s{sW}, 7\ns_cbranch_scc1 K2_NOH')
        self.counters(vL, False)
        o('K2_NOH:\ns_waitcnt lgkmcnt(0)\ns_barrier\ns_branch K2_CELLS')
        self.a = sv; self.ool(o.text())
        stamp(a, 1)
        a(f'''
        v_cndmask_b32 v73, 0, v73, s[{sEX}:{sEX+1}]
        v_and_b32 v1, 1, v{vT_}
        v_add_u32 v1, s{sJ0}, v1                ; j0 + sub
        v_sub_u32 v{vREM}, v73, v1
        v_add_u32 v{vE}, v{vE}, v1
        v_mul_u32_u24 v{vOFF}, {CSTR}, v{vC}
        v_lshl_add_u32 v{vOFF}, v{vE}, 4, v{vOFF}
        ''')
        MK = [f's[{r}:{r+1}]' for r in (40, 42, 44, 46, 48, 50, 90, 92, 94, 96)]
        def mloop(done, body):
            for i in range(U): a(f's_mov_b64 exec, {MK[i]}\ns_cbranch_execz {done}\n' + body(i))
            a(f'{done}:\ns_mov_b64 exec, -1')
        M = opt('cm', 1); NL = opt('nl', 3); vOFM, vEM = vOFF + 1, vOFF + 4; LIST = 45056
        adr = lambda i, r, rm, st: f'v{rm + i - M}, {{}} offen' if M <= i < M + NL else f'v{r}, {{}} offen offset:{st*i}'
        ld = lambda i: f'buffer_load_dwordx4 v[{4*i}:{4*i+3}], ' + adr(i, vOFF, vOFM, 32).format(f'{ws}, 0') + ' sc1'
        for i in range(M): a(f'v_cmp_lt_i32 {MK[i]}, {2*i}, v{vREM}')
        a(f'v_add_u32 v{vOFM}, {32*M}, v{vOFF}\ns_mov_b32 s{sT+7}, 0')
        for i in range(M):
            a(f's_mov_b64 exec, {MK[i]}\n{ld(i)}')
        a('s_mov_b64 exec, -1')
        for i in range(M, U): a(f'v_cmp_lt_i32 {MK[i]}, {2*i}, v{vREM}')
        for j in range(1, NL): a(f'v_add_u32 v{vOFM+j}, {32*(M+j)}, v{vOFF}')
        a(f"""
        v_subrev_u32 v62, {2*M - 1}, v{vREM}
        v_ashrrev_i32 v62, 1, v62
        v_med3_i32 v62, v62, 0, {U - M}
        s_cmp_eq_u64 {MK[M]}, 0
        s_cbranch_scc1 K2_LD_DONE
        v_mov_b32 v63, v62
        """)
        scan(a, 63)
        a(f"""
        s_lshl_b32 s{sT}, s{sW}, 10
        s_add_u32 s{sT}, s{sT}, {LIST}
        v_readlane_b32 s{sT+1}, v63, 63
        v_sub_u32 v63, v63, v62
        v_lshl_add_u32 v64, v63, 2, s{sT}
        v_lshlrev_b32 v63, 5, v63
        v_sub_u32 v63, v{vOFM}, v63
        s_cmp_gt_u32 s{sT+1}, {63*NL}
        s_cbranch_scc1 K2_LD_GEN
        """)
        for i in range(M, U): a(f's_mov_b64 exec, {MK[i]}\ns_cbranch_execz K2_LD_L\nds_write_b32 v64, v63 offset:{4*(i-M)}')
        a(f"""
        K2_LD_L:
        s_mov_b64 exec, -1
        v_lshl_add_u32 v63, v{vL}, 2, s{sT}
        v_lshlrev_b32 v62, 5, v{vL}
        s_waitcnt lgkmcnt(0)
        """)
        for j in range(NL): a(f'ds_read_b32 v{64+j}, v63 offset:{4*63*j}')
        for j in range(NL): a(f's_min_u32 s{sT+2}, s{sT+1}, 63\ns_sub_u32 s{sT+1}, s{sT+1}, s{sT+2}\ns_bfm_b64 {MK[M+j]}, s{sT+2}, 0')
        a(f's_mov_b64 {MK[M+NL]}, 0\ns_mov_b32 s{sT+7}, 1')
        for j in range(NL):
            a(f's_mov_b32 s{sT+2}, {32*63*j}\ns_waitcnt lgkmcnt({NL-1-j})\nv_add3_u32 v{vOFM+j}, v62, v{64+j}, s{sT+2}\ns_mov_b64 exec, {MK[M+j]}\n{ld(M+j)}')
        a(f"""
        K2_LD_DONE:
        s_mov_b64 exec, -1
        """)
        self.ool('K2_LD_GEN:\n' + ''.join(f's_mov_b64 exec, {MK[i]}\ns_cbranch_execz K2_LD_DONE\n{ld(i)}\n' for i in range(M, U)) + 's_branch K2_LD_DONE')
        a(f"""
        s_cmp_eq_u32 s{sFIRST}, 0
        s_cbranch_scc1 K2_WLATE
        """)
        if PL >= 3: self.ool('K2_WLATE:\ns_waitcnt vmcnt(0)\n' + '\n'.join(self.wunp(range(5), WS0)) + '\ns_branch K2_NOWRAW')
        else:
            self.ool('K2_WLATE:\ns_waitcnt vmcnt(0)\ns_branch K2_WUNP')
            self.wraw(VL2, 60, 24576, WS0)
            a('s_waitcnt lgkmcnt(0)\nK2_WUNP:')
            for x in self.wunp(range(5), WS0): a(x)
        a(f"""
        K2_NOWRAW:
        {self.padx('NW', 'KS_HOP')}
        v_lshrrev_b32 v{vE}, 2, v{vOFF}
        {chr(10).join(f'v_lshrrev_b32 v{vEM+j}, 2, v{vOFM+j}' for j in range(NL))}
        s_mov_b32 s{sT+8}, {WS_RANK}
        v_mov_b32 v{t0+9}, 1
        s_movk_i32 s{sT}, {NSTR//4}
        s_movk_i32 s{sT+1}, {NSTR}
        s_mov_b32 s{sT+2}, 0x40000
        s_mov_b32 s{sT+3}, 0xffff
        v_mov_b32 v{t0+10}, {RECBASE}
        s_cmp_lg_u32 s{sRND}, 0
        s_cbranch_scc1 K2_RK_LOAD
        v_cmp_lt_i32 vcc, {2*U}, v{vREM}
        s_cbranch_vccz K2_NOMORE
        v_mov_b32 v61, {FLAG}
        ds_write_b32 v61, v{t0+9}
        K2_NOMORE:
        s_mov_b32 s{sT+4}, {RECBASE + opt("tp", 8)*NSTR}
        s_cmp_eq_u32 s{sT+7}, 0
        s_waitcnt vmcnt({NL})
        s_cbranch_scc0 K2_ARR
        s_waitcnt vmcnt(0)
        K2_ARR:
        """)
        stamp(a, 2)
        prep = lambda i: f'v_mad_u32_u24 v{NBs+i}, v{NBs+i}, s{sT}, v{t0+10}\nv_and_b32 v{4*i+3}, 0xffffff, v{4*i+3}'
        def rank(i):
            self.ool(f'K2_RT{i}:\ns_sub_u32 s{sT+2}, s{sT+2}, 1\ns_cbranch_scc1 K2_END\n' + ('s_mov_b64 exec, vcc\n' if opt('rtm', 1) else '') + f'{ld(i)}\ns_mov_b64 exec, {MK[i]}\ns_waitcnt vmcnt(0)\ns_branch K2_CK{i}')
            return (f's_waitcnt vmcnt({M + NL - 1 - (0 if TE else i)})\n' if M <= i < M + NL else '') + f"""K2_CK{i}:
            v_bfi_b32 v{t0}, s{sT+3}, v{4*i+1}, v{4*i+2}
            v_lshrrev_b32 v{NBs+i}, 24, v{4*i+3}
            v_cmp_ne_u32 vcc, s{sTAG}, v{t0}
            v_add_u32 v{RK+i}, {HIST}, v{NBs+i}
            s_cbranch_vccnz K2_RT{i}
            ds_add_rtn_u32 v{RK+i}, v{RK+i}, v{t0+9}
            """ + (f"""v_cmp_gt_u32 vcc, {4*opt('tp', 8)}, v{NBs+i}
            v_and_b32 v{4*i+3}, 0xffffff, v{4*i+3}
            v_cndmask_b32 v{t0}, -1, v{4*i+3}, vcc
            buffer_load_dword v245, v{t0}, s[{sEA}:{sEA+3}], 0 offen {mod("tpm", "")}
            """ if TE else '') + (prep(i).split('\n')[0] if (opt('tp', 8)) else prep(i))
        TE = opt('te', 0) and opt('tp', 8)
        mloop('K2_RK_A', rank)
        a(pstamp(5))
        if opt('tp', 8) and not TE:
            mloop('K2_TP', lambda i: f'v_cmp_gt_u32 vcc, s{sT+4}, v{NBs+i}\n' + prep(i).split('\n')[1] + f'\ns_mov_b64 exec, vcc\nbuffer_load_dword v245, v{4*i+3}, s[{sEA}:{sEA+3}], 0 offen {mod("tpm", "")}')
        o = Asm(); b = a; a = o
        a(f'K2_RK_LOAD:\ns_waitcnt vmcnt(0)')
        mloop('K2_RK_B', lambda i: f'v_lshrrev_b32 v{NBs+i}, 24, v{4*i+3}\nbuffer_load_dword v{RK+i}, ' + adr(i, vE, vEM, 8).format(f'{ws}, s{sT+8}') + '\n' + prep(i))
        a(f's_mul_i32 s{sT+4}, s{sRND}, 48\ns_waitcnt vmcnt(0)')
        for i in range(U): a(f'v_subrev_u32 v{RK+i}, s{sT+4}, v{RK+i}')
        a('s_branch K2_RK_DONE')
        self.ool(o.text()); a = b
        a(f"""
        K2_RK_DONE:
        {self.padx('SC', 'KS_HOP')}
        s_mul_i32 s{sT+9}, s{sRND}, 48
        s_movk_i32 s{sT}, {-E4}
        s_waitcnt lgkmcnt(0)
        {pstamp(7)}
        """)
        for i in range(U):
            rr = RK + i; base = NBs + i
            a(f"""s_mov_b64 exec, {MK[i]}
            s_cbranch_execz K2_SC_DONE
            v_cmpx_gt_u32 vcc, 64, v{rr}
            v_bfe_u32 v{t0+2}, v{rr}, 3, 1
            v_add_u32 v{t0+1}, 16, v{rr}
            v_lshl_or_b32 v{t0+2}, v{rr}, 1, v{t0+2}
            v_bfi_b32 v{t0+2}, 15, v{t0+2}, v{rr}
            v_lshrrev_b32 v{t0+1}, 6, v{t0+1}
            v_alignbit_b32 v{4*i+1}, v{4*i+2}, v{4*i+1}, 16
            v_lshl_add_u32 v{t0+3}, v{t0+2}, 3, v{base}
            v_lshl_add_u32 v{t0+2}, v{t0+2}, 5, v{base}
            ds_write_b64 v{t0+3}, v[{4*i}:{4*i+1}]
            v_mad_i32_i24 v{t0+2}, v{t0+1}, s{sT}, v{t0+2}
            ds_write_b32 v{t0+2}, v{4*i+3} offset:{OA}
            """)
        d = t0 + 1; k = t0 + 2; e = t0 + 3; p = t0 + 4; x = t0 + 5; pl = t0 + 6
        a(f'''
        K2_SC_DONE:
        s_mov_b64 exec, -1
        {self.padx('SD', 'KS_HOP')}
        v_lshlrev_b32 v{t0}, 2, v{vL}
        v_add_u32 v{t0}, {HIST}, v{t0}
        v_mov_b32 v{t0+8}, {FLAG}
        s_cmp_eq_u32 s{sRND}, 0
        s_cselect_b32 s{sLIM}, 64, 48
        {pstamp(8)}
        s_waitcnt lgkmcnt(0)
        {pstamp(9)}
        s_barrier
        {pstamp(10)}
        ds_read_b32 v{d}, v{t0}
        ds_read_b32 v{t0+8}, v{t0+8}
        v_cmp_gt_u32 s[{sEX}:{sEX+1}], s{sNC}, v{vL}
        v_mad_u32_u24 v{e}, v{vL}, s{sT+1}, v{t0+10}
        s_waitcnt lgkmcnt(0)
        v_cndmask_b32 v{d}, 0, v{d}, s[{sEX}:{sEX+1}]
        v_readfirstlane_b32 s{sMORE}, v{t0+8}
        v_cmp_lt_u32 s[{sT+4}:{sT+5}], 48, v{d}
        v_cmp_lt_u32 vcc, 64, v{d}
        s_bcnt1_i32_b64 s{sT+2}, s[{sT+4}:{sT+5}]
        v_mbcnt_lo_u32_b32 v{pl}, s{sT+4}, 0
        v_mbcnt_hi_u32_b32 v{pl}, s{sT+5}, v{pl}
        s_cbranch_vccnz K2_BIG
        s_cmp_gt_u32 s{sT+2}, {NPOOL}
        s_cbranch_scc1 K2_BIG
        K2_TOK:
        v_subrev_u32 v{k}, s{sT+9}, v{d}
        v_max_i32 v{k}, 1, v{k}
        v_min_i32 v{k}, s{sLIM}, v{k}
        v_add_u32 v{k}, 15, v{k}
        v_lshrrev_b32 v{k}, 3, v{k}
        v_lshl_or_b32 v{e}, v{k}, 18, v{e}
        v_lshl_or_b32 v{e}, v{pl}, 28, v{e}
        v_mov_b32 v{x}, {NULLBASE | (3 << 18)}
        v_cndmask_b32 v{VTAB}, v{x}, v{e}, s[{sEX}:{sEX+1}]
''')
        o = Asm(); b = a; a = o
        a(f'''
        K2_BIG:
        s_cmp_lg_u32 s{sRND}, 0
        s_cbranch_scc1 K2_TOK
        s_movk_i32 s{sLIM}, 48
        v_mov_b32 v{x}, v{d}
        ''')
        scan(a, x, 'v_max_u32')
        for dd in range(48, 512*U + 48): assert (dd * 43691) >> 21 == dd // 48
        a(f'''
        v_readlane_b32 s{sR}, v{x}, 63
        s_add_u32 s{sR}, s{sR}, 47
        s_mul_i32 s{sR}, s{sR}, 43691
        s_lshr_b32 s{sR}, s{sR}, 21
        ''')
        for i in range(U):
            a(f's_mov_b64 exec, {MK[i]}\ns_cbranch_execz K2_SV_DONE\nbuffer_store_dword v{RK+i}, ' + adr(i, vE, vEM, 8).format(f'{ws}, s{sT+8}'))
        a('K2_SV_DONE:\ns_mov_b64 exec, -1\ns_branch K2_TOK')
        self.ool(o.text()); a = b
        for q in range(4): a(f's_movk_i32 s{sOWN+q}, {q*256 + 128*(FL >> q & 1)}')
        a(f'''
        s_add_u32 s{sRND}, s{sRND}, 1
        s_cmp_ge_u32 s{sRND}, s{sR}
        s_cselect_b32 s{sLAST}, 1, 0
        s_cmp_eq_u32 s{sMORE}, 0
        s_cselect_b32 s{sLAST}, s{sLAST}, 0
        s_mov_b32 s{sSPIN}, 0x400000
        s_mov_b32 s{sJ}, 0
        s_mov_b32 s{sNPH}, 0
        s_mov_b32 s{sNP}, 0
        s_mov_b32 s{sNV}, 1
        s_mov_b32 s{sCP}, 0
        s_mov_b32 s{sT}, s{sW}
        ''')
        lg = LG(a)
        self.emit(self.next_info(0), lg)
        stamp(a, 3)
        if MG == 2: a(f'v_mov_b32 v{self.L.G3}, -1\nv_mov_b32 v{self.L.G3 + 1}, -1')
        pre = self.eread()
        for t in range(3): pre += self.sread(t)
        if opt('fp', 0) == 1: pre += [self.flag_load()]
        pre += self.adma()
        for t in range(3): pre += self.gmad(t)
        for t in range(PD): pre += self.ndma(t, t)
        pre += [self.aadd(VAO, sNBs), f'v_add_u32 v{VYO}, s{sNBs}, v{VYO}']
        if True:
            pre += [f'''v_bfe_u32 v{t0}, v{VTAB}, 18, 4
            s_sub_u32 s{sT}, s{sNC}, {opt('lpt', 16)}
            v_cmp_le_u32 vcc, {opt('lptc', 6)}, v{t0}
            v_cmp_gt_u32 s[{sT+2}:{sT+3}], s{sT}, v{vL}
            s_or_b64 vcc, vcc, s[{sT+2}:{sT+3}]
            v_mbcnt_lo_u32_b32 v{t0}, vcc_lo, 0
            v_mbcnt_hi_u32_b32 v{t0}, vcc_hi, v{t0}
            s_bcnt1_i32_b64 s{sT}, vcc
            v_sub_u32 v{t0+1}, v{vL}, v{t0}
            v_add_u32 v{t0+1}, s{sT}, v{t0+1}
            v_cndmask_b32 v{t0}, v{t0+1}, v{t0}, vcc
            v_lshlrev_b32 v{t0}, 2, v{t0}
            ds_permute_b32 v{t0+1}, v{t0}, v{vL}
            s_waitcnt lgkmcnt(0)
            v_lshl_or_b32 v{VTAB}, v{t0+1}, 22, v{VTAB}''']
        pre += [pstamp(11), f's_waitcnt vmcnt({2*PD - 2})']
        self.emit(pre, lg)
        stamp(a, 4)
        if SEG: a('\n'.join(f's_mov_b32 s{i}, 0' for i in range(96, 102)))
        self.emit(self.bread(0) + self.areads(0) + self.areads(1), lg)
        if opt('fa', 0): a(f's_cmp_ge_u32 s{sW}, 4\ns_cselect_b64 vcc, -1, 0')
        if opt('fp', 0) == 1: a(self.flag_check(''))
        self.dispatch(0, check=False)
        self.helpers()
        for ph in range(2):
            for nK in (2, 3):
                a(self.pad(f'U{nK}{ph}', 'K2_HOP'))
                self.unit(nK, ph, nK == 3 and 3 in self.HALF[ph])
            if 3 in self.HALF[ph]: self.unit(3, ph)
            if 2 in self.HALF[ph]: self.unit(2, ph, True)
        hot = self.outline; self.outline = []
        a(self.pad('SW', 'K2_HOP'))
        for ph in range(2):
            a(f'K2_DSP{ph}:')
            for code in (4, 7): a(f's_cmp_eq_u32 s{sEX}, {code}\ns_cbranch_scc1 {self.target(code, ph)}')
            a(f's_cmp_gt_u32 s{sEX}, 7\ns_cbranch_scc1 K2_U4{ph}\ns_cmp_lg_u32 s{sEX}, 0\ns_cbranch_scc1 K2_U1{ph}' + ('\ns_branch K2_TAIL' if ph else '\ns_branch K2_SWITCH'))
        a('K2_SWITCH:')
        if SEG and opt('segp', 1): a('\n'.join(f's_mov_b32 s{i}, 0' for i in range(96, 102)))
        stamp(a, 5)
        FP = opt('fp', 0)
        if not FP: a(self.flag_load())
        self.L = Lay(0)
        self.emit(self.fin(3, 0, sPP), LG(a))
        self.L = L = Lay(1)
        a(f'v_bfe_u32 v61, v{VTAB}, 22, 6\nv_lshlrev_b32 v62, 21, v{VL2}\ns_mov_b32 s{sT}, {63 << 22}\nv_lshlrev_b32 v61, 2, v61\nv_bfi_b32 v62, s{sT}, v62, v{VTAB}\nds_bpermute_b32 v{VTAB}, v61, v62')
        WP = lambda p: WR + 16*p + 8
        self.wraw(VL2, VT0, W1L, WP)
        for q in range(4): a(f's_movk_i32 s{sOWN+q}, {q*256 + 128*(~FL >> q & 1)}')
        for x in self.qregs(): a(x)
        a(f'v_lshl_add_u32 v{L.VPA}, v{VL2}, 1, s{sNP}\nv_lshrrev_b32 v{L.VH}, 6, v{VL2}\nv_mul_u32_u24 v{L.VH}, 126, v{L.VH}')
        if ZR == 2:
            self.z = True
            a(f"""v_bfe_u32 v61, v{VL2}, 4, 1
            v_lshrrev_b32 v62, 6, v{VL2}
            v_lshl_add_u32 v61, v62, 2, v61
            s_add_u32 s{sT}, s{sNBs}, {OA}
            v_lshl_add_u32 v61, v61, 6, s{sT}
            v_mov_b32 v{VAO}, {ZERO}
            s_mov_b32 exec_lo, {DL}
            s_mov_b32 exec_hi, {DL}
            v_mov_b32 v{VAO}, v61
            s_mov_b64 exec, -1
            v_and_b32 v61, 6, v{VL2}
            v_lshl_add_u32 v{VAO}, v61, 2, v{VAO}""")
        for p in range(5):
            a(f's_waitcnt lgkmcnt({min(15, 16 - 4*p)})')
            for x in self.wunp((p,), WP): a(x)
        if MG == 1:
            for d, r in ((L.y(0), 16), (L.y(1), 17), (L.G3, G + 6), (L.G3 + 1, G + 7)): a(f'v_mov_b32 v{d}, v{r}')
        if not FP: a(self.flag_check('s_waitcnt vmcnt(0)'))
        if FP == 2:
            a(f's_cmp_eq_u32 s{sTK}, 0\ns_cbranch_scc1 K2_FLGL\nK2_FLGD:')
            self.ool('K2_FLGL:\n' + self.flag_load() + '\n' + self.flag_check('s_waitcnt vmcnt(0)') + f'\nv_mov_b32 v56, {OKW}\nv_mov_b32 v57, 1\nds_write_b32 v56, v57\ns_branch K2_FLGD')
        a(f"""s_cmp_eq_u32 s{sNV}, 0
        s_cbranch_scc1 K2_TAIL2
        {'s_waitcnt lgkmcnt(0)' if ZR == 2 else ''}
        """)
        if not FUSE: stamp(a, 6)
        self.dispatch(1, check=False)
        isunit = lambda t: t.startswith(('K2_dyn', 'K2_dum', 'K2_nul', 'K2_spin', 'K2_es'))
        for t in hot:
            if isunit(t): a(t)
        a(self.pad('TL', 'K2_HOP'))
        self.L = Lay(1)
        self.tail()
        for t in hot:
            if not isunit(t): a(t)
        for ph in range(2):
            for nK in (1, 4): self.unit(nK, ph)
        for t in self.outline: a(t)
        a('K2_END:\ns_endpgm')
        return a.lines, 256

    @staticmethod
    def sreg(f): return WR + 16*(0, 2, 1, 3, 4)[f >> 2] + 4*(f & 3)
    def spre(self, v, at=0): return f'v_lshlrev_b32 v{v}, 3, v{VL2}\ns_mul_i32 s{sT}, s{sW}, {20*1024}\ns_add_u32 s{sT}, s{sT}, {WS_STAB + at*4096}'
    def sload(self, v, order=range(20), at=0):
        sl = []
        for f in order:
            mv = ''
            if f // 4 != at: mv = f's_add_u32 s{sT}, s{sT}, {(f//4 - at)*4096 & 0xffffffff}\n'; at = f // 4
            sl.append(mv + f'buffer_load_dwordx4 v[{self.sreg(f)}:{self.sreg(f)+3}], v{v}, s[{sWS}:{sWS+3}], s{sT} offen offset:{(f%4)*1024} sc1')
        return sl
    def tail(self):
        a = self.a
        ws = f's[{sWS}:{sWS+3}]'
        vP0 = 222; vP1 = 223; vS = 226; vSP = 227; vRow = 228; vL16 = 229
        vQ0 = 232; vSt = 254; vS2 = 255; vS3 = 246; vQ0a = 247; vQ1a = 248; vRow2 = 249
        OP = 176
        PRE = opt('pre', 0); ES = opt('es', 0); assert not (PRE and ES)
        order = [4, 5, 6, 7, 14, 15, 16, 17, 18, 19, 0, 1, 2, 3, 8, 9, 10, 11, 12, 13] if PRE else list(range(20))
        sl = self.sload(vL16, order)
        rowb = f'\ns_mul_i32 s{sT+1}, s{sW}, {8192+32}'
        done = [f'v_mov_b32 v{VT0}, s{sPROGW}', f'v_mov_b32 v{VT1}, -1', f's_mov_b64 exec, 1\nds_write_b32 v{VT0}, v{VT1}\ns_mov_b64 exec, -1'] if PRE else []
        SB = opt('sb', 0); NE = opt('ne', 0 if SB else 6 if ES else 8); N0 = 8 if ES else 0
        adr = [f'v_lshl_add_u32 v{vRow}, v{VL2}, 1, s{sT+1}', f'v_lshrrev_b32 v{vS}, 6, v{VL2}', f'v_mul_u32_u24 v{vS}, 126, v{vS}', f'v_sub_u32 v{vS}, v{vRow}, v{vS}']
        if opt('fp', 0) == 2:
            self.ool(f"""K2_OKW:
            s_sub_u32 s{sSPIN}, s{sSPIN}, 1
            s_cbranch_scc1 K2_END
            v_mov_b32 v56, {OKW}
            ds_read_b32 v56, v56
            s_waitcnt lgkmcnt(0)
            v_readfirstlane_b32 s{sT+2}, v56
            s_cmp_eq_u32 s{sT+2}, 0
            s_cbranch_scc1 K2_OKW
            s_cmp_eq_u32 s{sTK}, -1
            s_cbranch_scc1 K2_TAIL1
            s_branch K2_TAIL2B""")
            a(f'K2_TAIL2:\ns_mov_b32 s{sTK}, 0\ns_branch K2_OKW\nK2_TAIL2B:\n' + self.spre(vL16) + rowb)
        else: a('K2_TAIL2:\n' + self.spre(vL16) + rowb)
        for x in sl[:N0 + NE] + adr: a(x)
        a('s_branch K2_TAIL3\nK2_TAIL:')
        stamp(a, 7)
        if opt('fp', 0) == 2: a(f'v_readlane_b32 s{sT+2}, v{T2}, 9\ns_mov_b32 s{sTK}, -1\ns_cmp_eq_u32 s{sT+2}, 0\ns_cbranch_scc1 K2_OKW\nK2_TAIL1:')
        a(self.spre(vL16, 1 if ES else 0) + rowb)
        f3 = self.fin(3, 1) + adr; w = []; m = (len(f3) + NE - 1) // NE if NE else 0
        for i in range(NE): w += [sl[N0 + i]] + f3[m*i:m*i+m]
        self.emit(w + f3[m*NE:], LG(a))
        a('K2_TAIL3:')
        for x in done: a(x)
        PFD = opt('profd', 0)
        if PFD: a('s_memtime s[78:79]')
        a(f's_waitcnt vmcnt({NE})')
        if PFD: a('s_memtime s[80:81]')
        dump = []
        if opt('w2st', 1):
            rows = [(P0 + 6*j + k, 6*j + k) for j in range(5) for k in range(5)]
            for i in range(0, 24, 2): dump.append(f'ds_write2st64_b32 v{vRow}, v{rows[i][0]}, v{rows[i+1][0]} offset0:{rows[i][1]} offset1:{rows[i+1][1]}')
            dump.append(f'ds_write_b32 v{vRow}, v{rows[24][0]} offset:{rows[24][1]*256}')
            for j in range(5): dump.insert(4*j + 2, f'ds_write_b16 v{vS}, v{P0+6*j+5} offset:{j*1536 + 1280}')
        else:
            for j in range(5):
                for k in range(5): dump.append(f'ds_write_b32 v{vRow}, v{P0+6*j+k} offset:{j*1536 + k*256}')
                dump.append(f'ds_write_b16 v{vS}, v{P0+6*j+5} offset:{j*1536 + 1280}')
        assert RECBASE % 256 == 0 and NSTR % 256 == 32
        DS = opt('ds', 0)
        dsa = f"""s_add_u32 s{sT+2}, s{sNB}, 32
        s_sub_u32 s{sT+3}, s{sNC}, 32
        v_add_u32 v51, s{sT+2}, v54
        v_cmp_gt_u32 vcc, s{sT+3}, v54
        v_lshl_add_u32 v51, v51, 10, v49
        v_mov_b32 v53, 0x7ff00000
        v_cndmask_b32 v51, v53, v51, vcc
        v_lshl_add_u32 v{vS3}, v55, 9, v51
        v_lshl_add_u32 v{vS2}, v55, 30, v51"""
        calc = f"""
        v_bfe_u32 v48, v{VL2}, 1, 4             ; n & 15
        v_lshrrev_b32 v49, 5, v{VL2}            ; slab
        v_lshrrev_b32 v55, 3, v48
        v_lshlrev_b32 v52, 4, v49               ; slab*16
        v_and_b32 v54, 7, v48                   ; node of the last group in column n
        v_and_b32 v50, 7, v48
        v_mul_u32_u24 v50, {8192+32}, v50
        v_mul_u32_u24 v51, 1536, v55
        v_add_u32 v50, v50, v51                 ; slot of node n
        v_add_u32 v{vP0}, v50, v52
        v_mul_u32_u24 v51, {8192+32}, v54
        v_add_u32 v{vQ0}, v51, v52
        v_lshl_add_u32 v{vQ0a}, v55, 8, v{vQ0}
        v_mul_u32_u24 v51, {NSTR}, v48
        s_mov_b32 s{sT+2}, {RECBASE}
        v_add3_u32 v{vP1}, v51, v52, s{sT+2}
        v_mul_u32_u24 v51, {NSTR}, v54
        s_mov_b32 s{sT+2}, {RECBASE + 32*NSTR}
        v_add3_u32 v{vP1+2}, v51, v52, s{sT+2}
        v_lshl_add_u32 v{vQ1a}, v55, 8, v{vP1+2}
        s_lshl_b32 s{sT+2}, s{sW}, 5
        v_lshl_add_u32 v49, v49, 3, s{sT+2}
        {dsa if DS else f's_mov_b32 s{sT+2}, {RECBASE}' + chr(10) + f'v_add3_u32 v{vS2}, v51, v49, s{sT+2}' + chr(10) + f'v_lshl_add_u32 v{vS3}, v55, 9, v{vS2}'}
        v_bfe_u32 v53, v48, 2, 1
        v_lshl_add_u32 v49, v53, 4, v49
        v_add_u32 v{vSt}, v50, v49
        s_and_b32 s{sT+6}, s{sLAST}, s{sFIRST}  ; plain single-round case
        """.strip().split('\n')
        rest = sl[N0 + NE:]
        if SB:
            a(f'v_mov_b32 v56, {ARR}\nv_mov_b32 v57, 1\ns_mov_b64 exec, 1\nds_add_rtn_u32 v57, v56, v57\ns_mov_b64 exec, -1')
            while dump:
                for x in dump[:1] + calc[:opt('sbc', 1)]: a(x)
                dump = dump[1:]; calc = calc[opt('sbc', 1):]
        else:
            per = max(2, (len(dump) + len(rest) - 1) // max(1, len(rest)))
            while dump or rest:
                for x in dump[:per] + rest[:1] + calc[:2]: a(x)
                dump = dump[per:]; rest = rest[1:]; calc = calc[2:]
        if PFD: a('s_memtime s[82:83]')
        for x in calc: a(x)
        if PFD: a('s_memtime s[84:85]')
        if PRE: a(f'v_lshl_add_u32 v48, v{VL2}, 1, s{sPROG}\nds_read_b32 v49, v48\ns_mov_b32 s{sT+7}, {RECBASE + 32*NSTR}')
        a('s_waitcnt lgkmcnt(0)')
        late = f"""
        s_bfe_u32 s{sT+2}, s{sW}, 0x10002
        s_lshl_b32 s{sT+2}, s{sT+2}, 4
        s_add_u32 s{sT+1}, s{sT+1}, s{sT+2}
        v_add_u32 v{vRow}, s{sT+1}, v{vL16}
        {'' if DS else f's_mul_i32 s{sT+2}, s{sW}, {NSTR}' + chr(10) + f's_add_u32 s{sT+2}, s{sT+2}, {RECBASE}' + chr(10) + f'v_add_u32 v{vRow2}, s{sT+2}, v{vL16}'}
        s_mov_b32 s{sT+5}, 0xbfb8aa3b           ; -log2(e)
        s_add_u32 s{sOWN}, s{sW}, s{sNB}
        s_lshl_b32 s{sOWN}, s{sOWN}, 10
        """.strip().split('\n') + [f's_add_u32 s{sOWN+j}, s{sOWN}, {j*8192}' for j in range(1, 4 if DS else 5)]
        late = [x for x in late if x.strip()]
        if PRE:
            a(f"""s_cmp_eq_u32 s{sT+6}, 0
            s_cbranch_scc1 K2_MULTI
            K2_PREW:
            v_cmp_gt_u32 vcc, s{sT+7}, v49
            s_setprio {opt('pp', 0)}
            s_and_b32 s{sT+8}, vcc_lo, 0xff
            s_cbranch_scc1 K2_PRES""")
            self.ool(f'K2_PRES:\ns_sub_u32 s{sSPIN}, s{sSPIN}, 1\ns_cbranch_scc1 K2_END\nds_read_b32 v49, v48\ns_waitcnt lgkmcnt(0)\ns_branch K2_PREW')
            stamp(a, 8)
        elif SB:
            stamp(a, 8)
            a(f'v_readfirstlane_b32 s{sT+7}, v57\ns_cmp_ge_u32 s{sT+7}, {opt("sbt", 6)}\ns_cbranch_scc1 K2_ARRL')
            for x in rest: a(x)
            a('s_barrier\ns_branch K2_ARRG\nK2_ARRL:\ns_barrier')
            for x in rest: a(x)
            a('K2_ARRG:')
            stamp(a, 9)
            a(f's_cmp_eq_u32 s{sT+6}, 0\ns_cbranch_scc1 K2_MULTI')
        else:
            stamp(a, 8); a('s_barrier'); stamp(a, 9)
            a(f's_cmp_eq_u32 s{sT+6}, 0\ns_cbranch_scc1 K2_MULTI')
        part = {}
        for g in range(3):
            def ad(ph, row, hh, packed=False):
                o = self.SROW[row]*128 + hh*64
                if g < 2: return (vP1, g*16*NSTR + o) if ph else (vP0, g*3072 + o)
                return ((vQ1a if packed else vP1+2), o) if ph else ((vQ0a if packed else vQ0), 4*1536 + o)
            for ph in range(2):
                part[g, ph, 0] = [(16*g, ph*4 + rs*2 + hh) + ad(ph, rs, hh) for rs in range(2) for hh in range(2)]
                part[g, ph, 1] = [(16*g + 4 + 4*j, 8 + ph*6 + path*2 + hh) + ad(ph, 2 + 3*j + path, hh, j == 0) for path in range(3) for hh in range(2) for j in range(3 if g < 2 else 2)]
        seq = [(g, ph, o) for g in range(3) for o in range(2) for ph in range(2)]
        if PRE: seq = [(0,1,0), (1,1,0), (0,1,1), (1,1,1), (0,0,0), (1,0,0), (0,0,1), (1,0,1)] + seq[8:]
        GF = opt('gf', 1) and not PRE
        if GF: seq = [(g, ph, 0) for g in range(3) for ph in range(2)] + [(g, ph, 1) for g in range(3) for ph in range(2)]
        steps = [x for k in seq for x in part[k]]
        if GF and opt('il', 0): steps[:24] = [part[g, ph, 0][i] for ph in range(2) for i in range(4) for g in range(3)]
        for path in range(3): assert self.SROW[8 + path] == self.SROW[2 + path] + 2
        NB = 12; D = 10
        def epi(g, part=3):
            c = 16*g; o = OP + 8*(g & 1); s = []; tp = 204 + 4*g; o0 = 220 if g == 2 else o
            if part & 1:
                for r in range(4): s.append(f'v_mul_f32 v{tp+r}, s{sT+5}, v{c+r}')
                for r in range(4): s.append(f'v_exp_f32 v{tp+r}, v{tp+r}')
                for r in range(4): s.append(f'v_add_f32 v{tp+r}, 1.0, v{tp+r}')
                for r in range(4): s.append(f'v_rcp_f32 v{tp+r}, v{tp+r}')
                s += [f'v_cvt_pk_bf16_f32 v{o0}, v{c}, v{c+1}', f'v_cvt_pk_bf16_f32 v{o0+1}, v{c+2}, v{c+3}']
            if part & 2:
                for j in range(3 if g < 2 else 2):
                    for r in range(4): s.append(f'v_mul_f32 v{c+4+4*j+r}, v{c+4+4*j+r}, v{tp+r}')
                    s += [f'v_cvt_pk_bf16_f32 v{o+2+2*j}, v{c+4+4*j}, v{c+5+4*j}', f'v_cvt_pk_bf16_f32 v{o+3+2*j}, v{c+6+4*j}, v{c+7+4*j}']
            return s
        def stage(g, part=3):
            o = OP + 8*(g & 1)
            if g < 2: w = [(rt, vSt, g*3072) for rt in range(4)]
            else: w = [(0, vS2, 0), (1, vS3, 0), (2, vS2, 0)]
            src = lambda rt: 220 if (g, rt) == (2, 0) else o + 2*rt
            if g == 2 and DS: return [f'buffer_store_dwordx2 v[{src(rt)}:{src(rt)+1}], v{r}, s[{sOUT}:{sOUT+3}], 0 offen offset:{rt*256} {mod("outst2","sc1")}' for rt, r, b in w if part & (2 if rt else 1)]
            return [(f'ds_write_b64 v{r}, v[{src(rt)}:{src(rt)+1}] offset:{b + rt*256}', [(f'w{g}', False)]) for rt, r, b in w if part & (2 if rt else 1)]
        def rowread(g):
            if g == 2: return [(f'ds_read_b128 v[200:203], v{vRow2}', [('r2', False)])]
            return [(f'ds_read_b128 v[{192+4*(j&1)}:{195+4*(j&1)}], v{vRow} offset:{j*1536}', [(f'r{g}', False)]) for j in (2*g, 2*g+1)]
        def rowstore(g):
            s = [('wait', f'r{g}')]
            for j in ((2*g, 2*g+1) if g < 2 else (4,)):
                b = 192 + 4*(j & 1) if g < 2 else 200
                s += [f'buffer_store_dwordx4 v[{b}:{b+3}], v{vL16}, s[{sOUT}:{sOUT+3}], s{sOWN+j} offen {mod("outst","sc1")}']
            return s
        def gemm(lg, extra):
            def rd(k):
                c, f, r, o = steps[k]
                b = 48 + 4*(k % NB)
                self.emit([(f'ds_read_b128 v[{b}:{b+3}], v{r} offset:{o}', [(f'k{k}', False)])], lg)
            D0 = opt('d0', D); nxt = D0
            for k in range(D0): rd(k)
            seen = [-1]; started = set()
            for k in range(len(steps)):
                c, f, r, o = steps[k]
                for _ in range(2):
                    if nxt <= k + D and nxt < len(steps): rd(nxt); nxt += 1
                vm = None
                if order.index(f) > seen[0]: seen[0] = order.index(f); vm = 19 - seen[0]
                kk = min(k + 1, len(steps) - 1) if (opt('w2', 1) and k % 2 == 0) else k
                self.emit([('wait', f'k{kk}', vm)], lg)
                b = 48 + 4*(k % NB)
                cin = f'v[{c}:{c+3}]' if c in started else '0'; started.add(c)
                a(f'v_mfma_f32_16x16x32_bf16 v[{c}:{c+3}], v[{self.sreg(f)}:{self.sreg(f)+3}], v[{b}:{b+3}], {cin}')
                self.emit(extra.get(k, []), lg)
        lg = LG(a); extra = {}
        def spread(items, k0, k1):
            for i, x in enumerate(items): extra.setdefault(k0 + i*(k1 - k0 + 1)//len(items), []).append(x)
        spread(late, 2, 8)
        if self.padx('T2', 'K2_HOP'): extra.setdefault(opt('t2k', 41), []).append(self.padx('T2', 'K2_HOP'))
        b0 = opt('b0', 72 if PRE else 62 if GF else 46); e0 = opt('e0', 84 if PRE else 80 if GF else 64); b1 = opt('b1', 86 if DS else 98 if GF else 90); r0 = opt('r0', 92 if DS else 104 if GF else 98); e1 = opt('e1', 108 if DS else 113 if GF else 108)
        b2 = opt('b2', 113); r1 = opt('r1', 118); assert GF or not DS
        bA = min(opt('bA', 33), 44 - D - 1)
        if PRE:
            extra.setdefault(bA, []).extend(([f's_memtime s[{76+2*9}:{77+2*9}]'] if 0 else []) + ['s_barrier'] + ([f'{"s_memtime" if opt("cyc", False) else "s_memrealtime"} s[94:95]'] if PROF else []))
            spread(epi(0, 1), 50, opt('g0', 60))
            spread(epi(1, 1), opt('g0', 60) + 1, opt('g1', 71))
            extra.setdefault(b0, []).append('s_barrier')
            spread(epi(0, 2), 72, e0)
            extra.setdefault(e0 + 1, []).extend(stage(0))
        elif GF:
            il = opt('il', 0); g0 = opt('g0', 36 if il else 26); g1 = opt('g1', 47 if il else 42)
            spread(epi(0, 1), 25 if il else 11, g0); spread(epi(1, 1), g0 + 1, g1); spread(epi(2, 1), g1 + 1, opt('g2', 58))
            extra.setdefault(b0, []).append('s_barrier')
            spread(epi(0, 2), 60 + 3, e0)
            extra.setdefault(e0 + 1, []).extend(stage(0) + stage(2, 1))
        else:
            spread(epi(0, 1), 12, 40)
            if not opt('nob0', 0): extra.setdefault(b0, []).append('s_barrier')
            spread(epi(0, 2), 44 + 3, e0)
            extra.setdefault(e0 + 1, []).extend(stage(0))
            spread(epi(1, 1), e0 + 2, 86)
        extra.setdefault(b1, []).extend([('wait', 'w2' if (GF and not DS) else 'w0')] + ([] if opt('nob1', 0) else ['s_barrier']) + rowread(0))
        spread(epi(1, 2), (96 if GF else 88) + 3, e1)
        extra.setdefault(r0, []).extend(rowstore(0))
        extra.setdefault(e1 + 1, []).extend(stage(1))
        if DS:
            extra.setdefault(b2, []).extend([('wait', 'w1'), 's_barrier'] + rowread(1))
            extra.setdefault(r1, []).extend(rowstore(1))
        if not GF:
            spread(epi(2, 1), max(e1 - 8, 100), 117)
            extra.setdefault(118, []).extend(stage(2, 1))
        if opt('gp', 1):
            for k0, k1 in ((bA if PRE else -1, b0), (b0, b1), (b1, b2 if DS else len(steps))):
                fr = [float(x) for x in opt('gpf', '0.3_0.6_0.87').split('_')]
                if k0 >= 0: extra.setdefault(k0, []).append('s_setprio 3')
                for i, f in enumerate(fr): extra.setdefault(k0 + int((k1 - k0)*f), []).append(f's_setprio {2-i}')
            if not PRE: a('s_setprio 3')
        if PROFT and not PFD:
            for i, k in enumerate((0, 23, 59, 81, 97, 113) if GF else (0, 8, 43, 66, 87, 104)): extra.setdefault(k, []).append(f'{"s_memtime" if opt("cyc", False) else "s_memrealtime"} s[{78+2*i}:{79+2*i}]')
        if opt('noepi', 0): extra = {k: [x for x in v if not (isinstance(x, str) and x.startswith(('v_cvt', 'v_exp', 'v_rcp', 'v_mul_f32', 'v_add_f32')[:opt('noepi', 0)]))] for k, v in extra.items()}
        gemm(lg, extra)
        stamp(a, 10)
        if DS:
            e = epi(2, 2); st = stage(2, 2)
            self.emit(e[:6] + st[:1] + e[6:] + st[1:], lg)
        else:
            self.emit(epi(2, 2) + stage(2, 2) + [('wait', 'w2'), 's_barrier'] + rowread(1) + rowread(2) + rowstore(1), lg)
            a(f'K2_LASTROW:\ns_add_u32 s{sT+1}, s{sW}, 32\ns_cmp_ge_u32 s{sT+1}, s{sNC}\ns_cbranch_scc1 K2_FIN\ns_waitcnt lgkmcnt(0)')
            self.emit(rowstore(2), LG(a))
        a('K2_FIN:')
        if PROF:
            stamp(a, 11); a('s_waitcnt vmcnt(0)'); stamp(a, 12); stamp_out(a, 13, 1, sW, sB, sWS)
        a('s_endpgm')
        a('K2_MULTI:' + ('\ns_barrier' if PRE else ''))
        lg = LG(a)
        gemm(lg, {})
        a(f"""
        s_lshl_b32 s{sT+2}, s{sB}, 9
        s_lshl_b32 s{sT+3}, s{sW}, 6
        s_add_u32 s{sT+2}, s{sT+2}, s{sT+3}
        s_mul_i32 s{sT+2}, s{sT+2}, 192
        s_add_u32 s{sT+2}, s{sT+2}, {WS_ACC}
        v_mul_u32_u24 v{vSP}, 96, v{VL2}        ; lane*192
        s_cmp_lg_u32 s{sFIRST}, 0
        s_cbranch_scc1 K2_NOACC
        """)
        for i in range(11): a(f'buffer_load_dwordx4 v[{48+4*i}:{51+4*i}], v{vSP}, {ws}, s{sT+2} offen offset:{16*i}')
        a('s_waitcnt vmcnt(0)')
        for i in range(44): a(f'v_add_f32 v{i}, v{i}, v{48+i}')
        a(f'K2_NOACC:\ns_barrier\ns_cmp_eq_u32 s{sLAST}, 0\ns_cbranch_scc1 K2_SPILL')
        self.emit(late, lg)
        for g in range(2):
            self.emit(epi(g) + stage(g) + [('wait', f'w{g}'), 's_barrier'] + rowread(g) + rowstore(g), lg)
        self.emit(epi(2) + stage(2) + ([] if DS else [('wait', 'w2'), 's_barrier'] + rowread(2)), lg)
        a(f's_branch {"K2_FIN" if DS else "K2_LASTROW"}\nK2_SPILL:')
        for i in range(11): a(f'buffer_store_dwordx4 v[{4*i}:{4*i+3}], v{vSP}, {ws}, s{sT+2} offen offset:{16*i}')
        a(f"""
        s_mov_b32 s{sFIRST}, 0
        s_waitcnt vmcnt(0)
        s_cmp_lt_u32 s{sRND}, s{sR}
        s_cbranch_scc1 K2_LOAD
        s_add_u32 s{sJ0}, s{sJ0}, {2*U}
        s_branch K2_WINDOW
        """)

HEADER = '''; Kernarg layout for this problem (96 bytes, ptrs only, base s[0:1]):
'''
def kd(name, vgpr):
    return f'''.amdhsa_kernel {name}
  .amdhsa_next_free_vgpr {vgpr}
  .amdhsa_next_free_sgpr {102}
  .amdhsa_accum_offset {(vgpr+3)//4*4}
  .amdhsa_group_segment_fixed_size 0
  .amdhsa_kernarg_size 96
  .amdhsa_user_sgpr_count 2
  .amdhsa_user_sgpr_kernarg_segment_ptr 1
  .amdhsa_system_sgpr_workgroup_id_x 1
  .amdhsa_float_denorm_mode_32 3
.end_amdhsa_kernel
'''
def main():
    ks = []
    l2, v2 = K2().gen(); ks.append((NAME + '_kernel', fix_hazards(l2), v2))
    s = HEADER
    s += f'; @launch grid=(256,1,1) block=(512,1,1) lds={K2_LDS}\n'
    s += '.amdgcn_target "amdgcn-amd-amdhsa--gfx950"\n.text\n'
    for name, l, v in ks:
        s += f'.globl {name}\n.p2align 8\n.type {name},@function\n{name}:\n'
        s += '\n'.join((x if x.endswith(':') else '    ' + x) for x in l) + '\n'
    s += '.section .rodata,"a"\n' + ''.join('.p2align 6\n' + kd(name, v) for name, l, v in ks)
    out = sys.argv[1] if len(sys.argv) > 1 else f'/code/{NAME}.s'
    open(out, 'w').write(s)
    print('wrote', out, len(s), 'bytes')
main()
```
